```python
import torch

def _softmax(x, axis=-1):
    return torch.softmax(x, dim=axis)
def _gelu(x):
    return torch.nn.functional.gelu(x, approximate="tanh")
def _silu(x):
    return torch.nn.functional.silu(x)
def _sigmoid(x):
    return torch.sigmoid(x)
def _layernorm(x, axis=-1, eps=1e-5):
    m = x.mean(dim=axis, keepdim=True)
    v = x.var(dim=axis, keepdim=True, unbiased=False)
    return (x - m) / torch.sqrt(v + eps)
def _scatter_add(tgt, idx, src, axis=0):
    return tgt.clone().index_add_(axis, idx, src)
def _segment_sum(src, seg, n):
    out = torch.zeros((n,) + src.shape[1:], dtype=src.dtype)
    return out.index_add_(0, seg, src)
def _pad(x, pw):
    flat = tuple(v for pair in reversed(pw) for v in pair)
    return torch.nn.functional.pad(x, flat)

kernel_name = 'interleave_layers__mha_block__mixer_channel_mlp__prompt'

def setup_inputs():

    _w = (lambda a: (lambda t: t.to(torch.bfloat16) if t.is_floating_point() else t)(torch.as_tensor(a)))
    def _A_setup():
        B, S, D, H = 1, 2048, 640, 32
        return {
            "x": _w((lambda *s: torch.randn(*s, dtype=torch.bfloat16) * 0.05)(B, S, D)),
            "wqkv": _w((lambda *s: torch.randn(*s, dtype=torch.bfloat16) * 0.05)(D, 3 * D)),
            "wo": _w((lambda *s: torch.randn(*s, dtype=torch.bfloat16) * 0.05)(D, D)),
        }
    _A_in = _A_setup()

    def _B_setup():
        B, S, D, F = 1, 2048, 640, 1536
        return {
            "x": _w((lambda *s: torch.randn(*s, dtype=torch.bfloat16) * 0.05)(B, S, D)),
            "w1": _w((lambda *s: torch.randn(*s, dtype=torch.bfloat16) * 3.2)(D, F) * (D ** -0.5)),
            "b1": _w((lambda *s: torch.randn(*s, dtype=torch.bfloat16) * 0.8)(F)),
            "w2": _w((lambda *s: torch.randn(*s, dtype=torch.bfloat16) * 0.4)(F, D) * (F ** -0.5)),
            "b2": _w((lambda *s: torch.randn(*s, dtype=torch.bfloat16) * 0.4)(D)),
        }
    _B_in = _B_setup()

    return {
        "A_x": _A_in["x"],
        "A_wqkv": _A_in["wqkv"],
        "A_wo": _A_in["wo"],
        "B_x": _B_in["x"],
        "B_w1": _B_in["w1"],
        "B_b1": _B_in["b1"],
        "B_w2": _B_in["w2"],
        "B_b2": _B_in["b2"],
    }

def reference(A_x, A_wqkv, A_wo, B_x, B_w1, B_b1, B_w2, B_b2):
    def _A_ref(x, wqkv, wo):
        B, S, D = x.shape
        H = 32
        Dh = D // H
        qkv = (lambda x, *d: x.permute(*d))((x @ wqkv).reshape(B, S, 3, H, Dh), 2, 0, 3, 1, 4)
        q, k, v = qkv[0], qkv[1], qkv[2]
        scores = torch.einsum("bhqd,bhkd->bhqk", q, k) * (Dh ** -0.5)
        p = _softmax(scores, axis=-1)
        o = torch.einsum("bhqk,bhkd->bhqd", p, v)
        return (lambda x, *d: x.permute(*d))(o, 0, 2, 1, 3).reshape(B, S, D) @ wo

    def _B_ref(x, w1, b1, w2, b2):
        y = _layernorm(x, axis=-1)
        h = _gelu(torch.einsum("bsd,df->bsf", y, w1) + b1)
        return torch.einsum("bsf,fd->bsd", h, w2) + b2

    x = A_x
    x = x + _A_ref(_layernorm(x, axis=-1), A_wqkv, A_wo)
    x = x + _B_ref(_layernorm(x, axis=-1), B_w1, B_b1, B_w2, B_b2)
    x = x + _A_ref(_layernorm(x, axis=-1), A_wqkv, A_wo)
    x = x + _B_ref(_layernorm(x, axis=-1), B_w1, B_b1, B_w2, B_b2)
    return x
```

```python
NAME = "interleave_layers__mha_block__mixer_channel_mlp__prompt"
MB = 1 << 20

def v(i): return f"v{i}"
def vv(i, n): return f"v{i}" if n == 1 else f"v[{i}:{i+n-1}]"
def s(i): return f"s{i}"
def ss(i, n): return f"s{i}" if n == 1 else f"s[{i}:{i+n-1}]"

class Kern:
    def __init__(self, name, nwg, block, lds, vgpr=256):
        self.name = name
        self.nwg = nwg
        self.block = block
        self.lds = lds
        self.vgpr = vgpr
        self.L = []
        self.nlab = 0
    def __call__(self, t):
        for line in t.split("\n"):
            line = line.strip()
            if line:
                self.L.append("  " + line)
    def c(self, t):
        self.L.append("  ; " + t)
    def lab(self, l):
        self.L.append(f"{self.name}_{l}:")
    def ref(self, l):
        return f"{self.name}_{l}"
    def newlab(self, p="L"):
        self.nlab += 1
        return f"{p}{self.nlab}"
    def srd(self, d, ptr, off, size):
        if off:
            self(f"s_add_u32 s{d}, s{ptr}, {off:#x}")
            self(f"s_addc_u32 s{d+1}, s{ptr+1}, 0")
        else:
            self(f"s_mov_b32 s{d}, s{ptr}")
            self(f"s_mov_b32 s{d+1}, s{ptr+1}")
        self(f"s_mov_b32 s{d+2}, {size:#x}")
        self(f"s_mov_b32 s{d+3}, 0x00020000")
    def karg(self, d, off):
        self(f"s_load_dwordx2 s[{d}:{d+1}], s[0:1], {off}")
    PROF = False
    def stamp(self, i):
        if Kern.PROF:
            self(f"s_memrealtime s[{70+4*i}:{71+4*i}]")
            self(f"s_memtime s[{72+4*i}:{73+4*i}]")
    def stamp_flush(self, wsreg, kidx, n, wave_sreg):
        if not Kern.PROF: return
        self("s_waitcnt lgkmcnt(0)")
        self.srd(96, wsreg, 64 * MB + kidx * MB, MB)
        self(f"s_lshl_b32 s68, s2, 4")
        self(f"s_add_u32 s68, s68, s{wave_sreg}")
        self(f"s_lshl_b32 s68, s68, 6")
        self("s_mov_b64 exec, 1")
        self("v_mov_b32 v60, 0")
        for i in range(n):
            self(f"v_mov_b32 v62, s{70+4*i}")
            self(f"v_mov_b32 v63, s{72+4*i}")
            self(f"buffer_store_dwordx2 v[62:63], v60, s[96:99], s68 offen offset:{8*i}")
            self("s_waitcnt vmcnt(0)")
    def text(self):
        out = []
        out.append(f".globl {self.name}")
        out.append(".p2align 8")
        out.append(f".type {self.name},@function")
        out.append(f"{self.name}:")
        out += self.L
        return "\n".join(out)
    def desc(self):
        acc = (self.vgpr + 3) // 4 * 4
        return f""".section .rodata,"a"
.p2align 6
.amdhsa_kernel {self.name}
  .amdhsa_next_free_vgpr {self.vgpr}
  .amdhsa_next_free_sgpr 102
  .amdhsa_accum_offset {acc}
  .amdhsa_group_segment_fixed_size 0
  .amdhsa_kernarg_size 88
  .amdhsa_user_sgpr_count 2
  .amdhsa_user_sgpr_kernarg_segment_ptr 1
  .amdhsa_system_sgpr_workgroup_id_x 1
.end_amdhsa_kernel"""

HEADER = """; Kernarg layout for this problem (88 bytes, ptrs only, base s[0:1]):
"""

def assemble(kerns, order=None):
    order = order or kerns
    out = [HEADER.rstrip("\n")]
    for k in order:
        out.append(f"; @launch kernel={k.name} grid=({k.nwg},1,1) block=({k.block},1,1) lds={k.lds}")
    out.append('.amdgcn_target "amdgcn-amd-amdhsa--gfx950"')
    out.append(".text")
    for k in kerns:
        out.append(k.text())
    for k in kerns:
        out.append(k.desc())
    return "\n".join(out) + "\n"
```

```python
import re, sys

TRANS = ("v_exp_f32", "v_log_f32", "v_rcp_f32", "v_rsq_f32", "v_sqrt_f32", "v_sin_f32", "v_cos_f32",
         "v_exp_f16", "v_rcp_f16")

def regs(op):
    op = op.strip()
    neg = op.lstrip("-|").rstrip("|")
    m = re.fullmatch(r"([vs])(\d+)", neg)
    if m: return {(m.group(1), int(m.group(2)))}
    m = re.fullmatch(r"([vs])\[(\d+):(\d+)\]", neg)
    if m: return {(m.group(1), i) for i in range(int(m.group(2)), int(m.group(3)) + 1)}
    if neg in ("vcc", "vcc_lo", "vcc_hi"): return {("vcc", 0)}
    if neg == "m0": return {("m0", 0)}
    if neg in ("exec", "exec_lo", "exec_hi"): return {("exec", 0)}
    return set()

class I:
    __slots__ = ("line", "txt", "op", "ops", "kind", "wr", "rd", "states", "passes", "A", "B", "C", "dpp", "mods", "target")

def parse(lines):
    ins = []
    labels = {}
    for ln, raw in enumerate(lines):
        t = raw.split(";")[0].strip()
        if not t or t.startswith("."):
            continue
        if t.endswith(":"):
            labels[t[:-1]] = len(ins)
            continue
        parts = t.split(None, 1)
        op = parts[0]
        rest = parts[1] if len(parts) > 1 else ""
        toks = [x.strip() for x in rest.split(",")] if rest else []
        mods = ""
        if toks:
            last = toks[-1].split(None, 1)
            toks[-1] = last[0]
            mods = last[1] if len(last) > 1 else ""
        i = I(); i.line = ln; i.txt = t; i.op = op; i.ops = toks; i.mods = mods
        i.states = 1; i.passes = 0; i.A = i.B = i.C = set(); i.dpp = False; i.target = None
        wr, rd = set(), set()
        base = op.replace("_e32", "").replace("_e64", "").replace("_dpp", "").replace("_sdwa", "")
        i.op = base
        if op == "s_nop":
            i.kind = "nop"; i.states = int(toks[0], 0) + 1
        elif op.startswith("v_mfma"):
            i.kind = "mfma"; i.passes = 8 if "32x32" in op else 4
            wr = regs(toks[0]); i.A = regs(toks[1]); i.B = regs(toks[2]); i.C = regs(toks[3])
            rd = i.A | i.B | i.C
        elif op.startswith("v_"):
            i.kind = "valu"
            i.dpp = "_dpp" in op or "row_" in mods or "quad_perm" in mods
            if base.startswith("v_permlane") and "swap" in base:
                wr = regs(toks[0]) | regs(toks[1]); rd = set(wr)
            elif base.startswith("v_cmp"):
                wr = regs(toks[0]); rd = set().union(*[regs(x) for x in toks[1:]])
            else:
                wr = regs(toks[0]); rd = set().union(*[regs(x) for x in toks[1:]]) if len(toks) > 1 else set()
                if base in ("v_fmac_f32", "v_mac_f32", "v_dot2c_f32_bf16", "v_pk_fmac_f16") or "dst_unused:UNUSED_PRESERVE" in mods or "op_sel" in mods:
                    rd |= wr
                if base == "v_cndmask_b32" and len(toks) == 3:
                    rd |= {("vcc", 0)}
                if base in ("v_add_co_u32", "v_sub_co_u32", "v_addc_co_u32"):
                    wr |= regs(toks[1])
        elif op.startswith("ds_"):
            i.kind = "ds"
            if op.startswith("ds_read") or "permute" in op or "swizzle" in op:
                wr = regs(toks[0]); rd = set().union(*[regs(x) for x in toks[1:]])
            else:
                rd = set().union(*[regs(x) for x in toks])
        elif op.startswith("buffer_") or op.startswith("global_"):
            i.kind = "vmem"
            lds = bool(re.search(r"\blds\b", mods))
            if "load" in op and not lds:
                wr = regs(toks[0]); rd = set().union(*[regs(x) for x in toks[1:]])
            elif "atomic" in op and ("sc0" in mods):
                wr = regs(toks[0]); rd = set().union(*[regs(x) for x in toks])
            else:
                rd = set().union(*[regs(x) for x in toks])
                if lds: rd |= {("m0", 0)}
        elif op.startswith("s_"):
            i.kind = "salu"
            if op.startswith("s_cbranch") or op == "s_branch":
                i.target = toks[0]
            elif op.startswith("s_cmp") or op in ("s_waitcnt", "s_barrier", "s_endpgm", "s_setprio", "s_sleep"):
                rd = set().union(*[regs(x) for x in toks]) if op.startswith("s_cmp") else set()
            else:
                wr = regs(toks[0]); rd = set().union(*[regs(x) for x in toks[1:]]) if len(toks) > 1 else set()
                if "saveexec" in op: wr |= {("exec", 0)}
        else:
            raise SystemExit(f"unknown instr: {t}")
        i.wr, i.rd = wr, rd
        ins.append(i)
    return ins, labels

def succ(ins, labels, idx):
    i = ins[idx]
    if i.op == "s_endpgm": return []
    out = []
    if i.target is not None:
        if i.target in labels: out.append(labels[i.target])
        if i.op == "s_branch": return out
    if idx + 1 < len(ins): out.append(idx + 1)
    return out

def need(p, c):
    n = 0; why = ""
    def up(x, w):
        nonlocal n, why
        if x > n: n, why = x, w
    pv = {r for r in p.wr if r[0] == "v"}
    if p.kind == "valu":
        if c.kind == "mfma" and pv & c.rd: up(2, "valu->mfma")
        if c.kind == "valu":
            if p.op in TRANS and c.op not in TRANS and pv & c.rd: up(1, "trans->valu")
            if c.op.startswith("v_permlane") and pv & c.rd: up(2, "valu->permlane")
            if c.dpp and pv & c.rd: up(2, "valu->dpp")
            if c.op in ("v_readfirstlane_b32", "v_readlane_b32") and pv & c.rd: up(1, "valu->readlane")
            if "op_sel" in p.mods or "sdwa" in p.txt.split()[0]:
                if pv & (c.rd | c.wr): up(1, "opsel->valu")
        ps = {r for r in p.wr if r[0] in ("s", "vcc")}
        if ps:
            if c.kind == "valu" and ps & c.rd: up(2, "valu sgpr->valu")
            if c.kind == "mfma" and ps & c.rd: up(2, "valu sgpr->mfma")
            if c.kind == "vmem" and ps & c.rd: up(5, "valu sgpr->vmem")
    if p.kind == "mfma":
        big = p.passes == 8
        if c.kind == "mfma":
            if pv & c.C:
                if not (c.C == pv and c.passes == p.passes): up(10 if big else 6, "mfma->mfma C overlap")
            if pv & (c.A | c.B): up(12 if big else 8, "mfma->mfma AB")
            if pv & c.wr and not (c.C == pv and c.passes == p.passes) and not (pv & c.C):
                up(12 if big else 8, "mfma WAW mfma (conservative)")
        elif c.kind in ("valu", "ds", "vmem"):
            if pv & (c.rd | c.wr): up(12 if big else 8, "mfma D->valu/mem")
        if c.kind == "valu" and p.C & c.wr: up(7 if big else 3, "mfma C WAR")
    if p.kind == "vmem" and "store" in p.op and ("x4" in p.op or "x3" in p.op):
        data = regs(p.ops[0])
        if data & c.wr: up(2 if c.kind == "valu" else 1, "wide store WAR")
    if p.kind == "ds" and p.op in ("ds_write_b128", "ds_write_b96"):
        data = regs(p.ops[1])
        if data & c.wr and c.kind == "valu": up(2, "wide ds store WAR (conservative)")
    if p.kind == "salu" and ("m0", 0) in p.wr and c.kind == "vmem" and ("m0", 0) in c.rd: up(1, "m0->lds dma")
    return n, why

def check(text, verbose=True):
    lines = text.split("\n")
    ins, labels = parse(lines)
    bad = []
    MAXD = 13
    for pi, p in enumerate(ins):
        if p.kind in ("nop",): continue
        if p.kind == "salu" and ("m0", 0) not in p.wr: continue
        if p.kind == "ds" and p.op not in ("ds_write_b128", "ds_write_b96"): continue
        if p.kind == "vmem" and "store" not in p.op: continue
        maxd = MAXD if p.kind == "mfma" else 5
        best = {}
        stack = [(j, 0) for j in succ(ins, labels, pi)]
        while stack:
            j, d = stack.pop()
            if d >= maxd: continue
            if j in best and best[j] <= d: continue
            best[j] = d
            c = ins[j]
            n, why = need(p, c)
            if n > d:
                bad.append((p.line + 1, c.line + 1, n, d, why, p.txt, c.txt))
            for j2 in succ(ins, labels, j):
                stack.append((j2, d + c.states))
    if verbose:
        for b in bad[:40]:
            print(f"HAZARD line {b[0]}->{b[1]} need {b[2]} have {b[3]} [{b[4]}]: {b[5]}  ==>  {b[6]}")
        if bad: print(len(bad), "hazards")
    return bad

if __name__ == "__main__":
    bad = check(open(sys.argv[1]).read())
    print("hazard check:", "OK" if not bad else "FAILED")
```

```python
from dsl import *
import struct
def f2u(x):
    return struct.unpack("<I", struct.pack("<f", x))[0]

KB = 1024
WS_WQ = 0
WS_W1 = 3 * MB
WS_WO = 5 * MB
WS_W2 = 6 * MB
WS_CSQ = 8 * MB
WS_CS1 = 8 * MB + 128 * KB
WS_ST0 = 8 * MB + 256 * KB
WS_ST1 = 8 * MB + 512 * KB
WS_X0 = 9 * MB
WS_X1 = 12 * MB
WS_X2 = 15 * MB
WS_O = 18 * MB
WS_Q = 21 * MB
WS_KV = 24 * MB
WS_H = 30 * MB
X_BYTES = 2048 * 640 * 2
H_BYTES = 2048 * 1536 * 2
ST_BYTES = 16 * 2048 * 8
Q_BYTES = 32 * 64 * 1280
KV_BYTES = 32 * 64 * 2560
WS_SIZE = 40 * MB
QSCALE = (20 ** -0.5) * 1.4426950408889634
NCSP = 10

def wave_id(k, sreg, vtmp=1):
    k(f"v_lshrrev_b32 v{vtmp}, 6, v0")
    k("s_nop 0")
    k(f"v_readfirstlane_b32 s{sreg}, v{vtmp}")
    k("v_and_b32 v0, 63, v0")

def gen_prep():
    NWG = 220
    k = Kern("prep_kernel", NWG, 512, 4 * 8192, vgpr=64)
    k(f"s_cmp_ge_u32 s2, {NWG}")
    k(f"s_cbranch_scc1 {k.ref('end')}")
    k.karg(4, 0)
    k.karg(6, 8)
    k.karg(8, 16)
    k.karg(10, 32)
    k.karg(12, 48)
    k.karg(14, 80)
    wave_id(k, 26)
    k("s_waitcnt lgkmcnt(0)")
    k.srd(16, 14, 0, WS_SIZE)
    k("s_cmp_ge_u32 s26, 4")
    k(f"s_cbranch_scc1 {k.ref('stats')}")
    k("s_lshl_b32 s3, s2, 2")
    k("s_add_u32 s3, s3, s26")
    def setup(lbl, lo, ncg, ptr, size, pitch, TN, K, dst, cs, csp):
        k.lab(lbl)
        k(f"s_sub_u32 s3, s3, {lo}")
        k.srd(20, ptr, 0, size)
        k(f"s_mov_b32 s27, {pitch}")
        k(f"s_mov_b32 s28, {(65536 + TN - 1)//TN}")
        k(f"s_mov_b32 s29, {TN}")
        k(f"s_mov_b32 s30, {K//8*TN*16}")
        k(f"s_mov_b32 s31, {dst}")
        k(f"s_mul_i32 s32, s3, {(65536 + ncg - 1)//ncg}")
        k("s_lshr_b32 s32, s32, 16")
        k(f"s_mul_i32 s33, s32, {ncg}")
        k("s_sub_u32 s33, s3, s33")
        k(f"s_mov_b32 s34, {cs if cs is not None else 0xffffffff:#x}")
        k(f"s_mov_b32 s35, {csp}")
        k(f"s_branch {k.ref('go')}")
    k("s_cmp_ge_u32 s3, 640"); k(f"s_cbranch_scc1 {k.ref('m_w2')}")
    k("s_cmp_ge_u32 s3, 540"); k(f"s_cbranch_scc1 {k.ref('m_wo')}")
    k("s_cmp_ge_u32 s3, 300"); k(f"s_cbranch_scc1 {k.ref('m_w1')}")
    setup("m_wq", 0, 30, 6, 640 * 3840, 3840, 128, 640, WS_WQ, WS_CSQ, 1920 * 4)
    setup("m_w1", 300, 24, 10, 640 * 3072, 3072, 96, 640, WS_W1, WS_CS1, 1536 * 4)
    setup("m_wo", 540, 10, 8, 640 * 1280, 1280, 80, 640, WS_WO, None, 0)
    setup("m_w2", 640, 10, 12, 1536 * 1280, 1280, 80, 1536, WS_W2, None, 0)
    k.lab("go")
    k("v_lshrrev_b32 v2, 3, v0")
    k("v_mul_lo_u32 v2, v2, s27")
    k("v_and_b32 v3, 7, v0")
    k("v_lshl_add_u32 v2, v3, 4, v2")
    k("s_lshl_b32 s36, s32, 6")
    k("s_mul_i32 s36, s36, s27")
    k("s_lshl_b32 s37, s33, 7")
    k("s_add_u32 s36, s36, s37")
    k("s_lshl_b32 s38, s27, 3")
    k("s_lshl_b32 s39, s26, 13")
    for j in range(8):
        k(f"s_add_u32 m0, s39, {j*1024}")
        k("s_nop 0")
        k("buffer_load_dwordx4 v2, s[20:23], s36 offen lds")
        if j < 7:
            k("s_add_u32 s36, s36, s38")
    k("s_lshl_b32 s40, s33, 6")
    k("v_add_u32 v4, s40, v0")
    k("v_mul_lo_u32 v5, v4, s28")
    k("v_lshrrev_b32 v5, 16, v5")
    k("v_mul_lo_u32 v6, v5, s29")
    k("v_sub_u32 v6, v4, v6")
    k("v_mul_lo_u32 v5, v5, s30")
    k("v_lshl_add_u32 v5, v6, 4, v5")
    k("s_lshl_b32 s41, s29, 4")
    k("s_lshl_b32 s42, s32, 3")
    k("s_mul_i32 s42, s42, s41")
    k("s_add_u32 s42, s42, s31")
    k("v_bfe_u32 v7, v0, 2, 2")
    k("v_lshlrev_b32 v7, 7, v7")
    k("v_lshrrev_b32 v8, 4, v0")
    k("v_lshl_add_u32 v7, v8, 5, v7")
    k("v_and_b32 v8, 3, v0")
    k("v_lshl_add_u32 v7, v8, 3, v7")
    k("v_add_u32 v7, s39, v7")
    k("v_mov_b32 v10, 0")
    for ku in range(8):
        k(f"s_waitcnt vmcnt({7-ku if ku == 0 else 7})") if False else None
    for ku in range(8):
        k("s_waitcnt vmcnt(7)")
        r = 16 + 4 * ku
        k(f"ds_read_b64_tr_b16 v[{r}:{r+1}], v7 offset:{ku*1024}")
        k(f"ds_read_b64_tr_b16 v[{r+2}:{r+3}], v7 offset:{ku*1024+512}")
        k("s_waitcnt lgkmcnt(0)")
        k(f"buffer_store_dwordx4 v[{r}:{r+3}], v5, s[16:19], s42 offen")
        if ku < 7:
            k("s_add_u32 s42, s42, s41")
    k("s_cmp_eq_u32 s34, 0xffffffff")
    k(f"s_cbranch_scc1 {k.ref('fin')}")
    for i in range(32):
        r = 16 + i
        k(f"v_lshlrev_b32 v8, 16, v{r}")
        k(f"v_and_b32 v9, 0xffff0000, v{r}")
        k("v_add_f32 v10, v10, v8")
        k("v_add_f32 v10, v10, v9")
    k("s_mul_i32 s43, s32, s35")
    k("s_add_u32 s43, s43, s34")
    k("v_lshlrev_b32 v4, 2, v4")
    k("buffer_store_dword v10, v4, s[16:19], s43 offen")
    k.lab("fin")
    k("s_waitcnt vmcnt(0)")
    k("s_endpgm")
    k.lab("stats")
    k("s_cmp_ge_u32 s2, 128")
    k(f"s_cbranch_scc1 {k.ref('end')}")
    k.srd(20, 4, 0, X_BYTES)
    k("s_sub_u32 s26, s26, 4")
    k("s_lshl_b32 s3, s2, 4")
    k("s_lshl_b32 s27, s26, 2")
    k("s_add_u32 s3, s3, s27")
    k("v_lshrrev_b32 v1, 4, v0")
    k("v_add_u32 v1, s3, v1")
    k("v_and_b32 v2, 15, v0")
    k("v_mul_u32_u24 v3, 1280, v1")
    k("v_lshl_add_u32 v3, v2, 4, v3")
    for i in range(5):
        k(f"buffer_load_dwordx4 v[{8+4*i}:{11+4*i}], v3, s[20:23], 0 offen offset:{256*i}")
    k("v_lshrrev_b32 v30, 5, v1")
    k("v_mul_u32_u24 v30, 40960, v30")
    k("v_and_b32 v31, 31, v1")
    k("v_lshl_add_u32 v30, v31, 4, v30")
    k("v_lshl_add_u32 v30, v2, 9, v30")
    k("v_mov_b32 v4, 0")
    k("v_mov_b32 v5, 0")
    for i in range(5):
        k(f"s_waitcnt vmcnt(4)")
        k(f"s_mov_b32 s28, {WS_X0 + i*8192}")
        k(f"buffer_store_dwordx4 v[{8+4*i}:{11+4*i}], v30, s[16:19], s28 offen")
        for j in range(4):
            r = 8 + 4 * i + j
            k(f"v_lshlrev_b32 v6, 16, v{r}")
            k(f"v_and_b32 v7, 0xffff0000, v{r}")
            k("v_add_f32 v4, v4, v6")
            k("v_fmac_f32 v5, v6, v6")
            k("v_add_f32 v4, v4, v7")
            k("v_fmac_f32 v5, v7, v7")
    for sh in (8, 4, 2, 1):
        k("s_nop 1")
        k(f"v_add_f32_dpp v4, v4, v4 row_ror:{sh} row_mask:0xf bank_mask:0xf")
        k(f"v_add_f32_dpp v5, v5, v5 row_ror:{sh} row_mask:0xf bank_mask:0xf")
    k("v_lshlrev_b32 v3, 3, v1")
    k("v_cmp_eq_u32 vcc, 0, v2")
    k("s_and_saveexec_b64 s[30:31], vcc")
    k(f"s_mov_b32 s28, {WS_ST0}")
    k("buffer_store_dwordx2 v[4:5], v3, s[16:19], s28 offen")
    k("s_waitcnt vmcnt(0)")
    k.lab("end")
    k("s_endpgm")
    return k

def ring_loader(k, NCH, NSLOT, dma, nD, pre_b0=None, post_b0=None):
    dma(0)
    dma(1)
    k(f"s_waitcnt vmcnt({nD})")
    if pre_b0: pre_b0()
    k("s_barrier")
    issued = 2
    if post_b0: post_b0()
    for i in range(1, NCH):
        while issued < NCH and issued <= i - 2 + NSLOT:
            dma(issued); issued += 1
        k(f"s_waitcnt vmcnt({(issued - 1 - i) * nD})")
        k("s_barrier")

def gen_gemmA(name, kind, layer, kidx=0):
    if kind == "qkv":
        NWG, NB, TB, TN = 240, 2, 2, 128
        WS_W, XSRC, ST, NPART, CSP, NCOL = WS_WQ, (WS_X0 if layer == 0 else WS_X2), WS_ST0, (1 if layer == 0 else 16), WS_CSQ, 1920
    else:
        NWG, NB, TB, TN = 256, 3, 1, 96
        WS_W, XSRC, ST, NPART, CSP, NCOL = WS_W1, WS_X1, WS_ST1, 16, WS_CS1, 1536
    WB = TN * 128
    SLOT = WB + 16384
    NSLOT = 4
    NCH = 10
    STATS = NSLOT * SLOT
    LDS = STATS + 2048
    k = Kern(name, NWG, 512, LDS, vgpr=256)
    k(f"s_cmp_ge_u32 s2, {NWG}")
    k(f"s_cbranch_scc1 {k.ref('end')}")
    k.stamp(0)
    k.karg(6, 80)
    if kind == "w1":
        k.karg(8, 40)
    wave_id(k, 26)
    k("s_and_b32 s20, s2, 7")
    k("s_lshr_b32 s21, s2, 3")
    if kind == "qkv":
        k("s_and_b32 s22, s20, 1")
        k("s_mul_i32 s22, s22, 30")
        k("s_add_u32 s22, s22, s21")
        k("s_lshr_b32 s25, s22, 2")
        k("s_and_b32 s22, s22, 3")
    else:
        k("s_and_b32 s22, s20, 1")
        k("s_lshl_b32 s22, s22, 3")
        k("s_lshr_b32 s23, s21, 2")
        k("s_add_u32 s25, s22, s23")
        k("s_and_b32 s22, s21, 3")
    k("s_lshr_b32 s23, s20, 1")
    k("s_lshl_b32 s23, s23, 2")
    k("s_add_u32 s24, s23, s22")
    k("s_cmp_lt_u32 s26, 4")
    k(f"s_cbranch_scc1 {k.ref('compute')}")

    k("s_sub_u32 s26, s26, 4")
    k("v_lshlrev_b32 v1, 4, v0")
    nW = WB // 4096
    k(f"s_mul_i32 s40, s25, {80*TN*16}")
    k(f"s_mul_i32 s41, s26, {nW*1024}")
    k("s_add_u32 s40, s40, s41")
    k(f"s_add_u32 s40, s40, {WS_W}")
    k("s_mov_b32 s42, s41")
    k("s_lshl_b32 s43, s24, 2")
    k("s_add_u32 s43, s43, s26")
    k("s_mul_i32 s43, s43, 40960")
    k(f"s_add_u32 s43, s43, {XSRC}")
    k("s_lshl_b32 s44, s26, 12")
    k(f"s_add_u32 s44, s44, {WB}")
    k("s_waitcnt lgkmcnt(0)")
    k.srd(12, 6, 0, WS_SIZE)
    def dma(ch):
        slot = ch % NSLOT
        k(f"s_add_u32 m0, s42, {slot*SLOT}")
        k(f"s_add_u32 s45, s40, {ch*WB}")
        for i in range(nW):
            k(f"buffer_load_dwordx4 v1, s[12:15], s45 offen offset:{i*1024} lds")
        k(f"s_add_u32 m0, s44, {slot*SLOT}")
        k(f"s_add_u32 s45, s43, {ch*4096}")
        for i in range(4):
            k(f"buffer_load_dwordx4 v1, s[12:15], s45 offen offset:{i*1024} lds")
    nD = nW + 4
    k.stamp(1)
    dma(0)
    k("v_and_b32 v2, 31, v0")
    k("v_lshrrev_b32 v3, 5, v0")
    k("s_lshl_b32 s46, s24, 7")
    k("s_lshl_b32 s47, s26, 5")
    k("s_add_u32 s46, s46, s47")
    k("v_add_u32 v4, s46, v2")
    k("v_lshlrev_b32 v4, 3, v4")
    nst = 0
    if NPART == 16:
        k("v_lshl_add_u32 v4, v3, 17, v4")
        for p in range(8):
            k(f"s_mov_b32 s47, {ST + p*16384}")
            k(f"buffer_load_dwordx2 v[{16+2*p}:{17+2*p}], v4, s[12:15], s47 offen")
        nst = 8
    else:
        k(f"s_mov_b32 s47, {ST}")
        k("buffer_load_dwordx2 v[16:17], v4, s[12:15], s47 offen")
        nst = 1
    k("s_lshl_b32 s47, s26, 5")
    k("v_add_u32 v5, s47, v2")
    k(f"s_mul_i32 s47, s25, {TN}")
    k("v_add_u32 v6, s47, v5")
    k("v_lshlrev_b32 v7, 2, v6")
    k(f"v_mul_u32_u24 v8, {5*NCOL*4}, v3")
    k("v_add_u32 v7, v7, v8")
    for p in range(5):
        k(f"s_mov_b32 s47, {CSP + p*NCOL*4}")
        k(f"buffer_load_dword v{32+p}, v7, s[12:15], s47 offen")
    nst += 5
    if kind == "w1":
        k.srd(16, 8, 0, 1536 * 2)
        k("v_lshlrev_b32 v9, 1, v6")
        k("buffer_load_ushort v38, v9, s[16:19], 0 offen")
        nst += 1
    dma(1)
    k(f"s_waitcnt vmcnt({nD})")
    k.stamp(2)
    k("s_barrier")
    if NPART == 16:
        for p in range(1, 8):
            k(f"v_add_f32 v16, v16, v{16+2*p}")
            k(f"v_add_f32 v17, v17, v{17+2*p}")
        k("v_mov_b32 v18, v16")
        k("v_mov_b32 v19, v17")
        k("s_nop 1")
        k("v_permlane32_swap_b32 v16, v18")
        k("v_permlane32_swap_b32 v17, v19")
        k("s_nop 1")
        k("v_add_f32 v16, v16, v18")
        k("v_add_f32 v17, v17, v19")
    k(f"v_mul_f32 v16, {f2u(1/640):#x}, v16")
    k(f"v_mul_f32 v17, {f2u(1/640):#x}, v17")
    k("v_fma_f32 v17, -v16, v16, v17")
    k("v_max_f32 v17, 0, v17")
    k(f"v_add_f32 v18, {f2u(1e-5):#x}, v17")
    k("v_rsq_f32 v18, v18")
    if kind == "w1":
        k("s_nop 0")
        k("v_mul_f32 v19, v18, v18")
        k("v_mul_f32 v19, v19, v17")
        k(f"v_add_f32 v19, {f2u(1e-5):#x}, v19")
        k("v_rsq_f32 v19, v19")
        k("s_nop 0")
        k("v_mul_f32 v18, v18, v19")
    else:
        k("s_cmp_lt_u32 s25, 5")
        k(f"s_cselect_b32 s46, {f2u(QSCALE):#x}, 1.0")
        k("v_mul_f32 v18, s46, v18")
    k("s_nop 0")
    k("v_mul_f32 v19, v18, v16")
    for p in range(1, 5):
        k(f"v_add_f32 v32, v32, v{32+p}")
    k("v_mov_b32 v33, v32")
    k("s_nop 1")
    k("v_permlane32_swap_b32 v32, v33")
    k("s_nop 1")
    k("v_add_f32 v32, v32, v33")
    k("v_cmp_eq_u32 vcc, 0, v3")
    k("s_lshl_b32 s47, s26, 7")
    k("v_lshlrev_b32 v2, 2, v2")
    k("v_add_u32 v2, s47, v2")
    k(f"v_add_u32 v2, {STATS}, v2")
    k("v_lshl_add_u32 v2, v3, 9, v2")
    k("v_cndmask_b32 v18, v19, v18, vcc")
    if kind == "w1":
        k("v_lshlrev_b32 v38, 16, v38")
        k("v_cndmask_b32 v32, v38, v32, vcc")
    k("ds_write_b32 v2, v18")
    k("ds_write_b32 v2, v32 offset:1024")
    k("s_waitcnt lgkmcnt(0)")
    issued = 2
    for i in range(1, NCH):
        while issued < NCH and issued <= i - 2 + NSLOT:
            dma(issued); issued += 1
        k(f"s_waitcnt vmcnt({(issued - 1 - i) * nD})")
        k("s_barrier")
    k.stamp(4)
    k("s_add_u32 s26, s26, 4")
    k.stamp_flush(6, kidx, 5, 26)
    k.lab("end")
    k("s_endpgm")

    k.lab("compute")
    ACC = 64
    FA = [128, 128 + 4 * NB]
    FB = [160, 160 + 4 * TB]
    AW, AX = 1, 3
    HH, TL = 17, 16
    if kind == "qkv":
        k("s_and_b32 s27, s26, 1")
        k("s_lshr_b32 s36, s26, 1")
    else:
        k("s_mov_b32 s27, 0")
        k("s_mov_b32 s36, s26")
    k(f"v_lshrrev_b32 v{HH}, 5, v0")
    k(f"v_and_b32 v{TL}, 31, v0")
    k(f"v_mul_u32_u24 v20, {TN*16}, v{HH}")
    k(f"v_lshl_add_u32 v20, v{TL}, 4, v20")
    k(f"s_mul_i32 s37, s27, {NB*512}")
    k(f"v_add_u32 v{AW}, s37, v20")
    k(f"v_add_u32 v{AW+1}, {2*SLOT}, v{AW}")
    k(f"v_lshlrev_b32 v20, 4, v0")
    k(f"s_mul_i32 s37, s36, {TB*4096}")
    k(f"s_add_u32 s37, s37, {WB}")
    k(f"v_add_u32 v{AX}, s37, v20")
    k(f"v_add_u32 v{AX+1}, {2*SLOT}, v{AX}")

    def reads(step):
        ch, ks = divmod(step, 4)
        slot = ch % NSLOT
        half, sl = divmod(slot, 2)
        st = step & 1
        out = []
        for nb in range(NB):
            d = FA[st] + nb * 4
            out.append(f"ds_read_b128 v[{d}:{d+3}], v{AW+half} offset:{sl*SLOT + ks*2*TN*16 + nb*512}")
        for tb in range(TB):
            d = FB[st] + tb * 4
            out.append(f"ds_read_b128 v[{d}:{d+3}], v{AX+half} offset:{sl*SLOT + ks*1024 + tb*4096}")
        return out

    def mainloop(swap):
        k.stamp(1)
        k("s_barrier")
        k.stamp(2)
        for r in reads(0):
            k(r)
        NS = NCH * 4
        for step in range(NS):
            st = step & 1
            k("s_waitcnt lgkmcnt(0)")
            if step % 4 == 3 and step + 1 < NS:
                k("s_barrier")
            rd = reads(step + 1) if step + 1 < NS else []
            mf = []
            for nb in range(NB):
                for tb in range(TB):
                    d = ACC + (nb * TB + tb) * 16
                    a = FA[st] + nb * 4
                    b = FB[st] + tb * 4
                    c = "0" if step == 0 else f"v[{d}:{d+15}]"
                    if swap:
                        mf.append(f"v_mfma_f32_32x32x16_bf16 v[{d}:{d+15}], v[{b}:{b+3}], v[{a}:{a+3}], {c}")
                    else:
                        mf.append(f"v_mfma_f32_32x32x16_bf16 v[{d}:{d+15}], v[{a}:{a+3}], v[{b}:{b+3}], {c}")
            ri = 0
            for i, m in enumerate(mf):
                k(m)
                for r in rd[ri:ri + 2]:
                    k(r)
                ri += 2
            assert ri >= len(rd)
        k.stamp(3)

    k("s_waitcnt lgkmcnt(0)")
    if kind == "qkv":
        k("s_cmp_ge_u32 s25, 10")
        k(f"s_cbranch_scc1 {k.ref('vpath')}")
        pre_qk(k, HH, TL)
        mainloop(False)
        epi_qk(k, ACC, STATS, HH, TL)
        k.stamp(4); k.stamp_flush(6, kidx, 5, 26)
        k("s_endpgm")
        k.lab("vpath")
        pre_v(k, HH, TL)
        mainloop(True)
        epi_v(k, ACC, STATS, HH, TL)
        k.stamp(4); k.stamp_flush(6, kidx, 5, 26)
        k("s_endpgm")
    else:
        mainloop(False)
        epi_w1(k, ACC, STATS, HH, TL)
        k.stamp(4); k.stamp_flush(6, kidx, 5, 26)
        k("s_endpgm")
    return k


def pre_qk(k, HH, TL):
    k.srd(48, 6, 0, WS_SIZE)
    k("s_cmp_lt_u32 s25, 5")
    k(f"s_mov_b32 s37, {WS_KV}")
    k(f"s_cselect_b32 s37, {WS_Q}, s37")
    k("s_cselect_b32 s38, 0, 5")
    k("s_movk_i32 s39, 2560")
    k("s_cselect_b32 s39, 1280, s39")
    k("s_lshl_b32 s40, s39, 6")
    k("s_sub_u32 s38, s25, s38")
    k("s_lshl_b32 s41, s24, 2")
    k("s_lshl_b32 s42, s36, 1")
    k("s_add_u32 s41, s41, s42")
    k("s_mul_i32 s41, s41, s39")
    k("s_add_u32 s52, s37, s41")
    k("s_add_u32 s53, s52, s39")
    k("s_lshl_b32 s38, s38, 5")
    k("s_lshl_b32 s42, s27, 4")
    k("s_add_u32 s38, s38, s42")
    k(f"v_add_u32 v21, s38, v{HH}")
    k(f"v_lshlrev_b32 v22, 3, v{TL}")
    for nb in range(2):
        for q in range(4):
            d = 24 + nb * 4 + q
            k(f"v_add_u32 v23, {nb*8+2*q}, v21")
            k("v_mul_u32_u24 v18, 205, v23")
            k("v_lshrrev_b32 v18, 10, v18")
            k("v_mul_u32_u24 v19, 5, v18")
            k("v_sub_u32 v23, v23, v19")
            k("v_mul_lo_u32 v18, v18, s40")
            k("v_cmp_gt_u32 vcc, 4, v23")
            k("v_lshrrev_b32 v19, 1, v23")
            k("v_lshl_add_u32 v18, v19, 9, v18")
            k("v_and_b32 v19, 1, v23")
            k("v_lshl_add_u32 v18, v19, 3, v18")
            k("v_cndmask_b32 v19, 0, v22, vcc")
            k("v_add_u32 v18, v18, v22")
            k(f"v_add_u32 v{d}, v18, v19")


def epi_qk(k, ACC, STATS, HH, TL):
    NB, TB = 2, 2
    k(f"s_mul_i32 s37, s36, 256")
    k(f"v_lshlrev_b32 v20, 2, v{TL}")
    k(f"v_add_u32 v20, s37, v20")
    k(f"v_add_u32 v20, {STATS}, v20")
    for tb in range(TB):
        k(f"ds_read_b32 v{32+2*tb}, v20 offset:{tb*128}")
        k(f"ds_read_b32 v{33+2*tb}, v20 offset:{512+tb*128}")
    k(f"v_lshlrev_b32 v21, 4, v{HH}")
    k("s_lshl_b32 s37, s27, 8")
    k("v_add_u32 v21, s37, v21")
    k(f"v_add_u32 v21, {STATS+1024}, v21")
    CS = 128
    for nb in range(NB):
        for q in range(4):
            k(f"ds_read_b128 v[{CS+(nb*4+q)*4}:{CS+(nb*4+q)*4+3}], v21 offset:{nb*128+q*32}")
    k("s_waitcnt lgkmcnt(0)")
    k("s_nop 7")
    n = 0
    for nb in range(NB):
        for q in range(4):
            cs = CS + (nb * 4 + q) * 4
            for tb in range(TB):
                a = ACC + (nb * TB + tb) * 16 + q * 4
                rs, rm = 32 + 2 * tb, 33 + 2 * tb
                t = 36 + 4 * (n % 2)
                for h in range(2):
                    k(f"v_pk_mul_f32 v[{t+2*h}:{t+2*h+1}], v[{cs+2*h}:{cs+2*h+1}], v[{rs}:{rs+1}] op_sel:[0,1] op_sel_hi:[1,1]")
                for h in range(2):
                    k(f"v_pk_fma_f32 v[{t+2*h}:{t+2*h+1}], v[{a+2*h}:{a+2*h+1}], v[{rs}:{rs+1}], v[{t+2*h}:{t+2*h+1}] op_sel_hi:[1,0,1] neg_lo:[0,0,1] neg_hi:[0,0,1]")
                o = 44 + 2 * (n % 4)
                k(f"v_cvt_pk_bf16_f32 v{o}, v{t}, v{t+1}")
                k(f"v_cvt_pk_bf16_f32 v{o+1}, v{t+2}, v{t+3}")
                k(f"buffer_store_dwordx2 v[{o}:{o+1}], v{24+nb*4+q}, s[48:51], s{52+tb} offen")
                n += 1
    k("s_waitcnt vmcnt(0)")


def pre_v(k, HH, TL):
    k.srd(48, 6, 0, WS_SIZE)
    k("s_sub_u32 s37, s25, 10")
    k("s_lshl_b32 s37, s37, 7")
    k("s_lshl_b32 s38, s27, 6")
    k("s_add_u32 s37, s37, s38")
    for nb in range(2):
        k(f"v_add_u32 v20, s37, v{TL}")
        if nb: k("v_add_u32 v20, 32, v20")
        k("v_mul_u32_u24 v21, 205, v20")
        k("v_lshrrev_b32 v21, 12, v21")
        k("v_mul_u32_u24 v22, 20, v21")
        k("v_sub_u32 v22, v20, v22")
        k("s_mov_b32 s38, 163840")
        k("v_mul_lo_u32 v21, v21, s38")
        k("v_lshl_add_u32 v21, v22, 4, v21")
        k(f"v_mul_u32_u24 v22, 320, v{HH}")
        k(f"v_add_u32 v{24+nb}, v21, v22")
    k("s_lshl_b32 s41, s24, 2")
    k("s_lshl_b32 s42, s36, 1")
    k("s_add_u32 s41, s41, s42")
    k("s_mul_i32 s41, s41, 2560")
    k(f"s_add_u32 s52, s41, {WS_KV + 1280}")


def epi_v(k, ACC, STATS, HH, TL):
    NB, TB = 2, 2
    k("s_lshl_b32 s37, s36, 8")
    k(f"v_lshlrev_b32 v20, 4, v{HH}")
    k("v_add_u32 v20, s37, v20")
    k(f"v_add_u32 v20, {STATS}, v20")
    RS, RM = 128, 160
    for tb in range(TB):
        for q in range(4):
            k(f"ds_read_b128 v[{RS+(tb*4+q)*4}:{RS+(tb*4+q)*4+3}], v20 offset:{tb*128+q*32}")
    k(f"v_lshlrev_b32 v21, 2, v{TL}")
    k("s_lshl_b32 s37, s27, 8")
    k("v_add_u32 v21, s37, v21")
    k(f"v_add_u32 v21, {STATS+1024}, v21")
    k("s_waitcnt lgkmcnt(4)")
    for tb in range(TB):
        for q in range(4):
            k(f"ds_read_b128 v[{RM+(tb*4+q)*4}:{RM+(tb*4+q)*4+3}], v20 offset:{512+tb*128+q*32}")
    k("ds_read_b32 v32, v21")
    k("ds_read_b32 v34, v21 offset:128")
    k("s_waitcnt lgkmcnt(0)")
    k("s_nop 7")
    n = 0
    for nb in range(NB):
        cs = 32 + 2 * nb
        for tb in range(TB):
            for qp in range(2):
                o = 44 + 4 * (n % 2)
                for qq in range(2):
                    q = qp * 2 + qq
                    a = ACC + (nb * TB + tb) * 16 + q * 4
                    t = 36 + 4 * qq
                    rs, rm = RS + (tb * 4 + q) * 4, RM + (tb * 4 + q) * 4
                    for h in range(2):
                        k(f"v_pk_mul_f32 v[{t+2*h}:{t+2*h+1}], v[{rm+2*h}:{rm+2*h+1}], v[{cs}:{cs+1}] op_sel_hi:[1,0]")
                    for h in range(2):
                        k(f"v_pk_fma_f32 v[{t+2*h}:{t+2*h+1}], v[{a+2*h}:{a+2*h+1}], v[{rs+2*h}:{rs+2*h+1}], v[{t+2*h}:{t+2*h+1}] neg_lo:[0,0,1] neg_hi:[0,0,1]")
                    k(f"v_cvt_pk_bf16_f32 v{o+2*qq}, v{t}, v{t+1}")
                    k(f"v_cvt_pk_bf16_f32 v{o+2*qq+1}, v{t+2}, v{t+3}")
                k("s_nop 1")
                k(f"v_permlane32_swap_b32 v{o}, v{o+2}")
                k(f"v_permlane32_swap_b32 v{o+1}, v{o+3}")
                k("s_nop 1")
                k(f"buffer_store_dwordx4 v[{o}:{o+3}], v{24+nb}, s[48:51], s52 offen offset:{tb*2560+qp*640}")
                n += 1
    k("s_waitcnt vmcnt(0)")


GK1 = -2.0 * 0.7978845608028654 * 1.4426950408889634
GK2 = GK1 * 0.044715

def epi_w1(k, ACC, STATS, HH, TL):
    NB = 3
    k.srd(48, 6, 0, WS_SIZE)
    k("s_lshl_b32 s37, s36, 7")
    k(f"v_lshlrev_b32 v20, 2, v{TL}")
    k("v_add_u32 v20, s37, v20")
    k(f"v_add_u32 v20, {STATS}, v20")
    k("ds_read_b32 v32, v20")
    k("ds_read_b32 v33, v20 offset:512")
    k(f"v_lshlrev_b32 v21, 4, v{HH}")
    k(f"v_add_u32 v21, {STATS+1024}, v21")
    CS, BI = 128, 176
    for nb in range(NB):
        for q in range(4):
            k(f"ds_read_b128 v[{CS+(nb*4+q)*4}:{CS+(nb*4+q)*4+3}], v21 offset:{nb*128+q*32}")
    k("s_waitcnt lgkmcnt(6)")
    for nb in range(NB):
        for q in range(4):
            k(f"ds_read_b128 v[{BI+(nb*4+q)*4}:{BI+(nb*4+q)*4+3}], v21 offset:{512+nb*128+q*32}")
    k("s_lshl_b32 s39, s24, 2")
    k("s_add_u32 s39, s39, s36")
    k("s_mul_i32 s39, s39, 98304")
    k("s_mul_i32 s40, s25, 6144")
    k("s_add_u32 s39, s39, s40")
    k(f"s_add_u32 s52, s39, {WS_H}")
    k("s_add_u32 s53, s52, 2048")
    k("s_add_u32 s54, s52, 4096")
    k("v_lshlrev_b32 v22, 4, v0")
    k(f"v_mov_b32 v34, {f2u(GK1):#x}")
    k(f"v_mov_b32 v35, {f2u(GK2):#x}")
    k("s_waitcnt lgkmcnt(0)")
    k("s_nop 7")
    n = 0
    for nb in range(NB):
        for qp in range(2):
            o = 56 + 4 * (n % 2)
            for qq in range(2):
                q = qp * 2 + qq
                a = ACC + nb * 16 + q * 4
                cs = CS + (nb * 4 + q) * 4
                b = BI + (nb * 4 + q) * 4
                u, t = 36, 40
                for h in range(2):
                    k(f"v_pk_fma_f32 v[{u+2*h}:{u+2*h+1}], v[{cs+2*h}:{cs+2*h+1}], v[32:33], v[{b+2*h}:{b+2*h+1}] op_sel:[0,1,0] op_sel_hi:[1,1,1] neg_lo:[1,0,0] neg_hi:[1,0,0]")
                for h in range(2):
                    k(f"v_pk_fma_f32 v[{u+2*h}:{u+2*h+1}], v[{a+2*h}:{a+2*h+1}], v[32:33], v[{u+2*h}:{u+2*h+1}] op_sel_hi:[1,0,1]")
                for h in range(2):
                    k(f"v_pk_mul_f32 v[{t+2*h}:{t+2*h+1}], v[{u+2*h}:{u+2*h+1}], v[{u+2*h}:{u+2*h+1}]")
                for h in range(2):
                    k(f"v_pk_fma_f32 v[{t+2*h}:{t+2*h+1}], v[{t+2*h}:{t+2*h+1}], v[34:35], v[34:35] op_sel:[0,1,0] op_sel_hi:[1,1,0]")
                for h in range(2):
                    k(f"v_pk_mul_f32 v[{t+2*h}:{t+2*h+1}], v[{t+2*h}:{t+2*h+1}], v[{u+2*h}:{u+2*h+1}]")
                for i in range(4):
                    k(f"v_exp_f32 v{t+i}, v{t+i}")
                k("s_nop 0")
                for h in range(2):
                    k(f"v_pk_add_f32 v[{t+2*h}:{t+2*h+1}], v[{t+2*h}:{t+2*h+1}], 1.0 op_sel_hi:[1,0]")
                for i in range(4):
                    k(f"v_rcp_f32 v{t+i}, v{t+i}")
                k("s_nop 0")
                for h in range(2):
                    k(f"v_pk_mul_f32 v[{u+2*h}:{u+2*h+1}], v[{u+2*h}:{u+2*h+1}], v[{t+2*h}:{t+2*h+1}]")
                k(f"v_cvt_pk_bf16_f32 v{o+2*qq}, v{u}, v{u+1}")
                k(f"v_cvt_pk_bf16_f32 v{o+2*qq+1}, v{u+2}, v{u+3}")
            k("s_nop 1")
            k(f"v_permlane32_swap_b32 v{o}, v{o+2}")
            k(f"v_permlane32_swap_b32 v{o+1}, v{o+3}")
            k("s_nop 1")
            k(f"buffer_store_dwordx4 v[{o}:{o+3}], v22, s[48:51], s{52+nb} offen offset:{qp*1024}")
            n += 1
    k("s_waitcnt vmcnt(0)")


def gen_gemmB(name, kind, layer, kidx=0):
    NWG = 256
    if kind == "wo":
        K, WS_W, XSRC = 640, WS_WO, WS_O
        RES = WS_X0 if layer == 0 else WS_X2
        DST, ST = WS_X1, WS_ST1
    else:
        K, WS_W, XSRC = 1536, WS_W2, WS_H
        RES = WS_X1
        DST, ST = (WS_X2, WS_ST0) if layer == 0 else (None, None)
    NCH = K // 128
    XBLK = K * 64
    WB = 20480
    SLOT = WB + 16384
    NSLOT = 4
    LDS = NSLOT * SLOT
    k = Kern(name, NWG, 512, LDS, vgpr=128)
    k(f"s_cmp_ge_u32 s2, {NWG}")
    k(f"s_cbranch_scc1 {k.ref('end')}")
    k.stamp(0)
    k.karg(6, 80)
    if kind == "w2":
        k.karg(8, 56)
        if DST is None:
            k.karg(10, 64)
    wave_id(k, 26)
    k("s_and_b32 s20, s2, 7")
    k("s_lshr_b32 s21, s2, 3")
    k("s_lshr_b32 s22, s20, 1")
    k("s_lshl_b32 s22, s22, 3")
    k("s_and_b32 s23, s21, 7")
    k("s_add_u32 s24, s22, s23")
    k("s_and_b32 s22, s20, 1")
    k("s_lshl_b32 s22, s22, 2")
    k("s_lshr_b32 s23, s21, 3")
    k("s_add_u32 s25, s22, s23")
    k("s_cmp_lt_u32 s26, 4")
    k(f"s_cbranch_scc1 {k.ref('compute')}")
    k("s_sub_u32 s26, s26, 4")
    k("v_lshlrev_b32 v1, 4, v0")
    k(f"s_mul_i32 s40, s25, {K//8*1280}")
    k("s_mul_i32 s41, s26, 5120")
    k("s_add_u32 s40, s40, s41")
    k(f"s_add_u32 s40, s40, {WS_W}")
    k("s_mov_b32 s42, s41")
    k("s_lshl_b32 s43, s24, 1")
    k("s_lshr_b32 s47, s26, 1")
    k("s_add_u32 s43, s43, s47")
    k(f"s_mul_i32 s43, s43, {XBLK}")
    k("s_and_b32 s47, s26, 1")
    k("s_lshl_b32 s47, s47, 12")
    k("s_add_u32 s43, s43, s47")
    k(f"s_add_u32 s43, s43, {XSRC}")
    k("s_lshl_b32 s44, s26, 12")
    k(f"s_add_u32 s44, s44, {WB}")
    k("s_waitcnt lgkmcnt(0)")
    k.srd(12, 6, 0, WS_SIZE)
    def dma(ch):
        slot = ch % NSLOT
        k(f"s_add_u32 m0, s44, {slot*SLOT}")
        k(f"s_add_u32 s45, s43, {ch*8192}")
        for i in range(4):
            k(f"buffer_load_dwordx4 v1, s[12:15], s45 offen offset:{i*1024} lds")
        k(f"s_add_u32 m0, s42, {slot*SLOT}")
        k(f"s_add_u32 s45, s40, {ch*WB}")
        for i in range(4):
            k(f"buffer_load_dwordx4 v1, s[12:15], s45 offen offset:{i*1024} lds")
        k(f"s_add_u32 m0, s42, {slot*SLOT+4096}")
        k(f"s_add_u32 s45, s40, {ch*WB+4096}")
        k(f"buffer_load_dwordx4 v1, s[12:15], s45 offen lds")
    k.stamp(1)
    def pre(): k.stamp(2)
    ring_loader(k, NCH, NSLOT, dma, 9, pre_b0=pre)
    k.stamp(4)
    k("s_add_u32 s26, s26, 4")
    k.stamp_flush(6, kidx, 5, 26)
    k.lab("end")
    k("s_endpgm")

    k.lab("compute")
    ACC, FA0, FB0, RS, BI = 32, 64, 88, 104, 116
    AW, AX = 1, 3
    k("s_and_b32 s27, s26, 1")
    k("s_lshr_b32 s36, s26, 1")
    k("v_lshrrev_b32 v17, 4, v0")
    k("v_and_b32 v16, 15, v0")
    k("v_mul_u32_u24 v20, 1280, v17")
    k("v_lshl_add_u32 v20, v16, 4, v20")
    k("s_mul_i32 s37, s27, 768")
    k(f"v_add_u32 v{AW}, s37, v20")
    k(f"v_add_u32 v{AW+1}, {2*SLOT}, v{AW}")
    k("v_lshlrev_b32 v20, 9, v17")
    k("v_lshl_add_u32 v20, v16, 4, v20")
    k("s_lshl_b32 s37, s36, 13")
    k(f"s_add_u32 s37, s37, {WB}")
    k(f"v_add_u32 v{AX}, s37, v20")
    k(f"v_add_u32 v{AX+1}, {2*SLOT}, v{AX}")
    k("v_lshrrev_b32 v20, 1, v17")
    k("v_lshlrev_b32 v20, 9, v20")
    k("v_lshl_add_u32 v20, v16, 4, v20")
    k("v_and_b32 v21, 1, v17")
    k("v_lshl_add_u32 v20, v21, 3, v20")
    k("s_lshl_b32 s38, s24, 1")
    k("s_add_u32 s38, s38, s36")
    k("s_mul_i32 s39, s38, 40960")
    k("s_mul_i32 s40, s25, 5120")
    k("s_add_u32 s39, s39, s40")
    k("s_mul_i32 s40, s27, 3072")
    k("s_add_u32 s39, s39, s40")
    k(f"s_add_u32 s52, s39, {RES}")
    k("s_waitcnt lgkmcnt(0)")
    k.srd(48, 6, 0, WS_SIZE)

    def path(NB):
        for nb in range(NB):
            for tb in range(2):
                d = RS + (nb * 2 + tb) * 2
                k(f"buffer_load_dwordx2 v[{d}:{d+1}], v20, s[48:51], s52 offen offset:{nb*1024+tb*256}")
        if kind == "w2":
            k.srd(56, 8, 0, 1280)
            k("s_mul_i32 s40, s25, 160")
            k("s_mul_i32 s41, s27, 96")
            k("s_add_u32 s40, s40, s41")
            k("v_lshlrev_b32 v21, 3, v17")
            for nb in range(NB):
                k(f"buffer_load_dwordx2 v[{BI+2*nb}:{BI+2*nb+1}], v21, s[56:59], s40 offen offset:{nb*32}")
        def reads(step):
            ch, ks = divmod(step, 4)
            slot = ch % NSLOT
            half, sl = divmod(slot, 2)
            st = step & 1
            out = []
            for tb in range(2):
                d = FB0 + st * 8 + tb * 4
                out.append(f"ds_read_b128 v[{d}:{d+3}], v{AX+half} offset:{sl*SLOT + ks*2048 + tb*256}")
            for nb in range(NB):
                d = FA0 + st * 12 + nb * 4
                out.append(f"ds_read_b128 v[{d}:{d+3}], v{AW+half} offset:{sl*SLOT + ks*5120 + nb*256}")
            return out
        k.stamp(1)
        k("s_barrier")
        k.stamp(2)
        for r in reads(0):
            k(r)
        NS = NCH * 4
        for step in range(NS):
            st = step & 1
            k("s_waitcnt lgkmcnt(0)")
            if step % 4 == 3 and step + 1 < NS:
                k("s_barrier")
            rd = reads(step + 1) if step + 1 < NS else []
            mf = []
            for nb in range(NB):
                for tb in range(2):
                    d = ACC + (nb * 2 + tb) * 4
                    a = FA0 + st * 12 + nb * 4
                    b = FB0 + st * 8 + tb * 4
                    c = "0" if step == 0 else f"v[{d}:{d+3}]"
                    mf.append(f"v_mfma_f32_16x16x32_bf16 v[{d}:{d+3}], v[{a}:{a+3}], v[{b}:{b+3}], {c}")
            ri = 0
            for i, m in enumerate(mf):
                k(m)
                for r in rd[ri:ri + 2]:
                    k(r)
                ri += 2
            assert ri >= len(rd)
        k.stamp(3)
        k("s_waitcnt vmcnt(0)")
        want_stats = ST is not None
        if want_stats:
            for r in (8, 9, 10, 11):
                k(f"v_mov_b32 v{r}, 0")
        k("v_lshlrev_b32 v22, 4, v0")
        if DST is None:
            k.srd(60, 10, 0, X_BYTES)
            k("v_and_b32 v23, 31, v0")
            k("v_mul_u32_u24 v23, 1280, v23")
            k("v_lshrrev_b32 v24, 5, v0")
            k("v_lshl_add_u32 v23, v24, 4, v23")
            k("s_mul_i32 s40, s38, 40960")
            k("s_mul_i32 s41, s25, 160")
            k("s_add_u32 s40, s40, s41")
            k("s_mul_i32 s41, s27, 96")
            k("s_add_u32 s53, s40, s41")
        else:
            k(f"s_add_u32 s53, s39, {DST}")
        k("s_nop 4")
        for nb in range(NB):
            o = 24 + 4 * (nb % 2)
            for tb in range(2):
                a = ACC + (nb * 2 + tb) * 4
                d = RS + (nb * 2 + tb) * 2
                t = 12
                k(f"v_lshlrev_b32 v{t}, 16, v{d}")
                k(f"v_and_b32 v{t+1}, 0xffff0000, v{d}")
                k(f"v_lshlrev_b32 v{t+2}, 16, v{d+1}")
                k(f"v_and_b32 v{t+3}, 0xffff0000, v{d+1}")
                k(f"v_pk_add_f32 v[{a}:{a+1}], v[{a}:{a+1}], v[{t}:{t+1}]")
                k(f"v_pk_add_f32 v[{a+2}:{a+3}], v[{a+2}:{a+3}], v[{t+2}:{t+3}]")
                if kind == "w2":
                    b = BI + 2 * nb
                    k(f"v_lshlrev_b32 v{t+4}, 16, v{b}")
                    k(f"v_and_b32 v{t+5}, 0xffff0000, v{b}")
                    k(f"v_lshlrev_b32 v{t+6}, 16, v{b+1}")
                    k(f"v_and_b32 v{t+7}, 0xffff0000, v{b+1}")
                    k(f"v_pk_add_f32 v[{a}:{a+1}], v[{a}:{a+1}], v[{t+4}:{t+5}]")
                    k(f"v_pk_add_f32 v[{a+2}:{a+3}], v[{a+2}:{a+3}], v[{t+6}:{t+7}]")
                if want_stats:
                    for r in range(4):
                        k(f"v_add_f32 v{8+tb}, v{8+tb}, v{a+r}")
                        k(f"v_fmac_f32 v{10+tb}, v{a+r}, v{a+r}")
                k(f"v_cvt_pk_bf16_f32 v{o+2*tb}, v{a}, v{a+1}")
                k(f"v_cvt_pk_bf16_f32 v{o+2*tb+1}, v{a+2}, v{a+3}")
            k("s_nop 1")
            k(f"v_permlane16_swap_b32 v{o}, v{o+2}")
            k(f"v_permlane16_swap_b32 v{o+1}, v{o+3}")
            k("s_nop 1")
            if DST is None:
                k(f"buffer_store_dwordx4 v[{o}:{o+3}], v23, s[60:63], s53 offen offset:{nb*32}")
            else:
                k(f"buffer_store_dwordx4 v[{o}:{o+3}], v22, s[48:51], s53 offen offset:{nb*1024}")
        if want_stats:
            k("v_permlane16_swap_b32 v8, v9")
            k("v_permlane16_swap_b32 v10, v11")
            k("s_nop 1")
            k("v_add_f32 v8, v8, v9")
            k("v_add_f32 v10, v10, v11")
            k("s_nop 1")
            k("v_permlane32_swap_b32 v8, v10")
            k("s_nop 1")
            k("v_add_f32 v8, v8, v10")
            k("v_and_b32 v12, 31, v0")
            k("v_lshlrev_b32 v12, 3, v12")
            k("v_lshrrev_b32 v13, 5, v0")
            k("v_lshl_add_u32 v12, v13, 2, v12")
            k("s_lshl_b32 s40, s25, 1")
            k("s_add_u32 s40, s40, s27")
            k("s_lshl_b32 s40, s40, 14")
            k("s_lshl_b32 s41, s38, 8")
            k("s_add_u32 s40, s40, s41")
            k(f"s_add_u32 s40, s40, {ST}")
            k("buffer_store_dword v8, v12, s[48:51], s40 offen")
        k("s_waitcnt vmcnt(0)")
        k.stamp(4); k.stamp_flush(6, kidx, 5, 26)
        k("s_endpgm")
    k("s_cmp_eq_u32 s27, 1")
    k(f"s_cbranch_scc1 {k.ref('p2')}")
    path(3)
    k.lab("p2")
    path(2)
    return k


ATT_PACK = "cvt"
def gen_attn(name, kidx=0, pack=None, force_slow=False):
    pack = pack or ATT_PACK
    NWG = 256
    LDS = 163840
    k = Kern(name, NWG, 512, LDS, vgpr=128)
    KA, KB, VA = 1, 2, 3
    Q16, Q4 = 8, 12
    K16 = [16, 20]; K4 = [24, 26]
    V = [32, 40]
    S = [48, 64]
    P = 80
    O = 96
    k(f"s_cmp_ge_u32 s2, {NWG}")
    k(f"s_cbranch_scc1 {k.ref('end')}")
    k.stamp(0)
    k.karg(6, 80)
    wave_id(k, 26)
    k("s_and_b32 s20, s2, 7")
    k("s_lshr_b32 s21, s2, 3")
    k("s_lshr_b32 s22, s21, 3")
    k("s_lshl_b32 s23, s20, 2")
    k("s_add_u32 s24, s23, s22")
    k("s_and_b32 s25, s21, 7")
    k("s_lshl_b32 s25, s25, 3")
    k("s_add_u32 s25, s25, s26")
    k("v_lshlrev_b32 v4, 4, v0")
    k("s_lshl_b32 s27, s24, 6")
    k("s_add_u32 s27, s27, s25")
    k("s_mul_i32 s27, s27, 1280")
    k(f"s_add_u32 s27, s27, {WS_Q}")
    k("s_mul_i32 s28, s24, 163840")
    k(f"s_add_u32 s28, s28, {WS_KV}")
    k("s_mul_i32 s29, s26, 3072")
    k("s_mul_i32 s30, s26, 17408")
    k("s_add_u32 s30, s30, 24576")
    k("v_and_b32 v5, 31, v0")
    k("v_lshlrev_b32 v6, 3, v5")
    k(f"v_mov_b32 v{Q4}, 0")
    k(f"v_mov_b32 v{Q4+1}, 0")
    k("s_waitcnt lgkmcnt(0)")
    k.srd(12, 6, 0, WS_SIZE)
    k(f"buffer_load_dwordx4 v[{Q16}:{Q16+3}], v4, s[12:15], s27 offen")
    k("s_mov_b64 exec, 0xffffffff")
    k(f"buffer_load_dwordx2 v[{Q4}:{Q4+1}], v6, s[12:15], s27 offen offset:1024")
    k("s_mov_b64 exec, -1")
    k("s_mov_b32 m0, s29")
    k("s_add_u32 s31, s28, s29")
    for i in range(3):
        k(f"buffer_load_dwordx4 v4, s[12:15], s31 offen offset:{i*1024} lds")
    for g in range(5):
        k(f"s_add_u32 m0, s30, {g*4096}")
        k(f"s_add_u32 s31, s28, s30")
        if g: k(f"s_add_u32 s31, s31, {g*4096}")
        for i in range(4 if g < 4 else 1):
            k(f"buffer_load_dwordx4 v4, s[12:15], s31 offen offset:{i*1024} lds")
    k.stamp(1)
    def lane_addrs():
        k("v_and_b32 v5, 31, v0")
        k("v_and_b32 v6, 0x13, v5")
        k("v_and_b32 v7, 4, v5")
        k("v_lshl_or_b32 v6, v7, 1, v6")
        k("v_and_b32 v7, 8, v5")
        k("v_lshrrev_b32 v7, 1, v7")
        k("v_or_b32 v6, v6, v7")
        k("v_lshrrev_b32 v7, 5, v0")
        k(f"v_lshlrev_b32 v{KA}, 9, v7")
        k(f"v_lshl_add_u32 v{KA}, v6, 4, v{KA}")
        k(f"v_lshlrev_b32 v{KB}, 3, v6")
        k(f"v_add_u32 v{KB}, 1024, v{KB}")
        k(f"v_mul_u32_u24 v{VA}, 320, v7")
        k(f"v_lshl_add_u32 v{VA}, v5, 4, v{VA}")
        k(f"v_add_u32 v{VA}, 1280, v{VA}")
    lane_addrs()
    k("v_cmp_eq_u32 vcc, 20, v5")
    k("v_mov_b32 v7, 0x3f803f80")
    k("s_mov_b32 s34, 0x000fffff")
    k("s_mov_b32 s35, 0x000fffff")
    k(f"v_cndmask_b32 v{V[0]}, 0, v7, vcc")
    for r in range(1, 16):
        k(f"v_mov_b32 v{V[0]+r}, v{V[0]}")
    for r in range(16):
        k(f"v_mov_b32 v{O+r}, 0")
    for r in range(4, 8):
        k(f"v_mov_b32 v{P+r}, 0")
    k("s_waitcnt vmcnt(17)")
    k("s_barrier")
    k.stamp(2)
    def rdK(buf, off):
        k(f"ds_read_b128 v[{K16[buf]}:{K16[buf]+3}], v{KA} offset:{off}")
        k(f"ds_read_b64 v[{K4[buf]}:{K4[buf]+1}], v{KB} offset:{off}")
    def rdV(buf, off):
        k("s_mov_b64 exec, s[34:35]")
        k(f"ds_read_b128 v[{V[buf]}:{V[buf]+3}], v{VA} offset:{off}")
        k(f"ds_read_b128 v[{V[buf]+4}:{V[buf]+7}], v{VA} offset:{off+640}")
        k("s_mov_b64 exec, -1")
    def M1(n): k(f"v_mfma_f32_32x32x16_bf16 v[{S[n]}:{S[n]+15}], v[{K16[n]}:{K16[n]+3}], v[{Q16}:{Q16+3}], 0")
    def M2(n): k(f"v_mfma_f32_32x32x8bf16_1k v[{S[n]}:{S[n]+15}], v[{K4[n]}:{K4[n]+1}], v[{Q4}:{Q4+1}], v[{S[n]}:{S[n]+15}]")
    def MPV(vb, f): k(f"v_mfma_f32_32x32x16_bf16 v[{O}:{O+15}], v[{V[vb]+4*f}:{V[vb]+4*f+3}], v[{P+4*f}:{P+4*f+3}], v[{O}:{O+15}]")
    def G(c, g):
        s = S[c] + 4 * g
        p = P + 2 * g
        if pack == "cvt":
            for i in range(4):
                k(f"v_exp_f32 v{s+i}, v{s+i}")
            k(f"v_cvt_pk_bf16_f32 v{p}, v{s}, v{s+1}")
            k(f"v_cvt_pk_bf16_f32 v{p+1}, v{s+2}, v{s+3}")
        else:
            k(f"v_exp_f32 v{p}, v{s+1}")
            k(f"v_exp_f32 v{s}, v{s}")
            k(f"v_exp_f32 v{p+1}, v{s+3}")
            k(f"v_exp_f32 v{s+2}, v{s+2}")
            k(f"v_mov_b32_sdwa v{p}, v{s} dst_sel:WORD_0 dst_unused:UNUSED_PRESERVE src0_sel:WORD_1")
            k(f"v_mov_b32_sdwa v{p+1}, v{s+2} dst_sel:WORD_0 dst_unused:UNUSED_PRESERVE src0_sel:WORD_1")
    rdK(0, 0)
    rdK(1, 2560)
    rdV(0, 0)
    k("s_waitcnt lgkmcnt(4)")
    M1(0)
    k("s_mov_b32 s36, 0")
    k("s_nop 7")
    k("s_nop 1")
    M2(0)
    k("s_nop 7")
    k("s_nop 3")
    k.lab("loop")
    k("s_cmp_eq_u32 s36, 1")
    k(f"s_cbranch_scc0 {k.ref('nosync')}")
    k("s_waitcnt vmcnt(0)")
    k("s_barrier")
    k.lab("nosync")
    k("s_cmp_eq_u32 s36, 7")
    k(f"s_mov_b32 s37, {(-7*20480) & 0xffffffff:#x}")
    k("s_cselect_b32 s37, s37, 20480")
    for t in range(8):
        c, n = t & 1, (t + 1) & 1
        k("s_waitcnt lgkmcnt(0)")
        M1(n)
        G(c, 0)
        MPV(n, 1)
        if t == 6:
            k(f"v_add_u32 v{KA}, s37, v{KA}")
            k(f"v_add_u32 v{KB}, s37, v{KB}")
        if t == 7:
            k(f"v_add_u32 v{VA}, s37, v{VA}")
        rdK(c, ((t + 2) % 8) * 2560)
        rdV(n, ((t + 1) % 8) * 2560)
        G(c, 1)
        M2(n)
        G(c, 2)
        MPV(c, 0)
        G(c, 3)
    k("s_add_u32 s36, s36, 1")
    k("s_cmp_lt_u32 s36, 8")
    k(f"s_cbranch_scc1 {k.ref('loop')}")
    k("s_nop 0")
    MPV(1, 1)
    k.stamp(3)
    k("s_waitcnt lgkmcnt(0)")
    k("s_nop 7")
    k("s_nop 3")
    k(f"v_mov_b32 v4, v{O+8}")
    k(f"v_mov_b32 v5, v{O+8}")
    k("v_mov_b32 v6, 0")
    k("s_nop 0")
    k("v_permlane32_swap_b32 v4, v5")
    for r in range(12):
        k(f"v_fma_f32 v6, v{O+r}, 0, v6")
    k(f"v_cmp_lt_f32 vcc, {f2u(2.0**-40):#x}, v5")
    k(f"v_cmp_gt_f32 s[38:39], {f2u(2.0**40):#x}, v5" if False else f"s_mov_b32 s40, {f2u(2.0**40):#x}")
    k("v_cmp_gt_f32 s[38:39], s40, v5")
    k("v_cmp_eq_f32 s[42:43], 0, v6")
    k("s_nop 3")
    k("s_and_b64 vcc, vcc, s[38:39]")
    k("s_and_b64 vcc, vcc, s[42:43]")
    if force_slow:
        k("s_mov_b64 vcc, 0")
    k("s_cmp_eq_u64 vcc, -1")
    k(f"s_cbranch_scc0 {k.ref('slow')}")
    k.lab("fin")
    k("v_rcp_f32 v5, v5")
    k("s_mul_i32 s40, s24, 5")
    k("v_lshrrev_b32 v7, 5, v0")
    k("v_add_u32 v7, s40, v7")
    k("v_lshrrev_b32 v6, 1, v7")
    k("v_lshlrev_b32 v6, 9, v6")
    k("v_and_b32 v7, 1, v7")
    k("v_lshl_add_u32 v6, v7, 3, v6")
    k("v_and_b32 v7, 31, v0")
    k("v_lshl_add_u32 v6, v7, 4, v6")
    k("s_mul_i32 s41, s25, 40960")
    k(f"s_add_u32 s41, s41, {WS_O}")
    for r in range(0, 12, 2):
        k(f"v_pk_mul_f32 v[{O+r}:{O+r+1}], v[{O+r}:{O+r+1}], v[4:5] op_sel:[0,1] op_sel_hi:[1,1]")
    k("s_nop 0")
    for j in range(6):
        k(f"v_cvt_pk_bf16_f32 v{16+j}, v{O+2*j}, v{O+2*j+1}")
    k("buffer_store_dwordx2 v[16:17], v6, s[12:15], s41 offen")
    k("buffer_store_dwordx2 v[18:19], v6, s[12:15], s41 offen offset:512")
    k("s_mov_b64 exec, 0xffffffff")
    k("buffer_store_dwordx2 v[20:21], v6, s[12:15], s41 offen offset:1024")
    k("s_waitcnt vmcnt(0)")
    k.stamp(4); k.stamp_flush(6, kidx, 5, 26)
    k.lab("end")
    k("s_endpgm")
    k.lab("slow")
    lane_addrs()
    MX = 88
    k(f"v_mov_b32 v{MX}, {f2u(-3.0e38):#x}")
    for r in range(16):
        k(f"v_mov_b32 v{O+r}, 0")
    k("s_mov_b32 s36, 0")
    k.lab("sl")
    rdK(0, 0)
    rdV(0, 0)
    k("s_waitcnt lgkmcnt(0)")
    M1(0)
    k("s_nop 7"); k("s_nop 1")
    M2(0)
    k("s_nop 7"); k("s_nop 3")
    s = S[0]
    k(f"v_max3_f32 v4, v{s}, v{s+1}, v{s+2}")
    for i in range(3, 15, 2):
        k(f"v_max3_f32 v4, v4, v{s+i}, v{s+i+1}")
    k(f"v_max_f32 v4, v4, v{s+15}")
    k("v_mov_b32 v5, v4")
    k("s_nop 1")
    k("v_permlane32_swap_b32 v4, v5")
    k("s_nop 1")
    k(f"v_max3_f32 v4, v4, v5, v{MX}")
    k(f"v_sub_f32 v5, v{MX}, v4")
    k("v_exp_f32 v5, v5")
    k(f"v_mov_b32 v{MX}, v4")
    for i in range(16):
        k(f"v_sub_f32 v{s+i}, v{s+i}, v4")
    for i in range(16):
        k(f"v_exp_f32 v{s+i}, v{s+i}")
    for r in range(12):
        k(f"v_mul_f32 v{O+r}, v{O+r}, v5")
    for j in range(8):
        k(f"v_cvt_pk_bf16_f32 v{P+j}, v{s+2*j}, v{s+2*j+1}")
    k(f"v_add_u32 v{KA}, 2560, v{KA}")
    k(f"v_add_u32 v{KB}, 2560, v{KB}")
    k(f"v_add_u32 v{VA}, 2560, v{VA}")
    k("s_nop 4")
    MPV(0, 0)
    MPV(0, 1)
    k("s_nop 7"); k("s_nop 3")
    k("s_add_u32 s36, s36, 1")
    k("s_cmp_lt_u32 s36, 64")
    k(f"s_cbranch_scc1 {k.ref('sl')}")
    k(f"v_mov_b32 v4, v{O+8}")
    k(f"v_mov_b32 v5, v{O+8}")
    k("s_nop 1")
    k("v_permlane32_swap_b32 v4, v5")
    k("s_nop 1")
    k(f"s_branch {k.ref('fin')}")
    return k


def gen_attn2(name, kidx=0, pack="cvt", force_slow=False, sched=0, dbg=()):
    NWG = 256
    LDS = 163840
    k = Kern(name, NWG, 512, LDS, vgpr=160)
    KA, KB, VA = 1, 2, 3
    Q16 = [8, 28]; Q4 = [12, 14]
    K16 = [16, 20]; K4 = [24, 26]
    V = [32, 40]
    S = [48, 64]
    P = 80
    O = [96, 112]
    k(f"s_cmp_ge_u32 s2, {NWG}")
    k(f"s_cbranch_scc1 {k.ref('end')}")
    k.stamp(0)
    k.karg(6, 80)
    wave_id(k, 26)
    k("s_and_b32 s20, s2, 7")
    k("s_lshr_b32 s21, s2, 3")
    k("s_lshr_b32 s22, s21, 3")
    k("s_lshl_b32 s23, s20, 2")
    k("s_add_u32 s24, s23, s22")
    k("v_lshlrev_b32 v4, 4, v0")
    k("s_cmp_lt_u32 s26, 4")
    k(f"s_cbranch_scc1 {k.ref('compute')}")
    k("s_sub_u32 s26, s26, 4")
    k("s_mul_i32 s28, s24, 163840")
    k(f"s_add_u32 s28, s28, {WS_KV}")
    k("s_mul_i32 s29, s26, 6144")
    k("s_mul_i32 s30, s26, 34816")
    k("s_add_u32 s30, s30, 24576")
    k("s_waitcnt lgkmcnt(0)")
    k.srd(12, 6, 0, WS_SIZE)
    k("s_mov_b32 m0, s29")
    k("s_add_u32 s31, s28, s29")
    for i in range(4):
        k(f"buffer_load_dwordx4 v4, s[12:15], s31 offen offset:{i*1024} lds")
    k("s_add_u32 m0, s29, 4096")
    k("s_add_u32 s31, s31, 4096")
    for i in range(2):
        k(f"buffer_load_dwordx4 v4, s[12:15], s31 offen offset:{i*1024} lds")
    k("s_add_u32 s28, s28, s30")
    def stB(g):
        k(f"s_add_u32 m0, s30, {g*4096}")
        k(f"s_add_u32 s31, s28, {g*4096}")
        for i in range(4 if g < 8 else 2):
            k(f"buffer_load_dwordx4 v4, s[12:15], s31 offen offset:{i*1024} lds")
    stB(0); stB(1)
    k.stamp(1)
    k("s_waitcnt vmcnt(8)")
    k.stamp(2)
    k("s_barrier")
    for g in range(2, 9):
        stB(g)
    k.stamp(3)
    k("s_waitcnt vmcnt(0)")
    k.stamp(4)
    k("s_barrier")
    k("s_add_u32 s26, s26, 4")
    k.stamp_flush(6, kidx, 5, 26)
    k.lab("end")
    k("s_endpgm")
    k.lab("compute")
    k("s_and_b32 s25, s21, 7")
    k("s_lshl_b32 s25, s25, 3")
    k("s_lshl_b32 s23, s26, 1")
    k("s_add_u32 s25, s25, s23")
    k("s_lshl_b32 s27, s24, 6")
    k("s_add_u32 s27, s27, s25")
    k("s_mul_i32 s27, s27, 1280")
    k(f"s_add_u32 s27, s27, {WS_Q}")
    k("s_add_u32 s28, s27, 1280")
    k("v_and_b32 v5, 31, v0")
    k("v_lshlrev_b32 v6, 3, v5")
    for x in range(2):
        k(f"v_mov_b32 v{Q4[x]}, 0")
        k(f"v_mov_b32 v{Q4[x]+1}, 0")
    k("s_waitcnt lgkmcnt(0)")
    k.srd(12, 6, 0, WS_SIZE)
    k(f"buffer_load_dwordx4 v[{Q16[0]}:{Q16[0]+3}], v4, s[12:15], s27 offen")
    k(f"buffer_load_dwordx4 v[{Q16[1]}:{Q16[1]+3}], v4, s[12:15], s28 offen")
    k("s_mov_b64 exec, 0xffffffff")
    k(f"buffer_load_dwordx2 v[{Q4[0]}:{Q4[0]+1}], v6, s[12:15], s27 offen offset:1024")
    k(f"buffer_load_dwordx2 v[{Q4[1]}:{Q4[1]+1}], v6, s[12:15], s28 offen offset:1024")
    k("s_mov_b64 exec, -1")
    def lane_addrs():
        k("v_and_b32 v5, 31, v0")
        k("v_and_b32 v6, 0x13, v5")
        k("v_and_b32 v7, 4, v5")
        k("v_lshl_or_b32 v6, v7, 1, v6")
        k("v_and_b32 v7, 8, v5")
        k("v_lshrrev_b32 v7, 1, v7")
        k("v_or_b32 v6, v6, v7")
        k("v_lshrrev_b32 v7, 5, v0")
        k(f"v_lshlrev_b32 v{KA}, 9, v7")
        k(f"v_lshl_add_u32 v{KA}, v6, 4, v{KA}")
        k(f"v_lshlrev_b32 v{KB}, 3, v6")
        k(f"v_add_u32 v{KB}, 1024, v{KB}")
        k(f"v_mul_u32_u24 v{VA}, 320, v7")
        k(f"v_lshl_add_u32 v{VA}, v5, 4, v{VA}")
        k(f"v_add_u32 v{VA}, 1280, v{VA}")
    lane_addrs()
    k("v_cmp_eq_u32 vcc, 20, v5")
    k("v_mov_b32 v7, 0x3f803f80")
    k("s_mov_b32 s34, 0x000fffff")
    k("s_mov_b32 s35, 0x000fffff")
    k(f"v_cndmask_b32 v{V[0]}, 0, v7, vcc")
    for r in range(1, 16):
        k(f"v_mov_b32 v{V[0]+r}, v{V[0]}")
    for r in range(32):
        k(f"v_mov_b32 v{O[0]+r}, 0")
    for r in range(4, 8):
        k(f"v_mov_b32 v{P+r}, 0")
    k.stamp(1)
    k("s_waitcnt vmcnt(0)")
    k("s_barrier")
    k.stamp(2)
    def rdK(buf, off):
        return [f"ds_read_b128 v[{K16[buf]}:{K16[buf]+3}], v{KA} offset:{off}",
                f"ds_read_b64 v[{K4[buf]}:{K4[buf]+1}], v{KB} offset:{off}"]
    def rdV(buf, off):
        return ["s_mov_b64 exec, s[34:35]",
                f"ds_read_b128 v[{V[buf]}:{V[buf]+3}], v{VA} offset:{off}",
                f"ds_read_b128 v[{V[buf]+4}:{V[buf]+7}], v{VA} offset:{off+640}",
                "s_mov_b64 exec, -1"]
    def M1(x, kb): return f"v_mfma_f32_32x32x16_bf16 v[{S[x]}:{S[x]+15}], v[{K16[kb]}:{K16[kb]+3}], v[{Q16[x]}:{Q16[x]+3}], 0"
    def M2(x, kb): return f"v_mfma_f32_32x32x8bf16_1k v[{S[x]}:{S[x]+15}], v[{K4[kb]}:{K4[kb]+1}], v[{Q4[x]}:{Q4[x]+1}], v[{S[x]}:{S[x]+15}]"
    def MPV(x, vb, f): return f"v_mfma_f32_32x32x16_bf16 v[{O[x]}:{O[x]+15}], v[{V[vb]+4*f}:{V[vb]+4*f+3}], v[{P+4*f}:{P+4*f+3}], v[{O[x]}:{O[x]+15}]"
    def G(x, g, fill=()):
        s = S[x] + 4 * g
        p = P + 2 * g
        fill = list(fill)
        if pack == "cvt":
            ex = [f"v_exp_f32 v{s+i}, v{s+i}" for i in range(4)]
            pk = [f"v_cvt_pk_bf16_f32 v{p}, v{s}, v{s+1}", f"v_cvt_pk_bf16_f32 v{p+1}, v{s+2}, v{s+3}"]
        else:
            ex = [f"v_exp_f32 v{p}, v{s+1}", f"v_exp_f32 v{s}, v{s}", f"v_exp_f32 v{p+1}, v{s+3}", f"v_exp_f32 v{s+2}, v{s+2}"]
            pk = [f"v_mov_b32_sdwa v{p}, v{s} dst_sel:WORD_0 dst_unused:UNUSED_PRESERVE src0_sel:WORD_1",
                  f"v_mov_b32_sdwa v{p+1}, v{s+2} dst_sel:WORD_0 dst_unused:UNUSED_PRESERVE src0_sel:WORD_1"]
        for i in range(4):
            k(ex[i])
            if i < len(fill) and fill[i]:
                for f in (fill[i] if isinstance(fill[i], list) else [fill[i]]):
                    k(f)
        for x_ in pk: k(x_)
    for r in rdK(0, 0) + rdK(1, 2560) + rdV(0, 0): k(r)
    k("s_waitcnt lgkmcnt(4)")
    k(M1(0, 0))
    k("s_mov_b32 s36, 0")
    k("s_nop 7")
    k("s_nop 1")
    k(M2(0, 0))
    k("s_nop 7")
    k("s_nop 3")
    k.lab("loop")
    k("s_cmp_eq_u32 s36, 1")
    k(f"s_cbranch_scc0 {k.ref('nosync')}")
    k("s_barrier")
    k.lab("nosync")
    k("s_cmp_eq_u32 s36, 7")
    k(f"s_mov_b32 s37, {(-7*20480) & 0xffffffff:#x}")
    k("s_cselect_b32 s37, s37, 20480")
    L0 = len(k.L)
    for t in range(8):
        c, n = t & 1, (t + 1) & 1
        k("s_waitcnt lgkmcnt(0)")
        k(M1(1, c))
        G(0, 0)
        k(MPV(1, n, 1))
        if t == 7:
            k(f"v_add_u32 v{VA}, s37, v{VA}")
        rv = rdV(n, ((t + 1) % 8) * 2560)
        G(0, 1, fill=[rv])
        k(M2(1, c))
        if t == 6:
            k(f"v_add_u32 v{KA}, s37, v{KA}")
            k(f"v_add_u32 v{KB}, s37, v{KB}")
        rk = rdK(c, ((t + 2) % 8) * 2560)
        G(0, 2, fill=[rk[0], rk[1]])
        k(MPV(0, c, 0))
        G(0, 3)
        k(M1(0, n))
        G(1, 0)
        k(MPV(0, c, 1))
        G(1, 1)
        k(M2(0, n))
        G(1, 2)
        k(MPV(1, c, 0))
        G(1, 3)
    if dbg:
        body = k.L[L0:]
        def drop(l):
            l = l.strip()
            if "nods" in dbg and (l.startswith("ds_") or "exec" in l or l.startswith("s_waitcnt")): return True
            if "nomfma" in dbg and l.startswith("v_mfma"): return True
            if "nocvt" in dbg and (l.startswith("v_cvt") or l.startswith("v_mov_b32_sdwa")): return True
            if "noexp" in dbg and l.startswith("v_exp"): return True
            if "nom2" in dbg and "32x32x8" in l: return True
            if "nopv" in dbg and l.startswith(f"v_mfma_f32_32x32x16_bf16 v[{O[0]}") : return True
            if "nopv" in dbg and l.startswith(f"v_mfma_f32_32x32x16_bf16 v[{O[1]}") : return True
            return False
        k.L = k.L[:L0] + [l for l in body if not drop(l)]
    k("s_add_u32 s36, s36, 1")
    k("s_cmp_lt_u32 s36, 8")
    k(f"s_cbranch_scc1 {k.ref('loop')}")
    k("s_nop 0")
    k(MPV(1, 1, 1))
    k.stamp(3)
    k("s_waitcnt lgkmcnt(0)")
    k("s_nop 7")
    k("s_nop 3")
    L = [5, 7]
    k("v_mov_b32 v16, 0")
    for x in range(2):
        k(f"v_mov_b32 v{L[x]-1}, v{O[x]+8}")
        k(f"v_mov_b32 v{L[x]}, v{O[x]+8}")
    k("s_nop 1")
    for x in range(2):
        k(f"v_permlane32_swap_b32 v{L[x]-1}, v{L[x]}")
    for x in range(2):
        for r in range(12):
            k(f"v_fma_f32 v16, v{O[x]+r}, 0, v16")
    k(f"s_mov_b32 s40, {f2u(2.0**40):#x}")
    k(f"s_mov_b32 s41, {f2u(2.0**-40):#x}")
    k("v_cmp_eq_f32 vcc, 0, v16")
    k("v_cmp_lt_f32 s[42:43], s41, v5")
    k("v_cmp_gt_f32 s[44:45], s40, v5")
    k("v_cmp_lt_f32 s[46:47], s41, v7")
    k("v_cmp_gt_f32 s[48:49], s40, v7")
    k("s_nop 3")
    k("s_and_b64 vcc, vcc, s[42:43]")
    k("s_and_b64 vcc, vcc, s[44:45]")
    k("s_and_b64 vcc, vcc, s[46:47]")
    k("s_and_b64 vcc, vcc, s[48:49]")
    if force_slow:
        k("s_mov_b64 vcc, 0")
    k("s_cmp_eq_u64 vcc, -1")
    k(f"s_cbranch_scc0 {k.ref('slow')}")
    k.lab("fin")
    k("v_rcp_f32 v5, v5")
    k("v_rcp_f32 v7, v7")
    k("s_mul_i32 s40, s24, 5")
    k("v_lshrrev_b32 v17, 5, v0")
    k("v_add_u32 v17, s40, v17")
    k("v_lshrrev_b32 v16, 1, v17")
    k("v_lshlrev_b32 v16, 9, v16")
    k("v_and_b32 v17, 1, v17")
    k("v_lshl_add_u32 v16, v17, 3, v16")
    k("v_and_b32 v17, 31, v0")
    k("v_lshl_add_u32 v16, v17, 4, v16")
    k("s_mul_i32 s41, s25, 40960")
    k(f"s_add_u32 s41, s41, {WS_O}")
    k("s_add_u32 s42, s41, 40960")
    for x in range(2):
        for r in range(0, 12, 2):
            k(f"v_pk_mul_f32 v[{O[x]+r}:{O[x]+r+1}], v[{O[x]+r}:{O[x]+r+1}], v[{L[x]-1}:{L[x]}] op_sel:[0,1] op_sel_hi:[1,1]")
    for x in range(2):
        for j in range(6):
            k(f"v_cvt_pk_bf16_f32 v{20+6*x+j}, v{O[x]+2*j}, v{O[x]+2*j+1}")
    for x in range(2):
        k(f"buffer_store_dwordx2 v[{20+6*x}:{21+6*x}], v16, s[12:15], s{41+x} offen")
        k(f"buffer_store_dwordx2 v[{22+6*x}:{23+6*x}], v16, s[12:15], s{41+x} offen offset:512")
    k("s_mov_b64 exec, 0xffffffff")
    for x in range(2):
        k(f"buffer_store_dwordx2 v[{24+6*x}:{25+6*x}], v16, s[12:15], s{41+x} offen offset:1024")
    k("s_waitcnt vmcnt(0)")
    k.stamp(4); k.stamp_flush(6, kidx, 5, 26)
    k("s_endpgm")
    k.lab("slow")
    MX = 88
    for x in range(2):
        lane_addrs()
        k(f"v_mov_b32 v{MX}, {f2u(-3.0e38):#x}")
        for r in range(16):
            k(f"v_mov_b32 v{O[x]+r}, 0")
        k("s_mov_b32 s36, 0")
        k.lab(f"sl{x}")
        for r in rdK(0, 0) + rdV(0, 0): k(r)
        k("s_waitcnt lgkmcnt(0)")
        k(M1(x, 0))
        k("s_nop 7"); k("s_nop 1")
        k(M2(x, 0))
        k("s_nop 7"); k("s_nop 3")
        s = S[x]
        k(f"v_max3_f32 v4, v{s}, v{s+1}, v{s+2}")
        for i in range(3, 15, 2):
            k(f"v_max3_f32 v4, v4, v{s+i}, v{s+i+1}")
        k(f"v_max_f32 v4, v4, v{s+15}")
        k("v_mov_b32 v5, v4")
        k("s_nop 1")
        k("v_permlane32_swap_b32 v4, v5")
        k("s_nop 1")
        k(f"v_max3_f32 v4, v4, v5, v{MX}")
        k(f"v_sub_f32 v5, v{MX}, v4")
        k("v_exp_f32 v5, v5")
        k(f"v_mov_b32 v{MX}, v4")
        for i in range(16):
            k(f"v_sub_f32 v{s+i}, v{s+i}, v4")
        for i in range(16):
            k(f"v_exp_f32 v{s+i}, v{s+i}")
        for r in range(12):
            k(f"v_mul_f32 v{O[x]+r}, v{O[x]+r}, v5")
        for j in range(8):
            k(f"v_cvt_pk_bf16_f32 v{P+j}, v{s+2*j}, v{s+2*j+1}")
        k(f"v_add_u32 v{KA}, 2560, v{KA}")
        k(f"v_add_u32 v{KB}, 2560, v{KB}")
        k(f"v_add_u32 v{VA}, 2560, v{VA}")
        k("s_nop 4")
        k(MPV(x, 0, 0))
        k(MPV(x, 0, 1))
        k("s_nop 7"); k("s_nop 3")
        k("s_add_u32 s36, s36, 1")
        k("s_cmp_lt_u32 s36, 64")
        k(f"s_cbranch_scc1 {k.ref(f'sl{x}')}")
    for x in range(2):
        k(f"v_mov_b32 v{L[x]-1}, v{O[x]+8}")
        k(f"v_mov_b32 v{L[x]}, v{O[x]+8}")
    k("s_nop 1")
    for x in range(2):
        k(f"v_permlane32_swap_b32 v{L[x]-1}, v{L[x]}")
    k("s_nop 1")
    k(f"s_branch {k.ref('fin')}")
    return k
```

```python
import sys
from dsl import *
import ph, hazard
def build(which):
    if which == "a":
        return assemble([ph.gen_prep(), ph.gen_gemmA("qkv0_kernel", "qkv", 0, 1)])
    if which == "w1":
        return assemble([ph.gen_gemmA("w10_kernel", "w1", 0, 4)])
    if which == "pw1":
        return assemble([ph.gen_prep(), ph.gen_gemmA("w10_kernel", "w1", 0, 4)])
    if which == "attn":
        return assemble([ph.gen_attn("attn0_kernel", 2)])
    if which == "attns":
        return assemble([ph.gen_attn("attn0_kernel", 2, pack="sdwa")])
    if which == "attnf":
        return assemble([ph.gen_attn("attn0_kernel", 2, force_slow=True)])
    if which == "attn2":
        return assemble([ph.gen_attn2("attn0_kernel", 2)])
    if which == "attn2s":
        return assemble([ph.gen_attn2("attn0_kernel", 2, pack="sdwa")])
    if which == "attn2f":
        return assemble([ph.gen_attn2("attn0_kernel", 2, force_slow=True)])
    if which == "wo":
        return assemble([ph.gen_gemmB("wo0_kernel", "wo", 0, 3)])
    if which == "w2":
        return assemble([ph.gen_gemmB("w20_kernel", "w2", 0, 5)])
    if which == "w21":
        return assemble([ph.gen_gemmB("w21_kernel", "w2", 1, 10)])
    if which == "full":
        ks = [ph.gen_prep()]
        for l in range(2):
            ks += [ph.gen_gemmA(f"qkv{l}_kernel", "qkv", l, 1 + 5*l), ph.gen_attn2(f"attn{l}_kernel", 2 + 5*l),
                   ph.gen_gemmB(f"wo{l}_kernel", "wo", l, 3 + 5*l), ph.gen_gemmA(f"w1{l}_kernel", "w1", l, 4 + 5*l),
                   ph.gen_gemmB(f"w2{l}_kernel", "w2", l, 5 + 5*l)]
        return assemble(ks)
if __name__ == "__main__":
    which = sys.argv[1]; out = sys.argv[2]
    Kern.PROF = len(sys.argv) > 3
    t = build(which)
    open(out, "w").write(t)
    bad = hazard.check(t)
    print("hazards:", len(bad), "bytes:", len(t))
    for b in bad[:10]: print(b)
```

```python
import re,sys
def addsc(src, mod='sc1', only=None, kinds=None):
    out=[]; cur=None
    for l in src.split('\n'):
        m=re.match(r'^(\w+_kernel):',l)
        if m: cur=m.group(1)
        t=l.strip()
        if t.startswith('buffer_store') and (only is None or any(cur.startswith(o) for o in only)) and 's[96:99]' not in t and not t.endswith(' sc1') and not t.endswith('; nosc'):
            if kinds is None or any(t.startswith('buffer_store_'+x+' ') for x in kinds):
                l=l+' '+mod
        out.append(l)
    return '\n'.join(out)
if __name__=='__main__':
    s=open(sys.argv[1]).read()
    open(sys.argv[2],'w').write(addsc(s))
```

```python
from dsl import *
import struct
def f2u(x):
    return struct.unpack("<I", struct.pack("<f", x))[0]

KB = 1024
WS_WQ = 0
WS_W1 = 3 * MB
WS_WO = 5 * MB
WS_W2 = 6 * MB
WS_CSQ = 8 * MB
WS_CS1 = 8 * MB + 128 * KB
WS_ST0 = 8 * MB + 256 * KB
WS_ST1 = 8 * MB + 512 * KB
WS_X0 = 9 * MB
WS_X1 = 12 * MB
WS_X2 = 15 * MB
WS_O = 18 * MB
WS_Q = 21 * MB
WS_KV = 24 * MB
WS_H = 30 * MB
X_BYTES = 2048 * 640 * 2
H_BYTES = 2048 * 1536 * 2
ST_BYTES = 16 * 2048 * 8
Q_BYTES = 32 * 64 * 1280
KV_BYTES = 32 * 64 * 2560
WS_SIZE = 40 * MB
QSCALE = (20 ** -0.5) * 1.4426950408889634
NCSP = 10

def wave_id(k, sreg, vtmp=1):
    k(f"v_lshrrev_b32 v{vtmp}, 6, v0")
    k("s_nop 0")
    k(f"v_readfirstlane_b32 s{sreg}, v{vtmp}")
    k("v_and_b32 v0, 63, v0")

def gen_prep():
    NWG = 220
    k = Kern("prep_kernel", NWG, 512, 4 * 8192, vgpr=64)
    k(f"s_cmp_ge_u32 s2, {NWG}")
    k(f"s_cbranch_scc1 {k.ref('end')}")
    k.karg(4, 0)
    k.karg(6, 8)
    k.karg(8, 16)
    k.karg(10, 32)
    k.karg(12, 48)
    k.karg(14, 80)
    wave_id(k, 26)
    k("s_waitcnt lgkmcnt(0)")
    k.srd(16, 14, 0, WS_SIZE)
    k("s_cmp_ge_u32 s26, 4")
    k(f"s_cbranch_scc1 {k.ref('stats')}")
    k("s_lshl_b32 s3, s2, 2")
    k("s_add_u32 s3, s3, s26")
    def setup(lbl, lo, ncg, ptr, size, pitch, TN, K, dst, cs, csp):
        k.lab(lbl)
        k(f"s_sub_u32 s3, s3, {lo}")
        k.srd(20, ptr, 0, size)
        k(f"s_mov_b32 s27, {pitch}")
        k(f"s_mov_b32 s28, {(65536 + TN - 1)//TN}")
        k(f"s_mov_b32 s29, {TN}")
        k(f"s_mov_b32 s30, {K//8*TN*16}")
        k(f"s_mov_b32 s31, {dst}")
        k(f"s_mul_i32 s32, s3, {(65536 + ncg - 1)//ncg}")
        k("s_lshr_b32 s32, s32, 16")
        k(f"s_mul_i32 s33, s32, {ncg}")
        k("s_sub_u32 s33, s3, s33")
        k(f"s_mov_b32 s34, {cs if cs is not None else 0xffffffff:#x}")
        k(f"s_mov_b32 s35, {csp}")
        k(f"s_branch {k.ref('go')}")
    k("s_cmp_ge_u32 s3, 640"); k(f"s_cbranch_scc1 {k.ref('m_w2')}")
    k("s_cmp_ge_u32 s3, 540"); k(f"s_cbranch_scc1 {k.ref('m_wo')}")
    k("s_cmp_ge_u32 s3, 300"); k(f"s_cbranch_scc1 {k.ref('m_w1')}")
    setup("m_wq", 0, 30, 6, 640 * 3840, 3840, 128, 640, WS_WQ, WS_CSQ, 1920 * 4)
    setup("m_w1", 300, 24, 10, 640 * 3072, 3072, 96, 640, WS_W1, WS_CS1, 1536 * 4)
    setup("m_wo", 540, 10, 8, 640 * 1280, 1280, 80, 640, WS_WO, None, 0)
    setup("m_w2", 640, 10, 12, 1536 * 1280, 1280, 80, 1536, WS_W2, None, 0)
    k.lab("go")
    k("v_lshrrev_b32 v2, 3, v0")
    k("v_mul_lo_u32 v2, v2, s27")
    k("v_and_b32 v3, 7, v0")
    k("v_lshl_add_u32 v2, v3, 4, v2")
    k("s_lshl_b32 s36, s32, 6")
    k("s_mul_i32 s36, s36, s27")
    k("s_lshl_b32 s37, s33, 7")
    k("s_add_u32 s36, s36, s37")
    k("s_lshl_b32 s38, s27, 3")
    k("s_lshl_b32 s39, s26, 13")
    for j in range(8):
        k(f"s_add_u32 m0, s39, {j*1024}")
        k("s_nop 0")
        k("buffer_load_dwordx4 v2, s[20:23], s36 offen lds")
        if j < 7:
            k("s_add_u32 s36, s36, s38")
    k("s_lshl_b32 s40, s33, 6")
    k("v_add_u32 v4, s40, v0")
    k("v_mul_lo_u32 v5, v4, s28")
    k("v_lshrrev_b32 v5, 16, v5")
    k("v_mul_lo_u32 v6, v5, s29")
    k("v_sub_u32 v6, v4, v6")
    k("v_mul_lo_u32 v5, v5, s30")
    k("v_lshl_add_u32 v5, v6, 4, v5")
    k("s_lshl_b32 s41, s29, 4")
    k("s_lshl_b32 s42, s32, 3")
    k("s_mul_i32 s42, s42, s41")
    k("s_add_u32 s42, s42, s31")
    k("v_bfe_u32 v7, v0, 2, 2")
    k("v_lshlrev_b32 v7, 7, v7")
    k("v_lshrrev_b32 v8, 4, v0")
    k("v_lshl_add_u32 v7, v8, 5, v7")
    k("v_and_b32 v8, 3, v0")
    k("v_lshl_add_u32 v7, v8, 3, v7")
    k("v_add_u32 v7, s39, v7")
    k("v_mov_b32 v10, 0")
    for ku in range(8):
        k(f"s_waitcnt vmcnt({7-ku if ku == 0 else 7})") if False else None
    for ku in range(8):
        k("s_waitcnt vmcnt(7)")
        r = 16 + 4 * ku
        k(f"ds_read_b64_tr_b16 v[{r}:{r+1}], v7 offset:{ku*1024}")
        k(f"ds_read_b64_tr_b16 v[{r+2}:{r+3}], v7 offset:{ku*1024+512}")
        k("s_waitcnt lgkmcnt(0)")
        k(f"buffer_store_dwordx4 v[{r}:{r+3}], v5, s[16:19], s42 offen")
        if ku < 7:
            k("s_add_u32 s42, s42, s41")
    k("s_cmp_eq_u32 s34, 0xffffffff")
    k(f"s_cbranch_scc1 {k.ref('fin')}")
    for i in range(32):
        r = 16 + i
        k(f"v_lshlrev_b32 v8, 16, v{r}")
        k(f"v_and_b32 v9, 0xffff0000, v{r}")
        k("v_add_f32 v10, v10, v8")
        k("v_add_f32 v10, v10, v9")
    k("s_mul_i32 s43, s32, s35")
    k("s_add_u32 s43, s43, s34")
    k("v_lshlrev_b32 v4, 2, v4")
    k("buffer_store_dword v10, v4, s[16:19], s43 offen")
    k.lab("fin")
    k("s_waitcnt vmcnt(0)")
    k("s_endpgm")
    k.lab("stats")
    k("s_cmp_ge_u32 s2, 128")
    k(f"s_cbranch_scc1 {k.ref('end')}")
    k.srd(20, 4, 0, X_BYTES)
    k("s_sub_u32 s26, s26, 4")
    k("s_lshl_b32 s3, s2, 4")
    k("s_lshl_b32 s27, s26, 2")
    k("s_add_u32 s3, s3, s27")
    k("v_lshrrev_b32 v1, 4, v0")
    k("v_add_u32 v1, s3, v1")
    k("v_and_b32 v2, 15, v0")
    k("v_mul_u32_u24 v3, 1280, v1")
    k("v_lshl_add_u32 v3, v2, 4, v3")
    for i in range(5):
        k(f"buffer_load_dwordx4 v[{8+4*i}:{11+4*i}], v3, s[20:23], 0 offen offset:{256*i}")
    k("v_lshrrev_b32 v30, 5, v1")
    k("v_mul_u32_u24 v30, 40960, v30")
    k("v_and_b32 v31, 31, v1")
    k("v_lshl_add_u32 v30, v31, 4, v30")
    k("v_lshl_add_u32 v30, v2, 9, v30")
    k("v_mov_b32 v4, 0")
    k("v_mov_b32 v5, 0")
    for i in range(5):
        k(f"s_waitcnt vmcnt(4)")
        k(f"s_mov_b32 s28, {WS_X0 + i*8192}")
        k(f"buffer_store_dwordx4 v[{8+4*i}:{11+4*i}], v30, s[16:19], s28 offen")
        for j in range(4):
            r = 8 + 4 * i + j
            k(f"v_lshlrev_b32 v6, 16, v{r}")
            k(f"v_and_b32 v7, 0xffff0000, v{r}")
            k("v_add_f32 v4, v4, v6")
            k("v_fmac_f32 v5, v6, v6")
            k("v_add_f32 v4, v4, v7")
            k("v_fmac_f32 v5, v7, v7")
    for sh in (8, 4, 2, 1):
        k("s_nop 1")
        k(f"v_add_f32_dpp v4, v4, v4 row_ror:{sh} row_mask:0xf bank_mask:0xf")
        k(f"v_add_f32_dpp v5, v5, v5 row_ror:{sh} row_mask:0xf bank_mask:0xf")
    k("v_lshlrev_b32 v3, 3, v1")
    k("v_cmp_eq_u32 vcc, 0, v2")
    k("s_and_saveexec_b64 s[30:31], vcc")
    k(f"s_mov_b32 s28, {WS_ST0}")
    k("buffer_store_dwordx2 v[4:5], v3, s[16:19], s28 offen")
    k("s_waitcnt vmcnt(0)")
    k.lab("end")
    k("s_endpgm")
    return k

def ring_loader(k, NCH, NSLOT, dma, nD, pre_b0=None, post_b0=None, first=2):
    for c_ in range(first):
        dma(c_)
    k(f"s_waitcnt vmcnt({nD*(first-1)})")
    if pre_b0: pre_b0()
    k("s_barrier")
    issued = first
    if post_b0: post_b0()
    for i in range(1, NCH):
        while issued < NCH and issued <= i - 2 + NSLOT:
            dma(issued); issued += 1
        k(f"s_waitcnt vmcnt({(issued - 1 - i) * nD})")
        k("s_barrier")

def gen_gemmA(name, kind, layer, kidx=0, dbg=(), first=2):
    if kind == "qkv":
        NWG, NB, TB, TN = 240, 2, 2, 128
        WS_W, XSRC, ST, NPART, CSP, NCOL = WS_WQ, (WS_X0 if layer == 0 else WS_X2), WS_ST0, (1 if layer == 0 else 16), WS_CSQ, 1920
    else:
        NWG, NB, TB, TN = 256, 3, 1, 96
        WS_W, XSRC, ST, NPART, CSP, NCOL = WS_W1, WS_X1, WS_ST1, 16, WS_CS1, 1536
    WB = TN * 128
    SLOT = WB + 16384
    NSLOT = 4
    NCH = 10
    STATS = NSLOT * SLOT
    LDS = STATS + 2048
    k = Kern(name, NWG, 512, LDS, vgpr=256)
    k(f"s_cmp_ge_u32 s2, {NWG}")
    k(f"s_cbranch_scc1 {k.ref('end')}")
    k.stamp(0)
    k.karg(6, 80)
    if kind == "w1":
        k.karg(8, 40)
    wave_id(k, 26)
    k("s_and_b32 s20, s2, 7")
    k("s_lshr_b32 s21, s2, 3")
    if kind == "qkv":
        k("s_and_b32 s22, s20, 1")
        k("s_mul_i32 s22, s22, 30")
        k("s_add_u32 s22, s22, s21")
        k("s_lshr_b32 s25, s22, 2")
        k("s_and_b32 s22, s22, 3")
    else:
        k("s_and_b32 s22, s20, 1")
        k("s_lshl_b32 s22, s22, 3")
        k("s_lshr_b32 s23, s21, 2")
        k("s_add_u32 s25, s22, s23")
        k("s_and_b32 s22, s21, 3")
    k("s_lshr_b32 s23, s20, 1")
    k("s_lshl_b32 s23, s23, 2")
    k("s_add_u32 s24, s23, s22")
    k("s_cmp_lt_u32 s26, 4")
    k(f"s_cbranch_scc1 {k.ref('compute')}")

    k("s_sub_u32 s26, s26, 4")
    k("v_lshlrev_b32 v1, 4, v0")
    nW = WB // 4096
    k(f"s_mul_i32 s40, s25, {80*TN*16}")
    k(f"s_mul_i32 s41, s26, {nW*1024}")
    k("s_add_u32 s40, s40, s41")
    k(f"s_add_u32 s40, s40, {WS_W}")
    k("s_mov_b32 s42, s41")
    k("s_lshl_b32 s43, s24, 2")
    k("s_add_u32 s43, s43, s26")
    k("s_mul_i32 s43, s43, 40960")
    k(f"s_add_u32 s43, s43, {XSRC}")
    k("s_lshl_b32 s44, s26, 12")
    k(f"s_add_u32 s44, s44, {WB}")
    k("s_waitcnt lgkmcnt(0)")
    k.srd(12, 6, 0, WS_SIZE)
    def dma(ch):
        slot = ch % NSLOT
        k(f"s_add_u32 m0, s42, {slot*SLOT}")
        k(f"s_add_u32 s45, s40, {ch*WB}")
        for i in range(nW):
            k(f"buffer_load_dwordx4 v1, s[12:15], s45 offen offset:{i*1024} lds")
        k(f"s_add_u32 m0, s44, {slot*SLOT}")
        k(f"s_add_u32 s45, s43, {ch*4096}")
        for i in range(4):
            k(f"buffer_load_dwordx4 v1, s[12:15], s45 offen offset:{i*1024} lds")
    nD = nW + 4
    k.stamp(1)
    dma(0)
    k("v_and_b32 v2, 31, v0")
    k("v_lshrrev_b32 v3, 5, v0")
    k("s_lshl_b32 s46, s24, 7")
    k("s_lshl_b32 s47, s26, 5")
    k("s_add_u32 s46, s46, s47")
    k("v_add_u32 v4, s46, v2")
    k("v_lshlrev_b32 v4, 3, v4")
    nst = 0
    if NPART == 16:
        k("v_lshl_add_u32 v4, v3, 17, v4")
        for p in range(8):
            k(f"s_mov_b32 s47, {ST + p*16384}")
            k(f"buffer_load_dwordx2 v[{16+2*p}:{17+2*p}], v4, s[12:15], s47 offen")
        nst = 8
    else:
        k(f"s_mov_b32 s47, {ST}")
        k("buffer_load_dwordx2 v[16:17], v4, s[12:15], s47 offen")
        nst = 1
    k("s_lshl_b32 s47, s26, 5")
    k("v_add_u32 v5, s47, v2")
    k(f"s_mul_i32 s47, s25, {TN}")
    k("v_add_u32 v6, s47, v5")
    k("v_lshlrev_b32 v7, 2, v6")
    k(f"v_mul_u32_u24 v8, {5*NCOL*4}, v3")
    k("v_add_u32 v7, v7, v8")
    for p in range(5):
        k(f"s_mov_b32 s47, {CSP + p*NCOL*4}")
        k(f"buffer_load_dword v{32+p}, v7, s[12:15], s47 offen")
    nst += 5
    if kind == "w1":
        k.srd(16, 8, 0, 1536 * 2)
        k("v_lshlrev_b32 v9, 1, v6")
        k("buffer_load_ushort v38, v9, s[16:19], 0 offen")
        nst += 1
    for c_ in range(1, first):
        dma(c_)
    k(f"s_waitcnt vmcnt({nD*(first-1)})")
    k.stamp(2)
    k("s_barrier")
    if NPART == 16:
        for p in range(1, 8):
            k(f"v_add_f32 v16, v16, v{16+2*p}")
            k(f"v_add_f32 v17, v17, v{17+2*p}")
        k("v_mov_b32 v18, v16")
        k("v_mov_b32 v19, v17")
        k("s_nop 1")
        k("v_permlane32_swap_b32 v16, v18")
        k("v_permlane32_swap_b32 v17, v19")
        k("s_nop 1")
        k("v_add_f32 v16, v16, v18")
        k("v_add_f32 v17, v17, v19")
    k(f"v_mul_f32 v16, {f2u(1/640):#x}, v16")
    k(f"v_mul_f32 v17, {f2u(1/640):#x}, v17")
    k("v_fma_f32 v17, -v16, v16, v17")
    k("v_max_f32 v17, 0, v17")
    k(f"v_add_f32 v18, {f2u(1e-5):#x}, v17")
    k("v_rsq_f32 v18, v18")
    if kind == "w1":
        k("s_nop 0")
        k("v_mul_f32 v19, v18, v18")
        k("v_mul_f32 v19, v19, v17")
        k(f"v_add_f32 v19, {f2u(1e-5):#x}, v19")
        k("v_rsq_f32 v19, v19")
        k("s_nop 0")
        k("v_mul_f32 v18, v18, v19")
    else:
        k("s_cmp_lt_u32 s25, 5")
        k(f"s_cselect_b32 s46, {f2u(QSCALE):#x}, 1.0")
        k("v_mul_f32 v18, s46, v18")
    k("s_nop 0")
    k("v_mul_f32 v19, v18, v16")
    for p in range(1, 5):
        k(f"v_add_f32 v32, v32, v{32+p}")
    k("v_mov_b32 v33, v32")
    k("s_nop 1")
    k("v_permlane32_swap_b32 v32, v33")
    k("s_nop 1")
    k("v_add_f32 v32, v32, v33")
    k("v_cmp_eq_u32 vcc, 0, v3")
    k("s_lshl_b32 s47, s26, 7")
    k("v_lshlrev_b32 v2, 2, v2")
    k("v_add_u32 v2, s47, v2")
    k(f"v_add_u32 v2, {STATS}, v2")
    k("v_lshl_add_u32 v2, v3, 9, v2")
    k("v_cndmask_b32 v18, v19, v18, vcc")
    if kind == "w1":
        k("v_lshlrev_b32 v38, 16, v38")
        k("v_cndmask_b32 v32, v38, v32, vcc")
    k("ds_write_b32 v2, v18")
    k("ds_write_b32 v2, v32 offset:1024")
    k("s_waitcnt lgkmcnt(0)")
    issued = first
    for i in range(1, NCH):
        while issued < NCH and issued <= i - 2 + NSLOT:
            dma(issued); issued += 1
        k(f"s_waitcnt vmcnt({(issued - 1 - i) * nD})")
        k("s_barrier")
    k.stamp(4)
    k("s_add_u32 s26, s26, 4")
    k.stamp_flush(6, kidx, 5, 26)
    k.lab("end")
    k("s_endpgm")

    k.lab("compute")
    ACC = 64
    FA = [128, 128 + 4 * NB]
    FB = [160, 160 + 4 * TB]
    AW, AX = 1, 3
    HH, TL = 17, 16
    if kind == "qkv":
        k("s_and_b32 s27, s26, 1")
        k("s_lshr_b32 s36, s26, 1")
    else:
        k("s_mov_b32 s27, 0")
        k("s_mov_b32 s36, s26")
    k(f"v_lshrrev_b32 v{HH}, 5, v0")
    k(f"v_and_b32 v{TL}, 31, v0")
    k(f"v_mul_u32_u24 v20, {TN*16}, v{HH}")
    k(f"v_lshl_add_u32 v20, v{TL}, 4, v20")
    k(f"s_mul_i32 s37, s27, {NB*512}")
    k(f"v_add_u32 v{AW}, s37, v20")
    k(f"v_add_u32 v{AW+1}, {2*SLOT}, v{AW}")
    k(f"v_lshlrev_b32 v20, 4, v0")
    k(f"s_mul_i32 s37, s36, {TB*4096}")
    k(f"s_add_u32 s37, s37, {WB}")
    k(f"v_add_u32 v{AX}, s37, v20")
    k(f"v_add_u32 v{AX+1}, {2*SLOT}, v{AX}")

    def reads(step):
        ch, ks = divmod(step, 4)
        slot = ch % NSLOT
        half, sl = divmod(slot, 2)
        st = step & 1
        out = []
        for nb in range(NB):
            d = FA[st] + nb * 4
            out.append(f"ds_read_b128 v[{d}:{d+3}], v{AW+half} offset:{sl*SLOT + ks*2*TN*16 + nb*512}")
        for tb in range(TB):
            d = FB[st] + tb * 4
            out.append(f"ds_read_b128 v[{d}:{d+3}], v{AX+half} offset:{sl*SLOT + ks*1024 + tb*4096}")
        return out

    def mainloop(swap):
        k.stamp(1)
        k("s_barrier")
        k.stamp(2)
        for r in reads(0):
            k(r)
        NS = NCH * 4
        for step in range(NS):
            st = step & 1
            k("s_waitcnt lgkmcnt(0)")
            if step % 4 == 3 and step + 1 < NS:
                k("s_barrier")
            rd = reads(step + 1) if step + 1 < NS else []
            mf = []
            for nb in range(NB):
                for tb in range(TB):
                    d = ACC + (nb * TB + tb) * 16
                    a = FA[st] + nb * 4
                    b = FB[st] + tb * 4
                    c = "0" if step == 0 else f"v[{d}:{d+15}]"
                    if swap:
                        mf.append(f"v_mfma_f32_32x32x16_bf16 v[{d}:{d+15}], v[{b}:{b+3}], v[{a}:{a+3}], {c}")
                    else:
                        mf.append(f"v_mfma_f32_32x32x16_bf16 v[{d}:{d+15}], v[{a}:{a+3}], v[{b}:{b+3}], {c}")
            ri = 0
            for i, m in enumerate(mf):
                if "nomfma" not in dbg: k(m)
                for r in rd[ri:ri + 2]:
                    if "nords" not in dbg: k(r)
                ri += 2
            assert ri >= len(rd)
        k.stamp(3)

    k("s_waitcnt lgkmcnt(0)")
    if kind == "qkv":
        k("s_cmp_ge_u32 s25, 10")
        k(f"s_cbranch_scc1 {k.ref('vpath')}")
        pre_qk(k, HH, TL)
        mainloop(False)
        epi_qk(k, ACC, STATS, HH, TL)
        k.stamp(4); k.stamp_flush(6, kidx, 5, 26)
        k("s_endpgm")
        k.lab("vpath")
        pre_v(k, HH, TL)
        mainloop(True)
        epi_v(k, ACC, STATS, HH, TL)
        k.stamp(4); k.stamp_flush(6, kidx, 5, 26)
        k("s_endpgm")
    else:
        mainloop(False)
        epi_w1(k, ACC, STATS, HH, TL)
        k.stamp(4); k.stamp_flush(6, kidx, 5, 26)
        k("s_endpgm")
    return k


def pre_qk(k, HH, TL):
    k.srd(48, 6, 0, WS_SIZE)
    k("s_cmp_lt_u32 s25, 5")
    k(f"s_mov_b32 s37, {WS_KV}")
    k(f"s_cselect_b32 s37, {WS_Q}, s37")
    k("s_cselect_b32 s38, 0, 5")
    k("s_movk_i32 s39, 2560")
    k("s_cselect_b32 s39, 1280, s39")
    k("s_lshl_b32 s40, s39, 6")
    k("s_sub_u32 s38, s25, s38")
    k("s_lshl_b32 s41, s24, 2")
    k("s_lshl_b32 s42, s36, 1")
    k("s_add_u32 s41, s41, s42")
    k("s_mul_i32 s41, s41, s39")
    k("s_add_u32 s52, s37, s41")
    k("s_add_u32 s53, s52, s39")
    k("s_lshl_b32 s38, s38, 5")
    k("s_lshl_b32 s42, s27, 4")
    k("s_add_u32 s38, s38, s42")
    k(f"v_add_u32 v21, s38, v{HH}")
    k(f"v_lshlrev_b32 v22, 3, v{TL}")
    for nb in range(2):
        for q in range(4):
            d = 24 + nb * 4 + q
            k(f"v_add_u32 v23, {nb*8+2*q}, v21")
            k("v_mul_u32_u24 v18, 205, v23")
            k("v_lshrrev_b32 v18, 10, v18")
            k("v_mul_u32_u24 v19, 5, v18")
            k("v_sub_u32 v23, v23, v19")
            k("v_mul_lo_u32 v18, v18, s40")
            k("v_cmp_gt_u32 vcc, 4, v23")
            k("v_lshrrev_b32 v19, 1, v23")
            k("v_lshl_add_u32 v18, v19, 9, v18")
            k("v_and_b32 v19, 1, v23")
            k("v_lshl_add_u32 v18, v19, 3, v18")
            k("v_cndmask_b32 v19, 0, v22, vcc")
            k("v_add_u32 v18, v18, v22")
            k(f"v_add_u32 v{d}, v18, v19")


def epi_qk(k, ACC, STATS, HH, TL):
    NB, TB = 2, 2
    k(f"s_mul_i32 s37, s36, 256")
    k(f"v_lshlrev_b32 v20, 2, v{TL}")
    k(f"v_add_u32 v20, s37, v20")
    k(f"v_add_u32 v20, {STATS}, v20")
    for tb in range(TB):
        k(f"ds_read_b32 v{32+2*tb}, v20 offset:{tb*128}")
        k(f"ds_read_b32 v{33+2*tb}, v20 offset:{512+tb*128}")
    k(f"v_lshlrev_b32 v21, 4, v{HH}")
    k("s_lshl_b32 s37, s27, 8")
    k("v_add_u32 v21, s37, v21")
    k(f"v_add_u32 v21, {STATS+1024}, v21")
    CS = 128
    for nb in range(NB):
        for q in range(4):
            k(f"ds_read_b128 v[{CS+(nb*4+q)*4}:{CS+(nb*4+q)*4+3}], v21 offset:{nb*128+q*32}")
    k("s_waitcnt lgkmcnt(0)")
    k("s_nop 7")
    n = 0
    for nb in range(NB):
        for q in range(4):
            cs = CS + (nb * 4 + q) * 4
            for tb in range(TB):
                a = ACC + (nb * TB + tb) * 16 + q * 4
                rs, rm = 32 + 2 * tb, 33 + 2 * tb
                t = 36 + 4 * (n % 2)
                for h in range(2):
                    k(f"v_pk_mul_f32 v[{t+2*h}:{t+2*h+1}], v[{cs+2*h}:{cs+2*h+1}], v[{rs}:{rs+1}] op_sel:[0,1] op_sel_hi:[1,1]")
                for h in range(2):
                    k(f"v_pk_fma_f32 v[{t+2*h}:{t+2*h+1}], v[{a+2*h}:{a+2*h+1}], v[{rs}:{rs+1}], v[{t+2*h}:{t+2*h+1}] op_sel_hi:[1,0,1] neg_lo:[0,0,1] neg_hi:[0,0,1]")
                o = 44 + 2 * (n % 4)
                k(f"v_cvt_pk_bf16_f32 v{o}, v{t}, v{t+1}")
                k(f"v_cvt_pk_bf16_f32 v{o+1}, v{t+2}, v{t+3}")
                k(f"buffer_store_dwordx2 v[{o}:{o+1}], v{24+nb*4+q}, s[48:51], s{52+tb} offen")
                n += 1
    k("s_waitcnt vmcnt(0)")


def pre_v(k, HH, TL):
    k.srd(48, 6, 0, WS_SIZE)
    k("s_sub_u32 s37, s25, 10")
    k("s_lshl_b32 s37, s37, 7")
    k("s_lshl_b32 s38, s27, 6")
    k("s_add_u32 s37, s37, s38")
    for nb in range(2):
        k(f"v_add_u32 v20, s37, v{TL}")
        if nb: k("v_add_u32 v20, 32, v20")
        k("v_mul_u32_u24 v21, 205, v20")
        k("v_lshrrev_b32 v21, 12, v21")
        k("v_mul_u32_u24 v22, 20, v21")
        k("v_sub_u32 v22, v20, v22")
        k("s_mov_b32 s38, 163840")
        k("v_mul_lo_u32 v21, v21, s38")
        k("v_lshl_add_u32 v21, v22, 4, v21")
        k(f"v_mul_u32_u24 v22, 320, v{HH}")
        k(f"v_add_u32 v{24+nb}, v21, v22")
    k("s_lshl_b32 s41, s24, 2")
    k("s_lshl_b32 s42, s36, 1")
    k("s_add_u32 s41, s41, s42")
    k("s_mul_i32 s41, s41, 2560")
    k(f"s_add_u32 s52, s41, {WS_KV + 1280}")


def epi_v(k, ACC, STATS, HH, TL):
    NB, TB = 2, 2
    k("s_lshl_b32 s37, s36, 8")
    k(f"v_lshlrev_b32 v20, 4, v{HH}")
    k("v_add_u32 v20, s37, v20")
    k(f"v_add_u32 v20, {STATS}, v20")
    RS, RM = 128, 160
    for tb in range(TB):
        for q in range(4):
            k(f"ds_read_b128 v[{RS+(tb*4+q)*4}:{RS+(tb*4+q)*4+3}], v20 offset:{tb*128+q*32}")
    k(f"v_lshlrev_b32 v21, 2, v{TL}")
    k("s_lshl_b32 s37, s27, 8")
    k("v_add_u32 v21, s37, v21")
    k(f"v_add_u32 v21, {STATS+1024}, v21")
    k("s_waitcnt lgkmcnt(4)")
    for tb in range(TB):
        for q in range(4):
            k(f"ds_read_b128 v[{RM+(tb*4+q)*4}:{RM+(tb*4+q)*4+3}], v20 offset:{512+tb*128+q*32}")
    k("ds_read_b32 v32, v21")
    k("ds_read_b32 v34, v21 offset:128")
    k("s_waitcnt lgkmcnt(0)")
    k("s_nop 7")
    n = 0
    for nb in range(NB):
        cs = 32 + 2 * nb
        for tb in range(TB):
            for qp in range(2):
                o = 44 + 4 * (n % 2)
                for qq in range(2):
                    q = qp * 2 + qq
                    a = ACC + (nb * TB + tb) * 16 + q * 4
                    t = 36 + 4 * qq
                    rs, rm = RS + (tb * 4 + q) * 4, RM + (tb * 4 + q) * 4
                    for h in range(2):
                        k(f"v_pk_mul_f32 v[{t+2*h}:{t+2*h+1}], v[{rm+2*h}:{rm+2*h+1}], v[{cs}:{cs+1}] op_sel_hi:[1,0]")
                    for h in range(2):
                        k(f"v_pk_fma_f32 v[{t+2*h}:{t+2*h+1}], v[{a+2*h}:{a+2*h+1}], v[{rs+2*h}:{rs+2*h+1}], v[{t+2*h}:{t+2*h+1}] neg_lo:[0,0,1] neg_hi:[0,0,1]")
                    k(f"v_cvt_pk_bf16_f32 v{o+2*qq}, v{t}, v{t+1}")
                    k(f"v_cvt_pk_bf16_f32 v{o+2*qq+1}, v{t+2}, v{t+3}")
                k("s_nop 1")
                k(f"v_permlane32_swap_b32 v{o}, v{o+2}")
                k(f"v_permlane32_swap_b32 v{o+1}, v{o+3}")
                k("s_nop 1")
                k(f"buffer_store_dwordx4 v[{o}:{o+3}], v{24+nb}, s[48:51], s52 offen offset:{tb*2560+qp*640}")
                n += 1
    k("s_waitcnt vmcnt(0)")


GK1 = -2.0 * 0.7978845608028654 * 1.4426950408889634
GK2 = GK1 * 0.044715

def epi_w1(k, ACC, STATS, HH, TL):
    NB = 3
    k.srd(48, 6, 0, WS_SIZE)
    k("s_lshl_b32 s37, s36, 7")
    k(f"v_lshlrev_b32 v20, 2, v{TL}")
    k("v_add_u32 v20, s37, v20")
    k(f"v_add_u32 v20, {STATS}, v20")
    k("ds_read_b32 v32, v20")
    k("ds_read_b32 v33, v20 offset:512")
    k(f"v_lshlrev_b32 v21, 4, v{HH}")
    k(f"v_add_u32 v21, {STATS+1024}, v21")
    CS, BI = 128, 176
    for nb in range(NB):
        for q in range(4):
            k(f"ds_read_b128 v[{CS+(nb*4+q)*4}:{CS+(nb*4+q)*4+3}], v21 offset:{nb*128+q*32}")
    k("s_waitcnt lgkmcnt(6)")
    for nb in range(NB):
        for q in range(4):
            k(f"ds_read_b128 v[{BI+(nb*4+q)*4}:{BI+(nb*4+q)*4+3}], v21 offset:{512+nb*128+q*32}")
    k("s_lshl_b32 s39, s24, 2")
    k("s_add_u32 s39, s39, s36")
    k("s_mul_i32 s39, s39, 98304")
    k("s_mul_i32 s40, s25, 6144")
    k("s_add_u32 s39, s39, s40")
    k(f"s_add_u32 s52, s39, {WS_H}")
    k("s_add_u32 s53, s52, 2048")
    k("s_add_u32 s54, s52, 4096")
    k("v_lshlrev_b32 v22, 4, v0")
    k(f"v_mov_b32 v34, {f2u(GK1):#x}")
    k(f"v_mov_b32 v35, {f2u(GK2):#x}")
    k("s_waitcnt lgkmcnt(0)")
    k("s_nop 7")
    n = 0
    for nb in range(NB):
        for qp in range(2):
            o = 56 + 4 * (n % 2)
            for qq in range(2):
                q = qp * 2 + qq
                a = ACC + nb * 16 + q * 4
                cs = CS + (nb * 4 + q) * 4
                b = BI + (nb * 4 + q) * 4
                u, t = 36, 40
                for h in range(2):
                    k(f"v_pk_fma_f32 v[{u+2*h}:{u+2*h+1}], v[{cs+2*h}:{cs+2*h+1}], v[32:33], v[{b+2*h}:{b+2*h+1}] op_sel:[0,1,0] op_sel_hi:[1,1,1] neg_lo:[1,0,0] neg_hi:[1,0,0]")
                for h in range(2):
                    k(f"v_pk_fma_f32 v[{u+2*h}:{u+2*h+1}], v[{a+2*h}:{a+2*h+1}], v[32:33], v[{u+2*h}:{u+2*h+1}] op_sel_hi:[1,0,1]")
                for h in range(2):
                    k(f"v_pk_mul_f32 v[{t+2*h}:{t+2*h+1}], v[{u+2*h}:{u+2*h+1}], v[{u+2*h}:{u+2*h+1}]")
                for h in range(2):
                    k(f"v_pk_fma_f32 v[{t+2*h}:{t+2*h+1}], v[{t+2*h}:{t+2*h+1}], v[34:35], v[34:35] op_sel:[0,1,0] op_sel_hi:[1,1,0]")
                for h in range(2):
                    k(f"v_pk_mul_f32 v[{t+2*h}:{t+2*h+1}], v[{t+2*h}:{t+2*h+1}], v[{u+2*h}:{u+2*h+1}]")
                for i in range(4):
                    k(f"v_exp_f32 v{t+i}, v{t+i}")
                k("s_nop 0")
                for h in range(2):
                    k(f"v_pk_add_f32 v[{t+2*h}:{t+2*h+1}], v[{t+2*h}:{t+2*h+1}], 1.0 op_sel_hi:[1,0]")
                for i in range(4):
                    k(f"v_rcp_f32 v{t+i}, v{t+i}")
                k("s_nop 0")
                for h in range(2):
                    k(f"v_pk_mul_f32 v[{u+2*h}:{u+2*h+1}], v[{u+2*h}:{u+2*h+1}], v[{t+2*h}:{t+2*h+1}]")
                k(f"v_cvt_pk_bf16_f32 v{o+2*qq}, v{u}, v{u+1}")
                k(f"v_cvt_pk_bf16_f32 v{o+2*qq+1}, v{u+2}, v{u+3}")
            k("s_nop 1")
            k(f"v_permlane32_swap_b32 v{o}, v{o+2}")
            k(f"v_permlane32_swap_b32 v{o+1}, v{o+3}")
            k("s_nop 1")
            k(f"buffer_store_dwordx4 v[{o}:{o+3}], v22, s[48:51], s{52+nb} offen offset:{qp*1024}")
            n += 1
    k("s_waitcnt vmcnt(0)")


def gen_gemmB(name, kind, layer, kidx=0, dbg=(), first=2):
    NWG = 256
    if kind == "wo":
        K, WS_W, XSRC = 640, WS_WO, WS_O
        RES = WS_X0 if layer == 0 else WS_X2
        DST, ST = WS_X1, WS_ST1
    else:
        K, WS_W, XSRC = 1536, WS_W2, WS_H
        RES = WS_X1
        DST, ST = (WS_X2, WS_ST0) if layer == 0 else (None, None)
    NCH = K // 128
    XBLK = K * 64
    WB = 20480
    SLOT = WB + 16384
    NSLOT = 4
    LDS = NSLOT * SLOT
    k = Kern(name, NWG, 512, LDS, vgpr=128)
    k(f"s_cmp_ge_u32 s2, {NWG}")
    k(f"s_cbranch_scc1 {k.ref('end')}")
    k.stamp(0)
    k.karg(6, 80)
    if kind == "w2":
        k.karg(8, 56)
        if DST is None:
            k.karg(10, 64)
    wave_id(k, 26)
    k("s_and_b32 s20, s2, 7")
    k("s_lshr_b32 s21, s2, 3")
    k("s_lshr_b32 s22, s20, 1")
    k("s_lshl_b32 s22, s22, 3")
    k("s_and_b32 s23, s21, 7")
    k("s_add_u32 s24, s22, s23")
    k("s_and_b32 s22, s20, 1")
    k("s_lshl_b32 s22, s22, 2")
    k("s_lshr_b32 s23, s21, 3")
    k("s_add_u32 s25, s22, s23")
    k("s_cmp_lt_u32 s26, 4")
    k(f"s_cbranch_scc1 {k.ref('compute')}")
    k("s_sub_u32 s26, s26, 4")
    k("v_lshlrev_b32 v1, 4, v0")
    k(f"s_mul_i32 s40, s25, {K//8*1280}")
    k("s_mul_i32 s41, s26, 5120")
    k("s_add_u32 s40, s40, s41")
    k(f"s_add_u32 s40, s40, {WS_W}")
    k("s_mov_b32 s42, s41")
    k("s_lshl_b32 s43, s24, 1")
    k("s_lshr_b32 s47, s26, 1")
    k("s_add_u32 s43, s43, s47")
    k(f"s_mul_i32 s43, s43, {XBLK}")
    k("s_and_b32 s47, s26, 1")
    k("s_lshl_b32 s47, s47, 12")
    k("s_add_u32 s43, s43, s47")
    k(f"s_add_u32 s43, s43, {XSRC}")
    k("s_lshl_b32 s44, s26, 12")
    k(f"s_add_u32 s44, s44, {WB}")
    k("s_waitcnt lgkmcnt(0)")
    k.srd(12, 6, 0, WS_SIZE)
    def dma(ch):
        slot = ch % NSLOT
        k(f"s_add_u32 m0, s44, {slot*SLOT}")
        k(f"s_add_u32 s45, s43, {ch*8192}")
        for i in range(4):
            k(f"buffer_load_dwordx4 v1, s[12:15], s45 offen offset:{i*1024} lds")
        k(f"s_add_u32 m0, s42, {slot*SLOT}")
        k(f"s_add_u32 s45, s40, {ch*WB}")
        for i in range(4):
            k(f"buffer_load_dwordx4 v1, s[12:15], s45 offen offset:{i*1024} lds")
        k(f"s_add_u32 m0, s42, {slot*SLOT+4096}")
        k(f"s_add_u32 s45, s40, {ch*WB+4096}")
        k(f"buffer_load_dwordx4 v1, s[12:15], s45 offen lds")
    k.stamp(1)
    def pre(): k.stamp(2)
    ring_loader(k, NCH, NSLOT, dma, 9, pre_b0=pre, first=first)
    k.stamp(4)
    k("s_add_u32 s26, s26, 4")
    k.stamp_flush(6, kidx, 5, 26)
    k.lab("end")
    k("s_endpgm")

    k.lab("compute")
    ACC, FA0, FB0, RS, BI = 32, 64, 88, 104, 116
    AW, AX = 1, 3
    k("s_and_b32 s27, s26, 1")
    k("s_lshr_b32 s36, s26, 1")
    k("v_lshrrev_b32 v17, 4, v0")
    k("v_and_b32 v16, 15, v0")
    k("v_mul_u32_u24 v20, 1280, v17")
    k("v_lshl_add_u32 v20, v16, 4, v20")
    k("s_mul_i32 s37, s27, 768")
    k(f"v_add_u32 v{AW}, s37, v20")
    k(f"v_add_u32 v{AW+1}, {2*SLOT}, v{AW}")
    k("v_lshlrev_b32 v20, 9, v17")
    k("v_lshl_add_u32 v20, v16, 4, v20")
    k("s_lshl_b32 s37, s36, 13")
    k(f"s_add_u32 s37, s37, {WB}")
    k(f"v_add_u32 v{AX}, s37, v20")
    k(f"v_add_u32 v{AX+1}, {2*SLOT}, v{AX}")
    k("v_lshrrev_b32 v20, 1, v17")
    k("v_lshlrev_b32 v20, 9, v20")
    k("v_lshl_add_u32 v20, v16, 4, v20")
    k("v_and_b32 v21, 1, v17")
    k("v_lshl_add_u32 v20, v21, 3, v20")
    k("s_lshl_b32 s38, s24, 1")
    k("s_add_u32 s38, s38, s36")
    k("s_mul_i32 s39, s38, 40960")
    k("s_mul_i32 s40, s25, 5120")
    k("s_add_u32 s39, s39, s40")
    k("s_mul_i32 s40, s27, 3072")
    k("s_add_u32 s39, s39, s40")
    k(f"s_add_u32 s52, s39, {RES}")
    k("s_waitcnt lgkmcnt(0)")
    k.srd(48, 6, 0, WS_SIZE)

    def path(NB):
        for nb in range(NB):
            for tb in range(2):
                d = RS + (nb * 2 + tb) * 2
                k(f"buffer_load_dwordx2 v[{d}:{d+1}], v20, s[48:51], s52 offen offset:{nb*1024+tb*256}")
        if kind == "w2":
            k.srd(56, 8, 0, 1280)
            k("s_mul_i32 s40, s25, 160")
            k("s_mul_i32 s41, s27, 96")
            k("s_add_u32 s40, s40, s41")
            k("v_lshlrev_b32 v21, 3, v17")
            for nb in range(NB):
                k(f"buffer_load_dwordx2 v[{BI+2*nb}:{BI+2*nb+1}], v21, s[56:59], s40 offen offset:{nb*32}")
        def reads(step):
            ch, ks = divmod(step, 4)
            slot = ch % NSLOT
            half, sl = divmod(slot, 2)
            st = step & 1
            out = []
            for tb in range(2):
                d = FB0 + st * 8 + tb * 4
                out.append(f"ds_read_b128 v[{d}:{d+3}], v{AX+half} offset:{sl*SLOT + ks*2048 + tb*256}")
            for nb in range(NB):
                d = FA0 + st * 12 + nb * 4
                out.append(f"ds_read_b128 v[{d}:{d+3}], v{AW+half} offset:{sl*SLOT + ks*5120 + nb*256}")
            return out
        k.stamp(1)
        k("s_barrier")
        k.stamp(2)
        for r in reads(0):
            k(r)
        NS = NCH * 4
        for step in range(NS):
            st = step & 1
            k("s_waitcnt lgkmcnt(0)")
            if step % 4 == 3 and step + 1 < NS:
                k("s_barrier")
            rd = reads(step + 1) if step + 1 < NS else []
            mf = []
            for nb in range(NB):
                for tb in range(2):
                    d = ACC + (nb * 2 + tb) * 4
                    a = FA0 + st * 12 + nb * 4
                    b = FB0 + st * 8 + tb * 4
                    c = "0" if step == 0 else f"v[{d}:{d+3}]"
                    mf.append(f"v_mfma_f32_16x16x32_bf16 v[{d}:{d+3}], v[{a}:{a+3}], v[{b}:{b+3}], {c}")
            ri = 0
            for i, m in enumerate(mf):
                if "nomfma" not in dbg: k(m)
                for r in rd[ri:ri + 2]:
                    if "nords" not in dbg: k(r)
                ri += 2
            assert ri >= len(rd)
        k.stamp(3)
        k("s_waitcnt vmcnt(0)")
        want_stats = ST is not None
        if want_stats:
            for r in (8, 9, 10, 11):
                k(f"v_mov_b32 v{r}, 0")
        k("v_lshlrev_b32 v22, 4, v0")
        if DST is None:
            k.srd(60, 10, 0, X_BYTES)
            k("v_and_b32 v23, 31, v0")
            k("v_mul_u32_u24 v23, 1280, v23")
            k("v_lshrrev_b32 v24, 5, v0")
            k("v_lshl_add_u32 v23, v24, 4, v23")
            k("s_mul_i32 s40, s38, 40960")
            k("s_mul_i32 s41, s25, 160")
            k("s_add_u32 s40, s40, s41")
            k("s_mul_i32 s41, s27, 96")
            k("s_add_u32 s53, s40, s41")
        else:
            k(f"s_add_u32 s53, s39, {DST}")
        k("s_nop 4")
        for nb in range(NB):
            o = 24 + 4 * (nb % 2)
            for tb in range(2):
                a = ACC + (nb * 2 + tb) * 4
                d = RS + (nb * 2 + tb) * 2
                t = 12
                k(f"v_lshlrev_b32 v{t}, 16, v{d}")
                k(f"v_and_b32 v{t+1}, 0xffff0000, v{d}")
                k(f"v_lshlrev_b32 v{t+2}, 16, v{d+1}")
                k(f"v_and_b32 v{t+3}, 0xffff0000, v{d+1}")
                k(f"v_pk_add_f32 v[{a}:{a+1}], v[{a}:{a+1}], v[{t}:{t+1}]")
                k(f"v_pk_add_f32 v[{a+2}:{a+3}], v[{a+2}:{a+3}], v[{t+2}:{t+3}]")
                if kind == "w2":
                    b = BI + 2 * nb
                    k(f"v_lshlrev_b32 v{t+4}, 16, v{b}")
                    k(f"v_and_b32 v{t+5}, 0xffff0000, v{b}")
                    k(f"v_lshlrev_b32 v{t+6}, 16, v{b+1}")
                    k(f"v_and_b32 v{t+7}, 0xffff0000, v{b+1}")
                    k(f"v_pk_add_f32 v[{a}:{a+1}], v[{a}:{a+1}], v[{t+4}:{t+5}]")
                    k(f"v_pk_add_f32 v[{a+2}:{a+3}], v[{a+2}:{a+3}], v[{t+6}:{t+7}]")
                if want_stats:
                    for r in range(4):
                        k(f"v_add_f32 v{8+tb}, v{8+tb}, v{a+r}")
                        k(f"v_fmac_f32 v{10+tb}, v{a+r}, v{a+r}")
                k(f"v_cvt_pk_bf16_f32 v{o+2*tb}, v{a}, v{a+1}")
                k(f"v_cvt_pk_bf16_f32 v{o+2*tb+1}, v{a+2}, v{a+3}")
            k("s_nop 1")
            k(f"v_permlane16_swap_b32 v{o}, v{o+2}")
            k(f"v_permlane16_swap_b32 v{o+1}, v{o+3}")
            k("s_nop 1")
            if DST is None:
                k(f"buffer_store_dwordx4 v[{o}:{o+3}], v23, s[60:63], s53 offen offset:{nb*32}")
            else:
                k(f"buffer_store_dwordx4 v[{o}:{o+3}], v22, s[48:51], s53 offen offset:{nb*1024}")
        if want_stats:
            k("v_permlane16_swap_b32 v8, v9")
            k("v_permlane16_swap_b32 v10, v11")
            k("s_nop 1")
            k("v_add_f32 v8, v8, v9")
            k("v_add_f32 v10, v10, v11")
            k("s_nop 1")
            k("v_permlane32_swap_b32 v8, v10")
            k("s_nop 1")
            k("v_add_f32 v8, v8, v10")
            k("v_and_b32 v12, 31, v0")
            k("v_lshlrev_b32 v12, 3, v12")
            k("v_lshrrev_b32 v13, 5, v0")
            k("v_lshl_add_u32 v12, v13, 2, v12")
            k("s_lshl_b32 s40, s25, 1")
            k("s_add_u32 s40, s40, s27")
            k("s_lshl_b32 s40, s40, 14")
            k("s_lshl_b32 s41, s38, 8")
            k("s_add_u32 s40, s40, s41")
            k(f"s_add_u32 s40, s40, {ST}")
            k("buffer_store_dword v8, v12, s[48:51], s40 offen")
        k("s_waitcnt vmcnt(0)")
        k.stamp(4); k.stamp_flush(6, kidx, 5, 26)
        k("s_endpgm")
    k("s_cmp_eq_u32 s27, 1")
    k(f"s_cbranch_scc1 {k.ref('p2')}")
    path(3)
    k.lab("p2")
    path(2)
    return k


ATT_PACK = "cvt"
def gen_attn(name, kidx=0, pack=None, force_slow=False):
    pack = pack or ATT_PACK
    NWG = 256
    LDS = 163840
    k = Kern(name, NWG, 512, LDS, vgpr=128)
    KA, KB, VA = 1, 2, 3
    Q16, Q4 = 8, 12
    K16 = [16, 20]; K4 = [24, 26]
    V = [32, 40]
    S = [48, 64]
    P = 80
    O = 96
    k(f"s_cmp_ge_u32 s2, {NWG}")
    k(f"s_cbranch_scc1 {k.ref('end')}")
    k.stamp(0)
    k.karg(6, 80)
    wave_id(k, 26)
    k("s_and_b32 s20, s2, 7")
    k("s_lshr_b32 s21, s2, 3")
    k("s_lshr_b32 s22, s21, 3")
    k("s_lshl_b32 s23, s20, 2")
    k("s_add_u32 s24, s23, s22")
    k("s_and_b32 s25, s21, 7")
    k("s_lshl_b32 s25, s25, 3")
    k("s_add_u32 s25, s25, s26")
    k("v_lshlrev_b32 v4, 4, v0")
    k("s_lshl_b32 s27, s24, 6")
    k("s_add_u32 s27, s27, s25")
    k("s_mul_i32 s27, s27, 1280")
    k(f"s_add_u32 s27, s27, {WS_Q}")
    k("s_mul_i32 s28, s24, 163840")
    k(f"s_add_u32 s28, s28, {WS_KV}")
    k("s_mul_i32 s29, s26, 3072")
    k("s_mul_i32 s30, s26, 17408")
    k("s_add_u32 s30, s30, 24576")
    k("v_and_b32 v5, 31, v0")
    k("v_lshlrev_b32 v6, 3, v5")
    k(f"v_mov_b32 v{Q4}, 0")
    k(f"v_mov_b32 v{Q4+1}, 0")
    k("s_waitcnt lgkmcnt(0)")
    k.srd(12, 6, 0, WS_SIZE)
    k(f"buffer_load_dwordx4 v[{Q16}:{Q16+3}], v4, s[12:15], s27 offen")
    k("s_mov_b64 exec, 0xffffffff")
    k(f"buffer_load_dwordx2 v[{Q4}:{Q4+1}], v6, s[12:15], s27 offen offset:1024")
    k("s_mov_b64 exec, -1")
    k("s_mov_b32 m0, s29")
    k("s_add_u32 s31, s28, s29")
    for i in range(3):
        k(f"buffer_load_dwordx4 v4, s[12:15], s31 offen offset:{i*1024} lds")
    for g in range(5):
        k(f"s_add_u32 m0, s30, {g*4096}")
        k(f"s_add_u32 s31, s28, s30")
        if g: k(f"s_add_u32 s31, s31, {g*4096}")
        for i in range(4 if g < 4 else 1):
            k(f"buffer_load_dwordx4 v4, s[12:15], s31 offen offset:{i*1024} lds")
    k.stamp(1)
    def lane_addrs():
        k("v_and_b32 v5, 31, v0")
        k("v_and_b32 v6, 0x13, v5")
        k("v_and_b32 v7, 4, v5")
        k("v_lshl_or_b32 v6, v7, 1, v6")
        k("v_and_b32 v7, 8, v5")
        k("v_lshrrev_b32 v7, 1, v7")
        k("v_or_b32 v6, v6, v7")
        k("v_lshrrev_b32 v7, 5, v0")
        k(f"v_lshlrev_b32 v{KA}, 9, v7")
        k(f"v_lshl_add_u32 v{KA}, v6, 4, v{KA}")
        k(f"v_lshlrev_b32 v{KB}, 3, v6")
        k(f"v_add_u32 v{KB}, 1024, v{KB}")
        k(f"v_mul_u32_u24 v{VA}, 320, v7")
        k(f"v_lshl_add_u32 v{VA}, v5, 4, v{VA}")
        k(f"v_add_u32 v{VA}, 1280, v{VA}")
    lane_addrs()
    k("v_cmp_eq_u32 vcc, 20, v5")
    k("v_mov_b32 v7, 0x3f803f80")
    k("s_mov_b32 s34, 0x000fffff")
    k("s_mov_b32 s35, 0x000fffff")
    k(f"v_cndmask_b32 v{V[0]}, 0, v7, vcc")
    for r in range(1, 16):
        k(f"v_mov_b32 v{V[0]+r}, v{V[0]}")
    for r in range(16):
        k(f"v_mov_b32 v{O+r}, 0")
    for r in range(4, 8):
        k(f"v_mov_b32 v{P+r}, 0")
    k("s_waitcnt vmcnt(17)")
    k("s_barrier")
    k.stamp(2)
    def rdK(buf, off):
        k(f"ds_read_b128 v[{K16[buf]}:{K16[buf]+3}], v{KA} offset:{off}")
        k(f"ds_read_b64 v[{K4[buf]}:{K4[buf]+1}], v{KB} offset:{off}")
    def rdV(buf, off):
        k("s_mov_b64 exec, s[34:35]")
        k(f"ds_read_b128 v[{V[buf]}:{V[buf]+3}], v{VA} offset:{off}")
        k(f"ds_read_b128 v[{V[buf]+4}:{V[buf]+7}], v{VA} offset:{off+640}")
        k("s_mov_b64 exec, -1")
    def M1(n): k(f"v_mfma_f32_32x32x16_bf16 v[{S[n]}:{S[n]+15}], v[{K16[n]}:{K16[n]+3}], v[{Q16}:{Q16+3}], 0")
    def M2(n): k(f"v_mfma_f32_32x32x8bf16_1k v[{S[n]}:{S[n]+15}], v[{K4[n]}:{K4[n]+1}], v[{Q4}:{Q4+1}], v[{S[n]}:{S[n]+15}]")
    def MPV(vb, f): k(f"v_mfma_f32_32x32x16_bf16 v[{O}:{O+15}], v[{V[vb]+4*f}:{V[vb]+4*f+3}], v[{P+4*f}:{P+4*f+3}], v[{O}:{O+15}]")
    def G(c, g):
        s = S[c] + 4 * g
        p = P + 2 * g
        if pack == "cvt":
            for i in range(4):
                k(f"v_exp_f32 v{s+i}, v{s+i}")
            k(f"v_cvt_pk_bf16_f32 v{p}, v{s}, v{s+1}")
            k(f"v_cvt_pk_bf16_f32 v{p+1}, v{s+2}, v{s+3}")
        else:
            k(f"v_exp_f32 v{p}, v{s+1}")
            k(f"v_exp_f32 v{s}, v{s}")
            k(f"v_exp_f32 v{p+1}, v{s+3}")
            k(f"v_exp_f32 v{s+2}, v{s+2}")
            k(f"v_mov_b32_sdwa v{p}, v{s} dst_sel:WORD_0 dst_unused:UNUSED_PRESERVE src0_sel:WORD_1")
            k(f"v_mov_b32_sdwa v{p+1}, v{s+2} dst_sel:WORD_0 dst_unused:UNUSED_PRESERVE src0_sel:WORD_1")
    rdK(0, 0)
    rdK(1, 2560)
    rdV(0, 0)
    k("s_waitcnt lgkmcnt(4)")
    M1(0)
    k("s_mov_b32 s36, 0")
    k("s_nop 7")
    k("s_nop 1")
    M2(0)
    k("s_nop 7")
    k("s_nop 3")
    k.lab("loop")
    k("s_cmp_eq_u32 s36, 1")
    k(f"s_cbranch_scc0 {k.ref('nosync')}")
    k("s_waitcnt vmcnt(0)")
    k("s_barrier")
    k.lab("nosync")
    k("s_cmp_eq_u32 s36, 7")
    k(f"s_mov_b32 s37, {(-7*20480) & 0xffffffff:#x}")
    k("s_cselect_b32 s37, s37, 20480")
    for t in range(8):
        c, n = t & 1, (t + 1) & 1
        k("s_waitcnt lgkmcnt(0)")
        M1(n)
        G(c, 0)
        MPV(n, 1)
        if t == 6:
            k(f"v_add_u32 v{KA}, s37, v{KA}")
            k(f"v_add_u32 v{KB}, s37, v{KB}")
        if t == 7:
            k(f"v_add_u32 v{VA}, s37, v{VA}")
        rdK(c, ((t + 2) % 8) * 2560)
        rdV(n, ((t + 1) % 8) * 2560)
        G(c, 1)
        M2(n)
        G(c, 2)
        MPV(c, 0)
        G(c, 3)
    k("s_add_u32 s36, s36, 1")
    k("s_cmp_lt_u32 s36, 8")
    k(f"s_cbranch_scc1 {k.ref('loop')}")
    k("s_nop 0")
    MPV(1, 1)
    k.stamp(3)
    k("s_waitcnt lgkmcnt(0)")
    k("s_nop 7")
    k("s_nop 3")
    k(f"v_mov_b32 v4, v{O+8}")
    k(f"v_mov_b32 v5, v{O+8}")
    k("v_mov_b32 v6, 0")
    k("s_nop 0")
    k("v_permlane32_swap_b32 v4, v5")
    for r in range(12):
        k(f"v_fma_f32 v6, v{O+r}, 0, v6")
    k(f"v_cmp_lt_f32 vcc, {f2u(2.0**-40):#x}, v5")
    k(f"v_cmp_gt_f32 s[38:39], {f2u(2.0**40):#x}, v5" if False else f"s_mov_b32 s40, {f2u(2.0**40):#x}")
    k("v_cmp_gt_f32 s[38:39], s40, v5")
    k("v_cmp_eq_f32 s[42:43], 0, v6")
    k("s_nop 3")
    k("s_and_b64 vcc, vcc, s[38:39]")
    k("s_and_b64 vcc, vcc, s[42:43]")
    if force_slow:
        k("s_mov_b64 vcc, 0")
    k("s_cmp_eq_u64 vcc, -1")
    k(f"s_cbranch_scc0 {k.ref('slow')}")
    k.lab("fin")
    k("v_rcp_f32 v5, v5")
    k("s_mul_i32 s40, s24, 5")
    k("v_lshrrev_b32 v7, 5, v0")
    k("v_add_u32 v7, s40, v7")
    k("v_lshrrev_b32 v6, 1, v7")
    k("v_lshlrev_b32 v6, 9, v6")
    k("v_and_b32 v7, 1, v7")
    k("v_lshl_add_u32 v6, v7, 3, v6")
    k("v_and_b32 v7, 31, v0")
    k("v_lshl_add_u32 v6, v7, 4, v6")
    k("s_mul_i32 s41, s25, 40960")
    k(f"s_add_u32 s41, s41, {WS_O}")
    for r in range(0, 12, 2):
        k(f"v_pk_mul_f32 v[{O+r}:{O+r+1}], v[{O+r}:{O+r+1}], v[4:5] op_sel:[0,1] op_sel_hi:[1,1]")
    k("s_nop 0")
    for j in range(6):
        k(f"v_cvt_pk_bf16_f32 v{16+j}, v{O+2*j}, v{O+2*j+1}")
    k("buffer_store_dwordx2 v[16:17], v6, s[12:15], s41 offen")
    k("buffer_store_dwordx2 v[18:19], v6, s[12:15], s41 offen offset:512")
    k("s_mov_b64 exec, 0xffffffff")
    k("buffer_store_dwordx2 v[20:21], v6, s[12:15], s41 offen offset:1024")
    k("s_waitcnt vmcnt(0)")
    k.stamp(4); k.stamp_flush(6, kidx, 5, 26)
    k.lab("end")
    k("s_endpgm")
    k.lab("slow")
    lane_addrs()
    MX = 88
    k(f"v_mov_b32 v{MX}, {f2u(-3.0e38):#x}")
    for r in range(16):
        k(f"v_mov_b32 v{O+r}, 0")
    k("s_mov_b32 s36, 0")
    k.lab("sl")
    rdK(0, 0)
    rdV(0, 0)
    k("s_waitcnt lgkmcnt(0)")
    M1(0)
    k("s_nop 7"); k("s_nop 1")
    M2(0)
    k("s_nop 7"); k("s_nop 3")
    s = S[0]
    k(f"v_max3_f32 v4, v{s}, v{s+1}, v{s+2}")
    for i in range(3, 15, 2):
        k(f"v_max3_f32 v4, v4, v{s+i}, v{s+i+1}")
    k(f"v_max_f32 v4, v4, v{s+15}")
    k("v_mov_b32 v5, v4")
    k("s_nop 1")
    k("v_permlane32_swap_b32 v4, v5")
    k("s_nop 1")
    k(f"v_max3_f32 v4, v4, v5, v{MX}")
    k(f"v_sub_f32 v5, v{MX}, v4")
    k("v_exp_f32 v5, v5")
    k(f"v_mov_b32 v{MX}, v4")
    for i in range(16):
        k(f"v_sub_f32 v{s+i}, v{s+i}, v4")
    for i in range(16):
        k(f"v_exp_f32 v{s+i}, v{s+i}")
    for r in range(12):
        k(f"v_mul_f32 v{O+r}, v{O+r}, v5")
    for j in range(8):
        k(f"v_cvt_pk_bf16_f32 v{P+j}, v{s+2*j}, v{s+2*j+1}")
    k(f"v_add_u32 v{KA}, 2560, v{KA}")
    k(f"v_add_u32 v{KB}, 2560, v{KB}")
    k(f"v_add_u32 v{VA}, 2560, v{VA}")
    k("s_nop 4")
    MPV(0, 0)
    MPV(0, 1)
    k("s_nop 7"); k("s_nop 3")
    k("s_add_u32 s36, s36, 1")
    k("s_cmp_lt_u32 s36, 64")
    k(f"s_cbranch_scc1 {k.ref('sl')}")
    k(f"v_mov_b32 v4, v{O+8}")
    k(f"v_mov_b32 v5, v{O+8}")
    k("s_nop 1")
    k("v_permlane32_swap_b32 v4, v5")
    k("s_nop 1")
    k(f"s_branch {k.ref('fin')}")
    return k


def l2_prefetch(k, items, half, idx, lw, tmp, vaddr, vdst, srd=12):
    k(f"v_lshlrev_b32 v{vaddr}, 7, v0")
    for n, (base, hb) in enumerate(items):
        per_wg = hb // 32
        per_w = per_wg // 4
        lines = (per_w + 127) // 128
        k(f"s_mul_i32 s{tmp}, s{half}, {hb}")
        k(f"s_mul_i32 s{tmp+1}, s{idx}, {per_wg}")
        k(f"s_add_u32 s{tmp}, s{tmp}, s{tmp+1}")
        k(f"s_mul_i32 s{tmp+1}, s{lw}, {per_w}")
        k(f"s_add_u32 s{tmp}, s{tmp}, s{tmp+1}")
        k(f"s_add_u32 s{tmp}, s{tmp}, {base}")
        done = 0
        while done < lines:
            n_ = min(64, lines - done)
            if n_ < 64:
                m = (1 << n_) - 1
                k(f"s_mov_b32 exec_lo, {m & 0xffffffff:#x}")
                k(f"s_mov_b32 exec_hi, {m >> 32:#x}")
            k(f"buffer_load_dword v{vdst}, v{vaddr}, s[{srd}:{srd+3}], s{tmp} offen")
            if n_ < 64:
                k("s_mov_b64 exec, -1")
            done += n_
            if done < lines:
                k(f"s_add_u32 s{tmp}, s{tmp}, {64*128}")
            vdst += 1

PF_ATT = [(WS_WO, 409600), (WS_W1, 983040), (WS_W2, 983040)]

def gen_attn2(name, kidx=0, pack="cvt", force_slow=False, sched=0, dbg=(), pf=0):
    NWG = 256
    LDS = 163840
    k = Kern(name, NWG, 512, LDS, vgpr=160)
    KA, KB, VA = 1, 2, 3
    Q16 = [8, 28]; Q4 = [12, 14]
    K16 = [16, 20]; K4 = [24, 26]
    V = [32, 40]
    S = [48, 64]
    P = 80
    O = [96, 112]
    k(f"s_cmp_ge_u32 s2, {NWG}")
    k(f"s_cbranch_scc1 {k.ref('end')}")
    k.stamp(0)
    k.karg(6, 80)
    wave_id(k, 26)
    k("s_and_b32 s20, s2, 7")
    k("s_lshr_b32 s21, s2, 3")
    k("s_lshr_b32 s22, s21, 3")
    k("s_lshl_b32 s23, s20, 2")
    k("s_add_u32 s24, s23, s22")
    k("v_lshlrev_b32 v4, 4, v0")
    k("s_cmp_lt_u32 s26, 4")
    k(f"s_cbranch_scc1 {k.ref('compute')}")
    k("s_sub_u32 s26, s26, 4")
    k("s_mul_i32 s28, s24, 163840")
    k(f"s_add_u32 s28, s28, {WS_KV}")
    k("s_mul_i32 s29, s26, 6144")
    k("s_mul_i32 s30, s26, 34816")
    k("s_add_u32 s30, s30, 24576")
    k("s_waitcnt lgkmcnt(0)")
    k.srd(12, 6, 0, WS_SIZE)
    k("s_mov_b32 m0, s29")
    k("s_add_u32 s31, s28, s29")
    for i in range(4):
        k(f"buffer_load_dwordx4 v4, s[12:15], s31 offen offset:{i*1024} lds")
    k("s_add_u32 m0, s29, 4096")
    k("s_add_u32 s31, s31, 4096")
    for i in range(2):
        k(f"buffer_load_dwordx4 v4, s[12:15], s31 offen offset:{i*1024} lds")
    k("s_add_u32 s28, s28, s30")
    def stB(g):
        k(f"s_add_u32 m0, s30, {g*4096}")
        k(f"s_add_u32 s31, s28, {g*4096}")
        for i in range(4 if g < 8 else 2):
            k(f"buffer_load_dwordx4 v4, s[12:15], s31 offen offset:{i*1024} lds")
    stB(0); stB(1)
    k.stamp(1)
    k("s_waitcnt vmcnt(8)")
    k.stamp(2)
    k("s_barrier")
    for g in range(2, 9):
        stB(g)
    k.stamp(3)
    k("s_waitcnt vmcnt(0)")
    k.stamp(4)
    k("s_barrier")
    if pf:
        k("s_and_b32 s40, s20, 1")
        l2_prefetch(k, PF_ATT[:pf], 40, 21, 26, 42, 5, 8)
        k("s_waitcnt vmcnt(0)")
    k("s_add_u32 s26, s26, 4")
    k.stamp_flush(6, kidx, 5, 26)
    k.lab("end")
    k("s_endpgm")
    k.lab("compute")
    k("s_and_b32 s25, s21, 7")
    k("s_lshl_b32 s25, s25, 3")
    k("s_lshl_b32 s23, s26, 1")
    k("s_add_u32 s25, s25, s23")
    k("s_lshl_b32 s27, s24, 6")
    k("s_add_u32 s27, s27, s25")
    k("s_mul_i32 s27, s27, 1280")
    k(f"s_add_u32 s27, s27, {WS_Q}")
    k("s_add_u32 s28, s27, 1280")
    k("v_and_b32 v5, 31, v0")
    k("v_lshlrev_b32 v6, 3, v5")
    for x in range(2):
        k(f"v_mov_b32 v{Q4[x]}, 0")
        k(f"v_mov_b32 v{Q4[x]+1}, 0")
    k("s_waitcnt lgkmcnt(0)")
    k.srd(12, 6, 0, WS_SIZE)
    k(f"buffer_load_dwordx4 v[{Q16[0]}:{Q16[0]+3}], v4, s[12:15], s27 offen")
    k(f"buffer_load_dwordx4 v[{Q16[1]}:{Q16[1]+3}], v4, s[12:15], s28 offen")
    k("s_mov_b64 exec, 0xffffffff")
    k(f"buffer_load_dwordx2 v[{Q4[0]}:{Q4[0]+1}], v6, s[12:15], s27 offen offset:1024")
    k(f"buffer_load_dwordx2 v[{Q4[1]}:{Q4[1]+1}], v6, s[12:15], s28 offen offset:1024")
    k("s_mov_b64 exec, -1")
    def lane_addrs():
        k("v_and_b32 v5, 31, v0")
        k("v_and_b32 v6, 0x13, v5")
        k("v_and_b32 v7, 4, v5")
        k("v_lshl_or_b32 v6, v7, 1, v6")
        k("v_and_b32 v7, 8, v5")
        k("v_lshrrev_b32 v7, 1, v7")
        k("v_or_b32 v6, v6, v7")
        k("v_lshrrev_b32 v7, 5, v0")
        k(f"v_lshlrev_b32 v{KA}, 9, v7")
        k(f"v_lshl_add_u32 v{KA}, v6, 4, v{KA}")
        k(f"v_lshlrev_b32 v{KB}, 3, v6")
        k(f"v_add_u32 v{KB}, 1024, v{KB}")
        k(f"v_mul_u32_u24 v{VA}, 320, v7")
        k(f"v_lshl_add_u32 v{VA}, v5, 4, v{VA}")
        k(f"v_add_u32 v{VA}, 1280, v{VA}")
    lane_addrs()
    k("v_cmp_eq_u32 vcc, 20, v5")
    k("v_mov_b32 v7, 0x3f803f80")
    k("s_mov_b32 s34, 0x000fffff")
    k("s_mov_b32 s35, 0x000fffff")
    k(f"v_cndmask_b32 v{V[0]}, 0, v7, vcc")
    for r in range(1, 16):
        k(f"v_mov_b32 v{V[0]+r}, v{V[0]}")
    for r in range(32):
        k(f"v_mov_b32 v{O[0]+r}, 0")
    for r in range(4, 8):
        k(f"v_mov_b32 v{P+r}, 0")
    k.stamp(1)
    k("s_waitcnt vmcnt(0)")
    k("s_barrier")
    k.stamp(2)
    def rdK(buf, off):
        return [f"ds_read_b128 v[{K16[buf]}:{K16[buf]+3}], v{KA} offset:{off}",
                f"ds_read_b64 v[{K4[buf]}:{K4[buf]+1}], v{KB} offset:{off}"]
    def rdV(buf, off):
        return ["s_mov_b64 exec, s[34:35]",
                f"ds_read_b128 v[{V[buf]}:{V[buf]+3}], v{VA} offset:{off}",
                f"ds_read_b128 v[{V[buf]+4}:{V[buf]+7}], v{VA} offset:{off+640}",
                "s_mov_b64 exec, -1"]
    def M1(x, kb): return f"v_mfma_f32_32x32x16_bf16 v[{S[x]}:{S[x]+15}], v[{K16[kb]}:{K16[kb]+3}], v[{Q16[x]}:{Q16[x]+3}], 0"
    def M2(x, kb): return f"v_mfma_f32_32x32x8bf16_1k v[{S[x]}:{S[x]+15}], v[{K4[kb]}:{K4[kb]+1}], v[{Q4[x]}:{Q4[x]+1}], v[{S[x]}:{S[x]+15}]"
    def MPV(x, vb, f): return f"v_mfma_f32_32x32x16_bf16 v[{O[x]}:{O[x]+15}], v[{V[vb]+4*f}:{V[vb]+4*f+3}], v[{P+4*f}:{P+4*f+3}], v[{O[x]}:{O[x]+15}]"
    def G(x, g, fill=()):
        s = S[x] + 4 * g
        p = P + 2 * g
        fill = list(fill)
        if pack == "cvt":
            ex = [f"v_exp_f32 v{s+i}, v{s+i}" for i in range(4)]
            pk = [f"v_cvt_pk_bf16_f32 v{p}, v{s}, v{s+1}", f"v_cvt_pk_bf16_f32 v{p+1}, v{s+2}, v{s+3}"]
        else:
            ex = [f"v_exp_f32 v{p}, v{s+1}", f"v_exp_f32 v{s}, v{s}", f"v_exp_f32 v{p+1}, v{s+3}", f"v_exp_f32 v{s+2}, v{s+2}"]
            pk = [f"v_mov_b32_sdwa v{p}, v{s} dst_sel:WORD_0 dst_unused:UNUSED_PRESERVE src0_sel:WORD_1",
                  f"v_mov_b32_sdwa v{p+1}, v{s+2} dst_sel:WORD_0 dst_unused:UNUSED_PRESERVE src0_sel:WORD_1"]
        for i in range(4):
            k(ex[i])
            if i < len(fill) and fill[i]:
                for f in (fill[i] if isinstance(fill[i], list) else [fill[i]]):
                    k(f)
        for x_ in pk: k(x_)
    for r in rdK(0, 0) + rdK(1, 2560) + rdV(0, 0): k(r)
    k("s_waitcnt lgkmcnt(4)")
    k(M1(0, 0))
    k("s_mov_b32 s36, 0")
    k("s_nop 7")
    k("s_nop 1")
    k(M2(0, 0))
    k("s_nop 7")
    k("s_nop 3")
    k.lab("loop")
    k("s_cmp_eq_u32 s36, 1")
    k(f"s_cbranch_scc0 {k.ref('nosync')}")
    k("s_barrier")
    k.lab("nosync")
    k("s_cmp_eq_u32 s36, 7")
    k(f"s_mov_b32 s37, {(-7*20480) & 0xffffffff:#x}")
    k("s_cselect_b32 s37, s37, 20480")
    L0 = len(k.L)
    for t in range(8):
        c, n = t & 1, (t + 1) & 1
        k("s_waitcnt lgkmcnt(0)")
        k(M1(1, c))
        G(0, 0)
        k(MPV(1, n, 1))
        if t == 7:
            k(f"v_add_u32 v{VA}, s37, v{VA}")
        rv = rdV(n, ((t + 1) % 8) * 2560)
        G(0, 1, fill=[rv])
        k(M2(1, c))
        if t == 6:
            k(f"v_add_u32 v{KA}, s37, v{KA}")
            k(f"v_add_u32 v{KB}, s37, v{KB}")
        rk = rdK(c, ((t + 2) % 8) * 2560)
        G(0, 2, fill=[rk[0], rk[1]])
        k(MPV(0, c, 0))
        G(0, 3)
        k(M1(0, n))
        G(1, 0)
        k(MPV(0, c, 1))
        G(1, 1)
        k(M2(0, n))
        G(1, 2)
        k(MPV(1, c, 0))
        G(1, 3)
    if dbg:
        body = k.L[L0:]
        def drop(l):
            l = l.strip()
            if "nods" in dbg and (l.startswith("ds_") or "exec" in l or l.startswith("s_waitcnt")): return True
            if "nomfma" in dbg and l.startswith("v_mfma"): return True
            if "nocvt" in dbg and (l.startswith("v_cvt") or l.startswith("v_mov_b32_sdwa")): return True
            if "noexp" in dbg and l.startswith("v_exp"): return True
            if "nom2" in dbg and "32x32x8" in l: return True
            if "nopv" in dbg and l.startswith(f"v_mfma_f32_32x32x16_bf16 v[{O[0]}") : return True
            if "nopv" in dbg and l.startswith(f"v_mfma_f32_32x32x16_bf16 v[{O[1]}") : return True
            return False
        k.L = k.L[:L0] + [l for l in body if not drop(l)]
    k("s_add_u32 s36, s36, 1")
    k("s_cmp_lt_u32 s36, 8")
    k(f"s_cbranch_scc1 {k.ref('loop')}")
    k("s_nop 0")
    k(MPV(1, 1, 1))
    k.stamp(3)
    k("s_waitcnt lgkmcnt(0)")
    k("s_nop 7")
    k("s_nop 3")
    L = [5, 7]
    k("v_mov_b32 v16, 0")
    for x in range(2):
        k(f"v_mov_b32 v{L[x]-1}, v{O[x]+8}")
        k(f"v_mov_b32 v{L[x]}, v{O[x]+8}")
    k("s_nop 1")
    for x in range(2):
        k(f"v_permlane32_swap_b32 v{L[x]-1}, v{L[x]}")
    for x in range(2):
        for r in range(12):
            k(f"v_fma_f32 v16, v{O[x]+r}, 0, v16")
    k(f"s_mov_b32 s40, {f2u(2.0**40):#x}")
    k(f"s_mov_b32 s41, {f2u(2.0**-40):#x}")
    k("v_cmp_eq_f32 vcc, 0, v16")
    k("v_cmp_lt_f32 s[42:43], s41, v5")
    k("v_cmp_gt_f32 s[44:45], s40, v5")
    k("v_cmp_lt_f32 s[46:47], s41, v7")
    k("v_cmp_gt_f32 s[48:49], s40, v7")
    k("s_nop 3")
    k("s_and_b64 vcc, vcc, s[42:43]")
    k("s_and_b64 vcc, vcc, s[44:45]")
    k("s_and_b64 vcc, vcc, s[46:47]")
    k("s_and_b64 vcc, vcc, s[48:49]")
    if force_slow:
        k("s_mov_b64 vcc, 0")
    k("s_cmp_eq_u64 vcc, -1")
    k(f"s_cbranch_scc0 {k.ref('slow')}")
    k.lab("fin")
    k("v_rcp_f32 v5, v5")
    k("v_rcp_f32 v7, v7")
    k("s_mul_i32 s40, s24, 5")
    k("v_lshrrev_b32 v17, 5, v0")
    k("v_add_u32 v17, s40, v17")
    k("v_lshrrev_b32 v16, 1, v17")
    k("v_lshlrev_b32 v16, 9, v16")
    k("v_and_b32 v17, 1, v17")
    k("v_lshl_add_u32 v16, v17, 3, v16")
    k("v_and_b32 v17, 31, v0")
    k("v_lshl_add_u32 v16, v17, 4, v16")
    k("s_mul_i32 s41, s25, 40960")
    k(f"s_add_u32 s41, s41, {WS_O}")
    k("s_add_u32 s42, s41, 40960")
    for x in range(2):
        for r in range(0, 12, 2):
            k(f"v_pk_mul_f32 v[{O[x]+r}:{O[x]+r+1}], v[{O[x]+r}:{O[x]+r+1}], v[{L[x]-1}:{L[x]}] op_sel:[0,1] op_sel_hi:[1,1]")
    for x in range(2):
        for j in range(6):
            k(f"v_cvt_pk_bf16_f32 v{20+6*x+j}, v{O[x]+2*j}, v{O[x]+2*j+1}")
    for x in range(2):
        k(f"buffer_store_dwordx2 v[{20+6*x}:{21+6*x}], v16, s[12:15], s{41+x} offen")
        k(f"buffer_store_dwordx2 v[{22+6*x}:{23+6*x}], v16, s[12:15], s{41+x} offen offset:512")
    k("s_mov_b64 exec, 0xffffffff")
    for x in range(2):
        k(f"buffer_store_dwordx2 v[{24+6*x}:{25+6*x}], v16, s[12:15], s{41+x} offen offset:1024")
    k("s_waitcnt vmcnt(0)")
    k.stamp(4); k.stamp_flush(6, kidx, 5, 26)
    k("s_endpgm")
    k.lab("slow")
    MX = 88
    for x in range(2):
        lane_addrs()
        k(f"v_mov_b32 v{MX}, {f2u(-3.0e38):#x}")
        for r in range(16):
            k(f"v_mov_b32 v{O[x]+r}, 0")
        k("s_mov_b32 s36, 0")
        k.lab(f"sl{x}")
        for r in rdK(0, 0) + rdV(0, 0): k(r)
        k("s_waitcnt lgkmcnt(0)")
        k(M1(x, 0))
        k("s_nop 7"); k("s_nop 1")
        k(M2(x, 0))
        k("s_nop 7"); k("s_nop 3")
        s = S[x]
        k(f"v_max3_f32 v4, v{s}, v{s+1}, v{s+2}")
        for i in range(3, 15, 2):
            k(f"v_max3_f32 v4, v4, v{s+i}, v{s+i+1}")
        k(f"v_max_f32 v4, v4, v{s+15}")
        k("v_mov_b32 v5, v4")
        k("s_nop 1")
        k("v_permlane32_swap_b32 v4, v5")
        k("s_nop 1")
        k(f"v_max3_f32 v4, v4, v5, v{MX}")
        k(f"v_sub_f32 v5, v{MX}, v4")
        k("v_exp_f32 v5, v5")
        k(f"v_mov_b32 v{MX}, v4")
        for i in range(16):
            k(f"v_sub_f32 v{s+i}, v{s+i}, v4")
        for i in range(16):
            k(f"v_exp_f32 v{s+i}, v{s+i}")
        for r in range(12):
            k(f"v_mul_f32 v{O[x]+r}, v{O[x]+r}, v5")
        for j in range(8):
            k(f"v_cvt_pk_bf16_f32 v{P+j}, v{s+2*j}, v{s+2*j+1}")
        k(f"v_add_u32 v{KA}, 2560, v{KA}")
        k(f"v_add_u32 v{KB}, 2560, v{KB}")
        k(f"v_add_u32 v{VA}, 2560, v{VA}")
        k("s_nop 4")
        k(MPV(x, 0, 0))
        k(MPV(x, 0, 1))
        k("s_nop 7"); k("s_nop 3")
        k("s_add_u32 s36, s36, 1")
        k("s_cmp_lt_u32 s36, 64")
        k(f"s_cbranch_scc1 {k.ref(f'sl{x}')}")
    for x in range(2):
        k(f"v_mov_b32 v{L[x]-1}, v{O[x]+8}")
        k(f"v_mov_b32 v{L[x]}, v{O[x]+8}")
    k("s_nop 1")
    for x in range(2):
        k(f"v_permlane32_swap_b32 v{L[x]-1}, v{L[x]}")
    k("s_nop 1")
    k(f"s_branch {k.ref('fin')}")
    return k
```

```python
import sys
from dsl import *
import ph, hazard
from addsc import addsc
def build(which, opt):
    first = int(opt.get("first", 2))
    dbg = tuple(opt.get("dbg", "").split(",")) if opt.get("dbg") else ()
    dk = opt.get("dk", "")
    def D(name):
        if not dk: return dbg
        return dbg if any(name.startswith(p) for p in dk.split(",")) else ()
    A = lambda n, kind, l, ki: ph.gen_gemmA(n, kind, l, ki, dbg=D(n), first=first)
    B = lambda n, kind, l, ki: ph.gen_gemmB(n, kind, l, ki, dbg=D(n), first=first)
    if which == "a":
        return assemble([ph.gen_prep(), A("qkv0_kernel", "qkv", 0, 1)])
    if which == "w1":
        return assemble([A("w10_kernel", "w1", 0, 4)])
    if which == "pw1":
        return assemble([ph.gen_prep(), A("w10_kernel", "w1", 0, 4)])
    if which == "attn":
        return assemble([ph.gen_attn("attn0_kernel", 2)])
    if which == "attns":
        return assemble([ph.gen_attn("attn0_kernel", 2, pack="sdwa")])
    if which == "attnf":
        return assemble([ph.gen_attn("attn0_kernel", 2, force_slow=True)])
    if which == "attn2":
        return assemble([ph.gen_attn2("attn0_kernel", 2)])
    if which == "attn2s":
        return assemble([ph.gen_attn2("attn0_kernel", 2, pack="sdwa")])
    if which == "attn2f":
        return assemble([ph.gen_attn2("attn0_kernel", 2, force_slow=True)])
    if which in ("attn3", "attn3f"):
        return assemble([ph.gen_attn3("attn0_kernel", 2, force_slow=(which == "attn3f"), **attn_opts(opt))])
    if which == "wo":
        return assemble([B("wo0_kernel", "wo", 0, 3)])
    if which == "w2":
        return assemble([B("w20_kernel", "w2", 0, 5)])
    if which == "w21":
        return assemble([B("w21_kernel", "w2", 1, 10)])
    if which == "full":
        ks = [ph.gen_prep()]
        at = opt.get("attn", "2")
        for l in range(2):
            if at == "2": a = ph.gen_attn2(f"attn{l}_kernel", 2 + 5*l, pf=int(opt.get("pf", 0)))
            else: a = ph.gen_attn3(f"attn{l}_kernel", 2 + 5*l, pf=int(opt.get("pf", 0)), **attn_opts(opt))
            ks += [A(f"qkv{l}_kernel", "qkv", l, 1 + 5*l), a,
                   B(f"wo{l}_kernel", "wo", l, 3 + 5*l), A(f"w1{l}_kernel", "w1", l, 4 + 5*l),
                   B(f"w2{l}_kernel", "w2", l, 5 + 5*l)]
        return assemble(ks)
def attn_opts(opt):
    o = {}
    for key in ("h", "um", "uh", "pm", "phl", "b2"):
        if key in opt: o[key] = int(opt[key])
    return o
if __name__ == "__main__":
    which = sys.argv[1]; out = sys.argv[2]
    opt = {}
    for a in sys.argv[3:]:
        if "=" in a:
            x, y = a.split("=", 1); opt[x] = y
        else: opt[a] = "1"
    Kern.PROF = "prof" in opt
    t = build(which, opt)
    if "sc1" in opt: t = addsc(t)
    open(out, "w").write(t)
    bad = hazard.check(t)
    print(out, "hazards:", len(bad), "bytes:", len(t))
    for b in bad[:10]: print(b)
```

```python
from dsl import *
import struct
def f2u(x):
    return struct.unpack("<I", struct.pack("<f", x))[0]

KB = 1024
WS_WQ = 0
WS_W1 = 3 * MB
WS_WO = 5 * MB
WS_W2 = 6 * MB
WS_CSQ = 8 * MB
WS_CS1 = 8 * MB + 128 * KB
WS_ST0 = 8 * MB + 256 * KB
WS_ST1 = 8 * MB + 512 * KB
WS_X0 = 9 * MB
WS_X1 = 12 * MB
WS_X2 = 15 * MB
WS_O = 18 * MB
WS_Q = 21 * MB
WS_KV = 24 * MB
WS_H = 30 * MB
X_BYTES = 2048 * 640 * 2
H_BYTES = 2048 * 1536 * 2
ST_BYTES = 16 * 2048 * 8
Q_BYTES = 32 * 64 * 1280
KV_BYTES = 32 * 64 * 2560
WS_SIZE = 40 * MB
QSCALE = (20 ** -0.5) * 1.4426950408889634
NCSP = 10

def wave_id(k, sreg, vtmp=1):
    k(f"v_lshrrev_b32 v{vtmp}, 6, v0")
    k("s_nop 0")
    k(f"v_readfirstlane_b32 s{sreg}, v{vtmp}")
    k("v_and_b32 v0, 63, v0")

def gen_prep():
    NWG = 220
    k = Kern("prep_kernel", NWG, 512, 4 * 8192, vgpr=64)
    k(f"s_cmp_ge_u32 s2, {NWG}")
    k(f"s_cbranch_scc1 {k.ref('end')}")
    k.karg(4, 0)
    k.karg(6, 8)
    k.karg(8, 16)
    k.karg(10, 32)
    k.karg(12, 48)
    k.karg(14, 80)
    wave_id(k, 26)
    k("s_waitcnt lgkmcnt(0)")
    k.srd(16, 14, 0, WS_SIZE)
    k("s_cmp_ge_u32 s26, 4")
    k(f"s_cbranch_scc1 {k.ref('stats')}")
    k("s_lshl_b32 s3, s2, 2")
    k("s_add_u32 s3, s3, s26")
    def setup(lbl, lo, ncg, ptr, size, pitch, TN, K, dst, cs, csp):
        k.lab(lbl)
        k(f"s_sub_u32 s3, s3, {lo}")
        k.srd(20, ptr, 0, size)
        k(f"s_mov_b32 s27, {pitch}")
        k(f"s_mov_b32 s28, {(65536 + TN - 1)//TN}")
        k(f"s_mov_b32 s29, {TN}")
        k(f"s_mov_b32 s30, {K//8*TN*16}")
        k(f"s_mov_b32 s31, {dst}")
        k(f"s_mul_i32 s32, s3, {(65536 + ncg - 1)//ncg}")
        k("s_lshr_b32 s32, s32, 16")
        k(f"s_mul_i32 s33, s32, {ncg}")
        k("s_sub_u32 s33, s3, s33")
        k(f"s_mov_b32 s34, {cs if cs is not None else 0xffffffff:#x}")
        k(f"s_mov_b32 s35, {csp}")
        k(f"s_branch {k.ref('go')}")
    k("s_cmp_ge_u32 s3, 640"); k(f"s_cbranch_scc1 {k.ref('m_w2')}")
    k("s_cmp_ge_u32 s3, 540"); k(f"s_cbranch_scc1 {k.ref('m_wo')}")
    k("s_cmp_ge_u32 s3, 300"); k(f"s_cbranch_scc1 {k.ref('m_w1')}")
    setup("m_wq", 0, 30, 6, 640 * 3840, 3840, 128, 640, WS_WQ, WS_CSQ, 1920 * 4)
    setup("m_w1", 300, 24, 10, 640 * 3072, 3072, 96, 640, WS_W1, WS_CS1, 1536 * 4)
    setup("m_wo", 540, 10, 8, 640 * 1280, 1280, 80, 640, WS_WO, None, 0)
    setup("m_w2", 640, 10, 12, 1536 * 1280, 1280, 80, 1536, WS_W2, None, 0)
    k.lab("go")
    k("v_lshrrev_b32 v2, 3, v0")
    k("v_mul_lo_u32 v2, v2, s27")
    k("v_and_b32 v3, 7, v0")
    k("v_lshl_add_u32 v2, v3, 4, v2")
    k("s_lshl_b32 s36, s32, 6")
    k("s_mul_i32 s36, s36, s27")
    k("s_lshl_b32 s37, s33, 7")
    k("s_add_u32 s36, s36, s37")
    k("s_lshl_b32 s38, s27, 3")
    k("s_lshl_b32 s39, s26, 13")
    for j in range(8):
        k(f"s_add_u32 m0, s39, {j*1024}")
        k("s_nop 0")
        k("buffer_load_dwordx4 v2, s[20:23], s36 offen lds")
        if j < 7:
            k("s_add_u32 s36, s36, s38")
    k("s_lshl_b32 s40, s33, 6")
    k("v_add_u32 v4, s40, v0")
    k("v_mul_lo_u32 v5, v4, s28")
    k("v_lshrrev_b32 v5, 16, v5")
    k("v_mul_lo_u32 v6, v5, s29")
    k("v_sub_u32 v6, v4, v6")
    k("v_mul_lo_u32 v5, v5, s30")
    k("v_lshl_add_u32 v5, v6, 4, v5")
    k("s_lshl_b32 s41, s29, 4")
    k("s_lshl_b32 s42, s32, 3")
    k("s_mul_i32 s42, s42, s41")
    k("s_add_u32 s42, s42, s31")
    k("v_bfe_u32 v7, v0, 2, 2")
    k("v_lshlrev_b32 v7, 7, v7")
    k("v_lshrrev_b32 v8, 4, v0")
    k("v_lshl_add_u32 v7, v8, 5, v7")
    k("v_and_b32 v8, 3, v0")
    k("v_lshl_add_u32 v7, v8, 3, v7")
    k("v_add_u32 v7, s39, v7")
    k("v_mov_b32 v10, 0")
    for ku in range(8):
        k(f"s_waitcnt vmcnt({7-ku if ku == 0 else 7})") if False else None
    for ku in range(8):
        k("s_waitcnt vmcnt(7)")
        r = 16 + 4 * ku
        k(f"ds_read_b64_tr_b16 v[{r}:{r+1}], v7 offset:{ku*1024}")
        k(f"ds_read_b64_tr_b16 v[{r+2}:{r+3}], v7 offset:{ku*1024+512}")
        k("s_waitcnt lgkmcnt(0)")
        k(f"buffer_store_dwordx4 v[{r}:{r+3}], v5, s[16:19], s42 offen")
        if ku < 7:
            k("s_add_u32 s42, s42, s41")
    k("s_cmp_eq_u32 s34, 0xffffffff")
    k(f"s_cbranch_scc1 {k.ref('fin')}")
    for i in range(32):
        r = 16 + i
        k(f"v_lshlrev_b32 v8, 16, v{r}")
        k(f"v_and_b32 v9, 0xffff0000, v{r}")
        k("v_add_f32 v10, v10, v8")
        k("v_add_f32 v10, v10, v9")
    k("s_mul_i32 s43, s32, s35")
    k("s_add_u32 s43, s43, s34")
    k("v_lshlrev_b32 v4, 2, v4")
    k("buffer_store_dword v10, v4, s[16:19], s43 offen")
    k.lab("fin")
    k("s_waitcnt vmcnt(0)")
    k("s_endpgm")
    k.lab("stats")
    k("s_cmp_ge_u32 s2, 128")
    k(f"s_cbranch_scc1 {k.ref('end')}")
    k.srd(20, 4, 0, X_BYTES)
    k("s_sub_u32 s26, s26, 4")
    k("s_lshl_b32 s3, s2, 4")
    k("s_lshl_b32 s27, s26, 2")
    k("s_add_u32 s3, s3, s27")
    k("v_lshrrev_b32 v1, 4, v0")
    k("v_add_u32 v1, s3, v1")
    k("v_and_b32 v2, 15, v0")
    k("v_mul_u32_u24 v3, 1280, v1")
    k("v_lshl_add_u32 v3, v2, 4, v3")
    for i in range(5):
        k(f"buffer_load_dwordx4 v[{8+4*i}:{11+4*i}], v3, s[20:23], 0 offen offset:{256*i}")
    k("v_lshrrev_b32 v30, 5, v1")
    k("v_mul_u32_u24 v30, 40960, v30")
    k("v_and_b32 v31, 31, v1")
    k("v_lshl_add_u32 v30, v31, 4, v30")
    k("v_lshl_add_u32 v30, v2, 9, v30")
    k("v_mov_b32 v4, 0")
    k("v_mov_b32 v5, 0")
    for i in range(5):
        k(f"s_waitcnt vmcnt(4)")
        k(f"s_mov_b32 s28, {WS_X0 + i*8192}")
        k(f"buffer_store_dwordx4 v[{8+4*i}:{11+4*i}], v30, s[16:19], s28 offen")
        for j in range(4):
            r = 8 + 4 * i + j
            k(f"v_lshlrev_b32 v6, 16, v{r}")
            k(f"v_and_b32 v7, 0xffff0000, v{r}")
            k("v_add_f32 v4, v4, v6")
            k("v_fmac_f32 v5, v6, v6")
            k("v_add_f32 v4, v4, v7")
            k("v_fmac_f32 v5, v7, v7")
    for sh in (8, 4, 2, 1):
        k("s_nop 1")
        k(f"v_add_f32_dpp v4, v4, v4 row_ror:{sh} row_mask:0xf bank_mask:0xf")
        k(f"v_add_f32_dpp v5, v5, v5 row_ror:{sh} row_mask:0xf bank_mask:0xf")
    k("v_lshlrev_b32 v3, 3, v1")
    k("v_cmp_eq_u32 vcc, 0, v2")
    k("s_and_saveexec_b64 s[30:31], vcc")
    k(f"s_mov_b32 s28, {WS_ST0}")
    k("buffer_store_dwordx2 v[4:5], v3, s[16:19], s28 offen")
    k("s_waitcnt vmcnt(0)")
    k.lab("end")
    k("s_endpgm")
    return k

def ring_loader(k, NCH, NSLOT, dma, nD, pre_b0=None, post_b0=None, first=2):
    for c_ in range(first):
        dma(c_)
    k(f"s_waitcnt vmcnt({nD*(first-1)})")
    if pre_b0: pre_b0()
    k("s_barrier")
    issued = first
    if post_b0: post_b0()
    for i in range(1, NCH):
        while issued < NCH and issued <= i - 2 + NSLOT:
            dma(issued); issued += 1
        k(f"s_waitcnt vmcnt({(issued - 1 - i) * nD})")
        k("s_barrier")

def gen_gemmA(name, kind, layer, kidx=0, dbg=(), first=2):
    if kind == "qkv":
        NWG, NB, TB, TN = 240, 2, 2, 128
        WS_W, XSRC, ST, NPART, CSP, NCOL = WS_WQ, (WS_X0 if layer == 0 else WS_X2), WS_ST0, (1 if layer == 0 else 16), WS_CSQ, 1920
    else:
        NWG, NB, TB, TN = 256, 3, 1, 96
        WS_W, XSRC, ST, NPART, CSP, NCOL = WS_W1, WS_X1, WS_ST1, 16, WS_CS1, 1536
    WB = TN * 128
    SLOT = WB + 16384
    NSLOT = 4
    NCH = 10
    STATS = NSLOT * SLOT
    LDS = STATS + 2048
    k = Kern(name, NWG, 512, LDS, vgpr=256)
    k(f"s_cmp_ge_u32 s2, {NWG}")
    k(f"s_cbranch_scc1 {k.ref('end')}")
    k.stamp(0)
    k.karg(6, 80)
    if kind == "w1":
        k.karg(8, 40)
    wave_id(k, 26)
    k("s_and_b32 s20, s2, 7")
    k("s_lshr_b32 s21, s2, 3")
    if kind == "qkv":
        k("s_and_b32 s22, s20, 1")
        k("s_mul_i32 s22, s22, 30")
        k("s_add_u32 s22, s22, s21")
        k("s_lshr_b32 s25, s22, 2")
        k("s_and_b32 s22, s22, 3")
    else:
        k("s_and_b32 s22, s20, 1")
        k("s_lshl_b32 s22, s22, 3")
        k("s_lshr_b32 s23, s21, 2")
        k("s_add_u32 s25, s22, s23")
        k("s_and_b32 s22, s21, 3")
    k("s_lshr_b32 s23, s20, 1")
    k("s_lshl_b32 s23, s23, 2")
    k("s_add_u32 s24, s23, s22")
    k("s_cmp_lt_u32 s26, 4")
    k(f"s_cbranch_scc1 {k.ref('compute')}")

    k("s_sub_u32 s26, s26, 4")
    k("v_lshlrev_b32 v1, 4, v0")
    nW = WB // 4096
    k(f"s_mul_i32 s40, s25, {80*TN*16}")
    k(f"s_mul_i32 s41, s26, {nW*1024}")
    k("s_add_u32 s40, s40, s41")
    k(f"s_add_u32 s40, s40, {WS_W}")
    k("s_mov_b32 s42, s41")
    k("s_lshl_b32 s43, s24, 2")
    k("s_add_u32 s43, s43, s26")
    k("s_mul_i32 s43, s43, 40960")
    k(f"s_add_u32 s43, s43, {XSRC}")
    k("s_lshl_b32 s44, s26, 12")
    k(f"s_add_u32 s44, s44, {WB}")
    k("s_waitcnt lgkmcnt(0)")
    k.srd(12, 6, 0, WS_SIZE)
    def dma(ch):
        slot = ch % NSLOT
        k(f"s_add_u32 m0, s42, {slot*SLOT}")
        k(f"s_add_u32 s45, s40, {ch*WB}")
        for i in range(nW):
            k(f"buffer_load_dwordx4 v1, s[12:15], s45 offen offset:{i*1024} lds")
        k(f"s_add_u32 m0, s44, {slot*SLOT}")
        k(f"s_add_u32 s45, s43, {ch*4096}")
        for i in range(4):
            k(f"buffer_load_dwordx4 v1, s[12:15], s45 offen offset:{i*1024} lds")
    nD = nW + 4
    k.stamp(1)
    dma(0)
    k("v_and_b32 v2, 31, v0")
    k("v_lshrrev_b32 v3, 5, v0")
    k("s_lshl_b32 s46, s24, 7")
    k("s_lshl_b32 s47, s26, 5")
    k("s_add_u32 s46, s46, s47")
    k("v_add_u32 v4, s46, v2")
    k("v_lshlrev_b32 v4, 3, v4")
    nst = 0
    if NPART == 16:
        k("v_lshl_add_u32 v4, v3, 17, v4")
        for p in range(8):
            k(f"s_mov_b32 s47, {ST + p*16384}")
            k(f"buffer_load_dwordx2 v[{16+2*p}:{17+2*p}], v4, s[12:15], s47 offen")
        nst = 8
    else:
        k(f"s_mov_b32 s47, {ST}")
        k("buffer_load_dwordx2 v[16:17], v4, s[12:15], s47 offen")
        nst = 1
    k("s_lshl_b32 s47, s26, 5")
    k("v_add_u32 v5, s47, v2")
    k(f"s_mul_i32 s47, s25, {TN}")
    k("v_add_u32 v6, s47, v5")
    k("v_lshlrev_b32 v7, 2, v6")
    k(f"v_mul_u32_u24 v8, {5*NCOL*4}, v3")
    k("v_add_u32 v7, v7, v8")
    for p in range(5):
        k(f"s_mov_b32 s47, {CSP + p*NCOL*4}")
        k(f"buffer_load_dword v{32+p}, v7, s[12:15], s47 offen")
    nst += 5
    if kind == "w1":
        k.srd(16, 8, 0, 1536 * 2)
        k("v_lshlrev_b32 v9, 1, v6")
        k("buffer_load_ushort v38, v9, s[16:19], 0 offen")
        nst += 1
    for c_ in range(1, first):
        dma(c_)
    k(f"s_waitcnt vmcnt({nD*(first-1)})")
    k.stamp(2)
    k("s_barrier")
    if NPART == 16:
        for p in range(1, 8):
            k(f"v_add_f32 v16, v16, v{16+2*p}")
            k(f"v_add_f32 v17, v17, v{17+2*p}")
        k("v_mov_b32 v18, v16")
        k("v_mov_b32 v19, v17")
        k("s_nop 1")
        k("v_permlane32_swap_b32 v16, v18")
        k("v_permlane32_swap_b32 v17, v19")
        k("s_nop 1")
        k("v_add_f32 v16, v16, v18")
        k("v_add_f32 v17, v17, v19")
    k(f"v_mul_f32 v16, {f2u(1/640):#x}, v16")
    k(f"v_mul_f32 v17, {f2u(1/640):#x}, v17")
    k("v_fma_f32 v17, -v16, v16, v17")
    k("v_max_f32 v17, 0, v17")
    k(f"v_add_f32 v18, {f2u(1e-5):#x}, v17")
    k("v_rsq_f32 v18, v18")
    if kind == "w1":
        k("s_nop 0")
        k("v_mul_f32 v19, v18, v18")
        k("v_mul_f32 v19, v19, v17")
        k(f"v_add_f32 v19, {f2u(1e-5):#x}, v19")
        k("v_rsq_f32 v19, v19")
        k("s_nop 0")
        k("v_mul_f32 v18, v18, v19")
    else:
        k("s_cmp_lt_u32 s25, 5")
        k(f"s_cselect_b32 s46, {f2u(QSCALE):#x}, 1.0")
        k("v_mul_f32 v18, s46, v18")
    k("s_nop 0")
    k("v_mul_f32 v19, v18, v16")
    for p in range(1, 5):
        k(f"v_add_f32 v32, v32, v{32+p}")
    k("v_mov_b32 v33, v32")
    k("s_nop 1")
    k("v_permlane32_swap_b32 v32, v33")
    k("s_nop 1")
    k("v_add_f32 v32, v32, v33")
    k("v_cmp_eq_u32 vcc, 0, v3")
    k("s_lshl_b32 s47, s26, 7")
    k("v_lshlrev_b32 v2, 2, v2")
    k("v_add_u32 v2, s47, v2")
    k(f"v_add_u32 v2, {STATS}, v2")
    k("v_lshl_add_u32 v2, v3, 9, v2")
    k("v_cndmask_b32 v18, v19, v18, vcc")
    if kind == "w1":
        k("v_lshlrev_b32 v38, 16, v38")
        k("v_cndmask_b32 v32, v38, v32, vcc")
    k("ds_write_b32 v2, v18")
    k("ds_write_b32 v2, v32 offset:1024")
    k("s_waitcnt lgkmcnt(0)")
    issued = first
    for i in range(1, NCH):
        while issued < NCH and issued <= i - 2 + NSLOT:
            dma(issued); issued += 1
        k(f"s_waitcnt vmcnt({(issued - 1 - i) * nD})")
        k("s_barrier")
    k.stamp(4)
    k("s_add_u32 s26, s26, 4")
    k.stamp_flush(6, kidx, 5, 26)
    k.lab("end")
    k("s_endpgm")

    k.lab("compute")
    ACC = 64
    FA = [128, 128 + 4 * NB]
    FB = [160, 160 + 4 * TB]
    AW, AX = 1, 3
    HH, TL = 17, 16
    if kind == "qkv":
        k("s_and_b32 s27, s26, 1")
        k("s_lshr_b32 s36, s26, 1")
    else:
        k("s_mov_b32 s27, 0")
        k("s_mov_b32 s36, s26")
    k(f"v_lshrrev_b32 v{HH}, 5, v0")
    k(f"v_and_b32 v{TL}, 31, v0")
    k(f"v_mul_u32_u24 v20, {TN*16}, v{HH}")
    k(f"v_lshl_add_u32 v20, v{TL}, 4, v20")
    k(f"s_mul_i32 s37, s27, {NB*512}")
    k(f"v_add_u32 v{AW}, s37, v20")
    k(f"v_add_u32 v{AW+1}, {2*SLOT}, v{AW}")
    k(f"v_lshlrev_b32 v20, 4, v0")
    k(f"s_mul_i32 s37, s36, {TB*4096}")
    k(f"s_add_u32 s37, s37, {WB}")
    k(f"v_add_u32 v{AX}, s37, v20")
    k(f"v_add_u32 v{AX+1}, {2*SLOT}, v{AX}")

    def reads(step):
        ch, ks = divmod(step, 4)
        slot = ch % NSLOT
        half, sl = divmod(slot, 2)
        st = step & 1
        out = []
        for nb in range(NB):
            d = FA[st] + nb * 4
            out.append(f"ds_read_b128 v[{d}:{d+3}], v{AW+half} offset:{sl*SLOT + ks*2*TN*16 + nb*512}")
        for tb in range(TB):
            d = FB[st] + tb * 4
            out.append(f"ds_read_b128 v[{d}:{d+3}], v{AX+half} offset:{sl*SLOT + ks*1024 + tb*4096}")
        return out

    def mainloop(swap):
        k.stamp(1)
        k("s_barrier")
        k.stamp(2)
        for r in reads(0):
            k(r)
        NS = NCH * 4
        for step in range(NS):
            st = step & 1
            k("s_waitcnt lgkmcnt(0)")
            if step % 4 == 3 and step + 1 < NS:
                k("s_barrier")
            rd = reads(step + 1) if step + 1 < NS else []
            mf = []
            for nb in range(NB):
                for tb in range(TB):
                    d = ACC + (nb * TB + tb) * 16
                    a = FA[st] + nb * 4
                    b = FB[st] + tb * 4
                    c = "0" if step == 0 else f"v[{d}:{d+15}]"
                    if swap:
                        mf.append(f"v_mfma_f32_32x32x16_bf16 v[{d}:{d+15}], v[{b}:{b+3}], v[{a}:{a+3}], {c}")
                    else:
                        mf.append(f"v_mfma_f32_32x32x16_bf16 v[{d}:{d+15}], v[{a}:{a+3}], v[{b}:{b+3}], {c}")
            ri = 0
            for i, m in enumerate(mf):
                if "nomfma" not in dbg: k(m)
                for r in rd[ri:ri + 2]:
                    if "nords" not in dbg: k(r)
                ri += 2
            assert ri >= len(rd)
        k.stamp(3)

    k("s_waitcnt lgkmcnt(0)")
    if kind == "qkv":
        k("s_cmp_ge_u32 s25, 10")
        k(f"s_cbranch_scc1 {k.ref('vpath')}")
        pre_qk(k, HH, TL)
        mainloop(False)
        epi_qk(k, ACC, STATS, HH, TL)
        k.stamp(4); k.stamp_flush(6, kidx, 5, 26)
        k("s_endpgm")
        k.lab("vpath")
        pre_v(k, HH, TL)
        mainloop(True)
        epi_v(k, ACC, STATS, HH, TL)
        k.stamp(4); k.stamp_flush(6, kidx, 5, 26)
        k("s_endpgm")
    else:
        mainloop(False)
        epi_w1(k, ACC, STATS, HH, TL)
        k.stamp(4); k.stamp_flush(6, kidx, 5, 26)
        k("s_endpgm")
    return k


def pre_qk(k, HH, TL):
    k.srd(48, 6, 0, WS_SIZE)
    k("s_cmp_lt_u32 s25, 5")
    k(f"s_mov_b32 s37, {WS_KV}")
    k(f"s_cselect_b32 s37, {WS_Q}, s37")
    k("s_cselect_b32 s38, 0, 5")
    k("s_movk_i32 s39, 2560")
    k("s_cselect_b32 s39, 1280, s39")
    k("s_lshl_b32 s40, s39, 6")
    k("s_sub_u32 s38, s25, s38")
    k("s_lshl_b32 s41, s24, 2")
    k("s_lshl_b32 s42, s36, 1")
    k("s_add_u32 s41, s41, s42")
    k("s_mul_i32 s41, s41, s39")
    k("s_add_u32 s52, s37, s41")
    k("s_add_u32 s53, s52, s39")
    k("s_lshl_b32 s38, s38, 5")
    k("s_lshl_b32 s42, s27, 4")
    k("s_add_u32 s38, s38, s42")
    k(f"v_add_u32 v21, s38, v{HH}")
    k(f"v_lshlrev_b32 v22, 3, v{TL}")
    for nb in range(2):
        for q in range(4):
            d = 24 + nb * 4 + q
            k(f"v_add_u32 v23, {nb*8+2*q}, v21")
            k("v_mul_u32_u24 v18, 205, v23")
            k("v_lshrrev_b32 v18, 10, v18")
            k("v_mul_u32_u24 v19, 5, v18")
            k("v_sub_u32 v23, v23, v19")
            k("v_mul_lo_u32 v18, v18, s40")
            k("v_cmp_gt_u32 vcc, 4, v23")
            k("v_lshrrev_b32 v19, 1, v23")
            k("v_lshl_add_u32 v18, v19, 9, v18")
            k("v_and_b32 v19, 1, v23")
            k("v_lshl_add_u32 v18, v19, 3, v18")
            k("v_cndmask_b32 v19, 0, v22, vcc")
            k("v_add_u32 v18, v18, v22")
            k(f"v_add_u32 v{d}, v18, v19")


def epi_qk(k, ACC, STATS, HH, TL):
    NB, TB = 2, 2
    k(f"s_mul_i32 s37, s36, 256")
    k(f"v_lshlrev_b32 v20, 2, v{TL}")
    k(f"v_add_u32 v20, s37, v20")
    k(f"v_add_u32 v20, {STATS}, v20")
    for tb in range(TB):
        k(f"ds_read_b32 v{32+2*tb}, v20 offset:{tb*128}")
        k(f"ds_read_b32 v{33+2*tb}, v20 offset:{512+tb*128}")
    k(f"v_lshlrev_b32 v21, 4, v{HH}")
    k("s_lshl_b32 s37, s27, 8")
    k("v_add_u32 v21, s37, v21")
    k(f"v_add_u32 v21, {STATS+1024}, v21")
    CS = 128
    for nb in range(NB):
        for q in range(4):
            k(f"ds_read_b128 v[{CS+(nb*4+q)*4}:{CS+(nb*4+q)*4+3}], v21 offset:{nb*128+q*32}")
    k("s_waitcnt lgkmcnt(0)")
    k("s_nop 7")
    n = 0
    for nb in range(NB):
        for q in range(4):
            cs = CS + (nb * 4 + q) * 4
            for tb in range(TB):
                a = ACC + (nb * TB + tb) * 16 + q * 4
                rs, rm = 32 + 2 * tb, 33 + 2 * tb
                t = 36 + 4 * (n % 2)
                for h in range(2):
                    k(f"v_pk_mul_f32 v[{t+2*h}:{t+2*h+1}], v[{cs+2*h}:{cs+2*h+1}], v[{rs}:{rs+1}] op_sel:[0,1] op_sel_hi:[1,1]")
                for h in range(2):
                    k(f"v_pk_fma_f32 v[{t+2*h}:{t+2*h+1}], v[{a+2*h}:{a+2*h+1}], v[{rs}:{rs+1}], v[{t+2*h}:{t+2*h+1}] op_sel_hi:[1,0,1] neg_lo:[0,0,1] neg_hi:[0,0,1]")
                o = 44 + 2 * (n % 4)
                k(f"v_cvt_pk_bf16_f32 v{o}, v{t}, v{t+1}")
                k(f"v_cvt_pk_bf16_f32 v{o+1}, v{t+2}, v{t+3}")
                k(f"buffer_store_dwordx2 v[{o}:{o+1}], v{24+nb*4+q}, s[48:51], s{52+tb} offen")
                n += 1
    k("s_waitcnt vmcnt(0)")


def pre_v(k, HH, TL):
    k.srd(48, 6, 0, WS_SIZE)
    k("s_sub_u32 s37, s25, 10")
    k("s_lshl_b32 s37, s37, 7")
    k("s_lshl_b32 s38, s27, 6")
    k("s_add_u32 s37, s37, s38")
    for nb in range(2):
        k(f"v_add_u32 v20, s37, v{TL}")
        if nb: k("v_add_u32 v20, 32, v20")
        k("v_mul_u32_u24 v21, 205, v20")
        k("v_lshrrev_b32 v21, 12, v21")
        k("v_mul_u32_u24 v22, 20, v21")
        k("v_sub_u32 v22, v20, v22")
        k("s_mov_b32 s38, 163840")
        k("v_mul_lo_u32 v21, v21, s38")
        k("v_lshl_add_u32 v21, v22, 4, v21")
        k(f"v_mul_u32_u24 v22, 320, v{HH}")
        k(f"v_add_u32 v{24+nb}, v21, v22")
    k("s_lshl_b32 s41, s24, 2")
    k("s_lshl_b32 s42, s36, 1")
    k("s_add_u32 s41, s41, s42")
    k("s_mul_i32 s41, s41, 2560")
    k(f"s_add_u32 s52, s41, {WS_KV + 1280}")


def epi_v(k, ACC, STATS, HH, TL):
    NB, TB = 2, 2
    k("s_lshl_b32 s37, s36, 8")
    k(f"v_lshlrev_b32 v20, 4, v{HH}")
    k("v_add_u32 v20, s37, v20")
    k(f"v_add_u32 v20, {STATS}, v20")
    RS, RM = 128, 160
    for tb in range(TB):
        for q in range(4):
            k(f"ds_read_b128 v[{RS+(tb*4+q)*4}:{RS+(tb*4+q)*4+3}], v20 offset:{tb*128+q*32}")
    k(f"v_lshlrev_b32 v21, 2, v{TL}")
    k("s_lshl_b32 s37, s27, 8")
    k("v_add_u32 v21, s37, v21")
    k(f"v_add_u32 v21, {STATS+1024}, v21")
    k("s_waitcnt lgkmcnt(4)")
    for tb in range(TB):
        for q in range(4):
            k(f"ds_read_b128 v[{RM+(tb*4+q)*4}:{RM+(tb*4+q)*4+3}], v20 offset:{512+tb*128+q*32}")
    k("ds_read_b32 v32, v21")
    k("ds_read_b32 v34, v21 offset:128")
    k("s_waitcnt lgkmcnt(0)")
    k("s_nop 7")
    n = 0
    for nb in range(NB):
        cs = 32 + 2 * nb
        for tb in range(TB):
            for qp in range(2):
                o = 44 + 4 * (n % 2)
                for qq in range(2):
                    q = qp * 2 + qq
                    a = ACC + (nb * TB + tb) * 16 + q * 4
                    t = 36 + 4 * qq
                    rs, rm = RS + (tb * 4 + q) * 4, RM + (tb * 4 + q) * 4
                    for h in range(2):
                        k(f"v_pk_mul_f32 v[{t+2*h}:{t+2*h+1}], v[{rm+2*h}:{rm+2*h+1}], v[{cs}:{cs+1}] op_sel_hi:[1,0]")
                    for h in range(2):
                        k(f"v_pk_fma_f32 v[{t+2*h}:{t+2*h+1}], v[{a+2*h}:{a+2*h+1}], v[{rs+2*h}:{rs+2*h+1}], v[{t+2*h}:{t+2*h+1}] neg_lo:[0,0,1] neg_hi:[0,0,1]")
                    k(f"v_cvt_pk_bf16_f32 v{o+2*qq}, v{t}, v{t+1}")
                    k(f"v_cvt_pk_bf16_f32 v{o+2*qq+1}, v{t+2}, v{t+3}")
                k("s_nop 1")
                k(f"v_permlane32_swap_b32 v{o}, v{o+2}")
                k(f"v_permlane32_swap_b32 v{o+1}, v{o+3}")
                k("s_nop 1")
                k(f"buffer_store_dwordx4 v[{o}:{o+3}], v{24+nb}, s[48:51], s52 offen offset:{tb*2560+qp*640}")
                n += 1
    k("s_waitcnt vmcnt(0)")


GK1 = -2.0 * 0.7978845608028654 * 1.4426950408889634
GK2 = GK1 * 0.044715

def epi_w1(k, ACC, STATS, HH, TL):
    NB = 3
    k.srd(48, 6, 0, WS_SIZE)
    k("s_lshl_b32 s37, s36, 7")
    k(f"v_lshlrev_b32 v20, 2, v{TL}")
    k("v_add_u32 v20, s37, v20")
    k(f"v_add_u32 v20, {STATS}, v20")
    k("ds_read_b32 v32, v20")
    k("ds_read_b32 v33, v20 offset:512")
    k(f"v_lshlrev_b32 v21, 4, v{HH}")
    k(f"v_add_u32 v21, {STATS+1024}, v21")
    CS, BI = 128, 176
    for nb in range(NB):
        for q in range(4):
            k(f"ds_read_b128 v[{CS+(nb*4+q)*4}:{CS+(nb*4+q)*4+3}], v21 offset:{nb*128+q*32}")
    k("s_waitcnt lgkmcnt(6)")
    for nb in range(NB):
        for q in range(4):
            k(f"ds_read_b128 v[{BI+(nb*4+q)*4}:{BI+(nb*4+q)*4+3}], v21 offset:{512+nb*128+q*32}")
    k("s_lshl_b32 s39, s24, 2")
    k("s_add_u32 s39, s39, s36")
    k("s_mul_i32 s39, s39, 98304")
    k("s_mul_i32 s40, s25, 6144")
    k("s_add_u32 s39, s39, s40")
    k(f"s_add_u32 s52, s39, {WS_H}")
    k("s_add_u32 s53, s52, 2048")
    k("s_add_u32 s54, s52, 4096")
    k("v_lshlrev_b32 v22, 4, v0")
    k(f"v_mov_b32 v34, {f2u(GK1):#x}")
    k(f"v_mov_b32 v35, {f2u(GK2):#x}")
    k("s_waitcnt lgkmcnt(0)")
    k("s_nop 7")
    n = 0
    for nb in range(NB):
        for qp in range(2):
            o = 56 + 4 * (n % 2)
            for qq in range(2):
                q = qp * 2 + qq
                a = ACC + nb * 16 + q * 4
                cs = CS + (nb * 4 + q) * 4
                b = BI + (nb * 4 + q) * 4
                u, t = 36, 40
                for h in range(2):
                    k(f"v_pk_fma_f32 v[{u+2*h}:{u+2*h+1}], v[{cs+2*h}:{cs+2*h+1}], v[32:33], v[{b+2*h}:{b+2*h+1}] op_sel:[0,1,0] op_sel_hi:[1,1,1] neg_lo:[1,0,0] neg_hi:[1,0,0]")
                for h in range(2):
                    k(f"v_pk_fma_f32 v[{u+2*h}:{u+2*h+1}], v[{a+2*h}:{a+2*h+1}], v[32:33], v[{u+2*h}:{u+2*h+1}] op_sel_hi:[1,0,1]")
                for h in range(2):
                    k(f"v_pk_mul_f32 v[{t+2*h}:{t+2*h+1}], v[{u+2*h}:{u+2*h+1}], v[{u+2*h}:{u+2*h+1}]")
                for h in range(2):
                    k(f"v_pk_fma_f32 v[{t+2*h}:{t+2*h+1}], v[{t+2*h}:{t+2*h+1}], v[34:35], v[34:35] op_sel:[0,1,0] op_sel_hi:[1,1,0]")
                for h in range(2):
                    k(f"v_pk_mul_f32 v[{t+2*h}:{t+2*h+1}], v[{t+2*h}:{t+2*h+1}], v[{u+2*h}:{u+2*h+1}]")
                for i in range(4):
                    k(f"v_exp_f32 v{t+i}, v{t+i}")
                k("s_nop 0")
                for h in range(2):
                    k(f"v_pk_add_f32 v[{t+2*h}:{t+2*h+1}], v[{t+2*h}:{t+2*h+1}], 1.0 op_sel_hi:[1,0]")
                for i in range(4):
                    k(f"v_rcp_f32 v{t+i}, v{t+i}")
                k("s_nop 0")
                for h in range(2):
                    k(f"v_pk_mul_f32 v[{u+2*h}:{u+2*h+1}], v[{u+2*h}:{u+2*h+1}], v[{t+2*h}:{t+2*h+1}]")
                k(f"v_cvt_pk_bf16_f32 v{o+2*qq}, v{u}, v{u+1}")
                k(f"v_cvt_pk_bf16_f32 v{o+2*qq+1}, v{u+2}, v{u+3}")
            k("s_nop 1")
            k(f"v_permlane32_swap_b32 v{o}, v{o+2}")
            k(f"v_permlane32_swap_b32 v{o+1}, v{o+3}")
            k("s_nop 1")
            k(f"buffer_store_dwordx4 v[{o}:{o+3}], v22, s[48:51], s{52+nb} offen offset:{qp*1024}")
            n += 1
    k("s_waitcnt vmcnt(0)")


def gen_gemmB(name, kind, layer, kidx=0, dbg=(), first=2):
    NWG = 256
    if kind == "wo":
        K, WS_W, XSRC = 640, WS_WO, WS_O
        RES = WS_X0 if layer == 0 else WS_X2
        DST, ST = WS_X1, WS_ST1
    else:
        K, WS_W, XSRC = 1536, WS_W2, WS_H
        RES = WS_X1
        DST, ST = (WS_X2, WS_ST0) if layer == 0 else (None, None)
    NCH = K // 128
    XBLK = K * 64
    WB = 20480
    SLOT = WB + 16384
    NSLOT = 4
    LDS = NSLOT * SLOT
    k = Kern(name, NWG, 512, LDS, vgpr=128)
    k(f"s_cmp_ge_u32 s2, {NWG}")
    k(f"s_cbranch_scc1 {k.ref('end')}")
    k.stamp(0)
    k.karg(6, 80)
    if kind == "w2":
        k.karg(8, 56)
        if DST is None:
            k.karg(10, 64)
    wave_id(k, 26)
    k("s_and_b32 s20, s2, 7")
    k("s_lshr_b32 s21, s2, 3")
    k("s_lshr_b32 s22, s20, 1")
    k("s_lshl_b32 s22, s22, 3")
    k("s_and_b32 s23, s21, 7")
    k("s_add_u32 s24, s22, s23")
    k("s_and_b32 s22, s20, 1")
    k("s_lshl_b32 s22, s22, 2")
    k("s_lshr_b32 s23, s21, 3")
    k("s_add_u32 s25, s22, s23")
    k("s_cmp_lt_u32 s26, 4")
    k(f"s_cbranch_scc1 {k.ref('compute')}")
    k("s_sub_u32 s26, s26, 4")
    k("v_lshlrev_b32 v1, 4, v0")
    k(f"s_mul_i32 s40, s25, {K//8*1280}")
    k("s_mul_i32 s41, s26, 5120")
    k("s_add_u32 s40, s40, s41")
    k(f"s_add_u32 s40, s40, {WS_W}")
    k("s_mov_b32 s42, s41")
    k("s_lshl_b32 s43, s24, 1")
    k("s_lshr_b32 s47, s26, 1")
    k("s_add_u32 s43, s43, s47")
    k(f"s_mul_i32 s43, s43, {XBLK}")
    k("s_and_b32 s47, s26, 1")
    k("s_lshl_b32 s47, s47, 12")
    k("s_add_u32 s43, s43, s47")
    k(f"s_add_u32 s43, s43, {XSRC}")
    k("s_lshl_b32 s44, s26, 12")
    k(f"s_add_u32 s44, s44, {WB}")
    k("s_waitcnt lgkmcnt(0)")
    k.srd(12, 6, 0, WS_SIZE)
    def dma(ch):
        slot = ch % NSLOT
        k(f"s_add_u32 m0, s44, {slot*SLOT}")
        k(f"s_add_u32 s45, s43, {ch*8192}")
        for i in range(4):
            k(f"buffer_load_dwordx4 v1, s[12:15], s45 offen offset:{i*1024} lds")
        k(f"s_add_u32 m0, s42, {slot*SLOT}")
        k(f"s_add_u32 s45, s40, {ch*WB}")
        for i in range(4):
            k(f"buffer_load_dwordx4 v1, s[12:15], s45 offen offset:{i*1024} lds")
        k(f"s_add_u32 m0, s42, {slot*SLOT+4096}")
        k(f"s_add_u32 s45, s40, {ch*WB+4096}")
        k(f"buffer_load_dwordx4 v1, s[12:15], s45 offen lds")
    k.stamp(1)
    def pre(): k.stamp(2)
    ring_loader(k, NCH, NSLOT, dma, 9, pre_b0=pre, first=first)
    k.stamp(4)
    k("s_add_u32 s26, s26, 4")
    k.stamp_flush(6, kidx, 5, 26)
    k.lab("end")
    k("s_endpgm")

    k.lab("compute")
    ACC, FA0, FB0, RS, BI = 32, 64, 88, 104, 116
    AW, AX = 1, 3
    k("s_and_b32 s27, s26, 1")
    k("s_lshr_b32 s36, s26, 1")
    k("v_lshrrev_b32 v17, 4, v0")
    k("v_and_b32 v16, 15, v0")
    k("v_mul_u32_u24 v20, 1280, v17")
    k("v_lshl_add_u32 v20, v16, 4, v20")
    k("s_mul_i32 s37, s27, 768")
    k(f"v_add_u32 v{AW}, s37, v20")
    k(f"v_add_u32 v{AW+1}, {2*SLOT}, v{AW}")
    k("v_lshlrev_b32 v20, 9, v17")
    k("v_lshl_add_u32 v20, v16, 4, v20")
    k("s_lshl_b32 s37, s36, 13")
    k(f"s_add_u32 s37, s37, {WB}")
    k(f"v_add_u32 v{AX}, s37, v20")
    k(f"v_add_u32 v{AX+1}, {2*SLOT}, v{AX}")
    k("v_lshrrev_b32 v20, 1, v17")
    k("v_lshlrev_b32 v20, 9, v20")
    k("v_lshl_add_u32 v20, v16, 4, v20")
    k("v_and_b32 v21, 1, v17")
    k("v_lshl_add_u32 v20, v21, 3, v20")
    k("s_lshl_b32 s38, s24, 1")
    k("s_add_u32 s38, s38, s36")
    k("s_mul_i32 s39, s38, 40960")
    k("s_mul_i32 s40, s25, 5120")
    k("s_add_u32 s39, s39, s40")
    k("s_mul_i32 s40, s27, 3072")
    k("s_add_u32 s39, s39, s40")
    k(f"s_add_u32 s52, s39, {RES}")
    k("s_waitcnt lgkmcnt(0)")
    k.srd(48, 6, 0, WS_SIZE)

    def path(NB):
        for nb in range(NB):
            for tb in range(2):
                d = RS + (nb * 2 + tb) * 2
                k(f"buffer_load_dwordx2 v[{d}:{d+1}], v20, s[48:51], s52 offen offset:{nb*1024+tb*256}")
        if kind == "w2":
            k.srd(56, 8, 0, 1280)
            k("s_mul_i32 s40, s25, 160")
            k("s_mul_i32 s41, s27, 96")
            k("s_add_u32 s40, s40, s41")
            k("v_lshlrev_b32 v21, 3, v17")
            for nb in range(NB):
                k(f"buffer_load_dwordx2 v[{BI+2*nb}:{BI+2*nb+1}], v21, s[56:59], s40 offen offset:{nb*32}")
        def reads(step):
            ch, ks = divmod(step, 4)
            slot = ch % NSLOT
            half, sl = divmod(slot, 2)
            st = step & 1
            out = []
            for tb in range(2):
                d = FB0 + st * 8 + tb * 4
                out.append(f"ds_read_b128 v[{d}:{d+3}], v{AX+half} offset:{sl*SLOT + ks*2048 + tb*256}")
            for nb in range(NB):
                d = FA0 + st * 12 + nb * 4
                out.append(f"ds_read_b128 v[{d}:{d+3}], v{AW+half} offset:{sl*SLOT + ks*5120 + nb*256}")
            return out
        k.stamp(1)
        k("s_barrier")
        k.stamp(2)
        for r in reads(0):
            k(r)
        NS = NCH * 4
        for step in range(NS):
            st = step & 1
            k("s_waitcnt lgkmcnt(0)")
            if step % 4 == 3 and step + 1 < NS:
                k("s_barrier")
            rd = reads(step + 1) if step + 1 < NS else []
            mf = []
            for nb in range(NB):
                for tb in range(2):
                    d = ACC + (nb * 2 + tb) * 4
                    a = FA0 + st * 12 + nb * 4
                    b = FB0 + st * 8 + tb * 4
                    c = "0" if step == 0 else f"v[{d}:{d+3}]"
                    mf.append(f"v_mfma_f32_16x16x32_bf16 v[{d}:{d+3}], v[{a}:{a+3}], v[{b}:{b+3}], {c}")
            ri = 0
            for i, m in enumerate(mf):
                if "nomfma" not in dbg: k(m)
                for r in rd[ri:ri + 2]:
                    if "nords" not in dbg: k(r)
                ri += 2
            assert ri >= len(rd)
        k.stamp(3)
        k("s_waitcnt vmcnt(0)")
        want_stats = ST is not None
        if want_stats:
            for r in (8, 9, 10, 11):
                k(f"v_mov_b32 v{r}, 0")
        k("v_lshlrev_b32 v22, 4, v0")
        if DST is None:
            k.srd(60, 10, 0, X_BYTES)
            k("v_and_b32 v23, 31, v0")
            k("v_mul_u32_u24 v23, 1280, v23")
            k("v_lshrrev_b32 v24, 5, v0")
            k("v_lshl_add_u32 v23, v24, 4, v23")
            k("s_mul_i32 s40, s38, 40960")
            k("s_mul_i32 s41, s25, 160")
            k("s_add_u32 s40, s40, s41")
            k("s_mul_i32 s41, s27, 96")
            k("s_add_u32 s53, s40, s41")
        else:
            k(f"s_add_u32 s53, s39, {DST}")
        k("s_nop 4")
        for nb in range(NB):
            o = 24 + 4 * (nb % 2)
            for tb in range(2):
                a = ACC + (nb * 2 + tb) * 4
                d = RS + (nb * 2 + tb) * 2
                t = 12
                k(f"v_lshlrev_b32 v{t}, 16, v{d}")
                k(f"v_and_b32 v{t+1}, 0xffff0000, v{d}")
                k(f"v_lshlrev_b32 v{t+2}, 16, v{d+1}")
                k(f"v_and_b32 v{t+3}, 0xffff0000, v{d+1}")
                k(f"v_pk_add_f32 v[{a}:{a+1}], v[{a}:{a+1}], v[{t}:{t+1}]")
                k(f"v_pk_add_f32 v[{a+2}:{a+3}], v[{a+2}:{a+3}], v[{t+2}:{t+3}]")
                if kind == "w2":
                    b = BI + 2 * nb
                    k(f"v_lshlrev_b32 v{t+4}, 16, v{b}")
                    k(f"v_and_b32 v{t+5}, 0xffff0000, v{b}")
                    k(f"v_lshlrev_b32 v{t+6}, 16, v{b+1}")
                    k(f"v_and_b32 v{t+7}, 0xffff0000, v{b+1}")
                    k(f"v_pk_add_f32 v[{a}:{a+1}], v[{a}:{a+1}], v[{t+4}:{t+5}]")
                    k(f"v_pk_add_f32 v[{a+2}:{a+3}], v[{a+2}:{a+3}], v[{t+6}:{t+7}]")
                if want_stats:
                    for r in range(4):
                        k(f"v_add_f32 v{8+tb}, v{8+tb}, v{a+r}")
                        k(f"v_fmac_f32 v{10+tb}, v{a+r}, v{a+r}")
                k(f"v_cvt_pk_bf16_f32 v{o+2*tb}, v{a}, v{a+1}")
                k(f"v_cvt_pk_bf16_f32 v{o+2*tb+1}, v{a+2}, v{a+3}")
            k("s_nop 1")
            k(f"v_permlane16_swap_b32 v{o}, v{o+2}")
            k(f"v_permlane16_swap_b32 v{o+1}, v{o+3}")
            k("s_nop 1")
            if DST is None:
                k(f"buffer_store_dwordx4 v[{o}:{o+3}], v23, s[60:63], s53 offen offset:{nb*32}")
            else:
                k(f"buffer_store_dwordx4 v[{o}:{o+3}], v22, s[48:51], s53 offen offset:{nb*1024}")
        if want_stats:
            k("v_permlane16_swap_b32 v8, v9")
            k("v_permlane16_swap_b32 v10, v11")
            k("s_nop 1")
            k("v_add_f32 v8, v8, v9")
            k("v_add_f32 v10, v10, v11")
            k("s_nop 1")
            k("v_permlane32_swap_b32 v8, v10")
            k("s_nop 1")
            k("v_add_f32 v8, v8, v10")
            k("v_and_b32 v12, 31, v0")
            k("v_lshlrev_b32 v12, 3, v12")
            k("v_lshrrev_b32 v13, 5, v0")
            k("v_lshl_add_u32 v12, v13, 2, v12")
            k("s_lshl_b32 s40, s25, 1")
            k("s_add_u32 s40, s40, s27")
            k("s_lshl_b32 s40, s40, 14")
            k("s_lshl_b32 s41, s38, 8")
            k("s_add_u32 s40, s40, s41")
            k(f"s_add_u32 s40, s40, {ST}")
            k("buffer_store_dword v8, v12, s[48:51], s40 offen")
        k("s_waitcnt vmcnt(0)")
        k.stamp(4); k.stamp_flush(6, kidx, 5, 26)
        k("s_endpgm")
    k("s_cmp_eq_u32 s27, 1")
    k(f"s_cbranch_scc1 {k.ref('p2')}")
    path(3)
    k.lab("p2")
    path(2)
    return k


ATT_PACK = "cvt"
def gen_attn(name, kidx=0, pack=None, force_slow=False):
    pack = pack or ATT_PACK
    NWG = 256
    LDS = 163840
    k = Kern(name, NWG, 512, LDS, vgpr=128)
    KA, KB, VA = 1, 2, 3
    Q16, Q4 = 8, 12
    K16 = [16, 20]; K4 = [24, 26]
    V = [32, 40]
    S = [48, 64]
    P = 80
    O = 96
    k(f"s_cmp_ge_u32 s2, {NWG}")
    k(f"s_cbranch_scc1 {k.ref('end')}")
    k.stamp(0)
    k.karg(6, 80)
    wave_id(k, 26)
    k("s_and_b32 s20, s2, 7")
    k("s_lshr_b32 s21, s2, 3")
    k("s_lshr_b32 s22, s21, 3")
    k("s_lshl_b32 s23, s20, 2")
    k("s_add_u32 s24, s23, s22")
    k("s_and_b32 s25, s21, 7")
    k("s_lshl_b32 s25, s25, 3")
    k("s_add_u32 s25, s25, s26")
    k("v_lshlrev_b32 v4, 4, v0")
    k("s_lshl_b32 s27, s24, 6")
    k("s_add_u32 s27, s27, s25")
    k("s_mul_i32 s27, s27, 1280")
    k(f"s_add_u32 s27, s27, {WS_Q}")
    k("s_mul_i32 s28, s24, 163840")
    k(f"s_add_u32 s28, s28, {WS_KV}")
    k("s_mul_i32 s29, s26, 3072")
    k("s_mul_i32 s30, s26, 17408")
    k("s_add_u32 s30, s30, 24576")
    k("v_and_b32 v5, 31, v0")
    k("v_lshlrev_b32 v6, 3, v5")
    k(f"v_mov_b32 v{Q4}, 0")
    k(f"v_mov_b32 v{Q4+1}, 0")
    k("s_waitcnt lgkmcnt(0)")
    k.srd(12, 6, 0, WS_SIZE)
    k(f"buffer_load_dwordx4 v[{Q16}:{Q16+3}], v4, s[12:15], s27 offen")
    k("s_mov_b64 exec, 0xffffffff")
    k(f"buffer_load_dwordx2 v[{Q4}:{Q4+1}], v6, s[12:15], s27 offen offset:1024")
    k("s_mov_b64 exec, -1")
    k("s_mov_b32 m0, s29")
    k("s_add_u32 s31, s28, s29")
    for i in range(3):
        k(f"buffer_load_dwordx4 v4, s[12:15], s31 offen offset:{i*1024} lds")
    for g in range(5):
        k(f"s_add_u32 m0, s30, {g*4096}")
        k(f"s_add_u32 s31, s28, s30")
        if g: k(f"s_add_u32 s31, s31, {g*4096}")
        for i in range(4 if g < 4 else 1):
            k(f"buffer_load_dwordx4 v4, s[12:15], s31 offen offset:{i*1024} lds")
    k.stamp(1)
    def lane_addrs():
        k("v_and_b32 v5, 31, v0")
        k("v_and_b32 v6, 0x13, v5")
        k("v_and_b32 v7, 4, v5")
        k("v_lshl_or_b32 v6, v7, 1, v6")
        k("v_and_b32 v7, 8, v5")
        k("v_lshrrev_b32 v7, 1, v7")
        k("v_or_b32 v6, v6, v7")
        k("v_lshrrev_b32 v7, 5, v0")
        k(f"v_lshlrev_b32 v{KA}, 9, v7")
        k(f"v_lshl_add_u32 v{KA}, v6, 4, v{KA}")
        k(f"v_lshlrev_b32 v{KB}, 3, v6")
        k(f"v_add_u32 v{KB}, 1024, v{KB}")
        k(f"v_mul_u32_u24 v{VA}, 320, v7")
        k(f"v_lshl_add_u32 v{VA}, v5, 4, v{VA}")
        k(f"v_add_u32 v{VA}, 1280, v{VA}")
    lane_addrs()
    k("v_cmp_eq_u32 vcc, 20, v5")
    k("v_mov_b32 v7, 0x3f803f80")
    k("s_mov_b32 s34, 0x000fffff")
    k("s_mov_b32 s35, 0x000fffff")
    k(f"v_cndmask_b32 v{V[0]}, 0, v7, vcc")
    for r in range(1, 16):
        k(f"v_mov_b32 v{V[0]+r}, v{V[0]}")
    for r in range(16):
        k(f"v_mov_b32 v{O+r}, 0")
    for r in range(4, 8):
        k(f"v_mov_b32 v{P+r}, 0")
    k("s_waitcnt vmcnt(17)")
    k("s_barrier")
    k.stamp(2)
    def rdK(buf, off):
        k(f"ds_read_b128 v[{K16[buf]}:{K16[buf]+3}], v{KA} offset:{off}")
        k(f"ds_read_b64 v[{K4[buf]}:{K4[buf]+1}], v{KB} offset:{off}")
    def rdV(buf, off):
        k("s_mov_b64 exec, s[34:35]")
        k(f"ds_read_b128 v[{V[buf]}:{V[buf]+3}], v{VA} offset:{off}")
        k(f"ds_read_b128 v[{V[buf]+4}:{V[buf]+7}], v{VA} offset:{off+640}")
        k("s_mov_b64 exec, -1")
    def M1(n): k(f"v_mfma_f32_32x32x16_bf16 v[{S[n]}:{S[n]+15}], v[{K16[n]}:{K16[n]+3}], v[{Q16}:{Q16+3}], 0")
    def M2(n): k(f"v_mfma_f32_32x32x8bf16_1k v[{S[n]}:{S[n]+15}], v[{K4[n]}:{K4[n]+1}], v[{Q4}:{Q4+1}], v[{S[n]}:{S[n]+15}]")
    def MPV(vb, f): k(f"v_mfma_f32_32x32x16_bf16 v[{O}:{O+15}], v[{V[vb]+4*f}:{V[vb]+4*f+3}], v[{P+4*f}:{P+4*f+3}], v[{O}:{O+15}]")
    def G(c, g):
        s = S[c] + 4 * g
        p = P + 2 * g
        if pack == "cvt":
            for i in range(4):
                k(f"v_exp_f32 v{s+i}, v{s+i}")
            k(f"v_cvt_pk_bf16_f32 v{p}, v{s}, v{s+1}")
            k(f"v_cvt_pk_bf16_f32 v{p+1}, v{s+2}, v{s+3}")
        else:
            k(f"v_exp_f32 v{p}, v{s+1}")
            k(f"v_exp_f32 v{s}, v{s}")
            k(f"v_exp_f32 v{p+1}, v{s+3}")
            k(f"v_exp_f32 v{s+2}, v{s+2}")
            k(f"v_mov_b32_sdwa v{p}, v{s} dst_sel:WORD_0 dst_unused:UNUSED_PRESERVE src0_sel:WORD_1")
            k(f"v_mov_b32_sdwa v{p+1}, v{s+2} dst_sel:WORD_0 dst_unused:UNUSED_PRESERVE src0_sel:WORD_1")
    rdK(0, 0)
    rdK(1, 2560)
    rdV(0, 0)
    k("s_waitcnt lgkmcnt(4)")
    M1(0)
    k("s_mov_b32 s36, 0")
    k("s_nop 7")
    k("s_nop 1")
    M2(0)
    k("s_nop 7")
    k("s_nop 3")
    k.lab("loop")
    k("s_cmp_eq_u32 s36, 1")
    k(f"s_cbranch_scc0 {k.ref('nosync')}")
    k("s_waitcnt vmcnt(0)")
    k("s_barrier")
    k.lab("nosync")
    k("s_cmp_eq_u32 s36, 7")
    k(f"s_mov_b32 s37, {(-7*20480) & 0xffffffff:#x}")
    k("s_cselect_b32 s37, s37, 20480")
    for t in range(8):
        c, n = t & 1, (t + 1) & 1
        k("s_waitcnt lgkmcnt(0)")
        M1(n)
        G(c, 0)
        MPV(n, 1)
        if t == 6:
            k(f"v_add_u32 v{KA}, s37, v{KA}")
            k(f"v_add_u32 v{KB}, s37, v{KB}")
        if t == 7:
            k(f"v_add_u32 v{VA}, s37, v{VA}")
        rdK(c, ((t + 2) % 8) * 2560)
        rdV(n, ((t + 1) % 8) * 2560)
        G(c, 1)
        M2(n)
        G(c, 2)
        MPV(c, 0)
        G(c, 3)
    k("s_add_u32 s36, s36, 1")
    k("s_cmp_lt_u32 s36, 8")
    k(f"s_cbranch_scc1 {k.ref('loop')}")
    k("s_nop 0")
    MPV(1, 1)
    k.stamp(3)
    k("s_waitcnt lgkmcnt(0)")
    k("s_nop 7")
    k("s_nop 3")
    k(f"v_mov_b32 v4, v{O+8}")
    k(f"v_mov_b32 v5, v{O+8}")
    k("v_mov_b32 v6, 0")
    k("s_nop 0")
    k("v_permlane32_swap_b32 v4, v5")
    for r in range(12):
        k(f"v_fma_f32 v6, v{O+r}, 0, v6")
    k(f"v_cmp_lt_f32 vcc, {f2u(2.0**-40):#x}, v5")
    k(f"v_cmp_gt_f32 s[38:39], {f2u(2.0**40):#x}, v5" if False else f"s_mov_b32 s40, {f2u(2.0**40):#x}")
    k("v_cmp_gt_f32 s[38:39], s40, v5")
    k("v_cmp_eq_f32 s[42:43], 0, v6")
    k("s_nop 3")
    k("s_and_b64 vcc, vcc, s[38:39]")
    k("s_and_b64 vcc, vcc, s[42:43]")
    if force_slow:
        k("s_mov_b64 vcc, 0")
    k("s_cmp_eq_u64 vcc, -1")
    k(f"s_cbranch_scc0 {k.ref('slow')}")
    k.lab("fin")
    k("v_rcp_f32 v5, v5")
    k("s_mul_i32 s40, s24, 5")
    k("v_lshrrev_b32 v7, 5, v0")
    k("v_add_u32 v7, s40, v7")
    k("v_lshrrev_b32 v6, 1, v7")
    k("v_lshlrev_b32 v6, 9, v6")
    k("v_and_b32 v7, 1, v7")
    k("v_lshl_add_u32 v6, v7, 3, v6")
    k("v_and_b32 v7, 31, v0")
    k("v_lshl_add_u32 v6, v7, 4, v6")
    k("s_mul_i32 s41, s25, 40960")
    k(f"s_add_u32 s41, s41, {WS_O}")
    for r in range(0, 12, 2):
        k(f"v_pk_mul_f32 v[{O+r}:{O+r+1}], v[{O+r}:{O+r+1}], v[4:5] op_sel:[0,1] op_sel_hi:[1,1]")
    k("s_nop 0")
    for j in range(6):
        k(f"v_cvt_pk_bf16_f32 v{16+j}, v{O+2*j}, v{O+2*j+1}")
    k("buffer_store_dwordx2 v[16:17], v6, s[12:15], s41 offen")
    k("buffer_store_dwordx2 v[18:19], v6, s[12:15], s41 offen offset:512")
    k("s_mov_b64 exec, 0xffffffff")
    k("buffer_store_dwordx2 v[20:21], v6, s[12:15], s41 offen offset:1024")
    k("s_waitcnt vmcnt(0)")
    k.stamp(4); k.stamp_flush(6, kidx, 5, 26)
    k.lab("end")
    k("s_endpgm")
    k.lab("slow")
    lane_addrs()
    MX = 88
    k(f"v_mov_b32 v{MX}, {f2u(-3.0e38):#x}")
    for r in range(16):
        k(f"v_mov_b32 v{O+r}, 0")
    k("s_mov_b32 s36, 0")
    k.lab("sl")
    rdK(0, 0)
    rdV(0, 0)
    k("s_waitcnt lgkmcnt(0)")
    M1(0)
    k("s_nop 7"); k("s_nop 1")
    M2(0)
    k("s_nop 7"); k("s_nop 3")
    s = S[0]
    k(f"v_max3_f32 v4, v{s}, v{s+1}, v{s+2}")
    for i in range(3, 15, 2):
        k(f"v_max3_f32 v4, v4, v{s+i}, v{s+i+1}")
    k(f"v_max_f32 v4, v4, v{s+15}")
    k("v_mov_b32 v5, v4")
    k("s_nop 1")
    k("v_permlane32_swap_b32 v4, v5")
    k("s_nop 1")
    k(f"v_max3_f32 v4, v4, v5, v{MX}")
    k(f"v_sub_f32 v5, v{MX}, v4")
    k("v_exp_f32 v5, v5")
    k(f"v_mov_b32 v{MX}, v4")
    for i in range(16):
        k(f"v_sub_f32 v{s+i}, v{s+i}, v4")
    for i in range(16):
        k(f"v_exp_f32 v{s+i}, v{s+i}")
    for r in range(12):
        k(f"v_mul_f32 v{O+r}, v{O+r}, v5")
    for j in range(8):
        k(f"v_cvt_pk_bf16_f32 v{P+j}, v{s+2*j}, v{s+2*j+1}")
    k(f"v_add_u32 v{KA}, 2560, v{KA}")
    k(f"v_add_u32 v{KB}, 2560, v{KB}")
    k(f"v_add_u32 v{VA}, 2560, v{VA}")
    k("s_nop 4")
    MPV(0, 0)
    MPV(0, 1)
    k("s_nop 7"); k("s_nop 3")
    k("s_add_u32 s36, s36, 1")
    k("s_cmp_lt_u32 s36, 64")
    k(f"s_cbranch_scc1 {k.ref('sl')}")
    k(f"v_mov_b32 v4, v{O+8}")
    k(f"v_mov_b32 v5, v{O+8}")
    k("s_nop 1")
    k("v_permlane32_swap_b32 v4, v5")
    k("s_nop 1")
    k(f"s_branch {k.ref('fin')}")
    return k


def l2_prefetch(k, items, half, idx, lw, tmp, vaddr, vdst, srd=12):
    k(f"v_lshlrev_b32 v{vaddr}, 7, v0")
    for n, (base, hb) in enumerate(items):
        per_wg = hb // 32
        per_w = per_wg // 4
        lines = (per_w + 127) // 128
        k(f"s_mul_i32 s{tmp}, s{half}, {hb}")
        k(f"s_mul_i32 s{tmp+1}, s{idx}, {per_wg}")
        k(f"s_add_u32 s{tmp}, s{tmp}, s{tmp+1}")
        k(f"s_mul_i32 s{tmp+1}, s{lw}, {per_w}")
        k(f"s_add_u32 s{tmp}, s{tmp}, s{tmp+1}")
        k(f"s_add_u32 s{tmp}, s{tmp}, {base}")
        done = 0
        while done < lines:
            n_ = min(64, lines - done)
            if n_ < 64:
                m = (1 << n_) - 1
                k(f"s_mov_b32 exec_lo, {m & 0xffffffff:#x}")
                k(f"s_mov_b32 exec_hi, {m >> 32:#x}")
            k(f"buffer_load_dword v{vdst}, v{vaddr}, s[{srd}:{srd+3}], s{tmp} offen")
            if n_ < 64:
                k("s_mov_b64 exec, -1")
            done += n_
            if done < lines:
                k(f"s_add_u32 s{tmp}, s{tmp}, {64*128}")
            vdst += 1

PF_ATT = [(WS_WO, 409600), (WS_W1, 983040), (WS_W2, 983040)]

def gen_attn2(name, kidx=0, pack="cvt", force_slow=False, sched=0, dbg=(), pf=0):
    NWG = 256
    LDS = 163840
    k = Kern(name, NWG, 512, LDS, vgpr=160)
    KA, KB, VA = 1, 2, 3
    Q16 = [8, 28]; Q4 = [12, 14]
    K16 = [16, 20]; K4 = [24, 26]
    V = [32, 40]
    S = [48, 64]
    P = 80
    O = [96, 112]
    k(f"s_cmp_ge_u32 s2, {NWG}")
    k(f"s_cbranch_scc1 {k.ref('end')}")
    k.stamp(0)
    k.karg(6, 80)
    wave_id(k, 26)
    k("s_and_b32 s20, s2, 7")
    k("s_lshr_b32 s21, s2, 3")
    k("s_lshr_b32 s22, s21, 3")
    k("s_lshl_b32 s23, s20, 2")
    k("s_add_u32 s24, s23, s22")
    k("v_lshlrev_b32 v4, 4, v0")
    k("s_cmp_lt_u32 s26, 4")
    k(f"s_cbranch_scc1 {k.ref('compute')}")
    k("s_sub_u32 s26, s26, 4")
    k("s_mul_i32 s28, s24, 163840")
    k(f"s_add_u32 s28, s28, {WS_KV}")
    k("s_mul_i32 s29, s26, 6144")
    k("s_mul_i32 s30, s26, 34816")
    k("s_add_u32 s30, s30, 24576")
    k("s_waitcnt lgkmcnt(0)")
    k.srd(12, 6, 0, WS_SIZE)
    k("s_mov_b32 m0, s29")
    k("s_add_u32 s31, s28, s29")
    for i in range(4):
        k(f"buffer_load_dwordx4 v4, s[12:15], s31 offen offset:{i*1024} lds")
    k("s_add_u32 m0, s29, 4096")
    k("s_add_u32 s31, s31, 4096")
    for i in range(2):
        k(f"buffer_load_dwordx4 v4, s[12:15], s31 offen offset:{i*1024} lds")
    k("s_add_u32 s28, s28, s30")
    def stB(g):
        k(f"s_add_u32 m0, s30, {g*4096}")
        k(f"s_add_u32 s31, s28, {g*4096}")
        for i in range(4 if g < 8 else 2):
            k(f"buffer_load_dwordx4 v4, s[12:15], s31 offen offset:{i*1024} lds")
    stB(0); stB(1)
    k.stamp(1)
    k("s_waitcnt vmcnt(8)")
    k.stamp(2)
    k("s_barrier")
    for g in range(2, 9):
        stB(g)
    k.stamp(3)
    k("s_waitcnt vmcnt(0)")
    k.stamp(4)
    k("s_barrier")
    if pf:
        k("s_and_b32 s40, s20, 1")
        l2_prefetch(k, PF_ATT[:pf], 40, 21, 26, 42, 5, 8)
        k("s_waitcnt vmcnt(0)")
    k("s_add_u32 s26, s26, 4")
    k.stamp_flush(6, kidx, 5, 26)
    k.lab("end")
    k("s_endpgm")
    k.lab("compute")
    k("s_and_b32 s25, s21, 7")
    k("s_lshl_b32 s25, s25, 3")
    k("s_lshl_b32 s23, s26, 1")
    k("s_add_u32 s25, s25, s23")
    k("s_lshl_b32 s27, s24, 6")
    k("s_add_u32 s27, s27, s25")
    k("s_mul_i32 s27, s27, 1280")
    k(f"s_add_u32 s27, s27, {WS_Q}")
    k("s_add_u32 s28, s27, 1280")
    k("v_and_b32 v5, 31, v0")
    k("v_lshlrev_b32 v6, 3, v5")
    for x in range(2):
        k(f"v_mov_b32 v{Q4[x]}, 0")
        k(f"v_mov_b32 v{Q4[x]+1}, 0")
    k("s_waitcnt lgkmcnt(0)")
    k.srd(12, 6, 0, WS_SIZE)
    k(f"buffer_load_dwordx4 v[{Q16[0]}:{Q16[0]+3}], v4, s[12:15], s27 offen")
    k(f"buffer_load_dwordx4 v[{Q16[1]}:{Q16[1]+3}], v4, s[12:15], s28 offen")
    k("s_mov_b64 exec, 0xffffffff")
    k(f"buffer_load_dwordx2 v[{Q4[0]}:{Q4[0]+1}], v6, s[12:15], s27 offen offset:1024")
    k(f"buffer_load_dwordx2 v[{Q4[1]}:{Q4[1]+1}], v6, s[12:15], s28 offen offset:1024")
    k("s_mov_b64 exec, -1")
    def lane_addrs():
        k("v_and_b32 v5, 31, v0")
        k("v_and_b32 v6, 0x13, v5")
        k("v_and_b32 v7, 4, v5")
        k("v_lshl_or_b32 v6, v7, 1, v6")
        k("v_and_b32 v7, 8, v5")
        k("v_lshrrev_b32 v7, 1, v7")
        k("v_or_b32 v6, v6, v7")
        k("v_lshrrev_b32 v7, 5, v0")
        k(f"v_lshlrev_b32 v{KA}, 9, v7")
        k(f"v_lshl_add_u32 v{KA}, v6, 4, v{KA}")
        k(f"v_lshlrev_b32 v{KB}, 3, v6")
        k(f"v_add_u32 v{KB}, 1024, v{KB}")
        k(f"v_mul_u32_u24 v{VA}, 320, v7")
        k(f"v_lshl_add_u32 v{VA}, v5, 4, v{VA}")
        k(f"v_add_u32 v{VA}, 1280, v{VA}")
    lane_addrs()
    k("v_cmp_eq_u32 vcc, 20, v5")
    k("v_mov_b32 v7, 0x3f803f80")
    k("s_mov_b32 s34, 0x000fffff")
    k("s_mov_b32 s35, 0x000fffff")
    k(f"v_cndmask_b32 v{V[0]}, 0, v7, vcc")
    for r in range(1, 16):
        k(f"v_mov_b32 v{V[0]+r}, v{V[0]}")
    for r in range(32):
        k(f"v_mov_b32 v{O[0]+r}, 0")
    for r in range(4, 8):
        k(f"v_mov_b32 v{P+r}, 0")
    k.stamp(1)
    k("s_waitcnt vmcnt(0)")
    k("s_barrier")
    k.stamp(2)
    def rdK(buf, off):
        return [f"ds_read_b128 v[{K16[buf]}:{K16[buf]+3}], v{KA} offset:{off}",
                f"ds_read_b64 v[{K4[buf]}:{K4[buf]+1}], v{KB} offset:{off}"]
    def rdV(buf, off):
        return ["s_mov_b64 exec, s[34:35]",
                f"ds_read_b128 v[{V[buf]}:{V[buf]+3}], v{VA} offset:{off}",
                f"ds_read_b128 v[{V[buf]+4}:{V[buf]+7}], v{VA} offset:{off+640}",
                "s_mov_b64 exec, -1"]
    def M1(x, kb): return f"v_mfma_f32_32x32x16_bf16 v[{S[x]}:{S[x]+15}], v[{K16[kb]}:{K16[kb]+3}], v[{Q16[x]}:{Q16[x]+3}], 0"
    def M2(x, kb): return f"v_mfma_f32_32x32x8bf16_1k v[{S[x]}:{S[x]+15}], v[{K4[kb]}:{K4[kb]+1}], v[{Q4[x]}:{Q4[x]+1}], v[{S[x]}:{S[x]+15}]"
    def MPV(x, vb, f): return f"v_mfma_f32_32x32x16_bf16 v[{O[x]}:{O[x]+15}], v[{V[vb]+4*f}:{V[vb]+4*f+3}], v[{P+4*f}:{P+4*f+3}], v[{O[x]}:{O[x]+15}]"
    def G(x, g, fill=()):
        s = S[x] + 4 * g
        p = P + 2 * g
        fill = list(fill)
        if pack == "cvt":
            ex = [f"v_exp_f32 v{s+i}, v{s+i}" for i in range(4)]
            pk = [f"v_cvt_pk_bf16_f32 v{p}, v{s}, v{s+1}", f"v_cvt_pk_bf16_f32 v{p+1}, v{s+2}, v{s+3}"]
        else:
            ex = [f"v_exp_f32 v{p}, v{s+1}", f"v_exp_f32 v{s}, v{s}", f"v_exp_f32 v{p+1}, v{s+3}", f"v_exp_f32 v{s+2}, v{s+2}"]
            pk = [f"v_mov_b32_sdwa v{p}, v{s} dst_sel:WORD_0 dst_unused:UNUSED_PRESERVE src0_sel:WORD_1",
                  f"v_mov_b32_sdwa v{p+1}, v{s+2} dst_sel:WORD_0 dst_unused:UNUSED_PRESERVE src0_sel:WORD_1"]
        for i in range(4):
            k(ex[i])
            if i < len(fill) and fill[i]:
                for f in (fill[i] if isinstance(fill[i], list) else [fill[i]]):
                    k(f)
        for x_ in pk: k(x_)
    for r in rdK(0, 0) + rdK(1, 2560) + rdV(0, 0): k(r)
    k("s_waitcnt lgkmcnt(4)")
    k(M1(0, 0))
    k("s_mov_b32 s36, 0")
    k("s_nop 7")
    k("s_nop 1")
    k(M2(0, 0))
    k("s_nop 7")
    k("s_nop 3")
    k.lab("loop")
    k("s_cmp_eq_u32 s36, 1")
    k(f"s_cbranch_scc0 {k.ref('nosync')}")
    k("s_barrier")
    k.lab("nosync")
    k("s_cmp_eq_u32 s36, 7")
    k(f"s_mov_b32 s37, {(-7*20480) & 0xffffffff:#x}")
    k("s_cselect_b32 s37, s37, 20480")
    L0 = len(k.L)
    for t in range(8):
        c, n = t & 1, (t + 1) & 1
        k("s_waitcnt lgkmcnt(0)")
        k(M1(1, c))
        G(0, 0)
        k(MPV(1, n, 1))
        if t == 7:
            k(f"v_add_u32 v{VA}, s37, v{VA}")
        rv = rdV(n, ((t + 1) % 8) * 2560)
        G(0, 1, fill=[rv])
        k(M2(1, c))
        if t == 6:
            k(f"v_add_u32 v{KA}, s37, v{KA}")
            k(f"v_add_u32 v{KB}, s37, v{KB}")
        rk = rdK(c, ((t + 2) % 8) * 2560)
        G(0, 2, fill=[rk[0], rk[1]])
        k(MPV(0, c, 0))
        G(0, 3)
        k(M1(0, n))
        G(1, 0)
        k(MPV(0, c, 1))
        G(1, 1)
        k(M2(0, n))
        G(1, 2)
        k(MPV(1, c, 0))
        G(1, 3)
    if dbg:
        body = k.L[L0:]
        def drop(l):
            l = l.strip()
            if "nods" in dbg and (l.startswith("ds_") or "exec" in l or l.startswith("s_waitcnt")): return True
            if "nomfma" in dbg and l.startswith("v_mfma"): return True
            if "nocvt" in dbg and (l.startswith("v_cvt") or l.startswith("v_mov_b32_sdwa")): return True
            if "noexp" in dbg and l.startswith("v_exp"): return True
            if "nom2" in dbg and "32x32x8" in l: return True
            if "nopv" in dbg and l.startswith(f"v_mfma_f32_32x32x16_bf16 v[{O[0]}") : return True
            if "nopv" in dbg and l.startswith(f"v_mfma_f32_32x32x16_bf16 v[{O[1]}") : return True
            return False
        k.L = k.L[:L0] + [l for l in body if not drop(l)]
    k("s_add_u32 s36, s36, 1")
    k("s_cmp_lt_u32 s36, 8")
    k(f"s_cbranch_scc1 {k.ref('loop')}")
    k("s_nop 0")
    k(MPV(1, 1, 1))
    k.stamp(3)
    k("s_waitcnt lgkmcnt(0)")
    k("s_nop 7")
    k("s_nop 3")
    L = [5, 7]
    k("v_mov_b32 v16, 0")
    for x in range(2):
        k(f"v_mov_b32 v{L[x]-1}, v{O[x]+8}")
        k(f"v_mov_b32 v{L[x]}, v{O[x]+8}")
    k("s_nop 1")
    for x in range(2):
        k(f"v_permlane32_swap_b32 v{L[x]-1}, v{L[x]}")
    for x in range(2):
        for r in range(12):
            k(f"v_fma_f32 v16, v{O[x]+r}, 0, v16")
    k(f"s_mov_b32 s40, {f2u(2.0**40):#x}")
    k(f"s_mov_b32 s41, {f2u(2.0**-40):#x}")
    k("v_cmp_eq_f32 vcc, 0, v16")
    k("v_cmp_lt_f32 s[42:43], s41, v5")
    k("v_cmp_gt_f32 s[44:45], s40, v5")
    k("v_cmp_lt_f32 s[46:47], s41, v7")
    k("v_cmp_gt_f32 s[48:49], s40, v7")
    k("s_nop 3")
    k("s_and_b64 vcc, vcc, s[42:43]")
    k("s_and_b64 vcc, vcc, s[44:45]")
    k("s_and_b64 vcc, vcc, s[46:47]")
    k("s_and_b64 vcc, vcc, s[48:49]")
    if force_slow:
        k("s_mov_b64 vcc, 0")
    k("s_cmp_eq_u64 vcc, -1")
    k(f"s_cbranch_scc0 {k.ref('slow')}")
    k.lab("fin")
    k("v_rcp_f32 v5, v5")
    k("v_rcp_f32 v7, v7")
    k("s_mul_i32 s40, s24, 5")
    k("v_lshrrev_b32 v17, 5, v0")
    k("v_add_u32 v17, s40, v17")
    k("v_lshrrev_b32 v16, 1, v17")
    k("v_lshlrev_b32 v16, 9, v16")
    k("v_and_b32 v17, 1, v17")
    k("v_lshl_add_u32 v16, v17, 3, v16")
    k("v_and_b32 v17, 31, v0")
    k("v_lshl_add_u32 v16, v17, 4, v16")
    k("s_mul_i32 s41, s25, 40960")
    k(f"s_add_u32 s41, s41, {WS_O}")
    k("s_add_u32 s42, s41, 40960")
    for x in range(2):
        for r in range(0, 12, 2):
            k(f"v_pk_mul_f32 v[{O[x]+r}:{O[x]+r+1}], v[{O[x]+r}:{O[x]+r+1}], v[{L[x]-1}:{L[x]}] op_sel:[0,1] op_sel_hi:[1,1]")
    for x in range(2):
        for j in range(6):
            k(f"v_cvt_pk_bf16_f32 v{20+6*x+j}, v{O[x]+2*j}, v{O[x]+2*j+1}")
    for x in range(2):
        k(f"buffer_store_dwordx2 v[{20+6*x}:{21+6*x}], v16, s[12:15], s{41+x} offen")
        k(f"buffer_store_dwordx2 v[{22+6*x}:{23+6*x}], v16, s[12:15], s{41+x} offen offset:512")
    k("s_mov_b64 exec, 0xffffffff")
    for x in range(2):
        k(f"buffer_store_dwordx2 v[{24+6*x}:{25+6*x}], v16, s[12:15], s{41+x} offen offset:1024")
    k("s_waitcnt vmcnt(0)")
    k.stamp(4); k.stamp_flush(6, kidx, 5, 26)
    k("s_endpgm")
    k.lab("slow")
    MX = 88
    for x in range(2):
        lane_addrs()
        k(f"v_mov_b32 v{MX}, {f2u(-3.0e38):#x}")
        for r in range(16):
            k(f"v_mov_b32 v{O[x]+r}, 0")
        k("s_mov_b32 s36, 0")
        k.lab(f"sl{x}")
        for r in rdK(0, 0) + rdV(0, 0): k(r)
        k("s_waitcnt lgkmcnt(0)")
        k(M1(x, 0))
        k("s_nop 7"); k("s_nop 1")
        k(M2(x, 0))
        k("s_nop 7"); k("s_nop 3")
        s = S[x]
        k(f"v_max3_f32 v4, v{s}, v{s+1}, v{s+2}")
        for i in range(3, 15, 2):
            k(f"v_max3_f32 v4, v4, v{s+i}, v{s+i+1}")
        k(f"v_max_f32 v4, v4, v{s+15}")
        k("v_mov_b32 v5, v4")
        k("s_nop 1")
        k("v_permlane32_swap_b32 v4, v5")
        k("s_nop 1")
        k(f"v_max3_f32 v4, v4, v5, v{MX}")
        k(f"v_sub_f32 v5, v{MX}, v4")
        k("v_exp_f32 v5, v5")
        k(f"v_mov_b32 v{MX}, v4")
        for i in range(16):
            k(f"v_sub_f32 v{s+i}, v{s+i}, v4")
        for i in range(16):
            k(f"v_exp_f32 v{s+i}, v{s+i}")
        for r in range(12):
            k(f"v_mul_f32 v{O[x]+r}, v{O[x]+r}, v5")
        for j in range(8):
            k(f"v_cvt_pk_bf16_f32 v{P+j}, v{s+2*j}, v{s+2*j+1}")
        k(f"v_add_u32 v{KA}, 2560, v{KA}")
        k(f"v_add_u32 v{KB}, 2560, v{KB}")
        k(f"v_add_u32 v{VA}, 2560, v{VA}")
        k("s_nop 4")
        k(MPV(x, 0, 0))
        k(MPV(x, 0, 1))
        k("s_nop 7"); k("s_nop 3")
        k("s_add_u32 s36, s36, 1")
        k("s_cmp_lt_u32 s36, 64")
        k(f"s_cbranch_scc1 {k.ref(f'sl{x}')}")
    for x in range(2):
        k(f"v_mov_b32 v{L[x]-1}, v{O[x]+8}")
        k(f"v_mov_b32 v{L[x]}, v{O[x]+8}")
    k("s_nop 1")
    for x in range(2):
        k(f"v_permlane32_swap_b32 v{L[x]-1}, v{L[x]}")
    k("s_nop 1")
    k(f"s_branch {k.ref('fin')}")
    return k


def gen_attn3(name, kidx=0, force_slow=False, pf=0, h=8, um=8, uh=8, pm=3, phl=0, b2=8, dbg=()):
    NWG = 256
    LDS = 163840
    TM = 64 - h
    assert TM % um == 0 and h % uh == 0 and b2 % um == 0 and um % 2 == 0 and uh % 2 == 0
    SLOT = 2688
    assert 8 * SLOT <= b2 * 2560 + 3840
    k = Kern(name, NWG, 512, LDS, vgpr=160)
    KA, KB, VA = 1, 2, 3
    Q16 = [8, 28]; Q4 = [12, 14]
    K16 = [16, 20]; K4 = [24, 26]
    V = [32, 40]
    S = [48, 64]
    P = 80
    O = [96, 112]
    k(f"s_cmp_ge_u32 s2, {NWG}")
    k(f"s_cbranch_scc1 {k.ref('end')}")
    k.stamp(0)
    k.karg(6, 80)
    wave_id(k, 26)
    k("s_and_b32 s20, s2, 7")
    k("s_lshr_b32 s21, s2, 3")
    k("s_lshr_b32 s22, s21, 3")
    k("s_lshl_b32 s23, s20, 2")
    k("s_add_u32 s24, s23, s22")
    k("v_lshlrev_b32 v4, 4, v0")
    k("s_and_b32 s33, s26, 3")
    k("s_mul_i32 s50, s24, 163840")
    k(f"s_add_u32 s50, s50, {WS_KV}")
    k("s_and_b32 s25, s21, 7")
    k("s_lshl_b32 s25, s25, 3")
    k("s_lshl_b32 s23, s33, 1")
    k("s_add_u32 s25, s25, s23")
    k("s_lshl_b32 s27, s24, 6")
    k("s_add_u32 s27, s27, s25")
    k("s_mul_i32 s27, s27, 1280")
    k(f"s_add_u32 s27, s27, {WS_Q}")
    k("s_add_u32 s28, s27, 1280")
    def q_loads():
        k("v_and_b32 v5, 31, v0")
        k("v_lshlrev_b32 v6, 3, v5")
        for x in range(2):
            k(f"v_mov_b32 v{Q4[x]}, 0")
            k(f"v_mov_b32 v{Q4[x]+1}, 0")
        k(f"buffer_load_dwordx4 v[{Q16[0]}:{Q16[0]+3}], v4, s[12:15], s27 offen")
        k(f"buffer_load_dwordx4 v[{Q16[1]}:{Q16[1]+3}], v4, s[12:15], s28 offen")
        k("s_mov_b64 exec, 0xffffffff")
        k(f"buffer_load_dwordx2 v[{Q4[0]}:{Q4[0]+1}], v6, s[12:15], s27 offen offset:1024")
        k(f"buffer_load_dwordx2 v[{Q4[1]}:{Q4[1]+1}], v6, s[12:15], s28 offen offset:1024")
        k("s_mov_b64 exec, -1")
    def lane_addrs():
        k("v_and_b32 v5, 31, v0")
        k("v_and_b32 v6, 0x13, v5")
        k("v_and_b32 v7, 4, v5")
        k("v_lshl_or_b32 v6, v7, 1, v6")
        k("v_and_b32 v7, 8, v5")
        k("v_lshrrev_b32 v7, 1, v7")
        k("v_or_b32 v6, v6, v7")
        k("v_lshrrev_b32 v7, 5, v0")
        k(f"v_lshlrev_b32 v{KA}, 9, v7")
        k(f"v_lshl_add_u32 v{KA}, v6, 4, v{KA}")
        k(f"v_lshlrev_b32 v{KB}, 3, v6")
        k(f"v_add_u32 v{KB}, 1024, v{KB}")
        k(f"v_mul_u32_u24 v{VA}, 320, v7")
        k(f"v_lshl_add_u32 v{VA}, v5, 4, v{VA}")
        k(f"v_add_u32 v{VA}, 1280, v{VA}")
    def init_regs():
        lane_addrs()
        k("v_cmp_eq_u32 vcc, 20, v5")
        k("v_mov_b32 v7, 0x3f803f80")
        k("s_mov_b32 s34, 0x000fffff")
        k("s_mov_b32 s35, 0x000fffff")
        k(f"v_cndmask_b32 v{V[0]}, 0, v7, vcc")
        for r in range(1, 16):
            k(f"v_mov_b32 v{V[0]+r}, v{V[0]}")
        for r in range(32):
            k(f"v_mov_b32 v{O[0]+r}, 0")
        for r in range(4, 8):
            k(f"v_mov_b32 v{P+r}, 0")
    def rdK(buf, off):
        return [f"ds_read_b128 v[{K16[buf]}:{K16[buf]+3}], v{KA} offset:{off}",
                f"ds_read_b64 v[{K4[buf]}:{K4[buf]+1}], v{KB} offset:{off}"]
    def rdV(buf, off):
        return ["s_mov_b64 exec, s[34:35]",
                f"ds_read_b128 v[{V[buf]}:{V[buf]+3}], v{VA} offset:{off}",
                f"ds_read_b128 v[{V[buf]+4}:{V[buf]+7}], v{VA} offset:{off+640}",
                "s_mov_b64 exec, -1"]
    def M1(x, kb): return f"v_mfma_f32_32x32x16_bf16 v[{S[x]}:{S[x]+15}], v[{K16[kb]}:{K16[kb]+3}], v[{Q16[x]}:{Q16[x]+3}], 0"
    def M2(x, kb): return f"v_mfma_f32_32x32x8bf16_1k v[{S[x]}:{S[x]+15}], v[{K4[kb]}:{K4[kb]+1}], v[{Q4[x]}:{Q4[x]+1}], v[{S[x]}:{S[x]+15}]"
    def MPV(x, vb, f): return f"v_mfma_f32_32x32x16_bf16 v[{O[x]}:{O[x]+15}], v[{V[vb]+4*f}:{V[vb]+4*f+3}], v[{P+4*f}:{P+4*f+3}], v[{O[x]}:{O[x]+15}]"
    def G(x, g, fill=()):
        s = S[x] + 4 * g
        p = P + 2 * g
        fill = list(fill)
        ex = [f"v_exp_f32 v{s+i}, v{s+i}" for i in range(4)]
        pk = [f"v_cvt_pk_bf16_f32 v{p}, v{s}, v{s+1}", f"v_cvt_pk_bf16_f32 v{p+1}, v{s+2}, v{s+3}"]
        for i in range(4):
            k(ex[i])
            if i < len(fill) and fill[i]:
                for f in (fill[i] if isinstance(fill[i], list) else [fill[i]]):
                    k(f)
        for x_ in pk: k(x_)
    def loop(tag, T, U, bar_after):
        NIT = T // U
        for r in rdK(0, 0) + rdK(1, 2560) + rdV(0, 0): k(r)
        k("s_waitcnt lgkmcnt(4)")
        k(M1(0, 0))
        k(f"s_mov_b32 s36, {NIT}")
        k("s_nop 7")
        k("s_nop 1")
        k(M2(0, 0))
        k("s_nop 7")
        k("s_nop 3")
        k.lab(f"loop{tag}")
        if bar_after is not None:
            k(f"s_cmp_eq_u32 s36, {NIT - bar_after // U}")
            k(f"s_cbranch_scc0 {k.ref('nosync' + tag)}")
            k("s_barrier")
            k.lab("nosync" + tag)
        k("s_cmp_eq_u32 s36, 1")
        k(f"s_cselect_b32 s37, 0, {U*2560}")
        for t in range(U):
            c, n = t & 1, (t + 1) & 1
            k("s_waitcnt lgkmcnt(0)")
            k(M1(1, c))
            G(0, 0)
            k(MPV(1, n, 1))
            if t == U - 1:
                k(f"v_add_u32 v{VA}, s37, v{VA}")
            rv = rdV(n, ((t + 1) % U) * 2560)
            G(0, 1, fill=[rv])
            k(M2(1, c))
            if t == U - 2:
                k(f"v_add_u32 v{KA}, s37, v{KA}")
                k(f"v_add_u32 v{KB}, s37, v{KB}")
            rk = rdK(c, ((t + 2) % U) * 2560)
            G(0, 2, fill=[rk[0], rk[1]])
            k(MPV(0, c, 0))
            G(0, 3)
            k(M1(0, n))
            G(1, 0)
            k(MPV(0, c, 1))
            G(1, 1)
            k(M2(0, n))
            G(1, 2)
            k(MPV(1, c, 0))
            G(1, 3)
        k("s_sub_u32 s36, s36, 1")
        k("s_cmp_lg_u32 s36, 0")
        k(f"s_cbranch_scc1 {k.ref('loop' + tag)}")
        k("s_nop 0")
        k(MPV(1, 1, 1))
    def finish(role):
        keep, give = role, 1 - role
        tg = "mh"[role]
        T_ = S[0]
        k.stamp(3)
        k(f"s_lshl_b32 s40, s33, 1")
        k(f"s_add_u32 s41, s40, {role}")
        k(f"s_add_u32 s40, s40, {1 - role}")
        k(f"s_mul_i32 s41, s41, {SLOT}")
        k(f"s_mul_i32 s40, s40, {SLOT}")
        k("v_lshlrev_b32 v4, 4, v0")
        k("v_and_b32 v5, 31, v0")
        k("v_lshlrev_b32 v5, 2, v5")
        k("v_add_u32 v16, s41, v4")
        k("v_add_u32 v17, s41, v5")
        k("v_add_u32 v18, s40, v4")
        k("v_add_u32 v19, s40, v5")
        for r in range(8, 12):
            k(f"v_mov_b32 v{T_+r}, 0")
        k("s_waitcnt lgkmcnt(0)")
        k("s_nop 7" if role == 0 else "s_nop 0")
        k(f"ds_write_b128 v16, v[{O[give]}:{O[give]+3}]")
        k(f"ds_write_b128 v16, v[{O[give]+4}:{O[give]+7}] offset:1024")
        k("s_mov_b64 exec, 0xffffffff")
        k(f"ds_write_b128 v16, v[{O[give]+8}:{O[give]+11}] offset:2048")
        k("s_not_b64 exec, exec")
        k(f"ds_write_b32 v17, v{O[give]+8} offset:2560")
        k("s_mov_b64 exec, -1")
        k("s_mul_i32 s42, s24, 5")
        k("v_lshrrev_b32 v21, 5, v0")
        k("v_add_u32 v21, s42, v21")
        k("v_lshrrev_b32 v20, 1, v21")
        k("v_lshlrev_b32 v20, 9, v20")
        k("v_and_b32 v21, 1, v21")
        k("v_lshl_add_u32 v20, v21, 3, v20")
        k("v_and_b32 v21, 31, v0")
        k("v_lshl_add_u32 v20, v21, 4, v20")
        k(f"s_add_u32 s51, s25, {keep}")
        k("s_mul_i32 s51, s51, 40960")
        k(f"s_add_u32 s51, s51, {WS_O}")
        k("s_waitcnt lgkmcnt(0)")
        k("s_barrier")
        k(f"ds_read_b128 v[{T_}:{T_+3}], v18")
        k(f"ds_read_b128 v[{T_+4}:{T_+7}], v18 offset:1024")
        k("s_mov_b64 exec, 0xffffffff")
        k(f"ds_read_b128 v[{T_+8}:{T_+11}], v18 offset:2048")
        k("s_not_b64 exec, exec")
        k(f"ds_read_b32 v{T_+8}, v19 offset:2560")
        k("s_mov_b64 exec, -1")
        Ox = O[keep]
        k("s_waitcnt lgkmcnt(2)")
        for r in range(8):
            k(f"v_add_f32 v{Ox+r}, v{Ox+r}, v{T_+r}")
        k("s_waitcnt lgkmcnt(0)")
        for r in range(8, 12):
            k(f"v_add_f32 v{Ox+r}, v{Ox+r}, v{T_+r}")
        k(f"v_mov_b32 v4, v{Ox+8}")
        k(f"v_mov_b32 v5, v{Ox+8}")
        k("v_mov_b32 v16, 0")
        k("s_nop 0")
        k("v_permlane32_swap_b32 v4, v5")
        for r in range(12):
            k(f"v_fma_f32 v16, v{Ox+r}, 0, v16")
        k(f"s_mov_b32 s40, {f2u(2.0**40):#x}")
        k(f"s_mov_b32 s41, {f2u(2.0**-40):#x}")
        k("v_cmp_eq_f32 vcc, 0, v16")
        k("v_cmp_lt_f32 s[42:43], s41, v5")
        k("v_cmp_gt_f32 s[44:45], s40, v5")
        k("s_nop 3")
        k("s_and_b64 vcc, vcc, s[42:43]")
        k("s_and_b64 vcc, vcc, s[44:45]")
        if force_slow:
            k("s_mov_b64 vcc, 0")
        k("s_cmp_eq_u64 vcc, -1")
        k(f"s_cbranch_scc0 {k.ref('slow' + tg)}")
        k.lab("fin" + tg)
        k("v_rcp_f32 v5, v5")
        k("s_nop 0")
        for r in range(0, 12, 2):
            k(f"v_pk_mul_f32 v[{Ox+r}:{Ox+r+1}], v[{Ox+r}:{Ox+r+1}], v[4:5] op_sel:[0,1] op_sel_hi:[1,1]")
        for j in range(6):
            k(f"v_cvt_pk_bf16_f32 v{22+j}, v{Ox+2*j}, v{Ox+2*j+1}")
        k("buffer_store_dwordx2 v[22:23], v20, s[12:15], s51 offen")
        k("buffer_store_dwordx2 v[24:25], v20, s[12:15], s51 offen offset:512")
        k("s_mov_b64 exec, 0xffffffff")
        k("buffer_store_dwordx2 v[26:27], v20, s[12:15], s51 offen offset:1024")
        k("s_waitcnt vmcnt(0)")
        k.stamp(4); k.stamp_flush(6, kidx, 5, 26)
        k("s_endpgm")
        k.lab("slow" + tg)
        MX = 88
        x = keep
        lane_addrs()
        k(f"v_mov_b32 v{MX}, {f2u(-3.0e38):#x}")
        for r in range(16):
            k(f"v_mov_b32 v{O[x]+r}, 0")
        k("s_mov_b32 s36, 0")
        k.lab(f"sl{tg}")
        k(f"buffer_load_dwordx4 v[{K16[0]}:{K16[0]+3}], v{KA}, s[12:15], s50 offen")
        k(f"buffer_load_dwordx2 v[{K4[0]}:{K4[0]+1}], v{KB}, s[12:15], s50 offen")
        k("s_mov_b64 exec, s[34:35]")
        k(f"buffer_load_dwordx4 v[{V[0]}:{V[0]+3}], v{VA}, s[12:15], s50 offen")
        k(f"buffer_load_dwordx4 v[{V[0]+4}:{V[0]+7}], v{VA}, s[12:15], s50 offen offset:640")
        k("s_mov_b64 exec, -1")
        k("s_waitcnt vmcnt(0)")
        k(M1(x, 0))
        k("s_nop 7"); k("s_nop 1")
        k(M2(x, 0))
        k("s_nop 7"); k("s_nop 3")
        s = S[x]
        k(f"v_max3_f32 v4, v{s}, v{s+1}, v{s+2}")
        for i in range(3, 15, 2):
            k(f"v_max3_f32 v4, v4, v{s+i}, v{s+i+1}")
        k(f"v_max_f32 v4, v4, v{s+15}")
        k("v_mov_b32 v5, v4")
        k("s_nop 1")
        k("v_permlane32_swap_b32 v4, v5")
        k("s_nop 1")
        k(f"v_max3_f32 v4, v4, v5, v{MX}")
        k(f"v_sub_f32 v5, v{MX}, v4")
        k("v_exp_f32 v5, v5")
        k(f"v_mov_b32 v{MX}, v4")
        for i in range(16):
            k(f"v_sub_f32 v{s+i}, v{s+i}, v4")
        for i in range(16):
            k(f"v_exp_f32 v{s+i}, v{s+i}")
        for r in range(12):
            k(f"v_mul_f32 v{O[x]+r}, v{O[x]+r}, v5")
        for j in range(8):
            k(f"v_cvt_pk_bf16_f32 v{P+j}, v{s+2*j}, v{s+2*j+1}")
        k(f"v_add_u32 v{KA}, 2560, v{KA}")
        k(f"v_add_u32 v{KB}, 2560, v{KB}")
        k(f"v_add_u32 v{VA}, 2560, v{VA}")
        k("s_nop 4")
        k(MPV(x, 0, 0))
        k(MPV(x, 0, 1))
        k("s_nop 7"); k("s_nop 3")
        k("s_add_u32 s36, s36, 1")
        k("s_cmp_lt_u32 s36, 64")
        k(f"s_cbranch_scc1 {k.ref(f'sl{tg}')}")
        k(f"v_mov_b32 v4, v{O[x]+8}")
        k(f"v_mov_b32 v5, v{O[x]+8}")
        k("s_nop 1")
        k("v_permlane32_swap_b32 v4, v5")
        k("s_nop 1")
        k(f"s_branch {k.ref('fin' + tg)}")
    k("s_cmp_lt_u32 s26, 4")
    k(f"s_cbranch_scc1 {k.ref('compute')}")
    k("s_mul_i32 s29, s33, 6144")
    k("s_mul_i32 s30, s33, 34816")
    k("s_add_u32 s30, s30, 24576")
    k("s_waitcnt lgkmcnt(0)")
    k.srd(12, 6, 0, WS_SIZE)
    k("s_mov_b32 m0, s29")
    k("s_add_u32 s31, s50, s29")
    for i in range(4):
        k(f"buffer_load_dwordx4 v4, s[12:15], s31 offen offset:{i*1024} lds")
    k("s_add_u32 m0, s29, 4096")
    k("s_add_u32 s31, s31, 4096")
    for i in range(2):
        k(f"buffer_load_dwordx4 v4, s[12:15], s31 offen offset:{i*1024} lds")
    k("s_add_u32 s32, s50, s30")
    def stB(g):
        k(f"s_add_u32 m0, s30, {g*4096}")
        k(f"s_add_u32 s31, s32, {g*4096}")
        for i in range(4 if g < 8 else 2):
            k(f"buffer_load_dwordx4 v4, s[12:15], s31 offen offset:{i*1024} lds")
    stB(0); stB(1)
    k.stamp(1)
    k("s_waitcnt vmcnt(8)")
    k("s_barrier")
    for g in range(2, 9):
        stB(g)
    q_loads()
    init_regs()
    k(f"v_add_u32 v{KA}, {TM*2560}, v{KA}")
    k(f"v_add_u32 v{KB}, {TM*2560}, v{KB}")
    k(f"v_add_u32 v{VA}, {TM*2560}, v{VA}")
    k("s_waitcnt vmcnt(0)")
    k("s_barrier")
    k.stamp(2)
    if pf:
        k("s_and_b32 s40, s20, 1")
        l2_prefetch(k, PF_ATT[:pf], 40, 21, 33, 42, 128, 129)
    if phl != 0: k(f"s_setprio {phl}")
    loop("h", h, uh, None)
    finish(1)
    k.lab("end")
    k("s_endpgm")
    k.lab("compute")
    if pm != 0: k(f"s_setprio {pm}")
    k("s_waitcnt lgkmcnt(0)")
    k.srd(12, 6, 0, WS_SIZE)
    q_loads()
    init_regs()
    k.stamp(1)
    k("s_waitcnt vmcnt(0)")
    k("s_barrier")
    k.stamp(2)
    loop("m", TM, um, b2)
    finish(0)
    return k
```

```python
from dsl import *
import struct
def f2u(x):
    return struct.unpack("<I", struct.pack("<f", x))[0]

KB = 1024
WS_WQ = 0
WS_W1 = 3 * MB
WS_WO = 5 * MB
WS_W2 = 6 * MB
WS_CSQ = 8 * MB
WS_CS1 = 8 * MB + 128 * KB
WS_ST0 = 8 * MB + 256 * KB
WS_ST1 = 8 * MB + 512 * KB
WS_X0 = 9 * MB
WS_X1 = 12 * MB
WS_X2 = 15 * MB
WS_O = 18 * MB
WS_Q = 21 * MB
WS_KV = 24 * MB
WS_H = 30 * MB
X_BYTES = 2048 * 640 * 2
H_BYTES = 2048 * 1536 * 2
ST_BYTES = 16 * 2048 * 8
Q_BYTES = 32 * 64 * 1280
KV_BYTES = 32 * 64 * 2560
WS_SIZE = 40 * MB
QSCALE = (20 ** -0.5) * 1.4426950408889634
NCSP = 10

def wave_id(k, sreg, vtmp=1):
    k(f"v_lshrrev_b32 v{vtmp}, 6, v0")
    k("s_nop 0")
    k(f"v_readfirstlane_b32 s{sreg}, v{vtmp}")
    k("v_and_b32 v0, 63, v0")

def gen_prep():
    NWG = 220
    k = Kern("prep_kernel", NWG, 512, 4 * 8192, vgpr=64)
    k(f"s_cmp_ge_u32 s2, {NWG}")
    k(f"s_cbranch_scc1 {k.ref('end')}")
    k.karg(4, 0)
    k.karg(6, 8)
    k.karg(8, 16)
    k.karg(10, 32)
    k.karg(12, 48)
    k.karg(14, 80)
    wave_id(k, 26)
    k("s_waitcnt lgkmcnt(0)")
    k.srd(16, 14, 0, WS_SIZE)
    k("s_cmp_ge_u32 s26, 4")
    k(f"s_cbranch_scc1 {k.ref('stats')}")
    k("s_lshl_b32 s3, s2, 2")
    k("s_add_u32 s3, s3, s26")
    def setup(lbl, lo, ncg, ptr, size, pitch, TN, K, dst, cs, csp):
        k.lab(lbl)
        k(f"s_sub_u32 s3, s3, {lo}")
        k.srd(20, ptr, 0, size)
        k(f"s_mov_b32 s27, {pitch}")
        k(f"s_mov_b32 s28, {(65536 + TN - 1)//TN}")
        k(f"s_mov_b32 s29, {TN}")
        k(f"s_mov_b32 s30, {K//8*TN*16}")
        k(f"s_mov_b32 s31, {dst}")
        k(f"s_mul_i32 s32, s3, {(65536 + ncg - 1)//ncg}")
        k("s_lshr_b32 s32, s32, 16")
        k(f"s_mul_i32 s33, s32, {ncg}")
        k("s_sub_u32 s33, s3, s33")
        k(f"s_mov_b32 s34, {cs if cs is not None else 0xffffffff:#x}")
        k(f"s_mov_b32 s35, {csp}")
        k(f"s_branch {k.ref('go')}")
    k("s_cmp_ge_u32 s3, 640"); k(f"s_cbranch_scc1 {k.ref('m_w2')}")
    k("s_cmp_ge_u32 s3, 540"); k(f"s_cbranch_scc1 {k.ref('m_wo')}")
    k("s_cmp_ge_u32 s3, 300"); k(f"s_cbranch_scc1 {k.ref('m_w1')}")
    setup("m_wq", 0, 30, 6, 640 * 3840, 3840, 128, 640, WS_WQ, WS_CSQ, 1920 * 4)
    setup("m_w1", 300, 24, 10, 640 * 3072, 3072, 96, 640, WS_W1, WS_CS1, 1536 * 4)
    setup("m_wo", 540, 10, 8, 640 * 1280, 1280, 80, 640, WS_WO, None, 0)
    setup("m_w2", 640, 10, 12, 1536 * 1280, 1280, 80, 1536, WS_W2, None, 0)
    k.lab("go")
    k("v_lshrrev_b32 v2, 3, v0")
    k("v_mul_lo_u32 v2, v2, s27")
    k("v_and_b32 v3, 7, v0")
    k("v_lshl_add_u32 v2, v3, 4, v2")
    k("s_lshl_b32 s36, s32, 6")
    k("s_mul_i32 s36, s36, s27")
    k("s_lshl_b32 s37, s33, 7")
    k("s_add_u32 s36, s36, s37")
    k("s_lshl_b32 s38, s27, 3")
    k("s_lshl_b32 s39, s26, 13")
    for j in range(8):
        k(f"s_add_u32 m0, s39, {j*1024}")
        k("s_nop 0")
        k("buffer_load_dwordx4 v2, s[20:23], s36 offen lds")
        if j < 7:
            k("s_add_u32 s36, s36, s38")
    k("s_lshl_b32 s40, s33, 6")
    k("v_add_u32 v4, s40, v0")
    k("v_mul_lo_u32 v5, v4, s28")
    k("v_lshrrev_b32 v5, 16, v5")
    k("v_mul_lo_u32 v6, v5, s29")
    k("v_sub_u32 v6, v4, v6")
    k("v_mul_lo_u32 v5, v5, s30")
    k("v_lshl_add_u32 v5, v6, 4, v5")
    k("s_lshl_b32 s41, s29, 4")
    k("s_lshl_b32 s42, s32, 3")
    k("s_mul_i32 s42, s42, s41")
    k("s_add_u32 s42, s42, s31")
    k("v_bfe_u32 v7, v0, 2, 2")
    k("v_lshlrev_b32 v7, 7, v7")
    k("v_lshrrev_b32 v8, 4, v0")
    k("v_lshl_add_u32 v7, v8, 5, v7")
    k("v_and_b32 v8, 3, v0")
    k("v_lshl_add_u32 v7, v8, 3, v7")
    k("v_add_u32 v7, s39, v7")
    k("v_mov_b32 v10, 0")
    for ku in range(8):
        k(f"s_waitcnt vmcnt({7-ku if ku == 0 else 7})") if False else None
    for ku in range(8):
        k("s_waitcnt vmcnt(7)")
        r = 16 + 4 * ku
        k(f"ds_read_b64_tr_b16 v[{r}:{r+1}], v7 offset:{ku*1024}")
        k(f"ds_read_b64_tr_b16 v[{r+2}:{r+3}], v7 offset:{ku*1024+512}")
        k("s_waitcnt lgkmcnt(0)")
        k(f"buffer_store_dwordx4 v[{r}:{r+3}], v5, s[16:19], s42 offen")
        if ku < 7:
            k("s_add_u32 s42, s42, s41")
    k("s_cmp_eq_u32 s34, 0xffffffff")
    k(f"s_cbranch_scc1 {k.ref('fin')}")
    for i in range(32):
        r = 16 + i
        k(f"v_lshlrev_b32 v8, 16, v{r}")
        k(f"v_and_b32 v9, 0xffff0000, v{r}")
        k("v_add_f32 v10, v10, v8")
        k("v_add_f32 v10, v10, v9")
    k("s_mul_i32 s43, s32, s35")
    k("s_add_u32 s43, s43, s34")
    k("v_lshlrev_b32 v4, 2, v4")
    k("buffer_store_dword v10, v4, s[16:19], s43 offen")
    k.lab("fin")
    k("s_waitcnt vmcnt(0)")
    k("s_endpgm")
    k.lab("stats")
    k("s_cmp_ge_u32 s2, 128")
    k(f"s_cbranch_scc1 {k.ref('end')}")
    k.srd(20, 4, 0, X_BYTES)
    k("s_sub_u32 s26, s26, 4")
    k("s_lshl_b32 s3, s2, 4")
    k("s_lshl_b32 s27, s26, 2")
    k("s_add_u32 s3, s3, s27")
    k("v_lshrrev_b32 v1, 4, v0")
    k("v_add_u32 v1, s3, v1")
    k("v_and_b32 v2, 15, v0")
    k("v_mul_u32_u24 v3, 1280, v1")
    k("v_lshl_add_u32 v3, v2, 4, v3")
    for i in range(5):
        k(f"buffer_load_dwordx4 v[{8+4*i}:{11+4*i}], v3, s[20:23], 0 offen offset:{256*i}")
    k("v_lshrrev_b32 v30, 5, v1")
    k("v_mul_u32_u24 v30, 40960, v30")
    k("v_and_b32 v31, 31, v1")
    k("v_lshl_add_u32 v30, v31, 4, v30")
    k("v_lshl_add_u32 v30, v2, 9, v30")
    k("v_mov_b32 v4, 0")
    k("v_mov_b32 v5, 0")
    for i in range(5):
        k(f"s_waitcnt vmcnt(4)")
        k(f"s_mov_b32 s28, {WS_X0 + i*8192}")
        k(f"buffer_store_dwordx4 v[{8+4*i}:{11+4*i}], v30, s[16:19], s28 offen")
        for j in range(4):
            r = 8 + 4 * i + j
            k(f"v_lshlrev_b32 v6, 16, v{r}")
            k(f"v_and_b32 v7, 0xffff0000, v{r}")
            k("v_add_f32 v4, v4, v6")
            k("v_fmac_f32 v5, v6, v6")
            k("v_add_f32 v4, v4, v7")
            k("v_fmac_f32 v5, v7, v7")
    for sh in (8, 4, 2, 1):
        k("s_nop 1")
        k(f"v_add_f32_dpp v4, v4, v4 row_ror:{sh} row_mask:0xf bank_mask:0xf")
        k(f"v_add_f32_dpp v5, v5, v5 row_ror:{sh} row_mask:0xf bank_mask:0xf")
    k("v_lshlrev_b32 v3, 3, v1")
    k("v_cmp_eq_u32 vcc, 0, v2")
    k("s_and_saveexec_b64 s[30:31], vcc")
    k(f"s_mov_b32 s28, {WS_ST0}")
    k("buffer_store_dwordx2 v[4:5], v3, s[16:19], s28 offen")
    k("s_waitcnt vmcnt(0)")
    k.lab("end")
    k("s_endpgm")
    return k

def ring_loader(k, NCH, NSLOT, dma, nD, pre_b0=None, post_b0=None, first=2):
    for c_ in range(first):
        dma(c_)
    k(f"s_waitcnt vmcnt({nD*(first-1)})")
    if pre_b0: pre_b0()
    k("s_barrier")
    issued = first
    if post_b0: post_b0()
    for i in range(1, NCH):
        while issued < NCH and issued <= i - 2 + NSLOT:
            dma(issued); issued += 1
        k(f"s_waitcnt vmcnt({(issued - 1 - i) * nD})")
        k("s_barrier")

def gen_gemmA(name, kind, layer, kidx=0, dbg=(), first=2):
    if kind == "qkv":
        NWG, NB, TB, TN = 240, 2, 2, 128
        WS_W, XSRC, ST, NPART, CSP, NCOL = WS_WQ, (WS_X0 if layer == 0 else WS_X2), WS_ST0, (1 if layer == 0 else 16), WS_CSQ, 1920
    else:
        NWG, NB, TB, TN = 256, 3, 1, 96
        WS_W, XSRC, ST, NPART, CSP, NCOL = WS_W1, WS_X1, WS_ST1, 16, WS_CS1, 1536
    WB = TN * 128
    SLOT = WB + 16384
    NSLOT = 4
    NCH = 10
    STATS = NSLOT * SLOT
    LDS = STATS + 2048
    k = Kern(name, NWG, 512, LDS, vgpr=256)
    k(f"s_cmp_ge_u32 s2, {NWG}")
    k(f"s_cbranch_scc1 {k.ref('end')}")
    k.stamp(0)
    k.karg(6, 80)
    if kind == "w1":
        k.karg(8, 40)
    wave_id(k, 26)
    k("s_and_b32 s20, s2, 7")
    k("s_lshr_b32 s21, s2, 3")
    if kind == "qkv":
        k("s_and_b32 s22, s20, 1")
        k("s_mul_i32 s22, s22, 30")
        k("s_add_u32 s22, s22, s21")
        k("s_lshr_b32 s25, s22, 2")
        k("s_and_b32 s22, s22, 3")
    else:
        k("s_and_b32 s22, s20, 1")
        k("s_lshl_b32 s22, s22, 3")
        k("s_lshr_b32 s23, s21, 2")
        k("s_add_u32 s25, s22, s23")
        k("s_and_b32 s22, s21, 3")
    k("s_lshr_b32 s23, s20, 1")
    k("s_lshl_b32 s23, s23, 2")
    k("s_add_u32 s24, s23, s22")
    k("s_cmp_lt_u32 s26, 4")
    k(f"s_cbranch_scc1 {k.ref('compute')}")

    k("s_sub_u32 s26, s26, 4")
    k("v_lshlrev_b32 v1, 4, v0")
    nW = WB // 4096
    k(f"s_mul_i32 s40, s25, {80*TN*16}")
    k(f"s_mul_i32 s41, s26, {nW*1024}")
    k("s_add_u32 s40, s40, s41")
    k(f"s_add_u32 s40, s40, {WS_W}")
    k("s_mov_b32 s42, s41")
    k("s_lshl_b32 s43, s24, 2")
    k("s_add_u32 s43, s43, s26")
    k("s_mul_i32 s43, s43, 40960")
    k(f"s_add_u32 s43, s43, {XSRC}")
    k("s_lshl_b32 s44, s26, 12")
    k(f"s_add_u32 s44, s44, {WB}")
    k("s_waitcnt lgkmcnt(0)")
    k.srd(12, 6, 0, WS_SIZE)
    def dma(ch):
        slot = ch % NSLOT
        k(f"s_add_u32 m0, s42, {slot*SLOT}")
        k(f"s_add_u32 s45, s40, {ch*WB}")
        for i in range(nW):
            k(f"buffer_load_dwordx4 v1, s[12:15], s45 offen offset:{i*1024} lds")
        k(f"s_add_u32 m0, s44, {slot*SLOT}")
        k(f"s_add_u32 s45, s43, {ch*4096}")
        for i in range(4):
            k(f"buffer_load_dwordx4 v1, s[12:15], s45 offen offset:{i*1024} lds")
    nD = nW + 4
    k.stamp(1)
    dma(0)
    k("v_and_b32 v2, 31, v0")
    k("v_lshrrev_b32 v3, 5, v0")
    k("s_lshl_b32 s46, s24, 7")
    k("s_lshl_b32 s47, s26, 5")
    k("s_add_u32 s46, s46, s47")
    k("v_add_u32 v4, s46, v2")
    k("v_lshlrev_b32 v4, 3, v4")
    nst = 0
    if NPART == 16:
        k("v_lshl_add_u32 v4, v3, 17, v4")
        for p in range(8):
            k(f"s_mov_b32 s47, {ST + p*16384}")
            k(f"buffer_load_dwordx2 v[{16+2*p}:{17+2*p}], v4, s[12:15], s47 offen")
        nst = 8
    else:
        k(f"s_mov_b32 s47, {ST}")
        k("buffer_load_dwordx2 v[16:17], v4, s[12:15], s47 offen")
        nst = 1
    k("s_lshl_b32 s47, s26, 5")
    k("v_add_u32 v5, s47, v2")
    k(f"s_mul_i32 s47, s25, {TN}")
    k("v_add_u32 v6, s47, v5")
    k("v_lshlrev_b32 v7, 2, v6")
    k(f"v_mul_u32_u24 v8, {5*NCOL*4}, v3")
    k("v_add_u32 v7, v7, v8")
    for p in range(5):
        k(f"s_mov_b32 s47, {CSP + p*NCOL*4}")
        k(f"buffer_load_dword v{32+p}, v7, s[12:15], s47 offen")
    nst += 5
    if kind == "w1":
        k.srd(16, 8, 0, 1536 * 2)
        k("v_lshlrev_b32 v9, 1, v6")
        k("buffer_load_ushort v38, v9, s[16:19], 0 offen")
        nst += 1
    for c_ in range(1, first):
        dma(c_)
    k(f"s_waitcnt vmcnt({nD*(first-1)})")
    k.stamp(2)
    k("s_barrier")
    if NPART == 16:
        for p in range(1, 8):
            k(f"v_add_f32 v16, v16, v{16+2*p}")
            k(f"v_add_f32 v17, v17, v{17+2*p}")
        k("v_mov_b32 v18, v16")
        k("v_mov_b32 v19, v17")
        k("s_nop 1")
        k("v_permlane32_swap_b32 v16, v18")
        k("v_permlane32_swap_b32 v17, v19")
        k("s_nop 1")
        k("v_add_f32 v16, v16, v18")
        k("v_add_f32 v17, v17, v19")
    k(f"v_mul_f32 v16, {f2u(1/640):#x}, v16")
    k(f"v_mul_f32 v17, {f2u(1/640):#x}, v17")
    k("v_fma_f32 v17, -v16, v16, v17")
    k("v_max_f32 v17, 0, v17")
    k(f"v_add_f32 v18, {f2u(1e-5):#x}, v17")
    k("v_rsq_f32 v18, v18")
    if kind == "w1":
        k("s_nop 0")
        k("v_mul_f32 v19, v18, v18")
        k("v_mul_f32 v19, v19, v17")
        k(f"v_add_f32 v19, {f2u(1e-5):#x}, v19")
        k("v_rsq_f32 v19, v19")
        k("s_nop 0")
        k("v_mul_f32 v18, v18, v19")
    else:
        k("s_cmp_lt_u32 s25, 5")
        k(f"s_cselect_b32 s46, {f2u(QSCALE):#x}, 1.0")
        k("v_mul_f32 v18, s46, v18")
    k("s_nop 0")
    k("v_mul_f32 v19, v18, v16")
    for p in range(1, 5):
        k(f"v_add_f32 v32, v32, v{32+p}")
    k("v_mov_b32 v33, v32")
    k("s_nop 1")
    k("v_permlane32_swap_b32 v32, v33")
    k("s_nop 1")
    k("v_add_f32 v32, v32, v33")
    k("v_cmp_eq_u32 vcc, 0, v3")
    k("s_lshl_b32 s47, s26, 7")
    k("v_lshlrev_b32 v2, 2, v2")
    k("v_add_u32 v2, s47, v2")
    k(f"v_add_u32 v2, {STATS}, v2")
    k("v_lshl_add_u32 v2, v3, 9, v2")
    k("v_cndmask_b32 v18, v19, v18, vcc")
    if kind == "w1":
        k("v_lshlrev_b32 v38, 16, v38")
        k("v_cndmask_b32 v32, v38, v32, vcc")
    k("ds_write_b32 v2, v18")
    k("ds_write_b32 v2, v32 offset:1024")
    k("s_waitcnt lgkmcnt(0)")
    issued = first
    for i in range(1, NCH):
        while issued < NCH and issued <= i - 2 + NSLOT:
            dma(issued); issued += 1
        k(f"s_waitcnt vmcnt({(issued - 1 - i) * nD})")
        k("s_barrier")
    k.stamp(4)
    k("s_add_u32 s26, s26, 4")
    k.stamp_flush(6, kidx, 5, 26)
    k.lab("end")
    k("s_endpgm")

    k.lab("compute")
    ACC = 64
    FA = [128, 128 + 4 * NB]
    FB = [160, 160 + 4 * TB]
    AW, AX = 1, 3
    HH, TL = 17, 16
    if kind == "qkv":
        k("s_and_b32 s27, s26, 1")
        k("s_lshr_b32 s36, s26, 1")
    else:
        k("s_mov_b32 s27, 0")
        k("s_mov_b32 s36, s26")
    k(f"v_lshrrev_b32 v{HH}, 5, v0")
    k(f"v_and_b32 v{TL}, 31, v0")
    k(f"v_mul_u32_u24 v20, {TN*16}, v{HH}")
    k(f"v_lshl_add_u32 v20, v{TL}, 4, v20")
    k(f"s_mul_i32 s37, s27, {NB*512}")
    k(f"v_add_u32 v{AW}, s37, v20")
    k(f"v_add_u32 v{AW+1}, {2*SLOT}, v{AW}")
    k(f"v_lshlrev_b32 v20, 4, v0")
    k(f"s_mul_i32 s37, s36, {TB*4096}")
    k(f"s_add_u32 s37, s37, {WB}")
    k(f"v_add_u32 v{AX}, s37, v20")
    k(f"v_add_u32 v{AX+1}, {2*SLOT}, v{AX}")

    def reads(step):
        ch, ks = divmod(step, 4)
        slot = ch % NSLOT
        half, sl = divmod(slot, 2)
        st = step & 1
        out = []
        for nb in range(NB):
            d = FA[st] + nb * 4
            out.append(f"ds_read_b128 v[{d}:{d+3}], v{AW+half} offset:{sl*SLOT + ks*2*TN*16 + nb*512}")
        for tb in range(TB):
            d = FB[st] + tb * 4
            out.append(f"ds_read_b128 v[{d}:{d+3}], v{AX+half} offset:{sl*SLOT + ks*1024 + tb*4096}")
        return out

    def mainloop(swap):
        k.stamp(1)
        k("s_barrier")
        k.stamp(2)
        for r in reads(0):
            k(r)
        NS = NCH * 4
        for step in range(NS):
            st = step & 1
            k("s_waitcnt lgkmcnt(0)")
            if step % 4 == 3 and step + 1 < NS:
                k("s_barrier")
            rd = reads(step + 1) if step + 1 < NS else []
            mf = []
            for nb in range(NB):
                for tb in range(TB):
                    d = ACC + (nb * TB + tb) * 16
                    a = FA[st] + nb * 4
                    b = FB[st] + tb * 4
                    c = "0" if step == 0 else f"v[{d}:{d+15}]"
                    if swap:
                        mf.append(f"v_mfma_f32_32x32x16_bf16 v[{d}:{d+15}], v[{b}:{b+3}], v[{a}:{a+3}], {c}")
                    else:
                        mf.append(f"v_mfma_f32_32x32x16_bf16 v[{d}:{d+15}], v[{a}:{a+3}], v[{b}:{b+3}], {c}")
            ri = 0
            for i, m in enumerate(mf):
                if "nomfma" not in dbg: k(m)
                for r in rd[ri:ri + 2]:
                    if "nords" not in dbg: k(r)
                ri += 2
            assert ri >= len(rd)
        k.stamp(3)

    k("s_waitcnt lgkmcnt(0)")
    if kind == "qkv":
        k("s_cmp_ge_u32 s25, 10")
        k(f"s_cbranch_scc1 {k.ref('vpath')}")
        pre_qk(k, HH, TL)
        mainloop(False)
        epi_qk(k, ACC, STATS, HH, TL)
        k.stamp(4); k.stamp_flush(6, kidx, 5, 26)
        k("s_endpgm")
        k.lab("vpath")
        pre_v(k, HH, TL)
        mainloop(True)
        epi_v(k, ACC, STATS, HH, TL)
        k.stamp(4); k.stamp_flush(6, kidx, 5, 26)
        k("s_endpgm")
    else:
        mainloop(False)
        epi_w1(k, ACC, STATS, HH, TL)
        k.stamp(4); k.stamp_flush(6, kidx, 5, 26)
        k("s_endpgm")
    return k


def gen_qkv_raw(name, kidx=0, dbg=(), first=2):
    NWG, NB, TB, TN = 240, 2, 2, 128
    WB = 16384
    SLOT = 2 * WB
    NSLOT = 4
    NCH = 10
    STATS = NSLOT * SLOT
    LDS = STATS + 2048
    k = Kern(name, NWG, 512, LDS, vgpr=256)
    k(f"s_cmp_ge_u32 s2, {NWG}")
    k(f"s_cbranch_scc1 {k.ref('end')}")
    k.stamp(0)
    k.karg(8, 0)
    k.karg(10, 8)
    k.karg(6, 80)
    wave_id(k, 26)
    k("s_and_b32 s20, s2, 7")
    k("s_lshr_b32 s21, s2, 3")
    k("s_and_b32 s22, s20, 1")
    k("s_mul_i32 s22, s22, 30")
    k("s_add_u32 s22, s22, s21")
    k("s_lshr_b32 s25, s22, 2")
    k("s_and_b32 s22, s22, 3")
    k("s_lshr_b32 s23, s20, 1")
    k("s_lshl_b32 s23, s23, 2")
    k("s_add_u32 s24, s23, s22")
    k("s_cmp_lt_u32 s26, 4")
    k(f"s_cbranch_scc1 {k.ref('compute')}")
    k("s_sub_u32 s26, s26, 4")
    VW, VX = 4, 8
    k("v_lshrrev_b32 v1, 4, v0")
    k("v_and_b32 v2, 15, v0")
    k("v_lshlrev_b32 v3, 2, v1")
    k("v_xor_b32 v2, v2, v3")
    k("v_mul_u32_u24 v1, 3840, v1")
    k(f"v_lshl_add_u32 v{VW}, v2, 4, v1")
    for i in range(1, 4):
        k(f"v_add_u32 v{VW+i}, {4*3840-1024}, v{VW+i-1}")
    k("v_lshrrev_b32 v1, 3, v0")
    k("v_and_b32 v2, 7, v0")
    k("v_lshrrev_b32 v3, 1, v1")
    k("v_xor_b32 v2, v2, v3")
    k("v_mul_u32_u24 v1, 1280, v1")
    k(f"v_lshl_add_u32 v{VX}, v2, 4, v1")
    k("v_xor_b32 v2, 4, v2")
    k("v_lshl_add_u32 v2, v2, 4, v1")
    k(f"v_add_u32 v{VX+1}, {8*1280-1024}, v2")
    k(f"v_add_u32 v{VX+2}, {2*(8*1280-1024)}, v{VX}")
    k(f"v_add_u32 v{VX+3}, {3*(8*1280-1024)}, v2")
    k("s_lshl_b32 s40, s25, 8")
    k(f"s_mul_i32 s41, s26, {16*3840}")
    k("s_add_u32 s40, s40, s41")
    k("s_lshl_b32 s42, s26, 12")
    k("s_lshl_b32 s43, s24, 2")
    k("s_add_u32 s43, s43, s26")
    k(f"s_mul_i32 s43, s43, {32*1280}")
    k(f"s_add_u32 s44, s42, {WB}")
    k("s_waitcnt lgkmcnt(0)")
    k.srd(12, 10, 0, 640 * 3840)
    k.srd(16, 8, 0, X_BYTES)
    def dma(ch):
        slot = ch % NSLOT
        k(f"s_add_u32 m0, s42, {slot*SLOT}")
        k(f"s_add_u32 s45, s40, {ch*64*3840}")
        for i in range(4):
            k(f"buffer_load_dwordx4 v{VW+i}, s[12:15], s45 offen offset:{i*1024} lds")
        k(f"s_add_u32 m0, s44, {slot*SLOT}")
        k(f"s_add_u32 s45, s43, {ch*128}")
        for i in range(4):
            k(f"buffer_load_dwordx4 v{VX+i}, s[16:19], s45 offen offset:{i*1024} lds")
    k.stamp(1)
    def pre(): k.stamp(2)
    ring_loader(k, NCH, NSLOT, dma, 8, pre_b0=pre, first=first)
    k.stamp(4)
    k("s_add_u32 s26, s26, 4")
    k.stamp_flush(6, kidx, 5, 26)
    k.lab("end")
    k("s_endpgm")

    k.lab("compute")
    ACC = 64
    FA = [128, 128 + 4 * NB]
    FB = [160, 160 + 4 * TB]
    AW, AX = 2, 192
    HH, TL = 17, 16
    S1, S2, TMP, SEL, CS = 48, 50, 52, 60, 32
    k("s_and_b32 s27, s26, 1")
    k("s_lshr_b32 s36, s26, 1")
    k(f"v_lshrrev_b32 v{HH}, 5, v0")
    k(f"v_and_b32 v{TL}, 31, v0")
    k("v_lshrrev_b32 v20, 4, v0")
    k("v_bfe_u32 v21, v0, 2, 2")
    k("v_and_b32 v22, 3, v0")
    k("v_lshrrev_b32 v23, 1, v20")
    k("v_lshl_add_u32 v23, v23, 3, v21")
    k("v_and_b32 v18, 1, v20")
    k("v_lshlrev_b32 v18, 1, v18")
    k("v_lshrrev_b32 v19, 1, v22")
    k("v_add_u32 v18, v18, v19")
    k("s_lshl_b32 s37, s27, 3")
    k("v_add_u32 v18, s37, v18")
    k("v_lshlrev_b32 v19, 2, v21")
    k("v_xor_b32 v18, v18, v19")
    k("v_lshlrev_b32 v18, 4, v18")
    k("v_lshl_add_u32 v18, v23, 8, v18")
    k("v_and_b32 v19, 1, v22")
    k(f"v_lshl_add_u32 v{AW}, v19, 3, v18")
    k(f"v_add_u32 v{AW+1}, {2*SLOT}, v{AW}")
    k(f"v_xor_b32 v{AW+2}, 64, v{AW}")
    k(f"v_add_u32 v{AW+3}, {2*SLOT}, v{AW+2}")
    k(f"v_bfe_u32 v18, v{TL}, 1, 3")
    k(f"v_xor_b32 v18, v18, v{HH}")
    k("v_lshlrev_b32 v18, 4, v18")
    k(f"v_lshl_add_u32 v18, v{TL}, 7, v18")
    k("s_lshl_b32 s37, s36, 13")
    k("s_lshl_b32 s38, s27, 12")
    k("s_add_u32 s37, s37, s38")
    k(f"s_add_u32 s37, s37, {WB}")
    k(f"v_add_u32 v{AX}, s37, v18")
    for sl_ in range(2):
        for ks in range(4):
            d = AX + (sl_ * 4 + ks) * 2
            x = (sl_ << 12) | (ks << 5)
            if x: k(f"v_xor_b32 v{d}, {x}, v{AX}")
            k(f"v_add_u32 v{d+1}, {2*SLOT}, v{d}")
    k("v_and_b32 v18, 15, v0")
    k("v_bfe_u32 v19, v0, 4, 1")
    k("v_cmp_eq_u32 vcc, v18, v19")
    k("v_mov_b32 v19, 0x3f803f80")
    k("s_nop 0")
    k(f"v_cndmask_b32 v{SEL}, 0, v19, vcc")
    for r in range(1, 4):
        k(f"v_mov_b32 v{SEL+r}, v{SEL}")
    for r in range(4):
        k(f"v_mov_b32 v{S1+r}, 0")

    def reads(step):
        ch, ks = divmod(step, 4)
        slot = ch % NSLOT
        half, sl = divmod(slot, 2)
        st = step & 1
        out = []
        for tb in range(TB):
            d = FB[st] + tb * 4
            out.append(f"ds_read_b128 v[{d}:{d+3}], v{AX+(tb*4+ks)*2+half} offset:{sl*SLOT}")
        for nb in range(NB):
            d = FA[st] + nb * 4
            out.append(f"ds_read_b64_tr_b16 v[{d}:{d+1}], v{AW+nb*2+half} offset:{sl*SLOT + ks*4096}")
            out.append(f"ds_read_b64_tr_b16 v[{d+2}:{d+3}], v{AW+nb*2+half} offset:{sl*SLOT + ks*4096 + 1024}")
        return out

    def mainloop(swap):
        k.stamp(1)
        k("s_barrier")
        k.stamp(2)
        for r in reads(0):
            k(r)
        NS = NCH * 4
        for step in range(NS):
            st = step & 1
            k("s_waitcnt lgkmcnt(0)")
            if step % 4 == 3 and step + 1 < NS:
                k("s_barrier")
            rd = reads(step + 1) if step + 1 < NS else []
            mf = []
            for nb in range(NB):
                for tb in range(TB):
                    d = ACC + (nb * TB + tb) * 16
                    a = FA[st] + nb * 4
                    b = FB[st] + tb * 4
                    c = "0" if step == 0 else f"v[{d}:{d+15}]"
                    if swap:
                        mf.append(f"v_mfma_f32_32x32x16_bf16 v[{d}:{d+15}], v[{b}:{b+3}], v[{a}:{a+3}], {c}")
                    else:
                        mf.append(f"v_mfma_f32_32x32x16_bf16 v[{d}:{d+15}], v[{a}:{a+3}], v[{b}:{b+3}], {c}")
            for nb in range(NB):
                d = CS + 4 * nb
                a = FA[st] + nb * 4
                c = "0" if step == 0 else f"v[{d}:{d+3}]"
                mf.insert(2 + 3 * nb, f"v_mfma_f32_16x16x32_bf16 v[{d}:{d+3}], v[{SEL}:{SEL+3}], v[{a}:{a+3}], {c}")
            va = []
            for r in range(4):
                x = FB[st] + r
                t = TMP + 2 * (r & 1)
                va += [f"v_and_b32 v{t}, 0xffff0000, v{x}", f"v_lshlrev_b32 v{t+1}, 16, v{x}",
                       f"v_add_f32 v{S1}, v{S1}, v{t}", f"v_fmac_f32 v{S2}, v{t}, v{t}",
                       f"v_add_f32 v{S1+1}, v{S1+1}, v{t+1}", f"v_fmac_f32 v{S2+1}, v{t+1}, v{t+1}"]
            if "nostat" in dbg: va = []
            ri, vi = 0, 0
            for i, m in enumerate(mf):
                k(m)
                nrd = 1
                for r in rd[ri:ri + nrd]: k(r)
                ri += nrd
                for x in va[vi:vi + 4]: k(x)
                vi += 4
            assert ri >= len(rd) and vi >= len(va)
        k.stamp(3)
        k(f"v_add_f32 v40, v{S1}, v{S1+1}")
        k(f"v_add_f32 v41, v{S2}, v{S2+1}")
        k("v_mov_b32 v42, v40")
        k("v_mov_b32 v43, v41")
        k("s_nop 1")
        k("v_permlane32_swap_b32 v40, v42")
        k("v_permlane32_swap_b32 v41, v43")
        k("s_nop 1")
        k("v_add_f32 v40, v40, v42")
        k("v_add_f32 v41, v41, v43")
        k(f"v_mul_f32 v40, {f2u(1/640):#x}, v40")
        k(f"v_mul_f32 v41, {f2u(1/640):#x}, v41")
        k("v_fma_f32 v41, -v40, v40, v41")
        k("v_max_f32 v41, 0, v41")
        k(f"v_add_f32 v42, {f2u(1e-5):#x}, v41")
        k("v_rsq_f32 v42, v42")
        k("s_cmp_lt_u32 s25, 5")
        k(f"s_cselect_b32 s46, {f2u(QSCALE):#x}, 1.0")
        k("v_mul_f32 v42, s46, v42")
        k("v_mul_f32 v43, v42, v40")
        k(f"v_cmp_eq_u32 vcc, 0, v{HH}")
        k("s_lshl_b32 s37, s36, 8")
        k("s_lshl_b32 s38, s27, 7")
        k("s_add_u32 s37, s37, s38")
        k(f"s_add_u32 s37, s37, {STATS}")
        k(f"v_lshlrev_b32 v44, 2, v{TL}")
        k("v_add_u32 v44, s37, v44")
        k(f"v_lshl_add_u32 v44, v{HH}, 9, v44")
        k("v_cndmask_b32 v42, v43, v42, vcc")
        k("ds_write_b32 v44, v42")
        k("s_lshl_b32 s37, s27, 8")
        k(f"s_add_u32 s37, s37, {STATS+1024}")
        k("v_lshlrev_b32 v45, 2, v0")
        k("v_add_u32 v45, s37, v45")
        k("s_mov_b64 exec, 0xffff")
        for nb in range(NB):
            k(f"ds_write_b32 v45, v{CS+4*nb} offset:{nb*128}")
            k(f"ds_write_b32 v45, v{CS+4*nb+1} offset:{nb*128+64}")
        k("s_mov_b64 exec, -1")
        k("s_waitcnt lgkmcnt(0)")
        k("s_barrier")

    k("s_waitcnt lgkmcnt(0)")
    k("s_cmp_ge_u32 s25, 10")
    k(f"s_cbranch_scc1 {k.ref('vpath')}")
    pre_qk(k, HH, TL, perm=True)
    mainloop(False)
    epi_qk(k, ACC, STATS, HH, TL, perm=True)
    k.stamp(4); k.stamp_flush(6, kidx, 5, 26)
    k("s_endpgm")
    k.lab("vpath")
    pre_v(k, HH, TL, perm=True)
    mainloop(True)
    epi_v(k, ACC, STATS, HH, TL, perm=True)
    k.stamp(4); k.stamp_flush(6, kidx, 5, 26)
    k("s_endpgm")
    return k


def pre_qk(k, HH, TL, perm=False):
    k.srd(48, 6, 0, WS_SIZE)
    k("s_cmp_lt_u32 s25, 5")
    k(f"s_mov_b32 s37, {WS_KV}")
    k(f"s_cselect_b32 s37, {WS_Q}, s37")
    k("s_cselect_b32 s38, 0, 5")
    k("s_movk_i32 s39, 2560")
    k("s_cselect_b32 s39, 1280, s39")
    k("s_lshl_b32 s40, s39, 6")
    k("s_sub_u32 s38, s25, s38")
    k("s_lshl_b32 s41, s24, 2")
    k("s_lshl_b32 s42, s36, 1")
    k("s_add_u32 s41, s41, s42")
    k("s_mul_i32 s41, s41, s39")
    k("s_add_u32 s52, s37, s41")
    k("s_add_u32 s53, s52, s39")
    if perm:
        k("s_cmp_eq_u32 s27, 1")
        k("s_cselect_b32 s37, s53, s52")
        k("s_cselect_b32 s53, s52, s53")
        k("s_mov_b32 s52, s37")
    k("s_lshl_b32 s38, s38, 5")
    k("s_lshl_b32 s42, s27, 4")
    k("s_add_u32 s38, s38, s42")
    k(f"v_add_u32 v21, s38, v{HH}")
    k(f"v_lshlrev_b32 v22, 3, v{TL}")
    for nb in range(2):
        for q in range(4):
            d = 24 + nb * 4 + q
            k(f"v_add_u32 v23, {nb*8+2*q}, v21")
            k("v_mul_u32_u24 v18, 205, v23")
            k("v_lshrrev_b32 v18, 10, v18")
            k("v_mul_u32_u24 v19, 5, v18")
            k("v_sub_u32 v23, v23, v19")
            k("v_mul_lo_u32 v18, v18, s40")
            k("v_cmp_gt_u32 vcc, 4, v23")
            k("v_lshrrev_b32 v19, 1, v23")
            k("v_lshl_add_u32 v18, v19, 9, v18")
            k("v_and_b32 v19, 1, v23")
            k("v_lshl_add_u32 v18, v19, 3, v18")
            k("v_cndmask_b32 v19, 0, v22, vcc")
            k("v_add_u32 v18, v18, v22")
            k(f"v_add_u32 v{d}, v18, v19")


def epi_qk(k, ACC, STATS, HH, TL, perm=False):
    NB, TB = 2, 2
    k(f"s_mul_i32 s37, s36, 256")
    k(f"v_lshlrev_b32 v20, 2, v{TL}")
    k(f"v_add_u32 v20, s37, v20")
    k(f"v_add_u32 v20, {STATS}, v20")
    if perm:
        k("s_lshl_b32 s37, s27, 7")
        k("v_xor_b32 v20, s37, v20")
        k("v_xor_b32 v19, 128, v20")
    for tb in range(TB):
        if perm:
            k(f"ds_read_b32 v{32+2*tb}, v{20-tb}")
            k(f"ds_read_b32 v{33+2*tb}, v{20-tb} offset:512")
        else:
            k(f"ds_read_b32 v{32+2*tb}, v20 offset:{tb*128}")
            k(f"ds_read_b32 v{33+2*tb}, v20 offset:{512+tb*128}")
    k(f"v_lshlrev_b32 v21, 4, v{HH}")
    k("s_lshl_b32 s37, s27, 8")
    k("v_add_u32 v21, s37, v21")
    k(f"v_add_u32 v21, {STATS+1024}, v21")
    CS = 128
    for nb in range(NB):
        for q in range(4):
            k(f"ds_read_b128 v[{CS+(nb*4+q)*4}:{CS+(nb*4+q)*4+3}], v21 offset:{nb*128+q*32}")
    k("s_waitcnt lgkmcnt(0)")
    k("s_nop 7")
    n = 0
    for nb in range(NB):
        for q in range(4):
            cs = CS + (nb * 4 + q) * 4
            for tb in range(TB):
                a = ACC + (nb * TB + tb) * 16 + q * 4
                rs, rm = 32 + 2 * tb, 33 + 2 * tb
                t = 36 + 4 * (n % 2)
                for h in range(2):
                    k(f"v_pk_mul_f32 v[{t+2*h}:{t+2*h+1}], v[{cs+2*h}:{cs+2*h+1}], v[{rs}:{rs+1}] op_sel:[0,1] op_sel_hi:[1,1]")
                for h in range(2):
                    k(f"v_pk_fma_f32 v[{t+2*h}:{t+2*h+1}], v[{a+2*h}:{a+2*h+1}], v[{rs}:{rs+1}], v[{t+2*h}:{t+2*h+1}] op_sel_hi:[1,0,1] neg_lo:[0,0,1] neg_hi:[0,0,1]")
                o = 44 + 2 * (n % 4)
                k(f"v_cvt_pk_bf16_f32 v{o}, v{t}, v{t+1}")
                k(f"v_cvt_pk_bf16_f32 v{o+1}, v{t+2}, v{t+3}")
                k(f"buffer_store_dwordx2 v[{o}:{o+1}], v{24+nb*4+q}, s[48:51], s{52+tb} offen")
                n += 1
    k("s_waitcnt vmcnt(0)")


def pre_v(k, HH, TL, perm=False):
    k.srd(48, 6, 0, WS_SIZE)
    k("s_sub_u32 s37, s25, 10")
    k("s_lshl_b32 s37, s37, 7")
    k("s_lshl_b32 s38, s27, 6")
    k("s_add_u32 s37, s37, s38")
    for nb in range(2):
        k(f"v_add_u32 v20, s37, v{TL}")
        if nb: k("v_add_u32 v20, 32, v20")
        k("v_mul_u32_u24 v21, 205, v20")
        k("v_lshrrev_b32 v21, 12, v21")
        k("v_mul_u32_u24 v22, 20, v21")
        k("v_sub_u32 v22, v20, v22")
        k("s_mov_b32 s38, 163840")
        k("v_mul_lo_u32 v21, v21, s38")
        k("v_lshl_add_u32 v21, v22, 4, v21")
        k(f"v_mul_u32_u24 v22, 320, v{HH}")
        k(f"v_add_u32 v{24+nb}, v21, v22")
    k("s_lshl_b32 s41, s24, 2")
    k("s_lshl_b32 s42, s36, 1")
    k("s_add_u32 s41, s41, s42")
    k("s_mul_i32 s41, s41, 2560")
    k(f"s_add_u32 s52, s41, {WS_KV + 1280}")
    if perm:
        k("s_add_u32 s53, s52, 2560")
        k("s_cmp_eq_u32 s27, 1")
        k("s_cselect_b32 s37, s53, s52")
        k("s_cselect_b32 s53, s52, s53")
        k("s_mov_b32 s52, s37")


def epi_v(k, ACC, STATS, HH, TL, perm=False):
    NB, TB = 2, 2
    k("s_lshl_b32 s37, s36, 8")
    k(f"v_lshlrev_b32 v20, 4, v{HH}")
    k("v_add_u32 v20, s37, v20")
    k(f"v_add_u32 v20, {STATS}, v20")
    RS, RM = 128, 160
    if perm:
        k("s_lshl_b32 s37, s27, 7")
        k("v_xor_b32 v20, s37, v20")
        k("v_xor_b32 v19, 128, v20")
    def sa(tb, off): return f"v{20-tb} offset:{off}" if perm else f"v20 offset:{off+tb*128}"
    for tb in range(TB):
        for q in range(4):
            k(f"ds_read_b128 v[{RS+(tb*4+q)*4}:{RS+(tb*4+q)*4+3}], {sa(tb, q*32)}")
    k(f"v_lshlrev_b32 v21, 2, v{TL}")
    k("s_lshl_b32 s37, s27, 8")
    k("v_add_u32 v21, s37, v21")
    k(f"v_add_u32 v21, {STATS+1024}, v21")
    k("s_waitcnt lgkmcnt(4)")
    for tb in range(TB):
        for q in range(4):
            k(f"ds_read_b128 v[{RM+(tb*4+q)*4}:{RM+(tb*4+q)*4+3}], {sa(tb, 512+q*32)}")
    k("ds_read_b32 v32, v21")
    k("ds_read_b32 v34, v21 offset:128")
    k("s_waitcnt lgkmcnt(0)")
    k("s_nop 7")
    n = 0
    for nb in range(NB):
        cs = 32 + 2 * nb
        for tb in range(TB):
            for qp in range(2):
                o = 44 + 4 * (n % 2)
                for qq in range(2):
                    q = qp * 2 + qq
                    a = ACC + (nb * TB + tb) * 16 + q * 4
                    t = 36 + 4 * qq
                    rs, rm = RS + (tb * 4 + q) * 4, RM + (tb * 4 + q) * 4
                    for h in range(2):
                        k(f"v_pk_mul_f32 v[{t+2*h}:{t+2*h+1}], v[{rm+2*h}:{rm+2*h+1}], v[{cs}:{cs+1}] op_sel_hi:[1,0]")
                    for h in range(2):
                        k(f"v_pk_fma_f32 v[{t+2*h}:{t+2*h+1}], v[{a+2*h}:{a+2*h+1}], v[{rs+2*h}:{rs+2*h+1}], v[{t+2*h}:{t+2*h+1}] neg_lo:[0,0,1] neg_hi:[0,0,1]")
                    k(f"v_cvt_pk_bf16_f32 v{o+2*qq}, v{t}, v{t+1}")
                    k(f"v_cvt_pk_bf16_f32 v{o+2*qq+1}, v{t+2}, v{t+3}")
                k("s_nop 1")
                k(f"v_permlane32_swap_b32 v{o}, v{o+2}")
                k(f"v_permlane32_swap_b32 v{o+1}, v{o+3}")
                k("s_nop 1")
                if perm:
                    k(f"buffer_store_dwordx4 v[{o}:{o+3}], v{24+nb}, s[48:51], s{52+tb} offen offset:{qp*640}")
                else:
                    k(f"buffer_store_dwordx4 v[{o}:{o+3}], v{24+nb}, s[48:51], s52 offen offset:{tb*2560+qp*640}")
                n += 1
    k("s_waitcnt vmcnt(0)")


GK1 = -2.0 * 0.7978845608028654 * 1.4426950408889634
GK2 = GK1 * 0.044715

def epi_w1(k, ACC, STATS, HH, TL):
    NB = 3
    k.srd(48, 6, 0, WS_SIZE)
    k("s_lshl_b32 s37, s36, 7")
    k(f"v_lshlrev_b32 v20, 2, v{TL}")
    k("v_add_u32 v20, s37, v20")
    k(f"v_add_u32 v20, {STATS}, v20")
    k("ds_read_b32 v32, v20")
    k("ds_read_b32 v33, v20 offset:512")
    k(f"v_lshlrev_b32 v21, 4, v{HH}")
    k(f"v_add_u32 v21, {STATS+1024}, v21")
    CS, BI = 128, 176
    for nb in range(NB):
        for q in range(4):
            k(f"ds_read_b128 v[{CS+(nb*4+q)*4}:{CS+(nb*4+q)*4+3}], v21 offset:{nb*128+q*32}")
    k("s_waitcnt lgkmcnt(6)")
    for nb in range(NB):
        for q in range(4):
            k(f"ds_read_b128 v[{BI+(nb*4+q)*4}:{BI+(nb*4+q)*4+3}], v21 offset:{512+nb*128+q*32}")
    k("s_lshl_b32 s39, s24, 2")
    k("s_add_u32 s39, s39, s36")
    k("s_mul_i32 s39, s39, 98304")
    k("s_mul_i32 s40, s25, 6144")
    k("s_add_u32 s39, s39, s40")
    k(f"s_add_u32 s52, s39, {WS_H}")
    k("s_add_u32 s53, s52, 2048")
    k("s_add_u32 s54, s52, 4096")
    k("v_lshlrev_b32 v22, 4, v0")
    k(f"v_mov_b32 v34, {f2u(GK1):#x}")
    k(f"v_mov_b32 v35, {f2u(GK2):#x}")
    k("s_waitcnt lgkmcnt(0)")
    k("s_nop 7")
    n = 0
    for nb in range(NB):
        for qp in range(2):
            o = 56 + 4 * (n % 2)
            for qq in range(2):
                q = qp * 2 + qq
                a = ACC + nb * 16 + q * 4
                cs = CS + (nb * 4 + q) * 4
                b = BI + (nb * 4 + q) * 4
                u, t = 36, 40
                for h in range(2):
                    k(f"v_pk_fma_f32 v[{u+2*h}:{u+2*h+1}], v[{cs+2*h}:{cs+2*h+1}], v[32:33], v[{b+2*h}:{b+2*h+1}] op_sel:[0,1,0] op_sel_hi:[1,1,1] neg_lo:[1,0,0] neg_hi:[1,0,0]")
                for h in range(2):
                    k(f"v_pk_fma_f32 v[{u+2*h}:{u+2*h+1}], v[{a+2*h}:{a+2*h+1}], v[32:33], v[{u+2*h}:{u+2*h+1}] op_sel_hi:[1,0,1]")
                for h in range(2):
                    k(f"v_pk_mul_f32 v[{t+2*h}:{t+2*h+1}], v[{u+2*h}:{u+2*h+1}], v[{u+2*h}:{u+2*h+1}]")
                for h in range(2):
                    k(f"v_pk_fma_f32 v[{t+2*h}:{t+2*h+1}], v[{t+2*h}:{t+2*h+1}], v[34:35], v[34:35] op_sel:[0,1,0] op_sel_hi:[1,1,0]")
                for h in range(2):
                    k(f"v_pk_mul_f32 v[{t+2*h}:{t+2*h+1}], v[{t+2*h}:{t+2*h+1}], v[{u+2*h}:{u+2*h+1}]")
                for i in range(4):
                    k(f"v_exp_f32 v{t+i}, v{t+i}")
                k("s_nop 0")
                for h in range(2):
                    k(f"v_pk_add_f32 v[{t+2*h}:{t+2*h+1}], v[{t+2*h}:{t+2*h+1}], 1.0 op_sel_hi:[1,0]")
                for i in range(4):
                    k(f"v_rcp_f32 v{t+i}, v{t+i}")
                k("s_nop 0")
                for h in range(2):
                    k(f"v_pk_mul_f32 v[{u+2*h}:{u+2*h+1}], v[{u+2*h}:{u+2*h+1}], v[{t+2*h}:{t+2*h+1}]")
                k(f"v_cvt_pk_bf16_f32 v{o+2*qq}, v{u}, v{u+1}")
                k(f"v_cvt_pk_bf16_f32 v{o+2*qq+1}, v{u+2}, v{u+3}")
            k("s_nop 1")
            k(f"v_permlane32_swap_b32 v{o}, v{o+2}")
            k(f"v_permlane32_swap_b32 v{o+1}, v{o+3}")
            k("s_nop 1")
            k(f"buffer_store_dwordx4 v[{o}:{o+3}], v22, s[48:51], s{52+nb} offen offset:{qp*1024}")
            n += 1
    k("s_waitcnt vmcnt(0)")


def gen_gemmB(name, kind, layer, kidx=0, dbg=(), first=2, rawres=False):
    NWG = 256
    if kind == "wo":
        K, WS_W, XSRC = 640, WS_WO, WS_O
        RES = WS_X0 if layer == 0 else WS_X2
        DST, ST = WS_X1, WS_ST1
    else:
        K, WS_W, XSRC = 1536, WS_W2, WS_H
        RES = WS_X1
        DST, ST = (WS_X2, WS_ST0) if layer == 0 else (None, None)
    NCH = K // 128
    XBLK = K * 64
    WB = 20480
    SLOT = WB + 16384
    NSLOT = 4
    LDS = NSLOT * SLOT
    k = Kern(name, NWG, 512, LDS, vgpr=128)
    k(f"s_cmp_ge_u32 s2, {NWG}")
    k(f"s_cbranch_scc1 {k.ref('end')}")
    k.stamp(0)
    k.karg(6, 80)
    if kind == "w2":
        k.karg(8, 56)
        if DST is None:
            k.karg(10, 64)
    if rawres:
        assert kind == "wo"
        k.karg(8, 0)
    wave_id(k, 26)
    k("s_and_b32 s20, s2, 7")
    k("s_lshr_b32 s21, s2, 3")
    k("s_lshr_b32 s22, s20, 1")
    k("s_lshl_b32 s22, s22, 3")
    k("s_and_b32 s23, s21, 7")
    k("s_add_u32 s24, s22, s23")
    k("s_and_b32 s22, s20, 1")
    k("s_lshl_b32 s22, s22, 2")
    k("s_lshr_b32 s23, s21, 3")
    k("s_add_u32 s25, s22, s23")
    k("s_cmp_lt_u32 s26, 4")
    k(f"s_cbranch_scc1 {k.ref('compute')}")
    k("s_sub_u32 s26, s26, 4")
    k("v_lshlrev_b32 v1, 4, v0")
    k(f"s_mul_i32 s40, s25, {K//8*1280}")
    k("s_mul_i32 s41, s26, 5120")
    k("s_add_u32 s40, s40, s41")
    k(f"s_add_u32 s40, s40, {WS_W}")
    k("s_mov_b32 s42, s41")
    k("s_lshl_b32 s43, s24, 1")
    k("s_lshr_b32 s47, s26, 1")
    k("s_add_u32 s43, s43, s47")
    k(f"s_mul_i32 s43, s43, {XBLK}")
    k("s_and_b32 s47, s26, 1")
    k("s_lshl_b32 s47, s47, 12")
    k("s_add_u32 s43, s43, s47")
    k(f"s_add_u32 s43, s43, {XSRC}")
    k("s_lshl_b32 s44, s26, 12")
    k(f"s_add_u32 s44, s44, {WB}")
    k("s_waitcnt lgkmcnt(0)")
    k.srd(12, 6, 0, WS_SIZE)
    def dma(ch):
        slot = ch % NSLOT
        k(f"s_add_u32 m0, s44, {slot*SLOT}")
        k(f"s_add_u32 s45, s43, {ch*8192}")
        for i in range(4):
            k(f"buffer_load_dwordx4 v1, s[12:15], s45 offen offset:{i*1024} lds")
        k(f"s_add_u32 m0, s42, {slot*SLOT}")
        k(f"s_add_u32 s45, s40, {ch*WB}")
        for i in range(4):
            k(f"buffer_load_dwordx4 v1, s[12:15], s45 offen offset:{i*1024} lds")
        k(f"s_add_u32 m0, s42, {slot*SLOT+4096}")
        k(f"s_add_u32 s45, s40, {ch*WB+4096}")
        k(f"buffer_load_dwordx4 v1, s[12:15], s45 offen lds")
    k.stamp(1)
    def pre(): k.stamp(2)
    ring_loader(k, NCH, NSLOT, dma, 9, pre_b0=pre, first=first)
    k.stamp(4)
    k("s_add_u32 s26, s26, 4")
    k.stamp_flush(6, kidx, 5, 26)
    k.lab("end")
    k("s_endpgm")

    k.lab("compute")
    ACC, FA0, FB0, RS, BI = 32, 64, 88, 104, 116
    AW, AX = 1, 3
    k("s_and_b32 s27, s26, 1")
    k("s_lshr_b32 s36, s26, 1")
    k("v_lshrrev_b32 v17, 4, v0")
    k("v_and_b32 v16, 15, v0")
    k("v_mul_u32_u24 v20, 1280, v17")
    k("v_lshl_add_u32 v20, v16, 4, v20")
    k("s_mul_i32 s37, s27, 768")
    k(f"v_add_u32 v{AW}, s37, v20")
    k(f"v_add_u32 v{AW+1}, {2*SLOT}, v{AW}")
    k("v_lshlrev_b32 v20, 9, v17")
    k("v_lshl_add_u32 v20, v16, 4, v20")
    k("s_lshl_b32 s37, s36, 13")
    k(f"s_add_u32 s37, s37, {WB}")
    k(f"v_add_u32 v{AX}, s37, v20")
    k(f"v_add_u32 v{AX+1}, {2*SLOT}, v{AX}")
    k("v_lshrrev_b32 v20, 1, v17")
    k("v_lshlrev_b32 v20, 9, v20")
    k("v_lshl_add_u32 v20, v16, 4, v20")
    k("v_and_b32 v21, 1, v17")
    k("v_lshl_add_u32 v20, v21, 3, v20")
    k("s_lshl_b32 s38, s24, 1")
    k("s_add_u32 s38, s38, s36")
    k("s_mul_i32 s39, s38, 40960")
    k("s_mul_i32 s40, s25, 5120")
    k("s_add_u32 s39, s39, s40")
    k("s_mul_i32 s40, s27, 3072")
    k("s_add_u32 s39, s39, s40")
    if rawres:
        k("v_mul_u32_u24 v20, 1280, v16")
        k("v_lshl_add_u32 v20, v17, 3, v20")
        k(f"v_add_u32 v21, {16*1280}, v20")
        k(f"s_mul_i32 s52, s38, {32*1280}")
        k("s_mul_i32 s40, s25, 160")
        k("s_add_u32 s52, s52, s40")
        k("s_mul_i32 s40, s27, 96")
        k("s_add_u32 s52, s52, s40")
    else:
        k(f"s_add_u32 s52, s39, {RES}")
    k("s_waitcnt lgkmcnt(0)")
    k.srd(48, 6, 0, WS_SIZE)
    if rawres:
        k.srd(56, 8, 0, X_BYTES)

    def path(NB):
        for nb in range(NB):
            for tb in range(2):
                d = RS + (nb * 2 + tb) * 2
                if rawres:
                    k(f"buffer_load_dwordx2 v[{d}:{d+1}], v{20+tb}, s[56:59], s52 offen offset:{nb*32}")
                else:
                    k(f"buffer_load_dwordx2 v[{d}:{d+1}], v20, s[48:51], s52 offen offset:{nb*1024+tb*256}")
        if kind == "w2":
            k.srd(56, 8, 0, 1280)
            k("s_mul_i32 s40, s25, 160")
            k("s_mul_i32 s41, s27, 96")
            k("s_add_u32 s40, s40, s41")
            k("v_lshlrev_b32 v21, 3, v17")
            for nb in range(NB):
                k(f"buffer_load_dwordx2 v[{BI+2*nb}:{BI+2*nb+1}], v21, s[56:59], s40 offen offset:{nb*32}")
        def reads(step):
            ch, ks = divmod(step, 4)
            slot = ch % NSLOT
            half, sl = divmod(slot, 2)
            st = step & 1
            out = []
            for tb in range(2):
                d = FB0 + st * 8 + tb * 4
                out.append(f"ds_read_b128 v[{d}:{d+3}], v{AX+half} offset:{sl*SLOT + ks*2048 + tb*256}")
            for nb in range(NB):
                d = FA0 + st * 12 + nb * 4
                out.append(f"ds_read_b128 v[{d}:{d+3}], v{AW+half} offset:{sl*SLOT + ks*5120 + nb*256}")
            return out
        k.stamp(1)
        k("s_barrier")
        k.stamp(2)
        for r in reads(0):
            k(r)
        NS = NCH * 4
        for step in range(NS):
            st = step & 1
            k("s_waitcnt lgkmcnt(0)")
            if step % 4 == 3 and step + 1 < NS:
                k("s_barrier")
            rd = reads(step + 1) if step + 1 < NS else []
            mf = []
            for nb in range(NB):
                for tb in range(2):
                    d = ACC + (nb * 2 + tb) * 4
                    a = FA0 + st * 12 + nb * 4
                    b = FB0 + st * 8 + tb * 4
                    c = "0" if step == 0 else f"v[{d}:{d+3}]"
                    mf.append(f"v_mfma_f32_16x16x32_bf16 v[{d}:{d+3}], v[{a}:{a+3}], v[{b}:{b+3}], {c}")
            ri = 0
            for i, m in enumerate(mf):
                if "nomfma" not in dbg: k(m)
                for r in rd[ri:ri + 2]:
                    if "nords" not in dbg: k(r)
                ri += 2
            assert ri >= len(rd)
        k.stamp(3)
        k("s_waitcnt vmcnt(0)")
        want_stats = ST is not None
        if want_stats:
            for r in (8, 9, 10, 11):
                k(f"v_mov_b32 v{r}, 0")
        k("v_lshlrev_b32 v22, 4, v0")
        if DST is None:
            k.srd(60, 10, 0, X_BYTES)
            k("v_and_b32 v23, 31, v0")
            k("v_mul_u32_u24 v23, 1280, v23")
            k("v_lshrrev_b32 v24, 5, v0")
            k("v_lshl_add_u32 v23, v24, 4, v23")
            k("s_mul_i32 s40, s38, 40960")
            k("s_mul_i32 s41, s25, 160")
            k("s_add_u32 s40, s40, s41")
            k("s_mul_i32 s41, s27, 96")
            k("s_add_u32 s53, s40, s41")
        else:
            k(f"s_add_u32 s53, s39, {DST}")
        k("s_nop 4")
        for nb in range(NB):
            o = 24 + 4 * (nb % 2)
            for tb in range(2):
                a = ACC + (nb * 2 + tb) * 4
                d = RS + (nb * 2 + tb) * 2
                t = 12
                k(f"v_lshlrev_b32 v{t}, 16, v{d}")
                k(f"v_and_b32 v{t+1}, 0xffff0000, v{d}")
                k(f"v_lshlrev_b32 v{t+2}, 16, v{d+1}")
                k(f"v_and_b32 v{t+3}, 0xffff0000, v{d+1}")
                k(f"v_pk_add_f32 v[{a}:{a+1}], v[{a}:{a+1}], v[{t}:{t+1}]")
                k(f"v_pk_add_f32 v[{a+2}:{a+3}], v[{a+2}:{a+3}], v[{t+2}:{t+3}]")
                if kind == "w2":
                    b = BI + 2 * nb
                    k(f"v_lshlrev_b32 v{t+4}, 16, v{b}")
                    k(f"v_and_b32 v{t+5}, 0xffff0000, v{b}")
                    k(f"v_lshlrev_b32 v{t+6}, 16, v{b+1}")
                    k(f"v_and_b32 v{t+7}, 0xffff0000, v{b+1}")
                    k(f"v_pk_add_f32 v[{a}:{a+1}], v[{a}:{a+1}], v[{t+4}:{t+5}]")
                    k(f"v_pk_add_f32 v[{a+2}:{a+3}], v[{a+2}:{a+3}], v[{t+6}:{t+7}]")
                if want_stats:
                    for r in range(4):
                        k(f"v_add_f32 v{8+tb}, v{8+tb}, v{a+r}")
                        k(f"v_fmac_f32 v{10+tb}, v{a+r}, v{a+r}")
                k(f"v_cvt_pk_bf16_f32 v{o+2*tb}, v{a}, v{a+1}")
                k(f"v_cvt_pk_bf16_f32 v{o+2*tb+1}, v{a+2}, v{a+3}")
            k("s_nop 1")
            k(f"v_permlane16_swap_b32 v{o}, v{o+2}")
            k(f"v_permlane16_swap_b32 v{o+1}, v{o+3}")
            k("s_nop 1")
            if DST is None:
                k(f"buffer_store_dwordx4 v[{o}:{o+3}], v23, s[60:63], s53 offen offset:{nb*32}")
            else:
                k(f"buffer_store_dwordx4 v[{o}:{o+3}], v22, s[48:51], s53 offen offset:{nb*1024}")
        if want_stats:
            k("v_permlane16_swap_b32 v8, v9")
            k("v_permlane16_swap_b32 v10, v11")
            k("s_nop 1")
            k("v_add_f32 v8, v8, v9")
            k("v_add_f32 v10, v10, v11")
            k("s_nop 1")
            k("v_permlane32_swap_b32 v8, v10")
            k("s_nop 1")
            k("v_add_f32 v8, v8, v10")
            k("v_and_b32 v12, 31, v0")
            k("v_lshlrev_b32 v12, 3, v12")
            k("v_lshrrev_b32 v13, 5, v0")
            k("v_lshl_add_u32 v12, v13, 2, v12")
            k("s_lshl_b32 s40, s25, 1")
            k("s_add_u32 s40, s40, s27")
            k("s_lshl_b32 s40, s40, 14")
            k("s_lshl_b32 s41, s38, 8")
            k("s_add_u32 s40, s40, s41")
            k(f"s_add_u32 s40, s40, {ST}")
            k("buffer_store_dword v8, v12, s[48:51], s40 offen")
        k("s_waitcnt vmcnt(0)")
        k.stamp(4); k.stamp_flush(6, kidx, 5, 26)
        k("s_endpgm")
    k("s_cmp_eq_u32 s27, 1")
    k(f"s_cbranch_scc1 {k.ref('p2')}")
    path(3)
    k.lab("p2")
    path(2)
    return k


ATT_PACK = "cvt"
def gen_attn(name, kidx=0, pack=None, force_slow=False):
    pack = pack or ATT_PACK
    NWG = 256
    LDS = 163840
    k = Kern(name, NWG, 512, LDS, vgpr=128)
    KA, KB, VA = 1, 2, 3
    Q16, Q4 = 8, 12
    K16 = [16, 20]; K4 = [24, 26]
    V = [32, 40]
    S = [48, 64]
    P = 80
    O = 96
    k(f"s_cmp_ge_u32 s2, {NWG}")
    k(f"s_cbranch_scc1 {k.ref('end')}")
    k.stamp(0)
    k.karg(6, 80)
    wave_id(k, 26)
    k("s_and_b32 s20, s2, 7")
    k("s_lshr_b32 s21, s2, 3")
    k("s_lshr_b32 s22, s21, 3")
    k("s_lshl_b32 s23, s20, 2")
    k("s_add_u32 s24, s23, s22")
    k("s_and_b32 s25, s21, 7")
    k("s_lshl_b32 s25, s25, 3")
    k("s_add_u32 s25, s25, s26")
    k("v_lshlrev_b32 v4, 4, v0")
    k("s_lshl_b32 s27, s24, 6")
    k("s_add_u32 s27, s27, s25")
    k("s_mul_i32 s27, s27, 1280")
    k(f"s_add_u32 s27, s27, {WS_Q}")
    k("s_mul_i32 s28, s24, 163840")
    k(f"s_add_u32 s28, s28, {WS_KV}")
    k("s_mul_i32 s29, s26, 3072")
    k("s_mul_i32 s30, s26, 17408")
    k("s_add_u32 s30, s30, 24576")
    k("v_and_b32 v5, 31, v0")
    k("v_lshlrev_b32 v6, 3, v5")
    k(f"v_mov_b32 v{Q4}, 0")
    k(f"v_mov_b32 v{Q4+1}, 0")
    k("s_waitcnt lgkmcnt(0)")
    k.srd(12, 6, 0, WS_SIZE)
    k(f"buffer_load_dwordx4 v[{Q16}:{Q16+3}], v4, s[12:15], s27 offen")
    k("s_mov_b64 exec, 0xffffffff")
    k(f"buffer_load_dwordx2 v[{Q4}:{Q4+1}], v6, s[12:15], s27 offen offset:1024")
    k("s_mov_b64 exec, -1")
    k("s_mov_b32 m0, s29")
    k("s_add_u32 s31, s28, s29")
    for i in range(3):
        k(f"buffer_load_dwordx4 v4, s[12:15], s31 offen offset:{i*1024} lds")
    for g in range(5):
        k(f"s_add_u32 m0, s30, {g*4096}")
        k(f"s_add_u32 s31, s28, s30")
        if g: k(f"s_add_u32 s31, s31, {g*4096}")
        for i in range(4 if g < 4 else 1):
            k(f"buffer_load_dwordx4 v4, s[12:15], s31 offen offset:{i*1024} lds")
    k.stamp(1)
    def lane_addrs():
        k("v_and_b32 v5, 31, v0")
        k("v_and_b32 v6, 0x13, v5")
        k("v_and_b32 v7, 4, v5")
        k("v_lshl_or_b32 v6, v7, 1, v6")
        k("v_and_b32 v7, 8, v5")
        k("v_lshrrev_b32 v7, 1, v7")
        k("v_or_b32 v6, v6, v7")
        k("v_lshrrev_b32 v7, 5, v0")
        k(f"v_lshlrev_b32 v{KA}, 9, v7")
        k(f"v_lshl_add_u32 v{KA}, v6, 4, v{KA}")
        k(f"v_lshlrev_b32 v{KB}, 3, v6")
        k(f"v_add_u32 v{KB}, 1024, v{KB}")
        k(f"v_mul_u32_u24 v{VA}, 320, v7")
        k(f"v_lshl_add_u32 v{VA}, v5, 4, v{VA}")
        k(f"v_add_u32 v{VA}, 1280, v{VA}")
    lane_addrs()
    k("v_cmp_eq_u32 vcc, 20, v5")
    k("v_mov_b32 v7, 0x3f803f80")
    k("s_mov_b32 s34, 0x000fffff")
    k("s_mov_b32 s35, 0x000fffff")
    k(f"v_cndmask_b32 v{V[0]}, 0, v7, vcc")
    for r in range(1, 16):
        k(f"v_mov_b32 v{V[0]+r}, v{V[0]}")
    for r in range(16):
        k(f"v_mov_b32 v{O+r}, 0")
    for r in range(4, 8):
        k(f"v_mov_b32 v{P+r}, 0")
    k("s_waitcnt vmcnt(17)")
    k("s_barrier")
    k.stamp(2)
    def rdK(buf, off):
        k(f"ds_read_b128 v[{K16[buf]}:{K16[buf]+3}], v{KA} offset:{off}")
        k(f"ds_read_b64 v[{K4[buf]}:{K4[buf]+1}], v{KB} offset:{off}")
    def rdV(buf, off):
        k("s_mov_b64 exec, s[34:35]")
        k(f"ds_read_b128 v[{V[buf]}:{V[buf]+3}], v{VA} offset:{off}")
        k(f"ds_read_b128 v[{V[buf]+4}:{V[buf]+7}], v{VA} offset:{off+640}")
        k("s_mov_b64 exec, -1")
    def M1(n): k(f"v_mfma_f32_32x32x16_bf16 v[{S[n]}:{S[n]+15}], v[{K16[n]}:{K16[n]+3}], v[{Q16}:{Q16+3}], 0")
    def M2(n): k(f"v_mfma_f32_32x32x8bf16_1k v[{S[n]}:{S[n]+15}], v[{K4[n]}:{K4[n]+1}], v[{Q4}:{Q4+1}], v[{S[n]}:{S[n]+15}]")
    def MPV(vb, f): k(f"v_mfma_f32_32x32x16_bf16 v[{O}:{O+15}], v[{V[vb]+4*f}:{V[vb]+4*f+3}], v[{P+4*f}:{P+4*f+3}], v[{O}:{O+15}]")
    def G(c, g):
        s = S[c] + 4 * g
        p = P + 2 * g
        if pack == "cvt":
            for i in range(4):
                k(f"v_exp_f32 v{s+i}, v{s+i}")
            k(f"v_cvt_pk_bf16_f32 v{p}, v{s}, v{s+1}")
            k(f"v_cvt_pk_bf16_f32 v{p+1}, v{s+2}, v{s+3}")
        else:
            k(f"v_exp_f32 v{p}, v{s+1}")
            k(f"v_exp_f32 v{s}, v{s}")
            k(f"v_exp_f32 v{p+1}, v{s+3}")
            k(f"v_exp_f32 v{s+2}, v{s+2}")
            k(f"v_mov_b32_sdwa v{p}, v{s} dst_sel:WORD_0 dst_unused:UNUSED_PRESERVE src0_sel:WORD_1")
            k(f"v_mov_b32_sdwa v{p+1}, v{s+2} dst_sel:WORD_0 dst_unused:UNUSED_PRESERVE src0_sel:WORD_1")
    rdK(0, 0)
    rdK(1, 2560)
    rdV(0, 0)
    k("s_waitcnt lgkmcnt(4)")
    M1(0)
    k("s_mov_b32 s36, 0")
    k("s_nop 7")
    k("s_nop 1")
    M2(0)
    k("s_nop 7")
    k("s_nop 3")
    k.lab("loop")
    k("s_cmp_eq_u32 s36, 1")
    k(f"s_cbranch_scc0 {k.ref('nosync')}")
    k("s_waitcnt vmcnt(0)")
    k("s_barrier")
    k.lab("nosync")
    k("s_cmp_eq_u32 s36, 7")
    k(f"s_mov_b32 s37, {(-7*20480) & 0xffffffff:#x}")
    k("s_cselect_b32 s37, s37, 20480")
    for t in range(8):
        c, n = t & 1, (t + 1) & 1
        k("s_waitcnt lgkmcnt(0)")
        M1(n)
        G(c, 0)
        MPV(n, 1)
        if t == 6:
            k(f"v_add_u32 v{KA}, s37, v{KA}")
            k(f"v_add_u32 v{KB}, s37, v{KB}")
        if t == 7:
            k(f"v_add_u32 v{VA}, s37, v{VA}")
        rdK(c, ((t + 2) % 8) * 2560)
        rdV(n, ((t + 1) % 8) * 2560)
        G(c, 1)
        M2(n)
        G(c, 2)
        MPV(c, 0)
        G(c, 3)
    k("s_add_u32 s36, s36, 1")
    k("s_cmp_lt_u32 s36, 8")
    k(f"s_cbranch_scc1 {k.ref('loop')}")
    k("s_nop 0")
    MPV(1, 1)
    k.stamp(3)
    k("s_waitcnt lgkmcnt(0)")
    k("s_nop 7")
    k("s_nop 3")
    k(f"v_mov_b32 v4, v{O+8}")
    k(f"v_mov_b32 v5, v{O+8}")
    k("v_mov_b32 v6, 0")
    k("s_nop 0")
    k("v_permlane32_swap_b32 v4, v5")
    for r in range(12):
        k(f"v_fma_f32 v6, v{O+r}, 0, v6")
    k(f"v_cmp_lt_f32 vcc, {f2u(2.0**-40):#x}, v5")
    k(f"v_cmp_gt_f32 s[38:39], {f2u(2.0**40):#x}, v5" if False else f"s_mov_b32 s40, {f2u(2.0**40):#x}")
    k("v_cmp_gt_f32 s[38:39], s40, v5")
    k("v_cmp_eq_f32 s[42:43], 0, v6")
    k("s_nop 3")
    k("s_and_b64 vcc, vcc, s[38:39]")
    k("s_and_b64 vcc, vcc, s[42:43]")
    if force_slow:
        k("s_mov_b64 vcc, 0")
    k("s_cmp_eq_u64 vcc, -1")
    k(f"s_cbranch_scc0 {k.ref('slow')}")
    k.lab("fin")
    k("v_rcp_f32 v5, v5")
    k("s_mul_i32 s40, s24, 5")
    k("v_lshrrev_b32 v7, 5, v0")
    k("v_add_u32 v7, s40, v7")
    k("v_lshrrev_b32 v6, 1, v7")
    k("v_lshlrev_b32 v6, 9, v6")
    k("v_and_b32 v7, 1, v7")
    k("v_lshl_add_u32 v6, v7, 3, v6")
    k("v_and_b32 v7, 31, v0")
    k("v_lshl_add_u32 v6, v7, 4, v6")
    k("s_mul_i32 s41, s25, 40960")
    k(f"s_add_u32 s41, s41, {WS_O}")
    for r in range(0, 12, 2):
        k(f"v_pk_mul_f32 v[{O+r}:{O+r+1}], v[{O+r}:{O+r+1}], v[4:5] op_sel:[0,1] op_sel_hi:[1,1]")
    k("s_nop 0")
    for j in range(6):
        k(f"v_cvt_pk_bf16_f32 v{16+j}, v{O+2*j}, v{O+2*j+1}")
    k("buffer_store_dwordx2 v[16:17], v6, s[12:15], s41 offen")
    k("buffer_store_dwordx2 v[18:19], v6, s[12:15], s41 offen offset:512")
    k("s_mov_b64 exec, 0xffffffff")
    k("buffer_store_dwordx2 v[20:21], v6, s[12:15], s41 offen offset:1024")
    k("s_waitcnt vmcnt(0)")
    k.stamp(4); k.stamp_flush(6, kidx, 5, 26)
    k.lab("end")
    k("s_endpgm")
    k.lab("slow")
    lane_addrs()
    MX = 88
    k(f"v_mov_b32 v{MX}, {f2u(-3.0e38):#x}")
    for r in range(16):
        k(f"v_mov_b32 v{O+r}, 0")
    k("s_mov_b32 s36, 0")
    k.lab("sl")
    rdK(0, 0)
    rdV(0, 0)
    k("s_waitcnt lgkmcnt(0)")
    M1(0)
    k("s_nop 7"); k("s_nop 1")
    M2(0)
    k("s_nop 7"); k("s_nop 3")
    s = S[0]
    k(f"v_max3_f32 v4, v{s}, v{s+1}, v{s+2}")
    for i in range(3, 15, 2):
        k(f"v_max3_f32 v4, v4, v{s+i}, v{s+i+1}")
    k(f"v_max_f32 v4, v4, v{s+15}")
    k("v_mov_b32 v5, v4")
    k("s_nop 1")
    k("v_permlane32_swap_b32 v4, v5")
    k("s_nop 1")
    k(f"v_max3_f32 v4, v4, v5, v{MX}")
    k(f"v_sub_f32 v5, v{MX}, v4")
    k("v_exp_f32 v5, v5")
    k(f"v_mov_b32 v{MX}, v4")
    for i in range(16):
        k(f"v_sub_f32 v{s+i}, v{s+i}, v4")
    for i in range(16):
        k(f"v_exp_f32 v{s+i}, v{s+i}")
    for r in range(12):
        k(f"v_mul_f32 v{O+r}, v{O+r}, v5")
    for j in range(8):
        k(f"v_cvt_pk_bf16_f32 v{P+j}, v{s+2*j}, v{s+2*j+1}")
    k(f"v_add_u32 v{KA}, 2560, v{KA}")
    k(f"v_add_u32 v{KB}, 2560, v{KB}")
    k(f"v_add_u32 v{VA}, 2560, v{VA}")
    k("s_nop 4")
    MPV(0, 0)
    MPV(0, 1)
    k("s_nop 7"); k("s_nop 3")
    k("s_add_u32 s36, s36, 1")
    k("s_cmp_lt_u32 s36, 64")
    k(f"s_cbranch_scc1 {k.ref('sl')}")
    k(f"v_mov_b32 v4, v{O+8}")
    k(f"v_mov_b32 v5, v{O+8}")
    k("s_nop 1")
    k("v_permlane32_swap_b32 v4, v5")
    k("s_nop 1")
    k(f"s_branch {k.ref('fin')}")
    return k


def l2_prefetch(k, items, half, idx, lw, tmp, vaddr, vdst, srd=12):
    k(f"v_lshlrev_b32 v{vaddr}, 7, v0")
    for n, (base, hb) in enumerate(items):
        per_wg = hb // 32
        per_w = per_wg // 4
        lines = (per_w + 127) // 128
        k(f"s_mul_i32 s{tmp}, s{half}, {hb}")
        k(f"s_mul_i32 s{tmp+1}, s{idx}, {per_wg}")
        k(f"s_add_u32 s{tmp}, s{tmp}, s{tmp+1}")
        k(f"s_mul_i32 s{tmp+1}, s{lw}, {per_w}")
        k(f"s_add_u32 s{tmp}, s{tmp}, s{tmp+1}")
        k(f"s_add_u32 s{tmp}, s{tmp}, {base}")
        done = 0
        while done < lines:
            n_ = min(64, lines - done)
            if n_ < 64:
                m = (1 << n_) - 1
                k(f"s_mov_b32 exec_lo, {m & 0xffffffff:#x}")
                k(f"s_mov_b32 exec_hi, {m >> 32:#x}")
            k(f"buffer_load_dword v{vdst}, v{vaddr}, s[{srd}:{srd+3}], s{tmp} offen")
            if n_ < 64:
                k("s_mov_b64 exec, -1")
            done += n_
            if done < lines:
                k(f"s_add_u32 s{tmp}, s{tmp}, {64*128}")
            vdst += 1

def repack_unit(k, lw, EV, OD):
    k(f"s_lshl_b32 s52, s2, 2")
    k(f"s_add_u32 s52, s52, s{lw}")
    k("s_cmp_ge_u32 s52, 880")
    k(f"s_cbranch_scc1 {k.ref('rp_done')}")
    k.karg(54, 8)
    k.karg(56, 16)
    k.karg(58, 32)
    k.karg(60, 48)
    def setup(lbl, lo, ncg, ptr, size, pitch, TN, K, dst, cs, csp):
        k.lab(lbl)
        k(f"s_sub_u32 s52, s52, {lo}")
        k.srd(64, ptr, 0, size)
        k(f"s_mov_b32 s53, {pitch}")
        k(f"s_mov_b32 s54, {(65536 + TN - 1)//TN}")
        k(f"s_mov_b32 s55, {TN}")
        k(f"s_mov_b32 s56, {K//8*TN*16}")
        k(f"s_mov_b32 s57, {dst}")
        k(f"s_mul_i32 s58, s52, {(65536 + ncg - 1)//ncg}")
        k("s_lshr_b32 s58, s58, 16")
        k(f"s_mul_i32 s59, s58, {ncg}")
        k("s_sub_u32 s59, s52, s59")
        k(f"s_mov_b32 s60, {cs if cs is not None else 0xffffffff:#x}")
        k(f"s_mov_b32 s61, {csp}")
        k(f"s_branch {k.ref('rp_go')}")
    k("s_waitcnt lgkmcnt(0)")
    k("s_cmp_ge_u32 s52, 640"); k(f"s_cbranch_scc1 {k.ref('rp_w2')}")
    k("s_cmp_ge_u32 s52, 540"); k(f"s_cbranch_scc1 {k.ref('rp_wo')}")
    k("s_cmp_ge_u32 s52, 300"); k(f"s_cbranch_scc1 {k.ref('rp_w1')}")
    setup("rp_wq", 0, 30, 54, 640 * 3840, 3840, 128, 640, WS_WQ, WS_CSQ, 1920 * 4)
    setup("rp_w1", 300, 24, 58, 640 * 3072, 3072, 96, 640, WS_W1, WS_CS1, 1536 * 4)
    setup("rp_wo", 540, 10, 56, 640 * 1280, 1280, 80, 640, WS_WO, None, 0)
    setup("rp_w2", 640, 10, 60, 1536 * 1280, 1280, 80, 1536, WS_W2, None, 0)
    k.lab("rp_go")
    k("v_lshlrev_b32 v4, 1, v0")
    k("s_lshl_b32 s62, s58, 6")
    k("s_mul_i32 s62, s62, s53")
    k("s_lshl_b32 s63, s59, 7")
    k("s_add_u32 s62, s62, s63")
    for r in range(64):
        d = (OD if r & 1 else EV) + (r >> 1)
        k(f"buffer_load_ushort v{d}, v4, s[64:67], s62 offen")
        if r < 63:
            k("s_add_u32 s62, s62, s53")
    k("s_lshl_b32 s62, s59, 6")
    k("v_add_u32 v4, s62, v0")
    k("v_mul_lo_u32 v5, v4, s54")
    k("v_lshrrev_b32 v5, 16, v5")
    k("v_mul_lo_u32 v6, v5, s55")
    k("v_sub_u32 v6, v4, v6")
    k("v_mul_lo_u32 v5, v5, s56")
    k("v_lshl_add_u32 v5, v6, 4, v5")
    k("s_lshl_b32 s63, s55, 4")
    k("s_lshl_b32 s62, s58, 3")
    k("s_mul_i32 s62, s62, s63")
    k("s_add_u32 s62, s62, s57")
    k("v_mov_b32 v6, 0")
    k("v_mov_b32 v7, 0")
    for ku in range(8):
        k(f"s_waitcnt vmcnt({min(63, 56 - 8*ku + ku)})")
        for j in range(4 * ku, 4 * ku + 4):
            k(f"v_lshl_or_b32 v{EV+j}, v{OD+j}, 16, v{EV+j}")
        k(f"buffer_store_dwordx4 v[{EV+4*ku}:{EV+4*ku+3}], v5, s[12:15], s62 offen")
        if ku < 7:
            k("s_add_u32 s62, s62, s63")
    k("s_cmp_eq_u32 s60, 0xffffffff")
    k(f"s_cbranch_scc1 {k.ref('rp_done')}")
    for j in range(32):
        k(f"v_dot2c_f32_bf16 v{6 + (j & 1)}, 0x3f803f80, v{EV+j}")
    k("s_mul_i32 s62, s58, s61")
    k("s_add_u32 s62, s62, s60")
    k("v_lshlrev_b32 v4, 2, v4")
    k("s_nop 3")
    k("v_add_f32 v6, v6, v7")
    k("s_nop 0")
    k("buffer_store_dword v6, v4, s[12:15], s62 offen")
    k.lab("rp_done")


PF_ATT = [(WS_WO, 409600), (WS_W1, 983040), (WS_W2, 983040)]

def gen_attn2(name, kidx=0, pack="cvt", force_slow=False, sched=0, dbg=(), pf=0):
    NWG = 256
    LDS = 163840
    k = Kern(name, NWG, 512, LDS, vgpr=160)
    KA, KB, VA = 1, 2, 3
    Q16 = [8, 28]; Q4 = [12, 14]
    K16 = [16, 20]; K4 = [24, 26]
    V = [32, 40]
    S = [48, 64]
    P = 80
    O = [96, 112]
    k(f"s_cmp_ge_u32 s2, {NWG}")
    k(f"s_cbranch_scc1 {k.ref('end')}")
    k.stamp(0)
    k.karg(6, 80)
    wave_id(k, 26)
    k("s_and_b32 s20, s2, 7")
    k("s_lshr_b32 s21, s2, 3")
    k("s_lshr_b32 s22, s21, 3")
    k("s_lshl_b32 s23, s20, 2")
    k("s_add_u32 s24, s23, s22")
    k("v_lshlrev_b32 v4, 4, v0")
    k("s_cmp_lt_u32 s26, 4")
    k(f"s_cbranch_scc1 {k.ref('compute')}")
    k("s_sub_u32 s26, s26, 4")
    k("s_mul_i32 s28, s24, 163840")
    k(f"s_add_u32 s28, s28, {WS_KV}")
    k("s_mul_i32 s29, s26, 6144")
    k("s_mul_i32 s30, s26, 34816")
    k("s_add_u32 s30, s30, 24576")
    k("s_waitcnt lgkmcnt(0)")
    k.srd(12, 6, 0, WS_SIZE)
    k("s_mov_b32 m0, s29")
    k("s_add_u32 s31, s28, s29")
    for i in range(4):
        k(f"buffer_load_dwordx4 v4, s[12:15], s31 offen offset:{i*1024} lds")
    k("s_add_u32 m0, s29, 4096")
    k("s_add_u32 s31, s31, 4096")
    for i in range(2):
        k(f"buffer_load_dwordx4 v4, s[12:15], s31 offen offset:{i*1024} lds")
    k("s_add_u32 s28, s28, s30")
    def stB(g):
        k(f"s_add_u32 m0, s30, {g*4096}")
        k(f"s_add_u32 s31, s28, {g*4096}")
        for i in range(4 if g < 8 else 2):
            k(f"buffer_load_dwordx4 v4, s[12:15], s31 offen offset:{i*1024} lds")
    stB(0); stB(1)
    k.stamp(1)
    k("s_waitcnt vmcnt(8)")
    k.stamp(2)
    k("s_barrier")
    for g in range(2, 9):
        stB(g)
    k.stamp(3)
    k("s_waitcnt vmcnt(0)")
    k.stamp(4)
    k("s_barrier")
    if pf:
        k("s_and_b32 s40, s20, 1")
        l2_prefetch(k, PF_ATT[:pf], 40, 21, 26, 42, 5, 8)
        k("s_waitcnt vmcnt(0)")
    k("s_add_u32 s26, s26, 4")
    k.stamp_flush(6, kidx, 5, 26)
    k.lab("end")
    k("s_endpgm")
    k.lab("compute")
    k("s_and_b32 s25, s21, 7")
    k("s_lshl_b32 s25, s25, 3")
    k("s_lshl_b32 s23, s26, 1")
    k("s_add_u32 s25, s25, s23")
    k("s_lshl_b32 s27, s24, 6")
    k("s_add_u32 s27, s27, s25")
    k("s_mul_i32 s27, s27, 1280")
    k(f"s_add_u32 s27, s27, {WS_Q}")
    k("s_add_u32 s28, s27, 1280")
    k("v_and_b32 v5, 31, v0")
    k("v_lshlrev_b32 v6, 3, v5")
    for x in range(2):
        k(f"v_mov_b32 v{Q4[x]}, 0")
        k(f"v_mov_b32 v{Q4[x]+1}, 0")
    k("s_waitcnt lgkmcnt(0)")
    k.srd(12, 6, 0, WS_SIZE)
    k(f"buffer_load_dwordx4 v[{Q16[0]}:{Q16[0]+3}], v4, s[12:15], s27 offen")
    k(f"buffer_load_dwordx4 v[{Q16[1]}:{Q16[1]+3}], v4, s[12:15], s28 offen")
    k("s_mov_b64 exec, 0xffffffff")
    k(f"buffer_load_dwordx2 v[{Q4[0]}:{Q4[0]+1}], v6, s[12:15], s27 offen offset:1024")
    k(f"buffer_load_dwordx2 v[{Q4[1]}:{Q4[1]+1}], v6, s[12:15], s28 offen offset:1024")
    k("s_mov_b64 exec, -1")
    def lane_addrs():
        k("v_and_b32 v5, 31, v0")
        k("v_and_b32 v6, 0x13, v5")
        k("v_and_b32 v7, 4, v5")
        k("v_lshl_or_b32 v6, v7, 1, v6")
        k("v_and_b32 v7, 8, v5")
        k("v_lshrrev_b32 v7, 1, v7")
        k("v_or_b32 v6, v6, v7")
        k("v_lshrrev_b32 v7, 5, v0")
        k(f"v_lshlrev_b32 v{KA}, 9, v7")
        k(f"v_lshl_add_u32 v{KA}, v6, 4, v{KA}")
        k(f"v_lshlrev_b32 v{KB}, 3, v6")
        k(f"v_add_u32 v{KB}, 1024, v{KB}")
        k(f"v_mul_u32_u24 v{VA}, 320, v7")
        k(f"v_lshl_add_u32 v{VA}, v5, 4, v{VA}")
        k(f"v_add_u32 v{VA}, 1280, v{VA}")
    lane_addrs()
    k("v_cmp_eq_u32 vcc, 20, v5")
    k("v_mov_b32 v7, 0x3f803f80")
    k("s_mov_b32 s34, 0x000fffff")
    k("s_mov_b32 s35, 0x000fffff")
    k(f"v_cndmask_b32 v{V[0]}, 0, v7, vcc")
    for r in range(1, 16):
        k(f"v_mov_b32 v{V[0]+r}, v{V[0]}")
    for r in range(32):
        k(f"v_mov_b32 v{O[0]+r}, 0")
    for r in range(4, 8):
        k(f"v_mov_b32 v{P+r}, 0")
    k.stamp(1)
    k("s_waitcnt vmcnt(0)")
    k("s_barrier")
    k.stamp(2)
    def rdK(buf, off):
        return [f"ds_read_b128 v[{K16[buf]}:{K16[buf]+3}], v{KA} offset:{off}",
                f"ds_read_b64 v[{K4[buf]}:{K4[buf]+1}], v{KB} offset:{off}"]
    def rdV(buf, off):
        return ["s_mov_b64 exec, s[34:35]",
                f"ds_read_b128 v[{V[buf]}:{V[buf]+3}], v{VA} offset:{off}",
                f"ds_read_b128 v[{V[buf]+4}:{V[buf]+7}], v{VA} offset:{off+640}",
                "s_mov_b64 exec, -1"]
    def M1(x, kb): return f"v_mfma_f32_32x32x16_bf16 v[{S[x]}:{S[x]+15}], v[{K16[kb]}:{K16[kb]+3}], v[{Q16[x]}:{Q16[x]+3}], 0"
    def M2(x, kb): return f"v_mfma_f32_32x32x8bf16_1k v[{S[x]}:{S[x]+15}], v[{K4[kb]}:{K4[kb]+1}], v[{Q4[x]}:{Q4[x]+1}], v[{S[x]}:{S[x]+15}]"
    def MPV(x, vb, f): return f"v_mfma_f32_32x32x16_bf16 v[{O[x]}:{O[x]+15}], v[{V[vb]+4*f}:{V[vb]+4*f+3}], v[{P+4*f}:{P+4*f+3}], v[{O[x]}:{O[x]+15}]"
    def G(x, g, fill=()):
        s = S[x] + 4 * g
        p = P + 2 * g
        fill = list(fill)
        if pack == "cvt":
            ex = [f"v_exp_f32 v{s+i}, v{s+i}" for i in range(4)]
            pk = [f"v_cvt_pk_bf16_f32 v{p}, v{s}, v{s+1}", f"v_cvt_pk_bf16_f32 v{p+1}, v{s+2}, v{s+3}"]
        else:
            ex = [f"v_exp_f32 v{p}, v{s+1}", f"v_exp_f32 v{s}, v{s}", f"v_exp_f32 v{p+1}, v{s+3}", f"v_exp_f32 v{s+2}, v{s+2}"]
            pk = [f"v_mov_b32_sdwa v{p}, v{s} dst_sel:WORD_0 dst_unused:UNUSED_PRESERVE src0_sel:WORD_1",
                  f"v_mov_b32_sdwa v{p+1}, v{s+2} dst_sel:WORD_0 dst_unused:UNUSED_PRESERVE src0_sel:WORD_1"]
        for i in range(4):
            k(ex[i])
            if i < len(fill) and fill[i]:
                for f in (fill[i] if isinstance(fill[i], list) else [fill[i]]):
                    k(f)
        for x_ in pk: k(x_)
    for r in rdK(0, 0) + rdK(1, 2560) + rdV(0, 0): k(r)
    k("s_waitcnt lgkmcnt(4)")
    k(M1(0, 0))
    k("s_mov_b32 s36, 0")
    k("s_nop 7")
    k("s_nop 1")
    k(M2(0, 0))
    k("s_nop 7")
    k("s_nop 3")
    k.lab("loop")
    k("s_cmp_eq_u32 s36, 1")
    k(f"s_cbranch_scc0 {k.ref('nosync')}")
    k("s_barrier")
    k.lab("nosync")
    k("s_cmp_eq_u32 s36, 7")
    k(f"s_mov_b32 s37, {(-7*20480) & 0xffffffff:#x}")
    k("s_cselect_b32 s37, s37, 20480")
    L0 = len(k.L)
    for t in range(8):
        c, n = t & 1, (t + 1) & 1
        k("s_waitcnt lgkmcnt(0)")
        k(M1(1, c))
        G(0, 0)
        k(MPV(1, n, 1))
        if t == 7:
            k(f"v_add_u32 v{VA}, s37, v{VA}")
        rv = rdV(n, ((t + 1) % 8) * 2560)
        G(0, 1, fill=[rv])
        k(M2(1, c))
        if t == 6:
            k(f"v_add_u32 v{KA}, s37, v{KA}")
            k(f"v_add_u32 v{KB}, s37, v{KB}")
        rk = rdK(c, ((t + 2) % 8) * 2560)
        G(0, 2, fill=[rk[0], rk[1]])
        k(MPV(0, c, 0))
        G(0, 3)
        k(M1(0, n))
        G(1, 0)
        k(MPV(0, c, 1))
        G(1, 1)
        k(M2(0, n))
        G(1, 2)
        k(MPV(1, c, 0))
        G(1, 3)
    if dbg:
        body = k.L[L0:]
        def drop(l):
            l = l.strip()
            if "nods" in dbg and (l.startswith("ds_") or "exec" in l or l.startswith("s_waitcnt")): return True
            if "nomfma" in dbg and l.startswith("v_mfma"): return True
            if "nocvt" in dbg and (l.startswith("v_cvt") or l.startswith("v_mov_b32_sdwa")): return True
            if "noexp" in dbg and l.startswith("v_exp"): return True
            if "nom2" in dbg and "32x32x8" in l: return True
            if "nopv" in dbg and l.startswith(f"v_mfma_f32_32x32x16_bf16 v[{O[0]}") : return True
            if "nopv" in dbg and l.startswith(f"v_mfma_f32_32x32x16_bf16 v[{O[1]}") : return True
            return False
        k.L = k.L[:L0] + [l for l in body if not drop(l)]
    k("s_add_u32 s36, s36, 1")
    k("s_cmp_lt_u32 s36, 8")
    k(f"s_cbranch_scc1 {k.ref('loop')}")
    k("s_nop 0")
    k(MPV(1, 1, 1))
    k.stamp(3)
    k("s_waitcnt lgkmcnt(0)")
    k("s_nop 7")
    k("s_nop 3")
    L = [5, 7]
    k("v_mov_b32 v16, 0")
    for x in range(2):
        k(f"v_mov_b32 v{L[x]-1}, v{O[x]+8}")
        k(f"v_mov_b32 v{L[x]}, v{O[x]+8}")
    k("s_nop 1")
    for x in range(2):
        k(f"v_permlane32_swap_b32 v{L[x]-1}, v{L[x]}")
    for x in range(2):
        for r in range(12):
            k(f"v_fma_f32 v16, v{O[x]+r}, 0, v16")
    k(f"s_mov_b32 s40, {f2u(2.0**40):#x}")
    k(f"s_mov_b32 s41, {f2u(2.0**-40):#x}")
    k("v_cmp_eq_f32 vcc, 0, v16")
    k("v_cmp_lt_f32 s[42:43], s41, v5")
    k("v_cmp_gt_f32 s[44:45], s40, v5")
    k("v_cmp_lt_f32 s[46:47], s41, v7")
    k("v_cmp_gt_f32 s[48:49], s40, v7")
    k("s_nop 3")
    k("s_and_b64 vcc, vcc, s[42:43]")
    k("s_and_b64 vcc, vcc, s[44:45]")
    k("s_and_b64 vcc, vcc, s[46:47]")
    k("s_and_b64 vcc, vcc, s[48:49]")
    if force_slow:
        k("s_mov_b64 vcc, 0")
    k("s_cmp_eq_u64 vcc, -1")
    k(f"s_cbranch_scc0 {k.ref('slow')}")
    k.lab("fin")
    k("v_rcp_f32 v5, v5")
    k("v_rcp_f32 v7, v7")
    k("s_mul_i32 s40, s24, 5")
    k("v_lshrrev_b32 v17, 5, v0")
    k("v_add_u32 v17, s40, v17")
    k("v_lshrrev_b32 v16, 1, v17")
    k("v_lshlrev_b32 v16, 9, v16")
    k("v_and_b32 v17, 1, v17")
    k("v_lshl_add_u32 v16, v17, 3, v16")
    k("v_and_b32 v17, 31, v0")
    k("v_lshl_add_u32 v16, v17, 4, v16")
    k("s_mul_i32 s41, s25, 40960")
    k(f"s_add_u32 s41, s41, {WS_O}")
    k("s_add_u32 s42, s41, 40960")
    for x in range(2):
        for r in range(0, 12, 2):
            k(f"v_pk_mul_f32 v[{O[x]+r}:{O[x]+r+1}], v[{O[x]+r}:{O[x]+r+1}], v[{L[x]-1}:{L[x]}] op_sel:[0,1] op_sel_hi:[1,1]")
    for x in range(2):
        for j in range(6):
            k(f"v_cvt_pk_bf16_f32 v{20+6*x+j}, v{O[x]+2*j}, v{O[x]+2*j+1}")
    for x in range(2):
        k(f"buffer_store_dwordx2 v[{20+6*x}:{21+6*x}], v16, s[12:15], s{41+x} offen")
        k(f"buffer_store_dwordx2 v[{22+6*x}:{23+6*x}], v16, s[12:15], s{41+x} offen offset:512")
    k("s_mov_b64 exec, 0xffffffff")
    for x in range(2):
        k(f"buffer_store_dwordx2 v[{24+6*x}:{25+6*x}], v16, s[12:15], s{41+x} offen offset:1024")
    k("s_waitcnt vmcnt(0)")
    k.stamp(4); k.stamp_flush(6, kidx, 5, 26)
    k("s_endpgm")
    k.lab("slow")
    MX = 88
    for x in range(2):
        lane_addrs()
        k(f"v_mov_b32 v{MX}, {f2u(-3.0e38):#x}")
        for r in range(16):
            k(f"v_mov_b32 v{O[x]+r}, 0")
        k("s_mov_b32 s36, 0")
        k.lab(f"sl{x}")
        for r in rdK(0, 0) + rdV(0, 0): k(r)
        k("s_waitcnt lgkmcnt(0)")
        k(M1(x, 0))
        k("s_nop 7"); k("s_nop 1")
        k(M2(x, 0))
        k("s_nop 7"); k("s_nop 3")
        s = S[x]
        k(f"v_max3_f32 v4, v{s}, v{s+1}, v{s+2}")
        for i in range(3, 15, 2):
            k(f"v_max3_f32 v4, v4, v{s+i}, v{s+i+1}")
        k(f"v_max_f32 v4, v4, v{s+15}")
        k("v_mov_b32 v5, v4")
        k("s_nop 1")
        k("v_permlane32_swap_b32 v4, v5")
        k("s_nop 1")
        k(f"v_max3_f32 v4, v4, v5, v{MX}")
        k(f"v_sub_f32 v5, v{MX}, v4")
        k("v_exp_f32 v5, v5")
        k(f"v_mov_b32 v{MX}, v4")
        for i in range(16):
            k(f"v_sub_f32 v{s+i}, v{s+i}, v4")
        for i in range(16):
            k(f"v_exp_f32 v{s+i}, v{s+i}")
        for r in range(12):
            k(f"v_mul_f32 v{O[x]+r}, v{O[x]+r}, v5")
        for j in range(8):
            k(f"v_cvt_pk_bf16_f32 v{P+j}, v{s+2*j}, v{s+2*j+1}")
        k(f"v_add_u32 v{KA}, 2560, v{KA}")
        k(f"v_add_u32 v{KB}, 2560, v{KB}")
        k(f"v_add_u32 v{VA}, 2560, v{VA}")
        k("s_nop 4")
        k(MPV(x, 0, 0))
        k(MPV(x, 0, 1))
        k("s_nop 7"); k("s_nop 3")
        k("s_add_u32 s36, s36, 1")
        k("s_cmp_lt_u32 s36, 64")
        k(f"s_cbranch_scc1 {k.ref(f'sl{x}')}")
    for x in range(2):
        k(f"v_mov_b32 v{L[x]-1}, v{O[x]+8}")
        k(f"v_mov_b32 v{L[x]}, v{O[x]+8}")
    k("s_nop 1")
    for x in range(2):
        k(f"v_permlane32_swap_b32 v{L[x]-1}, v{L[x]}")
    k("s_nop 1")
    k(f"s_branch {k.ref('fin')}")
    return k


def gen_attn3(name, kidx=0, force_slow=False, pf=0, h=8, um=8, uh=8, pm=3, phl=0, b2=8, dbg=(), repack=False):
    NWG = 256
    LDS = 163840
    TM = 64 - h
    assert TM % um == 0 and h % uh == 0 and b2 % um == 0 and um % 2 == 0 and uh % 2 == 0
    SLOT = 2688
    assert 8 * SLOT <= b2 * 2560 + 3840
    k = Kern(name, NWG, 512, LDS, vgpr=160)
    KA, KB, VA = 1, 2, 3
    Q16 = [8, 28]; Q4 = [12, 14]
    K16 = [16, 20]; K4 = [24, 26]
    V = [32, 40]
    S = [48, 64]
    P = 80
    O = [96, 112]
    k(f"s_cmp_ge_u32 s2, {NWG}")
    k(f"s_cbranch_scc1 {k.ref('end')}")
    k.stamp(0)
    k.karg(6, 80)
    wave_id(k, 26)
    k("s_and_b32 s20, s2, 7")
    k("s_lshr_b32 s21, s2, 3")
    k("s_lshr_b32 s22, s21, 3")
    k("s_lshl_b32 s23, s20, 2")
    k("s_add_u32 s24, s23, s22")
    k("v_lshlrev_b32 v4, 4, v0")
    k("s_and_b32 s33, s26, 3")
    k("s_mul_i32 s50, s24, 163840")
    k(f"s_add_u32 s50, s50, {WS_KV}")
    k("s_and_b32 s25, s21, 7")
    k("s_lshl_b32 s25, s25, 3")
    k("s_lshl_b32 s23, s33, 1")
    k("s_add_u32 s25, s25, s23")
    k("s_lshl_b32 s27, s24, 6")
    k("s_add_u32 s27, s27, s25")
    k("s_mul_i32 s27, s27, 1280")
    k(f"s_add_u32 s27, s27, {WS_Q}")
    k("s_add_u32 s28, s27, 1280")
    def q_loads():
        k("v_and_b32 v5, 31, v0")
        k("v_lshlrev_b32 v6, 3, v5")
        for x in range(2):
            k(f"v_mov_b32 v{Q4[x]}, 0")
            k(f"v_mov_b32 v{Q4[x]+1}, 0")
        k(f"buffer_load_dwordx4 v[{Q16[0]}:{Q16[0]+3}], v4, s[12:15], s27 offen")
        k(f"buffer_load_dwordx4 v[{Q16[1]}:{Q16[1]+3}], v4, s[12:15], s28 offen")
        k("s_mov_b64 exec, 0xffffffff")
        k(f"buffer_load_dwordx2 v[{Q4[0]}:{Q4[0]+1}], v6, s[12:15], s27 offen offset:1024")
        k(f"buffer_load_dwordx2 v[{Q4[1]}:{Q4[1]+1}], v6, s[12:15], s28 offen offset:1024")
        k("s_mov_b64 exec, -1")
    def lane_addrs():
        k("v_and_b32 v5, 31, v0")
        k("v_and_b32 v6, 0x13, v5")
        k("v_and_b32 v7, 4, v5")
        k("v_lshl_or_b32 v6, v7, 1, v6")
        k("v_and_b32 v7, 8, v5")
        k("v_lshrrev_b32 v7, 1, v7")
        k("v_or_b32 v6, v6, v7")
        k("v_lshrrev_b32 v7, 5, v0")
        k(f"v_lshlrev_b32 v{KA}, 9, v7")
        k(f"v_lshl_add_u32 v{KA}, v6, 4, v{KA}")
        k(f"v_lshlrev_b32 v{KB}, 3, v6")
        k(f"v_add_u32 v{KB}, 1024, v{KB}")
        k(f"v_mul_u32_u24 v{VA}, 320, v7")
        k(f"v_lshl_add_u32 v{VA}, v5, 4, v{VA}")
        k(f"v_add_u32 v{VA}, 1280, v{VA}")
    def init_regs():
        lane_addrs()
        k("v_cmp_eq_u32 vcc, 20, v5")
        k("v_mov_b32 v7, 0x3f803f80")
        k("s_mov_b32 s34, 0x000fffff")
        k("s_mov_b32 s35, 0x000fffff")
        k(f"v_cndmask_b32 v{V[0]}, 0, v7, vcc")
        for r in range(1, 16):
            k(f"v_mov_b32 v{V[0]+r}, v{V[0]}")
        for r in range(32):
            k(f"v_mov_b32 v{O[0]+r}, 0")
        for r in range(4, 8):
            k(f"v_mov_b32 v{P+r}, 0")
    def rdK(buf, off):
        return [f"ds_read_b128 v[{K16[buf]}:{K16[buf]+3}], v{KA} offset:{off}",
                f"ds_read_b64 v[{K4[buf]}:{K4[buf]+1}], v{KB} offset:{off}"]
    def rdV(buf, off):
        return ["s_mov_b64 exec, s[34:35]",
                f"ds_read_b128 v[{V[buf]}:{V[buf]+3}], v{VA} offset:{off}",
                f"ds_read_b128 v[{V[buf]+4}:{V[buf]+7}], v{VA} offset:{off+640}",
                "s_mov_b64 exec, -1"]
    def M1(x, kb): return f"v_mfma_f32_32x32x16_bf16 v[{S[x]}:{S[x]+15}], v[{K16[kb]}:{K16[kb]+3}], v[{Q16[x]}:{Q16[x]+3}], 0"
    def M2(x, kb): return f"v_mfma_f32_32x32x8bf16_1k v[{S[x]}:{S[x]+15}], v[{K4[kb]}:{K4[kb]+1}], v[{Q4[x]}:{Q4[x]+1}], v[{S[x]}:{S[x]+15}]"
    def MPV(x, vb, f): return f"v_mfma_f32_32x32x16_bf16 v[{O[x]}:{O[x]+15}], v[{V[vb]+4*f}:{V[vb]+4*f+3}], v[{P+4*f}:{P+4*f+3}], v[{O[x]}:{O[x]+15}]"
    def G(x, g, fill=()):
        s = S[x] + 4 * g
        p = P + 2 * g
        fill = list(fill)
        ex = [f"v_exp_f32 v{s+i}, v{s+i}" for i in range(4)]
        pk = [f"v_cvt_pk_bf16_f32 v{p}, v{s}, v{s+1}", f"v_cvt_pk_bf16_f32 v{p+1}, v{s+2}, v{s+3}"]
        for i in range(4):
            k(ex[i])
            if i < len(fill) and fill[i]:
                for f in (fill[i] if isinstance(fill[i], list) else [fill[i]]):
                    k(f)
        for x_ in pk: k(x_)
    def loop(tag, T, U, bar_after):
        NIT = T // U
        for r in rdK(0, 0) + rdK(1, 2560) + rdV(0, 0): k(r)
        k("s_waitcnt lgkmcnt(4)")
        k(M1(0, 0))
        k(f"s_mov_b32 s36, {NIT}")
        k("s_nop 7")
        k("s_nop 1")
        k(M2(0, 0))
        k("s_nop 7")
        k("s_nop 3")
        k.lab(f"loop{tag}")
        if bar_after is not None:
            k(f"s_cmp_eq_u32 s36, {NIT - bar_after // U}")
            k(f"s_cbranch_scc0 {k.ref('nosync' + tag)}")
            k("s_barrier")
            k.lab("nosync" + tag)
        k("s_cmp_eq_u32 s36, 1")
        k(f"s_cselect_b32 s37, 0, {U*2560}")
        for t in range(U):
            c, n = t & 1, (t + 1) & 1
            k("s_waitcnt lgkmcnt(0)")
            k(M1(1, c))
            G(0, 0)
            k(MPV(1, n, 1))
            if t == U - 1:
                k(f"v_add_u32 v{VA}, s37, v{VA}")
            rv = rdV(n, ((t + 1) % U) * 2560)
            G(0, 1, fill=[rv])
            k(M2(1, c))
            if t == U - 2:
                k(f"v_add_u32 v{KA}, s37, v{KA}")
                k(f"v_add_u32 v{KB}, s37, v{KB}")
            rk = rdK(c, ((t + 2) % U) * 2560)
            G(0, 2, fill=[rk[0], rk[1]])
            k(MPV(0, c, 0))
            G(0, 3)
            k(M1(0, n))
            G(1, 0)
            k(MPV(0, c, 1))
            G(1, 1)
            k(M2(0, n))
            G(1, 2)
            k(MPV(1, c, 0))
            G(1, 3)
        k("s_sub_u32 s36, s36, 1")
        k("s_cmp_lg_u32 s36, 0")
        k(f"s_cbranch_scc1 {k.ref('loop' + tag)}")
        k("s_nop 0")
        k(MPV(1, 1, 1))
    def finish(role):
        keep, give = role, 1 - role
        tg = "mh"[role]
        T_ = S[0]
        k.stamp(3)
        k(f"s_lshl_b32 s40, s33, 1")
        k(f"s_add_u32 s41, s40, {role}")
        k(f"s_add_u32 s40, s40, {1 - role}")
        k(f"s_mul_i32 s41, s41, {SLOT}")
        k(f"s_mul_i32 s40, s40, {SLOT}")
        k("v_lshlrev_b32 v4, 4, v0")
        k("v_and_b32 v5, 31, v0")
        k("v_lshlrev_b32 v5, 2, v5")
        k("v_add_u32 v16, s41, v4")
        k("v_add_u32 v17, s41, v5")
        k("v_add_u32 v18, s40, v4")
        k("v_add_u32 v19, s40, v5")
        for r in range(8, 12):
            k(f"v_mov_b32 v{T_+r}, 0")
        k("s_waitcnt lgkmcnt(0)")
        k("s_nop 7" if role == 0 else "s_nop 0")
        k(f"ds_write_b128 v16, v[{O[give]}:{O[give]+3}]")
        k(f"ds_write_b128 v16, v[{O[give]+4}:{O[give]+7}] offset:1024")
        k("s_mov_b64 exec, 0xffffffff")
        k(f"ds_write_b128 v16, v[{O[give]+8}:{O[give]+11}] offset:2048")
        k("s_not_b64 exec, exec")
        k(f"ds_write_b32 v17, v{O[give]+8} offset:2560")
        k("s_mov_b64 exec, -1")
        k("s_mul_i32 s42, s24, 5")
        k("v_lshrrev_b32 v21, 5, v0")
        k("v_add_u32 v21, s42, v21")
        k("v_lshrrev_b32 v20, 1, v21")
        k("v_lshlrev_b32 v20, 9, v20")
        k("v_and_b32 v21, 1, v21")
        k("v_lshl_add_u32 v20, v21, 3, v20")
        k("v_and_b32 v21, 31, v0")
        k("v_lshl_add_u32 v20, v21, 4, v20")
        k(f"s_add_u32 s51, s25, {keep}")
        k("s_mul_i32 s51, s51, 40960")
        k(f"s_add_u32 s51, s51, {WS_O}")
        k("s_waitcnt lgkmcnt(0)")
        k("s_barrier")
        k(f"ds_read_b128 v[{T_}:{T_+3}], v18")
        k(f"ds_read_b128 v[{T_+4}:{T_+7}], v18 offset:1024")
        k("s_mov_b64 exec, 0xffffffff")
        k(f"ds_read_b128 v[{T_+8}:{T_+11}], v18 offset:2048")
        k("s_not_b64 exec, exec")
        k(f"ds_read_b32 v{T_+8}, v19 offset:2560")
        k("s_mov_b64 exec, -1")
        Ox = O[keep]
        k("s_waitcnt lgkmcnt(2)")
        for r in range(8):
            k(f"v_add_f32 v{Ox+r}, v{Ox+r}, v{T_+r}")
        k("s_waitcnt lgkmcnt(0)")
        for r in range(8, 12):
            k(f"v_add_f32 v{Ox+r}, v{Ox+r}, v{T_+r}")
        k(f"v_mov_b32 v4, v{Ox+8}")
        k(f"v_mov_b32 v5, v{Ox+8}")
        k("v_mov_b32 v16, 0")
        k("s_nop 0")
        k("v_permlane32_swap_b32 v4, v5")
        for r in range(12):
            k(f"v_fma_f32 v16, v{Ox+r}, 0, v16")
        k(f"s_mov_b32 s40, {f2u(2.0**40):#x}")
        k(f"s_mov_b32 s41, {f2u(2.0**-40):#x}")
        k("v_cmp_eq_f32 vcc, 0, v16")
        k("v_cmp_lt_f32 s[42:43], s41, v5")
        k("v_cmp_gt_f32 s[44:45], s40, v5")
        k("s_nop 3")
        k("s_and_b64 vcc, vcc, s[42:43]")
        k("s_and_b64 vcc, vcc, s[44:45]")
        if force_slow:
            k("s_mov_b64 vcc, 0")
        k("s_cmp_eq_u64 vcc, -1")
        k(f"s_cbranch_scc0 {k.ref('slow' + tg)}")
        k.lab("fin" + tg)
        k("v_rcp_f32 v5, v5")
        k("s_nop 0")
        for r in range(0, 12, 2):
            k(f"v_pk_mul_f32 v[{Ox+r}:{Ox+r+1}], v[{Ox+r}:{Ox+r+1}], v[4:5] op_sel:[0,1] op_sel_hi:[1,1]")
        for j in range(6):
            k(f"v_cvt_pk_bf16_f32 v{22+j}, v{Ox+2*j}, v{Ox+2*j+1}")
        k("buffer_store_dwordx2 v[22:23], v20, s[12:15], s51 offen")
        k("buffer_store_dwordx2 v[24:25], v20, s[12:15], s51 offen offset:512")
        k("s_mov_b64 exec, 0xffffffff")
        k("buffer_store_dwordx2 v[26:27], v20, s[12:15], s51 offen offset:1024")
        k("s_waitcnt vmcnt(0)")
        k.stamp(4); k.stamp_flush(6, kidx, 5, 26)
        k("s_endpgm")
        k.lab("slow" + tg)
        MX = 88
        x = keep
        lane_addrs()
        k(f"v_mov_b32 v{MX}, {f2u(-3.0e38):#x}")
        for r in range(16):
            k(f"v_mov_b32 v{O[x]+r}, 0")
        k("s_mov_b32 s36, 0")
        k.lab(f"sl{tg}")
        k(f"buffer_load_dwordx4 v[{K16[0]}:{K16[0]+3}], v{KA}, s[12:15], s50 offen")
        k(f"buffer_load_dwordx2 v[{K4[0]}:{K4[0]+1}], v{KB}, s[12:15], s50 offen")
        k("s_mov_b64 exec, s[34:35]")
        k(f"buffer_load_dwordx4 v[{V[0]}:{V[0]+3}], v{VA}, s[12:15], s50 offen")
        k(f"buffer_load_dwordx4 v[{V[0]+4}:{V[0]+7}], v{VA}, s[12:15], s50 offen offset:640")
        k("s_mov_b64 exec, -1")
        k("s_waitcnt vmcnt(0)")
        k(M1(x, 0))
        k("s_nop 7"); k("s_nop 1")
        k(M2(x, 0))
        k("s_nop 7"); k("s_nop 3")
        s = S[x]
        k(f"v_max3_f32 v4, v{s}, v{s+1}, v{s+2}")
        for i in range(3, 15, 2):
            k(f"v_max3_f32 v4, v4, v{s+i}, v{s+i+1}")
        k(f"v_max_f32 v4, v4, v{s+15}")
        k("v_mov_b32 v5, v4")
        k("s_nop 1")
        k("v_permlane32_swap_b32 v4, v5")
        k("s_nop 1")
        k(f"v_max3_f32 v4, v4, v5, v{MX}")
        k(f"v_sub_f32 v5, v{MX}, v4")
        k("v_exp_f32 v5, v5")
        k(f"v_mov_b32 v{MX}, v4")
        for i in range(16):
            k(f"v_sub_f32 v{s+i}, v{s+i}, v4")
        for i in range(16):
            k(f"v_exp_f32 v{s+i}, v{s+i}")
        for r in range(12):
            k(f"v_mul_f32 v{O[x]+r}, v{O[x]+r}, v5")
        for j in range(8):
            k(f"v_cvt_pk_bf16_f32 v{P+j}, v{s+2*j}, v{s+2*j+1}")
        k(f"v_add_u32 v{KA}, 2560, v{KA}")
        k(f"v_add_u32 v{KB}, 2560, v{KB}")
        k(f"v_add_u32 v{VA}, 2560, v{VA}")
        k("s_nop 4")
        k(MPV(x, 0, 0))
        k(MPV(x, 0, 1))
        k("s_nop 7"); k("s_nop 3")
        k("s_add_u32 s36, s36, 1")
        k("s_cmp_lt_u32 s36, 64")
        k(f"s_cbranch_scc1 {k.ref(f'sl{tg}')}")
        k(f"v_mov_b32 v4, v{O[x]+8}")
        k(f"v_mov_b32 v5, v{O[x]+8}")
        k("s_nop 1")
        k("v_permlane32_swap_b32 v4, v5")
        k("s_nop 1")
        k(f"s_branch {k.ref('fin' + tg)}")
    k("s_cmp_lt_u32 s26, 4")
    k(f"s_cbranch_scc1 {k.ref('compute')}")
    k("s_mul_i32 s29, s33, 6144")
    k("s_mul_i32 s30, s33, 34816")
    k("s_add_u32 s30, s30, 24576")
    k("s_waitcnt lgkmcnt(0)")
    k.srd(12, 6, 0, WS_SIZE)
    k("s_mov_b32 m0, s29")
    k("s_add_u32 s31, s50, s29")
    for i in range(4):
        k(f"buffer_load_dwordx4 v4, s[12:15], s31 offen offset:{i*1024} lds")
    k("s_add_u32 m0, s29, 4096")
    k("s_add_u32 s31, s31, 4096")
    for i in range(2):
        k(f"buffer_load_dwordx4 v4, s[12:15], s31 offen offset:{i*1024} lds")
    k("s_add_u32 s32, s50, s30")
    def stB(g):
        k(f"s_add_u32 m0, s30, {g*4096}")
        k(f"s_add_u32 s31, s32, {g*4096}")
        for i in range(4 if g < 8 else 2):
            k(f"buffer_load_dwordx4 v4, s[12:15], s31 offen offset:{i*1024} lds")
    stB(0); stB(1)
    k.stamp(1)
    k("s_waitcnt vmcnt(8)")
    k("s_barrier")
    for g in range(2, 9):
        stB(g)
    q_loads()
    init_regs()
    k(f"v_add_u32 v{KA}, {TM*2560}, v{KA}")
    k(f"v_add_u32 v{KB}, {TM*2560}, v{KB}")
    k(f"v_add_u32 v{VA}, {TM*2560}, v{VA}")
    k("s_waitcnt vmcnt(0)")
    k("s_barrier")
    k.stamp(2)
    if repack:
        repack_unit(k, 33, 48, 128)
    if pf:
        k("s_and_b32 s40, s20, 1")
        l2_prefetch(k, PF_ATT[:pf], 40, 21, 33, 42, 128, 129)
    if phl != 0: k(f"s_setprio {phl}")
    loop("h", h, uh, None)
    finish(1)
    k.lab("end")
    k("s_endpgm")
    k.lab("compute")
    if pm != 0: k(f"s_setprio {pm}")
    k("s_waitcnt lgkmcnt(0)")
    k.srd(12, 6, 0, WS_SIZE)
    q_loads()
    init_regs()
    k.stamp(1)
    k("s_waitcnt vmcnt(0)")
    k("s_barrier")
    k.stamp(2)
    loop("m", TM, um, b2)
    finish(0)
    return k
```

```python
import sys
from dsl import *
import ph, hazard
from addsc import addsc
def build(which, opt):
    first = int(opt.get("first", 2))
    dbg = tuple(opt.get("dbg", "").split(",")) if opt.get("dbg") else ()
    dk = opt.get("dk", "")
    def D(name):
        if not dk: return dbg
        return dbg if any(name.startswith(p) for p in dk.split(",")) else ()
    A = lambda n, kind, l, ki: ph.gen_gemmA(n, kind, l, ki, dbg=D(n), first=first)
    B = lambda n, kind, l, ki: ph.gen_gemmB(n, kind, l, ki, dbg=D(n), first=first)
    if which == "a":
        return assemble([ph.gen_prep(), A("qkv0_kernel", "qkv", 0, 1)])
    if which == "ar":
        return assemble([ph.gen_qkv_raw("qkv0_kernel", 1, dbg=D("qkv0"), first=first)])
    if which == "w1":
        return assemble([A("w10_kernel", "w1", 0, 4)])
    if which == "pw1":
        return assemble([ph.gen_prep(), A("w10_kernel", "w1", 0, 4)])
    if which == "attn":
        return assemble([ph.gen_attn("attn0_kernel", 2)])
    if which == "attns":
        return assemble([ph.gen_attn("attn0_kernel", 2, pack="sdwa")])
    if which == "attnf":
        return assemble([ph.gen_attn("attn0_kernel", 2, force_slow=True)])
    if which == "attn2":
        return assemble([ph.gen_attn2("attn0_kernel", 2)])
    if which == "attn2s":
        return assemble([ph.gen_attn2("attn0_kernel", 2, pack="sdwa")])
    if which == "attn2f":
        return assemble([ph.gen_attn2("attn0_kernel", 2, force_slow=True)])
    if which in ("attn3", "attn3f"):
        return assemble([ph.gen_attn3("attn0_kernel", 2, force_slow=(which == "attn3f"), **attn_opts(opt))])
    if which == "wo":
        return assemble([B("wo0_kernel", "wo", 0, 3)])
    if which == "w2":
        return assemble([B("w20_kernel", "w2", 0, 5)])
    if which == "w21":
        return assemble([B("w21_kernel", "w2", 1, 10)])
    if which == "full":
        raw = "raw" in opt
        ks = [] if raw else [ph.gen_prep()]
        at = opt.get("attn", "2")
        for l in range(2):
            r0 = raw and l == 0
            if at == "2": a = ph.gen_attn2(f"attn{l}_kernel", 2 + 5*l, pf=int(opt.get("pf", 0)))
            else: a = ph.gen_attn3(f"attn{l}_kernel", 2 + 5*l, pf=(int(opt.get("pf0", 0)) if r0 else int(opt.get("pf", 0))), repack=r0, **attn_opts(opt))
            q = ph.gen_qkv_raw(f"qkv{l}_kernel", 1 + 5*l, dbg=D(f"qkv{l}"), first=first) if r0 else A(f"qkv{l}_kernel", "qkv", l, 1 + 5*l)
            wo = ph.gen_gemmB(f"wo{l}_kernel", "wo", l, 3 + 5*l, dbg=D(f"wo{l}"), first=first, rawres=r0)
            ks += [q, a, wo, A(f"w1{l}_kernel", "w1", l, 4 + 5*l),
                   B(f"w2{l}_kernel", "w2", l, 5 + 5*l)]
        return assemble(ks)
def attn_opts(opt):
    o = {}
    for key in ("h", "um", "uh", "pm", "phl", "b2"):
        if key in opt: o[key] = int(opt[key])
    return o
if __name__ == "__main__":
    which = sys.argv[1]; out = sys.argv[2]
    opt = {}
    for a in sys.argv[3:]:
        if "=" in a:
            x, y = a.split("=", 1); opt[x] = y
        else: opt[a] = "1"
    Kern.PROF = "prof" in opt
    t = build(which, opt)
    if "sc1" in opt: t = addsc(t)
    open(out, "w").write(t)
    bad = hazard.check(t)
    print(out, "hazards:", len(bad), "bytes:", len(t))
    for b in bad[:10]: print(b)
```

```python
NAME = "interleave_layers__mha_block__mixer_channel_mlp__prompt"
MB = 1 << 20

def v(i): return f"v{i}"
def vv(i, n): return f"v{i}" if n == 1 else f"v[{i}:{i+n-1}]"
def s(i): return f"s{i}"
def ss(i, n): return f"s{i}" if n == 1 else f"s[{i}:{i+n-1}]"

class Kern:
    def __init__(self, name, nwg, block, lds, vgpr=256):
        self.name = name
        self.nwg = nwg
        self.block = block
        self.lds = lds
        self.vgpr = vgpr
        self.L = []
        self.nlab = 0
        self.pfx = ""
        self.fused = False
    def __call__(self, t):
        for line in t.split("\n"):
            line = line.strip()
            if line:
                self.L.append("  " + line)
    def c(self, t):
        self.L.append("  ; " + t)
    def lab(self, l):
        self.L.append(f"{self.name}_{self.pfx}{l}:")
    def ref(self, l):
        return f"{self.name}_{self.pfx}{l}"
    def newlab(self, p="L"):
        self.nlab += 1
        return f"{p}{self.nlab}"
    def srd(self, d, ptr, off, size):
        if off:
            self(f"s_add_u32 s{d}, s{ptr}, {off:#x}")
            self(f"s_addc_u32 s{d+1}, s{ptr+1}, 0")
        else:
            self(f"s_mov_b32 s{d}, s{ptr}")
            self(f"s_mov_b32 s{d+1}, s{ptr+1}")
        self(f"s_mov_b32 s{d+2}, {size:#x}")
        self(f"s_mov_b32 s{d+3}, 0x00020000")
    def karg(self, d, off):
        self(f"s_load_dwordx2 s[{d}:{d+1}], s[0:1], {off}")
    PROF = False
    def stamp(self, i):
        if Kern.PROF:
            self(f"s_memrealtime s[{70+4*i}:{71+4*i}]")
            self(f"s_memtime s[{72+4*i}:{73+4*i}]")
    def stamp_flush(self, wsreg, kidx, n, wave_sreg):
        if not Kern.PROF: return
        if self.fused: return
        self("s_waitcnt lgkmcnt(0)")
        self.srd(96, wsreg, 64 * MB + kidx * MB, MB)
        self(f"s_lshl_b32 s68, s2, 4")
        self(f"s_add_u32 s68, s68, s{wave_sreg}")
        self(f"s_lshl_b32 s68, s68, 6")
        self("s_mov_b64 exec, 1")
        self("v_mov_b32 v60, 0")
        for i in range(n):
            self(f"v_mov_b32 v62, s{70+4*i}")
            self(f"v_mov_b32 v63, s{72+4*i}")
            self(f"buffer_store_dwordx2 v[62:63], v60, s[96:99], s68 offen offset:{8*i}")
            self("s_waitcnt vmcnt(0)")
    def stamp_save(self, p, n=5):
        if not Kern.PROF: return
        self("s_waitcnt lgkmcnt(0)")
        for i in range(n):
            self(f"v_writelane_b32 v254, s{70+4*i}, {8*p+i}")
            self(f"v_writelane_b32 v255, s{72+4*i}, {8*p+i}")
    def stamp_flush_all(self, wsreg, kidx0, nph, wave_sreg):
        if not Kern.PROF: return
        self.srd(96, wsreg, 64 * MB + kidx0 * MB, nph * MB)
        self(f"s_lshl_b32 s68, s2, 4")
        self(f"s_add_u32 s68, s68, s{wave_sreg}")
        self(f"s_lshl_b32 s68, s68, 6")
        self("v_lshrrev_b32 v60, 3, v0")
        self("v_lshlrev_b32 v60, 20, v60")
        self("v_and_b32 v61, 7, v0")
        self("v_lshl_add_u32 v60, v61, 3, v60")
        self("v_cmp_gt_u32 vcc, 5, v61")
        self("s_and_b64 exec, exec, vcc")
        self(f"v_cmp_gt_u32 vcc, {8*nph}, v0")
        self("s_and_b64 exec, exec, vcc")
        self("buffer_store_dwordx2 v[254:255], v60, s[96:99], s68 offen")
        self("s_waitcnt vmcnt(0)")
    def text(self):
        out = []
        out.append(f".globl {self.name}")
        out.append(".p2align 8")
        out.append(f".type {self.name},@function")
        out.append(f"{self.name}:")
        out += self.L
        return "\n".join(out)
    def desc(self):
        acc = (self.vgpr + 3) // 4 * 4
        return f""".section .rodata,"a"
.p2align 6
.amdhsa_kernel {self.name}
  .amdhsa_next_free_vgpr {self.vgpr}
  .amdhsa_next_free_sgpr 102
  .amdhsa_accum_offset {acc}
  .amdhsa_group_segment_fixed_size 0
  .amdhsa_kernarg_size 88
  .amdhsa_user_sgpr_count 2
  .amdhsa_user_sgpr_kernarg_segment_ptr 1
  .amdhsa_system_sgpr_workgroup_id_x 1
.end_amdhsa_kernel"""

HEADER = """; Kernarg layout for this problem (88 bytes, ptrs only, base s[0:1]):
"""

def assemble(kerns, order=None):
    order = order or kerns
    out = [HEADER.rstrip("\n")]
    for k in order:
        out.append(f"; @launch kernel={k.name} grid=({k.nwg},1,1) block=({k.block},1,1) lds={k.lds}")
    out.append('.amdgcn_target "amdgcn-amd-amdhsa--gfx950"')
    out.append(".text")
    for k in kerns:
        out.append(k.text())
    for k in kerns:
        out.append(k.desc())
    return "\n".join(out) + "\n"
```

```python
from dsl import *
import struct
def f2u(x):
    return struct.unpack("<I", struct.pack("<f", x))[0]

KB = 1024
WS_WQ = 0
WS_W1 = 3 * MB
WS_WO = 5 * MB
WS_W2 = 6 * MB
WS_CSQ = 8 * MB
WS_CS1 = 8 * MB + 128 * KB
WS_ST0 = 8 * MB + 256 * KB
WS_ST1 = 8 * MB + 512 * KB
WS_X0 = 9 * MB
WS_X1 = 12 * MB
WS_X2 = 15 * MB
WS_O = 18 * MB
WS_Q = 21 * MB
WS_KV = 24 * MB
WS_H = 30 * MB
X_BYTES = 2048 * 640 * 2
H_BYTES = 2048 * 1536 * 2
ST_BYTES = 16 * 2048 * 8
Q_BYTES = 32 * 64 * 1280
KV_BYTES = 32 * 64 * 2560
WS_SIZE = 40 * MB
QSCALE = (20 ** -0.5) * 1.4426950408889634
NCSP = 10

def wave_id(k, sreg, vtmp=1):
    k(f"v_lshrrev_b32 v{vtmp}, 6, v0")
    k("s_nop 0")
    k(f"v_readfirstlane_b32 s{sreg}, v{vtmp}")
    k("v_and_b32 v0, 63, v0")

def gen_prep(dbg=()):
    NWG = 220
    k = Kern("prep_kernel", NWG, 512, 4 * 8192, vgpr=64)
    k(f"s_cmp_ge_u32 s2, {NWG}")
    k(f"s_cbranch_scc1 {k.ref('end')}")
    k.karg(4, 0)
    k.karg(6, 8)
    k.karg(8, 16)
    k.karg(10, 32)
    k.karg(12, 48)
    k.karg(14, 80)
    wave_id(k, 26)
    k("s_waitcnt lgkmcnt(0)")
    k.srd(16, 14, 0, WS_SIZE)
    k("s_cmp_ge_u32 s26, 4")
    k(f"s_cbranch_scc1 {k.ref('stats')}")
    if "now" in dbg: k(f"s_branch {k.ref('end')}")
    k("s_lshl_b32 s3, s2, 2")
    k("s_add_u32 s3, s3, s26")
    def setup(lbl, lo, ncg, ptr, size, pitch, TN, K, dst, cs, csp):
        k.lab(lbl)
        k(f"s_sub_u32 s3, s3, {lo}")
        k.srd(20, ptr, 0, size)
        k(f"s_mov_b32 s27, {pitch}")
        k(f"s_mov_b32 s28, {(65536 + TN - 1)//TN}")
        k(f"s_mov_b32 s29, {TN}")
        k(f"s_mov_b32 s30, {K//8*TN*16}")
        k(f"s_mov_b32 s31, {dst}")
        k(f"s_mul_i32 s32, s3, {(65536 + ncg - 1)//ncg}")
        k("s_lshr_b32 s32, s32, 16")
        k(f"s_mul_i32 s33, s32, {ncg}")
        k("s_sub_u32 s33, s3, s33")
        k(f"s_mov_b32 s34, {cs if cs is not None else 0xffffffff:#x}")
        k(f"s_mov_b32 s35, {csp}")
        k(f"s_branch {k.ref('go')}")
    k("s_cmp_ge_u32 s3, 640"); k(f"s_cbranch_scc1 {k.ref('m_w2')}")
    k("s_cmp_ge_u32 s3, 540"); k(f"s_cbranch_scc1 {k.ref('m_wo')}")
    k("s_cmp_ge_u32 s3, 300"); k(f"s_cbranch_scc1 {k.ref('m_w1')}")
    setup("m_wq", 0, 30, 6, 640 * 3840, 3840, 128, 640, WS_WQ, WS_CSQ, 1920 * 4)
    setup("m_w1", 300, 24, 10, 640 * 3072, 3072, 96, 640, WS_W1, WS_CS1, 1536 * 4)
    setup("m_wo", 540, 10, 8, 640 * 1280, 1280, 80, 640, WS_WO, None, 0)
    setup("m_w2", 640, 10, 12, 1536 * 1280, 1280, 80, 1536, WS_W2, None, 0)
    k.lab("go")
    k("v_lshrrev_b32 v2, 3, v0")
    k("v_mul_lo_u32 v2, v2, s27")
    k("v_and_b32 v3, 7, v0")
    k("v_lshl_add_u32 v2, v3, 4, v2")
    k("s_lshl_b32 s36, s32, 6")
    k("s_mul_i32 s36, s36, s27")
    k("s_lshl_b32 s37, s33, 7")
    k("s_add_u32 s36, s36, s37")
    k("s_lshl_b32 s38, s27, 3")
    k("s_lshl_b32 s39, s26, 13")
    for j in range(8):
        k(f"s_add_u32 m0, s39, {j*1024}")
        k("s_nop 0")
        k("buffer_load_dwordx4 v2, s[20:23], s36 offen lds")
        if j < 7:
            k("s_add_u32 s36, s36, s38")
    k("s_lshl_b32 s40, s33, 6")
    k("v_add_u32 v4, s40, v0")
    k("v_mul_lo_u32 v5, v4, s28")
    k("v_lshrrev_b32 v5, 16, v5")
    k("v_mul_lo_u32 v6, v5, s29")
    k("v_sub_u32 v6, v4, v6")
    k("v_mul_lo_u32 v5, v5, s30")
    k("v_lshl_add_u32 v5, v6, 4, v5")
    k("s_lshl_b32 s41, s29, 4")
    k("s_lshl_b32 s42, s32, 3")
    k("s_mul_i32 s42, s42, s41")
    k("s_add_u32 s42, s42, s31")
    k("v_bfe_u32 v7, v0, 2, 2")
    k("v_lshlrev_b32 v7, 7, v7")
    k("v_lshrrev_b32 v8, 4, v0")
    k("v_lshl_add_u32 v7, v8, 5, v7")
    k("v_and_b32 v8, 3, v0")
    k("v_lshl_add_u32 v7, v8, 3, v7")
    k("v_add_u32 v7, s39, v7")
    k("v_mov_b32 v10, 0")
    for ku in range(8):
        k(f"s_waitcnt vmcnt({7-ku if ku == 0 else 7})") if False else None
    for ku in range(8):
        k("s_waitcnt vmcnt(7)")
        r = 16 + 4 * ku
        k(f"ds_read_b64_tr_b16 v[{r}:{r+1}], v7 offset:{ku*1024}")
        k(f"ds_read_b64_tr_b16 v[{r+2}:{r+3}], v7 offset:{ku*1024+512}")
        k("s_waitcnt lgkmcnt(0)")
        k(f"buffer_store_dwordx4 v[{r}:{r+3}], v5, s[16:19], s42 offen")
        if ku < 7:
            k("s_add_u32 s42, s42, s41")
    k("s_cmp_eq_u32 s34, 0xffffffff")
    k(f"s_cbranch_scc1 {k.ref('fin')}")
    for i in range(32):
        r = 16 + i
        k(f"v_lshlrev_b32 v8, 16, v{r}")
        k(f"v_and_b32 v9, 0xffff0000, v{r}")
        k("v_add_f32 v10, v10, v8")
        k("v_add_f32 v10, v10, v9")
    k("s_mul_i32 s43, s32, s35")
    k("s_add_u32 s43, s43, s34")
    k("v_lshlrev_b32 v4, 2, v4")
    k("buffer_store_dword v10, v4, s[16:19], s43 offen")
    k.lab("fin")
    k("s_waitcnt vmcnt(0)")
    k("s_endpgm")
    k.lab("stats")
    if "nox" in dbg: k(f"s_branch {k.ref('end')}")
    k("s_cmp_ge_u32 s2, 128")
    k(f"s_cbranch_scc1 {k.ref('end')}")
    k.srd(20, 4, 0, X_BYTES)
    k("s_sub_u32 s26, s26, 4")
    k("s_lshl_b32 s3, s2, 4")
    k("s_lshl_b32 s27, s26, 2")
    k("s_add_u32 s3, s3, s27")
    k("v_lshrrev_b32 v1, 4, v0")
    k("v_add_u32 v1, s3, v1")
    k("v_and_b32 v2, 15, v0")
    k("v_mul_u32_u24 v3, 1280, v1")
    k("v_lshl_add_u32 v3, v2, 4, v3")
    for i in range(5):
        k(f"buffer_load_dwordx4 v[{8+4*i}:{11+4*i}], v3, s[20:23], 0 offen offset:{256*i}")
    k("v_lshrrev_b32 v30, 5, v1")
    k("v_mul_u32_u24 v30, 40960, v30")
    k("v_and_b32 v31, 31, v1")
    k("v_lshl_add_u32 v30, v31, 4, v30")
    k("v_lshl_add_u32 v30, v2, 9, v30")
    k("v_mov_b32 v4, 0")
    k("v_mov_b32 v5, 0")
    for i in range(5):
        k(f"s_waitcnt vmcnt(4)")
        k(f"s_mov_b32 s28, {WS_X0 + i*8192}")
        k(f"buffer_store_dwordx4 v[{8+4*i}:{11+4*i}], v30, s[16:19], s28 offen")
        for j in range(4):
            r = 8 + 4 * i + j
            k(f"v_lshlrev_b32 v6, 16, v{r}")
            k(f"v_and_b32 v7, 0xffff0000, v{r}")
            k("v_add_f32 v4, v4, v6")
            k("v_fmac_f32 v5, v6, v6")
            k("v_add_f32 v4, v4, v7")
            k("v_fmac_f32 v5, v7, v7")
    for sh in (8, 4, 2, 1):
        k("s_nop 1")
        k(f"v_add_f32_dpp v4, v4, v4 row_ror:{sh} row_mask:0xf bank_mask:0xf")
        k(f"v_add_f32_dpp v5, v5, v5 row_ror:{sh} row_mask:0xf bank_mask:0xf")
    k("v_lshlrev_b32 v3, 3, v1")
    k("v_cmp_eq_u32 vcc, 0, v2")
    k("s_and_saveexec_b64 s[30:31], vcc")
    k(f"s_mov_b32 s28, {WS_ST0}")
    k("buffer_store_dwordx2 v[4:5], v3, s[16:19], s28 offen")
    k("s_waitcnt vmcnt(0)")
    k.lab("end")
    k("s_endpgm")
    return k

def ring_loader(k, NCH, NSLOT, dma, nD, pre_b0=None, post_b0=None, first=2, pre_issue=None):
    if pre_issue:
        w = pre_issue()
    else:
        for c_ in range(first):
            dma(c_)
        w = nD*(first-1)
    k(f"s_waitcnt vmcnt({w})")
    if pre_b0: pre_b0()
    k("s_barrier")
    issued = first
    if post_b0: post_b0()
    for i in range(1, NCH):
        while issued < NCH and issued <= i - 2 + NSLOT:
            dma(issued); issued += 1
        k(f"s_waitcnt vmcnt({(issued - 1 - i) * nD})")
        k("s_barrier")


WS_FLAG = 8 * MB + 768 * KB
NFLAGSET = 8
LDS_CNT = 147456
POLL_MAX = 0x4000
class Fuse:
    def __init__(self, name, nph, kidx0):
        self.k = Kern(name, 256, 512, LDS_CNT + 256, vgpr=256)
        self.k.fused = True
        self.nph, self.kidx0, self.p = nph, kidx0, -1
    def begin(self, wait=None, sig=None, rot=0):
        self.p += 1
        self.wait, self.sig, self.rot = wait, sig, rot
        k = self.k
        if self.p == 0:
            k.pfx = ""
            k("s_cmp_ge_u32 s2, 256")
            k(f"s_cbranch_scc1 {k.ref('fin')}")
            k.karg(6, 80)
            wave_id(k, 64)
            k(f"v_mov_b32 v1, {LDS_CNT}")
            k("v_mov_b32 v2, 0")
            k("ds_write_b32 v1, v2")
        k.pfx = f"p{self.p}_"
        k.lab("entry")
        k.stamp(0)
        k("s_mov_b32 s26, s64")
    @property
    def last(self): return self.p == self.nph - 1
    def nxt(self): return f"{self.k.name}_p{self.p+1}_entry"
    def leave(self):
        k = self.k
        k.stamp_save(self.p)
        if self.last:
            k.stamp_flush_all(6, self.kidx0, self.nph, 64)
            k("s_endpgm")
        else:
            k(f"s_branch {self.nxt()}")
    def skip_to_end(self):
        assert self.last
        self.k(f"s_cbranch_scc1 {self.k.name}_skip")
    def close(self):
        k = self.k
        k.pfx = ""
        k.lab("skip")
        k.stamp_flush_all(6, self.kidx0, self.nph, 64)
        k.lab("fin")
        k("s_endpgm")
        return k
    def poll(self, line, nprod):
        k = self.k
        k(f"s_lshl_b32 s66, s{line}, 7")
        k(f"s_add_u32 s66, s66, {WS_FLAG + self.wait*4096}")
        k("v_lshlrev_b32 v10, 2, v0")
        k(f"s_mov_b64 exec, {(1 << nprod) - 1:#x}")
        k(f"s_mov_b32 s65, {POLL_MAX}")
        k.lab("poll")
        k("buffer_load_dword v11, v10, s[12:15], s66 offen sc1")
        k("s_waitcnt vmcnt(0)")
        k("v_cmp_ne_u32 vcc, 0, v11")
        k(f"s_cmp_eq_u32 vcc_lo, {(1 << nprod) - 1:#x}")
        k(f"s_cbranch_scc1 {k.ref('polled')}")
        k("s_sleep 1")
        k("s_sub_u32 s65, s65, 1")
        k(f"s_cbranch_scc0 {k.ref('poll')}")
        k.lab("polled")
        k("s_mov_b64 exec, -1")
    def signal(self):
        k = self.k
        l = k.newlab("nosig")
        k("s_mov_b64 exec, 1")
        k(f"v_mov_b32 v1, {LDS_CNT}")
        k("v_mov_b32 v2, 1")
        k("ds_add_rtn_u32 v3, v1, v2")
        k("s_lshl_b32 s37, s24, 7")
        k("s_lshl_b32 s38, s25, 2")
        k("s_add_u32 s37, s37, s38")
        k(f"s_add_u32 s37, s37, {WS_FLAG + self.sig*4096}")
        k("s_waitcnt lgkmcnt(0)")
        k("v_readfirstlane_b32 s38, v3")
        k("s_and_b32 s38, s38, 3")
        k("s_cmp_eq_u32 s38, 3")
        k(f"s_cbranch_scc0 {k.ref(l)}")
        k("buffer_store_dword v2, off, s[48:51], s37 sc1")
        k.lab(l)
        k("s_mov_b64 exec, -1")

def fin_compute(k, fz, kidx):
    k.stamp(4)
    if fz is None:
        k.stamp_flush(6, kidx, 5, 26)
        k("s_endpgm")
    else:
        if fz.sig is not None: fz.signal()
        fz.leave()

def fin_loader(k, fz, kidx):
    k.stamp(4)
    if fz is None:
        k("s_add_u32 s26, s26, 4")
        k.stamp_flush(6, kidx, 5, 26)
        k.lab("end")
        k("s_endpgm")
    else:
        fz.leave()


PFS = 128
CW = 0
CWN = 2
class TilePF:
    def __init__(self, k, pfd, first, NCH, va, vs, vd, srd):
        self.k, self.pfd, self.first, self.NCH, self.va, self.vs, self.vd, self.srd = k, pfd, first, NCH, va, vs, vd, srd
        self.next = first
    def one(self):
        k = self.k
        k(f"buffer_load_dword v{self.vd}, v{self.va}, s[{self.srd}:{self.srd+3}], 0 offen")
        self.next += 1
        if self.next < self.NCH:
            k(f"v_add_u32 v{self.va}, v{self.vs}, v{self.va}")
    def start(self):
        self.next = self.first
        while self.next < self.NCH and self.next <= self.pfd:
            self.one()
    def at_barrier(self):
        if self.pfd and self.next < self.NCH:
            self.one()

def gen_gemmA(name, kind, layer, kidx=0, dbg=(), first=2, pfd=0, fz=None):
    if kind == "qkv":
        NWG, NB, TB, TN = 240, 2, 2, 128
        WS_W, XSRC, ST, NPART, CSP, NCOL = WS_WQ, (WS_X0 if layer == 0 else WS_X2), WS_ST0, (1 if layer == 0 else 16), WS_CSQ, 1920
    else:
        NWG, NB, TB, TN = 256, 3, 1, 96
        WS_W, XSRC, ST, NPART, CSP, NCOL = WS_W1, WS_X1, WS_ST1, 16, WS_CS1, 1536
    WB = TN * 128
    SLOT = WB + 16384
    NSLOT = 4
    NCH = 10
    STATS = NSLOT * SLOT
    LDS = STATS + 2048
    rot = fz.rot if fz else 0
    XS = " sc1" if (fz and fz.wait is not None) else ""
    if fz is None:
        k = Kern(name, NWG, 512, LDS, vgpr=256)
        k(f"s_cmp_ge_u32 s2, {NWG}")
        k(f"s_cbranch_scc1 {k.ref('end')}")
        k.stamp(0)
        k.karg(6, 80)
        if kind == "w1":
            k.karg(8, 40)
        wave_id(k, 26)
    else:
        k = fz.k
        if NWG < 256:
            k(f"s_cmp_ge_u32 s2, {NWG}")
            fz.skip_to_end()
        if kind == "w1":
            k.karg(8, 40)
    k("s_and_b32 s20, s2, 7")
    k("s_lshr_b32 s21, s2, 3")
    if kind == "qkv":
        k("s_and_b32 s22, s20, 1")
        k("s_mul_i32 s22, s22, 30")
        k("s_add_u32 s22, s22, s21")
        k("s_lshr_b32 s25, s22, 2")
        k("s_and_b32 s22, s22, 3")
    else:
        k("s_and_b32 s22, s20, 1")
        k("s_lshl_b32 s22, s22, 3")
        k("s_lshr_b32 s23, s21, 2")
        k("s_add_u32 s25, s22, s23")
        k("s_and_b32 s22, s21, 3")
    k("s_lshr_b32 s23, s20, 1")
    k("s_lshl_b32 s23, s23, 2")
    k("s_add_u32 s24, s23, s22")
    k("s_cmp_lt_u32 s26, 4")
    k(f"s_cbranch_scc1 {k.ref('compute')}")

    k("s_sub_u32 s26, s26, 4")
    k("v_lshlrev_b32 v1, 4, v0")
    nW = WB // 4096
    k(f"s_mul_i32 s40, s25, {80*TN*16}")
    k(f"s_mul_i32 s41, s26, {nW*1024}")
    k("s_add_u32 s40, s40, s41")
    k(f"s_add_u32 s40, s40, {WS_W}")
    k("s_mov_b32 s42, s41")
    k("s_lshl_b32 s43, s24, 2")
    k("s_add_u32 s43, s43, s26")
    k("s_mul_i32 s43, s43, 40960")
    k(f"s_add_u32 s43, s43, {XSRC}")
    k("s_lshl_b32 s44, s26, 12")
    k(f"s_add_u32 s44, s44, {WB}")
    k("s_waitcnt lgkmcnt(0)")
    k.srd(12, 6, 0, WS_SIZE)
    def dma(ch, parts="wx"):
        if "nodma" in dbg: return
        slot = (ch + rot) % NSLOT
        if "w" in parts:
            k(f"s_add_u32 m0, s42, {slot*SLOT}")
            k(f"s_add_u32 s45, s40, {ch*WB}")
            for i in range(nW):
                k(f"buffer_load_dwordx4 v1, s[12:15], s45 offen offset:{i*1024} lds")
        if "x" in parts:
            k(f"s_add_u32 m0, s44, {slot*SLOT}")
            k(f"s_add_u32 s45, s43, {ch*4096}")
            for i in range(4):
                k(f"buffer_load_dwordx4 v1, s[12:15], s45 offen offset:{i*1024}{XS} lds")
    nD = nW + 4
    k.stamp(1)
    early = XS != ""
    def stats_loads():
        k("s_lshl_b32 s46, s24, 7")
        k("s_lshl_b32 s47, s26, 5")
        k("s_add_u32 s46, s46, s47")
        k("v_add_u32 v4, s46, v2")
        k("v_lshlrev_b32 v4, 3, v4")
        if NPART == 16:
            k("v_lshl_add_u32 v4, v3, 17, v4")
            for p in range(8):
                k(f"s_mov_b32 s47, {ST + p*16384}")
                k(f"buffer_load_dwordx2 v[{16+2*p}:{17+2*p}], v4, s[12:15], s47 offen{XS}")
        else:
            k(f"s_mov_b32 s47, {ST}")
            k(f"buffer_load_dwordx2 v[16:17], v4, s[12:15], s47 offen{XS}")
    def cs_loads():
        k("s_lshl_b32 s47, s26, 5")
        k("v_add_u32 v5, s47, v2")
        k(f"s_mul_i32 s47, s25, {TN}")
        k("v_add_u32 v6, s47, v5")
        k("v_lshlrev_b32 v7, 2, v6")
        k(f"v_mul_u32_u24 v8, {5*NCOL*4}, v3")
        k("v_add_u32 v7, v7, v8")
        for p in range(5):
            k(f"s_mov_b32 s47, {CSP + p*NCOL*4}")
            k(f"buffer_load_dword v{32+p}, v7, s[12:15], s47 offen")
        if kind == "w1":
            k.srd(16, 8, 0, 1536 * 2)
            k("v_lshlrev_b32 v9, 1, v6")
            k("buffer_load_ushort v38, v9, s[16:19], 0 offen")
    if early:
        for c_ in range(first):
            dma(c_, "w")
        k("v_and_b32 v2, 31, v0")
        k("v_lshrrev_b32 v3, 5, v0")
        cs_loads()
        k("s_lshr_b32 s67, s26, 1")
        k("s_lshl_b32 s46, s24, 1")
        k("s_add_u32 s67, s67, s46")
        fz.poll(67, 8)
        dma(0, "x")
        stats_loads()
        for c_ in range(1, first):
            dma(c_, "x")
        k(f"s_waitcnt vmcnt({4*(first-1)})")
    else:
        dma(0)
        k("v_and_b32 v2, 31, v0")
        k("v_lshrrev_b32 v3, 5, v0")
        stats_loads()
        cs_loads()
        for c_ in range(1, first):
            dma(c_)
        k(f"s_waitcnt vmcnt({nD*(first-1)})")
    k.stamp(2)
    k("s_barrier")
    if NPART == 16:
        for p in range(1, 8):
            k(f"v_add_f32 v16, v16, v{16+2*p}")
            k(f"v_add_f32 v17, v17, v{17+2*p}")
        k("v_mov_b32 v18, v16")
        k("v_mov_b32 v19, v17")
        k("s_nop 1")
        k("v_permlane32_swap_b32 v16, v18")
        k("v_permlane32_swap_b32 v17, v19")
        k("s_nop 1")
        k("v_add_f32 v16, v16, v18")
        k("v_add_f32 v17, v17, v19")
    k(f"v_mul_f32 v16, {f2u(1/640):#x}, v16")
    k(f"v_mul_f32 v17, {f2u(1/640):#x}, v17")
    k("v_fma_f32 v17, -v16, v16, v17")
    k("v_max_f32 v17, 0, v17")
    k(f"v_add_f32 v18, {f2u(1e-5):#x}, v17")
    k("v_rsq_f32 v18, v18")
    if kind == "w1":
        k("s_nop 0")
        k("v_mul_f32 v19, v18, v18")
        k("v_mul_f32 v19, v19, v17")
        k(f"v_add_f32 v19, {f2u(1e-5):#x}, v19")
        k("v_rsq_f32 v19, v19")
        k("s_nop 0")
        k("v_mul_f32 v18, v18, v19")
    else:
        k("s_cmp_lt_u32 s25, 5")
        k(f"s_cselect_b32 s46, {f2u(QSCALE):#x}, 1.0")
        k("v_mul_f32 v18, s46, v18")
    k("s_nop 0")
    k("v_mul_f32 v19, v18, v16")
    for p in range(1, 5):
        k(f"v_add_f32 v32, v32, v{32+p}")
    k("v_mov_b32 v33, v32")
    k("s_nop 1")
    k("v_permlane32_swap_b32 v32, v33")
    k("s_nop 1")
    k("v_add_f32 v32, v32, v33")
    k("v_cmp_eq_u32 vcc, 0, v3")
    k("s_lshl_b32 s47, s26, 7")
    k("v_lshlrev_b32 v2, 2, v2")
    k("v_add_u32 v2, s47, v2")
    k(f"v_add_u32 v2, {STATS}, v2")
    k("v_lshl_add_u32 v2, v3, 9, v2")
    k("v_cndmask_b32 v18, v19, v18, vcc")
    if kind == "w1":
        k("v_lshlrev_b32 v38, 16, v38")
        k("v_cndmask_b32 v32, v38, v32, vcc")
    k("ds_write_b32 v2, v18")
    k("ds_write_b32 v2, v32 offset:1024")
    k("s_waitcnt lgkmcnt(0)")
    issued = first
    free = [int(d[4:]) for d in dbg if d.startswith("free")]
    if free:
        for c_ in range(first, NCH):
            dma(c_)
            k(f"s_waitcnt vmcnt({free[0]})")
        k("s_waitcnt vmcnt(0)")
        for i in range(1, NCH): k("s_barrier")
    else:
      for i in range(1, NCH):
        while issued < NCH and issued <= i - 2 + NSLOT:
            dma(issued); issued += 1
        k(f"s_waitcnt vmcnt({(issued - 1 - i) * nD})")
        k("s_barrier")
    fin_loader(k, fz, kidx)

    k.lab("compute")
    ACC = 64
    FA = [128, 128 + 4 * NB]
    FB = [160, 160 + 4 * TB]
    AW, AX = 1, 3
    HH, TL = 17, 16
    if kind == "qkv":
        k("s_and_b32 s27, s26, 1")
        k("s_lshr_b32 s36, s26, 1")
    else:
        k("s_mov_b32 s27, 0")
        k("s_mov_b32 s36, s26")
    k(f"v_lshrrev_b32 v{HH}, 5, v0")
    k(f"v_and_b32 v{TL}, 31, v0")
    k(f"v_mul_u32_u24 v20, {TN*16}, v{HH}")
    k(f"v_lshl_add_u32 v20, v{TL}, 4, v20")
    k(f"s_mul_i32 s37, s27, {NB*512}")
    k(f"v_add_u32 v{AW}, s37, v20")
    k(f"v_add_u32 v{AW+1}, {2*SLOT}, v{AW}")
    k(f"v_lshlrev_b32 v20, 4, v0")
    k(f"s_mul_i32 s37, s36, {TB*4096}")
    k(f"s_add_u32 s37, s37, {WB}")
    k(f"v_add_u32 v{AX}, s37, v20")
    k(f"v_add_u32 v{AX+1}, {2*SLOT}, v{AX}")

    def reads(step):
        ch, ks = divmod(step, 4)
        slot = (ch + rot) % NSLOT
        half, sl = divmod(slot, 2)
        st = step & 1
        out = []
        for nb in range(NB):
            d = FA[st] + nb * 4
            out.append(f"ds_read_b128 v[{d}:{d+3}], v{AW+half} offset:{sl*SLOT + ks*2*TN*16 + nb*512}")
        for tb in range(TB):
            d = FB[st] + tb * 4
            out.append(f"ds_read_b128 v[{d}:{d+3}], v{AX+half} offset:{sl*SLOT + ks*1024 + tb*4096}")
        return out

    def mainloop(swap):
        nx0 = PFT.next
        k.stamp(1)
        k("s_barrier")
        k.stamp(2)
        for r in reads(0):
            k(r)
        NS = NCH * 4
        for step in range(NS):
            st = step & 1
            bar = step % 4 == 3 and step + 1 < NS
            cw = CW and not bar
            if not cw: k("s_waitcnt lgkmcnt(0)")
            if bar:
                k("s_barrier")
            rd = reads(step + 1) if step + 1 < NS else []
            if CW:
                wr, xr = rd[:NB], rd[NB:]
                rd = []
                for j in range(max(NB, TB)):
                    rd += wr[j:j+1] + xr[j:j+1]
            mf = []
            for nb in range(NB):
                for tb in range(TB):
                    d = ACC + (nb * TB + tb) * 16
                    a = FA[st] + nb * 4
                    b = FB[st] + tb * 4
                    c = "0" if step == 0 else f"v[{d}:{d+15}]"
                    if swap:
                        mf.append(f"v_mfma_f32_32x32x16_bf16 v[{d}:{d+15}], v[{b}:{b+3}], v[{a}:{a+3}], {c}")
                    else:
                        mf.append(f"v_mfma_f32_32x32x16_bf16 v[{d}:{d+15}], v[{a}:{a+3}], v[{b}:{b+3}], {c}")
            def pos(nb, tb):
                order = []
                for j in range(max(NB, TB)):
                    if j < NB: order.append(("w", j))
                    if j < TB: order.append(("x", j))
                return max(order.index(("w", nb)), order.index(("x", tb))), len(order)
            ri = 0
            issued_now = 0
            i = 0
            lastw = None
            for nb in range(NB):
                for tb in range(TB):
                    m = mf[i]
                    if cw and step > 0:
                        p, n_ = pos(nb, tb)
                        w_ = (n_ - 1 - p) + issued_now
                        if lastw is None or p > lastw:
                            k(f"s_waitcnt lgkmcnt({w_})")
                            lastw = p
                    elif cw and step == 0 and i == 0:
                        k("s_waitcnt lgkmcnt(0)")
                    if "nomfma" not in dbg: k(m)
                    nper = 2 if not CW else CWN
                    for r in rd[ri:ri + nper]:
                        if "nords" not in dbg: k(r)
                        issued_now += 1
                    ri += nper
                    if i == 2 and step % 4 == 3: PFT.at_barrier()
                    i += 1
            assert ri >= len(rd)
        k.stamp(3)
        PFT.next = nx0

    k("s_waitcnt lgkmcnt(0)")
    PFT = TilePF(k, pfd, first, NCH, 8, 9, 10, 56)
    if pfd:
        k.srd(56, 6, 0, WS_SIZE)
        PS = PFS
        sh = {128: 7, 64: 6, 32: 5}[PS]
        nw = WB // 16 // PS
        NWL = 1024 // PS
        nx = 512 // PS
        k("s_and_b32 s37, s24, 3")
        k(f"s_mul_i32 s37, s37, {WB//4}")
        k(f"s_mul_i32 s38, s26, {WB//16}")
        k("s_add_u32 s37, s37, s38")
        k(f"s_mul_i32 s38, s25, {80*TN*16}")
        k("s_add_u32 s37, s37, s38")
        k(f"s_add_u32 s37, s37, {WS_W + first*WB}")
        k("s_and_b32 s38, s20, 1")
        k(f"s_mul_i32 s38, s38, {7 if kind == 'qkv' else 8}")
        k("s_sub_u32 s38, s25, s38")
        k("s_lshr_b32 s39, s38, 1")
        k("s_lshl_b32 s40, s24, 2")
        k("s_add_u32 s39, s39, s40")
        k("s_mul_i32 s39, s39, 40960")
        k("s_and_b32 s38, s38, 1")
        k("s_lshl_b32 s38, s38, 11")
        k("s_add_u32 s39, s39, s38")
        k("s_lshl_b32 s38, s26, 9")
        k("s_add_u32 s39, s39, s38")
        k(f"s_add_u32 s39, s39, {XSRC + first*4096 - NWL*PS}")
        k(f"v_lshlrev_b32 v8, {sh}, v0")
        k("v_mov_b32 v11, s39")
        k("v_mov_b32 v12, s37")
        k(f"v_cmp_gt_u32 vcc, {NWL}, v0")
        k(f"v_mov_b32 v9, 4096")
        k(f"v_mov_b32 v13, {WB}")
        k("v_cndmask_b32 v11, v11, v12, vcc")
        k("v_cndmask_b32 v9, v9, v13, vcc")
        k("v_add_u32 v8, v11, v8")
        k(f"v_cmp_gt_u32 vcc, {NWL+nx}, v0")
        k("v_mov_b32 v12, 0x80000000")
        k("s_nop 0")
        k("v_cndmask_b32 v8, v12, v8, vcc")
        if nw < NWL:
            k(f"v_subrev_u32 v13, {nw}, v0")
            k(f"v_cmp_gt_u32 vcc, {NWL-nw}, v13")
            k("s_nop 1")
            k("v_cndmask_b32 v8, v8, v12, vcc")
        PFT.start()
    if kind == "qkv":
        k("s_cmp_ge_u32 s25, 10")
        k(f"s_cbranch_scc1 {k.ref('vpath')}")
        pre_qk(k, HH, TL)
        mainloop(False)
        epi_qk(k, ACC, STATS, HH, TL)
        fin_compute(k, fz, kidx)
        k.lab("vpath")
        pre_v(k, HH, TL)
        mainloop(True)
        epi_v(k, ACC, STATS, HH, TL)
        fin_compute(k, fz, kidx)
    else:
        mainloop(False)
        epi_w1(k, ACC, STATS, HH, TL)
        fin_compute(k, fz, kidx)
    return k


def gen_qkv_raw(name, kidx=0, dbg=(), first=2, pfd=0, zflags=False):
    NWG, NB, TB, TN = 240, 2, 2, 128
    WB = 16384
    SLOT = 2 * WB
    NSLOT = 4
    NCH = 10
    STATS = NSLOT * SLOT
    LDS = STATS + 2048
    k = Kern(name, NWG, 512, LDS, vgpr=256)
    k(f"s_cmp_ge_u32 s2, {NWG}")
    k(f"s_cbranch_scc1 {k.ref('end')}")
    k.stamp(0)
    k.karg(8, 0)
    k.karg(10, 8)
    k.karg(6, 80)
    wave_id(k, 26)
    k("s_and_b32 s20, s2, 7")
    k("s_lshr_b32 s21, s2, 3")
    k("s_and_b32 s22, s20, 1")
    k("s_mul_i32 s22, s22, 30")
    k("s_add_u32 s22, s22, s21")
    k("s_lshr_b32 s25, s22, 2")
    k("s_and_b32 s22, s22, 3")
    k("s_lshr_b32 s23, s20, 1")
    k("s_lshl_b32 s23, s23, 2")
    k("s_add_u32 s24, s23, s22")
    k("s_cmp_lt_u32 s26, 4")
    k(f"s_cbranch_scc1 {k.ref('compute')}")
    k("s_sub_u32 s26, s26, 4")
    VW, VX = 4, 8
    k("v_lshrrev_b32 v1, 4, v0")
    k("v_and_b32 v2, 15, v0")
    k("v_lshlrev_b32 v3, 2, v1")
    k("v_xor_b32 v2, v2, v3")
    k("v_mul_u32_u24 v1, 3840, v1")
    k(f"v_lshl_add_u32 v{VW}, v2, 4, v1")
    for i in range(1, 4):
        k(f"v_add_u32 v{VW+i}, {4*3840-1024}, v{VW+i-1}")
    k("v_lshrrev_b32 v1, 3, v0")
    k("v_and_b32 v2, 7, v0")
    k("v_lshrrev_b32 v3, 1, v1")
    k("v_xor_b32 v2, v2, v3")
    k("v_mul_u32_u24 v1, 1280, v1")
    k(f"v_lshl_add_u32 v{VX}, v2, 4, v1")
    k("v_xor_b32 v2, 4, v2")
    k("v_lshl_add_u32 v2, v2, 4, v1")
    k(f"v_add_u32 v{VX+1}, {8*1280-1024}, v2")
    k(f"v_add_u32 v{VX+2}, {2*(8*1280-1024)}, v{VX}")
    k(f"v_add_u32 v{VX+3}, {3*(8*1280-1024)}, v2")
    k("s_lshl_b32 s40, s25, 8")
    k(f"s_mul_i32 s41, s26, {16*3840}")
    k("s_add_u32 s40, s40, s41")
    k("s_lshl_b32 s42, s26, 12")
    k("s_lshl_b32 s43, s24, 2")
    k("s_add_u32 s43, s43, s26")
    k(f"s_mul_i32 s43, s43, {32*1280}")
    k(f"s_add_u32 s44, s42, {WB}")
    k("s_waitcnt lgkmcnt(0)")
    k.srd(12, 10, 0, 640 * 3840)
    k.srd(16, 8, 0, X_BYTES)
    def dma(ch):
        slot = ch % NSLOT
        k(f"s_add_u32 m0, s42, {slot*SLOT}")
        k(f"s_add_u32 s45, s40, {ch*64*3840}")
        for i in range(4):
            k(f"buffer_load_dwordx4 v{VW+i}, s[12:15], s45 offen offset:{i*1024} lds")
        k(f"s_add_u32 m0, s44, {slot*SLOT}")
        k(f"s_add_u32 s45, s43, {ch*128}")
        for i in range(4):
            k(f"buffer_load_dwordx4 v{VX+i}, s[16:19], s45 offen offset:{i*1024} lds")
    k.stamp(1)
    def pre(): k.stamp(2)
    ring_loader(k, NCH, NSLOT, dma, 8, pre_b0=pre, first=first)
    if zflags:
        k(f"s_cmp_ge_u32 s2, {NFLAGSET*4}")
        k(f"s_cbranch_scc1 {k.ref('zdone')}")
        k("s_cmp_lg_u32 s26, 0")
        k(f"s_cbranch_scc1 {k.ref('zdone')}")
        k.srd(48, 6, WS_FLAG, NFLAGSET*4096)
        k("s_lshl_b32 s45, s2, 10")
        k("v_lshlrev_b32 v1, 4, v0")
        for r in range(4):
            k(f"v_mov_b32 v{12+r}, 0")
        k("buffer_store_dwordx4 v[12:15], v1, s[48:51], s45 offen")
        k("s_waitcnt vmcnt(0)")
        k.lab("zdone")
    k.stamp(4)
    k("s_add_u32 s26, s26, 4")
    k.stamp_flush(6, kidx, 5, 26)
    k.lab("end")
    k("s_endpgm")

    k.lab("compute")
    ACC = 64
    FA = [128, 128 + 4 * NB]
    FB = [160, 160 + 4 * TB]
    AW, AX = 2, 192
    HH, TL = 17, 16
    S1, S2, TMP, SEL, CS = 48, 50, 52, 60, 32
    k("s_and_b32 s27, s26, 1")
    k("s_lshr_b32 s36, s26, 1")
    k(f"v_lshrrev_b32 v{HH}, 5, v0")
    k(f"v_and_b32 v{TL}, 31, v0")
    k("v_lshrrev_b32 v20, 4, v0")
    k("v_bfe_u32 v21, v0, 2, 2")
    k("v_and_b32 v22, 3, v0")
    k("v_lshrrev_b32 v23, 1, v20")
    k("v_lshl_add_u32 v23, v23, 3, v21")
    k("v_and_b32 v18, 1, v20")
    k("v_lshlrev_b32 v18, 1, v18")
    k("v_lshrrev_b32 v19, 1, v22")
    k("v_add_u32 v18, v18, v19")
    k("s_lshl_b32 s37, s27, 3")
    k("v_add_u32 v18, s37, v18")
    k("v_lshlrev_b32 v19, 2, v21")
    k("v_xor_b32 v18, v18, v19")
    k("v_lshlrev_b32 v18, 4, v18")
    k("v_lshl_add_u32 v18, v23, 8, v18")
    k("v_and_b32 v19, 1, v22")
    k(f"v_lshl_add_u32 v{AW}, v19, 3, v18")
    k(f"v_add_u32 v{AW+1}, {2*SLOT}, v{AW}")
    k(f"v_xor_b32 v{AW+2}, 64, v{AW}")
    k(f"v_add_u32 v{AW+3}, {2*SLOT}, v{AW+2}")
    k(f"v_bfe_u32 v18, v{TL}, 1, 3")
    k(f"v_xor_b32 v18, v18, v{HH}")
    k("v_lshlrev_b32 v18, 4, v18")
    k(f"v_lshl_add_u32 v18, v{TL}, 7, v18")
    k("s_lshl_b32 s37, s36, 13")
    k("s_lshl_b32 s38, s27, 12")
    k("s_add_u32 s37, s37, s38")
    k(f"s_add_u32 s37, s37, {WB}")
    k(f"v_add_u32 v{AX}, s37, v18")
    for sl_ in range(2):
        for ks in range(4):
            d = AX + (sl_ * 4 + ks) * 2
            x = (sl_ << 12) | (ks << 5)
            if x: k(f"v_xor_b32 v{d}, {x}, v{AX}")
            k(f"v_add_u32 v{d+1}, {2*SLOT}, v{d}")
    k("v_and_b32 v18, 15, v0")
    k("v_bfe_u32 v19, v0, 4, 1")
    k("v_cmp_eq_u32 vcc, v18, v19")
    k("v_mov_b32 v19, 0x3f803f80")
    k("s_nop 0")
    k(f"v_cndmask_b32 v{SEL}, 0, v19, vcc")
    for r in range(1, 4):
        k(f"v_mov_b32 v{SEL+r}, v{SEL}")
    for r in range(4):
        k(f"v_mov_b32 v{S1+r}, 0")

    def reads(step):
        ch, ks = divmod(step, 4)
        slot = ch % NSLOT
        half, sl = divmod(slot, 2)
        st = step & 1
        out = []
        for tb in range(TB):
            d = FB[st] + tb * 4
            out.append(f"ds_read_b128 v[{d}:{d+3}], v{AX+(tb*4+ks)*2+half} offset:{sl*SLOT}")
        for nb in range(NB):
            d = FA[st] + nb * 4
            out.append(f"ds_read_b64_tr_b16 v[{d}:{d+1}], v{AW+nb*2+half} offset:{sl*SLOT + ks*4096}")
            out.append(f"ds_read_b64_tr_b16 v[{d+2}:{d+3}], v{AW+nb*2+half} offset:{sl*SLOT + ks*4096 + 1024}")
        return out

    def mainloop(swap):
        nx0 = PFT.next
        k.stamp(1)
        k("s_barrier")
        k.stamp(2)
        for r in reads(0):
            k(r)
        NS = NCH * 4
        for step in range(NS):
            st = step & 1
            k("s_waitcnt lgkmcnt(0)")
            if step % 4 == 3 and step + 1 < NS:
                k("s_barrier")
                PFT.at_barrier()
            rd = reads(step + 1) if step + 1 < NS else []
            mf = []
            for nb in range(NB):
                for tb in range(TB):
                    d = ACC + (nb * TB + tb) * 16
                    a = FA[st] + nb * 4
                    b = FB[st] + tb * 4
                    c = "0" if step == 0 else f"v[{d}:{d+15}]"
                    if swap:
                        mf.append(f"v_mfma_f32_32x32x16_bf16 v[{d}:{d+15}], v[{b}:{b+3}], v[{a}:{a+3}], {c}")
                    else:
                        mf.append(f"v_mfma_f32_32x32x16_bf16 v[{d}:{d+15}], v[{a}:{a+3}], v[{b}:{b+3}], {c}")
            for nb in range(NB):
                d = CS + 4 * nb
                a = FA[st] + nb * 4
                c = "0" if step == 0 else f"v[{d}:{d+3}]"
                mf.insert(2 + 3 * nb, f"v_mfma_f32_16x16x32_bf16 v[{d}:{d+3}], v[{SEL}:{SEL+3}], v[{a}:{a+3}], {c}")
            va = []
            for r in range(4):
                x = FB[st] + r
                t = TMP + 2 * (r & 1)
                va += [f"v_and_b32 v{t}, 0xffff0000, v{x}", f"v_lshlrev_b32 v{t+1}, 16, v{x}",
                       f"v_add_f32 v{S1}, v{S1}, v{t}", f"v_fmac_f32 v{S2}, v{t}, v{t}",
                       f"v_add_f32 v{S1+1}, v{S1+1}, v{t+1}", f"v_fmac_f32 v{S2+1}, v{t+1}, v{t+1}"]
            if "nostat" in dbg: va = []
            ri, vi = 0, 0
            for i, m in enumerate(mf):
                k(m)
                nrd = 1
                for r in rd[ri:ri + nrd]: k(r)
                ri += nrd
                for x in va[vi:vi + 4]: k(x)
                vi += 4
            assert ri >= len(rd) and vi >= len(va)
        k.stamp(3)
        k(f"v_add_f32 v40, v{S1}, v{S1+1}")
        k(f"v_add_f32 v41, v{S2}, v{S2+1}")
        k("v_mov_b32 v42, v40")
        k("v_mov_b32 v43, v41")
        k("s_nop 1")
        k("v_permlane32_swap_b32 v40, v42")
        k("v_permlane32_swap_b32 v41, v43")
        k("s_nop 1")
        k("v_add_f32 v40, v40, v42")
        k("v_add_f32 v41, v41, v43")
        k(f"v_mul_f32 v40, {f2u(1/640):#x}, v40")
        k(f"v_mul_f32 v41, {f2u(1/640):#x}, v41")
        k("v_fma_f32 v41, -v40, v40, v41")
        k("v_max_f32 v41, 0, v41")
        k(f"v_add_f32 v42, {f2u(1e-5):#x}, v41")
        k("v_rsq_f32 v42, v42")
        k("s_cmp_lt_u32 s25, 5")
        k(f"s_cselect_b32 s46, {f2u(QSCALE):#x}, 1.0")
        k("v_mul_f32 v42, s46, v42")
        k("v_mul_f32 v43, v42, v40")
        k(f"v_cmp_eq_u32 vcc, 0, v{HH}")
        k("s_lshl_b32 s37, s36, 8")
        k("s_lshl_b32 s38, s27, 7")
        k("s_add_u32 s37, s37, s38")
        k(f"s_add_u32 s37, s37, {STATS}")
        k(f"v_lshlrev_b32 v44, 2, v{TL}")
        k("v_add_u32 v44, s37, v44")
        k(f"v_lshl_add_u32 v44, v{HH}, 9, v44")
        k("v_cndmask_b32 v42, v43, v42, vcc")
        k("ds_write_b32 v44, v42")
        k("s_lshl_b32 s37, s27, 8")
        k(f"s_add_u32 s37, s37, {STATS+1024}")
        k("v_lshlrev_b32 v45, 2, v0")
        k("v_add_u32 v45, s37, v45")
        k("s_mov_b64 exec, 0xffff")
        for nb in range(NB):
            k(f"ds_write_b32 v45, v{CS+4*nb} offset:{nb*128}")
            k(f"ds_write_b32 v45, v{CS+4*nb+1} offset:{nb*128+64}")
        k("s_mov_b64 exec, -1")
        k("s_waitcnt lgkmcnt(0)")
        k("s_barrier")
        PFT.next = nx0

    k("s_waitcnt lgkmcnt(0)")
    PFT = TilePF(k, pfd, first, NCH, 8, 9, 10, 56)
    if pfd:
        k("s_cmp_lt_u32 s26, 2")
        k("s_cselect_b32 s56, s10, s8")
        k("s_cselect_b32 s57, s11, s9")
        k(f"s_mov_b32 s58, {X_BYTES}")
        k(f"s_cselect_b32 s58, {640*3840}, s58")
        k("s_mov_b32 s59, 0x00020000")
        k(f"s_movk_i32 s41, 128")
        k(f"s_cselect_b32 s41, {64*3840}, s41")
        k("s_cselect_b32 s42, 16, 8")
        k("s_and_b32 s37, s24, 3")
        k("s_lshl_b32 s37, s37, 4")
        k("s_lshl_b32 s38, s26, 3")
        k("s_add_u32 s37, s37, s38")
        k(f"s_add_u32 s37, s37, {first*64}")
        k("s_mul_i32 s37, s37, 3840")
        k("s_lshl_b32 s38, s25, 8")
        k("s_add_u32 s37, s37, s38")
        k("s_and_b32 s38, s20, 1")
        k("s_mul_i32 s38, s38, 7")
        k("s_sub_u32 s38, s25, s38")
        k("s_lshl_b32 s38, s38, 4")
        k("s_lshl_b32 s39, s24, 7")
        k("s_add_u32 s38, s38, s39")
        k("s_and_b32 s39, s26, 1")
        k("s_lshl_b32 s39, s39, 3")
        k("s_add_u32 s38, s38, s39")
        k("s_mul_i32 s38, s38, 1280")
        k(f"s_add_u32 s38, s38, {first*128}")
        k("s_cmp_lt_u32 s26, 2")
        k("s_cselect_b32 s37, s37, s38")
        k("v_lshrrev_b32 v11, 1, v0")
        k("v_mul_u32_u24 v11, 3840, v11")
        k("v_and_b32 v12, 1, v0")
        k("v_lshl_add_u32 v11, v12, 7, v11")
        k("v_mul_u32_u24 v12, 1280, v0")
        k("s_cselect_b64 vcc, -1, 0")
        k("v_mov_b32 v9, s41")
        k("v_cndmask_b32 v8, v12, v11, vcc")
        k("v_add_u32 v8, s37, v8")
        k("v_cmp_gt_u32 vcc, s42, v0")
        k("v_mov_b32 v12, 0x80000000")
        k("s_nop 0")
        k("v_cndmask_b32 v8, v12, v8, vcc")
        PFT.start()
    k("s_cmp_ge_u32 s25, 10")
    k(f"s_cbranch_scc1 {k.ref('vpath')}")
    pre_qk(k, HH, TL, perm=True)
    mainloop(False)
    epi_qk(k, ACC, STATS, HH, TL, perm=True)
    k.stamp(4); k.stamp_flush(6, kidx, 5, 26)
    k("s_endpgm")
    k.lab("vpath")
    pre_v(k, HH, TL, perm=True)
    mainloop(True)
    epi_v(k, ACC, STATS, HH, TL, perm=True)
    k.stamp(4); k.stamp_flush(6, kidx, 5, 26)
    k("s_endpgm")
    return k


def pre_qk(k, HH, TL, perm=False):
    k.srd(48, 6, 0, WS_SIZE)
    k("s_cmp_lt_u32 s25, 5")
    k(f"s_mov_b32 s37, {WS_KV}")
    k(f"s_cselect_b32 s37, {WS_Q}, s37")
    k("s_cselect_b32 s38, 0, 5")
    k("s_movk_i32 s39, 2560")
    k("s_cselect_b32 s39, 1280, s39")
    k("s_lshl_b32 s40, s39, 6")
    k("s_sub_u32 s38, s25, s38")
    k("s_lshl_b32 s41, s24, 2")
    k("s_lshl_b32 s42, s36, 1")
    k("s_add_u32 s41, s41, s42")
    k("s_mul_i32 s41, s41, s39")
    k("s_add_u32 s52, s37, s41")
    k("s_add_u32 s53, s52, s39")
    if perm:
        k("s_cmp_eq_u32 s27, 1")
        k("s_cselect_b32 s37, s53, s52")
        k("s_cselect_b32 s53, s52, s53")
        k("s_mov_b32 s52, s37")
    k("s_lshl_b32 s38, s38, 5")
    k("s_lshl_b32 s42, s27, 4")
    k("s_add_u32 s38, s38, s42")
    k(f"v_add_u32 v21, s38, v{HH}")
    k(f"v_lshlrev_b32 v22, 3, v{TL}")
    for nb in range(2):
        for q in range(4):
            d = 24 + nb * 4 + q
            k(f"v_add_u32 v23, {nb*8+2*q}, v21")
            k("v_mul_u32_u24 v18, 205, v23")
            k("v_lshrrev_b32 v18, 10, v18")
            k("v_mul_u32_u24 v19, 5, v18")
            k("v_sub_u32 v23, v23, v19")
            k("v_mul_lo_u32 v18, v18, s40")
            k("v_cmp_gt_u32 vcc, 4, v23")
            k("v_lshrrev_b32 v19, 1, v23")
            k("v_lshl_add_u32 v18, v19, 9, v18")
            k("v_and_b32 v19, 1, v23")
            k("v_lshl_add_u32 v18, v19, 3, v18")
            k("v_cndmask_b32 v19, 0, v22, vcc")
            k("v_add_u32 v18, v18, v22")
            k(f"v_add_u32 v{d}, v18, v19")


def epi_qk(k, ACC, STATS, HH, TL, perm=False):
    NB, TB = 2, 2
    k(f"s_mul_i32 s37, s36, 256")
    k(f"v_lshlrev_b32 v20, 2, v{TL}")
    k(f"v_add_u32 v20, s37, v20")
    k(f"v_add_u32 v20, {STATS}, v20")
    if perm:
        k("s_lshl_b32 s37, s27, 7")
        k("v_xor_b32 v20, s37, v20")
        k("v_xor_b32 v19, 128, v20")
    for tb in range(TB):
        if perm:
            k(f"ds_read_b32 v{32+2*tb}, v{20-tb}")
            k(f"ds_read_b32 v{33+2*tb}, v{20-tb} offset:512")
        else:
            k(f"ds_read_b32 v{32+2*tb}, v20 offset:{tb*128}")
            k(f"ds_read_b32 v{33+2*tb}, v20 offset:{512+tb*128}")
    k(f"v_lshlrev_b32 v21, 4, v{HH}")
    k("s_lshl_b32 s37, s27, 8")
    k("v_add_u32 v21, s37, v21")
    k(f"v_add_u32 v21, {STATS+1024}, v21")
    CS = 128
    for nb in range(NB):
        for q in range(4):
            k(f"ds_read_b128 v[{CS+(nb*4+q)*4}:{CS+(nb*4+q)*4+3}], v21 offset:{nb*128+q*32}")
    k("s_waitcnt lgkmcnt(0)")
    k("s_nop 7")
    n = 0
    for nb in range(NB):
        for q in range(4):
            cs = CS + (nb * 4 + q) * 4
            for tb in range(TB):
                a = ACC + (nb * TB + tb) * 16 + q * 4
                rs, rm = 32 + 2 * tb, 33 + 2 * tb
                t = 36 + 4 * (n % 2)
                for h in range(2):
                    k(f"v_pk_mul_f32 v[{t+2*h}:{t+2*h+1}], v[{cs+2*h}:{cs+2*h+1}], v[{rs}:{rs+1}] op_sel:[0,1] op_sel_hi:[1,1]")
                for h in range(2):
                    k(f"v_pk_fma_f32 v[{t+2*h}:{t+2*h+1}], v[{a+2*h}:{a+2*h+1}], v[{rs}:{rs+1}], v[{t+2*h}:{t+2*h+1}] op_sel_hi:[1,0,1] neg_lo:[0,0,1] neg_hi:[0,0,1]")
                o = 44 + 2 * (n % 4)
                k(f"v_cvt_pk_bf16_f32 v{o}, v{t}, v{t+1}")
                k(f"v_cvt_pk_bf16_f32 v{o+1}, v{t+2}, v{t+3}")
                k(f"buffer_store_dwordx2 v[{o}:{o+1}], v{24+nb*4+q}, s[48:51], s{52+tb} offen")
                n += 1
    k("s_waitcnt vmcnt(0)")


def pre_v(k, HH, TL, perm=False):
    k.srd(48, 6, 0, WS_SIZE)
    k("s_sub_u32 s37, s25, 10")
    k("s_lshl_b32 s37, s37, 7")
    k("s_lshl_b32 s38, s27, 6")
    k("s_add_u32 s37, s37, s38")
    for nb in range(2):
        k(f"v_add_u32 v20, s37, v{TL}")
        if nb: k("v_add_u32 v20, 32, v20")
        k("v_mul_u32_u24 v21, 205, v20")
        k("v_lshrrev_b32 v21, 12, v21")
        k("v_mul_u32_u24 v22, 20, v21")
        k("v_sub_u32 v22, v20, v22")
        k("s_mov_b32 s38, 163840")
        k("v_mul_lo_u32 v21, v21, s38")
        k("v_lshl_add_u32 v21, v22, 4, v21")
        k(f"v_mul_u32_u24 v22, 320, v{HH}")
        k(f"v_add_u32 v{24+nb}, v21, v22")
    k("s_lshl_b32 s41, s24, 2")
    k("s_lshl_b32 s42, s36, 1")
    k("s_add_u32 s41, s41, s42")
    k("s_mul_i32 s41, s41, 2560")
    k(f"s_add_u32 s52, s41, {WS_KV + 1280}")
    if perm:
        k("s_add_u32 s53, s52, 2560")
        k("s_cmp_eq_u32 s27, 1")
        k("s_cselect_b32 s37, s53, s52")
        k("s_cselect_b32 s53, s52, s53")
        k("s_mov_b32 s52, s37")


def epi_v(k, ACC, STATS, HH, TL, perm=False):
    NB, TB = 2, 2
    k("s_lshl_b32 s37, s36, 8")
    k(f"v_lshlrev_b32 v20, 4, v{HH}")
    k("v_add_u32 v20, s37, v20")
    k(f"v_add_u32 v20, {STATS}, v20")
    RS, RM = 128, 160
    if perm:
        k("s_lshl_b32 s37, s27, 7")
        k("v_xor_b32 v20, s37, v20")
        k("v_xor_b32 v19, 128, v20")
    def sa(tb, off): return f"v{20-tb} offset:{off}" if perm else f"v20 offset:{off+tb*128}"
    for tb in range(TB):
        for q in range(4):
            k(f"ds_read_b128 v[{RS+(tb*4+q)*4}:{RS+(tb*4+q)*4+3}], {sa(tb, q*32)}")
    k(f"v_lshlrev_b32 v21, 2, v{TL}")
    k("s_lshl_b32 s37, s27, 8")
    k("v_add_u32 v21, s37, v21")
    k(f"v_add_u32 v21, {STATS+1024}, v21")
    k("s_waitcnt lgkmcnt(4)")
    for tb in range(TB):
        for q in range(4):
            k(f"ds_read_b128 v[{RM+(tb*4+q)*4}:{RM+(tb*4+q)*4+3}], {sa(tb, 512+q*32)}")
    k("ds_read_b32 v32, v21")
    k("ds_read_b32 v34, v21 offset:128")
    k("s_waitcnt lgkmcnt(0)")
    k("s_nop 7")
    n = 0
    for nb in range(NB):
        cs = 32 + 2 * nb
        for tb in range(TB):
            for qp in range(2):
                o = 44 + 4 * (n % 2)
                for qq in range(2):
                    q = qp * 2 + qq
                    a = ACC + (nb * TB + tb) * 16 + q * 4
                    t = 36 + 4 * qq
                    rs, rm = RS + (tb * 4 + q) * 4, RM + (tb * 4 + q) * 4
                    for h in range(2):
                        k(f"v_pk_mul_f32 v[{t+2*h}:{t+2*h+1}], v[{rm+2*h}:{rm+2*h+1}], v[{cs}:{cs+1}] op_sel_hi:[1,0]")
                    for h in range(2):
                        k(f"v_pk_fma_f32 v[{t+2*h}:{t+2*h+1}], v[{a+2*h}:{a+2*h+1}], v[{rs+2*h}:{rs+2*h+1}], v[{t+2*h}:{t+2*h+1}] neg_lo:[0,0,1] neg_hi:[0,0,1]")
                    k(f"v_cvt_pk_bf16_f32 v{o+2*qq}, v{t}, v{t+1}")
                    k(f"v_cvt_pk_bf16_f32 v{o+2*qq+1}, v{t+2}, v{t+3}")
                k("s_nop 1")
                k(f"v_permlane32_swap_b32 v{o}, v{o+2}")
                k(f"v_permlane32_swap_b32 v{o+1}, v{o+3}")
                k("s_nop 1")
                if perm:
                    k(f"buffer_store_dwordx4 v[{o}:{o+3}], v{24+nb}, s[48:51], s{52+tb} offen offset:{qp*640}")
                else:
                    k(f"buffer_store_dwordx4 v[{o}:{o+3}], v{24+nb}, s[48:51], s52 offen offset:{tb*2560+qp*640}")
                n += 1
    k("s_waitcnt vmcnt(0)")


GK1 = -2.0 * 0.7978845608028654 * 1.4426950408889634
GK2 = GK1 * 0.044715

def epi_w1(k, ACC, STATS, HH, TL):
    NB = 3
    k.srd(48, 6, 0, WS_SIZE)
    k("s_lshl_b32 s37, s36, 7")
    k(f"v_lshlrev_b32 v20, 2, v{TL}")
    k("v_add_u32 v20, s37, v20")
    k(f"v_add_u32 v20, {STATS}, v20")
    k("ds_read_b32 v32, v20")
    k("ds_read_b32 v33, v20 offset:512")
    k(f"v_lshlrev_b32 v21, 4, v{HH}")
    k(f"v_add_u32 v21, {STATS+1024}, v21")
    CS, BI = 128, 176
    for nb in range(NB):
        for q in range(4):
            k(f"ds_read_b128 v[{CS+(nb*4+q)*4}:{CS+(nb*4+q)*4+3}], v21 offset:{nb*128+q*32}")
    k("s_waitcnt lgkmcnt(6)")
    for nb in range(NB):
        for q in range(4):
            k(f"ds_read_b128 v[{BI+(nb*4+q)*4}:{BI+(nb*4+q)*4+3}], v21 offset:{512+nb*128+q*32}")
    k("s_lshl_b32 s39, s24, 2")
    k("s_add_u32 s39, s39, s36")
    k("s_mul_i32 s39, s39, 98304")
    k("s_mul_i32 s40, s25, 6144")
    k("s_add_u32 s39, s39, s40")
    k(f"s_add_u32 s52, s39, {WS_H}")
    k("s_add_u32 s53, s52, 2048")
    k("s_add_u32 s54, s52, 4096")
    k("v_lshlrev_b32 v22, 4, v0")
    k(f"v_mov_b32 v34, {f2u(GK1):#x}")
    k(f"v_mov_b32 v35, {f2u(GK2):#x}")
    k("s_waitcnt lgkmcnt(0)")
    k("s_nop 7")
    n = 0
    for nb in range(NB):
        for qp in range(2):
            o = 56 + 4 * (n % 2)
            for qq in range(2):
                q = qp * 2 + qq
                a = ACC + nb * 16 + q * 4
                cs = CS + (nb * 4 + q) * 4
                b = BI + (nb * 4 + q) * 4
                u, t = 36, 40
                for h in range(2):
                    k(f"v_pk_fma_f32 v[{u+2*h}:{u+2*h+1}], v[{cs+2*h}:{cs+2*h+1}], v[32:33], v[{b+2*h}:{b+2*h+1}] op_sel:[0,1,0] op_sel_hi:[1,1,1] neg_lo:[1,0,0] neg_hi:[1,0,0]")
                for h in range(2):
                    k(f"v_pk_fma_f32 v[{u+2*h}:{u+2*h+1}], v[{a+2*h}:{a+2*h+1}], v[32:33], v[{u+2*h}:{u+2*h+1}] op_sel_hi:[1,0,1]")
                for h in range(2):
                    k(f"v_pk_mul_f32 v[{t+2*h}:{t+2*h+1}], v[{u+2*h}:{u+2*h+1}], v[{u+2*h}:{u+2*h+1}]")
                for h in range(2):
                    k(f"v_pk_fma_f32 v[{t+2*h}:{t+2*h+1}], v[{t+2*h}:{t+2*h+1}], v[34:35], v[34:35] op_sel:[0,1,0] op_sel_hi:[1,1,0]")
                for h in range(2):
                    k(f"v_pk_mul_f32 v[{t+2*h}:{t+2*h+1}], v[{t+2*h}:{t+2*h+1}], v[{u+2*h}:{u+2*h+1}]")
                for i in range(4):
                    k(f"v_exp_f32 v{t+i}, v{t+i}")
                k("s_nop 0")
                for h in range(2):
                    k(f"v_pk_add_f32 v[{t+2*h}:{t+2*h+1}], v[{t+2*h}:{t+2*h+1}], 1.0 op_sel_hi:[1,0]")
                for i in range(4):
                    k(f"v_rcp_f32 v{t+i}, v{t+i}")
                k("s_nop 0")
                for h in range(2):
                    k(f"v_pk_mul_f32 v[{u+2*h}:{u+2*h+1}], v[{u+2*h}:{u+2*h+1}], v[{t+2*h}:{t+2*h+1}]")
                k(f"v_cvt_pk_bf16_f32 v{o+2*qq}, v{u}, v{u+1}")
                k(f"v_cvt_pk_bf16_f32 v{o+2*qq+1}, v{u+2}, v{u+3}")
            k("s_nop 1")
            k(f"v_permlane32_swap_b32 v{o}, v{o+2}")
            k(f"v_permlane32_swap_b32 v{o+1}, v{o+3}")
            k("s_nop 1")
            k(f"buffer_store_dwordx4 v[{o}:{o+3}], v22, s[48:51], s{52+nb} offen offset:{qp*1024}")
            n += 1
    k("s_waitcnt vmcnt(0)")


def gen_gemmB(name, kind, layer, kidx=0, dbg=(), first=2, rawres=False, pfd=0, fz=None):
    NWG = 256
    if kind == "wo":
        K, WS_W, XSRC = 640, WS_WO, WS_O
        RES = WS_X0 if layer == 0 else WS_X2
        DST, ST = WS_X1, WS_ST1
    else:
        K, WS_W, XSRC = 1536, WS_W2, WS_H
        RES = WS_X1
        DST, ST = (WS_X2, WS_ST0) if layer == 0 else (None, None)
    NCH = K // 128
    XBLK = K * 64
    WB = 20480
    SLOT = WB + 16384
    NSLOT = 4
    LDS = NSLOT * SLOT
    rot = fz.rot if fz else 0
    XS = " sc1" if (fz and fz.wait is not None) else ""
    RSC = " sc1" if (fz and kind == "w2") else ""
    if fz is None:
        k = Kern(name, NWG, 512, LDS, vgpr=128)
        k(f"s_cmp_ge_u32 s2, {NWG}")
        k(f"s_cbranch_scc1 {k.ref('end')}")
        k.stamp(0)
        k.karg(6, 80)
    else:
        k = fz.k
    if kind == "w2":
        k.karg(8, 56)
        if DST is None:
            k.karg(10, 64)
    if rawres:
        assert kind == "wo"
        k.karg(8, 0)
    if fz is None: wave_id(k, 26)
    k("s_and_b32 s20, s2, 7")
    k("s_lshr_b32 s21, s2, 3")
    k("s_lshr_b32 s22, s20, 1")
    k("s_lshl_b32 s22, s22, 3")
    k("s_and_b32 s23, s21, 7")
    k("s_add_u32 s24, s22, s23")
    k("s_and_b32 s22, s20, 1")
    k("s_lshl_b32 s22, s22, 2")
    k("s_lshr_b32 s23, s21, 3")
    k("s_add_u32 s25, s22, s23")
    k("s_cmp_lt_u32 s26, 4")
    k(f"s_cbranch_scc1 {k.ref('compute')}")
    k("s_sub_u32 s26, s26, 4")
    k("v_lshlrev_b32 v1, 4, v0")
    k(f"s_mul_i32 s40, s25, {K//8*1280}")
    k("s_mul_i32 s41, s26, 5120")
    k("s_add_u32 s40, s40, s41")
    k(f"s_add_u32 s40, s40, {WS_W}")
    k("s_mov_b32 s42, s41")
    k("s_lshl_b32 s43, s24, 1")
    k("s_lshr_b32 s47, s26, 1")
    k("s_add_u32 s43, s43, s47")
    k(f"s_mul_i32 s43, s43, {XBLK}")
    k("s_and_b32 s47, s26, 1")
    k("s_lshl_b32 s47, s47, 12")
    k("s_add_u32 s43, s43, s47")
    k(f"s_add_u32 s43, s43, {XSRC}")
    k("s_lshl_b32 s44, s26, 12")
    k(f"s_add_u32 s44, s44, {WB}")
    k("s_waitcnt lgkmcnt(0)")
    k.srd(12, 6, 0, WS_SIZE)
    def dma(ch, parts="xw"):
        slot = (ch + rot) % NSLOT
        if "x" in parts:
            k(f"s_add_u32 m0, s44, {slot*SLOT}")
            k(f"s_add_u32 s45, s43, {ch*8192}")
            for i in range(4):
                k(f"buffer_load_dwordx4 v1, s[12:15], s45 offen offset:{i*1024}{XS} lds")
        if "w" in parts:
            k(f"s_add_u32 m0, s42, {slot*SLOT}")
            k(f"s_add_u32 s45, s40, {ch*WB}")
            for i in range(4):
                k(f"buffer_load_dwordx4 v1, s[12:15], s45 offen offset:{i*1024} lds")
            k(f"s_add_u32 m0, s42, {slot*SLOT+4096}")
            k(f"s_add_u32 s45, s40, {ch*WB+4096}")
            k(f"buffer_load_dwordx4 v1, s[12:15], s45 offen lds")
    k.stamp(1)
    def pre(): k.stamp(2)
    def pre_issue():
        for c_ in range(first):
            dma(c_, "w")
        k("s_lshr_b32 s67, s24, 1")
        fz.poll(67, 16)
        for c_ in range(first):
            dma(c_, "x")
        return 4 * (first - 1)
    ring_loader(k, NCH, NSLOT, dma, 9, pre_b0=pre, first=first, pre_issue=(pre_issue if XS else None))
    fin_loader(k, fz, kidx)

    k.lab("compute")
    ACC, FA0, FB0, RS, BI = 32, 64, 88, 104, 116
    AW, AX = 1, 3
    k("s_and_b32 s27, s26, 1")
    k("s_lshr_b32 s36, s26, 1")
    k("v_lshrrev_b32 v17, 4, v0")
    k("v_and_b32 v16, 15, v0")
    k("v_mul_u32_u24 v20, 1280, v17")
    k("v_lshl_add_u32 v20, v16, 4, v20")
    k("s_mul_i32 s37, s27, 768")
    k(f"v_add_u32 v{AW}, s37, v20")
    k(f"v_add_u32 v{AW+1}, {2*SLOT}, v{AW}")
    k("v_lshlrev_b32 v20, 9, v17")
    k("v_lshl_add_u32 v20, v16, 4, v20")
    k("s_lshl_b32 s37, s36, 13")
    k(f"s_add_u32 s37, s37, {WB}")
    k(f"v_add_u32 v{AX}, s37, v20")
    k(f"v_add_u32 v{AX+1}, {2*SLOT}, v{AX}")
    k("v_lshrrev_b32 v20, 1, v17")
    k("v_lshlrev_b32 v20, 9, v20")
    k("v_lshl_add_u32 v20, v16, 4, v20")
    k("v_and_b32 v21, 1, v17")
    k("v_lshl_add_u32 v20, v21, 3, v20")
    k("s_lshl_b32 s38, s24, 1")
    k("s_add_u32 s38, s38, s36")
    k("s_mul_i32 s39, s38, 40960")
    k("s_mul_i32 s40, s25, 5120")
    k("s_add_u32 s39, s39, s40")
    k("s_mul_i32 s40, s27, 3072")
    k("s_add_u32 s39, s39, s40")
    if rawres:
        k("v_mul_u32_u24 v20, 1280, v16")
        k("v_lshl_add_u32 v20, v17, 3, v20")
        k(f"v_add_u32 v21, {16*1280}, v20")
        k(f"s_mul_i32 s52, s38, {32*1280}")
        k("s_mul_i32 s40, s25, 160")
        k("s_add_u32 s52, s52, s40")
        k("s_mul_i32 s40, s27, 96")
        k("s_add_u32 s52, s52, s40")
    else:
        k(f"s_add_u32 s52, s39, {RES}")
    k("s_waitcnt lgkmcnt(0)")
    k.srd(48, 6, 0, WS_SIZE)
    if rawres:
        k.srd(56, 8, 0, X_BYTES)
    PFT = TilePF(k, pfd, first, NCH, 5, 6, 7, 48)
    if pfd:
        k("s_and_b32 s41, s25, 3")
        k("s_lshr_b32 s42, s41, 1")
        k("s_lshl_b32 s43, s24, 1")
        k("s_add_u32 s42, s42, s43")
        k(f"s_mul_i32 s42, s42, {XBLK}")
        k("s_and_b32 s41, s41, 1")
        k("s_lshl_b32 s41, s41, 12")
        k("s_add_u32 s42, s42, s41")
        k("s_lshl_b32 s41, s26, 10")
        k("s_add_u32 s42, s42, s41")
        k(f"s_add_u32 s42, s42, {XSRC + first*8192}")
        k("s_and_b32 s41, s24, 7")
        k("s_mul_i32 s41, s41, 2560")
        k("s_mul_i32 s43, s26, 640")
        k("s_add_u32 s41, s41, s43")
        k(f"s_mul_i32 s43, s25, {K//8*1280}")
        k("s_add_u32 s41, s41, s43")
        k(f"s_add_u32 s41, s41, {WS_W + first*WB - 8*128}")
        k("v_lshlrev_b32 v5, 7, v0")
        k("v_mov_b32 v8, s41")
        k("v_mov_b32 v9, s42")
        k("v_cmp_gt_u32 vcc, 8, v0")
        k(f"v_mov_b32 v6, {WB}")
        k("v_mov_b32 v10, 8192")
        k("v_cndmask_b32 v8, v8, v9, vcc")
        k("v_cndmask_b32 v6, v6, v10, vcc")
        k("v_add_u32 v5, v8, v5")
        k("v_cmp_gt_u32 vcc, 13, v0")
        k("v_mov_b32 v9, 0x80000000")
        k("s_nop 0")
        k("v_cndmask_b32 v5, v9, v5, vcc")
        PFT.start()

    def path(NB):
        nx0 = PFT.next
        for nb in range(NB):
            for tb in range(2):
                d = RS + (nb * 2 + tb) * 2
                if rawres:
                    k(f"buffer_load_dwordx2 v[{d}:{d+1}], v{20+tb}, s[56:59], s52 offen offset:{nb*32}")
                else:
                    k(f"buffer_load_dwordx2 v[{d}:{d+1}], v20, s[48:51], s52 offen offset:{nb*1024+tb*256}{RSC}")
        if kind == "w2":
            k.srd(56, 8, 0, 1280)
            k("s_mul_i32 s40, s25, 160")
            k("s_mul_i32 s41, s27, 96")
            k("s_add_u32 s40, s40, s41")
            k("v_lshlrev_b32 v21, 3, v17")
            for nb in range(NB):
                k(f"buffer_load_dwordx2 v[{BI+2*nb}:{BI+2*nb+1}], v21, s[56:59], s40 offen offset:{nb*32}")
        def reads(step):
            ch, ks = divmod(step, 4)
            slot = (ch + rot) % NSLOT
            half, sl = divmod(slot, 2)
            st = step & 1
            out = []
            for tb in range(2):
                d = FB0 + st * 8 + tb * 4
                out.append(f"ds_read_b128 v[{d}:{d+3}], v{AX+half} offset:{sl*SLOT + ks*2048 + tb*256}")
            for nb in range(NB):
                d = FA0 + st * 12 + nb * 4
                out.append(f"ds_read_b128 v[{d}:{d+3}], v{AW+half} offset:{sl*SLOT + ks*5120 + nb*256}")
            return out
        k.stamp(1)
        k("s_barrier")
        k.stamp(2)
        for r in reads(0):
            k(r)
        NS = NCH * 4
        for step in range(NS):
            st = step & 1
            k("s_waitcnt lgkmcnt(0)")
            if step % 4 == 3 and step + 1 < NS:
                k("s_barrier")
                PFT.at_barrier()
            rd = reads(step + 1) if step + 1 < NS else []
            mf = []
            for nb in range(NB):
                for tb in range(2):
                    d = ACC + (nb * 2 + tb) * 4
                    a = FA0 + st * 12 + nb * 4
                    b = FB0 + st * 8 + tb * 4
                    c = "0" if step == 0 else f"v[{d}:{d+3}]"
                    mf.append(f"v_mfma_f32_16x16x32_bf16 v[{d}:{d+3}], v[{a}:{a+3}], v[{b}:{b+3}], {c}")
            ri = 0
            for i, m in enumerate(mf):
                if "nomfma" not in dbg: k(m)
                for r in rd[ri:ri + 2]:
                    if "nords" not in dbg: k(r)
                ri += 2
            assert ri >= len(rd)
        k.stamp(3)
        PFT.next = nx0
        k("s_waitcnt vmcnt(0)")
        want_stats = ST is not None
        if want_stats:
            for r in (8, 9, 10, 11):
                k(f"v_mov_b32 v{r}, 0")
        k("v_lshlrev_b32 v22, 4, v0")
        if DST is None:
            k.srd(60, 10, 0, X_BYTES)
            k("v_and_b32 v23, 31, v0")
            k("v_mul_u32_u24 v23, 1280, v23")
            k("v_lshrrev_b32 v24, 5, v0")
            k("v_lshl_add_u32 v23, v24, 4, v23")
            k("s_mul_i32 s40, s38, 40960")
            k("s_mul_i32 s41, s25, 160")
            k("s_add_u32 s40, s40, s41")
            k("s_mul_i32 s41, s27, 96")
            k("s_add_u32 s53, s40, s41")
        else:
            k(f"s_add_u32 s53, s39, {DST}")
        k("s_nop 4")
        for nb in range(NB):
            o = 24 + 4 * (nb % 2)
            for tb in range(2):
                a = ACC + (nb * 2 + tb) * 4
                d = RS + (nb * 2 + tb) * 2
                t = 12
                k(f"v_lshlrev_b32 v{t}, 16, v{d}")
                k(f"v_and_b32 v{t+1}, 0xffff0000, v{d}")
                k(f"v_lshlrev_b32 v{t+2}, 16, v{d+1}")
                k(f"v_and_b32 v{t+3}, 0xffff0000, v{d+1}")
                k(f"v_pk_add_f32 v[{a}:{a+1}], v[{a}:{a+1}], v[{t}:{t+1}]")
                k(f"v_pk_add_f32 v[{a+2}:{a+3}], v[{a+2}:{a+3}], v[{t+2}:{t+3}]")
                if kind == "w2":
                    b = BI + 2 * nb
                    k(f"v_lshlrev_b32 v{t+4}, 16, v{b}")
                    k(f"v_and_b32 v{t+5}, 0xffff0000, v{b}")
                    k(f"v_lshlrev_b32 v{t+6}, 16, v{b+1}")
                    k(f"v_and_b32 v{t+7}, 0xffff0000, v{b+1}")
                    k(f"v_pk_add_f32 v[{a}:{a+1}], v[{a}:{a+1}], v[{t+4}:{t+5}]")
                    k(f"v_pk_add_f32 v[{a+2}:{a+3}], v[{a+2}:{a+3}], v[{t+6}:{t+7}]")
                if want_stats:
                    for r in range(4):
                        k(f"v_add_f32 v{8+tb}, v{8+tb}, v{a+r}")
                        k(f"v_fmac_f32 v{10+tb}, v{a+r}, v{a+r}")
                k(f"v_cvt_pk_bf16_f32 v{o+2*tb}, v{a}, v{a+1}")
                k(f"v_cvt_pk_bf16_f32 v{o+2*tb+1}, v{a+2}, v{a+3}")
            k("s_nop 1")
            k(f"v_permlane16_swap_b32 v{o}, v{o+2}")
            k(f"v_permlane16_swap_b32 v{o+1}, v{o+3}")
            k("s_nop 1")
            if DST is None:
                k(f"buffer_store_dwordx4 v[{o}:{o+3}], v23, s[60:63], s53 offen offset:{nb*32}")
            else:
                k(f"buffer_store_dwordx4 v[{o}:{o+3}], v22, s[48:51], s53 offen offset:{nb*1024}")
        if want_stats:
            k("v_permlane16_swap_b32 v8, v9")
            k("v_permlane16_swap_b32 v10, v11")
            k("s_nop 1")
            k("v_add_f32 v8, v8, v9")
            k("v_add_f32 v10, v10, v11")
            k("s_nop 1")
            k("v_permlane32_swap_b32 v8, v10")
            k("s_nop 1")
            k("v_add_f32 v8, v8, v10")
            k("v_and_b32 v12, 31, v0")
            k("v_lshlrev_b32 v12, 3, v12")
            k("v_lshrrev_b32 v13, 5, v0")
            k("v_lshl_add_u32 v12, v13, 2, v12")
            k("s_lshl_b32 s40, s25, 1")
            k("s_add_u32 s40, s40, s27")
            k("s_lshl_b32 s40, s40, 14")
            k("s_lshl_b32 s41, s38, 8")
            k("s_add_u32 s40, s40, s41")
            k(f"s_add_u32 s40, s40, {ST}")
            k("buffer_store_dword v8, v12, s[48:51], s40 offen")
        k("s_waitcnt vmcnt(0)")
        fin_compute(k, fz, kidx)
    k("s_cmp_eq_u32 s27, 1")
    k(f"s_cbranch_scc1 {k.ref('p2')}")
    path(3)
    k.lab("p2")
    path(2)
    return k


ATT_PACK = "cvt"
def gen_attn(name, kidx=0, pack=None, force_slow=False):
    pack = pack or ATT_PACK
    NWG = 256
    LDS = 163840
    k = Kern(name, NWG, 512, LDS, vgpr=128)
    KA, KB, VA = 1, 2, 3
    Q16, Q4 = 8, 12
    K16 = [16, 20]; K4 = [24, 26]
    V = [32, 40]
    S = [48, 64]
    P = 80
    O = 96
    k(f"s_cmp_ge_u32 s2, {NWG}")
    k(f"s_cbranch_scc1 {k.ref('end')}")
    k.stamp(0)
    k.karg(6, 80)
    wave_id(k, 26)
    k("s_and_b32 s20, s2, 7")
    k("s_lshr_b32 s21, s2, 3")
    k("s_lshr_b32 s22, s21, 3")
    k("s_lshl_b32 s23, s20, 2")
    k("s_add_u32 s24, s23, s22")
    k("s_and_b32 s25, s21, 7")
    k("s_lshl_b32 s25, s25, 3")
    k("s_add_u32 s25, s25, s26")
    k("v_lshlrev_b32 v4, 4, v0")
    k("s_lshl_b32 s27, s24, 6")
    k("s_add_u32 s27, s27, s25")
    k("s_mul_i32 s27, s27, 1280")
    k(f"s_add_u32 s27, s27, {WS_Q}")
    k("s_mul_i32 s28, s24, 163840")
    k(f"s_add_u32 s28, s28, {WS_KV}")
    k("s_mul_i32 s29, s26, 3072")
    k("s_mul_i32 s30, s26, 17408")
    k("s_add_u32 s30, s30, 24576")
    k("v_and_b32 v5, 31, v0")
    k("v_lshlrev_b32 v6, 3, v5")
    k(f"v_mov_b32 v{Q4}, 0")
    k(f"v_mov_b32 v{Q4+1}, 0")
    k("s_waitcnt lgkmcnt(0)")
    k.srd(12, 6, 0, WS_SIZE)
    k(f"buffer_load_dwordx4 v[{Q16}:{Q16+3}], v4, s[12:15], s27 offen")
    k("s_mov_b64 exec, 0xffffffff")
    k(f"buffer_load_dwordx2 v[{Q4}:{Q4+1}], v6, s[12:15], s27 offen offset:1024")
    k("s_mov_b64 exec, -1")
    k("s_mov_b32 m0, s29")
    k("s_add_u32 s31, s28, s29")
    for i in range(3):
        k(f"buffer_load_dwordx4 v4, s[12:15], s31 offen offset:{i*1024} lds")
    for g in range(5):
        k(f"s_add_u32 m0, s30, {g*4096}")
        k(f"s_add_u32 s31, s28, s30")
        if g: k(f"s_add_u32 s31, s31, {g*4096}")
        for i in range(4 if g < 4 else 1):
            k(f"buffer_load_dwordx4 v4, s[12:15], s31 offen offset:{i*1024} lds")
    k.stamp(1)
    def lane_addrs():
        k("v_and_b32 v5, 31, v0")
        k("v_and_b32 v6, 0x13, v5")
        k("v_and_b32 v7, 4, v5")
        k("v_lshl_or_b32 v6, v7, 1, v6")
        k("v_and_b32 v7, 8, v5")
        k("v_lshrrev_b32 v7, 1, v7")
        k("v_or_b32 v6, v6, v7")
        k("v_lshrrev_b32 v7, 5, v0")
        k(f"v_lshlrev_b32 v{KA}, 9, v7")
        k(f"v_lshl_add_u32 v{KA}, v6, 4, v{KA}")
        k(f"v_lshlrev_b32 v{KB}, 3, v6")
        k(f"v_add_u32 v{KB}, 1024, v{KB}")
        k(f"v_mul_u32_u24 v{VA}, 320, v7")
        k(f"v_lshl_add_u32 v{VA}, v5, 4, v{VA}")
        k(f"v_add_u32 v{VA}, 1280, v{VA}")
    lane_addrs()
    k("v_cmp_eq_u32 vcc, 20, v5")
    k("v_mov_b32 v7, 0x3f803f80")
    k("s_mov_b32 s34, 0x000fffff")
    k("s_mov_b32 s35, 0x000fffff")
    k(f"v_cndmask_b32 v{V[0]}, 0, v7, vcc")
    for r in range(1, 16):
        k(f"v_mov_b32 v{V[0]+r}, v{V[0]}")
    for r in range(16):
        k(f"v_mov_b32 v{O+r}, 0")
    for r in range(4, 8):
        k(f"v_mov_b32 v{P+r}, 0")
    k("s_waitcnt vmcnt(17)")
    k("s_barrier")
    k.stamp(2)
    def rdK(buf, off):
        k(f"ds_read_b128 v[{K16[buf]}:{K16[buf]+3}], v{KA} offset:{off}")
        k(f"ds_read_b64 v[{K4[buf]}:{K4[buf]+1}], v{KB} offset:{off}")
    def rdV(buf, off):
        k("s_mov_b64 exec, s[34:35]")
        k(f"ds_read_b128 v[{V[buf]}:{V[buf]+3}], v{VA} offset:{off}")
        k(f"ds_read_b128 v[{V[buf]+4}:{V[buf]+7}], v{VA} offset:{off+640}")
        k("s_mov_b64 exec, -1")
    def M1(n): k(f"v_mfma_f32_32x32x16_bf16 v[{S[n]}:{S[n]+15}], v[{K16[n]}:{K16[n]+3}], v[{Q16}:{Q16+3}], 0")
    def M2(n): k(f"v_mfma_f32_32x32x8bf16_1k v[{S[n]}:{S[n]+15}], v[{K4[n]}:{K4[n]+1}], v[{Q4}:{Q4+1}], v[{S[n]}:{S[n]+15}]")
    def MPV(vb, f): k(f"v_mfma_f32_32x32x16_bf16 v[{O}:{O+15}], v[{V[vb]+4*f}:{V[vb]+4*f+3}], v[{P+4*f}:{P+4*f+3}], v[{O}:{O+15}]")
    def G(c, g):
        s = S[c] + 4 * g
        p = P + 2 * g
        if pack == "cvt":
            for i in range(4):
                k(f"v_exp_f32 v{s+i}, v{s+i}")
            k(f"v_cvt_pk_bf16_f32 v{p}, v{s}, v{s+1}")
            k(f"v_cvt_pk_bf16_f32 v{p+1}, v{s+2}, v{s+3}")
        else:
            k(f"v_exp_f32 v{p}, v{s+1}")
            k(f"v_exp_f32 v{s}, v{s}")
            k(f"v_exp_f32 v{p+1}, v{s+3}")
            k(f"v_exp_f32 v{s+2}, v{s+2}")
            k(f"v_mov_b32_sdwa v{p}, v{s} dst_sel:WORD_0 dst_unused:UNUSED_PRESERVE src0_sel:WORD_1")
            k(f"v_mov_b32_sdwa v{p+1}, v{s+2} dst_sel:WORD_0 dst_unused:UNUSED_PRESERVE src0_sel:WORD_1")
    rdK(0, 0)
    rdK(1, 2560)
    rdV(0, 0)
    k("s_waitcnt lgkmcnt(4)")
    M1(0)
    k("s_mov_b32 s36, 0")
    k("s_nop 7")
    k("s_nop 1")
    M2(0)
    k("s_nop 7")
    k("s_nop 3")
    k.lab("loop")
    k("s_cmp_eq_u32 s36, 1")
    k(f"s_cbranch_scc0 {k.ref('nosync')}")
    k("s_waitcnt vmcnt(0)")
    k("s_barrier")
    k.lab("nosync")
    k("s_cmp_eq_u32 s36, 7")
    k(f"s_mov_b32 s37, {(-7*20480) & 0xffffffff:#x}")
    k("s_cselect_b32 s37, s37, 20480")
    for t in range(8):
        c, n = t & 1, (t + 1) & 1
        k("s_waitcnt lgkmcnt(0)")
        M1(n)
        G(c, 0)
        MPV(n, 1)
        if t == 6:
            k(f"v_add_u32 v{KA}, s37, v{KA}")
            k(f"v_add_u32 v{KB}, s37, v{KB}")
        if t == 7:
            k(f"v_add_u32 v{VA}, s37, v{VA}")
        rdK(c, ((t + 2) % 8) * 2560)
        rdV(n, ((t + 1) % 8) * 2560)
        G(c, 1)
        M2(n)
        G(c, 2)
        MPV(c, 0)
        G(c, 3)
    k("s_add_u32 s36, s36, 1")
    k("s_cmp_lt_u32 s36, 8")
    k(f"s_cbranch_scc1 {k.ref('loop')}")
    k("s_nop 0")
    MPV(1, 1)
    k.stamp(3)
    k("s_waitcnt lgkmcnt(0)")
    k("s_nop 7")
    k("s_nop 3")
    k(f"v_mov_b32 v4, v{O+8}")
    k(f"v_mov_b32 v5, v{O+8}")
    k("v_mov_b32 v6, 0")
    k("s_nop 0")
    k("v_permlane32_swap_b32 v4, v5")
    for r in range(12):
        k(f"v_fma_f32 v6, v{O+r}, 0, v6")
    k(f"v_cmp_lt_f32 vcc, {f2u(2.0**-40):#x}, v5")
    k(f"v_cmp_gt_f32 s[38:39], {f2u(2.0**40):#x}, v5" if False else f"s_mov_b32 s40, {f2u(2.0**40):#x}")
    k("v_cmp_gt_f32 s[38:39], s40, v5")
    k("v_cmp_eq_f32 s[42:43], 0, v6")
    k("s_nop 3")
    k("s_and_b64 vcc, vcc, s[38:39]")
    k("s_and_b64 vcc, vcc, s[42:43]")
    if force_slow:
        k("s_mov_b64 vcc, 0")
    k("s_cmp_eq_u64 vcc, -1")
    k(f"s_cbranch_scc0 {k.ref('slow')}")
    k.lab("fin")
    k("v_rcp_f32 v5, v5")
    k("s_mul_i32 s40, s24, 5")
    k("v_lshrrev_b32 v7, 5, v0")
    k("v_add_u32 v7, s40, v7")
    k("v_lshrrev_b32 v6, 1, v7")
    k("v_lshlrev_b32 v6, 9, v6")
    k("v_and_b32 v7, 1, v7")
    k("v_lshl_add_u32 v6, v7, 3, v6")
    k("v_and_b32 v7, 31, v0")
    k("v_lshl_add_u32 v6, v7, 4, v6")
    k("s_mul_i32 s41, s25, 40960")
    k(f"s_add_u32 s41, s41, {WS_O}")
    for r in range(0, 12, 2):
        k(f"v_pk_mul_f32 v[{O+r}:{O+r+1}], v[{O+r}:{O+r+1}], v[4:5] op_sel:[0,1] op_sel_hi:[1,1]")
    k("s_nop 0")
    for j in range(6):
        k(f"v_cvt_pk_bf16_f32 v{16+j}, v{O+2*j}, v{O+2*j+1}")
    k("buffer_store_dwordx2 v[16:17], v6, s[12:15], s41 offen")
    k("buffer_store_dwordx2 v[18:19], v6, s[12:15], s41 offen offset:512")
    k("s_mov_b64 exec, 0xffffffff")
    k("buffer_store_dwordx2 v[20:21], v6, s[12:15], s41 offen offset:1024")
    k("s_waitcnt vmcnt(0)")
    k.stamp(4); k.stamp_flush(6, kidx, 5, 26)
    k.lab("end")
    k("s_endpgm")
    k.lab("slow")
    lane_addrs()
    MX = 88
    k(f"v_mov_b32 v{MX}, {f2u(-3.0e38):#x}")
    for r in range(16):
        k(f"v_mov_b32 v{O+r}, 0")
    k("s_mov_b32 s36, 0")
    k.lab("sl")
    rdK(0, 0)
    rdV(0, 0)
    k("s_waitcnt lgkmcnt(0)")
    M1(0)
    k("s_nop 7"); k("s_nop 1")
    M2(0)
    k("s_nop 7"); k("s_nop 3")
    s = S[0]
    k(f"v_max3_f32 v4, v{s}, v{s+1}, v{s+2}")
    for i in range(3, 15, 2):
        k(f"v_max3_f32 v4, v4, v{s+i}, v{s+i+1}")
    k(f"v_max_f32 v4, v4, v{s+15}")
    k("v_mov_b32 v5, v4")
    k("s_nop 1")
    k("v_permlane32_swap_b32 v4, v5")
    k("s_nop 1")
    k(f"v_max3_f32 v4, v4, v5, v{MX}")
    k(f"v_sub_f32 v5, v{MX}, v4")
    k("v_exp_f32 v5, v5")
    k(f"v_mov_b32 v{MX}, v4")
    for i in range(16):
        k(f"v_sub_f32 v{s+i}, v{s+i}, v4")
    for i in range(16):
        k(f"v_exp_f32 v{s+i}, v{s+i}")
    for r in range(12):
        k(f"v_mul_f32 v{O+r}, v{O+r}, v5")
    for j in range(8):
        k(f"v_cvt_pk_bf16_f32 v{P+j}, v{s+2*j}, v{s+2*j+1}")
    k(f"v_add_u32 v{KA}, 2560, v{KA}")
    k(f"v_add_u32 v{KB}, 2560, v{KB}")
    k(f"v_add_u32 v{VA}, 2560, v{VA}")
    k("s_nop 4")
    MPV(0, 0)
    MPV(0, 1)
    k("s_nop 7"); k("s_nop 3")
    k("s_add_u32 s36, s36, 1")
    k("s_cmp_lt_u32 s36, 64")
    k(f"s_cbranch_scc1 {k.ref('sl')}")
    k(f"v_mov_b32 v4, v{O+8}")
    k(f"v_mov_b32 v5, v{O+8}")
    k("s_nop 1")
    k("v_permlane32_swap_b32 v4, v5")
    k("s_nop 1")
    k(f"s_branch {k.ref('fin')}")
    return k


def l2_prefetch(k, items, half, idx, lw, tmp, vaddr, vdst, srd=12):
    k(f"v_lshlrev_b32 v{vaddr}, 7, v0")
    for n, (base, hb) in enumerate(items):
        per_wg = hb // 32
        per_w = per_wg // 4
        lines = (per_w + 127) // 128
        k(f"s_mul_i32 s{tmp}, s{half}, {hb}")
        k(f"s_mul_i32 s{tmp+1}, s{idx}, {per_wg}")
        k(f"s_add_u32 s{tmp}, s{tmp}, s{tmp+1}")
        k(f"s_mul_i32 s{tmp+1}, s{lw}, {per_w}")
        k(f"s_add_u32 s{tmp}, s{tmp}, s{tmp+1}")
        k(f"s_add_u32 s{tmp}, s{tmp}, {base}")
        done = 0
        while done < lines:
            n_ = min(64, lines - done)
            if n_ < 64:
                m = (1 << n_) - 1
                k(f"s_mov_b32 exec_lo, {m & 0xffffffff:#x}")
                k(f"s_mov_b32 exec_hi, {m >> 32:#x}")
            k(f"buffer_load_dword v{vdst}, v{vaddr}, s[{srd}:{srd+3}], s{tmp} offen")
            if n_ < 64:
                k("s_mov_b64 exec, -1")
            done += n_
            if done < lines:
                k(f"s_add_u32 s{tmp}, s{tmp}, {64*128}")
            vdst += 1

def repack_unit(k, lw, EV, OD):
    k(f"s_lshl_b32 s52, s2, 2")
    k(f"s_add_u32 s52, s52, s{lw}")
    k("s_cmp_ge_u32 s52, 880")
    k(f"s_cbranch_scc1 {k.ref('rp_done')}")
    k.karg(54, 8)
    k.karg(56, 16)
    k.karg(58, 32)
    k.karg(60, 48)
    def setup(lbl, lo, ncg, ptr, size, pitch, TN, K, dst, cs, csp):
        k.lab(lbl)
        k(f"s_sub_u32 s52, s52, {lo}")
        k.srd(64, ptr, 0, size)
        k(f"s_mov_b32 s53, {pitch}")
        k(f"s_mov_b32 s54, {(65536 + TN - 1)//TN}")
        k(f"s_mov_b32 s55, {TN}")
        k(f"s_mov_b32 s56, {K//8*TN*16}")
        k(f"s_mov_b32 s57, {dst}")
        k(f"s_mul_i32 s58, s52, {(65536 + ncg - 1)//ncg}")
        k("s_lshr_b32 s58, s58, 16")
        k(f"s_mul_i32 s59, s58, {ncg}")
        k("s_sub_u32 s59, s52, s59")
        k(f"s_mov_b32 s60, {cs if cs is not None else 0xffffffff:#x}")
        k(f"s_mov_b32 s61, {csp}")
        k(f"s_branch {k.ref('rp_go')}")
    k("s_waitcnt lgkmcnt(0)")
    k("s_cmp_ge_u32 s52, 640"); k(f"s_cbranch_scc1 {k.ref('rp_w2')}")
    k("s_cmp_ge_u32 s52, 540"); k(f"s_cbranch_scc1 {k.ref('rp_wo')}")
    k("s_cmp_ge_u32 s52, 300"); k(f"s_cbranch_scc1 {k.ref('rp_w1')}")
    setup("rp_wq", 0, 30, 54, 640 * 3840, 3840, 128, 640, WS_WQ, WS_CSQ, 1920 * 4)
    setup("rp_w1", 300, 24, 58, 640 * 3072, 3072, 96, 640, WS_W1, WS_CS1, 1536 * 4)
    setup("rp_wo", 540, 10, 56, 640 * 1280, 1280, 80, 640, WS_WO, None, 0)
    setup("rp_w2", 640, 10, 60, 1536 * 1280, 1280, 80, 1536, WS_W2, None, 0)
    k.lab("rp_go")
    k("v_lshlrev_b32 v4, 1, v0")
    k("s_lshl_b32 s62, s58, 6")
    k("s_mul_i32 s62, s62, s53")
    k("s_lshl_b32 s63, s59, 7")
    k("s_add_u32 s62, s62, s63")
    for r in range(64):
        d = (OD if r & 1 else EV) + (r >> 1)
        k(f"buffer_load_ushort v{d}, v4, s[64:67], s62 offen")
        if r < 63:
            k("s_add_u32 s62, s62, s53")
    k("s_lshl_b32 s62, s59, 6")
    k("v_add_u32 v4, s62, v0")
    k("v_mul_lo_u32 v5, v4, s54")
    k("v_lshrrev_b32 v5, 16, v5")
    k("v_mul_lo_u32 v6, v5, s55")
    k("v_sub_u32 v6, v4, v6")
    k("v_mul_lo_u32 v5, v5, s56")
    k("v_lshl_add_u32 v5, v6, 4, v5")
    k("s_lshl_b32 s63, s55, 4")
    k("s_lshl_b32 s62, s58, 3")
    k("s_mul_i32 s62, s62, s63")
    k("s_add_u32 s62, s62, s57")
    k("v_mov_b32 v6, 0")
    k("v_mov_b32 v7, 0")
    for ku in range(8):
        k(f"s_waitcnt vmcnt({min(63, 56 - 8*ku + ku)})")
        for j in range(4 * ku, 4 * ku + 4):
            k(f"v_lshl_or_b32 v{EV+j}, v{OD+j}, 16, v{EV+j}")
        k(f"buffer_store_dwordx4 v[{EV+4*ku}:{EV+4*ku+3}], v5, s[12:15], s62 offen")
        if ku < 7:
            k("s_add_u32 s62, s62, s63")
    k("s_cmp_eq_u32 s60, 0xffffffff")
    k(f"s_cbranch_scc1 {k.ref('rp_done')}")
    for j in range(32):
        k(f"v_dot2c_f32_bf16 v{6 + (j & 1)}, 0x3f803f80, v{EV+j}")
    k("s_mul_i32 s62, s58, s61")
    k("s_add_u32 s62, s62, s60")
    k("v_lshlrev_b32 v4, 2, v4")
    k("s_nop 3")
    k("v_add_f32 v6, v6, v7")
    k("s_nop 0")
    k("buffer_store_dword v6, v4, s[12:15], s62 offen")
    k.lab("rp_done")


PF_ATT = [(WS_WO, 409600), (WS_W1, 983040), (WS_W2, 983040)]

def gen_attn2(name, kidx=0, pack="cvt", force_slow=False, sched=0, dbg=(), pf=0):
    NWG = 256
    LDS = 163840
    k = Kern(name, NWG, 512, LDS, vgpr=160)
    KA, KB, VA = 1, 2, 3
    Q16 = [8, 28]; Q4 = [12, 14]
    K16 = [16, 20]; K4 = [24, 26]
    V = [32, 40]
    S = [48, 64]
    P = 80
    O = [96, 112]
    k(f"s_cmp_ge_u32 s2, {NWG}")
    k(f"s_cbranch_scc1 {k.ref('end')}")
    k.stamp(0)
    k.karg(6, 80)
    wave_id(k, 26)
    k("s_and_b32 s20, s2, 7")
    k("s_lshr_b32 s21, s2, 3")
    k("s_lshr_b32 s22, s21, 3")
    k("s_lshl_b32 s23, s20, 2")
    k("s_add_u32 s24, s23, s22")
    k("v_lshlrev_b32 v4, 4, v0")
    k("s_cmp_lt_u32 s26, 4")
    k(f"s_cbranch_scc1 {k.ref('compute')}")
    k("s_sub_u32 s26, s26, 4")
    k("s_mul_i32 s28, s24, 163840")
    k(f"s_add_u32 s28, s28, {WS_KV}")
    k("s_mul_i32 s29, s26, 6144")
    k("s_mul_i32 s30, s26, 34816")
    k("s_add_u32 s30, s30, 24576")
    k("s_waitcnt lgkmcnt(0)")
    k.srd(12, 6, 0, WS_SIZE)
    k("s_mov_b32 m0, s29")
    k("s_add_u32 s31, s28, s29")
    for i in range(4):
        k(f"buffer_load_dwordx4 v4, s[12:15], s31 offen offset:{i*1024} lds")
    k("s_add_u32 m0, s29, 4096")
    k("s_add_u32 s31, s31, 4096")
    for i in range(2):
        k(f"buffer_load_dwordx4 v4, s[12:15], s31 offen offset:{i*1024} lds")
    k("s_add_u32 s28, s28, s30")
    def stB(g):
        k(f"s_add_u32 m0, s30, {g*4096}")
        k(f"s_add_u32 s31, s28, {g*4096}")
        for i in range(4 if g < 8 else 2):
            k(f"buffer_load_dwordx4 v4, s[12:15], s31 offen offset:{i*1024} lds")
    stB(0); stB(1)
    k.stamp(1)
    k("s_waitcnt vmcnt(8)")
    k.stamp(2)
    k("s_barrier")
    for g in range(2, 9):
        stB(g)
    k.stamp(3)
    k("s_waitcnt vmcnt(0)")
    k.stamp(4)
    k("s_barrier")
    if pf:
        k("s_and_b32 s40, s20, 1")
        l2_prefetch(k, PF_ATT[:pf], 40, 21, 26, 42, 5, 8)
        k("s_waitcnt vmcnt(0)")
    k("s_add_u32 s26, s26, 4")
    k.stamp_flush(6, kidx, 5, 26)
    k.lab("end")
    k("s_endpgm")
    k.lab("compute")
    k("s_and_b32 s25, s21, 7")
    k("s_lshl_b32 s25, s25, 3")
    k("s_lshl_b32 s23, s26, 1")
    k("s_add_u32 s25, s25, s23")
    k("s_lshl_b32 s27, s24, 6")
    k("s_add_u32 s27, s27, s25")
    k("s_mul_i32 s27, s27, 1280")
    k(f"s_add_u32 s27, s27, {WS_Q}")
    k("s_add_u32 s28, s27, 1280")
    k("v_and_b32 v5, 31, v0")
    k("v_lshlrev_b32 v6, 3, v5")
    for x in range(2):
        k(f"v_mov_b32 v{Q4[x]}, 0")
        k(f"v_mov_b32 v{Q4[x]+1}, 0")
    k("s_waitcnt lgkmcnt(0)")
    k.srd(12, 6, 0, WS_SIZE)
    k(f"buffer_load_dwordx4 v[{Q16[0]}:{Q16[0]+3}], v4, s[12:15], s27 offen")
    k(f"buffer_load_dwordx4 v[{Q16[1]}:{Q16[1]+3}], v4, s[12:15], s28 offen")
    k("s_mov_b64 exec, 0xffffffff")
    k(f"buffer_load_dwordx2 v[{Q4[0]}:{Q4[0]+1}], v6, s[12:15], s27 offen offset:1024")
    k(f"buffer_load_dwordx2 v[{Q4[1]}:{Q4[1]+1}], v6, s[12:15], s28 offen offset:1024")
    k("s_mov_b64 exec, -1")
    def lane_addrs():
        k("v_and_b32 v5, 31, v0")
        k("v_and_b32 v6, 0x13, v5")
        k("v_and_b32 v7, 4, v5")
        k("v_lshl_or_b32 v6, v7, 1, v6")
        k("v_and_b32 v7, 8, v5")
        k("v_lshrrev_b32 v7, 1, v7")
        k("v_or_b32 v6, v6, v7")
        k("v_lshrrev_b32 v7, 5, v0")
        k(f"v_lshlrev_b32 v{KA}, 9, v7")
        k(f"v_lshl_add_u32 v{KA}, v6, 4, v{KA}")
        k(f"v_lshlrev_b32 v{KB}, 3, v6")
        k(f"v_add_u32 v{KB}, 1024, v{KB}")
        k(f"v_mul_u32_u24 v{VA}, 320, v7")
        k(f"v_lshl_add_u32 v{VA}, v5, 4, v{VA}")
        k(f"v_add_u32 v{VA}, 1280, v{VA}")
    lane_addrs()
    k("v_cmp_eq_u32 vcc, 20, v5")
    k("v_mov_b32 v7, 0x3f803f80")
    k("s_mov_b32 s34, 0x000fffff")
    k("s_mov_b32 s35, 0x000fffff")
    k(f"v_cndmask_b32 v{V[0]}, 0, v7, vcc")
    for r in range(1, 16):
        k(f"v_mov_b32 v{V[0]+r}, v{V[0]}")
    for r in range(32):
        k(f"v_mov_b32 v{O[0]+r}, 0")
    for r in range(4, 8):
        k(f"v_mov_b32 v{P+r}, 0")
    k.stamp(1)
    k("s_waitcnt vmcnt(0)")
    k("s_barrier")
    k.stamp(2)
    def rdK(buf, off):
        return [f"ds_read_b128 v[{K16[buf]}:{K16[buf]+3}], v{KA} offset:{off}",
                f"ds_read_b64 v[{K4[buf]}:{K4[buf]+1}], v{KB} offset:{off}"]
    def rdV(buf, off):
        return ["s_mov_b64 exec, s[34:35]",
                f"ds_read_b128 v[{V[buf]}:{V[buf]+3}], v{VA} offset:{off}",
                f"ds_read_b128 v[{V[buf]+4}:{V[buf]+7}], v{VA} offset:{off+640}",
                "s_mov_b64 exec, -1"]
    def M1(x, kb): return f"v_mfma_f32_32x32x16_bf16 v[{S[x]}:{S[x]+15}], v[{K16[kb]}:{K16[kb]+3}], v[{Q16[x]}:{Q16[x]+3}], 0"
    def M2(x, kb): return f"v_mfma_f32_32x32x8bf16_1k v[{S[x]}:{S[x]+15}], v[{K4[kb]}:{K4[kb]+1}], v[{Q4[x]}:{Q4[x]+1}], v[{S[x]}:{S[x]+15}]"
    def MPV(x, vb, f): return f"v_mfma_f32_32x32x16_bf16 v[{O[x]}:{O[x]+15}], v[{V[vb]+4*f}:{V[vb]+4*f+3}], v[{P+4*f}:{P+4*f+3}], v[{O[x]}:{O[x]+15}]"
    def G(x, g, fill=()):
        s = S[x] + 4 * g
        p = P + 2 * g
        fill = list(fill)
        if pack == "cvt":
            ex = [f"v_exp_f32 v{s+i}, v{s+i}" for i in range(4)]
            pk = [f"v_cvt_pk_bf16_f32 v{p}, v{s}, v{s+1}", f"v_cvt_pk_bf16_f32 v{p+1}, v{s+2}, v{s+3}"]
        else:
            ex = [f"v_exp_f32 v{p}, v{s+1}", f"v_exp_f32 v{s}, v{s}", f"v_exp_f32 v{p+1}, v{s+3}", f"v_exp_f32 v{s+2}, v{s+2}"]
            pk = [f"v_mov_b32_sdwa v{p}, v{s} dst_sel:WORD_0 dst_unused:UNUSED_PRESERVE src0_sel:WORD_1",
                  f"v_mov_b32_sdwa v{p+1}, v{s+2} dst_sel:WORD_0 dst_unused:UNUSED_PRESERVE src0_sel:WORD_1"]
        for i in range(4):
            k(ex[i])
            if i < len(fill) and fill[i]:
                for f in (fill[i] if isinstance(fill[i], list) else [fill[i]]):
                    k(f)
        for x_ in pk: k(x_)
    for r in rdK(0, 0) + rdK(1, 2560) + rdV(0, 0): k(r)
    k("s_waitcnt lgkmcnt(4)")
    k(M1(0, 0))
    k("s_mov_b32 s36, 0")
    k("s_nop 7")
    k("s_nop 1")
    k(M2(0, 0))
    k("s_nop 7")
    k("s_nop 3")
    k.lab("loop")
    k("s_cmp_eq_u32 s36, 1")
    k(f"s_cbranch_scc0 {k.ref('nosync')}")
    k("s_barrier")
    k.lab("nosync")
    k("s_cmp_eq_u32 s36, 7")
    k(f"s_mov_b32 s37, {(-7*20480) & 0xffffffff:#x}")
    k("s_cselect_b32 s37, s37, 20480")
    L0 = len(k.L)
    for t in range(8):
        c, n = t & 1, (t + 1) & 1
        k("s_waitcnt lgkmcnt(0)")
        k(M1(1, c))
        G(0, 0)
        k(MPV(1, n, 1))
        if t == 7:
            k(f"v_add_u32 v{VA}, s37, v{VA}")
        rv = rdV(n, ((t + 1) % 8) * 2560)
        G(0, 1, fill=[rv])
        k(M2(1, c))
        if t == 6:
            k(f"v_add_u32 v{KA}, s37, v{KA}")
            k(f"v_add_u32 v{KB}, s37, v{KB}")
        rk = rdK(c, ((t + 2) % 8) * 2560)
        G(0, 2, fill=[rk[0], rk[1]])
        k(MPV(0, c, 0))
        G(0, 3)
        k(M1(0, n))
        G(1, 0)
        k(MPV(0, c, 1))
        G(1, 1)
        k(M2(0, n))
        G(1, 2)
        k(MPV(1, c, 0))
        G(1, 3)
    if dbg:
        body = k.L[L0:]
        def drop(l):
            l = l.strip()
            if "nods" in dbg and (l.startswith("ds_") or "exec" in l or l.startswith("s_waitcnt")): return True
            if "nomfma" in dbg and l.startswith("v_mfma"): return True
            if "nocvt" in dbg and (l.startswith("v_cvt") or l.startswith("v_mov_b32_sdwa")): return True
            if "noexp" in dbg and l.startswith("v_exp"): return True
            if "nom2" in dbg and "32x32x8" in l: return True
            if "nopv" in dbg and l.startswith(f"v_mfma_f32_32x32x16_bf16 v[{O[0]}") : return True
            if "nopv" in dbg and l.startswith(f"v_mfma_f32_32x32x16_bf16 v[{O[1]}") : return True
            return False
        k.L = k.L[:L0] + [l for l in body if not drop(l)]
    k("s_add_u32 s36, s36, 1")
    k("s_cmp_lt_u32 s36, 8")
    k(f"s_cbranch_scc1 {k.ref('loop')}")
    k("s_nop 0")
    k(MPV(1, 1, 1))
    k.stamp(3)
    k("s_waitcnt lgkmcnt(0)")
    k("s_nop 7")
    k("s_nop 3")
    L = [5, 7]
    k("v_mov_b32 v16, 0")
    for x in range(2):
        k(f"v_mov_b32 v{L[x]-1}, v{O[x]+8}")
        k(f"v_mov_b32 v{L[x]}, v{O[x]+8}")
    k("s_nop 1")
    for x in range(2):
        k(f"v_permlane32_swap_b32 v{L[x]-1}, v{L[x]}")
    for x in range(2):
        for r in range(12):
            k(f"v_fma_f32 v16, v{O[x]+r}, 0, v16")
    k(f"s_mov_b32 s40, {f2u(2.0**40):#x}")
    k(f"s_mov_b32 s41, {f2u(2.0**-40):#x}")
    k("v_cmp_eq_f32 vcc, 0, v16")
    k("v_cmp_lt_f32 s[42:43], s41, v5")
    k("v_cmp_gt_f32 s[44:45], s40, v5")
    k("v_cmp_lt_f32 s[46:47], s41, v7")
    k("v_cmp_gt_f32 s[48:49], s40, v7")
    k("s_nop 3")
    k("s_and_b64 vcc, vcc, s[42:43]")
    k("s_and_b64 vcc, vcc, s[44:45]")
    k("s_and_b64 vcc, vcc, s[46:47]")
    k("s_and_b64 vcc, vcc, s[48:49]")
    if force_slow:
        k("s_mov_b64 vcc, 0")
    k("s_cmp_eq_u64 vcc, -1")
    k(f"s_cbranch_scc0 {k.ref('slow')}")
    k.lab("fin")
    k("v_rcp_f32 v5, v5")
    k("v_rcp_f32 v7, v7")
    k("s_mul_i32 s40, s24, 5")
    k("v_lshrrev_b32 v17, 5, v0")
    k("v_add_u32 v17, s40, v17")
    k("v_lshrrev_b32 v16, 1, v17")
    k("v_lshlrev_b32 v16, 9, v16")
    k("v_and_b32 v17, 1, v17")
    k("v_lshl_add_u32 v16, v17, 3, v16")
    k("v_and_b32 v17, 31, v0")
    k("v_lshl_add_u32 v16, v17, 4, v16")
    k("s_mul_i32 s41, s25, 40960")
    k(f"s_add_u32 s41, s41, {WS_O}")
    k("s_add_u32 s42, s41, 40960")
    for x in range(2):
        for r in range(0, 12, 2):
            k(f"v_pk_mul_f32 v[{O[x]+r}:{O[x]+r+1}], v[{O[x]+r}:{O[x]+r+1}], v[{L[x]-1}:{L[x]}] op_sel:[0,1] op_sel_hi:[1,1]")
    for x in range(2):
        for j in range(6):
            k(f"v_cvt_pk_bf16_f32 v{20+6*x+j}, v{O[x]+2*j}, v{O[x]+2*j+1}")
    for x in range(2):
        k(f"buffer_store_dwordx2 v[{20+6*x}:{21+6*x}], v16, s[12:15], s{41+x} offen")
        k(f"buffer_store_dwordx2 v[{22+6*x}:{23+6*x}], v16, s[12:15], s{41+x} offen offset:512")
    k("s_mov_b64 exec, 0xffffffff")
    for x in range(2):
        k(f"buffer_store_dwordx2 v[{24+6*x}:{25+6*x}], v16, s[12:15], s{41+x} offen offset:1024")
    k("s_waitcnt vmcnt(0)")
    k.stamp(4); k.stamp_flush(6, kidx, 5, 26)
    k("s_endpgm")
    k.lab("slow")
    MX = 88
    for x in range(2):
        lane_addrs()
        k(f"v_mov_b32 v{MX}, {f2u(-3.0e38):#x}")
        for r in range(16):
            k(f"v_mov_b32 v{O[x]+r}, 0")
        k("s_mov_b32 s36, 0")
        k.lab(f"sl{x}")
        for r in rdK(0, 0) + rdV(0, 0): k(r)
        k("s_waitcnt lgkmcnt(0)")
        k(M1(x, 0))
        k("s_nop 7"); k("s_nop 1")
        k(M2(x, 0))
        k("s_nop 7"); k("s_nop 3")
        s = S[x]
        k(f"v_max3_f32 v4, v{s}, v{s+1}, v{s+2}")
        for i in range(3, 15, 2):
            k(f"v_max3_f32 v4, v4, v{s+i}, v{s+i+1}")
        k(f"v_max_f32 v4, v4, v{s+15}")
        k("v_mov_b32 v5, v4")
        k("s_nop 1")
        k("v_permlane32_swap_b32 v4, v5")
        k("s_nop 1")
        k(f"v_max3_f32 v4, v4, v5, v{MX}")
        k(f"v_sub_f32 v5, v{MX}, v4")
        k("v_exp_f32 v5, v5")
        k(f"v_mov_b32 v{MX}, v4")
        for i in range(16):
            k(f"v_sub_f32 v{s+i}, v{s+i}, v4")
        for i in range(16):
            k(f"v_exp_f32 v{s+i}, v{s+i}")
        for r in range(12):
            k(f"v_mul_f32 v{O[x]+r}, v{O[x]+r}, v5")
        for j in range(8):
            k(f"v_cvt_pk_bf16_f32 v{P+j}, v{s+2*j}, v{s+2*j+1}")
        k(f"v_add_u32 v{KA}, 2560, v{KA}")
        k(f"v_add_u32 v{KB}, 2560, v{KB}")
        k(f"v_add_u32 v{VA}, 2560, v{VA}")
        k("s_nop 4")
        k(MPV(x, 0, 0))
        k(MPV(x, 0, 1))
        k("s_nop 7"); k("s_nop 3")
        k("s_add_u32 s36, s36, 1")
        k("s_cmp_lt_u32 s36, 64")
        k(f"s_cbranch_scc1 {k.ref(f'sl{x}')}")
    for x in range(2):
        k(f"v_mov_b32 v{L[x]-1}, v{O[x]+8}")
        k(f"v_mov_b32 v{L[x]}, v{O[x]+8}")
    k("s_nop 1")
    for x in range(2):
        k(f"v_permlane32_swap_b32 v{L[x]-1}, v{L[x]}")
    k("s_nop 1")
    k(f"s_branch {k.ref('fin')}")
    return k


def gen_attn3(name, kidx=0, force_slow=False, pf=0, h=8, um=8, uh=8, pm=3, phl=0, b2=8, dbg=(), repack=False):
    NWG = 256
    LDS = 163840
    TM = 64 - h
    assert TM % um == 0 and h % uh == 0 and b2 % um == 0 and um % 2 == 0 and uh % 2 == 0
    SLOT = 2688
    assert 8 * SLOT <= b2 * 2560 + 3840
    k = Kern(name, NWG, 512, LDS, vgpr=160)
    KA, KB, VA = 1, 2, 3
    Q16 = [8, 28]; Q4 = [12, 14]
    K16 = [16, 20]; K4 = [24, 26]
    V = [32, 40]
    S = [48, 64]
    P = 80
    O = [96, 112]
    k(f"s_cmp_ge_u32 s2, {NWG}")
    k(f"s_cbranch_scc1 {k.ref('end')}")
    k.stamp(0)
    k.karg(6, 80)
    wave_id(k, 26)
    k("s_and_b32 s20, s2, 7")
    k("s_lshr_b32 s21, s2, 3")
    k("s_lshr_b32 s22, s21, 3")
    k("s_lshl_b32 s23, s20, 2")
    k("s_add_u32 s24, s23, s22")
    k("v_lshlrev_b32 v4, 4, v0")
    k("s_and_b32 s33, s26, 3")
    k("s_mul_i32 s50, s24, 163840")
    k(f"s_add_u32 s50, s50, {WS_KV}")
    k("s_and_b32 s25, s21, 7")
    k("s_lshl_b32 s25, s25, 3")
    k("s_lshl_b32 s23, s33, 1")
    k("s_add_u32 s25, s25, s23")
    k("s_lshl_b32 s27, s24, 6")
    k("s_add_u32 s27, s27, s25")
    k("s_mul_i32 s27, s27, 1280")
    k(f"s_add_u32 s27, s27, {WS_Q}")
    k("s_add_u32 s28, s27, 1280")
    def q_loads():
        k("v_and_b32 v5, 31, v0")
        k("v_lshlrev_b32 v6, 3, v5")
        for x in range(2):
            k(f"v_mov_b32 v{Q4[x]}, 0")
            k(f"v_mov_b32 v{Q4[x]+1}, 0")
        k(f"buffer_load_dwordx4 v[{Q16[0]}:{Q16[0]+3}], v4, s[12:15], s27 offen")
        k(f"buffer_load_dwordx4 v[{Q16[1]}:{Q16[1]+3}], v4, s[12:15], s28 offen")
        k("s_mov_b64 exec, 0xffffffff")
        k(f"buffer_load_dwordx2 v[{Q4[0]}:{Q4[0]+1}], v6, s[12:15], s27 offen offset:1024")
        k(f"buffer_load_dwordx2 v[{Q4[1]}:{Q4[1]+1}], v6, s[12:15], s28 offen offset:1024")
        k("s_mov_b64 exec, -1")
    def lane_addrs():
        k("v_and_b32 v5, 31, v0")
        k("v_and_b32 v6, 0x13, v5")
        k("v_and_b32 v7, 4, v5")
        k("v_lshl_or_b32 v6, v7, 1, v6")
        k("v_and_b32 v7, 8, v5")
        k("v_lshrrev_b32 v7, 1, v7")
        k("v_or_b32 v6, v6, v7")
        k("v_lshrrev_b32 v7, 5, v0")
        k(f"v_lshlrev_b32 v{KA}, 9, v7")
        k(f"v_lshl_add_u32 v{KA}, v6, 4, v{KA}")
        k(f"v_lshlrev_b32 v{KB}, 3, v6")
        k(f"v_add_u32 v{KB}, 1024, v{KB}")
        k(f"v_mul_u32_u24 v{VA}, 320, v7")
        k(f"v_lshl_add_u32 v{VA}, v5, 4, v{VA}")
        k(f"v_add_u32 v{VA}, 1280, v{VA}")
    def init_regs():
        lane_addrs()
        k("v_cmp_eq_u32 vcc, 20, v5")
        k("v_mov_b32 v7, 0x3f803f80")
        k("s_mov_b32 s34, 0x000fffff")
        k("s_mov_b32 s35, 0x000fffff")
        k(f"v_cndmask_b32 v{V[0]}, 0, v7, vcc")
        for r in range(1, 16):
            k(f"v_mov_b32 v{V[0]+r}, v{V[0]}")
        for r in range(32):
            k(f"v_mov_b32 v{O[0]+r}, 0")
        for r in range(4, 8):
            k(f"v_mov_b32 v{P+r}, 0")
    def rdK(buf, off):
        return [f"ds_read_b128 v[{K16[buf]}:{K16[buf]+3}], v{KA} offset:{off}",
                f"ds_read_b64 v[{K4[buf]}:{K4[buf]+1}], v{KB} offset:{off}"]
    def rdV(buf, off):
        return ["s_mov_b64 exec, s[34:35]",
                f"ds_read_b128 v[{V[buf]}:{V[buf]+3}], v{VA} offset:{off}",
                f"ds_read_b128 v[{V[buf]+4}:{V[buf]+7}], v{VA} offset:{off+640}",
                "s_mov_b64 exec, -1"]
    def M1(x, kb): return f"v_mfma_f32_32x32x16_bf16 v[{S[x]}:{S[x]+15}], v[{K16[kb]}:{K16[kb]+3}], v[{Q16[x]}:{Q16[x]+3}], 0"
    def M2(x, kb): return f"v_mfma_f32_32x32x8bf16_1k v[{S[x]}:{S[x]+15}], v[{K4[kb]}:{K4[kb]+1}], v[{Q4[x]}:{Q4[x]+1}], v[{S[x]}:{S[x]+15}]"
    def MPV(x, vb, f): return f"v_mfma_f32_32x32x16_bf16 v[{O[x]}:{O[x]+15}], v[{V[vb]+4*f}:{V[vb]+4*f+3}], v[{P+4*f}:{P+4*f+3}], v[{O[x]}:{O[x]+15}]"
    def G(x, g, fill=()):
        s = S[x] + 4 * g
        p = P + 2 * g
        fill = list(fill)
        ex = [f"v_exp_f32 v{s+i}, v{s+i}" for i in range(4)]
        pk = [f"v_cvt_pk_bf16_f32 v{p}, v{s}, v{s+1}", f"v_cvt_pk_bf16_f32 v{p+1}, v{s+2}, v{s+3}"]
        for i in range(4):
            k(ex[i])
            if i < len(fill) and fill[i]:
                for f in (fill[i] if isinstance(fill[i], list) else [fill[i]]):
                    k(f)
        for x_ in pk: k(x_)
    def loop(tag, T, U, bar_after):
        NIT = T // U
        for r in rdK(0, 0) + rdK(1, 2560) + rdV(0, 0): k(r)
        k("s_waitcnt lgkmcnt(4)")
        k(M1(0, 0))
        k(f"s_mov_b32 s36, {NIT}")
        k("s_nop 7")
        k("s_nop 1")
        k(M2(0, 0))
        k("s_nop 7")
        k("s_nop 3")
        k.lab(f"loop{tag}")
        if bar_after is not None:
            k(f"s_cmp_eq_u32 s36, {NIT - bar_after // U}")
            k(f"s_cbranch_scc0 {k.ref('nosync' + tag)}")
            k("s_barrier")
            k.lab("nosync" + tag)
        k("s_cmp_eq_u32 s36, 1")
        k(f"s_cselect_b32 s37, 0, {U*2560}")
        for t in range(U):
            c, n = t & 1, (t + 1) & 1
            k("s_waitcnt lgkmcnt(0)")
            k(M1(1, c))
            G(0, 0)
            k(MPV(1, n, 1))
            if t == U - 1:
                k(f"v_add_u32 v{VA}, s37, v{VA}")
            rv = rdV(n, ((t + 1) % U) * 2560)
            G(0, 1, fill=[rv])
            k(M2(1, c))
            if t == U - 2:
                k(f"v_add_u32 v{KA}, s37, v{KA}")
                k(f"v_add_u32 v{KB}, s37, v{KB}")
            rk = rdK(c, ((t + 2) % U) * 2560)
            G(0, 2, fill=[rk[0], rk[1]])
            k(MPV(0, c, 0))
            G(0, 3)
            k(M1(0, n))
            G(1, 0)
            k(MPV(0, c, 1))
            G(1, 1)
            k(M2(0, n))
            G(1, 2)
            k(MPV(1, c, 0))
            G(1, 3)
        k("s_sub_u32 s36, s36, 1")
        k("s_cmp_lg_u32 s36, 0")
        k(f"s_cbranch_scc1 {k.ref('loop' + tag)}")
        k("s_nop 0")
        k(MPV(1, 1, 1))
    def finish(role):
        keep, give = role, 1 - role
        tg = "mh"[role]
        T_ = S[0]
        k.stamp(3)
        k(f"s_lshl_b32 s40, s33, 1")
        k(f"s_add_u32 s41, s40, {role}")
        k(f"s_add_u32 s40, s40, {1 - role}")
        k(f"s_mul_i32 s41, s41, {SLOT}")
        k(f"s_mul_i32 s40, s40, {SLOT}")
        k("v_lshlrev_b32 v4, 4, v0")
        k("v_and_b32 v5, 31, v0")
        k("v_lshlrev_b32 v5, 2, v5")
        k("v_add_u32 v16, s41, v4")
        k("v_add_u32 v17, s41, v5")
        k("v_add_u32 v18, s40, v4")
        k("v_add_u32 v19, s40, v5")
        for r in range(8, 12):
            k(f"v_mov_b32 v{T_+r}, 0")
        k("s_waitcnt lgkmcnt(0)")
        k("s_nop 7" if role == 0 else "s_nop 0")
        k(f"ds_write_b128 v16, v[{O[give]}:{O[give]+3}]")
        k(f"ds_write_b128 v16, v[{O[give]+4}:{O[give]+7}] offset:1024")
        k("s_mov_b64 exec, 0xffffffff")
        k(f"ds_write_b128 v16, v[{O[give]+8}:{O[give]+11}] offset:2048")
        k("s_not_b64 exec, exec")
        k(f"ds_write_b32 v17, v{O[give]+8} offset:2560")
        k("s_mov_b64 exec, -1")
        k("s_mul_i32 s42, s24, 5")
        k("v_lshrrev_b32 v21, 5, v0")
        k("v_add_u32 v21, s42, v21")
        k("v_lshrrev_b32 v20, 1, v21")
        k("v_lshlrev_b32 v20, 9, v20")
        k("v_and_b32 v21, 1, v21")
        k("v_lshl_add_u32 v20, v21, 3, v20")
        k("v_and_b32 v21, 31, v0")
        k("v_lshl_add_u32 v20, v21, 4, v20")
        k(f"s_add_u32 s51, s25, {keep}")
        k("s_mul_i32 s51, s51, 40960")
        k(f"s_add_u32 s51, s51, {WS_O}")
        k("s_waitcnt lgkmcnt(0)")
        k("s_barrier")
        k(f"ds_read_b128 v[{T_}:{T_+3}], v18")
        k(f"ds_read_b128 v[{T_+4}:{T_+7}], v18 offset:1024")
        k("s_mov_b64 exec, 0xffffffff")
        k(f"ds_read_b128 v[{T_+8}:{T_+11}], v18 offset:2048")
        k("s_not_b64 exec, exec")
        k(f"ds_read_b32 v{T_+8}, v19 offset:2560")
        k("s_mov_b64 exec, -1")
        Ox = O[keep]
        k("s_waitcnt lgkmcnt(2)")
        for r in range(8):
            k(f"v_add_f32 v{Ox+r}, v{Ox+r}, v{T_+r}")
        k("s_waitcnt lgkmcnt(0)")
        for r in range(8, 12):
            k(f"v_add_f32 v{Ox+r}, v{Ox+r}, v{T_+r}")
        k(f"v_mov_b32 v4, v{Ox+8}")
        k(f"v_mov_b32 v5, v{Ox+8}")
        k("v_mov_b32 v16, 0")
        k("s_nop 0")
        k("v_permlane32_swap_b32 v4, v5")
        for r in range(12):
            k(f"v_fma_f32 v16, v{Ox+r}, 0, v16")
        k(f"s_mov_b32 s40, {f2u(2.0**40):#x}")
        k(f"s_mov_b32 s41, {f2u(2.0**-40):#x}")
        k("v_cmp_eq_f32 vcc, 0, v16")
        k("v_cmp_lt_f32 s[42:43], s41, v5")
        k("v_cmp_gt_f32 s[44:45], s40, v5")
        k("s_nop 3")
        k("s_and_b64 vcc, vcc, s[42:43]")
        k("s_and_b64 vcc, vcc, s[44:45]")
        if force_slow:
            k("s_mov_b64 vcc, 0")
        k("s_cmp_eq_u64 vcc, -1")
        k(f"s_cbranch_scc0 {k.ref('slow' + tg)}")
        k.lab("fin" + tg)
        k("v_rcp_f32 v5, v5")
        k("s_nop 0")
        for r in range(0, 12, 2):
            k(f"v_pk_mul_f32 v[{Ox+r}:{Ox+r+1}], v[{Ox+r}:{Ox+r+1}], v[4:5] op_sel:[0,1] op_sel_hi:[1,1]")
        for j in range(6):
            k(f"v_cvt_pk_bf16_f32 v{22+j}, v{Ox+2*j}, v{Ox+2*j+1}")
        k("buffer_store_dwordx2 v[22:23], v20, s[12:15], s51 offen")
        k("buffer_store_dwordx2 v[24:25], v20, s[12:15], s51 offen offset:512")
        k("s_mov_b64 exec, 0xffffffff")
        k("buffer_store_dwordx2 v[26:27], v20, s[12:15], s51 offen offset:1024")
        k("s_waitcnt vmcnt(0)")
        k.stamp(4); k.stamp_flush(6, kidx, 5, 26)
        k("s_endpgm")
        k.lab("slow" + tg)
        MX = 88
        x = keep
        lane_addrs()
        k(f"v_mov_b32 v{MX}, {f2u(-3.0e38):#x}")
        for r in range(16):
            k(f"v_mov_b32 v{O[x]+r}, 0")
        k("s_mov_b32 s36, 0")
        k.lab(f"sl{tg}")
        k(f"buffer_load_dwordx4 v[{K16[0]}:{K16[0]+3}], v{KA}, s[12:15], s50 offen")
        k(f"buffer_load_dwordx2 v[{K4[0]}:{K4[0]+1}], v{KB}, s[12:15], s50 offen")
        k("s_mov_b64 exec, s[34:35]")
        k(f"buffer_load_dwordx4 v[{V[0]}:{V[0]+3}], v{VA}, s[12:15], s50 offen")
        k(f"buffer_load_dwordx4 v[{V[0]+4}:{V[0]+7}], v{VA}, s[12:15], s50 offen offset:640")
        k("s_mov_b64 exec, -1")
        k("s_waitcnt vmcnt(0)")
        k(M1(x, 0))
        k("s_nop 7"); k("s_nop 1")
        k(M2(x, 0))
        k("s_nop 7"); k("s_nop 3")
        s = S[x]
        k(f"v_max3_f32 v4, v{s}, v{s+1}, v{s+2}")
        for i in range(3, 15, 2):
            k(f"v_max3_f32 v4, v4, v{s+i}, v{s+i+1}")
        k(f"v_max_f32 v4, v4, v{s+15}")
        k("v_mov_b32 v5, v4")
        k("s_nop 1")
        k("v_permlane32_swap_b32 v4, v5")
        k("s_nop 1")
        k(f"v_max3_f32 v4, v4, v5, v{MX}")
        k(f"v_sub_f32 v5, v{MX}, v4")
        k("v_exp_f32 v5, v5")
        k(f"v_mov_b32 v{MX}, v4")
        for i in range(16):
            k(f"v_sub_f32 v{s+i}, v{s+i}, v4")
        for i in range(16):
            k(f"v_exp_f32 v{s+i}, v{s+i}")
        for r in range(12):
            k(f"v_mul_f32 v{O[x]+r}, v{O[x]+r}, v5")
        for j in range(8):
            k(f"v_cvt_pk_bf16_f32 v{P+j}, v{s+2*j}, v{s+2*j+1}")
        k(f"v_add_u32 v{KA}, 2560, v{KA}")
        k(f"v_add_u32 v{KB}, 2560, v{KB}")
        k(f"v_add_u32 v{VA}, 2560, v{VA}")
        k("s_nop 4")
        k(MPV(x, 0, 0))
        k(MPV(x, 0, 1))
        k("s_nop 7"); k("s_nop 3")
        k("s_add_u32 s36, s36, 1")
        k("s_cmp_lt_u32 s36, 64")
        k(f"s_cbranch_scc1 {k.ref(f'sl{tg}')}")
        k(f"v_mov_b32 v4, v{O[x]+8}")
        k(f"v_mov_b32 v5, v{O[x]+8}")
        k("s_nop 1")
        k("v_permlane32_swap_b32 v4, v5")
        k("s_nop 1")
        k(f"s_branch {k.ref('fin' + tg)}")
    k("s_cmp_lt_u32 s26, 4")
    k(f"s_cbranch_scc1 {k.ref('compute')}")
    k("s_mul_i32 s29, s33, 6144")
    k("s_mul_i32 s30, s33, 34816")
    k("s_add_u32 s30, s30, 24576")
    k("s_waitcnt lgkmcnt(0)")
    k.srd(12, 6, 0, WS_SIZE)
    k("s_mov_b32 m0, s29")
    k("s_add_u32 s31, s50, s29")
    for i in range(4):
        k(f"buffer_load_dwordx4 v4, s[12:15], s31 offen offset:{i*1024} lds")
    k("s_add_u32 m0, s29, 4096")
    k("s_add_u32 s31, s31, 4096")
    for i in range(2):
        k(f"buffer_load_dwordx4 v4, s[12:15], s31 offen offset:{i*1024} lds")
    k("s_add_u32 s32, s50, s30")
    def stB(g):
        k(f"s_add_u32 m0, s30, {g*4096}")
        k(f"s_add_u32 s31, s32, {g*4096}")
        for i in range(4 if g < 8 else 2):
            k(f"buffer_load_dwordx4 v4, s[12:15], s31 offen offset:{i*1024} lds")
    stB(0); stB(1)
    k.stamp(1)
    k("s_waitcnt vmcnt(8)")
    k("s_barrier")
    for g in range(2, 9):
        stB(g)
    q_loads()
    init_regs()
    k(f"v_add_u32 v{KA}, {TM*2560}, v{KA}")
    k(f"v_add_u32 v{KB}, {TM*2560}, v{KB}")
    k(f"v_add_u32 v{VA}, {TM*2560}, v{VA}")
    k("s_waitcnt vmcnt(0)")
    k("s_barrier")
    k.stamp(2)
    if repack:
        repack_unit(k, 33, 48, 128)
    if pf:
        k("s_and_b32 s40, s20, 1")
        l2_prefetch(k, PF_ATT[:pf], 40, 21, 33, 42, 128, 129)
    if phl != 0: k(f"s_setprio {phl}")
    loop("h", h, uh, None)
    finish(1)
    k.lab("end")
    k("s_endpgm")
    k.lab("compute")
    if pm != 0: k(f"s_setprio {pm}")
    k("s_waitcnt lgkmcnt(0)")
    k.srd(12, 6, 0, WS_SIZE)
    q_loads()
    init_regs()
    k.stamp(1)
    k("s_waitcnt vmcnt(0)")
    k("s_barrier")
    k.stamp(2)
    loop("m", TM, um, b2)
    finish(0)
    return k
```

```python
import sys
from dsl import *
import ph, hazard
from addsc import addsc
def build(which, opt):
    first = int(opt.get("first", 2))
    dbg = tuple(opt.get("dbg", "").split(",")) if opt.get("dbg") else ()
    dk = opt.get("dk", "")
    def D(name):
        if not dk: return dbg
        return dbg if any(name.startswith(p) for p in dk.split(",")) else ()
    def PFD(name):
        best = int(opt.get("pfd", 0)); bl = -1
        for key, val in opt.items():
            if key.startswith("pfd_") and name.startswith(key[4:]) and len(key) > bl: best = int(val); bl = len(key)
        return best
    def FI(name):
        best = first; bl = -1
        for key, val in opt.items():
            if key.startswith("first_") and name.startswith(key[6:]) and len(key) > bl: best = int(val); bl = len(key)
        return best
    A = lambda n, kind, l, ki: ph.gen_gemmA(n, kind, l, ki, dbg=D(n), first=FI(n), pfd=PFD(n))
    B = lambda n, kind, l, ki, **kw: ph.gen_gemmB(n, kind, l, ki, dbg=D(n), first=FI(n), pfd=PFD(n), **kw)
    if which == "a":
        return assemble([ph.gen_prep(dbg), A("qkv0_kernel", "qkv", 0, 1)])
    if which == "aq":
        return assemble([A("qkv0_kernel", "qkv", 0, 1)])
    if which == "ar":
        return assemble([ph.gen_qkv_raw("qkv0_kernel", 1, dbg=D("qkv0"), first=FI("qkv0"), pfd=PFD("qkv0"))])
    if which == "w1":
        return assemble([A("w10_kernel", "w1", 0, 4)])
    if which == "pw1":
        return assemble([ph.gen_prep(), A("w10_kernel", "w1", 0, 4)])
    if which == "attn":
        return assemble([ph.gen_attn("attn0_kernel", 2)])
    if which == "attns":
        return assemble([ph.gen_attn("attn0_kernel", 2, pack="sdwa")])
    if which == "attnf":
        return assemble([ph.gen_attn("attn0_kernel", 2, force_slow=True)])
    if which == "attn2":
        return assemble([ph.gen_attn2("attn0_kernel", 2)])
    if which == "attn2s":
        return assemble([ph.gen_attn2("attn0_kernel", 2, pack="sdwa")])
    if which == "attn2f":
        return assemble([ph.gen_attn2("attn0_kernel", 2, force_slow=True)])
    if which in ("attn3", "attn3f"):
        return assemble([ph.gen_attn3("attn0_kernel", 2, force_slow=(which == "attn3f"), **attn_opts(opt))])
    if which == "wo":
        return assemble([B("wo0_kernel", "wo", 0, 3)])
    if which == "w2":
        return assemble([B("w20_kernel", "w2", 0, 5)])
    if which == "w21":
        return assemble([B("w21_kernel", "w2", 1, 10)])
    if which == "full":
        raw = "raw" in opt
        ks = [] if raw else [ph.gen_prep()]
        at = opt.get("attn", "2")
        for l in range(2):
            r0 = raw and l == 0
            if at == "2": a = ph.gen_attn2(f"attn{l}_kernel", 2 + 5*l, pf=int(opt.get("pf", 0)))
            else: a = ph.gen_attn3(f"attn{l}_kernel", 2 + 5*l, pf=(int(opt.get("pf0", 0)) if r0 else int(opt.get("pf", 0))), repack=r0, **attn_opts(opt))
            fuse = int(opt.get("fuse", 0))
            if fuse:
                if l == 0:
                    ks += [ph.gen_qkv_raw("qkv0_kernel", 1, dbg=D("qkv0"), first=FI("qkv0"), zflags=True)]
                elif fuse < 3:
                    ks += [A("qkv1_kernel", "qkv", 1, 6)]
                ks += [a]
                nph = 2 if fuse == 1 else (4 if (fuse == 3 and l == 0) else 3)
                fz = ph.Fuse(f"f{l}_kernel", nph, 3 + 5*l)
                fb = 3 * l
                fz.begin(wait=None, sig=fb + 0, rot=0)
                ph.gen_gemmB("wo", "wo", l, 0, dbg=D(f"wo{l}"), first=2, rawres=r0, fz=fz)
                fz.begin(wait=fb + 0, sig=(fb + 1 if nph > 2 else None), rot=2)
                ph.gen_gemmA("w1", "w1", l, 0, dbg=D(f"w1{l}"), first=2, fz=fz)
                if nph > 2:
                    fz.begin(wait=fb + 1, sig=(fb + 2 if nph > 3 else None), rot=0)
                    ph.gen_gemmB("w2", "w2", l, 0, dbg=D(f"w2{l}"), first=2, fz=fz)
                if nph > 3:
                    fz.begin(wait=fb + 2, sig=None, rot=0)
                    ph.gen_gemmA("qkv", "qkv", 1, 0, dbg=D("qkv1"), first=2, fz=fz)
                ks += [fz.close()]
                if nph == 2:
                    ks += [B(f"w2{l}_kernel", "w2", l, 5 + 5*l)]
                continue
            q = ph.gen_qkv_raw(f"qkv{l}_kernel", 1 + 5*l, dbg=D(f"qkv{l}"), first=FI(f"qkv{l}"), pfd=PFD(f"qkv{l}")) if r0 else A(f"qkv{l}_kernel", "qkv", l, 1 + 5*l)
            wo = B(f"wo{l}_kernel", "wo", l, 3 + 5*l, rawres=r0)
            ks += [q, a, wo, A(f"w1{l}_kernel", "w1", l, 4 + 5*l),
                   B(f"w2{l}_kernel", "w2", l, 5 + 5*l)]
        return assemble(ks)
def attn_opts(opt):
    o = {}
    for key in ("h", "um", "uh", "pm", "phl", "b2"):
        if key in opt: o[key] = int(opt[key])
    return o
if __name__ == "__main__":
    which = sys.argv[1]; out = sys.argv[2]
    opt = {}
    for a in sys.argv[3:]:
        if "=" in a:
            x, y = a.split("=", 1); opt[x] = y
        else: opt[a] = "1"
    Kern.PROF = "prof" in opt
    ph.PFS = int(opt.get("pfs", 128))
    ph.CW = int(opt.get("cw", 0)); ph.CWN = int(opt.get("cwn", 2))
    t = build(which, opt)
    if "sc1" in opt: t = addsc(t)
    if "scb" in opt: t = addsc(t, opt["scb"].replace("+", " "))
    open(out, "w").write(t)
    bad = hazard.check(t)
    print(out, "hazards:", len(bad), "bytes:", len(t))
    for b in bad[:10]: print(b)
```

```python
from dsl import *
import struct
def f2u(x):
    return struct.unpack("<I", struct.pack("<f", x))[0]

KB = 1024
WS_WQ = 0
WS_W1 = 3 * MB
WS_WO = 5 * MB
WS_W2 = 6 * MB
WS_CSQ = 8 * MB
WS_CS1 = 8 * MB + 128 * KB
WS_ST0 = 8 * MB + 256 * KB
WS_ST1 = 8 * MB + 512 * KB
WS_X0 = 9 * MB
WS_X1 = 12 * MB
WS_X2 = 15 * MB
WS_O = 18 * MB
WS_Q = 21 * MB
WS_KV = 24 * MB
WS_H = 30 * MB
X_BYTES = 2048 * 640 * 2
H_BYTES = 2048 * 1536 * 2
ST_BYTES = 16 * 2048 * 8
Q_BYTES = 32 * 64 * 1280
KV_BYTES = 32 * 64 * 2560
WS_SIZE = 40 * MB
QSCALE = (20 ** -0.5) * 1.4426950408889634
NCSP = 10

def wave_id(k, sreg, vtmp=1):
    k(f"v_lshrrev_b32 v{vtmp}, 6, v0")
    k("s_nop 0")
    k(f"v_readfirstlane_b32 s{sreg}, v{vtmp}")
    k("v_and_b32 v0, 63, v0")

def gen_prep(dbg=()):
    NWG = 220
    k = Kern("prep_kernel", NWG, 512, 4 * 8192, vgpr=64)
    k(f"s_cmp_ge_u32 s2, {NWG}")
    k(f"s_cbranch_scc1 {k.ref('end')}")
    k.karg(4, 0)
    k.karg(6, 8)
    k.karg(8, 16)
    k.karg(10, 32)
    k.karg(12, 48)
    k.karg(14, 80)
    wave_id(k, 26)
    k("s_waitcnt lgkmcnt(0)")
    k.srd(16, 14, 0, WS_SIZE)
    k("s_cmp_ge_u32 s26, 4")
    k(f"s_cbranch_scc1 {k.ref('stats')}")
    if "now" in dbg: k(f"s_branch {k.ref('end')}")
    k("s_lshl_b32 s3, s2, 2")
    k("s_add_u32 s3, s3, s26")
    def setup(lbl, lo, ncg, ptr, size, pitch, TN, K, dst, cs, csp):
        k.lab(lbl)
        k(f"s_sub_u32 s3, s3, {lo}")
        k.srd(20, ptr, 0, size)
        k(f"s_mov_b32 s27, {pitch}")
        k(f"s_mov_b32 s28, {(65536 + TN - 1)//TN}")
        k(f"s_mov_b32 s29, {TN}")
        k(f"s_mov_b32 s30, {K//8*TN*16}")
        k(f"s_mov_b32 s31, {dst}")
        k(f"s_mul_i32 s32, s3, {(65536 + ncg - 1)//ncg}")
        k("s_lshr_b32 s32, s32, 16")
        k(f"s_mul_i32 s33, s32, {ncg}")
        k("s_sub_u32 s33, s3, s33")
        k(f"s_mov_b32 s34, {cs if cs is not None else 0xffffffff:#x}")
        k(f"s_mov_b32 s35, {csp}")
        k(f"s_branch {k.ref('go')}")
    k("s_cmp_ge_u32 s3, 640"); k(f"s_cbranch_scc1 {k.ref('m_w2')}")
    k("s_cmp_ge_u32 s3, 540"); k(f"s_cbranch_scc1 {k.ref('m_wo')}")
    k("s_cmp_ge_u32 s3, 300"); k(f"s_cbranch_scc1 {k.ref('m_w1')}")
    setup("m_wq", 0, 30, 6, 640 * 3840, 3840, 128, 640, WS_WQ, WS_CSQ, 1920 * 4)
    setup("m_w1", 300, 24, 10, 640 * 3072, 3072, 96, 640, WS_W1, WS_CS1, 1536 * 4)
    setup("m_wo", 540, 10, 8, 640 * 1280, 1280, 80, 640, WS_WO, None, 0)
    setup("m_w2", 640, 10, 12, 1536 * 1280, 1280, 80, 1536, WS_W2, None, 0)
    k.lab("go")
    k("v_lshrrev_b32 v2, 3, v0")
    k("v_mul_lo_u32 v2, v2, s27")
    k("v_and_b32 v3, 7, v0")
    k("v_lshl_add_u32 v2, v3, 4, v2")
    k("s_lshl_b32 s36, s32, 6")
    k("s_mul_i32 s36, s36, s27")
    k("s_lshl_b32 s37, s33, 7")
    k("s_add_u32 s36, s36, s37")
    k("s_lshl_b32 s38, s27, 3")
    k("s_lshl_b32 s39, s26, 13")
    for j in range(8):
        k(f"s_add_u32 m0, s39, {j*1024}")
        k("s_nop 0")
        k("buffer_load_dwordx4 v2, s[20:23], s36 offen lds")
        if j < 7:
            k("s_add_u32 s36, s36, s38")
    k("s_lshl_b32 s40, s33, 6")
    k("v_add_u32 v4, s40, v0")
    k("v_mul_lo_u32 v5, v4, s28")
    k("v_lshrrev_b32 v5, 16, v5")
    k("v_mul_lo_u32 v6, v5, s29")
    k("v_sub_u32 v6, v4, v6")
    k("v_mul_lo_u32 v5, v5, s30")
    k("v_lshl_add_u32 v5, v6, 4, v5")
    k("s_lshl_b32 s41, s29, 4")
    k("s_lshl_b32 s42, s32, 3")
    k("s_mul_i32 s42, s42, s41")
    k("s_add_u32 s42, s42, s31")
    k("v_bfe_u32 v7, v0, 2, 2")
    k("v_lshlrev_b32 v7, 7, v7")
    k("v_lshrrev_b32 v8, 4, v0")
    k("v_lshl_add_u32 v7, v8, 5, v7")
    k("v_and_b32 v8, 3, v0")
    k("v_lshl_add_u32 v7, v8, 3, v7")
    k("v_add_u32 v7, s39, v7")
    k("v_mov_b32 v10, 0")
    for ku in range(8):
        k(f"s_waitcnt vmcnt({7-ku if ku == 0 else 7})") if False else None
    for ku in range(8):
        k("s_waitcnt vmcnt(7)")
        r = 16 + 4 * ku
        k(f"ds_read_b64_tr_b16 v[{r}:{r+1}], v7 offset:{ku*1024}")
        k(f"ds_read_b64_tr_b16 v[{r+2}:{r+3}], v7 offset:{ku*1024+512}")
        k("s_waitcnt lgkmcnt(0)")
        k(f"buffer_store_dwordx4 v[{r}:{r+3}], v5, s[16:19], s42 offen")
        if ku < 7:
            k("s_add_u32 s42, s42, s41")
    k("s_cmp_eq_u32 s34, 0xffffffff")
    k(f"s_cbranch_scc1 {k.ref('fin')}")
    for i in range(32):
        r = 16 + i
        k(f"v_lshlrev_b32 v8, 16, v{r}")
        k(f"v_and_b32 v9, 0xffff0000, v{r}")
        k("v_add_f32 v10, v10, v8")
        k("v_add_f32 v10, v10, v9")
    k("s_mul_i32 s43, s32, s35")
    k("s_add_u32 s43, s43, s34")
    k("v_lshlrev_b32 v4, 2, v4")
    k("buffer_store_dword v10, v4, s[16:19], s43 offen")
    k.lab("fin")
    k("s_waitcnt vmcnt(0)")
    k("s_endpgm")
    k.lab("stats")
    if "nox" in dbg: k(f"s_branch {k.ref('end')}")
    k("s_cmp_ge_u32 s2, 128")
    k(f"s_cbranch_scc1 {k.ref('end')}")
    k.srd(20, 4, 0, X_BYTES)
    k("s_sub_u32 s26, s26, 4")
    k("s_lshl_b32 s3, s2, 4")
    k("s_lshl_b32 s27, s26, 2")
    k("s_add_u32 s3, s3, s27")
    k("v_lshrrev_b32 v1, 4, v0")
    k("v_add_u32 v1, s3, v1")
    k("v_and_b32 v2, 15, v0")
    k("v_mul_u32_u24 v3, 1280, v1")
    k("v_lshl_add_u32 v3, v2, 4, v3")
    for i in range(5):
        k(f"buffer_load_dwordx4 v[{8+4*i}:{11+4*i}], v3, s[20:23], 0 offen offset:{256*i}")
    k("v_lshrrev_b32 v30, 5, v1")
    k("v_mul_u32_u24 v30, 40960, v30")
    k("v_and_b32 v31, 31, v1")
    k("v_lshl_add_u32 v30, v31, 4, v30")
    k("v_lshl_add_u32 v30, v2, 9, v30")
    k("v_mov_b32 v4, 0")
    k("v_mov_b32 v5, 0")
    for i in range(5):
        k(f"s_waitcnt vmcnt(4)")
        k(f"s_mov_b32 s28, {WS_X0 + i*8192}")
        k(f"buffer_store_dwordx4 v[{8+4*i}:{11+4*i}], v30, s[16:19], s28 offen")
        for j in range(4):
            r = 8 + 4 * i + j
            k(f"v_lshlrev_b32 v6, 16, v{r}")
            k(f"v_and_b32 v7, 0xffff0000, v{r}")
            k("v_add_f32 v4, v4, v6")
            k("v_fmac_f32 v5, v6, v6")
            k("v_add_f32 v4, v4, v7")
            k("v_fmac_f32 v5, v7, v7")
    for sh in (8, 4, 2, 1):
        k("s_nop 1")
        k(f"v_add_f32_dpp v4, v4, v4 row_ror:{sh} row_mask:0xf bank_mask:0xf")
        k(f"v_add_f32_dpp v5, v5, v5 row_ror:{sh} row_mask:0xf bank_mask:0xf")
    k("v_lshlrev_b32 v3, 3, v1")
    k("v_cmp_eq_u32 vcc, 0, v2")
    k("s_and_saveexec_b64 s[30:31], vcc")
    k(f"s_mov_b32 s28, {WS_ST0}")
    k("buffer_store_dwordx2 v[4:5], v3, s[16:19], s28 offen")
    k("s_waitcnt vmcnt(0)")
    k.lab("end")
    k("s_endpgm")
    return k

def ring_loader(k, NCH, NSLOT, dma, nD, pre_b0=None, post_b0=None, first=2, pre_issue=None, fz=None):
    if pre_issue:
        w = pre_issue()
    else:
        for c_ in range(first):
            dma(c_)
        w = nD*(first-1)
    k(f"s_waitcnt vmcnt({w})")
    if pre_b0: pre_b0()
    k("s_barrier")
    issued = first
    if post_b0: post_b0()
    ring_tail(k, NCH, NSLOT, dma, nD, issued, fz)

def ring_tail(k, NCH, NSLOT, dma, nD, issued, fz=None):
    npf = 0
    for i in range(1, NCH):
        while issued < NCH and issued <= i - 2 + NSLOT:
            dma(issued); issued += 1
            if issued == NCH and fz: npf = fz.prefetch_w()
        k(f"s_waitcnt vmcnt({(issued - 1 - i) * nD + npf})")
        k("s_barrier")


WS_FLAG = 8 * MB + 768 * KB
NFLAGSET = 8
LDS_CNT = 147456
POLL_MAX = 0x4000
class Fuse:
    def __init__(self, name, nph, kidx0, xl=False, modeset=None, force_slow=False, sleep=1):
        self.k = Kern(name, 256, 512, LDS_CNT + 256, vgpr=256)
        self.k.fused = True
        self.nph, self.kidx0, self.p = nph, kidx0, -1
        self.xl, self.modeset, self.force_slow, self.sleep = xl, modeset, force_slow, sleep
    def begin(self, wait=None, sig=None, rot=0, pfw=None):
        self.p += 1
        self.wait, self.sig, self.rot, self.pfw = wait, sig, rot, pfw
        k = self.k
        if self.p == 0:
            k.pfx = ""
            k("s_cmp_ge_u32 s2, 256")
            k(f"s_cbranch_scc1 {k.ref('fin')}")
            k.karg(6, 80)
            wave_id(k, 64)
            k(f"v_mov_b32 v1, {LDS_CNT}")
            k("v_mov_b32 v2, 0")
            k("ds_write_b32 v1, v2")
        k.pfx = f"p{self.p}_"
        k.lab("entry")
        k.stamp(0)
        k("s_mov_b32 s26, s64")
    @property
    def last(self): return self.p == self.nph - 1
    def nxt(self): return f"{self.k.name}_p{self.p+1}_entry"
    def leave(self):
        k = self.k
        k.stamp_save(self.p)
        if self.last:
            k.stamp_flush_all(6, self.kidx0, self.nph, 64)
            k("s_endpgm")
        else:
            k(f"s_branch {self.nxt()}")
    def skip_to_end(self):
        assert self.last
        self.k(f"s_cbranch_scc1 {self.k.name}_skip")
    def close(self):
        k = self.k
        k.pfx = ""
        k.lab("skip")
        k.stamp_flush_all(6, self.kidx0, self.nph, 64)
        k.lab("fin")
        k("s_endpgm")
        return k
    def mode_word(self, d):
        k = self.k
        k(f"s_and_b32 s{d}, s2, 7")
        k(f"s_lshl_b32 s{d}, s{d}, 7")
        k(f"s_add_u32 s{d}, s{d}, {WS_FLAG + self.modeset*4096}")
    def mode_token(self, d, t):
        k = self.k
        k(f"s_getreg_b32 s{t}, hwreg(HW_REG_XCC_ID, 0, 4)")
        k(f"s_mul_i32 s{d}, s{t}, s{t}")
        k(f"s_lshl_b32 s{d}, s{d}, 16")
        k(f"s_lshl_b32 s{t}, s{t}, 6")
        k(f"s_add_u32 s{d}, s{d}, s{t}")
        k(f"s_add_u32 s{d}, s{d}, 1")
    def mode_publish(self):
        if not (self.xl and self.p == 0): return
        k = self.k
        k("s_cmp_lg_u32 s26, 0")
        k(f"s_cbranch_scc1 {k.ref('nopub')}")
        self.mode_token(65, 66)
        self.mode_word(66)
        k("s_mov_b64 exec, 1")
        k("v_mov_b32 v10, s65")
        k("buffer_atomic_add v10, off, s[12:15], s66 sc1")
        k("s_mov_b64 exec, -1")
        k.lab("nopub")
    def mode_issue(self, srd, vd):
        k = self.k
        self.mode_word(62)
        k(f"buffer_load_dword v{vd}, off, s[{srd}:{srd+3}], s62 sc1")
    def mode_resolve(self, srd, vd):
        k = self.k
        l0, l1 = k.newlab("mpoll"), k.newlab("mpolled")
        self.mode_word(62)
        k(f"s_mov_b32 s65, {POLL_MAX}")
        k.lab(l0)
        k(f"v_readfirstlane_b32 s67, v{vd}")
        k("s_and_b32 s66, s67, 63")
        k("s_cmp_eq_u32 s66, 32")
        k(f"s_cbranch_scc1 {k.ref(l1)}")
        k("s_sleep 2")
        k(f"buffer_load_dword v{vd}, off, s[{srd}:{srd+3}], s62 sc1")
        k("s_waitcnt vmcnt(0)")
        k("s_sub_u32 s65, s65, 1")
        k(f"s_cbranch_scc0 {k.ref(l0)}")
        k.lab(l1)
        self.mode_token(65, 66)
        k("s_lshl_b32 s65, s65, 5")
        k("s_cmp_lg_u32 s65, s67")
        k("s_cselect_b32 s63, 1, 0")
        if self.force_slow: k("s_mov_b32 s63, 1")
    def prefetch_w(self):
        if not self.pfw: return 0
        k = self.k
        base, nb = self.pfw
        per_w = nb // 128
        lines = (per_w + 127) // 128
        k("s_lshr_b32 s65, s2, 3")
        k("s_lshl_b32 s65, s65, 2")
        k("s_add_u32 s65, s65, s26")
        k(f"s_mul_i32 s65, s65, {per_w}")
        k(f"s_add_u32 s65, s65, {base}")
        k("v_lshlrev_b32 v12, 7, v0")
        n = 0
        done = 0
        while done < lines:
            n_ = min(64, lines - done)
            if n_ < 64: k(f"s_mov_b64 exec, {(1 << n_) - 1:#x}") if n_ <= 32 else (k(f"s_mov_b32 exec_hi, {((1 << n_) - 1) >> 32:#x}"))
            k(f"buffer_load_dword v{13+n}, v12, s[12:15], s65 offen")
            if n_ < 64: k("s_mov_b64 exec, -1")
            done += n_; n += 1
            if done < lines: k(f"s_add_u32 s65, s65, {64*128}")
        return n
    def poll(self, line, nprod):
        k = self.k
        if self.xl and self.p == 1:
            k(f"s_mov_b32 s61, s{line}")
            self.mode_issue(12, 11)
            k("s_waitcnt vmcnt(0)")
            self.mode_resolve(12, 11)
            line = 61
        k(f"s_lshl_b32 s66, s{line}, 7")
        k(f"s_add_u32 s66, s66, {WS_FLAG + self.wait*4096}")
        k("v_lshlrev_b32 v10, 2, v0")
        k(f"s_mov_b64 exec, {(1 << nprod) - 1:#x}")
        k(f"s_mov_b32 s65, {POLL_MAX}")
        k.lab("poll")
        k("buffer_load_dword v11, v10, s[12:15], s66 offen sc1")
        k("s_waitcnt vmcnt(0)")
        k("v_cmp_ne_u32 vcc, 0, v11")
        k(f"s_cmp_eq_u32 vcc_lo, {(1 << nprod) - 1:#x}")
        k(f"s_cbranch_scc1 {k.ref('polled')}")
        k(f"s_sleep {self.sleep}")
        k("s_sub_u32 s65, s65, 1")
        k(f"s_cbranch_scc0 {k.ref('poll')}")
        k.lab("polled")
        k("s_mov_b64 exec, -1")
        if self.xl:
            k("s_cmp_eq_u32 s63, 0")
            k(f"s_cbranch_scc1 {k.ref('noacq')}")
            k("buffer_inv sc1")
            k("s_waitcnt vmcnt(0)")
            k.lab("noacq")
        k.stamp(3)
    def signal(self):
        k = self.k
        l = k.newlab("nosig")
        k("s_mov_b64 exec, 1")
        k(f"v_mov_b32 v1, {LDS_CNT}")
        k("v_mov_b32 v2, 1")
        k("ds_add_rtn_u32 v3, v1, v2")
        k("s_lshl_b32 s37, s24, 7")
        k("s_lshl_b32 s38, s25, 2")
        k("s_add_u32 s37, s37, s38")
        k(f"s_add_u32 s37, s37, {WS_FLAG + self.sig*4096}")
        k("s_waitcnt lgkmcnt(0)")
        k("v_readfirstlane_b32 s38, v3")
        k("s_and_b32 s38, s38, 3")
        k("s_cmp_eq_u32 s38, 3")
        k(f"s_cbranch_scc0 {k.ref(l)}")
        if self.xl:
            l2 = k.newlab("fastsig")
            k("s_cmp_eq_u32 s63, 0")
            k(f"s_cbranch_scc1 {k.ref(l2)}")
            k("buffer_wbl2 sc1")
            k("s_waitcnt vmcnt(0)")
            k("buffer_store_dword v2, off, s[48:51], s37 sc1")
            k(f"s_branch {k.ref(l)}")
            k.lab(l2)
            k("buffer_store_dword v2, off, s[48:51], s37 ; nosc")
        else:
            k("buffer_store_dword v2, off, s[48:51], s37 sc1")
        k.lab(l)
        k("s_mov_b64 exec, -1")

def fin_compute(k, fz, kidx):
    k.stamp(4)
    if fz is None:
        k.stamp_flush(6, kidx, 5, 26)
        k("s_endpgm")
    else:
        if fz.xl and fz.p == 0: fz.mode_resolve(48, 250)
        if fz.sig is not None: fz.signal()
        fz.leave()

def fin_loader(k, fz, kidx):
    k.stamp(4)
    if fz is None:
        k("s_add_u32 s26, s26, 4")
        k.stamp_flush(6, kidx, 5, 26)
        k.lab("end")
        k("s_endpgm")
    else:
        fz.leave()


PFS = 128
CW = 0
CWN = 2
class TilePF:
    def __init__(self, k, pfd, first, NCH, va, vs, vd, srd):
        self.k, self.pfd, self.first, self.NCH, self.va, self.vs, self.vd, self.srd = k, pfd, first, NCH, va, vs, vd, srd
        self.next = first
    def one(self):
        k = self.k
        k(f"buffer_load_dword v{self.vd}, v{self.va}, s[{self.srd}:{self.srd+3}], 0 offen")
        self.next += 1
        if self.next < self.NCH:
            k(f"v_add_u32 v{self.va}, v{self.vs}, v{self.va}")
    def start(self):
        self.next = self.first
        while self.next < self.NCH and self.next <= self.pfd:
            self.one()
    def at_barrier(self):
        if self.pfd and self.next < self.NCH:
            self.one()

def gen_gemmA(name, kind, layer, kidx=0, dbg=(), first=2, pfd=0, fz=None):
    if kind == "qkv":
        NWG, NB, TB, TN = 240, 2, 2, 128
        WS_W, XSRC, ST, NPART, CSP, NCOL = WS_WQ, (WS_X0 if layer == 0 else WS_X2), WS_ST0, (1 if layer == 0 else 16), WS_CSQ, 1920
    else:
        NWG, NB, TB, TN = 256, 3, 1, 96
        WS_W, XSRC, ST, NPART, CSP, NCOL = WS_W1, WS_X1, WS_ST1, 16, WS_CS1, 1536
    WB = TN * 128
    SLOT = WB + 16384
    NSLOT = 4
    NCH = 10
    STATS = NSLOT * SLOT
    LDS = STATS + 2048
    rot = fz.rot if fz else 0
    XS = " sc1" if (fz and fz.wait is not None) else ""
    if fz is None:
        k = Kern(name, NWG, 512, LDS, vgpr=256)
        k(f"s_cmp_ge_u32 s2, {NWG}")
        k(f"s_cbranch_scc1 {k.ref('end')}")
        k.stamp(0)
        k.karg(6, 80)
        if kind == "w1":
            k.karg(8, 40)
        wave_id(k, 26)
    else:
        k = fz.k
        if NWG < 256:
            k(f"s_cmp_ge_u32 s2, {NWG}")
            fz.skip_to_end()
        if kind == "w1":
            k.karg(8, 40)
    k("s_and_b32 s20, s2, 7")
    k("s_lshr_b32 s21, s2, 3")
    if fz and fz.xl:
        k("s_and_b32 s22, s21, 1")
        k("s_lshl_b32 s23, s20, 1")
        k("s_add_u32 s24, s23, s22")
        k("s_lshr_b32 s25, s21, 1")
    else:
        if kind == "qkv":
            k("s_and_b32 s22, s20, 1")
            k("s_mul_i32 s22, s22, 30")
            k("s_add_u32 s22, s22, s21")
            k("s_lshr_b32 s25, s22, 2")
            k("s_and_b32 s22, s22, 3")
        else:
            k("s_and_b32 s22, s20, 1")
            k("s_lshl_b32 s22, s22, 3")
            k("s_lshr_b32 s23, s21, 2")
            k("s_add_u32 s25, s22, s23")
            k("s_and_b32 s22, s21, 3")
        k("s_lshr_b32 s23, s20, 1")
        k("s_lshl_b32 s23, s23, 2")
        k("s_add_u32 s24, s23, s22")
    k("s_cmp_lt_u32 s26, 4")
    k(f"s_cbranch_scc1 {k.ref('compute')}")

    k("s_sub_u32 s26, s26, 4")
    k("v_lshlrev_b32 v1, 4, v0")
    nW = WB // 4096
    k(f"s_mul_i32 s40, s25, {80*TN*16}")
    k(f"s_mul_i32 s41, s26, {nW*1024}")
    k("s_add_u32 s40, s40, s41")
    k(f"s_add_u32 s40, s40, {WS_W}")
    k("s_mov_b32 s42, s41")
    k("s_lshl_b32 s43, s24, 2")
    k("s_add_u32 s43, s43, s26")
    k("s_mul_i32 s43, s43, 40960")
    k(f"s_add_u32 s43, s43, {XSRC}")
    k("s_lshl_b32 s44, s26, 12")
    k(f"s_add_u32 s44, s44, {WB}")
    k("s_waitcnt lgkmcnt(0)")
    k.srd(12, 6, 0, WS_SIZE)
    def dma(ch, parts="wx"):
        if "nodma" in dbg: return
        slot = (ch + rot) % NSLOT
        if "w" in parts:
            k(f"s_add_u32 m0, s42, {slot*SLOT}")
            k(f"s_add_u32 s45, s40, {ch*WB}")
            for i in range(nW):
                k(f"buffer_load_dwordx4 v1, s[12:15], s45 offen offset:{i*1024} lds")
        if "x" in parts:
            k(f"s_add_u32 m0, s44, {slot*SLOT}")
            k(f"s_add_u32 s45, s43, {ch*4096}")
            for i in range(4):
                k(f"buffer_load_dwordx4 v1, s[12:15], s45 offen offset:{i*1024}{XS} lds")
    nD = nW + 4
    k.stamp(1)
    early = XS != ""
    def stats_loads():
        k("s_lshl_b32 s46, s24, 7")
        k("s_lshl_b32 s47, s26, 5")
        k("s_add_u32 s46, s46, s47")
        k("v_add_u32 v4, s46, v2")
        k("v_lshlrev_b32 v4, 3, v4")
        if NPART == 16:
            k("v_lshl_add_u32 v4, v3, 17, v4")
            for p in range(8):
                k(f"s_mov_b32 s47, {ST + p*16384}")
                k(f"buffer_load_dwordx2 v[{16+2*p}:{17+2*p}], v4, s[12:15], s47 offen{XS}")
        else:
            k(f"s_mov_b32 s47, {ST}")
            k(f"buffer_load_dwordx2 v[16:17], v4, s[12:15], s47 offen{XS}")
    def cs_loads():
        k("s_lshl_b32 s47, s26, 5")
        k("v_add_u32 v5, s47, v2")
        k(f"s_mul_i32 s47, s25, {TN}")
        k("v_add_u32 v6, s47, v5")
        k("v_lshlrev_b32 v7, 2, v6")
        k(f"v_mul_u32_u24 v8, {5*NCOL*4}, v3")
        k("v_add_u32 v7, v7, v8")
        for p in range(5):
            k(f"s_mov_b32 s47, {CSP + p*NCOL*4}")
            k(f"buffer_load_dword v{32+p}, v7, s[12:15], s47 offen")
        if kind == "w1":
            k.srd(16, 8, 0, 1536 * 2)
            k("v_lshlrev_b32 v9, 1, v6")
            k("buffer_load_ushort v38, v9, s[16:19], 0 offen")
    if early:
        for c_ in range(first):
            dma(c_, "w")
        k("v_and_b32 v2, 31, v0")
        k("v_lshrrev_b32 v3, 5, v0")
        cs_loads()
        k("s_lshr_b32 s67, s26, 1")
        k("s_lshl_b32 s46, s24, 1")
        k("s_add_u32 s67, s67, s46")
        fz.poll(67, 8)
        dma(0, "x")
        stats_loads()
        for c_ in range(1, first):
            dma(c_, "x")
        k(f"s_waitcnt vmcnt({4*(first-1)})")
    else:
        dma(0)
        k("v_and_b32 v2, 31, v0")
        k("v_lshrrev_b32 v3, 5, v0")
        stats_loads()
        cs_loads()
        for c_ in range(1, first):
            dma(c_)
        k(f"s_waitcnt vmcnt({nD*(first-1)})")
    k.stamp(2)
    k("s_barrier")
    if NPART == 16:
        for p in range(1, 8):
            k(f"v_add_f32 v16, v16, v{16+2*p}")
            k(f"v_add_f32 v17, v17, v{17+2*p}")
        k("v_mov_b32 v18, v16")
        k("v_mov_b32 v19, v17")
        k("s_nop 1")
        k("v_permlane32_swap_b32 v16, v18")
        k("v_permlane32_swap_b32 v17, v19")
        k("s_nop 1")
        k("v_add_f32 v16, v16, v18")
        k("v_add_f32 v17, v17, v19")
    k(f"v_mul_f32 v16, {f2u(1/640):#x}, v16")
    k(f"v_mul_f32 v17, {f2u(1/640):#x}, v17")
    k("v_fma_f32 v17, -v16, v16, v17")
    k("v_max_f32 v17, 0, v17")
    k(f"v_add_f32 v18, {f2u(1e-5):#x}, v17")
    k("v_rsq_f32 v18, v18")
    if kind == "w1":
        k("s_nop 0")
        k("v_mul_f32 v19, v18, v18")
        k("v_mul_f32 v19, v19, v17")
        k(f"v_add_f32 v19, {f2u(1e-5):#x}, v19")
        k("v_rsq_f32 v19, v19")
        k("s_nop 0")
        k("v_mul_f32 v18, v18, v19")
    else:
        k("s_cmp_lt_u32 s25, 5")
        k(f"s_cselect_b32 s46, {f2u(QSCALE):#x}, 1.0")
        k("v_mul_f32 v18, s46, v18")
    k("s_nop 0")
    k("v_mul_f32 v19, v18, v16")
    for p in range(1, 5):
        k(f"v_add_f32 v32, v32, v{32+p}")
    k("v_mov_b32 v33, v32")
    k("s_nop 1")
    k("v_permlane32_swap_b32 v32, v33")
    k("s_nop 1")
    k("v_add_f32 v32, v32, v33")
    k("v_cmp_eq_u32 vcc, 0, v3")
    k("s_lshl_b32 s47, s26, 7")
    k("v_lshlrev_b32 v2, 2, v2")
    k("v_add_u32 v2, s47, v2")
    k(f"v_add_u32 v2, {STATS}, v2")
    k("v_lshl_add_u32 v2, v3, 9, v2")
    k("v_cndmask_b32 v18, v19, v18, vcc")
    if kind == "w1":
        k("v_lshlrev_b32 v38, 16, v38")
        k("v_cndmask_b32 v32, v38, v32, vcc")
    k("ds_write_b32 v2, v18")
    k("ds_write_b32 v2, v32 offset:1024")
    k("s_waitcnt lgkmcnt(0)")
    issued = first
    free = [int(d[4:]) for d in dbg if d.startswith("free")]
    if free:
        for c_ in range(first, NCH):
            dma(c_)
            k(f"s_waitcnt vmcnt({free[0]})")
        k("s_waitcnt vmcnt(0)")
        for i in range(1, NCH): k("s_barrier")
    else:
        ring_tail(k, NCH, NSLOT, dma, nD, issued, fz)
    fin_loader(k, fz, kidx)

    k.lab("compute")
    ACC = 64
    FA = [128, 128 + 4 * NB]
    FB = [160, 160 + 4 * TB]
    AW, AX = 1, 3
    HH, TL = 17, 16
    if kind == "qkv":
        k("s_and_b32 s27, s26, 1")
        k("s_lshr_b32 s36, s26, 1")
    else:
        k("s_mov_b32 s27, 0")
        k("s_mov_b32 s36, s26")
    k(f"v_lshrrev_b32 v{HH}, 5, v0")
    k(f"v_and_b32 v{TL}, 31, v0")
    k(f"v_mul_u32_u24 v20, {TN*16}, v{HH}")
    k(f"v_lshl_add_u32 v20, v{TL}, 4, v20")
    k(f"s_mul_i32 s37, s27, {NB*512}")
    k(f"v_add_u32 v{AW}, s37, v20")
    k(f"v_add_u32 v{AW+1}, {2*SLOT}, v{AW}")
    k(f"v_lshlrev_b32 v20, 4, v0")
    k(f"s_mul_i32 s37, s36, {TB*4096}")
    k(f"s_add_u32 s37, s37, {WB}")
    k(f"v_add_u32 v{AX}, s37, v20")
    k(f"v_add_u32 v{AX+1}, {2*SLOT}, v{AX}")

    def reads(step):
        ch, ks = divmod(step, 4)
        slot = (ch + rot) % NSLOT
        half, sl = divmod(slot, 2)
        st = step & 1
        out = []
        for nb in range(NB):
            d = FA[st] + nb * 4
            out.append(f"ds_read_b128 v[{d}:{d+3}], v{AW+half} offset:{sl*SLOT + ks*2*TN*16 + nb*512}")
        for tb in range(TB):
            d = FB[st] + tb * 4
            out.append(f"ds_read_b128 v[{d}:{d+3}], v{AX+half} offset:{sl*SLOT + ks*1024 + tb*4096}")
        return out

    def mainloop(swap):
        nx0 = PFT.next
        k.stamp(1)
        k("s_barrier")
        k.stamp(2)
        for r in reads(0):
            k(r)
        NS = NCH * 4
        for step in range(NS):
            st = step & 1
            bar = step % 4 == 3 and step + 1 < NS
            cw = CW and not bar
            if not cw: k("s_waitcnt lgkmcnt(0)")
            if bar:
                k("s_barrier")
            rd = reads(step + 1) if step + 1 < NS else []
            if CW:
                wr, xr = rd[:NB], rd[NB:]
                rd = []
                for j in range(max(NB, TB)):
                    rd += wr[j:j+1] + xr[j:j+1]
            mf = []
            for nb in range(NB):
                for tb in range(TB):
                    d = ACC + (nb * TB + tb) * 16
                    a = FA[st] + nb * 4
                    b = FB[st] + tb * 4
                    c = "0" if step == 0 else f"v[{d}:{d+15}]"
                    if swap:
                        mf.append(f"v_mfma_f32_32x32x16_bf16 v[{d}:{d+15}], v[{b}:{b+3}], v[{a}:{a+3}], {c}")
                    else:
                        mf.append(f"v_mfma_f32_32x32x16_bf16 v[{d}:{d+15}], v[{a}:{a+3}], v[{b}:{b+3}], {c}")
            def pos(nb, tb):
                order = []
                for j in range(max(NB, TB)):
                    if j < NB: order.append(("w", j))
                    if j < TB: order.append(("x", j))
                return max(order.index(("w", nb)), order.index(("x", tb))), len(order)
            ri = 0
            issued_now = 0
            i = 0
            lastw = None
            for nb in range(NB):
                for tb in range(TB):
                    m = mf[i]
                    if cw and step > 0:
                        p, n_ = pos(nb, tb)
                        w_ = (n_ - 1 - p) + issued_now
                        if lastw is None or p > lastw:
                            k(f"s_waitcnt lgkmcnt({w_})")
                            lastw = p
                    elif cw and step == 0 and i == 0:
                        k("s_waitcnt lgkmcnt(0)")
                    if "nomfma" not in dbg: k(m)
                    nper = 2 if not CW else CWN
                    for r in rd[ri:ri + nper]:
                        if "nords" not in dbg: k(r)
                        issued_now += 1
                    ri += nper
                    if i == 2 and step % 4 == 3: PFT.at_barrier()
                    i += 1
            assert ri >= len(rd)
        k.stamp(3)
        PFT.next = nx0

    k("s_waitcnt lgkmcnt(0)")
    PFT = TilePF(k, pfd, first, NCH, 8, 9, 10, 56)
    if pfd:
        k.srd(56, 6, 0, WS_SIZE)
        PS = PFS
        sh = {128: 7, 64: 6, 32: 5}[PS]
        nw = WB // 16 // PS
        NWL = 1024 // PS
        nx = 512 // PS
        k("s_and_b32 s37, s24, 3")
        k(f"s_mul_i32 s37, s37, {WB//4}")
        k(f"s_mul_i32 s38, s26, {WB//16}")
        k("s_add_u32 s37, s37, s38")
        k(f"s_mul_i32 s38, s25, {80*TN*16}")
        k("s_add_u32 s37, s37, s38")
        k(f"s_add_u32 s37, s37, {WS_W + first*WB}")
        k("s_and_b32 s38, s20, 1")
        k(f"s_mul_i32 s38, s38, {7 if kind == 'qkv' else 8}")
        k("s_sub_u32 s38, s25, s38")
        k("s_lshr_b32 s39, s38, 1")
        k("s_lshl_b32 s40, s24, 2")
        k("s_add_u32 s39, s39, s40")
        k("s_mul_i32 s39, s39, 40960")
        k("s_and_b32 s38, s38, 1")
        k("s_lshl_b32 s38, s38, 11")
        k("s_add_u32 s39, s39, s38")
        k("s_lshl_b32 s38, s26, 9")
        k("s_add_u32 s39, s39, s38")
        k(f"s_add_u32 s39, s39, {XSRC + first*4096 - NWL*PS}")
        k(f"v_lshlrev_b32 v8, {sh}, v0")
        k("v_mov_b32 v11, s39")
        k("v_mov_b32 v12, s37")
        k(f"v_cmp_gt_u32 vcc, {NWL}, v0")
        k(f"v_mov_b32 v9, 4096")
        k(f"v_mov_b32 v13, {WB}")
        k("v_cndmask_b32 v11, v11, v12, vcc")
        k("v_cndmask_b32 v9, v9, v13, vcc")
        k("v_add_u32 v8, v11, v8")
        k(f"v_cmp_gt_u32 vcc, {NWL+nx}, v0")
        k("v_mov_b32 v12, 0x80000000")
        k("s_nop 0")
        k("v_cndmask_b32 v8, v12, v8, vcc")
        if nw < NWL:
            k(f"v_subrev_u32 v13, {nw}, v0")
            k(f"v_cmp_gt_u32 vcc, {NWL-nw}, v13")
            k("s_nop 1")
            k("v_cndmask_b32 v8, v8, v12, vcc")
        PFT.start()
    if kind == "qkv":
        k("s_cmp_ge_u32 s25, 10")
        k(f"s_cbranch_scc1 {k.ref('vpath')}")
        pre_qk(k, HH, TL)
        mainloop(False)
        epi_qk(k, ACC, STATS, HH, TL)
        fin_compute(k, fz, kidx)
        k.lab("vpath")
        pre_v(k, HH, TL)
        mainloop(True)
        epi_v(k, ACC, STATS, HH, TL)
        fin_compute(k, fz, kidx)
    else:
        mainloop(False)
        epi_w1(k, ACC, STATS, HH, TL, NS_=(" ; nosc" if (fz and fz.xl) else ""))
        fin_compute(k, fz, kidx)
    return k


def gen_qkv_raw(name, kidx=0, dbg=(), first=2, pfd=0, zflags=False):
    NWG, NB, TB, TN = 240, 2, 2, 128
    WB = 16384
    SLOT = 2 * WB
    NSLOT = 4
    NCH = 10
    STATS = NSLOT * SLOT
    LDS = STATS + 2048
    k = Kern(name, NWG, 512, LDS, vgpr=256)
    k(f"s_cmp_ge_u32 s2, {NWG}")
    k(f"s_cbranch_scc1 {k.ref('end')}")
    k.stamp(0)
    k.karg(8, 0)
    k.karg(10, 8)
    k.karg(6, 80)
    wave_id(k, 26)
    k("s_and_b32 s20, s2, 7")
    k("s_lshr_b32 s21, s2, 3")
    k("s_and_b32 s22, s20, 1")
    k("s_mul_i32 s22, s22, 30")
    k("s_add_u32 s22, s22, s21")
    k("s_lshr_b32 s25, s22, 2")
    k("s_and_b32 s22, s22, 3")
    k("s_lshr_b32 s23, s20, 1")
    k("s_lshl_b32 s23, s23, 2")
    k("s_add_u32 s24, s23, s22")
    k("s_cmp_lt_u32 s26, 4")
    k(f"s_cbranch_scc1 {k.ref('compute')}")
    k("s_sub_u32 s26, s26, 4")
    VW, VX = 4, 8
    k("v_lshrrev_b32 v1, 4, v0")
    k("v_and_b32 v2, 15, v0")
    k("v_lshlrev_b32 v3, 2, v1")
    k("v_xor_b32 v2, v2, v3")
    k("v_mul_u32_u24 v1, 3840, v1")
    k(f"v_lshl_add_u32 v{VW}, v2, 4, v1")
    for i in range(1, 4):
        k(f"v_add_u32 v{VW+i}, {4*3840-1024}, v{VW+i-1}")
    k("v_lshrrev_b32 v1, 3, v0")
    k("v_and_b32 v2, 7, v0")
    k("v_lshrrev_b32 v3, 1, v1")
    k("v_xor_b32 v2, v2, v3")
    k("v_mul_u32_u24 v1, 1280, v1")
    k(f"v_lshl_add_u32 v{VX}, v2, 4, v1")
    k("v_xor_b32 v2, 4, v2")
    k("v_lshl_add_u32 v2, v2, 4, v1")
    k(f"v_add_u32 v{VX+1}, {8*1280-1024}, v2")
    k(f"v_add_u32 v{VX+2}, {2*(8*1280-1024)}, v{VX}")
    k(f"v_add_u32 v{VX+3}, {3*(8*1280-1024)}, v2")
    k("s_lshl_b32 s40, s25, 8")
    k(f"s_mul_i32 s41, s26, {16*3840}")
    k("s_add_u32 s40, s40, s41")
    k("s_lshl_b32 s42, s26, 12")
    k("s_lshl_b32 s43, s24, 2")
    k("s_add_u32 s43, s43, s26")
    k(f"s_mul_i32 s43, s43, {32*1280}")
    k(f"s_add_u32 s44, s42, {WB}")
    k("s_waitcnt lgkmcnt(0)")
    k.srd(12, 10, 0, 640 * 3840)
    k.srd(16, 8, 0, X_BYTES)
    def dma(ch):
        slot = ch % NSLOT
        k(f"s_add_u32 m0, s42, {slot*SLOT}")
        k(f"s_add_u32 s45, s40, {ch*64*3840}")
        for i in range(4):
            k(f"buffer_load_dwordx4 v{VW+i}, s[12:15], s45 offen offset:{i*1024} lds")
        k(f"s_add_u32 m0, s44, {slot*SLOT}")
        k(f"s_add_u32 s45, s43, {ch*128}")
        for i in range(4):
            k(f"buffer_load_dwordx4 v{VX+i}, s[16:19], s45 offen offset:{i*1024} lds")
    k.stamp(1)
    def pre(): k.stamp(2)
    ring_loader(k, NCH, NSLOT, dma, 8, pre_b0=pre, first=first)
    if zflags:
        k(f"s_cmp_ge_u32 s2, {NFLAGSET*4}")
        k(f"s_cbranch_scc1 {k.ref('zdone')}")
        k("s_cmp_lg_u32 s26, 0")
        k(f"s_cbranch_scc1 {k.ref('zdone')}")
        k.srd(48, 6, WS_FLAG, NFLAGSET*4096)
        k("s_lshl_b32 s45, s2, 10")
        k("v_lshlrev_b32 v1, 4, v0")
        for r in range(4):
            k(f"v_mov_b32 v{12+r}, 0")
        k("buffer_store_dwordx4 v[12:15], v1, s[48:51], s45 offen")
        k("s_waitcnt vmcnt(0)")
        k.lab("zdone")
    k.stamp(4)
    k("s_add_u32 s26, s26, 4")
    k.stamp_flush(6, kidx, 5, 26)
    k.lab("end")
    k("s_endpgm")

    k.lab("compute")
    ACC = 64
    FA = [128, 128 + 4 * NB]
    FB = [160, 160 + 4 * TB]
    AW, AX = 2, 192
    HH, TL = 17, 16
    S1, S2, TMP, SEL, CS = 48, 50, 52, 60, 32
    k("s_and_b32 s27, s26, 1")
    k("s_lshr_b32 s36, s26, 1")
    k(f"v_lshrrev_b32 v{HH}, 5, v0")
    k(f"v_and_b32 v{TL}, 31, v0")
    k("v_lshrrev_b32 v20, 4, v0")
    k("v_bfe_u32 v21, v0, 2, 2")
    k("v_and_b32 v22, 3, v0")
    k("v_lshrrev_b32 v23, 1, v20")
    k("v_lshl_add_u32 v23, v23, 3, v21")
    k("v_and_b32 v18, 1, v20")
    k("v_lshlrev_b32 v18, 1, v18")
    k("v_lshrrev_b32 v19, 1, v22")
    k("v_add_u32 v18, v18, v19")
    k("s_lshl_b32 s37, s27, 3")
    k("v_add_u32 v18, s37, v18")
    k("v_lshlrev_b32 v19, 2, v21")
    k("v_xor_b32 v18, v18, v19")
    k("v_lshlrev_b32 v18, 4, v18")
    k("v_lshl_add_u32 v18, v23, 8, v18")
    k("v_and_b32 v19, 1, v22")
    k(f"v_lshl_add_u32 v{AW}, v19, 3, v18")
    k(f"v_add_u32 v{AW+1}, {2*SLOT}, v{AW}")
    k(f"v_xor_b32 v{AW+2}, 64, v{AW}")
    k(f"v_add_u32 v{AW+3}, {2*SLOT}, v{AW+2}")
    k(f"v_bfe_u32 v18, v{TL}, 1, 3")
    k(f"v_xor_b32 v18, v18, v{HH}")
    k("v_lshlrev_b32 v18, 4, v18")
    k(f"v_lshl_add_u32 v18, v{TL}, 7, v18")
    k("s_lshl_b32 s37, s36, 13")
    k("s_lshl_b32 s38, s27, 12")
    k("s_add_u32 s37, s37, s38")
    k(f"s_add_u32 s37, s37, {WB}")
    k(f"v_add_u32 v{AX}, s37, v18")
    for sl_ in range(2):
        for ks in range(4):
            d = AX + (sl_ * 4 + ks) * 2
            x = (sl_ << 12) | (ks << 5)
            if x: k(f"v_xor_b32 v{d}, {x}, v{AX}")
            k(f"v_add_u32 v{d+1}, {2*SLOT}, v{d}")
    k("v_and_b32 v18, 15, v0")
    k("v_bfe_u32 v19, v0, 4, 1")
    k("v_cmp_eq_u32 vcc, v18, v19")
    k("v_mov_b32 v19, 0x3f803f80")
    k("s_nop 0")
    k(f"v_cndmask_b32 v{SEL}, 0, v19, vcc")
    for r in range(1, 4):
        k(f"v_mov_b32 v{SEL+r}, v{SEL}")
    for r in range(4):
        k(f"v_mov_b32 v{S1+r}, 0")

    def reads(step):
        ch, ks = divmod(step, 4)
        slot = ch % NSLOT
        half, sl = divmod(slot, 2)
        st = step & 1
        out = []
        for tb in range(TB):
            d = FB[st] + tb * 4
            out.append(f"ds_read_b128 v[{d}:{d+3}], v{AX+(tb*4+ks)*2+half} offset:{sl*SLOT}")
        for nb in range(NB):
            d = FA[st] + nb * 4
            out.append(f"ds_read_b64_tr_b16 v[{d}:{d+1}], v{AW+nb*2+half} offset:{sl*SLOT + ks*4096}")
            out.append(f"ds_read_b64_tr_b16 v[{d+2}:{d+3}], v{AW+nb*2+half} offset:{sl*SLOT + ks*4096 + 1024}")
        return out

    def mainloop(swap):
        nx0 = PFT.next
        k.stamp(1)
        k("s_barrier")
        k.stamp(2)
        for r in reads(0):
            k(r)
        NS = NCH * 4
        for step in range(NS):
            st = step & 1
            k("s_waitcnt lgkmcnt(0)")
            if step % 4 == 3 and step + 1 < NS:
                k("s_barrier")
                PFT.at_barrier()
            rd = reads(step + 1) if step + 1 < NS else []
            mf = []
            for nb in range(NB):
                for tb in range(TB):
                    d = ACC + (nb * TB + tb) * 16
                    a = FA[st] + nb * 4
                    b = FB[st] + tb * 4
                    c = "0" if step == 0 else f"v[{d}:{d+15}]"
                    if swap:
                        mf.append(f"v_mfma_f32_32x32x16_bf16 v[{d}:{d+15}], v[{b}:{b+3}], v[{a}:{a+3}], {c}")
                    else:
                        mf.append(f"v_mfma_f32_32x32x16_bf16 v[{d}:{d+15}], v[{a}:{a+3}], v[{b}:{b+3}], {c}")
            for nb in range(NB):
                d = CS + 4 * nb
                a = FA[st] + nb * 4
                c = "0" if step == 0 else f"v[{d}:{d+3}]"
                mf.insert(2 + 3 * nb, f"v_mfma_f32_16x16x32_bf16 v[{d}:{d+3}], v[{SEL}:{SEL+3}], v[{a}:{a+3}], {c}")
            va = []
            for r in range(4):
                x = FB[st] + r
                t = TMP + 2 * (r & 1)
                va += [f"v_and_b32 v{t}, 0xffff0000, v{x}", f"v_lshlrev_b32 v{t+1}, 16, v{x}",
                       f"v_add_f32 v{S1}, v{S1}, v{t}", f"v_fmac_f32 v{S2}, v{t}, v{t}",
                       f"v_add_f32 v{S1+1}, v{S1+1}, v{t+1}", f"v_fmac_f32 v{S2+1}, v{t+1}, v{t+1}"]
            if "nostat" in dbg: va = []
            ri, vi = 0, 0
            for i, m in enumerate(mf):
                k(m)
                nrd = 1
                for r in rd[ri:ri + nrd]: k(r)
                ri += nrd
                for x in va[vi:vi + 4]: k(x)
                vi += 4
            assert ri >= len(rd) and vi >= len(va)
        k.stamp(3)
        k(f"v_add_f32 v40, v{S1}, v{S1+1}")
        k(f"v_add_f32 v41, v{S2}, v{S2+1}")
        k("v_mov_b32 v42, v40")
        k("v_mov_b32 v43, v41")
        k("s_nop 1")
        k("v_permlane32_swap_b32 v40, v42")
        k("v_permlane32_swap_b32 v41, v43")
        k("s_nop 1")
        k("v_add_f32 v40, v40, v42")
        k("v_add_f32 v41, v41, v43")
        k(f"v_mul_f32 v40, {f2u(1/640):#x}, v40")
        k(f"v_mul_f32 v41, {f2u(1/640):#x}, v41")
        k("v_fma_f32 v41, -v40, v40, v41")
        k("v_max_f32 v41, 0, v41")
        k(f"v_add_f32 v42, {f2u(1e-5):#x}, v41")
        k("v_rsq_f32 v42, v42")
        k("s_cmp_lt_u32 s25, 5")
        k(f"s_cselect_b32 s46, {f2u(QSCALE):#x}, 1.0")
        k("v_mul_f32 v42, s46, v42")
        k("v_mul_f32 v43, v42, v40")
        k(f"v_cmp_eq_u32 vcc, 0, v{HH}")
        k("s_lshl_b32 s37, s36, 8")
        k("s_lshl_b32 s38, s27, 7")
        k("s_add_u32 s37, s37, s38")
        k(f"s_add_u32 s37, s37, {STATS}")
        k(f"v_lshlrev_b32 v44, 2, v{TL}")
        k("v_add_u32 v44, s37, v44")
        k(f"v_lshl_add_u32 v44, v{HH}, 9, v44")
        k("v_cndmask_b32 v42, v43, v42, vcc")
        k("ds_write_b32 v44, v42")
        k("s_lshl_b32 s37, s27, 8")
        k(f"s_add_u32 s37, s37, {STATS+1024}")
        k("v_lshlrev_b32 v45, 2, v0")
        k("v_add_u32 v45, s37, v45")
        k("s_mov_b64 exec, 0xffff")
        for nb in range(NB):
            k(f"ds_write_b32 v45, v{CS+4*nb} offset:{nb*128}")
            k(f"ds_write_b32 v45, v{CS+4*nb+1} offset:{nb*128+64}")
        k("s_mov_b64 exec, -1")
        k("s_waitcnt lgkmcnt(0)")
        k("s_barrier")
        PFT.next = nx0

    k("s_waitcnt lgkmcnt(0)")
    PFT = TilePF(k, pfd, first, NCH, 8, 9, 10, 56)
    if pfd:
        k("s_cmp_lt_u32 s26, 2")
        k("s_cselect_b32 s56, s10, s8")
        k("s_cselect_b32 s57, s11, s9")
        k(f"s_mov_b32 s58, {X_BYTES}")
        k(f"s_cselect_b32 s58, {640*3840}, s58")
        k("s_mov_b32 s59, 0x00020000")
        k(f"s_movk_i32 s41, 128")
        k(f"s_cselect_b32 s41, {64*3840}, s41")
        k("s_cselect_b32 s42, 16, 8")
        k("s_and_b32 s37, s24, 3")
        k("s_lshl_b32 s37, s37, 4")
        k("s_lshl_b32 s38, s26, 3")
        k("s_add_u32 s37, s37, s38")
        k(f"s_add_u32 s37, s37, {first*64}")
        k("s_mul_i32 s37, s37, 3840")
        k("s_lshl_b32 s38, s25, 8")
        k("s_add_u32 s37, s37, s38")
        k("s_and_b32 s38, s20, 1")
        k("s_mul_i32 s38, s38, 7")
        k("s_sub_u32 s38, s25, s38")
        k("s_lshl_b32 s38, s38, 4")
        k("s_lshl_b32 s39, s24, 7")
        k("s_add_u32 s38, s38, s39")
        k("s_and_b32 s39, s26, 1")
        k("s_lshl_b32 s39, s39, 3")
        k("s_add_u32 s38, s38, s39")
        k("s_mul_i32 s38, s38, 1280")
        k(f"s_add_u32 s38, s38, {first*128}")
        k("s_cmp_lt_u32 s26, 2")
        k("s_cselect_b32 s37, s37, s38")
        k("v_lshrrev_b32 v11, 1, v0")
        k("v_mul_u32_u24 v11, 3840, v11")
        k("v_and_b32 v12, 1, v0")
        k("v_lshl_add_u32 v11, v12, 7, v11")
        k("v_mul_u32_u24 v12, 1280, v0")
        k("s_cselect_b64 vcc, -1, 0")
        k("v_mov_b32 v9, s41")
        k("v_cndmask_b32 v8, v12, v11, vcc")
        k("v_add_u32 v8, s37, v8")
        k("v_cmp_gt_u32 vcc, s42, v0")
        k("v_mov_b32 v12, 0x80000000")
        k("s_nop 0")
        k("v_cndmask_b32 v8, v12, v8, vcc")
        PFT.start()
    k("s_cmp_ge_u32 s25, 10")
    k(f"s_cbranch_scc1 {k.ref('vpath')}")
    pre_qk(k, HH, TL, perm=True)
    mainloop(False)
    epi_qk(k, ACC, STATS, HH, TL, perm=True)
    k.stamp(4); k.stamp_flush(6, kidx, 5, 26)
    k("s_endpgm")
    k.lab("vpath")
    pre_v(k, HH, TL, perm=True)
    mainloop(True)
    epi_v(k, ACC, STATS, HH, TL, perm=True)
    k.stamp(4); k.stamp_flush(6, kidx, 5, 26)
    k("s_endpgm")
    return k


def pre_qk(k, HH, TL, perm=False):
    k.srd(48, 6, 0, WS_SIZE)
    k("s_cmp_lt_u32 s25, 5")
    k(f"s_mov_b32 s37, {WS_KV}")
    k(f"s_cselect_b32 s37, {WS_Q}, s37")
    k("s_cselect_b32 s38, 0, 5")
    k("s_movk_i32 s39, 2560")
    k("s_cselect_b32 s39, 1280, s39")
    k("s_lshl_b32 s40, s39, 6")
    k("s_sub_u32 s38, s25, s38")
    k("s_lshl_b32 s41, s24, 2")
    k("s_lshl_b32 s42, s36, 1")
    k("s_add_u32 s41, s41, s42")
    k("s_mul_i32 s41, s41, s39")
    k("s_add_u32 s52, s37, s41")
    k("s_add_u32 s53, s52, s39")
    if perm:
        k("s_cmp_eq_u32 s27, 1")
        k("s_cselect_b32 s37, s53, s52")
        k("s_cselect_b32 s53, s52, s53")
        k("s_mov_b32 s52, s37")
    k("s_lshl_b32 s38, s38, 5")
    k("s_lshl_b32 s42, s27, 4")
    k("s_add_u32 s38, s38, s42")
    k(f"v_add_u32 v21, s38, v{HH}")
    k(f"v_lshlrev_b32 v22, 3, v{TL}")
    for nb in range(2):
        for q in range(4):
            d = 24 + nb * 4 + q
            k(f"v_add_u32 v23, {nb*8+2*q}, v21")
            k("v_mul_u32_u24 v18, 205, v23")
            k("v_lshrrev_b32 v18, 10, v18")
            k("v_mul_u32_u24 v19, 5, v18")
            k("v_sub_u32 v23, v23, v19")
            k("v_mul_lo_u32 v18, v18, s40")
            k("v_cmp_gt_u32 vcc, 4, v23")
            k("v_lshrrev_b32 v19, 1, v23")
            k("v_lshl_add_u32 v18, v19, 9, v18")
            k("v_and_b32 v19, 1, v23")
            k("v_lshl_add_u32 v18, v19, 3, v18")
            k("v_cndmask_b32 v19, 0, v22, vcc")
            k("v_add_u32 v18, v18, v22")
            k(f"v_add_u32 v{d}, v18, v19")


def epi_qk(k, ACC, STATS, HH, TL, perm=False):
    NB, TB = 2, 2
    k(f"s_mul_i32 s37, s36, 256")
    k(f"v_lshlrev_b32 v20, 2, v{TL}")
    k(f"v_add_u32 v20, s37, v20")
    k(f"v_add_u32 v20, {STATS}, v20")
    if perm:
        k("s_lshl_b32 s37, s27, 7")
        k("v_xor_b32 v20, s37, v20")
        k("v_xor_b32 v19, 128, v20")
    for tb in range(TB):
        if perm:
            k(f"ds_read_b32 v{32+2*tb}, v{20-tb}")
            k(f"ds_read_b32 v{33+2*tb}, v{20-tb} offset:512")
        else:
            k(f"ds_read_b32 v{32+2*tb}, v20 offset:{tb*128}")
            k(f"ds_read_b32 v{33+2*tb}, v20 offset:{512+tb*128}")
    k(f"v_lshlrev_b32 v21, 4, v{HH}")
    k("s_lshl_b32 s37, s27, 8")
    k("v_add_u32 v21, s37, v21")
    k(f"v_add_u32 v21, {STATS+1024}, v21")
    CS = 128
    for nb in range(NB):
        for q in range(4):
            k(f"ds_read_b128 v[{CS+(nb*4+q)*4}:{CS+(nb*4+q)*4+3}], v21 offset:{nb*128+q*32}")
    k("s_waitcnt lgkmcnt(0)")
    k("s_nop 7")
    n = 0
    for nb in range(NB):
        for q in range(4):
            cs = CS + (nb * 4 + q) * 4
            for tb in range(TB):
                a = ACC + (nb * TB + tb) * 16 + q * 4
                rs, rm = 32 + 2 * tb, 33 + 2 * tb
                t = 36 + 4 * (n % 2)
                for h in range(2):
                    k(f"v_pk_mul_f32 v[{t+2*h}:{t+2*h+1}], v[{cs+2*h}:{cs+2*h+1}], v[{rs}:{rs+1}] op_sel:[0,1] op_sel_hi:[1,1]")
                for h in range(2):
                    k(f"v_pk_fma_f32 v[{t+2*h}:{t+2*h+1}], v[{a+2*h}:{a+2*h+1}], v[{rs}:{rs+1}], v[{t+2*h}:{t+2*h+1}] op_sel_hi:[1,0,1] neg_lo:[0,0,1] neg_hi:[0,0,1]")
                o = 44 + 2 * (n % 4)
                k(f"v_cvt_pk_bf16_f32 v{o}, v{t}, v{t+1}")
                k(f"v_cvt_pk_bf16_f32 v{o+1}, v{t+2}, v{t+3}")
                k(f"buffer_store_dwordx2 v[{o}:{o+1}], v{24+nb*4+q}, s[48:51], s{52+tb} offen")
                n += 1
    k("s_waitcnt vmcnt(0)")


def pre_v(k, HH, TL, perm=False):
    k.srd(48, 6, 0, WS_SIZE)
    k("s_sub_u32 s37, s25, 10")
    k("s_lshl_b32 s37, s37, 7")
    k("s_lshl_b32 s38, s27, 6")
    k("s_add_u32 s37, s37, s38")
    for nb in range(2):
        k(f"v_add_u32 v20, s37, v{TL}")
        if nb: k("v_add_u32 v20, 32, v20")
        k("v_mul_u32_u24 v21, 205, v20")
        k("v_lshrrev_b32 v21, 12, v21")
        k("v_mul_u32_u24 v22, 20, v21")
        k("v_sub_u32 v22, v20, v22")
        k("s_mov_b32 s38, 163840")
        k("v_mul_lo_u32 v21, v21, s38")
        k("v_lshl_add_u32 v21, v22, 4, v21")
        k(f"v_mul_u32_u24 v22, 320, v{HH}")
        k(f"v_add_u32 v{24+nb}, v21, v22")
    k("s_lshl_b32 s41, s24, 2")
    k("s_lshl_b32 s42, s36, 1")
    k("s_add_u32 s41, s41, s42")
    k("s_mul_i32 s41, s41, 2560")
    k(f"s_add_u32 s52, s41, {WS_KV + 1280}")
    if perm:
        k("s_add_u32 s53, s52, 2560")
        k("s_cmp_eq_u32 s27, 1")
        k("s_cselect_b32 s37, s53, s52")
        k("s_cselect_b32 s53, s52, s53")
        k("s_mov_b32 s52, s37")


def epi_v(k, ACC, STATS, HH, TL, perm=False):
    NB, TB = 2, 2
    k("s_lshl_b32 s37, s36, 8")
    k(f"v_lshlrev_b32 v20, 4, v{HH}")
    k("v_add_u32 v20, s37, v20")
    k(f"v_add_u32 v20, {STATS}, v20")
    RS, RM = 128, 160
    if perm:
        k("s_lshl_b32 s37, s27, 7")
        k("v_xor_b32 v20, s37, v20")
        k("v_xor_b32 v19, 128, v20")
    def sa(tb, off): return f"v{20-tb} offset:{off}" if perm else f"v20 offset:{off+tb*128}"
    for tb in range(TB):
        for q in range(4):
            k(f"ds_read_b128 v[{RS+(tb*4+q)*4}:{RS+(tb*4+q)*4+3}], {sa(tb, q*32)}")
    k(f"v_lshlrev_b32 v21, 2, v{TL}")
    k("s_lshl_b32 s37, s27, 8")
    k("v_add_u32 v21, s37, v21")
    k(f"v_add_u32 v21, {STATS+1024}, v21")
    k("s_waitcnt lgkmcnt(4)")
    for tb in range(TB):
        for q in range(4):
            k(f"ds_read_b128 v[{RM+(tb*4+q)*4}:{RM+(tb*4+q)*4+3}], {sa(tb, 512+q*32)}")
    k("ds_read_b32 v32, v21")
    k("ds_read_b32 v34, v21 offset:128")
    k("s_waitcnt lgkmcnt(0)")
    k("s_nop 7")
    n = 0
    for nb in range(NB):
        cs = 32 + 2 * nb
        for tb in range(TB):
            for qp in range(2):
                o = 44 + 4 * (n % 2)
                for qq in range(2):
                    q = qp * 2 + qq
                    a = ACC + (nb * TB + tb) * 16 + q * 4
                    t = 36 + 4 * qq
                    rs, rm = RS + (tb * 4 + q) * 4, RM + (tb * 4 + q) * 4
                    for h in range(2):
                        k(f"v_pk_mul_f32 v[{t+2*h}:{t+2*h+1}], v[{rm+2*h}:{rm+2*h+1}], v[{cs}:{cs+1}] op_sel_hi:[1,0]")
                    for h in range(2):
                        k(f"v_pk_fma_f32 v[{t+2*h}:{t+2*h+1}], v[{a+2*h}:{a+2*h+1}], v[{rs+2*h}:{rs+2*h+1}], v[{t+2*h}:{t+2*h+1}] neg_lo:[0,0,1] neg_hi:[0,0,1]")
                    k(f"v_cvt_pk_bf16_f32 v{o+2*qq}, v{t}, v{t+1}")
                    k(f"v_cvt_pk_bf16_f32 v{o+2*qq+1}, v{t+2}, v{t+3}")
                k("s_nop 1")
                k(f"v_permlane32_swap_b32 v{o}, v{o+2}")
                k(f"v_permlane32_swap_b32 v{o+1}, v{o+3}")
                k("s_nop 1")
                if perm:
                    k(f"buffer_store_dwordx4 v[{o}:{o+3}], v{24+nb}, s[48:51], s{52+tb} offen offset:{qp*640}")
                else:
                    k(f"buffer_store_dwordx4 v[{o}:{o+3}], v{24+nb}, s[48:51], s52 offen offset:{tb*2560+qp*640}")
                n += 1
    k("s_waitcnt vmcnt(0)")


GK1 = -2.0 * 0.7978845608028654 * 1.4426950408889634
GK2 = GK1 * 0.044715

def epi_w1(k, ACC, STATS, HH, TL, NS_=""):
    NB = 3
    k.srd(48, 6, 0, WS_SIZE)
    k("s_lshl_b32 s37, s36, 7")
    k(f"v_lshlrev_b32 v20, 2, v{TL}")
    k("v_add_u32 v20, s37, v20")
    k(f"v_add_u32 v20, {STATS}, v20")
    k("ds_read_b32 v32, v20")
    k("ds_read_b32 v33, v20 offset:512")
    k(f"v_lshlrev_b32 v21, 4, v{HH}")
    k(f"v_add_u32 v21, {STATS+1024}, v21")
    CS, BI = 128, 176
    for nb in range(NB):
        for q in range(4):
            k(f"ds_read_b128 v[{CS+(nb*4+q)*4}:{CS+(nb*4+q)*4+3}], v21 offset:{nb*128+q*32}")
    k("s_waitcnt lgkmcnt(6)")
    for nb in range(NB):
        for q in range(4):
            k(f"ds_read_b128 v[{BI+(nb*4+q)*4}:{BI+(nb*4+q)*4+3}], v21 offset:{512+nb*128+q*32}")
    k("s_lshl_b32 s39, s24, 2")
    k("s_add_u32 s39, s39, s36")
    k("s_mul_i32 s39, s39, 98304")
    k("s_mul_i32 s40, s25, 6144")
    k("s_add_u32 s39, s39, s40")
    k(f"s_add_u32 s52, s39, {WS_H}")
    k("s_add_u32 s53, s52, 2048")
    k("s_add_u32 s54, s52, 4096")
    k("v_lshlrev_b32 v22, 4, v0")
    k(f"v_mov_b32 v34, {f2u(GK1):#x}")
    k(f"v_mov_b32 v35, {f2u(GK2):#x}")
    k("s_waitcnt lgkmcnt(0)")
    k("s_nop 7")
    n = 0
    for nb in range(NB):
        for qp in range(2):
            o = 56 + 4 * (n % 2)
            for qq in range(2):
                q = qp * 2 + qq
                a = ACC + nb * 16 + q * 4
                cs = CS + (nb * 4 + q) * 4
                b = BI + (nb * 4 + q) * 4
                u, t = 36, 40
                for h in range(2):
                    k(f"v_pk_fma_f32 v[{u+2*h}:{u+2*h+1}], v[{cs+2*h}:{cs+2*h+1}], v[32:33], v[{b+2*h}:{b+2*h+1}] op_sel:[0,1,0] op_sel_hi:[1,1,1] neg_lo:[1,0,0] neg_hi:[1,0,0]")
                for h in range(2):
                    k(f"v_pk_fma_f32 v[{u+2*h}:{u+2*h+1}], v[{a+2*h}:{a+2*h+1}], v[32:33], v[{u+2*h}:{u+2*h+1}] op_sel_hi:[1,0,1]")
                for h in range(2):
                    k(f"v_pk_mul_f32 v[{t+2*h}:{t+2*h+1}], v[{u+2*h}:{u+2*h+1}], v[{u+2*h}:{u+2*h+1}]")
                for h in range(2):
                    k(f"v_pk_fma_f32 v[{t+2*h}:{t+2*h+1}], v[{t+2*h}:{t+2*h+1}], v[34:35], v[34:35] op_sel:[0,1,0] op_sel_hi:[1,1,0]")
                for h in range(2):
                    k(f"v_pk_mul_f32 v[{t+2*h}:{t+2*h+1}], v[{t+2*h}:{t+2*h+1}], v[{u+2*h}:{u+2*h+1}]")
                for i in range(4):
                    k(f"v_exp_f32 v{t+i}, v{t+i}")
                k("s_nop 0")
                for h in range(2):
                    k(f"v_pk_add_f32 v[{t+2*h}:{t+2*h+1}], v[{t+2*h}:{t+2*h+1}], 1.0 op_sel_hi:[1,0]")
                for i in range(4):
                    k(f"v_rcp_f32 v{t+i}, v{t+i}")
                k("s_nop 0")
                for h in range(2):
                    k(f"v_pk_mul_f32 v[{u+2*h}:{u+2*h+1}], v[{u+2*h}:{u+2*h+1}], v[{t+2*h}:{t+2*h+1}]")
                k(f"v_cvt_pk_bf16_f32 v{o+2*qq}, v{u}, v{u+1}")
                k(f"v_cvt_pk_bf16_f32 v{o+2*qq+1}, v{u+2}, v{u+3}")
            k("s_nop 1")
            k(f"v_permlane32_swap_b32 v{o}, v{o+2}")
            k(f"v_permlane32_swap_b32 v{o+1}, v{o+3}")
            k("s_nop 1")
            k(f"buffer_store_dwordx4 v[{o}:{o+3}], v22, s[48:51], s{52+nb} offen offset:{qp*1024}{NS_}")
            n += 1
    k("s_waitcnt vmcnt(0)")


def gen_gemmB(name, kind, layer, kidx=0, dbg=(), first=2, rawres=False, pfd=0, fz=None):
    NWG = 256
    if kind == "wo":
        K, WS_W, XSRC = 640, WS_WO, WS_O
        RES = WS_X0 if layer == 0 else WS_X2
        DST, ST = WS_X1, WS_ST1
    else:
        K, WS_W, XSRC = 1536, WS_W2, WS_H
        RES = WS_X1
        DST, ST = (WS_X2, WS_ST0) if layer == 0 else (None, None)
    NCH = K // 128
    XBLK = K * 64
    WB = 20480
    SLOT = WB + 16384
    NSLOT = 4
    LDS = NSLOT * SLOT
    rot = fz.rot if fz else 0
    XS = " sc1" if (fz and fz.wait is not None) else ""
    NS_ = " ; nosc" if (fz and fz.xl) else ""
    RSC = " sc1" if (fz and kind == "w2") else ""
    if fz is None:
        k = Kern(name, NWG, 512, LDS, vgpr=128)
        k(f"s_cmp_ge_u32 s2, {NWG}")
        k(f"s_cbranch_scc1 {k.ref('end')}")
        k.stamp(0)
        k.karg(6, 80)
    else:
        k = fz.k
    if kind == "w2":
        k.karg(8, 56)
        if DST is None:
            k.karg(10, 64)
    if rawres:
        assert kind == "wo"
        k.karg(8, 0)
    if fz is None: wave_id(k, 26)
    k("s_and_b32 s20, s2, 7")
    k("s_lshr_b32 s21, s2, 3")
    if fz and fz.xl:
        k("s_and_b32 s22, s21, 3")
        k("s_lshl_b32 s23, s20, 2")
        k("s_add_u32 s24, s23, s22")
        k("s_lshr_b32 s25, s21, 2")
    else:
        k("s_lshr_b32 s22, s20, 1")
        k("s_lshl_b32 s22, s22, 3")
        k("s_and_b32 s23, s21, 7")
        k("s_add_u32 s24, s22, s23")
        k("s_and_b32 s22, s20, 1")
        k("s_lshl_b32 s22, s22, 2")
        k("s_lshr_b32 s23, s21, 3")
        k("s_add_u32 s25, s22, s23")
    k("s_cmp_lt_u32 s26, 4")
    k(f"s_cbranch_scc1 {k.ref('compute')}")
    k("s_sub_u32 s26, s26, 4")
    k("v_lshlrev_b32 v1, 4, v0")
    k(f"s_mul_i32 s40, s25, {K//8*1280}")
    k("s_mul_i32 s41, s26, 5120")
    k("s_add_u32 s40, s40, s41")
    k(f"s_add_u32 s40, s40, {WS_W}")
    k("s_mov_b32 s42, s41")
    k("s_lshl_b32 s43, s24, 1")
    k("s_lshr_b32 s47, s26, 1")
    k("s_add_u32 s43, s43, s47")
    k(f"s_mul_i32 s43, s43, {XBLK}")
    k("s_and_b32 s47, s26, 1")
    k("s_lshl_b32 s47, s47, 12")
    k("s_add_u32 s43, s43, s47")
    k(f"s_add_u32 s43, s43, {XSRC}")
    k("s_lshl_b32 s44, s26, 12")
    k(f"s_add_u32 s44, s44, {WB}")
    k("s_waitcnt lgkmcnt(0)")
    k.srd(12, 6, 0, WS_SIZE)
    def dma(ch, parts="xw"):
        slot = (ch + rot) % NSLOT
        if "x" in parts:
            k(f"s_add_u32 m0, s44, {slot*SLOT}")
            k(f"s_add_u32 s45, s43, {ch*8192}")
            for i in range(4):
                k(f"buffer_load_dwordx4 v1, s[12:15], s45 offen offset:{i*1024}{XS} lds")
        if "w" in parts:
            k(f"s_add_u32 m0, s42, {slot*SLOT}")
            k(f"s_add_u32 s45, s40, {ch*WB}")
            for i in range(4):
                k(f"buffer_load_dwordx4 v1, s[12:15], s45 offen offset:{i*1024} lds")
            k(f"s_add_u32 m0, s42, {slot*SLOT+4096}")
            k(f"s_add_u32 s45, s40, {ch*WB+4096}")
            k(f"buffer_load_dwordx4 v1, s[12:15], s45 offen lds")
    k.stamp(1)
    def pre(): k.stamp(2)
    def pre_issue():
        for c_ in range(first):
            dma(c_, "w")
        k("s_lshr_b32 s67, s24, 1")
        fz.poll(67, 16)
        for c_ in range(first):
            dma(c_, "x")
        return 4 * (first - 1)
    if fz: fz.mode_publish()
    ring_loader(k, NCH, NSLOT, dma, 9, pre_b0=pre, first=first, pre_issue=(pre_issue if XS else None), fz=fz)
    fin_loader(k, fz, kidx)

    k.lab("compute")
    ACC, FA0, FB0, RS, BI = 32, 64, 88, 104, 116
    AW, AX = 1, 3
    k("s_and_b32 s27, s26, 1")
    k("s_lshr_b32 s36, s26, 1")
    k("v_lshrrev_b32 v17, 4, v0")
    k("v_and_b32 v16, 15, v0")
    k("v_mul_u32_u24 v20, 1280, v17")
    k("v_lshl_add_u32 v20, v16, 4, v20")
    k("s_mul_i32 s37, s27, 768")
    k(f"v_add_u32 v{AW}, s37, v20")
    k(f"v_add_u32 v{AW+1}, {2*SLOT}, v{AW}")
    k("v_lshlrev_b32 v20, 9, v17")
    k("v_lshl_add_u32 v20, v16, 4, v20")
    k("s_lshl_b32 s37, s36, 13")
    k(f"s_add_u32 s37, s37, {WB}")
    k(f"v_add_u32 v{AX}, s37, v20")
    k(f"v_add_u32 v{AX+1}, {2*SLOT}, v{AX}")
    k("v_lshrrev_b32 v20, 1, v17")
    k("v_lshlrev_b32 v20, 9, v20")
    k("v_lshl_add_u32 v20, v16, 4, v20")
    k("v_and_b32 v21, 1, v17")
    k("v_lshl_add_u32 v20, v21, 3, v20")
    k("s_lshl_b32 s38, s24, 1")
    k("s_add_u32 s38, s38, s36")
    k("s_mul_i32 s39, s38, 40960")
    k("s_mul_i32 s40, s25, 5120")
    k("s_add_u32 s39, s39, s40")
    k("s_mul_i32 s40, s27, 3072")
    k("s_add_u32 s39, s39, s40")
    if rawres:
        k("v_mul_u32_u24 v20, 1280, v16")
        k("v_lshl_add_u32 v20, v17, 3, v20")
        k(f"v_add_u32 v21, {16*1280}, v20")
        k(f"s_mul_i32 s52, s38, {32*1280}")
        k("s_mul_i32 s40, s25, 160")
        k("s_add_u32 s52, s52, s40")
        k("s_mul_i32 s40, s27, 96")
        k("s_add_u32 s52, s52, s40")
    else:
        k(f"s_add_u32 s52, s39, {RES}")
    k("s_waitcnt lgkmcnt(0)")
    k.srd(48, 6, 0, WS_SIZE)
    if rawres:
        k.srd(56, 8, 0, X_BYTES)
    PFT = TilePF(k, pfd, first, NCH, 5, 6, 7, 48)
    if pfd:
        k("s_and_b32 s41, s25, 3")
        k("s_lshr_b32 s42, s41, 1")
        k("s_lshl_b32 s43, s24, 1")
        k("s_add_u32 s42, s42, s43")
        k(f"s_mul_i32 s42, s42, {XBLK}")
        k("s_and_b32 s41, s41, 1")
        k("s_lshl_b32 s41, s41, 12")
        k("s_add_u32 s42, s42, s41")
        k("s_lshl_b32 s41, s26, 10")
        k("s_add_u32 s42, s42, s41")
        k(f"s_add_u32 s42, s42, {XSRC + first*8192}")
        k("s_and_b32 s41, s24, 7")
        k("s_mul_i32 s41, s41, 2560")
        k("s_mul_i32 s43, s26, 640")
        k("s_add_u32 s41, s41, s43")
        k(f"s_mul_i32 s43, s25, {K//8*1280}")
        k("s_add_u32 s41, s41, s43")
        k(f"s_add_u32 s41, s41, {WS_W + first*WB - 8*128}")
        k("v_lshlrev_b32 v5, 7, v0")
        k("v_mov_b32 v8, s41")
        k("v_mov_b32 v9, s42")
        k("v_cmp_gt_u32 vcc, 8, v0")
        k(f"v_mov_b32 v6, {WB}")
        k("v_mov_b32 v10, 8192")
        k("v_cndmask_b32 v8, v8, v9, vcc")
        k("v_cndmask_b32 v6, v6, v10, vcc")
        k("v_add_u32 v5, v8, v5")
        k("v_cmp_gt_u32 vcc, 13, v0")
        k("v_mov_b32 v9, 0x80000000")
        k("s_nop 0")
        k("v_cndmask_b32 v5, v9, v5, vcc")
        PFT.start()

    def path(NB):
        nx0 = PFT.next
        for nb in range(NB):
            for tb in range(2):
                d = RS + (nb * 2 + tb) * 2
                if rawres:
                    k(f"buffer_load_dwordx2 v[{d}:{d+1}], v{20+tb}, s[56:59], s52 offen offset:{nb*32}")
                else:
                    k(f"buffer_load_dwordx2 v[{d}:{d+1}], v20, s[48:51], s52 offen offset:{nb*1024+tb*256}{RSC}")
        if kind == "w2":
            k.srd(56, 8, 0, 1280)
            k("s_mul_i32 s40, s25, 160")
            k("s_mul_i32 s41, s27, 96")
            k("s_add_u32 s40, s40, s41")
            k("v_lshlrev_b32 v21, 3, v17")
            for nb in range(NB):
                k(f"buffer_load_dwordx2 v[{BI+2*nb}:{BI+2*nb+1}], v21, s[56:59], s40 offen offset:{nb*32}")
        def reads(step):
            ch, ks = divmod(step, 4)
            slot = (ch + rot) % NSLOT
            half, sl = divmod(slot, 2)
            st = step & 1
            out = []
            for tb in range(2):
                d = FB0 + st * 8 + tb * 4
                out.append(f"ds_read_b128 v[{d}:{d+3}], v{AX+half} offset:{sl*SLOT + ks*2048 + tb*256}")
            for nb in range(NB):
                d = FA0 + st * 12 + nb * 4
                out.append(f"ds_read_b128 v[{d}:{d+3}], v{AW+half} offset:{sl*SLOT + ks*5120 + nb*256}")
            return out
        k.stamp(1)
        k("s_barrier")
        k.stamp(2)
        for r in reads(0):
            k(r)
        NS = NCH * 4
        for step in range(NS):
            st = step & 1
            k("s_waitcnt lgkmcnt(0)")
            if step % 4 == 3 and step + 1 < NS:
                k("s_barrier")
                PFT.at_barrier()
            rd = reads(step + 1) if step + 1 < NS else []
            mf = []
            for nb in range(NB):
                for tb in range(2):
                    d = ACC + (nb * 2 + tb) * 4
                    a = FA0 + st * 12 + nb * 4
                    b = FB0 + st * 8 + tb * 4
                    c = "0" if step == 0 else f"v[{d}:{d+3}]"
                    mf.append(f"v_mfma_f32_16x16x32_bf16 v[{d}:{d+3}], v[{a}:{a+3}], v[{b}:{b+3}], {c}")
            ri = 0
            for i, m in enumerate(mf):
                if "nomfma" not in dbg: k(m)
                for r in rd[ri:ri + 2]:
                    if "nords" not in dbg: k(r)
                ri += 2
            assert ri >= len(rd)
        k.stamp(3)
        PFT.next = nx0
        if fz and fz.xl and fz.p == 0: fz.mode_issue(48, 250)
        k("s_waitcnt vmcnt(0)")
        want_stats = ST is not None
        if want_stats:
            for r in (8, 9, 10, 11):
                k(f"v_mov_b32 v{r}, 0")
        k("v_lshlrev_b32 v22, 4, v0")
        if DST is None:
            k.srd(60, 10, 0, X_BYTES)
            k("v_and_b32 v23, 31, v0")
            k("v_mul_u32_u24 v23, 1280, v23")
            k("v_lshrrev_b32 v24, 5, v0")
            k("v_lshl_add_u32 v23, v24, 4, v23")
            k("s_mul_i32 s40, s38, 40960")
            k("s_mul_i32 s41, s25, 160")
            k("s_add_u32 s40, s40, s41")
            k("s_mul_i32 s41, s27, 96")
            k("s_add_u32 s53, s40, s41")
        else:
            k(f"s_add_u32 s53, s39, {DST}")
        k("s_nop 4")
        for nb in range(NB):
            o = 24 + 4 * (nb % 2)
            for tb in range(2):
                a = ACC + (nb * 2 + tb) * 4
                d = RS + (nb * 2 + tb) * 2
                t = 12
                k(f"v_lshlrev_b32 v{t}, 16, v{d}")
                k(f"v_and_b32 v{t+1}, 0xffff0000, v{d}")
                k(f"v_lshlrev_b32 v{t+2}, 16, v{d+1}")
                k(f"v_and_b32 v{t+3}, 0xffff0000, v{d+1}")
                k(f"v_pk_add_f32 v[{a}:{a+1}], v[{a}:{a+1}], v[{t}:{t+1}]")
                k(f"v_pk_add_f32 v[{a+2}:{a+3}], v[{a+2}:{a+3}], v[{t+2}:{t+3}]")
                if kind == "w2":
                    b = BI + 2 * nb
                    k(f"v_lshlrev_b32 v{t+4}, 16, v{b}")
                    k(f"v_and_b32 v{t+5}, 0xffff0000, v{b}")
                    k(f"v_lshlrev_b32 v{t+6}, 16, v{b+1}")
                    k(f"v_and_b32 v{t+7}, 0xffff0000, v{b+1}")
                    k(f"v_pk_add_f32 v[{a}:{a+1}], v[{a}:{a+1}], v[{t+4}:{t+5}]")
                    k(f"v_pk_add_f32 v[{a+2}:{a+3}], v[{a+2}:{a+3}], v[{t+6}:{t+7}]")
                if want_stats:
                    for r in range(4):
                        k(f"v_add_f32 v{8+tb}, v{8+tb}, v{a+r}")
                        k(f"v_fmac_f32 v{10+tb}, v{a+r}, v{a+r}")
                k(f"v_cvt_pk_bf16_f32 v{o+2*tb}, v{a}, v{a+1}")
                k(f"v_cvt_pk_bf16_f32 v{o+2*tb+1}, v{a+2}, v{a+3}")
            k("s_nop 1")
            k(f"v_permlane16_swap_b32 v{o}, v{o+2}")
            k(f"v_permlane16_swap_b32 v{o+1}, v{o+3}")
            k("s_nop 1")
            if DST is None:
                k(f"buffer_store_dwordx4 v[{o}:{o+3}], v23, s[60:63], s53 offen offset:{nb*32}")
            else:
                k(f"buffer_store_dwordx4 v[{o}:{o+3}], v22, s[48:51], s53 offen offset:{nb*1024}{NS_}")
        if want_stats:
            k("v_permlane16_swap_b32 v8, v9")
            k("v_permlane16_swap_b32 v10, v11")
            k("s_nop 1")
            k("v_add_f32 v8, v8, v9")
            k("v_add_f32 v10, v10, v11")
            k("s_nop 1")
            k("v_permlane32_swap_b32 v8, v10")
            k("s_nop 1")
            k("v_add_f32 v8, v8, v10")
            k("v_and_b32 v12, 31, v0")
            k("v_lshlrev_b32 v12, 3, v12")
            k("v_lshrrev_b32 v13, 5, v0")
            k("v_lshl_add_u32 v12, v13, 2, v12")
            k("s_lshl_b32 s40, s25, 1")
            k("s_add_u32 s40, s40, s27")
            k("s_lshl_b32 s40, s40, 14")
            k("s_lshl_b32 s41, s38, 8")
            k("s_add_u32 s40, s40, s41")
            k(f"s_add_u32 s40, s40, {ST}")
            k(f"buffer_store_dword v8, v12, s[48:51], s40 offen{NS_}")
        k("s_waitcnt vmcnt(0)")
        fin_compute(k, fz, kidx)
    k("s_cmp_eq_u32 s27, 1")
    k(f"s_cbranch_scc1 {k.ref('p2')}")
    path(3)
    k.lab("p2")
    path(2)
    return k


ATT_PACK = "cvt"
def gen_attn(name, kidx=0, pack=None, force_slow=False):
    pack = pack or ATT_PACK
    NWG = 256
    LDS = 163840
    k = Kern(name, NWG, 512, LDS, vgpr=128)
    KA, KB, VA = 1, 2, 3
    Q16, Q4 = 8, 12
    K16 = [16, 20]; K4 = [24, 26]
    V = [32, 40]
    S = [48, 64]
    P = 80
    O = 96
    k(f"s_cmp_ge_u32 s2, {NWG}")
    k(f"s_cbranch_scc1 {k.ref('end')}")
    k.stamp(0)
    k.karg(6, 80)
    wave_id(k, 26)
    k("s_and_b32 s20, s2, 7")
    k("s_lshr_b32 s21, s2, 3")
    k("s_lshr_b32 s22, s21, 3")
    k("s_lshl_b32 s23, s20, 2")
    k("s_add_u32 s24, s23, s22")
    k("s_and_b32 s25, s21, 7")
    k("s_lshl_b32 s25, s25, 3")
    k("s_add_u32 s25, s25, s26")
    k("v_lshlrev_b32 v4, 4, v0")
    k("s_lshl_b32 s27, s24, 6")
    k("s_add_u32 s27, s27, s25")
    k("s_mul_i32 s27, s27, 1280")
    k(f"s_add_u32 s27, s27, {WS_Q}")
    k("s_mul_i32 s28, s24, 163840")
    k(f"s_add_u32 s28, s28, {WS_KV}")
    k("s_mul_i32 s29, s26, 3072")
    k("s_mul_i32 s30, s26, 17408")
    k("s_add_u32 s30, s30, 24576")
    k("v_and_b32 v5, 31, v0")
    k("v_lshlrev_b32 v6, 3, v5")
    k(f"v_mov_b32 v{Q4}, 0")
    k(f"v_mov_b32 v{Q4+1}, 0")
    k("s_waitcnt lgkmcnt(0)")
    k.srd(12, 6, 0, WS_SIZE)
    k(f"buffer_load_dwordx4 v[{Q16}:{Q16+3}], v4, s[12:15], s27 offen")
    k("s_mov_b64 exec, 0xffffffff")
    k(f"buffer_load_dwordx2 v[{Q4}:{Q4+1}], v6, s[12:15], s27 offen offset:1024")
    k("s_mov_b64 exec, -1")
    k("s_mov_b32 m0, s29")
    k("s_add_u32 s31, s28, s29")
    for i in range(3):
        k(f"buffer_load_dwordx4 v4, s[12:15], s31 offen offset:{i*1024} lds")
    for g in range(5):
        k(f"s_add_u32 m0, s30, {g*4096}")
        k(f"s_add_u32 s31, s28, s30")
        if g: k(f"s_add_u32 s31, s31, {g*4096}")
        for i in range(4 if g < 4 else 1):
            k(f"buffer_load_dwordx4 v4, s[12:15], s31 offen offset:{i*1024} lds")
    k.stamp(1)
    def lane_addrs():
        k("v_and_b32 v5, 31, v0")
        k("v_and_b32 v6, 0x13, v5")
        k("v_and_b32 v7, 4, v5")
        k("v_lshl_or_b32 v6, v7, 1, v6")
        k("v_and_b32 v7, 8, v5")
        k("v_lshrrev_b32 v7, 1, v7")
        k("v_or_b32 v6, v6, v7")
        k("v_lshrrev_b32 v7, 5, v0")
        k(f"v_lshlrev_b32 v{KA}, 9, v7")
        k(f"v_lshl_add_u32 v{KA}, v6, 4, v{KA}")
        k(f"v_lshlrev_b32 v{KB}, 3, v6")
        k(f"v_add_u32 v{KB}, 1024, v{KB}")
        k(f"v_mul_u32_u24 v{VA}, 320, v7")
        k(f"v_lshl_add_u32 v{VA}, v5, 4, v{VA}")
        k(f"v_add_u32 v{VA}, 1280, v{VA}")
    lane_addrs()
    k("v_cmp_eq_u32 vcc, 20, v5")
    k("v_mov_b32 v7, 0x3f803f80")
    k("s_mov_b32 s34, 0x000fffff")
    k("s_mov_b32 s35, 0x000fffff")
    k(f"v_cndmask_b32 v{V[0]}, 0, v7, vcc")
    for r in range(1, 16):
        k(f"v_mov_b32 v{V[0]+r}, v{V[0]}")
    for r in range(16):
        k(f"v_mov_b32 v{O+r}, 0")
    for r in range(4, 8):
        k(f"v_mov_b32 v{P+r}, 0")
    k("s_waitcnt vmcnt(17)")
    k("s_barrier")
    k.stamp(2)
    def rdK(buf, off):
        k(f"ds_read_b128 v[{K16[buf]}:{K16[buf]+3}], v{KA} offset:{off}")
        k(f"ds_read_b64 v[{K4[buf]}:{K4[buf]+1}], v{KB} offset:{off}")
    def rdV(buf, off):
        k("s_mov_b64 exec, s[34:35]")
        k(f"ds_read_b128 v[{V[buf]}:{V[buf]+3}], v{VA} offset:{off}")
        k(f"ds_read_b128 v[{V[buf]+4}:{V[buf]+7}], v{VA} offset:{off+640}")
        k("s_mov_b64 exec, -1")
    def M1(n): k(f"v_mfma_f32_32x32x16_bf16 v[{S[n]}:{S[n]+15}], v[{K16[n]}:{K16[n]+3}], v[{Q16}:{Q16+3}], 0")
    def M2(n): k(f"v_mfma_f32_32x32x8bf16_1k v[{S[n]}:{S[n]+15}], v[{K4[n]}:{K4[n]+1}], v[{Q4}:{Q4+1}], v[{S[n]}:{S[n]+15}]")
    def MPV(vb, f): k(f"v_mfma_f32_32x32x16_bf16 v[{O}:{O+15}], v[{V[vb]+4*f}:{V[vb]+4*f+3}], v[{P+4*f}:{P+4*f+3}], v[{O}:{O+15}]")
    def G(c, g):
        s = S[c] + 4 * g
        p = P + 2 * g
        if pack == "cvt":
            for i in range(4):
                k(f"v_exp_f32 v{s+i}, v{s+i}")
            k(f"v_cvt_pk_bf16_f32 v{p}, v{s}, v{s+1}")
            k(f"v_cvt_pk_bf16_f32 v{p+1}, v{s+2}, v{s+3}")
        else:
            k(f"v_exp_f32 v{p}, v{s+1}")
            k(f"v_exp_f32 v{s}, v{s}")
            k(f"v_exp_f32 v{p+1}, v{s+3}")
            k(f"v_exp_f32 v{s+2}, v{s+2}")
            k(f"v_mov_b32_sdwa v{p}, v{s} dst_sel:WORD_0 dst_unused:UNUSED_PRESERVE src0_sel:WORD_1")
            k(f"v_mov_b32_sdwa v{p+1}, v{s+2} dst_sel:WORD_0 dst_unused:UNUSED_PRESERVE src0_sel:WORD_1")
    rdK(0, 0)
    rdK(1, 2560)
    rdV(0, 0)
    k("s_waitcnt lgkmcnt(4)")
    M1(0)
    k("s_mov_b32 s36, 0")
    k("s_nop 7")
    k("s_nop 1")
    M2(0)
    k("s_nop 7")
    k("s_nop 3")
    k.lab("loop")
    k("s_cmp_eq_u32 s36, 1")
    k(f"s_cbranch_scc0 {k.ref('nosync')}")
    k("s_waitcnt vmcnt(0)")
    k("s_barrier")
    k.lab("nosync")
    k("s_cmp_eq_u32 s36, 7")
    k(f"s_mov_b32 s37, {(-7*20480) & 0xffffffff:#x}")
    k("s_cselect_b32 s37, s37, 20480")
    for t in range(8):
        c, n = t & 1, (t + 1) & 1
        k("s_waitcnt lgkmcnt(0)")
        M1(n)
        G(c, 0)
        MPV(n, 1)
        if t == 6:
            k(f"v_add_u32 v{KA}, s37, v{KA}")
            k(f"v_add_u32 v{KB}, s37, v{KB}")
        if t == 7:
            k(f"v_add_u32 v{VA}, s37, v{VA}")
        rdK(c, ((t + 2) % 8) * 2560)
        rdV(n, ((t + 1) % 8) * 2560)
        G(c, 1)
        M2(n)
        G(c, 2)
        MPV(c, 0)
        G(c, 3)
    k("s_add_u32 s36, s36, 1")
    k("s_cmp_lt_u32 s36, 8")
    k(f"s_cbranch_scc1 {k.ref('loop')}")
    k("s_nop 0")
    MPV(1, 1)
    k.stamp(3)
    k("s_waitcnt lgkmcnt(0)")
    k("s_nop 7")
    k("s_nop 3")
    k(f"v_mov_b32 v4, v{O+8}")
    k(f"v_mov_b32 v5, v{O+8}")
    k("v_mov_b32 v6, 0")
    k("s_nop 0")
    k("v_permlane32_swap_b32 v4, v5")
    for r in range(12):
        k(f"v_fma_f32 v6, v{O+r}, 0, v6")
    k(f"v_cmp_lt_f32 vcc, {f2u(2.0**-40):#x}, v5")
    k(f"v_cmp_gt_f32 s[38:39], {f2u(2.0**40):#x}, v5" if False else f"s_mov_b32 s40, {f2u(2.0**40):#x}")
    k("v_cmp_gt_f32 s[38:39], s40, v5")
    k("v_cmp_eq_f32 s[42:43], 0, v6")
    k("s_nop 3")
    k("s_and_b64 vcc, vcc, s[38:39]")
    k("s_and_b64 vcc, vcc, s[42:43]")
    if force_slow:
        k("s_mov_b64 vcc, 0")
    k("s_cmp_eq_u64 vcc, -1")
    k(f"s_cbranch_scc0 {k.ref('slow')}")
    k.lab("fin")
    k("v_rcp_f32 v5, v5")
    k("s_mul_i32 s40, s24, 5")
    k("v_lshrrev_b32 v7, 5, v0")
    k("v_add_u32 v7, s40, v7")
    k("v_lshrrev_b32 v6, 1, v7")
    k("v_lshlrev_b32 v6, 9, v6")
    k("v_and_b32 v7, 1, v7")
    k("v_lshl_add_u32 v6, v7, 3, v6")
    k("v_and_b32 v7, 31, v0")
    k("v_lshl_add_u32 v6, v7, 4, v6")
    k("s_mul_i32 s41, s25, 40960")
    k(f"s_add_u32 s41, s41, {WS_O}")
    for r in range(0, 12, 2):
        k(f"v_pk_mul_f32 v[{O+r}:{O+r+1}], v[{O+r}:{O+r+1}], v[4:5] op_sel:[0,1] op_sel_hi:[1,1]")
    k("s_nop 0")
    for j in range(6):
        k(f"v_cvt_pk_bf16_f32 v{16+j}, v{O+2*j}, v{O+2*j+1}")
    k("buffer_store_dwordx2 v[16:17], v6, s[12:15], s41 offen")
    k("buffer_store_dwordx2 v[18:19], v6, s[12:15], s41 offen offset:512")
    k("s_mov_b64 exec, 0xffffffff")
    k("buffer_store_dwordx2 v[20:21], v6, s[12:15], s41 offen offset:1024")
    k("s_waitcnt vmcnt(0)")
    k.stamp(4); k.stamp_flush(6, kidx, 5, 26)
    k.lab("end")
    k("s_endpgm")
    k.lab("slow")
    lane_addrs()
    MX = 88
    k(f"v_mov_b32 v{MX}, {f2u(-3.0e38):#x}")
    for r in range(16):
        k(f"v_mov_b32 v{O+r}, 0")
    k("s_mov_b32 s36, 0")
    k.lab("sl")
    rdK(0, 0)
    rdV(0, 0)
    k("s_waitcnt lgkmcnt(0)")
    M1(0)
    k("s_nop 7"); k("s_nop 1")
    M2(0)
    k("s_nop 7"); k("s_nop 3")
    s = S[0]
    k(f"v_max3_f32 v4, v{s}, v{s+1}, v{s+2}")
    for i in range(3, 15, 2):
        k(f"v_max3_f32 v4, v4, v{s+i}, v{s+i+1}")
    k(f"v_max_f32 v4, v4, v{s+15}")
    k("v_mov_b32 v5, v4")
    k("s_nop 1")
    k("v_permlane32_swap_b32 v4, v5")
    k("s_nop 1")
    k(f"v_max3_f32 v4, v4, v5, v{MX}")
    k(f"v_sub_f32 v5, v{MX}, v4")
    k("v_exp_f32 v5, v5")
    k(f"v_mov_b32 v{MX}, v4")
    for i in range(16):
        k(f"v_sub_f32 v{s+i}, v{s+i}, v4")
    for i in range(16):
        k(f"v_exp_f32 v{s+i}, v{s+i}")
    for r in range(12):
        k(f"v_mul_f32 v{O+r}, v{O+r}, v5")
    for j in range(8):
        k(f"v_cvt_pk_bf16_f32 v{P+j}, v{s+2*j}, v{s+2*j+1}")
    k(f"v_add_u32 v{KA}, 2560, v{KA}")
    k(f"v_add_u32 v{KB}, 2560, v{KB}")
    k(f"v_add_u32 v{VA}, 2560, v{VA}")
    k("s_nop 4")
    MPV(0, 0)
    MPV(0, 1)
    k("s_nop 7"); k("s_nop 3")
    k("s_add_u32 s36, s36, 1")
    k("s_cmp_lt_u32 s36, 64")
    k(f"s_cbranch_scc1 {k.ref('sl')}")
    k(f"v_mov_b32 v4, v{O+8}")
    k(f"v_mov_b32 v5, v{O+8}")
    k("s_nop 1")
    k("v_permlane32_swap_b32 v4, v5")
    k("s_nop 1")
    k(f"s_branch {k.ref('fin')}")
    return k


def l2_prefetch(k, items, half, idx, lw, tmp, vaddr, vdst, srd=12):
    k(f"v_lshlrev_b32 v{vaddr}, 7, v0")
    for n, (base, hb) in enumerate(items):
        per_wg = hb // 32
        per_w = per_wg // 4
        lines = (per_w + 127) // 128
        k(f"s_mul_i32 s{tmp}, s{half}, {hb}")
        k(f"s_mul_i32 s{tmp+1}, s{idx}, {per_wg}")
        k(f"s_add_u32 s{tmp}, s{tmp}, s{tmp+1}")
        k(f"s_mul_i32 s{tmp+1}, s{lw}, {per_w}")
        k(f"s_add_u32 s{tmp}, s{tmp}, s{tmp+1}")
        k(f"s_add_u32 s{tmp}, s{tmp}, {base}")
        done = 0
        while done < lines:
            n_ = min(64, lines - done)
            if n_ < 64:
                m = (1 << n_) - 1
                k(f"s_mov_b32 exec_lo, {m & 0xffffffff:#x}")
                k(f"s_mov_b32 exec_hi, {m >> 32:#x}")
            k(f"buffer_load_dword v{vdst}, v{vaddr}, s[{srd}:{srd+3}], s{tmp} offen")
            if n_ < 64:
                k("s_mov_b64 exec, -1")
            done += n_
            if done < lines:
                k(f"s_add_u32 s{tmp}, s{tmp}, {64*128}")
            vdst += 1

def repack_unit(k, lw, EV, OD):
    k(f"s_lshl_b32 s52, s2, 2")
    k(f"s_add_u32 s52, s52, s{lw}")
    k("s_cmp_ge_u32 s52, 880")
    k(f"s_cbranch_scc1 {k.ref('rp_done')}")
    k.karg(54, 8)
    k.karg(56, 16)
    k.karg(58, 32)
    k.karg(60, 48)
    def setup(lbl, lo, ncg, ptr, size, pitch, TN, K, dst, cs, csp):
        k.lab(lbl)
        k(f"s_sub_u32 s52, s52, {lo}")
        k.srd(64, ptr, 0, size)
        k(f"s_mov_b32 s53, {pitch}")
        k(f"s_mov_b32 s54, {(65536 + TN - 1)//TN}")
        k(f"s_mov_b32 s55, {TN}")
        k(f"s_mov_b32 s56, {K//8*TN*16}")
        k(f"s_mov_b32 s57, {dst}")
        k(f"s_mul_i32 s58, s52, {(65536 + ncg - 1)//ncg}")
        k("s_lshr_b32 s58, s58, 16")
        k(f"s_mul_i32 s59, s58, {ncg}")
        k("s_sub_u32 s59, s52, s59")
        k(f"s_mov_b32 s60, {cs if cs is not None else 0xffffffff:#x}")
        k(f"s_mov_b32 s61, {csp}")
        k(f"s_branch {k.ref('rp_go')}")
    k("s_waitcnt lgkmcnt(0)")
    k("s_cmp_ge_u32 s52, 640"); k(f"s_cbranch_scc1 {k.ref('rp_w2')}")
    k("s_cmp_ge_u32 s52, 540"); k(f"s_cbranch_scc1 {k.ref('rp_wo')}")
    k("s_cmp_ge_u32 s52, 300"); k(f"s_cbranch_scc1 {k.ref('rp_w1')}")
    setup("rp_wq", 0, 30, 54, 640 * 3840, 3840, 128, 640, WS_WQ, WS_CSQ, 1920 * 4)
    setup("rp_w1", 300, 24, 58, 640 * 3072, 3072, 96, 640, WS_W1, WS_CS1, 1536 * 4)
    setup("rp_wo", 540, 10, 56, 640 * 1280, 1280, 80, 640, WS_WO, None, 0)
    setup("rp_w2", 640, 10, 60, 1536 * 1280, 1280, 80, 1536, WS_W2, None, 0)
    k.lab("rp_go")
    k("v_lshlrev_b32 v4, 1, v0")
    k("s_lshl_b32 s62, s58, 6")
    k("s_mul_i32 s62, s62, s53")
    k("s_lshl_b32 s63, s59, 7")
    k("s_add_u32 s62, s62, s63")
    for r in range(64):
        d = (OD if r & 1 else EV) + (r >> 1)
        k(f"buffer_load_ushort v{d}, v4, s[64:67], s62 offen")
        if r < 63:
            k("s_add_u32 s62, s62, s53")
    k("s_lshl_b32 s62, s59, 6")
    k("v_add_u32 v4, s62, v0")
    k("v_mul_lo_u32 v5, v4, s54")
    k("v_lshrrev_b32 v5, 16, v5")
    k("v_mul_lo_u32 v6, v5, s55")
    k("v_sub_u32 v6, v4, v6")
    k("v_mul_lo_u32 v5, v5, s56")
    k("v_lshl_add_u32 v5, v6, 4, v5")
    k("s_lshl_b32 s63, s55, 4")
    k("s_lshl_b32 s62, s58, 3")
    k("s_mul_i32 s62, s62, s63")
    k("s_add_u32 s62, s62, s57")
    k("v_mov_b32 v6, 0")
    k("v_mov_b32 v7, 0")
    for ku in range(8):
        k(f"s_waitcnt vmcnt({min(63, 56 - 8*ku + ku)})")
        for j in range(4 * ku, 4 * ku + 4):
            k(f"v_lshl_or_b32 v{EV+j}, v{OD+j}, 16, v{EV+j}")
        k(f"buffer_store_dwordx4 v[{EV+4*ku}:{EV+4*ku+3}], v5, s[12:15], s62 offen")
        if ku < 7:
            k("s_add_u32 s62, s62, s63")
    k("s_cmp_eq_u32 s60, 0xffffffff")
    k(f"s_cbranch_scc1 {k.ref('rp_done')}")
    for j in range(32):
        k(f"v_dot2c_f32_bf16 v{6 + (j & 1)}, 0x3f803f80, v{EV+j}")
    k("s_mul_i32 s62, s58, s61")
    k("s_add_u32 s62, s62, s60")
    k("v_lshlrev_b32 v4, 2, v4")
    k("s_nop 3")
    k("v_add_f32 v6, v6, v7")
    k("s_nop 0")
    k("buffer_store_dword v6, v4, s[12:15], s62 offen")
    k.lab("rp_done")


PF_ATT = [(WS_WO, 409600), (WS_W1, 983040), (WS_W2, 983040)]

def gen_attn2(name, kidx=0, pack="cvt", force_slow=False, sched=0, dbg=(), pf=0):
    NWG = 256
    LDS = 163840
    k = Kern(name, NWG, 512, LDS, vgpr=160)
    KA, KB, VA = 1, 2, 3
    Q16 = [8, 28]; Q4 = [12, 14]
    K16 = [16, 20]; K4 = [24, 26]
    V = [32, 40]
    S = [48, 64]
    P = 80
    O = [96, 112]
    k(f"s_cmp_ge_u32 s2, {NWG}")
    k(f"s_cbranch_scc1 {k.ref('end')}")
    k.stamp(0)
    k.karg(6, 80)
    wave_id(k, 26)
    k("s_and_b32 s20, s2, 7")
    k("s_lshr_b32 s21, s2, 3")
    k("s_lshr_b32 s22, s21, 3")
    k("s_lshl_b32 s23, s20, 2")
    k("s_add_u32 s24, s23, s22")
    k("v_lshlrev_b32 v4, 4, v0")
    k("s_cmp_lt_u32 s26, 4")
    k(f"s_cbranch_scc1 {k.ref('compute')}")
    k("s_sub_u32 s26, s26, 4")
    k("s_mul_i32 s28, s24, 163840")
    k(f"s_add_u32 s28, s28, {WS_KV}")
    k("s_mul_i32 s29, s26, 6144")
    k("s_mul_i32 s30, s26, 34816")
    k("s_add_u32 s30, s30, 24576")
    k("s_waitcnt lgkmcnt(0)")
    k.srd(12, 6, 0, WS_SIZE)
    k("s_mov_b32 m0, s29")
    k("s_add_u32 s31, s28, s29")
    for i in range(4):
        k(f"buffer_load_dwordx4 v4, s[12:15], s31 offen offset:{i*1024} lds")
    k("s_add_u32 m0, s29, 4096")
    k("s_add_u32 s31, s31, 4096")
    for i in range(2):
        k(f"buffer_load_dwordx4 v4, s[12:15], s31 offen offset:{i*1024} lds")
    k("s_add_u32 s28, s28, s30")
    def stB(g):
        k(f"s_add_u32 m0, s30, {g*4096}")
        k(f"s_add_u32 s31, s28, {g*4096}")
        for i in range(4 if g < 8 else 2):
            k(f"buffer_load_dwordx4 v4, s[12:15], s31 offen offset:{i*1024} lds")
    stB(0); stB(1)
    k.stamp(1)
    k("s_waitcnt vmcnt(8)")
    k.stamp(2)
    k("s_barrier")
    for g in range(2, 9):
        stB(g)
    k.stamp(3)
    k("s_waitcnt vmcnt(0)")
    k.stamp(4)
    k("s_barrier")
    if pf:
        k("s_and_b32 s40, s20, 1")
        l2_prefetch(k, PF_ATT[:pf], 40, 21, 26, 42, 5, 8)
        k("s_waitcnt vmcnt(0)")
    k("s_add_u32 s26, s26, 4")
    k.stamp_flush(6, kidx, 5, 26)
    k.lab("end")
    k("s_endpgm")
    k.lab("compute")
    k("s_and_b32 s25, s21, 7")
    k("s_lshl_b32 s25, s25, 3")
    k("s_lshl_b32 s23, s26, 1")
    k("s_add_u32 s25, s25, s23")
    k("s_lshl_b32 s27, s24, 6")
    k("s_add_u32 s27, s27, s25")
    k("s_mul_i32 s27, s27, 1280")
    k(f"s_add_u32 s27, s27, {WS_Q}")
    k("s_add_u32 s28, s27, 1280")
    k("v_and_b32 v5, 31, v0")
    k("v_lshlrev_b32 v6, 3, v5")
    for x in range(2):
        k(f"v_mov_b32 v{Q4[x]}, 0")
        k(f"v_mov_b32 v{Q4[x]+1}, 0")
    k("s_waitcnt lgkmcnt(0)")
    k.srd(12, 6, 0, WS_SIZE)
    k(f"buffer_load_dwordx4 v[{Q16[0]}:{Q16[0]+3}], v4, s[12:15], s27 offen")
    k(f"buffer_load_dwordx4 v[{Q16[1]}:{Q16[1]+3}], v4, s[12:15], s28 offen")
    k("s_mov_b64 exec, 0xffffffff")
    k(f"buffer_load_dwordx2 v[{Q4[0]}:{Q4[0]+1}], v6, s[12:15], s27 offen offset:1024")
    k(f"buffer_load_dwordx2 v[{Q4[1]}:{Q4[1]+1}], v6, s[12:15], s28 offen offset:1024")
    k("s_mov_b64 exec, -1")
    def lane_addrs():
        k("v_and_b32 v5, 31, v0")
        k("v_and_b32 v6, 0x13, v5")
        k("v_and_b32 v7, 4, v5")
        k("v_lshl_or_b32 v6, v7, 1, v6")
        k("v_and_b32 v7, 8, v5")
        k("v_lshrrev_b32 v7, 1, v7")
        k("v_or_b32 v6, v6, v7")
        k("v_lshrrev_b32 v7, 5, v0")
        k(f"v_lshlrev_b32 v{KA}, 9, v7")
        k(f"v_lshl_add_u32 v{KA}, v6, 4, v{KA}")
        k(f"v_lshlrev_b32 v{KB}, 3, v6")
        k(f"v_add_u32 v{KB}, 1024, v{KB}")
        k(f"v_mul_u32_u24 v{VA}, 320, v7")
        k(f"v_lshl_add_u32 v{VA}, v5, 4, v{VA}")
        k(f"v_add_u32 v{VA}, 1280, v{VA}")
    lane_addrs()
    k("v_cmp_eq_u32 vcc, 20, v5")
    k("v_mov_b32 v7, 0x3f803f80")
    k("s_mov_b32 s34, 0x000fffff")
    k("s_mov_b32 s35, 0x000fffff")
    k(f"v_cndmask_b32 v{V[0]}, 0, v7, vcc")
    for r in range(1, 16):
        k(f"v_mov_b32 v{V[0]+r}, v{V[0]}")
    for r in range(32):
        k(f"v_mov_b32 v{O[0]+r}, 0")
    for r in range(4, 8):
        k(f"v_mov_b32 v{P+r}, 0")
    k.stamp(1)
    k("s_waitcnt vmcnt(0)")
    k("s_barrier")
    k.stamp(2)
    def rdK(buf, off):
        return [f"ds_read_b128 v[{K16[buf]}:{K16[buf]+3}], v{KA} offset:{off}",
                f"ds_read_b64 v[{K4[buf]}:{K4[buf]+1}], v{KB} offset:{off}"]
    def rdV(buf, off):
        return ["s_mov_b64 exec, s[34:35]",
                f"ds_read_b128 v[{V[buf]}:{V[buf]+3}], v{VA} offset:{off}",
                f"ds_read_b128 v[{V[buf]+4}:{V[buf]+7}], v{VA} offset:{off+640}",
                "s_mov_b64 exec, -1"]
    def M1(x, kb): return f"v_mfma_f32_32x32x16_bf16 v[{S[x]}:{S[x]+15}], v[{K16[kb]}:{K16[kb]+3}], v[{Q16[x]}:{Q16[x]+3}], 0"
    def M2(x, kb): return f"v_mfma_f32_32x32x8bf16_1k v[{S[x]}:{S[x]+15}], v[{K4[kb]}:{K4[kb]+1}], v[{Q4[x]}:{Q4[x]+1}], v[{S[x]}:{S[x]+15}]"
    def MPV(x, vb, f): return f"v_mfma_f32_32x32x16_bf16 v[{O[x]}:{O[x]+15}], v[{V[vb]+4*f}:{V[vb]+4*f+3}], v[{P+4*f}:{P+4*f+3}], v[{O[x]}:{O[x]+15}]"
    def G(x, g, fill=()):
        s = S[x] + 4 * g
        p = P + 2 * g
        fill = list(fill)
        if pack == "cvt":
            ex = [f"v_exp_f32 v{s+i}, v{s+i}" for i in range(4)]
            pk = [f"v_cvt_pk_bf16_f32 v{p}, v{s}, v{s+1}", f"v_cvt_pk_bf16_f32 v{p+1}, v{s+2}, v{s+3}"]
        else:
            ex = [f"v_exp_f32 v{p}, v{s+1}", f"v_exp_f32 v{s}, v{s}", f"v_exp_f32 v{p+1}, v{s+3}", f"v_exp_f32 v{s+2}, v{s+2}"]
            pk = [f"v_mov_b32_sdwa v{p}, v{s} dst_sel:WORD_0 dst_unused:UNUSED_PRESERVE src0_sel:WORD_1",
                  f"v_mov_b32_sdwa v{p+1}, v{s+2} dst_sel:WORD_0 dst_unused:UNUSED_PRESERVE src0_sel:WORD_1"]
        for i in range(4):
            k(ex[i])
            if i < len(fill) and fill[i]:
                for f in (fill[i] if isinstance(fill[i], list) else [fill[i]]):
                    k(f)
        for x_ in pk: k(x_)
    for r in rdK(0, 0) + rdK(1, 2560) + rdV(0, 0): k(r)
    k("s_waitcnt lgkmcnt(4)")
    k(M1(0, 0))
    k("s_mov_b32 s36, 0")
    k("s_nop 7")
    k("s_nop 1")
    k(M2(0, 0))
    k("s_nop 7")
    k("s_nop 3")
    k.lab("loop")
    k("s_cmp_eq_u32 s36, 1")
    k(f"s_cbranch_scc0 {k.ref('nosync')}")
    k("s_barrier")
    k.lab("nosync")
    k("s_cmp_eq_u32 s36, 7")
    k(f"s_mov_b32 s37, {(-7*20480) & 0xffffffff:#x}")
    k("s_cselect_b32 s37, s37, 20480")
    L0 = len(k.L)
    for t in range(8):
        c, n = t & 1, (t + 1) & 1
        k("s_waitcnt lgkmcnt(0)")
        k(M1(1, c))
        G(0, 0)
        k(MPV(1, n, 1))
        if t == 7:
            k(f"v_add_u32 v{VA}, s37, v{VA}")
        rv = rdV(n, ((t + 1) % 8) * 2560)
        G(0, 1, fill=[rv])
        k(M2(1, c))
        if t == 6:
            k(f"v_add_u32 v{KA}, s37, v{KA}")
            k(f"v_add_u32 v{KB}, s37, v{KB}")
        rk = rdK(c, ((t + 2) % 8) * 2560)
        G(0, 2, fill=[rk[0], rk[1]])
        k(MPV(0, c, 0))
        G(0, 3)
        k(M1(0, n))
        G(1, 0)
        k(MPV(0, c, 1))
        G(1, 1)
        k(M2(0, n))
        G(1, 2)
        k(MPV(1, c, 0))
        G(1, 3)
    if dbg:
        body = k.L[L0:]
        def drop(l):
            l = l.strip()
            if "nods" in dbg and (l.startswith("ds_") or "exec" in l or l.startswith("s_waitcnt")): return True
            if "nomfma" in dbg and l.startswith("v_mfma"): return True
            if "nocvt" in dbg and (l.startswith("v_cvt") or l.startswith("v_mov_b32_sdwa")): return True
            if "noexp" in dbg and l.startswith("v_exp"): return True
            if "nom2" in dbg and "32x32x8" in l: return True
            if "nopv" in dbg and l.startswith(f"v_mfma_f32_32x32x16_bf16 v[{O[0]}") : return True
            if "nopv" in dbg and l.startswith(f"v_mfma_f32_32x32x16_bf16 v[{O[1]}") : return True
            return False
        k.L = k.L[:L0] + [l for l in body if not drop(l)]
    k("s_add_u32 s36, s36, 1")
    k("s_cmp_lt_u32 s36, 8")
    k(f"s_cbranch_scc1 {k.ref('loop')}")
    k("s_nop 0")
    k(MPV(1, 1, 1))
    k.stamp(3)
    k("s_waitcnt lgkmcnt(0)")
    k("s_nop 7")
    k("s_nop 3")
    L = [5, 7]
    k("v_mov_b32 v16, 0")
    for x in range(2):
        k(f"v_mov_b32 v{L[x]-1}, v{O[x]+8}")
        k(f"v_mov_b32 v{L[x]}, v{O[x]+8}")
    k("s_nop 1")
    for x in range(2):
        k(f"v_permlane32_swap_b32 v{L[x]-1}, v{L[x]}")
    for x in range(2):
        for r in range(12):
            k(f"v_fma_f32 v16, v{O[x]+r}, 0, v16")
    k(f"s_mov_b32 s40, {f2u(2.0**40):#x}")
    k(f"s_mov_b32 s41, {f2u(2.0**-40):#x}")
    k("v_cmp_eq_f32 vcc, 0, v16")
    k("v_cmp_lt_f32 s[42:43], s41, v5")
    k("v_cmp_gt_f32 s[44:45], s40, v5")
    k("v_cmp_lt_f32 s[46:47], s41, v7")
    k("v_cmp_gt_f32 s[48:49], s40, v7")
    k("s_nop 3")
    k("s_and_b64 vcc, vcc, s[42:43]")
    k("s_and_b64 vcc, vcc, s[44:45]")
    k("s_and_b64 vcc, vcc, s[46:47]")
    k("s_and_b64 vcc, vcc, s[48:49]")
    if force_slow:
        k("s_mov_b64 vcc, 0")
    k("s_cmp_eq_u64 vcc, -1")
    k(f"s_cbranch_scc0 {k.ref('slow')}")
    k.lab("fin")
    k("v_rcp_f32 v5, v5")
    k("v_rcp_f32 v7, v7")
    k("s_mul_i32 s40, s24, 5")
    k("v_lshrrev_b32 v17, 5, v0")
    k("v_add_u32 v17, s40, v17")
    k("v_lshrrev_b32 v16, 1, v17")
    k("v_lshlrev_b32 v16, 9, v16")
    k("v_and_b32 v17, 1, v17")
    k("v_lshl_add_u32 v16, v17, 3, v16")
    k("v_and_b32 v17, 31, v0")
    k("v_lshl_add_u32 v16, v17, 4, v16")
    k("s_mul_i32 s41, s25, 40960")
    k(f"s_add_u32 s41, s41, {WS_O}")
    k("s_add_u32 s42, s41, 40960")
    for x in range(2):
        for r in range(0, 12, 2):
            k(f"v_pk_mul_f32 v[{O[x]+r}:{O[x]+r+1}], v[{O[x]+r}:{O[x]+r+1}], v[{L[x]-1}:{L[x]}] op_sel:[0,1] op_sel_hi:[1,1]")
    for x in range(2):
        for j in range(6):
            k(f"v_cvt_pk_bf16_f32 v{20+6*x+j}, v{O[x]+2*j}, v{O[x]+2*j+1}")
    for x in range(2):
        k(f"buffer_store_dwordx2 v[{20+6*x}:{21+6*x}], v16, s[12:15], s{41+x} offen")
        k(f"buffer_store_dwordx2 v[{22+6*x}:{23+6*x}], v16, s[12:15], s{41+x} offen offset:512")
    k("s_mov_b64 exec, 0xffffffff")
    for x in range(2):
        k(f"buffer_store_dwordx2 v[{24+6*x}:{25+6*x}], v16, s[12:15], s{41+x} offen offset:1024")
    k("s_waitcnt vmcnt(0)")
    k.stamp(4); k.stamp_flush(6, kidx, 5, 26)
    k("s_endpgm")
    k.lab("slow")
    MX = 88
    for x in range(2):
        lane_addrs()
        k(f"v_mov_b32 v{MX}, {f2u(-3.0e38):#x}")
        for r in range(16):
            k(f"v_mov_b32 v{O[x]+r}, 0")
        k("s_mov_b32 s36, 0")
        k.lab(f"sl{x}")
        for r in rdK(0, 0) + rdV(0, 0): k(r)
        k("s_waitcnt lgkmcnt(0)")
        k(M1(x, 0))
        k("s_nop 7"); k("s_nop 1")
        k(M2(x, 0))
        k("s_nop 7"); k("s_nop 3")
        s = S[x]
        k(f"v_max3_f32 v4, v{s}, v{s+1}, v{s+2}")
        for i in range(3, 15, 2):
            k(f"v_max3_f32 v4, v4, v{s+i}, v{s+i+1}")
        k(f"v_max_f32 v4, v4, v{s+15}")
        k("v_mov_b32 v5, v4")
        k("s_nop 1")
        k("v_permlane32_swap_b32 v4, v5")
        k("s_nop 1")
        k(f"v_max3_f32 v4, v4, v5, v{MX}")
        k(f"v_sub_f32 v5, v{MX}, v4")
        k("v_exp_f32 v5, v5")
        k(f"v_mov_b32 v{MX}, v4")
        for i in range(16):
            k(f"v_sub_f32 v{s+i}, v{s+i}, v4")
        for i in range(16):
            k(f"v_exp_f32 v{s+i}, v{s+i}")
        for r in range(12):
            k(f"v_mul_f32 v{O[x]+r}, v{O[x]+r}, v5")
        for j in range(8):
            k(f"v_cvt_pk_bf16_f32 v{P+j}, v{s+2*j}, v{s+2*j+1}")
        k(f"v_add_u32 v{KA}, 2560, v{KA}")
        k(f"v_add_u32 v{KB}, 2560, v{KB}")
        k(f"v_add_u32 v{VA}, 2560, v{VA}")
        k("s_nop 4")
        k(MPV(x, 0, 0))
        k(MPV(x, 0, 1))
        k("s_nop 7"); k("s_nop 3")
        k("s_add_u32 s36, s36, 1")
        k("s_cmp_lt_u32 s36, 64")
        k(f"s_cbranch_scc1 {k.ref(f'sl{x}')}")
    for x in range(2):
        k(f"v_mov_b32 v{L[x]-1}, v{O[x]+8}")
        k(f"v_mov_b32 v{L[x]}, v{O[x]+8}")
    k("s_nop 1")
    for x in range(2):
        k(f"v_permlane32_swap_b32 v{L[x]-1}, v{L[x]}")
    k("s_nop 1")
    k(f"s_branch {k.ref('fin')}")
    return k


def gen_attn3(name, kidx=0, force_slow=False, pf=0, h=8, um=8, uh=8, pm=3, phl=0, b2=8, dbg=(), repack=False):
    NWG = 256
    LDS = 163840
    TM = 64 - h
    assert TM % um == 0 and h % uh == 0 and b2 % um == 0 and um % 2 == 0 and uh % 2 == 0
    SLOT = 2688
    assert 8 * SLOT <= b2 * 2560 + 3840
    k = Kern(name, NWG, 512, LDS, vgpr=160)
    KA, KB, VA = 1, 2, 3
    Q16 = [8, 28]; Q4 = [12, 14]
    K16 = [16, 20]; K4 = [24, 26]
    V = [32, 40]
    S = [48, 64]
    P = 80
    O = [96, 112]
    k(f"s_cmp_ge_u32 s2, {NWG}")
    k(f"s_cbranch_scc1 {k.ref('end')}")
    k.stamp(0)
    k.karg(6, 80)
    wave_id(k, 26)
    k("s_and_b32 s20, s2, 7")
    k("s_lshr_b32 s21, s2, 3")
    k("s_lshr_b32 s22, s21, 3")
    k("s_lshl_b32 s23, s20, 2")
    k("s_add_u32 s24, s23, s22")
    k("v_lshlrev_b32 v4, 4, v0")
    k("s_and_b32 s33, s26, 3")
    k("s_mul_i32 s50, s24, 163840")
    k(f"s_add_u32 s50, s50, {WS_KV}")
    k("s_and_b32 s25, s21, 7")
    k("s_lshl_b32 s25, s25, 3")
    k("s_lshl_b32 s23, s33, 1")
    k("s_add_u32 s25, s25, s23")
    k("s_lshl_b32 s27, s24, 6")
    k("s_add_u32 s27, s27, s25")
    k("s_mul_i32 s27, s27, 1280")
    k(f"s_add_u32 s27, s27, {WS_Q}")
    k("s_add_u32 s28, s27, 1280")
    def q_loads():
        k("v_and_b32 v5, 31, v0")
        k("v_lshlrev_b32 v6, 3, v5")
        for x in range(2):
            k(f"v_mov_b32 v{Q4[x]}, 0")
            k(f"v_mov_b32 v{Q4[x]+1}, 0")
        k(f"buffer_load_dwordx4 v[{Q16[0]}:{Q16[0]+3}], v4, s[12:15], s27 offen")
        k(f"buffer_load_dwordx4 v[{Q16[1]}:{Q16[1]+3}], v4, s[12:15], s28 offen")
        k("s_mov_b64 exec, 0xffffffff")
        k(f"buffer_load_dwordx2 v[{Q4[0]}:{Q4[0]+1}], v6, s[12:15], s27 offen offset:1024")
        k(f"buffer_load_dwordx2 v[{Q4[1]}:{Q4[1]+1}], v6, s[12:15], s28 offen offset:1024")
        k("s_mov_b64 exec, -1")
    def lane_addrs():
        k("v_and_b32 v5, 31, v0")
        k("v_and_b32 v6, 0x13, v5")
        k("v_and_b32 v7, 4, v5")
        k("v_lshl_or_b32 v6, v7, 1, v6")
        k("v_and_b32 v7, 8, v5")
        k("v_lshrrev_b32 v7, 1, v7")
        k("v_or_b32 v6, v6, v7")
        k("v_lshrrev_b32 v7, 5, v0")
        k(f"v_lshlrev_b32 v{KA}, 9, v7")
        k(f"v_lshl_add_u32 v{KA}, v6, 4, v{KA}")
        k(f"v_lshlrev_b32 v{KB}, 3, v6")
        k(f"v_add_u32 v{KB}, 1024, v{KB}")
        k(f"v_mul_u32_u24 v{VA}, 320, v7")
        k(f"v_lshl_add_u32 v{VA}, v5, 4, v{VA}")
        k(f"v_add_u32 v{VA}, 1280, v{VA}")
    def init_regs():
        lane_addrs()
        k("v_cmp_eq_u32 vcc, 20, v5")
        k("v_mov_b32 v7, 0x3f803f80")
        k("s_mov_b32 s34, 0x000fffff")
        k("s_mov_b32 s35, 0x000fffff")
        k(f"v_cndmask_b32 v{V[0]}, 0, v7, vcc")
        for r in range(1, 16):
            k(f"v_mov_b32 v{V[0]+r}, v{V[0]}")
        for r in range(32):
            k(f"v_mov_b32 v{O[0]+r}, 0")
        for r in range(4, 8):
            k(f"v_mov_b32 v{P+r}, 0")
    def rdK(buf, off):
        return [f"ds_read_b128 v[{K16[buf]}:{K16[buf]+3}], v{KA} offset:{off}",
                f"ds_read_b64 v[{K4[buf]}:{K4[buf]+1}], v{KB} offset:{off}"]
    def rdV(buf, off):
        return ["s_mov_b64 exec, s[34:35]",
                f"ds_read_b128 v[{V[buf]}:{V[buf]+3}], v{VA} offset:{off}",
                f"ds_read_b128 v[{V[buf]+4}:{V[buf]+7}], v{VA} offset:{off+640}",
                "s_mov_b64 exec, -1"]
    def M1(x, kb): return f"v_mfma_f32_32x32x16_bf16 v[{S[x]}:{S[x]+15}], v[{K16[kb]}:{K16[kb]+3}], v[{Q16[x]}:{Q16[x]+3}], 0"
    def M2(x, kb): return f"v_mfma_f32_32x32x8bf16_1k v[{S[x]}:{S[x]+15}], v[{K4[kb]}:{K4[kb]+1}], v[{Q4[x]}:{Q4[x]+1}], v[{S[x]}:{S[x]+15}]"
    def MPV(x, vb, f): return f"v_mfma_f32_32x32x16_bf16 v[{O[x]}:{O[x]+15}], v[{V[vb]+4*f}:{V[vb]+4*f+3}], v[{P+4*f}:{P+4*f+3}], v[{O[x]}:{O[x]+15}]"
    def G(x, g, fill=()):
        s = S[x] + 4 * g
        p = P + 2 * g
        fill = list(fill)
        ex = [f"v_exp_f32 v{s+i}, v{s+i}" for i in range(4)]
        pk = [f"v_cvt_pk_bf16_f32 v{p}, v{s}, v{s+1}", f"v_cvt_pk_bf16_f32 v{p+1}, v{s+2}, v{s+3}"]
        for i in range(4):
            k(ex[i])
            if i < len(fill) and fill[i]:
                for f in (fill[i] if isinstance(fill[i], list) else [fill[i]]):
                    k(f)
        for x_ in pk: k(x_)
    def loop(tag, T, U, bar_after):
        NIT = T // U
        for r in rdK(0, 0) + rdK(1, 2560) + rdV(0, 0): k(r)
        k("s_waitcnt lgkmcnt(4)")
        k(M1(0, 0))
        k(f"s_mov_b32 s36, {NIT}")
        k("s_nop 7")
        k("s_nop 1")
        k(M2(0, 0))
        k("s_nop 7")
        k("s_nop 3")
        k.lab(f"loop{tag}")
        if bar_after is not None:
            k(f"s_cmp_eq_u32 s36, {NIT - bar_after // U}")
            k(f"s_cbranch_scc0 {k.ref('nosync' + tag)}")
            k("s_barrier")
            k.lab("nosync" + tag)
        k("s_cmp_eq_u32 s36, 1")
        k(f"s_cselect_b32 s37, 0, {U*2560}")
        for t in range(U):
            c, n = t & 1, (t + 1) & 1
            k("s_waitcnt lgkmcnt(0)")
            k(M1(1, c))
            G(0, 0)
            k(MPV(1, n, 1))
            if t == U - 1:
                k(f"v_add_u32 v{VA}, s37, v{VA}")
            rv = rdV(n, ((t + 1) % U) * 2560)
            G(0, 1, fill=[rv])
            k(M2(1, c))
            if t == U - 2:
                k(f"v_add_u32 v{KA}, s37, v{KA}")
                k(f"v_add_u32 v{KB}, s37, v{KB}")
            rk = rdK(c, ((t + 2) % U) * 2560)
            G(0, 2, fill=[rk[0], rk[1]])
            k(MPV(0, c, 0))
            G(0, 3)
            k(M1(0, n))
            G(1, 0)
            k(MPV(0, c, 1))
            G(1, 1)
            k(M2(0, n))
            G(1, 2)
            k(MPV(1, c, 0))
            G(1, 3)
        k("s_sub_u32 s36, s36, 1")
        k("s_cmp_lg_u32 s36, 0")
        k(f"s_cbranch_scc1 {k.ref('loop' + tag)}")
        k("s_nop 0")
        k(MPV(1, 1, 1))
    def finish(role):
        keep, give = role, 1 - role
        tg = "mh"[role]
        T_ = S[0]
        k.stamp(3)
        k(f"s_lshl_b32 s40, s33, 1")
        k(f"s_add_u32 s41, s40, {role}")
        k(f"s_add_u32 s40, s40, {1 - role}")
        k(f"s_mul_i32 s41, s41, {SLOT}")
        k(f"s_mul_i32 s40, s40, {SLOT}")
        k("v_lshlrev_b32 v4, 4, v0")
        k("v_and_b32 v5, 31, v0")
        k("v_lshlrev_b32 v5, 2, v5")
        k("v_add_u32 v16, s41, v4")
        k("v_add_u32 v17, s41, v5")
        k("v_add_u32 v18, s40, v4")
        k("v_add_u32 v19, s40, v5")
        for r in range(8, 12):
            k(f"v_mov_b32 v{T_+r}, 0")
        k("s_waitcnt lgkmcnt(0)")
        k("s_nop 7" if role == 0 else "s_nop 0")
        k(f"ds_write_b128 v16, v[{O[give]}:{O[give]+3}]")
        k(f"ds_write_b128 v16, v[{O[give]+4}:{O[give]+7}] offset:1024")
        k("s_mov_b64 exec, 0xffffffff")
        k(f"ds_write_b128 v16, v[{O[give]+8}:{O[give]+11}] offset:2048")
        k("s_not_b64 exec, exec")
        k(f"ds_write_b32 v17, v{O[give]+8} offset:2560")
        k("s_mov_b64 exec, -1")
        k("s_mul_i32 s42, s24, 5")
        k("v_lshrrev_b32 v21, 5, v0")
        k("v_add_u32 v21, s42, v21")
        k("v_lshrrev_b32 v20, 1, v21")
        k("v_lshlrev_b32 v20, 9, v20")
        k("v_and_b32 v21, 1, v21")
        k("v_lshl_add_u32 v20, v21, 3, v20")
        k("v_and_b32 v21, 31, v0")
        k("v_lshl_add_u32 v20, v21, 4, v20")
        k(f"s_add_u32 s51, s25, {keep}")
        k("s_mul_i32 s51, s51, 40960")
        k(f"s_add_u32 s51, s51, {WS_O}")
        k("s_waitcnt lgkmcnt(0)")
        k("s_barrier")
        k(f"ds_read_b128 v[{T_}:{T_+3}], v18")
        k(f"ds_read_b128 v[{T_+4}:{T_+7}], v18 offset:1024")
        k("s_mov_b64 exec, 0xffffffff")
        k(f"ds_read_b128 v[{T_+8}:{T_+11}], v18 offset:2048")
        k("s_not_b64 exec, exec")
        k(f"ds_read_b32 v{T_+8}, v19 offset:2560")
        k("s_mov_b64 exec, -1")
        Ox = O[keep]
        k("s_waitcnt lgkmcnt(2)")
        for r in range(8):
            k(f"v_add_f32 v{Ox+r}, v{Ox+r}, v{T_+r}")
        k("s_waitcnt lgkmcnt(0)")
        for r in range(8, 12):
            k(f"v_add_f32 v{Ox+r}, v{Ox+r}, v{T_+r}")
        k(f"v_mov_b32 v4, v{Ox+8}")
        k(f"v_mov_b32 v5, v{Ox+8}")
        k("v_mov_b32 v16, 0")
        k("s_nop 0")
        k("v_permlane32_swap_b32 v4, v5")
        for r in range(12):
            k(f"v_fma_f32 v16, v{Ox+r}, 0, v16")
        k(f"s_mov_b32 s40, {f2u(2.0**40):#x}")
        k(f"s_mov_b32 s41, {f2u(2.0**-40):#x}")
        k("v_cmp_eq_f32 vcc, 0, v16")
        k("v_cmp_lt_f32 s[42:43], s41, v5")
        k("v_cmp_gt_f32 s[44:45], s40, v5")
        k("s_nop 3")
        k("s_and_b64 vcc, vcc, s[42:43]")
        k("s_and_b64 vcc, vcc, s[44:45]")
        if force_slow:
            k("s_mov_b64 vcc, 0")
        k("s_cmp_eq_u64 vcc, -1")
        k(f"s_cbranch_scc0 {k.ref('slow' + tg)}")
        k.lab("fin" + tg)
        k("v_rcp_f32 v5, v5")
        k("s_nop 0")
        for r in range(0, 12, 2):
            k(f"v_pk_mul_f32 v[{Ox+r}:{Ox+r+1}], v[{Ox+r}:{Ox+r+1}], v[4:5] op_sel:[0,1] op_sel_hi:[1,1]")
        for j in range(6):
            k(f"v_cvt_pk_bf16_f32 v{22+j}, v{Ox+2*j}, v{Ox+2*j+1}")
        k("buffer_store_dwordx2 v[22:23], v20, s[12:15], s51 offen")
        k("buffer_store_dwordx2 v[24:25], v20, s[12:15], s51 offen offset:512")
        k("s_mov_b64 exec, 0xffffffff")
        k("buffer_store_dwordx2 v[26:27], v20, s[12:15], s51 offen offset:1024")
        k("s_waitcnt vmcnt(0)")
        k.stamp(4); k.stamp_flush(6, kidx, 5, 26)
        k("s_endpgm")
        k.lab("slow" + tg)
        MX = 88
        x = keep
        lane_addrs()
        k(f"v_mov_b32 v{MX}, {f2u(-3.0e38):#x}")
        for r in range(16):
            k(f"v_mov_b32 v{O[x]+r}, 0")
        k("s_mov_b32 s36, 0")
        k.lab(f"sl{tg}")
        k(f"buffer_load_dwordx4 v[{K16[0]}:{K16[0]+3}], v{KA}, s[12:15], s50 offen")
        k(f"buffer_load_dwordx2 v[{K4[0]}:{K4[0]+1}], v{KB}, s[12:15], s50 offen")
        k("s_mov_b64 exec, s[34:35]")
        k(f"buffer_load_dwordx4 v[{V[0]}:{V[0]+3}], v{VA}, s[12:15], s50 offen")
        k(f"buffer_load_dwordx4 v[{V[0]+4}:{V[0]+7}], v{VA}, s[12:15], s50 offen offset:640")
        k("s_mov_b64 exec, -1")
        k("s_waitcnt vmcnt(0)")
        k(M1(x, 0))
        k("s_nop 7"); k("s_nop 1")
        k(M2(x, 0))
        k("s_nop 7"); k("s_nop 3")
        s = S[x]
        k(f"v_max3_f32 v4, v{s}, v{s+1}, v{s+2}")
        for i in range(3, 15, 2):
            k(f"v_max3_f32 v4, v4, v{s+i}, v{s+i+1}")
        k(f"v_max_f32 v4, v4, v{s+15}")
        k("v_mov_b32 v5, v4")
        k("s_nop 1")
        k("v_permlane32_swap_b32 v4, v5")
        k("s_nop 1")
        k(f"v_max3_f32 v4, v4, v5, v{MX}")
        k(f"v_sub_f32 v5, v{MX}, v4")
        k("v_exp_f32 v5, v5")
        k(f"v_mov_b32 v{MX}, v4")
        for i in range(16):
            k(f"v_sub_f32 v{s+i}, v{s+i}, v4")
        for i in range(16):
            k(f"v_exp_f32 v{s+i}, v{s+i}")
        for r in range(12):
            k(f"v_mul_f32 v{O[x]+r}, v{O[x]+r}, v5")
        for j in range(8):
            k(f"v_cvt_pk_bf16_f32 v{P+j}, v{s+2*j}, v{s+2*j+1}")
        k(f"v_add_u32 v{KA}, 2560, v{KA}")
        k(f"v_add_u32 v{KB}, 2560, v{KB}")
        k(f"v_add_u32 v{VA}, 2560, v{VA}")
        k("s_nop 4")
        k(MPV(x, 0, 0))
        k(MPV(x, 0, 1))
        k("s_nop 7"); k("s_nop 3")
        k("s_add_u32 s36, s36, 1")
        k("s_cmp_lt_u32 s36, 64")
        k(f"s_cbranch_scc1 {k.ref(f'sl{tg}')}")
        k(f"v_mov_b32 v4, v{O[x]+8}")
        k(f"v_mov_b32 v5, v{O[x]+8}")
        k("s_nop 1")
        k("v_permlane32_swap_b32 v4, v5")
        k("s_nop 1")
        k(f"s_branch {k.ref('fin' + tg)}")
    k("s_cmp_lt_u32 s26, 4")
    k(f"s_cbranch_scc1 {k.ref('compute')}")
    k("s_mul_i32 s29, s33, 6144")
    k("s_mul_i32 s30, s33, 34816")
    k("s_add_u32 s30, s30, 24576")
    k("s_waitcnt lgkmcnt(0)")
    k.srd(12, 6, 0, WS_SIZE)
    k("s_mov_b32 m0, s29")
    k("s_add_u32 s31, s50, s29")
    for i in range(4):
        k(f"buffer_load_dwordx4 v4, s[12:15], s31 offen offset:{i*1024} lds")
    k("s_add_u32 m0, s29, 4096")
    k("s_add_u32 s31, s31, 4096")
    for i in range(2):
        k(f"buffer_load_dwordx4 v4, s[12:15], s31 offen offset:{i*1024} lds")
    k("s_add_u32 s32, s50, s30")
    def stB(g):
        k(f"s_add_u32 m0, s30, {g*4096}")
        k(f"s_add_u32 s31, s32, {g*4096}")
        for i in range(4 if g < 8 else 2):
            k(f"buffer_load_dwordx4 v4, s[12:15], s31 offen offset:{i*1024} lds")
    stB(0); stB(1)
    k.stamp(1)
    k("s_waitcnt vmcnt(8)")
    k("s_barrier")
    for g in range(2, 9):
        stB(g)
    q_loads()
    init_regs()
    k(f"v_add_u32 v{KA}, {TM*2560}, v{KA}")
    k(f"v_add_u32 v{KB}, {TM*2560}, v{KB}")
    k(f"v_add_u32 v{VA}, {TM*2560}, v{VA}")
    k("s_waitcnt vmcnt(0)")
    k("s_barrier")
    k.stamp(2)
    if repack:
        repack_unit(k, 33, 48, 128)
    if pf:
        k("s_and_b32 s40, s20, 1")
        l2_prefetch(k, PF_ATT[:pf], 40, 21, 33, 42, 128, 129)
    if phl != 0: k(f"s_setprio {phl}")
    loop("h", h, uh, None)
    finish(1)
    k.lab("end")
    k("s_endpgm")
    k.lab("compute")
    if pm != 0: k(f"s_setprio {pm}")
    k("s_waitcnt lgkmcnt(0)")
    k.srd(12, 6, 0, WS_SIZE)
    q_loads()
    init_regs()
    k.stamp(1)
    k("s_waitcnt vmcnt(0)")
    k("s_barrier")
    k.stamp(2)
    loop("m", TM, um, b2)
    finish(0)
    return k
```

```python
import sys
from dsl import *
import ph, hazard
from addsc import addsc
def build(which, opt):
    first = int(opt.get("first", 2))
    dbg = tuple(opt.get("dbg", "").split(",")) if opt.get("dbg") else ()
    dk = opt.get("dk", "")
    def D(name):
        if not dk: return dbg
        return dbg if any(name.startswith(p) for p in dk.split(",")) else ()
    def PFD(name):
        best = int(opt.get("pfd", 0)); bl = -1
        for key, val in opt.items():
            if key.startswith("pfd_") and name.startswith(key[4:]) and len(key) > bl: best = int(val); bl = len(key)
        return best
    def FI(name):
        best = first; bl = -1
        for key, val in opt.items():
            if key.startswith("first_") and name.startswith(key[6:]) and len(key) > bl: best = int(val); bl = len(key)
        return best
    A = lambda n, kind, l, ki: ph.gen_gemmA(n, kind, l, ki, dbg=D(n), first=FI(n), pfd=PFD(n))
    B = lambda n, kind, l, ki, **kw: ph.gen_gemmB(n, kind, l, ki, dbg=D(n), first=FI(n), pfd=PFD(n), **kw)
    if which == "a":
        return assemble([ph.gen_prep(dbg), A("qkv0_kernel", "qkv", 0, 1)])
    if which == "aq":
        return assemble([A("qkv0_kernel", "qkv", 0, 1)])
    if which == "ar":
        return assemble([ph.gen_qkv_raw("qkv0_kernel", 1, dbg=D("qkv0"), first=FI("qkv0"), pfd=PFD("qkv0"))])
    if which == "w1":
        return assemble([A("w10_kernel", "w1", 0, 4)])
    if which == "pw1":
        return assemble([ph.gen_prep(), A("w10_kernel", "w1", 0, 4)])
    if which == "attn":
        return assemble([ph.gen_attn("attn0_kernel", 2)])
    if which == "attns":
        return assemble([ph.gen_attn("attn0_kernel", 2, pack="sdwa")])
    if which == "attnf":
        return assemble([ph.gen_attn("attn0_kernel", 2, force_slow=True)])
    if which == "attn2":
        return assemble([ph.gen_attn2("attn0_kernel", 2)])
    if which == "attn2s":
        return assemble([ph.gen_attn2("attn0_kernel", 2, pack="sdwa")])
    if which == "attn2f":
        return assemble([ph.gen_attn2("attn0_kernel", 2, force_slow=True)])
    if which in ("attn3", "attn3f"):
        return assemble([ph.gen_attn3("attn0_kernel", 2, force_slow=(which == "attn3f"), **attn_opts(opt))])
    if which == "wo":
        return assemble([B("wo0_kernel", "wo", 0, 3)])
    if which == "w2":
        return assemble([B("w20_kernel", "w2", 0, 5)])
    if which == "w21":
        return assemble([B("w21_kernel", "w2", 1, 10)])
    if which == "full":
        raw = "raw" in opt
        ks = [] if raw else [ph.gen_prep()]
        at = opt.get("attn", "2")
        for l in range(2):
            r0 = raw and l == 0
            if at == "2": a = ph.gen_attn2(f"attn{l}_kernel", 2 + 5*l, pf=int(opt.get("pf", 0)))
            else: a = ph.gen_attn3(f"attn{l}_kernel", 2 + 5*l, pf=(int(opt.get("pf0", 0)) if r0 else int(opt.get("pf", 0))), repack=r0, **attn_opts(opt))
            fuse = int(opt.get("fuse", 0))
            if fuse:
                if l == 0:
                    ks += [ph.gen_qkv_raw("qkv0_kernel", 1, dbg=D("qkv0"), first=FI("qkv0"), zflags=True)]
                elif fuse < 3:
                    ks += [A("qkv1_kernel", "qkv", 1, 6)]
                ks += [a]
                nph = 2 if fuse == 1 else (4 if (fuse == 3 and l == 0) else 3)
                xl = "xl" in opt; pw = "pfw" in opt
                fz = ph.Fuse(f"f{l}_kernel", nph, 3 + 5*l, xl=xl, modeset=6 + l, force_slow="fslow" in opt, sleep=int(opt.get("sleep", 1)))
                fb = 3 * l
                W1, W2, WQ = (ph.WS_W1, 1536*1280), (ph.WS_W2, 1536*1280), (ph.WS_WQ, 1920*1280)
                fz.begin(wait=None, sig=fb + 0, rot=0, pfw=(W1 if pw else None))
                ph.gen_gemmB("wo", "wo", l, 0, dbg=D(f"wo{l}"), first=2, rawres=r0, fz=fz)
                fz.begin(wait=fb + 0, sig=(fb + 1 if nph > 2 else None), rot=2, pfw=(W2 if pw and nph > 2 else None))
                ph.gen_gemmA("w1", "w1", l, 0, dbg=D(f"w1{l}"), first=2, fz=fz)
                if nph > 2:
                    fz.begin(wait=fb + 1, sig=(fb + 2 if nph > 3 else None), rot=0, pfw=(WQ if pw and nph > 3 else None))
                    ph.gen_gemmB("w2", "w2", l, 0, dbg=D(f"w2{l}"), first=2, fz=fz)
                if nph > 3:
                    fz.begin(wait=fb + 2, sig=None, rot=0)
                    ph.gen_gemmA("qkv", "qkv", 1, 0, dbg=D("qkv1"), first=2, fz=fz)
                ks += [fz.close()]
                if nph == 2:
                    ks += [B(f"w2{l}_kernel", "w2", l, 5 + 5*l)]
                continue
            q = ph.gen_qkv_raw(f"qkv{l}_kernel", 1 + 5*l, dbg=D(f"qkv{l}"), first=FI(f"qkv{l}"), pfd=PFD(f"qkv{l}")) if r0 else A(f"qkv{l}_kernel", "qkv", l, 1 + 5*l)
            wo = B(f"wo{l}_kernel", "wo", l, 3 + 5*l, rawres=r0)
            ks += [q, a, wo, A(f"w1{l}_kernel", "w1", l, 4 + 5*l),
                   B(f"w2{l}_kernel", "w2", l, 5 + 5*l)]
        return assemble(ks)
def attn_opts(opt):
    o = {}
    for key in ("h", "um", "uh", "pm", "phl", "b2"):
        if key in opt: o[key] = int(opt[key])
    return o
if __name__ == "__main__":
    which = sys.argv[1]; out = sys.argv[2]
    opt = {}
    for a in sys.argv[3:]:
        if "=" in a:
            x, y = a.split("=", 1); opt[x] = y
        else: opt[a] = "1"
    Kern.PROF = "prof" in opt
    ph.PFS = int(opt.get("pfs", 128))
    ph.CW = int(opt.get("cw", 0)); ph.CWN = int(opt.get("cwn", 2))
    t = build(which, opt)
    if "sc1" in opt: t = addsc(t)
    if "scb" in opt: t = addsc(t, opt["scb"].replace("+", " "))
    open(out, "w").write(t)
    bad = hazard.check(t)
    print(out, "hazards:", len(bad), "bytes:", len(t))
    for b in bad[:10]: print(b)
```

```python
from dsl import *
import struct
def f2u(x):
    return struct.unpack("<I", struct.pack("<f", x))[0]

KB = 1024
WS_WQ = 0
WS_W1 = 3 * MB
WS_WO = 5 * MB
WS_W2 = 6 * MB
WS_CSQ = 8 * MB
WS_CS1 = 8 * MB + 128 * KB
WS_ST0 = 8 * MB + 256 * KB
WS_ST1 = 8 * MB + 512 * KB
WS_X0 = 9 * MB
WS_X1 = 12 * MB
WS_X2 = 15 * MB
WS_O = 18 * MB
WS_Q = 21 * MB
WS_KV = 24 * MB
WS_H = 30 * MB
X_BYTES = 2048 * 640 * 2
H_BYTES = 2048 * 1536 * 2
ST_BYTES = 16 * 2048 * 8
Q_BYTES = 32 * 64 * 1280
KV_BYTES = 32 * 64 * 2560
WS_SIZE = 40 * MB
QSCALE = (20 ** -0.5) * 1.4426950408889634
KVPAD = 0
NCSP = 10

def wave_id(k, sreg, vtmp=1):
    k(f"v_lshrrev_b32 v{vtmp}, 6, v0")
    k("s_nop 0")
    k(f"v_readfirstlane_b32 s{sreg}, v{vtmp}")
    k("v_and_b32 v0, 63, v0")

def gen_prep(dbg=()):
    NWG = 220
    k = Kern("prep_kernel", NWG, 512, 4 * 8192, vgpr=64)
    k(f"s_cmp_ge_u32 s2, {NWG}")
    k(f"s_cbranch_scc1 {k.ref('end')}")
    k.karg(4, 0)
    k.karg(6, 8)
    k.karg(8, 16)
    k.karg(10, 32)
    k.karg(12, 48)
    k.karg(14, 80)
    wave_id(k, 26)
    k("s_waitcnt lgkmcnt(0)")
    k.srd(16, 14, 0, WS_SIZE)
    k("s_cmp_ge_u32 s26, 4")
    k(f"s_cbranch_scc1 {k.ref('stats')}")
    if "now" in dbg: k(f"s_branch {k.ref('end')}")
    k("s_lshl_b32 s3, s2, 2")
    k("s_add_u32 s3, s3, s26")
    def setup(lbl, lo, ncg, ptr, size, pitch, TN, K, dst, cs, csp):
        k.lab(lbl)
        k(f"s_sub_u32 s3, s3, {lo}")
        k.srd(20, ptr, 0, size)
        k(f"s_mov_b32 s27, {pitch}")
        k(f"s_mov_b32 s28, {(65536 + TN - 1)//TN}")
        k(f"s_mov_b32 s29, {TN}")
        k(f"s_mov_b32 s30, {K//8*TN*16}")
        k(f"s_mov_b32 s31, {dst}")
        k(f"s_mul_i32 s32, s3, {(65536 + ncg - 1)//ncg}")
        k("s_lshr_b32 s32, s32, 16")
        k(f"s_mul_i32 s33, s32, {ncg}")
        k("s_sub_u32 s33, s3, s33")
        k(f"s_mov_b32 s34, {cs if cs is not None else 0xffffffff:#x}")
        k(f"s_mov_b32 s35, {csp}")
        k(f"s_branch {k.ref('go')}")
    k("s_cmp_ge_u32 s3, 640"); k(f"s_cbranch_scc1 {k.ref('m_w2')}")
    k("s_cmp_ge_u32 s3, 540"); k(f"s_cbranch_scc1 {k.ref('m_wo')}")
    k("s_cmp_ge_u32 s3, 300"); k(f"s_cbranch_scc1 {k.ref('m_w1')}")
    setup("m_wq", 0, 30, 6, 640 * 3840, 3840, 128, 640, WS_WQ, WS_CSQ, 1920 * 4)
    setup("m_w1", 300, 24, 10, 640 * 3072, 3072, 96, 640, WS_W1, WS_CS1, 1536 * 4)
    setup("m_wo", 540, 10, 8, 640 * 1280, 1280, 80, 640, WS_WO, None, 0)
    setup("m_w2", 640, 10, 12, 1536 * 1280, 1280, 80, 1536, WS_W2, None, 0)
    k.lab("go")
    k("v_lshrrev_b32 v2, 3, v0")
    k("v_mul_lo_u32 v2, v2, s27")
    k("v_and_b32 v3, 7, v0")
    k("v_lshl_add_u32 v2, v3, 4, v2")
    k("s_lshl_b32 s36, s32, 6")
    k("s_mul_i32 s36, s36, s27")
    k("s_lshl_b32 s37, s33, 7")
    k("s_add_u32 s36, s36, s37")
    k("s_lshl_b32 s38, s27, 3")
    k("s_lshl_b32 s39, s26, 13")
    for j in range(8):
        k(f"s_add_u32 m0, s39, {j*1024}")
        k("s_nop 0")
        k("buffer_load_dwordx4 v2, s[20:23], s36 offen lds")
        if j < 7:
            k("s_add_u32 s36, s36, s38")
    k("s_lshl_b32 s40, s33, 6")
    k("v_add_u32 v4, s40, v0")
    k("v_mul_lo_u32 v5, v4, s28")
    k("v_lshrrev_b32 v5, 16, v5")
    k("v_mul_lo_u32 v6, v5, s29")
    k("v_sub_u32 v6, v4, v6")
    k("v_mul_lo_u32 v5, v5, s30")
    k("v_lshl_add_u32 v5, v6, 4, v5")
    k("s_lshl_b32 s41, s29, 4")
    k("s_lshl_b32 s42, s32, 3")
    k("s_mul_i32 s42, s42, s41")
    k("s_add_u32 s42, s42, s31")
    k("v_bfe_u32 v7, v0, 2, 2")
    k("v_lshlrev_b32 v7, 7, v7")
    k("v_lshrrev_b32 v8, 4, v0")
    k("v_lshl_add_u32 v7, v8, 5, v7")
    k("v_and_b32 v8, 3, v0")
    k("v_lshl_add_u32 v7, v8, 3, v7")
    k("v_add_u32 v7, s39, v7")
    k("v_mov_b32 v10, 0")
    for ku in range(8):
        k(f"s_waitcnt vmcnt({7-ku if ku == 0 else 7})") if False else None
    for ku in range(8):
        k("s_waitcnt vmcnt(7)")
        r = 16 + 4 * ku
        k(f"ds_read_b64_tr_b16 v[{r}:{r+1}], v7 offset:{ku*1024}")
        k(f"ds_read_b64_tr_b16 v[{r+2}:{r+3}], v7 offset:{ku*1024+512}")
        k("s_waitcnt lgkmcnt(0)")
        k(f"buffer_store_dwordx4 v[{r}:{r+3}], v5, s[16:19], s42 offen")
        if ku < 7:
            k("s_add_u32 s42, s42, s41")
    k("s_cmp_eq_u32 s34, 0xffffffff")
    k(f"s_cbranch_scc1 {k.ref('fin')}")
    for i in range(32):
        r = 16 + i
        k(f"v_lshlrev_b32 v8, 16, v{r}")
        k(f"v_and_b32 v9, 0xffff0000, v{r}")
        k("v_add_f32 v10, v10, v8")
        k("v_add_f32 v10, v10, v9")
    k("s_mul_i32 s43, s32, s35")
    k("s_add_u32 s43, s43, s34")
    k("v_lshlrev_b32 v4, 2, v4")
    k("buffer_store_dword v10, v4, s[16:19], s43 offen")
    k.lab("fin")
    k("s_waitcnt vmcnt(0)")
    k("s_endpgm")
    k.lab("stats")
    if "nox" in dbg: k(f"s_branch {k.ref('end')}")
    k("s_cmp_ge_u32 s2, 128")
    k(f"s_cbranch_scc1 {k.ref('end')}")
    k.srd(20, 4, 0, X_BYTES)
    k("s_sub_u32 s26, s26, 4")
    k("s_lshl_b32 s3, s2, 4")
    k("s_lshl_b32 s27, s26, 2")
    k("s_add_u32 s3, s3, s27")
    k("v_lshrrev_b32 v1, 4, v0")
    k("v_add_u32 v1, s3, v1")
    k("v_and_b32 v2, 15, v0")
    k("v_mul_u32_u24 v3, 1280, v1")
    k("v_lshl_add_u32 v3, v2, 4, v3")
    for i in range(5):
        k(f"buffer_load_dwordx4 v[{8+4*i}:{11+4*i}], v3, s[20:23], 0 offen offset:{256*i}")
    k("v_lshrrev_b32 v30, 5, v1")
    k("v_mul_u32_u24 v30, 40960, v30")
    k("v_and_b32 v31, 31, v1")
    k("v_lshl_add_u32 v30, v31, 4, v30")
    k("v_lshl_add_u32 v30, v2, 9, v30")
    k("v_mov_b32 v4, 0")
    k("v_mov_b32 v5, 0")
    for i in range(5):
        k(f"s_waitcnt vmcnt(4)")
        k(f"s_mov_b32 s28, {WS_X0 + i*8192}")
        k(f"buffer_store_dwordx4 v[{8+4*i}:{11+4*i}], v30, s[16:19], s28 offen")
        for j in range(4):
            r = 8 + 4 * i + j
            k(f"v_lshlrev_b32 v6, 16, v{r}")
            k(f"v_and_b32 v7, 0xffff0000, v{r}")
            k("v_add_f32 v4, v4, v6")
            k("v_fmac_f32 v5, v6, v6")
            k("v_add_f32 v4, v4, v7")
            k("v_fmac_f32 v5, v7, v7")
    for sh in (8, 4, 2, 1):
        k("s_nop 1")
        k(f"v_add_f32_dpp v4, v4, v4 row_ror:{sh} row_mask:0xf bank_mask:0xf")
        k(f"v_add_f32_dpp v5, v5, v5 row_ror:{sh} row_mask:0xf bank_mask:0xf")
    k("v_lshlrev_b32 v3, 3, v1")
    k("v_cmp_eq_u32 vcc, 0, v2")
    k("s_and_saveexec_b64 s[30:31], vcc")
    k(f"s_mov_b32 s28, {WS_ST0}")
    k("buffer_store_dwordx2 v[4:5], v3, s[16:19], s28 offen")
    k("s_waitcnt vmcnt(0)")
    k.lab("end")
    k("s_endpgm")
    return k

def ring_loader(k, NCH, NSLOT, dma, nD, pre_b0=None, post_b0=None, first=2, pre_issue=None, fz=None):
    if pre_issue:
        w = pre_issue()
    else:
        for c_ in range(first):
            dma(c_)
        w = nD*(first-1)
    k(f"s_waitcnt vmcnt({w})")
    if pre_b0: pre_b0()
    k("s_barrier")
    issued = first
    if post_b0: post_b0()
    ring_tail(k, NCH, NSLOT, dma, nD, issued, fz)

def ring_tail(k, NCH, NSLOT, dma, nD, issued, fz=None):
    npf = 0
    for i in range(1, NCH):
        while issued < NCH and issued <= i - 2 + NSLOT:
            dma(issued); issued += 1
            if issued == NCH and fz: npf = fz.prefetch_w()
        k(f"s_waitcnt vmcnt({(issued - 1 - i) * nD + npf})")
        k("s_barrier")


WS_FLAG = 8 * MB + 768 * KB
NFLAGSET = 8
WSET = 12
LDS_CNT = 147456
POLL_MAX = 0x4000
class Fuse:
    def __init__(self, name, nph, kidx0, xl=False, modeset=None, force_slow=False, sleep=1, xplain=False, attn_first=False):
        self.attn_first = attn_first
        self.k = Kern(name, 256, 512, 163840 if attn_first else LDS_CNT + 256, vgpr=256)
        self.k.fused = True
        self.nph, self.kidx0, self.p = nph, kidx0, -1
        self.xl, self.modeset, self.force_slow, self.sleep = xl, modeset, force_slow, sleep
        self.xplain = xplain and xl
    def begin(self, wait=None, sig=None, rot=0, pfw=None):
        self.p += 1
        self.wait, self.sig, self.rot, self.pfw = wait, sig, rot, pfw
        k = self.k
        if self.p == 0:
            k.pfx = ""
            k("s_cmp_ge_u32 s2, 256")
            k(f"s_cbranch_scc1 {k.ref('fin')}")
            k.karg(6, 80)
            wave_id(k, 64)
            if not self.attn_first:
                k(f"v_mov_b32 v1, {LDS_CNT}")
                k("v_mov_b32 v2, 0")
                k("ds_write_b32 v1, v2")
        k.pfx = f"p{self.p}_"
        k.lab("entry")
        k.stamp(0)
        k("s_mov_b32 s26, s64")
    @property
    def last(self): return self.p == self.nph - 1
    def nxt(self): return f"{self.k.name}_p{self.p+1}_entry"
    def leave(self):
        k = self.k
        k.stamp_save(self.p)
        if self.last:
            k.stamp_flush_all(6, self.kidx0, self.nph, 64)
            k("s_endpgm")
        else:
            k(f"s_branch {self.nxt()}")
    def skip_to_end(self):
        assert self.last
        self.k(f"s_cbranch_scc1 {self.k.name}_skip")
    def close(self):
        k = self.k
        k.pfx = ""
        k.lab("skip")
        k.stamp_flush_all(6, self.kidx0, self.nph, 64)
        k.lab("fin")
        k("s_endpgm")
        return k
    def mode_word(self, d):
        k = self.k
        k(f"s_and_b32 s{d}, s2, 7")
        k(f"s_lshl_b32 s{d}, s{d}, 7")
        k(f"s_add_u32 s{d}, s{d}, {WS_FLAG + self.modeset*4096}")
    def mode_token(self, d, t):
        k = self.k
        k(f"s_getreg_b32 s{t}, hwreg(HW_REG_XCC_ID, 0, 4)")
        k(f"s_mul_i32 s{d}, s{t}, s{t}")
        k(f"s_lshl_b32 s{d}, s{d}, 16")
        k(f"s_lshl_b32 s{t}, s{t}, 6")
        k(f"s_add_u32 s{d}, s{d}, s{t}")
        k(f"s_add_u32 s{d}, s{d}, 1")
    def mode_publish(self, w0=0):
        if not (self.xl and self.p == 0): return
        k = self.k
        k(f"s_cmp_lg_u32 s26, {w0}")
        k(f"s_cbranch_scc1 {k.ref('nopub')}")
        self.mode_token(65, 66)
        self.mode_word(66)
        k("s_mov_b64 exec, 1")
        k("v_mov_b32 v10, s65")
        k("buffer_atomic_add v10, off, s[12:15], s66 sc1")
        k("s_mov_b64 exec, -1")
        k.lab("nopub")
    def mode_issue(self, srd, vd):
        k = self.k
        self.mode_word(62)
        k(f"buffer_load_dword v{vd}, off, s[{srd}:{srd+3}], s62 sc1")
    def mode_resolve(self, srd, vd):
        k = self.k
        l0, l1 = k.newlab("mpoll"), k.newlab("mpolled")
        self.mode_word(62)
        k(f"s_mov_b32 s65, {POLL_MAX}")
        k.lab(l0)
        k(f"v_readfirstlane_b32 s67, v{vd}")
        k("s_and_b32 s66, s67, 63")
        k("s_cmp_eq_u32 s66, 32")
        k(f"s_cbranch_scc1 {k.ref(l1)}")
        k("s_sleep 2")
        k(f"buffer_load_dword v{vd}, off, s[{srd}:{srd+3}], s62 sc1")
        k("s_waitcnt vmcnt(0)")
        k("s_sub_u32 s65, s65, 1")
        k(f"s_cbranch_scc0 {k.ref(l0)}")
        k.lab(l1)
        self.mode_token(65, 66)
        k("s_lshl_b32 s65, s65, 5")
        k("s_cmp_lg_u32 s65, s67")
        k("s_cselect_b32 s63, 1, 0")
        if self.force_slow: k("s_mov_b32 s63, 1")
    def prefetch_w(self):
        if not self.pfw: return 0
        k = self.k
        base, nb = self.pfw
        per_w = nb // 128
        lines = (per_w + 127) // 128
        k("s_lshr_b32 s65, s2, 3")
        k("s_lshl_b32 s65, s65, 2")
        k("s_add_u32 s65, s65, s26")
        k(f"s_mul_i32 s65, s65, {per_w}")
        k(f"s_add_u32 s65, s65, {base}")
        k("v_lshlrev_b32 v12, 7, v0")
        n = 0
        done = 0
        while done < lines:
            n_ = min(64, lines - done)
            if n_ < 64: k(f"s_mov_b64 exec, {(1 << n_) - 1:#x}") if n_ <= 32 else (k(f"s_mov_b32 exec_hi, {((1 << n_) - 1) >> 32:#x}"))
            k(f"buffer_load_dword v{13+n}, v12, s[12:15], s65 offen")
            if n_ < 64: k("s_mov_b64 exec, -1")
            done += n_; n += 1
            if done < lines: k(f"s_add_u32 s65, s65, {64*128}")
        return n
    def poll(self, line, nprod):
        k = self.k
        if self.xl and self.p == 1 and not self.attn_first:
            k(f"s_mov_b32 s61, s{line}")
            self.mode_issue(12, 11)
            k("s_waitcnt vmcnt(0)")
            self.mode_resolve(12, 11)
            line = 61
        k(f"s_lshl_b32 s66, s{line}, 7")
        k(f"s_add_u32 s66, s66, {WS_FLAG + self.wait*4096}")
        k("v_lshlrev_b32 v10, 2, v0")
        k(f"s_mov_b64 exec, {(1 << nprod) - 1:#x}")
        k(f"s_mov_b32 s65, {POLL_MAX}")
        k.lab("poll")
        k("buffer_load_dword v11, v10, s[12:15], s66 offen sc1")
        k("s_waitcnt vmcnt(0)")
        k("v_cmp_ne_u32 vcc, 0, v11")
        k(f"s_cmp_eq_u32 vcc_lo, {(1 << nprod) - 1:#x}")
        k(f"s_cbranch_scc1 {k.ref('polled')}")
        k(f"s_sleep {self.sleep}")
        k("s_sub_u32 s65, s65, 1")
        k(f"s_cbranch_scc0 {k.ref('poll')}")
        k.lab("polled")
        k("s_mov_b64 exec, -1")
        if self.xl:
            k("s_cmp_eq_u32 s63, 0")
            k(f"s_cbranch_scc1 {k.ref('noacq')}")
            k("buffer_inv sc1")
            k("s_waitcnt vmcnt(0)")
            k.lab("noacq")
        k.stamp(3)
    def signal(self):
        k = self.k
        l = k.newlab("nosig")
        k("s_mov_b64 exec, 1")
        k(f"v_mov_b32 v1, {LDS_CNT}")
        k("v_mov_b32 v2, 1")
        k("ds_add_rtn_u32 v3, v1, v2")
        k("s_lshl_b32 s37, s24, 7")
        k("s_lshl_b32 s38, s25, 2")
        k("s_add_u32 s37, s37, s38")
        k(f"s_add_u32 s37, s37, {WS_FLAG + self.sig*4096}")
        k("s_waitcnt lgkmcnt(0)")
        k("v_readfirstlane_b32 s38, v3")
        k("s_and_b32 s38, s38, 3")
        k("s_cmp_eq_u32 s38, 3")
        k(f"s_cbranch_scc0 {k.ref(l)}")
        if self.xl:
            l2 = k.newlab("fastsig")
            k("s_cmp_eq_u32 s63, 0")
            k(f"s_cbranch_scc1 {k.ref(l2)}")
            k("buffer_wbl2 sc1")
            k("s_waitcnt vmcnt(0)")
            k("buffer_store_dword v2, off, s[48:51], s37 sc1")
            k(f"s_branch {k.ref(l)}")
            k.lab(l2)
            k("buffer_store_dword v2, off, s[48:51], s37 ; nosc")
        else:
            k("buffer_store_dword v2, off, s[48:51], s37 sc1")
        k.lab(l)
        k("s_mov_b64 exec, -1")

    def attn_done(self, role):
        k = self.k
        self.mode_resolve(12, 250)
        l, l2 = k.newlab("asig"), k.newlab("afast")
        k(f"s_add_u32 s37, s25, {role}")
        k("s_lshl_b32 s37, s37, 7")
        k("s_lshl_b32 s38, s24, 2")
        k("s_add_u32 s37, s37, s38")
        k(f"s_add_u32 s37, s37, {WS_FLAG + self.sig*4096}")
        k("s_mov_b64 exec, 1")
        k("v_mov_b32 v2, 1")
        k("s_cmp_eq_u32 s63, 0")
        k(f"s_cbranch_scc1 {k.ref(l2)}")
        k("buffer_wbl2 sc1")
        k("s_waitcnt vmcnt(0)")
        k("buffer_store_dword v2, off, s[12:15], s37 sc1")
        k(f"s_branch {k.ref(l)}")
        k.lab(l2)
        k("buffer_store_dword v2, off, s[12:15], s37 ; nosc")
        k.lab(l)
        if role == 0:
            k(f"v_mov_b32 v1, {LDS_CNT}")
            k("v_mov_b32 v2, 0")
            k("ds_write_b32 v1, v2")
            k("s_waitcnt lgkmcnt(0)")
        k("s_mov_b64 exec, -1")
        k("s_setprio 0")
        self.leave()
    def wflag_set(self, lw, v):
        k = self.k
        k("s_waitcnt vmcnt(0)")
        k("s_lshl_b32 s52, s2, 2")
        k(f"s_add_u32 s52, s52, s{lw}")
        k("s_lshl_b32 s52, s52, 2")
        k(f"s_add_u32 s52, s52, {WS_FLAG + WSET*4096}")
        k("s_mov_b64 exec, 1")
        k(f"v_mov_b32 v{v}, 1")
        k(f"buffer_store_dword v{v}, off, s[12:15], s52 sc1")
        k("s_mov_b64 exec, -1")
    def wflag_issue(self, v):
        k = self.k
        k(f"v_lshlrev_b32 v{v+16}, 4, v0")
        k(f"s_mov_b32 s52, {WS_FLAG + WSET*4096}")
        for i in range(4):
            k(f"buffer_load_dwordx4 v[{v+4*i}:{v+4*i+3}], v{v+16}, s[12:15], s52 offen offset:{i*1024} sc1")
    def wflag_wait(self, v):
        k = self.k
        l0, l1 = k.newlab("wpoll"), k.newlab("wready")
        k(f"s_mov_b32 s53, {POLL_MAX}")
        k.lab(l0)
        k("s_waitcnt vmcnt(0)")
        for i in range(1, 16):
            k(f"v_and_b32 v{v}, v{v}, v{v+i}")
        k(f"v_cmp_ne_u32 vcc, 0, v{v}")
        k("s_nop 1")
        k("s_cmp_eq_u64 vcc, -1")
        k(f"s_cbranch_scc1 {k.ref(l1)}")
        k("s_sleep 4")
        self.wflag_issue(v)
        k("s_sub_u32 s53, s53, 1")
        k(f"s_cbranch_scc0 {k.ref(l0)}")
        k.lab(l1)

def fin_compute(k, fz, kidx):
    k.stamp(4)
    if fz is None:
        k.stamp_flush(6, kidx, 5, 26)
        k("s_endpgm")
    else:
        if fz.xl and fz.p == 0: fz.mode_resolve(48, 250)
        if fz.sig is not None: fz.signal()
        fz.leave()

def fin_loader(k, fz, kidx):
    k.stamp(4)
    if fz is None:
        k("s_add_u32 s26, s26, 4")
        k.stamp_flush(6, kidx, 5, 26)
        k.lab("end")
        k("s_endpgm")
    else:
        fz.leave()


PFS = 128
CW = 0
XSC = ""
PT = ""
CWN = 2
class TilePF:
    def __init__(self, k, pfd, first, NCH, va, vs, vd, srd):
        self.k, self.pfd, self.first, self.NCH, self.va, self.vs, self.vd, self.srd = k, pfd, first, NCH, va, vs, vd, srd
        self.next = first
    def one(self):
        k = self.k
        k(f"buffer_load_dword v{self.vd}, v{self.va}, s[{self.srd}:{self.srd+3}], 0 offen")
        self.next += 1
        if self.next < self.NCH:
            k(f"v_add_u32 v{self.va}, v{self.vs}, v{self.va}")
    def start(self):
        self.next = self.first
        while self.next < self.NCH and self.next <= self.pfd:
            self.one()
    def at_barrier(self):
        if self.pfd and self.next < self.NCH:
            self.one()

def gen_gemmA(name, kind, layer, kidx=0, dbg=(), first=2, pfd=0, fz=None):
    if kind == "qkv":
        NWG, NB, TB, TN = 240, 2, 2, 128
        WS_W, XSRC, ST, NPART, CSP, NCOL = WS_WQ, (WS_X0 if layer == 0 else WS_X2), WS_ST0, (1 if layer == 0 else 16), WS_CSQ, 1920
    else:
        NWG, NB, TB, TN = 256, 3, 1, 96
        WS_W, XSRC, ST, NPART, CSP, NCOL = WS_W1, WS_X1, WS_ST1, 16, WS_CS1, 1536
    WB = TN * 128
    SLOT = WB + 16384
    NSLOT = 4
    NCH = 10
    STATS = NSLOT * SLOT
    LDS = STATS + 2048
    rot = fz.rot if fz else 0
    HO = bool(fz and fz.wait is not None)
    XS = " sc1" if (HO and not fz.xplain) else ""
    if fz is None:
        k = Kern(name, NWG, 512, LDS, vgpr=256)
        k(f"s_cmp_ge_u32 s2, {NWG}")
        k(f"s_cbranch_scc1 {k.ref('end')}")
        k.stamp(0)
        k.karg(6, 80)
        if kind == "w1":
            k.karg(8, 40)
        wave_id(k, 26)
    else:
        k = fz.k
        if NWG < 256:
            k(f"s_cmp_ge_u32 s2, {NWG}")
            fz.skip_to_end()
        if kind == "w1":
            k.karg(8, 40)
    k("s_and_b32 s20, s2, 7")
    k("s_lshr_b32 s21, s2, 3")
    if fz and fz.xl:
        k("s_and_b32 s22, s21, 1")
        k("s_lshl_b32 s23, s20, 1")
        k("s_add_u32 s24, s23, s22")
        k("s_lshr_b32 s25, s21, 1")
    else:
        if kind == "qkv":
            k("s_and_b32 s22, s20, 1")
            k("s_mul_i32 s22, s22, 30")
            k("s_add_u32 s22, s22, s21")
            k("s_lshr_b32 s25, s22, 2")
            k("s_and_b32 s22, s22, 3")
        else:
            k("s_and_b32 s22, s20, 1")
            k("s_lshl_b32 s22, s22, 3")
            k("s_lshr_b32 s23, s21, 2")
            k("s_add_u32 s25, s22, s23")
            k("s_and_b32 s22, s21, 3")
        k("s_lshr_b32 s23, s20, 1")
        k("s_lshl_b32 s23, s23, 2")
        k("s_add_u32 s24, s23, s22")
    k("s_cmp_lt_u32 s26, 4")
    k(f"s_cbranch_scc1 {k.ref('compute')}")

    k("s_sub_u32 s26, s26, 4")
    k("v_lshlrev_b32 v1, 4, v0")
    nW = WB // 4096
    k(f"s_mul_i32 s40, s25, {80*TN*16}")
    k(f"s_mul_i32 s41, s26, {nW*1024}")
    k("s_add_u32 s40, s40, s41")
    k(f"s_add_u32 s40, s40, {WS_W}")
    k("s_mov_b32 s42, s41")
    k("s_lshl_b32 s43, s24, 2")
    k("s_add_u32 s43, s43, s26")
    k("s_mul_i32 s43, s43, 40960")
    k(f"s_add_u32 s43, s43, {XSRC}")
    k("s_lshl_b32 s44, s26, 12")
    k(f"s_add_u32 s44, s44, {WB}")
    k("s_waitcnt lgkmcnt(0)")
    k.srd(12, 6, 0, WS_SIZE)
    def dma(ch, parts="wx"):
        if "nodma" in dbg: return
        slot = (ch + rot) % NSLOT
        if "w" in parts:
            k(f"s_add_u32 m0, s42, {slot*SLOT}")
            k(f"s_add_u32 s45, s40, {ch*WB}")
            for i in range(nW):
                k(f"buffer_load_dwordx4 v1, s[12:15], s45 offen offset:{i*1024} lds")
        if "x" in parts:
            k(f"s_add_u32 m0, s44, {slot*SLOT}")
            k(f"s_add_u32 s45, s43, {ch*4096}")
            for i in range(4):
                k(f"buffer_load_dwordx4 v1, s[12:15], s45 offen offset:{i*1024}{XS} lds")
    nD = nW + 4
    k.stamp(1)
    early = HO
    def stats_loads():
        k("s_lshl_b32 s46, s24, 7")
        k("s_lshl_b32 s47, s26, 5")
        k("s_add_u32 s46, s46, s47")
        k("v_add_u32 v4, s46, v2")
        k("v_lshlrev_b32 v4, 3, v4")
        if NPART == 16:
            k("v_lshl_add_u32 v4, v3, 17, v4")
            for p in range(8):
                k(f"s_mov_b32 s47, {ST + p*16384}")
                k(f"buffer_load_dwordx2 v[{16+2*p}:{17+2*p}], v4, s[12:15], s47 offen{XS}")
        else:
            k(f"s_mov_b32 s47, {ST}")
            k(f"buffer_load_dwordx2 v[16:17], v4, s[12:15], s47 offen{XS}")
    def cs_loads():
        k("s_lshl_b32 s47, s26, 5")
        k("v_add_u32 v5, s47, v2")
        k(f"s_mul_i32 s47, s25, {TN}")
        k("v_add_u32 v6, s47, v5")
        k("v_lshlrev_b32 v7, 2, v6")
        k(f"v_mul_u32_u24 v8, {5*NCOL*4}, v3")
        k("v_add_u32 v7, v7, v8")
        for p in range(5):
            k(f"s_mov_b32 s47, {CSP + p*NCOL*4}")
            k(f"buffer_load_dword v{32+p}, v7, s[12:15], s47 offen")
        if kind == "w1":
            k.srd(16, 8, 0, 1536 * 2)
            k("v_lshlrev_b32 v9, 1, v6")
            k("buffer_load_ushort v38, v9, s[16:19], 0 offen")
    if early:
        for c_ in range(first):
            dma(c_, "w")
        k("v_and_b32 v2, 31, v0")
        k("v_lshrrev_b32 v3, 5, v0")
        cs_loads()
        k("s_lshr_b32 s67, s26, 1")
        k("s_lshl_b32 s46, s24, 1")
        k("s_add_u32 s67, s67, s46")
        fz.poll(67, 8)
        dma(0, "x")
        stats_loads()
        for c_ in range(1, first):
            dma(c_, "x")
        k(f"s_waitcnt vmcnt({4*(first-1)})")
    else:
        dma(0)
        k("v_and_b32 v2, 31, v0")
        k("v_lshrrev_b32 v3, 5, v0")
        stats_loads()
        cs_loads()
        for c_ in range(1, first):
            dma(c_)
        k(f"s_waitcnt vmcnt({nD*(first-1)})")
    k.stamp(2)
    k("s_barrier")
    if NPART == 16:
        for p in range(1, 8):
            k(f"v_add_f32 v16, v16, v{16+2*p}")
            k(f"v_add_f32 v17, v17, v{17+2*p}")
        k("v_mov_b32 v18, v16")
        k("v_mov_b32 v19, v17")
        k("s_nop 1")
        k("v_permlane32_swap_b32 v16, v18")
        k("v_permlane32_swap_b32 v17, v19")
        k("s_nop 1")
        k("v_add_f32 v16, v16, v18")
        k("v_add_f32 v17, v17, v19")
    k(f"v_mul_f32 v16, {f2u(1/640):#x}, v16")
    k(f"v_mul_f32 v17, {f2u(1/640):#x}, v17")
    k("v_fma_f32 v17, -v16, v16, v17")
    k("v_max_f32 v17, 0, v17")
    k(f"v_add_f32 v18, {f2u(1e-5):#x}, v17")
    k("v_rsq_f32 v18, v18")
    if kind == "w1":
        k("s_nop 0")
        k("v_mul_f32 v19, v18, v18")
        k("v_mul_f32 v19, v19, v17")
        k(f"v_add_f32 v19, {f2u(1e-5):#x}, v19")
        k("v_rsq_f32 v19, v19")
        k("s_nop 0")
        k("v_mul_f32 v18, v18, v19")
    else:
        k("s_cmp_lt_u32 s25, 5")
        k(f"s_cselect_b32 s46, {f2u(QSCALE):#x}, 1.0")
        k("v_mul_f32 v18, s46, v18")
    k("s_nop 0")
    k("v_mul_f32 v19, v18, v16")
    for p in range(1, 5):
        k(f"v_add_f32 v32, v32, v{32+p}")
    k("v_mov_b32 v33, v32")
    k("s_nop 1")
    k("v_permlane32_swap_b32 v32, v33")
    k("s_nop 1")
    k("v_add_f32 v32, v32, v33")
    k("v_cmp_eq_u32 vcc, 0, v3")
    k("s_lshl_b32 s47, s26, 7")
    k("v_lshlrev_b32 v2, 2, v2")
    k("v_add_u32 v2, s47, v2")
    k(f"v_add_u32 v2, {STATS}, v2")
    k("v_lshl_add_u32 v2, v3, 9, v2")
    k("v_cndmask_b32 v18, v19, v18, vcc")
    if kind == "w1":
        k("v_lshlrev_b32 v38, 16, v38")
        k("v_cndmask_b32 v32, v38, v32, vcc")
    k("ds_write_b32 v2, v18")
    k("ds_write_b32 v2, v32 offset:1024")
    k("s_waitcnt lgkmcnt(0)")
    issued = first
    free = [int(d[4:]) for d in dbg if d.startswith("free")]
    if free:
        for c_ in range(first, NCH):
            dma(c_)
            k(f"s_waitcnt vmcnt({free[0]})")
        k("s_waitcnt vmcnt(0)")
        for i in range(1, NCH): k("s_barrier")
    else:
        ring_tail(k, NCH, NSLOT, dma, nD, issued, fz)
    fin_loader(k, fz, kidx)

    k.lab("compute")
    ACC = 64
    FA = [128, 128 + 4 * NB]
    FB = [160, 160 + 4 * TB]
    AW, AX = 1, 3
    HH, TL = 17, 16
    if kind == "qkv":
        k("s_and_b32 s27, s26, 1")
        k("s_lshr_b32 s36, s26, 1")
    else:
        k("s_mov_b32 s27, 0")
        k("s_mov_b32 s36, s26")
    k(f"v_lshrrev_b32 v{HH}, 5, v0")
    k(f"v_and_b32 v{TL}, 31, v0")
    k(f"v_mul_u32_u24 v20, {TN*16}, v{HH}")
    k(f"v_lshl_add_u32 v20, v{TL}, 4, v20")
    k(f"s_mul_i32 s37, s27, {NB*512}")
    k(f"v_add_u32 v{AW}, s37, v20")
    k(f"v_add_u32 v{AW+1}, {2*SLOT}, v{AW}")
    k(f"v_lshlrev_b32 v20, 4, v0")
    k(f"s_mul_i32 s37, s36, {TB*4096}")
    k(f"s_add_u32 s37, s37, {WB}")
    k(f"v_add_u32 v{AX}, s37, v20")
    k(f"v_add_u32 v{AX+1}, {2*SLOT}, v{AX}")

    def reads(step):
        ch, ks = divmod(step, 4)
        slot = (ch + rot) % NSLOT
        half, sl = divmod(slot, 2)
        st = step & 1
        out = []
        for nb in range(NB):
            d = FA[st] + nb * 4
            out.append(f"ds_read_b128 v[{d}:{d+3}], v{AW+half} offset:{sl*SLOT + ks*2*TN*16 + nb*512}")
        for tb in range(TB):
            d = FB[st] + tb * 4
            out.append(f"ds_read_b128 v[{d}:{d+3}], v{AX+half} offset:{sl*SLOT + ks*1024 + tb*4096}")
        return out

    def mainloop(swap):
        nx0 = PFT.next
        k.stamp(1)
        k("s_barrier")
        k.stamp(2)
        for r in reads(0):
            k(r)
        NS = NCH * 4
        for step in range(NS):
            st = step & 1
            bar = step % 4 == 3 and step + 1 < NS
            cw = CW and not bar
            if not cw: k("s_waitcnt lgkmcnt(0)")
            if bar:
                k("s_barrier")
            rd = reads(step + 1) if step + 1 < NS else []
            if CW:
                wr, xr = rd[:NB], rd[NB:]
                rd = []
                for j in range(max(NB, TB)):
                    rd += wr[j:j+1] + xr[j:j+1]
            mf = []
            for nb in range(NB):
                for tb in range(TB):
                    d = ACC + (nb * TB + tb) * 16
                    a = FA[st] + nb * 4
                    b = FB[st] + tb * 4
                    c = "0" if step == 0 else f"v[{d}:{d+15}]"
                    if swap:
                        mf.append(f"v_mfma_f32_32x32x16_bf16 v[{d}:{d+15}], v[{b}:{b+3}], v[{a}:{a+3}], {c}")
                    else:
                        mf.append(f"v_mfma_f32_32x32x16_bf16 v[{d}:{d+15}], v[{a}:{a+3}], v[{b}:{b+3}], {c}")
            def pos(nb, tb):
                order = []
                for j in range(max(NB, TB)):
                    if j < NB: order.append(("w", j))
                    if j < TB: order.append(("x", j))
                return max(order.index(("w", nb)), order.index(("x", tb))), len(order)
            ri = 0
            issued_now = 0
            i = 0
            lastw = None
            for nb in range(NB):
                for tb in range(TB):
                    m = mf[i]
                    if cw and step > 0:
                        p, n_ = pos(nb, tb)
                        w_ = (n_ - 1 - p) + issued_now
                        if lastw is None or p > lastw:
                            k(f"s_waitcnt lgkmcnt({w_})")
                            lastw = p
                    elif cw and step == 0 and i == 0:
                        k("s_waitcnt lgkmcnt(0)")
                    if "nomfma" not in dbg: k(m)
                    nper = 2 if not CW else CWN
                    for r in rd[ri:ri + nper]:
                        if "nords" not in dbg: k(r)
                        issued_now += 1
                    ri += nper
                    if i == 2 and step % 4 == 3: PFT.at_barrier()
                    i += 1
            assert ri >= len(rd)
        k.stamp(3)
        PFT.next = nx0

    k("s_waitcnt lgkmcnt(0)")
    PFT = TilePF(k, pfd, first, NCH, 8, 9, 10, 56)
    if pfd:
        k.srd(56, 6, 0, WS_SIZE)
        PS = PFS
        sh = {128: 7, 64: 6, 32: 5}[PS]
        nw = WB // 16 // PS
        NWL = 1024 // PS
        nx = 512 // PS
        k("s_and_b32 s37, s24, 3")
        k(f"s_mul_i32 s37, s37, {WB//4}")
        k(f"s_mul_i32 s38, s26, {WB//16}")
        k("s_add_u32 s37, s37, s38")
        k(f"s_mul_i32 s38, s25, {80*TN*16}")
        k("s_add_u32 s37, s37, s38")
        k(f"s_add_u32 s37, s37, {WS_W + first*WB}")
        k("s_and_b32 s38, s20, 1")
        k(f"s_mul_i32 s38, s38, {7 if kind == 'qkv' else 8}")
        k("s_sub_u32 s38, s25, s38")
        k("s_lshr_b32 s39, s38, 1")
        k("s_lshl_b32 s40, s24, 2")
        k("s_add_u32 s39, s39, s40")
        k("s_mul_i32 s39, s39, 40960")
        k("s_and_b32 s38, s38, 1")
        k("s_lshl_b32 s38, s38, 11")
        k("s_add_u32 s39, s39, s38")
        k("s_lshl_b32 s38, s26, 9")
        k("s_add_u32 s39, s39, s38")
        k(f"s_add_u32 s39, s39, {XSRC + first*4096 - NWL*PS}")
        k(f"v_lshlrev_b32 v8, {sh}, v0")
        k("v_mov_b32 v11, s39")
        k("v_mov_b32 v12, s37")
        k(f"v_cmp_gt_u32 vcc, {NWL}, v0")
        k(f"v_mov_b32 v9, 4096")
        k(f"v_mov_b32 v13, {WB}")
        k("v_cndmask_b32 v11, v11, v12, vcc")
        k("v_cndmask_b32 v9, v9, v13, vcc")
        k("v_add_u32 v8, v11, v8")
        k(f"v_cmp_gt_u32 vcc, {NWL+nx}, v0")
        k("v_mov_b32 v12, 0x80000000")
        k("s_nop 0")
        k("v_cndmask_b32 v8, v12, v8, vcc")
        if nw < NWL:
            k(f"v_subrev_u32 v13, {nw}, v0")
            k(f"v_cmp_gt_u32 vcc, {NWL-nw}, v13")
            k("s_nop 1")
            k("v_cndmask_b32 v8, v8, v12, vcc")
        PFT.start()
    if kind == "qkv":
        k("s_cmp_ge_u32 s25, 10")
        k(f"s_cbranch_scc1 {k.ref('vpath')}")
        pre_qk(k, HH, TL)
        mainloop(False)
        epi_qk(k, ACC, STATS, HH, TL)
        fin_compute(k, fz, kidx)
        k.lab("vpath")
        pre_v(k, HH, TL)
        mainloop(True)
        epi_v(k, ACC, STATS, HH, TL)
        fin_compute(k, fz, kidx)
    else:
        mainloop(False)
        epi_w1(k, ACC, STATS, HH, TL, NS_=(" ; nosc" if (fz and fz.xl and "h" not in XSC) else ""))
        fin_compute(k, fz, kidx)
    return k


def gen_qkv_raw(name, kidx=0, dbg=(), first=2, pfd=0, zflags=False):
    NWG, NB, TB, TN = 240, 2, 2, 128
    WB = 16384
    SLOT = 2 * WB
    NSLOT = 4
    NCH = 10
    STATS = NSLOT * SLOT
    LDS = STATS + 2048
    k = Kern(name, NWG, 512, LDS, vgpr=256)
    k(f"s_cmp_ge_u32 s2, {NWG}")
    k(f"s_cbranch_scc1 {k.ref('end')}")
    k.stamp(0)
    k.karg(8, 0)
    k.karg(10, 8)
    k.karg(6, 80)
    wave_id(k, 26)
    k("s_and_b32 s20, s2, 7")
    k("s_lshr_b32 s21, s2, 3")
    k("s_and_b32 s22, s20, 1")
    k("s_mul_i32 s22, s22, 30")
    k("s_add_u32 s22, s22, s21")
    k("s_lshr_b32 s25, s22, 2")
    k("s_and_b32 s22, s22, 3")
    k("s_lshr_b32 s23, s20, 1")
    k("s_lshl_b32 s23, s23, 2")
    k("s_add_u32 s24, s23, s22")
    k("s_cmp_lt_u32 s26, 4")
    k(f"s_cbranch_scc1 {k.ref('compute')}")
    k("s_sub_u32 s26, s26, 4")
    VW, VX = 4, 8
    k("v_lshrrev_b32 v1, 4, v0")
    k("v_and_b32 v2, 15, v0")
    k("v_lshlrev_b32 v3, 2, v1")
    k("v_xor_b32 v2, v2, v3")
    k("v_mul_u32_u24 v1, 3840, v1")
    k(f"v_lshl_add_u32 v{VW}, v2, 4, v1")
    for i in range(1, 4):
        k(f"v_add_u32 v{VW+i}, {4*3840-1024}, v{VW+i-1}")
    k("v_lshrrev_b32 v1, 3, v0")
    k("v_and_b32 v2, 7, v0")
    k("v_lshrrev_b32 v3, 1, v1")
    k("v_xor_b32 v2, v2, v3")
    k("v_mul_u32_u24 v1, 1280, v1")
    k(f"v_lshl_add_u32 v{VX}, v2, 4, v1")
    k("v_xor_b32 v2, 4, v2")
    k("v_lshl_add_u32 v2, v2, 4, v1")
    k(f"v_add_u32 v{VX+1}, {8*1280-1024}, v2")
    k(f"v_add_u32 v{VX+2}, {2*(8*1280-1024)}, v{VX}")
    k(f"v_add_u32 v{VX+3}, {3*(8*1280-1024)}, v2")
    k("s_lshl_b32 s40, s25, 8")
    k(f"s_mul_i32 s41, s26, {16*3840}")
    k("s_add_u32 s40, s40, s41")
    k("s_lshl_b32 s42, s26, 12")
    k("s_lshl_b32 s43, s24, 2")
    k("s_add_u32 s43, s43, s26")
    k(f"s_mul_i32 s43, s43, {32*1280}")
    k(f"s_add_u32 s44, s42, {WB}")
    k("s_waitcnt lgkmcnt(0)")
    k.srd(12, 10, 0, 640 * 3840)
    k.srd(16, 8, 0, X_BYTES)
    def dma(ch):
        slot = ch % NSLOT
        k(f"s_add_u32 m0, s42, {slot*SLOT}")
        k(f"s_add_u32 s45, s40, {ch*64*3840}")
        for i in range(4):
            k(f"buffer_load_dwordx4 v{VW+i}, s[12:15], s45 offen offset:{i*1024} lds")
        k(f"s_add_u32 m0, s44, {slot*SLOT}")
        k(f"s_add_u32 s45, s43, {ch*128}")
        for i in range(4):
            k(f"buffer_load_dwordx4 v{VX+i}, s[16:19], s45 offen offset:{i*1024} lds")
    k.stamp(1)
    def pre(): k.stamp(2)
    ring_loader(k, NCH, NSLOT, dma, 8, pre_b0=pre, first=first)
    if zflags:
        k(f"s_cmp_ge_u32 s2, {NFLAGSET*4}")
        k(f"s_cbranch_scc1 {k.ref('zdone')}")
        k("s_cmp_lg_u32 s26, 0")
        k(f"s_cbranch_scc1 {k.ref('zdone')}")
        k.srd(48, 6, WS_FLAG, NFLAGSET*4096)
        k("s_lshl_b32 s45, s2, 10")
        k("v_lshlrev_b32 v1, 4, v0")
        for r in range(4):
            k(f"v_mov_b32 v{12+r}, 0")
        k("buffer_store_dwordx4 v[12:15], v1, s[48:51], s45 offen")
        k("s_waitcnt vmcnt(0)")
        k.lab("zdone")
    k.stamp(4)
    k("s_add_u32 s26, s26, 4")
    k.stamp_flush(6, kidx, 5, 26)
    k.lab("end")
    k("s_endpgm")

    k.lab("compute")
    ACC = 64
    FA = [128, 128 + 4 * NB]
    FB = [160, 160 + 4 * TB]
    AW, AX = 2, 192
    HH, TL = 17, 16
    S1, S2, TMP, SEL, CS = 48, 50, 52, 60, 32
    k("s_and_b32 s27, s26, 1")
    k("s_lshr_b32 s36, s26, 1")
    k(f"v_lshrrev_b32 v{HH}, 5, v0")
    k(f"v_and_b32 v{TL}, 31, v0")
    k("v_lshrrev_b32 v20, 4, v0")
    k("v_bfe_u32 v21, v0, 2, 2")
    k("v_and_b32 v22, 3, v0")
    k("v_lshrrev_b32 v23, 1, v20")
    k("v_lshl_add_u32 v23, v23, 3, v21")
    k("v_and_b32 v18, 1, v20")
    k("v_lshlrev_b32 v18, 1, v18")
    k("v_lshrrev_b32 v19, 1, v22")
    k("v_add_u32 v18, v18, v19")
    k("s_lshl_b32 s37, s27, 3")
    k("v_add_u32 v18, s37, v18")
    k("v_lshlrev_b32 v19, 2, v21")
    k("v_xor_b32 v18, v18, v19")
    k("v_lshlrev_b32 v18, 4, v18")
    k("v_lshl_add_u32 v18, v23, 8, v18")
    k("v_and_b32 v19, 1, v22")
    k(f"v_lshl_add_u32 v{AW}, v19, 3, v18")
    k(f"v_add_u32 v{AW+1}, {2*SLOT}, v{AW}")
    k(f"v_xor_b32 v{AW+2}, 64, v{AW}")
    k(f"v_add_u32 v{AW+3}, {2*SLOT}, v{AW+2}")
    k(f"v_bfe_u32 v18, v{TL}, 1, 3")
    k(f"v_xor_b32 v18, v18, v{HH}")
    k("v_lshlrev_b32 v18, 4, v18")
    k(f"v_lshl_add_u32 v18, v{TL}, 7, v18")
    k("s_lshl_b32 s37, s36, 13")
    k("s_lshl_b32 s38, s27, 12")
    k("s_add_u32 s37, s37, s38")
    k(f"s_add_u32 s37, s37, {WB}")
    k(f"v_add_u32 v{AX}, s37, v18")
    for sl_ in range(2):
        for ks in range(4):
            d = AX + (sl_ * 4 + ks) * 2
            x = (sl_ << 12) | (ks << 5)
            if x: k(f"v_xor_b32 v{d}, {x}, v{AX}")
            k(f"v_add_u32 v{d+1}, {2*SLOT}, v{d}")
    k("v_and_b32 v18, 15, v0")
    k("v_bfe_u32 v19, v0, 4, 1")
    k("v_cmp_eq_u32 vcc, v18, v19")
    k("v_mov_b32 v19, 0x3f803f80")
    k("s_nop 0")
    k(f"v_cndmask_b32 v{SEL}, 0, v19, vcc")
    for r in range(1, 4):
        k(f"v_mov_b32 v{SEL+r}, v{SEL}")
    for r in range(4):
        k(f"v_mov_b32 v{S1+r}, 0")

    def reads(step):
        ch, ks = divmod(step, 4)
        slot = ch % NSLOT
        half, sl = divmod(slot, 2)
        st = step & 1
        out = []
        for tb in range(TB):
            d = FB[st] + tb * 4
            out.append(f"ds_read_b128 v[{d}:{d+3}], v{AX+(tb*4+ks)*2+half} offset:{sl*SLOT}")
        for nb in range(NB):
            d = FA[st] + nb * 4
            out.append(f"ds_read_b64_tr_b16 v[{d}:{d+1}], v{AW+nb*2+half} offset:{sl*SLOT + ks*4096}")
            out.append(f"ds_read_b64_tr_b16 v[{d+2}:{d+3}], v{AW+nb*2+half} offset:{sl*SLOT + ks*4096 + 1024}")
        return out

    def mainloop(swap):
        nx0 = PFT.next
        k.stamp(1)
        k("s_barrier")
        k.stamp(2)
        for r in reads(0):
            k(r)
        NS = NCH * 4
        for step in range(NS):
            st = step & 1
            k("s_waitcnt lgkmcnt(0)")
            if step % 4 == 3 and step + 1 < NS:
                k("s_barrier")
                PFT.at_barrier()
            rd = reads(step + 1) if step + 1 < NS else []
            mf = []
            for nb in range(NB):
                for tb in range(TB):
                    d = ACC + (nb * TB + tb) * 16
                    a = FA[st] + nb * 4
                    b = FB[st] + tb * 4
                    c = "0" if step == 0 else f"v[{d}:{d+15}]"
                    if swap:
                        mf.append(f"v_mfma_f32_32x32x16_bf16 v[{d}:{d+15}], v[{b}:{b+3}], v[{a}:{a+3}], {c}")
                    else:
                        mf.append(f"v_mfma_f32_32x32x16_bf16 v[{d}:{d+15}], v[{a}:{a+3}], v[{b}:{b+3}], {c}")
            for nb in range(NB):
                d = CS + 4 * nb
                a = FA[st] + nb * 4
                c = "0" if step == 0 else f"v[{d}:{d+3}]"
                mf.insert(2 + 3 * nb, f"v_mfma_f32_16x16x32_bf16 v[{d}:{d+3}], v[{SEL}:{SEL+3}], v[{a}:{a+3}], {c}")
            va = []
            for r in range(4):
                x = FB[st] + r
                t = TMP + 2 * (r & 1)
                va += [f"v_and_b32 v{t}, 0xffff0000, v{x}", f"v_lshlrev_b32 v{t+1}, 16, v{x}",
                       f"v_add_f32 v{S1}, v{S1}, v{t}", f"v_fmac_f32 v{S2}, v{t}, v{t}",
                       f"v_add_f32 v{S1+1}, v{S1+1}, v{t+1}", f"v_fmac_f32 v{S2+1}, v{t+1}, v{t+1}"]
            if "nostat" in dbg: va = []
            ri, vi = 0, 0
            for i, m in enumerate(mf):
                k(m)
                nrd = 1
                for r in rd[ri:ri + nrd]: k(r)
                ri += nrd
                for x in va[vi:vi + 4]: k(x)
                vi += 4
            assert ri >= len(rd) and vi >= len(va)
        k.stamp(3)
        k(f"v_add_f32 v40, v{S1}, v{S1+1}")
        k(f"v_add_f32 v41, v{S2}, v{S2+1}")
        k("v_mov_b32 v42, v40")
        k("v_mov_b32 v43, v41")
        k("s_nop 1")
        k("v_permlane32_swap_b32 v40, v42")
        k("v_permlane32_swap_b32 v41, v43")
        k("s_nop 1")
        k("v_add_f32 v40, v40, v42")
        k("v_add_f32 v41, v41, v43")
        k(f"v_mul_f32 v40, {f2u(1/640):#x}, v40")
        k(f"v_mul_f32 v41, {f2u(1/640):#x}, v41")
        k("v_fma_f32 v41, -v40, v40, v41")
        k("v_max_f32 v41, 0, v41")
        k(f"v_add_f32 v42, {f2u(1e-5):#x}, v41")
        k("v_rsq_f32 v42, v42")
        k("s_cmp_lt_u32 s25, 5")
        k(f"s_cselect_b32 s46, {f2u(QSCALE):#x}, 1.0")
        k("v_mul_f32 v42, s46, v42")
        k("v_mul_f32 v43, v42, v40")
        k(f"v_cmp_eq_u32 vcc, 0, v{HH}")
        k("s_lshl_b32 s37, s36, 8")
        k("s_lshl_b32 s38, s27, 7")
        k("s_add_u32 s37, s37, s38")
        k(f"s_add_u32 s37, s37, {STATS}")
        k(f"v_lshlrev_b32 v44, 2, v{TL}")
        k("v_add_u32 v44, s37, v44")
        k(f"v_lshl_add_u32 v44, v{HH}, 9, v44")
        k("v_cndmask_b32 v42, v43, v42, vcc")
        k("ds_write_b32 v44, v42")
        k("s_lshl_b32 s37, s27, 8")
        k(f"s_add_u32 s37, s37, {STATS+1024}")
        k("v_lshlrev_b32 v45, 2, v0")
        k("v_add_u32 v45, s37, v45")
        k("s_mov_b64 exec, 0xffff")
        for nb in range(NB):
            k(f"ds_write_b32 v45, v{CS+4*nb} offset:{nb*128}")
            k(f"ds_write_b32 v45, v{CS+4*nb+1} offset:{nb*128+64}")
        k("s_mov_b64 exec, -1")
        k("s_waitcnt lgkmcnt(0)")
        k("s_barrier")
        PFT.next = nx0

    k("s_waitcnt lgkmcnt(0)")
    PFT = TilePF(k, pfd, first, NCH, 8, 9, 10, 56)
    if pfd:
        k("s_cmp_lt_u32 s26, 2")
        k("s_cselect_b32 s56, s10, s8")
        k("s_cselect_b32 s57, s11, s9")
        k(f"s_mov_b32 s58, {X_BYTES}")
        k(f"s_cselect_b32 s58, {640*3840}, s58")
        k("s_mov_b32 s59, 0x00020000")
        k(f"s_movk_i32 s41, 128")
        k(f"s_cselect_b32 s41, {64*3840}, s41")
        k("s_cselect_b32 s42, 16, 8")
        k("s_and_b32 s37, s24, 3")
        k("s_lshl_b32 s37, s37, 4")
        k("s_lshl_b32 s38, s26, 3")
        k("s_add_u32 s37, s37, s38")
        k(f"s_add_u32 s37, s37, {first*64}")
        k("s_mul_i32 s37, s37, 3840")
        k("s_lshl_b32 s38, s25, 8")
        k("s_add_u32 s37, s37, s38")
        k("s_and_b32 s38, s20, 1")
        k("s_mul_i32 s38, s38, 7")
        k("s_sub_u32 s38, s25, s38")
        k("s_lshl_b32 s38, s38, 4")
        k("s_lshl_b32 s39, s24, 7")
        k("s_add_u32 s38, s38, s39")
        k("s_and_b32 s39, s26, 1")
        k("s_lshl_b32 s39, s39, 3")
        k("s_add_u32 s38, s38, s39")
        k("s_mul_i32 s38, s38, 1280")
        k(f"s_add_u32 s38, s38, {first*128}")
        k("s_cmp_lt_u32 s26, 2")
        k("s_cselect_b32 s37, s37, s38")
        k("v_lshrrev_b32 v11, 1, v0")
        k("v_mul_u32_u24 v11, 3840, v11")
        k("v_and_b32 v12, 1, v0")
        k("v_lshl_add_u32 v11, v12, 7, v11")
        k("v_mul_u32_u24 v12, 1280, v0")
        k("s_cselect_b64 vcc, -1, 0")
        k("v_mov_b32 v9, s41")
        k("v_cndmask_b32 v8, v12, v11, vcc")
        k("v_add_u32 v8, s37, v8")
        k("v_cmp_gt_u32 vcc, s42, v0")
        k("v_mov_b32 v12, 0x80000000")
        k("s_nop 0")
        k("v_cndmask_b32 v8, v12, v8, vcc")
        PFT.start()
    k("s_cmp_ge_u32 s25, 10")
    k(f"s_cbranch_scc1 {k.ref('vpath')}")
    pre_qk(k, HH, TL, perm=True)
    mainloop(False)
    epi_qk(k, ACC, STATS, HH, TL, perm=True)
    k.stamp(4); k.stamp_flush(6, kidx, 5, 26)
    k("s_endpgm")
    k.lab("vpath")
    pre_v(k, HH, TL, perm=True)
    mainloop(True)
    epi_v(k, ACC, STATS, HH, TL, perm=True)
    k.stamp(4); k.stamp_flush(6, kidx, 5, 26)
    k("s_endpgm")
    return k


def pre_qk(k, HH, TL, perm=False):
    k.srd(48, 6, 0, WS_SIZE)
    k("s_cmp_lt_u32 s25, 5")
    k(f"s_mov_b32 s37, {WS_KV}")
    k(f"s_cselect_b32 s37, {WS_Q}, s37")
    k("s_cselect_b32 s38, 0, 5")
    k("s_movk_i32 s39, 2560")
    k("s_cselect_b32 s39, 1280, s39")
    if KVPAD:
        k(f"s_mov_b32 s40, {163840 + KVPAD}")
        k("s_cselect_b32 s40, 81920, s40")
    else:
        k("s_lshl_b32 s40, s39, 6")
    k("s_sub_u32 s38, s25, s38")
    k("s_lshl_b32 s41, s24, 2")
    k("s_lshl_b32 s42, s36, 1")
    k("s_add_u32 s41, s41, s42")
    k("s_mul_i32 s41, s41, s39")
    k("s_add_u32 s52, s37, s41")
    k("s_add_u32 s53, s52, s39")
    if perm:
        k("s_cmp_eq_u32 s27, 1")
        k("s_cselect_b32 s37, s53, s52")
        k("s_cselect_b32 s53, s52, s53")
        k("s_mov_b32 s52, s37")
    k("s_lshl_b32 s38, s38, 5")
    k("s_lshl_b32 s42, s27, 4")
    k("s_add_u32 s38, s38, s42")
    k(f"v_add_u32 v21, s38, v{HH}")
    k(f"v_lshlrev_b32 v22, 3, v{TL}")
    for nb in range(2):
        for q in range(4):
            d = 24 + nb * 4 + q
            k(f"v_add_u32 v23, {nb*8+2*q}, v21")
            k("v_mul_u32_u24 v18, 205, v23")
            k("v_lshrrev_b32 v18, 10, v18")
            k("v_mul_u32_u24 v19, 5, v18")
            k("v_sub_u32 v23, v23, v19")
            k("v_mul_lo_u32 v18, v18, s40")
            k("v_cmp_gt_u32 vcc, 4, v23")
            k("v_lshrrev_b32 v19, 1, v23")
            k("v_lshl_add_u32 v18, v19, 9, v18")
            k("v_and_b32 v19, 1, v23")
            k("v_lshl_add_u32 v18, v19, 3, v18")
            k("v_cndmask_b32 v19, 0, v22, vcc")
            k("v_add_u32 v18, v18, v22")
            k(f"v_add_u32 v{d}, v18, v19")


def epi_qk(k, ACC, STATS, HH, TL, perm=False):
    NB, TB = 2, 2
    k(f"s_mul_i32 s37, s36, 256")
    k(f"v_lshlrev_b32 v20, 2, v{TL}")
    k(f"v_add_u32 v20, s37, v20")
    k(f"v_add_u32 v20, {STATS}, v20")
    if perm:
        k("s_lshl_b32 s37, s27, 7")
        k("v_xor_b32 v20, s37, v20")
        k("v_xor_b32 v19, 128, v20")
    for tb in range(TB):
        if perm:
            k(f"ds_read_b32 v{32+2*tb}, v{20-tb}")
            k(f"ds_read_b32 v{33+2*tb}, v{20-tb} offset:512")
        else:
            k(f"ds_read_b32 v{32+2*tb}, v20 offset:{tb*128}")
            k(f"ds_read_b32 v{33+2*tb}, v20 offset:{512+tb*128}")
    k(f"v_lshlrev_b32 v21, 4, v{HH}")
    k("s_lshl_b32 s37, s27, 8")
    k("v_add_u32 v21, s37, v21")
    k(f"v_add_u32 v21, {STATS+1024}, v21")
    CS = 128
    for nb in range(NB):
        for q in range(4):
            k(f"ds_read_b128 v[{CS+(nb*4+q)*4}:{CS+(nb*4+q)*4+3}], v21 offset:{nb*128+q*32}")
    k("s_waitcnt lgkmcnt(0)")
    k("s_nop 7")
    n = 0
    for nb in range(NB):
        for q in range(4):
            cs = CS + (nb * 4 + q) * 4
            for tb in range(TB):
                a = ACC + (nb * TB + tb) * 16 + q * 4
                rs, rm = 32 + 2 * tb, 33 + 2 * tb
                t = 36 + 4 * (n % 2)
                for h in range(2):
                    k(f"v_pk_mul_f32 v[{t+2*h}:{t+2*h+1}], v[{cs+2*h}:{cs+2*h+1}], v[{rs}:{rs+1}] op_sel:[0,1] op_sel_hi:[1,1]")
                for h in range(2):
                    k(f"v_pk_fma_f32 v[{t+2*h}:{t+2*h+1}], v[{a+2*h}:{a+2*h+1}], v[{rs}:{rs+1}], v[{t+2*h}:{t+2*h+1}] op_sel_hi:[1,0,1] neg_lo:[0,0,1] neg_hi:[0,0,1]")
                o = 44 + 2 * (n % 4)
                k(f"v_cvt_pk_bf16_f32 v{o}, v{t}, v{t+1}")
                k(f"v_cvt_pk_bf16_f32 v{o+1}, v{t+2}, v{t+3}")
                k(f"buffer_store_dwordx2 v[{o}:{o+1}], v{24+nb*4+q}, s[48:51], s{52+tb} offen")
                n += 1
    k("s_waitcnt vmcnt(0)")


def pre_v(k, HH, TL, perm=False):
    k.srd(48, 6, 0, WS_SIZE)
    k("s_sub_u32 s37, s25, 10")
    k("s_lshl_b32 s37, s37, 7")
    k("s_lshl_b32 s38, s27, 6")
    k("s_add_u32 s37, s37, s38")
    for nb in range(2):
        k(f"v_add_u32 v20, s37, v{TL}")
        if nb: k("v_add_u32 v20, 32, v20")
        k("v_mul_u32_u24 v21, 205, v20")
        k("v_lshrrev_b32 v21, 12, v21")
        k("v_mul_u32_u24 v22, 20, v21")
        k("v_sub_u32 v22, v20, v22")
        k(f"s_mov_b32 s38, {163840 + KVPAD}")
        k("v_mul_lo_u32 v21, v21, s38")
        k("v_lshl_add_u32 v21, v22, 4, v21")
        k(f"v_mul_u32_u24 v22, 320, v{HH}")
        k(f"v_add_u32 v{24+nb}, v21, v22")
    k("s_lshl_b32 s41, s24, 2")
    k("s_lshl_b32 s42, s36, 1")
    k("s_add_u32 s41, s41, s42")
    k("s_mul_i32 s41, s41, 2560")
    k(f"s_add_u32 s52, s41, {WS_KV + 1280}")
    if perm:
        k("s_add_u32 s53, s52, 2560")
        k("s_cmp_eq_u32 s27, 1")
        k("s_cselect_b32 s37, s53, s52")
        k("s_cselect_b32 s53, s52, s53")
        k("s_mov_b32 s52, s37")


def epi_v(k, ACC, STATS, HH, TL, perm=False):
    NB, TB = 2, 2
    k("s_lshl_b32 s37, s36, 8")
    k(f"v_lshlrev_b32 v20, 4, v{HH}")
    k("v_add_u32 v20, s37, v20")
    k(f"v_add_u32 v20, {STATS}, v20")
    RS, RM = 128, 160
    if perm:
        k("s_lshl_b32 s37, s27, 7")
        k("v_xor_b32 v20, s37, v20")
        k("v_xor_b32 v19, 128, v20")
    def sa(tb, off): return f"v{20-tb} offset:{off}" if perm else f"v20 offset:{off+tb*128}"
    for tb in range(TB):
        for q in range(4):
            k(f"ds_read_b128 v[{RS+(tb*4+q)*4}:{RS+(tb*4+q)*4+3}], {sa(tb, q*32)}")
    k(f"v_lshlrev_b32 v21, 2, v{TL}")
    k("s_lshl_b32 s37, s27, 8")
    k("v_add_u32 v21, s37, v21")
    k(f"v_add_u32 v21, {STATS+1024}, v21")
    k("s_waitcnt lgkmcnt(4)")
    for tb in range(TB):
        for q in range(4):
            k(f"ds_read_b128 v[{RM+(tb*4+q)*4}:{RM+(tb*4+q)*4+3}], {sa(tb, 512+q*32)}")
    k("ds_read_b32 v32, v21")
    k("ds_read_b32 v34, v21 offset:128")
    k("s_waitcnt lgkmcnt(0)")
    k("s_nop 7")
    n = 0
    for nb in range(NB):
        cs = 32 + 2 * nb
        for tb in range(TB):
            for qp in range(2):
                o = 44 + 4 * (n % 2)
                for qq in range(2):
                    q = qp * 2 + qq
                    a = ACC + (nb * TB + tb) * 16 + q * 4
                    t = 36 + 4 * qq
                    rs, rm = RS + (tb * 4 + q) * 4, RM + (tb * 4 + q) * 4
                    for h in range(2):
                        k(f"v_pk_mul_f32 v[{t+2*h}:{t+2*h+1}], v[{rm+2*h}:{rm+2*h+1}], v[{cs}:{cs+1}] op_sel_hi:[1,0]")
                    for h in range(2):
                        k(f"v_pk_fma_f32 v[{t+2*h}:{t+2*h+1}], v[{a+2*h}:{a+2*h+1}], v[{rs+2*h}:{rs+2*h+1}], v[{t+2*h}:{t+2*h+1}] neg_lo:[0,0,1] neg_hi:[0,0,1]")
                    k(f"v_cvt_pk_bf16_f32 v{o+2*qq}, v{t}, v{t+1}")
                    k(f"v_cvt_pk_bf16_f32 v{o+2*qq+1}, v{t+2}, v{t+3}")
                k("s_nop 1")
                k(f"v_permlane32_swap_b32 v{o}, v{o+2}")
                k(f"v_permlane32_swap_b32 v{o+1}, v{o+3}")
                k("s_nop 1")
                if perm:
                    k(f"buffer_store_dwordx4 v[{o}:{o+3}], v{24+nb}, s[48:51], s{52+tb} offen offset:{qp*640}")
                else:
                    k(f"buffer_store_dwordx4 v[{o}:{o+3}], v{24+nb}, s[48:51], s52 offen offset:{tb*2560+qp*640}")
                n += 1
    k("s_waitcnt vmcnt(0)")


GK1 = -2.0 * 0.7978845608028654 * 1.4426950408889634
GK2 = GK1 * 0.044715

def epi_w1(k, ACC, STATS, HH, TL, NS_=""):
    NB = 3
    k.srd(48, 6, 0, WS_SIZE)
    k("s_lshl_b32 s37, s36, 7")
    k(f"v_lshlrev_b32 v20, 2, v{TL}")
    k("v_add_u32 v20, s37, v20")
    k(f"v_add_u32 v20, {STATS}, v20")
    k("ds_read_b32 v32, v20")
    k("ds_read_b32 v33, v20 offset:512")
    k(f"v_lshlrev_b32 v21, 4, v{HH}")
    k(f"v_add_u32 v21, {STATS+1024}, v21")
    CS, BI = 128, 176
    for nb in range(NB):
        for q in range(4):
            k(f"ds_read_b128 v[{CS+(nb*4+q)*4}:{CS+(nb*4+q)*4+3}], v21 offset:{nb*128+q*32}")
    k("s_waitcnt lgkmcnt(6)")
    for nb in range(NB):
        for q in range(4):
            k(f"ds_read_b128 v[{BI+(nb*4+q)*4}:{BI+(nb*4+q)*4+3}], v21 offset:{512+nb*128+q*32}")
    k("s_lshl_b32 s39, s24, 2")
    k("s_add_u32 s39, s39, s36")
    k("s_mul_i32 s39, s39, 98304")
    k("s_mul_i32 s40, s25, 6144")
    k("s_add_u32 s39, s39, s40")
    k(f"s_add_u32 s52, s39, {WS_H}")
    k("s_add_u32 s53, s52, 2048")
    k("s_add_u32 s54, s52, 4096")
    k("v_lshlrev_b32 v22, 4, v0")
    k(f"v_mov_b32 v34, {f2u(GK1):#x}")
    k(f"v_mov_b32 v35, {f2u(GK2):#x}")
    k("s_waitcnt lgkmcnt(0)")
    k("s_nop 7")
    n = 0
    for nb in range(NB):
        for qp in range(2):
            o = 56 + 4 * (n % 2)
            for qq in range(2):
                q = qp * 2 + qq
                a = ACC + nb * 16 + q * 4
                cs = CS + (nb * 4 + q) * 4
                b = BI + (nb * 4 + q) * 4
                u, t = 36, 40
                for h in range(2):
                    k(f"v_pk_fma_f32 v[{u+2*h}:{u+2*h+1}], v[{cs+2*h}:{cs+2*h+1}], v[32:33], v[{b+2*h}:{b+2*h+1}] op_sel:[0,1,0] op_sel_hi:[1,1,1] neg_lo:[1,0,0] neg_hi:[1,0,0]")
                for h in range(2):
                    k(f"v_pk_fma_f32 v[{u+2*h}:{u+2*h+1}], v[{a+2*h}:{a+2*h+1}], v[32:33], v[{u+2*h}:{u+2*h+1}] op_sel_hi:[1,0,1]")
                for h in range(2):
                    k(f"v_pk_mul_f32 v[{t+2*h}:{t+2*h+1}], v[{u+2*h}:{u+2*h+1}], v[{u+2*h}:{u+2*h+1}]")
                for h in range(2):
                    k(f"v_pk_fma_f32 v[{t+2*h}:{t+2*h+1}], v[{t+2*h}:{t+2*h+1}], v[34:35], v[34:35] op_sel:[0,1,0] op_sel_hi:[1,1,0]")
                for h in range(2):
                    k(f"v_pk_mul_f32 v[{t+2*h}:{t+2*h+1}], v[{t+2*h}:{t+2*h+1}], v[{u+2*h}:{u+2*h+1}]")
                for i in range(4):
                    k(f"v_exp_f32 v{t+i}, v{t+i}")
                k("s_nop 0")
                for h in range(2):
                    k(f"v_pk_add_f32 v[{t+2*h}:{t+2*h+1}], v[{t+2*h}:{t+2*h+1}], 1.0 op_sel_hi:[1,0]")
                for i in range(4):
                    k(f"v_rcp_f32 v{t+i}, v{t+i}")
                k("s_nop 0")
                for h in range(2):
                    k(f"v_pk_mul_f32 v[{u+2*h}:{u+2*h+1}], v[{u+2*h}:{u+2*h+1}], v[{t+2*h}:{t+2*h+1}]")
                k(f"v_cvt_pk_bf16_f32 v{o+2*qq}, v{u}, v{u+1}")
                k(f"v_cvt_pk_bf16_f32 v{o+2*qq+1}, v{u+2}, v{u+3}")
            k("s_nop 1")
            k(f"v_permlane32_swap_b32 v{o}, v{o+2}")
            k(f"v_permlane32_swap_b32 v{o+1}, v{o+3}")
            k("s_nop 1")
            k(f"buffer_store_dwordx4 v[{o}:{o+3}], v22, s[48:51], s{52+nb} offen offset:{qp*1024}{NS_}")
            n += 1
    k("s_waitcnt vmcnt(0)")


def gen_gemmB(name, kind, layer, kidx=0, dbg=(), first=2, rawres=False, pfd=0, fz=None):
    NWG = 256
    if kind == "wo":
        K, WS_W, XSRC = 640, WS_WO, WS_O
        RES = WS_X0 if layer == 0 else WS_X2
        DST, ST = WS_X1, WS_ST1
    else:
        K, WS_W, XSRC = 1536, WS_W2, WS_H
        RES = WS_X1
        DST, ST = (WS_X2, WS_ST0) if layer == 0 else (None, None)
    NCH = K // 128
    XBLK = K * 64
    WB = 20480
    SLOT = WB + 16384
    NSLOT = 4
    LDS = NSLOT * SLOT
    rot = fz.rot if fz else 0
    HO = bool(fz and fz.wait is not None)
    XS = " sc1" if (HO and not fz.xplain) else ""
    NS_ = " ; nosc" if (fz and fz.xl and "x" not in XSC) else ""
    RSC = " sc1" if (fz and kind == "w2" and not fz.xplain) else ""
    if fz is None:
        k = Kern(name, NWG, 512, LDS, vgpr=128)
        k(f"s_cmp_ge_u32 s2, {NWG}")
        k(f"s_cbranch_scc1 {k.ref('end')}")
        k.stamp(0)
        k.karg(6, 80)
    else:
        k = fz.k
    if kind == "w2":
        k.karg(8, 56)
        if DST is None:
            k.karg(10, 64)
    if rawres:
        assert kind == "wo"
        k.karg(8, 0)
    if fz is None: wave_id(k, 26)
    k("s_and_b32 s20, s2, 7")
    k("s_lshr_b32 s21, s2, 3")
    if fz and fz.xl:
        k("s_and_b32 s22, s21, 3")
        k("s_lshl_b32 s23, s20, 2")
        k("s_add_u32 s24, s23, s22")
        k("s_lshr_b32 s25, s21, 2")
    else:
        k("s_lshr_b32 s22, s20, 1")
        k("s_lshl_b32 s22, s22, 3")
        k("s_and_b32 s23, s21, 7")
        k("s_add_u32 s24, s22, s23")
        k("s_and_b32 s22, s20, 1")
        k("s_lshl_b32 s22, s22, 2")
        k("s_lshr_b32 s23, s21, 3")
        k("s_add_u32 s25, s22, s23")
    k("s_cmp_lt_u32 s26, 4")
    k(f"s_cbranch_scc1 {k.ref('compute')}")
    k("s_sub_u32 s26, s26, 4")
    k("v_lshlrev_b32 v1, 4, v0")
    k(f"s_mul_i32 s40, s25, {K//8*1280}")
    k("s_mul_i32 s41, s26, 5120")
    k("s_add_u32 s40, s40, s41")
    k(f"s_add_u32 s40, s40, {WS_W}")
    k("s_mov_b32 s42, s41")
    k("s_lshl_b32 s43, s24, 1")
    k("s_lshr_b32 s47, s26, 1")
    k("s_add_u32 s43, s43, s47")
    k(f"s_mul_i32 s43, s43, {XBLK}")
    k("s_and_b32 s47, s26, 1")
    k("s_lshl_b32 s47, s47, 12")
    k("s_add_u32 s43, s43, s47")
    k(f"s_add_u32 s43, s43, {XSRC}")
    k("s_lshl_b32 s44, s26, 12")
    k(f"s_add_u32 s44, s44, {WB}")
    k("s_waitcnt lgkmcnt(0)")
    k.srd(12, 6, 0, WS_SIZE)
    def dma(ch, parts="xw"):
        slot = (ch + rot) % NSLOT
        if "x" in parts:
            k(f"s_add_u32 m0, s44, {slot*SLOT}")
            k(f"s_add_u32 s45, s43, {ch*8192}")
            for i in range(4):
                k(f"buffer_load_dwordx4 v1, s[12:15], s45 offen offset:{i*1024}{XS} lds")
        if "w" in parts:
            k(f"s_add_u32 m0, s42, {slot*SLOT}")
            k(f"s_add_u32 s45, s40, {ch*WB}")
            for i in range(4):
                k(f"buffer_load_dwordx4 v1, s[12:15], s45 offen offset:{i*1024} lds")
            k(f"s_add_u32 m0, s42, {slot*SLOT+4096}")
            k(f"s_add_u32 s45, s40, {ch*WB+4096}")
            k(f"buffer_load_dwordx4 v1, s[12:15], s45 offen lds")
    k.stamp(1)
    def pre(): k.stamp(2)
    def pre_issue():
        for c_ in range(first):
            dma(c_, "w")
        if kind == "wo":
            k("s_lshl_b32 s67, s24, 1")
            k("s_lshr_b32 s47, s26, 1")
            k("s_add_u32 s67, s67, s47")
            fz.poll(67, 32)
        else:
            k("s_lshr_b32 s67, s24, 1")
            fz.poll(67, 16)
        for c_ in range(first):
            dma(c_, "x")
        return 4 * (first - 1)
    if fz: fz.mode_publish()
    ring_loader(k, NCH, NSLOT, dma, 9, pre_b0=pre, first=first, pre_issue=(pre_issue if HO else None), fz=fz)
    fin_loader(k, fz, kidx)

    k.lab("compute")
    ACC, FA0, FB0, RS, BI = 32, 64, 88, 104, 116
    AW, AX = 1, 3
    k("s_and_b32 s27, s26, 1")
    k("s_lshr_b32 s36, s26, 1")
    k("v_lshrrev_b32 v17, 4, v0")
    k("v_and_b32 v16, 15, v0")
    k("v_mul_u32_u24 v20, 1280, v17")
    k("v_lshl_add_u32 v20, v16, 4, v20")
    k("s_mul_i32 s37, s27, 768")
    k(f"v_add_u32 v{AW}, s37, v20")
    k(f"v_add_u32 v{AW+1}, {2*SLOT}, v{AW}")
    k("v_lshlrev_b32 v20, 9, v17")
    k("v_lshl_add_u32 v20, v16, 4, v20")
    k("s_lshl_b32 s37, s36, 13")
    k(f"s_add_u32 s37, s37, {WB}")
    k(f"v_add_u32 v{AX}, s37, v20")
    k(f"v_add_u32 v{AX+1}, {2*SLOT}, v{AX}")
    k("v_lshrrev_b32 v20, 1, v17")
    k("v_lshlrev_b32 v20, 9, v20")
    k("v_lshl_add_u32 v20, v16, 4, v20")
    k("v_and_b32 v21, 1, v17")
    k("v_lshl_add_u32 v20, v21, 3, v20")
    k("s_lshl_b32 s38, s24, 1")
    k("s_add_u32 s38, s38, s36")
    k("s_mul_i32 s39, s38, 40960")
    k("s_mul_i32 s40, s25, 5120")
    k("s_add_u32 s39, s39, s40")
    k("s_mul_i32 s40, s27, 3072")
    k("s_add_u32 s39, s39, s40")
    if rawres:
        k("v_mul_u32_u24 v20, 1280, v16")
        k("v_lshl_add_u32 v20, v17, 3, v20")
        k(f"v_add_u32 v21, {16*1280}, v20")
        k(f"s_mul_i32 s52, s38, {32*1280}")
        k("s_mul_i32 s40, s25, 160")
        k("s_add_u32 s52, s52, s40")
        k("s_mul_i32 s40, s27, 96")
        k("s_add_u32 s52, s52, s40")
    else:
        k(f"s_add_u32 s52, s39, {RES}")
    k("s_waitcnt lgkmcnt(0)")
    k.srd(48, 6, 0, WS_SIZE)
    if rawres:
        k.srd(56, 8, 0, X_BYTES)
    PFT = TilePF(k, pfd, first, NCH, 5, 6, 7, 48)
    if pfd:
        k("s_and_b32 s41, s25, 3")
        k("s_lshr_b32 s42, s41, 1")
        k("s_lshl_b32 s43, s24, 1")
        k("s_add_u32 s42, s42, s43")
        k(f"s_mul_i32 s42, s42, {XBLK}")
        k("s_and_b32 s41, s41, 1")
        k("s_lshl_b32 s41, s41, 12")
        k("s_add_u32 s42, s42, s41")
        k("s_lshl_b32 s41, s26, 10")
        k("s_add_u32 s42, s42, s41")
        k(f"s_add_u32 s42, s42, {XSRC + first*8192}")
        k("s_and_b32 s41, s24, 7")
        k("s_mul_i32 s41, s41, 2560")
        k("s_mul_i32 s43, s26, 640")
        k("s_add_u32 s41, s41, s43")
        k(f"s_mul_i32 s43, s25, {K//8*1280}")
        k("s_add_u32 s41, s41, s43")
        k(f"s_add_u32 s41, s41, {WS_W + first*WB - 8*128}")
        k("v_lshlrev_b32 v5, 7, v0")
        k("v_mov_b32 v8, s41")
        k("v_mov_b32 v9, s42")
        k("v_cmp_gt_u32 vcc, 8, v0")
        k(f"v_mov_b32 v6, {WB}")
        k("v_mov_b32 v10, 8192")
        k("v_cndmask_b32 v8, v8, v9, vcc")
        k("v_cndmask_b32 v6, v6, v10, vcc")
        k("v_add_u32 v5, v8, v5")
        k("v_cmp_gt_u32 vcc, 13, v0")
        k("v_mov_b32 v9, 0x80000000")
        k("s_nop 0")
        k("v_cndmask_b32 v5, v9, v5, vcc")
        PFT.start()

    def path(NB):
        nx0 = PFT.next
        for nb in range(NB):
            for tb in range(2):
                d = RS + (nb * 2 + tb) * 2
                if rawres:
                    k(f"buffer_load_dwordx2 v[{d}:{d+1}], v{20+tb}, s[56:59], s52 offen offset:{nb*32}")
                else:
                    k(f"buffer_load_dwordx2 v[{d}:{d+1}], v20, s[48:51], s52 offen offset:{nb*1024+tb*256}{RSC}")
        if kind == "w2":
            k.srd(56, 8, 0, 1280)
            k("s_mul_i32 s40, s25, 160")
            k("s_mul_i32 s41, s27, 96")
            k("s_add_u32 s40, s40, s41")
            k("v_lshlrev_b32 v21, 3, v17")
            for nb in range(NB):
                k(f"buffer_load_dwordx2 v[{BI+2*nb}:{BI+2*nb+1}], v21, s[56:59], s40 offen offset:{nb*32}")
        def reads(step):
            ch, ks = divmod(step, 4)
            slot = (ch + rot) % NSLOT
            half, sl = divmod(slot, 2)
            st = step & 1
            out = []
            for tb in range(2):
                d = FB0 + st * 8 + tb * 4
                out.append(f"ds_read_b128 v[{d}:{d+3}], v{AX+half} offset:{sl*SLOT + ks*2048 + tb*256}")
            for nb in range(NB):
                d = FA0 + st * 12 + nb * 4
                out.append(f"ds_read_b128 v[{d}:{d+3}], v{AW+half} offset:{sl*SLOT + ks*5120 + nb*256}")
            return out
        k.stamp(1)
        k("s_barrier")
        k.stamp(2)
        for r in reads(0):
            k(r)
        NS = NCH * 4
        for step in range(NS):
            st = step & 1
            k("s_waitcnt lgkmcnt(0)")
            if step % 4 == 3 and step + 1 < NS:
                k("s_barrier")
                PFT.at_barrier()
            rd = reads(step + 1) if step + 1 < NS else []
            mf = []
            for nb in range(NB):
                for tb in range(2):
                    d = ACC + (nb * 2 + tb) * 4
                    a = FA0 + st * 12 + nb * 4
                    b = FB0 + st * 8 + tb * 4
                    c = "0" if step == 0 else f"v[{d}:{d+3}]"
                    mf.append(f"v_mfma_f32_16x16x32_bf16 v[{d}:{d+3}], v[{a}:{a+3}], v[{b}:{b+3}], {c}")
            ri = 0
            for i, m in enumerate(mf):
                if "nomfma" not in dbg: k(m)
                for r in rd[ri:ri + 2]:
                    if "nords" not in dbg: k(r)
                ri += 2
            assert ri >= len(rd)
        k.stamp(3)
        PFT.next = nx0
        if fz and fz.xl and fz.p == 0: fz.mode_issue(48, 250)
        k("s_waitcnt vmcnt(0)")
        want_stats = ST is not None
        if want_stats:
            for r in (8, 9, 10, 11):
                k(f"v_mov_b32 v{r}, 0")
        k("v_lshlrev_b32 v22, 4, v0")
        if DST is None:
            k.srd(60, 10, 0, X_BYTES)
            k("v_and_b32 v23, 31, v0")
            k("v_mul_u32_u24 v23, 1280, v23")
            k("v_lshrrev_b32 v24, 5, v0")
            k("v_lshl_add_u32 v23, v24, 4, v23")
            k("s_mul_i32 s40, s38, 40960")
            k("s_mul_i32 s41, s25, 160")
            k("s_add_u32 s40, s40, s41")
            k("s_mul_i32 s41, s27, 96")
            k("s_add_u32 s53, s40, s41")
        else:
            k(f"s_add_u32 s53, s39, {DST}")
        k("s_nop 4")
        for nb in range(NB):
            o = 24 + 4 * (nb % 2)
            for tb in range(2):
                a = ACC + (nb * 2 + tb) * 4
                d = RS + (nb * 2 + tb) * 2
                t = 12
                k(f"v_lshlrev_b32 v{t}, 16, v{d}")
                k(f"v_and_b32 v{t+1}, 0xffff0000, v{d}")
                k(f"v_lshlrev_b32 v{t+2}, 16, v{d+1}")
                k(f"v_and_b32 v{t+3}, 0xffff0000, v{d+1}")
                k(f"v_pk_add_f32 v[{a}:{a+1}], v[{a}:{a+1}], v[{t}:{t+1}]")
                k(f"v_pk_add_f32 v[{a+2}:{a+3}], v[{a+2}:{a+3}], v[{t+2}:{t+3}]")
                if kind == "w2":
                    b = BI + 2 * nb
                    k(f"v_lshlrev_b32 v{t+4}, 16, v{b}")
                    k(f"v_and_b32 v{t+5}, 0xffff0000, v{b}")
                    k(f"v_lshlrev_b32 v{t+6}, 16, v{b+1}")
                    k(f"v_and_b32 v{t+7}, 0xffff0000, v{b+1}")
                    k(f"v_pk_add_f32 v[{a}:{a+1}], v[{a}:{a+1}], v[{t+4}:{t+5}]")
                    k(f"v_pk_add_f32 v[{a+2}:{a+3}], v[{a+2}:{a+3}], v[{t+6}:{t+7}]")
                if want_stats:
                    for r in range(4):
                        k(f"v_add_f32 v{8+tb}, v{8+tb}, v{a+r}")
                        k(f"v_fmac_f32 v{10+tb}, v{a+r}, v{a+r}")
                k(f"v_cvt_pk_bf16_f32 v{o+2*tb}, v{a}, v{a+1}")
                k(f"v_cvt_pk_bf16_f32 v{o+2*tb+1}, v{a+2}, v{a+3}")
            k("s_nop 1")
            k(f"v_permlane16_swap_b32 v{o}, v{o+2}")
            k(f"v_permlane16_swap_b32 v{o+1}, v{o+3}")
            k("s_nop 1")
            if DST is None:
                k(f"buffer_store_dwordx4 v[{o}:{o+3}], v23, s[60:63], s53 offen offset:{nb*32}")
            else:
                k(f"buffer_store_dwordx4 v[{o}:{o+3}], v22, s[48:51], s53 offen offset:{nb*1024}{NS_}")
        if want_stats:
            k("v_permlane16_swap_b32 v8, v9")
            k("v_permlane16_swap_b32 v10, v11")
            k("s_nop 1")
            k("v_add_f32 v8, v8, v9")
            k("v_add_f32 v10, v10, v11")
            k("s_nop 1")
            k("v_permlane32_swap_b32 v8, v10")
            k("s_nop 1")
            k("v_add_f32 v8, v8, v10")
            k("v_and_b32 v12, 31, v0")
            k("v_lshlrev_b32 v12, 3, v12")
            k("v_lshrrev_b32 v13, 5, v0")
            k("v_lshl_add_u32 v12, v13, 2, v12")
            k("s_lshl_b32 s40, s25, 1")
            k("s_add_u32 s40, s40, s27")
            k("s_lshl_b32 s40, s40, 14")
            k("s_lshl_b32 s41, s38, 8")
            k("s_add_u32 s40, s40, s41")
            k(f"s_add_u32 s40, s40, {ST}")
            k(f"buffer_store_dword v8, v12, s[48:51], s40 offen{NS_}")
        k("s_waitcnt vmcnt(0)")
        fin_compute(k, fz, kidx)
    k("s_cmp_eq_u32 s27, 1")
    k(f"s_cbranch_scc1 {k.ref('p2')}")
    path(3)
    k.lab("p2")
    path(2)
    return k


ATT_PACK = "cvt"
def gen_attn(name, kidx=0, pack=None, force_slow=False):
    pack = pack or ATT_PACK
    NWG = 256
    LDS = 163840
    k = Kern(name, NWG, 512, LDS, vgpr=128)
    KA, KB, VA = 1, 2, 3
    Q16, Q4 = 8, 12
    K16 = [16, 20]; K4 = [24, 26]
    V = [32, 40]
    S = [48, 64]
    P = 80
    O = 96
    k(f"s_cmp_ge_u32 s2, {NWG}")
    k(f"s_cbranch_scc1 {k.ref('end')}")
    k.stamp(0)
    k.karg(6, 80)
    wave_id(k, 26)
    k("s_and_b32 s20, s2, 7")
    k("s_lshr_b32 s21, s2, 3")
    k("s_lshr_b32 s22, s21, 3")
    k("s_lshl_b32 s23, s20, 2")
    k("s_add_u32 s24, s23, s22")
    k("s_and_b32 s25, s21, 7")
    k("s_lshl_b32 s25, s25, 3")
    k("s_add_u32 s25, s25, s26")
    k("v_lshlrev_b32 v4, 4, v0")
    k("s_lshl_b32 s27, s24, 6")
    k("s_add_u32 s27, s27, s25")
    k("s_mul_i32 s27, s27, 1280")
    k(f"s_add_u32 s27, s27, {WS_Q}")
    k("s_mul_i32 s28, s24, 163840")
    k(f"s_add_u32 s28, s28, {WS_KV}")
    k("s_mul_i32 s29, s26, 3072")
    k("s_mul_i32 s30, s26, 17408")
    k("s_add_u32 s30, s30, 24576")
    k("v_and_b32 v5, 31, v0")
    k("v_lshlrev_b32 v6, 3, v5")
    k(f"v_mov_b32 v{Q4}, 0")
    k(f"v_mov_b32 v{Q4+1}, 0")
    k("s_waitcnt lgkmcnt(0)")
    k.srd(12, 6, 0, WS_SIZE)
    k(f"buffer_load_dwordx4 v[{Q16}:{Q16+3}], v4, s[12:15], s27 offen")
    k("s_mov_b64 exec, 0xffffffff")
    k(f"buffer_load_dwordx2 v[{Q4}:{Q4+1}], v6, s[12:15], s27 offen offset:1024")
    k("s_mov_b64 exec, -1")
    k("s_mov_b32 m0, s29")
    k("s_add_u32 s31, s28, s29")
    for i in range(3):
        k(f"buffer_load_dwordx4 v4, s[12:15], s31 offen offset:{i*1024} lds")
    for g in range(5):
        k(f"s_add_u32 m0, s30, {g*4096}")
        k(f"s_add_u32 s31, s28, s30")
        if g: k(f"s_add_u32 s31, s31, {g*4096}")
        for i in range(4 if g < 4 else 1):
            k(f"buffer_load_dwordx4 v4, s[12:15], s31 offen offset:{i*1024} lds")
    k.stamp(1)
    def lane_addrs():
        k("v_and_b32 v5, 31, v0")
        k("v_and_b32 v6, 0x13, v5")
        k("v_and_b32 v7, 4, v5")
        k("v_lshl_or_b32 v6, v7, 1, v6")
        k("v_and_b32 v7, 8, v5")
        k("v_lshrrev_b32 v7, 1, v7")
        k("v_or_b32 v6, v6, v7")
        k("v_lshrrev_b32 v7, 5, v0")
        k(f"v_lshlrev_b32 v{KA}, 9, v7")
        k(f"v_lshl_add_u32 v{KA}, v6, 4, v{KA}")
        k(f"v_lshlrev_b32 v{KB}, 3, v6")
        k(f"v_add_u32 v{KB}, 1024, v{KB}")
        k(f"v_mul_u32_u24 v{VA}, 320, v7")
        k(f"v_lshl_add_u32 v{VA}, v5, 4, v{VA}")
        k(f"v_add_u32 v{VA}, 1280, v{VA}")
    lane_addrs()
    k("v_cmp_eq_u32 vcc, 20, v5")
    k("v_mov_b32 v7, 0x3f803f80")
    k("s_mov_b32 s34, 0x000fffff")
    k("s_mov_b32 s35, 0x000fffff")
    k(f"v_cndmask_b32 v{V[0]}, 0, v7, vcc")
    for r in range(1, 16):
        k(f"v_mov_b32 v{V[0]+r}, v{V[0]}")
    for r in range(16):
        k(f"v_mov_b32 v{O+r}, 0")
    for r in range(4, 8):
        k(f"v_mov_b32 v{P+r}, 0")
    k("s_waitcnt vmcnt(17)")
    k("s_barrier")
    k.stamp(2)
    def rdK(buf, off):
        k(f"ds_read_b128 v[{K16[buf]}:{K16[buf]+3}], v{KA} offset:{off}")
        k(f"ds_read_b64 v[{K4[buf]}:{K4[buf]+1}], v{KB} offset:{off}")
    def rdV(buf, off):
        k("s_mov_b64 exec, s[34:35]")
        k(f"ds_read_b128 v[{V[buf]}:{V[buf]+3}], v{VA} offset:{off}")
        k(f"ds_read_b128 v[{V[buf]+4}:{V[buf]+7}], v{VA} offset:{off+640}")
        k("s_mov_b64 exec, -1")
    def M1(n): k(f"v_mfma_f32_32x32x16_bf16 v[{S[n]}:{S[n]+15}], v[{K16[n]}:{K16[n]+3}], v[{Q16}:{Q16+3}], 0")
    def M2(n): k(f"v_mfma_f32_32x32x8bf16_1k v[{S[n]}:{S[n]+15}], v[{K4[n]}:{K4[n]+1}], v[{Q4}:{Q4+1}], v[{S[n]}:{S[n]+15}]")
    def MPV(vb, f): k(f"v_mfma_f32_32x32x16_bf16 v[{O}:{O+15}], v[{V[vb]+4*f}:{V[vb]+4*f+3}], v[{P+4*f}:{P+4*f+3}], v[{O}:{O+15}]")
    def G(c, g):
        s = S[c] + 4 * g
        p = P + 2 * g
        if pack == "cvt":
            for i in range(4):
                k(f"v_exp_f32 v{s+i}, v{s+i}")
            k(f"v_cvt_pk_bf16_f32 v{p}, v{s}, v{s+1}")
            k(f"v_cvt_pk_bf16_f32 v{p+1}, v{s+2}, v{s+3}")
        else:
            k(f"v_exp_f32 v{p}, v{s+1}")
            k(f"v_exp_f32 v{s}, v{s}")
            k(f"v_exp_f32 v{p+1}, v{s+3}")
            k(f"v_exp_f32 v{s+2}, v{s+2}")
            k(f"v_mov_b32_sdwa v{p}, v{s} dst_sel:WORD_0 dst_unused:UNUSED_PRESERVE src0_sel:WORD_1")
            k(f"v_mov_b32_sdwa v{p+1}, v{s+2} dst_sel:WORD_0 dst_unused:UNUSED_PRESERVE src0_sel:WORD_1")
    rdK(0, 0)
    rdK(1, 2560)
    rdV(0, 0)
    k("s_waitcnt lgkmcnt(4)")
    M1(0)
    k("s_mov_b32 s36, 0")
    k("s_nop 7")
    k("s_nop 1")
    M2(0)
    k("s_nop 7")
    k("s_nop 3")
    k.lab("loop")
    k("s_cmp_eq_u32 s36, 1")
    k(f"s_cbranch_scc0 {k.ref('nosync')}")
    k("s_waitcnt vmcnt(0)")
    k("s_barrier")
    k.lab("nosync")
    k("s_cmp_eq_u32 s36, 7")
    k(f"s_mov_b32 s37, {(-7*20480) & 0xffffffff:#x}")
    k("s_cselect_b32 s37, s37, 20480")
    for t in range(8):
        c, n = t & 1, (t + 1) & 1
        k("s_waitcnt lgkmcnt(0)")
        M1(n)
        G(c, 0)
        MPV(n, 1)
        if t == 6:
            k(f"v_add_u32 v{KA}, s37, v{KA}")
            k(f"v_add_u32 v{KB}, s37, v{KB}")
        if t == 7:
            k(f"v_add_u32 v{VA}, s37, v{VA}")
        rdK(c, ((t + 2) % 8) * 2560)
        rdV(n, ((t + 1) % 8) * 2560)
        G(c, 1)
        M2(n)
        G(c, 2)
        MPV(c, 0)
        G(c, 3)
    k("s_add_u32 s36, s36, 1")
    k("s_cmp_lt_u32 s36, 8")
    k(f"s_cbranch_scc1 {k.ref('loop')}")
    k("s_nop 0")
    MPV(1, 1)
    k.stamp(3)
    k("s_waitcnt lgkmcnt(0)")
    k("s_nop 7")
    k("s_nop 3")
    k(f"v_mov_b32 v4, v{O+8}")
    k(f"v_mov_b32 v5, v{O+8}")
    k("v_mov_b32 v6, 0")
    k("s_nop 0")
    k("v_permlane32_swap_b32 v4, v5")
    for r in range(12):
        k(f"v_fma_f32 v6, v{O+r}, 0, v6")
    k(f"v_cmp_lt_f32 vcc, {f2u(2.0**-40):#x}, v5")
    k(f"v_cmp_gt_f32 s[38:39], {f2u(2.0**40):#x}, v5" if False else f"s_mov_b32 s40, {f2u(2.0**40):#x}")
    k("v_cmp_gt_f32 s[38:39], s40, v5")
    k("v_cmp_eq_f32 s[42:43], 0, v6")
    k("s_nop 3")
    k("s_and_b64 vcc, vcc, s[38:39]")
    k("s_and_b64 vcc, vcc, s[42:43]")
    if force_slow:
        k("s_mov_b64 vcc, 0")
    k("s_cmp_eq_u64 vcc, -1")
    k(f"s_cbranch_scc0 {k.ref('slow')}")
    k.lab("fin")
    k("v_rcp_f32 v5, v5")
    k("s_mul_i32 s40, s24, 5")
    k("v_lshrrev_b32 v7, 5, v0")
    k("v_add_u32 v7, s40, v7")
    k("v_lshrrev_b32 v6, 1, v7")
    k("v_lshlrev_b32 v6, 9, v6")
    k("v_and_b32 v7, 1, v7")
    k("v_lshl_add_u32 v6, v7, 3, v6")
    k("v_and_b32 v7, 31, v0")
    k("v_lshl_add_u32 v6, v7, 4, v6")
    k("s_mul_i32 s41, s25, 40960")
    k(f"s_add_u32 s41, s41, {WS_O}")
    for r in range(0, 12, 2):
        k(f"v_pk_mul_f32 v[{O+r}:{O+r+1}], v[{O+r}:{O+r+1}], v[4:5] op_sel:[0,1] op_sel_hi:[1,1]")
    k("s_nop 0")
    for j in range(6):
        k(f"v_cvt_pk_bf16_f32 v{16+j}, v{O+2*j}, v{O+2*j+1}")
    k("buffer_store_dwordx2 v[16:17], v6, s[12:15], s41 offen")
    k("buffer_store_dwordx2 v[18:19], v6, s[12:15], s41 offen offset:512")
    k("s_mov_b64 exec, 0xffffffff")
    k("buffer_store_dwordx2 v[20:21], v6, s[12:15], s41 offen offset:1024")
    k("s_waitcnt vmcnt(0)")
    k.stamp(4); k.stamp_flush(6, kidx, 5, 26)
    k.lab("end")
    k("s_endpgm")
    k.lab("slow")
    lane_addrs()
    MX = 88
    k(f"v_mov_b32 v{MX}, {f2u(-3.0e38):#x}")
    for r in range(16):
        k(f"v_mov_b32 v{O+r}, 0")
    k("s_mov_b32 s36, 0")
    k.lab("sl")
    rdK(0, 0)
    rdV(0, 0)
    k("s_waitcnt lgkmcnt(0)")
    M1(0)
    k("s_nop 7"); k("s_nop 1")
    M2(0)
    k("s_nop 7"); k("s_nop 3")
    s = S[0]
    k(f"v_max3_f32 v4, v{s}, v{s+1}, v{s+2}")
    for i in range(3, 15, 2):
        k(f"v_max3_f32 v4, v4, v{s+i}, v{s+i+1}")
    k(f"v_max_f32 v4, v4, v{s+15}")
    k("v_mov_b32 v5, v4")
    k("s_nop 1")
    k("v_permlane32_swap_b32 v4, v5")
    k("s_nop 1")
    k(f"v_max3_f32 v4, v4, v5, v{MX}")
    k(f"v_sub_f32 v5, v{MX}, v4")
    k("v_exp_f32 v5, v5")
    k(f"v_mov_b32 v{MX}, v4")
    for i in range(16):
        k(f"v_sub_f32 v{s+i}, v{s+i}, v4")
    for i in range(16):
        k(f"v_exp_f32 v{s+i}, v{s+i}")
    for r in range(12):
        k(f"v_mul_f32 v{O+r}, v{O+r}, v5")
    for j in range(8):
        k(f"v_cvt_pk_bf16_f32 v{P+j}, v{s+2*j}, v{s+2*j+1}")
    k(f"v_add_u32 v{KA}, 2560, v{KA}")
    k(f"v_add_u32 v{KB}, 2560, v{KB}")
    k(f"v_add_u32 v{VA}, 2560, v{VA}")
    k("s_nop 4")
    MPV(0, 0)
    MPV(0, 1)
    k("s_nop 7"); k("s_nop 3")
    k("s_add_u32 s36, s36, 1")
    k("s_cmp_lt_u32 s36, 64")
    k(f"s_cbranch_scc1 {k.ref('sl')}")
    k(f"v_mov_b32 v4, v{O+8}")
    k(f"v_mov_b32 v5, v{O+8}")
    k("s_nop 1")
    k("v_permlane32_swap_b32 v4, v5")
    k("s_nop 1")
    k(f"s_branch {k.ref('fin')}")
    return k


def l2_prefetch(k, items, half, idx, lw, tmp, vaddr, vdst, srd=12):
    k(f"v_lshlrev_b32 v{vaddr}, 7, v0")
    for n, (base, hb) in enumerate(items):
        per_wg = hb // 32
        per_w = per_wg // 4
        lines = (per_w + 127) // 128
        k(f"s_mul_i32 s{tmp}, s{half}, {hb}")
        k(f"s_mul_i32 s{tmp+1}, s{idx}, {per_wg}")
        k(f"s_add_u32 s{tmp}, s{tmp}, s{tmp+1}")
        k(f"s_mul_i32 s{tmp+1}, s{lw}, {per_w}")
        k(f"s_add_u32 s{tmp}, s{tmp}, s{tmp+1}")
        k(f"s_add_u32 s{tmp}, s{tmp}, {base}")
        done = 0
        while done < lines:
            n_ = min(64, lines - done)
            if n_ < 64:
                m = (1 << n_) - 1
                k(f"s_mov_b32 exec_lo, {m & 0xffffffff:#x}")
                k(f"s_mov_b32 exec_hi, {m >> 32:#x}")
            k(f"buffer_load_dword v{vdst}, v{vaddr}, s[{srd}:{srd+3}], s{tmp} offen")
            if n_ < 64:
                k("s_mov_b64 exec, -1")
            done += n_
            if done < lines:
                k(f"s_add_u32 s{tmp}, s{tmp}, {64*128}")
            vdst += 1

def repack_unit(k, lw, EV, OD):
    k(f"s_lshl_b32 s52, s2, 2")
    k(f"s_add_u32 s52, s52, s{lw}")
    k("s_cmp_ge_u32 s52, 880")
    k(f"s_cbranch_scc1 {k.ref('rp_done')}")
    k.karg(54, 8)
    k.karg(56, 16)
    k.karg(58, 32)
    k.karg(60, 48)
    def setup(lbl, lo, ncg, ptr, size, pitch, TN, K, dst, cs, csp):
        k.lab(lbl)
        k(f"s_sub_u32 s52, s52, {lo}")
        k.srd(64, ptr, 0, size)
        k(f"s_mov_b32 s53, {pitch}")
        k(f"s_mov_b32 s54, {(65536 + TN - 1)//TN}")
        k(f"s_mov_b32 s55, {TN}")
        k(f"s_mov_b32 s56, {K//8*TN*16}")
        k(f"s_mov_b32 s57, {dst}")
        k(f"s_mul_i32 s58, s52, {(65536 + ncg - 1)//ncg}")
        k("s_lshr_b32 s58, s58, 16")
        k(f"s_mul_i32 s59, s58, {ncg}")
        k("s_sub_u32 s59, s52, s59")
        k(f"s_mov_b32 s60, {cs if cs is not None else 0xffffffff:#x}")
        k(f"s_mov_b32 s61, {csp}")
        k(f"s_branch {k.ref('rp_go')}")
    k("s_waitcnt lgkmcnt(0)")
    k("s_cmp_ge_u32 s52, 640"); k(f"s_cbranch_scc1 {k.ref('rp_w2')}")
    k("s_cmp_ge_u32 s52, 540"); k(f"s_cbranch_scc1 {k.ref('rp_wo')}")
    k("s_cmp_ge_u32 s52, 300"); k(f"s_cbranch_scc1 {k.ref('rp_w1')}")
    setup("rp_wq", 0, 30, 54, 640 * 3840, 3840, 128, 640, WS_WQ, WS_CSQ, 1920 * 4)
    setup("rp_w1", 300, 24, 58, 640 * 3072, 3072, 96, 640, WS_W1, WS_CS1, 1536 * 4)
    setup("rp_wo", 540, 10, 56, 640 * 1280, 1280, 80, 640, WS_WO, None, 0)
    setup("rp_w2", 640, 10, 60, 1536 * 1280, 1280, 80, 1536, WS_W2, None, 0)
    k.lab("rp_go")
    k("v_lshlrev_b32 v4, 1, v0")
    k("s_lshl_b32 s62, s58, 6")
    k("s_mul_i32 s62, s62, s53")
    k("s_lshl_b32 s63, s59, 7")
    k("s_add_u32 s62, s62, s63")
    for r in range(64):
        d = (OD if r & 1 else EV) + (r >> 1)
        k(f"buffer_load_ushort v{d}, v4, s[64:67], s62 offen")
        if r < 63:
            k("s_add_u32 s62, s62, s53")
    k("s_lshl_b32 s62, s59, 6")
    k("v_add_u32 v4, s62, v0")
    k("v_mul_lo_u32 v5, v4, s54")
    k("v_lshrrev_b32 v5, 16, v5")
    k("v_mul_lo_u32 v6, v5, s55")
    k("v_sub_u32 v6, v4, v6")
    k("v_mul_lo_u32 v5, v5, s56")
    k("v_lshl_add_u32 v5, v6, 4, v5")
    k("s_lshl_b32 s63, s55, 4")
    k("s_lshl_b32 s62, s58, 3")
    k("s_mul_i32 s62, s62, s63")
    k("s_add_u32 s62, s62, s57")
    k("v_mov_b32 v6, 0")
    k("v_mov_b32 v7, 0")
    for ku in range(8):
        k(f"s_waitcnt vmcnt({min(63, 56 - 8*ku + ku)})")
        for j in range(4 * ku, 4 * ku + 4):
            k(f"v_lshl_or_b32 v{EV+j}, v{OD+j}, 16, v{EV+j}")
        k(f"buffer_store_dwordx4 v[{EV+4*ku}:{EV+4*ku+3}], v5, s[12:15], s62 offen")
        if ku < 7:
            k("s_add_u32 s62, s62, s63")
    k("s_cmp_eq_u32 s60, 0xffffffff")
    k(f"s_cbranch_scc1 {k.ref('rp_done')}")
    for j in range(32):
        k(f"v_dot2c_f32_bf16 v{6 + (j & 1)}, 0x3f803f80, v{EV+j}")
    k("s_mul_i32 s62, s58, s61")
    k("s_add_u32 s62, s62, s60")
    k("v_lshlrev_b32 v4, 2, v4")
    k("s_nop 3")
    k("v_add_f32 v6, v6, v7")
    k("s_nop 0")
    k("buffer_store_dword v6, v4, s[12:15], s62 offen")
    k.lab("rp_done")


PF_ATT = [(WS_WO, 409600), (WS_W1, 983040), (WS_W2, 983040)]

def gen_attn2(name, kidx=0, pack="cvt", force_slow=False, sched=0, dbg=(), pf=0):
    NWG = 256
    LDS = 163840
    k = Kern(name, NWG, 512, LDS, vgpr=160)
    KA, KB, VA = 1, 2, 3
    Q16 = [8, 28]; Q4 = [12, 14]
    K16 = [16, 20]; K4 = [24, 26]
    V = [32, 40]
    S = [48, 64]
    P = 80
    O = [96, 112]
    k(f"s_cmp_ge_u32 s2, {NWG}")
    k(f"s_cbranch_scc1 {k.ref('end')}")
    k.stamp(0)
    k.karg(6, 80)
    wave_id(k, 26)
    k("s_and_b32 s20, s2, 7")
    k("s_lshr_b32 s21, s2, 3")
    k("s_lshr_b32 s22, s21, 3")
    k("s_lshl_b32 s23, s20, 2")
    k("s_add_u32 s24, s23, s22")
    k("v_lshlrev_b32 v4, 4, v0")
    k("s_cmp_lt_u32 s26, 4")
    k(f"s_cbranch_scc1 {k.ref('compute')}")
    k("s_sub_u32 s26, s26, 4")
    k("s_mul_i32 s28, s24, 163840")
    k(f"s_add_u32 s28, s28, {WS_KV}")
    k("s_mul_i32 s29, s26, 6144")
    k("s_mul_i32 s30, s26, 34816")
    k("s_add_u32 s30, s30, 24576")
    k("s_waitcnt lgkmcnt(0)")
    k.srd(12, 6, 0, WS_SIZE)
    k("s_mov_b32 m0, s29")
    k("s_add_u32 s31, s28, s29")
    for i in range(4):
        k(f"buffer_load_dwordx4 v4, s[12:15], s31 offen offset:{i*1024} lds")
    k("s_add_u32 m0, s29, 4096")
    k("s_add_u32 s31, s31, 4096")
    for i in range(2):
        k(f"buffer_load_dwordx4 v4, s[12:15], s31 offen offset:{i*1024} lds")
    k("s_add_u32 s28, s28, s30")
    def stB(g):
        k(f"s_add_u32 m0, s30, {g*4096}")
        k(f"s_add_u32 s31, s28, {g*4096}")
        for i in range(4 if g < 8 else 2):
            k(f"buffer_load_dwordx4 v4, s[12:15], s31 offen offset:{i*1024} lds")
    stB(0); stB(1)
    k.stamp(1)
    k("s_waitcnt vmcnt(8)")
    k.stamp(2)
    k("s_barrier")
    for g in range(2, 9):
        stB(g)
    k.stamp(3)
    k("s_waitcnt vmcnt(0)")
    k.stamp(4)
    k("s_barrier")
    if pf:
        k("s_and_b32 s40, s20, 1")
        l2_prefetch(k, PF_ATT[:pf], 40, 21, 26, 42, 5, 8)
        k("s_waitcnt vmcnt(0)")
    k("s_add_u32 s26, s26, 4")
    k.stamp_flush(6, kidx, 5, 26)
    k.lab("end")
    k("s_endpgm")
    k.lab("compute")
    k("s_and_b32 s25, s21, 7")
    k("s_lshl_b32 s25, s25, 3")
    k("s_lshl_b32 s23, s26, 1")
    k("s_add_u32 s25, s25, s23")
    k("s_lshl_b32 s27, s24, 6")
    k("s_add_u32 s27, s27, s25")
    k("s_mul_i32 s27, s27, 1280")
    k(f"s_add_u32 s27, s27, {WS_Q}")
    k("s_add_u32 s28, s27, 1280")
    k("v_and_b32 v5, 31, v0")
    k("v_lshlrev_b32 v6, 3, v5")
    for x in range(2):
        k(f"v_mov_b32 v{Q4[x]}, 0")
        k(f"v_mov_b32 v{Q4[x]+1}, 0")
    k("s_waitcnt lgkmcnt(0)")
    k.srd(12, 6, 0, WS_SIZE)
    k(f"buffer_load_dwordx4 v[{Q16[0]}:{Q16[0]+3}], v4, s[12:15], s27 offen")
    k(f"buffer_load_dwordx4 v[{Q16[1]}:{Q16[1]+3}], v4, s[12:15], s28 offen")
    k("s_mov_b64 exec, 0xffffffff")
    k(f"buffer_load_dwordx2 v[{Q4[0]}:{Q4[0]+1}], v6, s[12:15], s27 offen offset:1024")
    k(f"buffer_load_dwordx2 v[{Q4[1]}:{Q4[1]+1}], v6, s[12:15], s28 offen offset:1024")
    k("s_mov_b64 exec, -1")
    def lane_addrs():
        k("v_and_b32 v5, 31, v0")
        k("v_and_b32 v6, 0x13, v5")
        k("v_and_b32 v7, 4, v5")
        k("v_lshl_or_b32 v6, v7, 1, v6")
        k("v_and_b32 v7, 8, v5")
        k("v_lshrrev_b32 v7, 1, v7")
        k("v_or_b32 v6, v6, v7")
        k("v_lshrrev_b32 v7, 5, v0")
        k(f"v_lshlrev_b32 v{KA}, 9, v7")
        k(f"v_lshl_add_u32 v{KA}, v6, 4, v{KA}")
        k(f"v_lshlrev_b32 v{KB}, 3, v6")
        k(f"v_add_u32 v{KB}, 1024, v{KB}")
        k(f"v_mul_u32_u24 v{VA}, 320, v7")
        k(f"v_lshl_add_u32 v{VA}, v5, 4, v{VA}")
        k(f"v_add_u32 v{VA}, 1280, v{VA}")
    lane_addrs()
    k("v_cmp_eq_u32 vcc, 20, v5")
    k("v_mov_b32 v7, 0x3f803f80")
    k("s_mov_b32 s34, 0x000fffff")
    k("s_mov_b32 s35, 0x000fffff")
    k(f"v_cndmask_b32 v{V[0]}, 0, v7, vcc")
    for r in range(1, 16):
        k(f"v_mov_b32 v{V[0]+r}, v{V[0]}")
    for r in range(32):
        k(f"v_mov_b32 v{O[0]+r}, 0")
    for r in range(4, 8):
        k(f"v_mov_b32 v{P+r}, 0")
    k.stamp(1)
    k("s_waitcnt vmcnt(0)")
    k("s_barrier")
    k.stamp(2)
    def rdK(buf, off):
        return [f"ds_read_b128 v[{K16[buf]}:{K16[buf]+3}], v{KA} offset:{off}",
                f"ds_read_b64 v[{K4[buf]}:{K4[buf]+1}], v{KB} offset:{off}"]
    def rdV(buf, off):
        return ["s_mov_b64 exec, s[34:35]",
                f"ds_read_b128 v[{V[buf]}:{V[buf]+3}], v{VA} offset:{off}",
                f"ds_read_b128 v[{V[buf]+4}:{V[buf]+7}], v{VA} offset:{off+640}",
                "s_mov_b64 exec, -1"]
    def M1(x, kb): return f"v_mfma_f32_32x32x16_bf16 v[{S[x]}:{S[x]+15}], v[{K16[kb]}:{K16[kb]+3}], v[{Q16[x]}:{Q16[x]+3}], 0"
    def M2(x, kb): return f"v_mfma_f32_32x32x8bf16_1k v[{S[x]}:{S[x]+15}], v[{K4[kb]}:{K4[kb]+1}], v[{Q4[x]}:{Q4[x]+1}], v[{S[x]}:{S[x]+15}]"
    def MPV(x, vb, f): return f"v_mfma_f32_32x32x16_bf16 v[{O[x]}:{O[x]+15}], v[{V[vb]+4*f}:{V[vb]+4*f+3}], v[{P+4*f}:{P+4*f+3}], v[{O[x]}:{O[x]+15}]"
    def G(x, g, fill=()):
        s = S[x] + 4 * g
        p = P + 2 * g
        fill = list(fill)
        if pack == "cvt":
            ex = [f"v_exp_f32 v{s+i}, v{s+i}" for i in range(4)]
            pk = [f"v_cvt_pk_bf16_f32 v{p}, v{s}, v{s+1}", f"v_cvt_pk_bf16_f32 v{p+1}, v{s+2}, v{s+3}"]
        else:
            ex = [f"v_exp_f32 v{p}, v{s+1}", f"v_exp_f32 v{s}, v{s}", f"v_exp_f32 v{p+1}, v{s+3}", f"v_exp_f32 v{s+2}, v{s+2}"]
            pk = [f"v_mov_b32_sdwa v{p}, v{s} dst_sel:WORD_0 dst_unused:UNUSED_PRESERVE src0_sel:WORD_1",
                  f"v_mov_b32_sdwa v{p+1}, v{s+2} dst_sel:WORD_0 dst_unused:UNUSED_PRESERVE src0_sel:WORD_1"]
        for i in range(4):
            k(ex[i])
            if i < len(fill) and fill[i]:
                for f in (fill[i] if isinstance(fill[i], list) else [fill[i]]):
                    k(f)
        for x_ in pk: k(x_)
    for r in rdK(0, 0) + rdK(1, 2560) + rdV(0, 0): k(r)
    k("s_waitcnt lgkmcnt(4)")
    k(M1(0, 0))
    k("s_mov_b32 s36, 0")
    k("s_nop 7")
    k("s_nop 1")
    k(M2(0, 0))
    k("s_nop 7")
    k("s_nop 3")
    k.lab("loop")
    k("s_cmp_eq_u32 s36, 1")
    k(f"s_cbranch_scc0 {k.ref('nosync')}")
    k("s_barrier")
    k.lab("nosync")
    k("s_cmp_eq_u32 s36, 7")
    k(f"s_mov_b32 s37, {(-7*20480) & 0xffffffff:#x}")
    k("s_cselect_b32 s37, s37, 20480")
    L0 = len(k.L)
    for t in range(8):
        c, n = t & 1, (t + 1) & 1
        k("s_waitcnt lgkmcnt(0)")
        k(M1(1, c))
        G(0, 0)
        k(MPV(1, n, 1))
        if t == 7:
            k(f"v_add_u32 v{VA}, s37, v{VA}")
        rv = rdV(n, ((t + 1) % 8) * 2560)
        G(0, 1, fill=[rv])
        k(M2(1, c))
        if t == 6:
            k(f"v_add_u32 v{KA}, s37, v{KA}")
            k(f"v_add_u32 v{KB}, s37, v{KB}")
        rk = rdK(c, ((t + 2) % 8) * 2560)
        G(0, 2, fill=[rk[0], rk[1]])
        k(MPV(0, c, 0))
        G(0, 3)
        k(M1(0, n))
        G(1, 0)
        k(MPV(0, c, 1))
        G(1, 1)
        k(M2(0, n))
        G(1, 2)
        k(MPV(1, c, 0))
        G(1, 3)
    if dbg:
        body = k.L[L0:]
        def drop(l):
            l = l.strip()
            if "nods" in dbg and (l.startswith("ds_") or "exec" in l or l.startswith("s_waitcnt")): return True
            if "nomfma" in dbg and l.startswith("v_mfma"): return True
            if "nocvt" in dbg and (l.startswith("v_cvt") or l.startswith("v_mov_b32_sdwa")): return True
            if "noexp" in dbg and l.startswith("v_exp"): return True
            if "nom2" in dbg and "32x32x8" in l: return True
            if "nopv" in dbg and l.startswith(f"v_mfma_f32_32x32x16_bf16 v[{O[0]}") : return True
            if "nopv" in dbg and l.startswith(f"v_mfma_f32_32x32x16_bf16 v[{O[1]}") : return True
            return False
        k.L = k.L[:L0] + [l for l in body if not drop(l)]
    k("s_add_u32 s36, s36, 1")
    k("s_cmp_lt_u32 s36, 8")
    k(f"s_cbranch_scc1 {k.ref('loop')}")
    k("s_nop 0")
    k(MPV(1, 1, 1))
    k.stamp(3)
    k("s_waitcnt lgkmcnt(0)")
    k("s_nop 7")
    k("s_nop 3")
    L = [5, 7]
    k("v_mov_b32 v16, 0")
    for x in range(2):
        k(f"v_mov_b32 v{L[x]-1}, v{O[x]+8}")
        k(f"v_mov_b32 v{L[x]}, v{O[x]+8}")
    k("s_nop 1")
    for x in range(2):
        k(f"v_permlane32_swap_b32 v{L[x]-1}, v{L[x]}")
    for x in range(2):
        for r in range(12):
            k(f"v_fma_f32 v16, v{O[x]+r}, 0, v16")
    k(f"s_mov_b32 s40, {f2u(2.0**40):#x}")
    k(f"s_mov_b32 s41, {f2u(2.0**-40):#x}")
    k("v_cmp_eq_f32 vcc, 0, v16")
    k("v_cmp_lt_f32 s[42:43], s41, v5")
    k("v_cmp_gt_f32 s[44:45], s40, v5")
    k("v_cmp_lt_f32 s[46:47], s41, v7")
    k("v_cmp_gt_f32 s[48:49], s40, v7")
    k("s_nop 3")
    k("s_and_b64 vcc, vcc, s[42:43]")
    k("s_and_b64 vcc, vcc, s[44:45]")
    k("s_and_b64 vcc, vcc, s[46:47]")
    k("s_and_b64 vcc, vcc, s[48:49]")
    if force_slow:
        k("s_mov_b64 vcc, 0")
    k("s_cmp_eq_u64 vcc, -1")
    k(f"s_cbranch_scc0 {k.ref('slow')}")
    k.lab("fin")
    k("v_rcp_f32 v5, v5")
    k("v_rcp_f32 v7, v7")
    k("s_mul_i32 s40, s24, 5")
    k("v_lshrrev_b32 v17, 5, v0")
    k("v_add_u32 v17, s40, v17")
    k("v_lshrrev_b32 v16, 1, v17")
    k("v_lshlrev_b32 v16, 9, v16")
    k("v_and_b32 v17, 1, v17")
    k("v_lshl_add_u32 v16, v17, 3, v16")
    k("v_and_b32 v17, 31, v0")
    k("v_lshl_add_u32 v16, v17, 4, v16")
    k("s_mul_i32 s41, s25, 40960")
    k(f"s_add_u32 s41, s41, {WS_O}")
    k("s_add_u32 s42, s41, 40960")
    for x in range(2):
        for r in range(0, 12, 2):
            k(f"v_pk_mul_f32 v[{O[x]+r}:{O[x]+r+1}], v[{O[x]+r}:{O[x]+r+1}], v[{L[x]-1}:{L[x]}] op_sel:[0,1] op_sel_hi:[1,1]")
    for x in range(2):
        for j in range(6):
            k(f"v_cvt_pk_bf16_f32 v{20+6*x+j}, v{O[x]+2*j}, v{O[x]+2*j+1}")
    for x in range(2):
        k(f"buffer_store_dwordx2 v[{20+6*x}:{21+6*x}], v16, s[12:15], s{41+x} offen")
        k(f"buffer_store_dwordx2 v[{22+6*x}:{23+6*x}], v16, s[12:15], s{41+x} offen offset:512")
    k("s_mov_b64 exec, 0xffffffff")
    for x in range(2):
        k(f"buffer_store_dwordx2 v[{24+6*x}:{25+6*x}], v16, s[12:15], s{41+x} offen offset:1024")
    k("s_waitcnt vmcnt(0)")
    k.stamp(4); k.stamp_flush(6, kidx, 5, 26)
    k("s_endpgm")
    k.lab("slow")
    MX = 88
    for x in range(2):
        lane_addrs()
        k(f"v_mov_b32 v{MX}, {f2u(-3.0e38):#x}")
        for r in range(16):
            k(f"v_mov_b32 v{O[x]+r}, 0")
        k("s_mov_b32 s36, 0")
        k.lab(f"sl{x}")
        for r in rdK(0, 0) + rdV(0, 0): k(r)
        k("s_waitcnt lgkmcnt(0)")
        k(M1(x, 0))
        k("s_nop 7"); k("s_nop 1")
        k(M2(x, 0))
        k("s_nop 7"); k("s_nop 3")
        s = S[x]
        k(f"v_max3_f32 v4, v{s}, v{s+1}, v{s+2}")
        for i in range(3, 15, 2):
            k(f"v_max3_f32 v4, v4, v{s+i}, v{s+i+1}")
        k(f"v_max_f32 v4, v4, v{s+15}")
        k("v_mov_b32 v5, v4")
        k("s_nop 1")
        k("v_permlane32_swap_b32 v4, v5")
        k("s_nop 1")
        k(f"v_max3_f32 v4, v4, v5, v{MX}")
        k(f"v_sub_f32 v5, v{MX}, v4")
        k("v_exp_f32 v5, v5")
        k(f"v_mov_b32 v{MX}, v4")
        for i in range(16):
            k(f"v_sub_f32 v{s+i}, v{s+i}, v4")
        for i in range(16):
            k(f"v_exp_f32 v{s+i}, v{s+i}")
        for r in range(12):
            k(f"v_mul_f32 v{O[x]+r}, v{O[x]+r}, v5")
        for j in range(8):
            k(f"v_cvt_pk_bf16_f32 v{P+j}, v{s+2*j}, v{s+2*j+1}")
        k(f"v_add_u32 v{KA}, 2560, v{KA}")
        k(f"v_add_u32 v{KB}, 2560, v{KB}")
        k(f"v_add_u32 v{VA}, 2560, v{VA}")
        k("s_nop 4")
        k(MPV(x, 0, 0))
        k(MPV(x, 0, 1))
        k("s_nop 7"); k("s_nop 3")
        k("s_add_u32 s36, s36, 1")
        k("s_cmp_lt_u32 s36, 64")
        k(f"s_cbranch_scc1 {k.ref(f'sl{x}')}")
    for x in range(2):
        k(f"v_mov_b32 v{L[x]-1}, v{O[x]+8}")
        k(f"v_mov_b32 v{L[x]}, v{O[x]+8}")
    k("s_nop 1")
    for x in range(2):
        k(f"v_permlane32_swap_b32 v{L[x]-1}, v{L[x]}")
    k("s_nop 1")
    k(f"s_branch {k.ref('fin')}")
    return k


def gen_attn3(name, kidx=0, force_slow=False, pf=0, h=8, um=8, uh=8, pm=3, phl=0, b2=8, dbg=(), repack=False, amap=0, stream=0, fz=None):
    NWG = 256
    LDS = 163840
    TM = 64 - h
    assert TM % um == 0 and h % uh == 0 and b2 % um == 0 and um % 2 == 0 and uh % 2 == 0
    SLOT = 2688
    assert 8 * SLOT <= b2 * 2560 + 3840
    k = Kern(name, NWG, 512, LDS, vgpr=160) if fz is None else fz.k
    NS_ = " ; nosc" if (fz and fz.xl and "o" not in XSC) else ""
    KA, KB, VA = 1, 2, 3
    Q16 = [8, 28]; Q4 = [12, 14]
    K16 = [16, 20]; K4 = [24, 26]
    V = [32, 40]
    S = [48, 64]
    P = 80
    O = [96, 112]
    if fz is None:
        k(f"s_cmp_ge_u32 s2, {NWG}")
        k(f"s_cbranch_scc1 {k.ref('end')}")
        k.stamp(0)
        k.karg(6, 80)
        wave_id(k, 26)
    k("s_and_b32 s20, s2, 7")
    k("s_lshr_b32 s21, s2, 3")
    if amap:
        k("s_mov_b32 s24, s21")
    else:
        k("s_lshr_b32 s22, s21, 3")
        k("s_lshl_b32 s23, s20, 2")
        k("s_add_u32 s24, s23, s22")
    k("v_lshlrev_b32 v4, 4, v0")
    k("s_and_b32 s33, s26, 3")
    k(f"s_mul_i32 s50, s24, {163840 + KVPAD}")
    k(f"s_add_u32 s50, s50, {WS_KV}")
    if amap:
        k("s_lshl_b32 s25, s20, 3")
    else:
        k("s_and_b32 s25, s21, 7")
        k("s_lshl_b32 s25, s25, 3")
    k("s_lshl_b32 s23, s33, 1")
    k("s_add_u32 s25, s25, s23")
    k("s_lshl_b32 s27, s24, 6")
    k("s_add_u32 s27, s27, s25")
    k("s_mul_i32 s27, s27, 1280")
    k(f"s_add_u32 s27, s27, {WS_Q}")
    k("s_add_u32 s28, s27, 1280")
    def q_loads():
        k("v_and_b32 v5, 31, v0")
        k("v_lshlrev_b32 v6, 3, v5")
        for x in range(2):
            k(f"v_mov_b32 v{Q4[x]}, 0")
            k(f"v_mov_b32 v{Q4[x]+1}, 0")
        k(f"buffer_load_dwordx4 v[{Q16[0]}:{Q16[0]+3}], v4, s[12:15], s27 offen")
        k(f"buffer_load_dwordx4 v[{Q16[1]}:{Q16[1]+3}], v4, s[12:15], s28 offen")
        k("s_mov_b64 exec, 0xffffffff")
        k(f"buffer_load_dwordx2 v[{Q4[0]}:{Q4[0]+1}], v6, s[12:15], s27 offen offset:1024")
        k(f"buffer_load_dwordx2 v[{Q4[1]}:{Q4[1]+1}], v6, s[12:15], s28 offen offset:1024")
        k("s_mov_b64 exec, -1")
    def lane_addrs():
        k("v_and_b32 v5, 31, v0")
        k("v_and_b32 v6, 0x13, v5")
        k("v_and_b32 v7, 4, v5")
        k("v_lshl_or_b32 v6, v7, 1, v6")
        k("v_and_b32 v7, 8, v5")
        k("v_lshrrev_b32 v7, 1, v7")
        k("v_or_b32 v6, v6, v7")
        k("v_lshrrev_b32 v7, 5, v0")
        k(f"v_lshlrev_b32 v{KA}, 9, v7")
        k(f"v_lshl_add_u32 v{KA}, v6, 4, v{KA}")
        k(f"v_lshlrev_b32 v{KB}, 3, v6")
        k(f"v_add_u32 v{KB}, 1024, v{KB}")
        k(f"v_mul_u32_u24 v{VA}, 320, v7")
        k(f"v_lshl_add_u32 v{VA}, v5, 4, v{VA}")
        k(f"v_add_u32 v{VA}, 1280, v{VA}")
    def init_regs():
        lane_addrs()
        k("v_cmp_eq_u32 vcc, 20, v5")
        k("v_mov_b32 v7, 0x3f803f80")
        k("s_mov_b32 s34, 0x000fffff")
        k("s_mov_b32 s35, 0x000fffff")
        k(f"v_cndmask_b32 v{V[0]}, 0, v7, vcc")
        for r in range(1, 16):
            k(f"v_mov_b32 v{V[0]+r}, v{V[0]}")
        for r in range(32):
            k(f"v_mov_b32 v{O[0]+r}, 0")
        for r in range(4, 8):
            k(f"v_mov_b32 v{P+r}, 0")
    def rdK(buf, off):
        return [f"ds_read_b128 v[{K16[buf]}:{K16[buf]+3}], v{KA} offset:{off}",
                f"ds_read_b64 v[{K4[buf]}:{K4[buf]+1}], v{KB} offset:{off}"]
    def rdV(buf, off):
        return ["s_mov_b64 exec, s[34:35]",
                f"ds_read_b128 v[{V[buf]}:{V[buf]+3}], v{VA} offset:{off}",
                f"ds_read_b128 v[{V[buf]+4}:{V[buf]+7}], v{VA} offset:{off+640}",
                "s_mov_b64 exec, -1"]
    def M1(x, kb): return f"v_mfma_f32_32x32x16_bf16 v[{S[x]}:{S[x]+15}], v[{K16[kb]}:{K16[kb]+3}], v[{Q16[x]}:{Q16[x]+3}], 0"
    def M2(x, kb): return f"v_mfma_f32_32x32x8bf16_1k v[{S[x]}:{S[x]+15}], v[{K4[kb]}:{K4[kb]+1}], v[{Q4[x]}:{Q4[x]+1}], v[{S[x]}:{S[x]+15}]"
    def MPV(x, vb, f): return f"v_mfma_f32_32x32x16_bf16 v[{O[x]}:{O[x]+15}], v[{V[vb]+4*f}:{V[vb]+4*f+3}], v[{P+4*f}:{P+4*f+3}], v[{O[x]}:{O[x]+15}]"
    def G(x, g, fill=()):
        s = S[x] + 4 * g
        p = P + 2 * g
        fill = list(fill)
        ex = [f"v_exp_f32 v{s+i}, v{s+i}" for i in range(4)]
        pk = [f"v_cvt_pk_bf16_f32 v{p}, v{s}, v{s+1}", f"v_cvt_pk_bf16_f32 v{p+1}, v{s+2}, v{s+3}"]
        for i in range(4):
            k(ex[i])
            if i < len(fill) and fill[i]:
                for f in (fill[i] if isinstance(fill[i], list) else [fill[i]]):
                    k(f)
        for x_ in pk: k(x_)
    def loop(tag, T, U, bar_after, hook=None):
        NIT = T // U
        assert hook is None or NIT == 1
        for r in rdK(0, 0) + rdK(1, 2560) + rdV(0, 0): k(r)
        k("s_waitcnt lgkmcnt(4)")
        k(M1(0, 0))
        k(f"s_mov_b32 s36, {NIT}")
        if isinstance(bar_after, list):
            assert all(b % U == 0 for b in bar_after)
            k(f"s_mov_b32 s38, {sum(1 << (NIT - b // U) for b in bar_after):#x}")
        k("s_nop 7")
        k("s_nop 1")
        k(M2(0, 0))
        k("s_nop 7")
        k("s_nop 3")
        k.lab(f"loop{tag}")
        if isinstance(bar_after, list):
            k("s_bitcmp1_b32 s38, s36")
            k(f"s_cbranch_scc0 {k.ref('nosync' + tag)}")
            k("s_barrier")
            k.lab("nosync" + tag)
        elif bar_after is not None:
            k(f"s_cmp_eq_u32 s36, {NIT - bar_after // U}")
            k(f"s_cbranch_scc0 {k.ref('nosync' + tag)}")
            k("s_barrier")
            k.lab("nosync" + tag)
        k("s_cmp_eq_u32 s36, 1")
        k(f"s_cselect_b32 s37, 0, {U*2560}")
        for t in range(U):
            c, n = t & 1, (t + 1) & 1
            k("s_waitcnt lgkmcnt(0)")
            if hook: hook(t)
            k(M1(1, c))
            G(0, 0)
            k(MPV(1, n, 1))
            if t == U - 1:
                k(f"v_add_u32 v{VA}, s37, v{VA}")
            rv = rdV(n, ((t + 1) % U) * 2560)
            G(0, 1, fill=[rv])
            k(M2(1, c))
            if t == U - 2:
                k(f"v_add_u32 v{KA}, s37, v{KA}")
                k(f"v_add_u32 v{KB}, s37, v{KB}")
            rk = rdK(c, ((t + 2) % U) * 2560)
            G(0, 2, fill=[rk[0], rk[1]])
            k(MPV(0, c, 0))
            G(0, 3)
            k(M1(0, n))
            G(1, 0)
            k(MPV(0, c, 1))
            G(1, 1)
            k(M2(0, n))
            G(1, 2)
            k(MPV(1, c, 0))
            G(1, 3)
        k("s_sub_u32 s36, s36, 1")
        k("s_cmp_lg_u32 s36, 0")
        k(f"s_cbranch_scc1 {k.ref('loop' + tag)}")
        k("s_nop 0")
        k(MPV(1, 1, 1))
    def finish(role):
        keep, give = role, 1 - role
        tg = "mh"[role]
        T_ = S[0]
        k.stamp(3)
        if fz: fz.mode_issue(12, 250)
        k(f"s_lshl_b32 s40, s33, 1")
        k(f"s_add_u32 s41, s40, {role}")
        k(f"s_add_u32 s40, s40, {1 - role}")
        k(f"s_mul_i32 s41, s41, {SLOT}")
        k(f"s_mul_i32 s40, s40, {SLOT}")
        k("v_lshlrev_b32 v4, 4, v0")
        k("v_and_b32 v5, 31, v0")
        k("v_lshlrev_b32 v5, 2, v5")
        k("v_add_u32 v16, s41, v4")
        k("v_add_u32 v17, s41, v5")
        k("v_add_u32 v18, s40, v4")
        k("v_add_u32 v19, s40, v5")
        for r in range(8, 12):
            k(f"v_mov_b32 v{T_+r}, 0")
        k("s_waitcnt lgkmcnt(0)")
        k("s_nop 7" if role == 0 else "s_nop 0")
        k(f"ds_write_b128 v16, v[{O[give]}:{O[give]+3}]")
        k(f"ds_write_b128 v16, v[{O[give]+4}:{O[give]+7}] offset:1024")
        k("s_mov_b64 exec, 0xffffffff")
        k(f"ds_write_b128 v16, v[{O[give]+8}:{O[give]+11}] offset:2048")
        k("s_not_b64 exec, exec")
        k(f"ds_write_b32 v17, v{O[give]+8} offset:2560")
        k("s_mov_b64 exec, -1")
        k("s_mul_i32 s42, s24, 5")
        k("v_lshrrev_b32 v21, 5, v0")
        k("v_add_u32 v21, s42, v21")
        k("v_lshrrev_b32 v20, 1, v21")
        k("v_lshlrev_b32 v20, 9, v20")
        k("v_and_b32 v21, 1, v21")
        k("v_lshl_add_u32 v20, v21, 3, v20")
        k("v_and_b32 v21, 31, v0")
        k("v_lshl_add_u32 v20, v21, 4, v20")
        k(f"s_add_u32 s51, s25, {keep}")
        k("s_mul_i32 s51, s51, 40960")
        k(f"s_add_u32 s51, s51, {WS_O}")
        k("s_waitcnt lgkmcnt(0)")
        k("s_barrier")
        k(f"ds_read_b128 v[{T_}:{T_+3}], v18")
        k(f"ds_read_b128 v[{T_+4}:{T_+7}], v18 offset:1024")
        k("s_mov_b64 exec, 0xffffffff")
        k(f"ds_read_b128 v[{T_+8}:{T_+11}], v18 offset:2048")
        k("s_not_b64 exec, exec")
        k(f"ds_read_b32 v{T_+8}, v19 offset:2560")
        k("s_mov_b64 exec, -1")
        Ox = O[keep]
        k("s_waitcnt lgkmcnt(2)")
        for r in range(8):
            k(f"v_add_f32 v{Ox+r}, v{Ox+r}, v{T_+r}")
        k("s_waitcnt lgkmcnt(0)")
        for r in range(8, 12):
            k(f"v_add_f32 v{Ox+r}, v{Ox+r}, v{T_+r}")
        k(f"v_mov_b32 v4, v{Ox+8}")
        k(f"v_mov_b32 v5, v{Ox+8}")
        k("v_mov_b32 v16, 0")
        k("s_nop 0")
        k("v_permlane32_swap_b32 v4, v5")
        for r in range(12):
            k(f"v_fma_f32 v16, v{Ox+r}, 0, v16")
        k(f"s_mov_b32 s40, {f2u(2.0**40):#x}")
        k(f"s_mov_b32 s41, {f2u(2.0**-40):#x}")
        k("v_cmp_eq_f32 vcc, 0, v16")
        k("v_cmp_lt_f32 s[42:43], s41, v5")
        k("v_cmp_gt_f32 s[44:45], s40, v5")
        k("s_nop 3")
        k("s_and_b64 vcc, vcc, s[42:43]")
        k("s_and_b64 vcc, vcc, s[44:45]")
        if force_slow:
            k("s_mov_b64 vcc, 0")
        k("s_cmp_eq_u64 vcc, -1")
        k(f"s_cbranch_scc0 {k.ref('slow' + tg)}")
        k.lab("fin" + tg)
        k("v_rcp_f32 v5, v5")
        k("s_nop 0")
        for r in range(0, 12, 2):
            k(f"v_pk_mul_f32 v[{Ox+r}:{Ox+r+1}], v[{Ox+r}:{Ox+r+1}], v[4:5] op_sel:[0,1] op_sel_hi:[1,1]")
        for j in range(6):
            k(f"v_cvt_pk_bf16_f32 v{22+j}, v{Ox+2*j}, v{Ox+2*j+1}")
        k("buffer_store_dwordx2 v[22:23], v20, s[12:15], s51 offen" + NS_)
        k("buffer_store_dwordx2 v[24:25], v20, s[12:15], s51 offen offset:512" + NS_)
        k("s_mov_b64 exec, 0xffffffff")
        k("buffer_store_dwordx2 v[26:27], v20, s[12:15], s51 offen offset:1024" + NS_)
        k("s_waitcnt vmcnt(0)")
        if fz:
            k("s_mov_b64 exec, -1")
            k.stamp(4)
            fz.attn_done(role)
        else:
            k.stamp(4); k.stamp_flush(6, kidx, 5, 26)
            k("s_endpgm")
        k.lab("slow" + tg)
        MX = 88
        x = keep
        lane_addrs()
        k(f"v_mov_b32 v{MX}, {f2u(-3.0e38):#x}")
        for r in range(16):
            k(f"v_mov_b32 v{O[x]+r}, 0")
        k("s_mov_b32 s36, 0")
        k.lab(f"sl{tg}")
        k(f"buffer_load_dwordx4 v[{K16[0]}:{K16[0]+3}], v{KA}, s[12:15], s50 offen")
        k(f"buffer_load_dwordx2 v[{K4[0]}:{K4[0]+1}], v{KB}, s[12:15], s50 offen")
        k("s_mov_b64 exec, s[34:35]")
        k(f"buffer_load_dwordx4 v[{V[0]}:{V[0]+3}], v{VA}, s[12:15], s50 offen")
        k(f"buffer_load_dwordx4 v[{V[0]+4}:{V[0]+7}], v{VA}, s[12:15], s50 offen offset:640")
        k("s_mov_b64 exec, -1")
        k("s_waitcnt vmcnt(0)")
        k(M1(x, 0))
        k("s_nop 7"); k("s_nop 1")
        k(M2(x, 0))
        k("s_nop 7"); k("s_nop 3")
        s = S[x]
        k(f"v_max3_f32 v4, v{s}, v{s+1}, v{s+2}")
        for i in range(3, 15, 2):
            k(f"v_max3_f32 v4, v4, v{s+i}, v{s+i+1}")
        k(f"v_max_f32 v4, v4, v{s+15}")
        k("v_mov_b32 v5, v4")
        k("s_nop 1")
        k("v_permlane32_swap_b32 v4, v5")
        k("s_nop 1")
        k(f"v_max3_f32 v4, v4, v5, v{MX}")
        k(f"v_sub_f32 v5, v{MX}, v4")
        k("v_exp_f32 v5, v5")
        k(f"v_mov_b32 v{MX}, v4")
        for i in range(16):
            k(f"v_sub_f32 v{s+i}, v{s+i}, v4")
        for i in range(16):
            k(f"v_exp_f32 v{s+i}, v{s+i}")
        for r in range(12):
            k(f"v_mul_f32 v{O[x]+r}, v{O[x]+r}, v5")
        for j in range(8):
            k(f"v_cvt_pk_bf16_f32 v{P+j}, v{s+2*j}, v{s+2*j+1}")
        k(f"v_add_u32 v{KA}, 2560, v{KA}")
        k(f"v_add_u32 v{KB}, 2560, v{KB}")
        k(f"v_add_u32 v{VA}, 2560, v{VA}")
        k("s_nop 4")
        k(MPV(x, 0, 0))
        k(MPV(x, 0, 1))
        k("s_nop 7"); k("s_nop 3")
        k("s_add_u32 s36, s36, 1")
        k("s_cmp_lt_u32 s36, 64")
        k(f"s_cbranch_scc1 {k.ref(f'sl{tg}')}")
        k(f"v_mov_b32 v4, v{O[x]+8}")
        k(f"v_mov_b32 v5, v{O[x]+8}")
        k("s_nop 1")
        k("v_permlane32_swap_b32 v4, v5")
        k("s_nop 1")
        k(f"s_branch {k.ref('fin' + tg)}")
    k("s_cmp_lt_u32 s26, 4")
    k(f"s_cbranch_scc1 {k.ref('compute')}")
    if stream:
        assert um == 4
        k("s_lshl_b32 s29, s33, 12")
        k("s_waitcnt lgkmcnt(0)")
        k.srd(12, 6, 0, WS_SIZE)
        k("s_add_u32 s32, s50, s29")
        def grp(G_):
            k(f"s_add_u32 m0, s29, {G_*16384}")
            k(f"s_add_u32 s31, s32, {G_*16384}")
            for i in range(4):
                k(f"buffer_load_dwordx4 v4, s[12:15], s31 offen offset:{i*1024} lds")
        if fz: fz.mode_publish(4)
        grp(0); grp(1)
        k.stamp(1)
        k("s_waitcnt vmcnt(4)")
        k("s_barrier")
        grp(2); grp(3)
        k("s_waitcnt vmcnt(8)")
        k("s_barrier")
        grp(4); grp(5)
        k("s_waitcnt vmcnt(8)")
        k("s_barrier")
        for G_ in range(6, 10): grp(G_)
        q_loads()
        init_regs()
    else:
        k("s_mul_i32 s29, s33, 6144")
        k("s_mul_i32 s30, s33, 34816")
        k("s_add_u32 s30, s30, 24576")
        k("s_waitcnt lgkmcnt(0)")
        k.srd(12, 6, 0, WS_SIZE)
        k("s_mov_b32 m0, s29")
        k("s_add_u32 s31, s50, s29")
        for i in range(4):
            k(f"buffer_load_dwordx4 v4, s[12:15], s31 offen offset:{i*1024} lds")
        k("s_add_u32 m0, s29, 4096")
        k("s_add_u32 s31, s31, 4096")
        for i in range(2):
            k(f"buffer_load_dwordx4 v4, s[12:15], s31 offen offset:{i*1024} lds")
        k("s_add_u32 s32, s50, s30")
        def stB(g):
            k(f"s_add_u32 m0, s30, {g*4096}")
            k(f"s_add_u32 s31, s32, {g*4096}")
            for i in range(4 if g < 8 else 2):
                k(f"buffer_load_dwordx4 v4, s[12:15], s31 offen offset:{i*1024} lds")
        stB(0); stB(1)
        k.stamp(1)
        k("s_waitcnt vmcnt(8)")
        k("s_barrier")
        for g in range(2, 9):
            stB(g)
        q_loads()
        init_regs()
    k(f"v_add_u32 v{KA}, {TM*2560}, v{KA}")
    k(f"v_add_u32 v{KB}, {TM*2560}, v{KB}")
    k(f"v_add_u32 v{VA}, {TM*2560}, v{VA}")
    k("s_waitcnt vmcnt(0)")
    k("s_barrier")
    k.stamp(2)
    if repack:
        repack_unit(k, 33, 48, 128)
        if fz: k("s_mov_b32 s64, s26")
    if pf:
        k("s_and_b32 s40, s20, 1")
        l2_prefetch(k, PF_ATT[:pf], 40, 21, 33, 42, 128, 129)
    if phl != 0: k(f"s_setprio {phl}")
    if fz and repack:
        def hook(t):
            if t == 2: fz.wflag_set(33, 128)
            if t == 6: fz.wflag_issue(128)
        loop("h", h, uh, None, hook)
        fz.wflag_wait(128)
    else:
        loop("h", h, uh, None)
    finish(1)
    if fz is None:
        k.lab("end")
        k("s_endpgm")
    k.lab("compute")
    if pm != 0: k(f"s_setprio {pm}")
    k("s_waitcnt lgkmcnt(0)")
    k.srd(12, 6, 0, WS_SIZE)
    q_loads()
    init_regs()
    k.stamp(1)
    k("s_waitcnt vmcnt(0)")
    k("s_barrier")
    k.stamp(2)
    loop("m", TM, um, [4, 8, stream] if stream else b2)
    finish(0)
    return k
```

```python
import sys
from dsl import *
import ph, hazard
from addsc import addsc
def build(which, opt):
    first = int(opt.get("first", 2))
    dbg = tuple(opt.get("dbg", "").split(",")) if opt.get("dbg") else ()
    dk = opt.get("dk", "")
    def D(name):
        if not dk: return dbg
        return dbg if any(name.startswith(p) for p in dk.split(",")) else ()
    def PFD(name):
        best = int(opt.get("pfd", 0)); bl = -1
        for key, val in opt.items():
            if key.startswith("pfd_") and name.startswith(key[4:]) and len(key) > bl: best = int(val); bl = len(key)
        return best
    def FI(name):
        best = first; bl = -1
        for key, val in opt.items():
            if key.startswith("first_") and name.startswith(key[6:]) and len(key) > bl: best = int(val); bl = len(key)
        return best
    A = lambda n, kind, l, ki: ph.gen_gemmA(n, kind, l, ki, dbg=D(n), first=FI(n), pfd=PFD(n))
    B = lambda n, kind, l, ki, **kw: ph.gen_gemmB(n, kind, l, ki, dbg=D(n), first=FI(n), pfd=PFD(n), **kw)
    if which == "a":
        return assemble([ph.gen_prep(dbg), A("qkv0_kernel", "qkv", 0, 1)])
    if which == "aq":
        return assemble([A("qkv0_kernel", "qkv", 0, 1)])
    if which == "ar":
        return assemble([ph.gen_qkv_raw("qkv0_kernel", 1, dbg=D("qkv0"), first=FI("qkv0"), pfd=PFD("qkv0"))])
    if which == "w1":
        return assemble([A("w10_kernel", "w1", 0, 4)])
    if which == "pw1":
        return assemble([ph.gen_prep(), A("w10_kernel", "w1", 0, 4)])
    if which == "attn":
        return assemble([ph.gen_attn("attn0_kernel", 2)])
    if which == "attns":
        return assemble([ph.gen_attn("attn0_kernel", 2, pack="sdwa")])
    if which == "attnf":
        return assemble([ph.gen_attn("attn0_kernel", 2, force_slow=True)])
    if which == "attn2":
        return assemble([ph.gen_attn2("attn0_kernel", 2)])
    if which == "attn2s":
        return assemble([ph.gen_attn2("attn0_kernel", 2, pack="sdwa")])
    if which == "attn2f":
        return assemble([ph.gen_attn2("attn0_kernel", 2, force_slow=True)])
    if which in ("attn3", "attn3f"):
        return assemble([ph.gen_attn3("attn0_kernel", 2, force_slow=(which == "attn3f"), **attn_opts(opt))])
    if which == "wo":
        return assemble([B("wo0_kernel", "wo", 0, 3)])
    if which == "w2":
        return assemble([B("w20_kernel", "w2", 0, 5)])
    if which == "w21":
        return assemble([B("w21_kernel", "w2", 1, 10)])
    if which == "full":
        raw = "raw" in opt
        ks = [] if raw else [ph.gen_prep()]
        at = opt.get("attn", "2")
        for l in range(2):
            r0 = raw and l == 0
            fa = "fa" in opt
            if fa:
                assert raw and "xl" in opt
                ph.NFLAGSET = 16
                if l == 0:
                    ks += [ph.gen_qkv_raw("qkv0_kernel", 1, dbg=D("qkv0"), first=FI("qkv0"), zflags=True)]
                nph = 5 if l == 0 else 4
                fz = ph.Fuse(f"f{l}_kernel", nph, 2 + 5*l, xl=True, modeset=10 + l, force_slow="fslow" in opt, sleep=int(opt.get("sleep", 1)), xplain="xplain" in opt, attn_first=True)
                fb = 5 * l
                fz.begin(wait=None, sig=fb + 0)
                ph.gen_attn3("attn", 2 + 5*l, pf=(int(opt.get("pf0", 0)) if r0 else int(opt.get("pf", 0))), repack=r0, fz=fz, **attn_opts(opt))
                fz.begin(wait=fb + 0, sig=fb + 2, rot=1)
                ph.gen_gemmB("wo", "wo", l, 0, dbg=D(f"wo{l}"), first=2, rawres=r0, fz=fz)
                fz.begin(wait=fb + 2, sig=fb + 3, rot=3)
                ph.gen_gemmA("w1", "w1", l, 0, dbg=D(f"w1{l}"), first=2, fz=fz)
                fz.begin(wait=fb + 3, sig=(fb + 4 if l == 0 else None), rot=1)
                ph.gen_gemmB("w2", "w2", l, 0, dbg=D(f"w2{l}"), first=2, fz=fz)
                if l == 0:
                    fz.begin(wait=fb + 4, sig=None, rot=2)
                    ph.gen_gemmA("qkv", "qkv", 1, 0, dbg=D("qkv1"), first=2, fz=fz)
                ks += [fz.close()]
                continue
            if at == "2": a = ph.gen_attn2(f"attn{l}_kernel", 2 + 5*l, pf=int(opt.get("pf", 0)))
            else: a = ph.gen_attn3(f"attn{l}_kernel", 2 + 5*l, pf=(int(opt.get("pf0", 0)) if r0 else int(opt.get("pf", 0))), repack=r0, **attn_opts(opt))
            fuse = int(opt.get("fuse", 0))
            if fuse:
                if l == 0:
                    ks += [ph.gen_qkv_raw("qkv0_kernel", 1, dbg=D("qkv0"), first=FI("qkv0"), zflags=True)]
                elif fuse < 3:
                    ks += [A("qkv1_kernel", "qkv", 1, 6)]
                ks += [a]
                nph = 2 if fuse == 1 else (4 if (fuse == 3 and l == 0) else 3)
                xl = "xl" in opt; pw = "pfw" in opt
                fz = ph.Fuse(f"f{l}_kernel", nph, 3 + 5*l, xl=xl, modeset=6 + l, force_slow="fslow" in opt, sleep=int(opt.get("sleep", 1)), xplain="xplain" in opt)
                fb = 3 * l
                W1, W2, WQ = (ph.WS_W1, 1536*1280), (ph.WS_W2, 1536*1280), (ph.WS_WQ, 1920*1280)
                fz.begin(wait=None, sig=fb + 0, rot=0, pfw=(W1 if pw else None))
                ph.gen_gemmB("wo", "wo", l, 0, dbg=D(f"wo{l}"), first=2, rawres=r0, fz=fz)
                fz.begin(wait=fb + 0, sig=(fb + 1 if nph > 2 else None), rot=2, pfw=(W2 if pw and nph > 2 else None))
                ph.gen_gemmA("w1", "w1", l, 0, dbg=D(f"w1{l}"), first=2, fz=fz)
                if nph > 2:
                    fz.begin(wait=fb + 1, sig=(fb + 2 if nph > 3 else None), rot=0, pfw=(WQ if pw and nph > 3 else None))
                    ph.gen_gemmB("w2", "w2", l, 0, dbg=D(f"w2{l}"), first=2, fz=fz)
                if nph > 3:
                    fz.begin(wait=fb + 2, sig=None, rot=0)
                    ph.gen_gemmA("qkv", "qkv", 1, 0, dbg=D("qkv1"), first=2, fz=fz)
                ks += [fz.close()]
                if nph == 2:
                    ks += [B(f"w2{l}_kernel", "w2", l, 5 + 5*l)]
                continue
            q = ph.gen_qkv_raw(f"qkv{l}_kernel", 1 + 5*l, dbg=D(f"qkv{l}"), first=FI(f"qkv{l}"), pfd=PFD(f"qkv{l}")) if r0 else A(f"qkv{l}_kernel", "qkv", l, 1 + 5*l)
            wo = B(f"wo{l}_kernel", "wo", l, 3 + 5*l, rawres=r0)
            ks += [q, a, wo, A(f"w1{l}_kernel", "w1", l, 4 + 5*l),
                   B(f"w2{l}_kernel", "w2", l, 5 + 5*l)]
        return assemble(ks)
def attn_opts(opt):
    o = {}
    for key in ("h", "um", "uh", "pm", "phl", "b2", "amap", "stream"):
        if key in opt: o[key] = int(opt[key])
    return o
if __name__ == "__main__":
    which = sys.argv[1]; out = sys.argv[2]
    opt = {}
    for a in sys.argv[3:]:
        if "=" in a:
            x, y = a.split("=", 1); opt[x] = y
        else: opt[a] = "1"
    Kern.PROF = "prof" in opt
    ph.PFS = int(opt.get("pfs", 128))
    ph.KVPAD = int(opt.get("kvpad", 0))
    ph.XSC = opt.get("xsc", ""); ph.PT = opt.get("pt", ""); ph.OUTP = int(opt.get("outp", 0))
    ph.ERP = int(opt.get("erp", 0)); ph.Q0T = opt.get("q0t", ""); ph.Q0L = int(opt.get("q0l", 0)); ph.HST = int(opt.get("hst", 0)); ph.WFY = int(opt.get("wfy", 0)); ph.RLDS = int(opt.get("rlds", 0)); ph.RPRIO = int(opt.get("rprio", 0)); ph.WFT = tuple(int(x) for x in opt.get("wft", "2,6").split(","))
    ph.CW = int(opt.get("cw", 0)); ph.CWN = int(opt.get("cwn", 2))
    t = build(which, opt)
    if "sc1" in opt: t = addsc(t)
    if "scb" in opt: t = addsc(t, opt["scb"].replace("+", " "))
    open(out, "w").write(t)
    bad = hazard.check(t)
    print(out, "hazards:", len(bad), "bytes:", len(t))
    for b in bad[:10]: print(b)
```

```python
from dsl import *
import struct
def f2u(x):
    return struct.unpack("<I", struct.pack("<f", x))[0]

KB = 1024
WS_WQ = 0
WS_W1 = 3 * MB
WS_WO = 5 * MB
WS_W2 = 6 * MB
WS_CSQ = 8 * MB
WS_CS1 = 8 * MB + 128 * KB
WS_ST0 = 8 * MB + 256 * KB
WS_ST1 = 8 * MB + 512 * KB
WS_X0 = 9 * MB
WS_X1 = 12 * MB
WS_X2 = 15 * MB
WS_O = 18 * MB
WS_Q = 21 * MB
WS_KV = 24 * MB
WS_H = 30 * MB
X_BYTES = 2048 * 640 * 2
H_BYTES = 2048 * 1536 * 2
ST_BYTES = 16 * 2048 * 8
Q_BYTES = 32 * 64 * 1280
KV_BYTES = 32 * 64 * 2560
WS_SIZE = 40 * MB
QSCALE = (20 ** -0.5) * 1.4426950408889634
KVPAD = 0
NCSP = 10

def wave_id(k, sreg, vtmp=1):
    k(f"v_lshrrev_b32 v{vtmp}, 6, v0")
    k("s_nop 0")
    k(f"v_readfirstlane_b32 s{sreg}, v{vtmp}")
    k("v_and_b32 v0, 63, v0")

def gen_prep(dbg=()):
    NWG = 220
    k = Kern("prep_kernel", NWG, 512, 4 * 8192, vgpr=64)
    k(f"s_cmp_ge_u32 s2, {NWG}")
    k(f"s_cbranch_scc1 {k.ref('end')}")
    k.karg(4, 0)
    k.karg(6, 8)
    k.karg(8, 16)
    k.karg(10, 32)
    k.karg(12, 48)
    k.karg(14, 80)
    wave_id(k, 26)
    k("s_waitcnt lgkmcnt(0)")
    k.srd(16, 14, 0, WS_SIZE)
    k("s_cmp_ge_u32 s26, 4")
    k(f"s_cbranch_scc1 {k.ref('stats')}")
    if "now" in dbg: k(f"s_branch {k.ref('end')}")
    k("s_lshl_b32 s3, s2, 2")
    k("s_add_u32 s3, s3, s26")
    def setup(lbl, lo, ncg, ptr, size, pitch, TN, K, dst, cs, csp):
        k.lab(lbl)
        k(f"s_sub_u32 s3, s3, {lo}")
        k.srd(20, ptr, 0, size)
        k(f"s_mov_b32 s27, {pitch}")
        k(f"s_mov_b32 s28, {(65536 + TN - 1)//TN}")
        k(f"s_mov_b32 s29, {TN}")
        k(f"s_mov_b32 s30, {K//8*TN*16}")
        k(f"s_mov_b32 s31, {dst}")
        k(f"s_mul_i32 s32, s3, {(65536 + ncg - 1)//ncg}")
        k("s_lshr_b32 s32, s32, 16")
        k(f"s_mul_i32 s33, s32, {ncg}")
        k("s_sub_u32 s33, s3, s33")
        k(f"s_mov_b32 s34, {cs if cs is not None else 0xffffffff:#x}")
        k(f"s_mov_b32 s35, {csp}")
        k(f"s_branch {k.ref('go')}")
    k("s_cmp_ge_u32 s3, 640"); k(f"s_cbranch_scc1 {k.ref('m_w2')}")
    k("s_cmp_ge_u32 s3, 540"); k(f"s_cbranch_scc1 {k.ref('m_wo')}")
    k("s_cmp_ge_u32 s3, 300"); k(f"s_cbranch_scc1 {k.ref('m_w1')}")
    setup("m_wq", 0, 30, 6, 640 * 3840, 3840, 128, 640, WS_WQ, WS_CSQ, 1920 * 4)
    setup("m_w1", 300, 24, 10, 640 * 3072, 3072, 96, 640, WS_W1, WS_CS1, 1536 * 4)
    setup("m_wo", 540, 10, 8, 640 * 1280, 1280, 80, 640, WS_WO, None, 0)
    setup("m_w2", 640, 10, 12, 1536 * 1280, 1280, 80, 1536, WS_W2, None, 0)
    k.lab("go")
    k("v_lshrrev_b32 v2, 3, v0")
    k("v_mul_lo_u32 v2, v2, s27")
    k("v_and_b32 v3, 7, v0")
    k("v_lshl_add_u32 v2, v3, 4, v2")
    k("s_lshl_b32 s36, s32, 6")
    k("s_mul_i32 s36, s36, s27")
    k("s_lshl_b32 s37, s33, 7")
    k("s_add_u32 s36, s36, s37")
    k("s_lshl_b32 s38, s27, 3")
    k("s_lshl_b32 s39, s26, 13")
    for j in range(8):
        k(f"s_add_u32 m0, s39, {j*1024}")
        k("s_nop 0")
        k("buffer_load_dwordx4 v2, s[20:23], s36 offen lds")
        if j < 7:
            k("s_add_u32 s36, s36, s38")
    k("s_lshl_b32 s40, s33, 6")
    k("v_add_u32 v4, s40, v0")
    k("v_mul_lo_u32 v5, v4, s28")
    k("v_lshrrev_b32 v5, 16, v5")
    k("v_mul_lo_u32 v6, v5, s29")
    k("v_sub_u32 v6, v4, v6")
    k("v_mul_lo_u32 v5, v5, s30")
    k("v_lshl_add_u32 v5, v6, 4, v5")
    k("s_lshl_b32 s41, s29, 4")
    k("s_lshl_b32 s42, s32, 3")
    k("s_mul_i32 s42, s42, s41")
    k("s_add_u32 s42, s42, s31")
    k("v_bfe_u32 v7, v0, 2, 2")
    k("v_lshlrev_b32 v7, 7, v7")
    k("v_lshrrev_b32 v8, 4, v0")
    k("v_lshl_add_u32 v7, v8, 5, v7")
    k("v_and_b32 v8, 3, v0")
    k("v_lshl_add_u32 v7, v8, 3, v7")
    k("v_add_u32 v7, s39, v7")
    k("v_mov_b32 v10, 0")
    for ku in range(8):
        k(f"s_waitcnt vmcnt({7-ku if ku == 0 else 7})") if False else None
    for ku in range(8):
        k("s_waitcnt vmcnt(7)")
        r = 16 + 4 * ku
        k(f"ds_read_b64_tr_b16 v[{r}:{r+1}], v7 offset:{ku*1024}")
        k(f"ds_read_b64_tr_b16 v[{r+2}:{r+3}], v7 offset:{ku*1024+512}")
        k("s_waitcnt lgkmcnt(0)")
        k(f"buffer_store_dwordx4 v[{r}:{r+3}], v5, s[16:19], s42 offen")
        if ku < 7:
            k("s_add_u32 s42, s42, s41")
    k("s_cmp_eq_u32 s34, 0xffffffff")
    k(f"s_cbranch_scc1 {k.ref('fin')}")
    for i in range(32):
        r = 16 + i
        k(f"v_lshlrev_b32 v8, 16, v{r}")
        k(f"v_and_b32 v9, 0xffff0000, v{r}")
        k("v_add_f32 v10, v10, v8")
        k("v_add_f32 v10, v10, v9")
    k("s_mul_i32 s43, s32, s35")
    k("s_add_u32 s43, s43, s34")
    k("v_lshlrev_b32 v4, 2, v4")
    k("buffer_store_dword v10, v4, s[16:19], s43 offen")
    k.lab("fin")
    k("s_waitcnt vmcnt(0)")
    k("s_endpgm")
    k.lab("stats")
    if "nox" in dbg: k(f"s_branch {k.ref('end')}")
    k("s_cmp_ge_u32 s2, 128")
    k(f"s_cbranch_scc1 {k.ref('end')}")
    k.srd(20, 4, 0, X_BYTES)
    k("s_sub_u32 s26, s26, 4")
    k("s_lshl_b32 s3, s2, 4")
    k("s_lshl_b32 s27, s26, 2")
    k("s_add_u32 s3, s3, s27")
    k("v_lshrrev_b32 v1, 4, v0")
    k("v_add_u32 v1, s3, v1")
    k("v_and_b32 v2, 15, v0")
    k("v_mul_u32_u24 v3, 1280, v1")
    k("v_lshl_add_u32 v3, v2, 4, v3")
    for i in range(5):
        k(f"buffer_load_dwordx4 v[{8+4*i}:{11+4*i}], v3, s[20:23], 0 offen offset:{256*i}")
    k("v_lshrrev_b32 v30, 5, v1")
    k("v_mul_u32_u24 v30, 40960, v30")
    k("v_and_b32 v31, 31, v1")
    k("v_lshl_add_u32 v30, v31, 4, v30")
    k("v_lshl_add_u32 v30, v2, 9, v30")
    k("v_mov_b32 v4, 0")
    k("v_mov_b32 v5, 0")
    for i in range(5):
        k(f"s_waitcnt vmcnt(4)")
        k(f"s_mov_b32 s28, {WS_X0 + i*8192}")
        k(f"buffer_store_dwordx4 v[{8+4*i}:{11+4*i}], v30, s[16:19], s28 offen")
        for j in range(4):
            r = 8 + 4 * i + j
            k(f"v_lshlrev_b32 v6, 16, v{r}")
            k(f"v_and_b32 v7, 0xffff0000, v{r}")
            k("v_add_f32 v4, v4, v6")
            k("v_fmac_f32 v5, v6, v6")
            k("v_add_f32 v4, v4, v7")
            k("v_fmac_f32 v5, v7, v7")
    for sh in (8, 4, 2, 1):
        k("s_nop 1")
        k(f"v_add_f32_dpp v4, v4, v4 row_ror:{sh} row_mask:0xf bank_mask:0xf")
        k(f"v_add_f32_dpp v5, v5, v5 row_ror:{sh} row_mask:0xf bank_mask:0xf")
    k("v_lshlrev_b32 v3, 3, v1")
    k("v_cmp_eq_u32 vcc, 0, v2")
    k("s_and_saveexec_b64 s[30:31], vcc")
    k(f"s_mov_b32 s28, {WS_ST0}")
    k("buffer_store_dwordx2 v[4:5], v3, s[16:19], s28 offen")
    k("s_waitcnt vmcnt(0)")
    k.lab("end")
    k("s_endpgm")
    return k

def ring_loader(k, NCH, NSLOT, dma, nD, pre_b0=None, post_b0=None, first=2, pre_issue=None, fz=None):
    if pre_issue:
        w = pre_issue()
    else:
        for c_ in range(first):
            dma(c_)
        w = nD*(first-1)
    k(f"s_waitcnt vmcnt({w})")
    if pre_b0: pre_b0()
    k("s_barrier")
    issued = first
    if post_b0: post_b0()
    ring_tail(k, NCH, NSLOT, dma, nD, issued, fz)

def ring_tail(k, NCH, NSLOT, dma, nD, issued, fz=None):
    npf = 0
    for i in range(1, NCH):
        while issued < NCH and issued <= i - 2 + NSLOT:
            dma(issued); issued += 1
            if issued == NCH and fz:
                npf = fz.prefetch_w()
                if fz.tail: npf += fz.tail()
        k(f"s_waitcnt vmcnt({(issued - 1 - i) * nD + npf})")
        k("s_barrier")


WS_FLAG = 8 * MB + 768 * KB
NFLAGSET = 8
WSET = 12
LDS_CNT = 147456
POLL_MAX = 0x4000
class Fuse:
    def __init__(self, name, nph, kidx0, xl=False, modeset=None, force_slow=False, sleep=1, xplain=False, attn_first=False):
        self.attn_first = attn_first
        self.k = Kern(name, 256, 512, 163840 if attn_first else LDS_CNT + 256, vgpr=256)
        self.k.fused = True
        self.nph, self.kidx0, self.p = nph, kidx0, -1
        self.xl, self.modeset, self.force_slow, self.sleep = xl, modeset, force_slow, sleep
        self.xplain = xplain and xl
    def begin(self, wait=None, sig=None, rot=0, pfw=None):
        self.p += 1
        self.wait, self.sig, self.rot, self.pfw = wait, sig, rot, pfw
        self.tail = None
        k = self.k
        if self.p == 0:
            k.pfx = ""
            k("s_cmp_ge_u32 s2, 256")
            k(f"s_cbranch_scc1 {k.ref('fin')}")
            k.karg(6, 80)
            wave_id(k, 64)
            if not self.attn_first:
                k(f"v_mov_b32 v1, {LDS_CNT}")
                k("v_mov_b32 v2, 0")
                k("ds_write_b32 v1, v2")
        k.pfx = f"p{self.p}_"
        k.lab("entry")
        k.stamp(0)
        k("s_mov_b32 s26, s64")
    @property
    def last(self): return self.p == self.nph - 1
    def nxt(self): return f"{self.k.name}_p{self.p+1}_entry"
    def leave(self):
        k = self.k
        k.stamp_save(self.p)
        if self.last:
            k.stamp_flush_all(6, self.kidx0, self.nph, 64)
            k("s_endpgm")
        else:
            k(f"s_branch {self.nxt()}")
    def skip_to_end(self):
        assert self.last
        self.k(f"s_cbranch_scc1 {self.k.name}_skip")
    def close(self):
        k = self.k
        k.pfx = ""
        k.lab("skip")
        k.stamp_flush_all(6, self.kidx0, self.nph, 64)
        k.lab("fin")
        k("s_endpgm")
        return k
    def mode_word(self, d):
        k = self.k
        k(f"s_and_b32 s{d}, s2, 7")
        k(f"s_lshl_b32 s{d}, s{d}, 7")
        k(f"s_add_u32 s{d}, s{d}, {WS_FLAG + self.modeset*4096}")
    def mode_token(self, d, t):
        k = self.k
        k(f"s_getreg_b32 s{t}, hwreg(HW_REG_XCC_ID, 0, 4)")
        k(f"s_mul_i32 s{d}, s{t}, s{t}")
        k(f"s_lshl_b32 s{d}, s{d}, 16")
        k(f"s_lshl_b32 s{t}, s{t}, 6")
        k(f"s_add_u32 s{d}, s{d}, s{t}")
        k(f"s_add_u32 s{d}, s{d}, 1")
    def mode_publish(self, w0=0):
        if not (self.xl and self.p == 0): return
        k = self.k
        k(f"s_cmp_lg_u32 s26, {w0}")
        k(f"s_cbranch_scc1 {k.ref('nopub')}")
        self.mode_token(65, 66)
        self.mode_word(66)
        k("s_mov_b64 exec, 1")
        k("v_mov_b32 v10, s65")
        k("buffer_atomic_add v10, off, s[12:15], s66 sc1")
        k("s_mov_b64 exec, -1")
        k.lab("nopub")
    def mode_issue(self, srd, vd):
        k = self.k
        self.mode_word(62)
        k(f"buffer_load_dword v{vd}, off, s[{srd}:{srd+3}], s62 sc1")
    def mode_resolve(self, srd, vd):
        k = self.k
        l0, l1 = k.newlab("mpoll"), k.newlab("mpolled")
        self.mode_word(62)
        k(f"s_mov_b32 s65, {POLL_MAX}")
        k.lab(l0)
        k(f"v_readfirstlane_b32 s67, v{vd}")
        k("s_and_b32 s66, s67, 63")
        k("s_cmp_eq_u32 s66, 32")
        k(f"s_cbranch_scc1 {k.ref(l1)}")
        k("s_sleep 2")
        k(f"buffer_load_dword v{vd}, off, s[{srd}:{srd+3}], s62 sc1")
        k("s_waitcnt vmcnt(0)")
        k("s_sub_u32 s65, s65, 1")
        k(f"s_cbranch_scc0 {k.ref(l0)}")
        k.lab(l1)
        self.mode_token(65, 66)
        k("s_lshl_b32 s65, s65, 5")
        k("s_cmp_lg_u32 s65, s67")
        k("s_cselect_b32 s63, 1, 0")
        if self.force_slow: k("s_mov_b32 s63, 1")
    def prefetch_w(self):
        if not self.pfw: return 0
        k = self.k
        base, nb = self.pfw
        per_w = nb // 128
        lines = (per_w + 127) // 128
        k("s_lshr_b32 s65, s2, 3")
        k("s_lshl_b32 s65, s65, 2")
        k("s_add_u32 s65, s65, s26")
        k(f"s_mul_i32 s65, s65, {per_w}")
        k(f"s_add_u32 s65, s65, {base}")
        k("v_lshlrev_b32 v12, 7, v0")
        n = 0
        done = 0
        while done < lines:
            n_ = min(64, lines - done)
            if n_ < 64: k(f"s_mov_b64 exec, {(1 << n_) - 1:#x}") if n_ <= 32 else (k(f"s_mov_b32 exec_hi, {((1 << n_) - 1) >> 32:#x}"))
            k(f"buffer_load_dword v{13+n}, v12, s[12:15], s65 offen")
            if n_ < 64: k("s_mov_b64 exec, -1")
            done += n_; n += 1
            if done < lines: k(f"s_add_u32 s65, s65, {64*128}")
        return n
    def poll(self, line, nprod):
        k = self.k
        if self.xl and self.p == 1 and not self.attn_first:
            k(f"s_mov_b32 s61, s{line}")
            self.mode_issue(12, 11)
            k("s_waitcnt vmcnt(0)")
            self.mode_resolve(12, 11)
            line = 61
        k(f"s_lshl_b32 s66, s{line}, 7")
        k(f"s_add_u32 s66, s66, {WS_FLAG + self.wait*4096}")
        k("v_lshlrev_b32 v10, 2, v0")
        k(f"s_mov_b64 exec, {(1 << nprod) - 1:#x}")
        k(f"s_mov_b32 s65, {POLL_MAX}")
        k.lab("poll")
        k("buffer_load_dword v11, v10, s[12:15], s66 offen sc1")
        k("s_waitcnt vmcnt(0)")
        k("v_cmp_ne_u32 vcc, 0, v11")
        k(f"s_cmp_eq_u32 vcc_lo, {(1 << nprod) - 1:#x}")
        k(f"s_cbranch_scc1 {k.ref('polled')}")
        k(f"s_sleep {self.sleep}")
        k("s_sub_u32 s65, s65, 1")
        k(f"s_cbranch_scc0 {k.ref('poll')}")
        k.lab("polled")
        k("s_mov_b64 exec, -1")
        if self.xl:
            k("s_cmp_eq_u32 s63, 0")
            k(f"s_cbranch_scc1 {k.ref('noacq')}")
            k("buffer_inv sc1")
            k("s_waitcnt vmcnt(0)")
            k.lab("noacq")
        k.stamp(3)
    def signal(self):
        k = self.k
        l = k.newlab("nosig")
        k("s_mov_b64 exec, 1")
        k(f"v_mov_b32 v1, {LDS_CNT}")
        k("v_mov_b32 v2, 1")
        k("ds_add_rtn_u32 v3, v1, v2")
        k("s_lshl_b32 s37, s24, 7")
        k("s_lshl_b32 s38, s25, 2")
        k("s_add_u32 s37, s37, s38")
        k(f"s_add_u32 s37, s37, {WS_FLAG + self.sig*4096}")
        k("s_waitcnt lgkmcnt(0)")
        k("v_readfirstlane_b32 s38, v3")
        k("s_and_b32 s38, s38, 3")
        k("s_cmp_eq_u32 s38, 3")
        k(f"s_cbranch_scc0 {k.ref(l)}")
        if self.xl:
            l2 = k.newlab("fastsig")
            k("s_cmp_eq_u32 s63, 0")
            k(f"s_cbranch_scc1 {k.ref(l2)}")
            k("buffer_wbl2 sc1")
            k("s_waitcnt vmcnt(0)")
            k("buffer_store_dword v2, off, s[48:51], s37 sc1")
            k(f"s_branch {k.ref(l)}")
            k.lab(l2)
            k("buffer_store_dword v2, off, s[48:51], s37 ; nosc")
        else:
            k("buffer_store_dword v2, off, s[48:51], s37 sc1")
        k.lab(l)
        k("s_mov_b64 exec, -1")

    def attn_done(self, role):
        k = self.k
        self.mode_resolve(12, 250)
        l, l2 = k.newlab("asig"), k.newlab("afast")
        k(f"s_add_u32 s37, s25, {role}")
        k("s_lshl_b32 s37, s37, 7")
        k("s_lshl_b32 s38, s24, 2")
        k("s_add_u32 s37, s37, s38")
        k(f"s_add_u32 s37, s37, {WS_FLAG + self.sig*4096}")
        k("s_mov_b64 exec, 1")
        k("v_mov_b32 v2, 1")
        k("s_cmp_eq_u32 s63, 0")
        k(f"s_cbranch_scc1 {k.ref(l2)}")
        k("buffer_wbl2 sc1")
        k("s_waitcnt vmcnt(0)")
        k("buffer_store_dword v2, off, s[12:15], s37 sc1")
        k(f"s_branch {k.ref(l)}")
        k.lab(l2)
        k("buffer_store_dword v2, off, s[12:15], s37 ; nosc")
        k.lab(l)
        if role == 0:
            k(f"v_mov_b32 v1, {LDS_CNT}")
            k("v_mov_b32 v2, 0")
            k("ds_write_b32 v1, v2")
            k("s_waitcnt lgkmcnt(0)")
        k("s_mov_b64 exec, -1")
        k("s_setprio 0")
        self.leave()
    def wflag_set(self, lw, v):
        k = self.k
        k("s_waitcnt vmcnt(0)")
        k("s_lshl_b32 s52, s2, 2")
        k(f"s_add_u32 s52, s52, s{lw}")
        k("s_lshl_b32 s52, s52, 2")
        k(f"s_add_u32 s52, s52, {WS_FLAG + WSET*4096}")
        k("s_mov_b64 exec, 1")
        k(f"v_mov_b32 v{v}, 1")
        k(f"buffer_store_dword v{v}, off, s[12:15], s52 sc1")
        k("s_mov_b64 exec, -1")
    def wflag_issue(self, v):
        k = self.k
        k(f"v_lshlrev_b32 v{v+16}, 4, v0")
        k(f"s_mov_b32 s52, {WS_FLAG + WSET*4096}")
        for i in range(4):
            k(f"buffer_load_dwordx4 v[{v+4*i}:{v+4*i+3}], v{v+16}, s[12:15], s52 offen offset:{i*1024} sc1")
    def wflag_wait(self, v):
        k = self.k
        l0, l1 = k.newlab("wpoll"), k.newlab("wready")
        k(f"s_mov_b32 s53, {POLL_MAX}")
        k.lab(l0)
        k("s_waitcnt vmcnt(0)")
        for i in range(1, 16):
            k(f"v_and_b32 v{v}, v{v}, v{v+i}")
        k(f"v_cmp_ne_u32 vcc, 0, v{v}")
        k("s_nop 1")
        k("s_cmp_eq_u64 vcc, -1")
        k(f"s_cbranch_scc1 {k.ref(l1)}")
        k("s_sleep 4")
        self.wflag_issue(v)
        k("s_sub_u32 s53, s53, 1")
        k(f"s_cbranch_scc0 {k.ref(l0)}")
        k.lab(l1)

def fin_compute(k, fz, kidx):
    k.stamp(4)
    if fz is None:
        k.stamp_flush(6, kidx, 5, 26)
        k("s_endpgm")
    else:
        if fz.xl and fz.p == 0: fz.mode_resolve(48, 250)
        if fz.sig is not None: fz.signal()
        fz.leave()

def fin_loader(k, fz, kidx):
    k.stamp(4)
    if fz is None:
        k("s_add_u32 s26, s26, 4")
        k.stamp_flush(6, kidx, 5, 26)
        k.lab("end")
        k("s_endpgm")
    else:
        fz.leave()


PFS = 128
CW = 0
XSC = ""
PT = ""
OUTP = 0
CWN = 2
class TilePF:
    def __init__(self, k, pfd, first, NCH, va, vs, vd, srd):
        self.k, self.pfd, self.first, self.NCH, self.va, self.vs, self.vd, self.srd = k, pfd, first, NCH, va, vs, vd, srd
        self.next = first
    def one(self):
        k = self.k
        k(f"buffer_load_dword v{self.vd}, v{self.va}, s[{self.srd}:{self.srd+3}], 0 offen")
        self.next += 1
        if self.next < self.NCH:
            k(f"v_add_u32 v{self.va}, v{self.vs}, v{self.va}")
    def start(self):
        self.next = self.first
        while self.next < self.NCH and self.next <= self.pfd:
            self.one()
    def at_barrier(self):
        if self.pfd and self.next < self.NCH:
            self.one()

def gen_gemmA(name, kind, layer, kidx=0, dbg=(), first=2, pfd=0, fz=None):
    if kind == "qkv":
        NWG, NB, TB, TN = 240, 2, 2, 128
        WS_W, XSRC, ST, NPART, CSP, NCOL = WS_WQ, (WS_X0 if layer == 0 else WS_X2), WS_ST0, (1 if layer == 0 else 16), WS_CSQ, 1920
    else:
        NWG, NB, TB, TN = 256, 3, 1, 96
        WS_W, XSRC, ST, NPART, CSP, NCOL = WS_W1, WS_X1, WS_ST1, 16, WS_CS1, 1536
    WB = TN * 128
    SLOT = WB + 16384
    NSLOT = 4
    NCH = 10
    STATS = NSLOT * SLOT
    LDS = STATS + 2048
    rot = fz.rot if fz else 0
    HO = bool(fz and fz.wait is not None)
    XS = " sc1" if (HO and not fz.xplain) else ""
    if fz is None:
        k = Kern(name, NWG, 512, LDS, vgpr=256)
        k(f"s_cmp_ge_u32 s2, {NWG}")
        k(f"s_cbranch_scc1 {k.ref('end')}")
        k.stamp(0)
        k.karg(6, 80)
        if kind == "w1":
            k.karg(8, 40)
        wave_id(k, 26)
    else:
        k = fz.k
        if NWG < 256:
            k(f"s_cmp_ge_u32 s2, {NWG}")
            fz.skip_to_end()
        if kind == "w1":
            k.karg(8, 40)
    k("s_and_b32 s20, s2, 7")
    k("s_lshr_b32 s21, s2, 3")
    if fz and fz.xl:
        k("s_and_b32 s22, s21, 1")
        k("s_lshl_b32 s23, s20, 1")
        k("s_add_u32 s24, s23, s22")
        k("s_lshr_b32 s25, s21, 1")
    else:
        if kind == "qkv":
            k("s_and_b32 s22, s20, 1")
            k("s_mul_i32 s22, s22, 30")
            k("s_add_u32 s22, s22, s21")
            k("s_lshr_b32 s25, s22, 2")
            k("s_and_b32 s22, s22, 3")
        else:
            k("s_and_b32 s22, s20, 1")
            k("s_lshl_b32 s22, s22, 3")
            k("s_lshr_b32 s23, s21, 2")
            k("s_add_u32 s25, s22, s23")
            k("s_and_b32 s22, s21, 3")
        k("s_lshr_b32 s23, s20, 1")
        k("s_lshl_b32 s23, s23, 2")
        k("s_add_u32 s24, s23, s22")
    k("s_cmp_lt_u32 s26, 4")
    k(f"s_cbranch_scc1 {k.ref('compute')}")

    k("s_sub_u32 s26, s26, 4")
    k("v_lshlrev_b32 v1, 4, v0")
    nW = WB // 4096
    k(f"s_mul_i32 s40, s25, {80*TN*16}")
    k(f"s_mul_i32 s41, s26, {nW*1024}")
    k("s_add_u32 s40, s40, s41")
    k(f"s_add_u32 s40, s40, {WS_W}")
    k("s_mov_b32 s42, s41")
    k("s_lshl_b32 s43, s24, 2")
    k("s_add_u32 s43, s43, s26")
    k("s_mul_i32 s43, s43, 40960")
    k(f"s_add_u32 s43, s43, {XSRC}")
    k("s_lshl_b32 s44, s26, 12")
    k(f"s_add_u32 s44, s44, {WB}")
    k("s_waitcnt lgkmcnt(0)")
    k.srd(12, 6, 0, WS_SIZE)
    def dma(ch, parts="wx"):
        if "nodma" in dbg: return
        slot = (ch + rot) % NSLOT
        if "w" in parts:
            k(f"s_add_u32 m0, s42, {slot*SLOT}")
            k(f"s_add_u32 s45, s40, {ch*WB}")
            for i in range(nW):
                k(f"buffer_load_dwordx4 v1, s[12:15], s45 offen offset:{i*1024} lds")
        if "x" in parts:
            k(f"s_add_u32 m0, s44, {slot*SLOT}")
            k(f"s_add_u32 s45, s43, {ch*4096}")
            for i in range(4):
                k(f"buffer_load_dwordx4 v1, s[12:15], s45 offen offset:{i*1024}{XS} lds")
    nD = nW + 4
    k.stamp(1)
    early = HO
    def stats_loads():
        k("s_lshl_b32 s46, s24, 7")
        k("s_lshl_b32 s47, s26, 5")
        k("s_add_u32 s46, s46, s47")
        k("v_add_u32 v4, s46, v2")
        k("v_lshlrev_b32 v4, 3, v4")
        if NPART == 16:
            k("v_lshl_add_u32 v4, v3, 17, v4")
            for p in range(8):
                k(f"s_mov_b32 s47, {ST + p*16384}")
                k(f"buffer_load_dwordx2 v[{16+2*p}:{17+2*p}], v4, s[12:15], s47 offen{XS}")
        else:
            k(f"s_mov_b32 s47, {ST}")
            k(f"buffer_load_dwordx2 v[16:17], v4, s[12:15], s47 offen{XS}")
    def cs_loads():
        k("s_lshl_b32 s47, s26, 5")
        k("v_add_u32 v5, s47, v2")
        k(f"s_mul_i32 s47, s25, {TN}")
        k("v_add_u32 v6, s47, v5")
        k("v_lshlrev_b32 v7, 2, v6")
        k(f"v_mul_u32_u24 v8, {5*NCOL*4}, v3")
        k("v_add_u32 v7, v7, v8")
        for p in range(5):
            k(f"s_mov_b32 s47, {CSP + p*NCOL*4}")
            k(f"buffer_load_dword v{32+p}, v7, s[12:15], s47 offen")
        if kind == "w1":
            k.srd(16, 8, 0, 1536 * 2)
            k("v_lshlrev_b32 v9, 1, v6")
            k("buffer_load_ushort v38, v9, s[16:19], 0 offen")
    if early:
        for c_ in range(first):
            dma(c_, "w")
        k("v_and_b32 v2, 31, v0")
        k("v_lshrrev_b32 v3, 5, v0")
        cs_loads()
        k("s_lshr_b32 s67, s26, 1")
        k("s_lshl_b32 s46, s24, 1")
        k("s_add_u32 s67, s67, s46")
        fz.poll(67, 8)
        dma(0, "x")
        stats_loads()
        for c_ in range(1, first):
            dma(c_, "x")
        k(f"s_waitcnt vmcnt({4*(first-1)})")
    else:
        dma(0)
        k("v_and_b32 v2, 31, v0")
        k("v_lshrrev_b32 v3, 5, v0")
        stats_loads()
        cs_loads()
        for c_ in range(1, first):
            dma(c_)
        k(f"s_waitcnt vmcnt({nD*(first-1)})")
    k.stamp(2)
    k("s_barrier")
    if NPART == 16:
        for p in range(1, 8):
            k(f"v_add_f32 v16, v16, v{16+2*p}")
            k(f"v_add_f32 v17, v17, v{17+2*p}")
        k("v_mov_b32 v18, v16")
        k("v_mov_b32 v19, v17")
        k("s_nop 1")
        k("v_permlane32_swap_b32 v16, v18")
        k("v_permlane32_swap_b32 v17, v19")
        k("s_nop 1")
        k("v_add_f32 v16, v16, v18")
        k("v_add_f32 v17, v17, v19")
    k(f"v_mul_f32 v16, {f2u(1/640):#x}, v16")
    k(f"v_mul_f32 v17, {f2u(1/640):#x}, v17")
    k("v_fma_f32 v17, -v16, v16, v17")
    k("v_max_f32 v17, 0, v17")
    k(f"v_add_f32 v18, {f2u(1e-5):#x}, v17")
    k("v_rsq_f32 v18, v18")
    if kind == "w1":
        k("s_nop 0")
        k("v_mul_f32 v19, v18, v18")
        k("v_mul_f32 v19, v19, v17")
        k(f"v_add_f32 v19, {f2u(1e-5):#x}, v19")
        k("v_rsq_f32 v19, v19")
        k("s_nop 0")
        k("v_mul_f32 v18, v18, v19")
    else:
        k("s_cmp_lt_u32 s25, 5")
        k(f"s_cselect_b32 s46, {f2u(QSCALE):#x}, 1.0")
        k("v_mul_f32 v18, s46, v18")
    k("s_nop 0")
    k("v_mul_f32 v19, v18, v16")
    for p in range(1, 5):
        k(f"v_add_f32 v32, v32, v{32+p}")
    k("v_mov_b32 v33, v32")
    k("s_nop 1")
    k("v_permlane32_swap_b32 v32, v33")
    k("s_nop 1")
    k("v_add_f32 v32, v32, v33")
    k("v_cmp_eq_u32 vcc, 0, v3")
    k("s_lshl_b32 s47, s26, 7")
    k("v_lshlrev_b32 v2, 2, v2")
    k("v_add_u32 v2, s47, v2")
    k(f"v_add_u32 v2, {STATS}, v2")
    k("v_lshl_add_u32 v2, v3, 9, v2")
    k("v_cndmask_b32 v18, v19, v18, vcc")
    if kind == "w1":
        k("v_lshlrev_b32 v38, 16, v38")
        k("v_cndmask_b32 v32, v38, v32, vcc")
    k("ds_write_b32 v2, v18")
    k("ds_write_b32 v2, v32 offset:1024")
    k("s_waitcnt lgkmcnt(0)")
    issued = first
    if fz and fz.xl and "X" in PT and kind == "w1" and (layer == 0 or OUTP):
        def tail():
            k("v_lshlrev_b32 v12, 7, v0")
            k("s_mul_i32 s46, s24, 163840")
            k("s_lshl_b32 s47, s25, 2")
            k("s_add_u32 s47, s47, s26")
            k("s_mul_i32 s47, s47, 2560")
            k("s_add_u32 s46, s46, s47")
            if layer == 0:
                k(f"s_add_u32 s46, s46, {WS_X2}")
                k("s_mov_b64 exec, 0xfffff")
                k("buffer_load_dword v13, v12, s[12:15], s46 offen")
                k("s_lshl_b32 s46, s25, 14")
                k("s_lshl_b32 s47, s24, 10")
                k("s_add_u32 s46, s46, s47")
                k("s_lshl_b32 s47, s26, 8")
                k("s_add_u32 s46, s46, s47")
                k(f"s_add_u32 s46, s46, {WS_ST0}")
                k("s_mov_b64 exec, 3")
                k("buffer_load_dword v14, v12, s[12:15], s46 offen")
                k("s_mov_b64 exec, -1")
                return 2
            k.karg(56, 64)
            k("s_waitcnt lgkmcnt(0)")
            k.srd(16, 56, 0, X_BYTES)
            k("s_mov_b64 exec, 0xfffff")
            k("buffer_load_dword v13, v12, s[16:19], s46 offen")
            k("s_mov_b64 exec, -1")
            return 1
        fz.tail = tail
    free = [int(d[4:]) for d in dbg if d.startswith("free")]
    if free:
        for c_ in range(first, NCH):
            dma(c_)
            k(f"s_waitcnt vmcnt({free[0]})")
        k("s_waitcnt vmcnt(0)")
        for i in range(1, NCH): k("s_barrier")
    else:
        ring_tail(k, NCH, NSLOT, dma, nD, issued, fz)
    fin_loader(k, fz, kidx)

    k.lab("compute")
    ACC = 64
    FA = [128, 128 + 4 * NB]
    FB = [160, 160 + 4 * TB]
    AW, AX = 1, 3
    HH, TL = 17, 16
    if kind == "qkv":
        k("s_and_b32 s27, s26, 1")
        k("s_lshr_b32 s36, s26, 1")
    else:
        k("s_mov_b32 s27, 0")
        k("s_mov_b32 s36, s26")
    k(f"v_lshrrev_b32 v{HH}, 5, v0")
    k(f"v_and_b32 v{TL}, 31, v0")
    k(f"v_mul_u32_u24 v20, {TN*16}, v{HH}")
    k(f"v_lshl_add_u32 v20, v{TL}, 4, v20")
    k(f"s_mul_i32 s37, s27, {NB*512}")
    k(f"v_add_u32 v{AW}, s37, v20")
    k(f"v_add_u32 v{AW+1}, {2*SLOT}, v{AW}")
    k(f"v_lshlrev_b32 v20, 4, v0")
    k(f"s_mul_i32 s37, s36, {TB*4096}")
    k(f"s_add_u32 s37, s37, {WB}")
    k(f"v_add_u32 v{AX}, s37, v20")
    k(f"v_add_u32 v{AX+1}, {2*SLOT}, v{AX}")

    def reads(step):
        ch, ks = divmod(step, 4)
        slot = (ch + rot) % NSLOT
        half, sl = divmod(slot, 2)
        st = step & 1
        out = []
        for nb in range(NB):
            d = FA[st] + nb * 4
            out.append(f"ds_read_b128 v[{d}:{d+3}], v{AW+half} offset:{sl*SLOT + ks*2*TN*16 + nb*512}")
        for tb in range(TB):
            d = FB[st] + tb * 4
            out.append(f"ds_read_b128 v[{d}:{d+3}], v{AX+half} offset:{sl*SLOT + ks*1024 + tb*4096}")
        return out

    def mainloop(swap):
        nx0 = PFT.next
        k.stamp(1)
        k("s_barrier")
        k.stamp(2)
        for r in reads(0):
            k(r)
        NS = NCH * 4
        for step in range(NS):
            st = step & 1
            bar = step % 4 == 3 and step + 1 < NS
            cw = CW and not bar
            if not cw: k("s_waitcnt lgkmcnt(0)")
            if bar:
                k("s_barrier")
            rd = reads(step + 1) if step + 1 < NS else []
            if CW:
                wr, xr = rd[:NB], rd[NB:]
                rd = []
                for j in range(max(NB, TB)):
                    rd += wr[j:j+1] + xr[j:j+1]
            mf = []
            for nb in range(NB):
                for tb in range(TB):
                    d = ACC + (nb * TB + tb) * 16
                    a = FA[st] + nb * 4
                    b = FB[st] + tb * 4
                    c = "0" if step == 0 else f"v[{d}:{d+15}]"
                    if swap:
                        mf.append(f"v_mfma_f32_32x32x16_bf16 v[{d}:{d+15}], v[{b}:{b+3}], v[{a}:{a+3}], {c}")
                    else:
                        mf.append(f"v_mfma_f32_32x32x16_bf16 v[{d}:{d+15}], v[{a}:{a+3}], v[{b}:{b+3}], {c}")
            def pos(nb, tb):
                order = []
                for j in range(max(NB, TB)):
                    if j < NB: order.append(("w", j))
                    if j < TB: order.append(("x", j))
                return max(order.index(("w", nb)), order.index(("x", tb))), len(order)
            ri = 0
            issued_now = 0
            i = 0
            lastw = None
            for nb in range(NB):
                for tb in range(TB):
                    m = mf[i]
                    if cw and step > 0:
                        p, n_ = pos(nb, tb)
                        w_ = (n_ - 1 - p) + issued_now
                        if lastw is None or p > lastw:
                            k(f"s_waitcnt lgkmcnt({w_})")
                            lastw = p
                    elif cw and step == 0 and i == 0:
                        k("s_waitcnt lgkmcnt(0)")
                    if "nomfma" not in dbg: k(m)
                    nper = 2 if not CW else CWN
                    for r in rd[ri:ri + nper]:
                        if "nords" not in dbg: k(r)
                        issued_now += 1
                    ri += nper
                    if i == 2 and step % 4 == 3: PFT.at_barrier()
                    i += 1
            assert ri >= len(rd)
        k.stamp(3)
        PFT.next = nx0

    k("s_waitcnt lgkmcnt(0)")
    PFT = TilePF(k, pfd, first, NCH, 8, 9, 10, 56)
    if pfd:
        k.srd(56, 6, 0, WS_SIZE)
        PS = PFS
        sh = {128: 7, 64: 6, 32: 5}[PS]
        nw = WB // 16 // PS
        NWL = 1024 // PS
        nx = 512 // PS
        k("s_and_b32 s37, s24, 3")
        k(f"s_mul_i32 s37, s37, {WB//4}")
        k(f"s_mul_i32 s38, s26, {WB//16}")
        k("s_add_u32 s37, s37, s38")
        k(f"s_mul_i32 s38, s25, {80*TN*16}")
        k("s_add_u32 s37, s37, s38")
        k(f"s_add_u32 s37, s37, {WS_W + first*WB}")
        k("s_and_b32 s38, s20, 1")
        k(f"s_mul_i32 s38, s38, {7 if kind == 'qkv' else 8}")
        k("s_sub_u32 s38, s25, s38")
        k("s_lshr_b32 s39, s38, 1")
        k("s_lshl_b32 s40, s24, 2")
        k("s_add_u32 s39, s39, s40")
        k("s_mul_i32 s39, s39, 40960")
        k("s_and_b32 s38, s38, 1")
        k("s_lshl_b32 s38, s38, 11")
        k("s_add_u32 s39, s39, s38")
        k("s_lshl_b32 s38, s26, 9")
        k("s_add_u32 s39, s39, s38")
        k(f"s_add_u32 s39, s39, {XSRC + first*4096 - NWL*PS}")
        k(f"v_lshlrev_b32 v8, {sh}, v0")
        k("v_mov_b32 v11, s39")
        k("v_mov_b32 v12, s37")
        k(f"v_cmp_gt_u32 vcc, {NWL}, v0")
        k(f"v_mov_b32 v9, 4096")
        k(f"v_mov_b32 v13, {WB}")
        k("v_cndmask_b32 v11, v11, v12, vcc")
        k("v_cndmask_b32 v9, v9, v13, vcc")
        k("v_add_u32 v8, v11, v8")
        k(f"v_cmp_gt_u32 vcc, {NWL+nx}, v0")
        k("v_mov_b32 v12, 0x80000000")
        k("s_nop 0")
        k("v_cndmask_b32 v8, v12, v8, vcc")
        if nw < NWL:
            k(f"v_subrev_u32 v13, {nw}, v0")
            k(f"v_cmp_gt_u32 vcc, {NWL-nw}, v13")
            k("s_nop 1")
            k("v_cndmask_b32 v8, v8, v12, vcc")
        PFT.start()
    if kind == "qkv":
        k("s_cmp_ge_u32 s25, 10")
        k(f"s_cbranch_scc1 {k.ref('vpath')}")
        pre_qk(k, HH, TL)
        mainloop(False)
        epi_qk(k, ACC, STATS, HH, TL)
        fin_compute(k, fz, kidx)
        k.lab("vpath")
        pre_v(k, HH, TL)
        mainloop(True)
        epi_v(k, ACC, STATS, HH, TL)
        fin_compute(k, fz, kidx)
    else:
        if fz and fz.xl and "h" in PT:
            k.srd(48, 6, 0, WS_SIZE)
            k("s_lshl_b32 s39, s24, 2")
            k("s_add_u32 s39, s39, s36")
            k("s_mul_i32 s39, s39, 98304")
            k("s_mul_i32 s40, s25, 6144")
            k("s_add_u32 s39, s39, s40")
            k(f"s_add_u32 s39, s39, {WS_H}")
            k("v_lshlrev_b32 v63, 7, v0")
            k("s_mov_b32 exec_hi, 0xffff")
            k("buffer_load_dword v62, v63, s[48:51], s39 offen")
            k("s_mov_b32 exec_hi, -1")
        mainloop(False)
        epi_w1(k, ACC, STATS, HH, TL, NS_=(" ; nosc" if (fz and fz.xl and "h" not in XSC) else ""))
        fin_compute(k, fz, kidx)
    return k


def gen_qkv_raw(name, kidx=0, dbg=(), first=2, pfd=0, zflags=False):
    NWG, NB, TB, TN = 240, 2, 2, 128
    WB = 16384
    SLOT = 2 * WB
    NSLOT = 4
    NCH = 10
    STATS = NSLOT * SLOT
    LDS = STATS + 2048
    k = Kern(name, NWG, 512, LDS, vgpr=256)
    k(f"s_cmp_ge_u32 s2, {NWG}")
    k(f"s_cbranch_scc1 {k.ref('end')}")
    k.stamp(0)
    k.karg(8, 0)
    k.karg(10, 8)
    k.karg(6, 80)
    wave_id(k, 26)
    k("s_and_b32 s20, s2, 7")
    k("s_lshr_b32 s21, s2, 3")
    k("s_and_b32 s22, s20, 1")
    k("s_mul_i32 s22, s22, 30")
    k("s_add_u32 s22, s22, s21")
    k("s_lshr_b32 s25, s22, 2")
    k("s_and_b32 s22, s22, 3")
    k("s_lshr_b32 s23, s20, 1")
    k("s_lshl_b32 s23, s23, 2")
    k("s_add_u32 s24, s23, s22")
    k("s_cmp_lt_u32 s26, 4")
    k(f"s_cbranch_scc1 {k.ref('compute')}")
    k("s_sub_u32 s26, s26, 4")
    VW, VX = 4, 8
    k("v_lshrrev_b32 v1, 4, v0")
    k("v_and_b32 v2, 15, v0")
    k("v_lshlrev_b32 v3, 2, v1")
    k("v_xor_b32 v2, v2, v3")
    k("v_mul_u32_u24 v1, 3840, v1")
    k(f"v_lshl_add_u32 v{VW}, v2, 4, v1")
    for i in range(1, 4):
        k(f"v_add_u32 v{VW+i}, {4*3840-1024}, v{VW+i-1}")
    k("v_lshrrev_b32 v1, 3, v0")
    k("v_and_b32 v2, 7, v0")
    k("v_lshrrev_b32 v3, 1, v1")
    k("v_xor_b32 v2, v2, v3")
    k("v_mul_u32_u24 v1, 1280, v1")
    k(f"v_lshl_add_u32 v{VX}, v2, 4, v1")
    k("v_xor_b32 v2, 4, v2")
    k("v_lshl_add_u32 v2, v2, 4, v1")
    k(f"v_add_u32 v{VX+1}, {8*1280-1024}, v2")
    k(f"v_add_u32 v{VX+2}, {2*(8*1280-1024)}, v{VX}")
    k(f"v_add_u32 v{VX+3}, {3*(8*1280-1024)}, v2")
    k("s_lshl_b32 s40, s25, 8")
    k(f"s_mul_i32 s41, s26, {16*3840}")
    k("s_add_u32 s40, s40, s41")
    k("s_lshl_b32 s42, s26, 12")
    k("s_lshl_b32 s43, s24, 2")
    k("s_add_u32 s43, s43, s26")
    k(f"s_mul_i32 s43, s43, {32*1280}")
    k(f"s_add_u32 s44, s42, {WB}")
    k("s_waitcnt lgkmcnt(0)")
    k.srd(12, 10, 0, 640 * 3840)
    k.srd(16, 8, 0, X_BYTES)
    def dma(ch):
        slot = ch % NSLOT
        k(f"s_add_u32 m0, s42, {slot*SLOT}")
        k(f"s_add_u32 s45, s40, {ch*64*3840}")
        for i in range(4):
            k(f"buffer_load_dwordx4 v{VW+i}, s[12:15], s45 offen offset:{i*1024} lds")
        k(f"s_add_u32 m0, s44, {slot*SLOT}")
        k(f"s_add_u32 s45, s43, {ch*128}")
        for i in range(4):
            k(f"buffer_load_dwordx4 v{VX+i}, s[16:19], s45 offen offset:{i*1024} lds")
    k.stamp(1)
    def pre(): k.stamp(2)
    ring_loader(k, NCH, NSLOT, dma, 8, pre_b0=pre, first=first)
    if zflags:
        k(f"s_cmp_ge_u32 s2, {NFLAGSET*4}")
        k(f"s_cbranch_scc1 {k.ref('zdone')}")
        k("s_cmp_lg_u32 s26, 0")
        k(f"s_cbranch_scc1 {k.ref('zdone')}")
        k.srd(48, 6, WS_FLAG, NFLAGSET*4096)
        k("s_lshl_b32 s45, s2, 10")
        k("v_lshlrev_b32 v1, 4, v0")
        for r in range(4):
            k(f"v_mov_b32 v{12+r}, 0")
        k("buffer_store_dwordx4 v[12:15], v1, s[48:51], s45 offen")
        k("s_waitcnt vmcnt(0)")
        k.lab("zdone")
    k.stamp(4)
    k("s_add_u32 s26, s26, 4")
    k.stamp_flush(6, kidx, 5, 26)
    k.lab("end")
    k("s_endpgm")

    k.lab("compute")
    ACC = 64
    FA = [128, 128 + 4 * NB]
    FB = [160, 160 + 4 * TB]
    AW, AX = 2, 192
    HH, TL = 17, 16
    S1, S2, TMP, SEL, CS = 48, 50, 52, 60, 32
    k("s_and_b32 s27, s26, 1")
    k("s_lshr_b32 s36, s26, 1")
    k(f"v_lshrrev_b32 v{HH}, 5, v0")
    k(f"v_and_b32 v{TL}, 31, v0")
    k("v_lshrrev_b32 v20, 4, v0")
    k("v_bfe_u32 v21, v0, 2, 2")
    k("v_and_b32 v22, 3, v0")
    k("v_lshrrev_b32 v23, 1, v20")
    k("v_lshl_add_u32 v23, v23, 3, v21")
    k("v_and_b32 v18, 1, v20")
    k("v_lshlrev_b32 v18, 1, v18")
    k("v_lshrrev_b32 v19, 1, v22")
    k("v_add_u32 v18, v18, v19")
    k("s_lshl_b32 s37, s27, 3")
    k("v_add_u32 v18, s37, v18")
    k("v_lshlrev_b32 v19, 2, v21")
    k("v_xor_b32 v18, v18, v19")
    k("v_lshlrev_b32 v18, 4, v18")
    k("v_lshl_add_u32 v18, v23, 8, v18")
    k("v_and_b32 v19, 1, v22")
    k(f"v_lshl_add_u32 v{AW}, v19, 3, v18")
    k(f"v_add_u32 v{AW+1}, {2*SLOT}, v{AW}")
    k(f"v_xor_b32 v{AW+2}, 64, v{AW}")
    k(f"v_add_u32 v{AW+3}, {2*SLOT}, v{AW+2}")
    k(f"v_bfe_u32 v18, v{TL}, 1, 3")
    k(f"v_xor_b32 v18, v18, v{HH}")
    k("v_lshlrev_b32 v18, 4, v18")
    k(f"v_lshl_add_u32 v18, v{TL}, 7, v18")
    k("s_lshl_b32 s37, s36, 13")
    k("s_lshl_b32 s38, s27, 12")
    k("s_add_u32 s37, s37, s38")
    k(f"s_add_u32 s37, s37, {WB}")
    k(f"v_add_u32 v{AX}, s37, v18")
    for sl_ in range(2):
        for ks in range(4):
            d = AX + (sl_ * 4 + ks) * 2
            x = (sl_ << 12) | (ks << 5)
            if x: k(f"v_xor_b32 v{d}, {x}, v{AX}")
            k(f"v_add_u32 v{d+1}, {2*SLOT}, v{d}")
    k("v_and_b32 v18, 15, v0")
    k("v_bfe_u32 v19, v0, 4, 1")
    k("v_cmp_eq_u32 vcc, v18, v19")
    k("v_mov_b32 v19, 0x3f803f80")
    k("s_nop 0")
    k(f"v_cndmask_b32 v{SEL}, 0, v19, vcc")
    for r in range(1, 4):
        k(f"v_mov_b32 v{SEL+r}, v{SEL}")
    for r in range(4):
        k(f"v_mov_b32 v{S1+r}, 0")

    def reads(step):
        ch, ks = divmod(step, 4)
        slot = ch % NSLOT
        half, sl = divmod(slot, 2)
        st = step & 1
        out = []
        for tb in range(TB):
            d = FB[st] + tb * 4
            out.append(f"ds_read_b128 v[{d}:{d+3}], v{AX+(tb*4+ks)*2+half} offset:{sl*SLOT}")
        for nb in range(NB):
            d = FA[st] + nb * 4
            out.append(f"ds_read_b64_tr_b16 v[{d}:{d+1}], v{AW+nb*2+half} offset:{sl*SLOT + ks*4096}")
            out.append(f"ds_read_b64_tr_b16 v[{d+2}:{d+3}], v{AW+nb*2+half} offset:{sl*SLOT + ks*4096 + 1024}")
        return out

    def mainloop(swap):
        nx0 = PFT.next
        k.stamp(1)
        k("s_barrier")
        k.stamp(2)
        for r in reads(0):
            k(r)
        NS = NCH * 4
        for step in range(NS):
            st = step & 1
            k("s_waitcnt lgkmcnt(0)")
            if step % 4 == 3 and step + 1 < NS:
                k("s_barrier")
                PFT.at_barrier()
            rd = reads(step + 1) if step + 1 < NS else []
            mf = []
            for nb in range(NB):
                for tb in range(TB):
                    d = ACC + (nb * TB + tb) * 16
                    a = FA[st] + nb * 4
                    b = FB[st] + tb * 4
                    c = "0" if step == 0 else f"v[{d}:{d+15}]"
                    if swap:
                        mf.append(f"v_mfma_f32_32x32x16_bf16 v[{d}:{d+15}], v[{b}:{b+3}], v[{a}:{a+3}], {c}")
                    else:
                        mf.append(f"v_mfma_f32_32x32x16_bf16 v[{d}:{d+15}], v[{a}:{a+3}], v[{b}:{b+3}], {c}")
            for nb in range(NB):
                d = CS + 4 * nb
                a = FA[st] + nb * 4
                c = "0" if step == 0 else f"v[{d}:{d+3}]"
                mf.insert(2 + 3 * nb, f"v_mfma_f32_16x16x32_bf16 v[{d}:{d+3}], v[{SEL}:{SEL+3}], v[{a}:{a+3}], {c}")
            va = []
            for r in range(4):
                x = FB[st] + r
                t = TMP + 2 * (r & 1)
                va += [f"v_and_b32 v{t}, 0xffff0000, v{x}", f"v_lshlrev_b32 v{t+1}, 16, v{x}",
                       f"v_add_f32 v{S1}, v{S1}, v{t}", f"v_fmac_f32 v{S2}, v{t}, v{t}",
                       f"v_add_f32 v{S1+1}, v{S1+1}, v{t+1}", f"v_fmac_f32 v{S2+1}, v{t+1}, v{t+1}"]
            if "nostat" in dbg: va = []
            ri, vi = 0, 0
            for i, m in enumerate(mf):
                k(m)
                nrd = 1
                for r in rd[ri:ri + nrd]: k(r)
                ri += nrd
                for x in va[vi:vi + 4]: k(x)
                vi += 4
            assert ri >= len(rd) and vi >= len(va)
        k.stamp(3)
        k(f"v_add_f32 v40, v{S1}, v{S1+1}")
        k(f"v_add_f32 v41, v{S2}, v{S2+1}")
        k("v_mov_b32 v42, v40")
        k("v_mov_b32 v43, v41")
        k("s_nop 1")
        k("v_permlane32_swap_b32 v40, v42")
        k("v_permlane32_swap_b32 v41, v43")
        k("s_nop 1")
        k("v_add_f32 v40, v40, v42")
        k("v_add_f32 v41, v41, v43")
        k(f"v_mul_f32 v40, {f2u(1/640):#x}, v40")
        k(f"v_mul_f32 v41, {f2u(1/640):#x}, v41")
        k("v_fma_f32 v41, -v40, v40, v41")
        k("v_max_f32 v41, 0, v41")
        k(f"v_add_f32 v42, {f2u(1e-5):#x}, v41")
        k("v_rsq_f32 v42, v42")
        k("s_cmp_lt_u32 s25, 5")
        k(f"s_cselect_b32 s46, {f2u(QSCALE):#x}, 1.0")
        k("v_mul_f32 v42, s46, v42")
        k("v_mul_f32 v43, v42, v40")
        k(f"v_cmp_eq_u32 vcc, 0, v{HH}")
        k("s_lshl_b32 s37, s36, 8")
        k("s_lshl_b32 s38, s27, 7")
        k("s_add_u32 s37, s37, s38")
        k(f"s_add_u32 s37, s37, {STATS}")
        k(f"v_lshlrev_b32 v44, 2, v{TL}")
        k("v_add_u32 v44, s37, v44")
        k(f"v_lshl_add_u32 v44, v{HH}, 9, v44")
        k("v_cndmask_b32 v42, v43, v42, vcc")
        k("ds_write_b32 v44, v42")
        k("s_lshl_b32 s37, s27, 8")
        k(f"s_add_u32 s37, s37, {STATS+1024}")
        k("v_lshlrev_b32 v45, 2, v0")
        k("v_add_u32 v45, s37, v45")
        k("s_mov_b64 exec, 0xffff")
        for nb in range(NB):
            k(f"ds_write_b32 v45, v{CS+4*nb} offset:{nb*128}")
            k(f"ds_write_b32 v45, v{CS+4*nb+1} offset:{nb*128+64}")
        k("s_mov_b64 exec, -1")
        k("s_waitcnt lgkmcnt(0)")
        k("s_barrier")
        PFT.next = nx0

    k("s_waitcnt lgkmcnt(0)")
    PFT = TilePF(k, pfd, first, NCH, 8, 9, 10, 56)
    if pfd:
        k("s_cmp_lt_u32 s26, 2")
        k("s_cselect_b32 s56, s10, s8")
        k("s_cselect_b32 s57, s11, s9")
        k(f"s_mov_b32 s58, {X_BYTES}")
        k(f"s_cselect_b32 s58, {640*3840}, s58")
        k("s_mov_b32 s59, 0x00020000")
        k(f"s_movk_i32 s41, 128")
        k(f"s_cselect_b32 s41, {64*3840}, s41")
        k("s_cselect_b32 s42, 16, 8")
        k("s_and_b32 s37, s24, 3")
        k("s_lshl_b32 s37, s37, 4")
        k("s_lshl_b32 s38, s26, 3")
        k("s_add_u32 s37, s37, s38")
        k(f"s_add_u32 s37, s37, {first*64}")
        k("s_mul_i32 s37, s37, 3840")
        k("s_lshl_b32 s38, s25, 8")
        k("s_add_u32 s37, s37, s38")
        k("s_and_b32 s38, s20, 1")
        k("s_mul_i32 s38, s38, 7")
        k("s_sub_u32 s38, s25, s38")
        k("s_lshl_b32 s38, s38, 4")
        k("s_lshl_b32 s39, s24, 7")
        k("s_add_u32 s38, s38, s39")
        k("s_and_b32 s39, s26, 1")
        k("s_lshl_b32 s39, s39, 3")
        k("s_add_u32 s38, s38, s39")
        k("s_mul_i32 s38, s38, 1280")
        k(f"s_add_u32 s38, s38, {first*128}")
        k("s_cmp_lt_u32 s26, 2")
        k("s_cselect_b32 s37, s37, s38")
        k("v_lshrrev_b32 v11, 1, v0")
        k("v_mul_u32_u24 v11, 3840, v11")
        k("v_and_b32 v12, 1, v0")
        k("v_lshl_add_u32 v11, v12, 7, v11")
        k("v_mul_u32_u24 v12, 1280, v0")
        k("s_cselect_b64 vcc, -1, 0")
        k("v_mov_b32 v9, s41")
        k("v_cndmask_b32 v8, v12, v11, vcc")
        k("v_add_u32 v8, s37, v8")
        k("v_cmp_gt_u32 vcc, s42, v0")
        k("v_mov_b32 v12, 0x80000000")
        k("s_nop 0")
        k("v_cndmask_b32 v8, v12, v8, vcc")
        PFT.start()
    k("s_cmp_ge_u32 s25, 10")
    k(f"s_cbranch_scc1 {k.ref('vpath')}")
    pre_qk(k, HH, TL, perm=True)
    mainloop(False)
    epi_qk(k, ACC, STATS, HH, TL, perm=True)
    k.stamp(4); k.stamp_flush(6, kidx, 5, 26)
    k("s_endpgm")
    k.lab("vpath")
    pre_v(k, HH, TL, perm=True)
    mainloop(True)
    epi_v(k, ACC, STATS, HH, TL, perm=True)
    k.stamp(4); k.stamp_flush(6, kidx, 5, 26)
    k("s_endpgm")
    return k


def pre_qk(k, HH, TL, perm=False):
    k.srd(48, 6, 0, WS_SIZE)
    k("s_cmp_lt_u32 s25, 5")
    k(f"s_mov_b32 s37, {WS_KV}")
    k(f"s_cselect_b32 s37, {WS_Q}, s37")
    k("s_cselect_b32 s38, 0, 5")
    k("s_movk_i32 s39, 2560")
    k("s_cselect_b32 s39, 1280, s39")
    if KVPAD:
        k(f"s_mov_b32 s40, {163840 + KVPAD}")
        k("s_cselect_b32 s40, 81920, s40")
    else:
        k("s_lshl_b32 s40, s39, 6")
    k("s_sub_u32 s38, s25, s38")
    k("s_lshl_b32 s41, s24, 2")
    k("s_lshl_b32 s42, s36, 1")
    k("s_add_u32 s41, s41, s42")
    k("s_mul_i32 s41, s41, s39")
    k("s_add_u32 s52, s37, s41")
    k("s_add_u32 s53, s52, s39")
    if perm:
        k("s_cmp_eq_u32 s27, 1")
        k("s_cselect_b32 s37, s53, s52")
        k("s_cselect_b32 s53, s52, s53")
        k("s_mov_b32 s52, s37")
    k("s_lshl_b32 s38, s38, 5")
    k("s_lshl_b32 s42, s27, 4")
    k("s_add_u32 s38, s38, s42")
    k(f"v_add_u32 v21, s38, v{HH}")
    k(f"v_lshlrev_b32 v22, 3, v{TL}")
    for nb in range(2):
        for q in range(4):
            d = 24 + nb * 4 + q
            k(f"v_add_u32 v23, {nb*8+2*q}, v21")
            k("v_mul_u32_u24 v18, 205, v23")
            k("v_lshrrev_b32 v18, 10, v18")
            k("v_mul_u32_u24 v19, 5, v18")
            k("v_sub_u32 v23, v23, v19")
            k("v_mul_lo_u32 v18, v18, s40")
            k("v_cmp_gt_u32 vcc, 4, v23")
            k("v_lshrrev_b32 v19, 1, v23")
            k("v_lshl_add_u32 v18, v19, 9, v18")
            k("v_and_b32 v19, 1, v23")
            k("v_lshl_add_u32 v18, v19, 3, v18")
            k("v_cndmask_b32 v19, 0, v22, vcc")
            k("v_add_u32 v18, v18, v22")
            k(f"v_add_u32 v{d}, v18, v19")


def epi_qk(k, ACC, STATS, HH, TL, perm=False):
    NB, TB = 2, 2
    k(f"s_mul_i32 s37, s36, 256")
    k(f"v_lshlrev_b32 v20, 2, v{TL}")
    k(f"v_add_u32 v20, s37, v20")
    k(f"v_add_u32 v20, {STATS}, v20")
    if perm:
        k("s_lshl_b32 s37, s27, 7")
        k("v_xor_b32 v20, s37, v20")
        k("v_xor_b32 v19, 128, v20")
    for tb in range(TB):
        if perm:
            k(f"ds_read_b32 v{32+2*tb}, v{20-tb}")
            k(f"ds_read_b32 v{33+2*tb}, v{20-tb} offset:512")
        else:
            k(f"ds_read_b32 v{32+2*tb}, v20 offset:{tb*128}")
            k(f"ds_read_b32 v{33+2*tb}, v20 offset:{512+tb*128}")
    k(f"v_lshlrev_b32 v21, 4, v{HH}")
    k("s_lshl_b32 s37, s27, 8")
    k("v_add_u32 v21, s37, v21")
    k(f"v_add_u32 v21, {STATS+1024}, v21")
    CS = 128
    for nb in range(NB):
        for q in range(4):
            k(f"ds_read_b128 v[{CS+(nb*4+q)*4}:{CS+(nb*4+q)*4+3}], v21 offset:{nb*128+q*32}")
    k("s_waitcnt lgkmcnt(0)")
    k("s_nop 7")
    n = 0
    for nb in range(NB):
        for q in range(4):
            cs = CS + (nb * 4 + q) * 4
            for tb in range(TB):
                a = ACC + (nb * TB + tb) * 16 + q * 4
                rs, rm = 32 + 2 * tb, 33 + 2 * tb
                t = 36 + 4 * (n % 2)
                for h in range(2):
                    k(f"v_pk_mul_f32 v[{t+2*h}:{t+2*h+1}], v[{cs+2*h}:{cs+2*h+1}], v[{rs}:{rs+1}] op_sel:[0,1] op_sel_hi:[1,1]")
                for h in range(2):
                    k(f"v_pk_fma_f32 v[{t+2*h}:{t+2*h+1}], v[{a+2*h}:{a+2*h+1}], v[{rs}:{rs+1}], v[{t+2*h}:{t+2*h+1}] op_sel_hi:[1,0,1] neg_lo:[0,0,1] neg_hi:[0,0,1]")
                o = 44 + 2 * (n % 4)
                k(f"v_cvt_pk_bf16_f32 v{o}, v{t}, v{t+1}")
                k(f"v_cvt_pk_bf16_f32 v{o+1}, v{t+2}, v{t+3}")
                k(f"buffer_store_dwordx2 v[{o}:{o+1}], v{24+nb*4+q}, s[48:51], s{52+tb} offen")
                n += 1
    k("s_waitcnt vmcnt(0)")


def pre_v(k, HH, TL, perm=False):
    k.srd(48, 6, 0, WS_SIZE)
    k("s_sub_u32 s37, s25, 10")
    k("s_lshl_b32 s37, s37, 7")
    k("s_lshl_b32 s38, s27, 6")
    k("s_add_u32 s37, s37, s38")
    for nb in range(2):
        k(f"v_add_u32 v20, s37, v{TL}")
        if nb: k("v_add_u32 v20, 32, v20")
        k("v_mul_u32_u24 v21, 205, v20")
        k("v_lshrrev_b32 v21, 12, v21")
        k("v_mul_u32_u24 v22, 20, v21")
        k("v_sub_u32 v22, v20, v22")
        k(f"s_mov_b32 s38, {163840 + KVPAD}")
        k("v_mul_lo_u32 v21, v21, s38")
        k("v_lshl_add_u32 v21, v22, 4, v21")
        k(f"v_mul_u32_u24 v22, 320, v{HH}")
        k(f"v_add_u32 v{24+nb}, v21, v22")
    k("s_lshl_b32 s41, s24, 2")
    k("s_lshl_b32 s42, s36, 1")
    k("s_add_u32 s41, s41, s42")
    k("s_mul_i32 s41, s41, 2560")
    k(f"s_add_u32 s52, s41, {WS_KV + 1280}")
    if perm:
        k("s_add_u32 s53, s52, 2560")
        k("s_cmp_eq_u32 s27, 1")
        k("s_cselect_b32 s37, s53, s52")
        k("s_cselect_b32 s53, s52, s53")
        k("s_mov_b32 s52, s37")


def epi_v(k, ACC, STATS, HH, TL, perm=False):
    NB, TB = 2, 2
    k("s_lshl_b32 s37, s36, 8")
    k(f"v_lshlrev_b32 v20, 4, v{HH}")
    k("v_add_u32 v20, s37, v20")
    k(f"v_add_u32 v20, {STATS}, v20")
    RS, RM = 128, 160
    if perm:
        k("s_lshl_b32 s37, s27, 7")
        k("v_xor_b32 v20, s37, v20")
        k("v_xor_b32 v19, 128, v20")
    def sa(tb, off): return f"v{20-tb} offset:{off}" if perm else f"v20 offset:{off+tb*128}"
    for tb in range(TB):
        for q in range(4):
            k(f"ds_read_b128 v[{RS+(tb*4+q)*4}:{RS+(tb*4+q)*4+3}], {sa(tb, q*32)}")
    k(f"v_lshlrev_b32 v21, 2, v{TL}")
    k("s_lshl_b32 s37, s27, 8")
    k("v_add_u32 v21, s37, v21")
    k(f"v_add_u32 v21, {STATS+1024}, v21")
    k("s_waitcnt lgkmcnt(4)")
    for tb in range(TB):
        for q in range(4):
            k(f"ds_read_b128 v[{RM+(tb*4+q)*4}:{RM+(tb*4+q)*4+3}], {sa(tb, 512+q*32)}")
    k("ds_read_b32 v32, v21")
    k("ds_read_b32 v34, v21 offset:128")
    k("s_waitcnt lgkmcnt(0)")
    k("s_nop 7")
    n = 0
    for nb in range(NB):
        cs = 32 + 2 * nb
        for tb in range(TB):
            for qp in range(2):
                o = 44 + 4 * (n % 2)
                for qq in range(2):
                    q = qp * 2 + qq
                    a = ACC + (nb * TB + tb) * 16 + q * 4
                    t = 36 + 4 * qq
                    rs, rm = RS + (tb * 4 + q) * 4, RM + (tb * 4 + q) * 4
                    for h in range(2):
                        k(f"v_pk_mul_f32 v[{t+2*h}:{t+2*h+1}], v[{rm+2*h}:{rm+2*h+1}], v[{cs}:{cs+1}] op_sel_hi:[1,0]")
                    for h in range(2):
                        k(f"v_pk_fma_f32 v[{t+2*h}:{t+2*h+1}], v[{a+2*h}:{a+2*h+1}], v[{rs+2*h}:{rs+2*h+1}], v[{t+2*h}:{t+2*h+1}] neg_lo:[0,0,1] neg_hi:[0,0,1]")
                    k(f"v_cvt_pk_bf16_f32 v{o+2*qq}, v{t}, v{t+1}")
                    k(f"v_cvt_pk_bf16_f32 v{o+2*qq+1}, v{t+2}, v{t+3}")
                k("s_nop 1")
                k(f"v_permlane32_swap_b32 v{o}, v{o+2}")
                k(f"v_permlane32_swap_b32 v{o+1}, v{o+3}")
                k("s_nop 1")
                if perm:
                    k(f"buffer_store_dwordx4 v[{o}:{o+3}], v{24+nb}, s[48:51], s{52+tb} offen offset:{qp*640}")
                else:
                    k(f"buffer_store_dwordx4 v[{o}:{o+3}], v{24+nb}, s[48:51], s52 offen offset:{tb*2560+qp*640}")
                n += 1
    k("s_waitcnt vmcnt(0)")


GK1 = -2.0 * 0.7978845608028654 * 1.4426950408889634
GK2 = GK1 * 0.044715

def epi_w1(k, ACC, STATS, HH, TL, NS_=""):
    NB = 3
    k.srd(48, 6, 0, WS_SIZE)
    k("s_lshl_b32 s37, s36, 7")
    k(f"v_lshlrev_b32 v20, 2, v{TL}")
    k("v_add_u32 v20, s37, v20")
    k(f"v_add_u32 v20, {STATS}, v20")
    k("ds_read_b32 v32, v20")
    k("ds_read_b32 v33, v20 offset:512")
    k(f"v_lshlrev_b32 v21, 4, v{HH}")
    k(f"v_add_u32 v21, {STATS+1024}, v21")
    CS, BI = 128, 176
    for nb in range(NB):
        for q in range(4):
            k(f"ds_read_b128 v[{CS+(nb*4+q)*4}:{CS+(nb*4+q)*4+3}], v21 offset:{nb*128+q*32}")
    k("s_waitcnt lgkmcnt(6)")
    for nb in range(NB):
        for q in range(4):
            k(f"ds_read_b128 v[{BI+(nb*4+q)*4}:{BI+(nb*4+q)*4+3}], v21 offset:{512+nb*128+q*32}")
    k("s_lshl_b32 s39, s24, 2")
    k("s_add_u32 s39, s39, s36")
    k("s_mul_i32 s39, s39, 98304")
    k("s_mul_i32 s40, s25, 6144")
    k("s_add_u32 s39, s39, s40")
    k(f"s_add_u32 s52, s39, {WS_H}")
    k("s_add_u32 s53, s52, 2048")
    k("s_add_u32 s54, s52, 4096")
    k("v_lshlrev_b32 v22, 4, v0")
    k(f"v_mov_b32 v34, {f2u(GK1):#x}")
    k(f"v_mov_b32 v35, {f2u(GK2):#x}")
    k("s_waitcnt lgkmcnt(0)")
    k("s_nop 7")
    n = 0
    for nb in range(NB):
        for qp in range(2):
            o = 56 + 4 * (n % 2)
            for qq in range(2):
                q = qp * 2 + qq
                a = ACC + nb * 16 + q * 4
                cs = CS + (nb * 4 + q) * 4
                b = BI + (nb * 4 + q) * 4
                u, t = 36, 40
                for h in range(2):
                    k(f"v_pk_fma_f32 v[{u+2*h}:{u+2*h+1}], v[{cs+2*h}:{cs+2*h+1}], v[32:33], v[{b+2*h}:{b+2*h+1}] op_sel:[0,1,0] op_sel_hi:[1,1,1] neg_lo:[1,0,0] neg_hi:[1,0,0]")
                for h in range(2):
                    k(f"v_pk_fma_f32 v[{u+2*h}:{u+2*h+1}], v[{a+2*h}:{a+2*h+1}], v[32:33], v[{u+2*h}:{u+2*h+1}] op_sel_hi:[1,0,1]")
                for h in range(2):
                    k(f"v_pk_mul_f32 v[{t+2*h}:{t+2*h+1}], v[{u+2*h}:{u+2*h+1}], v[{u+2*h}:{u+2*h+1}]")
                for h in range(2):
                    k(f"v_pk_fma_f32 v[{t+2*h}:{t+2*h+1}], v[{t+2*h}:{t+2*h+1}], v[34:35], v[34:35] op_sel:[0,1,0] op_sel_hi:[1,1,0]")
                for h in range(2):
                    k(f"v_pk_mul_f32 v[{t+2*h}:{t+2*h+1}], v[{t+2*h}:{t+2*h+1}], v[{u+2*h}:{u+2*h+1}]")
                for i in range(4):
                    k(f"v_exp_f32 v{t+i}, v{t+i}")
                k("s_nop 0")
                for h in range(2):
                    k(f"v_pk_add_f32 v[{t+2*h}:{t+2*h+1}], v[{t+2*h}:{t+2*h+1}], 1.0 op_sel_hi:[1,0]")
                for i in range(4):
                    k(f"v_rcp_f32 v{t+i}, v{t+i}")
                k("s_nop 0")
                for h in range(2):
                    k(f"v_pk_mul_f32 v[{u+2*h}:{u+2*h+1}], v[{u+2*h}:{u+2*h+1}], v[{t+2*h}:{t+2*h+1}]")
                k(f"v_cvt_pk_bf16_f32 v{o+2*qq}, v{u}, v{u+1}")
                k(f"v_cvt_pk_bf16_f32 v{o+2*qq+1}, v{u+2}, v{u+3}")
            k("s_nop 1")
            k(f"v_permlane32_swap_b32 v{o}, v{o+2}")
            k(f"v_permlane32_swap_b32 v{o+1}, v{o+3}")
            k("s_nop 1")
            k(f"buffer_store_dwordx4 v[{o}:{o+3}], v22, s[48:51], s{52+nb} offen offset:{qp*1024}{NS_}")
            n += 1
    k("s_waitcnt vmcnt(0)")


def gen_gemmB(name, kind, layer, kidx=0, dbg=(), first=2, rawres=False, pfd=0, fz=None):
    NWG = 256
    if kind == "wo":
        K, WS_W, XSRC = 640, WS_WO, WS_O
        RES = WS_X0 if layer == 0 else WS_X2
        DST, ST = WS_X1, WS_ST1
    else:
        K, WS_W, XSRC = 1536, WS_W2, WS_H
        RES = WS_X1
        DST, ST = (WS_X2, WS_ST0) if layer == 0 else (None, None)
    NCH = K // 128
    XBLK = K * 64
    WB = 20480
    SLOT = WB + 16384
    NSLOT = 4
    LDS = NSLOT * SLOT
    rot = fz.rot if fz else 0
    HO = bool(fz and fz.wait is not None)
    XS = " sc1" if (HO and not fz.xplain) else ""
    NS_ = " ; nosc" if (fz and fz.xl and "x" not in XSC) else ""
    RSC = " sc1" if (fz and kind == "w2" and not fz.xplain) else ""
    if fz is None:
        k = Kern(name, NWG, 512, LDS, vgpr=128)
        k(f"s_cmp_ge_u32 s2, {NWG}")
        k(f"s_cbranch_scc1 {k.ref('end')}")
        k.stamp(0)
        k.karg(6, 80)
    else:
        k = fz.k
    if kind == "w2":
        k.karg(8, 56)
        if DST is None:
            k.karg(10, 64)
    if rawres:
        assert kind == "wo"
        k.karg(8, 0)
    if fz is None: wave_id(k, 26)
    k("s_and_b32 s20, s2, 7")
    k("s_lshr_b32 s21, s2, 3")
    if fz and fz.xl:
        k("s_and_b32 s22, s21, 3")
        k("s_lshl_b32 s23, s20, 2")
        k("s_add_u32 s24, s23, s22")
        k("s_lshr_b32 s25, s21, 2")
    else:
        k("s_lshr_b32 s22, s20, 1")
        k("s_lshl_b32 s22, s22, 3")
        k("s_and_b32 s23, s21, 7")
        k("s_add_u32 s24, s22, s23")
        k("s_and_b32 s22, s20, 1")
        k("s_lshl_b32 s22, s22, 2")
        k("s_lshr_b32 s23, s21, 3")
        k("s_add_u32 s25, s22, s23")
    k("s_cmp_lt_u32 s26, 4")
    k(f"s_cbranch_scc1 {k.ref('compute')}")
    k("s_sub_u32 s26, s26, 4")
    k("v_lshlrev_b32 v1, 4, v0")
    k(f"s_mul_i32 s40, s25, {K//8*1280}")
    k("s_mul_i32 s41, s26, 5120")
    k("s_add_u32 s40, s40, s41")
    k(f"s_add_u32 s40, s40, {WS_W}")
    k("s_mov_b32 s42, s41")
    k("s_lshl_b32 s43, s24, 1")
    k("s_lshr_b32 s47, s26, 1")
    k("s_add_u32 s43, s43, s47")
    k(f"s_mul_i32 s43, s43, {XBLK}")
    k("s_and_b32 s47, s26, 1")
    k("s_lshl_b32 s47, s47, 12")
    k("s_add_u32 s43, s43, s47")
    k(f"s_add_u32 s43, s43, {XSRC}")
    k("s_lshl_b32 s44, s26, 12")
    k(f"s_add_u32 s44, s44, {WB}")
    k("s_waitcnt lgkmcnt(0)")
    k.srd(12, 6, 0, WS_SIZE)
    def dma(ch, parts="xw"):
        slot = (ch + rot) % NSLOT
        if "x" in parts:
            k(f"s_add_u32 m0, s44, {slot*SLOT}")
            k(f"s_add_u32 s45, s43, {ch*8192}")
            for i in range(4):
                k(f"buffer_load_dwordx4 v1, s[12:15], s45 offen offset:{i*1024}{XS} lds")
        if "w" in parts:
            k(f"s_add_u32 m0, s42, {slot*SLOT}")
            k(f"s_add_u32 s45, s40, {ch*WB}")
            for i in range(4):
                k(f"buffer_load_dwordx4 v1, s[12:15], s45 offen offset:{i*1024} lds")
            k(f"s_add_u32 m0, s42, {slot*SLOT+4096}")
            k(f"s_add_u32 s45, s40, {ch*WB+4096}")
            k(f"buffer_load_dwordx4 v1, s[12:15], s45 offen lds")
    k.stamp(1)
    def pre(): k.stamp(2)
    def pre_issue():
        for c_ in range(first):
            dma(c_, "w")
        if kind == "wo":
            k("s_lshl_b32 s67, s24, 1")
            k("s_lshr_b32 s47, s26, 1")
            k("s_add_u32 s67, s67, s47")
            fz.poll(67, 32)
        else:
            k("s_lshr_b32 s67, s24, 1")
            fz.poll(67, 16)
        for c_ in range(first):
            dma(c_, "x")
        return 4 * (first - 1)
    if fz: fz.mode_publish()
    if fz and fz.xl and "H" in PT and kind == "wo":
        def tail():
            k("v_lshlrev_b32 v12, 7, v0")
            k("s_mul_i32 s46, s24, 196608")
            k("s_lshl_b32 s47, s25, 2")
            k("s_add_u32 s47, s47, s26")
            k("s_mul_i32 s47, s47, 6144")
            k("s_add_u32 s46, s46, s47")
            k(f"s_add_u32 s46, s46, {WS_H}")
            k("s_mov_b32 exec_hi, 0xffff")
            k("buffer_load_dword v13, v12, s[12:15], s46 offen")
            k("s_mov_b32 exec_hi, -1")
            return 1
        fz.tail = tail
    ring_loader(k, NCH, NSLOT, dma, 9, pre_b0=pre, first=first, pre_issue=(pre_issue if HO else None), fz=fz)
    fin_loader(k, fz, kidx)

    k.lab("compute")
    ACC, FA0, FB0, RS, BI = 32, 64, 88, 104, 116
    AW, AX = 1, 3
    k("s_and_b32 s27, s26, 1")
    k("s_lshr_b32 s36, s26, 1")
    k("v_lshrrev_b32 v17, 4, v0")
    k("v_and_b32 v16, 15, v0")
    k("v_mul_u32_u24 v20, 1280, v17")
    k("v_lshl_add_u32 v20, v16, 4, v20")
    k("s_mul_i32 s37, s27, 768")
    k(f"v_add_u32 v{AW}, s37, v20")
    k(f"v_add_u32 v{AW+1}, {2*SLOT}, v{AW}")
    k("v_lshlrev_b32 v20, 9, v17")
    k("v_lshl_add_u32 v20, v16, 4, v20")
    k("s_lshl_b32 s37, s36, 13")
    k(f"s_add_u32 s37, s37, {WB}")
    k(f"v_add_u32 v{AX}, s37, v20")
    k(f"v_add_u32 v{AX+1}, {2*SLOT}, v{AX}")
    k("v_lshrrev_b32 v20, 1, v17")
    k("v_lshlrev_b32 v20, 9, v20")
    k("v_lshl_add_u32 v20, v16, 4, v20")
    k("v_and_b32 v21, 1, v17")
    k("v_lshl_add_u32 v20, v21, 3, v20")
    k("s_lshl_b32 s38, s24, 1")
    k("s_add_u32 s38, s38, s36")
    k("s_mul_i32 s39, s38, 40960")
    k("s_mul_i32 s40, s25, 5120")
    k("s_add_u32 s39, s39, s40")
    k("s_mul_i32 s40, s27, 3072")
    k("s_add_u32 s39, s39, s40")
    if rawres:
        k("v_mul_u32_u24 v20, 1280, v16")
        k("v_lshl_add_u32 v20, v17, 3, v20")
        k(f"v_add_u32 v21, {16*1280}, v20")
        k(f"s_mul_i32 s52, s38, {32*1280}")
        k("s_mul_i32 s40, s25, 160")
        k("s_add_u32 s52, s52, s40")
        k("s_mul_i32 s40, s27, 96")
        k("s_add_u32 s52, s52, s40")
    else:
        k(f"s_add_u32 s52, s39, {RES}")
    k("s_waitcnt lgkmcnt(0)")
    k.srd(48, 6, 0, WS_SIZE)
    if rawres:
        k.srd(56, 8, 0, X_BYTES)
    PFT = TilePF(k, pfd, first, NCH, 5, 6, 7, 48)
    if pfd:
        k("s_and_b32 s41, s25, 3")
        k("s_lshr_b32 s42, s41, 1")
        k("s_lshl_b32 s43, s24, 1")
        k("s_add_u32 s42, s42, s43")
        k(f"s_mul_i32 s42, s42, {XBLK}")
        k("s_and_b32 s41, s41, 1")
        k("s_lshl_b32 s41, s41, 12")
        k("s_add_u32 s42, s42, s41")
        k("s_lshl_b32 s41, s26, 10")
        k("s_add_u32 s42, s42, s41")
        k(f"s_add_u32 s42, s42, {XSRC + first*8192}")
        k("s_and_b32 s41, s24, 7")
        k("s_mul_i32 s41, s41, 2560")
        k("s_mul_i32 s43, s26, 640")
        k("s_add_u32 s41, s41, s43")
        k(f"s_mul_i32 s43, s25, {K//8*1280}")
        k("s_add_u32 s41, s41, s43")
        k(f"s_add_u32 s41, s41, {WS_W + first*WB - 8*128}")
        k("v_lshlrev_b32 v5, 7, v0")
        k("v_mov_b32 v8, s41")
        k("v_mov_b32 v9, s42")
        k("v_cmp_gt_u32 vcc, 8, v0")
        k(f"v_mov_b32 v6, {WB}")
        k("v_mov_b32 v10, 8192")
        k("v_cndmask_b32 v8, v8, v9, vcc")
        k("v_cndmask_b32 v6, v6, v10, vcc")
        k("v_add_u32 v5, v8, v5")
        k("v_cmp_gt_u32 vcc, 13, v0")
        k("v_mov_b32 v9, 0x80000000")
        k("s_nop 0")
        k("v_cndmask_b32 v5, v9, v5, vcc")
        PFT.start()

    def path(NB):
        nx0 = PFT.next
        for nb in range(NB):
            for tb in range(2):
                d = RS + (nb * 2 + tb) * 2
                if rawres:
                    k(f"buffer_load_dwordx2 v[{d}:{d+1}], v{20+tb}, s[56:59], s52 offen offset:{nb*32}")
                else:
                    k(f"buffer_load_dwordx2 v[{d}:{d+1}], v20, s[48:51], s52 offen offset:{nb*1024+tb*256}{RSC}")
        if kind == "w2":
            k.srd(56, 8, 0, 1280)
            k("s_mul_i32 s40, s25, 160")
            k("s_mul_i32 s41, s27, 96")
            k("s_add_u32 s40, s40, s41")
            k("v_lshlrev_b32 v21, 3, v17")
            for nb in range(NB):
                k(f"buffer_load_dwordx2 v[{BI+2*nb}:{BI+2*nb+1}], v21, s[56:59], s40 offen offset:{nb*32}")
        if fz and fz.xl and "x" in PT and DST is not None:
            k("v_lshlrev_b32 v127, 7, v0")
            k(f"s_add_u32 s40, s39, {DST}")
            k(f"s_mov_b64 exec, {(1 << (8*NB)) - 1:#x}")
            k("buffer_load_dword v126, v127, s[48:51], s40 offen")
            k("s_lshl_b32 s40, s25, 1")
            k("s_add_u32 s40, s40, s27")
            k("s_lshl_b32 s40, s40, 14")
            k("s_lshl_b32 s41, s38, 8")
            k("s_add_u32 s40, s40, s41")
            k(f"s_add_u32 s40, s40, {ST}")
            k("s_mov_b64 exec, 3")
            k("buffer_load_dword v125, v127, s[48:51], s40 offen")
            k("s_mov_b64 exec, -1")
        if fz and fz.xl and "G" in PT and kind == "wo":
            k("v_lshlrev_b32 v127, 7, v0")
            k("s_mul_i32 s40, s24, 196608")
            k("s_lshl_b32 s41, s25, 2")
            k("s_add_u32 s41, s41, s26")
            k("s_mul_i32 s41, s41, 6144")
            k("s_add_u32 s40, s40, s41")
            k(f"s_add_u32 s40, s40, {WS_H}")
            k("s_mov_b32 exec_hi, 0xffff")
            k("buffer_load_dword v124, v127, s[48:51], s40 offen")
            k("s_mov_b32 exec_hi, -1")
        if fz and "u" in PT and DST is None:
            k.srd(60, 10, 0, X_BYTES)
            k("v_and_b32 v127, 31, v0")
            k("v_mul_u32_u24 v127, 1280, v127")
            k("v_lshrrev_b32 v126, 5, v0")
            k(f"v_mul_u32_u24 v126, {NB*32 - 4}, v126")
            k("v_add_u32 v127, v127, v126")
            k("s_mul_i32 s40, s38, 40960")
            k("s_mul_i32 s41, s25, 160")
            k("s_add_u32 s40, s40, s41")
            k("s_mul_i32 s41, s27, 96")
            k("s_add_u32 s40, s40, s41")
            k("buffer_load_dword v126, v127, s[60:63], s40 offen")
        def reads(step):
            ch, ks = divmod(step, 4)
            slot = (ch + rot) % NSLOT
            half, sl = divmod(slot, 2)
            st = step & 1
            out = []
            for tb in range(2):
                d = FB0 + st * 8 + tb * 4
                out.append(f"ds_read_b128 v[{d}:{d+3}], v{AX+half} offset:{sl*SLOT + ks*2048 + tb*256}")
            for nb in range(NB):
                d = FA0 + st * 12 + nb * 4
                out.append(f"ds_read_b128 v[{d}:{d+3}], v{AW+half} offset:{sl*SLOT + ks*5120 + nb*256}")
            return out
        k.stamp(1)
        k("s_barrier")
        k.stamp(2)
        for r in reads(0):
            k(r)
        NS = NCH * 4
        for step in range(NS):
            st = step & 1
            k("s_waitcnt lgkmcnt(0)")
            if step % 4 == 3 and step + 1 < NS:
                k("s_barrier")
                PFT.at_barrier()
            rd = reads(step + 1) if step + 1 < NS else []
            mf = []
            for nb in range(NB):
                for tb in range(2):
                    d = ACC + (nb * 2 + tb) * 4
                    a = FA0 + st * 12 + nb * 4
                    b = FB0 + st * 8 + tb * 4
                    c = "0" if step == 0 else f"v[{d}:{d+3}]"
                    mf.append(f"v_mfma_f32_16x16x32_bf16 v[{d}:{d+3}], v[{a}:{a+3}], v[{b}:{b+3}], {c}")
            ri = 0
            for i, m in enumerate(mf):
                if "nomfma" not in dbg: k(m)
                for r in rd[ri:ri + 2]:
                    if "nords" not in dbg: k(r)
                ri += 2
            assert ri >= len(rd)
        k.stamp(3)
        PFT.next = nx0
        if fz and fz.xl and fz.p == 0: fz.mode_issue(48, 250)
        k("s_waitcnt vmcnt(0)")
        want_stats = ST is not None
        if want_stats:
            for r in (8, 9, 10, 11):
                k(f"v_mov_b32 v{r}, 0")
        k("v_lshlrev_b32 v22, 4, v0")
        if DST is None:
            k.srd(60, 10, 0, X_BYTES)
            k("v_and_b32 v23, 31, v0")
            k("v_mul_u32_u24 v23, 1280, v23")
            k("v_lshrrev_b32 v24, 5, v0")
            k("v_lshl_add_u32 v23, v24, 4, v23")
            k("s_mul_i32 s40, s38, 40960")
            k("s_mul_i32 s41, s25, 160")
            k("s_add_u32 s40, s40, s41")
            k("s_mul_i32 s41, s27, 96")
            k("s_add_u32 s53, s40, s41")
        else:
            k(f"s_add_u32 s53, s39, {DST}")
        k("s_nop 4")
        for nb in range(NB):
            o = 24 + 4 * (nb % 2)
            for tb in range(2):
                a = ACC + (nb * 2 + tb) * 4
                d = RS + (nb * 2 + tb) * 2
                t = 12
                k(f"v_lshlrev_b32 v{t}, 16, v{d}")
                k(f"v_and_b32 v{t+1}, 0xffff0000, v{d}")
                k(f"v_lshlrev_b32 v{t+2}, 16, v{d+1}")
                k(f"v_and_b32 v{t+3}, 0xffff0000, v{d+1}")
                k(f"v_pk_add_f32 v[{a}:{a+1}], v[{a}:{a+1}], v[{t}:{t+1}]")
                k(f"v_pk_add_f32 v[{a+2}:{a+3}], v[{a+2}:{a+3}], v[{t+2}:{t+3}]")
                if kind == "w2":
                    b = BI + 2 * nb
                    k(f"v_lshlrev_b32 v{t+4}, 16, v{b}")
                    k(f"v_and_b32 v{t+5}, 0xffff0000, v{b}")
                    k(f"v_lshlrev_b32 v{t+6}, 16, v{b+1}")
                    k(f"v_and_b32 v{t+7}, 0xffff0000, v{b+1}")
                    k(f"v_pk_add_f32 v[{a}:{a+1}], v[{a}:{a+1}], v[{t+4}:{t+5}]")
                    k(f"v_pk_add_f32 v[{a+2}:{a+3}], v[{a+2}:{a+3}], v[{t+6}:{t+7}]")
                if want_stats:
                    for r in range(4):
                        k(f"v_add_f32 v{8+tb}, v{8+tb}, v{a+r}")
                        k(f"v_fmac_f32 v{10+tb}, v{a+r}, v{a+r}")
                k(f"v_cvt_pk_bf16_f32 v{o+2*tb}, v{a}, v{a+1}")
                k(f"v_cvt_pk_bf16_f32 v{o+2*tb+1}, v{a+2}, v{a+3}")
            k("s_nop 1")
            k(f"v_permlane16_swap_b32 v{o}, v{o+2}")
            k(f"v_permlane16_swap_b32 v{o+1}, v{o+3}")
            k("s_nop 1")
            if DST is None:
                k(f"buffer_store_dwordx4 v[{o}:{o+3}], v23, s[60:63], s53 offen offset:{nb*32}" + (" ; nosc" if OUTP else ""))
            else:
                k(f"buffer_store_dwordx4 v[{o}:{o+3}], v22, s[48:51], s53 offen offset:{nb*1024}{NS_}")
        if want_stats:
            k("v_permlane16_swap_b32 v8, v9")
            k("v_permlane16_swap_b32 v10, v11")
            k("s_nop 1")
            k("v_add_f32 v8, v8, v9")
            k("v_add_f32 v10, v10, v11")
            k("s_nop 1")
            k("v_permlane32_swap_b32 v8, v10")
            k("s_nop 1")
            k("v_add_f32 v8, v8, v10")
            k("v_and_b32 v12, 31, v0")
            k("v_lshlrev_b32 v12, 3, v12")
            k("v_lshrrev_b32 v13, 5, v0")
            k("v_lshl_add_u32 v12, v13, 2, v12")
            k("s_lshl_b32 s40, s25, 1")
            k("s_add_u32 s40, s40, s27")
            k("s_lshl_b32 s40, s40, 14")
            k("s_lshl_b32 s41, s38, 8")
            k("s_add_u32 s40, s40, s41")
            k(f"s_add_u32 s40, s40, {ST}")
            k(f"buffer_store_dword v8, v12, s[48:51], s40 offen{NS_}")
        k("s_waitcnt vmcnt(0)")
        fin_compute(k, fz, kidx)
    k("s_cmp_eq_u32 s27, 1")
    k(f"s_cbranch_scc1 {k.ref('p2')}")
    path(3)
    k.lab("p2")
    path(2)
    return k


ATT_PACK = "cvt"
def gen_attn(name, kidx=0, pack=None, force_slow=False):
    pack = pack or ATT_PACK
    NWG = 256
    LDS = 163840
    k = Kern(name, NWG, 512, LDS, vgpr=128)
    KA, KB, VA = 1, 2, 3
    Q16, Q4 = 8, 12
    K16 = [16, 20]; K4 = [24, 26]
    V = [32, 40]
    S = [48, 64]
    P = 80
    O = 96
    k(f"s_cmp_ge_u32 s2, {NWG}")
    k(f"s_cbranch_scc1 {k.ref('end')}")
    k.stamp(0)
    k.karg(6, 80)
    wave_id(k, 26)
    k("s_and_b32 s20, s2, 7")
    k("s_lshr_b32 s21, s2, 3")
    k("s_lshr_b32 s22, s21, 3")
    k("s_lshl_b32 s23, s20, 2")
    k("s_add_u32 s24, s23, s22")
    k("s_and_b32 s25, s21, 7")
    k("s_lshl_b32 s25, s25, 3")
    k("s_add_u32 s25, s25, s26")
    k("v_lshlrev_b32 v4, 4, v0")
    k("s_lshl_b32 s27, s24, 6")
    k("s_add_u32 s27, s27, s25")
    k("s_mul_i32 s27, s27, 1280")
    k(f"s_add_u32 s27, s27, {WS_Q}")
    k("s_mul_i32 s28, s24, 163840")
    k(f"s_add_u32 s28, s28, {WS_KV}")
    k("s_mul_i32 s29, s26, 3072")
    k("s_mul_i32 s30, s26, 17408")
    k("s_add_u32 s30, s30, 24576")
    k("v_and_b32 v5, 31, v0")
    k("v_lshlrev_b32 v6, 3, v5")
    k(f"v_mov_b32 v{Q4}, 0")
    k(f"v_mov_b32 v{Q4+1}, 0")
    k("s_waitcnt lgkmcnt(0)")
    k.srd(12, 6, 0, WS_SIZE)
    k(f"buffer_load_dwordx4 v[{Q16}:{Q16+3}], v4, s[12:15], s27 offen")
    k("s_mov_b64 exec, 0xffffffff")
    k(f"buffer_load_dwordx2 v[{Q4}:{Q4+1}], v6, s[12:15], s27 offen offset:1024")
    k("s_mov_b64 exec, -1")
    k("s_mov_b32 m0, s29")
    k("s_add_u32 s31, s28, s29")
    for i in range(3):
        k(f"buffer_load_dwordx4 v4, s[12:15], s31 offen offset:{i*1024} lds")
    for g in range(5):
        k(f"s_add_u32 m0, s30, {g*4096}")
        k(f"s_add_u32 s31, s28, s30")
        if g: k(f"s_add_u32 s31, s31, {g*4096}")
        for i in range(4 if g < 4 else 1):
            k(f"buffer_load_dwordx4 v4, s[12:15], s31 offen offset:{i*1024} lds")
    k.stamp(1)
    def lane_addrs():
        k("v_and_b32 v5, 31, v0")
        k("v_and_b32 v6, 0x13, v5")
        k("v_and_b32 v7, 4, v5")
        k("v_lshl_or_b32 v6, v7, 1, v6")
        k("v_and_b32 v7, 8, v5")
        k("v_lshrrev_b32 v7, 1, v7")
        k("v_or_b32 v6, v6, v7")
        k("v_lshrrev_b32 v7, 5, v0")
        k(f"v_lshlrev_b32 v{KA}, 9, v7")
        k(f"v_lshl_add_u32 v{KA}, v6, 4, v{KA}")
        k(f"v_lshlrev_b32 v{KB}, 3, v6")
        k(f"v_add_u32 v{KB}, 1024, v{KB}")
        k(f"v_mul_u32_u24 v{VA}, 320, v7")
        k(f"v_lshl_add_u32 v{VA}, v5, 4, v{VA}")
        k(f"v_add_u32 v{VA}, 1280, v{VA}")
    lane_addrs()
    k("v_cmp_eq_u32 vcc, 20, v5")
    k("v_mov_b32 v7, 0x3f803f80")
    k("s_mov_b32 s34, 0x000fffff")
    k("s_mov_b32 s35, 0x000fffff")
    k(f"v_cndmask_b32 v{V[0]}, 0, v7, vcc")
    for r in range(1, 16):
        k(f"v_mov_b32 v{V[0]+r}, v{V[0]}")
    for r in range(16):
        k(f"v_mov_b32 v{O+r}, 0")
    for r in range(4, 8):
        k(f"v_mov_b32 v{P+r}, 0")
    k("s_waitcnt vmcnt(17)")
    k("s_barrier")
    k.stamp(2)
    def rdK(buf, off):
        k(f"ds_read_b128 v[{K16[buf]}:{K16[buf]+3}], v{KA} offset:{off}")
        k(f"ds_read_b64 v[{K4[buf]}:{K4[buf]+1}], v{KB} offset:{off}")
    def rdV(buf, off):
        k("s_mov_b64 exec, s[34:35]")
        k(f"ds_read_b128 v[{V[buf]}:{V[buf]+3}], v{VA} offset:{off}")
        k(f"ds_read_b128 v[{V[buf]+4}:{V[buf]+7}], v{VA} offset:{off+640}")
        k("s_mov_b64 exec, -1")
    def M1(n): k(f"v_mfma_f32_32x32x16_bf16 v[{S[n]}:{S[n]+15}], v[{K16[n]}:{K16[n]+3}], v[{Q16}:{Q16+3}], 0")
    def M2(n): k(f"v_mfma_f32_32x32x8bf16_1k v[{S[n]}:{S[n]+15}], v[{K4[n]}:{K4[n]+1}], v[{Q4}:{Q4+1}], v[{S[n]}:{S[n]+15}]")
    def MPV(vb, f): k(f"v_mfma_f32_32x32x16_bf16 v[{O}:{O+15}], v[{V[vb]+4*f}:{V[vb]+4*f+3}], v[{P+4*f}:{P+4*f+3}], v[{O}:{O+15}]")
    def G(c, g):
        s = S[c] + 4 * g
        p = P + 2 * g
        if pack == "cvt":
            for i in range(4):
                k(f"v_exp_f32 v{s+i}, v{s+i}")
            k(f"v_cvt_pk_bf16_f32 v{p}, v{s}, v{s+1}")
            k(f"v_cvt_pk_bf16_f32 v{p+1}, v{s+2}, v{s+3}")
        else:
            k(f"v_exp_f32 v{p}, v{s+1}")
            k(f"v_exp_f32 v{s}, v{s}")
            k(f"v_exp_f32 v{p+1}, v{s+3}")
            k(f"v_exp_f32 v{s+2}, v{s+2}")
            k(f"v_mov_b32_sdwa v{p}, v{s} dst_sel:WORD_0 dst_unused:UNUSED_PRESERVE src0_sel:WORD_1")
            k(f"v_mov_b32_sdwa v{p+1}, v{s+2} dst_sel:WORD_0 dst_unused:UNUSED_PRESERVE src0_sel:WORD_1")
    rdK(0, 0)
    rdK(1, 2560)
    rdV(0, 0)
    k("s_waitcnt lgkmcnt(4)")
    M1(0)
    k("s_mov_b32 s36, 0")
    k("s_nop 7")
    k("s_nop 1")
    M2(0)
    k("s_nop 7")
    k("s_nop 3")
    k.lab("loop")
    k("s_cmp_eq_u32 s36, 1")
    k(f"s_cbranch_scc0 {k.ref('nosync')}")
    k("s_waitcnt vmcnt(0)")
    k("s_barrier")
    k.lab("nosync")
    k("s_cmp_eq_u32 s36, 7")
    k(f"s_mov_b32 s37, {(-7*20480) & 0xffffffff:#x}")
    k("s_cselect_b32 s37, s37, 20480")
    for t in range(8):
        c, n = t & 1, (t + 1) & 1
        k("s_waitcnt lgkmcnt(0)")
        M1(n)
        G(c, 0)
        MPV(n, 1)
        if t == 6:
            k(f"v_add_u32 v{KA}, s37, v{KA}")
            k(f"v_add_u32 v{KB}, s37, v{KB}")
        if t == 7:
            k(f"v_add_u32 v{VA}, s37, v{VA}")
        rdK(c, ((t + 2) % 8) * 2560)
        rdV(n, ((t + 1) % 8) * 2560)
        G(c, 1)
        M2(n)
        G(c, 2)
        MPV(c, 0)
        G(c, 3)
    k("s_add_u32 s36, s36, 1")
    k("s_cmp_lt_u32 s36, 8")
    k(f"s_cbranch_scc1 {k.ref('loop')}")
    k("s_nop 0")
    MPV(1, 1)
    k.stamp(3)
    k("s_waitcnt lgkmcnt(0)")
    k("s_nop 7")
    k("s_nop 3")
    k(f"v_mov_b32 v4, v{O+8}")
    k(f"v_mov_b32 v5, v{O+8}")
    k("v_mov_b32 v6, 0")
    k("s_nop 0")
    k("v_permlane32_swap_b32 v4, v5")
    for r in range(12):
        k(f"v_fma_f32 v6, v{O+r}, 0, v6")
    k(f"v_cmp_lt_f32 vcc, {f2u(2.0**-40):#x}, v5")
    k(f"v_cmp_gt_f32 s[38:39], {f2u(2.0**40):#x}, v5" if False else f"s_mov_b32 s40, {f2u(2.0**40):#x}")
    k("v_cmp_gt_f32 s[38:39], s40, v5")
    k("v_cmp_eq_f32 s[42:43], 0, v6")
    k("s_nop 3")
    k("s_and_b64 vcc, vcc, s[38:39]")
    k("s_and_b64 vcc, vcc, s[42:43]")
    if force_slow:
        k("s_mov_b64 vcc, 0")
    k("s_cmp_eq_u64 vcc, -1")
    k(f"s_cbranch_scc0 {k.ref('slow')}")
    k.lab("fin")
    k("v_rcp_f32 v5, v5")
    k("s_mul_i32 s40, s24, 5")
    k("v_lshrrev_b32 v7, 5, v0")
    k("v_add_u32 v7, s40, v7")
    k("v_lshrrev_b32 v6, 1, v7")
    k("v_lshlrev_b32 v6, 9, v6")
    k("v_and_b32 v7, 1, v7")
    k("v_lshl_add_u32 v6, v7, 3, v6")
    k("v_and_b32 v7, 31, v0")
    k("v_lshl_add_u32 v6, v7, 4, v6")
    k("s_mul_i32 s41, s25, 40960")
    k(f"s_add_u32 s41, s41, {WS_O}")
    for r in range(0, 12, 2):
        k(f"v_pk_mul_f32 v[{O+r}:{O+r+1}], v[{O+r}:{O+r+1}], v[4:5] op_sel:[0,1] op_sel_hi:[1,1]")
    k("s_nop 0")
    for j in range(6):
        k(f"v_cvt_pk_bf16_f32 v{16+j}, v{O+2*j}, v{O+2*j+1}")
    k("buffer_store_dwordx2 v[16:17], v6, s[12:15], s41 offen")
    k("buffer_store_dwordx2 v[18:19], v6, s[12:15], s41 offen offset:512")
    k("s_mov_b64 exec, 0xffffffff")
    k("buffer_store_dwordx2 v[20:21], v6, s[12:15], s41 offen offset:1024")
    k("s_waitcnt vmcnt(0)")
    k.stamp(4); k.stamp_flush(6, kidx, 5, 26)
    k.lab("end")
    k("s_endpgm")
    k.lab("slow")
    lane_addrs()
    MX = 88
    k(f"v_mov_b32 v{MX}, {f2u(-3.0e38):#x}")
    for r in range(16):
        k(f"v_mov_b32 v{O+r}, 0")
    k("s_mov_b32 s36, 0")
    k.lab("sl")
    rdK(0, 0)
    rdV(0, 0)
    k("s_waitcnt lgkmcnt(0)")
    M1(0)
    k("s_nop 7"); k("s_nop 1")
    M2(0)
    k("s_nop 7"); k("s_nop 3")
    s = S[0]
    k(f"v_max3_f32 v4, v{s}, v{s+1}, v{s+2}")
    for i in range(3, 15, 2):
        k(f"v_max3_f32 v4, v4, v{s+i}, v{s+i+1}")
    k(f"v_max_f32 v4, v4, v{s+15}")
    k("v_mov_b32 v5, v4")
    k("s_nop 1")
    k("v_permlane32_swap_b32 v4, v5")
    k("s_nop 1")
    k(f"v_max3_f32 v4, v4, v5, v{MX}")
    k(f"v_sub_f32 v5, v{MX}, v4")
    k("v_exp_f32 v5, v5")
    k(f"v_mov_b32 v{MX}, v4")
    for i in range(16):
        k(f"v_sub_f32 v{s+i}, v{s+i}, v4")
    for i in range(16):
        k(f"v_exp_f32 v{s+i}, v{s+i}")
    for r in range(12):
        k(f"v_mul_f32 v{O+r}, v{O+r}, v5")
    for j in range(8):
        k(f"v_cvt_pk_bf16_f32 v{P+j}, v{s+2*j}, v{s+2*j+1}")
    k(f"v_add_u32 v{KA}, 2560, v{KA}")
    k(f"v_add_u32 v{KB}, 2560, v{KB}")
    k(f"v_add_u32 v{VA}, 2560, v{VA}")
    k("s_nop 4")
    MPV(0, 0)
    MPV(0, 1)
    k("s_nop 7"); k("s_nop 3")
    k("s_add_u32 s36, s36, 1")
    k("s_cmp_lt_u32 s36, 64")
    k(f"s_cbranch_scc1 {k.ref('sl')}")
    k(f"v_mov_b32 v4, v{O+8}")
    k(f"v_mov_b32 v5, v{O+8}")
    k("s_nop 1")
    k("v_permlane32_swap_b32 v4, v5")
    k("s_nop 1")
    k(f"s_branch {k.ref('fin')}")
    return k


def l2_prefetch(k, items, half, idx, lw, tmp, vaddr, vdst, srd=12):
    k(f"v_lshlrev_b32 v{vaddr}, 7, v0")
    for n, (base, hb) in enumerate(items):
        per_wg = hb // 32
        per_w = per_wg // 4
        lines = (per_w + 127) // 128
        k(f"s_mul_i32 s{tmp}, s{half}, {hb}")
        k(f"s_mul_i32 s{tmp+1}, s{idx}, {per_wg}")
        k(f"s_add_u32 s{tmp}, s{tmp}, s{tmp+1}")
        k(f"s_mul_i32 s{tmp+1}, s{lw}, {per_w}")
        k(f"s_add_u32 s{tmp}, s{tmp}, s{tmp+1}")
        k(f"s_add_u32 s{tmp}, s{tmp}, {base}")
        done = 0
        while done < lines:
            n_ = min(64, lines - done)
            if n_ < 64:
                m = (1 << n_) - 1
                k(f"s_mov_b32 exec_lo, {m & 0xffffffff:#x}")
                k(f"s_mov_b32 exec_hi, {m >> 32:#x}")
            k(f"buffer_load_dword v{vdst}, v{vaddr}, s[{srd}:{srd+3}], s{tmp} offen")
            if n_ < 64:
                k("s_mov_b64 exec, -1")
            done += n_
            if done < lines:
                k(f"s_add_u32 s{tmp}, s{tmp}, {64*128}")
            vdst += 1

def repack_unit(k, lw, EV, OD):
    k(f"s_lshl_b32 s52, s2, 2")
    k(f"s_add_u32 s52, s52, s{lw}")
    k("s_cmp_ge_u32 s52, 880")
    k(f"s_cbranch_scc1 {k.ref('rp_done')}")
    k.karg(54, 8)
    k.karg(56, 16)
    k.karg(58, 32)
    k.karg(60, 48)
    def setup(lbl, lo, ncg, ptr, size, pitch, TN, K, dst, cs, csp):
        k.lab(lbl)
        k(f"s_sub_u32 s52, s52, {lo}")
        k.srd(64, ptr, 0, size)
        k(f"s_mov_b32 s53, {pitch}")
        k(f"s_mov_b32 s54, {(65536 + TN - 1)//TN}")
        k(f"s_mov_b32 s55, {TN}")
        k(f"s_mov_b32 s56, {K//8*TN*16}")
        k(f"s_mov_b32 s57, {dst}")
        k(f"s_mul_i32 s58, s52, {(65536 + ncg - 1)//ncg}")
        k("s_lshr_b32 s58, s58, 16")
        k(f"s_mul_i32 s59, s58, {ncg}")
        k("s_sub_u32 s59, s52, s59")
        k(f"s_mov_b32 s60, {cs if cs is not None else 0xffffffff:#x}")
        k(f"s_mov_b32 s61, {csp}")
        k(f"s_branch {k.ref('rp_go')}")
    k("s_waitcnt lgkmcnt(0)")
    k("s_cmp_ge_u32 s52, 640"); k(f"s_cbranch_scc1 {k.ref('rp_w2')}")
    k("s_cmp_ge_u32 s52, 540"); k(f"s_cbranch_scc1 {k.ref('rp_wo')}")
    k("s_cmp_ge_u32 s52, 300"); k(f"s_cbranch_scc1 {k.ref('rp_w1')}")
    setup("rp_wq", 0, 30, 54, 640 * 3840, 3840, 128, 640, WS_WQ, WS_CSQ, 1920 * 4)
    setup("rp_w1", 300, 24, 58, 640 * 3072, 3072, 96, 640, WS_W1, WS_CS1, 1536 * 4)
    setup("rp_wo", 540, 10, 56, 640 * 1280, 1280, 80, 640, WS_WO, None, 0)
    setup("rp_w2", 640, 10, 60, 1536 * 1280, 1280, 80, 1536, WS_W2, None, 0)
    k.lab("rp_go")
    k("v_lshlrev_b32 v4, 1, v0")
    k("s_lshl_b32 s62, s58, 6")
    k("s_mul_i32 s62, s62, s53")
    k("s_lshl_b32 s63, s59, 7")
    k("s_add_u32 s62, s62, s63")
    for r in range(64):
        d = (OD if r & 1 else EV) + (r >> 1)
        k(f"buffer_load_ushort v{d}, v4, s[64:67], s62 offen")
        if r < 63:
            k("s_add_u32 s62, s62, s53")
    k("s_lshl_b32 s62, s59, 6")
    k("v_add_u32 v4, s62, v0")
    k("v_mul_lo_u32 v5, v4, s54")
    k("v_lshrrev_b32 v5, 16, v5")
    k("v_mul_lo_u32 v6, v5, s55")
    k("v_sub_u32 v6, v4, v6")
    k("v_mul_lo_u32 v5, v5, s56")
    k("v_lshl_add_u32 v5, v6, 4, v5")
    k("s_lshl_b32 s63, s55, 4")
    k("s_lshl_b32 s62, s58, 3")
    k("s_mul_i32 s62, s62, s63")
    k("s_add_u32 s62, s62, s57")
    k("v_mov_b32 v6, 0")
    k("v_mov_b32 v7, 0")
    for ku in range(8):
        k(f"s_waitcnt vmcnt({min(63, 56 - 8*ku + ku)})")
        for j in range(4 * ku, 4 * ku + 4):
            k(f"v_lshl_or_b32 v{EV+j}, v{OD+j}, 16, v{EV+j}")
        k(f"buffer_store_dwordx4 v[{EV+4*ku}:{EV+4*ku+3}], v5, s[12:15], s62 offen")
        if ku < 7:
            k("s_add_u32 s62, s62, s63")
    k("s_cmp_eq_u32 s60, 0xffffffff")
    k(f"s_cbranch_scc1 {k.ref('rp_done')}")
    for j in range(32):
        k(f"v_dot2c_f32_bf16 v{6 + (j & 1)}, 0x3f803f80, v{EV+j}")
    k("s_mul_i32 s62, s58, s61")
    k("s_add_u32 s62, s62, s60")
    k("v_lshlrev_b32 v4, 2, v4")
    k("s_nop 3")
    k("v_add_f32 v6, v6, v7")
    k("s_nop 0")
    k("buffer_store_dword v6, v4, s[12:15], s62 offen")
    k.lab("rp_done")


PF_ATT = [(WS_WO, 409600), (WS_W1, 983040), (WS_W2, 983040)]

def gen_attn2(name, kidx=0, pack="cvt", force_slow=False, sched=0, dbg=(), pf=0):
    NWG = 256
    LDS = 163840
    k = Kern(name, NWG, 512, LDS, vgpr=160)
    KA, KB, VA = 1, 2, 3
    Q16 = [8, 28]; Q4 = [12, 14]
    K16 = [16, 20]; K4 = [24, 26]
    V = [32, 40]
    S = [48, 64]
    P = 80
    O = [96, 112]
    k(f"s_cmp_ge_u32 s2, {NWG}")
    k(f"s_cbranch_scc1 {k.ref('end')}")
    k.stamp(0)
    k.karg(6, 80)
    wave_id(k, 26)
    k("s_and_b32 s20, s2, 7")
    k("s_lshr_b32 s21, s2, 3")
    k("s_lshr_b32 s22, s21, 3")
    k("s_lshl_b32 s23, s20, 2")
    k("s_add_u32 s24, s23, s22")
    k("v_lshlrev_b32 v4, 4, v0")
    k("s_cmp_lt_u32 s26, 4")
    k(f"s_cbranch_scc1 {k.ref('compute')}")
    k("s_sub_u32 s26, s26, 4")
    k("s_mul_i32 s28, s24, 163840")
    k(f"s_add_u32 s28, s28, {WS_KV}")
    k("s_mul_i32 s29, s26, 6144")
    k("s_mul_i32 s30, s26, 34816")
    k("s_add_u32 s30, s30, 24576")
    k("s_waitcnt lgkmcnt(0)")
    k.srd(12, 6, 0, WS_SIZE)
    k("s_mov_b32 m0, s29")
    k("s_add_u32 s31, s28, s29")
    for i in range(4):
        k(f"buffer_load_dwordx4 v4, s[12:15], s31 offen offset:{i*1024} lds")
    k("s_add_u32 m0, s29, 4096")
    k("s_add_u32 s31, s31, 4096")
    for i in range(2):
        k(f"buffer_load_dwordx4 v4, s[12:15], s31 offen offset:{i*1024} lds")
    k("s_add_u32 s28, s28, s30")
    def stB(g):
        k(f"s_add_u32 m0, s30, {g*4096}")
        k(f"s_add_u32 s31, s28, {g*4096}")
        for i in range(4 if g < 8 else 2):
            k(f"buffer_load_dwordx4 v4, s[12:15], s31 offen offset:{i*1024} lds")
    stB(0); stB(1)
    k.stamp(1)
    k("s_waitcnt vmcnt(8)")
    k.stamp(2)
    k("s_barrier")
    for g in range(2, 9):
        stB(g)
    k.stamp(3)
    k("s_waitcnt vmcnt(0)")
    k.stamp(4)
    k("s_barrier")
    if pf:
        k("s_and_b32 s40, s20, 1")
        l2_prefetch(k, PF_ATT[:pf], 40, 21, 26, 42, 5, 8)
        k("s_waitcnt vmcnt(0)")
    k("s_add_u32 s26, s26, 4")
    k.stamp_flush(6, kidx, 5, 26)
    k.lab("end")
    k("s_endpgm")
    k.lab("compute")
    k("s_and_b32 s25, s21, 7")
    k("s_lshl_b32 s25, s25, 3")
    k("s_lshl_b32 s23, s26, 1")
    k("s_add_u32 s25, s25, s23")
    k("s_lshl_b32 s27, s24, 6")
    k("s_add_u32 s27, s27, s25")
    k("s_mul_i32 s27, s27, 1280")
    k(f"s_add_u32 s27, s27, {WS_Q}")
    k("s_add_u32 s28, s27, 1280")
    k("v_and_b32 v5, 31, v0")
    k("v_lshlrev_b32 v6, 3, v5")
    for x in range(2):
        k(f"v_mov_b32 v{Q4[x]}, 0")
        k(f"v_mov_b32 v{Q4[x]+1}, 0")
    k("s_waitcnt lgkmcnt(0)")
    k.srd(12, 6, 0, WS_SIZE)
    k(f"buffer_load_dwordx4 v[{Q16[0]}:{Q16[0]+3}], v4, s[12:15], s27 offen")
    k(f"buffer_load_dwordx4 v[{Q16[1]}:{Q16[1]+3}], v4, s[12:15], s28 offen")
    k("s_mov_b64 exec, 0xffffffff")
    k(f"buffer_load_dwordx2 v[{Q4[0]}:{Q4[0]+1}], v6, s[12:15], s27 offen offset:1024")
    k(f"buffer_load_dwordx2 v[{Q4[1]}:{Q4[1]+1}], v6, s[12:15], s28 offen offset:1024")
    k("s_mov_b64 exec, -1")
    def lane_addrs():
        k("v_and_b32 v5, 31, v0")
        k("v_and_b32 v6, 0x13, v5")
        k("v_and_b32 v7, 4, v5")
        k("v_lshl_or_b32 v6, v7, 1, v6")
        k("v_and_b32 v7, 8, v5")
        k("v_lshrrev_b32 v7, 1, v7")
        k("v_or_b32 v6, v6, v7")
        k("v_lshrrev_b32 v7, 5, v0")
        k(f"v_lshlrev_b32 v{KA}, 9, v7")
        k(f"v_lshl_add_u32 v{KA}, v6, 4, v{KA}")
        k(f"v_lshlrev_b32 v{KB}, 3, v6")
        k(f"v_add_u32 v{KB}, 1024, v{KB}")
        k(f"v_mul_u32_u24 v{VA}, 320, v7")
        k(f"v_lshl_add_u32 v{VA}, v5, 4, v{VA}")
        k(f"v_add_u32 v{VA}, 1280, v{VA}")
    lane_addrs()
    k("v_cmp_eq_u32 vcc, 20, v5")
    k("v_mov_b32 v7, 0x3f803f80")
    k("s_mov_b32 s34, 0x000fffff")
    k("s_mov_b32 s35, 0x000fffff")
    k(f"v_cndmask_b32 v{V[0]}, 0, v7, vcc")
    for r in range(1, 16):
        k(f"v_mov_b32 v{V[0]+r}, v{V[0]}")
    for r in range(32):
        k(f"v_mov_b32 v{O[0]+r}, 0")
    for r in range(4, 8):
        k(f"v_mov_b32 v{P+r}, 0")
    k.stamp(1)
    k("s_waitcnt vmcnt(0)")
    k("s_barrier")
    k.stamp(2)
    def rdK(buf, off):
        return [f"ds_read_b128 v[{K16[buf]}:{K16[buf]+3}], v{KA} offset:{off}",
                f"ds_read_b64 v[{K4[buf]}:{K4[buf]+1}], v{KB} offset:{off}"]
    def rdV(buf, off):
        return ["s_mov_b64 exec, s[34:35]",
                f"ds_read_b128 v[{V[buf]}:{V[buf]+3}], v{VA} offset:{off}",
                f"ds_read_b128 v[{V[buf]+4}:{V[buf]+7}], v{VA} offset:{off+640}",
                "s_mov_b64 exec, -1"]
    def M1(x, kb): return f"v_mfma_f32_32x32x16_bf16 v[{S[x]}:{S[x]+15}], v[{K16[kb]}:{K16[kb]+3}], v[{Q16[x]}:{Q16[x]+3}], 0"
    def M2(x, kb): return f"v_mfma_f32_32x32x8bf16_1k v[{S[x]}:{S[x]+15}], v[{K4[kb]}:{K4[kb]+1}], v[{Q4[x]}:{Q4[x]+1}], v[{S[x]}:{S[x]+15}]"
    def MPV(x, vb, f): return f"v_mfma_f32_32x32x16_bf16 v[{O[x]}:{O[x]+15}], v[{V[vb]+4*f}:{V[vb]+4*f+3}], v[{P+4*f}:{P+4*f+3}], v[{O[x]}:{O[x]+15}]"
    def G(x, g, fill=()):
        s = S[x] + 4 * g
        p = P + 2 * g
        fill = list(fill)
        if pack == "cvt":
            ex = [f"v_exp_f32 v{s+i}, v{s+i}" for i in range(4)]
            pk = [f"v_cvt_pk_bf16_f32 v{p}, v{s}, v{s+1}", f"v_cvt_pk_bf16_f32 v{p+1}, v{s+2}, v{s+3}"]
        else:
            ex = [f"v_exp_f32 v{p}, v{s+1}", f"v_exp_f32 v{s}, v{s}", f"v_exp_f32 v{p+1}, v{s+3}", f"v_exp_f32 v{s+2}, v{s+2}"]
            pk = [f"v_mov_b32_sdwa v{p}, v{s} dst_sel:WORD_0 dst_unused:UNUSED_PRESERVE src0_sel:WORD_1",
                  f"v_mov_b32_sdwa v{p+1}, v{s+2} dst_sel:WORD_0 dst_unused:UNUSED_PRESERVE src0_sel:WORD_1"]
        for i in range(4):
            k(ex[i])
            if i < len(fill) and fill[i]:
                for f in (fill[i] if isinstance(fill[i], list) else [fill[i]]):
                    k(f)
        for x_ in pk: k(x_)
    for r in rdK(0, 0) + rdK(1, 2560) + rdV(0, 0): k(r)
    k("s_waitcnt lgkmcnt(4)")
    k(M1(0, 0))
    k("s_mov_b32 s36, 0")
    k("s_nop 7")
    k("s_nop 1")
    k(M2(0, 0))
    k("s_nop 7")
    k("s_nop 3")
    k.lab("loop")
    k("s_cmp_eq_u32 s36, 1")
    k(f"s_cbranch_scc0 {k.ref('nosync')}")
    k("s_barrier")
    k.lab("nosync")
    k("s_cmp_eq_u32 s36, 7")
    k(f"s_mov_b32 s37, {(-7*20480) & 0xffffffff:#x}")
    k("s_cselect_b32 s37, s37, 20480")
    L0 = len(k.L)
    for t in range(8):
        c, n = t & 1, (t + 1) & 1
        k("s_waitcnt lgkmcnt(0)")
        k(M1(1, c))
        G(0, 0)
        k(MPV(1, n, 1))
        if t == 7:
            k(f"v_add_u32 v{VA}, s37, v{VA}")
        rv = rdV(n, ((t + 1) % 8) * 2560)
        G(0, 1, fill=[rv])
        k(M2(1, c))
        if t == 6:
            k(f"v_add_u32 v{KA}, s37, v{KA}")
            k(f"v_add_u32 v{KB}, s37, v{KB}")
        rk = rdK(c, ((t + 2) % 8) * 2560)
        G(0, 2, fill=[rk[0], rk[1]])
        k(MPV(0, c, 0))
        G(0, 3)
        k(M1(0, n))
        G(1, 0)
        k(MPV(0, c, 1))
        G(1, 1)
        k(M2(0, n))
        G(1, 2)
        k(MPV(1, c, 0))
        G(1, 3)
    if dbg:
        body = k.L[L0:]
        def drop(l):
            l = l.strip()
            if "nods" in dbg and (l.startswith("ds_") or "exec" in l or l.startswith("s_waitcnt")): return True
            if "nomfma" in dbg and l.startswith("v_mfma"): return True
            if "nocvt" in dbg and (l.startswith("v_cvt") or l.startswith("v_mov_b32_sdwa")): return True
            if "noexp" in dbg and l.startswith("v_exp"): return True
            if "nom2" in dbg and "32x32x8" in l: return True
            if "nopv" in dbg and l.startswith(f"v_mfma_f32_32x32x16_bf16 v[{O[0]}") : return True
            if "nopv" in dbg and l.startswith(f"v_mfma_f32_32x32x16_bf16 v[{O[1]}") : return True
            return False
        k.L = k.L[:L0] + [l for l in body if not drop(l)]
    k("s_add_u32 s36, s36, 1")
    k("s_cmp_lt_u32 s36, 8")
    k(f"s_cbranch_scc1 {k.ref('loop')}")
    k("s_nop 0")
    k(MPV(1, 1, 1))
    k.stamp(3)
    k("s_waitcnt lgkmcnt(0)")
    k("s_nop 7")
    k("s_nop 3")
    L = [5, 7]
    k("v_mov_b32 v16, 0")
    for x in range(2):
        k(f"v_mov_b32 v{L[x]-1}, v{O[x]+8}")
        k(f"v_mov_b32 v{L[x]}, v{O[x]+8}")
    k("s_nop 1")
    for x in range(2):
        k(f"v_permlane32_swap_b32 v{L[x]-1}, v{L[x]}")
    for x in range(2):
        for r in range(12):
            k(f"v_fma_f32 v16, v{O[x]+r}, 0, v16")
    k(f"s_mov_b32 s40, {f2u(2.0**40):#x}")
    k(f"s_mov_b32 s41, {f2u(2.0**-40):#x}")
    k("v_cmp_eq_f32 vcc, 0, v16")
    k("v_cmp_lt_f32 s[42:43], s41, v5")
    k("v_cmp_gt_f32 s[44:45], s40, v5")
    k("v_cmp_lt_f32 s[46:47], s41, v7")
    k("v_cmp_gt_f32 s[48:49], s40, v7")
    k("s_nop 3")
    k("s_and_b64 vcc, vcc, s[42:43]")
    k("s_and_b64 vcc, vcc, s[44:45]")
    k("s_and_b64 vcc, vcc, s[46:47]")
    k("s_and_b64 vcc, vcc, s[48:49]")
    if force_slow:
        k("s_mov_b64 vcc, 0")
    k("s_cmp_eq_u64 vcc, -1")
    k(f"s_cbranch_scc0 {k.ref('slow')}")
    k.lab("fin")
    k("v_rcp_f32 v5, v5")
    k("v_rcp_f32 v7, v7")
    k("s_mul_i32 s40, s24, 5")
    k("v_lshrrev_b32 v17, 5, v0")
    k("v_add_u32 v17, s40, v17")
    k("v_lshrrev_b32 v16, 1, v17")
    k("v_lshlrev_b32 v16, 9, v16")
    k("v_and_b32 v17, 1, v17")
    k("v_lshl_add_u32 v16, v17, 3, v16")
    k("v_and_b32 v17, 31, v0")
    k("v_lshl_add_u32 v16, v17, 4, v16")
    k("s_mul_i32 s41, s25, 40960")
    k(f"s_add_u32 s41, s41, {WS_O}")
    k("s_add_u32 s42, s41, 40960")
    for x in range(2):
        for r in range(0, 12, 2):
            k(f"v_pk_mul_f32 v[{O[x]+r}:{O[x]+r+1}], v[{O[x]+r}:{O[x]+r+1}], v[{L[x]-1}:{L[x]}] op_sel:[0,1] op_sel_hi:[1,1]")
    for x in range(2):
        for j in range(6):
            k(f"v_cvt_pk_bf16_f32 v{20+6*x+j}, v{O[x]+2*j}, v{O[x]+2*j+1}")
    for x in range(2):
        k(f"buffer_store_dwordx2 v[{20+6*x}:{21+6*x}], v16, s[12:15], s{41+x} offen")
        k(f"buffer_store_dwordx2 v[{22+6*x}:{23+6*x}], v16, s[12:15], s{41+x} offen offset:512")
    k("s_mov_b64 exec, 0xffffffff")
    for x in range(2):
        k(f"buffer_store_dwordx2 v[{24+6*x}:{25+6*x}], v16, s[12:15], s{41+x} offen offset:1024")
    k("s_waitcnt vmcnt(0)")
    k.stamp(4); k.stamp_flush(6, kidx, 5, 26)
    k("s_endpgm")
    k.lab("slow")
    MX = 88
    for x in range(2):
        lane_addrs()
        k(f"v_mov_b32 v{MX}, {f2u(-3.0e38):#x}")
        for r in range(16):
            k(f"v_mov_b32 v{O[x]+r}, 0")
        k("s_mov_b32 s36, 0")
        k.lab(f"sl{x}")
        for r in rdK(0, 0) + rdV(0, 0): k(r)
        k("s_waitcnt lgkmcnt(0)")
        k(M1(x, 0))
        k("s_nop 7"); k("s_nop 1")
        k(M2(x, 0))
        k("s_nop 7"); k("s_nop 3")
        s = S[x]
        k(f"v_max3_f32 v4, v{s}, v{s+1}, v{s+2}")
        for i in range(3, 15, 2):
            k(f"v_max3_f32 v4, v4, v{s+i}, v{s+i+1}")
        k(f"v_max_f32 v4, v4, v{s+15}")
        k("v_mov_b32 v5, v4")
        k("s_nop 1")
        k("v_permlane32_swap_b32 v4, v5")
        k("s_nop 1")
        k(f"v_max3_f32 v4, v4, v5, v{MX}")
        k(f"v_sub_f32 v5, v{MX}, v4")
        k("v_exp_f32 v5, v5")
        k(f"v_mov_b32 v{MX}, v4")
        for i in range(16):
            k(f"v_sub_f32 v{s+i}, v{s+i}, v4")
        for i in range(16):
            k(f"v_exp_f32 v{s+i}, v{s+i}")
        for r in range(12):
            k(f"v_mul_f32 v{O[x]+r}, v{O[x]+r}, v5")
        for j in range(8):
            k(f"v_cvt_pk_bf16_f32 v{P+j}, v{s+2*j}, v{s+2*j+1}")
        k(f"v_add_u32 v{KA}, 2560, v{KA}")
        k(f"v_add_u32 v{KB}, 2560, v{KB}")
        k(f"v_add_u32 v{VA}, 2560, v{VA}")
        k("s_nop 4")
        k(MPV(x, 0, 0))
        k(MPV(x, 0, 1))
        k("s_nop 7"); k("s_nop 3")
        k("s_add_u32 s36, s36, 1")
        k("s_cmp_lt_u32 s36, 64")
        k(f"s_cbranch_scc1 {k.ref(f'sl{x}')}")
    for x in range(2):
        k(f"v_mov_b32 v{L[x]-1}, v{O[x]+8}")
        k(f"v_mov_b32 v{L[x]}, v{O[x]+8}")
    k("s_nop 1")
    for x in range(2):
        k(f"v_permlane32_swap_b32 v{L[x]-1}, v{L[x]}")
    k("s_nop 1")
    k(f"s_branch {k.ref('fin')}")
    return k


def gen_attn3(name, kidx=0, force_slow=False, pf=0, h=8, um=8, uh=8, pm=3, phl=0, b2=8, dbg=(), repack=False, amap=0, stream=0, fz=None):
    NWG = 256
    LDS = 163840
    TM = 64 - h
    assert TM % um == 0 and h % uh == 0 and b2 % um == 0 and um % 2 == 0 and uh % 2 == 0
    SLOT = 2688
    assert 8 * SLOT <= b2 * 2560 + 3840
    k = Kern(name, NWG, 512, LDS, vgpr=160) if fz is None else fz.k
    NS_ = " ; nosc" if (fz and fz.xl and "o" not in XSC) else ""
    KA, KB, VA = 1, 2, 3
    Q16 = [8, 28]; Q4 = [12, 14]
    K16 = [16, 20]; K4 = [24, 26]
    V = [32, 40]
    S = [48, 64]
    P = 80
    O = [96, 112]
    if fz is None:
        k(f"s_cmp_ge_u32 s2, {NWG}")
        k(f"s_cbranch_scc1 {k.ref('end')}")
        k.stamp(0)
        k.karg(6, 80)
        wave_id(k, 26)
    k("s_and_b32 s20, s2, 7")
    k("s_lshr_b32 s21, s2, 3")
    if amap:
        k("s_mov_b32 s24, s21")
    else:
        k("s_lshr_b32 s22, s21, 3")
        k("s_lshl_b32 s23, s20, 2")
        k("s_add_u32 s24, s23, s22")
    k("v_lshlrev_b32 v4, 4, v0")
    k("s_and_b32 s33, s26, 3")
    k(f"s_mul_i32 s50, s24, {163840 + KVPAD}")
    k(f"s_add_u32 s50, s50, {WS_KV}")
    if amap:
        k("s_lshl_b32 s25, s20, 3")
    else:
        k("s_and_b32 s25, s21, 7")
        k("s_lshl_b32 s25, s25, 3")
    k("s_lshl_b32 s23, s33, 1")
    k("s_add_u32 s25, s25, s23")
    k("s_lshl_b32 s27, s24, 6")
    k("s_add_u32 s27, s27, s25")
    k("s_mul_i32 s27, s27, 1280")
    k(f"s_add_u32 s27, s27, {WS_Q}")
    k("s_add_u32 s28, s27, 1280")
    def q_loads():
        k("v_and_b32 v5, 31, v0")
        k("v_lshlrev_b32 v6, 3, v5")
        for x in range(2):
            k(f"v_mov_b32 v{Q4[x]}, 0")
            k(f"v_mov_b32 v{Q4[x]+1}, 0")
        k(f"buffer_load_dwordx4 v[{Q16[0]}:{Q16[0]+3}], v4, s[12:15], s27 offen")
        k(f"buffer_load_dwordx4 v[{Q16[1]}:{Q16[1]+3}], v4, s[12:15], s28 offen")
        k("s_mov_b64 exec, 0xffffffff")
        k(f"buffer_load_dwordx2 v[{Q4[0]}:{Q4[0]+1}], v6, s[12:15], s27 offen offset:1024")
        k(f"buffer_load_dwordx2 v[{Q4[1]}:{Q4[1]+1}], v6, s[12:15], s28 offen offset:1024")
        k("s_mov_b64 exec, -1")
    def lane_addrs():
        k("v_and_b32 v5, 31, v0")
        k("v_and_b32 v6, 0x13, v5")
        k("v_and_b32 v7, 4, v5")
        k("v_lshl_or_b32 v6, v7, 1, v6")
        k("v_and_b32 v7, 8, v5")
        k("v_lshrrev_b32 v7, 1, v7")
        k("v_or_b32 v6, v6, v7")
        k("v_lshrrev_b32 v7, 5, v0")
        k(f"v_lshlrev_b32 v{KA}, 9, v7")
        k(f"v_lshl_add_u32 v{KA}, v6, 4, v{KA}")
        k(f"v_lshlrev_b32 v{KB}, 3, v6")
        k(f"v_add_u32 v{KB}, 1024, v{KB}")
        k(f"v_mul_u32_u24 v{VA}, 320, v7")
        k(f"v_lshl_add_u32 v{VA}, v5, 4, v{VA}")
        k(f"v_add_u32 v{VA}, 1280, v{VA}")
    def init_regs():
        lane_addrs()
        k("v_cmp_eq_u32 vcc, 20, v5")
        k("v_mov_b32 v7, 0x3f803f80")
        k("s_mov_b32 s34, 0x000fffff")
        k("s_mov_b32 s35, 0x000fffff")
        k(f"v_cndmask_b32 v{V[0]}, 0, v7, vcc")
        for r in range(1, 16):
            k(f"v_mov_b32 v{V[0]+r}, v{V[0]}")
        for r in range(32):
            k(f"v_mov_b32 v{O[0]+r}, 0")
        for r in range(4, 8):
            k(f"v_mov_b32 v{P+r}, 0")
    def rdK(buf, off):
        return [f"ds_read_b128 v[{K16[buf]}:{K16[buf]+3}], v{KA} offset:{off}",
                f"ds_read_b64 v[{K4[buf]}:{K4[buf]+1}], v{KB} offset:{off}"]
    def rdV(buf, off):
        return ["s_mov_b64 exec, s[34:35]",
                f"ds_read_b128 v[{V[buf]}:{V[buf]+3}], v{VA} offset:{off}",
                f"ds_read_b128 v[{V[buf]+4}:{V[buf]+7}], v{VA} offset:{off+640}",
                "s_mov_b64 exec, -1"]
    def M1(x, kb): return f"v_mfma_f32_32x32x16_bf16 v[{S[x]}:{S[x]+15}], v[{K16[kb]}:{K16[kb]+3}], v[{Q16[x]}:{Q16[x]+3}], 0"
    def M2(x, kb): return f"v_mfma_f32_32x32x8bf16_1k v[{S[x]}:{S[x]+15}], v[{K4[kb]}:{K4[kb]+1}], v[{Q4[x]}:{Q4[x]+1}], v[{S[x]}:{S[x]+15}]"
    def MPV(x, vb, f): return f"v_mfma_f32_32x32x16_bf16 v[{O[x]}:{O[x]+15}], v[{V[vb]+4*f}:{V[vb]+4*f+3}], v[{P+4*f}:{P+4*f+3}], v[{O[x]}:{O[x]+15}]"
    def G(x, g, fill=()):
        s = S[x] + 4 * g
        p = P + 2 * g
        fill = list(fill)
        ex = [f"v_exp_f32 v{s+i}, v{s+i}" for i in range(4)]
        pk = [f"v_cvt_pk_bf16_f32 v{p}, v{s}, v{s+1}", f"v_cvt_pk_bf16_f32 v{p+1}, v{s+2}, v{s+3}"]
        for i in range(4):
            k(ex[i])
            if i < len(fill) and fill[i]:
                for f in (fill[i] if isinstance(fill[i], list) else [fill[i]]):
                    k(f)
        for x_ in pk: k(x_)
    def loop(tag, T, U, bar_after, hook=None):
        NIT = T // U
        assert hook is None or NIT == 1
        for r in rdK(0, 0) + rdK(1, 2560) + rdV(0, 0): k(r)
        k("s_waitcnt lgkmcnt(4)")
        k(M1(0, 0))
        k(f"s_mov_b32 s36, {NIT}")
        if isinstance(bar_after, list):
            assert all(b % U == 0 for b in bar_after)
            k(f"s_mov_b32 s38, {sum(1 << (NIT - b // U) for b in bar_after):#x}")
        k("s_nop 7")
        k("s_nop 1")
        k(M2(0, 0))
        k("s_nop 7")
        k("s_nop 3")
        k.lab(f"loop{tag}")
        if isinstance(bar_after, list):
            k("s_bitcmp1_b32 s38, s36")
            k(f"s_cbranch_scc0 {k.ref('nosync' + tag)}")
            k("s_barrier")
            k.lab("nosync" + tag)
        elif bar_after is not None:
            k(f"s_cmp_eq_u32 s36, {NIT - bar_after // U}")
            k(f"s_cbranch_scc0 {k.ref('nosync' + tag)}")
            k("s_barrier")
            k.lab("nosync" + tag)
        k("s_cmp_eq_u32 s36, 1")
        k(f"s_cselect_b32 s37, 0, {U*2560}")
        for t in range(U):
            c, n = t & 1, (t + 1) & 1
            k("s_waitcnt lgkmcnt(0)")
            if hook: hook(t)
            k(M1(1, c))
            G(0, 0)
            k(MPV(1, n, 1))
            if t == U - 1:
                k(f"v_add_u32 v{VA}, s37, v{VA}")
            rv = rdV(n, ((t + 1) % U) * 2560)
            G(0, 1, fill=[rv])
            k(M2(1, c))
            if t == U - 2:
                k(f"v_add_u32 v{KA}, s37, v{KA}")
                k(f"v_add_u32 v{KB}, s37, v{KB}")
            rk = rdK(c, ((t + 2) % U) * 2560)
            G(0, 2, fill=[rk[0], rk[1]])
            k(MPV(0, c, 0))
            G(0, 3)
            k(M1(0, n))
            G(1, 0)
            k(MPV(0, c, 1))
            G(1, 1)
            k(M2(0, n))
            G(1, 2)
            k(MPV(1, c, 0))
            G(1, 3)
        k("s_sub_u32 s36, s36, 1")
        k("s_cmp_lg_u32 s36, 0")
        k(f"s_cbranch_scc1 {k.ref('loop' + tag)}")
        k("s_nop 0")
        k(MPV(1, 1, 1))
    def finish(role):
        keep, give = role, 1 - role
        tg = "mh"[role]
        T_ = S[0]
        k.stamp(3)
        if fz: fz.mode_issue(12, 250)
        k(f"s_lshl_b32 s40, s33, 1")
        k(f"s_add_u32 s41, s40, {role}")
        k(f"s_add_u32 s40, s40, {1 - role}")
        k(f"s_mul_i32 s41, s41, {SLOT}")
        k(f"s_mul_i32 s40, s40, {SLOT}")
        k("v_lshlrev_b32 v4, 4, v0")
        k("v_and_b32 v5, 31, v0")
        k("v_lshlrev_b32 v5, 2, v5")
        k("v_add_u32 v16, s41, v4")
        k("v_add_u32 v17, s41, v5")
        k("v_add_u32 v18, s40, v4")
        k("v_add_u32 v19, s40, v5")
        for r in range(8, 12):
            k(f"v_mov_b32 v{T_+r}, 0")
        k("s_waitcnt lgkmcnt(0)")
        k("s_nop 7" if role == 0 else "s_nop 0")
        k(f"ds_write_b128 v16, v[{O[give]}:{O[give]+3}]")
        k(f"ds_write_b128 v16, v[{O[give]+4}:{O[give]+7}] offset:1024")
        k("s_mov_b64 exec, 0xffffffff")
        k(f"ds_write_b128 v16, v[{O[give]+8}:{O[give]+11}] offset:2048")
        k("s_not_b64 exec, exec")
        k(f"ds_write_b32 v17, v{O[give]+8} offset:2560")
        k("s_mov_b64 exec, -1")
        k("s_mul_i32 s42, s24, 5")
        k("v_lshrrev_b32 v21, 5, v0")
        k("v_add_u32 v21, s42, v21")
        k("v_lshrrev_b32 v20, 1, v21")
        k("v_lshlrev_b32 v20, 9, v20")
        k("v_and_b32 v21, 1, v21")
        k("v_lshl_add_u32 v20, v21, 3, v20")
        k("v_and_b32 v21, 31, v0")
        k("v_lshl_add_u32 v20, v21, 4, v20")
        k(f"s_add_u32 s51, s25, {keep}")
        k("s_mul_i32 s51, s51, 40960")
        k(f"s_add_u32 s51, s51, {WS_O}")
        k("s_waitcnt lgkmcnt(0)")
        k("s_barrier")
        k(f"ds_read_b128 v[{T_}:{T_+3}], v18")
        k(f"ds_read_b128 v[{T_+4}:{T_+7}], v18 offset:1024")
        k("s_mov_b64 exec, 0xffffffff")
        k(f"ds_read_b128 v[{T_+8}:{T_+11}], v18 offset:2048")
        k("s_not_b64 exec, exec")
        k(f"ds_read_b32 v{T_+8}, v19 offset:2560")
        k("s_mov_b64 exec, -1")
        Ox = O[keep]
        k("s_waitcnt lgkmcnt(2)")
        for r in range(8):
            k(f"v_add_f32 v{Ox+r}, v{Ox+r}, v{T_+r}")
        k("s_waitcnt lgkmcnt(0)")
        for r in range(8, 12):
            k(f"v_add_f32 v{Ox+r}, v{Ox+r}, v{T_+r}")
        k(f"v_mov_b32 v4, v{Ox+8}")
        k(f"v_mov_b32 v5, v{Ox+8}")
        k("v_mov_b32 v16, 0")
        k("s_nop 0")
        k("v_permlane32_swap_b32 v4, v5")
        for r in range(12):
            k(f"v_fma_f32 v16, v{Ox+r}, 0, v16")
        k(f"s_mov_b32 s40, {f2u(2.0**40):#x}")
        k(f"s_mov_b32 s41, {f2u(2.0**-40):#x}")
        k("v_cmp_eq_f32 vcc, 0, v16")
        k("v_cmp_lt_f32 s[42:43], s41, v5")
        k("v_cmp_gt_f32 s[44:45], s40, v5")
        k("s_nop 3")
        k("s_and_b64 vcc, vcc, s[42:43]")
        k("s_and_b64 vcc, vcc, s[44:45]")
        if force_slow:
            k("s_mov_b64 vcc, 0")
        k("s_cmp_eq_u64 vcc, -1")
        k(f"s_cbranch_scc0 {k.ref('slow' + tg)}")
        k.lab("fin" + tg)
        k("v_rcp_f32 v5, v5")
        k("s_nop 0")
        for r in range(0, 12, 2):
            k(f"v_pk_mul_f32 v[{Ox+r}:{Ox+r+1}], v[{Ox+r}:{Ox+r+1}], v[4:5] op_sel:[0,1] op_sel_hi:[1,1]")
        for j in range(6):
            k(f"v_cvt_pk_bf16_f32 v{22+j}, v{Ox+2*j}, v{Ox+2*j+1}")
        k("buffer_store_dwordx2 v[22:23], v20, s[12:15], s51 offen" + NS_)
        k("buffer_store_dwordx2 v[24:25], v20, s[12:15], s51 offen offset:512" + NS_)
        k("s_mov_b64 exec, 0xffffffff")
        k("buffer_store_dwordx2 v[26:27], v20, s[12:15], s51 offen offset:1024" + NS_)
        k("s_waitcnt vmcnt(0)")
        if fz:
            k("s_mov_b64 exec, -1")
            k.stamp(4)
            fz.attn_done(role)
        else:
            k.stamp(4); k.stamp_flush(6, kidx, 5, 26)
            k("s_endpgm")
        k.lab("slow" + tg)
        MX = 88
        x = keep
        lane_addrs()
        k(f"v_mov_b32 v{MX}, {f2u(-3.0e38):#x}")
        for r in range(16):
            k(f"v_mov_b32 v{O[x]+r}, 0")
        k("s_mov_b32 s36, 0")
        k.lab(f"sl{tg}")
        k(f"buffer_load_dwordx4 v[{K16[0]}:{K16[0]+3}], v{KA}, s[12:15], s50 offen")
        k(f"buffer_load_dwordx2 v[{K4[0]}:{K4[0]+1}], v{KB}, s[12:15], s50 offen")
        k("s_mov_b64 exec, s[34:35]")
        k(f"buffer_load_dwordx4 v[{V[0]}:{V[0]+3}], v{VA}, s[12:15], s50 offen")
        k(f"buffer_load_dwordx4 v[{V[0]+4}:{V[0]+7}], v{VA}, s[12:15], s50 offen offset:640")
        k("s_mov_b64 exec, -1")
        k("s_waitcnt vmcnt(0)")
        k(M1(x, 0))
        k("s_nop 7"); k("s_nop 1")
        k(M2(x, 0))
        k("s_nop 7"); k("s_nop 3")
        s = S[x]
        k(f"v_max3_f32 v4, v{s}, v{s+1}, v{s+2}")
        for i in range(3, 15, 2):
            k(f"v_max3_f32 v4, v4, v{s+i}, v{s+i+1}")
        k(f"v_max_f32 v4, v4, v{s+15}")
        k("v_mov_b32 v5, v4")
        k("s_nop 1")
        k("v_permlane32_swap_b32 v4, v5")
        k("s_nop 1")
        k(f"v_max3_f32 v4, v4, v5, v{MX}")
        k(f"v_sub_f32 v5, v{MX}, v4")
        k("v_exp_f32 v5, v5")
        k(f"v_mov_b32 v{MX}, v4")
        for i in range(16):
            k(f"v_sub_f32 v{s+i}, v{s+i}, v4")
        for i in range(16):
            k(f"v_exp_f32 v{s+i}, v{s+i}")
        for r in range(12):
            k(f"v_mul_f32 v{O[x]+r}, v{O[x]+r}, v5")
        for j in range(8):
            k(f"v_cvt_pk_bf16_f32 v{P+j}, v{s+2*j}, v{s+2*j+1}")
        k(f"v_add_u32 v{KA}, 2560, v{KA}")
        k(f"v_add_u32 v{KB}, 2560, v{KB}")
        k(f"v_add_u32 v{VA}, 2560, v{VA}")
        k("s_nop 4")
        k(MPV(x, 0, 0))
        k(MPV(x, 0, 1))
        k("s_nop 7"); k("s_nop 3")
        k("s_add_u32 s36, s36, 1")
        k("s_cmp_lt_u32 s36, 64")
        k(f"s_cbranch_scc1 {k.ref(f'sl{tg}')}")
        k(f"v_mov_b32 v4, v{O[x]+8}")
        k(f"v_mov_b32 v5, v{O[x]+8}")
        k("s_nop 1")
        k("v_permlane32_swap_b32 v4, v5")
        k("s_nop 1")
        k(f"s_branch {k.ref('fin' + tg)}")
    k("s_cmp_lt_u32 s26, 4")
    k(f"s_cbranch_scc1 {k.ref('compute')}")
    if stream:
        assert um == 4
        k("s_lshl_b32 s29, s33, 12")
        k("s_waitcnt lgkmcnt(0)")
        k.srd(12, 6, 0, WS_SIZE)
        k("s_add_u32 s32, s50, s29")
        def grp(G_):
            k(f"s_add_u32 m0, s29, {G_*16384}")
            k(f"s_add_u32 s31, s32, {G_*16384}")
            for i in range(4):
                k(f"buffer_load_dwordx4 v4, s[12:15], s31 offen offset:{i*1024} lds")
        if fz: fz.mode_publish(4)
        grp(0); grp(1)
        k.stamp(1)
        k("s_waitcnt vmcnt(4)")
        k("s_barrier")
        grp(2); grp(3)
        k("s_waitcnt vmcnt(8)")
        k("s_barrier")
        grp(4); grp(5)
        k("s_waitcnt vmcnt(8)")
        k("s_barrier")
        for G_ in range(6, 10): grp(G_)
        q_loads()
        init_regs()
    else:
        k("s_mul_i32 s29, s33, 6144")
        k("s_mul_i32 s30, s33, 34816")
        k("s_add_u32 s30, s30, 24576")
        k("s_waitcnt lgkmcnt(0)")
        k.srd(12, 6, 0, WS_SIZE)
        k("s_mov_b32 m0, s29")
        k("s_add_u32 s31, s50, s29")
        for i in range(4):
            k(f"buffer_load_dwordx4 v4, s[12:15], s31 offen offset:{i*1024} lds")
        k("s_add_u32 m0, s29, 4096")
        k("s_add_u32 s31, s31, 4096")
        for i in range(2):
            k(f"buffer_load_dwordx4 v4, s[12:15], s31 offen offset:{i*1024} lds")
        k("s_add_u32 s32, s50, s30")
        def stB(g):
            k(f"s_add_u32 m0, s30, {g*4096}")
            k(f"s_add_u32 s31, s32, {g*4096}")
            for i in range(4 if g < 8 else 2):
                k(f"buffer_load_dwordx4 v4, s[12:15], s31 offen offset:{i*1024} lds")
        stB(0); stB(1)
        k.stamp(1)
        k("s_waitcnt vmcnt(8)")
        k("s_barrier")
        for g in range(2, 9):
            stB(g)
        q_loads()
        init_regs()
    k(f"v_add_u32 v{KA}, {TM*2560}, v{KA}")
    k(f"v_add_u32 v{KB}, {TM*2560}, v{KB}")
    k(f"v_add_u32 v{VA}, {TM*2560}, v{VA}")
    k("s_waitcnt vmcnt(0)")
    k("s_barrier")
    k.stamp(2)
    if repack:
        repack_unit(k, 33, 48, 128)
        if fz: k("s_mov_b32 s64, s26")
    if pf:
        k("s_and_b32 s40, s20, 1")
        l2_prefetch(k, PF_ATT[:pf], 40, 21, 33, 42, 128, 129)
    if fz and fz.xl and "o" in PT:
        k("s_mul_i32 s40, s24, 5")
        k("s_lshr_b32 s40, s40, 1")
        k("s_lshl_b32 s40, s40, 9")
        k("s_mul_i32 s41, s25, 40960")
        k("s_add_u32 s40, s40, s41")
        k(f"s_add_u32 s40, s40, {WS_O}")
        k("v_lshlrev_b32 v90, 7, v0")
        k(f"v_add_u32 v91, {40960 - 12*128}, v90")
        k("v_cmp_gt_u32 vcc, 12, v0")
        k("s_nop 1")
        k("v_cndmask_b32 v90, v91, v90, vcc")
        k("s_mov_b64 exec, 0xffffff")
        k("buffer_load_dword v91, v90, s[12:15], s40 offen")
        k("s_mov_b64 exec, -1")
    if fz and fz.xl and "y" in PT:
        k("s_lshr_b32 s41, s25, 1")
        k("s_mul_i32 s40, s41, 81920")
        k("s_mul_i32 s42, s24, 2560")
        k("s_add_u32 s40, s40, s42")
        k(f"s_add_u32 s40, s40, {WS_X1}")
        k("v_lshlrev_b32 v92, 7, v0")
        k("s_mov_b64 exec, 0xfffff")
        k("buffer_load_dword v93, v92, s[12:15], s40 offen")
        k("s_lshr_b32 s40, s24, 1")
        k("s_lshl_b32 s40, s40, 14")
        k("s_lshl_b32 s41, s41, 9")
        k("s_add_u32 s40, s40, s41")
        k("s_and_b32 s41, s24, 1")
        k("s_lshl_b32 s41, s41, 8")
        k("s_add_u32 s40, s40, s41")
        k(f"s_add_u32 s40, s40, {WS_ST1}")
        k("s_mov_b64 exec, 3")
        k("buffer_load_dword v94, v92, s[12:15], s40 offen")
        k("s_mov_b64 exec, -1")
    if phl != 0: k(f"s_setprio {phl}")
    if fz and repack:
        def hook(t):
            if t == 2: fz.wflag_set(33, 128)
            if t == 6: fz.wflag_issue(128)
        loop("h", h, uh, None, hook)
        fz.wflag_wait(128)
    else:
        loop("h", h, uh, None)
    finish(1)
    if fz is None:
        k.lab("end")
        k("s_endpgm")
    k.lab("compute")
    if pm != 0: k(f"s_setprio {pm}")
    k("s_waitcnt lgkmcnt(0)")
    k.srd(12, 6, 0, WS_SIZE)
    q_loads()
    init_regs()
    k.stamp(1)
    k("s_waitcnt vmcnt(0)")
    k("s_barrier")
    k.stamp(2)
    loop("m", TM, um, [4, 8, stream] if stream else b2)
    finish(0)
    return k
```

```python
from dsl import *
import struct
def f2u(x):
    return struct.unpack("<I", struct.pack("<f", x))[0]

KB = 1024
WS_WQ = 0
WS_W1 = 3 * MB
WS_WO = 5 * MB
WS_W2 = 6 * MB
WS_CSQ = 8 * MB
WS_CS1 = 8 * MB + 128 * KB
WS_ST0 = 8 * MB + 256 * KB
WS_ST1 = 8 * MB + 512 * KB
WS_X0 = 9 * MB
WS_X1 = 12 * MB
WS_X2 = 15 * MB
WS_O = 18 * MB
WS_Q = 21 * MB
WS_KV = 24 * MB
WS_H = 30 * MB
X_BYTES = 2048 * 640 * 2
H_BYTES = 2048 * 1536 * 2
ST_BYTES = 16 * 2048 * 8
Q_BYTES = 32 * 64 * 1280
KV_BYTES = 32 * 64 * 2560
WS_SIZE = 40 * MB
QSCALE = (20 ** -0.5) * 1.4426950408889634
KVPAD = 0
Q0T = ""; Q0L = 0; HST = 0; WFY = 0; RLDS = 0; RPRIO = 0; WFT = (2, 6)
ERP = 0
NCSP = 10

def wave_id(k, sreg, vtmp=1):
    k(f"v_lshrrev_b32 v{vtmp}, 6, v0")
    k("s_nop 0")
    k(f"v_readfirstlane_b32 s{sreg}, v{vtmp}")
    k("v_and_b32 v0, 63, v0")

def gen_prep(dbg=()):
    NWG = 220
    k = Kern("prep_kernel", NWG, 512, 4 * 8192, vgpr=64)
    k(f"s_cmp_ge_u32 s2, {NWG}")
    k(f"s_cbranch_scc1 {k.ref('end')}")
    k.karg(4, 0)
    k.karg(6, 8)
    k.karg(8, 16)
    k.karg(10, 32)
    k.karg(12, 48)
    k.karg(14, 80)
    wave_id(k, 26)
    k("s_waitcnt lgkmcnt(0)")
    k.srd(16, 14, 0, WS_SIZE)
    k("s_cmp_ge_u32 s26, 4")
    k(f"s_cbranch_scc1 {k.ref('stats')}")
    if "now" in dbg: k(f"s_branch {k.ref('end')}")
    k("s_lshl_b32 s3, s2, 2")
    k("s_add_u32 s3, s3, s26")
    def setup(lbl, lo, ncg, ptr, size, pitch, TN, K, dst, cs, csp):
        k.lab(lbl)
        k(f"s_sub_u32 s3, s3, {lo}")
        k.srd(20, ptr, 0, size)
        k(f"s_mov_b32 s27, {pitch}")
        k(f"s_mov_b32 s28, {(65536 + TN - 1)//TN}")
        k(f"s_mov_b32 s29, {TN}")
        k(f"s_mov_b32 s30, {K//8*TN*16}")
        k(f"s_mov_b32 s31, {dst}")
        k(f"s_mul_i32 s32, s3, {(65536 + ncg - 1)//ncg}")
        k("s_lshr_b32 s32, s32, 16")
        k(f"s_mul_i32 s33, s32, {ncg}")
        k("s_sub_u32 s33, s3, s33")
        k(f"s_mov_b32 s34, {cs if cs is not None else 0xffffffff:#x}")
        k(f"s_mov_b32 s35, {csp}")
        k(f"s_branch {k.ref('go')}")
    k("s_cmp_ge_u32 s3, 640"); k(f"s_cbranch_scc1 {k.ref('m_w2')}")
    k("s_cmp_ge_u32 s3, 540"); k(f"s_cbranch_scc1 {k.ref('m_wo')}")
    k("s_cmp_ge_u32 s3, 300"); k(f"s_cbranch_scc1 {k.ref('m_w1')}")
    setup("m_wq", 0, 30, 6, 640 * 3840, 3840, 128, 640, WS_WQ, WS_CSQ, 1920 * 4)
    setup("m_w1", 300, 24, 10, 640 * 3072, 3072, 96, 640, WS_W1, WS_CS1, 1536 * 4)
    setup("m_wo", 540, 10, 8, 640 * 1280, 1280, 80, 640, WS_WO, None, 0)
    setup("m_w2", 640, 10, 12, 1536 * 1280, 1280, 80, 1536, WS_W2, None, 0)
    k.lab("go")
    k("v_lshrrev_b32 v2, 3, v0")
    k("v_mul_lo_u32 v2, v2, s27")
    k("v_and_b32 v3, 7, v0")
    k("v_lshl_add_u32 v2, v3, 4, v2")
    k("s_lshl_b32 s36, s32, 6")
    k("s_mul_i32 s36, s36, s27")
    k("s_lshl_b32 s37, s33, 7")
    k("s_add_u32 s36, s36, s37")
    k("s_lshl_b32 s38, s27, 3")
    k("s_lshl_b32 s39, s26, 13")
    for j in range(8):
        k(f"s_add_u32 m0, s39, {j*1024}")
        k("s_nop 0")
        k("buffer_load_dwordx4 v2, s[20:23], s36 offen lds")
        if j < 7:
            k("s_add_u32 s36, s36, s38")
    k("s_lshl_b32 s40, s33, 6")
    k("v_add_u32 v4, s40, v0")
    k("v_mul_lo_u32 v5, v4, s28")
    k("v_lshrrev_b32 v5, 16, v5")
    k("v_mul_lo_u32 v6, v5, s29")
    k("v_sub_u32 v6, v4, v6")
    k("v_mul_lo_u32 v5, v5, s30")
    k("v_lshl_add_u32 v5, v6, 4, v5")
    k("s_lshl_b32 s41, s29, 4")
    k("s_lshl_b32 s42, s32, 3")
    k("s_mul_i32 s42, s42, s41")
    k("s_add_u32 s42, s42, s31")
    k("v_bfe_u32 v7, v0, 2, 2")
    k("v_lshlrev_b32 v7, 7, v7")
    k("v_lshrrev_b32 v8, 4, v0")
    k("v_lshl_add_u32 v7, v8, 5, v7")
    k("v_and_b32 v8, 3, v0")
    k("v_lshl_add_u32 v7, v8, 3, v7")
    k("v_add_u32 v7, s39, v7")
    k("v_mov_b32 v10, 0")
    for ku in range(8):
        k(f"s_waitcnt vmcnt({7-ku if ku == 0 else 7})") if False else None
    for ku in range(8):
        k("s_waitcnt vmcnt(7)")
        r = 16 + 4 * ku
        k(f"ds_read_b64_tr_b16 v[{r}:{r+1}], v7 offset:{ku*1024}")
        k(f"ds_read_b64_tr_b16 v[{r+2}:{r+3}], v7 offset:{ku*1024+512}")
        k("s_waitcnt lgkmcnt(0)")
        k(f"buffer_store_dwordx4 v[{r}:{r+3}], v5, s[16:19], s42 offen")
        if ku < 7:
            k("s_add_u32 s42, s42, s41")
    k("s_cmp_eq_u32 s34, 0xffffffff")
    k(f"s_cbranch_scc1 {k.ref('fin')}")
    for i in range(32):
        r = 16 + i
        k(f"v_lshlrev_b32 v8, 16, v{r}")
        k(f"v_and_b32 v9, 0xffff0000, v{r}")
        k("v_add_f32 v10, v10, v8")
        k("v_add_f32 v10, v10, v9")
    k("s_mul_i32 s43, s32, s35")
    k("s_add_u32 s43, s43, s34")
    k("v_lshlrev_b32 v4, 2, v4")
    k("buffer_store_dword v10, v4, s[16:19], s43 offen")
    k.lab("fin")
    k("s_waitcnt vmcnt(0)")
    k("s_endpgm")
    k.lab("stats")
    if "nox" in dbg: k(f"s_branch {k.ref('end')}")
    k("s_cmp_ge_u32 s2, 128")
    k(f"s_cbranch_scc1 {k.ref('end')}")
    k.srd(20, 4, 0, X_BYTES)
    k("s_sub_u32 s26, s26, 4")
    k("s_lshl_b32 s3, s2, 4")
    k("s_lshl_b32 s27, s26, 2")
    k("s_add_u32 s3, s3, s27")
    k("v_lshrrev_b32 v1, 4, v0")
    k("v_add_u32 v1, s3, v1")
    k("v_and_b32 v2, 15, v0")
    k("v_mul_u32_u24 v3, 1280, v1")
    k("v_lshl_add_u32 v3, v2, 4, v3")
    for i in range(5):
        k(f"buffer_load_dwordx4 v[{8+4*i}:{11+4*i}], v3, s[20:23], 0 offen offset:{256*i}")
    k("v_lshrrev_b32 v30, 5, v1")
    k("v_mul_u32_u24 v30, 40960, v30")
    k("v_and_b32 v31, 31, v1")
    k("v_lshl_add_u32 v30, v31, 4, v30")
    k("v_lshl_add_u32 v30, v2, 9, v30")
    k("v_mov_b32 v4, 0")
    k("v_mov_b32 v5, 0")
    for i in range(5):
        k(f"s_waitcnt vmcnt(4)")
        k(f"s_mov_b32 s28, {WS_X0 + i*8192}")
        k(f"buffer_store_dwordx4 v[{8+4*i}:{11+4*i}], v30, s[16:19], s28 offen")
        for j in range(4):
            r = 8 + 4 * i + j
            k(f"v_lshlrev_b32 v6, 16, v{r}")
            k(f"v_and_b32 v7, 0xffff0000, v{r}")
            k("v_add_f32 v4, v4, v6")
            k("v_fmac_f32 v5, v6, v6")
            k("v_add_f32 v4, v4, v7")
            k("v_fmac_f32 v5, v7, v7")
    for sh in (8, 4, 2, 1):
        k("s_nop 1")
        k(f"v_add_f32_dpp v4, v4, v4 row_ror:{sh} row_mask:0xf bank_mask:0xf")
        k(f"v_add_f32_dpp v5, v5, v5 row_ror:{sh} row_mask:0xf bank_mask:0xf")
    k("v_lshlrev_b32 v3, 3, v1")
    k("v_cmp_eq_u32 vcc, 0, v2")
    k("s_and_saveexec_b64 s[30:31], vcc")
    k(f"s_mov_b32 s28, {WS_ST0}")
    k("buffer_store_dwordx2 v[4:5], v3, s[16:19], s28 offen")
    k("s_waitcnt vmcnt(0)")
    k.lab("end")
    k("s_endpgm")
    return k

def ring_loader(k, NCH, NSLOT, dma, nD, pre_b0=None, post_b0=None, first=2, pre_issue=None, fz=None, tail=None):
    if pre_issue:
        w = pre_issue()
    else:
        for c_ in range(first):
            dma(c_)
        w = nD*(first-1)
    k(f"s_waitcnt vmcnt({w})")
    if pre_b0: pre_b0()
    k("s_barrier")
    issued = first
    if post_b0: post_b0()
    ring_tail(k, NCH, NSLOT, dma, nD, issued, fz, tail)

def ring_tail(k, NCH, NSLOT, dma, nD, issued, fz=None, tail=None):
    npf = 0
    for i in range(1, NCH):
        while issued < NCH and issued <= i - 2 + NSLOT:
            dma(issued); issued += 1
            if issued == NCH and fz:
                npf = fz.prefetch_w()
                if fz.tail: npf += fz.tail()
            if issued == NCH and tail: npf = tail()
        k(f"s_waitcnt vmcnt({(issued - 1 - i) * nD + npf})")
        k("s_barrier")


WS_FLAG = 8 * MB + 768 * KB
NFLAGSET = 8
WSET = 12
LDS_CNT = 147456
POLL_MAX = 0x4000
class Fuse:
    def __init__(self, name, nph, kidx0, xl=False, modeset=None, force_slow=False, sleep=1, xplain=False, attn_first=False):
        self.attn_first = attn_first
        self.k = Kern(name, 256, 512, 163840 if attn_first else LDS_CNT + 256, vgpr=256)
        self.k.fused = True
        self.nph, self.kidx0, self.p = nph, kidx0, -1
        self.xl, self.modeset, self.force_slow, self.sleep = xl, modeset, force_slow, sleep
        self.xplain = xplain and xl
    def begin(self, wait=None, sig=None, rot=0, pfw=None):
        self.p += 1
        self.wait, self.sig, self.rot, self.pfw = wait, sig, rot, pfw
        self.tail = None
        k = self.k
        if self.p == 0:
            k.pfx = ""
            k("s_cmp_ge_u32 s2, 256")
            k(f"s_cbranch_scc1 {k.ref('fin')}")
            k.karg(6, 80)
            wave_id(k, 64)
            if not self.attn_first:
                k(f"v_mov_b32 v1, {LDS_CNT}")
                k("v_mov_b32 v2, 0")
                k("ds_write_b32 v1, v2")
        k.pfx = f"p{self.p}_"
        k.lab("entry")
        k.stamp(0)
        k("s_mov_b32 s26, s64")
    @property
    def last(self): return self.p == self.nph - 1
    def nxt(self): return f"{self.k.name}_p{self.p+1}_entry"
    def leave(self):
        k = self.k
        k.stamp_save(self.p)
        if self.last:
            k.stamp_flush_all(6, self.kidx0, self.nph, 64)
            k("s_endpgm")
        else:
            k(f"s_branch {self.nxt()}")
    def skip_to_end(self):
        assert self.last
        self.k(f"s_cbranch_scc1 {self.k.name}_skip")
    def close(self):
        k = self.k
        k.pfx = ""
        k.lab("skip")
        k.stamp_flush_all(6, self.kidx0, self.nph, 64)
        k.lab("fin")
        k("s_endpgm")
        return k
    def mode_word(self, d):
        k = self.k
        k(f"s_and_b32 s{d}, s2, 7")
        k(f"s_lshl_b32 s{d}, s{d}, 7")
        k(f"s_add_u32 s{d}, s{d}, {WS_FLAG + self.modeset*4096}")
    def mode_token(self, d, t):
        k = self.k
        k(f"s_getreg_b32 s{t}, hwreg(HW_REG_XCC_ID, 0, 4)")
        k(f"s_mul_i32 s{d}, s{t}, s{t}")
        k(f"s_lshl_b32 s{d}, s{d}, 16")
        k(f"s_lshl_b32 s{t}, s{t}, 6")
        k(f"s_add_u32 s{d}, s{d}, s{t}")
        k(f"s_add_u32 s{d}, s{d}, 1")
    def mode_publish(self, w0=0):
        if not (self.xl and self.p == 0): return
        k = self.k
        k(f"s_cmp_lg_u32 s26, {w0}")
        k(f"s_cbranch_scc1 {k.ref('nopub')}")
        self.mode_token(65, 66)
        self.mode_word(66)
        k("s_mov_b64 exec, 1")
        k("v_mov_b32 v10, s65")
        k("buffer_atomic_add v10, off, s[12:15], s66 sc1")
        k("s_mov_b64 exec, -1")
        k.lab("nopub")
    def mode_issue(self, srd, vd):
        k = self.k
        self.mode_word(62)
        k(f"buffer_load_dword v{vd}, off, s[{srd}:{srd+3}], s62 sc1")
    def mode_resolve(self, srd, vd):
        k = self.k
        l0, l1 = k.newlab("mpoll"), k.newlab("mpolled")
        self.mode_word(62)
        k(f"s_mov_b32 s65, {POLL_MAX}")
        k.lab(l0)
        k(f"v_readfirstlane_b32 s67, v{vd}")
        k("s_and_b32 s66, s67, 63")
        k("s_cmp_eq_u32 s66, 32")
        k(f"s_cbranch_scc1 {k.ref(l1)}")
        k("s_sleep 2")
        k(f"buffer_load_dword v{vd}, off, s[{srd}:{srd+3}], s62 sc1")
        k("s_waitcnt vmcnt(0)")
        k("s_sub_u32 s65, s65, 1")
        k(f"s_cbranch_scc0 {k.ref(l0)}")
        k.lab(l1)
        self.mode_token(65, 66)
        k("s_lshl_b32 s65, s65, 5")
        k("s_cmp_lg_u32 s65, s67")
        k("s_cselect_b32 s63, 1, 0")
        if self.force_slow: k("s_mov_b32 s63, 1")
    def prefetch_w(self):
        if not self.pfw: return 0
        k = self.k
        base, nb = self.pfw
        per_w = nb // 128
        lines = (per_w + 127) // 128
        k("s_lshr_b32 s65, s2, 3")
        k("s_lshl_b32 s65, s65, 2")
        k("s_add_u32 s65, s65, s26")
        k(f"s_mul_i32 s65, s65, {per_w}")
        k(f"s_add_u32 s65, s65, {base}")
        k("v_lshlrev_b32 v12, 7, v0")
        n = 0
        done = 0
        while done < lines:
            n_ = min(64, lines - done)
            if n_ < 64: k(f"s_mov_b64 exec, {(1 << n_) - 1:#x}") if n_ <= 32 else (k(f"s_mov_b32 exec_hi, {((1 << n_) - 1) >> 32:#x}"))
            k(f"buffer_load_dword v{13+n}, v12, s[12:15], s65 offen")
            if n_ < 64: k("s_mov_b64 exec, -1")
            done += n_; n += 1
            if done < lines: k(f"s_add_u32 s65, s65, {64*128}")
        return n
    def poll(self, line, nprod):
        k = self.k
        if self.xl and self.p == 1 and not self.attn_first:
            k(f"s_mov_b32 s61, s{line}")
            self.mode_issue(12, 11)
            k("s_waitcnt vmcnt(0)")
            self.mode_resolve(12, 11)
            line = 61
        k(f"s_lshl_b32 s66, s{line}, 7")
        k(f"s_add_u32 s66, s66, {WS_FLAG + self.wait*4096}")
        k("v_lshlrev_b32 v10, 2, v0")
        k(f"s_mov_b64 exec, {(1 << nprod) - 1:#x}")
        k(f"s_mov_b32 s65, {POLL_MAX}")
        k.lab("poll")
        k("buffer_load_dword v11, v10, s[12:15], s66 offen sc1")
        k("s_waitcnt vmcnt(0)")
        k("v_cmp_ne_u32 vcc, 0, v11")
        k(f"s_cmp_eq_u32 vcc_lo, {(1 << nprod) - 1:#x}")
        k(f"s_cbranch_scc1 {k.ref('polled')}")
        k(f"s_sleep {self.sleep}")
        k("s_sub_u32 s65, s65, 1")
        k(f"s_cbranch_scc0 {k.ref('poll')}")
        k.lab("polled")
        k("s_mov_b64 exec, -1")
        if self.xl:
            k("s_cmp_eq_u32 s63, 0")
            k(f"s_cbranch_scc1 {k.ref('noacq')}")
            k("buffer_inv sc1")
            k("s_waitcnt vmcnt(0)")
            k.lab("noacq")
        k.stamp(3)
    def signal(self):
        k = self.k
        l = k.newlab("nosig")
        k("s_mov_b64 exec, 1")
        k(f"v_mov_b32 v1, {LDS_CNT}")
        k("v_mov_b32 v2, 1")
        k("ds_add_rtn_u32 v3, v1, v2")
        k("s_lshl_b32 s37, s24, 7")
        k("s_lshl_b32 s38, s25, 2")
        k("s_add_u32 s37, s37, s38")
        k(f"s_add_u32 s37, s37, {WS_FLAG + self.sig*4096}")
        k("s_waitcnt lgkmcnt(0)")
        k("v_readfirstlane_b32 s38, v3")
        k("s_and_b32 s38, s38, 3")
        k("s_cmp_eq_u32 s38, 3")
        k(f"s_cbranch_scc0 {k.ref(l)}")
        if self.xl:
            l2 = k.newlab("fastsig")
            k("s_cmp_eq_u32 s63, 0")
            k(f"s_cbranch_scc1 {k.ref(l2)}")
            k("buffer_wbl2 sc1")
            k("s_waitcnt vmcnt(0)")
            k("buffer_store_dword v2, off, s[48:51], s37 sc1")
            k(f"s_branch {k.ref(l)}")
            k.lab(l2)
            k("buffer_store_dword v2, off, s[48:51], s37 ; nosc")
        else:
            k("buffer_store_dword v2, off, s[48:51], s37 sc1")
        k.lab(l)
        k("s_mov_b64 exec, -1")

    def attn_done(self, role):
        k = self.k
        self.mode_resolve(12, 250)
        l, l2 = k.newlab("asig"), k.newlab("afast")
        k(f"s_add_u32 s37, s25, {role}")
        k("s_lshl_b32 s37, s37, 7")
        k("s_lshl_b32 s38, s24, 2")
        k("s_add_u32 s37, s37, s38")
        k(f"s_add_u32 s37, s37, {WS_FLAG + self.sig*4096}")
        k("s_mov_b64 exec, 1")
        k("v_mov_b32 v2, 1")
        k("s_cmp_eq_u32 s63, 0")
        k(f"s_cbranch_scc1 {k.ref(l2)}")
        k("buffer_wbl2 sc1")
        k("s_waitcnt vmcnt(0)")
        k("buffer_store_dword v2, off, s[12:15], s37 sc1")
        k(f"s_branch {k.ref(l)}")
        k.lab(l2)
        k("buffer_store_dword v2, off, s[12:15], s37 ; nosc")
        k.lab(l)
        if role == 0:
            k(f"v_mov_b32 v1, {LDS_CNT}")
            k("v_mov_b32 v2, 0")
            k("ds_write_b32 v1, v2")
            k("s_waitcnt lgkmcnt(0)")
        k("s_mov_b64 exec, -1")
        k("s_setprio 0")
        self.leave()
    def wflag_set(self, lw, v, younger=0):
        k = self.k
        k(f"s_waitcnt vmcnt({younger})")
        k("s_lshl_b32 s52, s2, 2")
        k(f"s_add_u32 s52, s52, s{lw}")
        k("s_lshl_b32 s52, s52, 2")
        k(f"s_add_u32 s52, s52, {WS_FLAG + WSET*4096}")
        k("s_mov_b64 exec, 1")
        k(f"v_mov_b32 v{v}, 1")
        k(f"buffer_store_dword v{v}, off, s[12:15], s52 sc1")
        k("s_mov_b64 exec, -1")
    def wflag_issue(self, v):
        k = self.k
        k(f"v_lshlrev_b32 v{v+16}, 4, v0")
        k(f"s_mov_b32 s52, {WS_FLAG + WSET*4096}")
        for i in range(4):
            k(f"buffer_load_dwordx4 v[{v+4*i}:{v+4*i+3}], v{v+16}, s[12:15], s52 offen offset:{i*1024} sc1")
    def wflag_wait(self, v):
        k = self.k
        l0, l1 = k.newlab("wpoll"), k.newlab("wready")
        k(f"s_mov_b32 s53, {POLL_MAX}")
        k.lab(l0)
        k("s_waitcnt vmcnt(0)")
        for i in range(1, 16):
            k(f"v_and_b32 v{v}, v{v}, v{v+i}")
        k(f"v_cmp_ne_u32 vcc, 0, v{v}")
        k("s_nop 1")
        k("s_cmp_eq_u64 vcc, -1")
        k(f"s_cbranch_scc1 {k.ref(l1)}")
        k("s_sleep 4")
        self.wflag_issue(v)
        k("s_sub_u32 s53, s53, 1")
        k(f"s_cbranch_scc0 {k.ref(l0)}")
        k.lab(l1)

def fin_compute(k, fz, kidx):
    k.stamp(4)
    if fz is None:
        k.stamp_flush(6, kidx, 5, 26)
        k("s_endpgm")
    else:
        if fz.xl and fz.p == 0: fz.mode_resolve(48, 250)
        if fz.sig is not None: fz.signal()
        fz.leave()

def fin_loader(k, fz, kidx):
    k.stamp(4)
    if fz is None:
        k("s_add_u32 s26, s26, 4")
        k.stamp_flush(6, kidx, 5, 26)
        k.lab("end")
        k("s_endpgm")
    else:
        fz.leave()


PFS = 128
CW = 0
XSC = ""
PT = ""
OUTP = 0
CWN = 2
class TilePF:
    def __init__(self, k, pfd, first, NCH, va, vs, vd, srd):
        self.k, self.pfd, self.first, self.NCH, self.va, self.vs, self.vd, self.srd = k, pfd, first, NCH, va, vs, vd, srd
        self.next = first
    def one(self):
        k = self.k
        k(f"buffer_load_dword v{self.vd}, v{self.va}, s[{self.srd}:{self.srd+3}], 0 offen")
        self.next += 1
        if self.next < self.NCH:
            k(f"v_add_u32 v{self.va}, v{self.vs}, v{self.va}")
    def start(self):
        self.next = self.first
        while self.next < self.NCH and self.next <= self.pfd:
            self.one()
    def at_barrier(self):
        if self.pfd and self.next < self.NCH:
            self.one()

def gen_gemmA(name, kind, layer, kidx=0, dbg=(), first=2, pfd=0, fz=None):
    if kind == "qkv":
        NWG, NB, TB, TN = 240, 2, 2, 128
        WS_W, XSRC, ST, NPART, CSP, NCOL = WS_WQ, (WS_X0 if layer == 0 else WS_X2), WS_ST0, (1 if layer == 0 else 16), WS_CSQ, 1920
    else:
        NWG, NB, TB, TN = 256, 3, 1, 96
        WS_W, XSRC, ST, NPART, CSP, NCOL = WS_W1, WS_X1, WS_ST1, 16, WS_CS1, 1536
    WB = TN * 128
    SLOT = WB + 16384
    NSLOT = 4
    NCH = 10
    STATS = NSLOT * SLOT
    LDS = STATS + 2048
    rot = fz.rot if fz else 0
    HO = bool(fz and fz.wait is not None)
    XS = " sc1" if (HO and not fz.xplain) else ""
    if fz is None:
        k = Kern(name, NWG, 512, LDS, vgpr=256)
        k(f"s_cmp_ge_u32 s2, {NWG}")
        k(f"s_cbranch_scc1 {k.ref('end')}")
        k.stamp(0)
        k.karg(6, 80)
        if kind == "w1":
            k.karg(8, 40)
        wave_id(k, 26)
    else:
        k = fz.k
        if NWG < 256:
            k(f"s_cmp_ge_u32 s2, {NWG}")
            fz.skip_to_end()
        if kind == "w1":
            k.karg(8, 40)
    k("s_and_b32 s20, s2, 7")
    k("s_lshr_b32 s21, s2, 3")
    if fz and fz.xl:
        k("s_and_b32 s22, s21, 1")
        k("s_lshl_b32 s23, s20, 1")
        k("s_add_u32 s24, s23, s22")
        k("s_lshr_b32 s25, s21, 1")
    else:
        if kind == "qkv":
            k("s_and_b32 s22, s20, 1")
            k("s_mul_i32 s22, s22, 30")
            k("s_add_u32 s22, s22, s21")
            k("s_lshr_b32 s25, s22, 2")
            k("s_and_b32 s22, s22, 3")
        else:
            k("s_and_b32 s22, s20, 1")
            k("s_lshl_b32 s22, s22, 3")
            k("s_lshr_b32 s23, s21, 2")
            k("s_add_u32 s25, s22, s23")
            k("s_and_b32 s22, s21, 3")
        k("s_lshr_b32 s23, s20, 1")
        k("s_lshl_b32 s23, s23, 2")
        k("s_add_u32 s24, s23, s22")
    k("s_cmp_lt_u32 s26, 4")
    k(f"s_cbranch_scc1 {k.ref('compute')}")

    k("s_sub_u32 s26, s26, 4")
    k("v_lshlrev_b32 v1, 4, v0")
    nW = WB // 4096
    k(f"s_mul_i32 s40, s25, {80*TN*16}")
    k(f"s_mul_i32 s41, s26, {nW*1024}")
    k("s_add_u32 s40, s40, s41")
    k(f"s_add_u32 s40, s40, {WS_W}")
    k("s_mov_b32 s42, s41")
    k("s_lshl_b32 s43, s24, 2")
    k("s_add_u32 s43, s43, s26")
    k("s_mul_i32 s43, s43, 40960")
    k(f"s_add_u32 s43, s43, {XSRC}")
    k("s_lshl_b32 s44, s26, 12")
    k(f"s_add_u32 s44, s44, {WB}")
    k("s_waitcnt lgkmcnt(0)")
    k.srd(12, 6, 0, WS_SIZE)
    def dma(ch, parts="wx"):
        if "nodma" in dbg: return
        slot = (ch + rot) % NSLOT
        if "w" in parts:
            k(f"s_add_u32 m0, s42, {slot*SLOT}")
            k(f"s_add_u32 s45, s40, {ch*WB}")
            for i in range(nW):
                k(f"buffer_load_dwordx4 v1, s[12:15], s45 offen offset:{i*1024} lds")
        if "x" in parts:
            k(f"s_add_u32 m0, s44, {slot*SLOT}")
            k(f"s_add_u32 s45, s43, {ch*4096}")
            for i in range(4):
                k(f"buffer_load_dwordx4 v1, s[12:15], s45 offen offset:{i*1024}{XS} lds")
    nD = nW + 4
    k.stamp(1)
    early = HO
    def stats_loads():
        k("s_lshl_b32 s46, s24, 7")
        k("s_lshl_b32 s47, s26, 5")
        k("s_add_u32 s46, s46, s47")
        k("v_add_u32 v4, s46, v2")
        k("v_lshlrev_b32 v4, 3, v4")
        if NPART == 16:
            k("v_lshl_add_u32 v4, v3, 17, v4")
            for p in range(8):
                k(f"s_mov_b32 s47, {ST + p*16384}")
                k(f"buffer_load_dwordx2 v[{16+2*p}:{17+2*p}], v4, s[12:15], s47 offen{XS}")
        else:
            k(f"s_mov_b32 s47, {ST}")
            k(f"buffer_load_dwordx2 v[16:17], v4, s[12:15], s47 offen{XS}")
    def cs_loads():
        k("s_lshl_b32 s47, s26, 5")
        k("v_add_u32 v5, s47, v2")
        k(f"s_mul_i32 s47, s25, {TN}")
        k("v_add_u32 v6, s47, v5")
        k("v_lshlrev_b32 v7, 2, v6")
        k(f"v_mul_u32_u24 v8, {5*NCOL*4}, v3")
        k("v_add_u32 v7, v7, v8")
        for p in range(5):
            k(f"s_mov_b32 s47, {CSP + p*NCOL*4}")
            k(f"buffer_load_dword v{32+p}, v7, s[12:15], s47 offen")
        if kind == "w1":
            k.srd(16, 8, 0, 1536 * 2)
            k("v_lshlrev_b32 v9, 1, v6")
            k("buffer_load_ushort v38, v9, s[16:19], 0 offen")
    if early:
        for c_ in range(first):
            dma(c_, "w")
        k("v_and_b32 v2, 31, v0")
        k("v_lshrrev_b32 v3, 5, v0")
        cs_loads()
        k("s_lshr_b32 s67, s26, 1")
        k("s_lshl_b32 s46, s24, 1")
        k("s_add_u32 s67, s67, s46")
        fz.poll(67, 8)
        dma(0, "x")
        stats_loads()
        for c_ in range(1, first):
            dma(c_, "x")
        k(f"s_waitcnt vmcnt({4*(first-1)})")
    else:
        dma(0)
        k("v_and_b32 v2, 31, v0")
        k("v_lshrrev_b32 v3, 5, v0")
        stats_loads()
        cs_loads()
        for c_ in range(1, first):
            dma(c_)
        k(f"s_waitcnt vmcnt({nD*(first-1)})")
    k.stamp(2)
    k("s_barrier")
    if NPART == 16:
        for p in range(1, 8):
            k(f"v_add_f32 v16, v16, v{16+2*p}")
            k(f"v_add_f32 v17, v17, v{17+2*p}")
        k("v_mov_b32 v18, v16")
        k("v_mov_b32 v19, v17")
        k("s_nop 1")
        k("v_permlane32_swap_b32 v16, v18")
        k("v_permlane32_swap_b32 v17, v19")
        k("s_nop 1")
        k("v_add_f32 v16, v16, v18")
        k("v_add_f32 v17, v17, v19")
    k(f"v_mul_f32 v16, {f2u(1/640):#x}, v16")
    k(f"v_mul_f32 v17, {f2u(1/640):#x}, v17")
    k("v_fma_f32 v17, -v16, v16, v17")
    k("v_max_f32 v17, 0, v17")
    k(f"v_add_f32 v18, {f2u(1e-5):#x}, v17")
    k("v_rsq_f32 v18, v18")
    if kind == "w1":
        k("s_nop 0")
        k("v_mul_f32 v19, v18, v18")
        k("v_mul_f32 v19, v19, v17")
        k(f"v_add_f32 v19, {f2u(1e-5):#x}, v19")
        k("v_rsq_f32 v19, v19")
        k("s_nop 0")
        k("v_mul_f32 v18, v18, v19")
    else:
        k("s_cmp_lt_u32 s25, 5")
        k(f"s_cselect_b32 s46, {f2u(QSCALE):#x}, 1.0")
        k("v_mul_f32 v18, s46, v18")
    k("s_nop 0")
    k("v_mul_f32 v19, v18, v16")
    for p in range(1, 5):
        k(f"v_add_f32 v32, v32, v{32+p}")
    k("v_mov_b32 v33, v32")
    k("s_nop 1")
    k("v_permlane32_swap_b32 v32, v33")
    k("s_nop 1")
    k("v_add_f32 v32, v32, v33")
    k("v_cmp_eq_u32 vcc, 0, v3")
    k("s_lshl_b32 s47, s26, 7")
    k("v_lshlrev_b32 v2, 2, v2")
    k("v_add_u32 v2, s47, v2")
    k(f"v_add_u32 v2, {STATS}, v2")
    k("v_lshl_add_u32 v2, v3, 9, v2")
    k("v_cndmask_b32 v18, v19, v18, vcc")
    if kind == "w1":
        k("v_lshlrev_b32 v38, 16, v38")
        k("v_cndmask_b32 v32, v38, v32, vcc")
    k("ds_write_b32 v2, v18")
    k("ds_write_b32 v2, v32 offset:1024")
    k("s_waitcnt lgkmcnt(0)")
    issued = first
    if fz and fz.xl and "X" in PT and kind == "w1" and (layer == 0 or OUTP):
        def tail():
            k("v_lshlrev_b32 v12, 7, v0")
            k("s_mul_i32 s46, s24, 163840")
            k("s_lshl_b32 s47, s25, 2")
            k("s_add_u32 s47, s47, s26")
            k("s_mul_i32 s47, s47, 2560")
            k("s_add_u32 s46, s46, s47")
            if layer == 0:
                k(f"s_add_u32 s46, s46, {WS_X2}")
                k("s_mov_b64 exec, 0xfffff")
                k("buffer_load_dword v13, v12, s[12:15], s46 offen")
                k("s_lshl_b32 s46, s25, 14")
                k("s_lshl_b32 s47, s24, 10")
                k("s_add_u32 s46, s46, s47")
                k("s_lshl_b32 s47, s26, 8")
                k("s_add_u32 s46, s46, s47")
                k(f"s_add_u32 s46, s46, {WS_ST0}")
                k("s_mov_b64 exec, 3")
                k("buffer_load_dword v14, v12, s[12:15], s46 offen")
                k("s_mov_b64 exec, -1")
                return 2
            k.karg(56, 64)
            k("s_waitcnt lgkmcnt(0)")
            k.srd(16, 56, 0, X_BYTES)
            k("s_mov_b64 exec, 0xfffff")
            k("buffer_load_dword v13, v12, s[16:19], s46 offen")
            k("s_mov_b64 exec, -1")
            return 1
        fz.tail = tail
    free = [int(d[4:]) for d in dbg if d.startswith("free")]
    if free:
        for c_ in range(first, NCH):
            dma(c_)
            k(f"s_waitcnt vmcnt({free[0]})")
        k("s_waitcnt vmcnt(0)")
        for i in range(1, NCH): k("s_barrier")
    else:
        ring_tail(k, NCH, NSLOT, dma, nD, issued, fz)
    fin_loader(k, fz, kidx)

    k.lab("compute")
    ACC = 64
    FA = [128, 128 + 4 * NB]
    FB = [160, 160 + 4 * TB]
    AW, AX = 1, 3
    HH, TL = 17, 16
    if kind == "qkv":
        k("s_and_b32 s27, s26, 1")
        k("s_lshr_b32 s36, s26, 1")
    else:
        k("s_mov_b32 s27, 0")
        k("s_mov_b32 s36, s26")
    k(f"v_lshrrev_b32 v{HH}, 5, v0")
    k(f"v_and_b32 v{TL}, 31, v0")
    k(f"v_mul_u32_u24 v20, {TN*16}, v{HH}")
    k(f"v_lshl_add_u32 v20, v{TL}, 4, v20")
    k(f"s_mul_i32 s37, s27, {NB*512}")
    k(f"v_add_u32 v{AW}, s37, v20")
    k(f"v_add_u32 v{AW+1}, {2*SLOT}, v{AW}")
    k(f"v_lshlrev_b32 v20, 4, v0")
    k(f"s_mul_i32 s37, s36, {TB*4096}")
    k(f"s_add_u32 s37, s37, {WB}")
    k(f"v_add_u32 v{AX}, s37, v20")
    k(f"v_add_u32 v{AX+1}, {2*SLOT}, v{AX}")

    def reads(step):
        ch, ks = divmod(step, 4)
        slot = (ch + rot) % NSLOT
        half, sl = divmod(slot, 2)
        st = step & 1
        out = []
        for nb in range(NB):
            d = FA[st] + nb * 4
            out.append(f"ds_read_b128 v[{d}:{d+3}], v{AW+half} offset:{sl*SLOT + ks*2*TN*16 + nb*512}")
        for tb in range(TB):
            d = FB[st] + tb * 4
            out.append(f"ds_read_b128 v[{d}:{d+3}], v{AX+half} offset:{sl*SLOT + ks*1024 + tb*4096}")
        return out

    def mainloop(swap):
        nx0 = PFT.next
        k.stamp(1)
        k("s_barrier")
        k.stamp(2)
        for r in reads(0):
            k(r)
        NS = NCH * 4
        for step in range(NS):
            st = step & 1
            bar = step % 4 == 3 and step + 1 < NS
            cw = CW and not bar
            if not cw: k("s_waitcnt lgkmcnt(0)")
            if bar:
                k("s_barrier")
            rd = reads(step + 1) if step + 1 < NS else []
            if CW:
                wr, xr = rd[:NB], rd[NB:]
                rd = []
                for j in range(max(NB, TB)):
                    rd += wr[j:j+1] + xr[j:j+1]
            mf = []
            for nb in range(NB):
                for tb in range(TB):
                    d = ACC + (nb * TB + tb) * 16
                    a = FA[st] + nb * 4
                    b = FB[st] + tb * 4
                    c = "0" if step == 0 else f"v[{d}:{d+15}]"
                    if swap:
                        mf.append(f"v_mfma_f32_32x32x16_bf16 v[{d}:{d+15}], v[{b}:{b+3}], v[{a}:{a+3}], {c}")
                    else:
                        mf.append(f"v_mfma_f32_32x32x16_bf16 v[{d}:{d+15}], v[{a}:{a+3}], v[{b}:{b+3}], {c}")
            def pos(nb, tb):
                order = []
                for j in range(max(NB, TB)):
                    if j < NB: order.append(("w", j))
                    if j < TB: order.append(("x", j))
                return max(order.index(("w", nb)), order.index(("x", tb))), len(order)
            ri = 0
            issued_now = 0
            i = 0
            lastw = None
            for nb in range(NB):
                for tb in range(TB):
                    m = mf[i]
                    if cw and step > 0:
                        p, n_ = pos(nb, tb)
                        w_ = (n_ - 1 - p) + issued_now
                        if lastw is None or p > lastw:
                            k(f"s_waitcnt lgkmcnt({w_})")
                            lastw = p
                    elif cw and step == 0 and i == 0:
                        k("s_waitcnt lgkmcnt(0)")
                    if "nomfma" not in dbg: k(m)
                    nper = 2 if not CW else CWN
                    for r in rd[ri:ri + nper]:
                        if "nords" not in dbg: k(r)
                        issued_now += 1
                    ri += nper
                    if i == 2 and step % 4 == 3: PFT.at_barrier()
                    i += 1
            assert ri >= len(rd)
        k.stamp(3)
        PFT.next = nx0

    k("s_waitcnt lgkmcnt(0)")
    PFT = TilePF(k, pfd, first, NCH, 8, 9, 10, 56)
    if pfd:
        k.srd(56, 6, 0, WS_SIZE)
        PS = PFS
        sh = {128: 7, 64: 6, 32: 5}[PS]
        nw = WB // 16 // PS
        NWL = 1024 // PS
        nx = 512 // PS
        k("s_and_b32 s37, s24, 3")
        k(f"s_mul_i32 s37, s37, {WB//4}")
        k(f"s_mul_i32 s38, s26, {WB//16}")
        k("s_add_u32 s37, s37, s38")
        k(f"s_mul_i32 s38, s25, {80*TN*16}")
        k("s_add_u32 s37, s37, s38")
        k(f"s_add_u32 s37, s37, {WS_W + first*WB}")
        k("s_and_b32 s38, s20, 1")
        k(f"s_mul_i32 s38, s38, {7 if kind == 'qkv' else 8}")
        k("s_sub_u32 s38, s25, s38")
        k("s_lshr_b32 s39, s38, 1")
        k("s_lshl_b32 s40, s24, 2")
        k("s_add_u32 s39, s39, s40")
        k("s_mul_i32 s39, s39, 40960")
        k("s_and_b32 s38, s38, 1")
        k("s_lshl_b32 s38, s38, 11")
        k("s_add_u32 s39, s39, s38")
        k("s_lshl_b32 s38, s26, 9")
        k("s_add_u32 s39, s39, s38")
        k(f"s_add_u32 s39, s39, {XSRC + first*4096 - NWL*PS}")
        k(f"v_lshlrev_b32 v8, {sh}, v0")
        k("v_mov_b32 v11, s39")
        k("v_mov_b32 v12, s37")
        k(f"v_cmp_gt_u32 vcc, {NWL}, v0")
        k(f"v_mov_b32 v9, 4096")
        k(f"v_mov_b32 v13, {WB}")
        k("v_cndmask_b32 v11, v11, v12, vcc")
        k("v_cndmask_b32 v9, v9, v13, vcc")
        k("v_add_u32 v8, v11, v8")
        k(f"v_cmp_gt_u32 vcc, {NWL+nx}, v0")
        k("v_mov_b32 v12, 0x80000000")
        k("s_nop 0")
        k("v_cndmask_b32 v8, v12, v8, vcc")
        if nw < NWL:
            k(f"v_subrev_u32 v13, {nw}, v0")
            k(f"v_cmp_gt_u32 vcc, {NWL-nw}, v13")
            k("s_nop 1")
            k("v_cndmask_b32 v8, v8, v12, vcc")
        PFT.start()
    if kind == "qkv":
        k("s_cmp_ge_u32 s25, 10")
        k(f"s_cbranch_scc1 {k.ref('vpath')}")
        pre_qk(k, HH, TL)
        mainloop(False)
        epi_qk(k, ACC, STATS, HH, TL)
        fin_compute(k, fz, kidx)
        k.lab("vpath")
        pre_v(k, HH, TL)
        mainloop(True)
        epi_v(k, ACC, STATS, HH, TL)
        fin_compute(k, fz, kidx)
    else:
        if fz and fz.xl and "h" in PT:
            k.srd(48, 6, 0, WS_SIZE)
            k("s_lshl_b32 s39, s24, 2")
            k("s_add_u32 s39, s39, s36")
            k("s_mul_i32 s39, s39, 98304")
            k("s_mul_i32 s40, s25, 6144")
            k("s_add_u32 s39, s39, s40")
            k(f"s_add_u32 s39, s39, {WS_H}")
            k("v_lshlrev_b32 v63, 7, v0")
            k("s_mov_b32 exec_hi, 0xffff")
            k("buffer_load_dword v62, v63, s[48:51], s39 offen")
            k("s_mov_b32 exec_hi, -1")
        mainloop(False)
        epi_w1(k, ACC, STATS, HH, TL, NS_=(" ; nosc" if (fz and fz.xl and "h" not in XSC) else ""))
        fin_compute(k, fz, kidx)
    return k


def gen_qkv_raw(name, kidx=0, dbg=(), first=2, pfd=0, zflags=False):
    NWG, NB, TB, TN = 240, 2, 2, 128
    WB = 16384
    SLOT = 2 * WB
    NSLOT = 4
    NCH = 10
    STATS = NSLOT * SLOT
    LDS = STATS + 2048
    k = Kern(name, NWG, 512, LDS, vgpr=256)
    k(f"s_cmp_ge_u32 s2, {NWG}")
    k(f"s_cbranch_scc1 {k.ref('end')}")
    k.stamp(0)
    k.karg(8, 0)
    k.karg(10, 8)
    k.karg(6, 80)
    wave_id(k, 26)
    k("s_and_b32 s20, s2, 7")
    k("s_lshr_b32 s21, s2, 3")
    k("s_and_b32 s22, s20, 1")
    k("s_mul_i32 s22, s22, 30")
    k("s_add_u32 s22, s22, s21")
    k("s_lshr_b32 s25, s22, 2")
    k("s_and_b32 s22, s22, 3")
    k("s_lshr_b32 s23, s20, 1")
    k("s_lshl_b32 s23, s23, 2")
    k("s_add_u32 s24, s23, s22")
    k("s_cmp_lt_u32 s26, 4")
    k(f"s_cbranch_scc1 {k.ref('compute')}")
    k("s_sub_u32 s26, s26, 4")
    if "w" in Q0T:
        k.karg(60, 16); k.karg(62, 32); k.karg(64, 48)
    VW, VX = 4, 8
    k("v_lshrrev_b32 v1, 4, v0")
    k("v_and_b32 v2, 15, v0")
    k("v_lshlrev_b32 v3, 2, v1")
    k("v_xor_b32 v2, v2, v3")
    k("v_mul_u32_u24 v1, 3840, v1")
    k(f"v_lshl_add_u32 v{VW}, v2, 4, v1")
    for i in range(1, 4):
        k(f"v_add_u32 v{VW+i}, {4*3840-1024}, v{VW+i-1}")
    k("v_lshrrev_b32 v1, 3, v0")
    k("v_and_b32 v2, 7, v0")
    k("v_lshrrev_b32 v3, 1, v1")
    k("v_xor_b32 v2, v2, v3")
    k("v_mul_u32_u24 v1, 1280, v1")
    k(f"v_lshl_add_u32 v{VX}, v2, 4, v1")
    k("v_xor_b32 v2, 4, v2")
    k("v_lshl_add_u32 v2, v2, 4, v1")
    k(f"v_add_u32 v{VX+1}, {8*1280-1024}, v2")
    k(f"v_add_u32 v{VX+2}, {2*(8*1280-1024)}, v{VX}")
    k(f"v_add_u32 v{VX+3}, {3*(8*1280-1024)}, v2")
    k("s_lshl_b32 s40, s25, 8")
    k(f"s_mul_i32 s41, s26, {16*3840}")
    k("s_add_u32 s40, s40, s41")
    k("s_lshl_b32 s42, s26, 12")
    k("s_lshl_b32 s43, s24, 2")
    k("s_add_u32 s43, s43, s26")
    k(f"s_mul_i32 s43, s43, {32*1280}")
    k(f"s_add_u32 s44, s42, {WB}")
    k("s_waitcnt lgkmcnt(0)")
    k.srd(12, 10, 0, 640 * 3840)
    k.srd(16, 8, 0, X_BYTES)
    def dma(ch):
        slot = ch % NSLOT
        k(f"s_add_u32 m0, s42, {slot*SLOT}")
        k(f"s_add_u32 s45, s40, {ch*64*3840}")
        for i in range(4):
            k(f"buffer_load_dwordx4 v{VW+i}, s[12:15], s45 offen offset:{i*1024} lds")
        k(f"s_add_u32 m0, s44, {slot*SLOT}")
        k(f"s_add_u32 s45, s43, {ch*128}")
        for i in range(4):
            k(f"buffer_load_dwordx4 v{VX+i}, s[16:19], s45 offen offset:{i*1024} lds")
    k.stamp(1)
    def pre(): k.stamp(2)
    def q0tail():
        n = 0
        k("s_lshl_b32 s46, s2, 2")
        k("s_add_u32 s46, s46, s26")
        k("v_lshlrev_b32 v12, 7, v0")
        k.srd(48, 6, 0, WS_SIZE)
        def part(srd, base, lines, v, size=None):
            k(f"s_mul_i32 s47, s46, {lines*128}")
            if size is not None and 960*lines*128 > size: k(f"s_min_u32 s47, s47, {size - lines*128}")
            if base: k(f"s_add_u32 s47, s47, {base}")
            if lines < 64: k(f"s_mov_b64 exec, {(1 << lines) - 1:#x}")
            k(f"buffer_load_dword v{v}, v12, s[{srd}:{srd+3}], s47 offen")
            if lines < 64: k("s_mov_b64 exec, -1")
        for ch_ in Q0T:
            if ch_ == "k":
                assert KVPAD == 0
                k("s_cmp_lt_u32 s46, 320")
                k(f"s_mov_b32 s52, {WS_KV - 320*8192}")
                k(f"s_cselect_b32 s52, {WS_Q}, s52")
                k("s_lshl_b32 s47, s46, 13")
                k("s_add_u32 s47, s47, s52")
                k("buffer_load_dword v13, v12, s[48:51], s47 offen"); n += 1
            if ch_ == "w":
                for (ptr, size, lines, v) in ((60, 640*1280, 7, 14), (62, 640*3072, 16, 15), (64, 1536*1280, 16, 16)):
                    k.srd(52, ptr, 0, size)
                    part(52, 0, lines, v, size); n += 1
            if ch_ == "p":
                for (base, lines, v) in ((WS_WO, 7, 17), (WS_W1, 16, 18), (WS_W2, 16, 19), (WS_WQ, 20, 20), (WS_CSQ, 2, 21)):
                    part(48, base, lines, v); n += 1
        return n
    ring_loader(k, NCH, NSLOT, dma, 8, pre_b0=pre, first=first, tail=(q0tail if Q0T and not Q0L else None))
    if Q0T and Q0L:
        q0tail()
        k("s_waitcnt vmcnt(0)")
    if zflags:
        k(f"s_cmp_ge_u32 s2, {NFLAGSET*4}")
        k(f"s_cbranch_scc1 {k.ref('zdone')}")
        k("s_cmp_lg_u32 s26, 0")
        k(f"s_cbranch_scc1 {k.ref('zdone')}")
        k.srd(48, 6, WS_FLAG, NFLAGSET*4096)
        k("s_lshl_b32 s45, s2, 10")
        k("v_lshlrev_b32 v1, 4, v0")
        for r in range(4):
            k(f"v_mov_b32 v{12+r}, 0")
        k("buffer_store_dwordx4 v[12:15], v1, s[48:51], s45 offen")
        k("s_waitcnt vmcnt(0)")
        k.lab("zdone")
    k.stamp(4)
    k("s_add_u32 s26, s26, 4")
    k.stamp_flush(6, kidx, 5, 26)
    k.lab("end")
    k("s_endpgm")

    k.lab("compute")
    ACC = 64
    FA = [128, 128 + 4 * NB]
    FB = [160, 160 + 4 * TB]
    AW, AX = 2, 192
    HH, TL = 17, 16
    S1, S2, TMP, SEL, CS = 48, 50, 52, 60, 32
    k("s_and_b32 s27, s26, 1")
    k("s_lshr_b32 s36, s26, 1")
    k(f"v_lshrrev_b32 v{HH}, 5, v0")
    k(f"v_and_b32 v{TL}, 31, v0")
    k("v_lshrrev_b32 v20, 4, v0")
    k("v_bfe_u32 v21, v0, 2, 2")
    k("v_and_b32 v22, 3, v0")
    k("v_lshrrev_b32 v23, 1, v20")
    k("v_lshl_add_u32 v23, v23, 3, v21")
    k("v_and_b32 v18, 1, v20")
    k("v_lshlrev_b32 v18, 1, v18")
    k("v_lshrrev_b32 v19, 1, v22")
    k("v_add_u32 v18, v18, v19")
    k("s_lshl_b32 s37, s27, 3")
    k("v_add_u32 v18, s37, v18")
    k("v_lshlrev_b32 v19, 2, v21")
    k("v_xor_b32 v18, v18, v19")
    k("v_lshlrev_b32 v18, 4, v18")
    k("v_lshl_add_u32 v18, v23, 8, v18")
    k("v_and_b32 v19, 1, v22")
    k(f"v_lshl_add_u32 v{AW}, v19, 3, v18")
    k(f"v_add_u32 v{AW+1}, {2*SLOT}, v{AW}")
    k(f"v_xor_b32 v{AW+2}, 64, v{AW}")
    k(f"v_add_u32 v{AW+3}, {2*SLOT}, v{AW+2}")
    k(f"v_bfe_u32 v18, v{TL}, 1, 3")
    k(f"v_xor_b32 v18, v18, v{HH}")
    k("v_lshlrev_b32 v18, 4, v18")
    k(f"v_lshl_add_u32 v18, v{TL}, 7, v18")
    k("s_lshl_b32 s37, s36, 13")
    k("s_lshl_b32 s38, s27, 12")
    k("s_add_u32 s37, s37, s38")
    k(f"s_add_u32 s37, s37, {WB}")
    k(f"v_add_u32 v{AX}, s37, v18")
    for sl_ in range(2):
        for ks in range(4):
            d = AX + (sl_ * 4 + ks) * 2
            x = (sl_ << 12) | (ks << 5)
            if x: k(f"v_xor_b32 v{d}, {x}, v{AX}")
            k(f"v_add_u32 v{d+1}, {2*SLOT}, v{d}")
    k("v_and_b32 v18, 15, v0")
    k("v_bfe_u32 v19, v0, 4, 1")
    k("v_cmp_eq_u32 vcc, v18, v19")
    k("v_mov_b32 v19, 0x3f803f80")
    k("s_nop 0")
    k(f"v_cndmask_b32 v{SEL}, 0, v19, vcc")
    for r in range(1, 4):
        k(f"v_mov_b32 v{SEL+r}, v{SEL}")
    for r in range(4):
        k(f"v_mov_b32 v{S1+r}, 0")

    def reads(step):
        ch, ks = divmod(step, 4)
        slot = ch % NSLOT
        half, sl = divmod(slot, 2)
        st = step & 1
        out = []
        for tb in range(TB):
            d = FB[st] + tb * 4
            out.append(f"ds_read_b128 v[{d}:{d+3}], v{AX+(tb*4+ks)*2+half} offset:{sl*SLOT}")
        for nb in range(NB):
            d = FA[st] + nb * 4
            out.append(f"ds_read_b64_tr_b16 v[{d}:{d+1}], v{AW+nb*2+half} offset:{sl*SLOT + ks*4096}")
            out.append(f"ds_read_b64_tr_b16 v[{d+2}:{d+3}], v{AW+nb*2+half} offset:{sl*SLOT + ks*4096 + 1024}")
        return out

    def mainloop(swap):
        nx0 = PFT.next
        k.stamp(1)
        k("s_barrier")
        k.stamp(2)
        for r in reads(0):
            k(r)
        NS = NCH * 4
        for step in range(NS):
            st = step & 1
            k("s_waitcnt lgkmcnt(0)")
            if step % 4 == 3 and step + 1 < NS:
                k("s_barrier")
                PFT.at_barrier()
            rd = reads(step + 1) if step + 1 < NS else []
            mf = []
            for nb in range(NB):
                for tb in range(TB):
                    d = ACC + (nb * TB + tb) * 16
                    a = FA[st] + nb * 4
                    b = FB[st] + tb * 4
                    c = "0" if step == 0 else f"v[{d}:{d+15}]"
                    if swap:
                        mf.append(f"v_mfma_f32_32x32x16_bf16 v[{d}:{d+15}], v[{b}:{b+3}], v[{a}:{a+3}], {c}")
                    else:
                        mf.append(f"v_mfma_f32_32x32x16_bf16 v[{d}:{d+15}], v[{a}:{a+3}], v[{b}:{b+3}], {c}")
            for nb in range(NB):
                d = CS + 4 * nb
                a = FA[st] + nb * 4
                c = "0" if step == 0 else f"v[{d}:{d+3}]"
                mf.insert(2 + 3 * nb, f"v_mfma_f32_16x16x32_bf16 v[{d}:{d+3}], v[{SEL}:{SEL+3}], v[{a}:{a+3}], {c}")
            va = []
            for r in range(4):
                x = FB[st] + r
                t = TMP + 2 * (r & 1)
                va += [f"v_and_b32 v{t}, 0xffff0000, v{x}", f"v_lshlrev_b32 v{t+1}, 16, v{x}",
                       f"v_add_f32 v{S1}, v{S1}, v{t}", f"v_fmac_f32 v{S2}, v{t}, v{t}",
                       f"v_add_f32 v{S1+1}, v{S1+1}, v{t+1}", f"v_fmac_f32 v{S2+1}, v{t+1}, v{t+1}"]
            if "nostat" in dbg: va = []
            ri, vi = 0, 0
            for i, m in enumerate(mf):
                k(m)
                nrd = 1
                for r in rd[ri:ri + nrd]: k(r)
                ri += nrd
                for x in va[vi:vi + 4]: k(x)
                vi += 4
            assert ri >= len(rd) and vi >= len(va)
        k.stamp(3)
        k(f"v_add_f32 v40, v{S1}, v{S1+1}")
        k(f"v_add_f32 v41, v{S2}, v{S2+1}")
        k("v_mov_b32 v42, v40")
        k("v_mov_b32 v43, v41")
        k("s_nop 1")
        k("v_permlane32_swap_b32 v40, v42")
        k("v_permlane32_swap_b32 v41, v43")
        k("s_nop 1")
        k("v_add_f32 v40, v40, v42")
        k("v_add_f32 v41, v41, v43")
        k(f"v_mul_f32 v40, {f2u(1/640):#x}, v40")
        k(f"v_mul_f32 v41, {f2u(1/640):#x}, v41")
        k("v_fma_f32 v41, -v40, v40, v41")
        k("v_max_f32 v41, 0, v41")
        k(f"v_add_f32 v42, {f2u(1e-5):#x}, v41")
        k("v_rsq_f32 v42, v42")
        k("s_cmp_lt_u32 s25, 5")
        k(f"s_cselect_b32 s46, {f2u(QSCALE):#x}, 1.0")
        k("v_mul_f32 v42, s46, v42")
        k("v_mul_f32 v43, v42, v40")
        k(f"v_cmp_eq_u32 vcc, 0, v{HH}")
        k("s_lshl_b32 s37, s36, 8")
        k("s_lshl_b32 s38, s27, 7")
        k("s_add_u32 s37, s37, s38")
        k(f"s_add_u32 s37, s37, {STATS}")
        k(f"v_lshlrev_b32 v44, 2, v{TL}")
        k("v_add_u32 v44, s37, v44")
        k(f"v_lshl_add_u32 v44, v{HH}, 9, v44")
        k("v_cndmask_b32 v42, v43, v42, vcc")
        k("ds_write_b32 v44, v42")
        k("s_lshl_b32 s37, s27, 8")
        k(f"s_add_u32 s37, s37, {STATS+1024}")
        k("v_lshlrev_b32 v45, 2, v0")
        k("v_add_u32 v45, s37, v45")
        k("s_mov_b64 exec, 0xffff")
        for nb in range(NB):
            k(f"ds_write_b32 v45, v{CS+4*nb} offset:{nb*128}")
            k(f"ds_write_b32 v45, v{CS+4*nb+1} offset:{nb*128+64}")
        k("s_mov_b64 exec, -1")
        k("s_waitcnt lgkmcnt(0)")
        k("s_barrier")
        PFT.next = nx0

    k("s_waitcnt lgkmcnt(0)")
    PFT = TilePF(k, pfd, first, NCH, 8, 9, 10, 56)
    if pfd:
        k("s_cmp_lt_u32 s26, 2")
        k("s_cselect_b32 s56, s10, s8")
        k("s_cselect_b32 s57, s11, s9")
        k(f"s_mov_b32 s58, {X_BYTES}")
        k(f"s_cselect_b32 s58, {640*3840}, s58")
        k("s_mov_b32 s59, 0x00020000")
        k(f"s_movk_i32 s41, 128")
        k(f"s_cselect_b32 s41, {64*3840}, s41")
        k("s_cselect_b32 s42, 16, 8")
        k("s_and_b32 s37, s24, 3")
        k("s_lshl_b32 s37, s37, 4")
        k("s_lshl_b32 s38, s26, 3")
        k("s_add_u32 s37, s37, s38")
        k(f"s_add_u32 s37, s37, {first*64}")
        k("s_mul_i32 s37, s37, 3840")
        k("s_lshl_b32 s38, s25, 8")
        k("s_add_u32 s37, s37, s38")
        k("s_and_b32 s38, s20, 1")
        k("s_mul_i32 s38, s38, 7")
        k("s_sub_u32 s38, s25, s38")
        k("s_lshl_b32 s38, s38, 4")
        k("s_lshl_b32 s39, s24, 7")
        k("s_add_u32 s38, s38, s39")
        k("s_and_b32 s39, s26, 1")
        k("s_lshl_b32 s39, s39, 3")
        k("s_add_u32 s38, s38, s39")
        k("s_mul_i32 s38, s38, 1280")
        k(f"s_add_u32 s38, s38, {first*128}")
        k("s_cmp_lt_u32 s26, 2")
        k("s_cselect_b32 s37, s37, s38")
        k("v_lshrrev_b32 v11, 1, v0")
        k("v_mul_u32_u24 v11, 3840, v11")
        k("v_and_b32 v12, 1, v0")
        k("v_lshl_add_u32 v11, v12, 7, v11")
        k("v_mul_u32_u24 v12, 1280, v0")
        k("s_cselect_b64 vcc, -1, 0")
        k("v_mov_b32 v9, s41")
        k("v_cndmask_b32 v8, v12, v11, vcc")
        k("v_add_u32 v8, s37, v8")
        k("v_cmp_gt_u32 vcc, s42, v0")
        k("v_mov_b32 v12, 0x80000000")
        k("s_nop 0")
        k("v_cndmask_b32 v8, v12, v8, vcc")
        PFT.start()
    k("s_cmp_ge_u32 s25, 10")
    k(f"s_cbranch_scc1 {k.ref('vpath')}")
    pre_qk(k, HH, TL, perm=True)
    mainloop(False)
    epi_qk(k, ACC, STATS, HH, TL, perm=True)
    k.stamp(4); k.stamp_flush(6, kidx, 5, 26)
    k("s_endpgm")
    k.lab("vpath")
    pre_v(k, HH, TL, perm=True)
    mainloop(True)
    epi_v(k, ACC, STATS, HH, TL, perm=True)
    k.stamp(4); k.stamp_flush(6, kidx, 5, 26)
    k("s_endpgm")
    return k


def pre_qk(k, HH, TL, perm=False):
    k.srd(48, 6, 0, WS_SIZE)
    k("s_cmp_lt_u32 s25, 5")
    k(f"s_mov_b32 s37, {WS_KV}")
    k(f"s_cselect_b32 s37, {WS_Q}, s37")
    k("s_cselect_b32 s38, 0, 5")
    k("s_movk_i32 s39, 2560")
    k("s_cselect_b32 s39, 1280, s39")
    if KVPAD:
        k(f"s_mov_b32 s40, {163840 + KVPAD}")
        k("s_cselect_b32 s40, 81920, s40")
    else:
        k("s_lshl_b32 s40, s39, 6")
    k("s_sub_u32 s38, s25, s38")
    k("s_lshl_b32 s41, s24, 2")
    k("s_lshl_b32 s42, s36, 1")
    k("s_add_u32 s41, s41, s42")
    k("s_mul_i32 s41, s41, s39")
    k("s_add_u32 s52, s37, s41")
    k("s_add_u32 s53, s52, s39")
    if perm:
        k("s_cmp_eq_u32 s27, 1")
        k("s_cselect_b32 s37, s53, s52")
        k("s_cselect_b32 s53, s52, s53")
        k("s_mov_b32 s52, s37")
    k("s_lshl_b32 s38, s38, 5")
    k("s_lshl_b32 s42, s27, 4")
    k("s_add_u32 s38, s38, s42")
    k(f"v_add_u32 v21, s38, v{HH}")
    k(f"v_lshlrev_b32 v22, 3, v{TL}")
    for nb in range(2):
        for q in range(4):
            d = 24 + nb * 4 + q
            k(f"v_add_u32 v23, {nb*8+2*q}, v21")
            k("v_mul_u32_u24 v18, 205, v23")
            k("v_lshrrev_b32 v18, 10, v18")
            k("v_mul_u32_u24 v19, 5, v18")
            k("v_sub_u32 v23, v23, v19")
            k("v_mul_lo_u32 v18, v18, s40")
            k("v_cmp_gt_u32 vcc, 4, v23")
            k("v_lshrrev_b32 v19, 1, v23")
            k("v_lshl_add_u32 v18, v19, 9, v18")
            k("v_and_b32 v19, 1, v23")
            k("v_lshl_add_u32 v18, v19, 3, v18")
            k("v_cndmask_b32 v19, 0, v22, vcc")
            k("v_add_u32 v18, v18, v22")
            k(f"v_add_u32 v{d}, v18, v19")


def epi_qk(k, ACC, STATS, HH, TL, perm=False):
    NB, TB = 2, 2
    k(f"s_mul_i32 s37, s36, 256")
    k(f"v_lshlrev_b32 v20, 2, v{TL}")
    k(f"v_add_u32 v20, s37, v20")
    k(f"v_add_u32 v20, {STATS}, v20")
    if perm:
        k("s_lshl_b32 s37, s27, 7")
        k("v_xor_b32 v20, s37, v20")
        k("v_xor_b32 v19, 128, v20")
    for tb in range(TB):
        if perm:
            k(f"ds_read_b32 v{32+2*tb}, v{20-tb}")
            k(f"ds_read_b32 v{33+2*tb}, v{20-tb} offset:512")
        else:
            k(f"ds_read_b32 v{32+2*tb}, v20 offset:{tb*128}")
            k(f"ds_read_b32 v{33+2*tb}, v20 offset:{512+tb*128}")
    k(f"v_lshlrev_b32 v21, 4, v{HH}")
    k("s_lshl_b32 s37, s27, 8")
    k("v_add_u32 v21, s37, v21")
    k(f"v_add_u32 v21, {STATS+1024}, v21")
    CS = 128
    for nb in range(NB):
        for q in range(4):
            k(f"ds_read_b128 v[{CS+(nb*4+q)*4}:{CS+(nb*4+q)*4+3}], v21 offset:{nb*128+q*32}")
    k("s_waitcnt lgkmcnt(0)")
    k("s_nop 7")
    n = 0
    for nb in range(NB):
        for q in range(4):
            cs = CS + (nb * 4 + q) * 4
            for tb in range(TB):
                a = ACC + (nb * TB + tb) * 16 + q * 4
                rs, rm = 32 + 2 * tb, 33 + 2 * tb
                t = 36 + 4 * (n % 2)
                for h in range(2):
                    k(f"v_pk_mul_f32 v[{t+2*h}:{t+2*h+1}], v[{cs+2*h}:{cs+2*h+1}], v[{rs}:{rs+1}] op_sel:[0,1] op_sel_hi:[1,1]")
                for h in range(2):
                    k(f"v_pk_fma_f32 v[{t+2*h}:{t+2*h+1}], v[{a+2*h}:{a+2*h+1}], v[{rs}:{rs+1}], v[{t+2*h}:{t+2*h+1}] op_sel_hi:[1,0,1] neg_lo:[0,0,1] neg_hi:[0,0,1]")
                o = 44 + 2 * (n % 4)
                k(f"v_cvt_pk_bf16_f32 v{o}, v{t}, v{t+1}")
                k(f"v_cvt_pk_bf16_f32 v{o+1}, v{t+2}, v{t+3}")
                k(f"buffer_store_dwordx2 v[{o}:{o+1}], v{24+nb*4+q}, s[48:51], s{52+tb} offen")
                n += 1
    k("s_waitcnt vmcnt(0)")


def pre_v(k, HH, TL, perm=False):
    k.srd(48, 6, 0, WS_SIZE)
    k("s_sub_u32 s37, s25, 10")
    k("s_lshl_b32 s37, s37, 7")
    k("s_lshl_b32 s38, s27, 6")
    k("s_add_u32 s37, s37, s38")
    for nb in range(2):
        k(f"v_add_u32 v20, s37, v{TL}")
        if nb: k("v_add_u32 v20, 32, v20")
        k("v_mul_u32_u24 v21, 205, v20")
        k("v_lshrrev_b32 v21, 12, v21")
        k("v_mul_u32_u24 v22, 20, v21")
        k("v_sub_u32 v22, v20, v22")
        k(f"s_mov_b32 s38, {163840 + KVPAD}")
        k("v_mul_lo_u32 v21, v21, s38")
        k("v_lshl_add_u32 v21, v22, 4, v21")
        k(f"v_mul_u32_u24 v22, 320, v{HH}")
        k(f"v_add_u32 v{24+nb}, v21, v22")
    k("s_lshl_b32 s41, s24, 2")
    k("s_lshl_b32 s42, s36, 1")
    k("s_add_u32 s41, s41, s42")
    k("s_mul_i32 s41, s41, 2560")
    k(f"s_add_u32 s52, s41, {WS_KV + 1280}")
    if perm:
        k("s_add_u32 s53, s52, 2560")
        k("s_cmp_eq_u32 s27, 1")
        k("s_cselect_b32 s37, s53, s52")
        k("s_cselect_b32 s53, s52, s53")
        k("s_mov_b32 s52, s37")


def epi_v(k, ACC, STATS, HH, TL, perm=False):
    NB, TB = 2, 2
    k("s_lshl_b32 s37, s36, 8")
    k(f"v_lshlrev_b32 v20, 4, v{HH}")
    k("v_add_u32 v20, s37, v20")
    k(f"v_add_u32 v20, {STATS}, v20")
    RS, RM = 128, 160
    if perm:
        k("s_lshl_b32 s37, s27, 7")
        k("v_xor_b32 v20, s37, v20")
        k("v_xor_b32 v19, 128, v20")
    def sa(tb, off): return f"v{20-tb} offset:{off}" if perm else f"v20 offset:{off+tb*128}"
    for tb in range(TB):
        for q in range(4):
            k(f"ds_read_b128 v[{RS+(tb*4+q)*4}:{RS+(tb*4+q)*4+3}], {sa(tb, q*32)}")
    k(f"v_lshlrev_b32 v21, 2, v{TL}")
    k("s_lshl_b32 s37, s27, 8")
    k("v_add_u32 v21, s37, v21")
    k(f"v_add_u32 v21, {STATS+1024}, v21")
    k("s_waitcnt lgkmcnt(4)")
    for tb in range(TB):
        for q in range(4):
            k(f"ds_read_b128 v[{RM+(tb*4+q)*4}:{RM+(tb*4+q)*4+3}], {sa(tb, 512+q*32)}")
    k("ds_read_b32 v32, v21")
    k("ds_read_b32 v34, v21 offset:128")
    k("s_waitcnt lgkmcnt(0)")
    k("s_nop 7")
    n = 0
    for nb in range(NB):
        cs = 32 + 2 * nb
        for tb in range(TB):
            for qp in range(2):
                o = 44 + 4 * (n % 2)
                for qq in range(2):
                    q = qp * 2 + qq
                    a = ACC + (nb * TB + tb) * 16 + q * 4
                    t = 36 + 4 * qq
                    rs, rm = RS + (tb * 4 + q) * 4, RM + (tb * 4 + q) * 4
                    for h in range(2):
                        k(f"v_pk_mul_f32 v[{t+2*h}:{t+2*h+1}], v[{rm+2*h}:{rm+2*h+1}], v[{cs}:{cs+1}] op_sel_hi:[1,0]")
                    for h in range(2):
                        k(f"v_pk_fma_f32 v[{t+2*h}:{t+2*h+1}], v[{a+2*h}:{a+2*h+1}], v[{rs+2*h}:{rs+2*h+1}], v[{t+2*h}:{t+2*h+1}] neg_lo:[0,0,1] neg_hi:[0,0,1]")
                    k(f"v_cvt_pk_bf16_f32 v{o+2*qq}, v{t}, v{t+1}")
                    k(f"v_cvt_pk_bf16_f32 v{o+2*qq+1}, v{t+2}, v{t+3}")
                k("s_nop 1")
                k(f"v_permlane32_swap_b32 v{o}, v{o+2}")
                k(f"v_permlane32_swap_b32 v{o+1}, v{o+3}")
                k("s_nop 1")
                if perm:
                    k(f"buffer_store_dwordx4 v[{o}:{o+3}], v{24+nb}, s[48:51], s{52+tb} offen offset:{qp*640}")
                else:
                    k(f"buffer_store_dwordx4 v[{o}:{o+3}], v{24+nb}, s[48:51], s52 offen offset:{tb*2560+qp*640}")
                n += 1
    k("s_waitcnt vmcnt(0)")


GK1 = -2.0 * 0.7978845608028654 * 1.4426950408889634
GK2 = GK1 * 0.044715

def epi_w1(k, ACC, STATS, HH, TL, NS_=""):
    NB = 3
    k.srd(48, 6, 0, WS_SIZE)
    k("s_lshl_b32 s37, s36, 7")
    k(f"v_lshlrev_b32 v20, 2, v{TL}")
    k("v_add_u32 v20, s37, v20")
    k(f"v_add_u32 v20, {STATS}, v20")
    k("ds_read_b32 v32, v20")
    k("ds_read_b32 v33, v20 offset:512")
    k(f"v_lshlrev_b32 v21, 4, v{HH}")
    k(f"v_add_u32 v21, {STATS+1024}, v21")
    CS, BI = 128, 176
    for nb in range(NB):
        for q in range(4):
            k(f"ds_read_b128 v[{CS+(nb*4+q)*4}:{CS+(nb*4+q)*4+3}], v21 offset:{nb*128+q*32}")
    k("s_waitcnt lgkmcnt(6)")
    for nb in range(NB):
        for q in range(4):
            k(f"ds_read_b128 v[{BI+(nb*4+q)*4}:{BI+(nb*4+q)*4+3}], v21 offset:{512+nb*128+q*32}")
    k("s_lshl_b32 s39, s24, 2")
    k("s_add_u32 s39, s39, s36")
    k("s_mul_i32 s39, s39, 98304")
    k("s_mul_i32 s40, s25, 6144")
    k("s_add_u32 s39, s39, s40")
    k(f"s_add_u32 s52, s39, {WS_H}")
    k("s_add_u32 s53, s52, 2048")
    k("s_add_u32 s54, s52, 4096")
    k("v_lshlrev_b32 v22, 4, v0")
    k(f"v_mov_b32 v34, {f2u(GK1):#x}")
    k(f"v_mov_b32 v35, {f2u(GK2):#x}")
    k("s_waitcnt lgkmcnt(0)")
    k("s_nop 7")
    n = 0
    for nb in range(NB):
        for qp in range(2):
            o = 56 + 4 * (n % 2)
            for qq in range(2):
                q = qp * 2 + qq
                a = ACC + nb * 16 + q * 4
                cs = CS + (nb * 4 + q) * 4
                b = BI + (nb * 4 + q) * 4
                u, t = 36, 40
                for h in range(2):
                    k(f"v_pk_fma_f32 v[{u+2*h}:{u+2*h+1}], v[{cs+2*h}:{cs+2*h+1}], v[32:33], v[{b+2*h}:{b+2*h+1}] op_sel:[0,1,0] op_sel_hi:[1,1,1] neg_lo:[1,0,0] neg_hi:[1,0,0]")
                for h in range(2):
                    k(f"v_pk_fma_f32 v[{u+2*h}:{u+2*h+1}], v[{a+2*h}:{a+2*h+1}], v[32:33], v[{u+2*h}:{u+2*h+1}] op_sel_hi:[1,0,1]")
                for h in range(2):
                    k(f"v_pk_mul_f32 v[{t+2*h}:{t+2*h+1}], v[{u+2*h}:{u+2*h+1}], v[{u+2*h}:{u+2*h+1}]")
                for h in range(2):
                    k(f"v_pk_fma_f32 v[{t+2*h}:{t+2*h+1}], v[{t+2*h}:{t+2*h+1}], v[34:35], v[34:35] op_sel:[0,1,0] op_sel_hi:[1,1,0]")
                for h in range(2):
                    k(f"v_pk_mul_f32 v[{t+2*h}:{t+2*h+1}], v[{t+2*h}:{t+2*h+1}], v[{u+2*h}:{u+2*h+1}]")
                for i in range(4):
                    k(f"v_exp_f32 v{t+i}, v{t+i}")
                k("s_nop 0")
                for h in range(2):
                    k(f"v_pk_add_f32 v[{t+2*h}:{t+2*h+1}], v[{t+2*h}:{t+2*h+1}], 1.0 op_sel_hi:[1,0]")
                for i in range(4):
                    k(f"v_rcp_f32 v{t+i}, v{t+i}")
                k("s_nop 0")
                for h in range(2):
                    k(f"v_pk_mul_f32 v[{u+2*h}:{u+2*h+1}], v[{u+2*h}:{u+2*h+1}], v[{t+2*h}:{t+2*h+1}]")
                k(f"v_cvt_pk_bf16_f32 v{o+2*qq}, v{u}, v{u+1}")
                k(f"v_cvt_pk_bf16_f32 v{o+2*qq+1}, v{u+2}, v{u+3}")
            k("s_nop 1")
            k(f"v_permlane32_swap_b32 v{o}, v{o+2}")
            k(f"v_permlane32_swap_b32 v{o+1}, v{o+3}")
            k("s_nop 1")
            k(f"buffer_store_dwordx4 v[{o}:{o+3}], v22, s[48:51], s{52+nb} offen offset:{qp*1024}{NS_}")
            n += 1
    k("s_waitcnt vmcnt(0)")


def gen_gemmB(name, kind, layer, kidx=0, dbg=(), first=2, rawres=False, pfd=0, fz=None):
    NWG = 256
    if kind == "wo":
        K, WS_W, XSRC = 640, WS_WO, WS_O
        RES = WS_X0 if layer == 0 else WS_X2
        DST, ST = WS_X1, WS_ST1
    else:
        K, WS_W, XSRC = 1536, WS_W2, WS_H
        RES = WS_X1
        DST, ST = (WS_X2, WS_ST0) if layer == 0 else (None, None)
    NCH = K // 128
    XBLK = K * 64
    WB = 20480
    SLOT = WB + 16384
    NSLOT = 4
    LDS = NSLOT * SLOT
    rot = fz.rot if fz else 0
    HO = bool(fz and fz.wait is not None)
    XS = " sc1" if (HO and not fz.xplain) else ""
    NS_ = " ; nosc" if (fz and fz.xl and "x" not in XSC) else ""
    RSC = " sc1" if (fz and kind == "w2" and not fz.xplain) else ""
    if fz is None:
        k = Kern(name, NWG, 512, LDS, vgpr=128)
        k(f"s_cmp_ge_u32 s2, {NWG}")
        k(f"s_cbranch_scc1 {k.ref('end')}")
        k.stamp(0)
        k.karg(6, 80)
    else:
        k = fz.k
    if kind == "w2":
        k.karg(8, 56)
        if DST is None:
            k.karg(10, 64)
    if rawres:
        assert kind == "wo"
        k.karg(8, 0)
    if fz is None: wave_id(k, 26)
    k("s_and_b32 s20, s2, 7")
    k("s_lshr_b32 s21, s2, 3")
    if fz and fz.xl:
        k("s_and_b32 s22, s21, 3")
        k("s_lshl_b32 s23, s20, 2")
        k("s_add_u32 s24, s23, s22")
        k("s_lshr_b32 s25, s21, 2")
    else:
        k("s_lshr_b32 s22, s20, 1")
        k("s_lshl_b32 s22, s22, 3")
        k("s_and_b32 s23, s21, 7")
        k("s_add_u32 s24, s22, s23")
        k("s_and_b32 s22, s20, 1")
        k("s_lshl_b32 s22, s22, 2")
        k("s_lshr_b32 s23, s21, 3")
        k("s_add_u32 s25, s22, s23")
    k("s_cmp_lt_u32 s26, 4")
    k(f"s_cbranch_scc1 {k.ref('compute')}")
    k("s_sub_u32 s26, s26, 4")
    k("v_lshlrev_b32 v1, 4, v0")
    k(f"s_mul_i32 s40, s25, {K//8*1280}")
    k("s_mul_i32 s41, s26, 5120")
    k("s_add_u32 s40, s40, s41")
    k(f"s_add_u32 s40, s40, {WS_W}")
    k("s_mov_b32 s42, s41")
    k("s_lshl_b32 s43, s24, 1")
    k("s_lshr_b32 s47, s26, 1")
    k("s_add_u32 s43, s43, s47")
    k(f"s_mul_i32 s43, s43, {XBLK}")
    k("s_and_b32 s47, s26, 1")
    k("s_lshl_b32 s47, s47, 12")
    k("s_add_u32 s43, s43, s47")
    k(f"s_add_u32 s43, s43, {XSRC}")
    k("s_lshl_b32 s44, s26, 12")
    k(f"s_add_u32 s44, s44, {WB}")
    k("s_waitcnt lgkmcnt(0)")
    k.srd(12, 6, 0, WS_SIZE)
    def dma(ch, parts="xw"):
        slot = (ch + rot) % NSLOT
        if "x" in parts:
            k(f"s_add_u32 m0, s44, {slot*SLOT}")
            k(f"s_add_u32 s45, s43, {ch*8192}")
            for i in range(4):
                k(f"buffer_load_dwordx4 v1, s[12:15], s45 offen offset:{i*1024}{XS} lds")
        if "w" in parts:
            k(f"s_add_u32 m0, s42, {slot*SLOT}")
            k(f"s_add_u32 s45, s40, {ch*WB}")
            for i in range(4):
                k(f"buffer_load_dwordx4 v1, s[12:15], s45 offen offset:{i*1024} lds")
            k(f"s_add_u32 m0, s42, {slot*SLOT+4096}")
            k(f"s_add_u32 s45, s40, {ch*WB+4096}")
            k(f"buffer_load_dwordx4 v1, s[12:15], s45 offen lds")
    k.stamp(1)
    def pre(): k.stamp(2)
    def pre_issue():
        for c_ in range(first):
            dma(c_, "w")
        if kind == "wo":
            k("s_lshl_b32 s67, s24, 1")
            k("s_lshr_b32 s47, s26, 1")
            k("s_add_u32 s67, s67, s47")
            fz.poll(67, 32)
        else:
            k("s_lshr_b32 s67, s24, 1")
            fz.poll(67, 16)
        for c_ in range(first):
            dma(c_, "x")
        return 4 * (first - 1)
    if fz: fz.mode_publish()
    if fz and fz.xl and "H" in PT and kind == "wo":
        def tail():
            k("v_lshlrev_b32 v12, 7, v0")
            k("s_mul_i32 s46, s24, 196608")
            k("s_lshl_b32 s47, s25, 2")
            k("s_add_u32 s47, s47, s26")
            k("s_mul_i32 s47, s47, 6144")
            k("s_add_u32 s46, s46, s47")
            k(f"s_add_u32 s46, s46, {WS_H}")
            k("s_mov_b32 exec_hi, 0xffff")
            k("buffer_load_dword v13, v12, s[12:15], s46 offen")
            k("s_mov_b32 exec_hi, -1")
            return 1
        fz.tail = tail
    ring_loader(k, NCH, NSLOT, dma, 9, pre_b0=pre, first=first, pre_issue=(pre_issue if HO else None), fz=fz)
    fin_loader(k, fz, kidx)

    k.lab("compute")
    ACC, FA0, FB0, RS, BI = 32, 64, 88, 104, 116
    AW, AX = 1, 3
    k("s_and_b32 s27, s26, 1")
    k("s_lshr_b32 s36, s26, 1")
    k("v_lshrrev_b32 v17, 4, v0")
    k("v_and_b32 v16, 15, v0")
    k("v_mul_u32_u24 v20, 1280, v17")
    k("v_lshl_add_u32 v20, v16, 4, v20")
    k("s_mul_i32 s37, s27, 768")
    k(f"v_add_u32 v{AW}, s37, v20")
    k(f"v_add_u32 v{AW+1}, {2*SLOT}, v{AW}")
    k("v_lshlrev_b32 v20, 9, v17")
    k("v_lshl_add_u32 v20, v16, 4, v20")
    k("s_lshl_b32 s37, s36, 13")
    k(f"s_add_u32 s37, s37, {WB}")
    k(f"v_add_u32 v{AX}, s37, v20")
    k(f"v_add_u32 v{AX+1}, {2*SLOT}, v{AX}")
    k("v_lshrrev_b32 v20, 1, v17")
    k("v_lshlrev_b32 v20, 9, v20")
    k("v_lshl_add_u32 v20, v16, 4, v20")
    k("v_and_b32 v21, 1, v17")
    k("v_lshl_add_u32 v20, v21, 3, v20")
    k("s_lshl_b32 s38, s24, 1")
    k("s_add_u32 s38, s38, s36")
    k("s_mul_i32 s39, s38, 40960")
    k("s_mul_i32 s40, s25, 5120")
    k("s_add_u32 s39, s39, s40")
    k("s_mul_i32 s40, s27, 3072")
    k("s_add_u32 s39, s39, s40")
    if rawres:
        k("v_mul_u32_u24 v20, 1280, v16")
        k("v_lshl_add_u32 v20, v17, 3, v20")
        k(f"v_add_u32 v21, {16*1280}, v20")
        k(f"s_mul_i32 s52, s38, {32*1280}")
        k("s_mul_i32 s40, s25, 160")
        k("s_add_u32 s52, s52, s40")
        k("s_mul_i32 s40, s27, 96")
        k("s_add_u32 s52, s52, s40")
    else:
        k(f"s_add_u32 s52, s39, {RES}")
    k("s_waitcnt lgkmcnt(0)")
    k.srd(48, 6, 0, WS_SIZE)
    if rawres:
        k.srd(56, 8, 0, X_BYTES)
    PFT = TilePF(k, pfd, first, NCH, 5, 6, 7, 48)
    if pfd:
        k("s_and_b32 s41, s25, 3")
        k("s_lshr_b32 s42, s41, 1")
        k("s_lshl_b32 s43, s24, 1")
        k("s_add_u32 s42, s42, s43")
        k(f"s_mul_i32 s42, s42, {XBLK}")
        k("s_and_b32 s41, s41, 1")
        k("s_lshl_b32 s41, s41, 12")
        k("s_add_u32 s42, s42, s41")
        k("s_lshl_b32 s41, s26, 10")
        k("s_add_u32 s42, s42, s41")
        k(f"s_add_u32 s42, s42, {XSRC + first*8192}")
        k("s_and_b32 s41, s24, 7")
        k("s_mul_i32 s41, s41, 2560")
        k("s_mul_i32 s43, s26, 640")
        k("s_add_u32 s41, s41, s43")
        k(f"s_mul_i32 s43, s25, {K//8*1280}")
        k("s_add_u32 s41, s41, s43")
        k(f"s_add_u32 s41, s41, {WS_W + first*WB - 8*128}")
        k("v_lshlrev_b32 v5, 7, v0")
        k("v_mov_b32 v8, s41")
        k("v_mov_b32 v9, s42")
        k("v_cmp_gt_u32 vcc, 8, v0")
        k(f"v_mov_b32 v6, {WB}")
        k("v_mov_b32 v10, 8192")
        k("v_cndmask_b32 v8, v8, v9, vcc")
        k("v_cndmask_b32 v6, v6, v10, vcc")
        k("v_add_u32 v5, v8, v5")
        k("v_cmp_gt_u32 vcc, 13, v0")
        k("v_mov_b32 v9, 0x80000000")
        k("s_nop 0")
        k("v_cndmask_b32 v5, v9, v5, vcc")
        PFT.start()

    def path(NB):
        nx0 = PFT.next
        for nb in range(NB):
            for tb in range(2):
                d = RS + (nb * 2 + tb) * 2
                if rawres:
                    k(f"buffer_load_dwordx2 v[{d}:{d+1}], v{20+tb}, s[56:59], s52 offen offset:{nb*32}")
                else:
                    k(f"buffer_load_dwordx2 v[{d}:{d+1}], v20, s[48:51], s52 offen offset:{nb*1024+tb*256}{RSC}")
        if kind == "w2":
            k.srd(56, 8, 0, 1280)
            k("s_mul_i32 s40, s25, 160")
            k("s_mul_i32 s41, s27, 96")
            k("s_add_u32 s40, s40, s41")
            k("v_lshlrev_b32 v21, 3, v17")
            for nb in range(NB):
                k(f"buffer_load_dwordx2 v[{BI+2*nb}:{BI+2*nb+1}], v21, s[56:59], s40 offen offset:{nb*32}")
        if fz and fz.xl and "x" in PT and DST is not None:
            k("v_lshlrev_b32 v127, 7, v0")
            k(f"s_add_u32 s40, s39, {DST}")
            k(f"s_mov_b64 exec, {(1 << (8*NB)) - 1:#x}")
            k("buffer_load_dword v126, v127, s[48:51], s40 offen")
            k("s_lshl_b32 s40, s25, 1")
            k("s_add_u32 s40, s40, s27")
            k("s_lshl_b32 s40, s40, 14")
            k("s_lshl_b32 s41, s38, 8")
            k("s_add_u32 s40, s40, s41")
            k(f"s_add_u32 s40, s40, {ST}")
            k("s_mov_b64 exec, 3")
            k("buffer_load_dword v125, v127, s[48:51], s40 offen")
            k("s_mov_b64 exec, -1")
        if fz and fz.xl and "G" in PT and kind == "wo":
            k("v_lshlrev_b32 v127, 7, v0")
            k("s_mul_i32 s40, s24, 196608")
            k("s_lshl_b32 s41, s25, 2")
            k("s_add_u32 s41, s41, s26")
            k("s_mul_i32 s41, s41, 6144")
            k("s_add_u32 s40, s40, s41")
            k(f"s_add_u32 s40, s40, {WS_H}")
            k("s_mov_b32 exec_hi, 0xffff")
            k("buffer_load_dword v124, v127, s[48:51], s40 offen")
            k("s_mov_b32 exec_hi, -1")
        if fz and "u" in PT and DST is None:
            k.srd(60, 10, 0, X_BYTES)
            k("v_and_b32 v127, 31, v0")
            k("v_mul_u32_u24 v127, 1280, v127")
            k("v_lshrrev_b32 v126, 5, v0")
            k(f"v_mul_u32_u24 v126, {NB*32 - 4}, v126")
            k("v_add_u32 v127, v127, v126")
            k("s_mul_i32 s40, s38, 40960")
            k("s_mul_i32 s41, s25, 160")
            k("s_add_u32 s40, s40, s41")
            k("s_mul_i32 s41, s27, 96")
            k("s_add_u32 s40, s40, s41")
            k("buffer_load_dword v126, v127, s[60:63], s40 offen")
        def reads(step):
            ch, ks = divmod(step, 4)
            slot = (ch + rot) % NSLOT
            half, sl = divmod(slot, 2)
            st = step & 1
            out = []
            for tb in range(2):
                d = FB0 + st * 8 + tb * 4
                out.append(f"ds_read_b128 v[{d}:{d+3}], v{AX+half} offset:{sl*SLOT + ks*2048 + tb*256}")
            for nb in range(NB):
                d = FA0 + st * 12 + nb * 4
                out.append(f"ds_read_b128 v[{d}:{d+3}], v{AW+half} offset:{sl*SLOT + ks*5120 + nb*256}")
            return out
        k.stamp(1)
        k("s_barrier")
        k.stamp(2)
        for r in reads(0):
            k(r)
        NS = NCH * 4
        for step in range(NS):
            st = step & 1
            k("s_waitcnt lgkmcnt(0)")
            if step % 4 == 3 and step + 1 < NS:
                k("s_barrier")
                PFT.at_barrier()
            rd = reads(step + 1) if step + 1 < NS else []
            mf = []
            for nb in range(NB):
                for tb in range(2):
                    d = ACC + (nb * 2 + tb) * 4
                    a = FA0 + st * 12 + nb * 4
                    b = FB0 + st * 8 + tb * 4
                    c = "0" if step == 0 else f"v[{d}:{d+3}]"
                    mf.append(f"v_mfma_f32_16x16x32_bf16 v[{d}:{d+3}], v[{a}:{a+3}], v[{b}:{b+3}], {c}")
            ri = 0
            for i, m in enumerate(mf):
                if "nomfma" not in dbg: k(m)
                for r in rd[ri:ri + 2]:
                    if "nords" not in dbg: k(r)
                ri += 2
            assert ri >= len(rd)
        k.stamp(3)
        PFT.next = nx0
        if fz and fz.xl and fz.p == 0: fz.mode_issue(48, 250)
        k("s_waitcnt vmcnt(0)")
        want_stats = ST is not None
        if want_stats:
            for r in (8, 9, 10, 11):
                k(f"v_mov_b32 v{r}, 0")
        k("v_lshlrev_b32 v22, 4, v0")
        if DST is None:
            k.srd(60, 10, 0, X_BYTES)
            k("v_and_b32 v23, 31, v0")
            k("v_mul_u32_u24 v23, 1280, v23")
            k("v_lshrrev_b32 v24, 5, v0")
            k("v_lshl_add_u32 v23, v24, 4, v23")
            k("s_mul_i32 s40, s38, 40960")
            k("s_mul_i32 s41, s25, 160")
            k("s_add_u32 s40, s40, s41")
            k("s_mul_i32 s41, s27, 96")
            k("s_add_u32 s53, s40, s41")
        else:
            k(f"s_add_u32 s53, s39, {DST}")
        k("s_nop 4")
        for nb in range(NB):
            o = 24 + 4 * (nb % 2)
            for tb in range(2):
                a = ACC + (nb * 2 + tb) * 4
                d = RS + (nb * 2 + tb) * 2
                t = 12
                k(f"v_lshlrev_b32 v{t}, 16, v{d}")
                k(f"v_and_b32 v{t+1}, 0xffff0000, v{d}")
                k(f"v_lshlrev_b32 v{t+2}, 16, v{d+1}")
                k(f"v_and_b32 v{t+3}, 0xffff0000, v{d+1}")
                k(f"v_pk_add_f32 v[{a}:{a+1}], v[{a}:{a+1}], v[{t}:{t+1}]")
                k(f"v_pk_add_f32 v[{a+2}:{a+3}], v[{a+2}:{a+3}], v[{t+2}:{t+3}]")
                if kind == "w2":
                    b = BI + 2 * nb
                    k(f"v_lshlrev_b32 v{t+4}, 16, v{b}")
                    k(f"v_and_b32 v{t+5}, 0xffff0000, v{b}")
                    k(f"v_lshlrev_b32 v{t+6}, 16, v{b+1}")
                    k(f"v_and_b32 v{t+7}, 0xffff0000, v{b+1}")
                    k(f"v_pk_add_f32 v[{a}:{a+1}], v[{a}:{a+1}], v[{t+4}:{t+5}]")
                    k(f"v_pk_add_f32 v[{a+2}:{a+3}], v[{a+2}:{a+3}], v[{t+6}:{t+7}]")
                if want_stats:
                    for r in range(4):
                        k(f"v_add_f32 v{8+tb}, v{8+tb}, v{a+r}")
                        k(f"v_fmac_f32 v{10+tb}, v{a+r}, v{a+r}")
                k(f"v_cvt_pk_bf16_f32 v{o+2*tb}, v{a}, v{a+1}")
                k(f"v_cvt_pk_bf16_f32 v{o+2*tb+1}, v{a+2}, v{a+3}")
            k("s_nop 1")
            k(f"v_permlane16_swap_b32 v{o}, v{o+2}")
            k(f"v_permlane16_swap_b32 v{o+1}, v{o+3}")
            k("s_nop 1")
            if DST is None:
                k(f"buffer_store_dwordx4 v[{o}:{o+3}], v23, s[60:63], s53 offen offset:{nb*32}" + (" ; nosc" if OUTP else ""))
            else:
                k(f"buffer_store_dwordx4 v[{o}:{o+3}], v22, s[48:51], s53 offen offset:{nb*1024}{NS_}")
        if want_stats:
            k("v_permlane16_swap_b32 v8, v9")
            k("v_permlane16_swap_b32 v10, v11")
            k("s_nop 1")
            k("v_add_f32 v8, v8, v9")
            k("v_add_f32 v10, v10, v11")
            k("s_nop 1")
            k("v_permlane32_swap_b32 v8, v10")
            k("s_nop 1")
            k("v_add_f32 v8, v8, v10")
            k("v_and_b32 v12, 31, v0")
            k("v_lshlrev_b32 v12, 3, v12")
            k("v_lshrrev_b32 v13, 5, v0")
            k("v_lshl_add_u32 v12, v13, 2, v12")
            k("s_lshl_b32 s40, s25, 1")
            k("s_add_u32 s40, s40, s27")
            k("s_lshl_b32 s40, s40, 14")
            k("s_lshl_b32 s41, s38, 8")
            k("s_add_u32 s40, s40, s41")
            k(f"s_add_u32 s40, s40, {ST}")
            k(f"buffer_store_dword v8, v12, s[48:51], s40 offen{NS_}")
        k("s_waitcnt vmcnt(0)")
        fin_compute(k, fz, kidx)
    k("s_cmp_eq_u32 s27, 1")
    k(f"s_cbranch_scc1 {k.ref('p2')}")
    path(3)
    k.lab("p2")
    path(2)
    return k


ATT_PACK = "cvt"
def gen_attn(name, kidx=0, pack=None, force_slow=False):
    pack = pack or ATT_PACK
    NWG = 256
    LDS = 163840
    k = Kern(name, NWG, 512, LDS, vgpr=128)
    KA, KB, VA = 1, 2, 3
    Q16, Q4 = 8, 12
    K16 = [16, 20]; K4 = [24, 26]
    V = [32, 40]
    S = [48, 64]
    P = 80
    O = 96
    k(f"s_cmp_ge_u32 s2, {NWG}")
    k(f"s_cbranch_scc1 {k.ref('end')}")
    k.stamp(0)
    k.karg(6, 80)
    wave_id(k, 26)
    k("s_and_b32 s20, s2, 7")
    k("s_lshr_b32 s21, s2, 3")
    k("s_lshr_b32 s22, s21, 3")
    k("s_lshl_b32 s23, s20, 2")
    k("s_add_u32 s24, s23, s22")
    k("s_and_b32 s25, s21, 7")
    k("s_lshl_b32 s25, s25, 3")
    k("s_add_u32 s25, s25, s26")
    k("v_lshlrev_b32 v4, 4, v0")
    k("s_lshl_b32 s27, s24, 6")
    k("s_add_u32 s27, s27, s25")
    k("s_mul_i32 s27, s27, 1280")
    k(f"s_add_u32 s27, s27, {WS_Q}")
    k("s_mul_i32 s28, s24, 163840")
    k(f"s_add_u32 s28, s28, {WS_KV}")
    k("s_mul_i32 s29, s26, 3072")
    k("s_mul_i32 s30, s26, 17408")
    k("s_add_u32 s30, s30, 24576")
    k("v_and_b32 v5, 31, v0")
    k("v_lshlrev_b32 v6, 3, v5")
    k(f"v_mov_b32 v{Q4}, 0")
    k(f"v_mov_b32 v{Q4+1}, 0")
    k("s_waitcnt lgkmcnt(0)")
    k.srd(12, 6, 0, WS_SIZE)
    k(f"buffer_load_dwordx4 v[{Q16}:{Q16+3}], v4, s[12:15], s27 offen")
    k("s_mov_b64 exec, 0xffffffff")
    k(f"buffer_load_dwordx2 v[{Q4}:{Q4+1}], v6, s[12:15], s27 offen offset:1024")
    k("s_mov_b64 exec, -1")
    k("s_mov_b32 m0, s29")
    k("s_add_u32 s31, s28, s29")
    for i in range(3):
        k(f"buffer_load_dwordx4 v4, s[12:15], s31 offen offset:{i*1024} lds")
    for g in range(5):
        k(f"s_add_u32 m0, s30, {g*4096}")
        k(f"s_add_u32 s31, s28, s30")
        if g: k(f"s_add_u32 s31, s31, {g*4096}")
        for i in range(4 if g < 4 else 1):
            k(f"buffer_load_dwordx4 v4, s[12:15], s31 offen offset:{i*1024} lds")
    k.stamp(1)
    def lane_addrs():
        k("v_and_b32 v5, 31, v0")
        k("v_and_b32 v6, 0x13, v5")
        k("v_and_b32 v7, 4, v5")
        k("v_lshl_or_b32 v6, v7, 1, v6")
        k("v_and_b32 v7, 8, v5")
        k("v_lshrrev_b32 v7, 1, v7")
        k("v_or_b32 v6, v6, v7")
        k("v_lshrrev_b32 v7, 5, v0")
        k(f"v_lshlrev_b32 v{KA}, 9, v7")
        k(f"v_lshl_add_u32 v{KA}, v6, 4, v{KA}")
        k(f"v_lshlrev_b32 v{KB}, 3, v6")
        k(f"v_add_u32 v{KB}, 1024, v{KB}")
        k(f"v_mul_u32_u24 v{VA}, 320, v7")
        k(f"v_lshl_add_u32 v{VA}, v5, 4, v{VA}")
        k(f"v_add_u32 v{VA}, 1280, v{VA}")
    lane_addrs()
    k("v_cmp_eq_u32 vcc, 20, v5")
    k("v_mov_b32 v7, 0x3f803f80")
    k("s_mov_b32 s34, 0x000fffff")
    k("s_mov_b32 s35, 0x000fffff")
    k(f"v_cndmask_b32 v{V[0]}, 0, v7, vcc")
    for r in range(1, 16):
        k(f"v_mov_b32 v{V[0]+r}, v{V[0]}")
    for r in range(16):
        k(f"v_mov_b32 v{O+r}, 0")
    for r in range(4, 8):
        k(f"v_mov_b32 v{P+r}, 0")
    k("s_waitcnt vmcnt(17)")
    k("s_barrier")
    k.stamp(2)
    def rdK(buf, off):
        k(f"ds_read_b128 v[{K16[buf]}:{K16[buf]+3}], v{KA} offset:{off}")
        k(f"ds_read_b64 v[{K4[buf]}:{K4[buf]+1}], v{KB} offset:{off}")
    def rdV(buf, off):
        k("s_mov_b64 exec, s[34:35]")
        k(f"ds_read_b128 v[{V[buf]}:{V[buf]+3}], v{VA} offset:{off}")
        k(f"ds_read_b128 v[{V[buf]+4}:{V[buf]+7}], v{VA} offset:{off+640}")
        k("s_mov_b64 exec, -1")
    def M1(n): k(f"v_mfma_f32_32x32x16_bf16 v[{S[n]}:{S[n]+15}], v[{K16[n]}:{K16[n]+3}], v[{Q16}:{Q16+3}], 0")
    def M2(n): k(f"v_mfma_f32_32x32x8bf16_1k v[{S[n]}:{S[n]+15}], v[{K4[n]}:{K4[n]+1}], v[{Q4}:{Q4+1}], v[{S[n]}:{S[n]+15}]")
    def MPV(vb, f): k(f"v_mfma_f32_32x32x16_bf16 v[{O}:{O+15}], v[{V[vb]+4*f}:{V[vb]+4*f+3}], v[{P+4*f}:{P+4*f+3}], v[{O}:{O+15}]")
    def G(c, g):
        s = S[c] + 4 * g
        p = P + 2 * g
        if pack == "cvt":
            for i in range(4):
                k(f"v_exp_f32 v{s+i}, v{s+i}")
            k(f"v_cvt_pk_bf16_f32 v{p}, v{s}, v{s+1}")
            k(f"v_cvt_pk_bf16_f32 v{p+1}, v{s+2}, v{s+3}")
        else:
            k(f"v_exp_f32 v{p}, v{s+1}")
            k(f"v_exp_f32 v{s}, v{s}")
            k(f"v_exp_f32 v{p+1}, v{s+3}")
            k(f"v_exp_f32 v{s+2}, v{s+2}")
            k(f"v_mov_b32_sdwa v{p}, v{s} dst_sel:WORD_0 dst_unused:UNUSED_PRESERVE src0_sel:WORD_1")
            k(f"v_mov_b32_sdwa v{p+1}, v{s+2} dst_sel:WORD_0 dst_unused:UNUSED_PRESERVE src0_sel:WORD_1")
    rdK(0, 0)
    rdK(1, 2560)
    rdV(0, 0)
    k("s_waitcnt lgkmcnt(4)")
    M1(0)
    k("s_mov_b32 s36, 0")
    k("s_nop 7")
    k("s_nop 1")
    M2(0)
    k("s_nop 7")
    k("s_nop 3")
    k.lab("loop")
    k("s_cmp_eq_u32 s36, 1")
    k(f"s_cbranch_scc0 {k.ref('nosync')}")
    k("s_waitcnt vmcnt(0)")
    k("s_barrier")
    k.lab("nosync")
    k("s_cmp_eq_u32 s36, 7")
    k(f"s_mov_b32 s37, {(-7*20480) & 0xffffffff:#x}")
    k("s_cselect_b32 s37, s37, 20480")
    for t in range(8):
        c, n = t & 1, (t + 1) & 1
        k("s_waitcnt lgkmcnt(0)")
        M1(n)
        G(c, 0)
        MPV(n, 1)
        if t == 6:
            k(f"v_add_u32 v{KA}, s37, v{KA}")
            k(f"v_add_u32 v{KB}, s37, v{KB}")
        if t == 7:
            k(f"v_add_u32 v{VA}, s37, v{VA}")
        rdK(c, ((t + 2) % 8) * 2560)
        rdV(n, ((t + 1) % 8) * 2560)
        G(c, 1)
        M2(n)
        G(c, 2)
        MPV(c, 0)
        G(c, 3)
    k("s_add_u32 s36, s36, 1")
    k("s_cmp_lt_u32 s36, 8")
    k(f"s_cbranch_scc1 {k.ref('loop')}")
    k("s_nop 0")
    MPV(1, 1)
    k.stamp(3)
    k("s_waitcnt lgkmcnt(0)")
    k("s_nop 7")
    k("s_nop 3")
    k(f"v_mov_b32 v4, v{O+8}")
    k(f"v_mov_b32 v5, v{O+8}")
    k("v_mov_b32 v6, 0")
    k("s_nop 0")
    k("v_permlane32_swap_b32 v4, v5")
    for r in range(12):
        k(f"v_fma_f32 v6, v{O+r}, 0, v6")
    k(f"v_cmp_lt_f32 vcc, {f2u(2.0**-40):#x}, v5")
    k(f"v_cmp_gt_f32 s[38:39], {f2u(2.0**40):#x}, v5" if False else f"s_mov_b32 s40, {f2u(2.0**40):#x}")
    k("v_cmp_gt_f32 s[38:39], s40, v5")
    k("v_cmp_eq_f32 s[42:43], 0, v6")
    k("s_nop 3")
    k("s_and_b64 vcc, vcc, s[38:39]")
    k("s_and_b64 vcc, vcc, s[42:43]")
    if force_slow:
        k("s_mov_b64 vcc, 0")
    k("s_cmp_eq_u64 vcc, -1")
    k(f"s_cbranch_scc0 {k.ref('slow')}")
    k.lab("fin")
    k("v_rcp_f32 v5, v5")
    k("s_mul_i32 s40, s24, 5")
    k("v_lshrrev_b32 v7, 5, v0")
    k("v_add_u32 v7, s40, v7")
    k("v_lshrrev_b32 v6, 1, v7")
    k("v_lshlrev_b32 v6, 9, v6")
    k("v_and_b32 v7, 1, v7")
    k("v_lshl_add_u32 v6, v7, 3, v6")
    k("v_and_b32 v7, 31, v0")
    k("v_lshl_add_u32 v6, v7, 4, v6")
    k("s_mul_i32 s41, s25, 40960")
    k(f"s_add_u32 s41, s41, {WS_O}")
    for r in range(0, 12, 2):
        k(f"v_pk_mul_f32 v[{O+r}:{O+r+1}], v[{O+r}:{O+r+1}], v[4:5] op_sel:[0,1] op_sel_hi:[1,1]")
    k("s_nop 0")
    for j in range(6):
        k(f"v_cvt_pk_bf16_f32 v{16+j}, v{O+2*j}, v{O+2*j+1}")
    k("buffer_store_dwordx2 v[16:17], v6, s[12:15], s41 offen")
    k("buffer_store_dwordx2 v[18:19], v6, s[12:15], s41 offen offset:512")
    k("s_mov_b64 exec, 0xffffffff")
    k("buffer_store_dwordx2 v[20:21], v6, s[12:15], s41 offen offset:1024")
    k("s_waitcnt vmcnt(0)")
    k.stamp(4); k.stamp_flush(6, kidx, 5, 26)
    k.lab("end")
    k("s_endpgm")
    k.lab("slow")
    lane_addrs()
    MX = 88
    k(f"v_mov_b32 v{MX}, {f2u(-3.0e38):#x}")
    for r in range(16):
        k(f"v_mov_b32 v{O+r}, 0")
    k("s_mov_b32 s36, 0")
    k.lab("sl")
    rdK(0, 0)
    rdV(0, 0)
    k("s_waitcnt lgkmcnt(0)")
    M1(0)
    k("s_nop 7"); k("s_nop 1")
    M2(0)
    k("s_nop 7"); k("s_nop 3")
    s = S[0]
    k(f"v_max3_f32 v4, v{s}, v{s+1}, v{s+2}")
    for i in range(3, 15, 2):
        k(f"v_max3_f32 v4, v4, v{s+i}, v{s+i+1}")
    k(f"v_max_f32 v4, v4, v{s+15}")
    k("v_mov_b32 v5, v4")
    k("s_nop 1")
    k("v_permlane32_swap_b32 v4, v5")
    k("s_nop 1")
    k(f"v_max3_f32 v4, v4, v5, v{MX}")
    k(f"v_sub_f32 v5, v{MX}, v4")
    k("v_exp_f32 v5, v5")
    k(f"v_mov_b32 v{MX}, v4")
    for i in range(16):
        k(f"v_sub_f32 v{s+i}, v{s+i}, v4")
    for i in range(16):
        k(f"v_exp_f32 v{s+i}, v{s+i}")
    for r in range(12):
        k(f"v_mul_f32 v{O+r}, v{O+r}, v5")
    for j in range(8):
        k(f"v_cvt_pk_bf16_f32 v{P+j}, v{s+2*j}, v{s+2*j+1}")
    k(f"v_add_u32 v{KA}, 2560, v{KA}")
    k(f"v_add_u32 v{KB}, 2560, v{KB}")
    k(f"v_add_u32 v{VA}, 2560, v{VA}")
    k("s_nop 4")
    MPV(0, 0)
    MPV(0, 1)
    k("s_nop 7"); k("s_nop 3")
    k("s_add_u32 s36, s36, 1")
    k("s_cmp_lt_u32 s36, 64")
    k(f"s_cbranch_scc1 {k.ref('sl')}")
    k(f"v_mov_b32 v4, v{O+8}")
    k(f"v_mov_b32 v5, v{O+8}")
    k("s_nop 1")
    k("v_permlane32_swap_b32 v4, v5")
    k("s_nop 1")
    k(f"s_branch {k.ref('fin')}")
    return k


def l2_prefetch(k, items, half, idx, lw, tmp, vaddr, vdst, srd=12):
    k(f"v_lshlrev_b32 v{vaddr}, 7, v0")
    for n, (base, hb) in enumerate(items):
        per_wg = hb // 32
        per_w = per_wg // 4
        lines = (per_w + 127) // 128
        k(f"s_mul_i32 s{tmp}, s{half}, {hb}")
        k(f"s_mul_i32 s{tmp+1}, s{idx}, {per_wg}")
        k(f"s_add_u32 s{tmp}, s{tmp}, s{tmp+1}")
        k(f"s_mul_i32 s{tmp+1}, s{lw}, {per_w}")
        k(f"s_add_u32 s{tmp}, s{tmp}, s{tmp+1}")
        k(f"s_add_u32 s{tmp}, s{tmp}, {base}")
        done = 0
        while done < lines:
            n_ = min(64, lines - done)
            if n_ < 64:
                m = (1 << n_) - 1
                k(f"s_mov_b32 exec_lo, {m & 0xffffffff:#x}")
                k(f"s_mov_b32 exec_hi, {m >> 32:#x}")
            k(f"buffer_load_dword v{vdst}, v{vaddr}, s[{srd}:{srd+3}], s{tmp} offen")
            if n_ < 64:
                k("s_mov_b64 exec, -1")
            done += n_
            if done < lines:
                k(f"s_add_u32 s{tmp}, s{tmp}, {64*128}")
            vdst += 1

def repack_unit(k, lw, EV, OD, early=False, mid=None, lds=0):
    k(f"s_lshl_b32 s52, s2, 2")
    k(f"s_add_u32 s52, s52, s{lw}")
    k("s_cmp_ge_u32 s52, 880")
    k(f"s_cbranch_scc1 {k.ref('rp_skip' if (early or mid) else 'rp_done')}")
    k.karg(54, 8)
    k.karg(56, 16)
    k.karg(58, 32)
    k.karg(60, 48)
    def setup(lbl, lo, ncg, ptr, size, pitch, TN, K, dst, cs, csp):
        k.lab(lbl)
        k(f"s_sub_u32 s52, s52, {lo}")
        k.srd(64, ptr, 0, size)
        k(f"s_mov_b32 s53, {pitch}")
        k(f"s_mov_b32 s54, {(65536 + TN - 1)//TN}")
        k(f"s_mov_b32 s55, {TN}")
        k(f"s_mov_b32 s56, {K//8*TN*16}")
        k(f"s_mov_b32 s57, {dst}")
        k(f"s_mul_i32 s58, s52, {(65536 + ncg - 1)//ncg}")
        k("s_lshr_b32 s58, s58, 16")
        k(f"s_mul_i32 s59, s58, {ncg}")
        k("s_sub_u32 s59, s52, s59")
        k(f"s_mov_b32 s60, {cs if cs is not None else 0xffffffff:#x}")
        k(f"s_mov_b32 s61, {csp}")
        k(f"s_branch {k.ref('rp_go')}")
    k("s_waitcnt lgkmcnt(0)")
    k("s_cmp_ge_u32 s52, 640"); k(f"s_cbranch_scc1 {k.ref('rp_w2')}")
    k("s_cmp_ge_u32 s52, 540"); k(f"s_cbranch_scc1 {k.ref('rp_wo')}")
    k("s_cmp_ge_u32 s52, 300"); k(f"s_cbranch_scc1 {k.ref('rp_w1')}")
    setup("rp_wq", 0, 30, 54, 640 * 3840, 3840, 128, 640, WS_WQ, WS_CSQ, 1920 * 4)
    setup("rp_w1", 300, 24, 58, 640 * 3072, 3072, 96, 640, WS_W1, WS_CS1, 1536 * 4)
    setup("rp_wo", 540, 10, 56, 640 * 1280, 1280, 80, 640, WS_WO, None, 0)
    setup("rp_w2", 640, 10, 60, 1536 * 1280, 1280, 80, 1536, WS_W2, None, 0)
    k.lab("rp_go")
    if lds:
        VD = OD + 1
        k("v_lshrrev_b32 v4, 3, v0")
        k("v_and_b32 v5, 7, v0")
        k("v_bfe_u32 v6, v0, 4, 1")
        k("v_lshlrev_b32 v6, 2, v6")
        k("v_xor_b32 v5, v5, v6")
        k("v_mul_lo_u32 v4, v4, s53")
        k(f"v_lshl_add_u32 v{VD}, v5, 4, v4")
        k("s_lshl_b32 s62, s58, 6")
        k("s_mul_i32 s62, s62, s53")
        k("s_lshl_b32 s63, s59, 7")
        k("s_add_u32 s52, s62, s63")
        if mid:
            k(f"v_mul_lo_u32 v{OD+2}, v0, s53")
            k(f"buffer_load_dword v{OD+3}, v{OD+2}, s[64:67], s52 offen")
        k(f"s_mul_i32 s69, s{lw}, 8192")
        k(f"s_sub_u32 s69, {lds + 3*8192}, s69")
        k("v_bfe_u32 v6, v0, 2, 2")
        k("v_lshrrev_b32 v7, 4, v0")
        k("v_lshlrev_b32 v7, 1, v7")
        k("v_bfe_u32 v5, v0, 1, 1")
        k("v_add_u32 v7, v7, v5")
        k("v_lshrrev_b32 v5, 1, v6")
        k("v_lshlrev_b32 v5, 2, v5")
        k("v_xor_b32 v7, v7, v5")
        k("v_lshlrev_b32 v7, 4, v7")
        k("v_lshl_add_u32 v7, v6, 7, v7")
        k("v_and_b32 v5, 1, v0")
        k("v_lshl_add_u32 v7, v5, 3, v7")
        k(f"v_add_u32 v{OD}, s69, v7")
        def dmas():
            k("s_lshl_b32 s53, s53, 3")
            for i in range(8):
                k(f"s_add_u32 m0, s69, {i*1024}")
                k("s_add_u32 s52, s52, s53" if i else "s_nop 0")
                k(f"buffer_load_dwordx4 v{VD}, s[64:67], s52 offen lds")
        if not mid: dmas()
    else:
        k("v_lshlrev_b32 v4, 1, v0")
        k("s_lshl_b32 s62, s58, 6")
        k("s_mul_i32 s62, s62, s53")
        k("s_lshl_b32 s63, s59, 7")
        k("s_add_u32 s62, s62, s63")
        for r in range(64):
            d = (OD if r & 1 else EV) + (r >> 1)
            k(f"buffer_load_ushort v{d}, v4, s[64:67], s62 offen")
            if r < 63:
                k("s_add_u32 s62, s62, s53")
        if mid: mid()
    k("s_lshl_b32 s62, s59, 6")
    k("v_add_u32 v4, s62, v0")
    k("v_mul_lo_u32 v5, v4, s54")
    k("v_lshrrev_b32 v5, 16, v5")
    k("v_mul_lo_u32 v6, v5, s55")
    k("v_sub_u32 v6, v4, v6")
    k("v_mul_lo_u32 v5, v5, s56")
    k("v_lshl_add_u32 v5, v6, 4, v5")
    k("s_lshl_b32 s63, s55, 4")
    k("s_lshl_b32 s62, s58, 3")
    k("s_mul_i32 s62, s62, s63")
    k("s_add_u32 s62, s62, s57")
    k("v_mov_b32 v6, 0")
    k("v_mov_b32 v7, 0")
    if lds:
        if mid:
            mid(); dmas()
        for ku in range(8):
            k(f"s_waitcnt vmcnt({7 - ku})")
            k(f"ds_read_b64_tr_b16 v[{EV+4*ku}:{EV+4*ku+1}], v{OD} offset:{ku*1024}")
            k(f"ds_read_b64_tr_b16 v[{EV+4*ku+2}:{EV+4*ku+3}], v{OD} offset:{ku*1024+512}")
        for ku in range(8):
            k(f"s_waitcnt lgkmcnt({14 - 2*ku})")
            k(f"buffer_store_dwordx4 v[{EV+4*ku}:{EV+4*ku+3}], v5, s[12:15], s62 offen")
            if ku < 7:
                k("s_add_u32 s62, s62, s63")
    else:
      for ku in range(8):
        k(f"s_waitcnt vmcnt({min(63, 56 - 8*ku + ku)})")
        for j in range(4 * ku, 4 * ku + 4):
            k(f"v_lshl_or_b32 v{EV+j}, v{OD+j}, 16, v{EV+j}")
        k(f"buffer_store_dwordx4 v[{EV+4*ku}:{EV+4*ku+3}], v5, s[12:15], s62 offen")
        if ku < 7:
            k("s_add_u32 s62, s62, s63")
    k("s_cmp_eq_u32 s60, 0xffffffff")
    k(f"s_cbranch_scc1 {k.ref('rp_done')}")
    for j in range(32):
        k(f"v_dot2c_f32_bf16 v{6 + (j & 1)}, 0x3f803f80, v{EV+j}")
    k("s_mul_i32 s62, s58, s61")
    k("s_add_u32 s62, s62, s60")
    k("v_lshlrev_b32 v4, 2, v4")
    k("s_nop 3")
    k("v_add_f32 v6, v6, v7")
    k("s_nop 0")
    k("buffer_store_dword v6, v4, s[12:15], s62 offen")
    if mid:
        k(f"s_branch {k.ref('rp_done')}")
        k.lab("rp_skip")
        mid()
    if early:
        k(f"s_branch {k.ref('rp_done')}")
        k.lab("rp_skip")
        k("s_waitcnt vmcnt(0)")
    k.lab("rp_done")


PF_ATT = [(WS_WO, 409600), (WS_W1, 983040), (WS_W2, 983040)]

def gen_attn2(name, kidx=0, pack="cvt", force_slow=False, sched=0, dbg=(), pf=0):
    NWG = 256
    LDS = 163840
    k = Kern(name, NWG, 512, LDS, vgpr=160)
    KA, KB, VA = 1, 2, 3
    Q16 = [8, 28]; Q4 = [12, 14]
    K16 = [16, 20]; K4 = [24, 26]
    V = [32, 40]
    S = [48, 64]
    P = 80
    O = [96, 112]
    k(f"s_cmp_ge_u32 s2, {NWG}")
    k(f"s_cbranch_scc1 {k.ref('end')}")
    k.stamp(0)
    k.karg(6, 80)
    wave_id(k, 26)
    k("s_and_b32 s20, s2, 7")
    k("s_lshr_b32 s21, s2, 3")
    k("s_lshr_b32 s22, s21, 3")
    k("s_lshl_b32 s23, s20, 2")
    k("s_add_u32 s24, s23, s22")
    k("v_lshlrev_b32 v4, 4, v0")
    k("s_cmp_lt_u32 s26, 4")
    k(f"s_cbranch_scc1 {k.ref('compute')}")
    k("s_sub_u32 s26, s26, 4")
    k("s_mul_i32 s28, s24, 163840")
    k(f"s_add_u32 s28, s28, {WS_KV}")
    k("s_mul_i32 s29, s26, 6144")
    k("s_mul_i32 s30, s26, 34816")
    k("s_add_u32 s30, s30, 24576")
    k("s_waitcnt lgkmcnt(0)")
    k.srd(12, 6, 0, WS_SIZE)
    k("s_mov_b32 m0, s29")
    k("s_add_u32 s31, s28, s29")
    for i in range(4):
        k(f"buffer_load_dwordx4 v4, s[12:15], s31 offen offset:{i*1024} lds")
    k("s_add_u32 m0, s29, 4096")
    k("s_add_u32 s31, s31, 4096")
    for i in range(2):
        k(f"buffer_load_dwordx4 v4, s[12:15], s31 offen offset:{i*1024} lds")
    k("s_add_u32 s28, s28, s30")
    def stB(g):
        k(f"s_add_u32 m0, s30, {g*4096}")
        k(f"s_add_u32 s31, s28, {g*4096}")
        for i in range(4 if g < 8 else 2):
            k(f"buffer_load_dwordx4 v4, s[12:15], s31 offen offset:{i*1024} lds")
    stB(0); stB(1)
    k.stamp(1)
    k("s_waitcnt vmcnt(8)")
    k.stamp(2)
    k("s_barrier")
    for g in range(2, 9):
        stB(g)
    k.stamp(3)
    k("s_waitcnt vmcnt(0)")
    k.stamp(4)
    k("s_barrier")
    if pf:
        k("s_and_b32 s40, s20, 1")
        l2_prefetch(k, PF_ATT[:pf], 40, 21, 26, 42, 5, 8)
        k("s_waitcnt vmcnt(0)")
    k("s_add_u32 s26, s26, 4")
    k.stamp_flush(6, kidx, 5, 26)
    k.lab("end")
    k("s_endpgm")
    k.lab("compute")
    k("s_and_b32 s25, s21, 7")
    k("s_lshl_b32 s25, s25, 3")
    k("s_lshl_b32 s23, s26, 1")
    k("s_add_u32 s25, s25, s23")
    k("s_lshl_b32 s27, s24, 6")
    k("s_add_u32 s27, s27, s25")
    k("s_mul_i32 s27, s27, 1280")
    k(f"s_add_u32 s27, s27, {WS_Q}")
    k("s_add_u32 s28, s27, 1280")
    k("v_and_b32 v5, 31, v0")
    k("v_lshlrev_b32 v6, 3, v5")
    for x in range(2):
        k(f"v_mov_b32 v{Q4[x]}, 0")
        k(f"v_mov_b32 v{Q4[x]+1}, 0")
    k("s_waitcnt lgkmcnt(0)")
    k.srd(12, 6, 0, WS_SIZE)
    k(f"buffer_load_dwordx4 v[{Q16[0]}:{Q16[0]+3}], v4, s[12:15], s27 offen")
    k(f"buffer_load_dwordx4 v[{Q16[1]}:{Q16[1]+3}], v4, s[12:15], s28 offen")
    k("s_mov_b64 exec, 0xffffffff")
    k(f"buffer_load_dwordx2 v[{Q4[0]}:{Q4[0]+1}], v6, s[12:15], s27 offen offset:1024")
    k(f"buffer_load_dwordx2 v[{Q4[1]}:{Q4[1]+1}], v6, s[12:15], s28 offen offset:1024")
    k("s_mov_b64 exec, -1")
    def lane_addrs():
        k("v_and_b32 v5, 31, v0")
        k("v_and_b32 v6, 0x13, v5")
        k("v_and_b32 v7, 4, v5")
        k("v_lshl_or_b32 v6, v7, 1, v6")
        k("v_and_b32 v7, 8, v5")
        k("v_lshrrev_b32 v7, 1, v7")
        k("v_or_b32 v6, v6, v7")
        k("v_lshrrev_b32 v7, 5, v0")
        k(f"v_lshlrev_b32 v{KA}, 9, v7")
        k(f"v_lshl_add_u32 v{KA}, v6, 4, v{KA}")
        k(f"v_lshlrev_b32 v{KB}, 3, v6")
        k(f"v_add_u32 v{KB}, 1024, v{KB}")
        k(f"v_mul_u32_u24 v{VA}, 320, v7")
        k(f"v_lshl_add_u32 v{VA}, v5, 4, v{VA}")
        k(f"v_add_u32 v{VA}, 1280, v{VA}")
    lane_addrs()
    k("v_cmp_eq_u32 vcc, 20, v5")
    k("v_mov_b32 v7, 0x3f803f80")
    k("s_mov_b32 s34, 0x000fffff")
    k("s_mov_b32 s35, 0x000fffff")
    k(f"v_cndmask_b32 v{V[0]}, 0, v7, vcc")
    for r in range(1, 16):
        k(f"v_mov_b32 v{V[0]+r}, v{V[0]}")
    for r in range(32):
        k(f"v_mov_b32 v{O[0]+r}, 0")
    for r in range(4, 8):
        k(f"v_mov_b32 v{P+r}, 0")
    k.stamp(1)
    k("s_waitcnt vmcnt(0)")
    k("s_barrier")
    k.stamp(2)
    def rdK(buf, off):
        return [f"ds_read_b128 v[{K16[buf]}:{K16[buf]+3}], v{KA} offset:{off}",
                f"ds_read_b64 v[{K4[buf]}:{K4[buf]+1}], v{KB} offset:{off}"]
    def rdV(buf, off):
        return ["s_mov_b64 exec, s[34:35]",
                f"ds_read_b128 v[{V[buf]}:{V[buf]+3}], v{VA} offset:{off}",
                f"ds_read_b128 v[{V[buf]+4}:{V[buf]+7}], v{VA} offset:{off+640}",
                "s_mov_b64 exec, -1"]
    def M1(x, kb): return f"v_mfma_f32_32x32x16_bf16 v[{S[x]}:{S[x]+15}], v[{K16[kb]}:{K16[kb]+3}], v[{Q16[x]}:{Q16[x]+3}], 0"
    def M2(x, kb): return f"v_mfma_f32_32x32x8bf16_1k v[{S[x]}:{S[x]+15}], v[{K4[kb]}:{K4[kb]+1}], v[{Q4[x]}:{Q4[x]+1}], v[{S[x]}:{S[x]+15}]"
    def MPV(x, vb, f): return f"v_mfma_f32_32x32x16_bf16 v[{O[x]}:{O[x]+15}], v[{V[vb]+4*f}:{V[vb]+4*f+3}], v[{P+4*f}:{P+4*f+3}], v[{O[x]}:{O[x]+15}]"
    def G(x, g, fill=()):
        s = S[x] + 4 * g
        p = P + 2 * g
        fill = list(fill)
        if pack == "cvt":
            ex = [f"v_exp_f32 v{s+i}, v{s+i}" for i in range(4)]
            pk = [f"v_cvt_pk_bf16_f32 v{p}, v{s}, v{s+1}", f"v_cvt_pk_bf16_f32 v{p+1}, v{s+2}, v{s+3}"]
        else:
            ex = [f"v_exp_f32 v{p}, v{s+1}", f"v_exp_f32 v{s}, v{s}", f"v_exp_f32 v{p+1}, v{s+3}", f"v_exp_f32 v{s+2}, v{s+2}"]
            pk = [f"v_mov_b32_sdwa v{p}, v{s} dst_sel:WORD_0 dst_unused:UNUSED_PRESERVE src0_sel:WORD_1",
                  f"v_mov_b32_sdwa v{p+1}, v{s+2} dst_sel:WORD_0 dst_unused:UNUSED_PRESERVE src0_sel:WORD_1"]
        for i in range(4):
            k(ex[i])
            if i < len(fill) and fill[i]:
                for f in (fill[i] if isinstance(fill[i], list) else [fill[i]]):
                    k(f)
        for x_ in pk: k(x_)
    for r in rdK(0, 0) + rdK(1, 2560) + rdV(0, 0): k(r)
    k("s_waitcnt lgkmcnt(4)")
    k(M1(0, 0))
    k("s_mov_b32 s36, 0")
    k("s_nop 7")
    k("s_nop 1")
    k(M2(0, 0))
    k("s_nop 7")
    k("s_nop 3")
    k.lab("loop")
    k("s_cmp_eq_u32 s36, 1")
    k(f"s_cbranch_scc0 {k.ref('nosync')}")
    k("s_barrier")
    k.lab("nosync")
    k("s_cmp_eq_u32 s36, 7")
    k(f"s_mov_b32 s37, {(-7*20480) & 0xffffffff:#x}")
    k("s_cselect_b32 s37, s37, 20480")
    L0 = len(k.L)
    for t in range(8):
        c, n = t & 1, (t + 1) & 1
        k("s_waitcnt lgkmcnt(0)")
        k(M1(1, c))
        G(0, 0)
        k(MPV(1, n, 1))
        if t == 7:
            k(f"v_add_u32 v{VA}, s37, v{VA}")
        rv = rdV(n, ((t + 1) % 8) * 2560)
        G(0, 1, fill=[rv])
        k(M2(1, c))
        if t == 6:
            k(f"v_add_u32 v{KA}, s37, v{KA}")
            k(f"v_add_u32 v{KB}, s37, v{KB}")
        rk = rdK(c, ((t + 2) % 8) * 2560)
        G(0, 2, fill=[rk[0], rk[1]])
        k(MPV(0, c, 0))
        G(0, 3)
        k(M1(0, n))
        G(1, 0)
        k(MPV(0, c, 1))
        G(1, 1)
        k(M2(0, n))
        G(1, 2)
        k(MPV(1, c, 0))
        G(1, 3)
    if dbg:
        body = k.L[L0:]
        def drop(l):
            l = l.strip()
            if "nods" in dbg and (l.startswith("ds_") or "exec" in l or l.startswith("s_waitcnt")): return True
            if "nomfma" in dbg and l.startswith("v_mfma"): return True
            if "nocvt" in dbg and (l.startswith("v_cvt") or l.startswith("v_mov_b32_sdwa")): return True
            if "noexp" in dbg and l.startswith("v_exp"): return True
            if "nom2" in dbg and "32x32x8" in l: return True
            if "nopv" in dbg and l.startswith(f"v_mfma_f32_32x32x16_bf16 v[{O[0]}") : return True
            if "nopv" in dbg and l.startswith(f"v_mfma_f32_32x32x16_bf16 v[{O[1]}") : return True
            return False
        k.L = k.L[:L0] + [l for l in body if not drop(l)]
    k("s_add_u32 s36, s36, 1")
    k("s_cmp_lt_u32 s36, 8")
    k(f"s_cbranch_scc1 {k.ref('loop')}")
    k("s_nop 0")
    k(MPV(1, 1, 1))
    k.stamp(3)
    k("s_waitcnt lgkmcnt(0)")
    k("s_nop 7")
    k("s_nop 3")
    L = [5, 7]
    k("v_mov_b32 v16, 0")
    for x in range(2):
        k(f"v_mov_b32 v{L[x]-1}, v{O[x]+8}")
        k(f"v_mov_b32 v{L[x]}, v{O[x]+8}")
    k("s_nop 1")
    for x in range(2):
        k(f"v_permlane32_swap_b32 v{L[x]-1}, v{L[x]}")
    for x in range(2):
        for r in range(12):
            k(f"v_fma_f32 v16, v{O[x]+r}, 0, v16")
    k(f"s_mov_b32 s40, {f2u(2.0**40):#x}")
    k(f"s_mov_b32 s41, {f2u(2.0**-40):#x}")
    k("v_cmp_eq_f32 vcc, 0, v16")
    k("v_cmp_lt_f32 s[42:43], s41, v5")
    k("v_cmp_gt_f32 s[44:45], s40, v5")
    k("v_cmp_lt_f32 s[46:47], s41, v7")
    k("v_cmp_gt_f32 s[48:49], s40, v7")
    k("s_nop 3")
    k("s_and_b64 vcc, vcc, s[42:43]")
    k("s_and_b64 vcc, vcc, s[44:45]")
    k("s_and_b64 vcc, vcc, s[46:47]")
    k("s_and_b64 vcc, vcc, s[48:49]")
    if force_slow:
        k("s_mov_b64 vcc, 0")
    k("s_cmp_eq_u64 vcc, -1")
    k(f"s_cbranch_scc0 {k.ref('slow')}")
    k.lab("fin")
    k("v_rcp_f32 v5, v5")
    k("v_rcp_f32 v7, v7")
    k("s_mul_i32 s40, s24, 5")
    k("v_lshrrev_b32 v17, 5, v0")
    k("v_add_u32 v17, s40, v17")
    k("v_lshrrev_b32 v16, 1, v17")
    k("v_lshlrev_b32 v16, 9, v16")
    k("v_and_b32 v17, 1, v17")
    k("v_lshl_add_u32 v16, v17, 3, v16")
    k("v_and_b32 v17, 31, v0")
    k("v_lshl_add_u32 v16, v17, 4, v16")
    k("s_mul_i32 s41, s25, 40960")
    k(f"s_add_u32 s41, s41, {WS_O}")
    k("s_add_u32 s42, s41, 40960")
    for x in range(2):
        for r in range(0, 12, 2):
            k(f"v_pk_mul_f32 v[{O[x]+r}:{O[x]+r+1}], v[{O[x]+r}:{O[x]+r+1}], v[{L[x]-1}:{L[x]}] op_sel:[0,1] op_sel_hi:[1,1]")
    for x in range(2):
        for j in range(6):
            k(f"v_cvt_pk_bf16_f32 v{20+6*x+j}, v{O[x]+2*j}, v{O[x]+2*j+1}")
    for x in range(2):
        k(f"buffer_store_dwordx2 v[{20+6*x}:{21+6*x}], v16, s[12:15], s{41+x} offen")
        k(f"buffer_store_dwordx2 v[{22+6*x}:{23+6*x}], v16, s[12:15], s{41+x} offen offset:512")
    k("s_mov_b64 exec, 0xffffffff")
    for x in range(2):
        k(f"buffer_store_dwordx2 v[{24+6*x}:{25+6*x}], v16, s[12:15], s{41+x} offen offset:1024")
    k("s_waitcnt vmcnt(0)")
    k.stamp(4); k.stamp_flush(6, kidx, 5, 26)
    k("s_endpgm")
    k.lab("slow")
    MX = 88
    for x in range(2):
        lane_addrs()
        k(f"v_mov_b32 v{MX}, {f2u(-3.0e38):#x}")
        for r in range(16):
            k(f"v_mov_b32 v{O[x]+r}, 0")
        k("s_mov_b32 s36, 0")
        k.lab(f"sl{x}")
        for r in rdK(0, 0) + rdV(0, 0): k(r)
        k("s_waitcnt lgkmcnt(0)")
        k(M1(x, 0))
        k("s_nop 7"); k("s_nop 1")
        k(M2(x, 0))
        k("s_nop 7"); k("s_nop 3")
        s = S[x]
        k(f"v_max3_f32 v4, v{s}, v{s+1}, v{s+2}")
        for i in range(3, 15, 2):
            k(f"v_max3_f32 v4, v4, v{s+i}, v{s+i+1}")
        k(f"v_max_f32 v4, v4, v{s+15}")
        k("v_mov_b32 v5, v4")
        k("s_nop 1")
        k("v_permlane32_swap_b32 v4, v5")
        k("s_nop 1")
        k(f"v_max3_f32 v4, v4, v5, v{MX}")
        k(f"v_sub_f32 v5, v{MX}, v4")
        k("v_exp_f32 v5, v5")
        k(f"v_mov_b32 v{MX}, v4")
        for i in range(16):
            k(f"v_sub_f32 v{s+i}, v{s+i}, v4")
        for i in range(16):
            k(f"v_exp_f32 v{s+i}, v{s+i}")
        for r in range(12):
            k(f"v_mul_f32 v{O[x]+r}, v{O[x]+r}, v5")
        for j in range(8):
            k(f"v_cvt_pk_bf16_f32 v{P+j}, v{s+2*j}, v{s+2*j+1}")
        k(f"v_add_u32 v{KA}, 2560, v{KA}")
        k(f"v_add_u32 v{KB}, 2560, v{KB}")
        k(f"v_add_u32 v{VA}, 2560, v{VA}")
        k("s_nop 4")
        k(MPV(x, 0, 0))
        k(MPV(x, 0, 1))
        k("s_nop 7"); k("s_nop 3")
        k("s_add_u32 s36, s36, 1")
        k("s_cmp_lt_u32 s36, 64")
        k(f"s_cbranch_scc1 {k.ref(f'sl{x}')}")
    for x in range(2):
        k(f"v_mov_b32 v{L[x]-1}, v{O[x]+8}")
        k(f"v_mov_b32 v{L[x]}, v{O[x]+8}")
    k("s_nop 1")
    for x in range(2):
        k(f"v_permlane32_swap_b32 v{L[x]-1}, v{L[x]}")
    k("s_nop 1")
    k(f"s_branch {k.ref('fin')}")
    return k


def gen_attn3(name, kidx=0, force_slow=False, pf=0, h=8, um=8, uh=8, pm=3, phl=0, b2=8, dbg=(), repack=False, amap=0, stream=0, fz=None):
    NWG = 256
    LDS = 163840
    TM = 64 - h
    assert TM % um == 0 and h % uh == 0 and b2 % um == 0 and um % 2 == 0 and uh % 2 == 0
    SLOT = 2688
    assert 8 * SLOT <= b2 * 2560 + 3840
    k = Kern(name, NWG, 512, LDS, vgpr=160) if fz is None else fz.k
    NS_ = " ; nosc" if (fz and fz.xl and "o" not in XSC) else ""
    KA, KB, VA = 1, 2, 3
    Q16 = [8, 28]; Q4 = [12, 14]
    K16 = [16, 20]; K4 = [24, 26]
    V = [32, 40]
    S = [48, 64]
    P = 80
    O = [96, 112]
    if fz is None:
        k(f"s_cmp_ge_u32 s2, {NWG}")
        k(f"s_cbranch_scc1 {k.ref('end')}")
        k.stamp(0)
        k.karg(6, 80)
        wave_id(k, 26)
    k("s_and_b32 s20, s2, 7")
    k("s_lshr_b32 s21, s2, 3")
    if amap:
        k("s_mov_b32 s24, s21")
    else:
        k("s_lshr_b32 s22, s21, 3")
        k("s_lshl_b32 s23, s20, 2")
        k("s_add_u32 s24, s23, s22")
    k("v_lshlrev_b32 v4, 4, v0")
    k("s_and_b32 s33, s26, 3")
    k(f"s_mul_i32 s50, s24, {163840 + KVPAD}")
    k(f"s_add_u32 s50, s50, {WS_KV}")
    if amap:
        k("s_lshl_b32 s25, s20, 3")
    else:
        k("s_and_b32 s25, s21, 7")
        k("s_lshl_b32 s25, s25, 3")
    k("s_lshl_b32 s23, s33, 1")
    k("s_add_u32 s25, s25, s23")
    k("s_lshl_b32 s27, s24, 6")
    k("s_add_u32 s27, s27, s25")
    k("s_mul_i32 s27, s27, 1280")
    k(f"s_add_u32 s27, s27, {WS_Q}")
    k("s_add_u32 s28, s27, 1280")
    def q_loads():
        k("v_and_b32 v5, 31, v0")
        k("v_lshlrev_b32 v6, 3, v5")
        for x in range(2):
            k(f"v_mov_b32 v{Q4[x]}, 0")
            k(f"v_mov_b32 v{Q4[x]+1}, 0")
        k(f"buffer_load_dwordx4 v[{Q16[0]}:{Q16[0]+3}], v4, s[12:15], s27 offen")
        k(f"buffer_load_dwordx4 v[{Q16[1]}:{Q16[1]+3}], v4, s[12:15], s28 offen")
        k("s_mov_b64 exec, 0xffffffff")
        k(f"buffer_load_dwordx2 v[{Q4[0]}:{Q4[0]+1}], v6, s[12:15], s27 offen offset:1024")
        k(f"buffer_load_dwordx2 v[{Q4[1]}:{Q4[1]+1}], v6, s[12:15], s28 offen offset:1024")
        k("s_mov_b64 exec, -1")
    def lane_addrs():
        k("v_and_b32 v5, 31, v0")
        k("v_and_b32 v6, 0x13, v5")
        k("v_and_b32 v7, 4, v5")
        k("v_lshl_or_b32 v6, v7, 1, v6")
        k("v_and_b32 v7, 8, v5")
        k("v_lshrrev_b32 v7, 1, v7")
        k("v_or_b32 v6, v6, v7")
        k("v_lshrrev_b32 v7, 5, v0")
        k(f"v_lshlrev_b32 v{KA}, 9, v7")
        k(f"v_lshl_add_u32 v{KA}, v6, 4, v{KA}")
        k(f"v_lshlrev_b32 v{KB}, 3, v6")
        k(f"v_add_u32 v{KB}, 1024, v{KB}")
        k(f"v_mul_u32_u24 v{VA}, 320, v7")
        k(f"v_lshl_add_u32 v{VA}, v5, 4, v{VA}")
        k(f"v_add_u32 v{VA}, 1280, v{VA}")
    def init_regs():
        lane_addrs()
        k("v_cmp_eq_u32 vcc, 20, v5")
        k("v_mov_b32 v7, 0x3f803f80")
        k("s_mov_b32 s34, 0x000fffff")
        k("s_mov_b32 s35, 0x000fffff")
        k(f"v_cndmask_b32 v{V[0]}, 0, v7, vcc")
        for r in range(1, 16):
            k(f"v_mov_b32 v{V[0]+r}, v{V[0]}")
        for r in range(32):
            k(f"v_mov_b32 v{O[0]+r}, 0")
        for r in range(4, 8):
            k(f"v_mov_b32 v{P+r}, 0")
    def rdK(buf, off):
        return [f"ds_read_b128 v[{K16[buf]}:{K16[buf]+3}], v{KA} offset:{off}",
                f"ds_read_b64 v[{K4[buf]}:{K4[buf]+1}], v{KB} offset:{off}"]
    def rdV(buf, off):
        return ["s_mov_b64 exec, s[34:35]",
                f"ds_read_b128 v[{V[buf]}:{V[buf]+3}], v{VA} offset:{off}",
                f"ds_read_b128 v[{V[buf]+4}:{V[buf]+7}], v{VA} offset:{off+640}",
                "s_mov_b64 exec, -1"]
    def M1(x, kb): return f"v_mfma_f32_32x32x16_bf16 v[{S[x]}:{S[x]+15}], v[{K16[kb]}:{K16[kb]+3}], v[{Q16[x]}:{Q16[x]+3}], 0"
    def M2(x, kb): return f"v_mfma_f32_32x32x8bf16_1k v[{S[x]}:{S[x]+15}], v[{K4[kb]}:{K4[kb]+1}], v[{Q4[x]}:{Q4[x]+1}], v[{S[x]}:{S[x]+15}]"
    def MPV(x, vb, f): return f"v_mfma_f32_32x32x16_bf16 v[{O[x]}:{O[x]+15}], v[{V[vb]+4*f}:{V[vb]+4*f+3}], v[{P+4*f}:{P+4*f+3}], v[{O[x]}:{O[x]+15}]"
    def G(x, g, fill=()):
        s = S[x] + 4 * g
        p = P + 2 * g
        fill = list(fill)
        ex = [f"v_exp_f32 v{s+i}, v{s+i}" for i in range(4)]
        pk = [f"v_cvt_pk_bf16_f32 v{p}, v{s}, v{s+1}", f"v_cvt_pk_bf16_f32 v{p+1}, v{s+2}, v{s+3}"]
        for i in range(4):
            k(ex[i])
            if i < len(fill) and fill[i]:
                for f in (fill[i] if isinstance(fill[i], list) else [fill[i]]):
                    k(f)
        for x_ in pk: k(x_)
    def loop(tag, T, U, bar_after, hook=None):
        NIT = T // U
        assert hook is None or NIT == 1
        for r in rdK(0, 0) + rdK(1, 2560) + rdV(0, 0): k(r)
        k("s_waitcnt lgkmcnt(4)")
        k(M1(0, 0))
        k(f"s_mov_b32 s36, {NIT}")
        if isinstance(bar_after, list):
            assert all(b % U == 0 for b in bar_after)
            k(f"s_mov_b32 s38, {sum(1 << (NIT - b // U) for b in bar_after):#x}")
        k("s_nop 7")
        k("s_nop 1")
        k(M2(0, 0))
        k("s_nop 7")
        k("s_nop 3")
        k.lab(f"loop{tag}")
        if isinstance(bar_after, list):
            k("s_bitcmp1_b32 s38, s36")
            k(f"s_cbranch_scc0 {k.ref('nosync' + tag)}")
            k("s_barrier")
            k.lab("nosync" + tag)
        elif bar_after is not None:
            k(f"s_cmp_eq_u32 s36, {NIT - bar_after // U}")
            k(f"s_cbranch_scc0 {k.ref('nosync' + tag)}")
            k("s_barrier")
            k.lab("nosync" + tag)
        k("s_cmp_eq_u32 s36, 1")
        k(f"s_cselect_b32 s37, 0, {U*2560}")
        for t in range(U):
            c, n = t & 1, (t + 1) & 1
            k("s_waitcnt lgkmcnt(0)")
            if hook: hook(t)
            k(M1(1, c))
            G(0, 0)
            k(MPV(1, n, 1))
            if t == U - 1:
                k(f"v_add_u32 v{VA}, s37, v{VA}")
            rv = rdV(n, ((t + 1) % U) * 2560)
            G(0, 1, fill=[rv])
            k(M2(1, c))
            if t == U - 2:
                k(f"v_add_u32 v{KA}, s37, v{KA}")
                k(f"v_add_u32 v{KB}, s37, v{KB}")
            rk = rdK(c, ((t + 2) % U) * 2560)
            G(0, 2, fill=[rk[0], rk[1]])
            k(MPV(0, c, 0))
            G(0, 3)
            k(M1(0, n))
            G(1, 0)
            k(MPV(0, c, 1))
            G(1, 1)
            k(M2(0, n))
            G(1, 2)
            k(MPV(1, c, 0))
            G(1, 3)
        k("s_sub_u32 s36, s36, 1")
        k("s_cmp_lg_u32 s36, 0")
        k(f"s_cbranch_scc1 {k.ref('loop' + tag)}")
        k("s_nop 0")
        k(MPV(1, 1, 1))
    def finish(role):
        keep, give = role, 1 - role
        tg = "mh"[role]
        T_ = S[0]
        k.stamp(3)
        if fz: fz.mode_issue(12, 250)
        k(f"s_lshl_b32 s40, s33, 1")
        k(f"s_add_u32 s41, s40, {role}")
        k(f"s_add_u32 s40, s40, {1 - role}")
        k(f"s_mul_i32 s41, s41, {SLOT}")
        k(f"s_mul_i32 s40, s40, {SLOT}")
        k("v_lshlrev_b32 v4, 4, v0")
        k("v_and_b32 v5, 31, v0")
        k("v_lshlrev_b32 v5, 2, v5")
        k("v_add_u32 v16, s41, v4")
        k("v_add_u32 v17, s41, v5")
        k("v_add_u32 v18, s40, v4")
        k("v_add_u32 v19, s40, v5")
        for r in range(8, 12):
            k(f"v_mov_b32 v{T_+r}, 0")
        k("s_waitcnt lgkmcnt(0)")
        k("s_nop 7" if role == 0 else "s_nop 0")
        k(f"ds_write_b128 v16, v[{O[give]}:{O[give]+3}]")
        k(f"ds_write_b128 v16, v[{O[give]+4}:{O[give]+7}] offset:1024")
        k("s_mov_b64 exec, 0xffffffff")
        k(f"ds_write_b128 v16, v[{O[give]+8}:{O[give]+11}] offset:2048")
        k("s_not_b64 exec, exec")
        k(f"ds_write_b32 v17, v{O[give]+8} offset:2560")
        k("s_mov_b64 exec, -1")
        k("s_mul_i32 s42, s24, 5")
        k("v_lshrrev_b32 v21, 5, v0")
        k("v_add_u32 v21, s42, v21")
        k("v_lshrrev_b32 v20, 1, v21")
        k("v_lshlrev_b32 v20, 9, v20")
        k("v_and_b32 v21, 1, v21")
        k("v_lshl_add_u32 v20, v21, 3, v20")
        k("v_and_b32 v21, 31, v0")
        k("v_lshl_add_u32 v20, v21, 4, v20")
        k(f"s_add_u32 s51, s25, {keep}")
        k("s_mul_i32 s51, s51, 40960")
        k(f"s_add_u32 s51, s51, {WS_O}")
        k("s_waitcnt lgkmcnt(0)")
        k("s_barrier")
        k(f"ds_read_b128 v[{T_}:{T_+3}], v18")
        k(f"ds_read_b128 v[{T_+4}:{T_+7}], v18 offset:1024")
        k("s_mov_b64 exec, 0xffffffff")
        k(f"ds_read_b128 v[{T_+8}:{T_+11}], v18 offset:2048")
        k("s_not_b64 exec, exec")
        k(f"ds_read_b32 v{T_+8}, v19 offset:2560")
        k("s_mov_b64 exec, -1")
        Ox = O[keep]
        k("s_waitcnt lgkmcnt(2)")
        for r in range(8):
            k(f"v_add_f32 v{Ox+r}, v{Ox+r}, v{T_+r}")
        k("s_waitcnt lgkmcnt(0)")
        for r in range(8, 12):
            k(f"v_add_f32 v{Ox+r}, v{Ox+r}, v{T_+r}")
        k(f"v_mov_b32 v4, v{Ox+8}")
        k(f"v_mov_b32 v5, v{Ox+8}")
        k("v_mov_b32 v16, 0")
        k("s_nop 0")
        k("v_permlane32_swap_b32 v4, v5")
        for r in range(12):
            k(f"v_fma_f32 v16, v{Ox+r}, 0, v16")
        k(f"s_mov_b32 s40, {f2u(2.0**40):#x}")
        k(f"s_mov_b32 s41, {f2u(2.0**-40):#x}")
        k("v_cmp_eq_f32 vcc, 0, v16")
        k("v_cmp_lt_f32 s[42:43], s41, v5")
        k("v_cmp_gt_f32 s[44:45], s40, v5")
        k("s_nop 3")
        k("s_and_b64 vcc, vcc, s[42:43]")
        k("s_and_b64 vcc, vcc, s[44:45]")
        if force_slow:
            k("s_mov_b64 vcc, 0")
        k("s_cmp_eq_u64 vcc, -1")
        k(f"s_cbranch_scc0 {k.ref('slow' + tg)}")
        k.lab("fin" + tg)
        k("v_rcp_f32 v5, v5")
        k("s_nop 0")
        for r in range(0, 12, 2):
            k(f"v_pk_mul_f32 v[{Ox+r}:{Ox+r+1}], v[{Ox+r}:{Ox+r+1}], v[4:5] op_sel:[0,1] op_sel_hi:[1,1]")
        for j in range(6):
            k(f"v_cvt_pk_bf16_f32 v{22+j}, v{Ox+2*j}, v{Ox+2*j+1}")
        k("buffer_store_dwordx2 v[22:23], v20, s[12:15], s51 offen" + NS_)
        k("buffer_store_dwordx2 v[24:25], v20, s[12:15], s51 offen offset:512" + NS_)
        k("s_mov_b64 exec, 0xffffffff")
        k("buffer_store_dwordx2 v[26:27], v20, s[12:15], s51 offen offset:1024" + NS_)
        k("s_waitcnt vmcnt(0)")
        if fz:
            k("s_mov_b64 exec, -1")
            k.stamp(4)
            fz.attn_done(role)
        else:
            k.stamp(4); k.stamp_flush(6, kidx, 5, 26)
            k("s_endpgm")
        k.lab("slow" + tg)
        MX = 88
        x = keep
        lane_addrs()
        k(f"v_mov_b32 v{MX}, {f2u(-3.0e38):#x}")
        for r in range(16):
            k(f"v_mov_b32 v{O[x]+r}, 0")
        k("s_mov_b32 s36, 0")
        k.lab(f"sl{tg}")
        k(f"buffer_load_dwordx4 v[{K16[0]}:{K16[0]+3}], v{KA}, s[12:15], s50 offen")
        k(f"buffer_load_dwordx2 v[{K4[0]}:{K4[0]+1}], v{KB}, s[12:15], s50 offen")
        k("s_mov_b64 exec, s[34:35]")
        k(f"buffer_load_dwordx4 v[{V[0]}:{V[0]+3}], v{VA}, s[12:15], s50 offen")
        k(f"buffer_load_dwordx4 v[{V[0]+4}:{V[0]+7}], v{VA}, s[12:15], s50 offen offset:640")
        k("s_mov_b64 exec, -1")
        k("s_waitcnt vmcnt(0)")
        k(M1(x, 0))
        k("s_nop 7"); k("s_nop 1")
        k(M2(x, 0))
        k("s_nop 7"); k("s_nop 3")
        s = S[x]
        k(f"v_max3_f32 v4, v{s}, v{s+1}, v{s+2}")
        for i in range(3, 15, 2):
            k(f"v_max3_f32 v4, v4, v{s+i}, v{s+i+1}")
        k(f"v_max_f32 v4, v4, v{s+15}")
        k("v_mov_b32 v5, v4")
        k("s_nop 1")
        k("v_permlane32_swap_b32 v4, v5")
        k("s_nop 1")
        k(f"v_max3_f32 v4, v4, v5, v{MX}")
        k(f"v_sub_f32 v5, v{MX}, v4")
        k("v_exp_f32 v5, v5")
        k(f"v_mov_b32 v{MX}, v4")
        for i in range(16):
            k(f"v_sub_f32 v{s+i}, v{s+i}, v4")
        for i in range(16):
            k(f"v_exp_f32 v{s+i}, v{s+i}")
        for r in range(12):
            k(f"v_mul_f32 v{O[x]+r}, v{O[x]+r}, v5")
        for j in range(8):
            k(f"v_cvt_pk_bf16_f32 v{P+j}, v{s+2*j}, v{s+2*j+1}")
        k(f"v_add_u32 v{KA}, 2560, v{KA}")
        k(f"v_add_u32 v{KB}, 2560, v{KB}")
        k(f"v_add_u32 v{VA}, 2560, v{VA}")
        k("s_nop 4")
        k(MPV(x, 0, 0))
        k(MPV(x, 0, 1))
        k("s_nop 7"); k("s_nop 3")
        k("s_add_u32 s36, s36, 1")
        k("s_cmp_lt_u32 s36, 64")
        k(f"s_cbranch_scc1 {k.ref(f'sl{tg}')}")
        k(f"v_mov_b32 v4, v{O[x]+8}")
        k(f"v_mov_b32 v5, v{O[x]+8}")
        k("s_nop 1")
        k("v_permlane32_swap_b32 v4, v5")
        k("s_nop 1")
        k(f"s_branch {k.ref('fin' + tg)}")
    k("s_cmp_lt_u32 s26, 4")
    k(f"s_cbranch_scc1 {k.ref('compute')}")
    if stream:
        assert um == 4
        k("s_lshl_b32 s29, s33, 12")
        k("s_waitcnt lgkmcnt(0)")
        k.srd(12, 6, 0, WS_SIZE)
        k("s_add_u32 s32, s50, s29")
        def grp(G_):
            k(f"s_add_u32 m0, s29, {G_*16384}")
            k(f"s_add_u32 s31, s32, {G_*16384}")
            for i in range(4):
                k(f"buffer_load_dwordx4 v4, s[12:15], s31 offen offset:{i*1024} lds")
        if fz: fz.mode_publish(4)
        grp(0); grp(1)
        k.stamp(1)
        k("s_waitcnt vmcnt(4)")
        k("s_barrier")
        grp(2); grp(3)
        k("s_waitcnt vmcnt(8)")
        k("s_barrier")
        grp(4); grp(5)
        k("s_waitcnt vmcnt(8)")
        k("s_barrier")
        for G_ in range(6, 10): grp(G_)
        q_loads()
        init_regs()
    else:
        k("s_mul_i32 s29, s33, 6144")
        k("s_mul_i32 s30, s33, 34816")
        k("s_add_u32 s30, s30, 24576")
        k("s_waitcnt lgkmcnt(0)")
        k.srd(12, 6, 0, WS_SIZE)
        k("s_mov_b32 m0, s29")
        k("s_add_u32 s31, s50, s29")
        for i in range(4):
            k(f"buffer_load_dwordx4 v4, s[12:15], s31 offen offset:{i*1024} lds")
        k("s_add_u32 m0, s29, 4096")
        k("s_add_u32 s31, s31, 4096")
        for i in range(2):
            k(f"buffer_load_dwordx4 v4, s[12:15], s31 offen offset:{i*1024} lds")
        k("s_add_u32 s32, s50, s30")
        def stB(g):
            k(f"s_add_u32 m0, s30, {g*4096}")
            k(f"s_add_u32 s31, s32, {g*4096}")
            for i in range(4 if g < 8 else 2):
                k(f"buffer_load_dwordx4 v4, s[12:15], s31 offen offset:{i*1024} lds")
        stB(0); stB(1)
        k.stamp(1)
        k("s_waitcnt vmcnt(8)")
        k("s_barrier")
        for g in range(2, 9):
            stB(g)
        q_loads()
        init_regs()
    k(f"v_add_u32 v{KA}, {TM*2560}, v{KA}")
    k(f"v_add_u32 v{KB}, {TM*2560}, v{KB}")
    k(f"v_add_u32 v{VA}, {TM*2560}, v{VA}")
    if repack and ERP == 1:
        repack_unit(k, 33, 48, 128, early=True)
        if fz: k("s_mov_b32 s64, s26")
    else:
        k("s_waitcnt vmcnt(0)")
    if repack and RPRIO and ERP == 2: k(f"s_setprio {RPRIO}")
    if repack and RLDS:
        assert stream == 20 and 19712 + 4*8192 <= stream*2560 + 1280 and 7*SLOT <= 19712
    if repack and ERP == 2:
        def mid():
            k("s_barrier")
            k.stamp(2)
        repack_unit(k, 33, 48, 128, mid=mid, lds=(19712 if RLDS else 0))
        if fz: k("s_mov_b32 s64, s26")
    else:
        k("s_barrier")
        k.stamp(2)
    if repack and not ERP:
        if RPRIO: k(f"s_setprio {RPRIO}")
        if RLDS:
            assert stream == 20 and 19712 + 4*8192 <= stream*2560 + 1280 and 7*SLOT <= 19712
        repack_unit(k, 33, 48, 128, lds=(19712 if RLDS else 0))
        if fz: k("s_mov_b32 s64, s26")
    if pf:
        k("s_and_b32 s40, s20, 1")
        l2_prefetch(k, PF_ATT[:pf], 40, 21, 33, 42, 128, 129)
    if fz and fz.xl and "o" in PT:
        k("s_mul_i32 s40, s24, 5")
        k("s_lshr_b32 s40, s40, 1")
        k("s_lshl_b32 s40, s40, 9")
        k("s_mul_i32 s41, s25, 40960")
        k("s_add_u32 s40, s40, s41")
        k(f"s_add_u32 s40, s40, {WS_O}")
        k("v_lshlrev_b32 v90, 7, v0")
        k(f"v_add_u32 v91, {40960 - 12*128}, v90")
        k("v_cmp_gt_u32 vcc, 12, v0")
        k("s_nop 1")
        k("v_cndmask_b32 v90, v91, v90, vcc")
        k("s_mov_b64 exec, 0xffffff")
        k("buffer_load_dword v91, v90, s[12:15], s40 offen")
        k("s_mov_b64 exec, -1")
    if fz and fz.xl and "y" in PT:
        k("s_lshr_b32 s41, s25, 1")
        k("s_mul_i32 s40, s41, 81920")
        k("s_mul_i32 s42, s24, 2560")
        k("s_add_u32 s40, s40, s42")
        k(f"s_add_u32 s40, s40, {WS_X1}")
        k("v_lshlrev_b32 v92, 7, v0")
        k("s_mov_b64 exec, 0xfffff")
        k("buffer_load_dword v93, v92, s[12:15], s40 offen")
        k("s_lshr_b32 s40, s24, 1")
        k("s_lshl_b32 s40, s40, 14")
        k("s_lshl_b32 s41, s41, 9")
        k("s_add_u32 s40, s40, s41")
        k("s_and_b32 s41, s24, 1")
        k("s_lshl_b32 s41, s41, 8")
        k("s_add_u32 s40, s40, s41")
        k(f"s_add_u32 s40, s40, {WS_ST1}")
        k("s_mov_b64 exec, 3")
        k("buffer_load_dword v94, v92, s[12:15], s40 offen")
        k("s_mov_b64 exec, -1")
    if phl != 0 or (repack and RPRIO): k(f"s_setprio {phl}")
    if HST: k.stamp(1)
    if fz and repack:
        def hook(t):
            if t == WFT[0]:
                fz.wflag_set(33, 128, younger=((("o" in PT) + 2 * ("y" in PT)) if (WFY and fz.xl) else 0))
                if HST: k.stamp(0)
            if t == WFT[1]: fz.wflag_issue(128)
        loop("h", h, uh, None, hook)
        fz.wflag_wait(128)
    else:
        loop("h", h, uh, None)
    finish(1)
    if fz is None:
        k.lab("end")
        k("s_endpgm")
    k.lab("compute")
    if pm != 0: k(f"s_setprio {pm}")
    k("s_waitcnt lgkmcnt(0)")
    k.srd(12, 6, 0, WS_SIZE)
    q_loads()
    init_regs()
    k.stamp(1)
    k("s_waitcnt vmcnt(0)")
    k("s_barrier")
    k.stamp(2)
    loop("m", TM, um, [4, 8, stream] if stream else b2)
    finish(0)
    return k
```

```python
from dsl import *
import struct
def f2u(x):
    return struct.unpack("<I", struct.pack("<f", x))[0]

KB = 1024
WS_WQ = 0
WS_W1 = 3 * MB
WS_WO = 5 * MB
WS_W2 = 6 * MB
WS_CSQ = 8 * MB
WS_CS1 = 8 * MB + 128 * KB
WS_ST0 = 8 * MB + 256 * KB
WS_ST1 = 8 * MB + 512 * KB
WS_X0 = 9 * MB
WS_X1 = 12 * MB
WS_X2 = 15 * MB
WS_O = 18 * MB
WS_Q = 21 * MB
WS_KV = 24 * MB
WS_H = 30 * MB
X_BYTES = 2048 * 640 * 2
H_BYTES = 2048 * 1536 * 2
ST_BYTES = 16 * 2048 * 8
Q_BYTES = 32 * 64 * 1280
KV_BYTES = 32 * 64 * 2560
WS_SIZE = 40 * MB
QSCALE = (20 ** -0.5) * 1.4426950408889634
KVPAD = 0
LINST = 0
QST = 0
QEXP = 0
QLATE = 3
Q0T = ""; Q0L = 0; HST = 0; HHI = 0; HPRI = 0; HPRO = 0; WFY = 0; RLDS = 0; RPRIO = 0; WFT = (2, 6)
ERP = 0
NCSP = 10

def wave_id(k, sreg, vtmp=1):
    k(f"v_lshrrev_b32 v{vtmp}, 6, v0")
    k("s_nop 0")
    k(f"v_readfirstlane_b32 s{sreg}, v{vtmp}")
    k("v_and_b32 v0, 63, v0")

def gen_prep(dbg=()):
    NWG = 220
    k = Kern("prep_kernel", NWG, 512, 4 * 8192, vgpr=64)
    k(f"s_cmp_ge_u32 s2, {NWG}")
    k(f"s_cbranch_scc1 {k.ref('end')}")
    k.karg(4, 0)
    k.karg(6, 8)
    k.karg(8, 16)
    k.karg(10, 32)
    k.karg(12, 48)
    k.karg(14, 80)
    wave_id(k, 26)
    k("s_waitcnt lgkmcnt(0)")
    k.srd(16, 14, 0, WS_SIZE)
    k("s_cmp_ge_u32 s26, 4")
    k(f"s_cbranch_scc1 {k.ref('stats')}")
    if "now" in dbg: k(f"s_branch {k.ref('end')}")
    k("s_lshl_b32 s3, s2, 2")
    k("s_add_u32 s3, s3, s26")
    def setup(lbl, lo, ncg, ptr, size, pitch, TN, K, dst, cs, csp):
        k.lab(lbl)
        k(f"s_sub_u32 s3, s3, {lo}")
        k.srd(20, ptr, 0, size)
        k(f"s_mov_b32 s27, {pitch}")
        k(f"s_mov_b32 s28, {(65536 + TN - 1)//TN}")
        k(f"s_mov_b32 s29, {TN}")
        k(f"s_mov_b32 s30, {K//8*TN*16}")
        k(f"s_mov_b32 s31, {dst}")
        k(f"s_mul_i32 s32, s3, {(65536 + ncg - 1)//ncg}")
        k("s_lshr_b32 s32, s32, 16")
        k(f"s_mul_i32 s33, s32, {ncg}")
        k("s_sub_u32 s33, s3, s33")
        k(f"s_mov_b32 s34, {cs if cs is not None else 0xffffffff:#x}")
        k(f"s_mov_b32 s35, {csp}")
        k(f"s_branch {k.ref('go')}")
    k("s_cmp_ge_u32 s3, 640"); k(f"s_cbranch_scc1 {k.ref('m_w2')}")
    k("s_cmp_ge_u32 s3, 540"); k(f"s_cbranch_scc1 {k.ref('m_wo')}")
    k("s_cmp_ge_u32 s3, 300"); k(f"s_cbranch_scc1 {k.ref('m_w1')}")
    setup("m_wq", 0, 30, 6, 640 * 3840, 3840, 128, 640, WS_WQ, WS_CSQ, 1920 * 4)
    setup("m_w1", 300, 24, 10, 640 * 3072, 3072, 96, 640, WS_W1, WS_CS1, 1536 * 4)
    setup("m_wo", 540, 10, 8, 640 * 1280, 1280, 80, 640, WS_WO, None, 0)
    setup("m_w2", 640, 10, 12, 1536 * 1280, 1280, 80, 1536, WS_W2, None, 0)
    k.lab("go")
    k("v_lshrrev_b32 v2, 3, v0")
    k("v_mul_lo_u32 v2, v2, s27")
    k("v_and_b32 v3, 7, v0")
    k("v_lshl_add_u32 v2, v3, 4, v2")
    k("s_lshl_b32 s36, s32, 6")
    k("s_mul_i32 s36, s36, s27")
    k("s_lshl_b32 s37, s33, 7")
    k("s_add_u32 s36, s36, s37")
    k("s_lshl_b32 s38, s27, 3")
    k("s_lshl_b32 s39, s26, 13")
    for j in range(8):
        k(f"s_add_u32 m0, s39, {j*1024}")
        k("s_nop 0")
        k("buffer_load_dwordx4 v2, s[20:23], s36 offen lds")
        if j < 7:
            k("s_add_u32 s36, s36, s38")
    k("s_lshl_b32 s40, s33, 6")
    k("v_add_u32 v4, s40, v0")
    k("v_mul_lo_u32 v5, v4, s28")
    k("v_lshrrev_b32 v5, 16, v5")
    k("v_mul_lo_u32 v6, v5, s29")
    k("v_sub_u32 v6, v4, v6")
    k("v_mul_lo_u32 v5, v5, s30")
    k("v_lshl_add_u32 v5, v6, 4, v5")
    k("s_lshl_b32 s41, s29, 4")
    k("s_lshl_b32 s42, s32, 3")
    k("s_mul_i32 s42, s42, s41")
    k("s_add_u32 s42, s42, s31")
    k("v_bfe_u32 v7, v0, 2, 2")
    k("v_lshlrev_b32 v7, 7, v7")
    k("v_lshrrev_b32 v8, 4, v0")
    k("v_lshl_add_u32 v7, v8, 5, v7")
    k("v_and_b32 v8, 3, v0")
    k("v_lshl_add_u32 v7, v8, 3, v7")
    k("v_add_u32 v7, s39, v7")
    k("v_mov_b32 v10, 0")
    for ku in range(8):
        k(f"s_waitcnt vmcnt({7-ku if ku == 0 else 7})") if False else None
    for ku in range(8):
        k("s_waitcnt vmcnt(7)")
        r = 16 + 4 * ku
        k(f"ds_read_b64_tr_b16 v[{r}:{r+1}], v7 offset:{ku*1024}")
        k(f"ds_read_b64_tr_b16 v[{r+2}:{r+3}], v7 offset:{ku*1024+512}")
        k("s_waitcnt lgkmcnt(0)")
        k(f"buffer_store_dwordx4 v[{r}:{r+3}], v5, s[16:19], s42 offen")
        if ku < 7:
            k("s_add_u32 s42, s42, s41")
    k("s_cmp_eq_u32 s34, 0xffffffff")
    k(f"s_cbranch_scc1 {k.ref('fin')}")
    for i in range(32):
        r = 16 + i
        k(f"v_lshlrev_b32 v8, 16, v{r}")
        k(f"v_and_b32 v9, 0xffff0000, v{r}")
        k("v_add_f32 v10, v10, v8")
        k("v_add_f32 v10, v10, v9")
    k("s_mul_i32 s43, s32, s35")
    k("s_add_u32 s43, s43, s34")
    k("v_lshlrev_b32 v4, 2, v4")
    k("buffer_store_dword v10, v4, s[16:19], s43 offen")
    k.lab("fin")
    k("s_waitcnt vmcnt(0)")
    k("s_endpgm")
    k.lab("stats")
    if "nox" in dbg: k(f"s_branch {k.ref('end')}")
    k("s_cmp_ge_u32 s2, 128")
    k(f"s_cbranch_scc1 {k.ref('end')}")
    k.srd(20, 4, 0, X_BYTES)
    k("s_sub_u32 s26, s26, 4")
    k("s_lshl_b32 s3, s2, 4")
    k("s_lshl_b32 s27, s26, 2")
    k("s_add_u32 s3, s3, s27")
    k("v_lshrrev_b32 v1, 4, v0")
    k("v_add_u32 v1, s3, v1")
    k("v_and_b32 v2, 15, v0")
    k("v_mul_u32_u24 v3, 1280, v1")
    k("v_lshl_add_u32 v3, v2, 4, v3")
    for i in range(5):
        k(f"buffer_load_dwordx4 v[{8+4*i}:{11+4*i}], v3, s[20:23], 0 offen offset:{256*i}")
    k("v_lshrrev_b32 v30, 5, v1")
    k("v_mul_u32_u24 v30, 40960, v30")
    k("v_and_b32 v31, 31, v1")
    k("v_lshl_add_u32 v30, v31, 4, v30")
    k("v_lshl_add_u32 v30, v2, 9, v30")
    k("v_mov_b32 v4, 0")
    k("v_mov_b32 v5, 0")
    for i in range(5):
        k(f"s_waitcnt vmcnt(4)")
        k(f"s_mov_b32 s28, {WS_X0 + i*8192}")
        k(f"buffer_store_dwordx4 v[{8+4*i}:{11+4*i}], v30, s[16:19], s28 offen")
        for j in range(4):
            r = 8 + 4 * i + j
            k(f"v_lshlrev_b32 v6, 16, v{r}")
            k(f"v_and_b32 v7, 0xffff0000, v{r}")
            k("v_add_f32 v4, v4, v6")
            k("v_fmac_f32 v5, v6, v6")
            k("v_add_f32 v4, v4, v7")
            k("v_fmac_f32 v5, v7, v7")
    for sh in (8, 4, 2, 1):
        k("s_nop 1")
        k(f"v_add_f32_dpp v4, v4, v4 row_ror:{sh} row_mask:0xf bank_mask:0xf")
        k(f"v_add_f32_dpp v5, v5, v5 row_ror:{sh} row_mask:0xf bank_mask:0xf")
    k("v_lshlrev_b32 v3, 3, v1")
    k("v_cmp_eq_u32 vcc, 0, v2")
    k("s_and_saveexec_b64 s[30:31], vcc")
    k(f"s_mov_b32 s28, {WS_ST0}")
    k("buffer_store_dwordx2 v[4:5], v3, s[16:19], s28 offen")
    k("s_waitcnt vmcnt(0)")
    k.lab("end")
    k("s_endpgm")
    return k

def ring_loader(k, NCH, NSLOT, dma, nD, pre_b0=None, post_b0=None, first=2, pre_issue=None, fz=None, tail=None):
    if pre_issue:
        w = pre_issue()
    else:
        for c_ in range(first):
            dma(c_)
        w = nD*(first-1)
    k(f"s_waitcnt vmcnt({w})")
    if pre_b0: pre_b0()
    k("s_barrier")
    issued = first
    if post_b0: post_b0()
    ring_tail(k, NCH, NSLOT, dma, nD, issued, fz, tail)

def ring_tail(k, NCH, NSLOT, dma, nD, issued, fz=None, tail=None):
    npf = 0
    for i in range(1, NCH):
        while issued < NCH and issued <= i - 2 + NSLOT:
            dma(issued); issued += 1
            if issued == NCH and fz:
                npf = fz.prefetch_w()
                if fz.tail: npf += fz.tail()
            if issued == NCH and tail: npf = tail()
        k(f"s_waitcnt vmcnt({(issued - 1 - i) * nD + npf})")
        k("s_barrier")


WS_FLAG = 8 * MB + 768 * KB
NFLAGSET = 8
WSET = 12
LDS_CNT = 147456
POLL_MAX = 0x4000
class Fuse:
    def __init__(self, name, nph, kidx0, xl=False, modeset=None, force_slow=False, sleep=1, xplain=False, attn_first=False):
        self.attn_first = attn_first
        self.k = Kern(name, 256, 512, 163840 if attn_first else LDS_CNT + 256, vgpr=256)
        self.k.fused = True
        self.nph, self.kidx0, self.p = nph, kidx0, -1
        self.xl, self.modeset, self.force_slow, self.sleep = xl, modeset, force_slow, sleep
        self.xplain = xplain and xl
    def begin(self, wait=None, sig=None, rot=0, pfw=None):
        self.p += 1
        self.wait, self.sig, self.rot, self.pfw = wait, sig, rot, pfw
        self.tail = None
        k = self.k
        if self.p == 0:
            k.pfx = ""
            k("s_cmp_ge_u32 s2, 256")
            k(f"s_cbranch_scc1 {k.ref('fin')}")
            k.karg(6, 80)
            wave_id(k, 64)
            if not self.attn_first:
                k(f"v_mov_b32 v1, {LDS_CNT}")
                k("v_mov_b32 v2, 0")
                k("ds_write_b32 v1, v2")
        k.pfx = f"p{self.p}_"
        k.lab("entry")
        k.stamp(0)
        k("s_mov_b32 s26, s64")
    @property
    def last(self): return self.p == self.nph - 1
    def nxt(self): return f"{self.k.name}_p{self.p+1}_entry"
    def leave(self):
        k = self.k
        k.stamp_save(self.p)
        if self.last:
            k.stamp_flush_all(6, self.kidx0, self.nph, 64)
            k("s_endpgm")
        else:
            k(f"s_branch {self.nxt()}")
    def skip_to_end(self):
        assert self.last
        self.k(f"s_cbranch_scc1 {self.k.name}_skip")
    def close(self):
        k = self.k
        k.pfx = ""
        k.lab("skip")
        k.stamp_flush_all(6, self.kidx0, self.nph, 64)
        k.lab("fin")
        k("s_endpgm")
        return k
    def mode_word(self, d):
        k = self.k
        k(f"s_and_b32 s{d}, s2, 7")
        k(f"s_lshl_b32 s{d}, s{d}, 7")
        k(f"s_add_u32 s{d}, s{d}, {WS_FLAG + self.modeset*4096}")
    def mode_token(self, d, t):
        k = self.k
        k(f"s_getreg_b32 s{t}, hwreg(HW_REG_XCC_ID, 0, 4)")
        k(f"s_mul_i32 s{d}, s{t}, s{t}")
        k(f"s_lshl_b32 s{d}, s{d}, 16")
        k(f"s_lshl_b32 s{t}, s{t}, 6")
        k(f"s_add_u32 s{d}, s{d}, s{t}")
        k(f"s_add_u32 s{d}, s{d}, 1")
    def mode_publish(self, w0=0):
        if not (self.xl and self.p == 0): return
        k = self.k
        k(f"s_cmp_lg_u32 s26, {w0}")
        k(f"s_cbranch_scc1 {k.ref('nopub')}")
        self.mode_token(65, 66)
        self.mode_word(66)
        k("s_mov_b64 exec, 1")
        k("v_mov_b32 v10, s65")
        k("buffer_atomic_add v10, off, s[12:15], s66 sc1")
        k("s_mov_b64 exec, -1")
        k.lab("nopub")
    def mode_issue(self, srd, vd):
        k = self.k
        self.mode_word(62)
        k(f"buffer_load_dword v{vd}, off, s[{srd}:{srd+3}], s62 sc1")
    def mode_resolve(self, srd, vd):
        k = self.k
        l0, l1 = k.newlab("mpoll"), k.newlab("mpolled")
        self.mode_word(62)
        k(f"s_mov_b32 s65, {POLL_MAX}")
        k.lab(l0)
        k(f"v_readfirstlane_b32 s67, v{vd}")
        k("s_and_b32 s66, s67, 63")
        k("s_cmp_eq_u32 s66, 32")
        k(f"s_cbranch_scc1 {k.ref(l1)}")
        k("s_sleep 2")
        k(f"buffer_load_dword v{vd}, off, s[{srd}:{srd+3}], s62 sc1")
        k("s_waitcnt vmcnt(0)")
        k("s_sub_u32 s65, s65, 1")
        k(f"s_cbranch_scc0 {k.ref(l0)}")
        k.lab(l1)
        self.mode_token(65, 66)
        k("s_lshl_b32 s65, s65, 5")
        k("s_cmp_lg_u32 s65, s67")
        k("s_cselect_b32 s63, 1, 0")
        if self.force_slow: k("s_mov_b32 s63, 1")
    def prefetch_w(self):
        if not self.pfw: return 0
        k = self.k
        base, nb = self.pfw
        per_w = nb // 128
        lines = (per_w + 127) // 128
        k("s_lshr_b32 s65, s2, 3")
        k("s_lshl_b32 s65, s65, 2")
        k("s_add_u32 s65, s65, s26")
        k(f"s_mul_i32 s65, s65, {per_w}")
        k(f"s_add_u32 s65, s65, {base}")
        k("v_lshlrev_b32 v12, 7, v0")
        n = 0
        done = 0
        while done < lines:
            n_ = min(64, lines - done)
            if n_ < 64: k(f"s_mov_b64 exec, {(1 << n_) - 1:#x}") if n_ <= 32 else (k(f"s_mov_b32 exec_hi, {((1 << n_) - 1) >> 32:#x}"))
            k(f"buffer_load_dword v{13+n}, v12, s[12:15], s65 offen")
            if n_ < 64: k("s_mov_b64 exec, -1")
            done += n_; n += 1
            if done < lines: k(f"s_add_u32 s65, s65, {64*128}")
        return n
    def poll(self, line, nprod):
        k = self.k
        if self.xl and self.p == 1 and not self.attn_first:
            k(f"s_mov_b32 s61, s{line}")
            self.mode_issue(12, 11)
            k("s_waitcnt vmcnt(0)")
            self.mode_resolve(12, 11)
            line = 61
        k(f"s_lshl_b32 s66, s{line}, 7")
        k(f"s_add_u32 s66, s66, {WS_FLAG + self.wait*4096}")
        k("v_lshlrev_b32 v10, 2, v0")
        k(f"s_mov_b64 exec, {(1 << nprod) - 1:#x}")
        k(f"s_mov_b32 s65, {POLL_MAX}")
        k.lab("poll")
        k("buffer_load_dword v11, v10, s[12:15], s66 offen sc1")
        k("s_waitcnt vmcnt(0)")
        k("v_cmp_ne_u32 vcc, 0, v11")
        k(f"s_cmp_eq_u32 vcc_lo, {(1 << nprod) - 1:#x}")
        k(f"s_cbranch_scc1 {k.ref('polled')}")
        k(f"s_sleep {self.sleep}")
        k("s_sub_u32 s65, s65, 1")
        k(f"s_cbranch_scc0 {k.ref('poll')}")
        k.lab("polled")
        k("s_mov_b64 exec, -1")
        if self.xl:
            k("s_cmp_eq_u32 s63, 0")
            k(f"s_cbranch_scc1 {k.ref('noacq')}")
            k("buffer_inv sc1")
            k("s_waitcnt vmcnt(0)")
            k.lab("noacq")
        k.stamp(3)
    def signal(self):
        k = self.k
        l = k.newlab("nosig")
        k("s_mov_b64 exec, 1")
        k(f"v_mov_b32 v1, {LDS_CNT}")
        k("v_mov_b32 v2, 1")
        k("ds_add_rtn_u32 v3, v1, v2")
        k("s_lshl_b32 s37, s24, 7")
        k("s_lshl_b32 s38, s25, 2")
        k("s_add_u32 s37, s37, s38")
        k(f"s_add_u32 s37, s37, {WS_FLAG + self.sig*4096}")
        k("s_waitcnt lgkmcnt(0)")
        k("v_readfirstlane_b32 s38, v3")
        k("s_and_b32 s38, s38, 3")
        k("s_cmp_eq_u32 s38, 3")
        k(f"s_cbranch_scc0 {k.ref(l)}")
        if self.xl:
            l2 = k.newlab("fastsig")
            k("s_cmp_eq_u32 s63, 0")
            k(f"s_cbranch_scc1 {k.ref(l2)}")
            k("buffer_wbl2 sc1")
            k("s_waitcnt vmcnt(0)")
            k("buffer_store_dword v2, off, s[48:51], s37 sc1")
            k(f"s_branch {k.ref(l)}")
            k.lab(l2)
            k("buffer_store_dword v2, off, s[48:51], s37 ; nosc")
        else:
            k("buffer_store_dword v2, off, s[48:51], s37 sc1")
        k.lab(l)
        k("s_mov_b64 exec, -1")

    def attn_done(self, role):
        k = self.k
        self.mode_resolve(12, 250)
        l, l2 = k.newlab("asig"), k.newlab("afast")
        k(f"s_add_u32 s37, s25, {role}")
        k("s_lshl_b32 s37, s37, 7")
        k("s_lshl_b32 s38, s24, 2")
        k("s_add_u32 s37, s37, s38")
        k(f"s_add_u32 s37, s37, {WS_FLAG + self.sig*4096}")
        k("s_mov_b64 exec, 1")
        k("v_mov_b32 v2, 1")
        k("s_cmp_eq_u32 s63, 0")
        k(f"s_cbranch_scc1 {k.ref(l2)}")
        k("buffer_wbl2 sc1")
        k("s_waitcnt vmcnt(0)")
        k("buffer_store_dword v2, off, s[12:15], s37 sc1")
        k(f"s_branch {k.ref(l)}")
        k.lab(l2)
        k("buffer_store_dword v2, off, s[12:15], s37 ; nosc")
        k.lab(l)
        if role == 0:
            k(f"v_mov_b32 v1, {LDS_CNT}")
            k("v_mov_b32 v2, 0")
            k("ds_write_b32 v1, v2")
            k("s_waitcnt lgkmcnt(0)")
        k("s_mov_b64 exec, -1")
        k("s_setprio 0")
        self.leave()
    def wflag_set(self, lw, v, younger=0):
        k = self.k
        k(f"s_waitcnt vmcnt({younger})")
        k("s_lshl_b32 s52, s2, 2")
        k(f"s_add_u32 s52, s52, s{lw}")
        k("s_lshl_b32 s52, s52, 2")
        k(f"s_add_u32 s52, s52, {WS_FLAG + WSET*4096}")
        k("s_mov_b64 exec, 1")
        k(f"v_mov_b32 v{v}, 1")
        k(f"buffer_store_dword v{v}, off, s[12:15], s52 sc1")
        k("s_mov_b64 exec, -1")
    def wflag_issue(self, v):
        k = self.k
        k(f"v_lshlrev_b32 v{v+16}, 4, v0")
        k(f"s_mov_b32 s52, {WS_FLAG + WSET*4096}")
        for i in range(4):
            k(f"buffer_load_dwordx4 v[{v+4*i}:{v+4*i+3}], v{v+16}, s[12:15], s52 offen offset:{i*1024} sc1")
    def wflag_wait(self, v):
        k = self.k
        l0, l1 = k.newlab("wpoll"), k.newlab("wready")
        k(f"s_mov_b32 s53, {POLL_MAX}")
        k.lab(l0)
        k("s_waitcnt vmcnt(0)")
        for i in range(1, 16):
            k(f"v_and_b32 v{v}, v{v}, v{v+i}")
        k(f"v_cmp_ne_u32 vcc, 0, v{v}")
        k("s_nop 1")
        k("s_cmp_eq_u64 vcc, -1")
        k(f"s_cbranch_scc1 {k.ref(l1)}")
        k("s_sleep 4")
        self.wflag_issue(v)
        k("s_sub_u32 s53, s53, 1")
        k(f"s_cbranch_scc0 {k.ref(l0)}")
        k.lab(l1)

def fin_compute(k, fz, kidx):
    k.stamp(4)
    if fz is None:
        k.stamp_flush(6, kidx, 5, 26)
        k("s_endpgm")
    else:
        if fz.xl and fz.p == 0: fz.mode_resolve(48, 250)
        if fz.sig is not None: fz.signal()
        fz.leave()

def fin_loader(k, fz, kidx):
    k.stamp(4)
    if fz is None:
        k("s_add_u32 s26, s26, 4")
        k.stamp_flush(6, kidx, 5, 26)
        k.lab("end")
        k("s_endpgm")
    else:
        fz.leave()


PFS = 128
CW = 0
XSC = ""
PT = ""
OUTP = 0
CWN = 2
class TilePF:
    def __init__(self, k, pfd, first, NCH, va, vs, vd, srd):
        self.k, self.pfd, self.first, self.NCH, self.va, self.vs, self.vd, self.srd = k, pfd, first, NCH, va, vs, vd, srd
        self.next = first
    def one(self):
        k = self.k
        k(f"buffer_load_dword v{self.vd}, v{self.va}, s[{self.srd}:{self.srd+3}], 0 offen")
        self.next += 1
        if self.next < self.NCH:
            k(f"v_add_u32 v{self.va}, v{self.vs}, v{self.va}")
    def start(self):
        self.next = self.first
        while self.next < self.NCH and self.next <= self.pfd:
            self.one()
    def at_barrier(self):
        if self.pfd and self.next < self.NCH:
            self.one()

def gen_gemmA(name, kind, layer, kidx=0, dbg=(), first=2, pfd=0, fz=None):
    if kind == "qkv":
        NWG, NB, TB, TN = 240, 2, 2, 128
        WS_W, XSRC, ST, NPART, CSP, NCOL = WS_WQ, (WS_X0 if layer == 0 else WS_X2), WS_ST0, (1 if layer == 0 else 16), WS_CSQ, 1920
    else:
        NWG, NB, TB, TN = 256, 3, 1, 96
        WS_W, XSRC, ST, NPART, CSP, NCOL = WS_W1, WS_X1, WS_ST1, 16, WS_CS1, 1536
    WB = TN * 128
    SLOT = WB + 16384
    NSLOT = 4
    NCH = 10
    STATS = NSLOT * SLOT
    LDS = STATS + 2048
    rot = fz.rot if fz else 0
    HO = bool(fz and fz.wait is not None)
    XS = " sc1" if (HO and not fz.xplain) else ""
    if fz is None:
        k = Kern(name, NWG, 512, LDS, vgpr=256)
        k(f"s_cmp_ge_u32 s2, {NWG}")
        k(f"s_cbranch_scc1 {k.ref('end')}")
        k.stamp(0)
        k.karg(6, 80)
        if kind == "w1":
            k.karg(8, 40)
        wave_id(k, 26)
    else:
        k = fz.k
        if NWG < 256:
            k(f"s_cmp_ge_u32 s2, {NWG}")
            fz.skip_to_end()
        if kind == "w1":
            k.karg(8, 40)
    k("s_and_b32 s20, s2, 7")
    k("s_lshr_b32 s21, s2, 3")
    if fz and fz.xl:
        k("s_and_b32 s22, s21, 1")
        k("s_lshl_b32 s23, s20, 1")
        k("s_add_u32 s24, s23, s22")
        k("s_lshr_b32 s25, s21, 1")
    else:
        if kind == "qkv":
            k("s_and_b32 s22, s20, 1")
            k("s_mul_i32 s22, s22, 30")
            k("s_add_u32 s22, s22, s21")
            k("s_lshr_b32 s25, s22, 2")
            k("s_and_b32 s22, s22, 3")
        else:
            k("s_and_b32 s22, s20, 1")
            k("s_lshl_b32 s22, s22, 3")
            k("s_lshr_b32 s23, s21, 2")
            k("s_add_u32 s25, s22, s23")
            k("s_and_b32 s22, s21, 3")
        k("s_lshr_b32 s23, s20, 1")
        k("s_lshl_b32 s23, s23, 2")
        k("s_add_u32 s24, s23, s22")
    k("s_cmp_lt_u32 s26, 4")
    k(f"s_cbranch_scc1 {k.ref('compute')}")

    k("s_sub_u32 s26, s26, 4")
    k("v_lshlrev_b32 v1, 4, v0")
    nW = WB // 4096
    k(f"s_mul_i32 s40, s25, {80*TN*16}")
    k(f"s_mul_i32 s41, s26, {nW*1024}")
    k("s_add_u32 s40, s40, s41")
    k(f"s_add_u32 s40, s40, {WS_W}")
    k("s_mov_b32 s42, s41")
    k("s_lshl_b32 s43, s24, 2")
    k("s_add_u32 s43, s43, s26")
    k("s_mul_i32 s43, s43, 40960")
    k(f"s_add_u32 s43, s43, {XSRC}")
    k("s_lshl_b32 s44, s26, 12")
    k(f"s_add_u32 s44, s44, {WB}")
    k("s_waitcnt lgkmcnt(0)")
    k.srd(12, 6, 0, WS_SIZE)
    def dma(ch, parts="wx"):
        if "nodma" in dbg: return
        slot = (ch + rot) % NSLOT
        if "w" in parts:
            k(f"s_add_u32 m0, s42, {slot*SLOT}")
            k(f"s_add_u32 s45, s40, {ch*WB}")
            for i in range(nW):
                k(f"buffer_load_dwordx4 v1, s[12:15], s45 offen offset:{i*1024} lds")
        if "x" in parts:
            k(f"s_add_u32 m0, s44, {slot*SLOT}")
            k(f"s_add_u32 s45, s43, {ch*4096}")
            for i in range(4):
                k(f"buffer_load_dwordx4 v1, s[12:15], s45 offen offset:{i*1024}{XS} lds")
    nD = nW + 4
    k.stamp(1)
    early = HO
    def stats_loads():
        k("s_lshl_b32 s46, s24, 7")
        k("s_lshl_b32 s47, s26, 5")
        k("s_add_u32 s46, s46, s47")
        k("v_add_u32 v4, s46, v2")
        k("v_lshlrev_b32 v4, 3, v4")
        if NPART == 16:
            k("v_lshl_add_u32 v4, v3, 17, v4")
            for p in range(8):
                k(f"s_mov_b32 s47, {ST + p*16384}")
                k(f"buffer_load_dwordx2 v[{16+2*p}:{17+2*p}], v4, s[12:15], s47 offen{XS}")
        else:
            k(f"s_mov_b32 s47, {ST}")
            k(f"buffer_load_dwordx2 v[16:17], v4, s[12:15], s47 offen{XS}")
    def cs_loads():
        k("s_lshl_b32 s47, s26, 5")
        k("v_add_u32 v5, s47, v2")
        k(f"s_mul_i32 s47, s25, {TN}")
        k("v_add_u32 v6, s47, v5")
        k("v_lshlrev_b32 v7, 2, v6")
        k(f"v_mul_u32_u24 v8, {5*NCOL*4}, v3")
        k("v_add_u32 v7, v7, v8")
        for p in range(5):
            k(f"s_mov_b32 s47, {CSP + p*NCOL*4}")
            k(f"buffer_load_dword v{32+p}, v7, s[12:15], s47 offen")
        if kind == "w1":
            k.srd(16, 8, 0, 1536 * 2)
            k("v_lshlrev_b32 v9, 1, v6")
            k("buffer_load_ushort v38, v9, s[16:19], 0 offen")
    if early:
        for c_ in range(first):
            dma(c_, "w")
        k("v_and_b32 v2, 31, v0")
        k("v_lshrrev_b32 v3, 5, v0")
        cs_loads()
        k("s_lshr_b32 s67, s26, 1")
        k("s_lshl_b32 s46, s24, 1")
        k("s_add_u32 s67, s67, s46")
        fz.poll(67, 8)
        dma(0, "x")
        stats_loads()
        for c_ in range(1, first):
            dma(c_, "x")
        k(f"s_waitcnt vmcnt({4*(first-1)})")
    else:
        dma(0)
        k("v_and_b32 v2, 31, v0")
        k("v_lshrrev_b32 v3, 5, v0")
        stats_loads()
        cs_loads()
        for c_ in range(1, first):
            dma(c_)
        k(f"s_waitcnt vmcnt({nD*(first-1)})")
    k.stamp(2)
    k("s_barrier")
    if NPART == 16:
        for p in range(1, 8):
            k(f"v_add_f32 v16, v16, v{16+2*p}")
            k(f"v_add_f32 v17, v17, v{17+2*p}")
        k("v_mov_b32 v18, v16")
        k("v_mov_b32 v19, v17")
        k("s_nop 1")
        k("v_permlane32_swap_b32 v16, v18")
        k("v_permlane32_swap_b32 v17, v19")
        k("s_nop 1")
        k("v_add_f32 v16, v16, v18")
        k("v_add_f32 v17, v17, v19")
    k(f"v_mul_f32 v16, {f2u(1/640):#x}, v16")
    k(f"v_mul_f32 v17, {f2u(1/640):#x}, v17")
    k("v_fma_f32 v17, -v16, v16, v17")
    k("v_max_f32 v17, 0, v17")
    k(f"v_add_f32 v18, {f2u(1e-5):#x}, v17")
    k("v_rsq_f32 v18, v18")
    if kind == "w1":
        k("s_nop 0")
        k("v_mul_f32 v19, v18, v18")
        k("v_mul_f32 v19, v19, v17")
        k(f"v_add_f32 v19, {f2u(1e-5):#x}, v19")
        k("v_rsq_f32 v19, v19")
        k("s_nop 0")
        k("v_mul_f32 v18, v18, v19")
    else:
        k("s_cmp_lt_u32 s25, 5")
        k(f"s_cselect_b32 s46, {f2u(QSCALE):#x}, 1.0")
        k("v_mul_f32 v18, s46, v18")
    k("s_nop 0")
    k("v_mul_f32 v19, v18, v16")
    for p in range(1, 5):
        k(f"v_add_f32 v32, v32, v{32+p}")
    k("v_mov_b32 v33, v32")
    k("s_nop 1")
    k("v_permlane32_swap_b32 v32, v33")
    k("s_nop 1")
    k("v_add_f32 v32, v32, v33")
    k("v_cmp_eq_u32 vcc, 0, v3")
    k("s_lshl_b32 s47, s26, 7")
    k("v_lshlrev_b32 v2, 2, v2")
    k("v_add_u32 v2, s47, v2")
    k(f"v_add_u32 v2, {STATS}, v2")
    k("v_lshl_add_u32 v2, v3, 9, v2")
    k("v_cndmask_b32 v18, v19, v18, vcc")
    if kind == "w1":
        k("v_lshlrev_b32 v38, 16, v38")
        k("v_cndmask_b32 v32, v38, v32, vcc")
    k("ds_write_b32 v2, v18")
    k("ds_write_b32 v2, v32 offset:1024")
    k("s_waitcnt lgkmcnt(0)")
    issued = first
    if fz and fz.xl and "X" in PT and kind == "w1" and (layer == 0 or OUTP):
        def tail():
            k("v_lshlrev_b32 v12, 7, v0")
            k("s_mul_i32 s46, s24, 163840")
            k("s_lshl_b32 s47, s25, 2")
            k("s_add_u32 s47, s47, s26")
            k("s_mul_i32 s47, s47, 2560")
            k("s_add_u32 s46, s46, s47")
            if layer == 0:
                k(f"s_add_u32 s46, s46, {WS_X2}")
                k("s_mov_b64 exec, 0xfffff")
                k("buffer_load_dword v13, v12, s[12:15], s46 offen")
                k("s_lshl_b32 s46, s25, 14")
                k("s_lshl_b32 s47, s24, 10")
                k("s_add_u32 s46, s46, s47")
                k("s_lshl_b32 s47, s26, 8")
                k("s_add_u32 s46, s46, s47")
                k(f"s_add_u32 s46, s46, {WS_ST0}")
                k("s_mov_b64 exec, 3")
                k("buffer_load_dword v14, v12, s[12:15], s46 offen")
                k("s_mov_b64 exec, -1")
                return 2
            k.karg(56, 64)
            k("s_waitcnt lgkmcnt(0)")
            k.srd(16, 56, 0, X_BYTES)
            k("s_mov_b64 exec, 0xfffff")
            k("buffer_load_dword v13, v12, s[16:19], s46 offen")
            k("s_mov_b64 exec, -1")
            return 1
        fz.tail = tail
    free = [int(d[4:]) for d in dbg if d.startswith("free")]
    if free:
        for c_ in range(first, NCH):
            dma(c_)
            k(f"s_waitcnt vmcnt({free[0]})")
        k("s_waitcnt vmcnt(0)")
        for i in range(1, NCH): k("s_barrier")
    else:
        ring_tail(k, NCH, NSLOT, dma, nD, issued, fz)
    fin_loader(k, fz, kidx)

    k.lab("compute")
    ACC = 64
    FA = [128, 128 + 4 * NB]
    FB = [160, 160 + 4 * TB]
    AW, AX = 1, 3
    HH, TL = 17, 16
    if kind == "qkv":
        k("s_and_b32 s27, s26, 1")
        k("s_lshr_b32 s36, s26, 1")
    else:
        k("s_mov_b32 s27, 0")
        k("s_mov_b32 s36, s26")
    k(f"v_lshrrev_b32 v{HH}, 5, v0")
    k(f"v_and_b32 v{TL}, 31, v0")
    k(f"v_mul_u32_u24 v20, {TN*16}, v{HH}")
    k(f"v_lshl_add_u32 v20, v{TL}, 4, v20")
    k(f"s_mul_i32 s37, s27, {NB*512}")
    k(f"v_add_u32 v{AW}, s37, v20")
    k(f"v_add_u32 v{AW+1}, {2*SLOT}, v{AW}")
    k(f"v_lshlrev_b32 v20, 4, v0")
    k(f"s_mul_i32 s37, s36, {TB*4096}")
    k(f"s_add_u32 s37, s37, {WB}")
    k(f"v_add_u32 v{AX}, s37, v20")
    k(f"v_add_u32 v{AX+1}, {2*SLOT}, v{AX}")

    def reads(step):
        ch, ks = divmod(step, 4)
        slot = (ch + rot) % NSLOT
        half, sl = divmod(slot, 2)
        st = step & 1
        out = []
        for nb in range(NB):
            d = FA[st] + nb * 4
            out.append(f"ds_read_b128 v[{d}:{d+3}], v{AW+half} offset:{sl*SLOT + ks*2*TN*16 + nb*512}")
        for tb in range(TB):
            d = FB[st] + tb * 4
            out.append(f"ds_read_b128 v[{d}:{d+3}], v{AX+half} offset:{sl*SLOT + ks*1024 + tb*4096}")
        return out

    def mainloop(swap):
        nx0 = PFT.next
        k.stamp(1)
        k("s_barrier")
        k.stamp(2)
        for r in reads(0):
            k(r)
        NS = NCH * 4
        for step in range(NS):
            st = step & 1
            bar = step % 4 == 3 and step + 1 < NS
            cw = CW and not bar
            if not cw: k("s_waitcnt lgkmcnt(0)")
            if bar:
                k("s_barrier")
            rd = reads(step + 1) if step + 1 < NS else []
            if CW:
                wr, xr = rd[:NB], rd[NB:]
                rd = []
                for j in range(max(NB, TB)):
                    rd += wr[j:j+1] + xr[j:j+1]
            mf = []
            for nb in range(NB):
                for tb in range(TB):
                    d = ACC + (nb * TB + tb) * 16
                    a = FA[st] + nb * 4
                    b = FB[st] + tb * 4
                    c = "0" if step == 0 else f"v[{d}:{d+15}]"
                    if swap:
                        mf.append(f"v_mfma_f32_32x32x16_bf16 v[{d}:{d+15}], v[{b}:{b+3}], v[{a}:{a+3}], {c}")
                    else:
                        mf.append(f"v_mfma_f32_32x32x16_bf16 v[{d}:{d+15}], v[{a}:{a+3}], v[{b}:{b+3}], {c}")
            def pos(nb, tb):
                order = []
                for j in range(max(NB, TB)):
                    if j < NB: order.append(("w", j))
                    if j < TB: order.append(("x", j))
                return max(order.index(("w", nb)), order.index(("x", tb))), len(order)
            ri = 0
            issued_now = 0
            i = 0
            lastw = None
            for nb in range(NB):
                for tb in range(TB):
                    m = mf[i]
                    if cw and step > 0:
                        p, n_ = pos(nb, tb)
                        w_ = (n_ - 1 - p) + issued_now
                        if lastw is None or p > lastw:
                            k(f"s_waitcnt lgkmcnt({w_})")
                            lastw = p
                    elif cw and step == 0 and i == 0:
                        k("s_waitcnt lgkmcnt(0)")
                    if "nomfma" not in dbg: k(m)
                    nper = 2 if not CW else CWN
                    for r in rd[ri:ri + nper]:
                        if "nords" not in dbg: k(r)
                        issued_now += 1
                    ri += nper
                    if i == 2 and step % 4 == 3: PFT.at_barrier()
                    i += 1
            assert ri >= len(rd)
        k.stamp(3)
        PFT.next = nx0

    k("s_waitcnt lgkmcnt(0)")
    PFT = TilePF(k, pfd, first, NCH, 8, 9, 10, 56)
    if pfd:
        k.srd(56, 6, 0, WS_SIZE)
        PS = PFS
        sh = {128: 7, 64: 6, 32: 5}[PS]
        nw = WB // 16 // PS
        NWL = 1024 // PS
        nx = 512 // PS
        k("s_and_b32 s37, s24, 3")
        k(f"s_mul_i32 s37, s37, {WB//4}")
        k(f"s_mul_i32 s38, s26, {WB//16}")
        k("s_add_u32 s37, s37, s38")
        k(f"s_mul_i32 s38, s25, {80*TN*16}")
        k("s_add_u32 s37, s37, s38")
        k(f"s_add_u32 s37, s37, {WS_W + first*WB}")
        k("s_and_b32 s38, s20, 1")
        k(f"s_mul_i32 s38, s38, {7 if kind == 'qkv' else 8}")
        k("s_sub_u32 s38, s25, s38")
        k("s_lshr_b32 s39, s38, 1")
        k("s_lshl_b32 s40, s24, 2")
        k("s_add_u32 s39, s39, s40")
        k("s_mul_i32 s39, s39, 40960")
        k("s_and_b32 s38, s38, 1")
        k("s_lshl_b32 s38, s38, 11")
        k("s_add_u32 s39, s39, s38")
        k("s_lshl_b32 s38, s26, 9")
        k("s_add_u32 s39, s39, s38")
        k(f"s_add_u32 s39, s39, {XSRC + first*4096 - NWL*PS}")
        k(f"v_lshlrev_b32 v8, {sh}, v0")
        k("v_mov_b32 v11, s39")
        k("v_mov_b32 v12, s37")
        k(f"v_cmp_gt_u32 vcc, {NWL}, v0")
        k(f"v_mov_b32 v9, 4096")
        k(f"v_mov_b32 v13, {WB}")
        k("v_cndmask_b32 v11, v11, v12, vcc")
        k("v_cndmask_b32 v9, v9, v13, vcc")
        k("v_add_u32 v8, v11, v8")
        k(f"v_cmp_gt_u32 vcc, {NWL+nx}, v0")
        k("v_mov_b32 v12, 0x80000000")
        k("s_nop 0")
        k("v_cndmask_b32 v8, v12, v8, vcc")
        if nw < NWL:
            k(f"v_subrev_u32 v13, {nw}, v0")
            k(f"v_cmp_gt_u32 vcc, {NWL-nw}, v13")
            k("s_nop 1")
            k("v_cndmask_b32 v8, v8, v12, vcc")
        PFT.start()
    if kind == "qkv":
        k("s_cmp_ge_u32 s25, 10")
        k(f"s_cbranch_scc1 {k.ref('vpath')}")
        pre_qk(k, HH, TL)
        mainloop(False)
        epi_qk(k, ACC, STATS, HH, TL)
        fin_compute(k, fz, kidx)
        k.lab("vpath")
        pre_v(k, HH, TL)
        mainloop(True)
        epi_v(k, ACC, STATS, HH, TL)
        fin_compute(k, fz, kidx)
    else:
        if fz and fz.xl and "h" in PT:
            k.srd(48, 6, 0, WS_SIZE)
            k("s_lshl_b32 s39, s24, 2")
            k("s_add_u32 s39, s39, s36")
            k("s_mul_i32 s39, s39, 98304")
            k("s_mul_i32 s40, s25, 6144")
            k("s_add_u32 s39, s39, s40")
            k(f"s_add_u32 s39, s39, {WS_H}")
            k("v_lshlrev_b32 v63, 7, v0")
            k("s_mov_b32 exec_hi, 0xffff")
            k("buffer_load_dword v62, v63, s[48:51], s39 offen")
            k("s_mov_b32 exec_hi, -1")
        mainloop(False)
        epi_w1(k, ACC, STATS, HH, TL, NS_=(" ; nosc" if (fz and fz.xl and "h" not in XSC) else ""))
        fin_compute(k, fz, kidx)
    return k


def gen_qkv_raw(name, kidx=0, dbg=(), first=2, pfd=0, zflags=False):
    NWG, NB, TB, TN = 240, 2, 2, 128
    WB = 16384
    SLOT = 2 * WB
    NSLOT = 4
    NCH = 10
    STATS = NSLOT * SLOT
    LDS = STATS + 2048
    k = Kern(name, NWG, 512, LDS, vgpr=256)
    k(f"s_cmp_ge_u32 s2, {NWG}")
    k(f"s_cbranch_scc1 {k.ref('end')}")
    k.stamp(0)
    k.karg(8, 0)
    k.karg(10, 8)
    k.karg(6, 80)
    wave_id(k, 26)
    k("s_and_b32 s20, s2, 7")
    k("s_lshr_b32 s21, s2, 3")
    k("s_and_b32 s22, s20, 1")
    k("s_mul_i32 s22, s22, 30")
    k("s_add_u32 s22, s22, s21")
    k("s_lshr_b32 s25, s22, 2")
    k("s_and_b32 s22, s22, 3")
    k("s_lshr_b32 s23, s20, 1")
    k("s_lshl_b32 s23, s23, 2")
    k("s_add_u32 s24, s23, s22")
    k("s_cmp_lt_u32 s26, 4")
    k(f"s_cbranch_scc1 {k.ref('compute')}")
    k("s_sub_u32 s26, s26, 4")
    if "w" in Q0T:
        k.karg(60, 16); k.karg(62, 32); k.karg(64, 48)
    VW, VX = 4, 8
    k("v_lshrrev_b32 v1, 4, v0")
    k("v_and_b32 v2, 15, v0")
    k("v_lshlrev_b32 v3, 2, v1")
    k("v_xor_b32 v2, v2, v3")
    k("v_mul_u32_u24 v1, 3840, v1")
    k(f"v_lshl_add_u32 v{VW}, v2, 4, v1")
    for i in range(1, 4):
        k(f"v_add_u32 v{VW+i}, {4*3840-1024}, v{VW+i-1}")
    k("v_lshrrev_b32 v1, 3, v0")
    k("v_and_b32 v2, 7, v0")
    k("v_lshrrev_b32 v3, 1, v1")
    k("v_xor_b32 v2, v2, v3")
    k("v_mul_u32_u24 v1, 1280, v1")
    k(f"v_lshl_add_u32 v{VX}, v2, 4, v1")
    k("v_xor_b32 v2, 4, v2")
    k("v_lshl_add_u32 v2, v2, 4, v1")
    k(f"v_add_u32 v{VX+1}, {8*1280-1024}, v2")
    k(f"v_add_u32 v{VX+2}, {2*(8*1280-1024)}, v{VX}")
    k(f"v_add_u32 v{VX+3}, {3*(8*1280-1024)}, v2")
    k("s_lshl_b32 s40, s25, 8")
    k(f"s_mul_i32 s41, s26, {16*3840}")
    k("s_add_u32 s40, s40, s41")
    k("s_lshl_b32 s42, s26, 12")
    k("s_lshl_b32 s43, s24, 2")
    k("s_add_u32 s43, s43, s26")
    k(f"s_mul_i32 s43, s43, {32*1280}")
    k(f"s_add_u32 s44, s42, {WB}")
    k("s_waitcnt lgkmcnt(0)")
    k.srd(12, 10, 0, 640 * 3840)
    k.srd(16, 8, 0, X_BYTES)
    def dma(ch):
        slot = ch % NSLOT
        k(f"s_add_u32 m0, s42, {slot*SLOT}")
        k(f"s_add_u32 s45, s40, {ch*64*3840}")
        for i in range(4):
            k(f"buffer_load_dwordx4 v{VW+i}, s[12:15], s45 offen offset:{i*1024} lds")
        k(f"s_add_u32 m0, s44, {slot*SLOT}")
        k(f"s_add_u32 s45, s43, {ch*128}")
        for i in range(4):
            k(f"buffer_load_dwordx4 v{VX+i}, s[16:19], s45 offen offset:{i*1024} lds")
    k.stamp(1)
    def pre(): k.stamp(2)
    def q0tail():
        n = 0
        k("s_lshl_b32 s46, s2, 2")
        k("s_add_u32 s46, s46, s26")
        k("v_lshlrev_b32 v12, 7, v0")
        k.srd(48, 6, 0, WS_SIZE)
        def part(srd, base, lines, v, size=None):
            k(f"s_mul_i32 s47, s46, {lines*128}")
            if size is not None and 960*lines*128 > size: k(f"s_min_u32 s47, s47, {size - lines*128}")
            if base: k(f"s_add_u32 s47, s47, {base}")
            if lines < 64: k(f"s_mov_b64 exec, {(1 << lines) - 1:#x}")
            k(f"buffer_load_dword v{v}, v12, s[{srd}:{srd+3}], s47 offen")
            if lines < 64: k("s_mov_b64 exec, -1")
        for ch_ in Q0T:
            if ch_ == "k":
                assert KVPAD == 0
                k("s_cmp_lt_u32 s46, 320")
                k(f"s_mov_b32 s52, {WS_KV - 320*8192}")
                k(f"s_cselect_b32 s52, {WS_Q}, s52")
                k("s_lshl_b32 s47, s46, 13")
                k("s_add_u32 s47, s47, s52")
                k("buffer_load_dword v13, v12, s[48:51], s47 offen"); n += 1
            if ch_ == "w":
                for (ptr, size, lines, v) in ((60, 640*1280, 7, 14), (62, 640*3072, 16, 15), (64, 1536*1280, 16, 16)):
                    k.srd(52, ptr, 0, size)
                    part(52, 0, lines, v, size); n += 1
            if ch_ == "p":
                for (base, lines, v) in ((WS_WO, 7, 17), (WS_W1, 16, 18), (WS_W2, 16, 19), (WS_WQ, 20, 20), (WS_CSQ, 2, 21)):
                    part(48, base, lines, v); n += 1
        return n
    ring_loader(k, NCH, NSLOT, dma, 8, pre_b0=pre, first=first, tail=(q0tail if Q0T and not Q0L else None))
    if Q0T and Q0L:
        q0tail()
        k("s_waitcnt vmcnt(0)")
    if zflags:
        k(f"s_cmp_ge_u32 s2, {NFLAGSET*4}")
        k(f"s_cbranch_scc1 {k.ref('zdone')}")
        k("s_cmp_lg_u32 s26, 0")
        k(f"s_cbranch_scc1 {k.ref('zdone')}")
        k.srd(48, 6, WS_FLAG, NFLAGSET*4096)
        k("s_lshl_b32 s45, s2, 10")
        k("v_lshlrev_b32 v1, 4, v0")
        for r in range(4):
            k(f"v_mov_b32 v{12+r}, 0")
        k("buffer_store_dwordx4 v[12:15], v1, s[48:51], s45 offen")
        k("s_waitcnt vmcnt(0)")
        k.lab("zdone")
    k.stamp(4)
    k("s_add_u32 s26, s26, 4")
    k.stamp_flush(6, kidx, 5, 26)
    k.lab("end")
    k("s_endpgm")

    k.lab("compute")
    ACC = 64
    FA = [128, 128 + 4 * NB]
    FB = [160, 160 + 4 * TB]
    AW, AX = 2, 192
    HH, TL = 17, 16
    S1, S2, TMP, SEL, CS = 48, 50, 52, 60, 32
    k("s_and_b32 s27, s26, 1")
    k("s_lshr_b32 s36, s26, 1")
    k(f"v_lshrrev_b32 v{HH}, 5, v0")
    k(f"v_and_b32 v{TL}, 31, v0")
    k("v_lshrrev_b32 v20, 4, v0")
    k("v_bfe_u32 v21, v0, 2, 2")
    k("v_and_b32 v22, 3, v0")
    k("v_lshrrev_b32 v23, 1, v20")
    k("v_lshl_add_u32 v23, v23, 3, v21")
    k("v_and_b32 v18, 1, v20")
    k("v_lshlrev_b32 v18, 1, v18")
    k("v_lshrrev_b32 v19, 1, v22")
    k("v_add_u32 v18, v18, v19")
    k("s_lshl_b32 s37, s27, 3")
    k("v_add_u32 v18, s37, v18")
    k("v_lshlrev_b32 v19, 2, v21")
    k("v_xor_b32 v18, v18, v19")
    k("v_lshlrev_b32 v18, 4, v18")
    k("v_lshl_add_u32 v18, v23, 8, v18")
    k("v_and_b32 v19, 1, v22")
    k(f"v_lshl_add_u32 v{AW}, v19, 3, v18")
    k(f"v_add_u32 v{AW+1}, {2*SLOT}, v{AW}")
    k(f"v_xor_b32 v{AW+2}, 64, v{AW}")
    k(f"v_add_u32 v{AW+3}, {2*SLOT}, v{AW+2}")
    k(f"v_bfe_u32 v18, v{TL}, 1, 3")
    k(f"v_xor_b32 v18, v18, v{HH}")
    k("v_lshlrev_b32 v18, 4, v18")
    k(f"v_lshl_add_u32 v18, v{TL}, 7, v18")
    k("s_lshl_b32 s37, s36, 13")
    k("s_lshl_b32 s38, s27, 12")
    k("s_add_u32 s37, s37, s38")
    k(f"s_add_u32 s37, s37, {WB}")
    k(f"v_add_u32 v{AX}, s37, v18")
    for sl_ in range(2):
        for ks in range(4):
            d = AX + (sl_ * 4 + ks) * 2
            x = (sl_ << 12) | (ks << 5)
            if x: k(f"v_xor_b32 v{d}, {x}, v{AX}")
            k(f"v_add_u32 v{d+1}, {2*SLOT}, v{d}")
    k("v_and_b32 v18, 15, v0")
    k("v_bfe_u32 v19, v0, 4, 1")
    k("v_cmp_eq_u32 vcc, v18, v19")
    k("v_mov_b32 v19, 0x3f803f80")
    k("s_nop 0")
    k(f"v_cndmask_b32 v{SEL}, 0, v19, vcc")
    for r in range(1, 4):
        k(f"v_mov_b32 v{SEL+r}, v{SEL}")
    for r in range(4):
        k(f"v_mov_b32 v{S1+r}, 0")

    def reads(step):
        ch, ks = divmod(step, 4)
        slot = ch % NSLOT
        half, sl = divmod(slot, 2)
        st = step & 1
        out = []
        for tb in range(TB):
            d = FB[st] + tb * 4
            out.append(f"ds_read_b128 v[{d}:{d+3}], v{AX+(tb*4+ks)*2+half} offset:{sl*SLOT}")
        for nb in range(NB):
            d = FA[st] + nb * 4
            out.append(f"ds_read_b64_tr_b16 v[{d}:{d+1}], v{AW+nb*2+half} offset:{sl*SLOT + ks*4096}")
            out.append(f"ds_read_b64_tr_b16 v[{d+2}:{d+3}], v{AW+nb*2+half} offset:{sl*SLOT + ks*4096 + 1024}")
        return out

    def mainloop(swap, late=()):
        nx0 = PFT.next
        k.stamp(1)
        k("s_barrier")
        k.stamp(2)
        for r in reads(0):
            k(r)
        NS = NCH * 4
        for step in range(NS):
            st = step & 1
            if step == QLATE:
                for f_ in late: f_()
            k("s_waitcnt lgkmcnt(0)")
            if step % 4 == 3 and step + 1 < NS:
                k("s_barrier")
                PFT.at_barrier()
            rd = reads(step + 1) if step + 1 < NS else []
            mf = []
            for nb in range(NB):
                for tb in range(TB):
                    d = ACC + (nb * TB + tb) * 16
                    a = FA[st] + nb * 4
                    b = FB[st] + tb * 4
                    c = "0" if step == 0 else f"v[{d}:{d+15}]"
                    if swap:
                        mf.append(f"v_mfma_f32_32x32x16_bf16 v[{d}:{d+15}], v[{b}:{b+3}], v[{a}:{a+3}], {c}")
                    else:
                        mf.append(f"v_mfma_f32_32x32x16_bf16 v[{d}:{d+15}], v[{a}:{a+3}], v[{b}:{b+3}], {c}")
            for nb in range(NB):
                d = CS + 4 * nb
                a = FA[st] + nb * 4
                c = "0" if step == 0 else f"v[{d}:{d+3}]"
                mf.insert(2 + 3 * nb, f"v_mfma_f32_16x16x32_bf16 v[{d}:{d+3}], v[{SEL}:{SEL+3}], v[{a}:{a+3}], {c}")
            va = []
            for r in range(4):
                x = FB[st] + r
                t = TMP + 2 * (r & 1)
                va += [f"v_and_b32 v{t}, 0xffff0000, v{x}", f"v_lshlrev_b32 v{t+1}, 16, v{x}",
                       f"v_add_f32 v{S1}, v{S1}, v{t}", f"v_fmac_f32 v{S2}, v{t}, v{t}",
                       f"v_add_f32 v{S1+1}, v{S1+1}, v{t+1}", f"v_fmac_f32 v{S2+1}, v{t+1}, v{t+1}"]
            if "nostat" in dbg: va = []
            ri, vi = 0, 0
            for i, m in enumerate(mf):
                k(m)
                nrd = 1
                for r in rd[ri:ri + nrd]: k(r)
                ri += nrd
                for x in va[vi:vi + 4]: k(x)
                vi += 4
            assert ri >= len(rd) and vi >= len(va)
        k.stamp(3)
        k(f"v_add_f32 v40, v{S1}, v{S1+1}")
        k(f"v_add_f32 v41, v{S2}, v{S2+1}")
        k("v_mov_b32 v42, v40")
        k("v_mov_b32 v43, v41")
        k("s_nop 1")
        k("v_permlane32_swap_b32 v40, v42")
        k("v_permlane32_swap_b32 v41, v43")
        k("s_nop 1")
        k("v_add_f32 v40, v40, v42")
        k("v_add_f32 v41, v41, v43")
        k(f"v_mul_f32 v40, {f2u(1/640):#x}, v40")
        k(f"v_mul_f32 v41, {f2u(1/640):#x}, v41")
        k("v_fma_f32 v41, -v40, v40, v41")
        k("v_max_f32 v41, 0, v41")
        k(f"v_add_f32 v42, {f2u(1e-5):#x}, v41")
        k("v_rsq_f32 v42, v42")
        k("s_cmp_lt_u32 s25, 5")
        k(f"s_cselect_b32 s46, {f2u(QSCALE):#x}, 1.0")
        k("v_mul_f32 v42, s46, v42")
        k("v_mul_f32 v43, v42, v40")
        k(f"v_cmp_eq_u32 vcc, 0, v{HH}")
        k("s_lshl_b32 s37, s36, 8")
        k("s_lshl_b32 s38, s27, 7")
        k("s_add_u32 s37, s37, s38")
        k(f"s_add_u32 s37, s37, {STATS}")
        k(f"v_lshlrev_b32 v44, 2, v{TL}")
        k("v_add_u32 v44, s37, v44")
        k(f"v_lshl_add_u32 v44, v{HH}, 9, v44")
        k("v_cndmask_b32 v42, v43, v42, vcc")
        k("ds_write_b32 v44, v42")
        k("s_lshl_b32 s37, s27, 8")
        k(f"s_add_u32 s37, s37, {STATS+1024}")
        k("v_lshlrev_b32 v45, 2, v0")
        k("v_add_u32 v45, s37, v45")
        k("s_mov_b64 exec, 0xffff")
        for nb in range(NB):
            k(f"ds_write_b32 v45, v{CS+4*nb} offset:{nb*128}")
            k(f"ds_write_b32 v45, v{CS+4*nb+1} offset:{nb*128+64}")
        k("s_mov_b64 exec, -1")
        k("s_waitcnt lgkmcnt(0)")
        k("s_barrier")
        PFT.next = nx0

    k("s_waitcnt lgkmcnt(0)")
    PFT = TilePF(k, pfd, first, NCH, 8, 9, 10, 56)
    if pfd:
        k("s_cmp_lt_u32 s26, 2")
        k("s_cselect_b32 s56, s10, s8")
        k("s_cselect_b32 s57, s11, s9")
        k(f"s_mov_b32 s58, {X_BYTES}")
        k(f"s_cselect_b32 s58, {640*3840}, s58")
        k("s_mov_b32 s59, 0x00020000")
        k(f"s_movk_i32 s41, 128")
        k(f"s_cselect_b32 s41, {64*3840}, s41")
        k("s_cselect_b32 s42, 16, 8")
        k("s_and_b32 s37, s24, 3")
        k("s_lshl_b32 s37, s37, 4")
        k("s_lshl_b32 s38, s26, 3")
        k("s_add_u32 s37, s37, s38")
        k(f"s_add_u32 s37, s37, {first*64}")
        k("s_mul_i32 s37, s37, 3840")
        k("s_lshl_b32 s38, s25, 8")
        k("s_add_u32 s37, s37, s38")
        k("s_and_b32 s38, s20, 1")
        k("s_mul_i32 s38, s38, 7")
        k("s_sub_u32 s38, s25, s38")
        k("s_lshl_b32 s38, s38, 4")
        k("s_lshl_b32 s39, s24, 7")
        k("s_add_u32 s38, s38, s39")
        k("s_and_b32 s39, s26, 1")
        k("s_lshl_b32 s39, s39, 3")
        k("s_add_u32 s38, s38, s39")
        k("s_mul_i32 s38, s38, 1280")
        k(f"s_add_u32 s38, s38, {first*128}")
        k("s_cmp_lt_u32 s26, 2")
        k("s_cselect_b32 s37, s37, s38")
        k("v_lshrrev_b32 v11, 1, v0")
        k("v_mul_u32_u24 v11, 3840, v11")
        k("v_and_b32 v12, 1, v0")
        k("v_lshl_add_u32 v11, v12, 7, v11")
        k("v_mul_u32_u24 v12, 1280, v0")
        k("s_cselect_b64 vcc, -1, 0")
        k("v_mov_b32 v9, s41")
        k("v_cndmask_b32 v8, v12, v11, vcc")
        k("v_add_u32 v8, s37, v8")
        k("v_cmp_gt_u32 vcc, s42, v0")
        k("v_mov_b32 v12, 0x80000000")
        k("s_nop 0")
        k("v_cndmask_b32 v8, v12, v8, vcc")
        PFT.start()
    k("s_cmp_ge_u32 s25, 10")
    k(f"s_cbranch_scc1 {k.ref('vpath')}")
    stg = 65536 if QST & 1 else None
    late = [] if QLATE >= 0 else None
    pre_qk(k, HH, TL, perm=True, stg=stg, late=late)
    mainloop(False, late or ())
    epi_qk(k, ACC, STATS, HH, TL, perm=True, stg=stg)
    k.stamp(4); k.stamp_flush(6, kidx, 5, 26)
    k("s_endpgm")
    k.lab("vpath")
    late = [] if QLATE >= 0 else None
    pre_v(k, HH, TL, perm=True, stg=stg, late=late)
    mainloop(True, late or ())
    epi_v(k, ACC, STATS, HH, TL, perm=True, stg=stg)
    k.stamp(4); k.stamp_flush(6, kidx, 5, 26)
    k("s_endpgm")
    return k


STG_GA = 208
STG_T = 16384
STG_VM = [0b001 << 18 | (1 << 18) - 1, 0b011 << 18 | ((1 << 18) - 1) & ~0b001, 0b100 << 21 | ((1 << 21) - 1) & ~0b011,
          0b101 << 18 | ((1 << 18) - 1) & ~0b100, ((1 << 21) - 1) & ~0b101]
STG_PM = {19: 0x32104, 25: 0x32410}
def stage_addr(k, kind, HH, TL, img, ct="s38"):
    GA = STG_GA
    if kind == "qk":
        k(f"s_mov_b32 s44, {STG_VM[0]:#x}")
        for c in range(1, 5):
            k(f"s_cmp_eq_u32 {ct}, {c}")
            k(f"s_cselect_b32 s44, {STG_VM[c]:#x}, s44")
    for i in range(10):
        g = GA + i
        k(f"v_add_u32 v18, {64*i}, v0")
        k("v_mul_u32_u24 v19, 205, v18")
        k("v_lshrrev_b32 v19, 14, v19")
        k("v_mul_u32_u24 v23, 80, v19")
        k("v_sub_u32 v18, v18, v23")
        k(f"v_mul_u32_u24 v{g}, s40, v19")
        k(f"v_lshl_add_u32 v{g}, v18, 4, v{g}")
        if kind == "qk":
            k("v_mul_u32_u24 v19, 3, v19")
            k("v_lshrrev_b32 v18, 5, v18")
            k("v_add_u32 v19, v19, v18")
            k("v_bfe_u32 v19, s44, v19, 1")
            k("v_cmp_ne_u32 vcc, 0, v19")
        else:
            k("v_mul_u32_u24 v23, 205, v18")
            k("v_lshrrev_b32 v23, 12, v23")
            k("v_mul_u32_u24 v23, 20, v23")
            k("v_sub_u32 v18, v18, v23")
            k("v_mul_u32_u24 v19, 20, v19")
            k("v_add_u32 v19, v19, v18")
            k("v_add_u32 v19, s43, v19")
            k("v_cmp_gt_u32 vcc, 128, v19")
        k("v_mov_b32 v23, 0x80000000")
        k("s_nop 0")
        k(f"v_cndmask_b32 v{g}, v23, v{g}, vcc")
    k("s_lshl_b32 s41, s26, 14")
    k(f"s_add_u32 s41, s41, {img}")
    k(f"v_lshlrev_b32 v{GA+10}, 4, v0")
    k(f"v_add_u32 v{GA+10}, s41, v{GA+10}")

def stage_out(k, kind, bar=True):
    GA = STG_GA
    k("s_waitcnt lgkmcnt(0)")
    if bar: k("s_barrier")
    for i in range(10):
        k(f"ds_read_b128 v[{64+4*i}:{64+4*i+3}], v{GA+10} offset:{i*1024}")
    for i in range(10):
        k(f"s_waitcnt lgkmcnt({9-i})")
        k(f"buffer_store_dwordx4 v[{64+4*i}:{64+4*i+3}], v{GA+i}, s[48:51], s54 offen")
    k("s_waitcnt vmcnt(0)")

def pre_qk(k, HH, TL, perm=False, stg=None, late=None):
    k.srd(48, 6, 0, WS_SIZE)
    k("s_cmp_lt_u32 s25, 5")
    k(f"s_mov_b32 s37, {WS_KV}")
    k(f"s_cselect_b32 s37, {WS_Q}, s37")
    k("s_cselect_b32 s38, 0, 5")
    k("s_movk_i32 s39, 2560")
    k("s_cselect_b32 s39, 1280, s39")
    if KVPAD:
        k(f"s_mov_b32 s40, {163840 + KVPAD}")
        k("s_cselect_b32 s40, 81920, s40")
    else:
        k("s_lshl_b32 s40, s39, 6")
    k("s_sub_u32 s38, s25, s38")
    if stg is not None:
        k("s_lshl_b32 s41, s38, 5")
        k("s_mul_i32 s42, s41, 205")
        k("s_lshr_b32 s42, s42, 10")
        k("s_mul_i32 s54, s42, s40")
        k("s_add_u32 s54, s54, s37")
        k("s_lshl_b32 s41, s24, 2")
        k("s_add_u32 s41, s41, s26")
        k("s_mul_i32 s41, s41, s39")
        k("s_add_u32 s54, s54, s41")
        k("s_mov_b32 s55, s42")
        k("s_mov_b32 s60, s38")
        def addrs():
            stage_addr(k, "qk", HH, TL, stg, ct="s60")
            k("s_lshl_b32 s52, s36, 15")
            k(f"s_add_u32 s52, s52, {stg}")
            if perm:
                k("s_lshl_b32 s41, s27, 14")
                k("s_add_u32 s52, s52, s41")
            k("s_lshl_b32 s38, s60, 5")
            k("s_lshl_b32 s42, s27, 4")
            k("s_add_u32 s38, s38, s42")
            k(f"v_add_u32 v21, s38, v{HH}")
            k(f"v_lshlrev_b32 v22, 3, v{TL}")
            k(f"s_mov_b32 s42, {STG_PM[19]:#x}")
            k(f"s_mov_b32 s43, {STG_PM[25]:#x}")
            for nb in range(2):
                for q in range(4):
                    d = 24 + nb * 4 + q
                    k(f"v_add_u32 v23, {nb*8+2*q}, v21")
                    k("v_mul_u32_u24 v18, 205, v23")
                    k("v_lshrrev_b32 v18, 10, v18")
                    k("v_mul_u32_u24 v19, 5, v18")
                    k("v_sub_u32 v23, v23, v19")
                    k("v_cmp_eq_u32 vcc, 19, v18")
                    k("v_mov_b32 v19, 0x43210")
                    k("v_mov_b32 v20, s42")
                    k("v_cndmask_b32 v19, v19, v20, vcc")
                    k("v_cmp_eq_u32 vcc, 25, v18")
                    k("v_mov_b32 v20, s43")
                    k("v_lshlrev_b32 v23, 2, v23")
                    k("v_cndmask_b32 v19, v19, v20, vcc")
                    k("v_bfe_u32 v23, v19, v23, 4")
                    k("v_subrev_u32 v18, s55, v18")
                    k("v_mul_u32_u24 v18, 1280, v18")
                    k("v_cmp_gt_u32 vcc, 4, v23")
                    k("v_lshrrev_b32 v19, 1, v23")
                    k("v_lshl_add_u32 v18, v19, 9, v18")
                    k("v_and_b32 v19, 1, v23")
                    k("v_lshl_add_u32 v18, v19, 3, v18")
                    k("v_cndmask_b32 v19, 0, v22, vcc")
                    k("v_add_u32 v18, v18, v22")
                    k("v_add_u32 v18, v18, v19")
                    k(f"v_add_u32 v{d}, s52, v18")
        if late is None: addrs()
        else: late.append(addrs)
        return
    k("s_lshl_b32 s41, s24, 2")
    k("s_lshl_b32 s42, s36, 1")
    k("s_add_u32 s41, s41, s42")
    k("s_mul_i32 s41, s41, s39")
    k("s_add_u32 s52, s37, s41")
    k("s_add_u32 s53, s52, s39")
    if perm:
        k("s_cmp_eq_u32 s27, 1")
        k("s_cselect_b32 s37, s53, s52")
        k("s_cselect_b32 s53, s52, s53")
        k("s_mov_b32 s52, s37")
    k("s_lshl_b32 s38, s38, 5")
    k("s_lshl_b32 s42, s27, 4")
    k("s_add_u32 s38, s38, s42")
    k(f"v_add_u32 v21, s38, v{HH}")
    k(f"v_lshlrev_b32 v22, 3, v{TL}")
    for nb in range(2):
        for q in range(4):
            d = 24 + nb * 4 + q
            k(f"v_add_u32 v23, {nb*8+2*q}, v21")
            k("v_mul_u32_u24 v18, 205, v23")
            k("v_lshrrev_b32 v18, 10, v18")
            k("v_mul_u32_u24 v19, 5, v18")
            k("v_sub_u32 v23, v23, v19")
            k("v_mul_lo_u32 v18, v18, s40")
            k("v_cmp_gt_u32 vcc, 4, v23")
            k("v_lshrrev_b32 v19, 1, v23")
            k("v_lshl_add_u32 v18, v19, 9, v18")
            k("v_and_b32 v19, 1, v23")
            k("v_lshl_add_u32 v18, v19, 3, v18")
            k("v_cndmask_b32 v19, 0, v22, vcc")
            k("v_add_u32 v18, v18, v22")
            k(f"v_add_u32 v{d}, v18, v19")
    if LINST and perm:
        k("s_lshl_b32 s52, s2, 15")
        k("s_lshl_b32 s53, s26, 13")
        k("s_add_u32 s52, s52, s53")
        k(f"s_add_u32 s52, s52, {WS_Q}")
        k("s_add_u32 s53, s52, 4096")
        for i in range(8):
            k(f"v_lshlrev_b32 v{24+i}, 3, v0")
            k(f"v_add_u32 v{24+i}, {i*512}, v{24+i}")


def epi_qk(k, ACC, STATS, HH, TL, perm=False, stg=None):
    NB, TB = 2, 2
    k(f"s_mul_i32 s37, s36, 256")
    k(f"v_lshlrev_b32 v20, 2, v{TL}")
    k(f"v_add_u32 v20, s37, v20")
    k(f"v_add_u32 v20, {STATS}, v20")
    if perm:
        k("s_lshl_b32 s37, s27, 7")
        k("v_xor_b32 v20, s37, v20")
        k("v_xor_b32 v19, 128, v20")
    for tb in range(TB):
        if perm:
            k(f"ds_read_b32 v{32+2*tb}, v{20-tb}")
            k(f"ds_read_b32 v{33+2*tb}, v{20-tb} offset:512")
        else:
            k(f"ds_read_b32 v{32+2*tb}, v20 offset:{tb*128}")
            k(f"ds_read_b32 v{33+2*tb}, v20 offset:{512+tb*128}")
    k(f"v_lshlrev_b32 v21, 4, v{HH}")
    k("s_lshl_b32 s37, s27, 8")
    k("v_add_u32 v21, s37, v21")
    k(f"v_add_u32 v21, {STATS+1024}, v21")
    CS = 128
    for nb in range(NB):
        for q in range(4):
            k(f"ds_read_b128 v[{CS+(nb*4+q)*4}:{CS+(nb*4+q)*4+3}], v21 offset:{nb*128+q*32}")
    k("s_waitcnt lgkmcnt(0)")
    k("s_nop 7")
    n = 0
    for nb in range(NB):
        for q in range(4):
            cs = CS + (nb * 4 + q) * 4
            for tb in range(TB):
                a = ACC + (nb * TB + tb) * 16 + q * 4
                rs, rm = 32 + 2 * tb, 33 + 2 * tb
                t = 36 + 4 * (n % 2)
                for h in range(2):
                    k(f"v_pk_mul_f32 v[{t+2*h}:{t+2*h+1}], v[{cs+2*h}:{cs+2*h+1}], v[{rs}:{rs+1}] op_sel:[0,1] op_sel_hi:[1,1]")
                for h in range(2):
                    k(f"v_pk_fma_f32 v[{t+2*h}:{t+2*h+1}], v[{a+2*h}:{a+2*h+1}], v[{rs}:{rs+1}], v[{t+2*h}:{t+2*h+1}] op_sel_hi:[1,0,1] neg_lo:[0,0,1] neg_hi:[0,0,1]")
                o = 44 + 2 * (n % 4)
                k(f"v_cvt_pk_bf16_f32 v{o}, v{t}, v{t+1}")
                k(f"v_cvt_pk_bf16_f32 v{o+1}, v{t+2}, v{t+3}")
                if stg is not None:
                    if tb == 1: k(f"v_xor_b32 v{24+nb*4+q}, {STG_T}, v{24+nb*4+q}")
                    k(f"ds_write_b64 v{24+nb*4+q}, v[{o}:{o+1}]")
                else:
                    k(f"buffer_store_dwordx2 v[{o}:{o+1}], v{24+nb*4+q}, s[48:51], s{52+tb} offen")
                n += 1
    if stg is not None: stage_out(k, "qk")
    else: k("s_waitcnt vmcnt(0)")


def pre_v(k, HH, TL, perm=False, stg=None, late=None):
    k.srd(48, 6, 0, WS_SIZE)
    if stg is not None:
        k("s_sub_u32 s37, s25, 10")
        k("s_lshl_b32 s37, s37, 7")
        k("s_mul_i32 s55, s37, 205")
        k("s_lshr_b32 s55, s55, 12")
        k("s_mul_i32 s43, s55, 20")
        k("s_sub_u32 s43, s43, s37")
        k(f"s_mov_b32 s40, {163840 + KVPAD}")
        k("s_mul_i32 s54, s55, s40")
        k("s_lshl_b32 s41, s24, 2")
        k("s_add_u32 s41, s41, s26")
        k("s_mul_i32 s41, s41, 2560")
        k("s_add_u32 s54, s54, s41")
        k(f"s_add_u32 s54, s54, {WS_KV + 1280}")
        if late is None: stage_addr(k, "v", HH, TL, stg)
        else: late.append(lambda: stage_addr(k, "v", HH, TL, stg))
        k("s_lshl_b32 s52, s36, 15")
        k(f"s_add_u32 s52, s52, {stg}")
        if perm:
            k("s_lshl_b32 s41, s27, 14")
            k("s_add_u32 s52, s52, s41")
        k("s_lshl_b32 s38, s27, 6")
        k("s_add_u32 s37, s37, s38")
        for nb in range(2):
            k(f"v_add_u32 v20, s37, v{TL}")
            if nb: k("v_add_u32 v20, 32, v20")
            k("v_mul_u32_u24 v21, 205, v20")
            k("v_lshrrev_b32 v21, 12, v21")
            k("v_mul_u32_u24 v22, 20, v21")
            k("v_sub_u32 v22, v20, v22")
            k("v_subrev_u32 v21, s55, v21")
            k("v_mul_u32_u24 v21, 1280, v21")
            k("v_lshl_add_u32 v21, v22, 4, v21")
            k(f"v_mul_u32_u24 v22, 320, v{HH}")
            k("v_add_u32 v21, v21, v22")
            k(f"v_add_u32 v{24+nb}, s52, v21")
        return
    k("s_sub_u32 s37, s25, 10")
    k("s_lshl_b32 s37, s37, 7")
    k("s_lshl_b32 s38, s27, 6")
    k("s_add_u32 s37, s37, s38")
    for nb in range(2):
        k(f"v_add_u32 v20, s37, v{TL}")
        if nb: k("v_add_u32 v20, 32, v20")
        k("v_mul_u32_u24 v21, 205, v20")
        k("v_lshrrev_b32 v21, 12, v21")
        k("v_mul_u32_u24 v22, 20, v21")
        k("v_sub_u32 v22, v20, v22")
        k(f"s_mov_b32 s38, {163840 + KVPAD}")
        k("v_mul_lo_u32 v21, v21, s38")
        k("v_lshl_add_u32 v21, v22, 4, v21")
        k(f"v_mul_u32_u24 v22, 320, v{HH}")
        k(f"v_add_u32 v{24+nb}, v21, v22")
    k("s_lshl_b32 s41, s24, 2")
    k("s_lshl_b32 s42, s36, 1")
    k("s_add_u32 s41, s41, s42")
    k("s_mul_i32 s41, s41, 2560")
    k(f"s_add_u32 s52, s41, {WS_KV + 1280}")
    if perm:
        k("s_add_u32 s53, s52, 2560")
        k("s_cmp_eq_u32 s27, 1")
        k("s_cselect_b32 s37, s53, s52")
        k("s_cselect_b32 s53, s52, s53")
        k("s_mov_b32 s52, s37")
    if LINST and perm:
        k("s_lshl_b32 s52, s2, 15")
        k("s_lshl_b32 s53, s26, 13")
        k("s_add_u32 s52, s52, s53")
        k(f"s_add_u32 s52, s52, {WS_Q}")
        k("s_add_u32 s53, s52, 4096")
        for i in range(2):
            k(f"v_lshlrev_b32 v{24+i}, 4, v0")
            k(f"v_add_u32 v{24+i}, {i*2048}, v{24+i}")


def epi_v(k, ACC, STATS, HH, TL, perm=False, stg=None):
    NB, TB = 2, 2
    k("s_lshl_b32 s37, s36, 8")
    k(f"v_lshlrev_b32 v20, 4, v{HH}")
    k("v_add_u32 v20, s37, v20")
    k(f"v_add_u32 v20, {STATS}, v20")
    RS, RM = 128, 160
    if perm:
        k("s_lshl_b32 s37, s27, 7")
        k("v_xor_b32 v20, s37, v20")
        k("v_xor_b32 v19, 128, v20")
    def sa(tb, off): return f"v{20-tb} offset:{off}" if perm else f"v20 offset:{off+tb*128}"
    for tb in range(TB):
        for q in range(4):
            k(f"ds_read_b128 v[{RS+(tb*4+q)*4}:{RS+(tb*4+q)*4+3}], {sa(tb, q*32)}")
    k(f"v_lshlrev_b32 v21, 2, v{TL}")
    k("s_lshl_b32 s37, s27, 8")
    k("v_add_u32 v21, s37, v21")
    k(f"v_add_u32 v21, {STATS+1024}, v21")
    k("s_waitcnt lgkmcnt(4)")
    for tb in range(TB):
        for q in range(4):
            k(f"ds_read_b128 v[{RM+(tb*4+q)*4}:{RM+(tb*4+q)*4+3}], {sa(tb, 512+q*32)}")
    k("ds_read_b32 v32, v21")
    k("ds_read_b32 v34, v21 offset:128")
    k("s_waitcnt lgkmcnt(0)")
    k("s_nop 7")
    n = 0
    for nb in range(NB):
        cs = 32 + 2 * nb
        for tb in range(TB):
            for qp in range(2):
                o = 44 + 4 * (n % 2)
                for qq in range(2):
                    q = qp * 2 + qq
                    a = ACC + (nb * TB + tb) * 16 + q * 4
                    t = 36 + 4 * qq
                    rs, rm = RS + (tb * 4 + q) * 4, RM + (tb * 4 + q) * 4
                    for h in range(2):
                        k(f"v_pk_mul_f32 v[{t+2*h}:{t+2*h+1}], v[{rm+2*h}:{rm+2*h+1}], v[{cs}:{cs+1}] op_sel_hi:[1,0]")
                    for h in range(2):
                        k(f"v_pk_fma_f32 v[{t+2*h}:{t+2*h+1}], v[{a+2*h}:{a+2*h+1}], v[{rs+2*h}:{rs+2*h+1}], v[{t+2*h}:{t+2*h+1}] neg_lo:[0,0,1] neg_hi:[0,0,1]")
                    k(f"v_cvt_pk_bf16_f32 v{o+2*qq}, v{t}, v{t+1}")
                    k(f"v_cvt_pk_bf16_f32 v{o+2*qq+1}, v{t+2}, v{t+3}")
                k("s_nop 1")
                k(f"v_permlane32_swap_b32 v{o}, v{o+2}")
                k(f"v_permlane32_swap_b32 v{o+1}, v{o+3}")
                k("s_nop 1")
                if stg is not None:
                    if qp == 0 and (tb == 1 or False): k(f"v_xor_b32 v{24+nb}, {STG_T}, v{24+nb}")
                    k(f"ds_write_b128 v{24+nb}, v[{o}:{o+3}] offset:{qp*640}")
                elif perm:
                    k(f"buffer_store_dwordx4 v[{o}:{o+3}], v{24+nb}, s[48:51], s{52+tb} offen offset:{qp*(1024 if LINST else 640)}")
                else:
                    k(f"buffer_store_dwordx4 v[{o}:{o+3}], v{24+nb}, s[48:51], s52 offen offset:{tb*2560+qp*640}")
                n += 1
    if stg is not None: stage_out(k, "v")
    else: k("s_waitcnt vmcnt(0)")


GK1 = -2.0 * 0.7978845608028654 * 1.4426950408889634
GK2 = GK1 * 0.044715

def epi_w1(k, ACC, STATS, HH, TL, NS_=""):
    NB = 3
    k.srd(48, 6, 0, WS_SIZE)
    k("s_lshl_b32 s37, s36, 7")
    k(f"v_lshlrev_b32 v20, 2, v{TL}")
    k("v_add_u32 v20, s37, v20")
    k(f"v_add_u32 v20, {STATS}, v20")
    k("ds_read_b32 v32, v20")
    k("ds_read_b32 v33, v20 offset:512")
    k(f"v_lshlrev_b32 v21, 4, v{HH}")
    k(f"v_add_u32 v21, {STATS+1024}, v21")
    CS, BI = 128, 176
    for nb in range(NB):
        for q in range(4):
            k(f"ds_read_b128 v[{CS+(nb*4+q)*4}:{CS+(nb*4+q)*4+3}], v21 offset:{nb*128+q*32}")
    k("s_waitcnt lgkmcnt(6)")
    for nb in range(NB):
        for q in range(4):
            k(f"ds_read_b128 v[{BI+(nb*4+q)*4}:{BI+(nb*4+q)*4+3}], v21 offset:{512+nb*128+q*32}")
    k("s_lshl_b32 s39, s24, 2")
    k("s_add_u32 s39, s39, s36")
    k("s_mul_i32 s39, s39, 98304")
    k("s_mul_i32 s40, s25, 6144")
    k("s_add_u32 s39, s39, s40")
    k(f"s_add_u32 s52, s39, {WS_H}")
    k("s_add_u32 s53, s52, 2048")
    k("s_add_u32 s54, s52, 4096")
    k("v_lshlrev_b32 v22, 4, v0")
    k(f"v_mov_b32 v34, {f2u(GK1):#x}")
    k(f"v_mov_b32 v35, {f2u(GK2):#x}")
    k("s_waitcnt lgkmcnt(0)")
    k("s_nop 7")
    n = 0
    for nb in range(NB):
        for qp in range(2):
            o = 56 + 4 * (n % 2)
            for qq in range(2):
                q = qp * 2 + qq
                a = ACC + nb * 16 + q * 4
                cs = CS + (nb * 4 + q) * 4
                b = BI + (nb * 4 + q) * 4
                u, t = 36, 40
                for h in range(2):
                    k(f"v_pk_fma_f32 v[{u+2*h}:{u+2*h+1}], v[{cs+2*h}:{cs+2*h+1}], v[32:33], v[{b+2*h}:{b+2*h+1}] op_sel:[0,1,0] op_sel_hi:[1,1,1] neg_lo:[1,0,0] neg_hi:[1,0,0]")
                for h in range(2):
                    k(f"v_pk_fma_f32 v[{u+2*h}:{u+2*h+1}], v[{a+2*h}:{a+2*h+1}], v[32:33], v[{u+2*h}:{u+2*h+1}] op_sel_hi:[1,0,1]")
                for h in range(2):
                    k(f"v_pk_mul_f32 v[{t+2*h}:{t+2*h+1}], v[{u+2*h}:{u+2*h+1}], v[{u+2*h}:{u+2*h+1}]")
                for h in range(2):
                    k(f"v_pk_fma_f32 v[{t+2*h}:{t+2*h+1}], v[{t+2*h}:{t+2*h+1}], v[34:35], v[34:35] op_sel:[0,1,0] op_sel_hi:[1,1,0]")
                for h in range(2):
                    k(f"v_pk_mul_f32 v[{t+2*h}:{t+2*h+1}], v[{t+2*h}:{t+2*h+1}], v[{u+2*h}:{u+2*h+1}]")
                for i in range(4):
                    k(f"v_exp_f32 v{t+i}, v{t+i}")
                k("s_nop 0")
                for h in range(2):
                    k(f"v_pk_add_f32 v[{t+2*h}:{t+2*h+1}], v[{t+2*h}:{t+2*h+1}], 1.0 op_sel_hi:[1,0]")
                for i in range(4):
                    k(f"v_rcp_f32 v{t+i}, v{t+i}")
                k("s_nop 0")
                for h in range(2):
                    k(f"v_pk_mul_f32 v[{u+2*h}:{u+2*h+1}], v[{u+2*h}:{u+2*h+1}], v[{t+2*h}:{t+2*h+1}]")
                k(f"v_cvt_pk_bf16_f32 v{o+2*qq}, v{u}, v{u+1}")
                k(f"v_cvt_pk_bf16_f32 v{o+2*qq+1}, v{u+2}, v{u+3}")
            k("s_nop 1")
            k(f"v_permlane32_swap_b32 v{o}, v{o+2}")
            k(f"v_permlane32_swap_b32 v{o+1}, v{o+3}")
            k("s_nop 1")
            k(f"buffer_store_dwordx4 v[{o}:{o+3}], v22, s[48:51], s{52+nb} offen offset:{qp*1024}{NS_}")
            n += 1
    k("s_waitcnt vmcnt(0)")


def gen_gemmB(name, kind, layer, kidx=0, dbg=(), first=2, rawres=False, pfd=0, fz=None):
    NWG = 256
    if kind == "wo":
        K, WS_W, XSRC = 640, WS_WO, WS_O
        RES = WS_X0 if layer == 0 else WS_X2
        DST, ST = WS_X1, WS_ST1
    else:
        K, WS_W, XSRC = 1536, WS_W2, WS_H
        RES = WS_X1
        DST, ST = (WS_X2, WS_ST0) if layer == 0 else (None, None)
    NCH = K // 128
    XBLK = K * 64
    WB = 20480
    SLOT = WB + 16384
    NSLOT = 4
    LDS = NSLOT * SLOT
    rot = fz.rot if fz else 0
    HO = bool(fz and fz.wait is not None)
    XS = " sc1" if (HO and not fz.xplain) else ""
    NS_ = " ; nosc" if (fz and fz.xl and "x" not in XSC) else ""
    RSC = " sc1" if (fz and kind == "w2" and not fz.xplain) else ""
    if fz is None:
        k = Kern(name, NWG, 512, LDS, vgpr=128)
        k(f"s_cmp_ge_u32 s2, {NWG}")
        k(f"s_cbranch_scc1 {k.ref('end')}")
        k.stamp(0)
        k.karg(6, 80)
    else:
        k = fz.k
    if kind == "w2":
        k.karg(8, 56)
        if DST is None:
            k.karg(10, 64)
    if rawres:
        assert kind == "wo"
        k.karg(8, 0)
    if fz is None: wave_id(k, 26)
    k("s_and_b32 s20, s2, 7")
    k("s_lshr_b32 s21, s2, 3")
    if fz and fz.xl:
        k("s_and_b32 s22, s21, 3")
        k("s_lshl_b32 s23, s20, 2")
        k("s_add_u32 s24, s23, s22")
        k("s_lshr_b32 s25, s21, 2")
    else:
        k("s_lshr_b32 s22, s20, 1")
        k("s_lshl_b32 s22, s22, 3")
        k("s_and_b32 s23, s21, 7")
        k("s_add_u32 s24, s22, s23")
        k("s_and_b32 s22, s20, 1")
        k("s_lshl_b32 s22, s22, 2")
        k("s_lshr_b32 s23, s21, 3")
        k("s_add_u32 s25, s22, s23")
    k("s_cmp_lt_u32 s26, 4")
    k(f"s_cbranch_scc1 {k.ref('compute')}")
    k("s_sub_u32 s26, s26, 4")
    k("v_lshlrev_b32 v1, 4, v0")
    k(f"s_mul_i32 s40, s25, {K//8*1280}")
    k("s_mul_i32 s41, s26, 5120")
    k("s_add_u32 s40, s40, s41")
    k(f"s_add_u32 s40, s40, {WS_W}")
    k("s_mov_b32 s42, s41")
    k("s_lshl_b32 s43, s24, 1")
    k("s_lshr_b32 s47, s26, 1")
    k("s_add_u32 s43, s43, s47")
    k(f"s_mul_i32 s43, s43, {XBLK}")
    k("s_and_b32 s47, s26, 1")
    k("s_lshl_b32 s47, s47, 12")
    k("s_add_u32 s43, s43, s47")
    k(f"s_add_u32 s43, s43, {XSRC}")
    k("s_lshl_b32 s44, s26, 12")
    k(f"s_add_u32 s44, s44, {WB}")
    k("s_waitcnt lgkmcnt(0)")
    k.srd(12, 6, 0, WS_SIZE)
    def dma(ch, parts="xw"):
        slot = (ch + rot) % NSLOT
        if "x" in parts:
            k(f"s_add_u32 m0, s44, {slot*SLOT}")
            k(f"s_add_u32 s45, s43, {ch*8192}")
            for i in range(4):
                k(f"buffer_load_dwordx4 v1, s[12:15], s45 offen offset:{i*1024}{XS} lds")
        if "w" in parts:
            k(f"s_add_u32 m0, s42, {slot*SLOT}")
            k(f"s_add_u32 s45, s40, {ch*WB}")
            for i in range(4):
                k(f"buffer_load_dwordx4 v1, s[12:15], s45 offen offset:{i*1024} lds")
            k(f"s_add_u32 m0, s42, {slot*SLOT+4096}")
            k(f"s_add_u32 s45, s40, {ch*WB+4096}")
            k(f"buffer_load_dwordx4 v1, s[12:15], s45 offen lds")
    k.stamp(1)
    def pre(): k.stamp(2)
    def pre_issue():
        for c_ in range(first):
            dma(c_, "w")
        if kind == "wo":
            k("s_lshl_b32 s67, s24, 1")
            k("s_lshr_b32 s47, s26, 1")
            k("s_add_u32 s67, s67, s47")
            fz.poll(67, 32)
        else:
            k("s_lshr_b32 s67, s24, 1")
            fz.poll(67, 16)
        for c_ in range(first):
            dma(c_, "x")
        return 4 * (first - 1)
    if fz: fz.mode_publish()
    if fz and fz.xl and "H" in PT and kind == "wo":
        def tail():
            k("v_lshlrev_b32 v12, 7, v0")
            k("s_mul_i32 s46, s24, 196608")
            k("s_lshl_b32 s47, s25, 2")
            k("s_add_u32 s47, s47, s26")
            k("s_mul_i32 s47, s47, 6144")
            k("s_add_u32 s46, s46, s47")
            k(f"s_add_u32 s46, s46, {WS_H}")
            k("s_mov_b32 exec_hi, 0xffff")
            k("buffer_load_dword v13, v12, s[12:15], s46 offen")
            k("s_mov_b32 exec_hi, -1")
            return 1
        fz.tail = tail
    ring_loader(k, NCH, NSLOT, dma, 9, pre_b0=pre, first=first, pre_issue=(pre_issue if HO else None), fz=fz)
    fin_loader(k, fz, kidx)

    k.lab("compute")
    ACC, FA0, FB0, RS, BI = 32, 64, 88, 104, 116
    AW, AX = 1, 3
    k("s_and_b32 s27, s26, 1")
    k("s_lshr_b32 s36, s26, 1")
    k("v_lshrrev_b32 v17, 4, v0")
    k("v_and_b32 v16, 15, v0")
    k("v_mul_u32_u24 v20, 1280, v17")
    k("v_lshl_add_u32 v20, v16, 4, v20")
    k("s_mul_i32 s37, s27, 768")
    k(f"v_add_u32 v{AW}, s37, v20")
    k(f"v_add_u32 v{AW+1}, {2*SLOT}, v{AW}")
    k("v_lshlrev_b32 v20, 9, v17")
    k("v_lshl_add_u32 v20, v16, 4, v20")
    k("s_lshl_b32 s37, s36, 13")
    k(f"s_add_u32 s37, s37, {WB}")
    k(f"v_add_u32 v{AX}, s37, v20")
    k(f"v_add_u32 v{AX+1}, {2*SLOT}, v{AX}")
    k("v_lshrrev_b32 v20, 1, v17")
    k("v_lshlrev_b32 v20, 9, v20")
    k("v_lshl_add_u32 v20, v16, 4, v20")
    k("v_and_b32 v21, 1, v17")
    k("v_lshl_add_u32 v20, v21, 3, v20")
    k("s_lshl_b32 s38, s24, 1")
    k("s_add_u32 s38, s38, s36")
    k("s_mul_i32 s39, s38, 40960")
    k("s_mul_i32 s40, s25, 5120")
    k("s_add_u32 s39, s39, s40")
    k("s_mul_i32 s40, s27, 3072")
    k("s_add_u32 s39, s39, s40")
    if rawres:
        k("v_mul_u32_u24 v20, 1280, v16")
        k("v_lshl_add_u32 v20, v17, 3, v20")
        k(f"v_add_u32 v21, {16*1280}, v20")
        k(f"s_mul_i32 s52, s38, {32*1280}")
        k("s_mul_i32 s40, s25, 160")
        k("s_add_u32 s52, s52, s40")
        k("s_mul_i32 s40, s27, 96")
        k("s_add_u32 s52, s52, s40")
    else:
        k(f"s_add_u32 s52, s39, {RES}")
    k("s_waitcnt lgkmcnt(0)")
    k.srd(48, 6, 0, WS_SIZE)
    if rawres:
        k.srd(56, 8, 0, X_BYTES)
    PFT = TilePF(k, pfd, first, NCH, 5, 6, 7, 48)
    if pfd:
        k("s_and_b32 s41, s25, 3")
        k("s_lshr_b32 s42, s41, 1")
        k("s_lshl_b32 s43, s24, 1")
        k("s_add_u32 s42, s42, s43")
        k(f"s_mul_i32 s42, s42, {XBLK}")
        k("s_and_b32 s41, s41, 1")
        k("s_lshl_b32 s41, s41, 12")
        k("s_add_u32 s42, s42, s41")
        k("s_lshl_b32 s41, s26, 10")
        k("s_add_u32 s42, s42, s41")
        k(f"s_add_u32 s42, s42, {XSRC + first*8192}")
        k("s_and_b32 s41, s24, 7")
        k("s_mul_i32 s41, s41, 2560")
        k("s_mul_i32 s43, s26, 640")
        k("s_add_u32 s41, s41, s43")
        k(f"s_mul_i32 s43, s25, {K//8*1280}")
        k("s_add_u32 s41, s41, s43")
        k(f"s_add_u32 s41, s41, {WS_W + first*WB - 8*128}")
        k("v_lshlrev_b32 v5, 7, v0")
        k("v_mov_b32 v8, s41")
        k("v_mov_b32 v9, s42")
        k("v_cmp_gt_u32 vcc, 8, v0")
        k(f"v_mov_b32 v6, {WB}")
        k("v_mov_b32 v10, 8192")
        k("v_cndmask_b32 v8, v8, v9, vcc")
        k("v_cndmask_b32 v6, v6, v10, vcc")
        k("v_add_u32 v5, v8, v5")
        k("v_cmp_gt_u32 vcc, 13, v0")
        k("v_mov_b32 v9, 0x80000000")
        k("s_nop 0")
        k("v_cndmask_b32 v5, v9, v5, vcc")
        PFT.start()

    def path(NB):
        nx0 = PFT.next
        for nb in range(NB):
            for tb in range(2):
                d = RS + (nb * 2 + tb) * 2
                if rawres:
                    k(f"buffer_load_dwordx2 v[{d}:{d+1}], v{20+tb}, s[56:59], s52 offen offset:{nb*32}")
                else:
                    k(f"buffer_load_dwordx2 v[{d}:{d+1}], v20, s[48:51], s52 offen offset:{nb*1024+tb*256}{RSC}")
        if kind == "w2":
            k.srd(56, 8, 0, 1280)
            k("s_mul_i32 s40, s25, 160")
            k("s_mul_i32 s41, s27, 96")
            k("s_add_u32 s40, s40, s41")
            k("v_lshlrev_b32 v21, 3, v17")
            for nb in range(NB):
                k(f"buffer_load_dwordx2 v[{BI+2*nb}:{BI+2*nb+1}], v21, s[56:59], s40 offen offset:{nb*32}")
        if fz and fz.xl and "x" in PT and DST is not None:
            k("v_lshlrev_b32 v127, 7, v0")
            k(f"s_add_u32 s40, s39, {DST}")
            k(f"s_mov_b64 exec, {(1 << (8*NB)) - 1:#x}")
            k("buffer_load_dword v126, v127, s[48:51], s40 offen")
            k("s_lshl_b32 s40, s25, 1")
            k("s_add_u32 s40, s40, s27")
            k("s_lshl_b32 s40, s40, 14")
            k("s_lshl_b32 s41, s38, 8")
            k("s_add_u32 s40, s40, s41")
            k(f"s_add_u32 s40, s40, {ST}")
            k("s_mov_b64 exec, 3")
            k("buffer_load_dword v125, v127, s[48:51], s40 offen")
            k("s_mov_b64 exec, -1")
        if fz and fz.xl and "G" in PT and kind == "wo":
            k("v_lshlrev_b32 v127, 7, v0")
            k("s_mul_i32 s40, s24, 196608")
            k("s_lshl_b32 s41, s25, 2")
            k("s_add_u32 s41, s41, s26")
            k("s_mul_i32 s41, s41, 6144")
            k("s_add_u32 s40, s40, s41")
            k(f"s_add_u32 s40, s40, {WS_H}")
            k("s_mov_b32 exec_hi, 0xffff")
            k("buffer_load_dword v124, v127, s[48:51], s40 offen")
            k("s_mov_b32 exec_hi, -1")
        if fz and "u" in PT and DST is None:
            k.srd(60, 10, 0, X_BYTES)
            k("v_and_b32 v127, 31, v0")
            k("v_mul_u32_u24 v127, 1280, v127")
            k("v_lshrrev_b32 v126, 5, v0")
            k(f"v_mul_u32_u24 v126, {NB*32 - 4}, v126")
            k("v_add_u32 v127, v127, v126")
            k("s_mul_i32 s40, s38, 40960")
            k("s_mul_i32 s41, s25, 160")
            k("s_add_u32 s40, s40, s41")
            k("s_mul_i32 s41, s27, 96")
            k("s_add_u32 s40, s40, s41")
            k("buffer_load_dword v126, v127, s[60:63], s40 offen")
        def reads(step):
            ch, ks = divmod(step, 4)
            slot = (ch + rot) % NSLOT
            half, sl = divmod(slot, 2)
            st = step & 1
            out = []
            for tb in range(2):
                d = FB0 + st * 8 + tb * 4
                out.append(f"ds_read_b128 v[{d}:{d+3}], v{AX+half} offset:{sl*SLOT + ks*2048 + tb*256}")
            for nb in range(NB):
                d = FA0 + st * 12 + nb * 4
                out.append(f"ds_read_b128 v[{d}:{d+3}], v{AW+half} offset:{sl*SLOT + ks*5120 + nb*256}")
            return out
        k.stamp(1)
        k("s_barrier")
        k.stamp(2)
        for r in reads(0):
            k(r)
        NS = NCH * 4
        for step in range(NS):
            st = step & 1
            k("s_waitcnt lgkmcnt(0)")
            if step % 4 == 3 and step + 1 < NS:
                k("s_barrier")
                PFT.at_barrier()
            rd = reads(step + 1) if step + 1 < NS else []
            mf = []
            for nb in range(NB):
                for tb in range(2):
                    d = ACC + (nb * 2 + tb) * 4
                    a = FA0 + st * 12 + nb * 4
                    b = FB0 + st * 8 + tb * 4
                    c = "0" if step == 0 else f"v[{d}:{d+3}]"
                    mf.append(f"v_mfma_f32_16x16x32_bf16 v[{d}:{d+3}], v[{a}:{a+3}], v[{b}:{b+3}], {c}")
            ri = 0
            for i, m in enumerate(mf):
                if "nomfma" not in dbg: k(m)
                for r in rd[ri:ri + 2]:
                    if "nords" not in dbg: k(r)
                ri += 2
            assert ri >= len(rd)
        k.stamp(3)
        PFT.next = nx0
        if fz and fz.xl and fz.p == 0: fz.mode_issue(48, 250)
        k("s_waitcnt vmcnt(0)")
        want_stats = ST is not None
        if want_stats:
            for r in (8, 9, 10, 11):
                k(f"v_mov_b32 v{r}, 0")
        k("v_lshlrev_b32 v22, 4, v0")
        if DST is None:
            k.srd(60, 10, 0, X_BYTES)
            k("v_and_b32 v23, 31, v0")
            k("v_mul_u32_u24 v23, 1280, v23")
            k("v_lshrrev_b32 v24, 5, v0")
            k("v_lshl_add_u32 v23, v24, 4, v23")
            k("s_mul_i32 s40, s38, 40960")
            k("s_mul_i32 s41, s25, 160")
            k("s_add_u32 s40, s40, s41")
            k("s_mul_i32 s41, s27, 96")
            k("s_add_u32 s53, s40, s41")
        else:
            k(f"s_add_u32 s53, s39, {DST}")
        k("s_nop 4")
        for nb in range(NB):
            o = 24 + 4 * (nb % 2)
            for tb in range(2):
                a = ACC + (nb * 2 + tb) * 4
                d = RS + (nb * 2 + tb) * 2
                t = 12
                k(f"v_lshlrev_b32 v{t}, 16, v{d}")
                k(f"v_and_b32 v{t+1}, 0xffff0000, v{d}")
                k(f"v_lshlrev_b32 v{t+2}, 16, v{d+1}")
                k(f"v_and_b32 v{t+3}, 0xffff0000, v{d+1}")
                k(f"v_pk_add_f32 v[{a}:{a+1}], v[{a}:{a+1}], v[{t}:{t+1}]")
                k(f"v_pk_add_f32 v[{a+2}:{a+3}], v[{a+2}:{a+3}], v[{t+2}:{t+3}]")
                if kind == "w2":
                    b = BI + 2 * nb
                    k(f"v_lshlrev_b32 v{t+4}, 16, v{b}")
                    k(f"v_and_b32 v{t+5}, 0xffff0000, v{b}")
                    k(f"v_lshlrev_b32 v{t+6}, 16, v{b+1}")
                    k(f"v_and_b32 v{t+7}, 0xffff0000, v{b+1}")
                    k(f"v_pk_add_f32 v[{a}:{a+1}], v[{a}:{a+1}], v[{t+4}:{t+5}]")
                    k(f"v_pk_add_f32 v[{a+2}:{a+3}], v[{a+2}:{a+3}], v[{t+6}:{t+7}]")
                if want_stats:
                    for r in range(4):
                        k(f"v_add_f32 v{8+tb}, v{8+tb}, v{a+r}")
                        k(f"v_fmac_f32 v{10+tb}, v{a+r}, v{a+r}")
                k(f"v_cvt_pk_bf16_f32 v{o+2*tb}, v{a}, v{a+1}")
                k(f"v_cvt_pk_bf16_f32 v{o+2*tb+1}, v{a+2}, v{a+3}")
            k("s_nop 1")
            k(f"v_permlane16_swap_b32 v{o}, v{o+2}")
            k(f"v_permlane16_swap_b32 v{o+1}, v{o+3}")
            k("s_nop 1")
            if DST is None:
                k(f"buffer_store_dwordx4 v[{o}:{o+3}], v23, s[60:63], s53 offen offset:{nb*32}" + (" ; nosc" if OUTP else ""))
            else:
                k(f"buffer_store_dwordx4 v[{o}:{o+3}], v22, s[48:51], s53 offen offset:{nb*1024}{NS_}")
        if want_stats:
            k("v_permlane16_swap_b32 v8, v9")
            k("v_permlane16_swap_b32 v10, v11")
            k("s_nop 1")
            k("v_add_f32 v8, v8, v9")
            k("v_add_f32 v10, v10, v11")
            k("s_nop 1")
            k("v_permlane32_swap_b32 v8, v10")
            k("s_nop 1")
            k("v_add_f32 v8, v8, v10")
            k("v_and_b32 v12, 31, v0")
            k("v_lshlrev_b32 v12, 3, v12")
            k("v_lshrrev_b32 v13, 5, v0")
            k("v_lshl_add_u32 v12, v13, 2, v12")
            k("s_lshl_b32 s40, s25, 1")
            k("s_add_u32 s40, s40, s27")
            k("s_lshl_b32 s40, s40, 14")
            k("s_lshl_b32 s41, s38, 8")
            k("s_add_u32 s40, s40, s41")
            k(f"s_add_u32 s40, s40, {ST}")
            k(f"buffer_store_dword v8, v12, s[48:51], s40 offen{NS_}")
        k("s_waitcnt vmcnt(0)")
        fin_compute(k, fz, kidx)
    k("s_cmp_eq_u32 s27, 1")
    k(f"s_cbranch_scc1 {k.ref('p2')}")
    path(3)
    k.lab("p2")
    path(2)
    return k


ATT_PACK = "cvt"
def gen_attn(name, kidx=0, pack=None, force_slow=False):
    pack = pack or ATT_PACK
    NWG = 256
    LDS = 163840
    k = Kern(name, NWG, 512, LDS, vgpr=128)
    KA, KB, VA = 1, 2, 3
    Q16, Q4 = 8, 12
    K16 = [16, 20]; K4 = [24, 26]
    V = [32, 40]
    S = [48, 64]
    P = 80
    O = 96
    k(f"s_cmp_ge_u32 s2, {NWG}")
    k(f"s_cbranch_scc1 {k.ref('end')}")
    k.stamp(0)
    k.karg(6, 80)
    wave_id(k, 26)
    k("s_and_b32 s20, s2, 7")
    k("s_lshr_b32 s21, s2, 3")
    k("s_lshr_b32 s22, s21, 3")
    k("s_lshl_b32 s23, s20, 2")
    k("s_add_u32 s24, s23, s22")
    k("s_and_b32 s25, s21, 7")
    k("s_lshl_b32 s25, s25, 3")
    k("s_add_u32 s25, s25, s26")
    k("v_lshlrev_b32 v4, 4, v0")
    k("s_lshl_b32 s27, s24, 6")
    k("s_add_u32 s27, s27, s25")
    k("s_mul_i32 s27, s27, 1280")
    k(f"s_add_u32 s27, s27, {WS_Q}")
    k("s_mul_i32 s28, s24, 163840")
    k(f"s_add_u32 s28, s28, {WS_KV}")
    k("s_mul_i32 s29, s26, 3072")
    k("s_mul_i32 s30, s26, 17408")
    k("s_add_u32 s30, s30, 24576")
    k("v_and_b32 v5, 31, v0")
    k("v_lshlrev_b32 v6, 3, v5")
    k(f"v_mov_b32 v{Q4}, 0")
    k(f"v_mov_b32 v{Q4+1}, 0")
    k("s_waitcnt lgkmcnt(0)")
    k.srd(12, 6, 0, WS_SIZE)
    k(f"buffer_load_dwordx4 v[{Q16}:{Q16+3}], v4, s[12:15], s27 offen")
    k("s_mov_b64 exec, 0xffffffff")
    k(f"buffer_load_dwordx2 v[{Q4}:{Q4+1}], v6, s[12:15], s27 offen offset:1024")
    k("s_mov_b64 exec, -1")
    k("s_mov_b32 m0, s29")
    k("s_add_u32 s31, s28, s29")
    for i in range(3):
        k(f"buffer_load_dwordx4 v4, s[12:15], s31 offen offset:{i*1024} lds")
    for g in range(5):
        k(f"s_add_u32 m0, s30, {g*4096}")
        k(f"s_add_u32 s31, s28, s30")
        if g: k(f"s_add_u32 s31, s31, {g*4096}")
        for i in range(4 if g < 4 else 1):
            k(f"buffer_load_dwordx4 v4, s[12:15], s31 offen offset:{i*1024} lds")
    k.stamp(1)
    def lane_addrs():
        k("v_and_b32 v5, 31, v0")
        k("v_and_b32 v6, 0x13, v5")
        k("v_and_b32 v7, 4, v5")
        k("v_lshl_or_b32 v6, v7, 1, v6")
        k("v_and_b32 v7, 8, v5")
        k("v_lshrrev_b32 v7, 1, v7")
        k("v_or_b32 v6, v6, v7")
        k("v_lshrrev_b32 v7, 5, v0")
        k(f"v_lshlrev_b32 v{KA}, 9, v7")
        k(f"v_lshl_add_u32 v{KA}, v6, 4, v{KA}")
        k(f"v_lshlrev_b32 v{KB}, 3, v6")
        k(f"v_add_u32 v{KB}, 1024, v{KB}")
        k(f"v_mul_u32_u24 v{VA}, 320, v7")
        k(f"v_lshl_add_u32 v{VA}, v5, 4, v{VA}")
        k(f"v_add_u32 v{VA}, 1280, v{VA}")
    lane_addrs()
    k("v_cmp_eq_u32 vcc, 20, v5")
    k("v_mov_b32 v7, 0x3f803f80")
    k("s_mov_b32 s34, 0x000fffff")
    k("s_mov_b32 s35, 0x000fffff")
    k(f"v_cndmask_b32 v{V[0]}, 0, v7, vcc")
    for r in range(1, 16):
        k(f"v_mov_b32 v{V[0]+r}, v{V[0]}")
    for r in range(16):
        k(f"v_mov_b32 v{O+r}, 0")
    for r in range(4, 8):
        k(f"v_mov_b32 v{P+r}, 0")
    k("s_waitcnt vmcnt(17)")
    k("s_barrier")
    k.stamp(2)
    def rdK(buf, off):
        k(f"ds_read_b128 v[{K16[buf]}:{K16[buf]+3}], v{KA} offset:{off}")
        k(f"ds_read_b64 v[{K4[buf]}:{K4[buf]+1}], v{KB} offset:{off}")
    def rdV(buf, off):
        k("s_mov_b64 exec, s[34:35]")
        k(f"ds_read_b128 v[{V[buf]}:{V[buf]+3}], v{VA} offset:{off}")
        k(f"ds_read_b128 v[{V[buf]+4}:{V[buf]+7}], v{VA} offset:{off+640}")
        k("s_mov_b64 exec, -1")
    def M1(n): k(f"v_mfma_f32_32x32x16_bf16 v[{S[n]}:{S[n]+15}], v[{K16[n]}:{K16[n]+3}], v[{Q16}:{Q16+3}], 0")
    def M2(n): k(f"v_mfma_f32_32x32x8bf16_1k v[{S[n]}:{S[n]+15}], v[{K4[n]}:{K4[n]+1}], v[{Q4}:{Q4+1}], v[{S[n]}:{S[n]+15}]")
    def MPV(vb, f): k(f"v_mfma_f32_32x32x16_bf16 v[{O}:{O+15}], v[{V[vb]+4*f}:{V[vb]+4*f+3}], v[{P+4*f}:{P+4*f+3}], v[{O}:{O+15}]")
    def G(c, g):
        s = S[c] + 4 * g
        p = P + 2 * g
        if pack == "cvt":
            for i in range(4):
                k(f"v_exp_f32 v{s+i}, v{s+i}")
            k(f"v_cvt_pk_bf16_f32 v{p}, v{s}, v{s+1}")
            k(f"v_cvt_pk_bf16_f32 v{p+1}, v{s+2}, v{s+3}")
        else:
            k(f"v_exp_f32 v{p}, v{s+1}")
            k(f"v_exp_f32 v{s}, v{s}")
            k(f"v_exp_f32 v{p+1}, v{s+3}")
            k(f"v_exp_f32 v{s+2}, v{s+2}")
            k(f"v_mov_b32_sdwa v{p}, v{s} dst_sel:WORD_0 dst_unused:UNUSED_PRESERVE src0_sel:WORD_1")
            k(f"v_mov_b32_sdwa v{p+1}, v{s+2} dst_sel:WORD_0 dst_unused:UNUSED_PRESERVE src0_sel:WORD_1")
    rdK(0, 0)
    rdK(1, 2560)
    rdV(0, 0)
    k("s_waitcnt lgkmcnt(4)")
    M1(0)
    k("s_mov_b32 s36, 0")
    k("s_nop 7")
    k("s_nop 1")
    M2(0)
    k("s_nop 7")
    k("s_nop 3")
    k.lab("loop")
    k("s_cmp_eq_u32 s36, 1")
    k(f"s_cbranch_scc0 {k.ref('nosync')}")
    k("s_waitcnt vmcnt(0)")
    k("s_barrier")
    k.lab("nosync")
    k("s_cmp_eq_u32 s36, 7")
    k(f"s_mov_b32 s37, {(-7*20480) & 0xffffffff:#x}")
    k("s_cselect_b32 s37, s37, 20480")
    for t in range(8):
        c, n = t & 1, (t + 1) & 1
        k("s_waitcnt lgkmcnt(0)")
        M1(n)
        G(c, 0)
        MPV(n, 1)
        if t == 6:
            k(f"v_add_u32 v{KA}, s37, v{KA}")
            k(f"v_add_u32 v{KB}, s37, v{KB}")
        if t == 7:
            k(f"v_add_u32 v{VA}, s37, v{VA}")
        rdK(c, ((t + 2) % 8) * 2560)
        rdV(n, ((t + 1) % 8) * 2560)
        G(c, 1)
        M2(n)
        G(c, 2)
        MPV(c, 0)
        G(c, 3)
    k("s_add_u32 s36, s36, 1")
    k("s_cmp_lt_u32 s36, 8")
    k(f"s_cbranch_scc1 {k.ref('loop')}")
    k("s_nop 0")
    MPV(1, 1)
    k.stamp(3)
    k("s_waitcnt lgkmcnt(0)")
    k("s_nop 7")
    k("s_nop 3")
    k(f"v_mov_b32 v4, v{O+8}")
    k(f"v_mov_b32 v5, v{O+8}")
    k("v_mov_b32 v6, 0")
    k("s_nop 0")
    k("v_permlane32_swap_b32 v4, v5")
    for r in range(12):
        k(f"v_fma_f32 v6, v{O+r}, 0, v6")
    k(f"v_cmp_lt_f32 vcc, {f2u(2.0**-40):#x}, v5")
    k(f"v_cmp_gt_f32 s[38:39], {f2u(2.0**40):#x}, v5" if False else f"s_mov_b32 s40, {f2u(2.0**40):#x}")
    k("v_cmp_gt_f32 s[38:39], s40, v5")
    k("v_cmp_eq_f32 s[42:43], 0, v6")
    k("s_nop 3")
    k("s_and_b64 vcc, vcc, s[38:39]")
    k("s_and_b64 vcc, vcc, s[42:43]")
    if force_slow:
        k("s_mov_b64 vcc, 0")
    k("s_cmp_eq_u64 vcc, -1")
    k(f"s_cbranch_scc0 {k.ref('slow')}")
    k.lab("fin")
    k("v_rcp_f32 v5, v5")
    k("s_mul_i32 s40, s24, 5")
    k("v_lshrrev_b32 v7, 5, v0")
    k("v_add_u32 v7, s40, v7")
    k("v_lshrrev_b32 v6, 1, v7")
    k("v_lshlrev_b32 v6, 9, v6")
    k("v_and_b32 v7, 1, v7")
    k("v_lshl_add_u32 v6, v7, 3, v6")
    k("v_and_b32 v7, 31, v0")
    k("v_lshl_add_u32 v6, v7, 4, v6")
    k("s_mul_i32 s41, s25, 40960")
    k(f"s_add_u32 s41, s41, {WS_O}")
    for r in range(0, 12, 2):
        k(f"v_pk_mul_f32 v[{O+r}:{O+r+1}], v[{O+r}:{O+r+1}], v[4:5] op_sel:[0,1] op_sel_hi:[1,1]")
    k("s_nop 0")
    for j in range(6):
        k(f"v_cvt_pk_bf16_f32 v{16+j}, v{O+2*j}, v{O+2*j+1}")
    k("buffer_store_dwordx2 v[16:17], v6, s[12:15], s41 offen")
    k("buffer_store_dwordx2 v[18:19], v6, s[12:15], s41 offen offset:512")
    k("s_mov_b64 exec, 0xffffffff")
    k("buffer_store_dwordx2 v[20:21], v6, s[12:15], s41 offen offset:1024")
    k("s_waitcnt vmcnt(0)")
    k.stamp(4); k.stamp_flush(6, kidx, 5, 26)
    k.lab("end")
    k("s_endpgm")
    k.lab("slow")
    lane_addrs()
    MX = 88
    k(f"v_mov_b32 v{MX}, {f2u(-3.0e38):#x}")
    for r in range(16):
        k(f"v_mov_b32 v{O+r}, 0")
    k("s_mov_b32 s36, 0")
    k.lab("sl")
    rdK(0, 0)
    rdV(0, 0)
    k("s_waitcnt lgkmcnt(0)")
    M1(0)
    k("s_nop 7"); k("s_nop 1")
    M2(0)
    k("s_nop 7"); k("s_nop 3")
    s = S[0]
    k(f"v_max3_f32 v4, v{s}, v{s+1}, v{s+2}")
    for i in range(3, 15, 2):
        k(f"v_max3_f32 v4, v4, v{s+i}, v{s+i+1}")
    k(f"v_max_f32 v4, v4, v{s+15}")
    k("v_mov_b32 v5, v4")
    k("s_nop 1")
    k("v_permlane32_swap_b32 v4, v5")
    k("s_nop 1")
    k(f"v_max3_f32 v4, v4, v5, v{MX}")
    k(f"v_sub_f32 v5, v{MX}, v4")
    k("v_exp_f32 v5, v5")
    k(f"v_mov_b32 v{MX}, v4")
    for i in range(16):
        k(f"v_sub_f32 v{s+i}, v{s+i}, v4")
    for i in range(16):
        k(f"v_exp_f32 v{s+i}, v{s+i}")
    for r in range(12):
        k(f"v_mul_f32 v{O+r}, v{O+r}, v5")
    for j in range(8):
        k(f"v_cvt_pk_bf16_f32 v{P+j}, v{s+2*j}, v{s+2*j+1}")
    k(f"v_add_u32 v{KA}, 2560, v{KA}")
    k(f"v_add_u32 v{KB}, 2560, v{KB}")
    k(f"v_add_u32 v{VA}, 2560, v{VA}")
    k("s_nop 4")
    MPV(0, 0)
    MPV(0, 1)
    k("s_nop 7"); k("s_nop 3")
    k("s_add_u32 s36, s36, 1")
    k("s_cmp_lt_u32 s36, 64")
    k(f"s_cbranch_scc1 {k.ref('sl')}")
    k(f"v_mov_b32 v4, v{O+8}")
    k(f"v_mov_b32 v5, v{O+8}")
    k("s_nop 1")
    k("v_permlane32_swap_b32 v4, v5")
    k("s_nop 1")
    k(f"s_branch {k.ref('fin')}")
    return k


def l2_prefetch(k, items, half, idx, lw, tmp, vaddr, vdst, srd=12):
    k(f"v_lshlrev_b32 v{vaddr}, 7, v0")
    for n, (base, hb) in enumerate(items):
        per_wg = hb // 32
        per_w = per_wg // 4
        lines = (per_w + 127) // 128
        k(f"s_mul_i32 s{tmp}, s{half}, {hb}")
        k(f"s_mul_i32 s{tmp+1}, s{idx}, {per_wg}")
        k(f"s_add_u32 s{tmp}, s{tmp}, s{tmp+1}")
        k(f"s_mul_i32 s{tmp+1}, s{lw}, {per_w}")
        k(f"s_add_u32 s{tmp}, s{tmp}, s{tmp+1}")
        k(f"s_add_u32 s{tmp}, s{tmp}, {base}")
        done = 0
        while done < lines:
            n_ = min(64, lines - done)
            if n_ < 64:
                m = (1 << n_) - 1
                k(f"s_mov_b32 exec_lo, {m & 0xffffffff:#x}")
                k(f"s_mov_b32 exec_hi, {m >> 32:#x}")
            k(f"buffer_load_dword v{vdst}, v{vaddr}, s[{srd}:{srd+3}], s{tmp} offen")
            if n_ < 64:
                k("s_mov_b64 exec, -1")
            done += n_
            if done < lines:
                k(f"s_add_u32 s{tmp}, s{tmp}, {64*128}")
            vdst += 1

def repack_unit(k, lw, EV, OD, early=False, mid=None, lds=0):
    k(f"s_lshl_b32 s52, s2, 2")
    k(f"s_add_u32 s52, s52, s{lw}")
    k("s_cmp_ge_u32 s52, 880")
    k(f"s_cbranch_scc1 {k.ref('rp_skip' if (early or mid) else 'rp_done')}")
    k.karg(54, 8)
    k.karg(56, 16)
    k.karg(58, 32)
    k.karg(60, 48)
    def setup(lbl, lo, ncg, ptr, size, pitch, TN, K, dst, cs, csp):
        k.lab(lbl)
        k(f"s_sub_u32 s52, s52, {lo}")
        k.srd(64, ptr, 0, size)
        k(f"s_mov_b32 s53, {pitch}")
        k(f"s_mov_b32 s54, {(65536 + TN - 1)//TN}")
        k(f"s_mov_b32 s55, {TN}")
        k(f"s_mov_b32 s56, {K//8*TN*16}")
        k(f"s_mov_b32 s57, {dst}")
        k(f"s_mul_i32 s58, s52, {(65536 + ncg - 1)//ncg}")
        k("s_lshr_b32 s58, s58, 16")
        k(f"s_mul_i32 s59, s58, {ncg}")
        k("s_sub_u32 s59, s52, s59")
        k(f"s_mov_b32 s60, {cs if cs is not None else 0xffffffff:#x}")
        k(f"s_mov_b32 s61, {csp}")
        k(f"s_branch {k.ref('rp_go')}")
    k("s_waitcnt lgkmcnt(0)")
    k("s_cmp_ge_u32 s52, 640"); k(f"s_cbranch_scc1 {k.ref('rp_w2')}")
    k("s_cmp_ge_u32 s52, 540"); k(f"s_cbranch_scc1 {k.ref('rp_wo')}")
    k("s_cmp_ge_u32 s52, 300"); k(f"s_cbranch_scc1 {k.ref('rp_w1')}")
    setup("rp_wq", 0, 30, 54, 640 * 3840, 3840, 128, 640, WS_WQ, WS_CSQ, 1920 * 4)
    setup("rp_w1", 300, 24, 58, 640 * 3072, 3072, 96, 640, WS_W1, WS_CS1, 1536 * 4)
    setup("rp_wo", 540, 10, 56, 640 * 1280, 1280, 80, 640, WS_WO, None, 0)
    setup("rp_w2", 640, 10, 60, 1536 * 1280, 1280, 80, 1536, WS_W2, None, 0)
    k.lab("rp_go")
    if lds:
        VD = OD + 1
        k("v_lshrrev_b32 v4, 3, v0")
        k("v_and_b32 v5, 7, v0")
        k("v_bfe_u32 v6, v0, 4, 1")
        k("v_lshlrev_b32 v6, 2, v6")
        k("v_xor_b32 v5, v5, v6")
        k("v_mul_lo_u32 v4, v4, s53")
        k(f"v_lshl_add_u32 v{VD}, v5, 4, v4")
        k("s_lshl_b32 s62, s58, 6")
        k("s_mul_i32 s62, s62, s53")
        k("s_lshl_b32 s63, s59, 7")
        k("s_add_u32 s52, s62, s63")
        if mid:
            k(f"v_mul_lo_u32 v{OD+2}, v0, s53")
            k(f"buffer_load_dword v{OD+3}, v{OD+2}, s[64:67], s52 offen")
        k(f"s_mul_i32 s69, s{lw}, 8192")
        k(f"s_sub_u32 s69, {lds + 3*8192}, s69")
        k("v_bfe_u32 v6, v0, 2, 2")
        k("v_lshrrev_b32 v7, 4, v0")
        k("v_lshlrev_b32 v7, 1, v7")
        k("v_bfe_u32 v5, v0, 1, 1")
        k("v_add_u32 v7, v7, v5")
        k("v_lshrrev_b32 v5, 1, v6")
        k("v_lshlrev_b32 v5, 2, v5")
        k("v_xor_b32 v7, v7, v5")
        k("v_lshlrev_b32 v7, 4, v7")
        k("v_lshl_add_u32 v7, v6, 7, v7")
        k("v_and_b32 v5, 1, v0")
        k("v_lshl_add_u32 v7, v5, 3, v7")
        k(f"v_add_u32 v{OD}, s69, v7")
        def dmas():
            k("s_lshl_b32 s53, s53, 3")
            for i in range(8):
                k(f"s_add_u32 m0, s69, {i*1024}")
                k("s_add_u32 s52, s52, s53" if i else "s_nop 0")
                k(f"buffer_load_dwordx4 v{VD}, s[64:67], s52 offen lds")
        if not mid: dmas()
    else:
        k("v_lshlrev_b32 v4, 1, v0")
        k("s_lshl_b32 s62, s58, 6")
        k("s_mul_i32 s62, s62, s53")
        k("s_lshl_b32 s63, s59, 7")
        k("s_add_u32 s62, s62, s63")
        for r in range(64):
            d = (OD if r & 1 else EV) + (r >> 1)
            k(f"buffer_load_ushort v{d}, v4, s[64:67], s62 offen")
            if r < 63:
                k("s_add_u32 s62, s62, s53")
        if mid: mid()
    k("s_lshl_b32 s62, s59, 6")
    k("v_add_u32 v4, s62, v0")
    k("v_mul_lo_u32 v5, v4, s54")
    k("v_lshrrev_b32 v5, 16, v5")
    k("v_mul_lo_u32 v6, v5, s55")
    k("v_sub_u32 v6, v4, v6")
    k("v_mul_lo_u32 v5, v5, s56")
    k("v_lshl_add_u32 v5, v6, 4, v5")
    k("s_lshl_b32 s63, s55, 4")
    k("s_lshl_b32 s62, s58, 3")
    k("s_mul_i32 s62, s62, s63")
    k("s_add_u32 s62, s62, s57")
    k("v_mov_b32 v6, 0")
    k("v_mov_b32 v7, 0")
    if lds:
        if mid:
            mid(); dmas()
        for ku in range(8):
            k(f"s_waitcnt vmcnt({7 - ku})")
            k(f"ds_read_b64_tr_b16 v[{EV+4*ku}:{EV+4*ku+1}], v{OD} offset:{ku*1024}")
            k(f"ds_read_b64_tr_b16 v[{EV+4*ku+2}:{EV+4*ku+3}], v{OD} offset:{ku*1024+512}")
        for ku in range(8):
            k(f"s_waitcnt lgkmcnt({14 - 2*ku})")
            k(f"buffer_store_dwordx4 v[{EV+4*ku}:{EV+4*ku+3}], v5, s[12:15], s62 offen")
            if ku < 7:
                k("s_add_u32 s62, s62, s63")
    else:
      for ku in range(8):
        k(f"s_waitcnt vmcnt({min(63, 56 - 8*ku + ku)})")
        for j in range(4 * ku, 4 * ku + 4):
            k(f"v_lshl_or_b32 v{EV+j}, v{OD+j}, 16, v{EV+j}")
        k(f"buffer_store_dwordx4 v[{EV+4*ku}:{EV+4*ku+3}], v5, s[12:15], s62 offen")
        if ku < 7:
            k("s_add_u32 s62, s62, s63")
    k("s_cmp_eq_u32 s60, 0xffffffff")
    k(f"s_cbranch_scc1 {k.ref('rp_done')}")
    for j in range(32):
        k(f"v_dot2c_f32_bf16 v{6 + (j & 1)}, 0x3f803f80, v{EV+j}")
    k("s_mul_i32 s62, s58, s61")
    k("s_add_u32 s62, s62, s60")
    k("v_lshlrev_b32 v4, 2, v4")
    k("s_nop 3")
    k("v_add_f32 v6, v6, v7")
    k("s_nop 0")
    k("buffer_store_dword v6, v4, s[12:15], s62 offen")
    if mid:
        k(f"s_branch {k.ref('rp_done')}")
        k.lab("rp_skip")
        mid()
    if early:
        k(f"s_branch {k.ref('rp_done')}")
        k.lab("rp_skip")
        k("s_waitcnt vmcnt(0)")
    k.lab("rp_done")


PF_ATT = [(WS_WO, 409600), (WS_W1, 983040), (WS_W2, 983040)]

def gen_attn2(name, kidx=0, pack="cvt", force_slow=False, sched=0, dbg=(), pf=0):
    NWG = 256
    LDS = 163840
    k = Kern(name, NWG, 512, LDS, vgpr=160)
    KA, KB, VA = 1, 2, 3
    Q16 = [8, 28]; Q4 = [12, 14]
    K16 = [16, 20]; K4 = [24, 26]
    V = [32, 40]
    S = [48, 64]
    P = 80
    O = [96, 112]
    k(f"s_cmp_ge_u32 s2, {NWG}")
    k(f"s_cbranch_scc1 {k.ref('end')}")
    k.stamp(0)
    k.karg(6, 80)
    wave_id(k, 26)
    k("s_and_b32 s20, s2, 7")
    k("s_lshr_b32 s21, s2, 3")
    k("s_lshr_b32 s22, s21, 3")
    k("s_lshl_b32 s23, s20, 2")
    k("s_add_u32 s24, s23, s22")
    k("v_lshlrev_b32 v4, 4, v0")
    k("s_cmp_lt_u32 s26, 4")
    k(f"s_cbranch_scc1 {k.ref('compute')}")
    k("s_sub_u32 s26, s26, 4")
    k("s_mul_i32 s28, s24, 163840")
    k(f"s_add_u32 s28, s28, {WS_KV}")
    k("s_mul_i32 s29, s26, 6144")
    k("s_mul_i32 s30, s26, 34816")
    k("s_add_u32 s30, s30, 24576")
    k("s_waitcnt lgkmcnt(0)")
    k.srd(12, 6, 0, WS_SIZE)
    k("s_mov_b32 m0, s29")
    k("s_add_u32 s31, s28, s29")
    for i in range(4):
        k(f"buffer_load_dwordx4 v4, s[12:15], s31 offen offset:{i*1024} lds")
    k("s_add_u32 m0, s29, 4096")
    k("s_add_u32 s31, s31, 4096")
    for i in range(2):
        k(f"buffer_load_dwordx4 v4, s[12:15], s31 offen offset:{i*1024} lds")
    k("s_add_u32 s28, s28, s30")
    def stB(g):
        k(f"s_add_u32 m0, s30, {g*4096}")
        k(f"s_add_u32 s31, s28, {g*4096}")
        for i in range(4 if g < 8 else 2):
            k(f"buffer_load_dwordx4 v4, s[12:15], s31 offen offset:{i*1024} lds")
    stB(0); stB(1)
    k.stamp(1)
    k("s_waitcnt vmcnt(8)")
    k.stamp(2)
    k("s_barrier")
    for g in range(2, 9):
        stB(g)
    k.stamp(3)
    k("s_waitcnt vmcnt(0)")
    k.stamp(4)
    k("s_barrier")
    if pf:
        k("s_and_b32 s40, s20, 1")
        l2_prefetch(k, PF_ATT[:pf], 40, 21, 26, 42, 5, 8)
        k("s_waitcnt vmcnt(0)")
    k("s_add_u32 s26, s26, 4")
    k.stamp_flush(6, kidx, 5, 26)
    k.lab("end")
    k("s_endpgm")
    k.lab("compute")
    k("s_and_b32 s25, s21, 7")
    k("s_lshl_b32 s25, s25, 3")
    k("s_lshl_b32 s23, s26, 1")
    k("s_add_u32 s25, s25, s23")
    k("s_lshl_b32 s27, s24, 6")
    k("s_add_u32 s27, s27, s25")
    k("s_mul_i32 s27, s27, 1280")
    k(f"s_add_u32 s27, s27, {WS_Q}")
    k("s_add_u32 s28, s27, 1280")
    k("v_and_b32 v5, 31, v0")
    k("v_lshlrev_b32 v6, 3, v5")
    for x in range(2):
        k(f"v_mov_b32 v{Q4[x]}, 0")
        k(f"v_mov_b32 v{Q4[x]+1}, 0")
    k("s_waitcnt lgkmcnt(0)")
    k.srd(12, 6, 0, WS_SIZE)
    k(f"buffer_load_dwordx4 v[{Q16[0]}:{Q16[0]+3}], v4, s[12:15], s27 offen")
    k(f"buffer_load_dwordx4 v[{Q16[1]}:{Q16[1]+3}], v4, s[12:15], s28 offen")
    k("s_mov_b64 exec, 0xffffffff")
    k(f"buffer_load_dwordx2 v[{Q4[0]}:{Q4[0]+1}], v6, s[12:15], s27 offen offset:1024")
    k(f"buffer_load_dwordx2 v[{Q4[1]}:{Q4[1]+1}], v6, s[12:15], s28 offen offset:1024")
    k("s_mov_b64 exec, -1")
    def lane_addrs():
        k("v_and_b32 v5, 31, v0")
        k("v_and_b32 v6, 0x13, v5")
        k("v_and_b32 v7, 4, v5")
        k("v_lshl_or_b32 v6, v7, 1, v6")
        k("v_and_b32 v7, 8, v5")
        k("v_lshrrev_b32 v7, 1, v7")
        k("v_or_b32 v6, v6, v7")
        k("v_lshrrev_b32 v7, 5, v0")
        k(f"v_lshlrev_b32 v{KA}, 9, v7")
        k(f"v_lshl_add_u32 v{KA}, v6, 4, v{KA}")
        k(f"v_lshlrev_b32 v{KB}, 3, v6")
        k(f"v_add_u32 v{KB}, 1024, v{KB}")
        k(f"v_mul_u32_u24 v{VA}, 320, v7")
        k(f"v_lshl_add_u32 v{VA}, v5, 4, v{VA}")
        k(f"v_add_u32 v{VA}, 1280, v{VA}")
    lane_addrs()
    k("v_cmp_eq_u32 vcc, 20, v5")
    k("v_mov_b32 v7, 0x3f803f80")
    k("s_mov_b32 s34, 0x000fffff")
    k("s_mov_b32 s35, 0x000fffff")
    k(f"v_cndmask_b32 v{V[0]}, 0, v7, vcc")
    for r in range(1, 16):
        k(f"v_mov_b32 v{V[0]+r}, v{V[0]}")
    for r in range(32):
        k(f"v_mov_b32 v{O[0]+r}, 0")
    for r in range(4, 8):
        k(f"v_mov_b32 v{P+r}, 0")
    k.stamp(1)
    k("s_waitcnt vmcnt(0)")
    k("s_barrier")
    k.stamp(2)
    def rdK(buf, off):
        return [f"ds_read_b128 v[{K16[buf]}:{K16[buf]+3}], v{KA} offset:{off}",
                f"ds_read_b64 v[{K4[buf]}:{K4[buf]+1}], v{KB} offset:{off}"]
    def rdV(buf, off):
        return ["s_mov_b64 exec, s[34:35]",
                f"ds_read_b128 v[{V[buf]}:{V[buf]+3}], v{VA} offset:{off}",
                f"ds_read_b128 v[{V[buf]+4}:{V[buf]+7}], v{VA} offset:{off+640}",
                "s_mov_b64 exec, -1"]
    def M1(x, kb): return f"v_mfma_f32_32x32x16_bf16 v[{S[x]}:{S[x]+15}], v[{K16[kb]}:{K16[kb]+3}], v[{Q16[x]}:{Q16[x]+3}], 0"
    def M2(x, kb): return f"v_mfma_f32_32x32x8bf16_1k v[{S[x]}:{S[x]+15}], v[{K4[kb]}:{K4[kb]+1}], v[{Q4[x]}:{Q4[x]+1}], v[{S[x]}:{S[x]+15}]"
    def MPV(x, vb, f): return f"v_mfma_f32_32x32x16_bf16 v[{O[x]}:{O[x]+15}], v[{V[vb]+4*f}:{V[vb]+4*f+3}], v[{P+4*f}:{P+4*f+3}], v[{O[x]}:{O[x]+15}]"
    def G(x, g, fill=()):
        s = S[x] + 4 * g
        p = P + 2 * g
        fill = list(fill)
        if pack == "cvt":
            ex = [f"v_exp_f32 v{s+i}, v{s+i}" for i in range(4)]
            pk = [f"v_cvt_pk_bf16_f32 v{p}, v{s}, v{s+1}", f"v_cvt_pk_bf16_f32 v{p+1}, v{s+2}, v{s+3}"]
        else:
            ex = [f"v_exp_f32 v{p}, v{s+1}", f"v_exp_f32 v{s}, v{s}", f"v_exp_f32 v{p+1}, v{s+3}", f"v_exp_f32 v{s+2}, v{s+2}"]
            pk = [f"v_mov_b32_sdwa v{p}, v{s} dst_sel:WORD_0 dst_unused:UNUSED_PRESERVE src0_sel:WORD_1",
                  f"v_mov_b32_sdwa v{p+1}, v{s+2} dst_sel:WORD_0 dst_unused:UNUSED_PRESERVE src0_sel:WORD_1"]
        for i in range(4):
            k(ex[i])
            if i < len(fill) and fill[i]:
                for f in (fill[i] if isinstance(fill[i], list) else [fill[i]]):
                    k(f)
        for x_ in pk: k(x_)
    for r in rdK(0, 0) + rdK(1, 2560) + rdV(0, 0): k(r)
    k("s_waitcnt lgkmcnt(4)")
    k(M1(0, 0))
    k("s_mov_b32 s36, 0")
    k("s_nop 7")
    k("s_nop 1")
    k(M2(0, 0))
    k("s_nop 7")
    k("s_nop 3")
    k.lab("loop")
    k("s_cmp_eq_u32 s36, 1")
    k(f"s_cbranch_scc0 {k.ref('nosync')}")
    k("s_barrier")
    k.lab("nosync")
    k("s_cmp_eq_u32 s36, 7")
    k(f"s_mov_b32 s37, {(-7*20480) & 0xffffffff:#x}")
    k("s_cselect_b32 s37, s37, 20480")
    L0 = len(k.L)
    for t in range(8):
        c, n = t & 1, (t + 1) & 1
        k("s_waitcnt lgkmcnt(0)")
        k(M1(1, c))
        G(0, 0)
        k(MPV(1, n, 1))
        if t == 7:
            k(f"v_add_u32 v{VA}, s37, v{VA}")
        rv = rdV(n, ((t + 1) % 8) * 2560)
        G(0, 1, fill=[rv])
        k(M2(1, c))
        if t == 6:
            k(f"v_add_u32 v{KA}, s37, v{KA}")
            k(f"v_add_u32 v{KB}, s37, v{KB}")
        rk = rdK(c, ((t + 2) % 8) * 2560)
        G(0, 2, fill=[rk[0], rk[1]])
        k(MPV(0, c, 0))
        G(0, 3)
        k(M1(0, n))
        G(1, 0)
        k(MPV(0, c, 1))
        G(1, 1)
        k(M2(0, n))
        G(1, 2)
        k(MPV(1, c, 0))
        G(1, 3)
    if dbg:
        body = k.L[L0:]
        def drop(l):
            l = l.strip()
            if "nods" in dbg and (l.startswith("ds_") or "exec" in l or l.startswith("s_waitcnt")): return True
            if "nomfma" in dbg and l.startswith("v_mfma"): return True
            if "nocvt" in dbg and (l.startswith("v_cvt") or l.startswith("v_mov_b32_sdwa")): return True
            if "noexp" in dbg and l.startswith("v_exp"): return True
            if "nom2" in dbg and "32x32x8" in l: return True
            if "nopv" in dbg and l.startswith(f"v_mfma_f32_32x32x16_bf16 v[{O[0]}") : return True
            if "nopv" in dbg and l.startswith(f"v_mfma_f32_32x32x16_bf16 v[{O[1]}") : return True
            return False
        k.L = k.L[:L0] + [l for l in body if not drop(l)]
    k("s_add_u32 s36, s36, 1")
    k("s_cmp_lt_u32 s36, 8")
    k(f"s_cbranch_scc1 {k.ref('loop')}")
    k("s_nop 0")
    k(MPV(1, 1, 1))
    k.stamp(3)
    k("s_waitcnt lgkmcnt(0)")
    k("s_nop 7")
    k("s_nop 3")
    L = [5, 7]
    k("v_mov_b32 v16, 0")
    for x in range(2):
        k(f"v_mov_b32 v{L[x]-1}, v{O[x]+8}")
        k(f"v_mov_b32 v{L[x]}, v{O[x]+8}")
    k("s_nop 1")
    for x in range(2):
        k(f"v_permlane32_swap_b32 v{L[x]-1}, v{L[x]}")
    for x in range(2):
        for r in range(12):
            k(f"v_fma_f32 v16, v{O[x]+r}, 0, v16")
    k(f"s_mov_b32 s40, {f2u(2.0**40):#x}")
    k(f"s_mov_b32 s41, {f2u(2.0**-40):#x}")
    k("v_cmp_eq_f32 vcc, 0, v16")
    k("v_cmp_lt_f32 s[42:43], s41, v5")
    k("v_cmp_gt_f32 s[44:45], s40, v5")
    k("v_cmp_lt_f32 s[46:47], s41, v7")
    k("v_cmp_gt_f32 s[48:49], s40, v7")
    k("s_nop 3")
    k("s_and_b64 vcc, vcc, s[42:43]")
    k("s_and_b64 vcc, vcc, s[44:45]")
    k("s_and_b64 vcc, vcc, s[46:47]")
    k("s_and_b64 vcc, vcc, s[48:49]")
    if force_slow:
        k("s_mov_b64 vcc, 0")
    k("s_cmp_eq_u64 vcc, -1")
    k(f"s_cbranch_scc0 {k.ref('slow')}")
    k.lab("fin")
    k("v_rcp_f32 v5, v5")
    k("v_rcp_f32 v7, v7")
    k("s_mul_i32 s40, s24, 5")
    k("v_lshrrev_b32 v17, 5, v0")
    k("v_add_u32 v17, s40, v17")
    k("v_lshrrev_b32 v16, 1, v17")
    k("v_lshlrev_b32 v16, 9, v16")
    k("v_and_b32 v17, 1, v17")
    k("v_lshl_add_u32 v16, v17, 3, v16")
    k("v_and_b32 v17, 31, v0")
    k("v_lshl_add_u32 v16, v17, 4, v16")
    k("s_mul_i32 s41, s25, 40960")
    k(f"s_add_u32 s41, s41, {WS_O}")
    k("s_add_u32 s42, s41, 40960")
    for x in range(2):
        for r in range(0, 12, 2):
            k(f"v_pk_mul_f32 v[{O[x]+r}:{O[x]+r+1}], v[{O[x]+r}:{O[x]+r+1}], v[{L[x]-1}:{L[x]}] op_sel:[0,1] op_sel_hi:[1,1]")
    for x in range(2):
        for j in range(6):
            k(f"v_cvt_pk_bf16_f32 v{20+6*x+j}, v{O[x]+2*j}, v{O[x]+2*j+1}")
    for x in range(2):
        k(f"buffer_store_dwordx2 v[{20+6*x}:{21+6*x}], v16, s[12:15], s{41+x} offen")
        k(f"buffer_store_dwordx2 v[{22+6*x}:{23+6*x}], v16, s[12:15], s{41+x} offen offset:512")
    k("s_mov_b64 exec, 0xffffffff")
    for x in range(2):
        k(f"buffer_store_dwordx2 v[{24+6*x}:{25+6*x}], v16, s[12:15], s{41+x} offen offset:1024")
    k("s_waitcnt vmcnt(0)")
    k.stamp(4); k.stamp_flush(6, kidx, 5, 26)
    k("s_endpgm")
    k.lab("slow")
    MX = 88
    for x in range(2):
        lane_addrs()
        k(f"v_mov_b32 v{MX}, {f2u(-3.0e38):#x}")
        for r in range(16):
            k(f"v_mov_b32 v{O[x]+r}, 0")
        k("s_mov_b32 s36, 0")
        k.lab(f"sl{x}")
        for r in rdK(0, 0) + rdV(0, 0): k(r)
        k("s_waitcnt lgkmcnt(0)")
        k(M1(x, 0))
        k("s_nop 7"); k("s_nop 1")
        k(M2(x, 0))
        k("s_nop 7"); k("s_nop 3")
        s = S[x]
        k(f"v_max3_f32 v4, v{s}, v{s+1}, v{s+2}")
        for i in range(3, 15, 2):
            k(f"v_max3_f32 v4, v4, v{s+i}, v{s+i+1}")
        k(f"v_max_f32 v4, v4, v{s+15}")
        k("v_mov_b32 v5, v4")
        k("s_nop 1")
        k("v_permlane32_swap_b32 v4, v5")
        k("s_nop 1")
        k(f"v_max3_f32 v4, v4, v5, v{MX}")
        k(f"v_sub_f32 v5, v{MX}, v4")
        k("v_exp_f32 v5, v5")
        k(f"v_mov_b32 v{MX}, v4")
        for i in range(16):
            k(f"v_sub_f32 v{s+i}, v{s+i}, v4")
        for i in range(16):
            k(f"v_exp_f32 v{s+i}, v{s+i}")
        for r in range(12):
            k(f"v_mul_f32 v{O[x]+r}, v{O[x]+r}, v5")
        for j in range(8):
            k(f"v_cvt_pk_bf16_f32 v{P+j}, v{s+2*j}, v{s+2*j+1}")
        k(f"v_add_u32 v{KA}, 2560, v{KA}")
        k(f"v_add_u32 v{KB}, 2560, v{KB}")
        k(f"v_add_u32 v{VA}, 2560, v{VA}")
        k("s_nop 4")
        k(MPV(x, 0, 0))
        k(MPV(x, 0, 1))
        k("s_nop 7"); k("s_nop 3")
        k("s_add_u32 s36, s36, 1")
        k("s_cmp_lt_u32 s36, 64")
        k(f"s_cbranch_scc1 {k.ref(f'sl{x}')}")
    for x in range(2):
        k(f"v_mov_b32 v{L[x]-1}, v{O[x]+8}")
        k(f"v_mov_b32 v{L[x]}, v{O[x]+8}")
    k("s_nop 1")
    for x in range(2):
        k(f"v_permlane32_swap_b32 v{L[x]-1}, v{L[x]}")
    k("s_nop 1")
    k(f"s_branch {k.ref('fin')}")
    return k


def gen_attn3(name, kidx=0, force_slow=False, pf=0, h=8, um=8, uh=8, pm=3, phl=0, b2=8, dbg=(), repack=False, amap=0, stream=0, fz=None):
    NWG = 256
    LDS = 163840
    TM = 64 - h
    assert TM % um == 0 and h % uh == 0 and b2 % um == 0 and um % 2 == 0 and uh % 2 == 0
    SLOT = 2688
    assert 8 * SLOT <= b2 * 2560 + 3840
    k = Kern(name, NWG, 512, LDS, vgpr=160) if fz is None else fz.k
    NS_ = " ; nosc" if (fz and fz.xl and "o" not in XSC) else ""
    KA, KB, VA = 1, 2, 3
    Q16 = [8, 28]; Q4 = [12, 14]
    K16 = [16, 20]; K4 = [24, 26]
    V = [32, 40]
    S = [48, 64]
    P = 80
    O = [96, 112]
    if fz is None:
        k(f"s_cmp_ge_u32 s2, {NWG}")
        k(f"s_cbranch_scc1 {k.ref('end')}")
        k.stamp(0)
        k.karg(6, 80)
        wave_id(k, 26)
    k("s_and_b32 s20, s2, 7")
    k("s_lshr_b32 s21, s2, 3")
    if amap:
        k("s_mov_b32 s24, s21")
    else:
        k("s_lshr_b32 s22, s21, 3")
        k("s_lshl_b32 s23, s20, 2")
        k("s_add_u32 s24, s23, s22")
    k("v_lshlrev_b32 v4, 4, v0")
    k("s_and_b32 s33, s26, 3")
    k(f"s_mul_i32 s50, s24, {163840 + KVPAD}")
    k(f"s_add_u32 s50, s50, {WS_KV}")
    if amap:
        k("s_lshl_b32 s25, s20, 3")
    else:
        k("s_and_b32 s25, s21, 7")
        k("s_lshl_b32 s25, s25, 3")
    k("s_lshl_b32 s23, s33, 1")
    k("s_add_u32 s25, s25, s23")
    k("s_lshl_b32 s27, s24, 6")
    k("s_add_u32 s27, s27, s25")
    k("s_mul_i32 s27, s27, 1280")
    k(f"s_add_u32 s27, s27, {WS_Q}")
    k("s_add_u32 s28, s27, 1280")
    def q_loads():
        k("v_and_b32 v5, 31, v0")
        k("v_lshlrev_b32 v6, 3, v5")
        for x in range(2):
            k(f"v_mov_b32 v{Q4[x]}, 0")
            k(f"v_mov_b32 v{Q4[x]+1}, 0")
        k(f"buffer_load_dwordx4 v[{Q16[0]}:{Q16[0]+3}], v4, s[12:15], s27 offen")
        k(f"buffer_load_dwordx4 v[{Q16[1]}:{Q16[1]+3}], v4, s[12:15], s28 offen")
        k("s_mov_b64 exec, 0xffffffff")
        k(f"buffer_load_dwordx2 v[{Q4[0]}:{Q4[0]+1}], v6, s[12:15], s27 offen offset:1024")
        k(f"buffer_load_dwordx2 v[{Q4[1]}:{Q4[1]+1}], v6, s[12:15], s28 offen offset:1024")
        k("s_mov_b64 exec, -1")
    def lane_addrs():
        k("v_and_b32 v5, 31, v0")
        k("v_and_b32 v6, 0x13, v5")
        k("v_and_b32 v7, 4, v5")
        k("v_lshl_or_b32 v6, v7, 1, v6")
        k("v_and_b32 v7, 8, v5")
        k("v_lshrrev_b32 v7, 1, v7")
        k("v_or_b32 v6, v6, v7")
        k("v_lshrrev_b32 v7, 5, v0")
        k(f"v_lshlrev_b32 v{KA}, 9, v7")
        k(f"v_lshl_add_u32 v{KA}, v6, 4, v{KA}")
        k(f"v_lshlrev_b32 v{KB}, 3, v6")
        k(f"v_add_u32 v{KB}, 1024, v{KB}")
        k(f"v_mul_u32_u24 v{VA}, 320, v7")
        k(f"v_lshl_add_u32 v{VA}, v5, 4, v{VA}")
        k(f"v_add_u32 v{VA}, 1280, v{VA}")
    def init_regs():
        lane_addrs()
        k("v_cmp_eq_u32 vcc, 20, v5")
        k("v_mov_b32 v7, 0x3f803f80")
        k("s_mov_b32 s34, 0x000fffff")
        k("s_mov_b32 s35, 0x000fffff")
        k(f"v_cndmask_b32 v{V[0]}, 0, v7, vcc")
        for r in range(1, 16):
            k(f"v_mov_b32 v{V[0]+r}, v{V[0]}")
        for r in range(32):
            k(f"v_mov_b32 v{O[0]+r}, 0")
        for r in range(4, 8):
            k(f"v_mov_b32 v{P+r}, 0")
    def rdK(buf, off):
        return [f"ds_read_b128 v[{K16[buf]}:{K16[buf]+3}], v{KA} offset:{off}",
                f"ds_read_b64 v[{K4[buf]}:{K4[buf]+1}], v{KB} offset:{off}"]
    def rdV(buf, off):
        return ["s_mov_b64 exec, s[34:35]",
                f"ds_read_b128 v[{V[buf]}:{V[buf]+3}], v{VA} offset:{off}",
                f"ds_read_b128 v[{V[buf]+4}:{V[buf]+7}], v{VA} offset:{off+640}",
                "s_mov_b64 exec, -1"]
    def M1(x, kb): return f"v_mfma_f32_32x32x16_bf16 v[{S[x]}:{S[x]+15}], v[{K16[kb]}:{K16[kb]+3}], v[{Q16[x]}:{Q16[x]+3}], 0"
    def M2(x, kb): return f"v_mfma_f32_32x32x8bf16_1k v[{S[x]}:{S[x]+15}], v[{K4[kb]}:{K4[kb]+1}], v[{Q4[x]}:{Q4[x]+1}], v[{S[x]}:{S[x]+15}]"
    def MPV(x, vb, f): return f"v_mfma_f32_32x32x16_bf16 v[{O[x]}:{O[x]+15}], v[{V[vb]+4*f}:{V[vb]+4*f+3}], v[{P+4*f}:{P+4*f+3}], v[{O[x]}:{O[x]+15}]"
    def G(x, g, fill=()):
        s = S[x] + 4 * g
        p = P + 2 * g
        fill = list(fill)
        ex = [f"v_exp_f32 v{s+i}, v{s+i}" for i in range(4)]
        pk = [f"v_cvt_pk_bf16_f32 v{p}, v{s}, v{s+1}", f"v_cvt_pk_bf16_f32 v{p+1}, v{s+2}, v{s+3}"]
        for i in range(4):
            k(ex[i])
            if i < len(fill) and fill[i]:
                for f in (fill[i] if isinstance(fill[i], list) else [fill[i]]):
                    k(f)
        for x_ in pk: k(x_)
    def loop(tag, T, U, bar_after, hook=None):
        NIT = T // U
        assert hook is None or NIT == 1
        for r in rdK(0, 0) + rdK(1, 2560) + rdV(0, 0): k(r)
        k("s_waitcnt lgkmcnt(4)")
        k(M1(0, 0))
        k(f"s_mov_b32 s36, {NIT}")
        if isinstance(bar_after, list):
            assert all(b % U == 0 for b in bar_after)
            k(f"s_mov_b32 s38, {sum(1 << (NIT - b // U) for b in bar_after):#x}")
        k("s_nop 7")
        k("s_nop 1")
        k(M2(0, 0))
        k("s_nop 7")
        k("s_nop 3")
        k.lab(f"loop{tag}")
        if isinstance(bar_after, list):
            k("s_bitcmp1_b32 s38, s36")
            k(f"s_cbranch_scc0 {k.ref('nosync' + tag)}")
            k("s_barrier")
            k.lab("nosync" + tag)
        elif bar_after is not None:
            k(f"s_cmp_eq_u32 s36, {NIT - bar_after // U}")
            k(f"s_cbranch_scc0 {k.ref('nosync' + tag)}")
            k("s_barrier")
            k.lab("nosync" + tag)
        k("s_cmp_eq_u32 s36, 1")
        k(f"s_cselect_b32 s37, 0, {U*2560}")
        for t in range(U):
            c, n = t & 1, (t + 1) & 1
            k("s_waitcnt lgkmcnt(0)")
            if hook: hook(t)
            k(M1(1, c))
            G(0, 0)
            k(MPV(1, n, 1))
            if t == U - 1:
                k(f"v_add_u32 v{VA}, s37, v{VA}")
            rv = rdV(n, ((t + 1) % U) * 2560)
            G(0, 1, fill=[rv])
            k(M2(1, c))
            if t == U - 2:
                k(f"v_add_u32 v{KA}, s37, v{KA}")
                k(f"v_add_u32 v{KB}, s37, v{KB}")
            rk = rdK(c, ((t + 2) % U) * 2560)
            G(0, 2, fill=[rk[0], rk[1]])
            k(MPV(0, c, 0))
            G(0, 3)
            k(M1(0, n))
            G(1, 0)
            k(MPV(0, c, 1))
            G(1, 1)
            k(M2(0, n))
            G(1, 2)
            k(MPV(1, c, 0))
            G(1, 3)
        k("s_sub_u32 s36, s36, 1")
        k("s_cmp_lg_u32 s36, 0")
        k(f"s_cbranch_scc1 {k.ref('loop' + tag)}")
        k("s_nop 0")
        k(MPV(1, 1, 1))
    def finish(role):
        keep, give = role, 1 - role
        tg = "mh"[role]
        T_ = S[0]
        k.stamp(3)
        if fz: fz.mode_issue(12, 250)
        k(f"s_lshl_b32 s40, s33, 1")
        k(f"s_add_u32 s41, s40, {role}")
        k(f"s_add_u32 s40, s40, {1 - role}")
        k(f"s_mul_i32 s41, s41, {SLOT}")
        k(f"s_mul_i32 s40, s40, {SLOT}")
        k("v_lshlrev_b32 v4, 4, v0")
        k("v_and_b32 v5, 31, v0")
        k("v_lshlrev_b32 v5, 2, v5")
        k("v_add_u32 v16, s41, v4")
        k("v_add_u32 v17, s41, v5")
        k("v_add_u32 v18, s40, v4")
        k("v_add_u32 v19, s40, v5")
        for r in range(8, 12):
            k(f"v_mov_b32 v{T_+r}, 0")
        k("s_waitcnt lgkmcnt(0)")
        k("s_nop 7" if role == 0 else "s_nop 0")
        k(f"ds_write_b128 v16, v[{O[give]}:{O[give]+3}]")
        k(f"ds_write_b128 v16, v[{O[give]+4}:{O[give]+7}] offset:1024")
        k("s_mov_b64 exec, 0xffffffff")
        k(f"ds_write_b128 v16, v[{O[give]+8}:{O[give]+11}] offset:2048")
        k("s_not_b64 exec, exec")
        k(f"ds_write_b32 v17, v{O[give]+8} offset:2560")
        k("s_mov_b64 exec, -1")
        k("s_mul_i32 s42, s24, 5")
        k("v_lshrrev_b32 v21, 5, v0")
        k("v_add_u32 v21, s42, v21")
        k("v_lshrrev_b32 v20, 1, v21")
        k("v_lshlrev_b32 v20, 9, v20")
        k("v_and_b32 v21, 1, v21")
        k("v_lshl_add_u32 v20, v21, 3, v20")
        k("v_and_b32 v21, 31, v0")
        k("v_lshl_add_u32 v20, v21, 4, v20")
        k(f"s_add_u32 s51, s25, {keep}")
        k("s_mul_i32 s51, s51, 40960")
        k(f"s_add_u32 s51, s51, {WS_O}")
        k("s_waitcnt lgkmcnt(0)")
        k("s_barrier")
        k(f"ds_read_b128 v[{T_}:{T_+3}], v18")
        k(f"ds_read_b128 v[{T_+4}:{T_+7}], v18 offset:1024")
        k("s_mov_b64 exec, 0xffffffff")
        k(f"ds_read_b128 v[{T_+8}:{T_+11}], v18 offset:2048")
        k("s_not_b64 exec, exec")
        k(f"ds_read_b32 v{T_+8}, v19 offset:2560")
        k("s_mov_b64 exec, -1")
        Ox = O[keep]
        k("s_waitcnt lgkmcnt(2)")
        for r in range(8):
            k(f"v_add_f32 v{Ox+r}, v{Ox+r}, v{T_+r}")
        k("s_waitcnt lgkmcnt(0)")
        for r in range(8, 12):
            k(f"v_add_f32 v{Ox+r}, v{Ox+r}, v{T_+r}")
        k(f"v_mov_b32 v4, v{Ox+8}")
        k(f"v_mov_b32 v5, v{Ox+8}")
        k("v_mov_b32 v16, 0")
        k("s_nop 0")
        k("v_permlane32_swap_b32 v4, v5")
        for r in range(12):
            k(f"v_fma_f32 v16, v{Ox+r}, 0, v16")
        k(f"s_mov_b32 s40, {f2u(2.0**40):#x}")
        k(f"s_mov_b32 s41, {f2u(2.0**-40):#x}")
        k("v_cmp_eq_f32 vcc, 0, v16")
        k("v_cmp_lt_f32 s[42:43], s41, v5")
        k("v_cmp_gt_f32 s[44:45], s40, v5")
        k("s_nop 3")
        k("s_and_b64 vcc, vcc, s[42:43]")
        k("s_and_b64 vcc, vcc, s[44:45]")
        if force_slow:
            k("s_mov_b64 vcc, 0")
        k("s_cmp_eq_u64 vcc, -1")
        k(f"s_cbranch_scc0 {k.ref('slow' + tg)}")
        k.lab("fin" + tg)
        k("v_rcp_f32 v5, v5")
        k("s_nop 0")
        for r in range(0, 12, 2):
            k(f"v_pk_mul_f32 v[{Ox+r}:{Ox+r+1}], v[{Ox+r}:{Ox+r+1}], v[4:5] op_sel:[0,1] op_sel_hi:[1,1]")
        for j in range(6):
            k(f"v_cvt_pk_bf16_f32 v{22+j}, v{Ox+2*j}, v{Ox+2*j+1}")
        k("buffer_store_dwordx2 v[22:23], v20, s[12:15], s51 offen" + NS_)
        k("buffer_store_dwordx2 v[24:25], v20, s[12:15], s51 offen offset:512" + NS_)
        k("s_mov_b64 exec, 0xffffffff")
        k("buffer_store_dwordx2 v[26:27], v20, s[12:15], s51 offen offset:1024" + NS_)
        k("s_waitcnt vmcnt(0)")
        if fz:
            k("s_mov_b64 exec, -1")
            k.stamp(4)
            fz.attn_done(role)
        else:
            k.stamp(4); k.stamp_flush(6, kidx, 5, 26)
            k("s_endpgm")
        k.lab("slow" + tg)
        MX = 88
        x = keep
        lane_addrs()
        k(f"v_mov_b32 v{MX}, {f2u(-3.0e38):#x}")
        for r in range(16):
            k(f"v_mov_b32 v{O[x]+r}, 0")
        k("s_mov_b32 s36, 0")
        k.lab(f"sl{tg}")
        k(f"buffer_load_dwordx4 v[{K16[0]}:{K16[0]+3}], v{KA}, s[12:15], s50 offen")
        k(f"buffer_load_dwordx2 v[{K4[0]}:{K4[0]+1}], v{KB}, s[12:15], s50 offen")
        k("s_mov_b64 exec, s[34:35]")
        k(f"buffer_load_dwordx4 v[{V[0]}:{V[0]+3}], v{VA}, s[12:15], s50 offen")
        k(f"buffer_load_dwordx4 v[{V[0]+4}:{V[0]+7}], v{VA}, s[12:15], s50 offen offset:640")
        k("s_mov_b64 exec, -1")
        k("s_waitcnt vmcnt(0)")
        k(M1(x, 0))
        k("s_nop 7"); k("s_nop 1")
        k(M2(x, 0))
        k("s_nop 7"); k("s_nop 3")
        s = S[x]
        k(f"v_max3_f32 v4, v{s}, v{s+1}, v{s+2}")
        for i in range(3, 15, 2):
            k(f"v_max3_f32 v4, v4, v{s+i}, v{s+i+1}")
        k(f"v_max_f32 v4, v4, v{s+15}")
        k("v_mov_b32 v5, v4")
        k("s_nop 1")
        k("v_permlane32_swap_b32 v4, v5")
        k("s_nop 1")
        k(f"v_max3_f32 v4, v4, v5, v{MX}")
        k(f"v_sub_f32 v5, v{MX}, v4")
        k("v_exp_f32 v5, v5")
        k(f"v_mov_b32 v{MX}, v4")
        for i in range(16):
            k(f"v_sub_f32 v{s+i}, v{s+i}, v4")
        for i in range(16):
            k(f"v_exp_f32 v{s+i}, v{s+i}")
        for r in range(12):
            k(f"v_mul_f32 v{O[x]+r}, v{O[x]+r}, v5")
        for j in range(8):
            k(f"v_cvt_pk_bf16_f32 v{P+j}, v{s+2*j}, v{s+2*j+1}")
        k(f"v_add_u32 v{KA}, 2560, v{KA}")
        k(f"v_add_u32 v{KB}, 2560, v{KB}")
        k(f"v_add_u32 v{VA}, 2560, v{VA}")
        k("s_nop 4")
        k(MPV(x, 0, 0))
        k(MPV(x, 0, 1))
        k("s_nop 7"); k("s_nop 3")
        k("s_add_u32 s36, s36, 1")
        k("s_cmp_lt_u32 s36, 64")
        k(f"s_cbranch_scc1 {k.ref(f'sl{tg}')}")
        k(f"v_mov_b32 v4, v{O[x]+8}")
        k(f"v_mov_b32 v5, v{O[x]+8}")
        k("s_nop 1")
        k("v_permlane32_swap_b32 v4, v5")
        k("s_nop 1")
        k(f"s_branch {k.ref('fin' + tg)}")
    k("s_cmp_lt_u32 s26, 4")
    k(f"s_cbranch_scc1 {k.ref('compute')}")
    if stream:
        assert um == 4
        k("s_lshl_b32 s29, s33, 12")
        k("s_waitcnt lgkmcnt(0)")
        k.srd(12, 6, 0, WS_SIZE)
        k("s_add_u32 s32, s50, s29")
        def grp(G_):
            k(f"s_add_u32 m0, s29, {G_*16384}")
            k(f"s_add_u32 s31, s32, {G_*16384}")
            for i in range(4):
                k(f"buffer_load_dwordx4 v4, s[12:15], s31 offen offset:{i*1024} lds")
        if HPRI: k(f"s_setprio {HPRI}")
        if fz: fz.mode_publish(4)
        grp(0); grp(1)
        k.stamp(1)
        k("s_waitcnt vmcnt(4)")
        k("s_barrier")
        grp(2); grp(3)
        if HPRO == 1: init_regs()
        k("s_waitcnt vmcnt(8)")
        k("s_barrier")
        grp(4); grp(5)
        if HPRO == 2: init_regs()
        k("s_waitcnt vmcnt(8)")
        k("s_barrier")
        for G_ in range(6, 10): grp(G_)
        q_loads()
        if not HPRO: init_regs()
    else:
        k("s_mul_i32 s29, s33, 6144")
        k("s_mul_i32 s30, s33, 34816")
        k("s_add_u32 s30, s30, 24576")
        k("s_waitcnt lgkmcnt(0)")
        k.srd(12, 6, 0, WS_SIZE)
        k("s_mov_b32 m0, s29")
        k("s_add_u32 s31, s50, s29")
        for i in range(4):
            k(f"buffer_load_dwordx4 v4, s[12:15], s31 offen offset:{i*1024} lds")
        k("s_add_u32 m0, s29, 4096")
        k("s_add_u32 s31, s31, 4096")
        for i in range(2):
            k(f"buffer_load_dwordx4 v4, s[12:15], s31 offen offset:{i*1024} lds")
        k("s_add_u32 s32, s50, s30")
        def stB(g):
            k(f"s_add_u32 m0, s30, {g*4096}")
            k(f"s_add_u32 s31, s32, {g*4096}")
            for i in range(4 if g < 8 else 2):
                k(f"buffer_load_dwordx4 v4, s[12:15], s31 offen offset:{i*1024} lds")
        stB(0); stB(1)
        k.stamp(1)
        k("s_waitcnt vmcnt(8)")
        k("s_barrier")
        for g in range(2, 9):
            stB(g)
        q_loads()
        init_regs()
    k(f"v_add_u32 v{KA}, {TM*2560}, v{KA}")
    k(f"v_add_u32 v{KB}, {TM*2560}, v{KB}")
    k(f"v_add_u32 v{VA}, {TM*2560}, v{VA}")
    if repack and ERP == 1:
        repack_unit(k, 33, 48, 128, early=True)
        if fz: k("s_mov_b32 s64, s26")
    else:
        k("s_waitcnt vmcnt(0)")
    if HST == 2: k.stamp(0)
    if repack and RPRIO and ERP == 2: k(f"s_setprio {RPRIO}")
    if repack and RLDS:
        assert stream == 20 and 19712 + 4*8192 <= stream*2560 + 1280 and 7*SLOT <= 19712
    if repack and ERP == 2:
        def mid():
            k("s_barrier")
            k.stamp(2)
        repack_unit(k, 33, 48, 128, mid=mid, lds=(19712 if RLDS else 0))
        if fz: k("s_mov_b32 s64, s26")
    else:
        k("s_barrier")
        k.stamp(2)
    if repack and not ERP:
        if RPRIO: k(f"s_setprio {RPRIO}")
        if RLDS:
            assert stream == 20 and 19712 + 4*8192 <= stream*2560 + 1280 and 7*SLOT <= 19712
        repack_unit(k, 33, 48, 128, lds=(19712 if RLDS else 0))
        if fz: k("s_mov_b32 s64, s26")
    if pf:
        k("s_and_b32 s40, s20, 1")
        l2_prefetch(k, PF_ATT[:pf], 40, 21, 33, 42, 128, 129)
    if fz and fz.xl and "o" in PT:
        k("s_mul_i32 s40, s24, 5")
        k("s_lshr_b32 s40, s40, 1")
        k("s_lshl_b32 s40, s40, 9")
        k("s_mul_i32 s41, s25, 40960")
        k("s_add_u32 s40, s40, s41")
        k(f"s_add_u32 s40, s40, {WS_O}")
        k("v_lshlrev_b32 v90, 7, v0")
        k(f"v_add_u32 v91, {40960 - 12*128}, v90")
        k("v_cmp_gt_u32 vcc, 12, v0")
        k("s_nop 1")
        k("v_cndmask_b32 v90, v91, v90, vcc")
        k("s_mov_b64 exec, 0xffffff")
        k("buffer_load_dword v91, v90, s[12:15], s40 offen")
        k("s_mov_b64 exec, -1")
    if fz and fz.xl and "y" in PT:
        k("s_lshr_b32 s41, s25, 1")
        k("s_mul_i32 s40, s41, 81920")
        k("s_mul_i32 s42, s24, 2560")
        k("s_add_u32 s40, s40, s42")
        k(f"s_add_u32 s40, s40, {WS_X1}")
        k("v_lshlrev_b32 v92, 7, v0")
        k("s_mov_b64 exec, 0xfffff")
        k("buffer_load_dword v93, v92, s[12:15], s40 offen")
        k("s_lshr_b32 s40, s24, 1")
        k("s_lshl_b32 s40, s40, 14")
        k("s_lshl_b32 s41, s41, 9")
        k("s_add_u32 s40, s40, s41")
        k("s_and_b32 s41, s24, 1")
        k("s_lshl_b32 s41, s41, 8")
        k("s_add_u32 s40, s40, s41")
        k(f"s_add_u32 s40, s40, {WS_ST1}")
        k("s_mov_b64 exec, 3")
        k("buffer_load_dword v94, v92, s[12:15], s40 offen")
        k("s_mov_b64 exec, -1")
    if (phl != 0 or (repack and RPRIO) or HPRI) and not (fz and repack and HHI): k(f"s_setprio {phl}")
    if HST: k.stamp(1)
    if fz and repack:
        def hook(t):
            if HHI and t == HHI: k(f"s_setprio {phl}")
            if t == WFT[0]:
                fz.wflag_set(33, 128, younger=((("o" in PT) + 2 * ("y" in PT)) if (WFY and fz.xl) else 0))
                if HST == 1: k.stamp(0)
            if t == WFT[1]: fz.wflag_issue(128)
        loop("h", h, uh, None, hook)
        fz.wflag_wait(128)
    else:
        loop("h", h, uh, None)
    finish(1)
    if fz is None:
        k.lab("end")
        k("s_endpgm")
    k.lab("compute")
    if pm != 0: k(f"s_setprio {pm}")
    k("s_waitcnt lgkmcnt(0)")
    k.srd(12, 6, 0, WS_SIZE)
    q_loads()
    init_regs()
    k.stamp(1)
    k("s_waitcnt vmcnt(0)")
    k("s_barrier")
    k.stamp(2)
    loop("m", TM, um, [4, 8, stream] if stream else b2)
    finish(0)
    return k
```

```python
import sys
from dsl import *
import ph, hazard
from addsc import addsc
def build(which, opt):
    first = int(opt.get("first", 2))
    dbg = tuple(opt.get("dbg", "").split(",")) if opt.get("dbg") else ()
    dk = opt.get("dk", "")
    def D(name):
        if not dk: return dbg
        return dbg if any(name.startswith(p) for p in dk.split(",")) else ()
    def PFD(name):
        best = int(opt.get("pfd", 0)); bl = -1
        for key, val in opt.items():
            if key.startswith("pfd_") and name.startswith(key[4:]) and len(key) > bl: best = int(val); bl = len(key)
        return best
    def FI(name):
        best = first; bl = -1
        for key, val in opt.items():
            if key.startswith("first_") and name.startswith(key[6:]) and len(key) > bl: best = int(val); bl = len(key)
        return best
    A = lambda n, kind, l, ki: ph.gen_gemmA(n, kind, l, ki, dbg=D(n), first=FI(n), pfd=PFD(n))
    B = lambda n, kind, l, ki, **kw: ph.gen_gemmB(n, kind, l, ki, dbg=D(n), first=FI(n), pfd=PFD(n), **kw)
    if which == "a":
        return assemble([ph.gen_prep(dbg), A("qkv0_kernel", "qkv", 0, 1)])
    if which == "aq":
        return assemble([A("qkv0_kernel", "qkv", 0, 1)])
    if which == "ar":
        return assemble([ph.gen_qkv_raw("qkv0_kernel", 1, dbg=D("qkv0"), first=FI("qkv0"), pfd=PFD("qkv0"))])
    if which == "w1":
        return assemble([A("w10_kernel", "w1", 0, 4)])
    if which == "pw1":
        return assemble([ph.gen_prep(), A("w10_kernel", "w1", 0, 4)])
    if which == "attn":
        return assemble([ph.gen_attn("attn0_kernel", 2)])
    if which == "attns":
        return assemble([ph.gen_attn("attn0_kernel", 2, pack="sdwa")])
    if which == "attnf":
        return assemble([ph.gen_attn("attn0_kernel", 2, force_slow=True)])
    if which == "attn2":
        return assemble([ph.gen_attn2("attn0_kernel", 2)])
    if which == "attn2s":
        return assemble([ph.gen_attn2("attn0_kernel", 2, pack="sdwa")])
    if which == "attn2f":
        return assemble([ph.gen_attn2("attn0_kernel", 2, force_slow=True)])
    if which in ("attn3", "attn3f"):
        return assemble([ph.gen_attn3("attn0_kernel", 2, force_slow=(which == "attn3f"), **attn_opts(opt))])
    if which == "wo":
        return assemble([B("wo0_kernel", "wo", 0, 3)])
    if which == "w2":
        return assemble([B("w20_kernel", "w2", 0, 5)])
    if which == "w21":
        return assemble([B("w21_kernel", "w2", 1, 10)])
    if which == "full":
        raw = "raw" in opt
        ks = [] if raw else [ph.gen_prep()]
        at = opt.get("attn", "2")
        for l in range(2):
            r0 = raw and l == 0
            fa = "fa" in opt
            if fa:
                assert raw and "xl" in opt
                ph.NFLAGSET = 16
                if l == 0:
                    ks += [ph.gen_qkv_raw("qkv0_kernel", 1, dbg=D("qkv0"), first=FI("qkv0"), zflags=True, pfd=PFD("qkv0"))]
                nph = 5 if l == 0 else 4
                fz = ph.Fuse(f"f{l}_kernel", nph, 2 + 5*l, xl=True, modeset=10 + l, force_slow="fslow" in opt, sleep=int(opt.get("sleep", 1)), xplain="xplain" in opt, attn_first=True)
                fb = 5 * l
                fz.begin(wait=None, sig=fb + 0)
                ph.gen_attn3("attn", 2 + 5*l, pf=(int(opt.get("pf0", 0)) if r0 else int(opt.get("pf", 0))), repack=r0, fz=fz, **attn_opts(opt))
                fz.begin(wait=fb + 0, sig=fb + 2, rot=1)
                ph.gen_gemmB("wo", "wo", l, 0, dbg=D(f"wo{l}"), first=2, rawres=r0, fz=fz)
                fz.begin(wait=fb + 2, sig=fb + 3, rot=3)
                ph.gen_gemmA("w1", "w1", l, 0, dbg=D(f"w1{l}"), first=2, fz=fz)
                fz.begin(wait=fb + 3, sig=(fb + 4 if l == 0 else None), rot=1)
                ph.gen_gemmB("w2", "w2", l, 0, dbg=D(f"w2{l}"), first=2, fz=fz)
                if l == 0:
                    fz.begin(wait=fb + 4, sig=None, rot=2)
                    ph.gen_gemmA("qkv", "qkv", 1, 0, dbg=D("qkv1"), first=2, fz=fz)
                ks += [fz.close()]
                continue
            if at == "2": a = ph.gen_attn2(f"attn{l}_kernel", 2 + 5*l, pf=int(opt.get("pf", 0)))
            else: a = ph.gen_attn3(f"attn{l}_kernel", 2 + 5*l, pf=(int(opt.get("pf0", 0)) if r0 else int(opt.get("pf", 0))), repack=r0, **attn_opts(opt))
            fuse = int(opt.get("fuse", 0))
            if fuse:
                if l == 0:
                    ks += [ph.gen_qkv_raw("qkv0_kernel", 1, dbg=D("qkv0"), first=FI("qkv0"), zflags=True, pfd=PFD("qkv0"))]
                elif fuse < 3:
                    ks += [A("qkv1_kernel", "qkv", 1, 6)]
                ks += [a]
                nph = 2 if fuse == 1 else (4 if (fuse == 3 and l == 0) else 3)
                xl = "xl" in opt; pw = "pfw" in opt
                fz = ph.Fuse(f"f{l}_kernel", nph, 3 + 5*l, xl=xl, modeset=6 + l, force_slow="fslow" in opt, sleep=int(opt.get("sleep", 1)), xplain="xplain" in opt)
                fb = 3 * l
                W1, W2, WQ = (ph.WS_W1, 1536*1280), (ph.WS_W2, 1536*1280), (ph.WS_WQ, 1920*1280)
                fz.begin(wait=None, sig=fb + 0, rot=0, pfw=(W1 if pw else None))
                ph.gen_gemmB("wo", "wo", l, 0, dbg=D(f"wo{l}"), first=2, rawres=r0, fz=fz)
                fz.begin(wait=fb + 0, sig=(fb + 1 if nph > 2 else None), rot=2, pfw=(W2 if pw and nph > 2 else None))
                ph.gen_gemmA("w1", "w1", l, 0, dbg=D(f"w1{l}"), first=2, fz=fz)
                if nph > 2:
                    fz.begin(wait=fb + 1, sig=(fb + 2 if nph > 3 else None), rot=0, pfw=(WQ if pw and nph > 3 else None))
                    ph.gen_gemmB("w2", "w2", l, 0, dbg=D(f"w2{l}"), first=2, fz=fz)
                if nph > 3:
                    fz.begin(wait=fb + 2, sig=None, rot=0)
                    ph.gen_gemmA("qkv", "qkv", 1, 0, dbg=D("qkv1"), first=2, fz=fz)
                ks += [fz.close()]
                if nph == 2:
                    ks += [B(f"w2{l}_kernel", "w2", l, 5 + 5*l)]
                continue
            q = ph.gen_qkv_raw(f"qkv{l}_kernel", 1 + 5*l, dbg=D(f"qkv{l}"), first=FI(f"qkv{l}"), pfd=PFD(f"qkv{l}")) if r0 else A(f"qkv{l}_kernel", "qkv", l, 1 + 5*l)
            wo = B(f"wo{l}_kernel", "wo", l, 3 + 5*l, rawres=r0)
            ks += [q, a, wo, A(f"w1{l}_kernel", "w1", l, 4 + 5*l),
                   B(f"w2{l}_kernel", "w2", l, 5 + 5*l)]
        return assemble(ks)
def attn_opts(opt):
    o = {}
    for key in ("h", "um", "uh", "pm", "phl", "b2", "amap", "stream"):
        if key in opt: o[key] = int(opt[key])
    return o
if __name__ == "__main__":
    which = sys.argv[1]; out = sys.argv[2]
    opt = {}
    for a in sys.argv[3:]:
        if "=" in a:
            x, y = a.split("=", 1); opt[x] = y
        else: opt[a] = "1"
    Kern.PROF = "prof" in opt
    ph.PFS = int(opt.get("pfs", 128))
    ph.KVPAD = int(opt.get("kvpad", 0))
    ph.LINST = int(opt.get("lin", 0))
    ph.PFA = opt.get("pfa", ""); ph.RINGD = int(opt.get("ringd", 0))
    ph.QST = int(opt.get("qst", 0)); ph.QEXP = int(opt.get("qexp", 0)); ph.QLATE = int(opt.get("qlate", 3))
    ph.XSC = opt.get("xsc", ""); ph.PT = opt.get("pt", ""); ph.OUTP = int(opt.get("outp", 0))
    ph.ERP = int(opt.get("erp", 0)); ph.Q0T = opt.get("q0t", ""); ph.Q0L = int(opt.get("q0l", 0)); ph.HST = int(opt.get("hst", 0)); ph.HHI = int(opt.get("hhi", 0)); ph.HPRI = int(opt.get("hpri", 0)); ph.HPRO = int(opt.get("hpro", 0)); ph.WFY = int(opt.get("wfy", 0)); ph.RLDS = int(opt.get("rlds", 0)); ph.RPRIO = int(opt.get("rprio", 0)); ph.WFT = tuple(int(x) for x in opt.get("wft", "2,6").split(","))
    ph.CW = int(opt.get("cw", 0)); ph.CWN = int(opt.get("cwn", 2))
    t = build(which, opt)
    if "sc1" in opt: t = addsc(t)
    if "scb" in opt: t = addsc(t, opt["scb"].replace("+", " "))
    open(out, "w").write(t)
    bad = hazard.check(t)
    print(out, "hazards:", len(bad), "bytes:", len(t))
    for b in bad[:10]: print(b)
```

```python
from dsl import *
import struct
def f2u(x):
    return struct.unpack("<I", struct.pack("<f", x))[0]

KB = 1024
WS_WQ = 0
WS_W1 = 3 * MB
WS_WO = 5 * MB
WS_W2 = 6 * MB
WS_CSQ = 8 * MB
WS_CS1 = 8 * MB + 128 * KB
WS_ST0 = 8 * MB + 256 * KB
WS_ST1 = 8 * MB + 512 * KB
WS_X0 = 9 * MB
WS_X1 = 12 * MB
WS_X2 = 15 * MB
WS_O = 18 * MB
WS_Q = 21 * MB
WS_KV = 24 * MB
WS_H = 30 * MB
X_BYTES = 2048 * 640 * 2
H_BYTES = 2048 * 1536 * 2
ST_BYTES = 16 * 2048 * 8
Q_BYTES = 32 * 64 * 1280
KV_BYTES = 32 * 64 * 2560
WS_SIZE = 40 * MB
QSCALE = (20 ** -0.5) * 1.4426950408889634
KVPAD = 0
LINST = 0
QST = 0
QEXP = 0
QLATE = 3
Q0T = ""; Q0L = 0; HST = 0; HHI = 0; HPRI = 0; HPRO = 0; WFY = 0; RLDS = 0; RPRIO = 0; WFT = (2, 6)
ERP = 0
NCSP = 10

def wave_id(k, sreg, vtmp=1):
    k(f"v_lshrrev_b32 v{vtmp}, 6, v0")
    k("s_nop 0")
    k(f"v_readfirstlane_b32 s{sreg}, v{vtmp}")
    k("v_and_b32 v0, 63, v0")

def gen_prep(dbg=()):
    NWG = 220
    k = Kern("prep_kernel", NWG, 512, 4 * 8192, vgpr=64)
    k(f"s_cmp_ge_u32 s2, {NWG}")
    k(f"s_cbranch_scc1 {k.ref('end')}")
    k.karg(4, 0)
    k.karg(6, 8)
    k.karg(8, 16)
    k.karg(10, 32)
    k.karg(12, 48)
    k.karg(14, 80)
    wave_id(k, 26)
    k("s_waitcnt lgkmcnt(0)")
    k.srd(16, 14, 0, WS_SIZE)
    k("s_cmp_ge_u32 s26, 4")
    k(f"s_cbranch_scc1 {k.ref('stats')}")
    if "now" in dbg: k(f"s_branch {k.ref('end')}")
    k("s_lshl_b32 s3, s2, 2")
    k("s_add_u32 s3, s3, s26")
    def setup(lbl, lo, ncg, ptr, size, pitch, TN, K, dst, cs, csp):
        k.lab(lbl)
        k(f"s_sub_u32 s3, s3, {lo}")
        k.srd(20, ptr, 0, size)
        k(f"s_mov_b32 s27, {pitch}")
        k(f"s_mov_b32 s28, {(65536 + TN - 1)//TN}")
        k(f"s_mov_b32 s29, {TN}")
        k(f"s_mov_b32 s30, {K//8*TN*16}")
        k(f"s_mov_b32 s31, {dst}")
        k(f"s_mul_i32 s32, s3, {(65536 + ncg - 1)//ncg}")
        k("s_lshr_b32 s32, s32, 16")
        k(f"s_mul_i32 s33, s32, {ncg}")
        k("s_sub_u32 s33, s3, s33")
        k(f"s_mov_b32 s34, {cs if cs is not None else 0xffffffff:#x}")
        k(f"s_mov_b32 s35, {csp}")
        k(f"s_branch {k.ref('go')}")
    k("s_cmp_ge_u32 s3, 640"); k(f"s_cbranch_scc1 {k.ref('m_w2')}")
    k("s_cmp_ge_u32 s3, 540"); k(f"s_cbranch_scc1 {k.ref('m_wo')}")
    k("s_cmp_ge_u32 s3, 300"); k(f"s_cbranch_scc1 {k.ref('m_w1')}")
    setup("m_wq", 0, 30, 6, 640 * 3840, 3840, 128, 640, WS_WQ, WS_CSQ, 1920 * 4)
    setup("m_w1", 300, 24, 10, 640 * 3072, 3072, 96, 640, WS_W1, WS_CS1, 1536 * 4)
    setup("m_wo", 540, 10, 8, 640 * 1280, 1280, 80, 640, WS_WO, None, 0)
    setup("m_w2", 640, 10, 12, 1536 * 1280, 1280, 80, 1536, WS_W2, None, 0)
    k.lab("go")
    k("v_lshrrev_b32 v2, 3, v0")
    k("v_mul_lo_u32 v2, v2, s27")
    k("v_and_b32 v3, 7, v0")
    k("v_lshl_add_u32 v2, v3, 4, v2")
    k("s_lshl_b32 s36, s32, 6")
    k("s_mul_i32 s36, s36, s27")
    k("s_lshl_b32 s37, s33, 7")
    k("s_add_u32 s36, s36, s37")
    k("s_lshl_b32 s38, s27, 3")
    k("s_lshl_b32 s39, s26, 13")
    for j in range(8):
        k(f"s_add_u32 m0, s39, {j*1024}")
        k("s_nop 0")
        k("buffer_load_dwordx4 v2, s[20:23], s36 offen lds")
        if j < 7:
            k("s_add_u32 s36, s36, s38")
    k("s_lshl_b32 s40, s33, 6")
    k("v_add_u32 v4, s40, v0")
    k("v_mul_lo_u32 v5, v4, s28")
    k("v_lshrrev_b32 v5, 16, v5")
    k("v_mul_lo_u32 v6, v5, s29")
    k("v_sub_u32 v6, v4, v6")
    k("v_mul_lo_u32 v5, v5, s30")
    k("v_lshl_add_u32 v5, v6, 4, v5")
    k("s_lshl_b32 s41, s29, 4")
    k("s_lshl_b32 s42, s32, 3")
    k("s_mul_i32 s42, s42, s41")
    k("s_add_u32 s42, s42, s31")
    k("v_bfe_u32 v7, v0, 2, 2")
    k("v_lshlrev_b32 v7, 7, v7")
    k("v_lshrrev_b32 v8, 4, v0")
    k("v_lshl_add_u32 v7, v8, 5, v7")
    k("v_and_b32 v8, 3, v0")
    k("v_lshl_add_u32 v7, v8, 3, v7")
    k("v_add_u32 v7, s39, v7")
    k("v_mov_b32 v10, 0")
    for ku in range(8):
        k(f"s_waitcnt vmcnt({7-ku if ku == 0 else 7})") if False else None
    for ku in range(8):
        k("s_waitcnt vmcnt(7)")
        r = 16 + 4 * ku
        k(f"ds_read_b64_tr_b16 v[{r}:{r+1}], v7 offset:{ku*1024}")
        k(f"ds_read_b64_tr_b16 v[{r+2}:{r+3}], v7 offset:{ku*1024+512}")
        k("s_waitcnt lgkmcnt(0)")
        k(f"buffer_store_dwordx4 v[{r}:{r+3}], v5, s[16:19], s42 offen")
        if ku < 7:
            k("s_add_u32 s42, s42, s41")
    k("s_cmp_eq_u32 s34, 0xffffffff")
    k(f"s_cbranch_scc1 {k.ref('fin')}")
    for i in range(32):
        r = 16 + i
        k(f"v_lshlrev_b32 v8, 16, v{r}")
        k(f"v_and_b32 v9, 0xffff0000, v{r}")
        k("v_add_f32 v10, v10, v8")
        k("v_add_f32 v10, v10, v9")
    k("s_mul_i32 s43, s32, s35")
    k("s_add_u32 s43, s43, s34")
    k("v_lshlrev_b32 v4, 2, v4")
    k("buffer_store_dword v10, v4, s[16:19], s43 offen")
    k.lab("fin")
    k("s_waitcnt vmcnt(0)")
    k("s_endpgm")
    k.lab("stats")
    if "nox" in dbg: k(f"s_branch {k.ref('end')}")
    k("s_cmp_ge_u32 s2, 128")
    k(f"s_cbranch_scc1 {k.ref('end')}")
    k.srd(20, 4, 0, X_BYTES)
    k("s_sub_u32 s26, s26, 4")
    k("s_lshl_b32 s3, s2, 4")
    k("s_lshl_b32 s27, s26, 2")
    k("s_add_u32 s3, s3, s27")
    k("v_lshrrev_b32 v1, 4, v0")
    k("v_add_u32 v1, s3, v1")
    k("v_and_b32 v2, 15, v0")
    k("v_mul_u32_u24 v3, 1280, v1")
    k("v_lshl_add_u32 v3, v2, 4, v3")
    for i in range(5):
        k(f"buffer_load_dwordx4 v[{8+4*i}:{11+4*i}], v3, s[20:23], 0 offen offset:{256*i}")
    k("v_lshrrev_b32 v30, 5, v1")
    k("v_mul_u32_u24 v30, 40960, v30")
    k("v_and_b32 v31, 31, v1")
    k("v_lshl_add_u32 v30, v31, 4, v30")
    k("v_lshl_add_u32 v30, v2, 9, v30")
    k("v_mov_b32 v4, 0")
    k("v_mov_b32 v5, 0")
    for i in range(5):
        k(f"s_waitcnt vmcnt(4)")
        k(f"s_mov_b32 s28, {WS_X0 + i*8192}")
        k(f"buffer_store_dwordx4 v[{8+4*i}:{11+4*i}], v30, s[16:19], s28 offen")
        for j in range(4):
            r = 8 + 4 * i + j
            k(f"v_lshlrev_b32 v6, 16, v{r}")
            k(f"v_and_b32 v7, 0xffff0000, v{r}")
            k("v_add_f32 v4, v4, v6")
            k("v_fmac_f32 v5, v6, v6")
            k("v_add_f32 v4, v4, v7")
            k("v_fmac_f32 v5, v7, v7")
    for sh in (8, 4, 2, 1):
        k("s_nop 1")
        k(f"v_add_f32_dpp v4, v4, v4 row_ror:{sh} row_mask:0xf bank_mask:0xf")
        k(f"v_add_f32_dpp v5, v5, v5 row_ror:{sh} row_mask:0xf bank_mask:0xf")
    k("v_lshlrev_b32 v3, 3, v1")
    k("v_cmp_eq_u32 vcc, 0, v2")
    k("s_and_saveexec_b64 s[30:31], vcc")
    k(f"s_mov_b32 s28, {WS_ST0}")
    k("buffer_store_dwordx2 v[4:5], v3, s[16:19], s28 offen")
    k("s_waitcnt vmcnt(0)")
    k.lab("end")
    k("s_endpgm")
    return k

def ring_loader(k, NCH, NSLOT, dma, nD, pre_b0=None, post_b0=None, first=2, pre_issue=None, fz=None, tail=None):
    if pre_issue:
        w = pre_issue()
    else:
        for c_ in range(first):
            dma(c_)
        w = nD*(first-1)
    k(f"s_waitcnt vmcnt({w})")
    if pre_b0: pre_b0()
    k("s_barrier")
    issued = first
    if post_b0: post_b0()
    ring_tail(k, NCH, NSLOT, dma, nD, issued, fz, tail)

def ring_tail(k, NCH, NSLOT, dma, nD, issued, fz=None, tail=None):
    npf = 0
    for i in range(1, NCH):
        while issued < NCH and issued <= i - 2 + NSLOT - RINGD:
            dma(issued); issued += 1
            if issued == NCH and fz:
                npf = fz.prefetch_w()
                if fz.tail: npf += fz.tail()
            if issued == NCH and tail: npf = tail()
        k(f"s_waitcnt vmcnt({(issued - 1 - i) * nD + npf})")
        k("s_barrier")


WS_FLAG = 8 * MB + 768 * KB
NFLAGSET = 8
WSET = 12
LDS_CNT = 147456
POLL_MAX = 0x4000
class Fuse:
    def __init__(self, name, nph, kidx0, xl=False, modeset=None, force_slow=False, sleep=1, xplain=False, attn_first=False):
        self.attn_first = attn_first
        self.k = Kern(name, 256, 512, 163840 if attn_first else LDS_CNT + 256, vgpr=256)
        self.k.fused = True
        self.nph, self.kidx0, self.p = nph, kidx0, -1
        self.xl, self.modeset, self.force_slow, self.sleep = xl, modeset, force_slow, sleep
        self.xplain = xplain and xl
    def begin(self, wait=None, sig=None, rot=0, pfw=None):
        self.p += 1
        self.wait, self.sig, self.rot, self.pfw = wait, sig, rot, pfw
        self.tail = None
        k = self.k
        if self.p == 0:
            k.pfx = ""
            k("s_cmp_ge_u32 s2, 256")
            k(f"s_cbranch_scc1 {k.ref('fin')}")
            k.karg(6, 80)
            wave_id(k, 64)
            if not self.attn_first:
                k(f"v_mov_b32 v1, {LDS_CNT}")
                k("v_mov_b32 v2, 0")
                k("ds_write_b32 v1, v2")
        k.pfx = f"p{self.p}_"
        k.lab("entry")
        k.stamp(0)
        k("s_mov_b32 s26, s64")
    @property
    def last(self): return self.p == self.nph - 1
    def nxt(self): return f"{self.k.name}_p{self.p+1}_entry"
    def leave(self):
        k = self.k
        k.stamp_save(self.p)
        if self.last:
            k.stamp_flush_all(6, self.kidx0, self.nph, 64)
            k("s_endpgm")
        else:
            k(f"s_branch {self.nxt()}")
    def skip_to_end(self):
        assert self.last
        self.k(f"s_cbranch_scc1 {self.k.name}_skip")
    def close(self):
        k = self.k
        k.pfx = ""
        k.lab("skip")
        k.stamp_flush_all(6, self.kidx0, self.nph, 64)
        k.lab("fin")
        k("s_endpgm")
        return k
    def mode_word(self, d):
        k = self.k
        k(f"s_and_b32 s{d}, s2, 7")
        k(f"s_lshl_b32 s{d}, s{d}, 7")
        k(f"s_add_u32 s{d}, s{d}, {WS_FLAG + self.modeset*4096}")
    def mode_token(self, d, t):
        k = self.k
        k(f"s_getreg_b32 s{t}, hwreg(HW_REG_XCC_ID, 0, 4)")
        k(f"s_mul_i32 s{d}, s{t}, s{t}")
        k(f"s_lshl_b32 s{d}, s{d}, 16")
        k(f"s_lshl_b32 s{t}, s{t}, 6")
        k(f"s_add_u32 s{d}, s{d}, s{t}")
        k(f"s_add_u32 s{d}, s{d}, 1")
    def mode_publish(self, w0=0):
        if not (self.xl and self.p == 0): return
        k = self.k
        k(f"s_cmp_lg_u32 s26, {w0}")
        k(f"s_cbranch_scc1 {k.ref('nopub')}")
        self.mode_token(65, 66)
        self.mode_word(66)
        k("s_mov_b64 exec, 1")
        k("v_mov_b32 v10, s65")
        k("buffer_atomic_add v10, off, s[12:15], s66 sc1")
        k("s_mov_b64 exec, -1")
        k.lab("nopub")
    def mode_issue(self, srd, vd):
        k = self.k
        self.mode_word(62)
        k(f"buffer_load_dword v{vd}, off, s[{srd}:{srd+3}], s62 sc1")
    def mode_resolve(self, srd, vd):
        k = self.k
        l0, l1 = k.newlab("mpoll"), k.newlab("mpolled")
        self.mode_word(62)
        k(f"s_mov_b32 s65, {POLL_MAX}")
        k.lab(l0)
        k(f"v_readfirstlane_b32 s67, v{vd}")
        k("s_and_b32 s66, s67, 63")
        k("s_cmp_eq_u32 s66, 32")
        k(f"s_cbranch_scc1 {k.ref(l1)}")
        k("s_sleep 2")
        k(f"buffer_load_dword v{vd}, off, s[{srd}:{srd+3}], s62 sc1")
        k("s_waitcnt vmcnt(0)")
        k("s_sub_u32 s65, s65, 1")
        k(f"s_cbranch_scc0 {k.ref(l0)}")
        k.lab(l1)
        self.mode_token(65, 66)
        k("s_lshl_b32 s65, s65, 5")
        k("s_cmp_lg_u32 s65, s67")
        k("s_cselect_b32 s63, 1, 0")
        if self.force_slow: k("s_mov_b32 s63, 1")
    def prefetch_w(self):
        if not self.pfw: return 0
        k = self.k
        base, nb = self.pfw
        per_w = nb // 128
        lines = (per_w + 127) // 128
        k("s_lshr_b32 s65, s2, 3")
        k("s_lshl_b32 s65, s65, 2")
        k("s_add_u32 s65, s65, s26")
        k(f"s_mul_i32 s65, s65, {per_w}")
        k(f"s_add_u32 s65, s65, {base}")
        k("v_lshlrev_b32 v12, 7, v0")
        n = 0
        done = 0
        while done < lines:
            n_ = min(64, lines - done)
            if n_ < 64: k(f"s_mov_b64 exec, {(1 << n_) - 1:#x}") if n_ <= 32 else (k(f"s_mov_b32 exec_hi, {((1 << n_) - 1) >> 32:#x}"))
            k(f"buffer_load_dword v{13+n}, v12, s[12:15], s65 offen")
            if n_ < 64: k("s_mov_b64 exec, -1")
            done += n_; n += 1
            if done < lines: k(f"s_add_u32 s65, s65, {64*128}")
        return n
    def poll(self, line, nprod):
        k = self.k
        if self.xl and self.p == 1 and not self.attn_first:
            k(f"s_mov_b32 s61, s{line}")
            self.mode_issue(12, 11)
            k("s_waitcnt vmcnt(0)")
            self.mode_resolve(12, 11)
            line = 61
        k(f"s_lshl_b32 s66, s{line}, 7")
        k(f"s_add_u32 s66, s66, {WS_FLAG + self.wait*4096}")
        k("v_lshlrev_b32 v10, 2, v0")
        k(f"s_mov_b64 exec, {(1 << nprod) - 1:#x}")
        k(f"s_mov_b32 s65, {POLL_MAX}")
        k.lab("poll")
        k("buffer_load_dword v11, v10, s[12:15], s66 offen sc1")
        k("s_waitcnt vmcnt(0)")
        k("v_cmp_ne_u32 vcc, 0, v11")
        k(f"s_cmp_eq_u32 vcc_lo, {(1 << nprod) - 1:#x}")
        k(f"s_cbranch_scc1 {k.ref('polled')}")
        k(f"s_sleep {self.sleep}")
        k("s_sub_u32 s65, s65, 1")
        k(f"s_cbranch_scc0 {k.ref('poll')}")
        k.lab("polled")
        k("s_mov_b64 exec, -1")
        if self.xl:
            k("s_cmp_eq_u32 s63, 0")
            k(f"s_cbranch_scc1 {k.ref('noacq')}")
            k("buffer_inv sc1")
            k("s_waitcnt vmcnt(0)")
            k.lab("noacq")
        k.stamp(3)
    def signal(self):
        k = self.k
        l = k.newlab("nosig")
        k("s_mov_b64 exec, 1")
        k(f"v_mov_b32 v1, {LDS_CNT}")
        k("v_mov_b32 v2, 1")
        k("ds_add_rtn_u32 v3, v1, v2")
        k("s_lshl_b32 s37, s24, 7")
        k("s_lshl_b32 s38, s25, 2")
        k("s_add_u32 s37, s37, s38")
        k(f"s_add_u32 s37, s37, {WS_FLAG + self.sig*4096}")
        k("s_waitcnt lgkmcnt(0)")
        k("v_readfirstlane_b32 s38, v3")
        k("s_and_b32 s38, s38, 3")
        k("s_cmp_eq_u32 s38, 3")
        k(f"s_cbranch_scc0 {k.ref(l)}")
        if self.xl:
            l2 = k.newlab("fastsig")
            k("s_cmp_eq_u32 s63, 0")
            k(f"s_cbranch_scc1 {k.ref(l2)}")
            k("buffer_wbl2 sc1")
            k("s_waitcnt vmcnt(0)")
            k("buffer_store_dword v2, off, s[48:51], s37 sc1")
            k(f"s_branch {k.ref(l)}")
            k.lab(l2)
            k("buffer_store_dword v2, off, s[48:51], s37 ; nosc")
        else:
            k("buffer_store_dword v2, off, s[48:51], s37 sc1")
        k.lab(l)
        k("s_mov_b64 exec, -1")

    def attn_done(self, role):
        k = self.k
        self.mode_resolve(12, 250)
        l, l2 = k.newlab("asig"), k.newlab("afast")
        k(f"s_add_u32 s37, s25, {role}")
        k("s_lshl_b32 s37, s37, 7")
        k("s_lshl_b32 s38, s24, 2")
        k("s_add_u32 s37, s37, s38")
        k(f"s_add_u32 s37, s37, {WS_FLAG + self.sig*4096}")
        k("s_mov_b64 exec, 1")
        k("v_mov_b32 v2, 1")
        k("s_cmp_eq_u32 s63, 0")
        k(f"s_cbranch_scc1 {k.ref(l2)}")
        k("buffer_wbl2 sc1")
        k("s_waitcnt vmcnt(0)")
        k("buffer_store_dword v2, off, s[12:15], s37 sc1")
        k(f"s_branch {k.ref(l)}")
        k.lab(l2)
        k("buffer_store_dword v2, off, s[12:15], s37 ; nosc")
        k.lab(l)
        if role == 0:
            k(f"v_mov_b32 v1, {LDS_CNT}")
            k("v_mov_b32 v2, 0")
            k("ds_write_b32 v1, v2")
            k("s_waitcnt lgkmcnt(0)")
        k("s_mov_b64 exec, -1")
        k("s_setprio 0")
        self.leave()
    def wflag_set(self, lw, v, younger=0):
        k = self.k
        k(f"s_waitcnt vmcnt({younger})")
        k("s_lshl_b32 s52, s2, 2")
        k(f"s_add_u32 s52, s52, s{lw}")
        k("s_lshl_b32 s52, s52, 2")
        k(f"s_add_u32 s52, s52, {WS_FLAG + WSET*4096}")
        k("s_mov_b64 exec, 1")
        k(f"v_mov_b32 v{v}, 1")
        k(f"buffer_store_dword v{v}, off, s[12:15], s52 sc1")
        k("s_mov_b64 exec, -1")
    def wflag_issue(self, v):
        k = self.k
        k(f"v_lshlrev_b32 v{v+16}, 4, v0")
        k(f"s_mov_b32 s52, {WS_FLAG + WSET*4096}")
        for i in range(4):
            k(f"buffer_load_dwordx4 v[{v+4*i}:{v+4*i+3}], v{v+16}, s[12:15], s52 offen offset:{i*1024} sc1")
    def wflag_wait(self, v):
        k = self.k
        l0, l1 = k.newlab("wpoll"), k.newlab("wready")
        k(f"s_mov_b32 s53, {POLL_MAX}")
        k.lab(l0)
        k("s_waitcnt vmcnt(0)")
        for i in range(1, 16):
            k(f"v_and_b32 v{v}, v{v}, v{v+i}")
        k(f"v_cmp_ne_u32 vcc, 0, v{v}")
        k("s_nop 1")
        k("s_cmp_eq_u64 vcc, -1")
        k(f"s_cbranch_scc1 {k.ref(l1)}")
        k("s_sleep 4")
        self.wflag_issue(v)
        k("s_sub_u32 s53, s53, 1")
        k(f"s_cbranch_scc0 {k.ref(l0)}")
        k.lab(l1)

def fin_compute(k, fz, kidx):
    k.stamp(4)
    if fz is None:
        k.stamp_flush(6, kidx, 5, 26)
        k("s_endpgm")
    else:
        if fz.xl and fz.p == 0: fz.mode_resolve(48, 250)
        if fz.sig is not None: fz.signal()
        fz.leave()

def fin_loader(k, fz, kidx):
    k.stamp(4)
    if fz is None:
        k("s_add_u32 s26, s26, 4")
        k.stamp_flush(6, kidx, 5, 26)
        k.lab("end")
        k("s_endpgm")
    else:
        fz.leave()


PFS = 128
CW = 0
XSC = ""
PT = ""
OUTP = 0
CWN = 2
class TilePF:
    def __init__(self, k, pfd, first, NCH, va, vs, vd, srd):
        self.k, self.pfd, self.first, self.NCH, self.va, self.vs, self.vd, self.srd = k, pfd, first, NCH, va, vs, vd, srd
        self.next = first
    def one(self):
        k = self.k
        k(f"buffer_load_dword v{self.vd}, v{self.va}, s[{self.srd}:{self.srd+3}], 0 offen")
        self.next += 1
        if self.next < self.NCH:
            k(f"v_add_u32 v{self.va}, v{self.vs}, v{self.va}")
    def start(self):
        self.next = self.first
        while self.next < self.NCH and self.next <= self.pfd:
            self.one()
    def at_barrier(self):
        if self.pfd and self.next < self.NCH:
            self.one()

def gen_gemmA(name, kind, layer, kidx=0, dbg=(), first=2, pfd=0, fz=None):
    if kind == "qkv":
        NWG, NB, TB, TN = 240, 2, 2, 128
        WS_W, XSRC, ST, NPART, CSP, NCOL = WS_WQ, (WS_X0 if layer == 0 else WS_X2), WS_ST0, (1 if layer == 0 else 16), WS_CSQ, 1920
    else:
        NWG, NB, TB, TN = 256, 3, 1, 96
        WS_W, XSRC, ST, NPART, CSP, NCOL = WS_W1, WS_X1, WS_ST1, 16, WS_CS1, 1536
    WB = TN * 128
    SLOT = WB + 16384
    NSLOT = 4
    NCH = 10
    STATS = NSLOT * SLOT
    LDS = STATS + 2048
    rot = fz.rot if fz else 0
    HO = bool(fz and fz.wait is not None)
    XS = " sc1" if (HO and not fz.xplain) else ""
    if fz is None:
        k = Kern(name, NWG, 512, LDS, vgpr=256)
        k(f"s_cmp_ge_u32 s2, {NWG}")
        k(f"s_cbranch_scc1 {k.ref('end')}")
        k.stamp(0)
        k.karg(6, 80)
        if kind == "w1":
            k.karg(8, 40)
        wave_id(k, 26)
    else:
        k = fz.k
        if NWG < 256:
            k(f"s_cmp_ge_u32 s2, {NWG}")
            fz.skip_to_end()
        if kind == "w1":
            k.karg(8, 40)
    k("s_and_b32 s20, s2, 7")
    k("s_lshr_b32 s21, s2, 3")
    if fz and fz.xl:
        k("s_and_b32 s22, s21, 1")
        k("s_lshl_b32 s23, s20, 1")
        k("s_add_u32 s24, s23, s22")
        k("s_lshr_b32 s25, s21, 1")
    else:
        if kind == "qkv":
            k("s_and_b32 s22, s20, 1")
            k("s_mul_i32 s22, s22, 30")
            k("s_add_u32 s22, s22, s21")
            k("s_lshr_b32 s25, s22, 2")
            k("s_and_b32 s22, s22, 3")
        else:
            k("s_and_b32 s22, s20, 1")
            k("s_lshl_b32 s22, s22, 3")
            k("s_lshr_b32 s23, s21, 2")
            k("s_add_u32 s25, s22, s23")
            k("s_and_b32 s22, s21, 3")
        k("s_lshr_b32 s23, s20, 1")
        k("s_lshl_b32 s23, s23, 2")
        k("s_add_u32 s24, s23, s22")
    k("s_cmp_lt_u32 s26, 4")
    k(f"s_cbranch_scc1 {k.ref('compute')}")

    k("s_sub_u32 s26, s26, 4")
    k("v_lshlrev_b32 v1, 4, v0")
    nW = WB // 4096
    k(f"s_mul_i32 s40, s25, {80*TN*16}")
    k(f"s_mul_i32 s41, s26, {nW*1024}")
    k("s_add_u32 s40, s40, s41")
    k(f"s_add_u32 s40, s40, {WS_W}")
    k("s_mov_b32 s42, s41")
    k("s_lshl_b32 s43, s24, 2")
    k("s_add_u32 s43, s43, s26")
    k("s_mul_i32 s43, s43, 40960")
    k(f"s_add_u32 s43, s43, {XSRC}")
    k("s_lshl_b32 s44, s26, 12")
    k(f"s_add_u32 s44, s44, {WB}")
    k("s_waitcnt lgkmcnt(0)")
    k.srd(12, 6, 0, WS_SIZE)
    def dma(ch, parts="wx"):
        if "nodma" in dbg: return
        slot = (ch + rot) % NSLOT
        if "w" in parts:
            k(f"s_add_u32 m0, s42, {slot*SLOT}")
            k(f"s_add_u32 s45, s40, {ch*WB}")
            for i in range(nW):
                k(f"buffer_load_dwordx4 v1, s[12:15], s45 offen offset:{i*1024} lds")
        if "x" in parts:
            k(f"s_add_u32 m0, s44, {slot*SLOT}")
            k(f"s_add_u32 s45, s43, {ch*4096}")
            for i in range(4):
                k(f"buffer_load_dwordx4 v1, s[12:15], s45 offen offset:{i*1024}{XS} lds")
    nD = nW + 4
    k.stamp(1)
    early = HO
    def stats_loads():
        k("s_lshl_b32 s46, s24, 7")
        k("s_lshl_b32 s47, s26, 5")
        k("s_add_u32 s46, s46, s47")
        k("v_add_u32 v4, s46, v2")
        k("v_lshlrev_b32 v4, 3, v4")
        if NPART == 16:
            k("v_lshl_add_u32 v4, v3, 17, v4")
            for p in range(8):
                k(f"s_mov_b32 s47, {ST + p*16384}")
                k(f"buffer_load_dwordx2 v[{16+2*p}:{17+2*p}], v4, s[12:15], s47 offen{XS}")
        else:
            k(f"s_mov_b32 s47, {ST}")
            k(f"buffer_load_dwordx2 v[16:17], v4, s[12:15], s47 offen{XS}")
    def cs_loads():
        k("s_lshl_b32 s47, s26, 5")
        k("v_add_u32 v5, s47, v2")
        k(f"s_mul_i32 s47, s25, {TN}")
        k("v_add_u32 v6, s47, v5")
        k("v_lshlrev_b32 v7, 2, v6")
        k(f"v_mul_u32_u24 v8, {5*NCOL*4}, v3")
        k("v_add_u32 v7, v7, v8")
        for p in range(5):
            k(f"s_mov_b32 s47, {CSP + p*NCOL*4}")
            k(f"buffer_load_dword v{32+p}, v7, s[12:15], s47 offen")
        if kind == "w1":
            k.srd(16, 8, 0, 1536 * 2)
            k("v_lshlrev_b32 v9, 1, v6")
            k("buffer_load_ushort v38, v9, s[16:19], 0 offen")
    if early:
        for c_ in range(first):
            dma(c_, "w")
        k("v_and_b32 v2, 31, v0")
        k("v_lshrrev_b32 v3, 5, v0")
        cs_loads()
        k("s_lshr_b32 s67, s26, 1")
        k("s_lshl_b32 s46, s24, 1")
        k("s_add_u32 s67, s67, s46")
        fz.poll(67, 8)
        dma(0, "x")
        stats_loads()
        for c_ in range(1, first):
            dma(c_, "x")
        k(f"s_waitcnt vmcnt({4*(first-1)})")
    else:
        dma(0)
        k("v_and_b32 v2, 31, v0")
        k("v_lshrrev_b32 v3, 5, v0")
        stats_loads()
        cs_loads()
        for c_ in range(1, first):
            dma(c_)
        k(f"s_waitcnt vmcnt({nD*(first-1)})")
    k.stamp(2)
    k("s_barrier")
    if NPART == 16:
        for p in range(1, 8):
            k(f"v_add_f32 v16, v16, v{16+2*p}")
            k(f"v_add_f32 v17, v17, v{17+2*p}")
        k("v_mov_b32 v18, v16")
        k("v_mov_b32 v19, v17")
        k("s_nop 1")
        k("v_permlane32_swap_b32 v16, v18")
        k("v_permlane32_swap_b32 v17, v19")
        k("s_nop 1")
        k("v_add_f32 v16, v16, v18")
        k("v_add_f32 v17, v17, v19")
    k(f"v_mul_f32 v16, {f2u(1/640):#x}, v16")
    k(f"v_mul_f32 v17, {f2u(1/640):#x}, v17")
    k("v_fma_f32 v17, -v16, v16, v17")
    k("v_max_f32 v17, 0, v17")
    k(f"v_add_f32 v18, {f2u(1e-5):#x}, v17")
    k("v_rsq_f32 v18, v18")
    if kind == "w1":
        k("s_nop 0")
        k("v_mul_f32 v19, v18, v18")
        k("v_mul_f32 v19, v19, v17")
        k(f"v_add_f32 v19, {f2u(1e-5):#x}, v19")
        k("v_rsq_f32 v19, v19")
        k("s_nop 0")
        k("v_mul_f32 v18, v18, v19")
    else:
        k("s_cmp_lt_u32 s25, 5")
        k(f"s_cselect_b32 s46, {f2u(QSCALE):#x}, 1.0")
        k("v_mul_f32 v18, s46, v18")
    k("s_nop 0")
    k("v_mul_f32 v19, v18, v16")
    for p in range(1, 5):
        k(f"v_add_f32 v32, v32, v{32+p}")
    k("v_mov_b32 v33, v32")
    k("s_nop 1")
    k("v_permlane32_swap_b32 v32, v33")
    k("s_nop 1")
    k("v_add_f32 v32, v32, v33")
    k("v_cmp_eq_u32 vcc, 0, v3")
    k("s_lshl_b32 s47, s26, 7")
    k("v_lshlrev_b32 v2, 2, v2")
    k("v_add_u32 v2, s47, v2")
    k(f"v_add_u32 v2, {STATS}, v2")
    k("v_lshl_add_u32 v2, v3, 9, v2")
    k("v_cndmask_b32 v18, v19, v18, vcc")
    if kind == "w1":
        k("v_lshlrev_b32 v38, 16, v38")
        k("v_cndmask_b32 v32, v38, v32, vcc")
    k("ds_write_b32 v2, v18")
    k("ds_write_b32 v2, v32 offset:1024")
    k("s_waitcnt lgkmcnt(0)")
    issued = first
    if fz and fz.xl and "X" in PT and kind == "w1" and (layer == 0 or OUTP):
        def tail():
            k("v_lshlrev_b32 v12, 7, v0")
            k("s_mul_i32 s46, s24, 163840")
            k("s_lshl_b32 s47, s25, 2")
            k("s_add_u32 s47, s47, s26")
            k("s_mul_i32 s47, s47, 2560")
            k("s_add_u32 s46, s46, s47")
            if layer == 0:
                k(f"s_add_u32 s46, s46, {WS_X2}")
                k("s_mov_b64 exec, 0xfffff")
                k("buffer_load_dword v13, v12, s[12:15], s46 offen")
                k("s_lshl_b32 s46, s25, 14")
                k("s_lshl_b32 s47, s24, 10")
                k("s_add_u32 s46, s46, s47")
                k("s_lshl_b32 s47, s26, 8")
                k("s_add_u32 s46, s46, s47")
                k(f"s_add_u32 s46, s46, {WS_ST0}")
                k("s_mov_b64 exec, 3")
                k("buffer_load_dword v14, v12, s[12:15], s46 offen")
                k("s_mov_b64 exec, -1")
                return 2
            k.karg(56, 64)
            k("s_waitcnt lgkmcnt(0)")
            k.srd(16, 56, 0, X_BYTES)
            k("s_mov_b64 exec, 0xfffff")
            k("buffer_load_dword v13, v12, s[16:19], s46 offen")
            k("s_mov_b64 exec, -1")
            return 1
        fz.tail = tail
    free = [int(d[4:]) for d in dbg if d.startswith("free")]
    if free:
        for c_ in range(first, NCH):
            dma(c_)
            k(f"s_waitcnt vmcnt({free[0]})")
        k("s_waitcnt vmcnt(0)")
        for i in range(1, NCH): k("s_barrier")
    else:
        ring_tail(k, NCH, NSLOT, dma, nD, issued, fz)
    fin_loader(k, fz, kidx)

    k.lab("compute")
    ACC = 64
    FA = [128, 128 + 4 * NB]
    FB = [160, 160 + 4 * TB]
    AW, AX = 1, 3
    HH, TL = 17, 16
    if kind == "qkv":
        k("s_and_b32 s27, s26, 1")
        k("s_lshr_b32 s36, s26, 1")
    else:
        k("s_mov_b32 s27, 0")
        k("s_mov_b32 s36, s26")
    k(f"v_lshrrev_b32 v{HH}, 5, v0")
    k(f"v_and_b32 v{TL}, 31, v0")
    k(f"v_mul_u32_u24 v20, {TN*16}, v{HH}")
    k(f"v_lshl_add_u32 v20, v{TL}, 4, v20")
    k(f"s_mul_i32 s37, s27, {NB*512}")
    k(f"v_add_u32 v{AW}, s37, v20")
    k(f"v_add_u32 v{AW+1}, {2*SLOT}, v{AW}")
    k(f"v_lshlrev_b32 v20, 4, v0")
    k(f"s_mul_i32 s37, s36, {TB*4096}")
    k(f"s_add_u32 s37, s37, {WB}")
    k(f"v_add_u32 v{AX}, s37, v20")
    k(f"v_add_u32 v{AX+1}, {2*SLOT}, v{AX}")

    def reads(step):
        ch, ks = divmod(step, 4)
        slot = (ch + rot) % NSLOT
        half, sl = divmod(slot, 2)
        st = step & 1
        out = []
        for nb in range(NB):
            d = FA[st] + nb * 4
            out.append(f"ds_read_b128 v[{d}:{d+3}], v{AW+half} offset:{sl*SLOT + ks*2*TN*16 + nb*512}")
        for tb in range(TB):
            d = FB[st] + tb * 4
            out.append(f"ds_read_b128 v[{d}:{d+3}], v{AX+half} offset:{sl*SLOT + ks*1024 + tb*4096}")
        return out

    def mainloop(swap, late=()):
        nx0 = PFT.next
        k.stamp(1)
        k("s_barrier")
        k.stamp(2)
        for r in reads(0):
            k(r)
        NS = NCH * 4
        for step in range(NS):
            st = step & 1
            if step == QLATE:
                for f_ in late: f_()
            bar = step % 4 == 3 and step + 1 < NS
            cw = CW and not bar
            if not cw: k("s_waitcnt lgkmcnt(0)")
            if bar:
                k("s_barrier")
            rd = reads(step + 1) if step + 1 < NS else []
            if CW:
                wr, xr = rd[:NB], rd[NB:]
                rd = []
                for j in range(max(NB, TB)):
                    rd += wr[j:j+1] + xr[j:j+1]
            mf = []
            for nb in range(NB):
                for tb in range(TB):
                    d = ACC + (nb * TB + tb) * 16
                    a = FA[st] + nb * 4
                    b = FB[st] + tb * 4
                    c = "0" if step == 0 else f"v[{d}:{d+15}]"
                    if swap:
                        mf.append(f"v_mfma_f32_32x32x16_bf16 v[{d}:{d+15}], v[{b}:{b+3}], v[{a}:{a+3}], {c}")
                    else:
                        mf.append(f"v_mfma_f32_32x32x16_bf16 v[{d}:{d+15}], v[{a}:{a+3}], v[{b}:{b+3}], {c}")
            def pos(nb, tb):
                order = []
                for j in range(max(NB, TB)):
                    if j < NB: order.append(("w", j))
                    if j < TB: order.append(("x", j))
                return max(order.index(("w", nb)), order.index(("x", tb))), len(order)
            ri = 0
            issued_now = 0
            i = 0
            lastw = None
            for nb in range(NB):
                for tb in range(TB):
                    m = mf[i]
                    if cw and step > 0:
                        p, n_ = pos(nb, tb)
                        w_ = (n_ - 1 - p) + issued_now
                        if lastw is None or p > lastw:
                            k(f"s_waitcnt lgkmcnt({w_})")
                            lastw = p
                    elif cw and step == 0 and i == 0:
                        k("s_waitcnt lgkmcnt(0)")
                    if "nomfma" not in dbg: k(m)
                    nper = 2 if not CW else CWN
                    for r in rd[ri:ri + nper]:
                        if "nords" not in dbg: k(r)
                        issued_now += 1
                    ri += nper
                    if i == 2 and step % 4 == 3: PFT.at_barrier()
                    i += 1
            assert ri >= len(rd)
        k.stamp(3)
        PFT.next = nx0

    k("s_waitcnt lgkmcnt(0)")
    PFT = TilePF(k, pfd, first, NCH, 8, 9, 10, 56)
    if pfd:
        k.srd(56, 6, 0, WS_SIZE)
        PS = PFS
        sh = {128: 7, 64: 6, 32: 5}[PS]
        nw = WB // 16 // PS
        NWL = 1024 // PS
        nx = 512 // PS
        k("s_and_b32 s37, s24, 3")
        k(f"s_mul_i32 s37, s37, {WB//4}")
        k(f"s_mul_i32 s38, s26, {WB//16}")
        k("s_add_u32 s37, s37, s38")
        k(f"s_mul_i32 s38, s25, {80*TN*16}")
        k("s_add_u32 s37, s37, s38")
        k(f"s_add_u32 s37, s37, {WS_W + first*WB}")
        k("s_and_b32 s38, s20, 1")
        k(f"s_mul_i32 s38, s38, {7 if kind == 'qkv' else 8}")
        k("s_sub_u32 s38, s25, s38")
        k("s_lshr_b32 s39, s38, 1")
        k("s_lshl_b32 s40, s24, 2")
        k("s_add_u32 s39, s39, s40")
        k("s_mul_i32 s39, s39, 40960")
        k("s_and_b32 s38, s38, 1")
        k("s_lshl_b32 s38, s38, 11")
        k("s_add_u32 s39, s39, s38")
        k("s_lshl_b32 s38, s26, 9")
        k("s_add_u32 s39, s39, s38")
        k(f"s_add_u32 s39, s39, {XSRC + first*4096 - NWL*PS}")
        k(f"v_lshlrev_b32 v8, {sh}, v0")
        k("v_mov_b32 v11, s39")
        k("v_mov_b32 v12, s37")
        k(f"v_cmp_gt_u32 vcc, {NWL}, v0")
        k(f"v_mov_b32 v9, 4096")
        k(f"v_mov_b32 v13, {WB}")
        k("v_cndmask_b32 v11, v11, v12, vcc")
        k("v_cndmask_b32 v9, v9, v13, vcc")
        k("v_add_u32 v8, v11, v8")
        k(f"v_cmp_gt_u32 vcc, {NWL+nx}, v0")
        k("v_mov_b32 v12, 0x80000000")
        k("s_nop 0")
        k("v_cndmask_b32 v8, v12, v8, vcc")
        if nw < NWL:
            k(f"v_subrev_u32 v13, {nw}, v0")
            k(f"v_cmp_gt_u32 vcc, {NWL-nw}, v13")
            k("s_nop 1")
            k("v_cndmask_b32 v8, v8, v12, vcc")
        PFT.start()
    if kind == "qkv":
        k("s_cmp_ge_u32 s25, 10")
        k(f"s_cbranch_scc1 {k.ref('vpath')}")
        stg = None
        if QST & 2:
            assert fz is None or fz.last
            stg = 65536 if (NCH - 1 + rot) % NSLOT < 2 else 0
        late = [] if QLATE >= 0 else None
        pre_qk(k, HH, TL, stg=stg, late=late)
        mainloop(False, late or ())
        epi_qk(k, ACC, STATS, HH, TL, stg=stg)
        fin_compute(k, fz, kidx)
        k.lab("vpath")
        late = [] if QLATE >= 0 else None
        pre_v(k, HH, TL, stg=stg, late=late)
        mainloop(True, late or ())
        epi_v(k, ACC, STATS, HH, TL, stg=stg)
        fin_compute(k, fz, kidx)
    else:
        if fz and fz.xl and "h" in PT:
            k.srd(48, 6, 0, WS_SIZE)
            k("s_lshl_b32 s39, s24, 2")
            k("s_add_u32 s39, s39, s36")
            k("s_mul_i32 s39, s39, 98304")
            k("s_mul_i32 s40, s25, 6144")
            k("s_add_u32 s39, s39, s40")
            k(f"s_add_u32 s39, s39, {WS_H}")
            k("v_lshlrev_b32 v63, 7, v0")
            k("s_mov_b32 exec_hi, 0xffff")
            k("buffer_load_dword v62, v63, s[48:51], s39 offen")
            k("s_mov_b32 exec_hi, -1")
        mainloop(False)
        epi_w1(k, ACC, STATS, HH, TL, NS_=(" ; nosc" if (fz and fz.xl and "h" not in XSC) else ""))
        fin_compute(k, fz, kidx)
    return k


def gen_qkv_raw(name, kidx=0, dbg=(), first=2, pfd=0, zflags=False):
    NWG, NB, TB, TN = 240, 2, 2, 128
    WB = 16384
    SLOT = 2 * WB
    NSLOT = 4
    NCH = 10
    STATS = NSLOT * SLOT
    LDS = STATS + 2048
    k = Kern(name, NWG, 512, LDS, vgpr=256)
    k(f"s_cmp_ge_u32 s2, {NWG}")
    k(f"s_cbranch_scc1 {k.ref('end')}")
    k.stamp(0)
    k.karg(8, 0)
    k.karg(10, 8)
    k.karg(6, 80)
    wave_id(k, 26)
    k("s_and_b32 s20, s2, 7")
    k("s_lshr_b32 s21, s2, 3")
    k("s_and_b32 s22, s20, 1")
    k("s_mul_i32 s22, s22, 30")
    k("s_add_u32 s22, s22, s21")
    k("s_lshr_b32 s25, s22, 2")
    k("s_and_b32 s22, s22, 3")
    k("s_lshr_b32 s23, s20, 1")
    k("s_lshl_b32 s23, s23, 2")
    k("s_add_u32 s24, s23, s22")
    k("s_cmp_lt_u32 s26, 4")
    k(f"s_cbranch_scc1 {k.ref('compute')}")
    k("s_sub_u32 s26, s26, 4")
    if "w" in Q0T:
        k.karg(60, 16); k.karg(62, 32); k.karg(64, 48)
    VW, VX = 4, 8
    k("v_lshrrev_b32 v1, 4, v0")
    k("v_and_b32 v2, 15, v0")
    k("v_lshlrev_b32 v3, 2, v1")
    k("v_xor_b32 v2, v2, v3")
    k("v_mul_u32_u24 v1, 3840, v1")
    k(f"v_lshl_add_u32 v{VW}, v2, 4, v1")
    for i in range(1, 4):
        k(f"v_add_u32 v{VW+i}, {4*3840-1024}, v{VW+i-1}")
    k("v_lshrrev_b32 v1, 3, v0")
    k("v_and_b32 v2, 7, v0")
    k("v_lshrrev_b32 v3, 1, v1")
    k("v_xor_b32 v2, v2, v3")
    k("v_mul_u32_u24 v1, 1280, v1")
    k(f"v_lshl_add_u32 v{VX}, v2, 4, v1")
    k("v_xor_b32 v2, 4, v2")
    k("v_lshl_add_u32 v2, v2, 4, v1")
    k(f"v_add_u32 v{VX+1}, {8*1280-1024}, v2")
    k(f"v_add_u32 v{VX+2}, {2*(8*1280-1024)}, v{VX}")
    k(f"v_add_u32 v{VX+3}, {3*(8*1280-1024)}, v2")
    k("s_lshl_b32 s40, s25, 8")
    k(f"s_mul_i32 s41, s26, {16*3840}")
    k("s_add_u32 s40, s40, s41")
    k("s_lshl_b32 s42, s26, 12")
    k("s_lshl_b32 s43, s24, 2")
    k("s_add_u32 s43, s43, s26")
    k(f"s_mul_i32 s43, s43, {32*1280}")
    k(f"s_add_u32 s44, s42, {WB}")
    k("s_waitcnt lgkmcnt(0)")
    k.srd(12, 10, 0, 640 * 3840)
    k.srd(16, 8, 0, X_BYTES)
    def dma(ch):
        slot = ch % NSLOT
        k(f"s_add_u32 m0, s42, {slot*SLOT}")
        k(f"s_add_u32 s45, s40, {ch*64*3840}")
        for i in range(4):
            k(f"buffer_load_dwordx4 v{VW+i}, s[12:15], s45 offen offset:{i*1024} lds")
        k(f"s_add_u32 m0, s44, {slot*SLOT}")
        k(f"s_add_u32 s45, s43, {ch*128}")
        for i in range(4):
            k(f"buffer_load_dwordx4 v{VX+i}, s[16:19], s45 offen offset:{i*1024} lds")
    k.stamp(1)
    def pre(): k.stamp(2)
    def q0tail():
        n = 0
        k("s_lshl_b32 s46, s2, 2")
        k("s_add_u32 s46, s46, s26")
        k("v_lshlrev_b32 v12, 7, v0")
        k.srd(48, 6, 0, WS_SIZE)
        def part(srd, base, lines, v, size=None):
            k(f"s_mul_i32 s47, s46, {lines*128}")
            if size is not None and 960*lines*128 > size: k(f"s_min_u32 s47, s47, {size - lines*128}")
            if base: k(f"s_add_u32 s47, s47, {base}")
            if lines < 64: k(f"s_mov_b64 exec, {(1 << lines) - 1:#x}")
            k(f"buffer_load_dword v{v}, v12, s[{srd}:{srd+3}], s47 offen")
            if lines < 64: k("s_mov_b64 exec, -1")
        for ch_ in Q0T:
            if ch_ == "k":
                assert KVPAD == 0
                k("s_cmp_lt_u32 s46, 320")
                k(f"s_mov_b32 s52, {WS_KV - 320*8192}")
                k(f"s_cselect_b32 s52, {WS_Q}, s52")
                k("s_lshl_b32 s47, s46, 13")
                k("s_add_u32 s47, s47, s52")
                k("buffer_load_dword v13, v12, s[48:51], s47 offen"); n += 1
            if ch_ == "w":
                for (ptr, size, lines, v) in ((60, 640*1280, 7, 14), (62, 640*3072, 16, 15), (64, 1536*1280, 16, 16)):
                    k.srd(52, ptr, 0, size)
                    part(52, 0, lines, v, size); n += 1
            if ch_ == "p":
                for (base, lines, v) in ((WS_WO, 7, 17), (WS_W1, 16, 18), (WS_W2, 16, 19), (WS_WQ, 20, 20), (WS_CSQ, 2, 21)):
                    part(48, base, lines, v); n += 1
        return n
    ring_loader(k, NCH, NSLOT, dma, 8, pre_b0=pre, first=first, tail=(q0tail if Q0T and not Q0L else None))
    if Q0T and Q0L:
        q0tail()
        k("s_waitcnt vmcnt(0)")
    if zflags:
        k(f"s_cmp_ge_u32 s2, {NFLAGSET*4}")
        k(f"s_cbranch_scc1 {k.ref('zdone')}")
        k("s_cmp_lg_u32 s26, 0")
        k(f"s_cbranch_scc1 {k.ref('zdone')}")
        k.srd(48, 6, WS_FLAG, NFLAGSET*4096)
        k("s_lshl_b32 s45, s2, 10")
        k("v_lshlrev_b32 v1, 4, v0")
        for r in range(4):
            k(f"v_mov_b32 v{12+r}, 0")
        k("buffer_store_dwordx4 v[12:15], v1, s[48:51], s45 offen")
        k("s_waitcnt vmcnt(0)")
        k.lab("zdone")
    k.stamp(4)
    k("s_add_u32 s26, s26, 4")
    k.stamp_flush(6, kidx, 5, 26)
    k.lab("end")
    k("s_endpgm")

    k.lab("compute")
    ACC = 64
    FA = [128, 128 + 4 * NB]
    FB = [160, 160 + 4 * TB]
    AW, AX = 2, 192
    HH, TL = 17, 16
    S1, S2, TMP, SEL, CS = 48, 50, 52, 60, 32
    k("s_and_b32 s27, s26, 1")
    k("s_lshr_b32 s36, s26, 1")
    k(f"v_lshrrev_b32 v{HH}, 5, v0")
    k(f"v_and_b32 v{TL}, 31, v0")
    k("v_lshrrev_b32 v20, 4, v0")
    k("v_bfe_u32 v21, v0, 2, 2")
    k("v_and_b32 v22, 3, v0")
    k("v_lshrrev_b32 v23, 1, v20")
    k("v_lshl_add_u32 v23, v23, 3, v21")
    k("v_and_b32 v18, 1, v20")
    k("v_lshlrev_b32 v18, 1, v18")
    k("v_lshrrev_b32 v19, 1, v22")
    k("v_add_u32 v18, v18, v19")
    k("s_lshl_b32 s37, s27, 3")
    k("v_add_u32 v18, s37, v18")
    k("v_lshlrev_b32 v19, 2, v21")
    k("v_xor_b32 v18, v18, v19")
    k("v_lshlrev_b32 v18, 4, v18")
    k("v_lshl_add_u32 v18, v23, 8, v18")
    k("v_and_b32 v19, 1, v22")
    k(f"v_lshl_add_u32 v{AW}, v19, 3, v18")
    k(f"v_add_u32 v{AW+1}, {2*SLOT}, v{AW}")
    k(f"v_xor_b32 v{AW+2}, 64, v{AW}")
    k(f"v_add_u32 v{AW+3}, {2*SLOT}, v{AW+2}")
    k(f"v_bfe_u32 v18, v{TL}, 1, 3")
    k(f"v_xor_b32 v18, v18, v{HH}")
    k("v_lshlrev_b32 v18, 4, v18")
    k(f"v_lshl_add_u32 v18, v{TL}, 7, v18")
    k("s_lshl_b32 s37, s36, 13")
    k("s_lshl_b32 s38, s27, 12")
    k("s_add_u32 s37, s37, s38")
    k(f"s_add_u32 s37, s37, {WB}")
    k(f"v_add_u32 v{AX}, s37, v18")
    for sl_ in range(2):
        for ks in range(4):
            d = AX + (sl_ * 4 + ks) * 2
            x = (sl_ << 12) | (ks << 5)
            if x: k(f"v_xor_b32 v{d}, {x}, v{AX}")
            k(f"v_add_u32 v{d+1}, {2*SLOT}, v{d}")
    k("v_and_b32 v18, 15, v0")
    k("v_bfe_u32 v19, v0, 4, 1")
    k("v_cmp_eq_u32 vcc, v18, v19")
    k("v_mov_b32 v19, 0x3f803f80")
    k("s_nop 0")
    k(f"v_cndmask_b32 v{SEL}, 0, v19, vcc")
    for r in range(1, 4):
        k(f"v_mov_b32 v{SEL+r}, v{SEL}")
    for r in range(4):
        k(f"v_mov_b32 v{S1+r}, 0")

    def reads(step):
        ch, ks = divmod(step, 4)
        slot = ch % NSLOT
        half, sl = divmod(slot, 2)
        st = step & 1
        out = []
        for tb in range(TB):
            d = FB[st] + tb * 4
            out.append(f"ds_read_b128 v[{d}:{d+3}], v{AX+(tb*4+ks)*2+half} offset:{sl*SLOT}")
        for nb in range(NB):
            d = FA[st] + nb * 4
            out.append(f"ds_read_b64_tr_b16 v[{d}:{d+1}], v{AW+nb*2+half} offset:{sl*SLOT + ks*4096}")
            out.append(f"ds_read_b64_tr_b16 v[{d+2}:{d+3}], v{AW+nb*2+half} offset:{sl*SLOT + ks*4096 + 1024}")
        return out

    def mainloop(swap, late=()):
        nx0 = PFT.next
        k.stamp(1)
        k("s_barrier")
        k.stamp(2)
        for r in reads(0):
            k(r)
        NS = NCH * 4
        for step in range(NS):
            st = step & 1
            if step == QLATE:
                for f_ in late: f_()
            k("s_waitcnt lgkmcnt(0)")
            if step % 4 == 3 and step + 1 < NS:
                k("s_barrier")
                PFT.at_barrier()
            rd = reads(step + 1) if step + 1 < NS else []
            mf = []
            for nb in range(NB):
                for tb in range(TB):
                    d = ACC + (nb * TB + tb) * 16
                    a = FA[st] + nb * 4
                    b = FB[st] + tb * 4
                    c = "0" if step == 0 else f"v[{d}:{d+15}]"
                    if swap:
                        mf.append(f"v_mfma_f32_32x32x16_bf16 v[{d}:{d+15}], v[{b}:{b+3}], v[{a}:{a+3}], {c}")
                    else:
                        mf.append(f"v_mfma_f32_32x32x16_bf16 v[{d}:{d+15}], v[{a}:{a+3}], v[{b}:{b+3}], {c}")
            for nb in range(NB):
                d = CS + 4 * nb
                a = FA[st] + nb * 4
                c = "0" if step == 0 else f"v[{d}:{d+3}]"
                mf.insert(2 + 3 * nb, f"v_mfma_f32_16x16x32_bf16 v[{d}:{d+3}], v[{SEL}:{SEL+3}], v[{a}:{a+3}], {c}")
            va = []
            for r in range(4):
                x = FB[st] + r
                t = TMP + 2 * (r & 1)
                va += [f"v_and_b32 v{t}, 0xffff0000, v{x}", f"v_lshlrev_b32 v{t+1}, 16, v{x}",
                       f"v_add_f32 v{S1}, v{S1}, v{t}", f"v_fmac_f32 v{S2}, v{t}, v{t}",
                       f"v_add_f32 v{S1+1}, v{S1+1}, v{t+1}", f"v_fmac_f32 v{S2+1}, v{t+1}, v{t+1}"]
            if "nostat" in dbg: va = []
            ri, vi = 0, 0
            for i, m in enumerate(mf):
                k(m)
                nrd = 1
                for r in rd[ri:ri + nrd]: k(r)
                ri += nrd
                for x in va[vi:vi + 4]: k(x)
                vi += 4
            assert ri >= len(rd) and vi >= len(va)
        k.stamp(3)
        k(f"v_add_f32 v40, v{S1}, v{S1+1}")
        k(f"v_add_f32 v41, v{S2}, v{S2+1}")
        k("v_mov_b32 v42, v40")
        k("v_mov_b32 v43, v41")
        k("s_nop 1")
        k("v_permlane32_swap_b32 v40, v42")
        k("v_permlane32_swap_b32 v41, v43")
        k("s_nop 1")
        k("v_add_f32 v40, v40, v42")
        k("v_add_f32 v41, v41, v43")
        k(f"v_mul_f32 v40, {f2u(1/640):#x}, v40")
        k(f"v_mul_f32 v41, {f2u(1/640):#x}, v41")
        k("v_fma_f32 v41, -v40, v40, v41")
        k("v_max_f32 v41, 0, v41")
        k(f"v_add_f32 v42, {f2u(1e-5):#x}, v41")
        k("v_rsq_f32 v42, v42")
        k("s_cmp_lt_u32 s25, 5")
        k(f"s_cselect_b32 s46, {f2u(QSCALE):#x}, 1.0")
        k("v_mul_f32 v42, s46, v42")
        k("v_mul_f32 v43, v42, v40")
        k(f"v_cmp_eq_u32 vcc, 0, v{HH}")
        k("s_lshl_b32 s37, s36, 8")
        k("s_lshl_b32 s38, s27, 7")
        k("s_add_u32 s37, s37, s38")
        k(f"s_add_u32 s37, s37, {STATS}")
        k(f"v_lshlrev_b32 v44, 2, v{TL}")
        k("v_add_u32 v44, s37, v44")
        k(f"v_lshl_add_u32 v44, v{HH}, 9, v44")
        k("v_cndmask_b32 v42, v43, v42, vcc")
        k("ds_write_b32 v44, v42")
        k("s_lshl_b32 s37, s27, 8")
        k(f"s_add_u32 s37, s37, {STATS+1024}")
        k("v_lshlrev_b32 v45, 2, v0")
        k("v_add_u32 v45, s37, v45")
        k("s_mov_b64 exec, 0xffff")
        for nb in range(NB):
            k(f"ds_write_b32 v45, v{CS+4*nb} offset:{nb*128}")
            k(f"ds_write_b32 v45, v{CS+4*nb+1} offset:{nb*128+64}")
        k("s_mov_b64 exec, -1")
        k("s_waitcnt lgkmcnt(0)")
        k("s_barrier")
        PFT.next = nx0

    k("s_waitcnt lgkmcnt(0)")
    PFT = TilePF(k, pfd, first, NCH, 8, 9, 10, 56)
    if pfd:
        k("s_cmp_lt_u32 s26, 2")
        k("s_cselect_b32 s56, s10, s8")
        k("s_cselect_b32 s57, s11, s9")
        k(f"s_mov_b32 s58, {X_BYTES}")
        k(f"s_cselect_b32 s58, {640*3840}, s58")
        k("s_mov_b32 s59, 0x00020000")
        k(f"s_movk_i32 s41, 128")
        k(f"s_cselect_b32 s41, {64*3840}, s41")
        k("s_cselect_b32 s42, 16, 8")
        k("s_and_b32 s37, s24, 3")
        k("s_lshl_b32 s37, s37, 4")
        k("s_lshl_b32 s38, s26, 3")
        k("s_add_u32 s37, s37, s38")
        k(f"s_add_u32 s37, s37, {first*64}")
        k("s_mul_i32 s37, s37, 3840")
        k("s_lshl_b32 s38, s25, 8")
        k("s_add_u32 s37, s37, s38")
        k("s_and_b32 s38, s20, 1")
        k("s_mul_i32 s38, s38, 7")
        k("s_sub_u32 s38, s25, s38")
        k("s_lshl_b32 s38, s38, 4")
        k("s_lshl_b32 s39, s24, 7")
        k("s_add_u32 s38, s38, s39")
        k("s_and_b32 s39, s26, 1")
        k("s_lshl_b32 s39, s39, 3")
        k("s_add_u32 s38, s38, s39")
        k("s_mul_i32 s38, s38, 1280")
        k(f"s_add_u32 s38, s38, {first*128}")
        k("s_cmp_lt_u32 s26, 2")
        k("s_cselect_b32 s37, s37, s38")
        k("v_lshrrev_b32 v11, 1, v0")
        k("v_mul_u32_u24 v11, 3840, v11")
        k("v_and_b32 v12, 1, v0")
        k("v_lshl_add_u32 v11, v12, 7, v11")
        k("v_mul_u32_u24 v12, 1280, v0")
        k("s_cselect_b64 vcc, -1, 0")
        k("v_mov_b32 v9, s41")
        k("v_cndmask_b32 v8, v12, v11, vcc")
        k("v_add_u32 v8, s37, v8")
        k("v_cmp_gt_u32 vcc, s42, v0")
        k("v_mov_b32 v12, 0x80000000")
        k("s_nop 0")
        k("v_cndmask_b32 v8, v12, v8, vcc")
        PFT.start()
    k("s_cmp_ge_u32 s25, 10")
    k(f"s_cbranch_scc1 {k.ref('vpath')}")
    stg = 65536 if QST & 1 else None
    late = [] if QLATE >= 0 else None
    pre_qk(k, HH, TL, perm=True, stg=stg, late=late)
    mainloop(False, late or ())
    epi_qk(k, ACC, STATS, HH, TL, perm=True, stg=stg)
    k.stamp(4); k.stamp_flush(6, kidx, 5, 26)
    k("s_endpgm")
    k.lab("vpath")
    late = [] if QLATE >= 0 else None
    pre_v(k, HH, TL, perm=True, stg=stg, late=late)
    mainloop(True, late or ())
    epi_v(k, ACC, STATS, HH, TL, perm=True, stg=stg)
    k.stamp(4); k.stamp_flush(6, kidx, 5, 26)
    k("s_endpgm")
    return k


STG_GA = 208
STG_T = 16384
STG_VM = [0b001 << 18 | (1 << 18) - 1, 0b011 << 18 | ((1 << 18) - 1) & ~0b001, 0b100 << 21 | ((1 << 21) - 1) & ~0b011,
          0b101 << 18 | ((1 << 18) - 1) & ~0b100, ((1 << 21) - 1) & ~0b101]
STG_PM = {19: 0x32104, 25: 0x32410}
def stage_addr(k, kind, HH, TL, img, ct="s38"):
    GA = STG_GA
    if kind == "qk":
        k(f"s_mov_b32 s44, {STG_VM[0]:#x}")
        for c in range(1, 5):
            k(f"s_cmp_eq_u32 {ct}, {c}")
            k(f"s_cselect_b32 s44, {STG_VM[c]:#x}, s44")
    for i in range(10):
        g = GA + i
        k(f"v_add_u32 v18, {64*i}, v0")
        k("v_mul_u32_u24 v19, 205, v18")
        k("v_lshrrev_b32 v19, 14, v19")
        k("v_mul_u32_u24 v23, 80, v19")
        k("v_sub_u32 v18, v18, v23")
        k(f"v_mul_u32_u24 v{g}, s40, v19")
        k(f"v_lshl_add_u32 v{g}, v18, 4, v{g}")
        if kind == "qk":
            k("v_mul_u32_u24 v19, 3, v19")
            k("v_lshrrev_b32 v18, 5, v18")
            k("v_add_u32 v19, v19, v18")
            k("v_bfe_u32 v19, s44, v19, 1")
            k("v_cmp_ne_u32 vcc, 0, v19")
        else:
            k("v_mul_u32_u24 v23, 205, v18")
            k("v_lshrrev_b32 v23, 12, v23")
            k("v_mul_u32_u24 v23, 20, v23")
            k("v_sub_u32 v18, v18, v23")
            k("v_mul_u32_u24 v19, 20, v19")
            k("v_add_u32 v19, v19, v18")
            k("v_add_u32 v19, s43, v19")
            k("v_cmp_gt_u32 vcc, 128, v19")
        k("v_mov_b32 v23, 0x80000000")
        k("s_nop 0")
        k(f"v_cndmask_b32 v{g}, v23, v{g}, vcc")
    k("s_lshl_b32 s41, s26, 14")
    k(f"s_add_u32 s41, s41, {img}")
    k(f"v_lshlrev_b32 v{GA+10}, 4, v0")
    k(f"v_add_u32 v{GA+10}, s41, v{GA+10}")

def stage_out(k, kind, bar=True):
    GA = STG_GA
    k("s_waitcnt lgkmcnt(0)")
    if bar: k("s_barrier")
    for i in range(10):
        k(f"ds_read_b128 v[{64+4*i}:{64+4*i+3}], v{GA+10} offset:{i*1024}")
    for i in range(10):
        k(f"s_waitcnt lgkmcnt({9-i})")
        k(f"buffer_store_dwordx4 v[{64+4*i}:{64+4*i+3}], v{GA+i}, s[48:51], s54 offen")
    k("s_waitcnt vmcnt(0)")

def pre_qk(k, HH, TL, perm=False, stg=None, late=None):
    k.srd(48, 6, 0, WS_SIZE)
    k("s_cmp_lt_u32 s25, 5")
    k(f"s_mov_b32 s37, {WS_KV}")
    k(f"s_cselect_b32 s37, {WS_Q}, s37")
    k("s_cselect_b32 s38, 0, 5")
    k("s_movk_i32 s39, 2560")
    k("s_cselect_b32 s39, 1280, s39")
    if KVPAD:
        k(f"s_mov_b32 s40, {163840 + KVPAD}")
        k("s_cselect_b32 s40, 81920, s40")
    else:
        k("s_lshl_b32 s40, s39, 6")
    k("s_sub_u32 s38, s25, s38")
    if stg is not None:
        k("s_lshl_b32 s41, s38, 5")
        k("s_mul_i32 s42, s41, 205")
        k("s_lshr_b32 s42, s42, 10")
        k("s_mul_i32 s54, s42, s40")
        k("s_add_u32 s54, s54, s37")
        k("s_lshl_b32 s41, s24, 2")
        k("s_add_u32 s41, s41, s26")
        k("s_mul_i32 s41, s41, s39")
        k("s_add_u32 s54, s54, s41")
        k("s_mov_b32 s55, s42")
        k("s_mov_b32 s60, s38")
        def addrs():
            stage_addr(k, "qk", HH, TL, stg, ct="s60")
            k("s_lshl_b32 s52, s36, 15")
            k(f"s_add_u32 s52, s52, {stg}")
            if perm:
                k("s_lshl_b32 s41, s27, 14")
                k("s_add_u32 s52, s52, s41")
            k("s_lshl_b32 s38, s60, 5")
            k("s_lshl_b32 s42, s27, 4")
            k("s_add_u32 s38, s38, s42")
            k(f"v_add_u32 v21, s38, v{HH}")
            k(f"v_lshlrev_b32 v22, 3, v{TL}")
            k(f"s_mov_b32 s42, {STG_PM[19]:#x}")
            k(f"s_mov_b32 s43, {STG_PM[25]:#x}")
            for nb in range(2):
                for q in range(4):
                    d = 24 + nb * 4 + q
                    k(f"v_add_u32 v23, {nb*8+2*q}, v21")
                    k("v_mul_u32_u24 v18, 205, v23")
                    k("v_lshrrev_b32 v18, 10, v18")
                    k("v_mul_u32_u24 v19, 5, v18")
                    k("v_sub_u32 v23, v23, v19")
                    k("v_cmp_eq_u32 vcc, 19, v18")
                    k("v_mov_b32 v19, 0x43210")
                    k("v_mov_b32 v20, s42")
                    k("v_cndmask_b32 v19, v19, v20, vcc")
                    k("v_cmp_eq_u32 vcc, 25, v18")
                    k("v_mov_b32 v20, s43")
                    k("v_lshlrev_b32 v23, 2, v23")
                    k("v_cndmask_b32 v19, v19, v20, vcc")
                    k("v_bfe_u32 v23, v19, v23, 4")
                    k("v_subrev_u32 v18, s55, v18")
                    k("v_mul_u32_u24 v18, 1280, v18")
                    k("v_cmp_gt_u32 vcc, 4, v23")
                    k("v_lshrrev_b32 v19, 1, v23")
                    k("v_lshl_add_u32 v18, v19, 9, v18")
                    k("v_and_b32 v19, 1, v23")
                    k("v_lshl_add_u32 v18, v19, 3, v18")
                    k("v_cndmask_b32 v19, 0, v22, vcc")
                    k("v_add_u32 v18, v18, v22")
                    k("v_add_u32 v18, v18, v19")
                    k(f"v_add_u32 v{d}, s52, v18")
        if late is None: addrs()
        else: late.append(addrs)
        return
    k("s_lshl_b32 s41, s24, 2")
    k("s_lshl_b32 s42, s36, 1")
    k("s_add_u32 s41, s41, s42")
    k("s_mul_i32 s41, s41, s39")
    k("s_add_u32 s52, s37, s41")
    k("s_add_u32 s53, s52, s39")
    if perm:
        k("s_cmp_eq_u32 s27, 1")
        k("s_cselect_b32 s37, s53, s52")
        k("s_cselect_b32 s53, s52, s53")
        k("s_mov_b32 s52, s37")
    k("s_lshl_b32 s38, s38, 5")
    k("s_lshl_b32 s42, s27, 4")
    k("s_add_u32 s38, s38, s42")
    k(f"v_add_u32 v21, s38, v{HH}")
    k(f"v_lshlrev_b32 v22, 3, v{TL}")
    for nb in range(2):
        for q in range(4):
            d = 24 + nb * 4 + q
            k(f"v_add_u32 v23, {nb*8+2*q}, v21")
            k("v_mul_u32_u24 v18, 205, v23")
            k("v_lshrrev_b32 v18, 10, v18")
            k("v_mul_u32_u24 v19, 5, v18")
            k("v_sub_u32 v23, v23, v19")
            k("v_mul_lo_u32 v18, v18, s40")
            k("v_cmp_gt_u32 vcc, 4, v23")
            k("v_lshrrev_b32 v19, 1, v23")
            k("v_lshl_add_u32 v18, v19, 9, v18")
            k("v_and_b32 v19, 1, v23")
            k("v_lshl_add_u32 v18, v19, 3, v18")
            k("v_cndmask_b32 v19, 0, v22, vcc")
            k("v_add_u32 v18, v18, v22")
            k(f"v_add_u32 v{d}, v18, v19")
    if LINST and perm:
        k("s_lshl_b32 s52, s2, 15")
        k("s_lshl_b32 s53, s26, 13")
        k("s_add_u32 s52, s52, s53")
        k(f"s_add_u32 s52, s52, {WS_Q}")
        k("s_add_u32 s53, s52, 4096")
        for i in range(8):
            k(f"v_lshlrev_b32 v{24+i}, 3, v0")
            k(f"v_add_u32 v{24+i}, {i*512}, v{24+i}")


def epi_qk(k, ACC, STATS, HH, TL, perm=False, stg=None):
    NB, TB = 2, 2
    k(f"s_mul_i32 s37, s36, 256")
    k(f"v_lshlrev_b32 v20, 2, v{TL}")
    k(f"v_add_u32 v20, s37, v20")
    k(f"v_add_u32 v20, {STATS}, v20")
    if perm:
        k("s_lshl_b32 s37, s27, 7")
        k("v_xor_b32 v20, s37, v20")
        k("v_xor_b32 v19, 128, v20")
    for tb in range(TB):
        if perm:
            k(f"ds_read_b32 v{32+2*tb}, v{20-tb}")
            k(f"ds_read_b32 v{33+2*tb}, v{20-tb} offset:512")
        else:
            k(f"ds_read_b32 v{32+2*tb}, v20 offset:{tb*128}")
            k(f"ds_read_b32 v{33+2*tb}, v20 offset:{512+tb*128}")
    k(f"v_lshlrev_b32 v21, 4, v{HH}")
    k("s_lshl_b32 s37, s27, 8")
    k("v_add_u32 v21, s37, v21")
    k(f"v_add_u32 v21, {STATS+1024}, v21")
    CS = 128
    for nb in range(NB):
        for q in range(4):
            k(f"ds_read_b128 v[{CS+(nb*4+q)*4}:{CS+(nb*4+q)*4+3}], v21 offset:{nb*128+q*32}")
    k("s_waitcnt lgkmcnt(0)")
    k("s_nop 7")
    n = 0
    for nb in range(NB):
        for q in range(4):
            cs = CS + (nb * 4 + q) * 4
            for tb in range(TB):
                a = ACC + (nb * TB + tb) * 16 + q * 4
                rs, rm = 32 + 2 * tb, 33 + 2 * tb
                t = 36 + 4 * (n % 2)
                for h in range(2):
                    k(f"v_pk_mul_f32 v[{t+2*h}:{t+2*h+1}], v[{cs+2*h}:{cs+2*h+1}], v[{rs}:{rs+1}] op_sel:[0,1] op_sel_hi:[1,1]")
                for h in range(2):
                    k(f"v_pk_fma_f32 v[{t+2*h}:{t+2*h+1}], v[{a+2*h}:{a+2*h+1}], v[{rs}:{rs+1}], v[{t+2*h}:{t+2*h+1}] op_sel_hi:[1,0,1] neg_lo:[0,0,1] neg_hi:[0,0,1]")
                o = 44 + 2 * (n % 4)
                k(f"v_cvt_pk_bf16_f32 v{o}, v{t}, v{t+1}")
                k(f"v_cvt_pk_bf16_f32 v{o+1}, v{t+2}, v{t+3}")
                if stg is not None:
                    if tb == 1: k(f"v_xor_b32 v{24+nb*4+q}, {STG_T}, v{24+nb*4+q}")
                    k(f"ds_write_b64 v{24+nb*4+q}, v[{o}:{o+1}]")
                else:
                    k(f"buffer_store_dwordx2 v[{o}:{o+1}], v{24+nb*4+q}, s[48:51], s{52+tb} offen")
                n += 1
    if stg is not None: stage_out(k, "qk")
    else: k("s_waitcnt vmcnt(0)")


def pre_v(k, HH, TL, perm=False, stg=None, late=None):
    k.srd(48, 6, 0, WS_SIZE)
    if stg is not None:
        k("s_sub_u32 s37, s25, 10")
        k("s_lshl_b32 s37, s37, 7")
        k("s_mul_i32 s55, s37, 205")
        k("s_lshr_b32 s55, s55, 12")
        k("s_mul_i32 s43, s55, 20")
        k("s_sub_u32 s43, s43, s37")
        k(f"s_mov_b32 s40, {163840 + KVPAD}")
        k("s_mul_i32 s54, s55, s40")
        k("s_lshl_b32 s41, s24, 2")
        k("s_add_u32 s41, s41, s26")
        k("s_mul_i32 s41, s41, 2560")
        k("s_add_u32 s54, s54, s41")
        k(f"s_add_u32 s54, s54, {WS_KV + 1280}")
        if late is None: stage_addr(k, "v", HH, TL, stg)
        else: late.append(lambda: stage_addr(k, "v", HH, TL, stg))
        k("s_lshl_b32 s52, s36, 15")
        k(f"s_add_u32 s52, s52, {stg}")
        if perm:
            k("s_lshl_b32 s41, s27, 14")
            k("s_add_u32 s52, s52, s41")
        k("s_lshl_b32 s38, s27, 6")
        k("s_add_u32 s37, s37, s38")
        for nb in range(2):
            k(f"v_add_u32 v20, s37, v{TL}")
            if nb: k("v_add_u32 v20, 32, v20")
            k("v_mul_u32_u24 v21, 205, v20")
            k("v_lshrrev_b32 v21, 12, v21")
            k("v_mul_u32_u24 v22, 20, v21")
            k("v_sub_u32 v22, v20, v22")
            k("v_subrev_u32 v21, s55, v21")
            k("v_mul_u32_u24 v21, 1280, v21")
            k("v_lshl_add_u32 v21, v22, 4, v21")
            k(f"v_mul_u32_u24 v22, 320, v{HH}")
            k("v_add_u32 v21, v21, v22")
            k(f"v_add_u32 v{24+nb}, s52, v21")
        return
    k("s_sub_u32 s37, s25, 10")
    k("s_lshl_b32 s37, s37, 7")
    k("s_lshl_b32 s38, s27, 6")
    k("s_add_u32 s37, s37, s38")
    for nb in range(2):
        k(f"v_add_u32 v20, s37, v{TL}")
        if nb: k("v_add_u32 v20, 32, v20")
        k("v_mul_u32_u24 v21, 205, v20")
        k("v_lshrrev_b32 v21, 12, v21")
        k("v_mul_u32_u24 v22, 20, v21")
        k("v_sub_u32 v22, v20, v22")
        k(f"s_mov_b32 s38, {163840 + KVPAD}")
        k("v_mul_lo_u32 v21, v21, s38")
        k("v_lshl_add_u32 v21, v22, 4, v21")
        k(f"v_mul_u32_u24 v22, 320, v{HH}")
        k(f"v_add_u32 v{24+nb}, v21, v22")
    k("s_lshl_b32 s41, s24, 2")
    k("s_lshl_b32 s42, s36, 1")
    k("s_add_u32 s41, s41, s42")
    k("s_mul_i32 s41, s41, 2560")
    k(f"s_add_u32 s52, s41, {WS_KV + 1280}")
    if perm:
        k("s_add_u32 s53, s52, 2560")
        k("s_cmp_eq_u32 s27, 1")
        k("s_cselect_b32 s37, s53, s52")
        k("s_cselect_b32 s53, s52, s53")
        k("s_mov_b32 s52, s37")
    if LINST and perm:
        k("s_lshl_b32 s52, s2, 15")
        k("s_lshl_b32 s53, s26, 13")
        k("s_add_u32 s52, s52, s53")
        k(f"s_add_u32 s52, s52, {WS_Q}")
        k("s_add_u32 s53, s52, 4096")
        for i in range(2):
            k(f"v_lshlrev_b32 v{24+i}, 4, v0")
            k(f"v_add_u32 v{24+i}, {i*2048}, v{24+i}")


def epi_v(k, ACC, STATS, HH, TL, perm=False, stg=None):
    NB, TB = 2, 2
    k("s_lshl_b32 s37, s36, 8")
    k(f"v_lshlrev_b32 v20, 4, v{HH}")
    k("v_add_u32 v20, s37, v20")
    k(f"v_add_u32 v20, {STATS}, v20")
    RS, RM = 128, 160
    if perm:
        k("s_lshl_b32 s37, s27, 7")
        k("v_xor_b32 v20, s37, v20")
        k("v_xor_b32 v19, 128, v20")
    def sa(tb, off): return f"v{20-tb} offset:{off}" if perm else f"v20 offset:{off+tb*128}"
    for tb in range(TB):
        for q in range(4):
            k(f"ds_read_b128 v[{RS+(tb*4+q)*4}:{RS+(tb*4+q)*4+3}], {sa(tb, q*32)}")
    k(f"v_lshlrev_b32 v21, 2, v{TL}")
    k("s_lshl_b32 s37, s27, 8")
    k("v_add_u32 v21, s37, v21")
    k(f"v_add_u32 v21, {STATS+1024}, v21")
    k("s_waitcnt lgkmcnt(4)")
    for tb in range(TB):
        for q in range(4):
            k(f"ds_read_b128 v[{RM+(tb*4+q)*4}:{RM+(tb*4+q)*4+3}], {sa(tb, 512+q*32)}")
    k("ds_read_b32 v32, v21")
    k("ds_read_b32 v34, v21 offset:128")
    k("s_waitcnt lgkmcnt(0)")
    k("s_nop 7")
    n = 0
    for nb in range(NB):
        cs = 32 + 2 * nb
        for tb in range(TB):
            for qp in range(2):
                o = 44 + 4 * (n % 2)
                for qq in range(2):
                    q = qp * 2 + qq
                    a = ACC + (nb * TB + tb) * 16 + q * 4
                    t = 36 + 4 * qq
                    rs, rm = RS + (tb * 4 + q) * 4, RM + (tb * 4 + q) * 4
                    for h in range(2):
                        k(f"v_pk_mul_f32 v[{t+2*h}:{t+2*h+1}], v[{rm+2*h}:{rm+2*h+1}], v[{cs}:{cs+1}] op_sel_hi:[1,0]")
                    for h in range(2):
                        k(f"v_pk_fma_f32 v[{t+2*h}:{t+2*h+1}], v[{a+2*h}:{a+2*h+1}], v[{rs+2*h}:{rs+2*h+1}], v[{t+2*h}:{t+2*h+1}] neg_lo:[0,0,1] neg_hi:[0,0,1]")
                    k(f"v_cvt_pk_bf16_f32 v{o+2*qq}, v{t}, v{t+1}")
                    k(f"v_cvt_pk_bf16_f32 v{o+2*qq+1}, v{t+2}, v{t+3}")
                k("s_nop 1")
                k(f"v_permlane32_swap_b32 v{o}, v{o+2}")
                k(f"v_permlane32_swap_b32 v{o+1}, v{o+3}")
                k("s_nop 1")
                if stg is not None:
                    if qp == 0 and (tb == 1 or False): k(f"v_xor_b32 v{24+nb}, {STG_T}, v{24+nb}")
                    k(f"ds_write_b128 v{24+nb}, v[{o}:{o+3}] offset:{qp*640}")
                elif perm:
                    k(f"buffer_store_dwordx4 v[{o}:{o+3}], v{24+nb}, s[48:51], s{52+tb} offen offset:{qp*(1024 if LINST else 640)}")
                else:
                    k(f"buffer_store_dwordx4 v[{o}:{o+3}], v{24+nb}, s[48:51], s52 offen offset:{tb*2560+qp*640}")
                n += 1
    if stg is not None: stage_out(k, "v")
    else: k("s_waitcnt vmcnt(0)")


GK1 = -2.0 * 0.7978845608028654 * 1.4426950408889634
GK2 = GK1 * 0.044715

def epi_w1(k, ACC, STATS, HH, TL, NS_=""):
    NB = 3
    k.srd(48, 6, 0, WS_SIZE)
    k("s_lshl_b32 s37, s36, 7")
    k(f"v_lshlrev_b32 v20, 2, v{TL}")
    k("v_add_u32 v20, s37, v20")
    k(f"v_add_u32 v20, {STATS}, v20")
    k("ds_read_b32 v32, v20")
    k("ds_read_b32 v33, v20 offset:512")
    k(f"v_lshlrev_b32 v21, 4, v{HH}")
    k(f"v_add_u32 v21, {STATS+1024}, v21")
    CS, BI = 128, 176
    for nb in range(NB):
        for q in range(4):
            k(f"ds_read_b128 v[{CS+(nb*4+q)*4}:{CS+(nb*4+q)*4+3}], v21 offset:{nb*128+q*32}")
    k("s_waitcnt lgkmcnt(6)")
    for nb in range(NB):
        for q in range(4):
            k(f"ds_read_b128 v[{BI+(nb*4+q)*4}:{BI+(nb*4+q)*4+3}], v21 offset:{512+nb*128+q*32}")
    k("s_lshl_b32 s39, s24, 2")
    k("s_add_u32 s39, s39, s36")
    k("s_mul_i32 s39, s39, 98304")
    k("s_mul_i32 s40, s25, 6144")
    k("s_add_u32 s39, s39, s40")
    k(f"s_add_u32 s52, s39, {WS_H}")
    k("s_add_u32 s53, s52, 2048")
    k("s_add_u32 s54, s52, 4096")
    k("v_lshlrev_b32 v22, 4, v0")
    k(f"v_mov_b32 v34, {f2u(GK1):#x}")
    k(f"v_mov_b32 v35, {f2u(GK2):#x}")
    k("s_waitcnt lgkmcnt(0)")
    k("s_nop 7")
    n = 0
    for nb in range(NB):
        for qp in range(2):
            o = 56 + 4 * (n % 2)
            for qq in range(2):
                q = qp * 2 + qq
                a = ACC + nb * 16 + q * 4
                cs = CS + (nb * 4 + q) * 4
                b = BI + (nb * 4 + q) * 4
                u, t = 36, 40
                for h in range(2):
                    k(f"v_pk_fma_f32 v[{u+2*h}:{u+2*h+1}], v[{cs+2*h}:{cs+2*h+1}], v[32:33], v[{b+2*h}:{b+2*h+1}] op_sel:[0,1,0] op_sel_hi:[1,1,1] neg_lo:[1,0,0] neg_hi:[1,0,0]")
                for h in range(2):
                    k(f"v_pk_fma_f32 v[{u+2*h}:{u+2*h+1}], v[{a+2*h}:{a+2*h+1}], v[32:33], v[{u+2*h}:{u+2*h+1}] op_sel_hi:[1,0,1]")
                for h in range(2):
                    k(f"v_pk_mul_f32 v[{t+2*h}:{t+2*h+1}], v[{u+2*h}:{u+2*h+1}], v[{u+2*h}:{u+2*h+1}]")
                for h in range(2):
                    k(f"v_pk_fma_f32 v[{t+2*h}:{t+2*h+1}], v[{t+2*h}:{t+2*h+1}], v[34:35], v[34:35] op_sel:[0,1,0] op_sel_hi:[1,1,0]")
                for h in range(2):
                    k(f"v_pk_mul_f32 v[{t+2*h}:{t+2*h+1}], v[{t+2*h}:{t+2*h+1}], v[{u+2*h}:{u+2*h+1}]")
                for i in range(4):
                    k(f"v_exp_f32 v{t+i}, v{t+i}")
                k("s_nop 0")
                for h in range(2):
                    k(f"v_pk_add_f32 v[{t+2*h}:{t+2*h+1}], v[{t+2*h}:{t+2*h+1}], 1.0 op_sel_hi:[1,0]")
                for i in range(4):
                    k(f"v_rcp_f32 v{t+i}, v{t+i}")
                k("s_nop 0")
                for h in range(2):
                    k(f"v_pk_mul_f32 v[{u+2*h}:{u+2*h+1}], v[{u+2*h}:{u+2*h+1}], v[{t+2*h}:{t+2*h+1}]")
                k(f"v_cvt_pk_bf16_f32 v{o+2*qq}, v{u}, v{u+1}")
                k(f"v_cvt_pk_bf16_f32 v{o+2*qq+1}, v{u+2}, v{u+3}")
            k("s_nop 1")
            k(f"v_permlane32_swap_b32 v{o}, v{o+2}")
            k(f"v_permlane32_swap_b32 v{o+1}, v{o+3}")
            k("s_nop 1")
            k(f"buffer_store_dwordx4 v[{o}:{o+3}], v22, s[48:51], s{52+nb} offen offset:{qp*1024}{NS_}")
            n += 1
    k("s_waitcnt vmcnt(0)")


def gen_gemmB(name, kind, layer, kidx=0, dbg=(), first=2, rawres=False, pfd=0, fz=None):
    NWG = 256
    if kind == "wo":
        K, WS_W, XSRC = 640, WS_WO, WS_O
        RES = WS_X0 if layer == 0 else WS_X2
        DST, ST = WS_X1, WS_ST1
    else:
        K, WS_W, XSRC = 1536, WS_W2, WS_H
        RES = WS_X1
        DST, ST = (WS_X2, WS_ST0) if layer == 0 else (None, None)
    NCH = K // 128
    XBLK = K * 64
    WB = 20480
    SLOT = WB + 16384
    NSLOT = 4
    LDS = NSLOT * SLOT
    rot = fz.rot if fz else 0
    HO = bool(fz and fz.wait is not None)
    XS = " sc1" if (HO and not fz.xplain) else ""
    NS_ = " ; nosc" if (fz and fz.xl and "x" not in XSC) else ""
    RSC = " sc1" if (fz and kind == "w2" and not fz.xplain) else ""
    if fz is None:
        k = Kern(name, NWG, 512, LDS, vgpr=128)
        k(f"s_cmp_ge_u32 s2, {NWG}")
        k(f"s_cbranch_scc1 {k.ref('end')}")
        k.stamp(0)
        k.karg(6, 80)
    else:
        k = fz.k
    if kind == "w2":
        k.karg(8, 56)
        if DST is None:
            k.karg(10, 64)
    if rawres:
        assert kind == "wo"
        k.karg(8, 0)
    if fz is None: wave_id(k, 26)
    k("s_and_b32 s20, s2, 7")
    k("s_lshr_b32 s21, s2, 3")
    if fz and fz.xl:
        k("s_and_b32 s22, s21, 3")
        k("s_lshl_b32 s23, s20, 2")
        k("s_add_u32 s24, s23, s22")
        k("s_lshr_b32 s25, s21, 2")
    else:
        k("s_lshr_b32 s22, s20, 1")
        k("s_lshl_b32 s22, s22, 3")
        k("s_and_b32 s23, s21, 7")
        k("s_add_u32 s24, s22, s23")
        k("s_and_b32 s22, s20, 1")
        k("s_lshl_b32 s22, s22, 2")
        k("s_lshr_b32 s23, s21, 3")
        k("s_add_u32 s25, s22, s23")
    k("s_cmp_lt_u32 s26, 4")
    k(f"s_cbranch_scc1 {k.ref('compute')}")
    k("s_sub_u32 s26, s26, 4")
    k("v_lshlrev_b32 v1, 4, v0")
    k(f"s_mul_i32 s40, s25, {K//8*1280}")
    k("s_mul_i32 s41, s26, 5120")
    k("s_add_u32 s40, s40, s41")
    k(f"s_add_u32 s40, s40, {WS_W}")
    k("s_mov_b32 s42, s41")
    k("s_lshl_b32 s43, s24, 1")
    k("s_lshr_b32 s47, s26, 1")
    k("s_add_u32 s43, s43, s47")
    k(f"s_mul_i32 s43, s43, {XBLK}")
    k("s_and_b32 s47, s26, 1")
    k("s_lshl_b32 s47, s47, 12")
    k("s_add_u32 s43, s43, s47")
    k(f"s_add_u32 s43, s43, {XSRC}")
    k("s_lshl_b32 s44, s26, 12")
    k(f"s_add_u32 s44, s44, {WB}")
    k("s_waitcnt lgkmcnt(0)")
    k.srd(12, 6, 0, WS_SIZE)
    def dma(ch, parts="xw"):
        slot = (ch + rot) % NSLOT
        if "x" in parts:
            k(f"s_add_u32 m0, s44, {slot*SLOT}")
            k(f"s_add_u32 s45, s43, {ch*8192}")
            for i in range(4):
                k(f"buffer_load_dwordx4 v1, s[12:15], s45 offen offset:{i*1024}{XS} lds")
        if "w" in parts:
            k(f"s_add_u32 m0, s42, {slot*SLOT}")
            k(f"s_add_u32 s45, s40, {ch*WB}")
            for i in range(4):
                k(f"buffer_load_dwordx4 v1, s[12:15], s45 offen offset:{i*1024} lds")
            k(f"s_add_u32 m0, s42, {slot*SLOT+4096}")
            k(f"s_add_u32 s45, s40, {ch*WB+4096}")
            k(f"buffer_load_dwordx4 v1, s[12:15], s45 offen lds")
    k.stamp(1)
    def pre(): k.stamp(2)
    def pre_issue():
        for c_ in range(first):
            dma(c_, "w")
        if kind == "wo":
            k("s_lshl_b32 s67, s24, 1")
            k("s_lshr_b32 s47, s26, 1")
            k("s_add_u32 s67, s67, s47")
            fz.poll(67, 32)
        else:
            k("s_lshr_b32 s67, s24, 1")
            fz.poll(67, 16)
        for c_ in range(first):
            dma(c_, "x")
        return 4 * (first - 1)
    if fz: fz.mode_publish()
    if fz and fz.xl and "H" in PT and kind == "wo":
        def tail():
            k("v_lshlrev_b32 v12, 7, v0")
            k("s_mul_i32 s46, s24, 196608")
            k("s_lshl_b32 s47, s25, 2")
            k("s_add_u32 s47, s47, s26")
            k("s_mul_i32 s47, s47, 6144")
            k("s_add_u32 s46, s46, s47")
            k(f"s_add_u32 s46, s46, {WS_H}")
            k("s_mov_b32 exec_hi, 0xffff")
            k("buffer_load_dword v13, v12, s[12:15], s46 offen")
            k("s_mov_b32 exec_hi, -1")
            return 1
        fz.tail = tail
    ring_loader(k, NCH, NSLOT, dma, 9, pre_b0=pre, first=first, pre_issue=(pre_issue if HO else None), fz=fz)
    fin_loader(k, fz, kidx)

    k.lab("compute")
    ACC, FA0, FB0, RS, BI = 32, 64, 88, 104, 116
    AW, AX = 1, 3
    k("s_and_b32 s27, s26, 1")
    k("s_lshr_b32 s36, s26, 1")
    k("v_lshrrev_b32 v17, 4, v0")
    k("v_and_b32 v16, 15, v0")
    k("v_mul_u32_u24 v20, 1280, v17")
    k("v_lshl_add_u32 v20, v16, 4, v20")
    k("s_mul_i32 s37, s27, 768")
    k(f"v_add_u32 v{AW}, s37, v20")
    k(f"v_add_u32 v{AW+1}, {2*SLOT}, v{AW}")
    k("v_lshlrev_b32 v20, 9, v17")
    k("v_lshl_add_u32 v20, v16, 4, v20")
    k("s_lshl_b32 s37, s36, 13")
    k(f"s_add_u32 s37, s37, {WB}")
    k(f"v_add_u32 v{AX}, s37, v20")
    k(f"v_add_u32 v{AX+1}, {2*SLOT}, v{AX}")
    k("v_lshrrev_b32 v20, 1, v17")
    k("v_lshlrev_b32 v20, 9, v20")
    k("v_lshl_add_u32 v20, v16, 4, v20")
    k("v_and_b32 v21, 1, v17")
    k("v_lshl_add_u32 v20, v21, 3, v20")
    k("s_lshl_b32 s38, s24, 1")
    k("s_add_u32 s38, s38, s36")
    k("s_mul_i32 s39, s38, 40960")
    k("s_mul_i32 s40, s25, 5120")
    k("s_add_u32 s39, s39, s40")
    k("s_mul_i32 s40, s27, 3072")
    k("s_add_u32 s39, s39, s40")
    if rawres:
        k("v_mul_u32_u24 v20, 1280, v16")
        k("v_lshl_add_u32 v20, v17, 3, v20")
        k(f"v_add_u32 v21, {16*1280}, v20")
        k(f"s_mul_i32 s52, s38, {32*1280}")
        k("s_mul_i32 s40, s25, 160")
        k("s_add_u32 s52, s52, s40")
        k("s_mul_i32 s40, s27, 96")
        k("s_add_u32 s52, s52, s40")
    else:
        k(f"s_add_u32 s52, s39, {RES}")
    k("s_waitcnt lgkmcnt(0)")
    k.srd(48, 6, 0, WS_SIZE)
    if rawres:
        k.srd(56, 8, 0, X_BYTES)
    PFT = TilePF(k, pfd, first, NCH, 5, 6, 7, 48)
    if pfd:
        k("s_and_b32 s41, s25, 3")
        k("s_lshr_b32 s42, s41, 1")
        k("s_lshl_b32 s43, s24, 1")
        k("s_add_u32 s42, s42, s43")
        k(f"s_mul_i32 s42, s42, {XBLK}")
        k("s_and_b32 s41, s41, 1")
        k("s_lshl_b32 s41, s41, 12")
        k("s_add_u32 s42, s42, s41")
        k("s_lshl_b32 s41, s26, 10")
        k("s_add_u32 s42, s42, s41")
        k(f"s_add_u32 s42, s42, {XSRC + first*8192}")
        k("s_and_b32 s41, s24, 7")
        k("s_mul_i32 s41, s41, 2560")
        k("s_mul_i32 s43, s26, 640")
        k("s_add_u32 s41, s41, s43")
        k(f"s_mul_i32 s43, s25, {K//8*1280}")
        k("s_add_u32 s41, s41, s43")
        k(f"s_add_u32 s41, s41, {WS_W + first*WB - 8*128}")
        k("v_lshlrev_b32 v5, 7, v0")
        k("v_mov_b32 v8, s41")
        k("v_mov_b32 v9, s42")
        k("v_cmp_gt_u32 vcc, 8, v0")
        k(f"v_mov_b32 v6, {WB}")
        k("v_mov_b32 v10, 8192")
        k("v_cndmask_b32 v8, v8, v9, vcc")
        k("v_cndmask_b32 v6, v6, v10, vcc")
        k("v_add_u32 v5, v8, v5")
        k("v_cmp_gt_u32 vcc, 13, v0")
        k("v_mov_b32 v9, 0x80000000")
        k("s_nop 0")
        k("v_cndmask_b32 v5, v9, v5, vcc")
        PFT.start()

    def path(NB):
        nx0 = PFT.next
        for nb in range(NB):
            for tb in range(2):
                d = RS + (nb * 2 + tb) * 2
                if rawres:
                    k(f"buffer_load_dwordx2 v[{d}:{d+1}], v{20+tb}, s[56:59], s52 offen offset:{nb*32}")
                else:
                    k(f"buffer_load_dwordx2 v[{d}:{d+1}], v20, s[48:51], s52 offen offset:{nb*1024+tb*256}{RSC}")
        if kind == "w2":
            k.srd(56, 8, 0, 1280)
            k("s_mul_i32 s40, s25, 160")
            k("s_mul_i32 s41, s27, 96")
            k("s_add_u32 s40, s40, s41")
            k("v_lshlrev_b32 v21, 3, v17")
            for nb in range(NB):
                k(f"buffer_load_dwordx2 v[{BI+2*nb}:{BI+2*nb+1}], v21, s[56:59], s40 offen offset:{nb*32}")
        if fz and fz.xl and "x" in PT and DST is not None:
            k("v_lshlrev_b32 v127, 7, v0")
            k(f"s_add_u32 s40, s39, {DST}")
            k(f"s_mov_b64 exec, {(1 << (8*NB)) - 1:#x}")
            k("buffer_load_dword v126, v127, s[48:51], s40 offen")
            k("s_lshl_b32 s40, s25, 1")
            k("s_add_u32 s40, s40, s27")
            k("s_lshl_b32 s40, s40, 14")
            k("s_lshl_b32 s41, s38, 8")
            k("s_add_u32 s40, s40, s41")
            k(f"s_add_u32 s40, s40, {ST}")
            k("s_mov_b64 exec, 3")
            k("buffer_load_dword v125, v127, s[48:51], s40 offen")
            k("s_mov_b64 exec, -1")
        if fz and fz.xl and "G" in PT and kind == "wo":
            k("v_lshlrev_b32 v127, 7, v0")
            k("s_mul_i32 s40, s24, 196608")
            k("s_lshl_b32 s41, s25, 2")
            k("s_add_u32 s41, s41, s26")
            k("s_mul_i32 s41, s41, 6144")
            k("s_add_u32 s40, s40, s41")
            k(f"s_add_u32 s40, s40, {WS_H}")
            k("s_mov_b32 exec_hi, 0xffff")
            k("buffer_load_dword v124, v127, s[48:51], s40 offen")
            k("s_mov_b32 exec_hi, -1")
        if fz and "u" in PT and DST is None:
            k.srd(60, 10, 0, X_BYTES)
            k("v_and_b32 v127, 31, v0")
            k("v_mul_u32_u24 v127, 1280, v127")
            k("v_lshrrev_b32 v126, 5, v0")
            k(f"v_mul_u32_u24 v126, {NB*32 - 4}, v126")
            k("v_add_u32 v127, v127, v126")
            k("s_mul_i32 s40, s38, 40960")
            k("s_mul_i32 s41, s25, 160")
            k("s_add_u32 s40, s40, s41")
            k("s_mul_i32 s41, s27, 96")
            k("s_add_u32 s40, s40, s41")
            k("buffer_load_dword v126, v127, s[60:63], s40 offen")
        def reads(step):
            ch, ks = divmod(step, 4)
            slot = (ch + rot) % NSLOT
            half, sl = divmod(slot, 2)
            st = step & 1
            out = []
            for tb in range(2):
                d = FB0 + st * 8 + tb * 4
                out.append(f"ds_read_b128 v[{d}:{d+3}], v{AX+half} offset:{sl*SLOT + ks*2048 + tb*256}")
            for nb in range(NB):
                d = FA0 + st * 12 + nb * 4
                out.append(f"ds_read_b128 v[{d}:{d+3}], v{AW+half} offset:{sl*SLOT + ks*5120 + nb*256}")
            return out
        k.stamp(1)
        k("s_barrier")
        k.stamp(2)
        for r in reads(0):
            k(r)
        NS = NCH * 4
        for step in range(NS):
            st = step & 1
            k("s_waitcnt lgkmcnt(0)")
            if step % 4 == 3 and step + 1 < NS:
                k("s_barrier")
                PFT.at_barrier()
            rd = reads(step + 1) if step + 1 < NS else []
            mf = []
            for nb in range(NB):
                for tb in range(2):
                    d = ACC + (nb * 2 + tb) * 4
                    a = FA0 + st * 12 + nb * 4
                    b = FB0 + st * 8 + tb * 4
                    c = "0" if step == 0 else f"v[{d}:{d+3}]"
                    mf.append(f"v_mfma_f32_16x16x32_bf16 v[{d}:{d+3}], v[{a}:{a+3}], v[{b}:{b+3}], {c}")
            ri = 0
            for i, m in enumerate(mf):
                if "nomfma" not in dbg: k(m)
                for r in rd[ri:ri + 2]:
                    if "nords" not in dbg: k(r)
                ri += 2
            assert ri >= len(rd)
        k.stamp(3)
        PFT.next = nx0
        if fz and fz.xl and fz.p == 0: fz.mode_issue(48, 250)
        k("s_waitcnt vmcnt(0)")
        want_stats = ST is not None
        if want_stats:
            for r in (8, 9, 10, 11):
                k(f"v_mov_b32 v{r}, 0")
        k("v_lshlrev_b32 v22, 4, v0")
        if DST is None:
            k.srd(60, 10, 0, X_BYTES)
            k("v_and_b32 v23, 31, v0")
            k("v_mul_u32_u24 v23, 1280, v23")
            k("v_lshrrev_b32 v24, 5, v0")
            k("v_lshl_add_u32 v23, v24, 4, v23")
            k("s_mul_i32 s40, s38, 40960")
            k("s_mul_i32 s41, s25, 160")
            k("s_add_u32 s40, s40, s41")
            k("s_mul_i32 s41, s27, 96")
            k("s_add_u32 s53, s40, s41")
        else:
            k(f"s_add_u32 s53, s39, {DST}")
        k("s_nop 4")
        for nb in range(NB):
            o = 24 + 4 * (nb % 2)
            for tb in range(2):
                a = ACC + (nb * 2 + tb) * 4
                d = RS + (nb * 2 + tb) * 2
                t = 12
                k(f"v_lshlrev_b32 v{t}, 16, v{d}")
                k(f"v_and_b32 v{t+1}, 0xffff0000, v{d}")
                k(f"v_lshlrev_b32 v{t+2}, 16, v{d+1}")
                k(f"v_and_b32 v{t+3}, 0xffff0000, v{d+1}")
                k(f"v_pk_add_f32 v[{a}:{a+1}], v[{a}:{a+1}], v[{t}:{t+1}]")
                k(f"v_pk_add_f32 v[{a+2}:{a+3}], v[{a+2}:{a+3}], v[{t+2}:{t+3}]")
                if kind == "w2":
                    b = BI + 2 * nb
                    k(f"v_lshlrev_b32 v{t+4}, 16, v{b}")
                    k(f"v_and_b32 v{t+5}, 0xffff0000, v{b}")
                    k(f"v_lshlrev_b32 v{t+6}, 16, v{b+1}")
                    k(f"v_and_b32 v{t+7}, 0xffff0000, v{b+1}")
                    k(f"v_pk_add_f32 v[{a}:{a+1}], v[{a}:{a+1}], v[{t+4}:{t+5}]")
                    k(f"v_pk_add_f32 v[{a+2}:{a+3}], v[{a+2}:{a+3}], v[{t+6}:{t+7}]")
                if want_stats:
                    for r in range(4):
                        k(f"v_add_f32 v{8+tb}, v{8+tb}, v{a+r}")
                        k(f"v_fmac_f32 v{10+tb}, v{a+r}, v{a+r}")
                k(f"v_cvt_pk_bf16_f32 v{o+2*tb}, v{a}, v{a+1}")
                k(f"v_cvt_pk_bf16_f32 v{o+2*tb+1}, v{a+2}, v{a+3}")
            k("s_nop 1")
            k(f"v_permlane16_swap_b32 v{o}, v{o+2}")
            k(f"v_permlane16_swap_b32 v{o+1}, v{o+3}")
            k("s_nop 1")
            if DST is None:
                k(f"buffer_store_dwordx4 v[{o}:{o+3}], v23, s[60:63], s53 offen offset:{nb*32}" + (" ; nosc" if OUTP else ""))
            else:
                k(f"buffer_store_dwordx4 v[{o}:{o+3}], v22, s[48:51], s53 offen offset:{nb*1024}{NS_}")
        if want_stats:
            k("v_permlane16_swap_b32 v8, v9")
            k("v_permlane16_swap_b32 v10, v11")
            k("s_nop 1")
            k("v_add_f32 v8, v8, v9")
            k("v_add_f32 v10, v10, v11")
            k("s_nop 1")
            k("v_permlane32_swap_b32 v8, v10")
            k("s_nop 1")
            k("v_add_f32 v8, v8, v10")
            k("v_and_b32 v12, 31, v0")
            k("v_lshlrev_b32 v12, 3, v12")
            k("v_lshrrev_b32 v13, 5, v0")
            k("v_lshl_add_u32 v12, v13, 2, v12")
            k("s_lshl_b32 s40, s25, 1")
            k("s_add_u32 s40, s40, s27")
            k("s_lshl_b32 s40, s40, 14")
            k("s_lshl_b32 s41, s38, 8")
            k("s_add_u32 s40, s40, s41")
            k(f"s_add_u32 s40, s40, {ST}")
            k(f"buffer_store_dword v8, v12, s[48:51], s40 offen{NS_}")
        k("s_waitcnt vmcnt(0)")
        fin_compute(k, fz, kidx)
    k("s_cmp_eq_u32 s27, 1")
    k(f"s_cbranch_scc1 {k.ref('p2')}")
    path(3)
    k.lab("p2")
    path(2)
    return k


ATT_PACK = "cvt"
def gen_attn(name, kidx=0, pack=None, force_slow=False):
    pack = pack or ATT_PACK
    NWG = 256
    LDS = 163840
    k = Kern(name, NWG, 512, LDS, vgpr=128)
    KA, KB, VA = 1, 2, 3
    Q16, Q4 = 8, 12
    K16 = [16, 20]; K4 = [24, 26]
    V = [32, 40]
    S = [48, 64]
    P = 80
    O = 96
    k(f"s_cmp_ge_u32 s2, {NWG}")
    k(f"s_cbranch_scc1 {k.ref('end')}")
    k.stamp(0)
    k.karg(6, 80)
    wave_id(k, 26)
    k("s_and_b32 s20, s2, 7")
    k("s_lshr_b32 s21, s2, 3")
    k("s_lshr_b32 s22, s21, 3")
    k("s_lshl_b32 s23, s20, 2")
    k("s_add_u32 s24, s23, s22")
    k("s_and_b32 s25, s21, 7")
    k("s_lshl_b32 s25, s25, 3")
    k("s_add_u32 s25, s25, s26")
    k("v_lshlrev_b32 v4, 4, v0")
    k("s_lshl_b32 s27, s24, 6")
    k("s_add_u32 s27, s27, s25")
    k("s_mul_i32 s27, s27, 1280")
    k(f"s_add_u32 s27, s27, {WS_Q}")
    k("s_mul_i32 s28, s24, 163840")
    k(f"s_add_u32 s28, s28, {WS_KV}")
    k("s_mul_i32 s29, s26, 3072")
    k("s_mul_i32 s30, s26, 17408")
    k("s_add_u32 s30, s30, 24576")
    k("v_and_b32 v5, 31, v0")
    k("v_lshlrev_b32 v6, 3, v5")
    k(f"v_mov_b32 v{Q4}, 0")
    k(f"v_mov_b32 v{Q4+1}, 0")
    k("s_waitcnt lgkmcnt(0)")
    k.srd(12, 6, 0, WS_SIZE)
    k(f"buffer_load_dwordx4 v[{Q16}:{Q16+3}], v4, s[12:15], s27 offen")
    k("s_mov_b64 exec, 0xffffffff")
    k(f"buffer_load_dwordx2 v[{Q4}:{Q4+1}], v6, s[12:15], s27 offen offset:1024")
    k("s_mov_b64 exec, -1")
    k("s_mov_b32 m0, s29")
    k("s_add_u32 s31, s28, s29")
    for i in range(3):
        k(f"buffer_load_dwordx4 v4, s[12:15], s31 offen offset:{i*1024} lds")
    for g in range(5):
        k(f"s_add_u32 m0, s30, {g*4096}")
        k(f"s_add_u32 s31, s28, s30")
        if g: k(f"s_add_u32 s31, s31, {g*4096}")
        for i in range(4 if g < 4 else 1):
            k(f"buffer_load_dwordx4 v4, s[12:15], s31 offen offset:{i*1024} lds")
    k.stamp(1)
    def lane_addrs():
        k("v_and_b32 v5, 31, v0")
        k("v_and_b32 v6, 0x13, v5")
        k("v_and_b32 v7, 4, v5")
        k("v_lshl_or_b32 v6, v7, 1, v6")
        k("v_and_b32 v7, 8, v5")
        k("v_lshrrev_b32 v7, 1, v7")
        k("v_or_b32 v6, v6, v7")
        k("v_lshrrev_b32 v7, 5, v0")
        k(f"v_lshlrev_b32 v{KA}, 9, v7")
        k(f"v_lshl_add_u32 v{KA}, v6, 4, v{KA}")
        k(f"v_lshlrev_b32 v{KB}, 3, v6")
        k(f"v_add_u32 v{KB}, 1024, v{KB}")
        k(f"v_mul_u32_u24 v{VA}, 320, v7")
        k(f"v_lshl_add_u32 v{VA}, v5, 4, v{VA}")
        k(f"v_add_u32 v{VA}, 1280, v{VA}")
    lane_addrs()
    k("v_cmp_eq_u32 vcc, 20, v5")
    k("v_mov_b32 v7, 0x3f803f80")
    k("s_mov_b32 s34, 0x000fffff")
    k("s_mov_b32 s35, 0x000fffff")
    k(f"v_cndmask_b32 v{V[0]}, 0, v7, vcc")
    for r in range(1, 16):
        k(f"v_mov_b32 v{V[0]+r}, v{V[0]}")
    for r in range(16):
        k(f"v_mov_b32 v{O+r}, 0")
    for r in range(4, 8):
        k(f"v_mov_b32 v{P+r}, 0")
    k("s_waitcnt vmcnt(17)")
    k("s_barrier")
    k.stamp(2)
    def rdK(buf, off):
        k(f"ds_read_b128 v[{K16[buf]}:{K16[buf]+3}], v{KA} offset:{off}")
        k(f"ds_read_b64 v[{K4[buf]}:{K4[buf]+1}], v{KB} offset:{off}")
    def rdV(buf, off):
        k("s_mov_b64 exec, s[34:35]")
        k(f"ds_read_b128 v[{V[buf]}:{V[buf]+3}], v{VA} offset:{off}")
        k(f"ds_read_b128 v[{V[buf]+4}:{V[buf]+7}], v{VA} offset:{off+640}")
        k("s_mov_b64 exec, -1")
    def M1(n): k(f"v_mfma_f32_32x32x16_bf16 v[{S[n]}:{S[n]+15}], v[{K16[n]}:{K16[n]+3}], v[{Q16}:{Q16+3}], 0")
    def M2(n): k(f"v_mfma_f32_32x32x8bf16_1k v[{S[n]}:{S[n]+15}], v[{K4[n]}:{K4[n]+1}], v[{Q4}:{Q4+1}], v[{S[n]}:{S[n]+15}]")
    def MPV(vb, f): k(f"v_mfma_f32_32x32x16_bf16 v[{O}:{O+15}], v[{V[vb]+4*f}:{V[vb]+4*f+3}], v[{P+4*f}:{P+4*f+3}], v[{O}:{O+15}]")
    def G(c, g):
        s = S[c] + 4 * g
        p = P + 2 * g
        if pack == "cvt":
            for i in range(4):
                k(f"v_exp_f32 v{s+i}, v{s+i}")
            k(f"v_cvt_pk_bf16_f32 v{p}, v{s}, v{s+1}")
            k(f"v_cvt_pk_bf16_f32 v{p+1}, v{s+2}, v{s+3}")
        else:
            k(f"v_exp_f32 v{p}, v{s+1}")
            k(f"v_exp_f32 v{s}, v{s}")
            k(f"v_exp_f32 v{p+1}, v{s+3}")
            k(f"v_exp_f32 v{s+2}, v{s+2}")
            k(f"v_mov_b32_sdwa v{p}, v{s} dst_sel:WORD_0 dst_unused:UNUSED_PRESERVE src0_sel:WORD_1")
            k(f"v_mov_b32_sdwa v{p+1}, v{s+2} dst_sel:WORD_0 dst_unused:UNUSED_PRESERVE src0_sel:WORD_1")
    rdK(0, 0)
    rdK(1, 2560)
    rdV(0, 0)
    k("s_waitcnt lgkmcnt(4)")
    M1(0)
    k("s_mov_b32 s36, 0")
    k("s_nop 7")
    k("s_nop 1")
    M2(0)
    k("s_nop 7")
    k("s_nop 3")
    k.lab("loop")
    k("s_cmp_eq_u32 s36, 1")
    k(f"s_cbranch_scc0 {k.ref('nosync')}")
    k("s_waitcnt vmcnt(0)")
    k("s_barrier")
    k.lab("nosync")
    k("s_cmp_eq_u32 s36, 7")
    k(f"s_mov_b32 s37, {(-7*20480) & 0xffffffff:#x}")
    k("s_cselect_b32 s37, s37, 20480")
    for t in range(8):
        c, n = t & 1, (t + 1) & 1
        k("s_waitcnt lgkmcnt(0)")
        M1(n)
        G(c, 0)
        MPV(n, 1)
        if t == 6:
            k(f"v_add_u32 v{KA}, s37, v{KA}")
            k(f"v_add_u32 v{KB}, s37, v{KB}")
        if t == 7:
            k(f"v_add_u32 v{VA}, s37, v{VA}")
        rdK(c, ((t + 2) % 8) * 2560)
        rdV(n, ((t + 1) % 8) * 2560)
        G(c, 1)
        M2(n)
        G(c, 2)
        MPV(c, 0)
        G(c, 3)
    k("s_add_u32 s36, s36, 1")
    k("s_cmp_lt_u32 s36, 8")
    k(f"s_cbranch_scc1 {k.ref('loop')}")
    k("s_nop 0")
    MPV(1, 1)
    k.stamp(3)
    k("s_waitcnt lgkmcnt(0)")
    k("s_nop 7")
    k("s_nop 3")
    k(f"v_mov_b32 v4, v{O+8}")
    k(f"v_mov_b32 v5, v{O+8}")
    k("v_mov_b32 v6, 0")
    k("s_nop 0")
    k("v_permlane32_swap_b32 v4, v5")
    for r in range(12):
        k(f"v_fma_f32 v6, v{O+r}, 0, v6")
    k(f"v_cmp_lt_f32 vcc, {f2u(2.0**-40):#x}, v5")
    k(f"v_cmp_gt_f32 s[38:39], {f2u(2.0**40):#x}, v5" if False else f"s_mov_b32 s40, {f2u(2.0**40):#x}")
    k("v_cmp_gt_f32 s[38:39], s40, v5")
    k("v_cmp_eq_f32 s[42:43], 0, v6")
    k("s_nop 3")
    k("s_and_b64 vcc, vcc, s[38:39]")
    k("s_and_b64 vcc, vcc, s[42:43]")
    if force_slow:
        k("s_mov_b64 vcc, 0")
    k("s_cmp_eq_u64 vcc, -1")
    k(f"s_cbranch_scc0 {k.ref('slow')}")
    k.lab("fin")
    k("v_rcp_f32 v5, v5")
    k("s_mul_i32 s40, s24, 5")
    k("v_lshrrev_b32 v7, 5, v0")
    k("v_add_u32 v7, s40, v7")
    k("v_lshrrev_b32 v6, 1, v7")
    k("v_lshlrev_b32 v6, 9, v6")
    k("v_and_b32 v7, 1, v7")
    k("v_lshl_add_u32 v6, v7, 3, v6")
    k("v_and_b32 v7, 31, v0")
    k("v_lshl_add_u32 v6, v7, 4, v6")
    k("s_mul_i32 s41, s25, 40960")
    k(f"s_add_u32 s41, s41, {WS_O}")
    for r in range(0, 12, 2):
        k(f"v_pk_mul_f32 v[{O+r}:{O+r+1}], v[{O+r}:{O+r+1}], v[4:5] op_sel:[0,1] op_sel_hi:[1,1]")
    k("s_nop 0")
    for j in range(6):
        k(f"v_cvt_pk_bf16_f32 v{16+j}, v{O+2*j}, v{O+2*j+1}")
    k("buffer_store_dwordx2 v[16:17], v6, s[12:15], s41 offen")
    k("buffer_store_dwordx2 v[18:19], v6, s[12:15], s41 offen offset:512")
    k("s_mov_b64 exec, 0xffffffff")
    k("buffer_store_dwordx2 v[20:21], v6, s[12:15], s41 offen offset:1024")
    k("s_waitcnt vmcnt(0)")
    k.stamp(4); k.stamp_flush(6, kidx, 5, 26)
    k.lab("end")
    k("s_endpgm")
    k.lab("slow")
    lane_addrs()
    MX = 88
    k(f"v_mov_b32 v{MX}, {f2u(-3.0e38):#x}")
    for r in range(16):
        k(f"v_mov_b32 v{O+r}, 0")
    k("s_mov_b32 s36, 0")
    k.lab("sl")
    rdK(0, 0)
    rdV(0, 0)
    k("s_waitcnt lgkmcnt(0)")
    M1(0)
    k("s_nop 7"); k("s_nop 1")
    M2(0)
    k("s_nop 7"); k("s_nop 3")
    s = S[0]
    k(f"v_max3_f32 v4, v{s}, v{s+1}, v{s+2}")
    for i in range(3, 15, 2):
        k(f"v_max3_f32 v4, v4, v{s+i}, v{s+i+1}")
    k(f"v_max_f32 v4, v4, v{s+15}")
    k("v_mov_b32 v5, v4")
    k("s_nop 1")
    k("v_permlane32_swap_b32 v4, v5")
    k("s_nop 1")
    k(f"v_max3_f32 v4, v4, v5, v{MX}")
    k(f"v_sub_f32 v5, v{MX}, v4")
    k("v_exp_f32 v5, v5")
    k(f"v_mov_b32 v{MX}, v4")
    for i in range(16):
        k(f"v_sub_f32 v{s+i}, v{s+i}, v4")
    for i in range(16):
        k(f"v_exp_f32 v{s+i}, v{s+i}")
    for r in range(12):
        k(f"v_mul_f32 v{O+r}, v{O+r}, v5")
    for j in range(8):
        k(f"v_cvt_pk_bf16_f32 v{P+j}, v{s+2*j}, v{s+2*j+1}")
    k(f"v_add_u32 v{KA}, 2560, v{KA}")
    k(f"v_add_u32 v{KB}, 2560, v{KB}")
    k(f"v_add_u32 v{VA}, 2560, v{VA}")
    k("s_nop 4")
    MPV(0, 0)
    MPV(0, 1)
    k("s_nop 7"); k("s_nop 3")
    k("s_add_u32 s36, s36, 1")
    k("s_cmp_lt_u32 s36, 64")
    k(f"s_cbranch_scc1 {k.ref('sl')}")
    k(f"v_mov_b32 v4, v{O+8}")
    k(f"v_mov_b32 v5, v{O+8}")
    k("s_nop 1")
    k("v_permlane32_swap_b32 v4, v5")
    k("s_nop 1")
    k(f"s_branch {k.ref('fin')}")
    return k


def l2_prefetch(k, items, half, idx, lw, tmp, vaddr, vdst, srd=12):
    k(f"v_lshlrev_b32 v{vaddr}, 7, v0")
    for n, (base, hb) in enumerate(items):
        per_wg = hb // 32
        per_w = per_wg // 4
        lines = (per_w + 127) // 128
        k(f"s_mul_i32 s{tmp}, s{half}, {hb}")
        k(f"s_mul_i32 s{tmp+1}, s{idx}, {per_wg}")
        k(f"s_add_u32 s{tmp}, s{tmp}, s{tmp+1}")
        k(f"s_mul_i32 s{tmp+1}, s{lw}, {per_w}")
        k(f"s_add_u32 s{tmp}, s{tmp}, s{tmp+1}")
        k(f"s_add_u32 s{tmp}, s{tmp}, {base}")
        done = 0
        while done < lines:
            n_ = min(64, lines - done)
            if n_ < 64:
                m = (1 << n_) - 1
                k(f"s_mov_b32 exec_lo, {m & 0xffffffff:#x}")
                k(f"s_mov_b32 exec_hi, {m >> 32:#x}")
            k(f"buffer_load_dword v{vdst}, v{vaddr}, s[{srd}:{srd+3}], s{tmp} offen")
            if n_ < 64:
                k("s_mov_b64 exec, -1")
            done += n_
            if done < lines:
                k(f"s_add_u32 s{tmp}, s{tmp}, {64*128}")
            vdst += 1

PFA = ""
RINGD = 0
def att_prefetch(k, spec, idx, lw, va, vd, srd=12):
    REG = {"o": (WS_WO, 8, 102400), "1": (WS_W1, 16, 122880), "2": (WS_W2, 8, 245760), "q": (WS_WQ, 16, 163840)}
    k(f"v_lshlrev_b32 v{va}, 7, v0")
    k(f"s_lshl_b32 s42, s{idx}, 2")
    k(f"s_add_u32 s42, s42, s{lw}")
    n = 0
    for it in spec.split(","):
        r, _, den = it.partition("/")
        base, nt, stride = REG[r]
        nb = stride // int(den or 1)
        wpt = 128 // nt
        per_w = nb // wpt
        assert per_w % 128 == 0 or den, (it, per_w)
        per_w = per_w // 128 * 128
        lines = per_w // 128
        sh = wpt.bit_length() - 1
        k(f"s_lshr_b32 s40, s42, {sh}")
        k(f"s_mul_i32 s40, s40, {stride}")
        k(f"s_and_b32 s41, s42, {wpt-1}")
        k(f"s_mul_i32 s41, s41, {per_w}")
        k("s_add_u32 s40, s40, s41")
        k(f"s_add_u32 s40, s40, {base}")
        done = 0
        while done < lines:
            n_ = min(64, lines - done)
            if n_ < 64:
                m = (1 << n_) - 1
                k(f"s_mov_b32 exec_lo, {m & 0xffffffff:#x}")
                k(f"s_mov_b32 exec_hi, {m >> 32:#x}")
            k(f"buffer_load_dword v{vd}, v{va}, s[{srd}:{srd+3}], s40 offen")
            if n_ < 64: k("s_mov_b64 exec, -1")
            done += n_; n += 1; vd += 1
            if done < lines: k(f"s_add_u32 s40, s40, {64*128}")
    return n

def repack_unit(k, lw, EV, OD, early=False, mid=None, lds=0):
    k(f"s_lshl_b32 s52, s2, 2")
    k(f"s_add_u32 s52, s52, s{lw}")
    k("s_cmp_ge_u32 s52, 880")
    k(f"s_cbranch_scc1 {k.ref('rp_skip' if (early or mid) else 'rp_done')}")
    k.karg(54, 8)
    k.karg(56, 16)
    k.karg(58, 32)
    k.karg(60, 48)
    def setup(lbl, lo, ncg, ptr, size, pitch, TN, K, dst, cs, csp):
        k.lab(lbl)
        k(f"s_sub_u32 s52, s52, {lo}")
        k.srd(64, ptr, 0, size)
        k(f"s_mov_b32 s53, {pitch}")
        k(f"s_mov_b32 s54, {(65536 + TN - 1)//TN}")
        k(f"s_mov_b32 s55, {TN}")
        k(f"s_mov_b32 s56, {K//8*TN*16}")
        k(f"s_mov_b32 s57, {dst}")
        k(f"s_mul_i32 s58, s52, {(65536 + ncg - 1)//ncg}")
        k("s_lshr_b32 s58, s58, 16")
        k(f"s_mul_i32 s59, s58, {ncg}")
        k("s_sub_u32 s59, s52, s59")
        k(f"s_mov_b32 s60, {cs if cs is not None else 0xffffffff:#x}")
        k(f"s_mov_b32 s61, {csp}")
        k(f"s_branch {k.ref('rp_go')}")
    k("s_waitcnt lgkmcnt(0)")
    k("s_cmp_ge_u32 s52, 640"); k(f"s_cbranch_scc1 {k.ref('rp_w2')}")
    k("s_cmp_ge_u32 s52, 540"); k(f"s_cbranch_scc1 {k.ref('rp_wo')}")
    k("s_cmp_ge_u32 s52, 300"); k(f"s_cbranch_scc1 {k.ref('rp_w1')}")
    setup("rp_wq", 0, 30, 54, 640 * 3840, 3840, 128, 640, WS_WQ, WS_CSQ, 1920 * 4)
    setup("rp_w1", 300, 24, 58, 640 * 3072, 3072, 96, 640, WS_W1, WS_CS1, 1536 * 4)
    setup("rp_wo", 540, 10, 56, 640 * 1280, 1280, 80, 640, WS_WO, None, 0)
    setup("rp_w2", 640, 10, 60, 1536 * 1280, 1280, 80, 1536, WS_W2, None, 0)
    k.lab("rp_go")
    if lds:
        VD = OD + 1
        k("v_lshrrev_b32 v4, 3, v0")
        k("v_and_b32 v5, 7, v0")
        k("v_bfe_u32 v6, v0, 4, 1")
        k("v_lshlrev_b32 v6, 2, v6")
        k("v_xor_b32 v5, v5, v6")
        k("v_mul_lo_u32 v4, v4, s53")
        k(f"v_lshl_add_u32 v{VD}, v5, 4, v4")
        k("s_lshl_b32 s62, s58, 6")
        k("s_mul_i32 s62, s62, s53")
        k("s_lshl_b32 s63, s59, 7")
        k("s_add_u32 s52, s62, s63")
        if mid:
            k(f"v_mul_lo_u32 v{OD+2}, v0, s53")
            k(f"buffer_load_dword v{OD+3}, v{OD+2}, s[64:67], s52 offen")
        k(f"s_mul_i32 s69, s{lw}, 8192")
        k(f"s_sub_u32 s69, {lds + 3*8192}, s69")
        k("v_bfe_u32 v6, v0, 2, 2")
        k("v_lshrrev_b32 v7, 4, v0")
        k("v_lshlrev_b32 v7, 1, v7")
        k("v_bfe_u32 v5, v0, 1, 1")
        k("v_add_u32 v7, v7, v5")
        k("v_lshrrev_b32 v5, 1, v6")
        k("v_lshlrev_b32 v5, 2, v5")
        k("v_xor_b32 v7, v7, v5")
        k("v_lshlrev_b32 v7, 4, v7")
        k("v_lshl_add_u32 v7, v6, 7, v7")
        k("v_and_b32 v5, 1, v0")
        k("v_lshl_add_u32 v7, v5, 3, v7")
        k(f"v_add_u32 v{OD}, s69, v7")
        def dmas():
            k("s_lshl_b32 s53, s53, 3")
            for i in range(8):
                k(f"s_add_u32 m0, s69, {i*1024}")
                k("s_add_u32 s52, s52, s53" if i else "s_nop 0")
                k(f"buffer_load_dwordx4 v{VD}, s[64:67], s52 offen lds")
        if not mid: dmas()
    else:
        k("v_lshlrev_b32 v4, 1, v0")
        k("s_lshl_b32 s62, s58, 6")
        k("s_mul_i32 s62, s62, s53")
        k("s_lshl_b32 s63, s59, 7")
        k("s_add_u32 s62, s62, s63")
        for r in range(64):
            d = (OD if r & 1 else EV) + (r >> 1)
            k(f"buffer_load_ushort v{d}, v4, s[64:67], s62 offen")
            if r < 63:
                k("s_add_u32 s62, s62, s53")
        if mid: mid()
    k("s_lshl_b32 s62, s59, 6")
    k("v_add_u32 v4, s62, v0")
    k("v_mul_lo_u32 v5, v4, s54")
    k("v_lshrrev_b32 v5, 16, v5")
    k("v_mul_lo_u32 v6, v5, s55")
    k("v_sub_u32 v6, v4, v6")
    k("v_mul_lo_u32 v5, v5, s56")
    k("v_lshl_add_u32 v5, v6, 4, v5")
    k("s_lshl_b32 s63, s55, 4")
    k("s_lshl_b32 s62, s58, 3")
    k("s_mul_i32 s62, s62, s63")
    k("s_add_u32 s62, s62, s57")
    k("v_mov_b32 v6, 0")
    k("v_mov_b32 v7, 0")
    if lds:
        if mid:
            mid(); dmas()
        for ku in range(8):
            k(f"s_waitcnt vmcnt({7 - ku})")
            k(f"ds_read_b64_tr_b16 v[{EV+4*ku}:{EV+4*ku+1}], v{OD} offset:{ku*1024}")
            k(f"ds_read_b64_tr_b16 v[{EV+4*ku+2}:{EV+4*ku+3}], v{OD} offset:{ku*1024+512}")
        for ku in range(8):
            k(f"s_waitcnt lgkmcnt({14 - 2*ku})")
            k(f"buffer_store_dwordx4 v[{EV+4*ku}:{EV+4*ku+3}], v5, s[12:15], s62 offen")
            if ku < 7:
                k("s_add_u32 s62, s62, s63")
    else:
      for ku in range(8):
        k(f"s_waitcnt vmcnt({min(63, 56 - 8*ku + ku)})")
        for j in range(4 * ku, 4 * ku + 4):
            k(f"v_lshl_or_b32 v{EV+j}, v{OD+j}, 16, v{EV+j}")
        k(f"buffer_store_dwordx4 v[{EV+4*ku}:{EV+4*ku+3}], v5, s[12:15], s62 offen")
        if ku < 7:
            k("s_add_u32 s62, s62, s63")
    k("s_cmp_eq_u32 s60, 0xffffffff")
    k(f"s_cbranch_scc1 {k.ref('rp_done')}")
    for j in range(32):
        k(f"v_dot2c_f32_bf16 v{6 + (j & 1)}, 0x3f803f80, v{EV+j}")
    k("s_mul_i32 s62, s58, s61")
    k("s_add_u32 s62, s62, s60")
    k("v_lshlrev_b32 v4, 2, v4")
    k("s_nop 3")
    k("v_add_f32 v6, v6, v7")
    k("s_nop 0")
    k("buffer_store_dword v6, v4, s[12:15], s62 offen")
    if mid:
        k(f"s_branch {k.ref('rp_done')}")
        k.lab("rp_skip")
        mid()
    if early:
        k(f"s_branch {k.ref('rp_done')}")
        k.lab("rp_skip")
        k("s_waitcnt vmcnt(0)")
    k.lab("rp_done")


PF_ATT = [(WS_WO, 409600), (WS_W1, 983040), (WS_W2, 983040)]

def gen_attn2(name, kidx=0, pack="cvt", force_slow=False, sched=0, dbg=(), pf=0):
    NWG = 256
    LDS = 163840
    k = Kern(name, NWG, 512, LDS, vgpr=160)
    KA, KB, VA = 1, 2, 3
    Q16 = [8, 28]; Q4 = [12, 14]
    K16 = [16, 20]; K4 = [24, 26]
    V = [32, 40]
    S = [48, 64]
    P = 80
    O = [96, 112]
    k(f"s_cmp_ge_u32 s2, {NWG}")
    k(f"s_cbranch_scc1 {k.ref('end')}")
    k.stamp(0)
    k.karg(6, 80)
    wave_id(k, 26)
    k("s_and_b32 s20, s2, 7")
    k("s_lshr_b32 s21, s2, 3")
    k("s_lshr_b32 s22, s21, 3")
    k("s_lshl_b32 s23, s20, 2")
    k("s_add_u32 s24, s23, s22")
    k("v_lshlrev_b32 v4, 4, v0")
    k("s_cmp_lt_u32 s26, 4")
    k(f"s_cbranch_scc1 {k.ref('compute')}")
    k("s_sub_u32 s26, s26, 4")
    k("s_mul_i32 s28, s24, 163840")
    k(f"s_add_u32 s28, s28, {WS_KV}")
    k("s_mul_i32 s29, s26, 6144")
    k("s_mul_i32 s30, s26, 34816")
    k("s_add_u32 s30, s30, 24576")
    k("s_waitcnt lgkmcnt(0)")
    k.srd(12, 6, 0, WS_SIZE)
    k("s_mov_b32 m0, s29")
    k("s_add_u32 s31, s28, s29")
    for i in range(4):
        k(f"buffer_load_dwordx4 v4, s[12:15], s31 offen offset:{i*1024} lds")
    k("s_add_u32 m0, s29, 4096")
    k("s_add_u32 s31, s31, 4096")
    for i in range(2):
        k(f"buffer_load_dwordx4 v4, s[12:15], s31 offen offset:{i*1024} lds")
    k("s_add_u32 s28, s28, s30")
    def stB(g):
        k(f"s_add_u32 m0, s30, {g*4096}")
        k(f"s_add_u32 s31, s28, {g*4096}")
        for i in range(4 if g < 8 else 2):
            k(f"buffer_load_dwordx4 v4, s[12:15], s31 offen offset:{i*1024} lds")
    stB(0); stB(1)
    k.stamp(1)
    k("s_waitcnt vmcnt(8)")
    k.stamp(2)
    k("s_barrier")
    for g in range(2, 9):
        stB(g)
    k.stamp(3)
    k("s_waitcnt vmcnt(0)")
    k.stamp(4)
    k("s_barrier")
    if pf:
        k("s_and_b32 s40, s20, 1")
        l2_prefetch(k, PF_ATT[:pf], 40, 21, 26, 42, 5, 8)
        k("s_waitcnt vmcnt(0)")
    k("s_add_u32 s26, s26, 4")
    k.stamp_flush(6, kidx, 5, 26)
    k.lab("end")
    k("s_endpgm")
    k.lab("compute")
    k("s_and_b32 s25, s21, 7")
    k("s_lshl_b32 s25, s25, 3")
    k("s_lshl_b32 s23, s26, 1")
    k("s_add_u32 s25, s25, s23")
    k("s_lshl_b32 s27, s24, 6")
    k("s_add_u32 s27, s27, s25")
    k("s_mul_i32 s27, s27, 1280")
    k(f"s_add_u32 s27, s27, {WS_Q}")
    k("s_add_u32 s28, s27, 1280")
    k("v_and_b32 v5, 31, v0")
    k("v_lshlrev_b32 v6, 3, v5")
    for x in range(2):
        k(f"v_mov_b32 v{Q4[x]}, 0")
        k(f"v_mov_b32 v{Q4[x]+1}, 0")
    k("s_waitcnt lgkmcnt(0)")
    k.srd(12, 6, 0, WS_SIZE)
    k(f"buffer_load_dwordx4 v[{Q16[0]}:{Q16[0]+3}], v4, s[12:15], s27 offen")
    k(f"buffer_load_dwordx4 v[{Q16[1]}:{Q16[1]+3}], v4, s[12:15], s28 offen")
    k("s_mov_b64 exec, 0xffffffff")
    k(f"buffer_load_dwordx2 v[{Q4[0]}:{Q4[0]+1}], v6, s[12:15], s27 offen offset:1024")
    k(f"buffer_load_dwordx2 v[{Q4[1]}:{Q4[1]+1}], v6, s[12:15], s28 offen offset:1024")
    k("s_mov_b64 exec, -1")
    def lane_addrs():
        k("v_and_b32 v5, 31, v0")
        k("v_and_b32 v6, 0x13, v5")
        k("v_and_b32 v7, 4, v5")
        k("v_lshl_or_b32 v6, v7, 1, v6")
        k("v_and_b32 v7, 8, v5")
        k("v_lshrrev_b32 v7, 1, v7")
        k("v_or_b32 v6, v6, v7")
        k("v_lshrrev_b32 v7, 5, v0")
        k(f"v_lshlrev_b32 v{KA}, 9, v7")
        k(f"v_lshl_add_u32 v{KA}, v6, 4, v{KA}")
        k(f"v_lshlrev_b32 v{KB}, 3, v6")
        k(f"v_add_u32 v{KB}, 1024, v{KB}")
        k(f"v_mul_u32_u24 v{VA}, 320, v7")
        k(f"v_lshl_add_u32 v{VA}, v5, 4, v{VA}")
        k(f"v_add_u32 v{VA}, 1280, v{VA}")
    lane_addrs()
    k("v_cmp_eq_u32 vcc, 20, v5")
    k("v_mov_b32 v7, 0x3f803f80")
    k("s_mov_b32 s34, 0x000fffff")
    k("s_mov_b32 s35, 0x000fffff")
    k(f"v_cndmask_b32 v{V[0]}, 0, v7, vcc")
    for r in range(1, 16):
        k(f"v_mov_b32 v{V[0]+r}, v{V[0]}")
    for r in range(32):
        k(f"v_mov_b32 v{O[0]+r}, 0")
    for r in range(4, 8):
        k(f"v_mov_b32 v{P+r}, 0")
    k.stamp(1)
    k("s_waitcnt vmcnt(0)")
    k("s_barrier")
    k.stamp(2)
    def rdK(buf, off):
        return [f"ds_read_b128 v[{K16[buf]}:{K16[buf]+3}], v{KA} offset:{off}",
                f"ds_read_b64 v[{K4[buf]}:{K4[buf]+1}], v{KB} offset:{off}"]
    def rdV(buf, off):
        return ["s_mov_b64 exec, s[34:35]",
                f"ds_read_b128 v[{V[buf]}:{V[buf]+3}], v{VA} offset:{off}",
                f"ds_read_b128 v[{V[buf]+4}:{V[buf]+7}], v{VA} offset:{off+640}",
                "s_mov_b64 exec, -1"]
    def M1(x, kb): return f"v_mfma_f32_32x32x16_bf16 v[{S[x]}:{S[x]+15}], v[{K16[kb]}:{K16[kb]+3}], v[{Q16[x]}:{Q16[x]+3}], 0"
    def M2(x, kb): return f"v_mfma_f32_32x32x8bf16_1k v[{S[x]}:{S[x]+15}], v[{K4[kb]}:{K4[kb]+1}], v[{Q4[x]}:{Q4[x]+1}], v[{S[x]}:{S[x]+15}]"
    def MPV(x, vb, f): return f"v_mfma_f32_32x32x16_bf16 v[{O[x]}:{O[x]+15}], v[{V[vb]+4*f}:{V[vb]+4*f+3}], v[{P+4*f}:{P+4*f+3}], v[{O[x]}:{O[x]+15}]"
    def G(x, g, fill=()):
        s = S[x] + 4 * g
        p = P + 2 * g
        fill = list(fill)
        if pack == "cvt":
            ex = [f"v_exp_f32 v{s+i}, v{s+i}" for i in range(4)]
            pk = [f"v_cvt_pk_bf16_f32 v{p}, v{s}, v{s+1}", f"v_cvt_pk_bf16_f32 v{p+1}, v{s+2}, v{s+3}"]
        else:
            ex = [f"v_exp_f32 v{p}, v{s+1}", f"v_exp_f32 v{s}, v{s}", f"v_exp_f32 v{p+1}, v{s+3}", f"v_exp_f32 v{s+2}, v{s+2}"]
            pk = [f"v_mov_b32_sdwa v{p}, v{s} dst_sel:WORD_0 dst_unused:UNUSED_PRESERVE src0_sel:WORD_1",
                  f"v_mov_b32_sdwa v{p+1}, v{s+2} dst_sel:WORD_0 dst_unused:UNUSED_PRESERVE src0_sel:WORD_1"]
        for i in range(4):
            k(ex[i])
            if i < len(fill) and fill[i]:
                for f in (fill[i] if isinstance(fill[i], list) else [fill[i]]):
                    k(f)
        for x_ in pk: k(x_)
    for r in rdK(0, 0) + rdK(1, 2560) + rdV(0, 0): k(r)
    k("s_waitcnt lgkmcnt(4)")
    k(M1(0, 0))
    k("s_mov_b32 s36, 0")
    k("s_nop 7")
    k("s_nop 1")
    k(M2(0, 0))
    k("s_nop 7")
    k("s_nop 3")
    k.lab("loop")
    k("s_cmp_eq_u32 s36, 1")
    k(f"s_cbranch_scc0 {k.ref('nosync')}")
    k("s_barrier")
    k.lab("nosync")
    k("s_cmp_eq_u32 s36, 7")
    k(f"s_mov_b32 s37, {(-7*20480) & 0xffffffff:#x}")
    k("s_cselect_b32 s37, s37, 20480")
    L0 = len(k.L)
    for t in range(8):
        c, n = t & 1, (t + 1) & 1
        k("s_waitcnt lgkmcnt(0)")
        k(M1(1, c))
        G(0, 0)
        k(MPV(1, n, 1))
        if t == 7:
            k(f"v_add_u32 v{VA}, s37, v{VA}")
        rv = rdV(n, ((t + 1) % 8) * 2560)
        G(0, 1, fill=[rv])
        k(M2(1, c))
        if t == 6:
            k(f"v_add_u32 v{KA}, s37, v{KA}")
            k(f"v_add_u32 v{KB}, s37, v{KB}")
        rk = rdK(c, ((t + 2) % 8) * 2560)
        G(0, 2, fill=[rk[0], rk[1]])
        k(MPV(0, c, 0))
        G(0, 3)
        k(M1(0, n))
        G(1, 0)
        k(MPV(0, c, 1))
        G(1, 1)
        k(M2(0, n))
        G(1, 2)
        k(MPV(1, c, 0))
        G(1, 3)
    if dbg:
        body = k.L[L0:]
        def drop(l):
            l = l.strip()
            if "nods" in dbg and (l.startswith("ds_") or "exec" in l or l.startswith("s_waitcnt")): return True
            if "nomfma" in dbg and l.startswith("v_mfma"): return True
            if "nocvt" in dbg and (l.startswith("v_cvt") or l.startswith("v_mov_b32_sdwa")): return True
            if "noexp" in dbg and l.startswith("v_exp"): return True
            if "nom2" in dbg and "32x32x8" in l: return True
            if "nopv" in dbg and l.startswith(f"v_mfma_f32_32x32x16_bf16 v[{O[0]}") : return True
            if "nopv" in dbg and l.startswith(f"v_mfma_f32_32x32x16_bf16 v[{O[1]}") : return True
            return False
        k.L = k.L[:L0] + [l for l in body if not drop(l)]
    k("s_add_u32 s36, s36, 1")
    k("s_cmp_lt_u32 s36, 8")
    k(f"s_cbranch_scc1 {k.ref('loop')}")
    k("s_nop 0")
    k(MPV(1, 1, 1))
    k.stamp(3)
    k("s_waitcnt lgkmcnt(0)")
    k("s_nop 7")
    k("s_nop 3")
    L = [5, 7]
    k("v_mov_b32 v16, 0")
    for x in range(2):
        k(f"v_mov_b32 v{L[x]-1}, v{O[x]+8}")
        k(f"v_mov_b32 v{L[x]}, v{O[x]+8}")
    k("s_nop 1")
    for x in range(2):
        k(f"v_permlane32_swap_b32 v{L[x]-1}, v{L[x]}")
    for x in range(2):
        for r in range(12):
            k(f"v_fma_f32 v16, v{O[x]+r}, 0, v16")
    k(f"s_mov_b32 s40, {f2u(2.0**40):#x}")
    k(f"s_mov_b32 s41, {f2u(2.0**-40):#x}")
    k("v_cmp_eq_f32 vcc, 0, v16")
    k("v_cmp_lt_f32 s[42:43], s41, v5")
    k("v_cmp_gt_f32 s[44:45], s40, v5")
    k("v_cmp_lt_f32 s[46:47], s41, v7")
    k("v_cmp_gt_f32 s[48:49], s40, v7")
    k("s_nop 3")
    k("s_and_b64 vcc, vcc, s[42:43]")
    k("s_and_b64 vcc, vcc, s[44:45]")
    k("s_and_b64 vcc, vcc, s[46:47]")
    k("s_and_b64 vcc, vcc, s[48:49]")
    if force_slow:
        k("s_mov_b64 vcc, 0")
    k("s_cmp_eq_u64 vcc, -1")
    k(f"s_cbranch_scc0 {k.ref('slow')}")
    k.lab("fin")
    k("v_rcp_f32 v5, v5")
    k("v_rcp_f32 v7, v7")
    k("s_mul_i32 s40, s24, 5")
    k("v_lshrrev_b32 v17, 5, v0")
    k("v_add_u32 v17, s40, v17")
    k("v_lshrrev_b32 v16, 1, v17")
    k("v_lshlrev_b32 v16, 9, v16")
    k("v_and_b32 v17, 1, v17")
    k("v_lshl_add_u32 v16, v17, 3, v16")
    k("v_and_b32 v17, 31, v0")
    k("v_lshl_add_u32 v16, v17, 4, v16")
    k("s_mul_i32 s41, s25, 40960")
    k(f"s_add_u32 s41, s41, {WS_O}")
    k("s_add_u32 s42, s41, 40960")
    for x in range(2):
        for r in range(0, 12, 2):
            k(f"v_pk_mul_f32 v[{O[x]+r}:{O[x]+r+1}], v[{O[x]+r}:{O[x]+r+1}], v[{L[x]-1}:{L[x]}] op_sel:[0,1] op_sel_hi:[1,1]")
    for x in range(2):
        for j in range(6):
            k(f"v_cvt_pk_bf16_f32 v{20+6*x+j}, v{O[x]+2*j}, v{O[x]+2*j+1}")
    for x in range(2):
        k(f"buffer_store_dwordx2 v[{20+6*x}:{21+6*x}], v16, s[12:15], s{41+x} offen")
        k(f"buffer_store_dwordx2 v[{22+6*x}:{23+6*x}], v16, s[12:15], s{41+x} offen offset:512")
    k("s_mov_b64 exec, 0xffffffff")
    for x in range(2):
        k(f"buffer_store_dwordx2 v[{24+6*x}:{25+6*x}], v16, s[12:15], s{41+x} offen offset:1024")
    k("s_waitcnt vmcnt(0)")
    k.stamp(4); k.stamp_flush(6, kidx, 5, 26)
    k("s_endpgm")
    k.lab("slow")
    MX = 88
    for x in range(2):
        lane_addrs()
        k(f"v_mov_b32 v{MX}, {f2u(-3.0e38):#x}")
        for r in range(16):
            k(f"v_mov_b32 v{O[x]+r}, 0")
        k("s_mov_b32 s36, 0")
        k.lab(f"sl{x}")
        for r in rdK(0, 0) + rdV(0, 0): k(r)
        k("s_waitcnt lgkmcnt(0)")
        k(M1(x, 0))
        k("s_nop 7"); k("s_nop 1")
        k(M2(x, 0))
        k("s_nop 7"); k("s_nop 3")
        s = S[x]
        k(f"v_max3_f32 v4, v{s}, v{s+1}, v{s+2}")
        for i in range(3, 15, 2):
            k(f"v_max3_f32 v4, v4, v{s+i}, v{s+i+1}")
        k(f"v_max_f32 v4, v4, v{s+15}")
        k("v_mov_b32 v5, v4")
        k("s_nop 1")
        k("v_permlane32_swap_b32 v4, v5")
        k("s_nop 1")
        k(f"v_max3_f32 v4, v4, v5, v{MX}")
        k(f"v_sub_f32 v5, v{MX}, v4")
        k("v_exp_f32 v5, v5")
        k(f"v_mov_b32 v{MX}, v4")
        for i in range(16):
            k(f"v_sub_f32 v{s+i}, v{s+i}, v4")
        for i in range(16):
            k(f"v_exp_f32 v{s+i}, v{s+i}")
        for r in range(12):
            k(f"v_mul_f32 v{O[x]+r}, v{O[x]+r}, v5")
        for j in range(8):
            k(f"v_cvt_pk_bf16_f32 v{P+j}, v{s+2*j}, v{s+2*j+1}")
        k(f"v_add_u32 v{KA}, 2560, v{KA}")
        k(f"v_add_u32 v{KB}, 2560, v{KB}")
        k(f"v_add_u32 v{VA}, 2560, v{VA}")
        k("s_nop 4")
        k(MPV(x, 0, 0))
        k(MPV(x, 0, 1))
        k("s_nop 7"); k("s_nop 3")
        k("s_add_u32 s36, s36, 1")
        k("s_cmp_lt_u32 s36, 64")
        k(f"s_cbranch_scc1 {k.ref(f'sl{x}')}")
    for x in range(2):
        k(f"v_mov_b32 v{L[x]-1}, v{O[x]+8}")
        k(f"v_mov_b32 v{L[x]}, v{O[x]+8}")
    k("s_nop 1")
    for x in range(2):
        k(f"v_permlane32_swap_b32 v{L[x]-1}, v{L[x]}")
    k("s_nop 1")
    k(f"s_branch {k.ref('fin')}")
    return k


def gen_attn3(name, kidx=0, force_slow=False, pf=0, h=8, um=8, uh=8, pm=3, phl=0, b2=8, dbg=(), repack=False, amap=0, stream=0, fz=None):
    NWG = 256
    LDS = 163840
    TM = 64 - h
    assert TM % um == 0 and h % uh == 0 and b2 % um == 0 and um % 2 == 0 and uh % 2 == 0
    SLOT = 2688
    assert 8 * SLOT <= b2 * 2560 + 3840
    k = Kern(name, NWG, 512, LDS, vgpr=160) if fz is None else fz.k
    NS_ = " ; nosc" if (fz and fz.xl and "o" not in XSC) else ""
    KA, KB, VA = 1, 2, 3
    Q16 = [8, 28]; Q4 = [12, 14]
    K16 = [16, 20]; K4 = [24, 26]
    V = [32, 40]
    S = [48, 64]
    P = 80
    O = [96, 112]
    if fz is None:
        k(f"s_cmp_ge_u32 s2, {NWG}")
        k(f"s_cbranch_scc1 {k.ref('end')}")
        k.stamp(0)
        k.karg(6, 80)
        wave_id(k, 26)
    k("s_and_b32 s20, s2, 7")
    k("s_lshr_b32 s21, s2, 3")
    if amap:
        k("s_mov_b32 s24, s21")
    else:
        k("s_lshr_b32 s22, s21, 3")
        k("s_lshl_b32 s23, s20, 2")
        k("s_add_u32 s24, s23, s22")
    k("v_lshlrev_b32 v4, 4, v0")
    k("s_and_b32 s33, s26, 3")
    k(f"s_mul_i32 s50, s24, {163840 + KVPAD}")
    k(f"s_add_u32 s50, s50, {WS_KV}")
    if amap:
        k("s_lshl_b32 s25, s20, 3")
    else:
        k("s_and_b32 s25, s21, 7")
        k("s_lshl_b32 s25, s25, 3")
    k("s_lshl_b32 s23, s33, 1")
    k("s_add_u32 s25, s25, s23")
    k("s_lshl_b32 s27, s24, 6")
    k("s_add_u32 s27, s27, s25")
    k("s_mul_i32 s27, s27, 1280")
    k(f"s_add_u32 s27, s27, {WS_Q}")
    k("s_add_u32 s28, s27, 1280")
    def q_loads():
        k("v_and_b32 v5, 31, v0")
        k("v_lshlrev_b32 v6, 3, v5")
        for x in range(2):
            k(f"v_mov_b32 v{Q4[x]}, 0")
            k(f"v_mov_b32 v{Q4[x]+1}, 0")
        k(f"buffer_load_dwordx4 v[{Q16[0]}:{Q16[0]+3}], v4, s[12:15], s27 offen")
        k(f"buffer_load_dwordx4 v[{Q16[1]}:{Q16[1]+3}], v4, s[12:15], s28 offen")
        k("s_mov_b64 exec, 0xffffffff")
        k(f"buffer_load_dwordx2 v[{Q4[0]}:{Q4[0]+1}], v6, s[12:15], s27 offen offset:1024")
        k(f"buffer_load_dwordx2 v[{Q4[1]}:{Q4[1]+1}], v6, s[12:15], s28 offen offset:1024")
        k("s_mov_b64 exec, -1")
    def lane_addrs():
        k("v_and_b32 v5, 31, v0")
        k("v_and_b32 v6, 0x13, v5")
        k("v_and_b32 v7, 4, v5")
        k("v_lshl_or_b32 v6, v7, 1, v6")
        k("v_and_b32 v7, 8, v5")
        k("v_lshrrev_b32 v7, 1, v7")
        k("v_or_b32 v6, v6, v7")
        k("v_lshrrev_b32 v7, 5, v0")
        k(f"v_lshlrev_b32 v{KA}, 9, v7")
        k(f"v_lshl_add_u32 v{KA}, v6, 4, v{KA}")
        k(f"v_lshlrev_b32 v{KB}, 3, v6")
        k(f"v_add_u32 v{KB}, 1024, v{KB}")
        k(f"v_mul_u32_u24 v{VA}, 320, v7")
        k(f"v_lshl_add_u32 v{VA}, v5, 4, v{VA}")
        k(f"v_add_u32 v{VA}, 1280, v{VA}")
    def init_regs():
        lane_addrs()
        k("v_cmp_eq_u32 vcc, 20, v5")
        k("v_mov_b32 v7, 0x3f803f80")
        k("s_mov_b32 s34, 0x000fffff")
        k("s_mov_b32 s35, 0x000fffff")
        k(f"v_cndmask_b32 v{V[0]}, 0, v7, vcc")
        for r in range(1, 16):
            k(f"v_mov_b32 v{V[0]+r}, v{V[0]}")
        for r in range(32):
            k(f"v_mov_b32 v{O[0]+r}, 0")
        for r in range(4, 8):
            k(f"v_mov_b32 v{P+r}, 0")
    def rdK(buf, off):
        return [f"ds_read_b128 v[{K16[buf]}:{K16[buf]+3}], v{KA} offset:{off}",
                f"ds_read_b64 v[{K4[buf]}:{K4[buf]+1}], v{KB} offset:{off}"]
    def rdV(buf, off):
        return ["s_mov_b64 exec, s[34:35]",
                f"ds_read_b128 v[{V[buf]}:{V[buf]+3}], v{VA} offset:{off}",
                f"ds_read_b128 v[{V[buf]+4}:{V[buf]+7}], v{VA} offset:{off+640}",
                "s_mov_b64 exec, -1"]
    def M1(x, kb): return f"v_mfma_f32_32x32x16_bf16 v[{S[x]}:{S[x]+15}], v[{K16[kb]}:{K16[kb]+3}], v[{Q16[x]}:{Q16[x]+3}], 0"
    def M2(x, kb): return f"v_mfma_f32_32x32x8bf16_1k v[{S[x]}:{S[x]+15}], v[{K4[kb]}:{K4[kb]+1}], v[{Q4[x]}:{Q4[x]+1}], v[{S[x]}:{S[x]+15}]"
    def MPV(x, vb, f): return f"v_mfma_f32_32x32x16_bf16 v[{O[x]}:{O[x]+15}], v[{V[vb]+4*f}:{V[vb]+4*f+3}], v[{P+4*f}:{P+4*f+3}], v[{O[x]}:{O[x]+15}]"
    def G(x, g, fill=()):
        s = S[x] + 4 * g
        p = P + 2 * g
        fill = list(fill)
        ex = [f"v_exp_f32 v{s+i}, v{s+i}" for i in range(4)]
        pk = [f"v_cvt_pk_bf16_f32 v{p}, v{s}, v{s+1}", f"v_cvt_pk_bf16_f32 v{p+1}, v{s+2}, v{s+3}"]
        for i in range(4):
            k(ex[i])
            if i < len(fill) and fill[i]:
                for f in (fill[i] if isinstance(fill[i], list) else [fill[i]]):
                    k(f)
        for x_ in pk: k(x_)
    def loop(tag, T, U, bar_after, hook=None):
        NIT = T // U
        assert hook is None or NIT == 1
        for r in rdK(0, 0) + rdK(1, 2560) + rdV(0, 0): k(r)
        k("s_waitcnt lgkmcnt(4)")
        k(M1(0, 0))
        k(f"s_mov_b32 s36, {NIT}")
        if isinstance(bar_after, list):
            assert all(b % U == 0 for b in bar_after)
            k(f"s_mov_b32 s38, {sum(1 << (NIT - b // U) for b in bar_after):#x}")
        k("s_nop 7")
        k("s_nop 1")
        k(M2(0, 0))
        k("s_nop 7")
        k("s_nop 3")
        k.lab(f"loop{tag}")
        if isinstance(bar_after, list):
            k("s_bitcmp1_b32 s38, s36")
            k(f"s_cbranch_scc0 {k.ref('nosync' + tag)}")
            k("s_barrier")
            k.lab("nosync" + tag)
        elif bar_after is not None:
            k(f"s_cmp_eq_u32 s36, {NIT - bar_after // U}")
            k(f"s_cbranch_scc0 {k.ref('nosync' + tag)}")
            k("s_barrier")
            k.lab("nosync" + tag)
        k("s_cmp_eq_u32 s36, 1")
        k(f"s_cselect_b32 s37, 0, {U*2560}")
        for t in range(U):
            c, n = t & 1, (t + 1) & 1
            k("s_waitcnt lgkmcnt(0)")
            if hook: hook(t)
            k(M1(1, c))
            G(0, 0)
            k(MPV(1, n, 1))
            if t == U - 1:
                k(f"v_add_u32 v{VA}, s37, v{VA}")
            rv = rdV(n, ((t + 1) % U) * 2560)
            G(0, 1, fill=[rv])
            k(M2(1, c))
            if t == U - 2:
                k(f"v_add_u32 v{KA}, s37, v{KA}")
                k(f"v_add_u32 v{KB}, s37, v{KB}")
            rk = rdK(c, ((t + 2) % U) * 2560)
            G(0, 2, fill=[rk[0], rk[1]])
            k(MPV(0, c, 0))
            G(0, 3)
            k(M1(0, n))
            G(1, 0)
            k(MPV(0, c, 1))
            G(1, 1)
            k(M2(0, n))
            G(1, 2)
            k(MPV(1, c, 0))
            G(1, 3)
        k("s_sub_u32 s36, s36, 1")
        k("s_cmp_lg_u32 s36, 0")
        k(f"s_cbranch_scc1 {k.ref('loop' + tag)}")
        k("s_nop 0")
        k(MPV(1, 1, 1))
    def finish(role):
        keep, give = role, 1 - role
        tg = "mh"[role]
        T_ = S[0]
        k.stamp(3)
        if fz: fz.mode_issue(12, 250)
        k(f"s_lshl_b32 s40, s33, 1")
        k(f"s_add_u32 s41, s40, {role}")
        k(f"s_add_u32 s40, s40, {1 - role}")
        k(f"s_mul_i32 s41, s41, {SLOT}")
        k(f"s_mul_i32 s40, s40, {SLOT}")
        k("v_lshlrev_b32 v4, 4, v0")
        k("v_and_b32 v5, 31, v0")
        k("v_lshlrev_b32 v5, 2, v5")
        k("v_add_u32 v16, s41, v4")
        k("v_add_u32 v17, s41, v5")
        k("v_add_u32 v18, s40, v4")
        k("v_add_u32 v19, s40, v5")
        for r in range(8, 12):
            k(f"v_mov_b32 v{T_+r}, 0")
        k("s_waitcnt lgkmcnt(0)")
        k("s_nop 7" if role == 0 else "s_nop 0")
        k(f"ds_write_b128 v16, v[{O[give]}:{O[give]+3}]")
        k(f"ds_write_b128 v16, v[{O[give]+4}:{O[give]+7}] offset:1024")
        k("s_mov_b64 exec, 0xffffffff")
        k(f"ds_write_b128 v16, v[{O[give]+8}:{O[give]+11}] offset:2048")
        k("s_not_b64 exec, exec")
        k(f"ds_write_b32 v17, v{O[give]+8} offset:2560")
        k("s_mov_b64 exec, -1")
        k("s_mul_i32 s42, s24, 5")
        k("v_lshrrev_b32 v21, 5, v0")
        k("v_add_u32 v21, s42, v21")
        k("v_lshrrev_b32 v20, 1, v21")
        k("v_lshlrev_b32 v20, 9, v20")
        k("v_and_b32 v21, 1, v21")
        k("v_lshl_add_u32 v20, v21, 3, v20")
        k("v_and_b32 v21, 31, v0")
        k("v_lshl_add_u32 v20, v21, 4, v20")
        k(f"s_add_u32 s51, s25, {keep}")
        k("s_mul_i32 s51, s51, 40960")
        k(f"s_add_u32 s51, s51, {WS_O}")
        k("s_waitcnt lgkmcnt(0)")
        k("s_barrier")
        k(f"ds_read_b128 v[{T_}:{T_+3}], v18")
        k(f"ds_read_b128 v[{T_+4}:{T_+7}], v18 offset:1024")
        k("s_mov_b64 exec, 0xffffffff")
        k(f"ds_read_b128 v[{T_+8}:{T_+11}], v18 offset:2048")
        k("s_not_b64 exec, exec")
        k(f"ds_read_b32 v{T_+8}, v19 offset:2560")
        k("s_mov_b64 exec, -1")
        Ox = O[keep]
        k("s_waitcnt lgkmcnt(2)")
        for r in range(8):
            k(f"v_add_f32 v{Ox+r}, v{Ox+r}, v{T_+r}")
        k("s_waitcnt lgkmcnt(0)")
        for r in range(8, 12):
            k(f"v_add_f32 v{Ox+r}, v{Ox+r}, v{T_+r}")
        k(f"v_mov_b32 v4, v{Ox+8}")
        k(f"v_mov_b32 v5, v{Ox+8}")
        k("v_mov_b32 v16, 0")
        k("s_nop 0")
        k("v_permlane32_swap_b32 v4, v5")
        for r in range(12):
            k(f"v_fma_f32 v16, v{Ox+r}, 0, v16")
        k(f"s_mov_b32 s40, {f2u(2.0**40):#x}")
        k(f"s_mov_b32 s41, {f2u(2.0**-40):#x}")
        k("v_cmp_eq_f32 vcc, 0, v16")
        k("v_cmp_lt_f32 s[42:43], s41, v5")
        k("v_cmp_gt_f32 s[44:45], s40, v5")
        k("s_nop 3")
        k("s_and_b64 vcc, vcc, s[42:43]")
        k("s_and_b64 vcc, vcc, s[44:45]")
        if force_slow:
            k("s_mov_b64 vcc, 0")
        k("s_cmp_eq_u64 vcc, -1")
        k(f"s_cbranch_scc0 {k.ref('slow' + tg)}")
        k.lab("fin" + tg)
        k("v_rcp_f32 v5, v5")
        k("s_nop 0")
        for r in range(0, 12, 2):
            k(f"v_pk_mul_f32 v[{Ox+r}:{Ox+r+1}], v[{Ox+r}:{Ox+r+1}], v[4:5] op_sel:[0,1] op_sel_hi:[1,1]")
        for j in range(6):
            k(f"v_cvt_pk_bf16_f32 v{22+j}, v{Ox+2*j}, v{Ox+2*j+1}")
        k("buffer_store_dwordx2 v[22:23], v20, s[12:15], s51 offen" + NS_)
        k("buffer_store_dwordx2 v[24:25], v20, s[12:15], s51 offen offset:512" + NS_)
        k("s_mov_b64 exec, 0xffffffff")
        k("buffer_store_dwordx2 v[26:27], v20, s[12:15], s51 offen offset:1024" + NS_)
        k("s_waitcnt vmcnt(0)")
        if fz:
            k("s_mov_b64 exec, -1")
            k.stamp(4)
            fz.attn_done(role)
        else:
            k.stamp(4); k.stamp_flush(6, kidx, 5, 26)
            k("s_endpgm")
        k.lab("slow" + tg)
        MX = 88
        x = keep
        lane_addrs()
        k(f"v_mov_b32 v{MX}, {f2u(-3.0e38):#x}")
        for r in range(16):
            k(f"v_mov_b32 v{O[x]+r}, 0")
        k("s_mov_b32 s36, 0")
        k.lab(f"sl{tg}")
        k(f"buffer_load_dwordx4 v[{K16[0]}:{K16[0]+3}], v{KA}, s[12:15], s50 offen")
        k(f"buffer_load_dwordx2 v[{K4[0]}:{K4[0]+1}], v{KB}, s[12:15], s50 offen")
        k("s_mov_b64 exec, s[34:35]")
        k(f"buffer_load_dwordx4 v[{V[0]}:{V[0]+3}], v{VA}, s[12:15], s50 offen")
        k(f"buffer_load_dwordx4 v[{V[0]+4}:{V[0]+7}], v{VA}, s[12:15], s50 offen offset:640")
        k("s_mov_b64 exec, -1")
        k("s_waitcnt vmcnt(0)")
        k(M1(x, 0))
        k("s_nop 7"); k("s_nop 1")
        k(M2(x, 0))
        k("s_nop 7"); k("s_nop 3")
        s = S[x]
        k(f"v_max3_f32 v4, v{s}, v{s+1}, v{s+2}")
        for i in range(3, 15, 2):
            k(f"v_max3_f32 v4, v4, v{s+i}, v{s+i+1}")
        k(f"v_max_f32 v4, v4, v{s+15}")
        k("v_mov_b32 v5, v4")
        k("s_nop 1")
        k("v_permlane32_swap_b32 v4, v5")
        k("s_nop 1")
        k(f"v_max3_f32 v4, v4, v5, v{MX}")
        k(f"v_sub_f32 v5, v{MX}, v4")
        k("v_exp_f32 v5, v5")
        k(f"v_mov_b32 v{MX}, v4")
        for i in range(16):
            k(f"v_sub_f32 v{s+i}, v{s+i}, v4")
        for i in range(16):
            k(f"v_exp_f32 v{s+i}, v{s+i}")
        for r in range(12):
            k(f"v_mul_f32 v{O[x]+r}, v{O[x]+r}, v5")
        for j in range(8):
            k(f"v_cvt_pk_bf16_f32 v{P+j}, v{s+2*j}, v{s+2*j+1}")
        k(f"v_add_u32 v{KA}, 2560, v{KA}")
        k(f"v_add_u32 v{KB}, 2560, v{KB}")
        k(f"v_add_u32 v{VA}, 2560, v{VA}")
        k("s_nop 4")
        k(MPV(x, 0, 0))
        k(MPV(x, 0, 1))
        k("s_nop 7"); k("s_nop 3")
        k("s_add_u32 s36, s36, 1")
        k("s_cmp_lt_u32 s36, 64")
        k(f"s_cbranch_scc1 {k.ref(f'sl{tg}')}")
        k(f"v_mov_b32 v4, v{O[x]+8}")
        k(f"v_mov_b32 v5, v{O[x]+8}")
        k("s_nop 1")
        k("v_permlane32_swap_b32 v4, v5")
        k("s_nop 1")
        k(f"s_branch {k.ref('fin' + tg)}")
    k("s_cmp_lt_u32 s26, 4")
    k(f"s_cbranch_scc1 {k.ref('compute')}")
    if stream:
        assert um == 4
        k("s_lshl_b32 s29, s33, 12")
        k("s_waitcnt lgkmcnt(0)")
        k.srd(12, 6, 0, WS_SIZE)
        k("s_add_u32 s32, s50, s29")
        def grp(G_):
            k(f"s_add_u32 m0, s29, {G_*16384}")
            k(f"s_add_u32 s31, s32, {G_*16384}")
            for i in range(4):
                k(f"buffer_load_dwordx4 v4, s[12:15], s31 offen offset:{i*1024} lds")
        if HPRI: k(f"s_setprio {HPRI}")
        if fz: fz.mode_publish(4)
        grp(0); grp(1)
        k.stamp(1)
        k("s_waitcnt vmcnt(4)")
        k("s_barrier")
        grp(2); grp(3)
        if HPRO == 1: init_regs()
        k("s_waitcnt vmcnt(8)")
        k("s_barrier")
        grp(4); grp(5)
        if HPRO == 2: init_regs()
        k("s_waitcnt vmcnt(8)")
        k("s_barrier")
        for G_ in range(6, 10): grp(G_)
        q_loads()
        if not HPRO: init_regs()
    else:
        k("s_mul_i32 s29, s33, 6144")
        k("s_mul_i32 s30, s33, 34816")
        k("s_add_u32 s30, s30, 24576")
        k("s_waitcnt lgkmcnt(0)")
        k.srd(12, 6, 0, WS_SIZE)
        k("s_mov_b32 m0, s29")
        k("s_add_u32 s31, s50, s29")
        for i in range(4):
            k(f"buffer_load_dwordx4 v4, s[12:15], s31 offen offset:{i*1024} lds")
        k("s_add_u32 m0, s29, 4096")
        k("s_add_u32 s31, s31, 4096")
        for i in range(2):
            k(f"buffer_load_dwordx4 v4, s[12:15], s31 offen offset:{i*1024} lds")
        k("s_add_u32 s32, s50, s30")
        def stB(g):
            k(f"s_add_u32 m0, s30, {g*4096}")
            k(f"s_add_u32 s31, s32, {g*4096}")
            for i in range(4 if g < 8 else 2):
                k(f"buffer_load_dwordx4 v4, s[12:15], s31 offen offset:{i*1024} lds")
        stB(0); stB(1)
        k.stamp(1)
        k("s_waitcnt vmcnt(8)")
        k("s_barrier")
        for g in range(2, 9):
            stB(g)
        q_loads()
        init_regs()
    k(f"v_add_u32 v{KA}, {TM*2560}, v{KA}")
    k(f"v_add_u32 v{KB}, {TM*2560}, v{KB}")
    k(f"v_add_u32 v{VA}, {TM*2560}, v{VA}")
    if repack and ERP == 1:
        repack_unit(k, 33, 48, 128, early=True)
        if fz: k("s_mov_b32 s64, s26")
    else:
        k("s_waitcnt vmcnt(0)")
    if HST == 2: k.stamp(0)
    if repack and RPRIO and ERP == 2: k(f"s_setprio {RPRIO}")
    if repack and RLDS:
        assert stream == 20 and 19712 + 4*8192 <= stream*2560 + 1280 and 7*SLOT <= 19712
    if repack and ERP == 2:
        def mid():
            k("s_barrier")
            k.stamp(2)
        repack_unit(k, 33, 48, 128, mid=mid, lds=(19712 if RLDS else 0))
        if fz: k("s_mov_b32 s64, s26")
    else:
        k("s_barrier")
        k.stamp(2)
    if repack and not ERP:
        if RPRIO: k(f"s_setprio {RPRIO}")
        if RLDS:
            assert stream == 20 and 19712 + 4*8192 <= stream*2560 + 1280 and 7*SLOT <= 19712
        repack_unit(k, 33, 48, 128, lds=(19712 if RLDS else 0))
        if fz: k("s_mov_b32 s64, s26")
    if pf:
        k("s_and_b32 s40, s20, 1")
        l2_prefetch(k, PF_ATT[:pf], 40, 21, 33, 42, 128, 129)
    if fz and fz.xl and "o" in PT:
        k("s_mul_i32 s40, s24, 5")
        k("s_lshr_b32 s40, s40, 1")
        k("s_lshl_b32 s40, s40, 9")
        k("s_mul_i32 s41, s25, 40960")
        k("s_add_u32 s40, s40, s41")
        k(f"s_add_u32 s40, s40, {WS_O}")
        k("v_lshlrev_b32 v90, 7, v0")
        k(f"v_add_u32 v91, {40960 - 12*128}, v90")
        k("v_cmp_gt_u32 vcc, 12, v0")
        k("s_nop 1")
        k("v_cndmask_b32 v90, v91, v90, vcc")
        k("s_mov_b64 exec, 0xffffff")
        k("buffer_load_dword v91, v90, s[12:15], s40 offen")
        k("s_mov_b64 exec, -1")
    if fz and fz.xl and "y" in PT:
        k("s_lshr_b32 s41, s25, 1")
        k("s_mul_i32 s40, s41, 81920")
        k("s_mul_i32 s42, s24, 2560")
        k("s_add_u32 s40, s40, s42")
        k(f"s_add_u32 s40, s40, {WS_X1}")
        k("v_lshlrev_b32 v92, 7, v0")
        k("s_mov_b64 exec, 0xfffff")
        k("buffer_load_dword v93, v92, s[12:15], s40 offen")
        k("s_lshr_b32 s40, s24, 1")
        k("s_lshl_b32 s40, s40, 14")
        k("s_lshl_b32 s41, s41, 9")
        k("s_add_u32 s40, s40, s41")
        k("s_and_b32 s41, s24, 1")
        k("s_lshl_b32 s41, s41, 8")
        k("s_add_u32 s40, s40, s41")
        k(f"s_add_u32 s40, s40, {WS_ST1}")
        k("s_mov_b64 exec, 3")
        k("buffer_load_dword v94, v92, s[12:15], s40 offen")
        k("s_mov_b64 exec, -1")
    if fz and fz.xl and PFA and not repack:
        att_prefetch(k, PFA, 21, 33, 128, 129)
    if (phl != 0 or (repack and RPRIO) or HPRI) and not (fz and repack and HHI): k(f"s_setprio {phl}")
    if HST: k.stamp(1)
    if fz and repack:
        def hook(t):
            if HHI and t == HHI: k(f"s_setprio {phl}")
            if t == WFT[0]:
                fz.wflag_set(33, 128, younger=((("o" in PT) + 2 * ("y" in PT)) if (WFY and fz.xl) else 0))
                if HST == 1: k.stamp(0)
            if t == WFT[1]: fz.wflag_issue(128)
        loop("h", h, uh, None, hook)
        fz.wflag_wait(128)
    else:
        loop("h", h, uh, None)
    finish(1)
    if fz is None:
        k.lab("end")
        k("s_endpgm")
    k.lab("compute")
    if pm != 0: k(f"s_setprio {pm}")
    k("s_waitcnt lgkmcnt(0)")
    k.srd(12, 6, 0, WS_SIZE)
    q_loads()
    init_regs()
    k.stamp(1)
    k("s_waitcnt vmcnt(0)")
    k("s_barrier")
    k.stamp(2)
    loop("m", TM, um, [4, 8, stream] if stream else b2)
    finish(0)
    return k
```

```python
NAME = "interleave_layers__mha_block__mixer_channel_mlp__prompt"
MB = 1 << 20

def v(i): return f"v{i}"
def vv(i, n): return f"v{i}" if n == 1 else f"v[{i}:{i+n-1}]"
def s(i): return f"s{i}"
def ss(i, n): return f"s{i}" if n == 1 else f"s[{i}:{i+n-1}]"

class Kern:
    def __init__(self, name, nwg, block, lds, vgpr=256):
        self.name = name
        self.nwg = nwg
        self.block = block
        self.lds = lds
        self.vgpr = vgpr
        self.L = []
        self.nlab = 0
        self.pfx = ""
        self.fused = False
    def __call__(self, t):
        for line in t.split("\n"):
            line = line.strip()
            if line:
                self.L.append("  " + line)
    def c(self, t):
        self.L.append("  ; " + t)
    def lab(self, l):
        self.L.append(f"{self.name}_{self.pfx}{l}:")
    def ref(self, l):
        return f"{self.name}_{self.pfx}{l}"
    def newlab(self, p="L"):
        self.nlab += 1
        return f"{p}{self.nlab}"
    def srd(self, d, ptr, off, size):
        if off:
            self(f"s_add_u32 s{d}, s{ptr}, {off:#x}")
            self(f"s_addc_u32 s{d+1}, s{ptr+1}, 0")
        else:
            self(f"s_mov_b32 s{d}, s{ptr}")
            self(f"s_mov_b32 s{d+1}, s{ptr+1}")
        self(f"s_mov_b32 s{d+2}, {size:#x}")
        self(f"s_mov_b32 s{d+3}, 0x00020000")
    def karg(self, d, off):
        self(f"s_load_dwordx2 s[{d}:{d+1}], s[0:1], {off}")
    PROF = False
    def stamp(self, i):
        if Kern.PROF:
            self(f"s_memrealtime s[{70+4*i}:{71+4*i}]")
            self(f"s_memtime s[{72+4*i}:{73+4*i}]")
    def stamp_flush(self, wsreg, kidx, n, wave_sreg):
        if not Kern.PROF: return
        if self.fused: return
        self("s_waitcnt lgkmcnt(0)")
        self.srd(96, wsreg, 64 * MB + kidx * MB, MB)
        self(f"s_lshl_b32 s68, s2, 4")
        self(f"s_add_u32 s68, s68, s{wave_sreg}")
        self(f"s_lshl_b32 s68, s68, 6")
        self("s_mov_b64 exec, 1")
        self("v_mov_b32 v60, 0")
        for i in range(n):
            self(f"v_mov_b32 v62, s{70+4*i}")
            self(f"v_mov_b32 v63, s{72+4*i}")
            self(f"buffer_store_dwordx2 v[62:63], v60, s[96:99], s68 offen offset:{8*i}")
            self("s_waitcnt vmcnt(0)")
    def stamp_save(self, p, n=5):
        if not Kern.PROF: return
        self("s_waitcnt lgkmcnt(0)")
        for i in range(n):
            r = 254 - 2*(p // 8)
            self(f"v_writelane_b32 v{r}, s{70+4*i}, {8*(p % 8)+i}")
            self(f"v_writelane_b32 v{r+1}, s{72+4*i}, {8*(p % 8)+i}")
    def stamp_flush_all(self, wsreg, kidx0, nph, wave_sreg):
        if not Kern.PROF: return
        self.srd(96, wsreg, 64 * MB + kidx0 * MB, nph * MB)
        self(f"s_lshl_b32 s68, s2, 4")
        self(f"s_add_u32 s68, s68, s{wave_sreg}")
        self(f"s_lshl_b32 s68, s68, 6")
        self("v_lshrrev_b32 v60, 3, v0")
        self("v_lshlrev_b32 v60, 20, v60")
        self("v_and_b32 v61, 7, v0")
        self("v_lshl_add_u32 v60, v61, 3, v60")
        self("v_cmp_gt_u32 vcc, 5, v61")
        self("s_and_b64 exec, exec, vcc")
        if nph > 8:
            self(f"v_add_u32 v61, {8 * MB}, v60")
            self(f"v_cmp_gt_u32 vcc, {8*(nph - 8)}, v0")
            self("s_and_saveexec_b64 s[100:101], vcc")
            self("buffer_store_dwordx2 v[252:253], v61, s[96:99], s68 offen")
            self("s_mov_b64 exec, s[100:101]")
        self(f"v_cmp_gt_u32 vcc, {8*min(nph, 8)}, v0")
        self("s_and_b64 exec, exec, vcc")
        self("buffer_store_dwordx2 v[254:255], v60, s[96:99], s68 offen")
        self("s_waitcnt vmcnt(0)")
    def text(self):
        out = []
        out.append(f".globl {self.name}")
        out.append(".p2align 8")
        out.append(f".type {self.name},@function")
        out.append(f"{self.name}:")
        out += self.L
        return "\n".join(out)
    def desc(self):
        acc = (self.vgpr + 3) // 4 * 4
        return f""".section .rodata,"a"
.p2align 6
.amdhsa_kernel {self.name}
  .amdhsa_next_free_vgpr {self.vgpr}
  .amdhsa_next_free_sgpr 102
  .amdhsa_accum_offset {acc}
  .amdhsa_group_segment_fixed_size 0
  .amdhsa_kernarg_size 88
  .amdhsa_user_sgpr_count 2
  .amdhsa_user_sgpr_kernarg_segment_ptr 1
  .amdhsa_system_sgpr_workgroup_id_x 1
.end_amdhsa_kernel"""

HEADER = """; Kernarg layout for this problem (88 bytes, ptrs only, base s[0:1]):
"""

def assemble(kerns, order=None):
    order = order or kerns
    out = [HEADER.rstrip("\n")]
    for k in order:
        out.append(f"; @launch kernel={k.name} grid=({k.nwg},1,1) block=({k.block},1,1) lds={k.lds}")
    out.append('.amdgcn_target "amdgcn-amd-amdhsa--gfx950"')
    out.append(".text")
    for k in kerns:
        out.append(k.text())
    for k in kerns:
        out.append(k.desc())
    return "\n".join(out) + "\n"
```

```python
from dsl import *
import struct
def f2u(x):
    return struct.unpack("<I", struct.pack("<f", x))[0]

KB = 1024
WS_WQ = 0
WS_W1 = 3 * MB
WS_WO = 5 * MB
WS_W2 = 6 * MB
WS_CSQ = 8 * MB
WS_CS1 = 8 * MB + 128 * KB
WS_ST0 = 8 * MB + 256 * KB
WS_ST1 = 8 * MB + 512 * KB
WS_X0 = 9 * MB
WS_X1 = 12 * MB
WS_X2 = 15 * MB
WS_O = 18 * MB
WS_Q = 21 * MB
WS_KV = 24 * MB
WS_H = 30 * MB
X_BYTES = 2048 * 640 * 2
H_BYTES = 2048 * 1536 * 2
ST_BYTES = 16 * 2048 * 8
Q_BYTES = 32 * 64 * 1280
KV_BYTES = 32 * 64 * 2560
WS_SIZE = 40 * MB
QSCALE = (20 ** -0.5) * 1.4426950408889634
KVPAD = 0
LINST = 0
QST = 0
QEXP = 0
QLATE = 3
Q0T = ""; Q0L = 0; HST = 0; HHI = 0; HPRI = 0; HPRO = 0; WFY = 0; RLDS = 0; RPRIO = 0; WFT = (2, 6)
ERP = 0
NCSP = 10

def wave_id(k, sreg, vtmp=1):
    k(f"v_lshrrev_b32 v{vtmp}, 6, v0")
    k("s_nop 0")
    k(f"v_readfirstlane_b32 s{sreg}, v{vtmp}")
    k("v_and_b32 v0, 63, v0")

def gen_prep(dbg=()):
    NWG = 220
    k = Kern("prep_kernel", NWG, 512, 4 * 8192, vgpr=64)
    k(f"s_cmp_ge_u32 s2, {NWG}")
    k(f"s_cbranch_scc1 {k.ref('end')}")
    k.karg(4, 0)
    k.karg(6, 8)
    k.karg(8, 16)
    k.karg(10, 32)
    k.karg(12, 48)
    k.karg(14, 80)
    wave_id(k, 26)
    k("s_waitcnt lgkmcnt(0)")
    k.srd(16, 14, 0, WS_SIZE)
    k("s_cmp_ge_u32 s26, 4")
    k(f"s_cbranch_scc1 {k.ref('stats')}")
    if "now" in dbg: k(f"s_branch {k.ref('end')}")
    k("s_lshl_b32 s3, s2, 2")
    k("s_add_u32 s3, s3, s26")
    def setup(lbl, lo, ncg, ptr, size, pitch, TN, K, dst, cs, csp):
        k.lab(lbl)
        k(f"s_sub_u32 s3, s3, {lo}")
        k.srd(20, ptr, 0, size)
        k(f"s_mov_b32 s27, {pitch}")
        k(f"s_mov_b32 s28, {(65536 + TN - 1)//TN}")
        k(f"s_mov_b32 s29, {TN}")
        k(f"s_mov_b32 s30, {K//8*TN*16}")
        k(f"s_mov_b32 s31, {dst}")
        k(f"s_mul_i32 s32, s3, {(65536 + ncg - 1)//ncg}")
        k("s_lshr_b32 s32, s32, 16")
        k(f"s_mul_i32 s33, s32, {ncg}")
        k("s_sub_u32 s33, s3, s33")
        k(f"s_mov_b32 s34, {cs if cs is not None else 0xffffffff:#x}")
        k(f"s_mov_b32 s35, {csp}")
        k(f"s_branch {k.ref('go')}")
    k("s_cmp_ge_u32 s3, 640"); k(f"s_cbranch_scc1 {k.ref('m_w2')}")
    k("s_cmp_ge_u32 s3, 540"); k(f"s_cbranch_scc1 {k.ref('m_wo')}")
    k("s_cmp_ge_u32 s3, 300"); k(f"s_cbranch_scc1 {k.ref('m_w1')}")
    setup("m_wq", 0, 30, 6, 640 * 3840, 3840, 128, 640, WS_WQ, WS_CSQ, 1920 * 4)
    setup("m_w1", 300, 24, 10, 640 * 3072, 3072, 96, 640, WS_W1, WS_CS1, 1536 * 4)
    setup("m_wo", 540, 10, 8, 640 * 1280, 1280, 80, 640, WS_WO, None, 0)
    setup("m_w2", 640, 10, 12, 1536 * 1280, 1280, 80, 1536, WS_W2, None, 0)
    k.lab("go")
    k("v_lshrrev_b32 v2, 3, v0")
    k("v_mul_lo_u32 v2, v2, s27")
    k("v_and_b32 v3, 7, v0")
    k("v_lshl_add_u32 v2, v3, 4, v2")
    k("s_lshl_b32 s36, s32, 6")
    k("s_mul_i32 s36, s36, s27")
    k("s_lshl_b32 s37, s33, 7")
    k("s_add_u32 s36, s36, s37")
    k("s_lshl_b32 s38, s27, 3")
    k("s_lshl_b32 s39, s26, 13")
    for j in range(8):
        k(f"s_add_u32 m0, s39, {j*1024}")
        k("s_nop 0")
        k("buffer_load_dwordx4 v2, s[20:23], s36 offen lds")
        if j < 7:
            k("s_add_u32 s36, s36, s38")
    k("s_lshl_b32 s40, s33, 6")
    k("v_add_u32 v4, s40, v0")
    k("v_mul_lo_u32 v5, v4, s28")
    k("v_lshrrev_b32 v5, 16, v5")
    k("v_mul_lo_u32 v6, v5, s29")
    k("v_sub_u32 v6, v4, v6")
    k("v_mul_lo_u32 v5, v5, s30")
    k("v_lshl_add_u32 v5, v6, 4, v5")
    k("s_lshl_b32 s41, s29, 4")
    k("s_lshl_b32 s42, s32, 3")
    k("s_mul_i32 s42, s42, s41")
    k("s_add_u32 s42, s42, s31")
    k("v_bfe_u32 v7, v0, 2, 2")
    k("v_lshlrev_b32 v7, 7, v7")
    k("v_lshrrev_b32 v8, 4, v0")
    k("v_lshl_add_u32 v7, v8, 5, v7")
    k("v_and_b32 v8, 3, v0")
    k("v_lshl_add_u32 v7, v8, 3, v7")
    k("v_add_u32 v7, s39, v7")
    k("v_mov_b32 v10, 0")
    for ku in range(8):
        k(f"s_waitcnt vmcnt({7-ku if ku == 0 else 7})") if False else None
    for ku in range(8):
        k("s_waitcnt vmcnt(7)")
        r = 16 + 4 * ku
        k(f"ds_read_b64_tr_b16 v[{r}:{r+1}], v7 offset:{ku*1024}")
        k(f"ds_read_b64_tr_b16 v[{r+2}:{r+3}], v7 offset:{ku*1024+512}")
        k("s_waitcnt lgkmcnt(0)")
        k(f"buffer_store_dwordx4 v[{r}:{r+3}], v5, s[16:19], s42 offen")
        if ku < 7:
            k("s_add_u32 s42, s42, s41")
    k("s_cmp_eq_u32 s34, 0xffffffff")
    k(f"s_cbranch_scc1 {k.ref('fin')}")
    for i in range(32):
        r = 16 + i
        k(f"v_lshlrev_b32 v8, 16, v{r}")
        k(f"v_and_b32 v9, 0xffff0000, v{r}")
        k("v_add_f32 v10, v10, v8")
        k("v_add_f32 v10, v10, v9")
    k("s_mul_i32 s43, s32, s35")
    k("s_add_u32 s43, s43, s34")
    k("v_lshlrev_b32 v4, 2, v4")
    k("buffer_store_dword v10, v4, s[16:19], s43 offen")
    k.lab("fin")
    k("s_waitcnt vmcnt(0)")
    k("s_endpgm")
    k.lab("stats")
    if "nox" in dbg: k(f"s_branch {k.ref('end')}")
    k("s_cmp_ge_u32 s2, 128")
    k(f"s_cbranch_scc1 {k.ref('end')}")
    k.srd(20, 4, 0, X_BYTES)
    k("s_sub_u32 s26, s26, 4")
    k("s_lshl_b32 s3, s2, 4")
    k("s_lshl_b32 s27, s26, 2")
    k("s_add_u32 s3, s3, s27")
    k("v_lshrrev_b32 v1, 4, v0")
    k("v_add_u32 v1, s3, v1")
    k("v_and_b32 v2, 15, v0")
    k("v_mul_u32_u24 v3, 1280, v1")
    k("v_lshl_add_u32 v3, v2, 4, v3")
    for i in range(5):
        k(f"buffer_load_dwordx4 v[{8+4*i}:{11+4*i}], v3, s[20:23], 0 offen offset:{256*i}")
    k("v_lshrrev_b32 v30, 5, v1")
    k("v_mul_u32_u24 v30, 40960, v30")
    k("v_and_b32 v31, 31, v1")
    k("v_lshl_add_u32 v30, v31, 4, v30")
    k("v_lshl_add_u32 v30, v2, 9, v30")
    k("v_mov_b32 v4, 0")
    k("v_mov_b32 v5, 0")
    for i in range(5):
        k(f"s_waitcnt vmcnt(4)")
        k(f"s_mov_b32 s28, {WS_X0 + i*8192}")
        k(f"buffer_store_dwordx4 v[{8+4*i}:{11+4*i}], v30, s[16:19], s28 offen")
        for j in range(4):
            r = 8 + 4 * i + j
            k(f"v_lshlrev_b32 v6, 16, v{r}")
            k(f"v_and_b32 v7, 0xffff0000, v{r}")
            k("v_add_f32 v4, v4, v6")
            k("v_fmac_f32 v5, v6, v6")
            k("v_add_f32 v4, v4, v7")
            k("v_fmac_f32 v5, v7, v7")
    for sh in (8, 4, 2, 1):
        k("s_nop 1")
        k(f"v_add_f32_dpp v4, v4, v4 row_ror:{sh} row_mask:0xf bank_mask:0xf")
        k(f"v_add_f32_dpp v5, v5, v5 row_ror:{sh} row_mask:0xf bank_mask:0xf")
    k("v_lshlrev_b32 v3, 3, v1")
    k("v_cmp_eq_u32 vcc, 0, v2")
    k("s_and_saveexec_b64 s[30:31], vcc")
    k(f"s_mov_b32 s28, {WS_ST0}")
    k("buffer_store_dwordx2 v[4:5], v3, s[16:19], s28 offen")
    k("s_waitcnt vmcnt(0)")
    k.lab("end")
    k("s_endpgm")
    return k

def ring_loader(k, NCH, NSLOT, dma, nD, pre_b0=None, post_b0=None, first=2, pre_issue=None, fz=None, tail=None):
    if pre_issue:
        w = pre_issue()
    else:
        for c_ in range(first):
            dma(c_)
        w = nD*(first-1)
    k(f"s_waitcnt vmcnt({w})")
    if pre_b0: pre_b0()
    k("s_barrier")
    issued = first
    if post_b0: post_b0()
    ring_tail(k, NCH, NSLOT, dma, nD, issued, fz, tail)

def ring_tail(k, NCH, NSLOT, dma, nD, issued, fz=None, tail=None):
    npf = 0
    for i in range(1, NCH):
        while issued < NCH and issued <= i - 2 + NSLOT - RINGD:
            dma(issued); issued += 1
            if issued == NCH and fz:
                npf = fz.prefetch_w()
                if fz.tail: npf += fz.tail()
            if issued == NCH and tail: npf = tail()
        k(f"s_waitcnt vmcnt({(issued - 1 - i) * nD + npf})")
        k("s_barrier")


WS_FLAG = 8 * MB + 768 * KB
NFLAGSET = 8
WSET = 12
LDS_CNT = 147456
POLL_MAX = 0x4000
QKD = 0
GSLEEP = 1
QK1D = 0
class Fuse:
    def __init__(self, name, nph, kidx0, xl=False, modeset=None, force_slow=False, sleep=1, xplain=False, attn_first=False):
        self.attn_first = attn_first
        self.k = Kern(name, 256, 512, 163840 if attn_first else LDS_CNT + 256, vgpr=256)
        self.k.fused = True
        self.nph, self.kidx0, self.p = nph, kidx0, -1
        self.xl, self.modeset, self.force_slow, self.sleep = xl, modeset, force_slow, sleep
        self.xplain = xplain and xl
    def begin(self, wait=None, sig=None, rot=0, pfw=None, glob=False):
        self.p += 1
        self.wait, self.sig, self.rot, self.pfw = wait, sig, rot, pfw
        self.glob = glob
        self.tail = None
        k = self.k
        if self.p == 0:
            k.pfx = ""
            k("s_cmp_ge_u32 s2, 256")
            k(f"s_cbranch_scc1 {k.ref('fin')}")
            k.karg(6, 80)
            wave_id(k, 64)
            if not self.attn_first:
                k(f"v_mov_b32 v1, {LDS_CNT}")
                k("v_mov_b32 v2, 0")
                k("ds_write_b32 v1, v2")
        k.pfx = f"p{self.p}_"
        k.lab("entry")
        k.stamp(0)
        k("s_mov_b32 s26, s64")
    @property
    def last(self): return self.p == self.nph - 1
    def nxt(self): return f"{self.k.name}_p{self.p+1}_entry"
    def leave(self):
        k = self.k
        k.stamp_save(self.p)
        if self.last:
            k.stamp_flush_all(6, self.kidx0, self.nph, 64)
            k("s_endpgm")
        else:
            k(f"s_branch {self.nxt()}")
    def skip_to_end(self):
        if self.last: self.k(f"s_cbranch_scc1 {self.k.name}_skip")
        else: self.k(f"s_cbranch_scc1 {self.nxt()}")
    def close(self):
        k = self.k
        k.pfx = ""
        k.lab("skip")
        k.stamp_flush_all(6, self.kidx0, self.nph, 64)
        k.lab("fin")
        k("s_endpgm")
        return k
    def mode_word(self, d):
        k = self.k
        k(f"s_and_b32 s{d}, s2, 7")
        k(f"s_lshl_b32 s{d}, s{d}, 7")
        k(f"s_add_u32 s{d}, s{d}, {WS_FLAG + self.modeset*4096}")
    def mode_token(self, d, t):
        k = self.k
        k(f"s_getreg_b32 s{t}, hwreg(HW_REG_XCC_ID, 0, 4)")
        k(f"s_mul_i32 s{d}, s{t}, s{t}")
        k(f"s_lshl_b32 s{d}, s{d}, 16")
        k(f"s_lshl_b32 s{t}, s{t}, 6")
        k(f"s_add_u32 s{d}, s{d}, s{t}")
        k(f"s_add_u32 s{d}, s{d}, 1")
    def mode_publish(self, w0=0):
        if not (self.xl and self.p == 0): return
        k = self.k
        k(f"s_cmp_lg_u32 s26, {w0}")
        k(f"s_cbranch_scc1 {k.ref('nopub')}")
        self.mode_token(65, 66)
        self.mode_word(66)
        k("s_mov_b64 exec, 1")
        k("v_mov_b32 v10, s65")
        k("buffer_atomic_add v10, off, s[12:15], s66 sc1")
        k("s_mov_b64 exec, -1")
        k.lab("nopub")
    def mode_issue(self, srd, vd):
        k = self.k
        self.mode_word(62)
        k(f"buffer_load_dword v{vd}, off, s[{srd}:{srd+3}], s62 sc1")
    def mode_resolve(self, srd, vd):
        k = self.k
        l0, l1 = k.newlab("mpoll"), k.newlab("mpolled")
        self.mode_word(62)
        k(f"s_mov_b32 s65, {POLL_MAX}")
        k.lab(l0)
        k(f"v_readfirstlane_b32 s67, v{vd}")
        k("s_and_b32 s66, s67, 63")
        k("s_cmp_eq_u32 s66, 32")
        k(f"s_cbranch_scc1 {k.ref(l1)}")
        k("s_sleep 2")
        k(f"buffer_load_dword v{vd}, off, s[{srd}:{srd+3}], s62 sc1")
        k("s_waitcnt vmcnt(0)")
        k("s_sub_u32 s65, s65, 1")
        k(f"s_cbranch_scc0 {k.ref(l0)}")
        k.lab(l1)
        self.mode_token(65, 66)
        k("s_lshl_b32 s65, s65, 5")
        k("s_cmp_lg_u32 s65, s67")
        k("s_cselect_b32 s63, 1, 0")
        if self.force_slow: k("s_mov_b32 s63, 1")
    def prefetch_w(self):
        if not self.pfw: return 0
        k = self.k
        base, nb = self.pfw
        per_w = nb // 128
        lines = (per_w + 127) // 128
        k("s_lshr_b32 s65, s2, 3")
        k("s_lshl_b32 s65, s65, 2")
        k("s_add_u32 s65, s65, s26")
        k(f"s_mul_i32 s65, s65, {per_w}")
        k(f"s_add_u32 s65, s65, {base}")
        k("v_lshlrev_b32 v12, 7, v0")
        n = 0
        done = 0
        while done < lines:
            n_ = min(64, lines - done)
            if n_ < 64: k(f"s_mov_b64 exec, {(1 << n_) - 1:#x}") if n_ <= 32 else (k(f"s_mov_b32 exec_hi, {((1 << n_) - 1) >> 32:#x}"))
            k(f"buffer_load_dword v{13+n}, v12, s[12:15], s65 offen")
            if n_ < 64: k("s_mov_b64 exec, -1")
            done += n_; n += 1
            if done < lines: k(f"s_add_u32 s65, s65, {64*128}")
        return n
    def poll(self, line, nprod):
        k = self.k
        if self.xl and self.p == 1 and not self.attn_first:
            k(f"s_mov_b32 s61, s{line}")
            self.mode_issue(12, 11)
            k("s_waitcnt vmcnt(0)")
            self.mode_resolve(12, 11)
            line = 61
        k(f"s_lshl_b32 s66, s{line}, 7")
        k(f"s_add_u32 s66, s66, {WS_FLAG + self.wait*4096}")
        k("v_lshlrev_b32 v10, 2, v0")
        k(f"s_mov_b64 exec, {(1 << nprod) - 1:#x}")
        k(f"s_mov_b32 s65, {POLL_MAX}")
        k.lab("poll")
        k("buffer_load_dword v11, v10, s[12:15], s66 offen sc1")
        k("s_waitcnt vmcnt(0)")
        k("v_cmp_ne_u32 vcc, 0, v11")
        k(f"s_cmp_eq_u32 vcc_lo, {(1 << nprod) - 1:#x}")
        k(f"s_cbranch_scc1 {k.ref('polled')}")
        k(f"s_sleep {self.sleep}")
        k("s_sub_u32 s65, s65, 1")
        k(f"s_cbranch_scc0 {k.ref('poll')}")
        k.lab("polled")
        k("s_mov_b64 exec, -1")
        if self.xl:
            k("s_cmp_eq_u32 s63, 0")
            k(f"s_cbranch_scc1 {k.ref('noacq')}")
            k("buffer_inv sc1")
            k("s_waitcnt vmcnt(0)")
            k.lab("noacq")
        k.stamp(3)
    def poll_all(self):
        k = self.k
        k("s_and_b32 s66, s2, 7")
        k("s_lshl_b32 s66, s66, 7")
        k(f"s_add_u32 s66, s66, {WS_FLAG + self.wait*4096 + 2048}")
        k("v_lshlrev_b32 v10, 2, v0")
        k("s_mov_b64 exec, 0xff")
        k(f"s_mov_b32 s65, {POLL_MAX}")
        k.lab("gpoll")
        k("buffer_load_dword v11, v10, s[12:15], s66 offen sc1")
        k("s_waitcnt vmcnt(0)")
        k("v_cmp_ne_u32 vcc, 0, v11")
        k("s_nop 1")
        k("s_cmp_eq_u32 vcc_lo, 0xff")
        k(f"s_cbranch_scc1 {k.ref('gpolled')}")
        k(f"s_sleep {GSLEEP}")
        k("s_sub_u32 s65, s65, 1")
        k(f"s_cbranch_scc0 {k.ref('gpoll')}")
        k.lab("gpolled")
        k("v_cmp_lt_u32 vcc, 1, v11")
        k("s_nop 1")
        k("s_cmp_eq_u32 vcc_lo, 0")
        k("s_mov_b64 exec, -1")
        k(f"s_cbranch_scc1 {k.ref('gnoacq')}")
        k("buffer_inv sc1")
        k("s_waitcnt vmcnt(0)")
        k.lab("gnoacq")
    def signal(self):
        k = self.k
        l = k.newlab("nosig")
        k("s_mov_b64 exec, 1")
        k(f"v_mov_b32 v1, {LDS_CNT}")
        k("v_mov_b32 v2, 1")
        k("ds_add_rtn_u32 v3, v1, v2")
        k("s_lshl_b32 s37, s24, 7")
        k("s_lshl_b32 s38, s25, 2")
        k("s_add_u32 s37, s37, s38")
        k(f"s_add_u32 s37, s37, {WS_FLAG + self.sig*4096}")
        k("s_waitcnt lgkmcnt(0)")
        k("v_readfirstlane_b32 s38, v3")
        k("s_and_b32 s38, s38, 3")
        k("s_cmp_eq_u32 s38, 3")
        k(f"s_cbranch_scc0 {k.ref(l)}")
        if self.glob:
            assert self.xl
            l2, l3 = k.newlab("fastsig"), k.newlab("arrived")
            k("s_and_b32 s39, s2, 7")
            k("s_lshl_b32 s37, s39, 7")
            k(f"s_add_u32 s37, s37, {WS_FLAG + self.sig*4096}")
            k("s_cmp_eq_u32 s63, 0")
            k(f"s_cbranch_scc1 {k.ref(l2)}")
            k("buffer_wbl2 sc1")
            k("s_waitcnt vmcnt(0)")
            k("buffer_atomic_add v2, off, s[48:51], s37 sc0 sc1")
            k(f"s_branch {k.ref(l3)}")
            k.lab(l2)
            k("buffer_atomic_add v2, off, s[48:51], s37 sc0")
            k.lab(l3)
            k("s_lshl_b32 s37, s39, 2")
            k(f"s_add_u32 s37, s37, {WS_FLAG + self.sig*4096 + 2048}")
            k("s_add_u32 s39, s63, 1")
            k("s_waitcnt vmcnt(0)")
            k("v_readfirstlane_b32 s38, v2")
            k("s_cmp_eq_u32 s38, 29")
            k(f"s_cbranch_scc0 {k.ref(l)}")
            k("s_mov_b64 exec, 0xff")
            k("v_lshlrev_b32 v1, 7, v0")
            k("v_mov_b32 v2, s39")
            k("buffer_store_dword v2, v1, s[48:51], s37 offen sc1")
        elif self.xl:
            l2 = k.newlab("fastsig")
            k("s_cmp_eq_u32 s63, 0")
            k(f"s_cbranch_scc1 {k.ref(l2)}")
            k("buffer_wbl2 sc1")
            k("s_waitcnt vmcnt(0)")
            k("buffer_store_dword v2, off, s[48:51], s37 sc1")
            k(f"s_branch {k.ref(l)}")
            k.lab(l2)
            k("buffer_store_dword v2, off, s[48:51], s37 ; nosc")
        else:
            k("buffer_store_dword v2, off, s[48:51], s37 sc1")
        k.lab(l)
        k("s_mov_b64 exec, -1")

    def attn_done(self, role):
        k = self.k
        self.mode_resolve(12, 250)
        l, l2 = k.newlab("asig"), k.newlab("afast")
        k(f"s_add_u32 s37, s25, {role}")
        k("s_lshl_b32 s37, s37, 7")
        k("s_lshl_b32 s38, s24, 2")
        k("s_add_u32 s37, s37, s38")
        k(f"s_add_u32 s37, s37, {WS_FLAG + self.sig*4096}")
        k("s_mov_b64 exec, 1")
        k("v_mov_b32 v2, 1")
        k("s_cmp_eq_u32 s63, 0")
        k(f"s_cbranch_scc1 {k.ref(l2)}")
        k("buffer_wbl2 sc1")
        k("s_waitcnt vmcnt(0)")
        k("buffer_store_dword v2, off, s[12:15], s37 sc1")
        k(f"s_branch {k.ref(l)}")
        k.lab(l2)
        k("buffer_store_dword v2, off, s[12:15], s37 ; nosc")
        k.lab(l)
        if role == 0:
            k(f"v_mov_b32 v1, {LDS_CNT}")
            k("v_mov_b32 v2, 0")
            k("ds_write_b32 v1, v2")
            k("s_waitcnt lgkmcnt(0)")
        k("s_mov_b64 exec, -1")
        k("s_setprio 0")
        self.leave()
    def wflag_set(self, lw, v, younger=0):
        k = self.k
        k(f"s_waitcnt vmcnt({younger})")
        k("s_lshl_b32 s52, s2, 2")
        k(f"s_add_u32 s52, s52, s{lw}")
        k("s_lshl_b32 s52, s52, 2")
        k(f"s_add_u32 s52, s52, {WS_FLAG + WSET*4096}")
        k("s_mov_b64 exec, 1")
        k(f"v_mov_b32 v{v}, 1")
        k(f"buffer_store_dword v{v}, off, s[12:15], s52 sc1")
        k("s_mov_b64 exec, -1")
    def wflag_issue(self, v):
        k = self.k
        k(f"v_lshlrev_b32 v{v+16}, 4, v0")
        k(f"s_mov_b32 s52, {WS_FLAG + WSET*4096}")
        for i in range(4):
            k(f"buffer_load_dwordx4 v[{v+4*i}:{v+4*i+3}], v{v+16}, s[12:15], s52 offen offset:{i*1024} sc1")
    def wflag_wait(self, v):
        k = self.k
        l0, l1 = k.newlab("wpoll"), k.newlab("wready")
        k(f"s_mov_b32 s53, {POLL_MAX}")
        k.lab(l0)
        k("s_waitcnt vmcnt(0)")
        for i in range(1, 16):
            k(f"v_and_b32 v{v}, v{v}, v{v+i}")
        k(f"v_cmp_ne_u32 vcc, 0, v{v}")
        k("s_nop 1")
        k("s_cmp_eq_u64 vcc, -1")
        k(f"s_cbranch_scc1 {k.ref(l1)}")
        k("s_sleep 4")
        self.wflag_issue(v)
        k("s_sub_u32 s53, s53, 1")
        k(f"s_cbranch_scc0 {k.ref(l0)}")
        k.lab(l1)

def fin_compute(k, fz, kidx):
    k.stamp(4)
    if fz is None:
        k.stamp_flush(6, kidx, 5, 26)
        k("s_endpgm")
    else:
        if fz.xl and fz.p == 0: fz.mode_resolve(48, 250)
        if fz.sig is not None: fz.signal()
        fz.leave()

def fin_loader(k, fz, kidx):
    k.stamp(4)
    if fz is None:
        k("s_add_u32 s26, s26, 4")
        k.stamp_flush(6, kidx, 5, 26)
        k.lab("end")
        k("s_endpgm")
    else:
        fz.leave()


PFS = 128
CW = 0
XSC = ""
PT = ""
OUTP = 0
CWN = 2
class TilePF:
    def __init__(self, k, pfd, first, NCH, va, vs, vd, srd):
        self.k, self.pfd, self.first, self.NCH, self.va, self.vs, self.vd, self.srd = k, pfd, first, NCH, va, vs, vd, srd
        self.next = first
    def one(self):
        k = self.k
        k(f"buffer_load_dword v{self.vd}, v{self.va}, s[{self.srd}:{self.srd+3}], 0 offen")
        self.next += 1
        if self.next < self.NCH:
            k(f"v_add_u32 v{self.va}, v{self.vs}, v{self.va}")
    def start(self):
        self.next = self.first
        while self.next < self.NCH and self.next <= self.pfd:
            self.one()
    def at_barrier(self):
        if self.pfd and self.next < self.NCH:
            self.one()

def gen_gemmA(name, kind, layer, kidx=0, dbg=(), first=2, pfd=0, fz=None):
    if kind == "qkv":
        NWG, NB, TB, TN = 240, 2, 2, 128
        WS_W, XSRC, ST, NPART, CSP, NCOL = WS_WQ, (WS_X0 if layer == 0 else WS_X2), WS_ST0, (1 if layer == 0 else 16), WS_CSQ, 1920
    else:
        NWG, NB, TB, TN = 256, 3, 1, 96
        WS_W, XSRC, ST, NPART, CSP, NCOL = WS_W1, WS_X1, WS_ST1, 16, WS_CS1, 1536
    WB = TN * 128
    SLOT = WB + 16384
    NSLOT = 4
    NCH = 10
    STATS = NSLOT * SLOT
    LDS = STATS + 2048
    rot = fz.rot if fz else 0
    HO = bool(fz and fz.wait is not None)
    XS = " sc1" if (HO and not fz.xplain) else ""
    if fz is None:
        k = Kern(name, NWG, 512, LDS, vgpr=256)
        k(f"s_cmp_ge_u32 s2, {NWG}")
        k(f"s_cbranch_scc1 {k.ref('end')}")
        k.stamp(0)
        k.karg(6, 80)
        if kind == "w1":
            k.karg(8, 40)
        wave_id(k, 26)
    else:
        k = fz.k
        if NWG < 256:
            k(f"s_cmp_ge_u32 s2, {NWG}")
            fz.skip_to_end()
        if kind == "w1":
            k.karg(8, 40)
    k("s_and_b32 s20, s2, 7")
    k("s_lshr_b32 s21, s2, 3")
    if fz and fz.xl:
        k("s_and_b32 s22, s21, 1")
        k("s_lshl_b32 s23, s20, 1")
        k("s_add_u32 s24, s23, s22")
        k("s_lshr_b32 s25, s21, 1")
    else:
        if kind == "qkv":
            k("s_and_b32 s22, s20, 1")
            k("s_mul_i32 s22, s22, 30")
            k("s_add_u32 s22, s22, s21")
            k("s_lshr_b32 s25, s22, 2")
            k("s_and_b32 s22, s22, 3")
        else:
            k("s_and_b32 s22, s20, 1")
            k("s_lshl_b32 s22, s22, 3")
            k("s_lshr_b32 s23, s21, 2")
            k("s_add_u32 s25, s22, s23")
            k("s_and_b32 s22, s21, 3")
        k("s_lshr_b32 s23, s20, 1")
        k("s_lshl_b32 s23, s23, 2")
        k("s_add_u32 s24, s23, s22")
    k("s_cmp_lt_u32 s26, 4")
    k(f"s_cbranch_scc1 {k.ref('compute')}")

    k("s_sub_u32 s26, s26, 4")
    k("v_lshlrev_b32 v1, 4, v0")
    nW = WB // 4096
    k(f"s_mul_i32 s40, s25, {80*TN*16}")
    k(f"s_mul_i32 s41, s26, {nW*1024}")
    k("s_add_u32 s40, s40, s41")
    k(f"s_add_u32 s40, s40, {WS_W}")
    k("s_mov_b32 s42, s41")
    k("s_lshl_b32 s43, s24, 2")
    k("s_add_u32 s43, s43, s26")
    k("s_mul_i32 s43, s43, 40960")
    k(f"s_add_u32 s43, s43, {XSRC}")
    k("s_lshl_b32 s44, s26, 12")
    k(f"s_add_u32 s44, s44, {WB}")
    k("s_waitcnt lgkmcnt(0)")
    k.srd(12, 6, 0, WS_SIZE)
    def dma(ch, parts="wx"):
        if "nodma" in dbg: return
        slot = (ch + rot) % NSLOT
        if "w" in parts:
            k(f"s_add_u32 m0, s42, {slot*SLOT}")
            k(f"s_add_u32 s45, s40, {(0 if 'fixw' in dbg else ch)*WB}")
            for i in range(nW):
                k(f"buffer_load_dwordx4 v1, s[12:15], s45 offen offset:{i*1024} lds")
        if "x" in parts:
            k(f"s_add_u32 m0, s44, {slot*SLOT}")
            k(f"s_add_u32 s45, s43, {(0 if 'fixx' in dbg else ch)*4096}")
            for i in range(4):
                k(f"buffer_load_dwordx4 v1, s[12:15], s45 offen offset:{i*1024}{XS} lds")
    nD = nW + 4
    k.stamp(1)
    early = HO
    def stats_loads():
        k("s_lshl_b32 s46, s24, 7")
        k("s_lshl_b32 s47, s26, 5")
        k("s_add_u32 s46, s46, s47")
        k("v_add_u32 v4, s46, v2")
        k("v_lshlrev_b32 v4, 3, v4")
        if NPART == 16:
            k("v_lshl_add_u32 v4, v3, 17, v4")
            for p in range(8):
                k(f"s_mov_b32 s47, {ST + p*16384}")
                k(f"buffer_load_dwordx2 v[{16+2*p}:{17+2*p}], v4, s[12:15], s47 offen{XS}")
        else:
            k(f"s_mov_b32 s47, {ST}")
            k(f"buffer_load_dwordx2 v[16:17], v4, s[12:15], s47 offen{XS}")
    def cs_loads():
        k("s_lshl_b32 s47, s26, 5")
        k("v_add_u32 v5, s47, v2")
        k(f"s_mul_i32 s47, s25, {TN}")
        k("v_add_u32 v6, s47, v5")
        k("v_lshlrev_b32 v7, 2, v6")
        k(f"v_mul_u32_u24 v8, {5*NCOL*4}, v3")
        k("v_add_u32 v7, v7, v8")
        for p in range(5):
            k(f"s_mov_b32 s47, {CSP + p*NCOL*4}")
            k(f"buffer_load_dword v{32+p}, v7, s[12:15], s47 offen")
        if kind == "w1":
            k.srd(16, 8, 0, 1536 * 2)
            k("v_lshlrev_b32 v9, 1, v6")
            k("buffer_load_ushort v38, v9, s[16:19], 0 offen")
    if early:
        for c_ in range(first):
            dma(c_, "w")
        k("v_and_b32 v2, 31, v0")
        k("v_lshrrev_b32 v3, 5, v0")
        cs_loads()
        k("s_lshr_b32 s67, s26, 1")
        k("s_lshl_b32 s46, s24, 1")
        k("s_add_u32 s67, s67, s46")
        fz.poll(67, 8)
        dma(0, "x")
        stats_loads()
        for c_ in range(1, first):
            dma(c_, "x")
        k(f"s_waitcnt vmcnt({4*(first-1)})")
    else:
        dma(0)
        k("v_and_b32 v2, 31, v0")
        k("v_lshrrev_b32 v3, 5, v0")
        stats_loads()
        cs_loads()
        for c_ in range(1, first):
            dma(c_)
        k(f"s_waitcnt vmcnt({nD*(first-1)})")
    k.stamp(2)
    k("s_barrier")
    if NPART == 16:
        for p in range(1, 8):
            k(f"v_add_f32 v16, v16, v{16+2*p}")
            k(f"v_add_f32 v17, v17, v{17+2*p}")
        k("v_mov_b32 v18, v16")
        k("v_mov_b32 v19, v17")
        k("s_nop 1")
        k("v_permlane32_swap_b32 v16, v18")
        k("v_permlane32_swap_b32 v17, v19")
        k("s_nop 1")
        k("v_add_f32 v16, v16, v18")
        k("v_add_f32 v17, v17, v19")
    k(f"v_mul_f32 v16, {f2u(1/640):#x}, v16")
    k(f"v_mul_f32 v17, {f2u(1/640):#x}, v17")
    k("v_fma_f32 v17, -v16, v16, v17")
    k("v_max_f32 v17, 0, v17")
    k(f"v_add_f32 v18, {f2u(1e-5):#x}, v17")
    k("v_rsq_f32 v18, v18")
    if kind == "w1":
        k("s_nop 0")
        k("v_mul_f32 v19, v18, v18")
        k("v_mul_f32 v19, v19, v17")
        k(f"v_add_f32 v19, {f2u(1e-5):#x}, v19")
        k("v_rsq_f32 v19, v19")
        k("s_nop 0")
        k("v_mul_f32 v18, v18, v19")
    else:
        k("s_cmp_lt_u32 s25, 5")
        k(f"s_cselect_b32 s46, {f2u(QSCALE):#x}, 1.0")
        k("v_mul_f32 v18, s46, v18")
    k("s_nop 0")
    k("v_mul_f32 v19, v18, v16")
    for p in range(1, 5):
        k(f"v_add_f32 v32, v32, v{32+p}")
    k("v_mov_b32 v33, v32")
    k("s_nop 1")
    k("v_permlane32_swap_b32 v32, v33")
    k("s_nop 1")
    k("v_add_f32 v32, v32, v33")
    k("v_cmp_eq_u32 vcc, 0, v3")
    k("s_lshl_b32 s47, s26, 7")
    k("v_lshlrev_b32 v2, 2, v2")
    k("v_add_u32 v2, s47, v2")
    k(f"v_add_u32 v2, {STATS}, v2")
    k("v_lshl_add_u32 v2, v3, 9, v2")
    k("v_cndmask_b32 v18, v19, v18, vcc")
    if kind == "w1":
        k("v_lshlrev_b32 v38, 16, v38")
        k("v_cndmask_b32 v32, v38, v32, vcc")
    k("ds_write_b32 v2, v18")
    k("ds_write_b32 v2, v32 offset:1024")
    k("s_waitcnt lgkmcnt(0)")
    issued = first
    if fz and fz.xl and "X" in PT and kind == "w1" and (layer == 0 or OUTP):
        def tail():
            k("v_lshlrev_b32 v12, 7, v0")
            k("s_mul_i32 s46, s24, 163840")
            k("s_lshl_b32 s47, s25, 2")
            k("s_add_u32 s47, s47, s26")
            k("s_mul_i32 s47, s47, 2560")
            k("s_add_u32 s46, s46, s47")
            if layer == 0:
                k(f"s_add_u32 s46, s46, {WS_X2}")
                k("s_mov_b64 exec, 0xfffff")
                k("buffer_load_dword v13, v12, s[12:15], s46 offen")
                k("s_lshl_b32 s46, s25, 14")
                k("s_lshl_b32 s47, s24, 10")
                k("s_add_u32 s46, s46, s47")
                k("s_lshl_b32 s47, s26, 8")
                k("s_add_u32 s46, s46, s47")
                k(f"s_add_u32 s46, s46, {WS_ST0}")
                k("s_mov_b64 exec, 3")
                k("buffer_load_dword v14, v12, s[12:15], s46 offen")
                k("s_mov_b64 exec, -1")
                return 2
            k.karg(56, 64)
            k("s_waitcnt lgkmcnt(0)")
            k.srd(16, 56, 0, X_BYTES)
            k("s_mov_b64 exec, 0xfffff")
            k("buffer_load_dword v13, v12, s[16:19], s46 offen")
            k("s_mov_b64 exec, -1")
            return 1
        fz.tail = tail
    free = [int(d[4:]) for d in dbg if d.startswith("free")]
    if free:
        for c_ in range(first, NCH):
            dma(c_)
            k(f"s_waitcnt vmcnt({free[0]})")
        k("s_waitcnt vmcnt(0)")
        for i in range(1, NCH): k("s_barrier")
    else:
        ring_tail(k, NCH, NSLOT, dma, nD, issued, fz)
    if kind == "qkv" and (QST & 2) and fz and not fz.last: k("s_barrier")
    fin_loader(k, fz, kidx)

    k.lab("compute")
    ACC = 64
    FA = [128, 128 + 4 * NB]
    FB = [160, 160 + 4 * TB]
    AW, AX = 1, 3
    HH, TL = 17, 16
    if kind == "qkv":
        k("s_and_b32 s27, s26, 1")
        k("s_lshr_b32 s36, s26, 1")
    else:
        k("s_mov_b32 s27, 0")
        k("s_mov_b32 s36, s26")
    k(f"v_lshrrev_b32 v{HH}, 5, v0")
    k(f"v_and_b32 v{TL}, 31, v0")
    k(f"v_mul_u32_u24 v20, {TN*16}, v{HH}")
    k(f"v_lshl_add_u32 v20, v{TL}, 4, v20")
    k(f"s_mul_i32 s37, s27, {NB*512}")
    k(f"v_add_u32 v{AW}, s37, v20")
    k(f"v_add_u32 v{AW+1}, {2*SLOT}, v{AW}")
    k(f"v_lshlrev_b32 v20, 4, v0")
    k(f"s_mul_i32 s37, s36, {TB*4096}")
    k(f"s_add_u32 s37, s37, {WB}")
    k(f"v_add_u32 v{AX}, s37, v20")
    k(f"v_add_u32 v{AX+1}, {2*SLOT}, v{AX}")

    def reads(step):
        ch, ks = divmod(step, 4)
        slot = (ch + rot) % NSLOT
        half, sl = divmod(slot, 2)
        st = step & 1
        out = []
        for nb in range(NB):
            d = FA[st] + nb * 4
            out.append(f"ds_read_b128 v[{d}:{d+3}], v{AW+half} offset:{sl*SLOT + ks*2*TN*16 + nb*512}")
        for tb in range(TB):
            d = FB[st] + tb * 4
            out.append(f"ds_read_b128 v[{d}:{d+3}], v{AX+half} offset:{sl*SLOT + ks*1024 + tb*4096}")
        return out

    def mainloop(swap, late=()):
        nx0 = PFT.next
        k.stamp(1)
        k("s_barrier")
        k.stamp(2)
        for r in reads(0):
            k(r)
        NS = NCH * 4
        for step in range(NS):
            st = step & 1
            if step == QLATE:
                for f_ in late: f_()
            bar = step % 4 == 3 and step + 1 < NS
            cw = CW and not bar
            if not cw: k("s_waitcnt lgkmcnt(0)")
            if bar:
                k("s_barrier")
            rd = reads(step + 1) if step + 1 < NS else []
            if CW:
                wr, xr = rd[:NB], rd[NB:]
                rd = []
                for j in range(max(NB, TB)):
                    rd += wr[j:j+1] + xr[j:j+1]
            mf = []
            for nb in range(NB):
                for tb in range(TB):
                    d = ACC + (nb * TB + tb) * 16
                    a = FA[st] + nb * 4
                    b = FB[st] + tb * 4
                    c = "0" if step == 0 else f"v[{d}:{d+15}]"
                    if swap:
                        mf.append(f"v_mfma_f32_32x32x16_bf16 v[{d}:{d+15}], v[{b}:{b+3}], v[{a}:{a+3}], {c}")
                    else:
                        mf.append(f"v_mfma_f32_32x32x16_bf16 v[{d}:{d+15}], v[{a}:{a+3}], v[{b}:{b+3}], {c}")
            def pos(nb, tb):
                order = []
                for j in range(max(NB, TB)):
                    if j < NB: order.append(("w", j))
                    if j < TB: order.append(("x", j))
                return max(order.index(("w", nb)), order.index(("x", tb))), len(order)
            ri = 0
            issued_now = 0
            i = 0
            lastw = None
            for nb in range(NB):
                for tb in range(TB):
                    m = mf[i]
                    if cw and step > 0:
                        p, n_ = pos(nb, tb)
                        w_ = (n_ - 1 - p) + issued_now
                        if lastw is None or p > lastw:
                            k(f"s_waitcnt lgkmcnt({w_})")
                            lastw = p
                    elif cw and step == 0 and i == 0:
                        k("s_waitcnt lgkmcnt(0)")
                    if "nomfma" not in dbg: k(m)
                    nper = 2 if not CW else CWN
                    for r in rd[ri:ri + nper]:
                        if "fakerd" in dbg: k("s_nop 0"); k("s_nop 0")
                        elif "nords" not in dbg: k(r)
                        issued_now += 1
                    ri += nper
                    if i == 2 and step % 4 == 3: PFT.at_barrier()
                    i += 1
            assert ri >= len(rd)
        k.stamp(3)
        PFT.next = nx0

    k("s_waitcnt lgkmcnt(0)")
    PFT = TilePF(k, pfd, first, NCH, 8, 9, 10, 56)
    if pfd:
        k.srd(56, 6, 0, WS_SIZE)
        PS = PFS
        sh = {128: 7, 64: 6, 32: 5}[PS]
        nw = WB // 16 // PS
        NWL = 1024 // PS
        nx = 512 // PS
        k("s_and_b32 s37, s24, 3")
        k(f"s_mul_i32 s37, s37, {WB//4}")
        k(f"s_mul_i32 s38, s26, {WB//16}")
        k("s_add_u32 s37, s37, s38")
        k(f"s_mul_i32 s38, s25, {80*TN*16}")
        k("s_add_u32 s37, s37, s38")
        k(f"s_add_u32 s37, s37, {WS_W + first*WB}")
        k("s_and_b32 s38, s20, 1")
        k(f"s_mul_i32 s38, s38, {7 if kind == 'qkv' else 8}")
        k("s_sub_u32 s38, s25, s38")
        k("s_lshr_b32 s39, s38, 1")
        k("s_lshl_b32 s40, s24, 2")
        k("s_add_u32 s39, s39, s40")
        k("s_mul_i32 s39, s39, 40960")
        k("s_and_b32 s38, s38, 1")
        k("s_lshl_b32 s38, s38, 11")
        k("s_add_u32 s39, s39, s38")
        k("s_lshl_b32 s38, s26, 9")
        k("s_add_u32 s39, s39, s38")
        k(f"s_add_u32 s39, s39, {XSRC + first*4096 - NWL*PS}")
        k(f"v_lshlrev_b32 v8, {sh}, v0")
        k("v_mov_b32 v11, s39")
        k("v_mov_b32 v12, s37")
        k(f"v_cmp_gt_u32 vcc, {NWL}, v0")
        k(f"v_mov_b32 v9, 4096")
        k(f"v_mov_b32 v13, {WB}")
        k("v_cndmask_b32 v11, v11, v12, vcc")
        k("v_cndmask_b32 v9, v9, v13, vcc")
        k("v_add_u32 v8, v11, v8")
        k(f"v_cmp_gt_u32 vcc, {NWL+nx}, v0")
        k("v_mov_b32 v12, 0x80000000")
        k("s_nop 0")
        k("v_cndmask_b32 v8, v12, v8, vcc")
        if nw < NWL:
            k(f"v_subrev_u32 v13, {nw}, v0")
            k(f"v_cmp_gt_u32 vcc, {NWL-nw}, v13")
            k("s_nop 1")
            k("v_cndmask_b32 v8, v8, v12, vcc")
        PFT.start()
    if kind == "qkv":
        k("s_cmp_ge_u32 s25, 10")
        k(f"s_cbranch_scc1 {k.ref('vpath')}")
        stg = None
        if QST & 2:
            stg = 65536 if (NCH - 1 + rot) % NSLOT < 2 else 0
        late = [] if QLATE >= 0 else None
        pre_qk(k, HH, TL, stg=stg, late=late)
        mainloop(False, late or ())
        epi_qk(k, ACC, STATS, HH, TL, stg=stg)
        fin_compute(k, fz, kidx)
        k.lab("vpath")
        late = [] if QLATE >= 0 else None
        pre_v(k, HH, TL, stg=stg, late=late)
        mainloop(True, late or ())
        epi_v(k, ACC, STATS, HH, TL, stg=stg)
        fin_compute(k, fz, kidx)
    else:
        if fz and fz.xl and "h" in PT:
            k.srd(48, 6, 0, WS_SIZE)
            k("s_lshl_b32 s39, s24, 2")
            k("s_add_u32 s39, s39, s36")
            k("s_mul_i32 s39, s39, 98304")
            k("s_mul_i32 s40, s25, 6144")
            k("s_add_u32 s39, s39, s40")
            k(f"s_add_u32 s39, s39, {WS_H}")
            k("v_lshlrev_b32 v63, 7, v0")
            k("s_mov_b32 exec_hi, 0xffff")
            k("buffer_load_dword v62, v63, s[48:51], s39 offen")
            k("s_mov_b32 exec_hi, -1")
        mainloop(False)
        epi_w1(k, ACC, STATS, HH, TL, NS_=(" ; nosc" if (fz and fz.xl and "h" not in XSC) else ""))
        fin_compute(k, fz, kidx)
    return k


def gen_qkv_raw(name, kidx=0, dbg=(), first=2, pfd=0, zflags=False):
    NWG, NB, TB, TN = 240, 2, 2, 128
    WB = 16384
    SLOT = 2 * WB
    NSLOT = 4
    NCH = 10
    STATS = NSLOT * SLOT
    LDS = STATS + 2048
    k = Kern(name, NWG, 512, LDS, vgpr=256)
    k(f"s_cmp_ge_u32 s2, {NWG}")
    k(f"s_cbranch_scc1 {k.ref('end')}")
    k.stamp(0)
    k.karg(8, 0)
    k.karg(10, 8)
    k.karg(6, 80)
    wave_id(k, 26)
    k("s_and_b32 s20, s2, 7")
    k("s_lshr_b32 s21, s2, 3")
    k("s_and_b32 s22, s20, 1")
    k("s_mul_i32 s22, s22, 30")
    k("s_add_u32 s22, s22, s21")
    k("s_lshr_b32 s25, s22, 2")
    k("s_and_b32 s22, s22, 3")
    k("s_lshr_b32 s23, s20, 1")
    k("s_lshl_b32 s23, s23, 2")
    k("s_add_u32 s24, s23, s22")
    k("s_cmp_lt_u32 s26, 4")
    k(f"s_cbranch_scc1 {k.ref('compute')}")
    k("s_sub_u32 s26, s26, 4")
    if "w" in Q0T:
        k.karg(60, 16); k.karg(62, 32); k.karg(64, 48)
    VW, VX = 4, 8
    k("v_lshrrev_b32 v1, 4, v0")
    k("v_and_b32 v2, 15, v0")
    k("v_lshlrev_b32 v3, 2, v1")
    k("v_xor_b32 v2, v2, v3")
    k("v_mul_u32_u24 v1, 3840, v1")
    k(f"v_lshl_add_u32 v{VW}, v2, 4, v1")
    for i in range(1, 4):
        k(f"v_add_u32 v{VW+i}, {4*3840-1024}, v{VW+i-1}")
    k("v_lshrrev_b32 v1, 3, v0")
    k("v_and_b32 v2, 7, v0")
    k("v_lshrrev_b32 v3, 1, v1")
    k("v_xor_b32 v2, v2, v3")
    k("v_mul_u32_u24 v1, 1280, v1")
    k(f"v_lshl_add_u32 v{VX}, v2, 4, v1")
    k("v_xor_b32 v2, 4, v2")
    k("v_lshl_add_u32 v2, v2, 4, v1")
    k(f"v_add_u32 v{VX+1}, {8*1280-1024}, v2")
    k(f"v_add_u32 v{VX+2}, {2*(8*1280-1024)}, v{VX}")
    k(f"v_add_u32 v{VX+3}, {3*(8*1280-1024)}, v2")
    k("s_lshl_b32 s40, s25, 8")
    k(f"s_mul_i32 s41, s26, {16*3840}")
    k("s_add_u32 s40, s40, s41")
    k("s_lshl_b32 s42, s26, 12")
    k("s_lshl_b32 s43, s24, 2")
    k("s_add_u32 s43, s43, s26")
    k(f"s_mul_i32 s43, s43, {32*1280}")
    k(f"s_add_u32 s44, s42, {WB}")
    k("s_waitcnt lgkmcnt(0)")
    k.srd(12, 10, 0, 640 * 3840)
    k.srd(16, 8, 0, X_BYTES)
    def dma(ch):
        slot = ch % NSLOT
        k(f"s_add_u32 m0, s42, {slot*SLOT}")
        k(f"s_add_u32 s45, s40, {ch*64*3840}")
        for i in range(4):
            k(f"buffer_load_dwordx4 v{VW+i}, s[12:15], s45 offen offset:{i*1024} lds")
        k(f"s_add_u32 m0, s44, {slot*SLOT}")
        k(f"s_add_u32 s45, s43, {ch*128}")
        for i in range(4):
            k(f"buffer_load_dwordx4 v{VX+i}, s[16:19], s45 offen offset:{i*1024} lds")
    k.stamp(1)
    def pre(): k.stamp(2)
    def q0tail():
        n = 0
        k("s_lshl_b32 s46, s2, 2")
        k("s_add_u32 s46, s46, s26")
        k("v_lshlrev_b32 v12, 7, v0")
        k.srd(48, 6, 0, WS_SIZE)
        def part(srd, base, lines, v, size=None):
            k(f"s_mul_i32 s47, s46, {lines*128}")
            if size is not None and 960*lines*128 > size: k(f"s_min_u32 s47, s47, {size - lines*128}")
            if base: k(f"s_add_u32 s47, s47, {base}")
            if lines < 64: k(f"s_mov_b64 exec, {(1 << lines) - 1:#x}")
            k(f"buffer_load_dword v{v}, v12, s[{srd}:{srd+3}], s47 offen")
            if lines < 64: k("s_mov_b64 exec, -1")
        for ch_ in Q0T:
            if ch_ == "k":
                assert KVPAD == 0
                k("s_cmp_lt_u32 s46, 320")
                k(f"s_mov_b32 s52, {WS_KV - 320*8192}")
                k(f"s_cselect_b32 s52, {WS_Q}, s52")
                k("s_lshl_b32 s47, s46, 13")
                k("s_add_u32 s47, s47, s52")
                k("buffer_load_dword v13, v12, s[48:51], s47 offen"); n += 1
            if ch_ == "w":
                for (ptr, size, lines, v) in ((60, 640*1280, 7, 14), (62, 640*3072, 16, 15), (64, 1536*1280, 16, 16)):
                    k.srd(52, ptr, 0, size)
                    part(52, 0, lines, v, size); n += 1
            if ch_ == "p":
                for (base, lines, v) in ((WS_WO, 7, 17), (WS_W1, 16, 18), (WS_W2, 16, 19), (WS_WQ, 20, 20), (WS_CSQ, 2, 21)):
                    part(48, base, lines, v); n += 1
        return n
    ring_loader(k, NCH, NSLOT, dma, 8, pre_b0=pre, first=first, tail=(q0tail if Q0T and not Q0L else None))
    if Q0T and Q0L:
        q0tail()
        k("s_waitcnt vmcnt(0)")
    if zflags:
        k(f"s_cmp_ge_u32 s2, {NFLAGSET*4}")
        k(f"s_cbranch_scc1 {k.ref('zdone')}")
        k("s_cmp_lg_u32 s26, 0")
        k(f"s_cbranch_scc1 {k.ref('zdone')}")
        k.srd(48, 6, WS_FLAG, NFLAGSET*4096)
        k("s_lshl_b32 s45, s2, 10")
        k("v_lshlrev_b32 v1, 4, v0")
        for r in range(4):
            k(f"v_mov_b32 v{12+r}, 0")
        k("buffer_store_dwordx4 v[12:15], v1, s[48:51], s45 offen")
        k("s_waitcnt vmcnt(0)")
        k.lab("zdone")
    k.stamp(4)
    k("s_add_u32 s26, s26, 4")
    k.stamp_flush(6, kidx, 5, 26)
    k.lab("end")
    k("s_endpgm")

    k.lab("compute")
    ACC = 64
    FA = [128, 128 + 4 * NB]
    FB = [160, 160 + 4 * TB]
    AW, AX = 2, 192
    HH, TL = 17, 16
    S1, S2, TMP, SEL, CS = 48, 50, 52, 60, 32
    k("s_and_b32 s27, s26, 1")
    k("s_lshr_b32 s36, s26, 1")
    k(f"v_lshrrev_b32 v{HH}, 5, v0")
    k(f"v_and_b32 v{TL}, 31, v0")
    k("v_lshrrev_b32 v20, 4, v0")
    k("v_bfe_u32 v21, v0, 2, 2")
    k("v_and_b32 v22, 3, v0")
    k("v_lshrrev_b32 v23, 1, v20")
    k("v_lshl_add_u32 v23, v23, 3, v21")
    k("v_and_b32 v18, 1, v20")
    k("v_lshlrev_b32 v18, 1, v18")
    k("v_lshrrev_b32 v19, 1, v22")
    k("v_add_u32 v18, v18, v19")
    k("s_lshl_b32 s37, s27, 3")
    k("v_add_u32 v18, s37, v18")
    k("v_lshlrev_b32 v19, 2, v21")
    k("v_xor_b32 v18, v18, v19")
    k("v_lshlrev_b32 v18, 4, v18")
    k("v_lshl_add_u32 v18, v23, 8, v18")
    k("v_and_b32 v19, 1, v22")
    k(f"v_lshl_add_u32 v{AW}, v19, 3, v18")
    k(f"v_add_u32 v{AW+1}, {2*SLOT}, v{AW}")
    k(f"v_xor_b32 v{AW+2}, 64, v{AW}")
    k(f"v_add_u32 v{AW+3}, {2*SLOT}, v{AW+2}")
    k(f"v_bfe_u32 v18, v{TL}, 1, 3")
    k(f"v_xor_b32 v18, v18, v{HH}")
    k("v_lshlrev_b32 v18, 4, v18")
    k(f"v_lshl_add_u32 v18, v{TL}, 7, v18")
    k("s_lshl_b32 s37, s36, 13")
    k("s_lshl_b32 s38, s27, 12")
    k("s_add_u32 s37, s37, s38")
    k(f"s_add_u32 s37, s37, {WB}")
    k(f"v_add_u32 v{AX}, s37, v18")
    for sl_ in range(2):
        for ks in range(4):
            d = AX + (sl_ * 4 + ks) * 2
            x = (sl_ << 12) | (ks << 5)
            if x: k(f"v_xor_b32 v{d}, {x}, v{AX}")
            k(f"v_add_u32 v{d+1}, {2*SLOT}, v{d}")
    k("v_and_b32 v18, 15, v0")
    k("v_bfe_u32 v19, v0, 4, 1")
    k("v_cmp_eq_u32 vcc, v18, v19")
    k("v_mov_b32 v19, 0x3f803f80")
    k("s_nop 0")
    k(f"v_cndmask_b32 v{SEL}, 0, v19, vcc")
    for r in range(1, 4):
        k(f"v_mov_b32 v{SEL+r}, v{SEL}")
    for r in range(4):
        k(f"v_mov_b32 v{S1+r}, 0")

    def reads(step):
        ch, ks = divmod(step, 4)
        slot = ch % NSLOT
        half, sl = divmod(slot, 2)
        st = step & 1
        out = []
        for tb in range(TB):
            d = FB[st] + tb * 4
            out.append(f"ds_read_b128 v[{d}:{d+3}], v{AX+(tb*4+ks)*2+half} offset:{sl*SLOT}")
        for nb in range(NB):
            d = FA[st] + nb * 4
            out.append(f"ds_read_b64_tr_b16 v[{d}:{d+1}], v{AW+nb*2+half} offset:{sl*SLOT + ks*4096}")
            out.append(f"ds_read_b64_tr_b16 v[{d+2}:{d+3}], v{AW+nb*2+half} offset:{sl*SLOT + ks*4096 + 1024}")
        return out

    def mainloop(swap, late=()):
        nx0 = PFT.next
        k.stamp(1)
        k("s_barrier")
        k.stamp(2)
        for r in reads(0):
            k(r)
        NS = NCH * 4
        for step in range(NS):
            st = step & 1
            if step == QLATE:
                for f_ in late: f_()
            k("s_waitcnt lgkmcnt(0)")
            if step % 4 == 3 and step + 1 < NS:
                k("s_barrier")
                PFT.at_barrier()
            rd = reads(step + 1) if step + 1 < NS else []
            mf = []
            for nb in range(NB):
                for tb in range(TB):
                    d = ACC + (nb * TB + tb) * 16
                    a = FA[st] + nb * 4
                    b = FB[st] + tb * 4
                    c = "0" if step == 0 else f"v[{d}:{d+15}]"
                    if swap:
                        mf.append(f"v_mfma_f32_32x32x16_bf16 v[{d}:{d+15}], v[{b}:{b+3}], v[{a}:{a+3}], {c}")
                    else:
                        mf.append(f"v_mfma_f32_32x32x16_bf16 v[{d}:{d+15}], v[{a}:{a+3}], v[{b}:{b+3}], {c}")
            for nb in range(NB):
                d = CS + 4 * nb
                a = FA[st] + nb * 4
                c = "0" if step == 0 else f"v[{d}:{d+3}]"
                mf.insert(2 + 3 * nb, f"v_mfma_f32_16x16x32_bf16 v[{d}:{d+3}], v[{SEL}:{SEL+3}], v[{a}:{a+3}], {c}")
            va = []
            for r in range(4):
                x = FB[st] + r
                t = TMP + 2 * (r & 1)
                va += [f"v_and_b32 v{t}, 0xffff0000, v{x}", f"v_lshlrev_b32 v{t+1}, 16, v{x}",
                       f"v_add_f32 v{S1}, v{S1}, v{t}", f"v_fmac_f32 v{S2}, v{t}, v{t}",
                       f"v_add_f32 v{S1+1}, v{S1+1}, v{t+1}", f"v_fmac_f32 v{S2+1}, v{t+1}, v{t+1}"]
            if "nostat" in dbg: va = []
            ri, vi = 0, 0
            for i, m in enumerate(mf):
                k(m)
                nrd = 1
                for r in rd[ri:ri + nrd]: k(r)
                ri += nrd
                for x in va[vi:vi + 4]: k(x)
                vi += 4
            assert ri >= len(rd) and vi >= len(va)
        k.stamp(3)
        k(f"v_add_f32 v40, v{S1}, v{S1+1}")
        k(f"v_add_f32 v41, v{S2}, v{S2+1}")
        k("v_mov_b32 v42, v40")
        k("v_mov_b32 v43, v41")
        k("s_nop 1")
        k("v_permlane32_swap_b32 v40, v42")
        k("v_permlane32_swap_b32 v41, v43")
        k("s_nop 1")
        k("v_add_f32 v40, v40, v42")
        k("v_add_f32 v41, v41, v43")
        k(f"v_mul_f32 v40, {f2u(1/640):#x}, v40")
        k(f"v_mul_f32 v41, {f2u(1/640):#x}, v41")
        k("v_fma_f32 v41, -v40, v40, v41")
        k("v_max_f32 v41, 0, v41")
        k(f"v_add_f32 v42, {f2u(1e-5):#x}, v41")
        k("v_rsq_f32 v42, v42")
        k("s_cmp_lt_u32 s25, 5")
        k(f"s_cselect_b32 s46, {f2u(QSCALE):#x}, 1.0")
        k("v_mul_f32 v42, s46, v42")
        k("v_mul_f32 v43, v42, v40")
        k(f"v_cmp_eq_u32 vcc, 0, v{HH}")
        k("s_lshl_b32 s37, s36, 8")
        k("s_lshl_b32 s38, s27, 7")
        k("s_add_u32 s37, s37, s38")
        k(f"s_add_u32 s37, s37, {STATS}")
        k(f"v_lshlrev_b32 v44, 2, v{TL}")
        k("v_add_u32 v44, s37, v44")
        k(f"v_lshl_add_u32 v44, v{HH}, 9, v44")
        k("v_cndmask_b32 v42, v43, v42, vcc")
        k("ds_write_b32 v44, v42")
        k("s_lshl_b32 s37, s27, 8")
        k(f"s_add_u32 s37, s37, {STATS+1024}")
        k("v_lshlrev_b32 v45, 2, v0")
        k("v_add_u32 v45, s37, v45")
        k("s_mov_b64 exec, 0xffff")
        for nb in range(NB):
            k(f"ds_write_b32 v45, v{CS+4*nb} offset:{nb*128}")
            k(f"ds_write_b32 v45, v{CS+4*nb+1} offset:{nb*128+64}")
        k("s_mov_b64 exec, -1")
        k("s_waitcnt lgkmcnt(0)")
        k("s_barrier")
        PFT.next = nx0

    k("s_waitcnt lgkmcnt(0)")
    PFT = TilePF(k, pfd, first, NCH, 8, 9, 10, 56)
    if pfd:
        k("s_cmp_lt_u32 s26, 2")
        k("s_cselect_b32 s56, s10, s8")
        k("s_cselect_b32 s57, s11, s9")
        k(f"s_mov_b32 s58, {X_BYTES}")
        k(f"s_cselect_b32 s58, {640*3840}, s58")
        k("s_mov_b32 s59, 0x00020000")
        k(f"s_movk_i32 s41, 128")
        k(f"s_cselect_b32 s41, {64*3840}, s41")
        k("s_cselect_b32 s42, 16, 8")
        k("s_and_b32 s37, s24, 3")
        k("s_lshl_b32 s37, s37, 4")
        k("s_lshl_b32 s38, s26, 3")
        k("s_add_u32 s37, s37, s38")
        k(f"s_add_u32 s37, s37, {first*64}")
        k("s_mul_i32 s37, s37, 3840")
        k("s_lshl_b32 s38, s25, 8")
        k("s_add_u32 s37, s37, s38")
        k("s_and_b32 s38, s20, 1")
        k("s_mul_i32 s38, s38, 7")
        k("s_sub_u32 s38, s25, s38")
        k("s_lshl_b32 s38, s38, 4")
        k("s_lshl_b32 s39, s24, 7")
        k("s_add_u32 s38, s38, s39")
        k("s_and_b32 s39, s26, 1")
        k("s_lshl_b32 s39, s39, 3")
        k("s_add_u32 s38, s38, s39")
        k("s_mul_i32 s38, s38, 1280")
        k(f"s_add_u32 s38, s38, {first*128}")
        k("s_cmp_lt_u32 s26, 2")
        k("s_cselect_b32 s37, s37, s38")
        k("v_lshrrev_b32 v11, 1, v0")
        k("v_mul_u32_u24 v11, 3840, v11")
        k("v_and_b32 v12, 1, v0")
        k("v_lshl_add_u32 v11, v12, 7, v11")
        k("v_mul_u32_u24 v12, 1280, v0")
        k("s_cselect_b64 vcc, -1, 0")
        k("v_mov_b32 v9, s41")
        k("v_cndmask_b32 v8, v12, v11, vcc")
        k("v_add_u32 v8, s37, v8")
        k("v_cmp_gt_u32 vcc, s42, v0")
        k("v_mov_b32 v12, 0x80000000")
        k("s_nop 0")
        k("v_cndmask_b32 v8, v12, v8, vcc")
        PFT.start()
    k("s_cmp_ge_u32 s25, 10")
    k(f"s_cbranch_scc1 {k.ref('vpath')}")
    stg = 65536 if QST & 1 else None
    late = [] if QLATE >= 0 else None
    pre_qk(k, HH, TL, perm=True, stg=stg, late=late)
    mainloop(False, late or ())
    epi_qk(k, ACC, STATS, HH, TL, perm=True, stg=stg)
    k.stamp(4); k.stamp_flush(6, kidx, 5, 26)
    k("s_endpgm")
    k.lab("vpath")
    late = [] if QLATE >= 0 else None
    pre_v(k, HH, TL, perm=True, stg=stg, late=late)
    mainloop(True, late or ())
    epi_v(k, ACC, STATS, HH, TL, perm=True, stg=stg)
    k.stamp(4); k.stamp_flush(6, kidx, 5, 26)
    k("s_endpgm")
    return k


STG_GA = 208
STG_T = 16384
STG_VM = [0b001 << 18 | (1 << 18) - 1, 0b011 << 18 | ((1 << 18) - 1) & ~0b001, 0b100 << 21 | ((1 << 21) - 1) & ~0b011,
          0b101 << 18 | ((1 << 18) - 1) & ~0b100, ((1 << 21) - 1) & ~0b101]
STG_PM = {19: 0x32104, 25: 0x32410}
def stage_addr(k, kind, HH, TL, img, ct="s38"):
    GA = STG_GA
    if kind == "qk":
        k(f"s_mov_b32 s44, {STG_VM[0]:#x}")
        for c in range(1, 5):
            k(f"s_cmp_eq_u32 {ct}, {c}")
            k(f"s_cselect_b32 s44, {STG_VM[c]:#x}, s44")
    for i in range(10):
        g = GA + i
        k(f"v_add_u32 v18, {64*i}, v0")
        k("v_mul_u32_u24 v19, 205, v18")
        k("v_lshrrev_b32 v19, 14, v19")
        k("v_mul_u32_u24 v23, 80, v19")
        k("v_sub_u32 v18, v18, v23")
        k(f"v_mul_u32_u24 v{g}, s40, v19")
        k(f"v_lshl_add_u32 v{g}, v18, 4, v{g}")
        if kind == "qk":
            k("v_mul_u32_u24 v19, 3, v19")
            k("v_lshrrev_b32 v18, 5, v18")
            k("v_add_u32 v19, v19, v18")
            k("v_bfe_u32 v19, s44, v19, 1")
            k("v_cmp_ne_u32 vcc, 0, v19")
        else:
            k("v_mul_u32_u24 v23, 205, v18")
            k("v_lshrrev_b32 v23, 12, v23")
            k("v_mul_u32_u24 v23, 20, v23")
            k("v_sub_u32 v18, v18, v23")
            k("v_mul_u32_u24 v19, 20, v19")
            k("v_add_u32 v19, v19, v18")
            k("v_add_u32 v19, s43, v19")
            k("v_cmp_gt_u32 vcc, 128, v19")
        k("v_mov_b32 v23, 0x80000000")
        k("s_nop 0")
        k(f"v_cndmask_b32 v{g}, v23, v{g}, vcc")
    k("s_lshl_b32 s41, s26, 14")
    k(f"s_add_u32 s41, s41, {img}")
    k(f"v_lshlrev_b32 v{GA+10}, 4, v0")
    k(f"v_add_u32 v{GA+10}, s41, v{GA+10}")

def stage_out(k, kind, bar=True):
    GA = STG_GA
    k("s_waitcnt lgkmcnt(0)")
    if bar: k("s_barrier")
    for i in range(10):
        k(f"ds_read_b128 v[{64+4*i}:{64+4*i+3}], v{GA+10} offset:{i*1024}")
    for i in range(10):
        k(f"s_waitcnt lgkmcnt({9-i})")
        k(f"buffer_store_dwordx4 v[{64+4*i}:{64+4*i+3}], v{GA+i}, s[48:51], s54 offen")
    k("s_waitcnt vmcnt(0)")

def pre_qk(k, HH, TL, perm=False, stg=None, late=None):
    k.srd(48, 6, 0, WS_SIZE)
    k("s_cmp_lt_u32 s25, 5")
    k(f"s_mov_b32 s37, {WS_KV + QKD}")
    k(f"s_cselect_b32 s37, {WS_Q + QKD}, s37")
    k("s_cselect_b32 s38, 0, 5")
    k("s_movk_i32 s39, 2560")
    k("s_cselect_b32 s39, 1280, s39")
    if KVPAD:
        k(f"s_mov_b32 s40, {163840 + KVPAD}")
        k("s_cselect_b32 s40, 81920, s40")
    else:
        k("s_lshl_b32 s40, s39, 6")
    k("s_sub_u32 s38, s25, s38")
    if stg is not None:
        k("s_lshl_b32 s41, s38, 5")
        k("s_mul_i32 s42, s41, 205")
        k("s_lshr_b32 s42, s42, 10")
        k("s_mul_i32 s54, s42, s40")
        k("s_add_u32 s54, s54, s37")
        k("s_lshl_b32 s41, s24, 2")
        k("s_add_u32 s41, s41, s26")
        k("s_mul_i32 s41, s41, s39")
        k("s_add_u32 s54, s54, s41")
        k("s_mov_b32 s55, s42")
        k("s_mov_b32 s60, s38")
        def addrs():
            stage_addr(k, "qk", HH, TL, stg, ct="s60")
            k("s_lshl_b32 s52, s36, 15")
            k(f"s_add_u32 s52, s52, {stg}")
            if perm:
                k("s_lshl_b32 s41, s27, 14")
                k("s_add_u32 s52, s52, s41")
            k("s_lshl_b32 s38, s60, 5")
            k("s_lshl_b32 s42, s27, 4")
            k("s_add_u32 s38, s38, s42")
            k(f"v_add_u32 v21, s38, v{HH}")
            k(f"v_lshlrev_b32 v22, 3, v{TL}")
            k(f"s_mov_b32 s42, {STG_PM[19]:#x}")
            k(f"s_mov_b32 s43, {STG_PM[25]:#x}")
            for nb in range(2):
                for q in range(4):
                    d = 24 + nb * 4 + q
                    k(f"v_add_u32 v23, {nb*8+2*q}, v21")
                    k("v_mul_u32_u24 v18, 205, v23")
                    k("v_lshrrev_b32 v18, 10, v18")
                    k("v_mul_u32_u24 v19, 5, v18")
                    k("v_sub_u32 v23, v23, v19")
                    k("v_cmp_eq_u32 vcc, 19, v18")
                    k("v_mov_b32 v19, 0x43210")
                    k("v_mov_b32 v20, s42")
                    k("v_cndmask_b32 v19, v19, v20, vcc")
                    k("v_cmp_eq_u32 vcc, 25, v18")
                    k("v_mov_b32 v20, s43")
                    k("v_lshlrev_b32 v23, 2, v23")
                    k("v_cndmask_b32 v19, v19, v20, vcc")
                    k("v_bfe_u32 v23, v19, v23, 4")
                    k("v_subrev_u32 v18, s55, v18")
                    k("v_mul_u32_u24 v18, 1280, v18")
                    k("v_cmp_gt_u32 vcc, 4, v23")
                    k("v_lshrrev_b32 v19, 1, v23")
                    k("v_lshl_add_u32 v18, v19, 9, v18")
                    k("v_and_b32 v19, 1, v23")
                    k("v_lshl_add_u32 v18, v19, 3, v18")
                    k("v_cndmask_b32 v19, 0, v22, vcc")
                    k("v_add_u32 v18, v18, v22")
                    k("v_add_u32 v18, v18, v19")
                    k(f"v_add_u32 v{d}, s52, v18")
        if late is None: addrs()
        else: late.append(addrs)
        return
    k("s_lshl_b32 s41, s24, 2")
    k("s_lshl_b32 s42, s36, 1")
    k("s_add_u32 s41, s41, s42")
    k("s_mul_i32 s41, s41, s39")
    k("s_add_u32 s52, s37, s41")
    k("s_add_u32 s53, s52, s39")
    if perm:
        k("s_cmp_eq_u32 s27, 1")
        k("s_cselect_b32 s37, s53, s52")
        k("s_cselect_b32 s53, s52, s53")
        k("s_mov_b32 s52, s37")
    k("s_lshl_b32 s38, s38, 5")
    k("s_lshl_b32 s42, s27, 4")
    k("s_add_u32 s38, s38, s42")
    k(f"v_add_u32 v21, s38, v{HH}")
    k(f"v_lshlrev_b32 v22, 3, v{TL}")
    for nb in range(2):
        for q in range(4):
            d = 24 + nb * 4 + q
            k(f"v_add_u32 v23, {nb*8+2*q}, v21")
            k("v_mul_u32_u24 v18, 205, v23")
            k("v_lshrrev_b32 v18, 10, v18")
            k("v_mul_u32_u24 v19, 5, v18")
            k("v_sub_u32 v23, v23, v19")
            k("v_mul_lo_u32 v18, v18, s40")
            k("v_cmp_gt_u32 vcc, 4, v23")
            k("v_lshrrev_b32 v19, 1, v23")
            k("v_lshl_add_u32 v18, v19, 9, v18")
            k("v_and_b32 v19, 1, v23")
            k("v_lshl_add_u32 v18, v19, 3, v18")
            k("v_cndmask_b32 v19, 0, v22, vcc")
            k("v_add_u32 v18, v18, v22")
            k(f"v_add_u32 v{d}, v18, v19")
    if LINST and perm:
        k("s_lshl_b32 s52, s2, 15")
        k("s_lshl_b32 s53, s26, 13")
        k("s_add_u32 s52, s52, s53")
        k(f"s_add_u32 s52, s52, {WS_Q + QKD}")
        k("s_add_u32 s53, s52, 4096")
        for i in range(8):
            k(f"v_lshlrev_b32 v{24+i}, 3, v0")
            k(f"v_add_u32 v{24+i}, {i*512}, v{24+i}")


def epi_qk(k, ACC, STATS, HH, TL, perm=False, stg=None):
    NB, TB = 2, 2
    k(f"s_mul_i32 s37, s36, 256")
    k(f"v_lshlrev_b32 v20, 2, v{TL}")
    k(f"v_add_u32 v20, s37, v20")
    k(f"v_add_u32 v20, {STATS}, v20")
    if perm:
        k("s_lshl_b32 s37, s27, 7")
        k("v_xor_b32 v20, s37, v20")
        k("v_xor_b32 v19, 128, v20")
    for tb in range(TB):
        if perm:
            k(f"ds_read_b32 v{32+2*tb}, v{20-tb}")
            k(f"ds_read_b32 v{33+2*tb}, v{20-tb} offset:512")
        else:
            k(f"ds_read_b32 v{32+2*tb}, v20 offset:{tb*128}")
            k(f"ds_read_b32 v{33+2*tb}, v20 offset:{512+tb*128}")
    k(f"v_lshlrev_b32 v21, 4, v{HH}")
    k("s_lshl_b32 s37, s27, 8")
    k("v_add_u32 v21, s37, v21")
    k(f"v_add_u32 v21, {STATS+1024}, v21")
    CS = 128
    for nb in range(NB):
        for q in range(4):
            k(f"ds_read_b128 v[{CS+(nb*4+q)*4}:{CS+(nb*4+q)*4+3}], v21 offset:{nb*128+q*32}")
    k("s_waitcnt lgkmcnt(0)")
    k("s_nop 7")
    n = 0
    for nb in range(NB):
        for q in range(4):
            cs = CS + (nb * 4 + q) * 4
            for tb in range(TB):
                a = ACC + (nb * TB + tb) * 16 + q * 4
                rs, rm = 32 + 2 * tb, 33 + 2 * tb
                t = 36 + 4 * (n % 2)
                for h in range(2):
                    k(f"v_pk_mul_f32 v[{t+2*h}:{t+2*h+1}], v[{cs+2*h}:{cs+2*h+1}], v[{rs}:{rs+1}] op_sel:[0,1] op_sel_hi:[1,1]")
                for h in range(2):
                    k(f"v_pk_fma_f32 v[{t+2*h}:{t+2*h+1}], v[{a+2*h}:{a+2*h+1}], v[{rs}:{rs+1}], v[{t+2*h}:{t+2*h+1}] op_sel_hi:[1,0,1] neg_lo:[0,0,1] neg_hi:[0,0,1]")
                o = 44 + 2 * (n % 4)
                k(f"v_cvt_pk_bf16_f32 v{o}, v{t}, v{t+1}")
                k(f"v_cvt_pk_bf16_f32 v{o+1}, v{t+2}, v{t+3}")
                if stg is not None:
                    if tb == 1: k(f"v_xor_b32 v{24+nb*4+q}, {STG_T}, v{24+nb*4+q}")
                    k(f"ds_write_b64 v{24+nb*4+q}, v[{o}:{o+1}]")
                else:
                    k(f"buffer_store_dwordx2 v[{o}:{o+1}], v{24+nb*4+q}, s[48:51], s{52+tb} offen")
                n += 1
    if stg is not None: stage_out(k, "qk")
    else: k("s_waitcnt vmcnt(0)")


def pre_v(k, HH, TL, perm=False, stg=None, late=None):
    k.srd(48, 6, 0, WS_SIZE)
    if stg is not None:
        k("s_sub_u32 s37, s25, 10")
        k("s_lshl_b32 s37, s37, 7")
        k("s_mul_i32 s55, s37, 205")
        k("s_lshr_b32 s55, s55, 12")
        k("s_mul_i32 s43, s55, 20")
        k("s_sub_u32 s43, s43, s37")
        k(f"s_mov_b32 s40, {163840 + KVPAD}")
        k("s_mul_i32 s54, s55, s40")
        k("s_lshl_b32 s41, s24, 2")
        k("s_add_u32 s41, s41, s26")
        k("s_mul_i32 s41, s41, 2560")
        k("s_add_u32 s54, s54, s41")
        k(f"s_add_u32 s54, s54, {WS_KV + QKD + 1280}")
        if late is None: stage_addr(k, "v", HH, TL, stg)
        else: late.append(lambda: stage_addr(k, "v", HH, TL, stg))
        k("s_lshl_b32 s52, s36, 15")
        k(f"s_add_u32 s52, s52, {stg}")
        if perm:
            k("s_lshl_b32 s41, s27, 14")
            k("s_add_u32 s52, s52, s41")
        k("s_lshl_b32 s38, s27, 6")
        k("s_add_u32 s37, s37, s38")
        for nb in range(2):
            k(f"v_add_u32 v20, s37, v{TL}")
            if nb: k("v_add_u32 v20, 32, v20")
            k("v_mul_u32_u24 v21, 205, v20")
            k("v_lshrrev_b32 v21, 12, v21")
            k("v_mul_u32_u24 v22, 20, v21")
            k("v_sub_u32 v22, v20, v22")
            k("v_subrev_u32 v21, s55, v21")
            k("v_mul_u32_u24 v21, 1280, v21")
            k("v_lshl_add_u32 v21, v22, 4, v21")
            k(f"v_mul_u32_u24 v22, 320, v{HH}")
            k("v_add_u32 v21, v21, v22")
            k(f"v_add_u32 v{24+nb}, s52, v21")
        return
    k("s_sub_u32 s37, s25, 10")
    k("s_lshl_b32 s37, s37, 7")
    k("s_lshl_b32 s38, s27, 6")
    k("s_add_u32 s37, s37, s38")
    for nb in range(2):
        k(f"v_add_u32 v20, s37, v{TL}")
        if nb: k("v_add_u32 v20, 32, v20")
        k("v_mul_u32_u24 v21, 205, v20")
        k("v_lshrrev_b32 v21, 12, v21")
        k("v_mul_u32_u24 v22, 20, v21")
        k("v_sub_u32 v22, v20, v22")
        k(f"s_mov_b32 s38, {163840 + KVPAD}")
        k("v_mul_lo_u32 v21, v21, s38")
        k("v_lshl_add_u32 v21, v22, 4, v21")
        k(f"v_mul_u32_u24 v22, 320, v{HH}")
        k(f"v_add_u32 v{24+nb}, v21, v22")
    k("s_lshl_b32 s41, s24, 2")
    k("s_lshl_b32 s42, s36, 1")
    k("s_add_u32 s41, s41, s42")
    k("s_mul_i32 s41, s41, 2560")
    k(f"s_add_u32 s52, s41, {WS_KV + QKD + 1280}")
    if perm:
        k("s_add_u32 s53, s52, 2560")
        k("s_cmp_eq_u32 s27, 1")
        k("s_cselect_b32 s37, s53, s52")
        k("s_cselect_b32 s53, s52, s53")
        k("s_mov_b32 s52, s37")
    if LINST and perm:
        k("s_lshl_b32 s52, s2, 15")
        k("s_lshl_b32 s53, s26, 13")
        k("s_add_u32 s52, s52, s53")
        k(f"s_add_u32 s52, s52, {WS_Q + QKD}")
        k("s_add_u32 s53, s52, 4096")
        for i in range(2):
            k(f"v_lshlrev_b32 v{24+i}, 4, v0")
            k(f"v_add_u32 v{24+i}, {i*2048}, v{24+i}")


def epi_v(k, ACC, STATS, HH, TL, perm=False, stg=None):
    NB, TB = 2, 2
    k("s_lshl_b32 s37, s36, 8")
    k(f"v_lshlrev_b32 v20, 4, v{HH}")
    k("v_add_u32 v20, s37, v20")
    k(f"v_add_u32 v20, {STATS}, v20")
    RS, RM = 128, 160
    if perm:
        k("s_lshl_b32 s37, s27, 7")
        k("v_xor_b32 v20, s37, v20")
        k("v_xor_b32 v19, 128, v20")
    def sa(tb, off): return f"v{20-tb} offset:{off}" if perm else f"v20 offset:{off+tb*128}"
    for tb in range(TB):
        for q in range(4):
            k(f"ds_read_b128 v[{RS+(tb*4+q)*4}:{RS+(tb*4+q)*4+3}], {sa(tb, q*32)}")
    k(f"v_lshlrev_b32 v21, 2, v{TL}")
    k("s_lshl_b32 s37, s27, 8")
    k("v_add_u32 v21, s37, v21")
    k(f"v_add_u32 v21, {STATS+1024}, v21")
    k("s_waitcnt lgkmcnt(4)")
    for tb in range(TB):
        for q in range(4):
            k(f"ds_read_b128 v[{RM+(tb*4+q)*4}:{RM+(tb*4+q)*4+3}], {sa(tb, 512+q*32)}")
    k("ds_read_b32 v32, v21")
    k("ds_read_b32 v34, v21 offset:128")
    k("s_waitcnt lgkmcnt(0)")
    k("s_nop 7")
    n = 0
    for nb in range(NB):
        cs = 32 + 2 * nb
        for tb in range(TB):
            for qp in range(2):
                o = 44 + 4 * (n % 2)
                for qq in range(2):
                    q = qp * 2 + qq
                    a = ACC + (nb * TB + tb) * 16 + q * 4
                    t = 36 + 4 * qq
                    rs, rm = RS + (tb * 4 + q) * 4, RM + (tb * 4 + q) * 4
                    for h in range(2):
                        k(f"v_pk_mul_f32 v[{t+2*h}:{t+2*h+1}], v[{rm+2*h}:{rm+2*h+1}], v[{cs}:{cs+1}] op_sel_hi:[1,0]")
                    for h in range(2):
                        k(f"v_pk_fma_f32 v[{t+2*h}:{t+2*h+1}], v[{a+2*h}:{a+2*h+1}], v[{rs+2*h}:{rs+2*h+1}], v[{t+2*h}:{t+2*h+1}] neg_lo:[0,0,1] neg_hi:[0,0,1]")
                    k(f"v_cvt_pk_bf16_f32 v{o+2*qq}, v{t}, v{t+1}")
                    k(f"v_cvt_pk_bf16_f32 v{o+2*qq+1}, v{t+2}, v{t+3}")
                k("s_nop 1")
                k(f"v_permlane32_swap_b32 v{o}, v{o+2}")
                k(f"v_permlane32_swap_b32 v{o+1}, v{o+3}")
                k("s_nop 1")
                if stg is not None:
                    if qp == 0 and (tb == 1 or False): k(f"v_xor_b32 v{24+nb}, {STG_T}, v{24+nb}")
                    k(f"ds_write_b128 v{24+nb}, v[{o}:{o+3}] offset:{qp*640}")
                elif perm:
                    k(f"buffer_store_dwordx4 v[{o}:{o+3}], v{24+nb}, s[48:51], s{52+tb} offen offset:{qp*(1024 if LINST else 640)}")
                else:
                    k(f"buffer_store_dwordx4 v[{o}:{o+3}], v{24+nb}, s[48:51], s52 offen offset:{tb*2560+qp*640}")
                n += 1
    if stg is not None: stage_out(k, "v")
    else: k("s_waitcnt vmcnt(0)")


GK1 = -2.0 * 0.7978845608028654 * 1.4426950408889634
GK2 = GK1 * 0.044715

def epi_w1(k, ACC, STATS, HH, TL, NS_=""):
    NB = 3
    k.srd(48, 6, 0, WS_SIZE)
    k("s_lshl_b32 s37, s36, 7")
    k(f"v_lshlrev_b32 v20, 2, v{TL}")
    k("v_add_u32 v20, s37, v20")
    k(f"v_add_u32 v20, {STATS}, v20")
    k("ds_read_b32 v32, v20")
    k("ds_read_b32 v33, v20 offset:512")
    k(f"v_lshlrev_b32 v21, 4, v{HH}")
    k(f"v_add_u32 v21, {STATS+1024}, v21")
    CS, BI = 128, 176
    for nb in range(NB):
        for q in range(4):
            k(f"ds_read_b128 v[{CS+(nb*4+q)*4}:{CS+(nb*4+q)*4+3}], v21 offset:{nb*128+q*32}")
    k("s_waitcnt lgkmcnt(6)")
    for nb in range(NB):
        for q in range(4):
            k(f"ds_read_b128 v[{BI+(nb*4+q)*4}:{BI+(nb*4+q)*4+3}], v21 offset:{512+nb*128+q*32}")
    k("s_lshl_b32 s39, s24, 2")
    k("s_add_u32 s39, s39, s36")
    k("s_mul_i32 s39, s39, 98304")
    k("s_mul_i32 s40, s25, 6144")
    k("s_add_u32 s39, s39, s40")
    k(f"s_add_u32 s52, s39, {WS_H}")
    k("s_add_u32 s53, s52, 2048")
    k("s_add_u32 s54, s52, 4096")
    k("v_lshlrev_b32 v22, 4, v0")
    k(f"v_mov_b32 v34, {f2u(GK1):#x}")
    k(f"v_mov_b32 v35, {f2u(GK2):#x}")
    k("s_waitcnt lgkmcnt(0)")
    k("s_nop 7")
    n = 0
    for nb in range(NB):
        for qp in range(2):
            o = 56 + 4 * (n % 2)
            for qq in range(2):
                q = qp * 2 + qq
                a = ACC + nb * 16 + q * 4
                cs = CS + (nb * 4 + q) * 4
                b = BI + (nb * 4 + q) * 4
                u, t = 36, 40
                for h in range(2):
                    k(f"v_pk_fma_f32 v[{u+2*h}:{u+2*h+1}], v[{cs+2*h}:{cs+2*h+1}], v[32:33], v[{b+2*h}:{b+2*h+1}] op_sel:[0,1,0] op_sel_hi:[1,1,1] neg_lo:[1,0,0] neg_hi:[1,0,0]")
                for h in range(2):
                    k(f"v_pk_fma_f32 v[{u+2*h}:{u+2*h+1}], v[{a+2*h}:{a+2*h+1}], v[32:33], v[{u+2*h}:{u+2*h+1}] op_sel_hi:[1,0,1]")
                for h in range(2):
                    k(f"v_pk_mul_f32 v[{t+2*h}:{t+2*h+1}], v[{u+2*h}:{u+2*h+1}], v[{u+2*h}:{u+2*h+1}]")
                for h in range(2):
                    k(f"v_pk_fma_f32 v[{t+2*h}:{t+2*h+1}], v[{t+2*h}:{t+2*h+1}], v[34:35], v[34:35] op_sel:[0,1,0] op_sel_hi:[1,1,0]")
                for h in range(2):
                    k(f"v_pk_mul_f32 v[{t+2*h}:{t+2*h+1}], v[{t+2*h}:{t+2*h+1}], v[{u+2*h}:{u+2*h+1}]")
                for i in range(4):
                    k(f"v_exp_f32 v{t+i}, v{t+i}")
                k("s_nop 0")
                for h in range(2):
                    k(f"v_pk_add_f32 v[{t+2*h}:{t+2*h+1}], v[{t+2*h}:{t+2*h+1}], 1.0 op_sel_hi:[1,0]")
                for i in range(4):
                    k(f"v_rcp_f32 v{t+i}, v{t+i}")
                k("s_nop 0")
                for h in range(2):
                    k(f"v_pk_mul_f32 v[{u+2*h}:{u+2*h+1}], v[{u+2*h}:{u+2*h+1}], v[{t+2*h}:{t+2*h+1}]")
                k(f"v_cvt_pk_bf16_f32 v{o+2*qq}, v{u}, v{u+1}")
                k(f"v_cvt_pk_bf16_f32 v{o+2*qq+1}, v{u+2}, v{u+3}")
            k("s_nop 1")
            k(f"v_permlane32_swap_b32 v{o}, v{o+2}")
            k(f"v_permlane32_swap_b32 v{o+1}, v{o+3}")
            k("s_nop 1")
            k(f"buffer_store_dwordx4 v[{o}:{o+3}], v22, s[48:51], s{52+nb} offen offset:{qp*1024}{NS_}")
            n += 1
    k("s_waitcnt vmcnt(0)")


def gen_gemmB(name, kind, layer, kidx=0, dbg=(), first=2, rawres=False, pfd=0, fz=None):
    NWG = 256
    if kind == "wo":
        K, WS_W, XSRC = 640, WS_WO, WS_O
        RES = WS_X0 if layer == 0 else WS_X2
        DST, ST = WS_X1, WS_ST1
    else:
        K, WS_W, XSRC = 1536, WS_W2, WS_H
        RES = WS_X1
        DST, ST = (WS_X2, WS_ST0) if layer == 0 else (None, None)
    NCH = K // 128
    XBLK = K * 64
    WB = 20480
    SLOT = WB + 16384
    NSLOT = 4
    LDS = NSLOT * SLOT
    rot = fz.rot if fz else 0
    HO = bool(fz and fz.wait is not None)
    XS = " sc1" if (HO and not fz.xplain) else ""
    NS_ = " ; nosc" if (fz and fz.xl and "x" not in XSC) else ""
    RSC = " sc1" if (fz and kind == "w2" and not fz.xplain) else ""
    if fz is None:
        k = Kern(name, NWG, 512, LDS, vgpr=128)
        k(f"s_cmp_ge_u32 s2, {NWG}")
        k(f"s_cbranch_scc1 {k.ref('end')}")
        k.stamp(0)
        k.karg(6, 80)
    else:
        k = fz.k
    if kind == "w2":
        k.karg(8, 56)
        if DST is None:
            k.karg(10, 64)
    if rawres:
        assert kind == "wo"
        k.karg(8, 0)
    if fz is None: wave_id(k, 26)
    k("s_and_b32 s20, s2, 7")
    k("s_lshr_b32 s21, s2, 3")
    if fz and fz.xl:
        k("s_and_b32 s22, s21, 3")
        k("s_lshl_b32 s23, s20, 2")
        k("s_add_u32 s24, s23, s22")
        k("s_lshr_b32 s25, s21, 2")
    else:
        k("s_lshr_b32 s22, s20, 1")
        k("s_lshl_b32 s22, s22, 3")
        k("s_and_b32 s23, s21, 7")
        k("s_add_u32 s24, s22, s23")
        k("s_and_b32 s22, s20, 1")
        k("s_lshl_b32 s22, s22, 2")
        k("s_lshr_b32 s23, s21, 3")
        k("s_add_u32 s25, s22, s23")
    k("s_cmp_lt_u32 s26, 4")
    k(f"s_cbranch_scc1 {k.ref('compute')}")
    k("s_sub_u32 s26, s26, 4")
    k("v_lshlrev_b32 v1, 4, v0")
    k(f"s_mul_i32 s40, s25, {K//8*1280}")
    k("s_mul_i32 s41, s26, 5120")
    k("s_add_u32 s40, s40, s41")
    k(f"s_add_u32 s40, s40, {WS_W}")
    k("s_mov_b32 s42, s41")
    k("s_lshl_b32 s43, s24, 1")
    k("s_lshr_b32 s47, s26, 1")
    k("s_add_u32 s43, s43, s47")
    k(f"s_mul_i32 s43, s43, {XBLK}")
    k("s_and_b32 s47, s26, 1")
    k("s_lshl_b32 s47, s47, 12")
    k("s_add_u32 s43, s43, s47")
    k(f"s_add_u32 s43, s43, {XSRC}")
    k("s_lshl_b32 s44, s26, 12")
    k(f"s_add_u32 s44, s44, {WB}")
    k("s_waitcnt lgkmcnt(0)")
    k.srd(12, 6, 0, WS_SIZE)
    def dma(ch, parts="xw"):
        slot = (ch + rot) % NSLOT
        if "x" in parts:
            k(f"s_add_u32 m0, s44, {slot*SLOT}")
            k(f"s_add_u32 s45, s43, {(0 if 'fixx' in dbg else ch)*8192}")
            for i in range(4):
                k(f"buffer_load_dwordx4 v1, s[12:15], s45 offen offset:{i*1024}{XS} lds")
        if "w" in parts:
            k(f"s_add_u32 m0, s42, {slot*SLOT}")
            k(f"s_add_u32 s45, s40, {(0 if 'fixw' in dbg else ch)*WB}")
            for i in range(4):
                k(f"buffer_load_dwordx4 v1, s[12:15], s45 offen offset:{i*1024} lds")
            k(f"s_add_u32 m0, s42, {slot*SLOT+4096}")
            k(f"s_add_u32 s45, s40, {(0 if 'fixw' in dbg else ch)*WB+4096}")
            k(f"buffer_load_dwordx4 v1, s[12:15], s45 offen lds")
    k.stamp(1)
    def pre(): k.stamp(2)
    def pre_issue():
        for c_ in range(first):
            dma(c_, "w")
        if kind == "wo":
            k("s_lshl_b32 s67, s24, 1")
            k("s_lshr_b32 s47, s26, 1")
            k("s_add_u32 s67, s67, s47")
            fz.poll(67, 32)
        else:
            k("s_lshr_b32 s67, s24, 1")
            fz.poll(67, 16)
        for c_ in range(first):
            dma(c_, "x")
        return 4 * (first - 1)
    if fz: fz.mode_publish()
    if fz and fz.xl and "H" in PT and kind == "wo":
        def tail():
            k("v_lshlrev_b32 v12, 7, v0")
            k("s_mul_i32 s46, s24, 196608")
            k("s_lshl_b32 s47, s25, 2")
            k("s_add_u32 s47, s47, s26")
            k("s_mul_i32 s47, s47, 6144")
            k("s_add_u32 s46, s46, s47")
            k(f"s_add_u32 s46, s46, {WS_H}")
            k("s_mov_b32 exec_hi, 0xffff")
            k("buffer_load_dword v13, v12, s[12:15], s46 offen")
            k("s_mov_b32 exec_hi, -1")
            return 1
        fz.tail = tail
    ring_loader(k, NCH, NSLOT, dma, 9, pre_b0=pre, first=first, pre_issue=(pre_issue if HO else None), fz=fz)
    fin_loader(k, fz, kidx)

    k.lab("compute")
    ACC, FA0, FB0, RS, BI = 32, 64, 88, 104, 116
    AW, AX = 1, 3
    k("s_and_b32 s27, s26, 1")
    k("s_lshr_b32 s36, s26, 1")
    k("v_lshrrev_b32 v17, 4, v0")
    k("v_and_b32 v16, 15, v0")
    k("v_mul_u32_u24 v20, 1280, v17")
    k("v_lshl_add_u32 v20, v16, 4, v20")
    k("s_mul_i32 s37, s27, 768")
    k(f"v_add_u32 v{AW}, s37, v20")
    k(f"v_add_u32 v{AW+1}, {2*SLOT}, v{AW}")
    k("v_lshlrev_b32 v20, 9, v17")
    k("v_lshl_add_u32 v20, v16, 4, v20")
    k("s_lshl_b32 s37, s36, 13")
    k(f"s_add_u32 s37, s37, {WB}")
    k(f"v_add_u32 v{AX}, s37, v20")
    k(f"v_add_u32 v{AX+1}, {2*SLOT}, v{AX}")
    k("v_lshrrev_b32 v20, 1, v17")
    k("v_lshlrev_b32 v20, 9, v20")
    k("v_lshl_add_u32 v20, v16, 4, v20")
    k("v_and_b32 v21, 1, v17")
    k("v_lshl_add_u32 v20, v21, 3, v20")
    k("s_lshl_b32 s38, s24, 1")
    k("s_add_u32 s38, s38, s36")
    k("s_mul_i32 s39, s38, 40960")
    k("s_mul_i32 s40, s25, 5120")
    k("s_add_u32 s39, s39, s40")
    k("s_mul_i32 s40, s27, 3072")
    k("s_add_u32 s39, s39, s40")
    if rawres:
        k("v_mul_u32_u24 v20, 1280, v16")
        k("v_lshl_add_u32 v20, v17, 3, v20")
        k(f"v_add_u32 v21, {16*1280}, v20")
        k(f"s_mul_i32 s52, s38, {32*1280}")
        k("s_mul_i32 s40, s25, 160")
        k("s_add_u32 s52, s52, s40")
        k("s_mul_i32 s40, s27, 96")
        k("s_add_u32 s52, s52, s40")
    else:
        k(f"s_add_u32 s52, s39, {RES}")
    k("s_waitcnt lgkmcnt(0)")
    k.srd(48, 6, 0, WS_SIZE)
    if rawres:
        k.srd(56, 8, 0, X_BYTES)
    PFT = TilePF(k, pfd, first, NCH, 5, 6, 7, 48)
    if pfd:
        k("s_and_b32 s41, s25, 3")
        k("s_lshr_b32 s42, s41, 1")
        k("s_lshl_b32 s43, s24, 1")
        k("s_add_u32 s42, s42, s43")
        k(f"s_mul_i32 s42, s42, {XBLK}")
        k("s_and_b32 s41, s41, 1")
        k("s_lshl_b32 s41, s41, 12")
        k("s_add_u32 s42, s42, s41")
        k("s_lshl_b32 s41, s26, 10")
        k("s_add_u32 s42, s42, s41")
        k(f"s_add_u32 s42, s42, {XSRC + first*8192}")
        k("s_and_b32 s41, s24, 7")
        k("s_mul_i32 s41, s41, 2560")
        k("s_mul_i32 s43, s26, 640")
        k("s_add_u32 s41, s41, s43")
        k(f"s_mul_i32 s43, s25, {K//8*1280}")
        k("s_add_u32 s41, s41, s43")
        k(f"s_add_u32 s41, s41, {WS_W + first*WB - 8*128}")
        k("v_lshlrev_b32 v5, 7, v0")
        k("v_mov_b32 v8, s41")
        k("v_mov_b32 v9, s42")
        k("v_cmp_gt_u32 vcc, 8, v0")
        k(f"v_mov_b32 v6, {WB}")
        k("v_mov_b32 v10, 8192")
        k("v_cndmask_b32 v8, v8, v9, vcc")
        k("v_cndmask_b32 v6, v6, v10, vcc")
        k("v_add_u32 v5, v8, v5")
        k("v_cmp_gt_u32 vcc, 13, v0")
        k("v_mov_b32 v9, 0x80000000")
        k("s_nop 0")
        k("v_cndmask_b32 v5, v9, v5, vcc")
        PFT.start()

    def path(NB):
        nx0 = PFT.next
        for nb in range(NB):
            for tb in range(2):
                d = RS + (nb * 2 + tb) * 2
                if rawres:
                    k(f"buffer_load_dwordx2 v[{d}:{d+1}], v{20+tb}, s[56:59], s52 offen offset:{nb*32}")
                else:
                    k(f"buffer_load_dwordx2 v[{d}:{d+1}], v20, s[48:51], s52 offen offset:{nb*1024+tb*256}{RSC}")
        if kind == "w2":
            k.srd(56, 8, 0, 1280)
            k("s_mul_i32 s40, s25, 160")
            k("s_mul_i32 s41, s27, 96")
            k("s_add_u32 s40, s40, s41")
            k("v_lshlrev_b32 v21, 3, v17")
            for nb in range(NB):
                k(f"buffer_load_dwordx2 v[{BI+2*nb}:{BI+2*nb+1}], v21, s[56:59], s40 offen offset:{nb*32}")
        if fz and fz.xl and "x" in PT and DST is not None:
            k("v_lshlrev_b32 v127, 7, v0")
            k(f"s_add_u32 s40, s39, {DST}")
            k(f"s_mov_b64 exec, {(1 << (8*NB)) - 1:#x}")
            k("buffer_load_dword v126, v127, s[48:51], s40 offen")
            k("s_lshl_b32 s40, s25, 1")
            k("s_add_u32 s40, s40, s27")
            k("s_lshl_b32 s40, s40, 14")
            k("s_lshl_b32 s41, s38, 8")
            k("s_add_u32 s40, s40, s41")
            k(f"s_add_u32 s40, s40, {ST}")
            k("s_mov_b64 exec, 3")
            k("buffer_load_dword v125, v127, s[48:51], s40 offen")
            k("s_mov_b64 exec, -1")
        if fz and fz.xl and "G" in PT and kind == "wo":
            k("v_lshlrev_b32 v127, 7, v0")
            k("s_mul_i32 s40, s24, 196608")
            k("s_lshl_b32 s41, s25, 2")
            k("s_add_u32 s41, s41, s26")
            k("s_mul_i32 s41, s41, 6144")
            k("s_add_u32 s40, s40, s41")
            k(f"s_add_u32 s40, s40, {WS_H}")
            k("s_mov_b32 exec_hi, 0xffff")
            k("buffer_load_dword v124, v127, s[48:51], s40 offen")
            k("s_mov_b32 exec_hi, -1")
        if fz and "u" in PT and DST is None:
            k.srd(60, 10, 0, X_BYTES)
            k("v_and_b32 v127, 31, v0")
            k("v_mul_u32_u24 v127, 1280, v127")
            k("v_lshrrev_b32 v126, 5, v0")
            k(f"v_mul_u32_u24 v126, {NB*32 - 4}, v126")
            k("v_add_u32 v127, v127, v126")
            k("s_mul_i32 s40, s38, 40960")
            k("s_mul_i32 s41, s25, 160")
            k("s_add_u32 s40, s40, s41")
            k("s_mul_i32 s41, s27, 96")
            k("s_add_u32 s40, s40, s41")
            k("buffer_load_dword v126, v127, s[60:63], s40 offen")
        def reads(step):
            ch, ks = divmod(step, 4)
            slot = (ch + rot) % NSLOT
            half, sl = divmod(slot, 2)
            st = step & 1
            out = []
            for tb in range(2):
                d = FB0 + st * 8 + tb * 4
                out.append(f"ds_read_b128 v[{d}:{d+3}], v{AX+half} offset:{sl*SLOT + ks*2048 + tb*256}")
            for nb in range(NB):
                d = FA0 + st * 12 + nb * 4
                out.append(f"ds_read_b128 v[{d}:{d+3}], v{AW+half} offset:{sl*SLOT + ks*5120 + nb*256}")
            return out
        k.stamp(1)
        k("s_barrier")
        k.stamp(2)
        for r in reads(0):
            k(r)
        NS = NCH * 4
        for step in range(NS):
            st = step & 1
            k("s_waitcnt lgkmcnt(0)")
            if step % 4 == 3 and step + 1 < NS:
                k("s_barrier")
                PFT.at_barrier()
            rd = reads(step + 1) if step + 1 < NS else []
            mf = []
            for nb in range(NB):
                for tb in range(2):
                    d = ACC + (nb * 2 + tb) * 4
                    a = FA0 + st * 12 + nb * 4
                    b = FB0 + st * 8 + tb * 4
                    c = "0" if step == 0 else f"v[{d}:{d+3}]"
                    mf.append(f"v_mfma_f32_16x16x32_bf16 v[{d}:{d+3}], v[{a}:{a+3}], v[{b}:{b+3}], {c}")
            ri = 0
            for i, m in enumerate(mf):
                if "nomfma" not in dbg: k(m)
                for r in rd[ri:ri + 2]:
                    if "fakerd" in dbg: k("s_nop 0"); k("s_nop 0")
                    elif "nords" not in dbg: k(r)
                ri += 2
            assert ri >= len(rd)
        k.stamp(3)
        PFT.next = nx0
        if fz and fz.xl and fz.p == 0: fz.mode_issue(48, 250)
        k("s_waitcnt vmcnt(0)")
        want_stats = ST is not None
        if want_stats:
            for r in (8, 9, 10, 11):
                k(f"v_mov_b32 v{r}, 0")
        k("v_lshlrev_b32 v22, 4, v0")
        if DST is None:
            k.srd(60, 10, 0, X_BYTES)
            k("v_and_b32 v23, 31, v0")
            k("v_mul_u32_u24 v23, 1280, v23")
            k("v_lshrrev_b32 v24, 5, v0")
            k("v_lshl_add_u32 v23, v24, 4, v23")
            k("s_mul_i32 s40, s38, 40960")
            k("s_mul_i32 s41, s25, 160")
            k("s_add_u32 s40, s40, s41")
            k("s_mul_i32 s41, s27, 96")
            k("s_add_u32 s53, s40, s41")
        else:
            k(f"s_add_u32 s53, s39, {DST}")
        k("s_nop 4")
        for nb in range(NB):
            o = 24 + 4 * (nb % 2)
            for tb in range(2):
                a = ACC + (nb * 2 + tb) * 4
                d = RS + (nb * 2 + tb) * 2
                t = 12
                k(f"v_lshlrev_b32 v{t}, 16, v{d}")
                k(f"v_and_b32 v{t+1}, 0xffff0000, v{d}")
                k(f"v_lshlrev_b32 v{t+2}, 16, v{d+1}")
                k(f"v_and_b32 v{t+3}, 0xffff0000, v{d+1}")
                k(f"v_pk_add_f32 v[{a}:{a+1}], v[{a}:{a+1}], v[{t}:{t+1}]")
                k(f"v_pk_add_f32 v[{a+2}:{a+3}], v[{a+2}:{a+3}], v[{t+2}:{t+3}]")
                if kind == "w2":
                    b = BI + 2 * nb
                    k(f"v_lshlrev_b32 v{t+4}, 16, v{b}")
                    k(f"v_and_b32 v{t+5}, 0xffff0000, v{b}")
                    k(f"v_lshlrev_b32 v{t+6}, 16, v{b+1}")
                    k(f"v_and_b32 v{t+7}, 0xffff0000, v{b+1}")
                    k(f"v_pk_add_f32 v[{a}:{a+1}], v[{a}:{a+1}], v[{t+4}:{t+5}]")
                    k(f"v_pk_add_f32 v[{a+2}:{a+3}], v[{a+2}:{a+3}], v[{t+6}:{t+7}]")
                if want_stats:
                    for r in range(4):
                        k(f"v_add_f32 v{8+tb}, v{8+tb}, v{a+r}")
                        k(f"v_fmac_f32 v{10+tb}, v{a+r}, v{a+r}")
                k(f"v_cvt_pk_bf16_f32 v{o+2*tb}, v{a}, v{a+1}")
                k(f"v_cvt_pk_bf16_f32 v{o+2*tb+1}, v{a+2}, v{a+3}")
            k("s_nop 1")
            k(f"v_permlane16_swap_b32 v{o}, v{o+2}")
            k(f"v_permlane16_swap_b32 v{o+1}, v{o+3}")
            k("s_nop 1")
            if DST is None:
                k(f"buffer_store_dwordx4 v[{o}:{o+3}], v23, s[60:63], s53 offen offset:{nb*32}" + (" ; nosc" if OUTP else ""))
            else:
                k(f"buffer_store_dwordx4 v[{o}:{o+3}], v22, s[48:51], s53 offen offset:{nb*1024}{NS_}")
        if want_stats:
            k("v_permlane16_swap_b32 v8, v9")
            k("v_permlane16_swap_b32 v10, v11")
            k("s_nop 1")
            k("v_add_f32 v8, v8, v9")
            k("v_add_f32 v10, v10, v11")
            k("s_nop 1")
            k("v_permlane32_swap_b32 v8, v10")
            k("s_nop 1")
            k("v_add_f32 v8, v8, v10")
            k("v_and_b32 v12, 31, v0")
            k("v_lshlrev_b32 v12, 3, v12")
            k("v_lshrrev_b32 v13, 5, v0")
            k("v_lshl_add_u32 v12, v13, 2, v12")
            k("s_lshl_b32 s40, s25, 1")
            k("s_add_u32 s40, s40, s27")
            k("s_lshl_b32 s40, s40, 14")
            k("s_lshl_b32 s41, s38, 8")
            k("s_add_u32 s40, s40, s41")
            k(f"s_add_u32 s40, s40, {ST}")
            k(f"buffer_store_dword v8, v12, s[48:51], s40 offen{NS_}")
        k("s_waitcnt vmcnt(0)")
        fin_compute(k, fz, kidx)
    k("s_cmp_eq_u32 s27, 1")
    k(f"s_cbranch_scc1 {k.ref('p2')}")
    path(3)
    k.lab("p2")
    path(2)
    return k


ATT_PACK = "cvt"
def gen_attn(name, kidx=0, pack=None, force_slow=False):
    pack = pack or ATT_PACK
    NWG = 256
    LDS = 163840
    k = Kern(name, NWG, 512, LDS, vgpr=128)
    KA, KB, VA = 1, 2, 3
    Q16, Q4 = 8, 12
    K16 = [16, 20]; K4 = [24, 26]
    V = [32, 40]
    S = [48, 64]
    P = 80
    O = 96
    k(f"s_cmp_ge_u32 s2, {NWG}")
    k(f"s_cbranch_scc1 {k.ref('end')}")
    k.stamp(0)
    k.karg(6, 80)
    wave_id(k, 26)
    k("s_and_b32 s20, s2, 7")
    k("s_lshr_b32 s21, s2, 3")
    k("s_lshr_b32 s22, s21, 3")
    k("s_lshl_b32 s23, s20, 2")
    k("s_add_u32 s24, s23, s22")
    k("s_and_b32 s25, s21, 7")
    k("s_lshl_b32 s25, s25, 3")
    k("s_add_u32 s25, s25, s26")
    k("v_lshlrev_b32 v4, 4, v0")
    k("s_lshl_b32 s27, s24, 6")
    k("s_add_u32 s27, s27, s25")
    k("s_mul_i32 s27, s27, 1280")
    k(f"s_add_u32 s27, s27, {WS_Q}")
    k("s_mul_i32 s28, s24, 163840")
    k(f"s_add_u32 s28, s28, {WS_KV}")
    k("s_mul_i32 s29, s26, 3072")
    k("s_mul_i32 s30, s26, 17408")
    k("s_add_u32 s30, s30, 24576")
    k("v_and_b32 v5, 31, v0")
    k("v_lshlrev_b32 v6, 3, v5")
    k(f"v_mov_b32 v{Q4}, 0")
    k(f"v_mov_b32 v{Q4+1}, 0")
    k("s_waitcnt lgkmcnt(0)")
    k.srd(12, 6, 0, WS_SIZE)
    k(f"buffer_load_dwordx4 v[{Q16}:{Q16+3}], v4, s[12:15], s27 offen")
    k("s_mov_b64 exec, 0xffffffff")
    k(f"buffer_load_dwordx2 v[{Q4}:{Q4+1}], v6, s[12:15], s27 offen offset:1024")
    k("s_mov_b64 exec, -1")
    k("s_mov_b32 m0, s29")
    k("s_add_u32 s31, s28, s29")
    for i in range(3):
        k(f"buffer_load_dwordx4 v4, s[12:15], s31 offen offset:{i*1024} lds")
    for g in range(5):
        k(f"s_add_u32 m0, s30, {g*4096}")
        k(f"s_add_u32 s31, s28, s30")
        if g: k(f"s_add_u32 s31, s31, {g*4096}")
        for i in range(4 if g < 4 else 1):
            k(f"buffer_load_dwordx4 v4, s[12:15], s31 offen offset:{i*1024} lds")
    k.stamp(1)
    def lane_addrs():
        k("v_and_b32 v5, 31, v0")
        k("v_and_b32 v6, 0x13, v5")
        k("v_and_b32 v7, 4, v5")
        k("v_lshl_or_b32 v6, v7, 1, v6")
        k("v_and_b32 v7, 8, v5")
        k("v_lshrrev_b32 v7, 1, v7")
        k("v_or_b32 v6, v6, v7")
        k("v_lshrrev_b32 v7, 5, v0")
        k(f"v_lshlrev_b32 v{KA}, 9, v7")
        k(f"v_lshl_add_u32 v{KA}, v6, 4, v{KA}")
        k(f"v_lshlrev_b32 v{KB}, 3, v6")
        k(f"v_add_u32 v{KB}, 1024, v{KB}")
        k(f"v_mul_u32_u24 v{VA}, 320, v7")
        k(f"v_lshl_add_u32 v{VA}, v5, 4, v{VA}")
        k(f"v_add_u32 v{VA}, 1280, v{VA}")
    lane_addrs()
    k("v_cmp_eq_u32 vcc, 20, v5")
    k("v_mov_b32 v7, 0x3f803f80")
    k("s_mov_b32 s34, 0x000fffff")
    k("s_mov_b32 s35, 0x000fffff")
    k(f"v_cndmask_b32 v{V[0]}, 0, v7, vcc")
    for r in range(1, 16):
        k(f"v_mov_b32 v{V[0]+r}, v{V[0]}")
    for r in range(16):
        k(f"v_mov_b32 v{O+r}, 0")
    for r in range(4, 8):
        k(f"v_mov_b32 v{P+r}, 0")
    k("s_waitcnt vmcnt(17)")
    k("s_barrier")
    k.stamp(2)
    def rdK(buf, off):
        k(f"ds_read_b128 v[{K16[buf]}:{K16[buf]+3}], v{KA} offset:{off}")
        k(f"ds_read_b64 v[{K4[buf]}:{K4[buf]+1}], v{KB} offset:{off}")
    def rdV(buf, off):
        k("s_mov_b64 exec, s[34:35]")
        k(f"ds_read_b128 v[{V[buf]}:{V[buf]+3}], v{VA} offset:{off}")
        k(f"ds_read_b128 v[{V[buf]+4}:{V[buf]+7}], v{VA} offset:{off+640}")
        k("s_mov_b64 exec, -1")
    def M1(n): k(f"v_mfma_f32_32x32x16_bf16 v[{S[n]}:{S[n]+15}], v[{K16[n]}:{K16[n]+3}], v[{Q16}:{Q16+3}], 0")
    def M2(n): k(f"v_mfma_f32_32x32x8bf16_1k v[{S[n]}:{S[n]+15}], v[{K4[n]}:{K4[n]+1}], v[{Q4}:{Q4+1}], v[{S[n]}:{S[n]+15}]")
    def MPV(vb, f): k(f"v_mfma_f32_32x32x16_bf16 v[{O}:{O+15}], v[{V[vb]+4*f}:{V[vb]+4*f+3}], v[{P+4*f}:{P+4*f+3}], v[{O}:{O+15}]")
    def G(c, g):
        s = S[c] + 4 * g
        p = P + 2 * g
        if pack == "cvt":
            for i in range(4):
                k(f"v_exp_f32 v{s+i}, v{s+i}")
            k(f"v_cvt_pk_bf16_f32 v{p}, v{s}, v{s+1}")
            k(f"v_cvt_pk_bf16_f32 v{p+1}, v{s+2}, v{s+3}")
        else:
            k(f"v_exp_f32 v{p}, v{s+1}")
            k(f"v_exp_f32 v{s}, v{s}")
            k(f"v_exp_f32 v{p+1}, v{s+3}")
            k(f"v_exp_f32 v{s+2}, v{s+2}")
            k(f"v_mov_b32_sdwa v{p}, v{s} dst_sel:WORD_0 dst_unused:UNUSED_PRESERVE src0_sel:WORD_1")
            k(f"v_mov_b32_sdwa v{p+1}, v{s+2} dst_sel:WORD_0 dst_unused:UNUSED_PRESERVE src0_sel:WORD_1")
    rdK(0, 0)
    rdK(1, 2560)
    rdV(0, 0)
    k("s_waitcnt lgkmcnt(4)")
    M1(0)
    k("s_mov_b32 s36, 0")
    k("s_nop 7")
    k("s_nop 1")
    M2(0)
    k("s_nop 7")
    k("s_nop 3")
    k.lab("loop")
    k("s_cmp_eq_u32 s36, 1")
    k(f"s_cbranch_scc0 {k.ref('nosync')}")
    k("s_waitcnt vmcnt(0)")
    k("s_barrier")
    k.lab("nosync")
    k("s_cmp_eq_u32 s36, 7")
    k(f"s_mov_b32 s37, {(-7*20480) & 0xffffffff:#x}")
    k("s_cselect_b32 s37, s37, 20480")
    for t in range(8):
        c, n = t & 1, (t + 1) & 1
        k("s_waitcnt lgkmcnt(0)")
        M1(n)
        G(c, 0)
        MPV(n, 1)
        if t == 6:
            k(f"v_add_u32 v{KA}, s37, v{KA}")
            k(f"v_add_u32 v{KB}, s37, v{KB}")
        if t == 7:
            k(f"v_add_u32 v{VA}, s37, v{VA}")
        rdK(c, ((t + 2) % 8) * 2560)
        rdV(n, ((t + 1) % 8) * 2560)
        G(c, 1)
        M2(n)
        G(c, 2)
        MPV(c, 0)
        G(c, 3)
    k("s_add_u32 s36, s36, 1")
    k("s_cmp_lt_u32 s36, 8")
    k(f"s_cbranch_scc1 {k.ref('loop')}")
    k("s_nop 0")
    MPV(1, 1)
    k.stamp(3)
    k("s_waitcnt lgkmcnt(0)")
    k("s_nop 7")
    k("s_nop 3")
    k(f"v_mov_b32 v4, v{O+8}")
    k(f"v_mov_b32 v5, v{O+8}")
    k("v_mov_b32 v6, 0")
    k("s_nop 0")
    k("v_permlane32_swap_b32 v4, v5")
    for r in range(12):
        k(f"v_fma_f32 v6, v{O+r}, 0, v6")
    k(f"v_cmp_lt_f32 vcc, {f2u(2.0**-40):#x}, v5")
    k(f"v_cmp_gt_f32 s[38:39], {f2u(2.0**40):#x}, v5" if False else f"s_mov_b32 s40, {f2u(2.0**40):#x}")
    k("v_cmp_gt_f32 s[38:39], s40, v5")
    k("v_cmp_eq_f32 s[42:43], 0, v6")
    k("s_nop 3")
    k("s_and_b64 vcc, vcc, s[38:39]")
    k("s_and_b64 vcc, vcc, s[42:43]")
    if force_slow:
        k("s_mov_b64 vcc, 0")
    k("s_cmp_eq_u64 vcc, -1")
    k(f"s_cbranch_scc0 {k.ref('slow')}")
    k.lab("fin")
    k("v_rcp_f32 v5, v5")
    k("s_mul_i32 s40, s24, 5")
    k("v_lshrrev_b32 v7, 5, v0")
    k("v_add_u32 v7, s40, v7")
    k("v_lshrrev_b32 v6, 1, v7")
    k("v_lshlrev_b32 v6, 9, v6")
    k("v_and_b32 v7, 1, v7")
    k("v_lshl_add_u32 v6, v7, 3, v6")
    k("v_and_b32 v7, 31, v0")
    k("v_lshl_add_u32 v6, v7, 4, v6")
    k("s_mul_i32 s41, s25, 40960")
    k(f"s_add_u32 s41, s41, {WS_O}")
    for r in range(0, 12, 2):
        k(f"v_pk_mul_f32 v[{O+r}:{O+r+1}], v[{O+r}:{O+r+1}], v[4:5] op_sel:[0,1] op_sel_hi:[1,1]")
    k("s_nop 0")
    for j in range(6):
        k(f"v_cvt_pk_bf16_f32 v{16+j}, v{O+2*j}, v{O+2*j+1}")
    k("buffer_store_dwordx2 v[16:17], v6, s[12:15], s41 offen")
    k("buffer_store_dwordx2 v[18:19], v6, s[12:15], s41 offen offset:512")
    k("s_mov_b64 exec, 0xffffffff")
    k("buffer_store_dwordx2 v[20:21], v6, s[12:15], s41 offen offset:1024")
    k("s_waitcnt vmcnt(0)")
    k.stamp(4); k.stamp_flush(6, kidx, 5, 26)
    k.lab("end")
    k("s_endpgm")
    k.lab("slow")
    lane_addrs()
    MX = 88
    k(f"v_mov_b32 v{MX}, {f2u(-3.0e38):#x}")
    for r in range(16):
        k(f"v_mov_b32 v{O+r}, 0")
    k("s_mov_b32 s36, 0")
    k.lab("sl")
    rdK(0, 0)
    rdV(0, 0)
    k("s_waitcnt lgkmcnt(0)")
    M1(0)
    k("s_nop 7"); k("s_nop 1")
    M2(0)
    k("s_nop 7"); k("s_nop 3")
    s = S[0]
    k(f"v_max3_f32 v4, v{s}, v{s+1}, v{s+2}")
    for i in range(3, 15, 2):
        k(f"v_max3_f32 v4, v4, v{s+i}, v{s+i+1}")
    k(f"v_max_f32 v4, v4, v{s+15}")
    k("v_mov_b32 v5, v4")
    k("s_nop 1")
    k("v_permlane32_swap_b32 v4, v5")
    k("s_nop 1")
    k(f"v_max3_f32 v4, v4, v5, v{MX}")
    k(f"v_sub_f32 v5, v{MX}, v4")
    k("v_exp_f32 v5, v5")
    k(f"v_mov_b32 v{MX}, v4")
    for i in range(16):
        k(f"v_sub_f32 v{s+i}, v{s+i}, v4")
    for i in range(16):
        k(f"v_exp_f32 v{s+i}, v{s+i}")
    for r in range(12):
        k(f"v_mul_f32 v{O+r}, v{O+r}, v5")
    for j in range(8):
        k(f"v_cvt_pk_bf16_f32 v{P+j}, v{s+2*j}, v{s+2*j+1}")
    k(f"v_add_u32 v{KA}, 2560, v{KA}")
    k(f"v_add_u32 v{KB}, 2560, v{KB}")
    k(f"v_add_u32 v{VA}, 2560, v{VA}")
    k("s_nop 4")
    MPV(0, 0)
    MPV(0, 1)
    k("s_nop 7"); k("s_nop 3")
    k("s_add_u32 s36, s36, 1")
    k("s_cmp_lt_u32 s36, 64")
    k(f"s_cbranch_scc1 {k.ref('sl')}")
    k(f"v_mov_b32 v4, v{O+8}")
    k(f"v_mov_b32 v5, v{O+8}")
    k("s_nop 1")
    k("v_permlane32_swap_b32 v4, v5")
    k("s_nop 1")
    k(f"s_branch {k.ref('fin')}")
    return k


def l2_prefetch(k, items, half, idx, lw, tmp, vaddr, vdst, srd=12):
    k(f"v_lshlrev_b32 v{vaddr}, 7, v0")
    for n, (base, hb) in enumerate(items):
        per_wg = hb // 32
        per_w = per_wg // 4
        lines = (per_w + 127) // 128
        k(f"s_mul_i32 s{tmp}, s{half}, {hb}")
        k(f"s_mul_i32 s{tmp+1}, s{idx}, {per_wg}")
        k(f"s_add_u32 s{tmp}, s{tmp}, s{tmp+1}")
        k(f"s_mul_i32 s{tmp+1}, s{lw}, {per_w}")
        k(f"s_add_u32 s{tmp}, s{tmp}, s{tmp+1}")
        k(f"s_add_u32 s{tmp}, s{tmp}, {base}")
        done = 0
        while done < lines:
            n_ = min(64, lines - done)
            if n_ < 64:
                m = (1 << n_) - 1
                k(f"s_mov_b32 exec_lo, {m & 0xffffffff:#x}")
                k(f"s_mov_b32 exec_hi, {m >> 32:#x}")
            k(f"buffer_load_dword v{vdst}, v{vaddr}, s[{srd}:{srd+3}], s{tmp} offen")
            if n_ < 64:
                k("s_mov_b64 exec, -1")
            done += n_
            if done < lines:
                k(f"s_add_u32 s{tmp}, s{tmp}, {64*128}")
            vdst += 1

PFA = ""
RINGD = 0
def att_prefetch(k, spec, idx, lw, va, vd, srd=12):
    REG = {"o": (WS_WO, 8, 102400), "1": (WS_W1, 16, 122880), "2": (WS_W2, 8, 245760), "q": (WS_WQ, 16, 163840)}
    k(f"v_lshlrev_b32 v{va}, 7, v0")
    k(f"s_lshl_b32 s42, s{idx}, 2")
    k(f"s_add_u32 s42, s42, s{lw}")
    n = 0
    for it in spec.split(","):
        r, _, den = it.partition("/")
        base, nt, stride = REG[r]
        nb = stride // int(den or 1)
        wpt = 128 // nt
        per_w = nb // wpt
        assert per_w % 128 == 0 or den, (it, per_w)
        per_w = per_w // 128 * 128
        lines = per_w // 128
        sh = wpt.bit_length() - 1
        k(f"s_lshr_b32 s40, s42, {sh}")
        k(f"s_mul_i32 s40, s40, {stride}")
        k(f"s_and_b32 s41, s42, {wpt-1}")
        k(f"s_mul_i32 s41, s41, {per_w}")
        k("s_add_u32 s40, s40, s41")
        k(f"s_add_u32 s40, s40, {base}")
        done = 0
        while done < lines:
            n_ = min(64, lines - done)
            if n_ < 64:
                m = (1 << n_) - 1
                k(f"s_mov_b32 exec_lo, {m & 0xffffffff:#x}")
                k(f"s_mov_b32 exec_hi, {m >> 32:#x}")
            k(f"buffer_load_dword v{vd}, v{va}, s[{srd}:{srd+3}], s40 offen")
            if n_ < 64: k("s_mov_b64 exec, -1")
            done += n_; n += 1; vd += 1
            if done < lines: k(f"s_add_u32 s40, s40, {64*128}")
    return n

def repack_unit(k, lw, EV, OD, early=False, mid=None, lds=0):
    k(f"s_lshl_b32 s52, s2, 2")
    k(f"s_add_u32 s52, s52, s{lw}")
    k("s_cmp_ge_u32 s52, 880")
    k(f"s_cbranch_scc1 {k.ref('rp_skip' if (early or mid) else 'rp_done')}")
    k.karg(54, 8)
    k.karg(56, 16)
    k.karg(58, 32)
    k.karg(60, 48)
    def setup(lbl, lo, ncg, ptr, size, pitch, TN, K, dst, cs, csp):
        k.lab(lbl)
        k(f"s_sub_u32 s52, s52, {lo}")
        k.srd(64, ptr, 0, size)
        k(f"s_mov_b32 s53, {pitch}")
        k(f"s_mov_b32 s54, {(65536 + TN - 1)//TN}")
        k(f"s_mov_b32 s55, {TN}")
        k(f"s_mov_b32 s56, {K//8*TN*16}")
        k(f"s_mov_b32 s57, {dst}")
        k(f"s_mul_i32 s58, s52, {(65536 + ncg - 1)//ncg}")
        k("s_lshr_b32 s58, s58, 16")
        k(f"s_mul_i32 s59, s58, {ncg}")
        k("s_sub_u32 s59, s52, s59")
        k(f"s_mov_b32 s60, {cs if cs is not None else 0xffffffff:#x}")
        k(f"s_mov_b32 s61, {csp}")
        k(f"s_branch {k.ref('rp_go')}")
    k("s_waitcnt lgkmcnt(0)")
    k("s_cmp_ge_u32 s52, 640"); k(f"s_cbranch_scc1 {k.ref('rp_w2')}")
    k("s_cmp_ge_u32 s52, 540"); k(f"s_cbranch_scc1 {k.ref('rp_wo')}")
    k("s_cmp_ge_u32 s52, 300"); k(f"s_cbranch_scc1 {k.ref('rp_w1')}")
    setup("rp_wq", 0, 30, 54, 640 * 3840, 3840, 128, 640, WS_WQ, WS_CSQ, 1920 * 4)
    setup("rp_w1", 300, 24, 58, 640 * 3072, 3072, 96, 640, WS_W1, WS_CS1, 1536 * 4)
    setup("rp_wo", 540, 10, 56, 640 * 1280, 1280, 80, 640, WS_WO, None, 0)
    setup("rp_w2", 640, 10, 60, 1536 * 1280, 1280, 80, 1536, WS_W2, None, 0)
    k.lab("rp_go")
    if lds:
        VD = OD + 1
        k("v_lshrrev_b32 v4, 3, v0")
        k("v_and_b32 v5, 7, v0")
        k("v_bfe_u32 v6, v0, 4, 1")
        k("v_lshlrev_b32 v6, 2, v6")
        k("v_xor_b32 v5, v5, v6")
        k("v_mul_lo_u32 v4, v4, s53")
        k(f"v_lshl_add_u32 v{VD}, v5, 4, v4")
        k("s_lshl_b32 s62, s58, 6")
        k("s_mul_i32 s62, s62, s53")
        k("s_lshl_b32 s63, s59, 7")
        k("s_add_u32 s52, s62, s63")
        if mid:
            k(f"v_mul_lo_u32 v{OD+2}, v0, s53")
            k(f"buffer_load_dword v{OD+3}, v{OD+2}, s[64:67], s52 offen")
        k(f"s_mul_i32 s69, s{lw}, 8192")
        k(f"s_sub_u32 s69, {lds + 3*8192}, s69")
        k("v_bfe_u32 v6, v0, 2, 2")
        k("v_lshrrev_b32 v7, 4, v0")
        k("v_lshlrev_b32 v7, 1, v7")
        k("v_bfe_u32 v5, v0, 1, 1")
        k("v_add_u32 v7, v7, v5")
        k("v_lshrrev_b32 v5, 1, v6")
        k("v_lshlrev_b32 v5, 2, v5")
        k("v_xor_b32 v7, v7, v5")
        k("v_lshlrev_b32 v7, 4, v7")
        k("v_lshl_add_u32 v7, v6, 7, v7")
        k("v_and_b32 v5, 1, v0")
        k("v_lshl_add_u32 v7, v5, 3, v7")
        k(f"v_add_u32 v{OD}, s69, v7")
        def dmas():
            k("s_lshl_b32 s53, s53, 3")
            for i in range(8):
                k(f"s_add_u32 m0, s69, {i*1024}")
                k("s_add_u32 s52, s52, s53" if i else "s_nop 0")
                k(f"buffer_load_dwordx4 v{VD}, s[64:67], s52 offen lds")
        if not mid: dmas()
    else:
        k("v_lshlrev_b32 v4, 1, v0")
        k("s_lshl_b32 s62, s58, 6")
        k("s_mul_i32 s62, s62, s53")
        k("s_lshl_b32 s63, s59, 7")
        k("s_add_u32 s62, s62, s63")
        for r in range(64):
            d = (OD if r & 1 else EV) + (r >> 1)
            k(f"buffer_load_ushort v{d}, v4, s[64:67], s62 offen")
            if r < 63:
                k("s_add_u32 s62, s62, s53")
        if mid: mid()
    k("s_lshl_b32 s62, s59, 6")
    k("v_add_u32 v4, s62, v0")
    k("v_mul_lo_u32 v5, v4, s54")
    k("v_lshrrev_b32 v5, 16, v5")
    k("v_mul_lo_u32 v6, v5, s55")
    k("v_sub_u32 v6, v4, v6")
    k("v_mul_lo_u32 v5, v5, s56")
    k("v_lshl_add_u32 v5, v6, 4, v5")
    k("s_lshl_b32 s63, s55, 4")
    k("s_lshl_b32 s62, s58, 3")
    k("s_mul_i32 s62, s62, s63")
    k("s_add_u32 s62, s62, s57")
    k("v_mov_b32 v6, 0")
    k("v_mov_b32 v7, 0")
    if lds:
        if mid:
            mid(); dmas()
        for ku in range(8):
            k(f"s_waitcnt vmcnt({7 - ku})")
            k(f"ds_read_b64_tr_b16 v[{EV+4*ku}:{EV+4*ku+1}], v{OD} offset:{ku*1024}")
            k(f"ds_read_b64_tr_b16 v[{EV+4*ku+2}:{EV+4*ku+3}], v{OD} offset:{ku*1024+512}")
        for ku in range(8):
            k(f"s_waitcnt lgkmcnt({14 - 2*ku})")
            k(f"buffer_store_dwordx4 v[{EV+4*ku}:{EV+4*ku+3}], v5, s[12:15], s62 offen")
            if ku < 7:
                k("s_add_u32 s62, s62, s63")
    else:
      for ku in range(8):
        k(f"s_waitcnt vmcnt({min(63, 56 - 8*ku + ku)})")
        for j in range(4 * ku, 4 * ku + 4):
            k(f"v_lshl_or_b32 v{EV+j}, v{OD+j}, 16, v{EV+j}")
        k(f"buffer_store_dwordx4 v[{EV+4*ku}:{EV+4*ku+3}], v5, s[12:15], s62 offen")
        if ku < 7:
            k("s_add_u32 s62, s62, s63")
    k("s_cmp_eq_u32 s60, 0xffffffff")
    k(f"s_cbranch_scc1 {k.ref('rp_done')}")
    for j in range(32):
        k(f"v_dot2c_f32_bf16 v{6 + (j & 1)}, 0x3f803f80, v{EV+j}")
    k("s_mul_i32 s62, s58, s61")
    k("s_add_u32 s62, s62, s60")
    k("v_lshlrev_b32 v4, 2, v4")
    k("s_nop 3")
    k("v_add_f32 v6, v6, v7")
    k("s_nop 0")
    k("buffer_store_dword v6, v4, s[12:15], s62 offen")
    if mid:
        k(f"s_branch {k.ref('rp_done')}")
        k.lab("rp_skip")
        mid()
    if early:
        k(f"s_branch {k.ref('rp_done')}")
        k.lab("rp_skip")
        k("s_waitcnt vmcnt(0)")
    k.lab("rp_done")


PF_ATT = [(WS_WO, 409600), (WS_W1, 983040), (WS_W2, 983040)]

def gen_attn2(name, kidx=0, pack="cvt", force_slow=False, sched=0, dbg=(), pf=0):
    NWG = 256
    LDS = 163840
    k = Kern(name, NWG, 512, LDS, vgpr=160)
    KA, KB, VA = 1, 2, 3
    Q16 = [8, 28]; Q4 = [12, 14]
    K16 = [16, 20]; K4 = [24, 26]
    V = [32, 40]
    S = [48, 64]
    P = 80
    O = [96, 112]
    k(f"s_cmp_ge_u32 s2, {NWG}")
    k(f"s_cbranch_scc1 {k.ref('end')}")
    k.stamp(0)
    k.karg(6, 80)
    wave_id(k, 26)
    k("s_and_b32 s20, s2, 7")
    k("s_lshr_b32 s21, s2, 3")
    k("s_lshr_b32 s22, s21, 3")
    k("s_lshl_b32 s23, s20, 2")
    k("s_add_u32 s24, s23, s22")
    k("v_lshlrev_b32 v4, 4, v0")
    k("s_cmp_lt_u32 s26, 4")
    k(f"s_cbranch_scc1 {k.ref('compute')}")
    k("s_sub_u32 s26, s26, 4")
    k("s_mul_i32 s28, s24, 163840")
    k(f"s_add_u32 s28, s28, {WS_KV}")
    k("s_mul_i32 s29, s26, 6144")
    k("s_mul_i32 s30, s26, 34816")
    k("s_add_u32 s30, s30, 24576")
    k("s_waitcnt lgkmcnt(0)")
    k.srd(12, 6, 0, WS_SIZE)
    k("s_mov_b32 m0, s29")
    k("s_add_u32 s31, s28, s29")
    for i in range(4):
        k(f"buffer_load_dwordx4 v4, s[12:15], s31 offen offset:{i*1024} lds")
    k("s_add_u32 m0, s29, 4096")
    k("s_add_u32 s31, s31, 4096")
    for i in range(2):
        k(f"buffer_load_dwordx4 v4, s[12:15], s31 offen offset:{i*1024} lds")
    k("s_add_u32 s28, s28, s30")
    def stB(g):
        k(f"s_add_u32 m0, s30, {g*4096}")
        k(f"s_add_u32 s31, s28, {g*4096}")
        for i in range(4 if g < 8 else 2):
            k(f"buffer_load_dwordx4 v4, s[12:15], s31 offen offset:{i*1024} lds")
    stB(0); stB(1)
    k.stamp(1)
    k("s_waitcnt vmcnt(8)")
    k.stamp(2)
    k("s_barrier")
    for g in range(2, 9):
        stB(g)
    k.stamp(3)
    k("s_waitcnt vmcnt(0)")
    k.stamp(4)
    k("s_barrier")
    if pf:
        k("s_and_b32 s40, s20, 1")
        l2_prefetch(k, PF_ATT[:pf], 40, 21, 26, 42, 5, 8)
        k("s_waitcnt vmcnt(0)")
    k("s_add_u32 s26, s26, 4")
    k.stamp_flush(6, kidx, 5, 26)
    k.lab("end")
    k("s_endpgm")
    k.lab("compute")
    k("s_and_b32 s25, s21, 7")
    k("s_lshl_b32 s25, s25, 3")
    k("s_lshl_b32 s23, s26, 1")
    k("s_add_u32 s25, s25, s23")
    k("s_lshl_b32 s27, s24, 6")
    k("s_add_u32 s27, s27, s25")
    k("s_mul_i32 s27, s27, 1280")
    k(f"s_add_u32 s27, s27, {WS_Q}")
    k("s_add_u32 s28, s27, 1280")
    k("v_and_b32 v5, 31, v0")
    k("v_lshlrev_b32 v6, 3, v5")
    for x in range(2):
        k(f"v_mov_b32 v{Q4[x]}, 0")
        k(f"v_mov_b32 v{Q4[x]+1}, 0")
    k("s_waitcnt lgkmcnt(0)")
    k.srd(12, 6, 0, WS_SIZE)
    k(f"buffer_load_dwordx4 v[{Q16[0]}:{Q16[0]+3}], v4, s[12:15], s27 offen")
    k(f"buffer_load_dwordx4 v[{Q16[1]}:{Q16[1]+3}], v4, s[12:15], s28 offen")
    k("s_mov_b64 exec, 0xffffffff")
    k(f"buffer_load_dwordx2 v[{Q4[0]}:{Q4[0]+1}], v6, s[12:15], s27 offen offset:1024")
    k(f"buffer_load_dwordx2 v[{Q4[1]}:{Q4[1]+1}], v6, s[12:15], s28 offen offset:1024")
    k("s_mov_b64 exec, -1")
    def lane_addrs():
        k("v_and_b32 v5, 31, v0")
        k("v_and_b32 v6, 0x13, v5")
        k("v_and_b32 v7, 4, v5")
        k("v_lshl_or_b32 v6, v7, 1, v6")
        k("v_and_b32 v7, 8, v5")
        k("v_lshrrev_b32 v7, 1, v7")
        k("v_or_b32 v6, v6, v7")
        k("v_lshrrev_b32 v7, 5, v0")
        k(f"v_lshlrev_b32 v{KA}, 9, v7")
        k(f"v_lshl_add_u32 v{KA}, v6, 4, v{KA}")
        k(f"v_lshlrev_b32 v{KB}, 3, v6")
        k(f"v_add_u32 v{KB}, 1024, v{KB}")
        k(f"v_mul_u32_u24 v{VA}, 320, v7")
        k(f"v_lshl_add_u32 v{VA}, v5, 4, v{VA}")
        k(f"v_add_u32 v{VA}, 1280, v{VA}")
    lane_addrs()
    k("v_cmp_eq_u32 vcc, 20, v5")
    k("v_mov_b32 v7, 0x3f803f80")
    k("s_mov_b32 s34, 0x000fffff")
    k("s_mov_b32 s35, 0x000fffff")
    k(f"v_cndmask_b32 v{V[0]}, 0, v7, vcc")
    for r in range(1, 16):
        k(f"v_mov_b32 v{V[0]+r}, v{V[0]}")
    for r in range(32):
        k(f"v_mov_b32 v{O[0]+r}, 0")
    for r in range(4, 8):
        k(f"v_mov_b32 v{P+r}, 0")
    k.stamp(1)
    k("s_waitcnt vmcnt(0)")
    k("s_barrier")
    k.stamp(2)
    def rdK(buf, off):
        return [f"ds_read_b128 v[{K16[buf]}:{K16[buf]+3}], v{KA} offset:{off}",
                f"ds_read_b64 v[{K4[buf]}:{K4[buf]+1}], v{KB} offset:{off}"]
    def rdV(buf, off):
        return ["s_mov_b64 exec, s[34:35]",
                f"ds_read_b128 v[{V[buf]}:{V[buf]+3}], v{VA} offset:{off}",
                f"ds_read_b128 v[{V[buf]+4}:{V[buf]+7}], v{VA} offset:{off+640}",
                "s_mov_b64 exec, -1"]
    def M1(x, kb): return f"v_mfma_f32_32x32x16_bf16 v[{S[x]}:{S[x]+15}], v[{K16[kb]}:{K16[kb]+3}], v[{Q16[x]}:{Q16[x]+3}], 0"
    def M2(x, kb): return f"v_mfma_f32_32x32x8bf16_1k v[{S[x]}:{S[x]+15}], v[{K4[kb]}:{K4[kb]+1}], v[{Q4[x]}:{Q4[x]+1}], v[{S[x]}:{S[x]+15}]"
    def MPV(x, vb, f): return f"v_mfma_f32_32x32x16_bf16 v[{O[x]}:{O[x]+15}], v[{V[vb]+4*f}:{V[vb]+4*f+3}], v[{P+4*f}:{P+4*f+3}], v[{O[x]}:{O[x]+15}]"
    def G(x, g, fill=()):
        s = S[x] + 4 * g
        p = P + 2 * g
        fill = list(fill)
        if pack == "cvt":
            ex = [f"v_exp_f32 v{s+i}, v{s+i}" for i in range(4)]
            pk = [f"v_cvt_pk_bf16_f32 v{p}, v{s}, v{s+1}", f"v_cvt_pk_bf16_f32 v{p+1}, v{s+2}, v{s+3}"]
        else:
            ex = [f"v_exp_f32 v{p}, v{s+1}", f"v_exp_f32 v{s}, v{s}", f"v_exp_f32 v{p+1}, v{s+3}", f"v_exp_f32 v{s+2}, v{s+2}"]
            pk = [f"v_mov_b32_sdwa v{p}, v{s} dst_sel:WORD_0 dst_unused:UNUSED_PRESERVE src0_sel:WORD_1",
                  f"v_mov_b32_sdwa v{p+1}, v{s+2} dst_sel:WORD_0 dst_unused:UNUSED_PRESERVE src0_sel:WORD_1"]
        for i in range(4):
            k(ex[i])
            if i < len(fill) and fill[i]:
                for f in (fill[i] if isinstance(fill[i], list) else [fill[i]]):
                    k(f)
        for x_ in pk: k(x_)
    for r in rdK(0, 0) + rdK(1, 2560) + rdV(0, 0): k(r)
    k("s_waitcnt lgkmcnt(4)")
    k(M1(0, 0))
    k("s_mov_b32 s36, 0")
    k("s_nop 7")
    k("s_nop 1")
    k(M2(0, 0))
    k("s_nop 7")
    k("s_nop 3")
    k.lab("loop")
    k("s_cmp_eq_u32 s36, 1")
    k(f"s_cbranch_scc0 {k.ref('nosync')}")
    k("s_barrier")
    k.lab("nosync")
    k("s_cmp_eq_u32 s36, 7")
    k(f"s_mov_b32 s37, {(-7*20480) & 0xffffffff:#x}")
    k("s_cselect_b32 s37, s37, 20480")
    L0 = len(k.L)
    for t in range(8):
        c, n = t & 1, (t + 1) & 1
        k("s_waitcnt lgkmcnt(0)")
        k(M1(1, c))
        G(0, 0)
        k(MPV(1, n, 1))
        if t == 7:
            k(f"v_add_u32 v{VA}, s37, v{VA}")
        rv = rdV(n, ((t + 1) % 8) * 2560)
        G(0, 1, fill=[rv])
        k(M2(1, c))
        if t == 6:
            k(f"v_add_u32 v{KA}, s37, v{KA}")
            k(f"v_add_u32 v{KB}, s37, v{KB}")
        rk = rdK(c, ((t + 2) % 8) * 2560)
        G(0, 2, fill=[rk[0], rk[1]])
        k(MPV(0, c, 0))
        G(0, 3)
        k(M1(0, n))
        G(1, 0)
        k(MPV(0, c, 1))
        G(1, 1)
        k(M2(0, n))
        G(1, 2)
        k(MPV(1, c, 0))
        G(1, 3)
    if dbg:
        body = k.L[L0:]
        def drop(l):
            l = l.strip()
            if "nods" in dbg and (l.startswith("ds_") or "exec" in l or l.startswith("s_waitcnt")): return True
            if "nomfma" in dbg and l.startswith("v_mfma"): return True
            if "nocvt" in dbg and (l.startswith("v_cvt") or l.startswith("v_mov_b32_sdwa")): return True
            if "noexp" in dbg and l.startswith("v_exp"): return True
            if "nom2" in dbg and "32x32x8" in l: return True
            if "nopv" in dbg and l.startswith(f"v_mfma_f32_32x32x16_bf16 v[{O[0]}") : return True
            if "nopv" in dbg and l.startswith(f"v_mfma_f32_32x32x16_bf16 v[{O[1]}") : return True
            return False
        k.L = k.L[:L0] + [l for l in body if not drop(l)]
    k("s_add_u32 s36, s36, 1")
    k("s_cmp_lt_u32 s36, 8")
    k(f"s_cbranch_scc1 {k.ref('loop')}")
    k("s_nop 0")
    k(MPV(1, 1, 1))
    k.stamp(3)
    k("s_waitcnt lgkmcnt(0)")
    k("s_nop 7")
    k("s_nop 3")
    L = [5, 7]
    k("v_mov_b32 v16, 0")
    for x in range(2):
        k(f"v_mov_b32 v{L[x]-1}, v{O[x]+8}")
        k(f"v_mov_b32 v{L[x]}, v{O[x]+8}")
    k("s_nop 1")
    for x in range(2):
        k(f"v_permlane32_swap_b32 v{L[x]-1}, v{L[x]}")
    for x in range(2):
        for r in range(12):
            k(f"v_fma_f32 v16, v{O[x]+r}, 0, v16")
    k(f"s_mov_b32 s40, {f2u(2.0**40):#x}")
    k(f"s_mov_b32 s41, {f2u(2.0**-40):#x}")
    k("v_cmp_eq_f32 vcc, 0, v16")
    k("v_cmp_lt_f32 s[42:43], s41, v5")
    k("v_cmp_gt_f32 s[44:45], s40, v5")
    k("v_cmp_lt_f32 s[46:47], s41, v7")
    k("v_cmp_gt_f32 s[48:49], s40, v7")
    k("s_nop 3")
    k("s_and_b64 vcc, vcc, s[42:43]")
    k("s_and_b64 vcc, vcc, s[44:45]")
    k("s_and_b64 vcc, vcc, s[46:47]")
    k("s_and_b64 vcc, vcc, s[48:49]")
    if force_slow:
        k("s_mov_b64 vcc, 0")
    k("s_cmp_eq_u64 vcc, -1")
    k(f"s_cbranch_scc0 {k.ref('slow')}")
    k.lab("fin")
    k("v_rcp_f32 v5, v5")
    k("v_rcp_f32 v7, v7")
    k("s_mul_i32 s40, s24, 5")
    k("v_lshrrev_b32 v17, 5, v0")
    k("v_add_u32 v17, s40, v17")
    k("v_lshrrev_b32 v16, 1, v17")
    k("v_lshlrev_b32 v16, 9, v16")
    k("v_and_b32 v17, 1, v17")
    k("v_lshl_add_u32 v16, v17, 3, v16")
    k("v_and_b32 v17, 31, v0")
    k("v_lshl_add_u32 v16, v17, 4, v16")
    k("s_mul_i32 s41, s25, 40960")
    k(f"s_add_u32 s41, s41, {WS_O}")
    k("s_add_u32 s42, s41, 40960")
    for x in range(2):
        for r in range(0, 12, 2):
            k(f"v_pk_mul_f32 v[{O[x]+r}:{O[x]+r+1}], v[{O[x]+r}:{O[x]+r+1}], v[{L[x]-1}:{L[x]}] op_sel:[0,1] op_sel_hi:[1,1]")
    for x in range(2):
        for j in range(6):
            k(f"v_cvt_pk_bf16_f32 v{20+6*x+j}, v{O[x]+2*j}, v{O[x]+2*j+1}")
    for x in range(2):
        k(f"buffer_store_dwordx2 v[{20+6*x}:{21+6*x}], v16, s[12:15], s{41+x} offen")
        k(f"buffer_store_dwordx2 v[{22+6*x}:{23+6*x}], v16, s[12:15], s{41+x} offen offset:512")
    k("s_mov_b64 exec, 0xffffffff")
    for x in range(2):
        k(f"buffer_store_dwordx2 v[{24+6*x}:{25+6*x}], v16, s[12:15], s{41+x} offen offset:1024")
    k("s_waitcnt vmcnt(0)")
    k.stamp(4); k.stamp_flush(6, kidx, 5, 26)
    k("s_endpgm")
    k.lab("slow")
    MX = 88
    for x in range(2):
        lane_addrs()
        k(f"v_mov_b32 v{MX}, {f2u(-3.0e38):#x}")
        for r in range(16):
            k(f"v_mov_b32 v{O[x]+r}, 0")
        k("s_mov_b32 s36, 0")
        k.lab(f"sl{x}")
        for r in rdK(0, 0) + rdV(0, 0): k(r)
        k("s_waitcnt lgkmcnt(0)")
        k(M1(x, 0))
        k("s_nop 7"); k("s_nop 1")
        k(M2(x, 0))
        k("s_nop 7"); k("s_nop 3")
        s = S[x]
        k(f"v_max3_f32 v4, v{s}, v{s+1}, v{s+2}")
        for i in range(3, 15, 2):
            k(f"v_max3_f32 v4, v4, v{s+i}, v{s+i+1}")
        k(f"v_max_f32 v4, v4, v{s+15}")
        k("v_mov_b32 v5, v4")
        k("s_nop 1")
        k("v_permlane32_swap_b32 v4, v5")
        k("s_nop 1")
        k(f"v_max3_f32 v4, v4, v5, v{MX}")
        k(f"v_sub_f32 v5, v{MX}, v4")
        k("v_exp_f32 v5, v5")
        k(f"v_mov_b32 v{MX}, v4")
        for i in range(16):
            k(f"v_sub_f32 v{s+i}, v{s+i}, v4")
        for i in range(16):
            k(f"v_exp_f32 v{s+i}, v{s+i}")
        for r in range(12):
            k(f"v_mul_f32 v{O[x]+r}, v{O[x]+r}, v5")
        for j in range(8):
            k(f"v_cvt_pk_bf16_f32 v{P+j}, v{s+2*j}, v{s+2*j+1}")
        k(f"v_add_u32 v{KA}, 2560, v{KA}")
        k(f"v_add_u32 v{KB}, 2560, v{KB}")
        k(f"v_add_u32 v{VA}, 2560, v{VA}")
        k("s_nop 4")
        k(MPV(x, 0, 0))
        k(MPV(x, 0, 1))
        k("s_nop 7"); k("s_nop 3")
        k("s_add_u32 s36, s36, 1")
        k("s_cmp_lt_u32 s36, 64")
        k(f"s_cbranch_scc1 {k.ref(f'sl{x}')}")
    for x in range(2):
        k(f"v_mov_b32 v{L[x]-1}, v{O[x]+8}")
        k(f"v_mov_b32 v{L[x]}, v{O[x]+8}")
    k("s_nop 1")
    for x in range(2):
        k(f"v_permlane32_swap_b32 v{L[x]-1}, v{L[x]}")
    k("s_nop 1")
    k(f"s_branch {k.ref('fin')}")
    return k


def gen_attn3(name, kidx=0, force_slow=False, pf=0, h=8, um=8, uh=8, pm=3, phl=0, b2=8, dbg=(), repack=False, amap=0, stream=0, fz=None):
    NWG = 256
    LDS = 163840
    TM = 64 - h
    assert TM % um == 0 and h % uh == 0 and b2 % um == 0 and um % 2 == 0 and uh % 2 == 0
    SLOT = 2688
    assert 8 * SLOT <= b2 * 2560 + 3840
    k = Kern(name, NWG, 512, LDS, vgpr=160) if fz is None else fz.k
    NS_ = " ; nosc" if (fz and fz.xl and "o" not in XSC) else ""
    KA, KB, VA = 1, 2, 3
    Q16 = [8, 28]; Q4 = [12, 14]
    K16 = [16, 20]; K4 = [24, 26]
    V = [32, 40]
    S = [48, 64]
    P = 80
    O = [96, 112]
    if fz is None:
        k(f"s_cmp_ge_u32 s2, {NWG}")
        k(f"s_cbranch_scc1 {k.ref('end')}")
        k.stamp(0)
        k.karg(6, 80)
        wave_id(k, 26)
    k("s_and_b32 s20, s2, 7")
    k("s_lshr_b32 s21, s2, 3")
    if amap:
        k("s_mov_b32 s24, s21")
    else:
        k("s_lshr_b32 s22, s21, 3")
        k("s_lshl_b32 s23, s20, 2")
        k("s_add_u32 s24, s23, s22")
    k("v_lshlrev_b32 v4, 4, v0")
    k("s_and_b32 s33, s26, 3")
    k(f"s_mul_i32 s50, s24, {163840 + KVPAD}")
    k(f"s_add_u32 s50, s50, {WS_KV + QKD}")
    if amap:
        k("s_lshl_b32 s25, s20, 3")
    else:
        k("s_and_b32 s25, s21, 7")
        k("s_lshl_b32 s25, s25, 3")
    k("s_lshl_b32 s23, s33, 1")
    k("s_add_u32 s25, s25, s23")
    k("s_lshl_b32 s27, s24, 6")
    k("s_add_u32 s27, s27, s25")
    k("s_mul_i32 s27, s27, 1280")
    k(f"s_add_u32 s27, s27, {WS_Q + QKD}")
    k("s_add_u32 s28, s27, 1280")
    def q_loads():
        k("v_and_b32 v5, 31, v0")
        k("v_lshlrev_b32 v6, 3, v5")
        for x in range(2):
            k(f"v_mov_b32 v{Q4[x]}, 0")
            k(f"v_mov_b32 v{Q4[x]+1}, 0")
        k(f"buffer_load_dwordx4 v[{Q16[0]}:{Q16[0]+3}], v4, s[12:15], s27 offen")
        k(f"buffer_load_dwordx4 v[{Q16[1]}:{Q16[1]+3}], v4, s[12:15], s28 offen")
        k("s_mov_b64 exec, 0xffffffff")
        k(f"buffer_load_dwordx2 v[{Q4[0]}:{Q4[0]+1}], v6, s[12:15], s27 offen offset:1024")
        k(f"buffer_load_dwordx2 v[{Q4[1]}:{Q4[1]+1}], v6, s[12:15], s28 offen offset:1024")
        k("s_mov_b64 exec, -1")
    def lane_addrs():
        k("v_and_b32 v5, 31, v0")
        k("v_and_b32 v6, 0x13, v5")
        k("v_and_b32 v7, 4, v5")
        k("v_lshl_or_b32 v6, v7, 1, v6")
        k("v_and_b32 v7, 8, v5")
        k("v_lshrrev_b32 v7, 1, v7")
        k("v_or_b32 v6, v6, v7")
        k("v_lshrrev_b32 v7, 5, v0")
        k(f"v_lshlrev_b32 v{KA}, 9, v7")
        k(f"v_lshl_add_u32 v{KA}, v6, 4, v{KA}")
        k(f"v_lshlrev_b32 v{KB}, 3, v6")
        k(f"v_add_u32 v{KB}, 1024, v{KB}")
        k(f"v_mul_u32_u24 v{VA}, 320, v7")
        k(f"v_lshl_add_u32 v{VA}, v5, 4, v{VA}")
        k(f"v_add_u32 v{VA}, 1280, v{VA}")
    def init_regs():
        lane_addrs()
        k("v_cmp_eq_u32 vcc, 20, v5")
        k("v_mov_b32 v7, 0x3f803f80")
        k("s_mov_b32 s34, 0x000fffff")
        k("s_mov_b32 s35, 0x000fffff")
        k(f"v_cndmask_b32 v{V[0]}, 0, v7, vcc")
        for r in range(1, 16):
            k(f"v_mov_b32 v{V[0]+r}, v{V[0]}")
        for r in range(32):
            k(f"v_mov_b32 v{O[0]+r}, 0")
        for r in range(4, 8):
            k(f"v_mov_b32 v{P+r}, 0")
    def rdK(buf, off):
        return [f"ds_read_b128 v[{K16[buf]}:{K16[buf]+3}], v{KA} offset:{off}",
                f"ds_read_b64 v[{K4[buf]}:{K4[buf]+1}], v{KB} offset:{off}"]
    def rdV(buf, off):
        return ["s_mov_b64 exec, s[34:35]",
                f"ds_read_b128 v[{V[buf]}:{V[buf]+3}], v{VA} offset:{off}",
                f"ds_read_b128 v[{V[buf]+4}:{V[buf]+7}], v{VA} offset:{off+640}",
                "s_mov_b64 exec, -1"]
    def M1(x, kb): return f"v_mfma_f32_32x32x16_bf16 v[{S[x]}:{S[x]+15}], v[{K16[kb]}:{K16[kb]+3}], v[{Q16[x]}:{Q16[x]+3}], 0"
    def M2(x, kb): return f"v_mfma_f32_32x32x8bf16_1k v[{S[x]}:{S[x]+15}], v[{K4[kb]}:{K4[kb]+1}], v[{Q4[x]}:{Q4[x]+1}], v[{S[x]}:{S[x]+15}]"
    def MPV(x, vb, f): return f"v_mfma_f32_32x32x16_bf16 v[{O[x]}:{O[x]+15}], v[{V[vb]+4*f}:{V[vb]+4*f+3}], v[{P+4*f}:{P+4*f+3}], v[{O[x]}:{O[x]+15}]"
    def G(x, g, fill=()):
        s = S[x] + 4 * g
        p = P + 2 * g
        fill = list(fill)
        ex = [f"v_exp_f32 v{s+i}, v{s+i}" for i in range(4)]
        pk = [f"v_cvt_pk_bf16_f32 v{p}, v{s}, v{s+1}", f"v_cvt_pk_bf16_f32 v{p+1}, v{s+2}, v{s+3}"]
        for i in range(4):
            k(ex[i])
            if i < len(fill) and fill[i]:
                for f in (fill[i] if isinstance(fill[i], list) else [fill[i]]):
                    k(f)
        for x_ in pk: k(x_)
    def loop(tag, T, U, bar_after, hook=None):
        NIT = T // U
        assert hook is None or NIT == 1
        for r in rdK(0, 0) + rdK(1, 2560) + rdV(0, 0): k(r)
        k("s_waitcnt lgkmcnt(4)")
        k(M1(0, 0))
        k(f"s_mov_b32 s36, {NIT}")
        if isinstance(bar_after, list):
            assert all(b % U == 0 for b in bar_after)
            k(f"s_mov_b32 s38, {sum(1 << (NIT - b // U) for b in bar_after):#x}")
        k("s_nop 7")
        k("s_nop 1")
        k(M2(0, 0))
        k("s_nop 7")
        k("s_nop 3")
        k.lab(f"loop{tag}")
        if isinstance(bar_after, list):
            k("s_bitcmp1_b32 s38, s36")
            k(f"s_cbranch_scc0 {k.ref('nosync' + tag)}")
            k("s_barrier")
            k.lab("nosync" + tag)
        elif bar_after is not None:
            k(f"s_cmp_eq_u32 s36, {NIT - bar_after // U}")
            k(f"s_cbranch_scc0 {k.ref('nosync' + tag)}")
            k("s_barrier")
            k.lab("nosync" + tag)
        k("s_cmp_eq_u32 s36, 1")
        k(f"s_cselect_b32 s37, 0, {U*2560}")
        for t in range(U):
            c, n = t & 1, (t + 1) & 1
            k("s_waitcnt lgkmcnt(0)")
            if hook: hook(t)
            k(M1(1, c))
            G(0, 0)
            k(MPV(1, n, 1))
            if t == U - 1:
                k(f"v_add_u32 v{VA}, s37, v{VA}")
            rv = rdV(n, ((t + 1) % U) * 2560)
            G(0, 1, fill=[rv])
            k(M2(1, c))
            if t == U - 2:
                k(f"v_add_u32 v{KA}, s37, v{KA}")
                k(f"v_add_u32 v{KB}, s37, v{KB}")
            rk = rdK(c, ((t + 2) % U) * 2560)
            G(0, 2, fill=[rk[0], rk[1]])
            k(MPV(0, c, 0))
            G(0, 3)
            k(M1(0, n))
            G(1, 0)
            k(MPV(0, c, 1))
            G(1, 1)
            k(M2(0, n))
            G(1, 2)
            k(MPV(1, c, 0))
            G(1, 3)
        k("s_sub_u32 s36, s36, 1")
        k("s_cmp_lg_u32 s36, 0")
        k(f"s_cbranch_scc1 {k.ref('loop' + tag)}")
        k("s_nop 0")
        k(MPV(1, 1, 1))
    def finish(role):
        keep, give = role, 1 - role
        tg = "mh"[role]
        T_ = S[0]
        k.stamp(3)
        if fz: fz.mode_issue(12, 250)
        k(f"s_lshl_b32 s40, s33, 1")
        k(f"s_add_u32 s41, s40, {role}")
        k(f"s_add_u32 s40, s40, {1 - role}")
        k(f"s_mul_i32 s41, s41, {SLOT}")
        k(f"s_mul_i32 s40, s40, {SLOT}")
        k("v_lshlrev_b32 v4, 4, v0")
        k("v_and_b32 v5, 31, v0")
        k("v_lshlrev_b32 v5, 2, v5")
        k("v_add_u32 v16, s41, v4")
        k("v_add_u32 v17, s41, v5")
        k("v_add_u32 v18, s40, v4")
        k("v_add_u32 v19, s40, v5")
        for r in range(8, 12):
            k(f"v_mov_b32 v{T_+r}, 0")
        k("s_waitcnt lgkmcnt(0)")
        k("s_nop 7" if role == 0 else "s_nop 0")
        k(f"ds_write_b128 v16, v[{O[give]}:{O[give]+3}]")
        k(f"ds_write_b128 v16, v[{O[give]+4}:{O[give]+7}] offset:1024")
        k("s_mov_b64 exec, 0xffffffff")
        k(f"ds_write_b128 v16, v[{O[give]+8}:{O[give]+11}] offset:2048")
        k("s_not_b64 exec, exec")
        k(f"ds_write_b32 v17, v{O[give]+8} offset:2560")
        k("s_mov_b64 exec, -1")
        k("s_mul_i32 s42, s24, 5")
        k("v_lshrrev_b32 v21, 5, v0")
        k("v_add_u32 v21, s42, v21")
        k("v_lshrrev_b32 v20, 1, v21")
        k("v_lshlrev_b32 v20, 9, v20")
        k("v_and_b32 v21, 1, v21")
        k("v_lshl_add_u32 v20, v21, 3, v20")
        k("v_and_b32 v21, 31, v0")
        k("v_lshl_add_u32 v20, v21, 4, v20")
        k(f"s_add_u32 s51, s25, {keep}")
        k("s_mul_i32 s51, s51, 40960")
        k(f"s_add_u32 s51, s51, {WS_O}")
        k("s_waitcnt lgkmcnt(0)")
        k("s_barrier")
        k(f"ds_read_b128 v[{T_}:{T_+3}], v18")
        k(f"ds_read_b128 v[{T_+4}:{T_+7}], v18 offset:1024")
        k("s_mov_b64 exec, 0xffffffff")
        k(f"ds_read_b128 v[{T_+8}:{T_+11}], v18 offset:2048")
        k("s_not_b64 exec, exec")
        k(f"ds_read_b32 v{T_+8}, v19 offset:2560")
        k("s_mov_b64 exec, -1")
        Ox = O[keep]
        k("s_waitcnt lgkmcnt(2)")
        for r in range(8):
            k(f"v_add_f32 v{Ox+r}, v{Ox+r}, v{T_+r}")
        k("s_waitcnt lgkmcnt(0)")
        for r in range(8, 12):
            k(f"v_add_f32 v{Ox+r}, v{Ox+r}, v{T_+r}")
        k(f"v_mov_b32 v4, v{Ox+8}")
        k(f"v_mov_b32 v5, v{Ox+8}")
        k("v_mov_b32 v16, 0")
        k("s_nop 0")
        k("v_permlane32_swap_b32 v4, v5")
        for r in range(12):
            k(f"v_fma_f32 v16, v{Ox+r}, 0, v16")
        k(f"s_mov_b32 s40, {f2u(2.0**40):#x}")
        k(f"s_mov_b32 s41, {f2u(2.0**-40):#x}")
        k("v_cmp_eq_f32 vcc, 0, v16")
        k("v_cmp_lt_f32 s[42:43], s41, v5")
        k("v_cmp_gt_f32 s[44:45], s40, v5")
        k("s_nop 3")
        k("s_and_b64 vcc, vcc, s[42:43]")
        k("s_and_b64 vcc, vcc, s[44:45]")
        if force_slow:
            k("s_mov_b64 vcc, 0")
        k("s_cmp_eq_u64 vcc, -1")
        k(f"s_cbranch_scc0 {k.ref('slow' + tg)}")
        k.lab("fin" + tg)
        k("v_rcp_f32 v5, v5")
        k("s_nop 0")
        for r in range(0, 12, 2):
            k(f"v_pk_mul_f32 v[{Ox+r}:{Ox+r+1}], v[{Ox+r}:{Ox+r+1}], v[4:5] op_sel:[0,1] op_sel_hi:[1,1]")
        for j in range(6):
            k(f"v_cvt_pk_bf16_f32 v{22+j}, v{Ox+2*j}, v{Ox+2*j+1}")
        k("buffer_store_dwordx2 v[22:23], v20, s[12:15], s51 offen" + NS_)
        k("buffer_store_dwordx2 v[24:25], v20, s[12:15], s51 offen offset:512" + NS_)
        k("s_mov_b64 exec, 0xffffffff")
        k("buffer_store_dwordx2 v[26:27], v20, s[12:15], s51 offen offset:1024" + NS_)
        k("s_waitcnt vmcnt(0)")
        if fz:
            k("s_mov_b64 exec, -1")
            k.stamp(4)
            fz.attn_done(role)
        else:
            k.stamp(4); k.stamp_flush(6, kidx, 5, 26)
            k("s_endpgm")
        k.lab("slow" + tg)
        MX = 88
        x = keep
        lane_addrs()
        k(f"v_mov_b32 v{MX}, {f2u(-3.0e38):#x}")
        for r in range(16):
            k(f"v_mov_b32 v{O[x]+r}, 0")
        k("s_mov_b32 s36, 0")
        k.lab(f"sl{tg}")
        k(f"buffer_load_dwordx4 v[{K16[0]}:{K16[0]+3}], v{KA}, s[12:15], s50 offen")
        k(f"buffer_load_dwordx2 v[{K4[0]}:{K4[0]+1}], v{KB}, s[12:15], s50 offen")
        k("s_mov_b64 exec, s[34:35]")
        k(f"buffer_load_dwordx4 v[{V[0]}:{V[0]+3}], v{VA}, s[12:15], s50 offen")
        k(f"buffer_load_dwordx4 v[{V[0]+4}:{V[0]+7}], v{VA}, s[12:15], s50 offen offset:640")
        k("s_mov_b64 exec, -1")
        k("s_waitcnt vmcnt(0)")
        k(M1(x, 0))
        k("s_nop 7"); k("s_nop 1")
        k(M2(x, 0))
        k("s_nop 7"); k("s_nop 3")
        s = S[x]
        k(f"v_max3_f32 v4, v{s}, v{s+1}, v{s+2}")
        for i in range(3, 15, 2):
            k(f"v_max3_f32 v4, v4, v{s+i}, v{s+i+1}")
        k(f"v_max_f32 v4, v4, v{s+15}")
        k("v_mov_b32 v5, v4")
        k("s_nop 1")
        k("v_permlane32_swap_b32 v4, v5")
        k("s_nop 1")
        k(f"v_max3_f32 v4, v4, v5, v{MX}")
        k(f"v_sub_f32 v5, v{MX}, v4")
        k("v_exp_f32 v5, v5")
        k(f"v_mov_b32 v{MX}, v4")
        for i in range(16):
            k(f"v_sub_f32 v{s+i}, v{s+i}, v4")
        for i in range(16):
            k(f"v_exp_f32 v{s+i}, v{s+i}")
        for r in range(12):
            k(f"v_mul_f32 v{O[x]+r}, v{O[x]+r}, v5")
        for j in range(8):
            k(f"v_cvt_pk_bf16_f32 v{P+j}, v{s+2*j}, v{s+2*j+1}")
        k(f"v_add_u32 v{KA}, 2560, v{KA}")
        k(f"v_add_u32 v{KB}, 2560, v{KB}")
        k(f"v_add_u32 v{VA}, 2560, v{VA}")
        k("s_nop 4")
        k(MPV(x, 0, 0))
        k(MPV(x, 0, 1))
        k("s_nop 7"); k("s_nop 3")
        k("s_add_u32 s36, s36, 1")
        k("s_cmp_lt_u32 s36, 64")
        k(f"s_cbranch_scc1 {k.ref(f'sl{tg}')}")
        k(f"v_mov_b32 v4, v{O[x]+8}")
        k(f"v_mov_b32 v5, v{O[x]+8}")
        k("s_nop 1")
        k("v_permlane32_swap_b32 v4, v5")
        k("s_nop 1")
        k(f"s_branch {k.ref('fin' + tg)}")
    k("s_cmp_lt_u32 s26, 4")
    k(f"s_cbranch_scc1 {k.ref('compute')}")
    if stream:
        assert um == 4
        k("s_lshl_b32 s29, s33, 12")
        k("s_waitcnt lgkmcnt(0)")
        k.srd(12, 6, 0, WS_SIZE)
        k("s_add_u32 s32, s50, s29")
        def grp(G_):
            k(f"s_add_u32 m0, s29, {G_*16384}")
            k(f"s_add_u32 s31, s32, {G_*16384}")
            for i in range(4):
                k(f"buffer_load_dwordx4 v4, s[12:15], s31 offen offset:{i*1024} lds")
        if HPRI: k(f"s_setprio {HPRI}")
        if fz: fz.mode_publish(4)
        if fz and fz.p > 0:
            k("s_cmp_lg_u32 s33, 0")
            k(f"s_cbranch_scc1 {k.ref('nogp')}")
            fz.poll_all()
            k.lab("nogp")
            k.stamp(0)
            k("s_barrier")
        grp(0); grp(1)
        k.stamp(1)
        k("s_waitcnt vmcnt(4)")
        k("s_barrier")
        grp(2); grp(3)
        if HPRO == 1: init_regs()
        k("s_waitcnt vmcnt(8)")
        k("s_barrier")
        grp(4); grp(5)
        if HPRO == 2: init_regs()
        k("s_waitcnt vmcnt(8)")
        k("s_barrier")
        for G_ in range(6, 10): grp(G_)
        q_loads()
        if not HPRO: init_regs()
    else:
        k("s_mul_i32 s29, s33, 6144")
        k("s_mul_i32 s30, s33, 34816")
        k("s_add_u32 s30, s30, 24576")
        k("s_waitcnt lgkmcnt(0)")
        k.srd(12, 6, 0, WS_SIZE)
        k("s_mov_b32 m0, s29")
        k("s_add_u32 s31, s50, s29")
        for i in range(4):
            k(f"buffer_load_dwordx4 v4, s[12:15], s31 offen offset:{i*1024} lds")
        k("s_add_u32 m0, s29, 4096")
        k("s_add_u32 s31, s31, 4096")
        for i in range(2):
            k(f"buffer_load_dwordx4 v4, s[12:15], s31 offen offset:{i*1024} lds")
        k("s_add_u32 s32, s50, s30")
        def stB(g):
            k(f"s_add_u32 m0, s30, {g*4096}")
            k(f"s_add_u32 s31, s32, {g*4096}")
            for i in range(4 if g < 8 else 2):
                k(f"buffer_load_dwordx4 v4, s[12:15], s31 offen offset:{i*1024} lds")
        stB(0); stB(1)
        k.stamp(1)
        k("s_waitcnt vmcnt(8)")
        k("s_barrier")
        for g in range(2, 9):
            stB(g)
        q_loads()
        init_regs()
    k(f"v_add_u32 v{KA}, {TM*2560}, v{KA}")
    k(f"v_add_u32 v{KB}, {TM*2560}, v{KB}")
    k(f"v_add_u32 v{VA}, {TM*2560}, v{VA}")
    if repack and ERP == 1:
        repack_unit(k, 33, 48, 128, early=True)
        if fz: k("s_mov_b32 s64, s26")
    else:
        k("s_waitcnt vmcnt(0)")
    if HST == 2: k.stamp(0)
    if repack and RPRIO and ERP == 2: k(f"s_setprio {RPRIO}")
    if repack and RLDS:
        assert stream == 20 and 19712 + 4*8192 <= stream*2560 + 1280 and 7*SLOT <= 19712
    if repack and ERP == 2:
        def mid():
            k("s_barrier")
            k.stamp(2)
        repack_unit(k, 33, 48, 128, mid=mid, lds=(19712 if RLDS else 0))
        if fz: k("s_mov_b32 s64, s26")
    else:
        k("s_barrier")
        k.stamp(2)
    if repack and not ERP:
        if RPRIO: k(f"s_setprio {RPRIO}")
        if RLDS:
            assert stream == 20 and 19712 + 4*8192 <= stream*2560 + 1280 and 7*SLOT <= 19712
        repack_unit(k, 33, 48, 128, lds=(19712 if RLDS else 0))
        if fz: k("s_mov_b32 s64, s26")
    if pf:
        k("s_and_b32 s40, s20, 1")
        l2_prefetch(k, PF_ATT[:pf], 40, 21, 33, 42, 128, 129)
    if fz and fz.xl and "o" in PT:
        k("s_mul_i32 s40, s24, 5")
        k("s_lshr_b32 s40, s40, 1")
        k("s_lshl_b32 s40, s40, 9")
        k("s_mul_i32 s41, s25, 40960")
        k("s_add_u32 s40, s40, s41")
        k(f"s_add_u32 s40, s40, {WS_O}")
        k("v_lshlrev_b32 v90, 7, v0")
        k(f"v_add_u32 v91, {40960 - 12*128}, v90")
        k("v_cmp_gt_u32 vcc, 12, v0")
        k("s_nop 1")
        k("v_cndmask_b32 v90, v91, v90, vcc")
        k("s_mov_b64 exec, 0xffffff")
        k("buffer_load_dword v91, v90, s[12:15], s40 offen")
        k("s_mov_b64 exec, -1")
    if fz and fz.xl and "y" in PT:
        k("s_lshr_b32 s41, s25, 1")
        k("s_mul_i32 s40, s41, 81920")
        k("s_mul_i32 s42, s24, 2560")
        k("s_add_u32 s40, s40, s42")
        k(f"s_add_u32 s40, s40, {WS_X1}")
        k("v_lshlrev_b32 v92, 7, v0")
        k("s_mov_b64 exec, 0xfffff")
        k("buffer_load_dword v93, v92, s[12:15], s40 offen")
        k("s_lshr_b32 s40, s24, 1")
        k("s_lshl_b32 s40, s40, 14")
        k("s_lshl_b32 s41, s41, 9")
        k("s_add_u32 s40, s40, s41")
        k("s_and_b32 s41, s24, 1")
        k("s_lshl_b32 s41, s41, 8")
        k("s_add_u32 s40, s40, s41")
        k(f"s_add_u32 s40, s40, {WS_ST1}")
        k("s_mov_b64 exec, 3")
        k("buffer_load_dword v94, v92, s[12:15], s40 offen")
        k("s_mov_b64 exec, -1")
    if fz and fz.xl and "K" in PT and repack and QK1D:
        k("s_lshr_b32 s42, s25, 3")
        k("s_mul_i32 s40, s33, 5120")
        k("s_mul_i32 s41, s42, 20480")
        k("s_add_u32 s40, s40, s41")
        k("s_add_u32 s40, s40, s50")
        k(f"s_add_u32 s40, s40, {QK1D}")
        k("s_mul_i32 s41, s24, 81920")
        k("s_mul_i32 s42, s42, 10240")
        k("s_add_u32 s41, s41, s42")
        k("s_mul_i32 s42, s33, 2560")
        k("s_add_u32 s41, s41, s42")
        k(f"s_add_u32 s41, s41, {WS_Q + QK1D - 40*128}")
        k("v_mov_b32 v89, s41")
        k("v_mov_b32 v95, s40")
        k("v_cmp_gt_u32 vcc, 40, v0")
        k("s_nop 1")
        k("v_cndmask_b32 v89, v89, v95, vcc")
        k("v_lshlrev_b32 v95, 7, v0")
        k("v_add_u32 v89, v89, v95")
        k("s_mov_b32 exec_hi, 0xfffffff")
        k("buffer_load_dword v95, v89, s[12:15], 0 offen")
        k("s_mov_b32 exec_hi, -1")
    if fz and fz.xl and PFA and not repack:
        att_prefetch(k, PFA, 21, 33, 128, 129)
    if (phl != 0 or (repack and RPRIO) or HPRI) and not (fz and repack and HHI): k(f"s_setprio {phl}")
    if HST: k.stamp(1)
    if fz and repack:
        def hook(t):
            if HHI and t == HHI: k(f"s_setprio {phl}")
            if t == WFT[0]:
                fz.wflag_set(33, 128, younger=((("o" in PT) + 2 * ("y" in PT) + (1 if ("K" in PT and QK1D) else 0)) if (WFY and fz.xl) else 0))
                if HST == 1: k.stamp(0)
            if t == WFT[1]: fz.wflag_issue(128)
        loop("h", h, uh, None, hook)
        fz.wflag_wait(128)
    else:
        loop("h", h, uh, None)
    finish(1)
    if fz is None:
        k.lab("end")
        k("s_endpgm")
    k.lab("compute")
    if pm != 0: k(f"s_setprio {pm}")
    k("s_waitcnt lgkmcnt(0)")
    k.srd(12, 6, 0, WS_SIZE)
    if fz and fz.p > 0:
        init_regs()
        k("s_barrier")
        q_loads()
    else:
        q_loads()
        init_regs()
    k.stamp(1)
    k("s_waitcnt vmcnt(0)")
    k("s_barrier")
    k.stamp(2)
    loop("m", TM, um, [4, 8, stream] if stream else b2)
    finish(0)
    return k
```

```python
import sys
from dsl import *
import ph, hazard
from addsc import addsc
def build(which, opt):
    first = int(opt.get("first", 2))
    dbg = tuple(opt.get("dbg", "").split(",")) if opt.get("dbg") else ()
    dk = opt.get("dk", "")
    def D(name):
        if not dk: return dbg
        return dbg if any(name.startswith(p) for p in dk.split(",")) else ()
    def PFD(name):
        best = int(opt.get("pfd", 0)); bl = -1
        for key, val in opt.items():
            if key.startswith("pfd_") and name.startswith(key[4:]) and len(key) > bl: best = int(val); bl = len(key)
        return best
    def FI(name):
        best = first; bl = -1
        for key, val in opt.items():
            if key.startswith("first_") and name.startswith(key[6:]) and len(key) > bl: best = int(val); bl = len(key)
        return best
    A = lambda n, kind, l, ki: ph.gen_gemmA(n, kind, l, ki, dbg=D(n), first=FI(n), pfd=PFD(n))
    B = lambda n, kind, l, ki, **kw: ph.gen_gemmB(n, kind, l, ki, dbg=D(n), first=FI(n), pfd=PFD(n), **kw)
    if which == "a":
        return assemble([ph.gen_prep(dbg), A("qkv0_kernel", "qkv", 0, 1)])
    if which == "aq":
        return assemble([A("qkv0_kernel", "qkv", 0, 1)])
    if which == "ar":
        return assemble([ph.gen_qkv_raw("qkv0_kernel", 1, dbg=D("qkv0"), first=FI("qkv0"), pfd=PFD("qkv0"))])
    if which == "w1":
        return assemble([A("w10_kernel", "w1", 0, 4)])
    if which == "pw1":
        return assemble([ph.gen_prep(), A("w10_kernel", "w1", 0, 4)])
    if which == "attn":
        return assemble([ph.gen_attn("attn0_kernel", 2)])
    if which == "attns":
        return assemble([ph.gen_attn("attn0_kernel", 2, pack="sdwa")])
    if which == "attnf":
        return assemble([ph.gen_attn("attn0_kernel", 2, force_slow=True)])
    if which == "attn2":
        return assemble([ph.gen_attn2("attn0_kernel", 2)])
    if which == "attn2s":
        return assemble([ph.gen_attn2("attn0_kernel", 2, pack="sdwa")])
    if which == "attn2f":
        return assemble([ph.gen_attn2("attn0_kernel", 2, force_slow=True)])
    if which in ("attn3", "attn3f"):
        return assemble([ph.gen_attn3("attn0_kernel", 2, force_slow=(which == "attn3f"), **attn_opts(opt))])
    if which == "wo":
        return assemble([B("wo0_kernel", "wo", 0, 3)])
    if which == "w2":
        return assemble([B("w20_kernel", "w2", 0, 5)])
    if which == "w21":
        return assemble([B("w21_kernel", "w2", 1, 10)])
    if which == "full":
        raw = "raw" in opt
        ks = [] if raw else [ph.gen_prep()]
        at = opt.get("attn", "2")
        for l in range(2):
            r0 = raw and l == 0
            fa = "fa" in opt
            if fa and "f2" in opt:
                assert raw and "xl" in opt
                ph.NFLAGSET = 16
                if l == 0:
                    ks += [ph.gen_qkv_raw("qkv0_kernel", 1, dbg=D("qkv0"), first=FI("qkv0"), zflags=True, pfd=PFD("qkv0"))]
                    fz = ph.Fuse("f0_kernel", 9, 2, xl=True, modeset=10, force_slow="fslow" in opt, sleep=int(opt.get("sleep", 1)), xplain="xplain" in opt, attn_first=True)
                fb = 5 * l
                GS = 9
                ph.QKD = (20 * MB if l == 1 else 0)
                fz.begin(wait=(GS if l == 1 else None), sig=fb + 0)
                ph.gen_attn3("attn", 2 + 5*l, pf=(int(opt.get("pf0", 0)) if r0 else int(opt.get("pf", 0))), repack=r0, fz=fz, **attn_opts(opt))
                fz.begin(wait=fb + 0, sig=fb + 2, rot=1)
                ph.gen_gemmB("wo", "wo", l, 0, dbg=D(f"wo{l}"), first=2, rawres=r0, fz=fz)
                fz.begin(wait=fb + 2, sig=fb + 3, rot=3)
                ph.gen_gemmA("w1", "w1", l, 0, dbg=D(f"w1{l}"), first=2, fz=fz)
                fz.begin(wait=fb + 3, sig=(fb + 4 if l == 0 else None), rot=1)
                ph.gen_gemmB("w2", "w2", l, 0, dbg=D(f"w2{l}"), first=2, fz=fz)
                if l == 0:
                    ph.QKD = 20 * MB
                    fz.begin(wait=fb + 4, sig=GS, rot=2, glob=True)
                    ph.gen_gemmA("qkv", "qkv", 1, 0, dbg=D("qkv1"), first=2, fz=fz)
                else:
                    ks += [fz.close()]
                continue
            if fa:
                assert raw and "xl" in opt
                ph.NFLAGSET = 16
                if l == 0:
                    ks += [ph.gen_qkv_raw("qkv0_kernel", 1, dbg=D("qkv0"), first=FI("qkv0"), zflags=True, pfd=PFD("qkv0"))]
                nph = 5 if l == 0 else 4
                fz = ph.Fuse(f"f{l}_kernel", nph, 2 + 5*l, xl=True, modeset=10 + l, force_slow="fslow" in opt, sleep=int(opt.get("sleep", 1)), xplain="xplain" in opt, attn_first=True)
                fb = 5 * l
                fz.begin(wait=None, sig=fb + 0)
                ph.gen_attn3("attn", 2 + 5*l, pf=(int(opt.get("pf0", 0)) if r0 else int(opt.get("pf", 0))), repack=r0, fz=fz, **attn_opts(opt))
                fz.begin(wait=fb + 0, sig=fb + 2, rot=1)
                ph.gen_gemmB("wo", "wo", l, 0, dbg=D(f"wo{l}"), first=2, rawres=r0, fz=fz)
                fz.begin(wait=fb + 2, sig=fb + 3, rot=3)
                ph.gen_gemmA("w1", "w1", l, 0, dbg=D(f"w1{l}"), first=2, fz=fz)
                fz.begin(wait=fb + 3, sig=(fb + 4 if l == 0 else None), rot=1)
                ph.gen_gemmB("w2", "w2", l, 0, dbg=D(f"w2{l}"), first=2, fz=fz)
                if l == 0:
                    fz.begin(wait=fb + 4, sig=None, rot=2)
                    ph.gen_gemmA("qkv", "qkv", 1, 0, dbg=D("qkv1"), first=2, fz=fz)
                ks += [fz.close()]
                continue
            if at == "2": a = ph.gen_attn2(f"attn{l}_kernel", 2 + 5*l, pf=int(opt.get("pf", 0)))
            else: a = ph.gen_attn3(f"attn{l}_kernel", 2 + 5*l, pf=(int(opt.get("pf0", 0)) if r0 else int(opt.get("pf", 0))), repack=r0, **attn_opts(opt))
            fuse = int(opt.get("fuse", 0))
            if fuse:
                if l == 0:
                    ks += [ph.gen_qkv_raw("qkv0_kernel", 1, dbg=D("qkv0"), first=FI("qkv0"), zflags=True, pfd=PFD("qkv0"))]
                elif fuse < 3:
                    ks += [A("qkv1_kernel", "qkv", 1, 6)]
                ks += [a]
                nph = 2 if fuse == 1 else (4 if (fuse == 3 and l == 0) else 3)
                xl = "xl" in opt; pw = "pfw" in opt
                fz = ph.Fuse(f"f{l}_kernel", nph, 3 + 5*l, xl=xl, modeset=6 + l, force_slow="fslow" in opt, sleep=int(opt.get("sleep", 1)), xplain="xplain" in opt)
                fb = 3 * l
                W1, W2, WQ = (ph.WS_W1, 1536*1280), (ph.WS_W2, 1536*1280), (ph.WS_WQ, 1920*1280)
                fz.begin(wait=None, sig=fb + 0, rot=0, pfw=(W1 if pw else None))
                ph.gen_gemmB("wo", "wo", l, 0, dbg=D(f"wo{l}"), first=2, rawres=r0, fz=fz)
                fz.begin(wait=fb + 0, sig=(fb + 1 if nph > 2 else None), rot=2, pfw=(W2 if pw and nph > 2 else None))
                ph.gen_gemmA("w1", "w1", l, 0, dbg=D(f"w1{l}"), first=2, fz=fz)
                if nph > 2:
                    fz.begin(wait=fb + 1, sig=(fb + 2 if nph > 3 else None), rot=0, pfw=(WQ if pw and nph > 3 else None))
                    ph.gen_gemmB("w2", "w2", l, 0, dbg=D(f"w2{l}"), first=2, fz=fz)
                if nph > 3:
                    fz.begin(wait=fb + 2, sig=None, rot=0)
                    ph.gen_gemmA("qkv", "qkv", 1, 0, dbg=D("qkv1"), first=2, fz=fz)
                ks += [fz.close()]
                if nph == 2:
                    ks += [B(f"w2{l}_kernel", "w2", l, 5 + 5*l)]
                continue
            q = ph.gen_qkv_raw(f"qkv{l}_kernel", 1 + 5*l, dbg=D(f"qkv{l}"), first=FI(f"qkv{l}"), pfd=PFD(f"qkv{l}")) if r0 else A(f"qkv{l}_kernel", "qkv", l, 1 + 5*l)
            wo = B(f"wo{l}_kernel", "wo", l, 3 + 5*l, rawres=r0)
            ks += [q, a, wo, A(f"w1{l}_kernel", "w1", l, 4 + 5*l),
                   B(f"w2{l}_kernel", "w2", l, 5 + 5*l)]
        return assemble(ks)
def attn_opts(opt):
    o = {}
    for key in ("h", "um", "uh", "pm", "phl", "b2", "amap", "stream"):
        if key in opt: o[key] = int(opt[key])
    return o
if __name__ == "__main__":
    which = sys.argv[1]; out = sys.argv[2]
    opt = {}
    for a in sys.argv[3:]:
        if "=" in a:
            x, y = a.split("=", 1); opt[x] = y
        else: opt[a] = "1"
    Kern.PROF = "prof" in opt
    if "f2" in opt: ph.WS_SIZE = 50 * MB; ph.QK1D = 20 * MB
    ph.EW = (dict(zip(("wo", "w1", "w2", "qkv"), [int(c) for c in (opt["ew"] * 4)[:4]])) if opt.get("ew") else 0); ph.EWL = dict(zip(("wo", "w1", "w2", "qkv"), [int(c) for c in (opt.get("ewl", "0") * 4)[:4]])); ph.GSLEEP = int(opt.get("gsleep", 1)); ph.KROT = int(opt.get("krot", 0)); ph.XST = int(opt.get("xst", 0))
    ph.PFS = int(opt.get("pfs", 128))
    ph.KVPAD = int(opt.get("kvpad", 0))
    ph.LINST = int(opt.get("lin", 0))
    ph.PFA = opt.get("pfa", ""); ph.RINGD = int(opt.get("ringd", 0))
    ph.QST = int(opt.get("qst", 0)); ph.QEXP = int(opt.get("qexp", 0)); ph.QLATE = int(opt.get("qlate", 3))
    ph.XSC = opt.get("xsc", ""); ph.PT = opt.get("pt", ""); ph.OUTP = int(opt.get("outp", 0))
    ph.ERP = int(opt.get("erp", 0)); ph.Q0T = opt.get("q0t", ""); ph.Q0L = int(opt.get("q0l", 0)); ph.HST = int(opt.get("hst", 0)); ph.HHI = int(opt.get("hhi", 0)); ph.HPRI = int(opt.get("hpri", 0)); ph.HPRO = int(opt.get("hpro", 0)); ph.WFY = int(opt.get("wfy", 0)); ph.RLDS = int(opt.get("rlds", 0)); ph.RPRIO = int(opt.get("rprio", 0)); ph.WFT = tuple(int(x) for x in opt.get("wft", "2,6").split(","))
    ph.CW = int(opt.get("cw", 0)); ph.CWN = int(opt.get("cwn", 2))
    t = build(which, opt)
    if "sc1" in opt: t = addsc(t)
    if "scb" in opt: t = addsc(t, opt["scb"].replace("+", " "))
    open(out, "w").write(t)
    bad = hazard.check(t)
    print(out, "hazards:", len(bad), "bytes:", len(t))
    for b in bad[:10]: print(b)
```

```python
from dsl import *
import struct
def f2u(x):
    return struct.unpack("<I", struct.pack("<f", x))[0]

KB = 1024
WS_WQ = 0
WS_W1 = 3 * MB
WS_WO = 5 * MB
WS_W2 = 6 * MB
WS_CSQ = 8 * MB
WS_CS1 = 8 * MB + 128 * KB
WS_ST0 = 8 * MB + 256 * KB
WS_ST1 = 8 * MB + 512 * KB
WS_X0 = 9 * MB
WS_X1 = 12 * MB
WS_X2 = 15 * MB
WS_O = 18 * MB
WS_Q = 21 * MB
WS_KV = 24 * MB
WS_H = 30 * MB
X_BYTES = 2048 * 640 * 2
H_BYTES = 2048 * 1536 * 2
ST_BYTES = 16 * 2048 * 8
Q_BYTES = 32 * 64 * 1280
KV_BYTES = 32 * 64 * 2560
WS_SIZE = 40 * MB
QSCALE = (20 ** -0.5) * 1.4426950408889634
KVPAD = 0
LINST = 0
QST = 0
QEXP = 0
QLATE = 3
Q0T = ""; Q0L = 0; HST = 0; HHI = 0; HPRI = 0; HPRO = 0; WFY = 0; RLDS = 0; RPRIO = 0; WFT = (2, 6)
ERP = 0
NCSP = 10

def wave_id(k, sreg, vtmp=1):
    k(f"v_lshrrev_b32 v{vtmp}, 6, v0")
    k("s_nop 0")
    k(f"v_readfirstlane_b32 s{sreg}, v{vtmp}")
    k("v_and_b32 v0, 63, v0")

def gen_prep(dbg=()):
    NWG = 220
    k = Kern("prep_kernel", NWG, 512, 4 * 8192, vgpr=64)
    k(f"s_cmp_ge_u32 s2, {NWG}")
    k(f"s_cbranch_scc1 {k.ref('end')}")
    k.karg(4, 0)
    k.karg(6, 8)
    k.karg(8, 16)
    k.karg(10, 32)
    k.karg(12, 48)
    k.karg(14, 80)
    wave_id(k, 26)
    k("s_waitcnt lgkmcnt(0)")
    k.srd(16, 14, 0, WS_SIZE)
    k("s_cmp_ge_u32 s26, 4")
    k(f"s_cbranch_scc1 {k.ref('stats')}")
    if "now" in dbg: k(f"s_branch {k.ref('end')}")
    k("s_lshl_b32 s3, s2, 2")
    k("s_add_u32 s3, s3, s26")
    def setup(lbl, lo, ncg, ptr, size, pitch, TN, K, dst, cs, csp):
        k.lab(lbl)
        k(f"s_sub_u32 s3, s3, {lo}")
        k.srd(20, ptr, 0, size)
        k(f"s_mov_b32 s27, {pitch}")
        k(f"s_mov_b32 s28, {(65536 + TN - 1)//TN}")
        k(f"s_mov_b32 s29, {TN}")
        k(f"s_mov_b32 s30, {K//8*TN*16}")
        k(f"s_mov_b32 s31, {dst}")
        k(f"s_mul_i32 s32, s3, {(65536 + ncg - 1)//ncg}")
        k("s_lshr_b32 s32, s32, 16")
        k(f"s_mul_i32 s33, s32, {ncg}")
        k("s_sub_u32 s33, s3, s33")
        k(f"s_mov_b32 s34, {cs if cs is not None else 0xffffffff:#x}")
        k(f"s_mov_b32 s35, {csp}")
        k(f"s_branch {k.ref('go')}")
    k("s_cmp_ge_u32 s3, 640"); k(f"s_cbranch_scc1 {k.ref('m_w2')}")
    k("s_cmp_ge_u32 s3, 540"); k(f"s_cbranch_scc1 {k.ref('m_wo')}")
    k("s_cmp_ge_u32 s3, 300"); k(f"s_cbranch_scc1 {k.ref('m_w1')}")
    setup("m_wq", 0, 30, 6, 640 * 3840, 3840, 128, 640, WS_WQ, WS_CSQ, 1920 * 4)
    setup("m_w1", 300, 24, 10, 640 * 3072, 3072, 96, 640, WS_W1, WS_CS1, 1536 * 4)
    setup("m_wo", 540, 10, 8, 640 * 1280, 1280, 80, 640, WS_WO, None, 0)
    setup("m_w2", 640, 10, 12, 1536 * 1280, 1280, 80, 1536, WS_W2, None, 0)
    k.lab("go")
    k("v_lshrrev_b32 v2, 3, v0")
    k("v_mul_lo_u32 v2, v2, s27")
    k("v_and_b32 v3, 7, v0")
    k("v_lshl_add_u32 v2, v3, 4, v2")
    k("s_lshl_b32 s36, s32, 6")
    k("s_mul_i32 s36, s36, s27")
    k("s_lshl_b32 s37, s33, 7")
    k("s_add_u32 s36, s36, s37")
    k("s_lshl_b32 s38, s27, 3")
    k("s_lshl_b32 s39, s26, 13")
    for j in range(8):
        k(f"s_add_u32 m0, s39, {j*1024}")
        k("s_nop 0")
        k("buffer_load_dwordx4 v2, s[20:23], s36 offen lds")
        if j < 7:
            k("s_add_u32 s36, s36, s38")
    k("s_lshl_b32 s40, s33, 6")
    k("v_add_u32 v4, s40, v0")
    k("v_mul_lo_u32 v5, v4, s28")
    k("v_lshrrev_b32 v5, 16, v5")
    k("v_mul_lo_u32 v6, v5, s29")
    k("v_sub_u32 v6, v4, v6")
    k("v_mul_lo_u32 v5, v5, s30")
    k("v_lshl_add_u32 v5, v6, 4, v5")
    k("s_lshl_b32 s41, s29, 4")
    k("s_lshl_b32 s42, s32, 3")
    k("s_mul_i32 s42, s42, s41")
    k("s_add_u32 s42, s42, s31")
    k("v_bfe_u32 v7, v0, 2, 2")
    k("v_lshlrev_b32 v7, 7, v7")
    k("v_lshrrev_b32 v8, 4, v0")
    k("v_lshl_add_u32 v7, v8, 5, v7")
    k("v_and_b32 v8, 3, v0")
    k("v_lshl_add_u32 v7, v8, 3, v7")
    k("v_add_u32 v7, s39, v7")
    k("v_mov_b32 v10, 0")
    for ku in range(8):
        k(f"s_waitcnt vmcnt({7-ku if ku == 0 else 7})") if False else None
    for ku in range(8):
        k("s_waitcnt vmcnt(7)")
        r = 16 + 4 * ku
        k(f"ds_read_b64_tr_b16 v[{r}:{r+1}], v7 offset:{ku*1024}")
        k(f"ds_read_b64_tr_b16 v[{r+2}:{r+3}], v7 offset:{ku*1024+512}")
        k("s_waitcnt lgkmcnt(0)")
        k(f"buffer_store_dwordx4 v[{r}:{r+3}], v5, s[16:19], s42 offen")
        if ku < 7:
            k("s_add_u32 s42, s42, s41")
    k("s_cmp_eq_u32 s34, 0xffffffff")
    k(f"s_cbranch_scc1 {k.ref('fin')}")
    for i in range(32):
        r = 16 + i
        k(f"v_lshlrev_b32 v8, 16, v{r}")
        k(f"v_and_b32 v9, 0xffff0000, v{r}")
        k("v_add_f32 v10, v10, v8")
        k("v_add_f32 v10, v10, v9")
    k("s_mul_i32 s43, s32, s35")
    k("s_add_u32 s43, s43, s34")
    k("v_lshlrev_b32 v4, 2, v4")
    k("buffer_store_dword v10, v4, s[16:19], s43 offen")
    k.lab("fin")
    k("s_waitcnt vmcnt(0)")
    k("s_endpgm")
    k.lab("stats")
    if "nox" in dbg: k(f"s_branch {k.ref('end')}")
    k("s_cmp_ge_u32 s2, 128")
    k(f"s_cbranch_scc1 {k.ref('end')}")
    k.srd(20, 4, 0, X_BYTES)
    k("s_sub_u32 s26, s26, 4")
    k("s_lshl_b32 s3, s2, 4")
    k("s_lshl_b32 s27, s26, 2")
    k("s_add_u32 s3, s3, s27")
    k("v_lshrrev_b32 v1, 4, v0")
    k("v_add_u32 v1, s3, v1")
    k("v_and_b32 v2, 15, v0")
    k("v_mul_u32_u24 v3, 1280, v1")
    k("v_lshl_add_u32 v3, v2, 4, v3")
    for i in range(5):
        k(f"buffer_load_dwordx4 v[{8+4*i}:{11+4*i}], v3, s[20:23], 0 offen offset:{256*i}")
    k("v_lshrrev_b32 v30, 5, v1")
    k("v_mul_u32_u24 v30, 40960, v30")
    k("v_and_b32 v31, 31, v1")
    k("v_lshl_add_u32 v30, v31, 4, v30")
    k("v_lshl_add_u32 v30, v2, 9, v30")
    k("v_mov_b32 v4, 0")
    k("v_mov_b32 v5, 0")
    for i in range(5):
        k(f"s_waitcnt vmcnt(4)")
        k(f"s_mov_b32 s28, {WS_X0 + i*8192}")
        k(f"buffer_store_dwordx4 v[{8+4*i}:{11+4*i}], v30, s[16:19], s28 offen")
        for j in range(4):
            r = 8 + 4 * i + j
            k(f"v_lshlrev_b32 v6, 16, v{r}")
            k(f"v_and_b32 v7, 0xffff0000, v{r}")
            k("v_add_f32 v4, v4, v6")
            k("v_fmac_f32 v5, v6, v6")
            k("v_add_f32 v4, v4, v7")
            k("v_fmac_f32 v5, v7, v7")
    for sh in (8, 4, 2, 1):
        k("s_nop 1")
        k(f"v_add_f32_dpp v4, v4, v4 row_ror:{sh} row_mask:0xf bank_mask:0xf")
        k(f"v_add_f32_dpp v5, v5, v5 row_ror:{sh} row_mask:0xf bank_mask:0xf")
    k("v_lshlrev_b32 v3, 3, v1")
    k("v_cmp_eq_u32 vcc, 0, v2")
    k("s_and_saveexec_b64 s[30:31], vcc")
    k(f"s_mov_b32 s28, {WS_ST0}")
    k("buffer_store_dwordx2 v[4:5], v3, s[16:19], s28 offen")
    k("s_waitcnt vmcnt(0)")
    k.lab("end")
    k("s_endpgm")
    return k

def ring_loader(k, NCH, NSLOT, dma, nD, pre_b0=None, post_b0=None, first=2, pre_issue=None, fz=None, tail=None):
    if pre_issue:
        w = pre_issue()
    else:
        for c_ in range(first):
            dma(c_)
        w = nD*(first-1)
    k(f"s_waitcnt vmcnt({w})")
    if pre_b0: pre_b0()
    k("s_barrier")
    issued = first
    if post_b0: post_b0()
    ring_tail(k, NCH, NSLOT, dma, nD, issued, fz, tail)

def ring_tail(k, NCH, NSLOT, dma, nD, issued, fz=None, tail=None):
    npf = 0
    for i in range(1, NCH):
        while issued < NCH and issued <= i - 2 + NSLOT - RINGD:
            dma(issued); issued += 1
            if issued == NCH and fz:
                npf = fz.prefetch_w()
                if fz.tail: npf += fz.tail()
            if issued == NCH and tail: npf = tail()
        k(f"s_waitcnt vmcnt({(issued - 1 - i) * nD + npf})")
        k("s_barrier")


WS_FLAG = 8 * MB + 768 * KB
NFLAGSET = 8
WSET = 12
LDS_CNT = 147456
POLL_MAX = 0x4000
QKD = 0
GSLEEP = 1
KROT = 0
QK1D = 0
class Fuse:
    def __init__(self, name, nph, kidx0, xl=False, modeset=None, force_slow=False, sleep=1, xplain=False, attn_first=False):
        self.attn_first = attn_first
        self.k = Kern(name, 256, 512, 163840 if attn_first else LDS_CNT + 256, vgpr=256)
        self.k.fused = True
        self.nph, self.kidx0, self.p = nph, kidx0, -1
        self.xl, self.modeset, self.force_slow, self.sleep = xl, modeset, force_slow, sleep
        self.xplain = xplain and xl
    def begin(self, wait=None, sig=None, rot=0, pfw=None, glob=False):
        self.p += 1
        self.wait, self.sig, self.rot, self.pfw = wait, sig, rot, pfw
        self.glob = glob
        self.tail = None
        k = self.k
        if self.p == 0:
            k.pfx = ""
            k("s_cmp_ge_u32 s2, 256")
            k(f"s_cbranch_scc1 {k.ref('fin')}")
            k.karg(6, 80)
            wave_id(k, 64)
            if not self.attn_first:
                k(f"v_mov_b32 v1, {LDS_CNT}")
                k("v_mov_b32 v2, 0")
                k("ds_write_b32 v1, v2")
        k.pfx = f"p{self.p}_"
        k.lab("entry")
        k.stamp(0)
        k("s_mov_b32 s26, s64")
    @property
    def last(self): return self.p == self.nph - 1
    def nxt(self): return f"{self.k.name}_p{self.p+1}_entry"
    def leave(self):
        k = self.k
        k.stamp_save(self.p)
        if self.last:
            k.stamp_flush_all(6, self.kidx0, self.nph, 64)
            k("s_endpgm")
        else:
            k(f"s_branch {self.nxt()}")
    def skip_to_end(self):
        if self.last: self.k(f"s_cbranch_scc1 {self.k.name}_skip")
        else: self.k(f"s_cbranch_scc1 {self.nxt()}")
    def close(self):
        k = self.k
        k.pfx = ""
        k.lab("skip")
        k.stamp_flush_all(6, self.kidx0, self.nph, 64)
        k.lab("fin")
        k("s_endpgm")
        return k
    def mode_word(self, d):
        k = self.k
        k(f"s_and_b32 s{d}, s2, 7")
        k(f"s_lshl_b32 s{d}, s{d}, 7")
        k(f"s_add_u32 s{d}, s{d}, {WS_FLAG + self.modeset*4096}")
    def mode_token(self, d, t):
        k = self.k
        k(f"s_getreg_b32 s{t}, hwreg(HW_REG_XCC_ID, 0, 4)")
        k(f"s_mul_i32 s{d}, s{t}, s{t}")
        k(f"s_lshl_b32 s{d}, s{d}, 16")
        k(f"s_lshl_b32 s{t}, s{t}, 6")
        k(f"s_add_u32 s{d}, s{d}, s{t}")
        k(f"s_add_u32 s{d}, s{d}, 1")
    def mode_publish(self, w0=0):
        if not (self.xl and self.p == 0): return
        k = self.k
        k(f"s_cmp_lg_u32 s26, {w0}")
        k(f"s_cbranch_scc1 {k.ref('nopub')}")
        self.mode_token(65, 66)
        self.mode_word(66)
        k("s_mov_b64 exec, 1")
        k("v_mov_b32 v10, s65")
        k("buffer_atomic_add v10, off, s[12:15], s66 sc1")
        k("s_mov_b64 exec, -1")
        k.lab("nopub")
    def mode_issue(self, srd, vd):
        k = self.k
        self.mode_word(62)
        k(f"buffer_load_dword v{vd}, off, s[{srd}:{srd+3}], s62 sc1")
    def mode_resolve(self, srd, vd):
        k = self.k
        l0, l1 = k.newlab("mpoll"), k.newlab("mpolled")
        self.mode_word(62)
        k(f"s_mov_b32 s65, {POLL_MAX}")
        k.lab(l0)
        k(f"v_readfirstlane_b32 s67, v{vd}")
        k("s_and_b32 s66, s67, 63")
        k("s_cmp_eq_u32 s66, 32")
        k(f"s_cbranch_scc1 {k.ref(l1)}")
        k("s_sleep 2")
        k(f"buffer_load_dword v{vd}, off, s[{srd}:{srd+3}], s62 sc1")
        k("s_waitcnt vmcnt(0)")
        k("s_sub_u32 s65, s65, 1")
        k(f"s_cbranch_scc0 {k.ref(l0)}")
        k.lab(l1)
        self.mode_token(65, 66)
        k("s_lshl_b32 s65, s65, 5")
        k("s_cmp_lg_u32 s65, s67")
        k("s_cselect_b32 s63, 1, 0")
        if self.force_slow: k("s_mov_b32 s63, 1")
    def prefetch_w(self):
        if not self.pfw: return 0
        k = self.k
        base, nb = self.pfw
        per_w = nb // 128
        lines = (per_w + 127) // 128
        k("s_lshr_b32 s65, s2, 3")
        k("s_lshl_b32 s65, s65, 2")
        k("s_add_u32 s65, s65, s26")
        k(f"s_mul_i32 s65, s65, {per_w}")
        k(f"s_add_u32 s65, s65, {base}")
        k("v_lshlrev_b32 v12, 7, v0")
        n = 0
        done = 0
        while done < lines:
            n_ = min(64, lines - done)
            if n_ < 64: k(f"s_mov_b64 exec, {(1 << n_) - 1:#x}") if n_ <= 32 else (k(f"s_mov_b32 exec_hi, {((1 << n_) - 1) >> 32:#x}"))
            k(f"buffer_load_dword v{13+n}, v12, s[12:15], s65 offen")
            if n_ < 64: k("s_mov_b64 exec, -1")
            done += n_; n += 1
            if done < lines: k(f"s_add_u32 s65, s65, {64*128}")
        return n
    def poll(self, line, nprod):
        k = self.k
        if self.xl and self.p == 1 and not self.attn_first:
            k(f"s_mov_b32 s61, s{line}")
            self.mode_issue(12, 11)
            k("s_waitcnt vmcnt(0)")
            self.mode_resolve(12, 11)
            line = 61
        k(f"s_lshl_b32 s66, s{line}, 7")
        k(f"s_add_u32 s66, s66, {WS_FLAG + self.wait*4096}")
        k("v_lshlrev_b32 v10, 2, v0")
        k(f"s_mov_b64 exec, {(1 << nprod) - 1:#x}")
        k(f"s_mov_b32 s65, {POLL_MAX}")
        k.lab("poll")
        k("buffer_load_dword v11, v10, s[12:15], s66 offen sc1")
        k("s_waitcnt vmcnt(0)")
        k("v_cmp_ne_u32 vcc, 0, v11")
        k(f"s_cmp_eq_u32 vcc_lo, {(1 << nprod) - 1:#x}")
        k(f"s_cbranch_scc1 {k.ref('polled')}")
        k(f"s_sleep {self.sleep}")
        k("s_sub_u32 s65, s65, 1")
        k(f"s_cbranch_scc0 {k.ref('poll')}")
        k.lab("polled")
        k("s_mov_b64 exec, -1")
        if self.xl:
            k("s_cmp_eq_u32 s63, 0")
            k(f"s_cbranch_scc1 {k.ref('noacq')}")
            k("buffer_inv sc1")
            k("s_waitcnt vmcnt(0)")
            k.lab("noacq")
        k.stamp(3)
    def poll_group(self):
        k = self.k
        k("s_and_b32 s66, s2, 7")
        k("s_lshl_b32 s66, s66, 7")
        k(f"s_add_u32 s66, s66, {WS_FLAG + self.wait*4096}")
        k(f"s_mov_b32 s65, {POLL_MAX}")
        k.lab("lpoll")
        k("buffer_load_dword v11, off, s[12:15], s66 sc1")
        k("s_waitcnt vmcnt(0)")
        k("v_readfirstlane_b32 s67, v11")
        k("s_cmp_ge_u32 s67, 30")
        k(f"s_cbranch_scc1 {k.ref('lpolled')}")
        k(f"s_sleep {GSLEEP}")
        k("s_sub_u32 s65, s65, 1")
        k(f"s_cbranch_scc0 {k.ref('lpoll')}")
        k.lab("lpolled")
        k("s_cmp_eq_u32 s63, 0")
        k(f"s_cbranch_scc1 {k.ref('lnoacq')}")
        k("buffer_inv sc1")
        k("s_waitcnt vmcnt(0)")
        k.lab("lnoacq")
    def poll_all(self):
        k = self.k
        k("s_and_b32 s66, s2, 7")
        k("s_lshl_b32 s66, s66, 7")
        k(f"s_add_u32 s66, s66, {WS_FLAG + self.wait*4096 + 2048}")
        k("v_lshlrev_b32 v10, 2, v0")
        k("s_mov_b64 exec, 0xff")
        k(f"s_mov_b32 s65, {POLL_MAX}")
        k.lab("gpoll")
        k("buffer_load_dword v11, v10, s[12:15], s66 offen sc1")
        k("s_waitcnt vmcnt(0)")
        k("v_cmp_ne_u32 vcc, 0, v11")
        k("s_nop 1")
        k("s_cmp_eq_u32 vcc_lo, 0xff")
        k(f"s_cbranch_scc1 {k.ref('gpolled')}")
        k(f"s_sleep {GSLEEP}")
        k("s_sub_u32 s65, s65, 1")
        k(f"s_cbranch_scc0 {k.ref('gpoll')}")
        k.lab("gpolled")
        k("v_cmp_lt_u32 vcc, 1, v11")
        k("s_nop 1")
        k("s_cmp_eq_u32 vcc_lo, 0")
        k("s_mov_b64 exec, -1")
        k(f"s_cbranch_scc1 {k.ref('gnoacq')}")
        k("buffer_inv sc1")
        k("s_waitcnt vmcnt(0)")
        k.lab("gnoacq")
    def signal(self):
        k = self.k
        l = k.newlab("nosig")
        k("s_mov_b64 exec, 1")
        k(f"v_mov_b32 v1, {LDS_CNT}")
        k("v_mov_b32 v2, 1")
        k("ds_add_rtn_u32 v3, v1, v2")
        k("s_lshl_b32 s37, s24, 7")
        k("s_lshl_b32 s38, s25, 2")
        k("s_add_u32 s37, s37, s38")
        k(f"s_add_u32 s37, s37, {WS_FLAG + self.sig*4096}")
        k("s_waitcnt lgkmcnt(0)")
        k("v_readfirstlane_b32 s38, v3")
        k("s_and_b32 s38, s38, 3")
        k("s_cmp_eq_u32 s38, 3")
        k(f"s_cbranch_scc0 {k.ref(l)}")
        if self.glob:
            assert self.xl
            l2, l3 = k.newlab("fastsig"), k.newlab("arrived")
            k("s_and_b32 s39, s2, 7")
            k("s_lshl_b32 s37, s39, 7")
            k(f"s_add_u32 s37, s37, {WS_FLAG + self.sig*4096}")
            k("s_cmp_eq_u32 s63, 0")
            k(f"s_cbranch_scc1 {k.ref(l2)}")
            k("buffer_wbl2 sc1")
            k("s_waitcnt vmcnt(0)")
            k("buffer_atomic_add v2, off, s[48:51], s37 sc0 sc1")
            k(f"s_branch {k.ref(l3)}")
            k.lab(l2)
            k("buffer_atomic_add v2, off, s[48:51], s37 sc0")
            k.lab(l3)
            k("s_lshl_b32 s37, s39, 2")
            k(f"s_add_u32 s37, s37, {WS_FLAG + self.sig*4096 + 2048}")
            k("s_add_u32 s39, s63, 1")
            k("s_waitcnt vmcnt(0)")
            k("v_readfirstlane_b32 s38, v2")
            k("s_cmp_eq_u32 s38, 29")
            k(f"s_cbranch_scc0 {k.ref(l)}")
            k("s_mov_b64 exec, 0xff")
            k("v_lshlrev_b32 v1, 7, v0")
            k("v_mov_b32 v2, s39")
            k("buffer_store_dword v2, v1, s[48:51], s37 offen sc1")
        elif self.xl:
            l2 = k.newlab("fastsig")
            k("s_cmp_eq_u32 s63, 0")
            k(f"s_cbranch_scc1 {k.ref(l2)}")
            k("buffer_wbl2 sc1")
            k("s_waitcnt vmcnt(0)")
            k("buffer_store_dword v2, off, s[48:51], s37 sc1")
            k(f"s_branch {k.ref(l)}")
            k.lab(l2)
            k("buffer_store_dword v2, off, s[48:51], s37 ; nosc")
        else:
            k("buffer_store_dword v2, off, s[48:51], s37 sc1")
        k.lab(l)
        k("s_mov_b64 exec, -1")

    def attn_done(self, role):
        k = self.k
        self.mode_resolve(12, 250)
        l, l2 = k.newlab("asig"), k.newlab("afast")
        k(f"s_add_u32 s37, s25, {role}")
        k("s_lshl_b32 s37, s37, 7")
        k("s_lshl_b32 s38, s24, 2")
        k("s_add_u32 s37, s37, s38")
        k(f"s_add_u32 s37, s37, {WS_FLAG + self.sig*4096}")
        k("s_mov_b64 exec, 1")
        k("v_mov_b32 v2, 1")
        k("s_cmp_eq_u32 s63, 0")
        k(f"s_cbranch_scc1 {k.ref(l2)}")
        k("buffer_wbl2 sc1")
        k("s_waitcnt vmcnt(0)")
        k("buffer_store_dword v2, off, s[12:15], s37 sc1")
        k(f"s_branch {k.ref(l)}")
        k.lab(l2)
        k("buffer_store_dword v2, off, s[12:15], s37 ; nosc")
        k.lab(l)
        if role == 0:
            k(f"v_mov_b32 v1, {LDS_CNT}")
            k("v_mov_b32 v2, 0")
            k("ds_write_b32 v1, v2")
            k("s_waitcnt lgkmcnt(0)")
        k("s_mov_b64 exec, -1")
        k("s_setprio 0")
        self.leave()
    def wflag_set(self, lw, v, younger=0):
        k = self.k
        k(f"s_waitcnt vmcnt({younger})")
        k("s_lshl_b32 s52, s2, 2")
        k(f"s_add_u32 s52, s52, s{lw}")
        k("s_lshl_b32 s52, s52, 2")
        k(f"s_add_u32 s52, s52, {WS_FLAG + WSET*4096}")
        k("s_mov_b64 exec, 1")
        k(f"v_mov_b32 v{v}, 1")
        k(f"buffer_store_dword v{v}, off, s[12:15], s52 sc1")
        k("s_mov_b64 exec, -1")
    def wflag_issue(self, v):
        k = self.k
        k(f"v_lshlrev_b32 v{v+16}, 4, v0")
        k(f"s_mov_b32 s52, {WS_FLAG + WSET*4096}")
        for i in range(4):
            k(f"buffer_load_dwordx4 v[{v+4*i}:{v+4*i+3}], v{v+16}, s[12:15], s52 offen offset:{i*1024} sc1")
    def wflag_wait(self, v):
        k = self.k
        l0, l1 = k.newlab("wpoll"), k.newlab("wready")
        k(f"s_mov_b32 s53, {POLL_MAX}")
        k.lab(l0)
        k("s_waitcnt vmcnt(0)")
        for i in range(1, 16):
            k(f"v_and_b32 v{v}, v{v}, v{v+i}")
        k(f"v_cmp_ne_u32 vcc, 0, v{v}")
        k("s_nop 1")
        k("s_cmp_eq_u64 vcc, -1")
        k(f"s_cbranch_scc1 {k.ref(l1)}")
        k("s_sleep 4")
        self.wflag_issue(v)
        k("s_sub_u32 s53, s53, 1")
        k(f"s_cbranch_scc0 {k.ref(l0)}")
        k.lab(l1)

def fin_compute(k, fz, kidx):
    k.stamp(4)
    if fz is None:
        k.stamp_flush(6, kidx, 5, 26)
        k("s_endpgm")
    else:
        if fz.xl and fz.p == 0: fz.mode_resolve(48, 250)
        if fz.sig is not None: fz.signal()
        fz.leave()

def fin_loader(k, fz, kidx):
    k.stamp(4)
    if fz is None:
        k("s_add_u32 s26, s26, 4")
        k.stamp_flush(6, kidx, 5, 26)
        k.lab("end")
        k("s_endpgm")
    else:
        fz.leave()


PFS = 128
CW = 0
XSC = ""
PT = ""
OUTP = 0
CWN = 2
class TilePF:
    def __init__(self, k, pfd, first, NCH, va, vs, vd, srd):
        self.k, self.pfd, self.first, self.NCH, self.va, self.vs, self.vd, self.srd = k, pfd, first, NCH, va, vs, vd, srd
        self.next = first
    def one(self):
        k = self.k
        k(f"buffer_load_dword v{self.vd}, v{self.va}, s[{self.srd}:{self.srd+3}], 0 offen")
        self.next += 1
        if self.next < self.NCH:
            k(f"v_add_u32 v{self.va}, v{self.vs}, v{self.va}")
    def start(self):
        self.next = self.first
        while self.next < self.NCH and self.next <= self.pfd:
            self.one()
    def at_barrier(self):
        if self.pfd and self.next < self.NCH:
            self.one()

def gen_gemmA(name, kind, layer, kidx=0, dbg=(), first=2, pfd=0, fz=None):
    if kind == "qkv":
        NWG, NB, TB, TN = 240, 2, 2, 128
        WS_W, XSRC, ST, NPART, CSP, NCOL = WS_WQ, (WS_X0 if layer == 0 else WS_X2), WS_ST0, (1 if layer == 0 else 16), WS_CSQ, 1920
    else:
        NWG, NB, TB, TN = 256, 3, 1, 96
        WS_W, XSRC, ST, NPART, CSP, NCOL = WS_W1, WS_X1, WS_ST1, 16, WS_CS1, 1536
    WB = TN * 128
    SLOT = WB + 16384
    NSLOT = 4
    NCH = 10
    STATS = NSLOT * SLOT
    LDS = STATS + 2048
    rot = fz.rot if fz else 0
    HO = bool(fz and fz.wait is not None)
    XS = " sc1" if (HO and not fz.xplain) else ""
    if fz is None:
        k = Kern(name, NWG, 512, LDS, vgpr=256)
        k(f"s_cmp_ge_u32 s2, {NWG}")
        k(f"s_cbranch_scc1 {k.ref('end')}")
        k.stamp(0)
        k.karg(6, 80)
        if kind == "w1":
            k.karg(8, 40)
        wave_id(k, 26)
    else:
        k = fz.k
        if NWG < 256:
            k(f"s_cmp_ge_u32 s2, {NWG}")
            fz.skip_to_end()
        if kind == "w1":
            k.karg(8, 40)
    k("s_and_b32 s20, s2, 7")
    k("s_lshr_b32 s21, s2, 3")
    if fz and fz.xl:
        k("s_and_b32 s22, s21, 1")
        k("s_lshl_b32 s23, s20, 1")
        k("s_add_u32 s24, s23, s22")
        k("s_lshr_b32 s25, s21, 1")
    else:
        if kind == "qkv":
            k("s_and_b32 s22, s20, 1")
            k("s_mul_i32 s22, s22, 30")
            k("s_add_u32 s22, s22, s21")
            k("s_lshr_b32 s25, s22, 2")
            k("s_and_b32 s22, s22, 3")
        else:
            k("s_and_b32 s22, s20, 1")
            k("s_lshl_b32 s22, s22, 3")
            k("s_lshr_b32 s23, s21, 2")
            k("s_add_u32 s25, s22, s23")
            k("s_and_b32 s22, s21, 3")
        k("s_lshr_b32 s23, s20, 1")
        k("s_lshl_b32 s23, s23, 2")
        k("s_add_u32 s24, s23, s22")
    k("s_cmp_lt_u32 s26, 4")
    k(f"s_cbranch_scc1 {k.ref('compute')}")

    k("s_sub_u32 s26, s26, 4")
    k("v_lshlrev_b32 v1, 4, v0")
    nW = WB // 4096
    k(f"s_mul_i32 s40, s25, {80*TN*16}")
    k(f"s_mul_i32 s41, s26, {nW*1024}")
    k("s_add_u32 s40, s40, s41")
    k(f"s_add_u32 s40, s40, {WS_W}")
    k("s_mov_b32 s42, s41")
    k("s_lshl_b32 s43, s24, 2")
    k("s_add_u32 s43, s43, s26")
    k("s_mul_i32 s43, s43, 40960")
    k(f"s_add_u32 s43, s43, {XSRC}")
    k("s_lshl_b32 s44, s26, 12")
    k(f"s_add_u32 s44, s44, {WB}")
    k("s_waitcnt lgkmcnt(0)")
    k.srd(12, 6, 0, WS_SIZE)
    def dma(ch, parts="wx"):
        if "nodma" in dbg: return
        slot = (ch + rot) % NSLOT
        if "w" in parts:
            k(f"s_add_u32 m0, s42, {slot*SLOT}")
            k(f"s_add_u32 s45, s40, {(0 if 'fixw' in dbg else ch)*WB}")
            for i in range(nW):
                k(f"buffer_load_dwordx4 v1, s[12:15], s45 offen offset:{i*1024} lds")
        if "x" in parts:
            k(f"s_add_u32 m0, s44, {slot*SLOT}")
            k(f"s_add_u32 s45, s43, {(0 if 'fixx' in dbg else ch)*4096}")
            for i in range(4):
                k(f"buffer_load_dwordx4 v1, s[12:15], s45 offen offset:{i*1024}{XS} lds")
    nD = nW + 4
    k.stamp(1)
    early = HO
    def stats_loads():
        k("s_lshl_b32 s46, s24, 7")
        k("s_lshl_b32 s47, s26, 5")
        k("s_add_u32 s46, s46, s47")
        k("v_add_u32 v4, s46, v2")
        k("v_lshlrev_b32 v4, 3, v4")
        if NPART == 16:
            k("v_lshl_add_u32 v4, v3, 17, v4")
            for p in range(8):
                k(f"s_mov_b32 s47, {ST + p*16384}")
                k(f"buffer_load_dwordx2 v[{16+2*p}:{17+2*p}], v4, s[12:15], s47 offen{XS}")
        else:
            k(f"s_mov_b32 s47, {ST}")
            k(f"buffer_load_dwordx2 v[16:17], v4, s[12:15], s47 offen{XS}")
    def cs_loads():
        k("s_lshl_b32 s47, s26, 5")
        k("v_add_u32 v5, s47, v2")
        k(f"s_mul_i32 s47, s25, {TN}")
        k("v_add_u32 v6, s47, v5")
        k("v_lshlrev_b32 v7, 2, v6")
        k(f"v_mul_u32_u24 v8, {5*NCOL*4}, v3")
        k("v_add_u32 v7, v7, v8")
        for p in range(5):
            k(f"s_mov_b32 s47, {CSP + p*NCOL*4}")
            k(f"buffer_load_dword v{32+p}, v7, s[12:15], s47 offen")
        if kind == "w1":
            k.srd(16, 8, 0, 1536 * 2)
            k("v_lshlrev_b32 v9, 1, v6")
            k("buffer_load_ushort v38, v9, s[16:19], 0 offen")
    if early:
        for c_ in range(first):
            dma(c_, "w")
        k("v_and_b32 v2, 31, v0")
        k("v_lshrrev_b32 v3, 5, v0")
        cs_loads()
        k("s_lshr_b32 s67, s26, 1")
        k("s_lshl_b32 s46, s24, 1")
        k("s_add_u32 s67, s67, s46")
        fz.poll(67, 8)
        dma(0, "x")
        stats_loads()
        for c_ in range(1, first):
            dma(c_, "x")
        k(f"s_waitcnt vmcnt({4*(first-1)})")
    else:
        dma(0)
        k("v_and_b32 v2, 31, v0")
        k("v_lshrrev_b32 v3, 5, v0")
        stats_loads()
        cs_loads()
        for c_ in range(1, first):
            dma(c_)
        k(f"s_waitcnt vmcnt({nD*(first-1)})")
    k.stamp(2)
    k("s_barrier")
    if NPART == 16:
        for p in range(1, 8):
            k(f"v_add_f32 v16, v16, v{16+2*p}")
            k(f"v_add_f32 v17, v17, v{17+2*p}")
        k("v_mov_b32 v18, v16")
        k("v_mov_b32 v19, v17")
        k("s_nop 1")
        k("v_permlane32_swap_b32 v16, v18")
        k("v_permlane32_swap_b32 v17, v19")
        k("s_nop 1")
        k("v_add_f32 v16, v16, v18")
        k("v_add_f32 v17, v17, v19")
    k(f"v_mul_f32 v16, {f2u(1/640):#x}, v16")
    k(f"v_mul_f32 v17, {f2u(1/640):#x}, v17")
    k("v_fma_f32 v17, -v16, v16, v17")
    k("v_max_f32 v17, 0, v17")
    k(f"v_add_f32 v18, {f2u(1e-5):#x}, v17")
    k("v_rsq_f32 v18, v18")
    if kind == "w1":
        k("s_nop 0")
        k("v_mul_f32 v19, v18, v18")
        k("v_mul_f32 v19, v19, v17")
        k(f"v_add_f32 v19, {f2u(1e-5):#x}, v19")
        k("v_rsq_f32 v19, v19")
        k("s_nop 0")
        k("v_mul_f32 v18, v18, v19")
    else:
        k("s_cmp_lt_u32 s25, 5")
        k(f"s_cselect_b32 s46, {f2u(QSCALE):#x}, 1.0")
        k("v_mul_f32 v18, s46, v18")
    k("s_nop 0")
    k("v_mul_f32 v19, v18, v16")
    for p in range(1, 5):
        k(f"v_add_f32 v32, v32, v{32+p}")
    k("v_mov_b32 v33, v32")
    k("s_nop 1")
    k("v_permlane32_swap_b32 v32, v33")
    k("s_nop 1")
    k("v_add_f32 v32, v32, v33")
    k("v_cmp_eq_u32 vcc, 0, v3")
    k("s_lshl_b32 s47, s26, 7")
    k("v_lshlrev_b32 v2, 2, v2")
    k("v_add_u32 v2, s47, v2")
    k(f"v_add_u32 v2, {STATS}, v2")
    k("v_lshl_add_u32 v2, v3, 9, v2")
    k("v_cndmask_b32 v18, v19, v18, vcc")
    if kind == "w1":
        k("v_lshlrev_b32 v38, 16, v38")
        k("v_cndmask_b32 v32, v38, v32, vcc")
    k("ds_write_b32 v2, v18")
    k("ds_write_b32 v2, v32 offset:1024")
    k("s_waitcnt lgkmcnt(0)")
    issued = first
    if fz and fz.xl and "X" in PT and kind == "w1" and (layer == 0 or OUTP):
        def tail():
            k("v_lshlrev_b32 v12, 7, v0")
            k("s_mul_i32 s46, s24, 163840")
            k("s_lshl_b32 s47, s25, 2")
            k("s_add_u32 s47, s47, s26")
            k("s_mul_i32 s47, s47, 2560")
            k("s_add_u32 s46, s46, s47")
            if layer == 0:
                k(f"s_add_u32 s46, s46, {WS_X2}")
                k("s_mov_b64 exec, 0xfffff")
                k("buffer_load_dword v13, v12, s[12:15], s46 offen")
                k("s_lshl_b32 s46, s25, 14")
                k("s_lshl_b32 s47, s24, 10")
                k("s_add_u32 s46, s46, s47")
                k("s_lshl_b32 s47, s26, 8")
                k("s_add_u32 s46, s46, s47")
                k(f"s_add_u32 s46, s46, {WS_ST0}")
                k("s_mov_b64 exec, 3")
                k("buffer_load_dword v14, v12, s[12:15], s46 offen")
                k("s_mov_b64 exec, -1")
                return 2
            k.karg(56, 64)
            k("s_waitcnt lgkmcnt(0)")
            k.srd(16, 56, 0, X_BYTES)
            k("s_mov_b64 exec, 0xfffff")
            k("buffer_load_dword v13, v12, s[16:19], s46 offen")
            k("s_mov_b64 exec, -1")
            return 1
        fz.tail = tail
    free = [int(d[4:]) for d in dbg if d.startswith("free")]
    if free:
        for c_ in range(first, NCH):
            dma(c_)
            k(f"s_waitcnt vmcnt({free[0]})")
        k("s_waitcnt vmcnt(0)")
        for i in range(1, NCH): k("s_barrier")
    else:
        ring_tail(k, NCH, NSLOT, dma, nD, issued, fz)
    if kind == "qkv" and (QST & 2) and fz and not fz.last: k("s_barrier")
    fin_loader(k, fz, kidx)

    k.lab("compute")
    ACC = 64
    FA = [128, 128 + 4 * NB]
    FB = [160, 160 + 4 * TB]
    AW, AX = 1, 3
    HH, TL = 17, 16
    if kind == "qkv":
        k("s_and_b32 s27, s26, 1")
        k("s_lshr_b32 s36, s26, 1")
    else:
        k("s_mov_b32 s27, 0")
        k("s_mov_b32 s36, s26")
    k(f"v_lshrrev_b32 v{HH}, 5, v0")
    k(f"v_and_b32 v{TL}, 31, v0")
    k(f"v_mul_u32_u24 v20, {TN*16}, v{HH}")
    k(f"v_lshl_add_u32 v20, v{TL}, 4, v20")
    k(f"s_mul_i32 s37, s27, {NB*512}")
    k(f"v_add_u32 v{AW}, s37, v20")
    k(f"v_add_u32 v{AW+1}, {2*SLOT}, v{AW}")
    k(f"v_lshlrev_b32 v20, 4, v0")
    k(f"s_mul_i32 s37, s36, {TB*4096}")
    k(f"s_add_u32 s37, s37, {WB}")
    k(f"v_add_u32 v{AX}, s37, v20")
    k(f"v_add_u32 v{AX+1}, {2*SLOT}, v{AX}")

    def reads(step):
        ch, ks = divmod(step, 4)
        slot = (ch + rot) % NSLOT
        half, sl = divmod(slot, 2)
        st = step & 1
        out = []
        for nb in range(NB):
            d = FA[st] + nb * 4
            out.append(f"ds_read_b128 v[{d}:{d+3}], v{AW+half} offset:{sl*SLOT + ks*2*TN*16 + nb*512}")
        for tb in range(TB):
            d = FB[st] + tb * 4
            out.append(f"ds_read_b128 v[{d}:{d+3}], v{AX+half} offset:{sl*SLOT + ks*1024 + tb*4096}")
        return out

    def mainloop(swap, late=()):
        nx0 = PFT.next
        k.stamp(1)
        k("s_barrier")
        k.stamp(2)
        for r in reads(0):
            k(r)
        NS = NCH * 4
        for step in range(NS):
            st = step & 1
            if step == QLATE:
                for f_ in late: f_()
            bar = step % 4 == 3 and step + 1 < NS
            cw = CW and not bar
            if not cw: k("s_waitcnt lgkmcnt(0)")
            if bar:
                k("s_barrier")
            rd = reads(step + 1) if step + 1 < NS else []
            if CW:
                wr, xr = rd[:NB], rd[NB:]
                rd = []
                for j in range(max(NB, TB)):
                    rd += wr[j:j+1] + xr[j:j+1]
            mf = []
            for nb in range(NB):
                for tb in range(TB):
                    d = ACC + (nb * TB + tb) * 16
                    a = FA[st] + nb * 4
                    b = FB[st] + tb * 4
                    c = "0" if step == 0 else f"v[{d}:{d+15}]"
                    if swap:
                        mf.append(f"v_mfma_f32_32x32x16_bf16 v[{d}:{d+15}], v[{b}:{b+3}], v[{a}:{a+3}], {c}")
                    else:
                        mf.append(f"v_mfma_f32_32x32x16_bf16 v[{d}:{d+15}], v[{a}:{a+3}], v[{b}:{b+3}], {c}")
            def pos(nb, tb):
                order = []
                for j in range(max(NB, TB)):
                    if j < NB: order.append(("w", j))
                    if j < TB: order.append(("x", j))
                return max(order.index(("w", nb)), order.index(("x", tb))), len(order)
            ri = 0
            issued_now = 0
            i = 0
            lastw = None
            for nb in range(NB):
                for tb in range(TB):
                    m = mf[i]
                    if cw and step > 0:
                        p, n_ = pos(nb, tb)
                        w_ = (n_ - 1 - p) + issued_now
                        if lastw is None or p > lastw:
                            k(f"s_waitcnt lgkmcnt({w_})")
                            lastw = p
                    elif cw and step == 0 and i == 0:
                        k("s_waitcnt lgkmcnt(0)")
                    if "nomfma" not in dbg: k(m)
                    nper = 2 if not CW else CWN
                    for r in rd[ri:ri + nper]:
                        if "fakerd" in dbg: k("s_nop 0"); k("s_nop 0")
                        elif "nords" not in dbg: k(r)
                        issued_now += 1
                    ri += nper
                    if i == 2 and step % 4 == 3: PFT.at_barrier()
                    i += 1
            assert ri >= len(rd)
        k.stamp(3)
        PFT.next = nx0

    k("s_waitcnt lgkmcnt(0)")
    PFT = TilePF(k, pfd, first, NCH, 8, 9, 10, 56)
    if pfd:
        k.srd(56, 6, 0, WS_SIZE)
        PS = PFS
        sh = {128: 7, 64: 6, 32: 5}[PS]
        nw = WB // 16 // PS
        NWL = 1024 // PS
        nx = 512 // PS
        k("s_and_b32 s37, s24, 3")
        k(f"s_mul_i32 s37, s37, {WB//4}")
        k(f"s_mul_i32 s38, s26, {WB//16}")
        k("s_add_u32 s37, s37, s38")
        k(f"s_mul_i32 s38, s25, {80*TN*16}")
        k("s_add_u32 s37, s37, s38")
        k(f"s_add_u32 s37, s37, {WS_W + first*WB}")
        k("s_and_b32 s38, s20, 1")
        k(f"s_mul_i32 s38, s38, {7 if kind == 'qkv' else 8}")
        k("s_sub_u32 s38, s25, s38")
        k("s_lshr_b32 s39, s38, 1")
        k("s_lshl_b32 s40, s24, 2")
        k("s_add_u32 s39, s39, s40")
        k("s_mul_i32 s39, s39, 40960")
        k("s_and_b32 s38, s38, 1")
        k("s_lshl_b32 s38, s38, 11")
        k("s_add_u32 s39, s39, s38")
        k("s_lshl_b32 s38, s26, 9")
        k("s_add_u32 s39, s39, s38")
        k(f"s_add_u32 s39, s39, {XSRC + first*4096 - NWL*PS}")
        k(f"v_lshlrev_b32 v8, {sh}, v0")
        k("v_mov_b32 v11, s39")
        k("v_mov_b32 v12, s37")
        k(f"v_cmp_gt_u32 vcc, {NWL}, v0")
        k(f"v_mov_b32 v9, 4096")
        k(f"v_mov_b32 v13, {WB}")
        k("v_cndmask_b32 v11, v11, v12, vcc")
        k("v_cndmask_b32 v9, v9, v13, vcc")
        k("v_add_u32 v8, v11, v8")
        k(f"v_cmp_gt_u32 vcc, {NWL+nx}, v0")
        k("v_mov_b32 v12, 0x80000000")
        k("s_nop 0")
        k("v_cndmask_b32 v8, v12, v8, vcc")
        if nw < NWL:
            k(f"v_subrev_u32 v13, {nw}, v0")
            k(f"v_cmp_gt_u32 vcc, {NWL-nw}, v13")
            k("s_nop 1")
            k("v_cndmask_b32 v8, v8, v12, vcc")
        PFT.start()
    if kind == "qkv":
        k("s_cmp_ge_u32 s25, 10")
        k(f"s_cbranch_scc1 {k.ref('vpath')}")
        stg = None
        if QST & 2:
            stg = 65536 if (NCH - 1 + rot) % NSLOT < 2 else 0
        late = [] if QLATE >= 0 else None
        pre_qk(k, HH, TL, stg=stg, late=late)
        mainloop(False, late or ())
        epi_qk(k, ACC, STATS, HH, TL, stg=stg)
        fin_compute(k, fz, kidx)
        k.lab("vpath")
        late = [] if QLATE >= 0 else None
        pre_v(k, HH, TL, stg=stg, late=late)
        mainloop(True, late or ())
        epi_v(k, ACC, STATS, HH, TL, stg=stg)
        fin_compute(k, fz, kidx)
    else:
        if fz and fz.xl and "h" in PT:
            k.srd(48, 6, 0, WS_SIZE)
            k("s_lshl_b32 s39, s24, 2")
            k("s_add_u32 s39, s39, s36")
            k("s_mul_i32 s39, s39, 98304")
            k("s_mul_i32 s40, s25, 6144")
            k("s_add_u32 s39, s39, s40")
            k(f"s_add_u32 s39, s39, {WS_H}")
            k("v_lshlrev_b32 v63, 7, v0")
            k("s_mov_b32 exec_hi, 0xffff")
            k("buffer_load_dword v62, v63, s[48:51], s39 offen")
            k("s_mov_b32 exec_hi, -1")
        mainloop(False)
        epi_w1(k, ACC, STATS, HH, TL, NS_=(" ; nosc" if (fz and fz.xl and "h" not in XSC) else ""))
        fin_compute(k, fz, kidx)
    return k


def gen_qkv_raw(name, kidx=0, dbg=(), first=2, pfd=0, zflags=False):
    NWG, NB, TB, TN = 240, 2, 2, 128
    WB = 16384
    SLOT = 2 * WB
    NSLOT = 4
    NCH = 10
    STATS = NSLOT * SLOT
    LDS = STATS + 2048
    k = Kern(name, NWG, 512, LDS, vgpr=256)
    k(f"s_cmp_ge_u32 s2, {NWG}")
    k(f"s_cbranch_scc1 {k.ref('end')}")
    k.stamp(0)
    k.karg(8, 0)
    k.karg(10, 8)
    k.karg(6, 80)
    wave_id(k, 26)
    k("s_and_b32 s20, s2, 7")
    k("s_lshr_b32 s21, s2, 3")
    k("s_and_b32 s22, s20, 1")
    k("s_mul_i32 s22, s22, 30")
    k("s_add_u32 s22, s22, s21")
    k("s_lshr_b32 s25, s22, 2")
    k("s_and_b32 s22, s22, 3")
    k("s_lshr_b32 s23, s20, 1")
    k("s_lshl_b32 s23, s23, 2")
    k("s_add_u32 s24, s23, s22")
    k("s_cmp_lt_u32 s26, 4")
    k(f"s_cbranch_scc1 {k.ref('compute')}")
    k("s_sub_u32 s26, s26, 4")
    if "w" in Q0T:
        k.karg(60, 16); k.karg(62, 32); k.karg(64, 48)
    VW, VX = 4, 8
    k("v_lshrrev_b32 v1, 4, v0")
    k("v_and_b32 v2, 15, v0")
    k("v_lshlrev_b32 v3, 2, v1")
    k("v_xor_b32 v2, v2, v3")
    k("v_mul_u32_u24 v1, 3840, v1")
    k(f"v_lshl_add_u32 v{VW}, v2, 4, v1")
    for i in range(1, 4):
        k(f"v_add_u32 v{VW+i}, {4*3840-1024}, v{VW+i-1}")
    k("v_lshrrev_b32 v1, 3, v0")
    k("v_and_b32 v2, 7, v0")
    k("v_lshrrev_b32 v3, 1, v1")
    k("v_xor_b32 v2, v2, v3")
    k("v_mul_u32_u24 v1, 1280, v1")
    k(f"v_lshl_add_u32 v{VX}, v2, 4, v1")
    k("v_xor_b32 v2, 4, v2")
    k("v_lshl_add_u32 v2, v2, 4, v1")
    k(f"v_add_u32 v{VX+1}, {8*1280-1024}, v2")
    k(f"v_add_u32 v{VX+2}, {2*(8*1280-1024)}, v{VX}")
    k(f"v_add_u32 v{VX+3}, {3*(8*1280-1024)}, v2")
    k("s_lshl_b32 s40, s25, 8")
    k(f"s_mul_i32 s41, s26, {16*3840}")
    k("s_add_u32 s40, s40, s41")
    k("s_lshl_b32 s42, s26, 12")
    k("s_lshl_b32 s43, s24, 2")
    k("s_add_u32 s43, s43, s26")
    k(f"s_mul_i32 s43, s43, {32*1280}")
    k(f"s_add_u32 s44, s42, {WB}")
    k("s_waitcnt lgkmcnt(0)")
    k.srd(12, 10, 0, 640 * 3840)
    k.srd(16, 8, 0, X_BYTES)
    def dma(ch):
        slot = ch % NSLOT
        k(f"s_add_u32 m0, s42, {slot*SLOT}")
        k(f"s_add_u32 s45, s40, {ch*64*3840}")
        for i in range(4):
            k(f"buffer_load_dwordx4 v{VW+i}, s[12:15], s45 offen offset:{i*1024} lds")
        k(f"s_add_u32 m0, s44, {slot*SLOT}")
        k(f"s_add_u32 s45, s43, {ch*128}")
        for i in range(4):
            k(f"buffer_load_dwordx4 v{VX+i}, s[16:19], s45 offen offset:{i*1024} lds")
    k.stamp(1)
    def pre(): k.stamp(2)
    def q0tail():
        n = 0
        k("s_lshl_b32 s46, s2, 2")
        k("s_add_u32 s46, s46, s26")
        k("v_lshlrev_b32 v12, 7, v0")
        k.srd(48, 6, 0, WS_SIZE)
        def part(srd, base, lines, v, size=None):
            k(f"s_mul_i32 s47, s46, {lines*128}")
            if size is not None and 960*lines*128 > size: k(f"s_min_u32 s47, s47, {size - lines*128}")
            if base: k(f"s_add_u32 s47, s47, {base}")
            if lines < 64: k(f"s_mov_b64 exec, {(1 << lines) - 1:#x}")
            k(f"buffer_load_dword v{v}, v12, s[{srd}:{srd+3}], s47 offen")
            if lines < 64: k("s_mov_b64 exec, -1")
        for ch_ in Q0T:
            if ch_ == "k":
                assert KVPAD == 0
                k("s_cmp_lt_u32 s46, 320")
                k(f"s_mov_b32 s52, {WS_KV - 320*8192}")
                k(f"s_cselect_b32 s52, {WS_Q}, s52")
                k("s_lshl_b32 s47, s46, 13")
                k("s_add_u32 s47, s47, s52")
                k("buffer_load_dword v13, v12, s[48:51], s47 offen"); n += 1
            if ch_ == "w":
                for (ptr, size, lines, v) in ((60, 640*1280, 7, 14), (62, 640*3072, 16, 15), (64, 1536*1280, 16, 16)):
                    k.srd(52, ptr, 0, size)
                    part(52, 0, lines, v, size); n += 1
            if ch_ == "p":
                for (base, lines, v) in ((WS_WO, 7, 17), (WS_W1, 16, 18), (WS_W2, 16, 19), (WS_WQ, 20, 20), (WS_CSQ, 2, 21)):
                    part(48, base, lines, v); n += 1
        return n
    ring_loader(k, NCH, NSLOT, dma, 8, pre_b0=pre, first=first, tail=(q0tail if Q0T and not Q0L else None))
    if Q0T and Q0L:
        q0tail()
        k("s_waitcnt vmcnt(0)")
    if zflags:
        k(f"s_cmp_ge_u32 s2, {NFLAGSET*4}")
        k(f"s_cbranch_scc1 {k.ref('zdone')}")
        k("s_cmp_lg_u32 s26, 0")
        k(f"s_cbranch_scc1 {k.ref('zdone')}")
        k.srd(48, 6, WS_FLAG, NFLAGSET*4096)
        k("s_lshl_b32 s45, s2, 10")
        k("v_lshlrev_b32 v1, 4, v0")
        for r in range(4):
            k(f"v_mov_b32 v{12+r}, 0")
        k("buffer_store_dwordx4 v[12:15], v1, s[48:51], s45 offen")
        k("s_waitcnt vmcnt(0)")
        k.lab("zdone")
    k.stamp(4)
    k("s_add_u32 s26, s26, 4")
    k.stamp_flush(6, kidx, 5, 26)
    k.lab("end")
    k("s_endpgm")

    k.lab("compute")
    ACC = 64
    FA = [128, 128 + 4 * NB]
    FB = [160, 160 + 4 * TB]
    AW, AX = 2, 192
    HH, TL = 17, 16
    S1, S2, TMP, SEL, CS = 48, 50, 52, 60, 32
    k("s_and_b32 s27, s26, 1")
    k("s_lshr_b32 s36, s26, 1")
    k(f"v_lshrrev_b32 v{HH}, 5, v0")
    k(f"v_and_b32 v{TL}, 31, v0")
    k("v_lshrrev_b32 v20, 4, v0")
    k("v_bfe_u32 v21, v0, 2, 2")
    k("v_and_b32 v22, 3, v0")
    k("v_lshrrev_b32 v23, 1, v20")
    k("v_lshl_add_u32 v23, v23, 3, v21")
    k("v_and_b32 v18, 1, v20")
    k("v_lshlrev_b32 v18, 1, v18")
    k("v_lshrrev_b32 v19, 1, v22")
    k("v_add_u32 v18, v18, v19")
    k("s_lshl_b32 s37, s27, 3")
    k("v_add_u32 v18, s37, v18")
    k("v_lshlrev_b32 v19, 2, v21")
    k("v_xor_b32 v18, v18, v19")
    k("v_lshlrev_b32 v18, 4, v18")
    k("v_lshl_add_u32 v18, v23, 8, v18")
    k("v_and_b32 v19, 1, v22")
    k(f"v_lshl_add_u32 v{AW}, v19, 3, v18")
    k(f"v_add_u32 v{AW+1}, {2*SLOT}, v{AW}")
    k(f"v_xor_b32 v{AW+2}, 64, v{AW}")
    k(f"v_add_u32 v{AW+3}, {2*SLOT}, v{AW+2}")
    k(f"v_bfe_u32 v18, v{TL}, 1, 3")
    k(f"v_xor_b32 v18, v18, v{HH}")
    k("v_lshlrev_b32 v18, 4, v18")
    k(f"v_lshl_add_u32 v18, v{TL}, 7, v18")
    k("s_lshl_b32 s37, s36, 13")
    k("s_lshl_b32 s38, s27, 12")
    k("s_add_u32 s37, s37, s38")
    k(f"s_add_u32 s37, s37, {WB}")
    k(f"v_add_u32 v{AX}, s37, v18")
    for sl_ in range(2):
        for ks in range(4):
            d = AX + (sl_ * 4 + ks) * 2
            x = (sl_ << 12) | (ks << 5)
            if x: k(f"v_xor_b32 v{d}, {x}, v{AX}")
            k(f"v_add_u32 v{d+1}, {2*SLOT}, v{d}")
    k("v_and_b32 v18, 15, v0")
    k("v_bfe_u32 v19, v0, 4, 1")
    k("v_cmp_eq_u32 vcc, v18, v19")
    k("v_mov_b32 v19, 0x3f803f80")
    k("s_nop 0")
    k(f"v_cndmask_b32 v{SEL}, 0, v19, vcc")
    for r in range(1, 4):
        k(f"v_mov_b32 v{SEL+r}, v{SEL}")
    for r in range(4):
        k(f"v_mov_b32 v{S1+r}, 0")

    def reads(step):
        ch, ks = divmod(step, 4)
        slot = ch % NSLOT
        half, sl = divmod(slot, 2)
        st = step & 1
        out = []
        for tb in range(TB):
            d = FB[st] + tb * 4
            out.append(f"ds_read_b128 v[{d}:{d+3}], v{AX+(tb*4+ks)*2+half} offset:{sl*SLOT}")
        for nb in range(NB):
            d = FA[st] + nb * 4
            out.append(f"ds_read_b64_tr_b16 v[{d}:{d+1}], v{AW+nb*2+half} offset:{sl*SLOT + ks*4096}")
            out.append(f"ds_read_b64_tr_b16 v[{d+2}:{d+3}], v{AW+nb*2+half} offset:{sl*SLOT + ks*4096 + 1024}")
        return out

    def mainloop(swap, late=()):
        nx0 = PFT.next
        k.stamp(1)
        k("s_barrier")
        k.stamp(2)
        for r in reads(0):
            k(r)
        NS = NCH * 4
        for step in range(NS):
            st = step & 1
            if step == QLATE:
                for f_ in late: f_()
            k("s_waitcnt lgkmcnt(0)")
            if step % 4 == 3 and step + 1 < NS:
                k("s_barrier")
                PFT.at_barrier()
            rd = reads(step + 1) if step + 1 < NS else []
            mf = []
            for nb in range(NB):
                for tb in range(TB):
                    d = ACC + (nb * TB + tb) * 16
                    a = FA[st] + nb * 4
                    b = FB[st] + tb * 4
                    c = "0" if step == 0 else f"v[{d}:{d+15}]"
                    if swap:
                        mf.append(f"v_mfma_f32_32x32x16_bf16 v[{d}:{d+15}], v[{b}:{b+3}], v[{a}:{a+3}], {c}")
                    else:
                        mf.append(f"v_mfma_f32_32x32x16_bf16 v[{d}:{d+15}], v[{a}:{a+3}], v[{b}:{b+3}], {c}")
            for nb in range(NB):
                d = CS + 4 * nb
                a = FA[st] + nb * 4
                c = "0" if step == 0 else f"v[{d}:{d+3}]"
                mf.insert(2 + 3 * nb, f"v_mfma_f32_16x16x32_bf16 v[{d}:{d+3}], v[{SEL}:{SEL+3}], v[{a}:{a+3}], {c}")
            va = []
            for r in range(4):
                x = FB[st] + r
                t = TMP + 2 * (r & 1)
                va += [f"v_and_b32 v{t}, 0xffff0000, v{x}", f"v_lshlrev_b32 v{t+1}, 16, v{x}",
                       f"v_add_f32 v{S1}, v{S1}, v{t}", f"v_fmac_f32 v{S2}, v{t}, v{t}",
                       f"v_add_f32 v{S1+1}, v{S1+1}, v{t+1}", f"v_fmac_f32 v{S2+1}, v{t+1}, v{t+1}"]
            if "nostat" in dbg: va = []
            ri, vi = 0, 0
            for i, m in enumerate(mf):
                k(m)
                nrd = 1
                for r in rd[ri:ri + nrd]: k(r)
                ri += nrd
                for x in va[vi:vi + 4]: k(x)
                vi += 4
            assert ri >= len(rd) and vi >= len(va)
        k.stamp(3)
        k(f"v_add_f32 v40, v{S1}, v{S1+1}")
        k(f"v_add_f32 v41, v{S2}, v{S2+1}")
        k("v_mov_b32 v42, v40")
        k("v_mov_b32 v43, v41")
        k("s_nop 1")
        k("v_permlane32_swap_b32 v40, v42")
        k("v_permlane32_swap_b32 v41, v43")
        k("s_nop 1")
        k("v_add_f32 v40, v40, v42")
        k("v_add_f32 v41, v41, v43")
        k(f"v_mul_f32 v40, {f2u(1/640):#x}, v40")
        k(f"v_mul_f32 v41, {f2u(1/640):#x}, v41")
        k("v_fma_f32 v41, -v40, v40, v41")
        k("v_max_f32 v41, 0, v41")
        k(f"v_add_f32 v42, {f2u(1e-5):#x}, v41")
        k("v_rsq_f32 v42, v42")
        k("s_cmp_lt_u32 s25, 5")
        k(f"s_cselect_b32 s46, {f2u(QSCALE):#x}, 1.0")
        k("v_mul_f32 v42, s46, v42")
        k("v_mul_f32 v43, v42, v40")
        k(f"v_cmp_eq_u32 vcc, 0, v{HH}")
        k("s_lshl_b32 s37, s36, 8")
        k("s_lshl_b32 s38, s27, 7")
        k("s_add_u32 s37, s37, s38")
        k(f"s_add_u32 s37, s37, {STATS}")
        k(f"v_lshlrev_b32 v44, 2, v{TL}")
        k("v_add_u32 v44, s37, v44")
        k(f"v_lshl_add_u32 v44, v{HH}, 9, v44")
        k("v_cndmask_b32 v42, v43, v42, vcc")
        k("ds_write_b32 v44, v42")
        k("s_lshl_b32 s37, s27, 8")
        k(f"s_add_u32 s37, s37, {STATS+1024}")
        k("v_lshlrev_b32 v45, 2, v0")
        k("v_add_u32 v45, s37, v45")
        k("s_mov_b64 exec, 0xffff")
        for nb in range(NB):
            k(f"ds_write_b32 v45, v{CS+4*nb} offset:{nb*128}")
            k(f"ds_write_b32 v45, v{CS+4*nb+1} offset:{nb*128+64}")
        k("s_mov_b64 exec, -1")
        k("s_waitcnt lgkmcnt(0)")
        k("s_barrier")
        PFT.next = nx0

    k("s_waitcnt lgkmcnt(0)")
    PFT = TilePF(k, pfd, first, NCH, 8, 9, 10, 56)
    if pfd:
        k("s_cmp_lt_u32 s26, 2")
        k("s_cselect_b32 s56, s10, s8")
        k("s_cselect_b32 s57, s11, s9")
        k(f"s_mov_b32 s58, {X_BYTES}")
        k(f"s_cselect_b32 s58, {640*3840}, s58")
        k("s_mov_b32 s59, 0x00020000")
        k(f"s_movk_i32 s41, 128")
        k(f"s_cselect_b32 s41, {64*3840}, s41")
        k("s_cselect_b32 s42, 16, 8")
        k("s_and_b32 s37, s24, 3")
        k("s_lshl_b32 s37, s37, 4")
        k("s_lshl_b32 s38, s26, 3")
        k("s_add_u32 s37, s37, s38")
        k(f"s_add_u32 s37, s37, {first*64}")
        k("s_mul_i32 s37, s37, 3840")
        k("s_lshl_b32 s38, s25, 8")
        k("s_add_u32 s37, s37, s38")
        k("s_and_b32 s38, s20, 1")
        k("s_mul_i32 s38, s38, 7")
        k("s_sub_u32 s38, s25, s38")
        k("s_lshl_b32 s38, s38, 4")
        k("s_lshl_b32 s39, s24, 7")
        k("s_add_u32 s38, s38, s39")
        k("s_and_b32 s39, s26, 1")
        k("s_lshl_b32 s39, s39, 3")
        k("s_add_u32 s38, s38, s39")
        k("s_mul_i32 s38, s38, 1280")
        k(f"s_add_u32 s38, s38, {first*128}")
        k("s_cmp_lt_u32 s26, 2")
        k("s_cselect_b32 s37, s37, s38")
        k("v_lshrrev_b32 v11, 1, v0")
        k("v_mul_u32_u24 v11, 3840, v11")
        k("v_and_b32 v12, 1, v0")
        k("v_lshl_add_u32 v11, v12, 7, v11")
        k("v_mul_u32_u24 v12, 1280, v0")
        k("s_cselect_b64 vcc, -1, 0")
        k("v_mov_b32 v9, s41")
        k("v_cndmask_b32 v8, v12, v11, vcc")
        k("v_add_u32 v8, s37, v8")
        k("v_cmp_gt_u32 vcc, s42, v0")
        k("v_mov_b32 v12, 0x80000000")
        k("s_nop 0")
        k("v_cndmask_b32 v8, v12, v8, vcc")
        PFT.start()
    k("s_cmp_ge_u32 s25, 10")
    k(f"s_cbranch_scc1 {k.ref('vpath')}")
    stg = 65536 if QST & 1 else None
    late = [] if QLATE >= 0 else None
    pre_qk(k, HH, TL, perm=True, stg=stg, late=late)
    mainloop(False, late or ())
    epi_qk(k, ACC, STATS, HH, TL, perm=True, stg=stg)
    k.stamp(4); k.stamp_flush(6, kidx, 5, 26)
    k("s_endpgm")
    k.lab("vpath")
    late = [] if QLATE >= 0 else None
    pre_v(k, HH, TL, perm=True, stg=stg, late=late)
    mainloop(True, late or ())
    epi_v(k, ACC, STATS, HH, TL, perm=True, stg=stg)
    k.stamp(4); k.stamp_flush(6, kidx, 5, 26)
    k("s_endpgm")
    return k


STG_GA = 208
STG_T = 16384
STG_VM = [0b001 << 18 | (1 << 18) - 1, 0b011 << 18 | ((1 << 18) - 1) & ~0b001, 0b100 << 21 | ((1 << 21) - 1) & ~0b011,
          0b101 << 18 | ((1 << 18) - 1) & ~0b100, ((1 << 21) - 1) & ~0b101]
STG_PM = {19: 0x32104, 25: 0x32410}
def stage_addr(k, kind, HH, TL, img, ct="s38"):
    GA = STG_GA
    if kind == "qk":
        k(f"s_mov_b32 s44, {STG_VM[0]:#x}")
        for c in range(1, 5):
            k(f"s_cmp_eq_u32 {ct}, {c}")
            k(f"s_cselect_b32 s44, {STG_VM[c]:#x}, s44")
    for i in range(10):
        g = GA + i
        k(f"v_add_u32 v18, {64*i}, v0")
        k("v_mul_u32_u24 v19, 205, v18")
        k("v_lshrrev_b32 v19, 14, v19")
        k("v_mul_u32_u24 v23, 80, v19")
        k("v_sub_u32 v18, v18, v23")
        k(f"v_mul_u32_u24 v{g}, s40, v19")
        k(f"v_lshl_add_u32 v{g}, v18, 4, v{g}")
        if kind == "qk":
            k("v_mul_u32_u24 v19, 3, v19")
            k("v_lshrrev_b32 v18, 5, v18")
            k("v_add_u32 v19, v19, v18")
            k("v_bfe_u32 v19, s44, v19, 1")
            k("v_cmp_ne_u32 vcc, 0, v19")
        else:
            k("v_mul_u32_u24 v23, 205, v18")
            k("v_lshrrev_b32 v23, 12, v23")
            k("v_mul_u32_u24 v23, 20, v23")
            k("v_sub_u32 v18, v18, v23")
            k("v_mul_u32_u24 v19, 20, v19")
            k("v_add_u32 v19, v19, v18")
            k("v_add_u32 v19, s43, v19")
            k("v_cmp_gt_u32 vcc, 128, v19")
        k("v_mov_b32 v23, 0x80000000")
        k("s_nop 0")
        k(f"v_cndmask_b32 v{g}, v23, v{g}, vcc")
    k("s_lshl_b32 s41, s26, 14")
    k(f"s_add_u32 s41, s41, {img}")
    k(f"v_lshlrev_b32 v{GA+10}, 4, v0")
    k(f"v_add_u32 v{GA+10}, s41, v{GA+10}")

def stage_out(k, kind, bar=True):
    GA = STG_GA
    k("s_waitcnt lgkmcnt(0)")
    if bar: k("s_barrier")
    for i in range(10):
        k(f"ds_read_b128 v[{64+4*i}:{64+4*i+3}], v{GA+10} offset:{i*1024}")
    for i in range(10):
        k(f"s_waitcnt lgkmcnt({9-i})")
        k(f"buffer_store_dwordx4 v[{64+4*i}:{64+4*i+3}], v{GA+i}, s[48:51], s54 offen")
    k("s_waitcnt vmcnt(0)")

def pre_qk(k, HH, TL, perm=False, stg=None, late=None):
    k.srd(48, 6, 0, WS_SIZE)
    k("s_cmp_lt_u32 s25, 5")
    k(f"s_mov_b32 s37, {WS_KV + QKD}")
    k(f"s_cselect_b32 s37, {WS_Q + QKD}, s37")
    k("s_cselect_b32 s38, 0, 5")
    k("s_movk_i32 s39, 2560")
    k("s_cselect_b32 s39, 1280, s39")
    if KVPAD:
        k(f"s_mov_b32 s40, {163840 + KVPAD}")
        k("s_cselect_b32 s40, 81920, s40")
    else:
        k("s_lshl_b32 s40, s39, 6")
    k("s_sub_u32 s38, s25, s38")
    if stg is not None:
        k("s_lshl_b32 s41, s38, 5")
        k("s_mul_i32 s42, s41, 205")
        k("s_lshr_b32 s42, s42, 10")
        k("s_mul_i32 s54, s42, s40")
        k("s_add_u32 s54, s54, s37")
        k("s_lshl_b32 s41, s24, 2")
        k("s_add_u32 s41, s41, s26")
        k("s_mul_i32 s41, s41, s39")
        k("s_add_u32 s54, s54, s41")
        k("s_mov_b32 s55, s42")
        k("s_mov_b32 s60, s38")
        def addrs():
            stage_addr(k, "qk", HH, TL, stg, ct="s60")
            k("s_lshl_b32 s52, s36, 15")
            k(f"s_add_u32 s52, s52, {stg}")
            if perm:
                k("s_lshl_b32 s41, s27, 14")
                k("s_add_u32 s52, s52, s41")
            k("s_lshl_b32 s38, s60, 5")
            k("s_lshl_b32 s42, s27, 4")
            k("s_add_u32 s38, s38, s42")
            k(f"v_add_u32 v21, s38, v{HH}")
            k(f"v_lshlrev_b32 v22, 3, v{TL}")
            k(f"s_mov_b32 s42, {STG_PM[19]:#x}")
            k(f"s_mov_b32 s43, {STG_PM[25]:#x}")
            for nb in range(2):
                for q in range(4):
                    d = 24 + nb * 4 + q
                    k(f"v_add_u32 v23, {nb*8+2*q}, v21")
                    k("v_mul_u32_u24 v18, 205, v23")
                    k("v_lshrrev_b32 v18, 10, v18")
                    k("v_mul_u32_u24 v19, 5, v18")
                    k("v_sub_u32 v23, v23, v19")
                    k("v_cmp_eq_u32 vcc, 19, v18")
                    k("v_mov_b32 v19, 0x43210")
                    k("v_mov_b32 v20, s42")
                    k("v_cndmask_b32 v19, v19, v20, vcc")
                    k("v_cmp_eq_u32 vcc, 25, v18")
                    k("v_mov_b32 v20, s43")
                    k("v_lshlrev_b32 v23, 2, v23")
                    k("v_cndmask_b32 v19, v19, v20, vcc")
                    k("v_bfe_u32 v23, v19, v23, 4")
                    k("v_subrev_u32 v18, s55, v18")
                    k("v_mul_u32_u24 v18, 1280, v18")
                    k("v_cmp_gt_u32 vcc, 4, v23")
                    k("v_lshrrev_b32 v19, 1, v23")
                    k("v_lshl_add_u32 v18, v19, 9, v18")
                    k("v_and_b32 v19, 1, v23")
                    k("v_lshl_add_u32 v18, v19, 3, v18")
                    k("v_cndmask_b32 v19, 0, v22, vcc")
                    k("v_add_u32 v18, v18, v22")
                    k("v_add_u32 v18, v18, v19")
                    k(f"v_add_u32 v{d}, s52, v18")
        if late is None: addrs()
        else: late.append(addrs)
        return
    k("s_lshl_b32 s41, s24, 2")
    k("s_lshl_b32 s42, s36, 1")
    k("s_add_u32 s41, s41, s42")
    k("s_mul_i32 s41, s41, s39")
    k("s_add_u32 s52, s37, s41")
    k("s_add_u32 s53, s52, s39")
    if perm:
        k("s_cmp_eq_u32 s27, 1")
        k("s_cselect_b32 s37, s53, s52")
        k("s_cselect_b32 s53, s52, s53")
        k("s_mov_b32 s52, s37")
    k("s_lshl_b32 s38, s38, 5")
    k("s_lshl_b32 s42, s27, 4")
    k("s_add_u32 s38, s38, s42")
    k(f"v_add_u32 v21, s38, v{HH}")
    k(f"v_lshlrev_b32 v22, 3, v{TL}")
    for nb in range(2):
        for q in range(4):
            d = 24 + nb * 4 + q
            k(f"v_add_u32 v23, {nb*8+2*q}, v21")
            k("v_mul_u32_u24 v18, 205, v23")
            k("v_lshrrev_b32 v18, 10, v18")
            k("v_mul_u32_u24 v19, 5, v18")
            k("v_sub_u32 v23, v23, v19")
            k("v_mul_lo_u32 v18, v18, s40")
            k("v_cmp_gt_u32 vcc, 4, v23")
            k("v_lshrrev_b32 v19, 1, v23")
            k("v_lshl_add_u32 v18, v19, 9, v18")
            k("v_and_b32 v19, 1, v23")
            k("v_lshl_add_u32 v18, v19, 3, v18")
            k("v_cndmask_b32 v19, 0, v22, vcc")
            k("v_add_u32 v18, v18, v22")
            k(f"v_add_u32 v{d}, v18, v19")
    if LINST and perm:
        k("s_lshl_b32 s52, s2, 15")
        k("s_lshl_b32 s53, s26, 13")
        k("s_add_u32 s52, s52, s53")
        k(f"s_add_u32 s52, s52, {WS_Q + QKD}")
        k("s_add_u32 s53, s52, 4096")
        for i in range(8):
            k(f"v_lshlrev_b32 v{24+i}, 3, v0")
            k(f"v_add_u32 v{24+i}, {i*512}, v{24+i}")


def epi_qk(k, ACC, STATS, HH, TL, perm=False, stg=None):
    NB, TB = 2, 2
    k(f"s_mul_i32 s37, s36, 256")
    k(f"v_lshlrev_b32 v20, 2, v{TL}")
    k(f"v_add_u32 v20, s37, v20")
    k(f"v_add_u32 v20, {STATS}, v20")
    if perm:
        k("s_lshl_b32 s37, s27, 7")
        k("v_xor_b32 v20, s37, v20")
        k("v_xor_b32 v19, 128, v20")
    for tb in range(TB):
        if perm:
            k(f"ds_read_b32 v{32+2*tb}, v{20-tb}")
            k(f"ds_read_b32 v{33+2*tb}, v{20-tb} offset:512")
        else:
            k(f"ds_read_b32 v{32+2*tb}, v20 offset:{tb*128}")
            k(f"ds_read_b32 v{33+2*tb}, v20 offset:{512+tb*128}")
    k(f"v_lshlrev_b32 v21, 4, v{HH}")
    k("s_lshl_b32 s37, s27, 8")
    k("v_add_u32 v21, s37, v21")
    k(f"v_add_u32 v21, {STATS+1024}, v21")
    CS = 128
    for nb in range(NB):
        for q in range(4):
            k(f"ds_read_b128 v[{CS+(nb*4+q)*4}:{CS+(nb*4+q)*4+3}], v21 offset:{nb*128+q*32}")
    k("s_waitcnt lgkmcnt(0)")
    k("s_nop 7")
    n = 0
    for nb in range(NB):
        for q in range(4):
            cs = CS + (nb * 4 + q) * 4
            for tb in range(TB):
                a = ACC + (nb * TB + tb) * 16 + q * 4
                rs, rm = 32 + 2 * tb, 33 + 2 * tb
                t = 36 + 4 * (n % 2)
                for h in range(2):
                    k(f"v_pk_mul_f32 v[{t+2*h}:{t+2*h+1}], v[{cs+2*h}:{cs+2*h+1}], v[{rs}:{rs+1}] op_sel:[0,1] op_sel_hi:[1,1]")
                for h in range(2):
                    k(f"v_pk_fma_f32 v[{t+2*h}:{t+2*h+1}], v[{a+2*h}:{a+2*h+1}], v[{rs}:{rs+1}], v[{t+2*h}:{t+2*h+1}] op_sel_hi:[1,0,1] neg_lo:[0,0,1] neg_hi:[0,0,1]")
                o = 44 + 2 * (n % 4)
                k(f"v_cvt_pk_bf16_f32 v{o}, v{t}, v{t+1}")
                k(f"v_cvt_pk_bf16_f32 v{o+1}, v{t+2}, v{t+3}")
                if stg is not None:
                    if tb == 1: k(f"v_xor_b32 v{24+nb*4+q}, {STG_T}, v{24+nb*4+q}")
                    k(f"ds_write_b64 v{24+nb*4+q}, v[{o}:{o+1}]")
                else:
                    k(f"buffer_store_dwordx2 v[{o}:{o+1}], v{24+nb*4+q}, s[48:51], s{52+tb} offen")
                n += 1
    if stg is not None: stage_out(k, "qk")
    else: k("s_waitcnt vmcnt(0)")


def pre_v(k, HH, TL, perm=False, stg=None, late=None):
    k.srd(48, 6, 0, WS_SIZE)
    if stg is not None:
        k("s_sub_u32 s37, s25, 10")
        k("s_lshl_b32 s37, s37, 7")
        k("s_mul_i32 s55, s37, 205")
        k("s_lshr_b32 s55, s55, 12")
        k("s_mul_i32 s43, s55, 20")
        k("s_sub_u32 s43, s43, s37")
        k(f"s_mov_b32 s40, {163840 + KVPAD}")
        k("s_mul_i32 s54, s55, s40")
        k("s_lshl_b32 s41, s24, 2")
        k("s_add_u32 s41, s41, s26")
        k("s_mul_i32 s41, s41, 2560")
        k("s_add_u32 s54, s54, s41")
        k(f"s_add_u32 s54, s54, {WS_KV + QKD + 1280}")
        if late is None: stage_addr(k, "v", HH, TL, stg)
        else: late.append(lambda: stage_addr(k, "v", HH, TL, stg))
        k("s_lshl_b32 s52, s36, 15")
        k(f"s_add_u32 s52, s52, {stg}")
        if perm:
            k("s_lshl_b32 s41, s27, 14")
            k("s_add_u32 s52, s52, s41")
        k("s_lshl_b32 s38, s27, 6")
        k("s_add_u32 s37, s37, s38")
        for nb in range(2):
            k(f"v_add_u32 v20, s37, v{TL}")
            if nb: k("v_add_u32 v20, 32, v20")
            k("v_mul_u32_u24 v21, 205, v20")
            k("v_lshrrev_b32 v21, 12, v21")
            k("v_mul_u32_u24 v22, 20, v21")
            k("v_sub_u32 v22, v20, v22")
            k("v_subrev_u32 v21, s55, v21")
            k("v_mul_u32_u24 v21, 1280, v21")
            k("v_lshl_add_u32 v21, v22, 4, v21")
            k(f"v_mul_u32_u24 v22, 320, v{HH}")
            k("v_add_u32 v21, v21, v22")
            k(f"v_add_u32 v{24+nb}, s52, v21")
        return
    k("s_sub_u32 s37, s25, 10")
    k("s_lshl_b32 s37, s37, 7")
    k("s_lshl_b32 s38, s27, 6")
    k("s_add_u32 s37, s37, s38")
    for nb in range(2):
        k(f"v_add_u32 v20, s37, v{TL}")
        if nb: k("v_add_u32 v20, 32, v20")
        k("v_mul_u32_u24 v21, 205, v20")
        k("v_lshrrev_b32 v21, 12, v21")
        k("v_mul_u32_u24 v22, 20, v21")
        k("v_sub_u32 v22, v20, v22")
        k(f"s_mov_b32 s38, {163840 + KVPAD}")
        k("v_mul_lo_u32 v21, v21, s38")
        k("v_lshl_add_u32 v21, v22, 4, v21")
        k(f"v_mul_u32_u24 v22, 320, v{HH}")
        k(f"v_add_u32 v{24+nb}, v21, v22")
    k("s_lshl_b32 s41, s24, 2")
    k("s_lshl_b32 s42, s36, 1")
    k("s_add_u32 s41, s41, s42")
    k("s_mul_i32 s41, s41, 2560")
    k(f"s_add_u32 s52, s41, {WS_KV + QKD + 1280}")
    if perm:
        k("s_add_u32 s53, s52, 2560")
        k("s_cmp_eq_u32 s27, 1")
        k("s_cselect_b32 s37, s53, s52")
        k("s_cselect_b32 s53, s52, s53")
        k("s_mov_b32 s52, s37")
    if LINST and perm:
        k("s_lshl_b32 s52, s2, 15")
        k("s_lshl_b32 s53, s26, 13")
        k("s_add_u32 s52, s52, s53")
        k(f"s_add_u32 s52, s52, {WS_Q + QKD}")
        k("s_add_u32 s53, s52, 4096")
        for i in range(2):
            k(f"v_lshlrev_b32 v{24+i}, 4, v0")
            k(f"v_add_u32 v{24+i}, {i*2048}, v{24+i}")


def epi_v(k, ACC, STATS, HH, TL, perm=False, stg=None):
    NB, TB = 2, 2
    k("s_lshl_b32 s37, s36, 8")
    k(f"v_lshlrev_b32 v20, 4, v{HH}")
    k("v_add_u32 v20, s37, v20")
    k(f"v_add_u32 v20, {STATS}, v20")
    RS, RM = 128, 160
    if perm:
        k("s_lshl_b32 s37, s27, 7")
        k("v_xor_b32 v20, s37, v20")
        k("v_xor_b32 v19, 128, v20")
    def sa(tb, off): return f"v{20-tb} offset:{off}" if perm else f"v20 offset:{off+tb*128}"
    for tb in range(TB):
        for q in range(4):
            k(f"ds_read_b128 v[{RS+(tb*4+q)*4}:{RS+(tb*4+q)*4+3}], {sa(tb, q*32)}")
    k(f"v_lshlrev_b32 v21, 2, v{TL}")
    k("s_lshl_b32 s37, s27, 8")
    k("v_add_u32 v21, s37, v21")
    k(f"v_add_u32 v21, {STATS+1024}, v21")
    k("s_waitcnt lgkmcnt(4)")
    for tb in range(TB):
        for q in range(4):
            k(f"ds_read_b128 v[{RM+(tb*4+q)*4}:{RM+(tb*4+q)*4+3}], {sa(tb, 512+q*32)}")
    k("ds_read_b32 v32, v21")
    k("ds_read_b32 v34, v21 offset:128")
    k("s_waitcnt lgkmcnt(0)")
    k("s_nop 7")
    n = 0
    for nb in range(NB):
        cs = 32 + 2 * nb
        for tb in range(TB):
            for qp in range(2):
                o = 44 + 4 * (n % 2)
                for qq in range(2):
                    q = qp * 2 + qq
                    a = ACC + (nb * TB + tb) * 16 + q * 4
                    t = 36 + 4 * qq
                    rs, rm = RS + (tb * 4 + q) * 4, RM + (tb * 4 + q) * 4
                    for h in range(2):
                        k(f"v_pk_mul_f32 v[{t+2*h}:{t+2*h+1}], v[{rm+2*h}:{rm+2*h+1}], v[{cs}:{cs+1}] op_sel_hi:[1,0]")
                    for h in range(2):
                        k(f"v_pk_fma_f32 v[{t+2*h}:{t+2*h+1}], v[{a+2*h}:{a+2*h+1}], v[{rs+2*h}:{rs+2*h+1}], v[{t+2*h}:{t+2*h+1}] neg_lo:[0,0,1] neg_hi:[0,0,1]")
                    k(f"v_cvt_pk_bf16_f32 v{o+2*qq}, v{t}, v{t+1}")
                    k(f"v_cvt_pk_bf16_f32 v{o+2*qq+1}, v{t+2}, v{t+3}")
                k("s_nop 1")
                k(f"v_permlane32_swap_b32 v{o}, v{o+2}")
                k(f"v_permlane32_swap_b32 v{o+1}, v{o+3}")
                k("s_nop 1")
                if stg is not None:
                    if qp == 0 and (tb == 1 or False): k(f"v_xor_b32 v{24+nb}, {STG_T}, v{24+nb}")
                    k(f"ds_write_b128 v{24+nb}, v[{o}:{o+3}] offset:{qp*640}")
                elif perm:
                    k(f"buffer_store_dwordx4 v[{o}:{o+3}], v{24+nb}, s[48:51], s{52+tb} offen offset:{qp*(1024 if LINST else 640)}")
                else:
                    k(f"buffer_store_dwordx4 v[{o}:{o+3}], v{24+nb}, s[48:51], s52 offen offset:{tb*2560+qp*640}")
                n += 1
    if stg is not None: stage_out(k, "v")
    else: k("s_waitcnt vmcnt(0)")


GK1 = -2.0 * 0.7978845608028654 * 1.4426950408889634
GK2 = GK1 * 0.044715

def epi_w1(k, ACC, STATS, HH, TL, NS_=""):
    NB = 3
    k.srd(48, 6, 0, WS_SIZE)
    k("s_lshl_b32 s37, s36, 7")
    k(f"v_lshlrev_b32 v20, 2, v{TL}")
    k("v_add_u32 v20, s37, v20")
    k(f"v_add_u32 v20, {STATS}, v20")
    k("ds_read_b32 v32, v20")
    k("ds_read_b32 v33, v20 offset:512")
    k(f"v_lshlrev_b32 v21, 4, v{HH}")
    k(f"v_add_u32 v21, {STATS+1024}, v21")
    CS, BI = 128, 176
    for nb in range(NB):
        for q in range(4):
            k(f"ds_read_b128 v[{CS+(nb*4+q)*4}:{CS+(nb*4+q)*4+3}], v21 offset:{nb*128+q*32}")
    k("s_waitcnt lgkmcnt(6)")
    for nb in range(NB):
        for q in range(4):
            k(f"ds_read_b128 v[{BI+(nb*4+q)*4}:{BI+(nb*4+q)*4+3}], v21 offset:{512+nb*128+q*32}")
    k("s_lshl_b32 s39, s24, 2")
    k("s_add_u32 s39, s39, s36")
    k("s_mul_i32 s39, s39, 98304")
    k("s_mul_i32 s40, s25, 6144")
    k("s_add_u32 s39, s39, s40")
    k(f"s_add_u32 s52, s39, {WS_H}")
    k("s_add_u32 s53, s52, 2048")
    k("s_add_u32 s54, s52, 4096")
    k("v_lshlrev_b32 v22, 4, v0")
    k(f"v_mov_b32 v34, {f2u(GK1):#x}")
    k(f"v_mov_b32 v35, {f2u(GK2):#x}")
    k("s_waitcnt lgkmcnt(0)")
    k("s_nop 7")
    n = 0
    for nb in range(NB):
        for qp in range(2):
            o = 56 + 4 * (n % 2)
            for qq in range(2):
                q = qp * 2 + qq
                a = ACC + nb * 16 + q * 4
                cs = CS + (nb * 4 + q) * 4
                b = BI + (nb * 4 + q) * 4
                u, t = 36, 40
                for h in range(2):
                    k(f"v_pk_fma_f32 v[{u+2*h}:{u+2*h+1}], v[{cs+2*h}:{cs+2*h+1}], v[32:33], v[{b+2*h}:{b+2*h+1}] op_sel:[0,1,0] op_sel_hi:[1,1,1] neg_lo:[1,0,0] neg_hi:[1,0,0]")
                for h in range(2):
                    k(f"v_pk_fma_f32 v[{u+2*h}:{u+2*h+1}], v[{a+2*h}:{a+2*h+1}], v[32:33], v[{u+2*h}:{u+2*h+1}] op_sel_hi:[1,0,1]")
                for h in range(2):
                    k(f"v_pk_mul_f32 v[{t+2*h}:{t+2*h+1}], v[{u+2*h}:{u+2*h+1}], v[{u+2*h}:{u+2*h+1}]")
                for h in range(2):
                    k(f"v_pk_fma_f32 v[{t+2*h}:{t+2*h+1}], v[{t+2*h}:{t+2*h+1}], v[34:35], v[34:35] op_sel:[0,1,0] op_sel_hi:[1,1,0]")
                for h in range(2):
                    k(f"v_pk_mul_f32 v[{t+2*h}:{t+2*h+1}], v[{t+2*h}:{t+2*h+1}], v[{u+2*h}:{u+2*h+1}]")
                for i in range(4):
                    k(f"v_exp_f32 v{t+i}, v{t+i}")
                k("s_nop 0")
                for h in range(2):
                    k(f"v_pk_add_f32 v[{t+2*h}:{t+2*h+1}], v[{t+2*h}:{t+2*h+1}], 1.0 op_sel_hi:[1,0]")
                for i in range(4):
                    k(f"v_rcp_f32 v{t+i}, v{t+i}")
                k("s_nop 0")
                for h in range(2):
                    k(f"v_pk_mul_f32 v[{u+2*h}:{u+2*h+1}], v[{u+2*h}:{u+2*h+1}], v[{t+2*h}:{t+2*h+1}]")
                k(f"v_cvt_pk_bf16_f32 v{o+2*qq}, v{u}, v{u+1}")
                k(f"v_cvt_pk_bf16_f32 v{o+2*qq+1}, v{u+2}, v{u+3}")
            k("s_nop 1")
            k(f"v_permlane32_swap_b32 v{o}, v{o+2}")
            k(f"v_permlane32_swap_b32 v{o+1}, v{o+3}")
            k("s_nop 1")
            k(f"buffer_store_dwordx4 v[{o}:{o+3}], v22, s[48:51], s{52+nb} offen offset:{qp*1024}{NS_}")
            n += 1
    k("s_waitcnt vmcnt(0)")


def gen_gemmB(name, kind, layer, kidx=0, dbg=(), first=2, rawres=False, pfd=0, fz=None):
    NWG = 256
    if kind == "wo":
        K, WS_W, XSRC = 640, WS_WO, WS_O
        RES = WS_X0 if layer == 0 else WS_X2
        DST, ST = WS_X1, WS_ST1
    else:
        K, WS_W, XSRC = 1536, WS_W2, WS_H
        RES = WS_X1
        DST, ST = (WS_X2, WS_ST0) if layer == 0 else (None, None)
    NCH = K // 128
    XBLK = K * 64
    WB = 20480
    SLOT = WB + 16384
    NSLOT = 4
    LDS = NSLOT * SLOT
    rot = fz.rot if fz else 0
    HO = bool(fz and fz.wait is not None)
    XS = " sc1" if (HO and not fz.xplain) else ""
    NS_ = " ; nosc" if (fz and fz.xl and "x" not in XSC) else ""
    RSC = " sc1" if (fz and kind == "w2" and not fz.xplain) else ""
    if fz is None:
        k = Kern(name, NWG, 512, LDS, vgpr=128)
        k(f"s_cmp_ge_u32 s2, {NWG}")
        k(f"s_cbranch_scc1 {k.ref('end')}")
        k.stamp(0)
        k.karg(6, 80)
    else:
        k = fz.k
    if kind == "w2":
        k.karg(8, 56)
        if DST is None:
            k.karg(10, 64)
    if rawres:
        assert kind == "wo"
        k.karg(8, 0)
    if fz is None: wave_id(k, 26)
    k("s_and_b32 s20, s2, 7")
    k("s_lshr_b32 s21, s2, 3")
    if fz and fz.xl:
        k("s_and_b32 s22, s21, 3")
        k("s_lshl_b32 s23, s20, 2")
        k("s_add_u32 s24, s23, s22")
        k("s_lshr_b32 s25, s21, 2")
    else:
        k("s_lshr_b32 s22, s20, 1")
        k("s_lshl_b32 s22, s22, 3")
        k("s_and_b32 s23, s21, 7")
        k("s_add_u32 s24, s22, s23")
        k("s_and_b32 s22, s20, 1")
        k("s_lshl_b32 s22, s22, 2")
        k("s_lshr_b32 s23, s21, 3")
        k("s_add_u32 s25, s22, s23")
    k("s_cmp_lt_u32 s26, 4")
    k(f"s_cbranch_scc1 {k.ref('compute')}")
    k("s_sub_u32 s26, s26, 4")
    k("v_lshlrev_b32 v1, 4, v0")
    k(f"s_mul_i32 s40, s25, {K//8*1280}")
    k("s_mul_i32 s41, s26, 5120")
    k("s_add_u32 s40, s40, s41")
    k(f"s_add_u32 s40, s40, {WS_W}")
    k("s_mov_b32 s42, s41")
    k("s_lshl_b32 s43, s24, 1")
    k("s_lshr_b32 s47, s26, 1")
    k("s_add_u32 s43, s43, s47")
    k(f"s_mul_i32 s43, s43, {XBLK}")
    k("s_and_b32 s47, s26, 1")
    k("s_lshl_b32 s47, s47, 12")
    k("s_add_u32 s43, s43, s47")
    k(f"s_add_u32 s43, s43, {XSRC}")
    k("s_lshl_b32 s44, s26, 12")
    k(f"s_add_u32 s44, s44, {WB}")
    k("s_waitcnt lgkmcnt(0)")
    k.srd(12, 6, 0, WS_SIZE)
    def dma(ch, parts="xw"):
        slot = (ch + rot) % NSLOT
        if "x" in parts:
            k(f"s_add_u32 m0, s44, {slot*SLOT}")
            k(f"s_add_u32 s45, s43, {(0 if 'fixx' in dbg else ch)*8192}")
            for i in range(4):
                k(f"buffer_load_dwordx4 v1, s[12:15], s45 offen offset:{i*1024}{XS} lds")
        if "w" in parts:
            k(f"s_add_u32 m0, s42, {slot*SLOT}")
            k(f"s_add_u32 s45, s40, {(0 if 'fixw' in dbg else ch)*WB}")
            for i in range(4):
                k(f"buffer_load_dwordx4 v1, s[12:15], s45 offen offset:{i*1024} lds")
            k(f"s_add_u32 m0, s42, {slot*SLOT+4096}")
            k(f"s_add_u32 s45, s40, {(0 if 'fixw' in dbg else ch)*WB+4096}")
            k(f"buffer_load_dwordx4 v1, s[12:15], s45 offen lds")
    k.stamp(1)
    def pre(): k.stamp(2)
    def pre_issue():
        for c_ in range(first):
            dma(c_, "w")
        if kind == "wo":
            k("s_lshl_b32 s67, s24, 1")
            k("s_lshr_b32 s47, s26, 1")
            k("s_add_u32 s67, s67, s47")
            fz.poll(67, 32)
        else:
            k("s_lshr_b32 s67, s24, 1")
            fz.poll(67, 16)
        for c_ in range(first):
            dma(c_, "x")
        return 4 * (first - 1)
    if fz: fz.mode_publish()
    if fz and fz.xl and "H" in PT and kind == "wo":
        def tail():
            k("v_lshlrev_b32 v12, 7, v0")
            k("s_mul_i32 s46, s24, 196608")
            k("s_lshl_b32 s47, s25, 2")
            k("s_add_u32 s47, s47, s26")
            k("s_mul_i32 s47, s47, 6144")
            k("s_add_u32 s46, s46, s47")
            k(f"s_add_u32 s46, s46, {WS_H}")
            k("s_mov_b32 exec_hi, 0xffff")
            k("buffer_load_dword v13, v12, s[12:15], s46 offen")
            k("s_mov_b32 exec_hi, -1")
            return 1
        fz.tail = tail
    ring_loader(k, NCH, NSLOT, dma, 9, pre_b0=pre, first=first, pre_issue=(pre_issue if HO else None), fz=fz)
    fin_loader(k, fz, kidx)

    k.lab("compute")
    ACC, FA0, FB0, RS, BI = 32, 64, 88, 104, 116
    AW, AX = 1, 3
    k("s_and_b32 s27, s26, 1")
    k("s_lshr_b32 s36, s26, 1")
    k("v_lshrrev_b32 v17, 4, v0")
    k("v_and_b32 v16, 15, v0")
    k("v_mul_u32_u24 v20, 1280, v17")
    k("v_lshl_add_u32 v20, v16, 4, v20")
    k("s_mul_i32 s37, s27, 768")
    k(f"v_add_u32 v{AW}, s37, v20")
    k(f"v_add_u32 v{AW+1}, {2*SLOT}, v{AW}")
    k("v_lshlrev_b32 v20, 9, v17")
    k("v_lshl_add_u32 v20, v16, 4, v20")
    k("s_lshl_b32 s37, s36, 13")
    k(f"s_add_u32 s37, s37, {WB}")
    k(f"v_add_u32 v{AX}, s37, v20")
    k(f"v_add_u32 v{AX+1}, {2*SLOT}, v{AX}")
    k("v_lshrrev_b32 v20, 1, v17")
    k("v_lshlrev_b32 v20, 9, v20")
    k("v_lshl_add_u32 v20, v16, 4, v20")
    k("v_and_b32 v21, 1, v17")
    k("v_lshl_add_u32 v20, v21, 3, v20")
    k("s_lshl_b32 s38, s24, 1")
    k("s_add_u32 s38, s38, s36")
    k("s_mul_i32 s39, s38, 40960")
    k("s_mul_i32 s40, s25, 5120")
    k("s_add_u32 s39, s39, s40")
    k("s_mul_i32 s40, s27, 3072")
    k("s_add_u32 s39, s39, s40")
    if rawres:
        k("v_mul_u32_u24 v20, 1280, v16")
        k("v_lshl_add_u32 v20, v17, 3, v20")
        k(f"v_add_u32 v21, {16*1280}, v20")
        k(f"s_mul_i32 s52, s38, {32*1280}")
        k("s_mul_i32 s40, s25, 160")
        k("s_add_u32 s52, s52, s40")
        k("s_mul_i32 s40, s27, 96")
        k("s_add_u32 s52, s52, s40")
    else:
        k(f"s_add_u32 s52, s39, {RES}")
    k("s_waitcnt lgkmcnt(0)")
    k.srd(48, 6, 0, WS_SIZE)
    if rawres:
        k.srd(56, 8, 0, X_BYTES)
    PFT = TilePF(k, pfd, first, NCH, 5, 6, 7, 48)
    if pfd:
        k("s_and_b32 s41, s25, 3")
        k("s_lshr_b32 s42, s41, 1")
        k("s_lshl_b32 s43, s24, 1")
        k("s_add_u32 s42, s42, s43")
        k(f"s_mul_i32 s42, s42, {XBLK}")
        k("s_and_b32 s41, s41, 1")
        k("s_lshl_b32 s41, s41, 12")
        k("s_add_u32 s42, s42, s41")
        k("s_lshl_b32 s41, s26, 10")
        k("s_add_u32 s42, s42, s41")
        k(f"s_add_u32 s42, s42, {XSRC + first*8192}")
        k("s_and_b32 s41, s24, 7")
        k("s_mul_i32 s41, s41, 2560")
        k("s_mul_i32 s43, s26, 640")
        k("s_add_u32 s41, s41, s43")
        k(f"s_mul_i32 s43, s25, {K//8*1280}")
        k("s_add_u32 s41, s41, s43")
        k(f"s_add_u32 s41, s41, {WS_W + first*WB - 8*128}")
        k("v_lshlrev_b32 v5, 7, v0")
        k("v_mov_b32 v8, s41")
        k("v_mov_b32 v9, s42")
        k("v_cmp_gt_u32 vcc, 8, v0")
        k(f"v_mov_b32 v6, {WB}")
        k("v_mov_b32 v10, 8192")
        k("v_cndmask_b32 v8, v8, v9, vcc")
        k("v_cndmask_b32 v6, v6, v10, vcc")
        k("v_add_u32 v5, v8, v5")
        k("v_cmp_gt_u32 vcc, 13, v0")
        k("v_mov_b32 v9, 0x80000000")
        k("s_nop 0")
        k("v_cndmask_b32 v5, v9, v5, vcc")
        PFT.start()

    def path(NB):
        nx0 = PFT.next
        for nb in range(NB):
            for tb in range(2):
                d = RS + (nb * 2 + tb) * 2
                if rawres:
                    k(f"buffer_load_dwordx2 v[{d}:{d+1}], v{20+tb}, s[56:59], s52 offen offset:{nb*32}")
                else:
                    k(f"buffer_load_dwordx2 v[{d}:{d+1}], v20, s[48:51], s52 offen offset:{nb*1024+tb*256}{RSC}")
        if kind == "w2":
            k.srd(56, 8, 0, 1280)
            k("s_mul_i32 s40, s25, 160")
            k("s_mul_i32 s41, s27, 96")
            k("s_add_u32 s40, s40, s41")
            k("v_lshlrev_b32 v21, 3, v17")
            for nb in range(NB):
                k(f"buffer_load_dwordx2 v[{BI+2*nb}:{BI+2*nb+1}], v21, s[56:59], s40 offen offset:{nb*32}")
        if fz and fz.xl and "x" in PT and DST is not None:
            k("v_lshlrev_b32 v127, 7, v0")
            k(f"s_add_u32 s40, s39, {DST}")
            k(f"s_mov_b64 exec, {(1 << (8*NB)) - 1:#x}")
            k("buffer_load_dword v126, v127, s[48:51], s40 offen")
            k("s_lshl_b32 s40, s25, 1")
            k("s_add_u32 s40, s40, s27")
            k("s_lshl_b32 s40, s40, 14")
            k("s_lshl_b32 s41, s38, 8")
            k("s_add_u32 s40, s40, s41")
            k(f"s_add_u32 s40, s40, {ST}")
            k("s_mov_b64 exec, 3")
            k("buffer_load_dword v125, v127, s[48:51], s40 offen")
            k("s_mov_b64 exec, -1")
        if fz and fz.xl and "G" in PT and kind == "wo":
            k("v_lshlrev_b32 v127, 7, v0")
            k("s_mul_i32 s40, s24, 196608")
            k("s_lshl_b32 s41, s25, 2")
            k("s_add_u32 s41, s41, s26")
            k("s_mul_i32 s41, s41, 6144")
            k("s_add_u32 s40, s40, s41")
            k(f"s_add_u32 s40, s40, {WS_H}")
            k("s_mov_b32 exec_hi, 0xffff")
            k("buffer_load_dword v124, v127, s[48:51], s40 offen")
            k("s_mov_b32 exec_hi, -1")
        if fz and "u" in PT and DST is None:
            k.srd(60, 10, 0, X_BYTES)
            k("v_and_b32 v127, 31, v0")
            k("v_mul_u32_u24 v127, 1280, v127")
            k("v_lshrrev_b32 v126, 5, v0")
            k(f"v_mul_u32_u24 v126, {NB*32 - 4}, v126")
            k("v_add_u32 v127, v127, v126")
            k("s_mul_i32 s40, s38, 40960")
            k("s_mul_i32 s41, s25, 160")
            k("s_add_u32 s40, s40, s41")
            k("s_mul_i32 s41, s27, 96")
            k("s_add_u32 s40, s40, s41")
            k("buffer_load_dword v126, v127, s[60:63], s40 offen")
        def reads(step):
            ch, ks = divmod(step, 4)
            slot = (ch + rot) % NSLOT
            half, sl = divmod(slot, 2)
            st = step & 1
            out = []
            for tb in range(2):
                d = FB0 + st * 8 + tb * 4
                out.append(f"ds_read_b128 v[{d}:{d+3}], v{AX+half} offset:{sl*SLOT + ks*2048 + tb*256}")
            for nb in range(NB):
                d = FA0 + st * 12 + nb * 4
                out.append(f"ds_read_b128 v[{d}:{d+3}], v{AW+half} offset:{sl*SLOT + ks*5120 + nb*256}")
            return out
        k.stamp(1)
        k("s_barrier")
        k.stamp(2)
        for r in reads(0):
            k(r)
        NS = NCH * 4
        for step in range(NS):
            st = step & 1
            k("s_waitcnt lgkmcnt(0)")
            if step % 4 == 3 and step + 1 < NS:
                k("s_barrier")
                PFT.at_barrier()
            rd = reads(step + 1) if step + 1 < NS else []
            mf = []
            for nb in range(NB):
                for tb in range(2):
                    d = ACC + (nb * 2 + tb) * 4
                    a = FA0 + st * 12 + nb * 4
                    b = FB0 + st * 8 + tb * 4
                    c = "0" if step == 0 else f"v[{d}:{d+3}]"
                    mf.append(f"v_mfma_f32_16x16x32_bf16 v[{d}:{d+3}], v[{a}:{a+3}], v[{b}:{b+3}], {c}")
            ri = 0
            for i, m in enumerate(mf):
                if "nomfma" not in dbg: k(m)
                for r in rd[ri:ri + 2]:
                    if "fakerd" in dbg: k("s_nop 0"); k("s_nop 0")
                    elif "nords" not in dbg: k(r)
                ri += 2
            assert ri >= len(rd)
        k.stamp(3)
        PFT.next = nx0
        if fz and fz.xl and fz.p == 0: fz.mode_issue(48, 250)
        k("s_waitcnt vmcnt(0)")
        want_stats = ST is not None
        if want_stats:
            for r in (8, 9, 10, 11):
                k(f"v_mov_b32 v{r}, 0")
        k("v_lshlrev_b32 v22, 4, v0")
        if DST is None:
            k.srd(60, 10, 0, X_BYTES)
            k("v_and_b32 v23, 31, v0")
            k("v_mul_u32_u24 v23, 1280, v23")
            k("v_lshrrev_b32 v24, 5, v0")
            k("v_lshl_add_u32 v23, v24, 4, v23")
            k("s_mul_i32 s40, s38, 40960")
            k("s_mul_i32 s41, s25, 160")
            k("s_add_u32 s40, s40, s41")
            k("s_mul_i32 s41, s27, 96")
            k("s_add_u32 s53, s40, s41")
        else:
            k(f"s_add_u32 s53, s39, {DST}")
        k("s_nop 4")
        for nb in range(NB):
            o = 24 + 4 * (nb % 2)
            for tb in range(2):
                a = ACC + (nb * 2 + tb) * 4
                d = RS + (nb * 2 + tb) * 2
                t = 12
                k(f"v_lshlrev_b32 v{t}, 16, v{d}")
                k(f"v_and_b32 v{t+1}, 0xffff0000, v{d}")
                k(f"v_lshlrev_b32 v{t+2}, 16, v{d+1}")
                k(f"v_and_b32 v{t+3}, 0xffff0000, v{d+1}")
                k(f"v_pk_add_f32 v[{a}:{a+1}], v[{a}:{a+1}], v[{t}:{t+1}]")
                k(f"v_pk_add_f32 v[{a+2}:{a+3}], v[{a+2}:{a+3}], v[{t+2}:{t+3}]")
                if kind == "w2":
                    b = BI + 2 * nb
                    k(f"v_lshlrev_b32 v{t+4}, 16, v{b}")
                    k(f"v_and_b32 v{t+5}, 0xffff0000, v{b}")
                    k(f"v_lshlrev_b32 v{t+6}, 16, v{b+1}")
                    k(f"v_and_b32 v{t+7}, 0xffff0000, v{b+1}")
                    k(f"v_pk_add_f32 v[{a}:{a+1}], v[{a}:{a+1}], v[{t+4}:{t+5}]")
                    k(f"v_pk_add_f32 v[{a+2}:{a+3}], v[{a+2}:{a+3}], v[{t+6}:{t+7}]")
                if want_stats:
                    for r in range(4):
                        k(f"v_add_f32 v{8+tb}, v{8+tb}, v{a+r}")
                        k(f"v_fmac_f32 v{10+tb}, v{a+r}, v{a+r}")
                k(f"v_cvt_pk_bf16_f32 v{o+2*tb}, v{a}, v{a+1}")
                k(f"v_cvt_pk_bf16_f32 v{o+2*tb+1}, v{a+2}, v{a+3}")
            k("s_nop 1")
            k(f"v_permlane16_swap_b32 v{o}, v{o+2}")
            k(f"v_permlane16_swap_b32 v{o+1}, v{o+3}")
            k("s_nop 1")
            if DST is None:
                k(f"buffer_store_dwordx4 v[{o}:{o+3}], v23, s[60:63], s53 offen offset:{nb*32}" + (" ; nosc" if OUTP else ""))
            else:
                k(f"buffer_store_dwordx4 v[{o}:{o+3}], v22, s[48:51], s53 offen offset:{nb*1024}{NS_}")
        if want_stats:
            k("v_permlane16_swap_b32 v8, v9")
            k("v_permlane16_swap_b32 v10, v11")
            k("s_nop 1")
            k("v_add_f32 v8, v8, v9")
            k("v_add_f32 v10, v10, v11")
            k("s_nop 1")
            k("v_permlane32_swap_b32 v8, v10")
            k("s_nop 1")
            k("v_add_f32 v8, v8, v10")
            k("v_and_b32 v12, 31, v0")
            k("v_lshlrev_b32 v12, 3, v12")
            k("v_lshrrev_b32 v13, 5, v0")
            k("v_lshl_add_u32 v12, v13, 2, v12")
            k("s_lshl_b32 s40, s25, 1")
            k("s_add_u32 s40, s40, s27")
            k("s_lshl_b32 s40, s40, 14")
            k("s_lshl_b32 s41, s38, 8")
            k("s_add_u32 s40, s40, s41")
            k(f"s_add_u32 s40, s40, {ST}")
            k(f"buffer_store_dword v8, v12, s[48:51], s40 offen{NS_}")
        k("s_waitcnt vmcnt(0)")
        fin_compute(k, fz, kidx)
    k("s_cmp_eq_u32 s27, 1")
    k(f"s_cbranch_scc1 {k.ref('p2')}")
    path(3)
    k.lab("p2")
    path(2)
    return k


ATT_PACK = "cvt"
def gen_attn(name, kidx=0, pack=None, force_slow=False):
    pack = pack or ATT_PACK
    NWG = 256
    LDS = 163840
    k = Kern(name, NWG, 512, LDS, vgpr=128)
    KA, KB, VA = 1, 2, 3
    Q16, Q4 = 8, 12
    K16 = [16, 20]; K4 = [24, 26]
    V = [32, 40]
    S = [48, 64]
    P = 80
    O = 96
    k(f"s_cmp_ge_u32 s2, {NWG}")
    k(f"s_cbranch_scc1 {k.ref('end')}")
    k.stamp(0)
    k.karg(6, 80)
    wave_id(k, 26)
    k("s_and_b32 s20, s2, 7")
    k("s_lshr_b32 s21, s2, 3")
    k("s_lshr_b32 s22, s21, 3")
    k("s_lshl_b32 s23, s20, 2")
    k("s_add_u32 s24, s23, s22")
    k("s_and_b32 s25, s21, 7")
    k("s_lshl_b32 s25, s25, 3")
    k("s_add_u32 s25, s25, s26")
    k("v_lshlrev_b32 v4, 4, v0")
    k("s_lshl_b32 s27, s24, 6")
    k("s_add_u32 s27, s27, s25")
    k("s_mul_i32 s27, s27, 1280")
    k(f"s_add_u32 s27, s27, {WS_Q}")
    k("s_mul_i32 s28, s24, 163840")
    k(f"s_add_u32 s28, s28, {WS_KV}")
    k("s_mul_i32 s29, s26, 3072")
    k("s_mul_i32 s30, s26, 17408")
    k("s_add_u32 s30, s30, 24576")
    k("v_and_b32 v5, 31, v0")
    k("v_lshlrev_b32 v6, 3, v5")
    k(f"v_mov_b32 v{Q4}, 0")
    k(f"v_mov_b32 v{Q4+1}, 0")
    k("s_waitcnt lgkmcnt(0)")
    k.srd(12, 6, 0, WS_SIZE)
    k(f"buffer_load_dwordx4 v[{Q16}:{Q16+3}], v4, s[12:15], s27 offen")
    k("s_mov_b64 exec, 0xffffffff")
    k(f"buffer_load_dwordx2 v[{Q4}:{Q4+1}], v6, s[12:15], s27 offen offset:1024")
    k("s_mov_b64 exec, -1")
    k("s_mov_b32 m0, s29")
    k("s_add_u32 s31, s28, s29")
    for i in range(3):
        k(f"buffer_load_dwordx4 v4, s[12:15], s31 offen offset:{i*1024} lds")
    for g in range(5):
        k(f"s_add_u32 m0, s30, {g*4096}")
        k(f"s_add_u32 s31, s28, s30")
        if g: k(f"s_add_u32 s31, s31, {g*4096}")
        for i in range(4 if g < 4 else 1):
            k(f"buffer_load_dwordx4 v4, s[12:15], s31 offen offset:{i*1024} lds")
    k.stamp(1)
    def lane_addrs():
        k("v_and_b32 v5, 31, v0")
        k("v_and_b32 v6, 0x13, v5")
        k("v_and_b32 v7, 4, v5")
        k("v_lshl_or_b32 v6, v7, 1, v6")
        k("v_and_b32 v7, 8, v5")
        k("v_lshrrev_b32 v7, 1, v7")
        k("v_or_b32 v6, v6, v7")
        k("v_lshrrev_b32 v7, 5, v0")
        k(f"v_lshlrev_b32 v{KA}, 9, v7")
        k(f"v_lshl_add_u32 v{KA}, v6, 4, v{KA}")
        k(f"v_lshlrev_b32 v{KB}, 3, v6")
        k(f"v_add_u32 v{KB}, 1024, v{KB}")
        k(f"v_mul_u32_u24 v{VA}, 320, v7")
        k(f"v_lshl_add_u32 v{VA}, v5, 4, v{VA}")
        k(f"v_add_u32 v{VA}, 1280, v{VA}")
    lane_addrs()
    k("v_cmp_eq_u32 vcc, 20, v5")
    k("v_mov_b32 v7, 0x3f803f80")
    k("s_mov_b32 s34, 0x000fffff")
    k("s_mov_b32 s35, 0x000fffff")
    k(f"v_cndmask_b32 v{V[0]}, 0, v7, vcc")
    for r in range(1, 16):
        k(f"v_mov_b32 v{V[0]+r}, v{V[0]}")
    for r in range(16):
        k(f"v_mov_b32 v{O+r}, 0")
    for r in range(4, 8):
        k(f"v_mov_b32 v{P+r}, 0")
    k("s_waitcnt vmcnt(17)")
    k("s_barrier")
    k.stamp(2)
    def rdK(buf, off):
        k(f"ds_read_b128 v[{K16[buf]}:{K16[buf]+3}], v{KA} offset:{off}")
        k(f"ds_read_b64 v[{K4[buf]}:{K4[buf]+1}], v{KB} offset:{off}")
    def rdV(buf, off):
        k("s_mov_b64 exec, s[34:35]")
        k(f"ds_read_b128 v[{V[buf]}:{V[buf]+3}], v{VA} offset:{off}")
        k(f"ds_read_b128 v[{V[buf]+4}:{V[buf]+7}], v{VA} offset:{off+640}")
        k("s_mov_b64 exec, -1")
    def M1(n): k(f"v_mfma_f32_32x32x16_bf16 v[{S[n]}:{S[n]+15}], v[{K16[n]}:{K16[n]+3}], v[{Q16}:{Q16+3}], 0")
    def M2(n): k(f"v_mfma_f32_32x32x8bf16_1k v[{S[n]}:{S[n]+15}], v[{K4[n]}:{K4[n]+1}], v[{Q4}:{Q4+1}], v[{S[n]}:{S[n]+15}]")
    def MPV(vb, f): k(f"v_mfma_f32_32x32x16_bf16 v[{O}:{O+15}], v[{V[vb]+4*f}:{V[vb]+4*f+3}], v[{P+4*f}:{P+4*f+3}], v[{O}:{O+15}]")
    def G(c, g):
        s = S[c] + 4 * g
        p = P + 2 * g
        if pack == "cvt":
            for i in range(4):
                k(f"v_exp_f32 v{s+i}, v{s+i}")
            k(f"v_cvt_pk_bf16_f32 v{p}, v{s}, v{s+1}")
            k(f"v_cvt_pk_bf16_f32 v{p+1}, v{s+2}, v{s+3}")
        else:
            k(f"v_exp_f32 v{p}, v{s+1}")
            k(f"v_exp_f32 v{s}, v{s}")
            k(f"v_exp_f32 v{p+1}, v{s+3}")
            k(f"v_exp_f32 v{s+2}, v{s+2}")
            k(f"v_mov_b32_sdwa v{p}, v{s} dst_sel:WORD_0 dst_unused:UNUSED_PRESERVE src0_sel:WORD_1")
            k(f"v_mov_b32_sdwa v{p+1}, v{s+2} dst_sel:WORD_0 dst_unused:UNUSED_PRESERVE src0_sel:WORD_1")
    rdK(0, 0)
    rdK(1, 2560)
    rdV(0, 0)
    k("s_waitcnt lgkmcnt(4)")
    M1(0)
    k("s_mov_b32 s36, 0")
    k("s_nop 7")
    k("s_nop 1")
    M2(0)
    k("s_nop 7")
    k("s_nop 3")
    k.lab("loop")
    k("s_cmp_eq_u32 s36, 1")
    k(f"s_cbranch_scc0 {k.ref('nosync')}")
    k("s_waitcnt vmcnt(0)")
    k("s_barrier")
    k.lab("nosync")
    k("s_cmp_eq_u32 s36, 7")
    k(f"s_mov_b32 s37, {(-7*20480) & 0xffffffff:#x}")
    k("s_cselect_b32 s37, s37, 20480")
    for t in range(8):
        c, n = t & 1, (t + 1) & 1
        k("s_waitcnt lgkmcnt(0)")
        M1(n)
        G(c, 0)
        MPV(n, 1)
        if t == 6:
            k(f"v_add_u32 v{KA}, s37, v{KA}")
            k(f"v_add_u32 v{KB}, s37, v{KB}")
        if t == 7:
            k(f"v_add_u32 v{VA}, s37, v{VA}")
        rdK(c, ((t + 2) % 8) * 2560)
        rdV(n, ((t + 1) % 8) * 2560)
        G(c, 1)
        M2(n)
        G(c, 2)
        MPV(c, 0)
        G(c, 3)
    k("s_add_u32 s36, s36, 1")
    k("s_cmp_lt_u32 s36, 8")
    k(f"s_cbranch_scc1 {k.ref('loop')}")
    k("s_nop 0")
    MPV(1, 1)
    k.stamp(3)
    k("s_waitcnt lgkmcnt(0)")
    k("s_nop 7")
    k("s_nop 3")
    k(f"v_mov_b32 v4, v{O+8}")
    k(f"v_mov_b32 v5, v{O+8}")
    k("v_mov_b32 v6, 0")
    k("s_nop 0")
    k("v_permlane32_swap_b32 v4, v5")
    for r in range(12):
        k(f"v_fma_f32 v6, v{O+r}, 0, v6")
    k(f"v_cmp_lt_f32 vcc, {f2u(2.0**-40):#x}, v5")
    k(f"v_cmp_gt_f32 s[38:39], {f2u(2.0**40):#x}, v5" if False else f"s_mov_b32 s40, {f2u(2.0**40):#x}")
    k("v_cmp_gt_f32 s[38:39], s40, v5")
    k("v_cmp_eq_f32 s[42:43], 0, v6")
    k("s_nop 3")
    k("s_and_b64 vcc, vcc, s[38:39]")
    k("s_and_b64 vcc, vcc, s[42:43]")
    if force_slow:
        k("s_mov_b64 vcc, 0")
    k("s_cmp_eq_u64 vcc, -1")
    k(f"s_cbranch_scc0 {k.ref('slow')}")
    k.lab("fin")
    k("v_rcp_f32 v5, v5")
    k("s_mul_i32 s40, s24, 5")
    k("v_lshrrev_b32 v7, 5, v0")
    k("v_add_u32 v7, s40, v7")
    k("v_lshrrev_b32 v6, 1, v7")
    k("v_lshlrev_b32 v6, 9, v6")
    k("v_and_b32 v7, 1, v7")
    k("v_lshl_add_u32 v6, v7, 3, v6")
    k("v_and_b32 v7, 31, v0")
    k("v_lshl_add_u32 v6, v7, 4, v6")
    k("s_mul_i32 s41, s25, 40960")
    k(f"s_add_u32 s41, s41, {WS_O}")
    for r in range(0, 12, 2):
        k(f"v_pk_mul_f32 v[{O+r}:{O+r+1}], v[{O+r}:{O+r+1}], v[4:5] op_sel:[0,1] op_sel_hi:[1,1]")
    k("s_nop 0")
    for j in range(6):
        k(f"v_cvt_pk_bf16_f32 v{16+j}, v{O+2*j}, v{O+2*j+1}")
    k("buffer_store_dwordx2 v[16:17], v6, s[12:15], s41 offen")
    k("buffer_store_dwordx2 v[18:19], v6, s[12:15], s41 offen offset:512")
    k("s_mov_b64 exec, 0xffffffff")
    k("buffer_store_dwordx2 v[20:21], v6, s[12:15], s41 offen offset:1024")
    k("s_waitcnt vmcnt(0)")
    k.stamp(4); k.stamp_flush(6, kidx, 5, 26)
    k.lab("end")
    k("s_endpgm")
    k.lab("slow")
    lane_addrs()
    MX = 88
    k(f"v_mov_b32 v{MX}, {f2u(-3.0e38):#x}")
    for r in range(16):
        k(f"v_mov_b32 v{O+r}, 0")
    k("s_mov_b32 s36, 0")
    k.lab("sl")
    rdK(0, 0)
    rdV(0, 0)
    k("s_waitcnt lgkmcnt(0)")
    M1(0)
    k("s_nop 7"); k("s_nop 1")
    M2(0)
    k("s_nop 7"); k("s_nop 3")
    s = S[0]
    k(f"v_max3_f32 v4, v{s}, v{s+1}, v{s+2}")
    for i in range(3, 15, 2):
        k(f"v_max3_f32 v4, v4, v{s+i}, v{s+i+1}")
    k(f"v_max_f32 v4, v4, v{s+15}")
    k("v_mov_b32 v5, v4")
    k("s_nop 1")
    k("v_permlane32_swap_b32 v4, v5")
    k("s_nop 1")
    k(f"v_max3_f32 v4, v4, v5, v{MX}")
    k(f"v_sub_f32 v5, v{MX}, v4")
    k("v_exp_f32 v5, v5")
    k(f"v_mov_b32 v{MX}, v4")
    for i in range(16):
        k(f"v_sub_f32 v{s+i}, v{s+i}, v4")
    for i in range(16):
        k(f"v_exp_f32 v{s+i}, v{s+i}")
    for r in range(12):
        k(f"v_mul_f32 v{O+r}, v{O+r}, v5")
    for j in range(8):
        k(f"v_cvt_pk_bf16_f32 v{P+j}, v{s+2*j}, v{s+2*j+1}")
    k(f"v_add_u32 v{KA}, 2560, v{KA}")
    k(f"v_add_u32 v{KB}, 2560, v{KB}")
    k(f"v_add_u32 v{VA}, 2560, v{VA}")
    k("s_nop 4")
    MPV(0, 0)
    MPV(0, 1)
    k("s_nop 7"); k("s_nop 3")
    k("s_add_u32 s36, s36, 1")
    k("s_cmp_lt_u32 s36, 64")
    k(f"s_cbranch_scc1 {k.ref('sl')}")
    k(f"v_mov_b32 v4, v{O+8}")
    k(f"v_mov_b32 v5, v{O+8}")
    k("s_nop 1")
    k("v_permlane32_swap_b32 v4, v5")
    k("s_nop 1")
    k(f"s_branch {k.ref('fin')}")
    return k


def l2_prefetch(k, items, half, idx, lw, tmp, vaddr, vdst, srd=12):
    k(f"v_lshlrev_b32 v{vaddr}, 7, v0")
    for n, (base, hb) in enumerate(items):
        per_wg = hb // 32
        per_w = per_wg // 4
        lines = (per_w + 127) // 128
        k(f"s_mul_i32 s{tmp}, s{half}, {hb}")
        k(f"s_mul_i32 s{tmp+1}, s{idx}, {per_wg}")
        k(f"s_add_u32 s{tmp}, s{tmp}, s{tmp+1}")
        k(f"s_mul_i32 s{tmp+1}, s{lw}, {per_w}")
        k(f"s_add_u32 s{tmp}, s{tmp}, s{tmp+1}")
        k(f"s_add_u32 s{tmp}, s{tmp}, {base}")
        done = 0
        while done < lines:
            n_ = min(64, lines - done)
            if n_ < 64:
                m = (1 << n_) - 1
                k(f"s_mov_b32 exec_lo, {m & 0xffffffff:#x}")
                k(f"s_mov_b32 exec_hi, {m >> 32:#x}")
            k(f"buffer_load_dword v{vdst}, v{vaddr}, s[{srd}:{srd+3}], s{tmp} offen")
            if n_ < 64:
                k("s_mov_b64 exec, -1")
            done += n_
            if done < lines:
                k(f"s_add_u32 s{tmp}, s{tmp}, {64*128}")
            vdst += 1

PFA = ""
RINGD = 0
def att_prefetch(k, spec, idx, lw, va, vd, srd=12):
    REG = {"o": (WS_WO, 8, 102400), "1": (WS_W1, 16, 122880), "2": (WS_W2, 8, 245760), "q": (WS_WQ, 16, 163840)}
    k(f"v_lshlrev_b32 v{va}, 7, v0")
    k(f"s_lshl_b32 s42, s{idx}, 2")
    k(f"s_add_u32 s42, s42, s{lw}")
    n = 0
    for it in spec.split(","):
        r, _, den = it.partition("/")
        base, nt, stride = REG[r]
        nb = stride // int(den or 1)
        wpt = 128 // nt
        per_w = nb // wpt
        assert per_w % 128 == 0 or den, (it, per_w)
        per_w = per_w // 128 * 128
        lines = per_w // 128
        sh = wpt.bit_length() - 1
        k(f"s_lshr_b32 s40, s42, {sh}")
        k(f"s_mul_i32 s40, s40, {stride}")
        k(f"s_and_b32 s41, s42, {wpt-1}")
        k(f"s_mul_i32 s41, s41, {per_w}")
        k("s_add_u32 s40, s40, s41")
        k(f"s_add_u32 s40, s40, {base}")
        done = 0
        while done < lines:
            n_ = min(64, lines - done)
            if n_ < 64:
                m = (1 << n_) - 1
                k(f"s_mov_b32 exec_lo, {m & 0xffffffff:#x}")
                k(f"s_mov_b32 exec_hi, {m >> 32:#x}")
            k(f"buffer_load_dword v{vd}, v{va}, s[{srd}:{srd+3}], s40 offen")
            if n_ < 64: k("s_mov_b64 exec, -1")
            done += n_; n += 1; vd += 1
            if done < lines: k(f"s_add_u32 s40, s40, {64*128}")
    return n

def repack_unit(k, lw, EV, OD, early=False, mid=None, lds=0):
    k(f"s_lshl_b32 s52, s2, 2")
    k(f"s_add_u32 s52, s52, s{lw}")
    k("s_cmp_ge_u32 s52, 880")
    k(f"s_cbranch_scc1 {k.ref('rp_skip' if (early or mid) else 'rp_done')}")
    k.karg(54, 8)
    k.karg(56, 16)
    k.karg(58, 32)
    k.karg(60, 48)
    def setup(lbl, lo, ncg, ptr, size, pitch, TN, K, dst, cs, csp):
        k.lab(lbl)
        k(f"s_sub_u32 s52, s52, {lo}")
        k.srd(64, ptr, 0, size)
        k(f"s_mov_b32 s53, {pitch}")
        k(f"s_mov_b32 s54, {(65536 + TN - 1)//TN}")
        k(f"s_mov_b32 s55, {TN}")
        k(f"s_mov_b32 s56, {K//8*TN*16}")
        k(f"s_mov_b32 s57, {dst}")
        k(f"s_mul_i32 s58, s52, {(65536 + ncg - 1)//ncg}")
        k("s_lshr_b32 s58, s58, 16")
        k(f"s_mul_i32 s59, s58, {ncg}")
        k("s_sub_u32 s59, s52, s59")
        k(f"s_mov_b32 s60, {cs if cs is not None else 0xffffffff:#x}")
        k(f"s_mov_b32 s61, {csp}")
        k(f"s_branch {k.ref('rp_go')}")
    k("s_waitcnt lgkmcnt(0)")
    k("s_cmp_ge_u32 s52, 640"); k(f"s_cbranch_scc1 {k.ref('rp_w2')}")
    k("s_cmp_ge_u32 s52, 540"); k(f"s_cbranch_scc1 {k.ref('rp_wo')}")
    k("s_cmp_ge_u32 s52, 300"); k(f"s_cbranch_scc1 {k.ref('rp_w1')}")
    setup("rp_wq", 0, 30, 54, 640 * 3840, 3840, 128, 640, WS_WQ, WS_CSQ, 1920 * 4)
    setup("rp_w1", 300, 24, 58, 640 * 3072, 3072, 96, 640, WS_W1, WS_CS1, 1536 * 4)
    setup("rp_wo", 540, 10, 56, 640 * 1280, 1280, 80, 640, WS_WO, None, 0)
    setup("rp_w2", 640, 10, 60, 1536 * 1280, 1280, 80, 1536, WS_W2, None, 0)
    k.lab("rp_go")
    if lds:
        VD = OD + 1
        k("v_lshrrev_b32 v4, 3, v0")
        k("v_and_b32 v5, 7, v0")
        k("v_bfe_u32 v6, v0, 4, 1")
        k("v_lshlrev_b32 v6, 2, v6")
        k("v_xor_b32 v5, v5, v6")
        k("v_mul_lo_u32 v4, v4, s53")
        k(f"v_lshl_add_u32 v{VD}, v5, 4, v4")
        k("s_lshl_b32 s62, s58, 6")
        k("s_mul_i32 s62, s62, s53")
        k("s_lshl_b32 s63, s59, 7")
        k("s_add_u32 s52, s62, s63")
        if mid:
            k(f"v_mul_lo_u32 v{OD+2}, v0, s53")
            k(f"buffer_load_dword v{OD+3}, v{OD+2}, s[64:67], s52 offen")
        k(f"s_mul_i32 s69, s{lw}, 8192")
        k(f"s_sub_u32 s69, {lds + 3*8192}, s69")
        k("v_bfe_u32 v6, v0, 2, 2")
        k("v_lshrrev_b32 v7, 4, v0")
        k("v_lshlrev_b32 v7, 1, v7")
        k("v_bfe_u32 v5, v0, 1, 1")
        k("v_add_u32 v7, v7, v5")
        k("v_lshrrev_b32 v5, 1, v6")
        k("v_lshlrev_b32 v5, 2, v5")
        k("v_xor_b32 v7, v7, v5")
        k("v_lshlrev_b32 v7, 4, v7")
        k("v_lshl_add_u32 v7, v6, 7, v7")
        k("v_and_b32 v5, 1, v0")
        k("v_lshl_add_u32 v7, v5, 3, v7")
        k(f"v_add_u32 v{OD}, s69, v7")
        def dmas():
            k("s_lshl_b32 s53, s53, 3")
            for i in range(8):
                k(f"s_add_u32 m0, s69, {i*1024}")
                k("s_add_u32 s52, s52, s53" if i else "s_nop 0")
                k(f"buffer_load_dwordx4 v{VD}, s[64:67], s52 offen lds")
        if not mid: dmas()
    else:
        k("v_lshlrev_b32 v4, 1, v0")
        k("s_lshl_b32 s62, s58, 6")
        k("s_mul_i32 s62, s62, s53")
        k("s_lshl_b32 s63, s59, 7")
        k("s_add_u32 s62, s62, s63")
        for r in range(64):
            d = (OD if r & 1 else EV) + (r >> 1)
            k(f"buffer_load_ushort v{d}, v4, s[64:67], s62 offen")
            if r < 63:
                k("s_add_u32 s62, s62, s53")
        if mid: mid()
    k("s_lshl_b32 s62, s59, 6")
    k("v_add_u32 v4, s62, v0")
    k("v_mul_lo_u32 v5, v4, s54")
    k("v_lshrrev_b32 v5, 16, v5")
    k("v_mul_lo_u32 v6, v5, s55")
    k("v_sub_u32 v6, v4, v6")
    k("v_mul_lo_u32 v5, v5, s56")
    k("v_lshl_add_u32 v5, v6, 4, v5")
    k("s_lshl_b32 s63, s55, 4")
    k("s_lshl_b32 s62, s58, 3")
    k("s_mul_i32 s62, s62, s63")
    k("s_add_u32 s62, s62, s57")
    k("v_mov_b32 v6, 0")
    k("v_mov_b32 v7, 0")
    if lds:
        if mid:
            mid(); dmas()
        for ku in range(8):
            k(f"s_waitcnt vmcnt({7 - ku})")
            k(f"ds_read_b64_tr_b16 v[{EV+4*ku}:{EV+4*ku+1}], v{OD} offset:{ku*1024}")
            k(f"ds_read_b64_tr_b16 v[{EV+4*ku+2}:{EV+4*ku+3}], v{OD} offset:{ku*1024+512}")
        for ku in range(8):
            k(f"s_waitcnt lgkmcnt({14 - 2*ku})")
            k(f"buffer_store_dwordx4 v[{EV+4*ku}:{EV+4*ku+3}], v5, s[12:15], s62 offen")
            if ku < 7:
                k("s_add_u32 s62, s62, s63")
    else:
      for ku in range(8):
        k(f"s_waitcnt vmcnt({min(63, 56 - 8*ku + ku)})")
        for j in range(4 * ku, 4 * ku + 4):
            k(f"v_lshl_or_b32 v{EV+j}, v{OD+j}, 16, v{EV+j}")
        k(f"buffer_store_dwordx4 v[{EV+4*ku}:{EV+4*ku+3}], v5, s[12:15], s62 offen")
        if ku < 7:
            k("s_add_u32 s62, s62, s63")
    k("s_cmp_eq_u32 s60, 0xffffffff")
    k(f"s_cbranch_scc1 {k.ref('rp_done')}")
    for j in range(32):
        k(f"v_dot2c_f32_bf16 v{6 + (j & 1)}, 0x3f803f80, v{EV+j}")
    k("s_mul_i32 s62, s58, s61")
    k("s_add_u32 s62, s62, s60")
    k("v_lshlrev_b32 v4, 2, v4")
    k("s_nop 3")
    k("v_add_f32 v6, v6, v7")
    k("s_nop 0")
    k("buffer_store_dword v6, v4, s[12:15], s62 offen")
    if mid:
        k(f"s_branch {k.ref('rp_done')}")
        k.lab("rp_skip")
        mid()
    if early:
        k(f"s_branch {k.ref('rp_done')}")
        k.lab("rp_skip")
        k("s_waitcnt vmcnt(0)")
    k.lab("rp_done")


PF_ATT = [(WS_WO, 409600), (WS_W1, 983040), (WS_W2, 983040)]

def gen_attn2(name, kidx=0, pack="cvt", force_slow=False, sched=0, dbg=(), pf=0):
    NWG = 256
    LDS = 163840
    k = Kern(name, NWG, 512, LDS, vgpr=160)
    KA, KB, VA = 1, 2, 3
    Q16 = [8, 28]; Q4 = [12, 14]
    K16 = [16, 20]; K4 = [24, 26]
    V = [32, 40]
    S = [48, 64]
    P = 80
    O = [96, 112]
    k(f"s_cmp_ge_u32 s2, {NWG}")
    k(f"s_cbranch_scc1 {k.ref('end')}")
    k.stamp(0)
    k.karg(6, 80)
    wave_id(k, 26)
    k("s_and_b32 s20, s2, 7")
    k("s_lshr_b32 s21, s2, 3")
    k("s_lshr_b32 s22, s21, 3")
    k("s_lshl_b32 s23, s20, 2")
    k("s_add_u32 s24, s23, s22")
    k("v_lshlrev_b32 v4, 4, v0")
    k("s_cmp_lt_u32 s26, 4")
    k(f"s_cbranch_scc1 {k.ref('compute')}")
    k("s_sub_u32 s26, s26, 4")
    k("s_mul_i32 s28, s24, 163840")
    k(f"s_add_u32 s28, s28, {WS_KV}")
    k("s_mul_i32 s29, s26, 6144")
    k("s_mul_i32 s30, s26, 34816")
    k("s_add_u32 s30, s30, 24576")
    k("s_waitcnt lgkmcnt(0)")
    k.srd(12, 6, 0, WS_SIZE)
    k("s_mov_b32 m0, s29")
    k("s_add_u32 s31, s28, s29")
    for i in range(4):
        k(f"buffer_load_dwordx4 v4, s[12:15], s31 offen offset:{i*1024} lds")
    k("s_add_u32 m0, s29, 4096")
    k("s_add_u32 s31, s31, 4096")
    for i in range(2):
        k(f"buffer_load_dwordx4 v4, s[12:15], s31 offen offset:{i*1024} lds")
    k("s_add_u32 s28, s28, s30")
    def stB(g):
        k(f"s_add_u32 m0, s30, {g*4096}")
        k(f"s_add_u32 s31, s28, {g*4096}")
        for i in range(4 if g < 8 else 2):
            k(f"buffer_load_dwordx4 v4, s[12:15], s31 offen offset:{i*1024} lds")
    stB(0); stB(1)
    k.stamp(1)
    k("s_waitcnt vmcnt(8)")
    k.stamp(2)
    k("s_barrier")
    for g in range(2, 9):
        stB(g)
    k.stamp(3)
    k("s_waitcnt vmcnt(0)")
    k.stamp(4)
    k("s_barrier")
    if pf:
        k("s_and_b32 s40, s20, 1")
        l2_prefetch(k, PF_ATT[:pf], 40, 21, 26, 42, 5, 8)
        k("s_waitcnt vmcnt(0)")
    k("s_add_u32 s26, s26, 4")
    k.stamp_flush(6, kidx, 5, 26)
    k.lab("end")
    k("s_endpgm")
    k.lab("compute")
    k("s_and_b32 s25, s21, 7")
    k("s_lshl_b32 s25, s25, 3")
    k("s_lshl_b32 s23, s26, 1")
    k("s_add_u32 s25, s25, s23")
    k("s_lshl_b32 s27, s24, 6")
    k("s_add_u32 s27, s27, s25")
    k("s_mul_i32 s27, s27, 1280")
    k(f"s_add_u32 s27, s27, {WS_Q}")
    k("s_add_u32 s28, s27, 1280")
    k("v_and_b32 v5, 31, v0")
    k("v_lshlrev_b32 v6, 3, v5")
    for x in range(2):
        k(f"v_mov_b32 v{Q4[x]}, 0")
        k(f"v_mov_b32 v{Q4[x]+1}, 0")
    k("s_waitcnt lgkmcnt(0)")
    k.srd(12, 6, 0, WS_SIZE)
    k(f"buffer_load_dwordx4 v[{Q16[0]}:{Q16[0]+3}], v4, s[12:15], s27 offen")
    k(f"buffer_load_dwordx4 v[{Q16[1]}:{Q16[1]+3}], v4, s[12:15], s28 offen")
    k("s_mov_b64 exec, 0xffffffff")
    k(f"buffer_load_dwordx2 v[{Q4[0]}:{Q4[0]+1}], v6, s[12:15], s27 offen offset:1024")
    k(f"buffer_load_dwordx2 v[{Q4[1]}:{Q4[1]+1}], v6, s[12:15], s28 offen offset:1024")
    k("s_mov_b64 exec, -1")
    def lane_addrs():
        k("v_and_b32 v5, 31, v0")
        k("v_and_b32 v6, 0x13, v5")
        k("v_and_b32 v7, 4, v5")
        k("v_lshl_or_b32 v6, v7, 1, v6")
        k("v_and_b32 v7, 8, v5")
        k("v_lshrrev_b32 v7, 1, v7")
        k("v_or_b32 v6, v6, v7")
        k("v_lshrrev_b32 v7, 5, v0")
        k(f"v_lshlrev_b32 v{KA}, 9, v7")
        k(f"v_lshl_add_u32 v{KA}, v6, 4, v{KA}")
        k(f"v_lshlrev_b32 v{KB}, 3, v6")
        k(f"v_add_u32 v{KB}, 1024, v{KB}")
        k(f"v_mul_u32_u24 v{VA}, 320, v7")
        k(f"v_lshl_add_u32 v{VA}, v5, 4, v{VA}")
        k(f"v_add_u32 v{VA}, 1280, v{VA}")
    lane_addrs()
    k("v_cmp_eq_u32 vcc, 20, v5")
    k("v_mov_b32 v7, 0x3f803f80")
    k("s_mov_b32 s34, 0x000fffff")
    k("s_mov_b32 s35, 0x000fffff")
    k(f"v_cndmask_b32 v{V[0]}, 0, v7, vcc")
    for r in range(1, 16):
        k(f"v_mov_b32 v{V[0]+r}, v{V[0]}")
    for r in range(32):
        k(f"v_mov_b32 v{O[0]+r}, 0")
    for r in range(4, 8):
        k(f"v_mov_b32 v{P+r}, 0")
    k.stamp(1)
    k("s_waitcnt vmcnt(0)")
    k("s_barrier")
    k.stamp(2)
    def rdK(buf, off):
        return [f"ds_read_b128 v[{K16[buf]}:{K16[buf]+3}], v{KA} offset:{off}",
                f"ds_read_b64 v[{K4[buf]}:{K4[buf]+1}], v{KB} offset:{off}"]
    def rdV(buf, off):
        return ["s_mov_b64 exec, s[34:35]",
                f"ds_read_b128 v[{V[buf]}:{V[buf]+3}], v{VA} offset:{off}",
                f"ds_read_b128 v[{V[buf]+4}:{V[buf]+7}], v{VA} offset:{off+640}",
                "s_mov_b64 exec, -1"]
    def M1(x, kb): return f"v_mfma_f32_32x32x16_bf16 v[{S[x]}:{S[x]+15}], v[{K16[kb]}:{K16[kb]+3}], v[{Q16[x]}:{Q16[x]+3}], 0"
    def M2(x, kb): return f"v_mfma_f32_32x32x8bf16_1k v[{S[x]}:{S[x]+15}], v[{K4[kb]}:{K4[kb]+1}], v[{Q4[x]}:{Q4[x]+1}], v[{S[x]}:{S[x]+15}]"
    def MPV(x, vb, f): return f"v_mfma_f32_32x32x16_bf16 v[{O[x]}:{O[x]+15}], v[{V[vb]+4*f}:{V[vb]+4*f+3}], v[{P+4*f}:{P+4*f+3}], v[{O[x]}:{O[x]+15}]"
    def G(x, g, fill=()):
        s = S[x] + 4 * g
        p = P + 2 * g
        fill = list(fill)
        if pack == "cvt":
            ex = [f"v_exp_f32 v{s+i}, v{s+i}" for i in range(4)]
            pk = [f"v_cvt_pk_bf16_f32 v{p}, v{s}, v{s+1}", f"v_cvt_pk_bf16_f32 v{p+1}, v{s+2}, v{s+3}"]
        else:
            ex = [f"v_exp_f32 v{p}, v{s+1}", f"v_exp_f32 v{s}, v{s}", f"v_exp_f32 v{p+1}, v{s+3}", f"v_exp_f32 v{s+2}, v{s+2}"]
            pk = [f"v_mov_b32_sdwa v{p}, v{s} dst_sel:WORD_0 dst_unused:UNUSED_PRESERVE src0_sel:WORD_1",
                  f"v_mov_b32_sdwa v{p+1}, v{s+2} dst_sel:WORD_0 dst_unused:UNUSED_PRESERVE src0_sel:WORD_1"]
        for i in range(4):
            k(ex[i])
            if i < len(fill) and fill[i]:
                for f in (fill[i] if isinstance(fill[i], list) else [fill[i]]):
                    k(f)
        for x_ in pk: k(x_)
    for r in rdK(0, 0) + rdK(1, 2560) + rdV(0, 0): k(r)
    k("s_waitcnt lgkmcnt(4)")
    k(M1(0, 0))
    k("s_mov_b32 s36, 0")
    k("s_nop 7")
    k("s_nop 1")
    k(M2(0, 0))
    k("s_nop 7")
    k("s_nop 3")
    k.lab("loop")
    k("s_cmp_eq_u32 s36, 1")
    k(f"s_cbranch_scc0 {k.ref('nosync')}")
    k("s_barrier")
    k.lab("nosync")
    k("s_cmp_eq_u32 s36, 7")
    k(f"s_mov_b32 s37, {(-7*20480) & 0xffffffff:#x}")
    k("s_cselect_b32 s37, s37, 20480")
    L0 = len(k.L)
    for t in range(8):
        c, n = t & 1, (t + 1) & 1
        k("s_waitcnt lgkmcnt(0)")
        k(M1(1, c))
        G(0, 0)
        k(MPV(1, n, 1))
        if t == 7:
            k(f"v_add_u32 v{VA}, s37, v{VA}")
        rv = rdV(n, ((t + 1) % 8) * 2560)
        G(0, 1, fill=[rv])
        k(M2(1, c))
        if t == 6:
            k(f"v_add_u32 v{KA}, s37, v{KA}")
            k(f"v_add_u32 v{KB}, s37, v{KB}")
        rk = rdK(c, ((t + 2) % 8) * 2560)
        G(0, 2, fill=[rk[0], rk[1]])
        k(MPV(0, c, 0))
        G(0, 3)
        k(M1(0, n))
        G(1, 0)
        k(MPV(0, c, 1))
        G(1, 1)
        k(M2(0, n))
        G(1, 2)
        k(MPV(1, c, 0))
        G(1, 3)
    if dbg:
        body = k.L[L0:]
        def drop(l):
            l = l.strip()
            if "nods" in dbg and (l.startswith("ds_") or "exec" in l or l.startswith("s_waitcnt")): return True
            if "nomfma" in dbg and l.startswith("v_mfma"): return True
            if "nocvt" in dbg and (l.startswith("v_cvt") or l.startswith("v_mov_b32_sdwa")): return True
            if "noexp" in dbg and l.startswith("v_exp"): return True
            if "nom2" in dbg and "32x32x8" in l: return True
            if "nopv" in dbg and l.startswith(f"v_mfma_f32_32x32x16_bf16 v[{O[0]}") : return True
            if "nopv" in dbg and l.startswith(f"v_mfma_f32_32x32x16_bf16 v[{O[1]}") : return True
            return False
        k.L = k.L[:L0] + [l for l in body if not drop(l)]
    k("s_add_u32 s36, s36, 1")
    k("s_cmp_lt_u32 s36, 8")
    k(f"s_cbranch_scc1 {k.ref('loop')}")
    k("s_nop 0")
    k(MPV(1, 1, 1))
    k.stamp(3)
    k("s_waitcnt lgkmcnt(0)")
    k("s_nop 7")
    k("s_nop 3")
    L = [5, 7]
    k("v_mov_b32 v16, 0")
    for x in range(2):
        k(f"v_mov_b32 v{L[x]-1}, v{O[x]+8}")
        k(f"v_mov_b32 v{L[x]}, v{O[x]+8}")
    k("s_nop 1")
    for x in range(2):
        k(f"v_permlane32_swap_b32 v{L[x]-1}, v{L[x]}")
    for x in range(2):
        for r in range(12):
            k(f"v_fma_f32 v16, v{O[x]+r}, 0, v16")
    k(f"s_mov_b32 s40, {f2u(2.0**40):#x}")
    k(f"s_mov_b32 s41, {f2u(2.0**-40):#x}")
    k("v_cmp_eq_f32 vcc, 0, v16")
    k("v_cmp_lt_f32 s[42:43], s41, v5")
    k("v_cmp_gt_f32 s[44:45], s40, v5")
    k("v_cmp_lt_f32 s[46:47], s41, v7")
    k("v_cmp_gt_f32 s[48:49], s40, v7")
    k("s_nop 3")
    k("s_and_b64 vcc, vcc, s[42:43]")
    k("s_and_b64 vcc, vcc, s[44:45]")
    k("s_and_b64 vcc, vcc, s[46:47]")
    k("s_and_b64 vcc, vcc, s[48:49]")
    if force_slow:
        k("s_mov_b64 vcc, 0")
    k("s_cmp_eq_u64 vcc, -1")
    k(f"s_cbranch_scc0 {k.ref('slow')}")
    k.lab("fin")
    k("v_rcp_f32 v5, v5")
    k("v_rcp_f32 v7, v7")
    k("s_mul_i32 s40, s24, 5")
    k("v_lshrrev_b32 v17, 5, v0")
    k("v_add_u32 v17, s40, v17")
    k("v_lshrrev_b32 v16, 1, v17")
    k("v_lshlrev_b32 v16, 9, v16")
    k("v_and_b32 v17, 1, v17")
    k("v_lshl_add_u32 v16, v17, 3, v16")
    k("v_and_b32 v17, 31, v0")
    k("v_lshl_add_u32 v16, v17, 4, v16")
    k("s_mul_i32 s41, s25, 40960")
    k(f"s_add_u32 s41, s41, {WS_O}")
    k("s_add_u32 s42, s41, 40960")
    for x in range(2):
        for r in range(0, 12, 2):
            k(f"v_pk_mul_f32 v[{O[x]+r}:{O[x]+r+1}], v[{O[x]+r}:{O[x]+r+1}], v[{L[x]-1}:{L[x]}] op_sel:[0,1] op_sel_hi:[1,1]")
    for x in range(2):
        for j in range(6):
            k(f"v_cvt_pk_bf16_f32 v{20+6*x+j}, v{O[x]+2*j}, v{O[x]+2*j+1}")
    for x in range(2):
        k(f"buffer_store_dwordx2 v[{20+6*x}:{21+6*x}], v16, s[12:15], s{41+x} offen")
        k(f"buffer_store_dwordx2 v[{22+6*x}:{23+6*x}], v16, s[12:15], s{41+x} offen offset:512")
    k("s_mov_b64 exec, 0xffffffff")
    for x in range(2):
        k(f"buffer_store_dwordx2 v[{24+6*x}:{25+6*x}], v16, s[12:15], s{41+x} offen offset:1024")
    k("s_waitcnt vmcnt(0)")
    k.stamp(4); k.stamp_flush(6, kidx, 5, 26)
    k("s_endpgm")
    k.lab("slow")
    MX = 88
    for x in range(2):
        lane_addrs()
        k(f"v_mov_b32 v{MX}, {f2u(-3.0e38):#x}")
        for r in range(16):
            k(f"v_mov_b32 v{O[x]+r}, 0")
        k("s_mov_b32 s36, 0")
        k.lab(f"sl{x}")
        for r in rdK(0, 0) + rdV(0, 0): k(r)
        k("s_waitcnt lgkmcnt(0)")
        k(M1(x, 0))
        k("s_nop 7"); k("s_nop 1")
        k(M2(x, 0))
        k("s_nop 7"); k("s_nop 3")
        s = S[x]
        k(f"v_max3_f32 v4, v{s}, v{s+1}, v{s+2}")
        for i in range(3, 15, 2):
            k(f"v_max3_f32 v4, v4, v{s+i}, v{s+i+1}")
        k(f"v_max_f32 v4, v4, v{s+15}")
        k("v_mov_b32 v5, v4")
        k("s_nop 1")
        k("v_permlane32_swap_b32 v4, v5")
        k("s_nop 1")
        k(f"v_max3_f32 v4, v4, v5, v{MX}")
        k(f"v_sub_f32 v5, v{MX}, v4")
        k("v_exp_f32 v5, v5")
        k(f"v_mov_b32 v{MX}, v4")
        for i in range(16):
            k(f"v_sub_f32 v{s+i}, v{s+i}, v4")
        for i in range(16):
            k(f"v_exp_f32 v{s+i}, v{s+i}")
        for r in range(12):
            k(f"v_mul_f32 v{O[x]+r}, v{O[x]+r}, v5")
        for j in range(8):
            k(f"v_cvt_pk_bf16_f32 v{P+j}, v{s+2*j}, v{s+2*j+1}")
        k(f"v_add_u32 v{KA}, 2560, v{KA}")
        k(f"v_add_u32 v{KB}, 2560, v{KB}")
        k(f"v_add_u32 v{VA}, 2560, v{VA}")
        k("s_nop 4")
        k(MPV(x, 0, 0))
        k(MPV(x, 0, 1))
        k("s_nop 7"); k("s_nop 3")
        k("s_add_u32 s36, s36, 1")
        k("s_cmp_lt_u32 s36, 64")
        k(f"s_cbranch_scc1 {k.ref(f'sl{x}')}")
    for x in range(2):
        k(f"v_mov_b32 v{L[x]-1}, v{O[x]+8}")
        k(f"v_mov_b32 v{L[x]}, v{O[x]+8}")
    k("s_nop 1")
    for x in range(2):
        k(f"v_permlane32_swap_b32 v{L[x]-1}, v{L[x]}")
    k("s_nop 1")
    k(f"s_branch {k.ref('fin')}")
    return k


def gen_attn3(name, kidx=0, force_slow=False, pf=0, h=8, um=8, uh=8, pm=3, phl=0, b2=8, dbg=(), repack=False, amap=0, stream=0, fz=None):
    NWG = 256
    LDS = 163840
    TM = 64 - h
    assert TM % um == 0 and h % uh == 0 and b2 % um == 0 and um % 2 == 0 and uh % 2 == 0
    SLOT = 2688
    assert 8 * SLOT <= b2 * 2560 + 3840
    k = Kern(name, NWG, 512, LDS, vgpr=160) if fz is None else fz.k
    NS_ = " ; nosc" if (fz and fz.xl and "o" not in XSC) else ""
    KA, KB, VA = 1, 2, 3
    Q16 = [8, 28]; Q4 = [12, 14]
    K16 = [16, 20]; K4 = [24, 26]
    V = [32, 40]
    S = [48, 64]
    P = 80
    O = [96, 112]
    if fz is None:
        k(f"s_cmp_ge_u32 s2, {NWG}")
        k(f"s_cbranch_scc1 {k.ref('end')}")
        k.stamp(0)
        k.karg(6, 80)
        wave_id(k, 26)
    k("s_and_b32 s20, s2, 7")
    k("s_lshr_b32 s21, s2, 3")
    if amap:
        k("s_mov_b32 s24, s21")
    else:
        k("s_lshr_b32 s22, s21, 3")
        k("s_lshl_b32 s23, s20, 2")
        k("s_add_u32 s24, s23, s22")
    k("v_lshlrev_b32 v4, 4, v0")
    k("s_and_b32 s33, s26, 3")
    k(f"s_mul_i32 s50, s24, {163840 + KVPAD}")
    k(f"s_add_u32 s50, s50, {WS_KV + QKD}")
    if amap:
        k("s_lshl_b32 s25, s20, 3")
    else:
        k("s_and_b32 s25, s21, 7")
        k("s_lshl_b32 s25, s25, 3")
    k("s_lshl_b32 s23, s33, 1")
    k("s_add_u32 s25, s25, s23")
    k("s_lshl_b32 s27, s24, 6")
    k("s_add_u32 s27, s27, s25")
    k("s_mul_i32 s27, s27, 1280")
    k(f"s_add_u32 s27, s27, {WS_Q + QKD}")
    k("s_add_u32 s28, s27, 1280")
    def q_loads():
        k("v_and_b32 v5, 31, v0")
        k("v_lshlrev_b32 v6, 3, v5")
        for x in range(2):
            k(f"v_mov_b32 v{Q4[x]}, 0")
            k(f"v_mov_b32 v{Q4[x]+1}, 0")
        k(f"buffer_load_dwordx4 v[{Q16[0]}:{Q16[0]+3}], v4, s[12:15], s27 offen")
        k(f"buffer_load_dwordx4 v[{Q16[1]}:{Q16[1]+3}], v4, s[12:15], s28 offen")
        k("s_mov_b64 exec, 0xffffffff")
        k(f"buffer_load_dwordx2 v[{Q4[0]}:{Q4[0]+1}], v6, s[12:15], s27 offen offset:1024")
        k(f"buffer_load_dwordx2 v[{Q4[1]}:{Q4[1]+1}], v6, s[12:15], s28 offen offset:1024")
        k("s_mov_b64 exec, -1")
    def lane_addrs():
        k("v_and_b32 v5, 31, v0")
        k("v_and_b32 v6, 0x13, v5")
        k("v_and_b32 v7, 4, v5")
        k("v_lshl_or_b32 v6, v7, 1, v6")
        k("v_and_b32 v7, 8, v5")
        k("v_lshrrev_b32 v7, 1, v7")
        k("v_or_b32 v6, v6, v7")
        k("v_lshrrev_b32 v7, 5, v0")
        k(f"v_lshlrev_b32 v{KA}, 9, v7")
        k(f"v_lshl_add_u32 v{KA}, v6, 4, v{KA}")
        k(f"v_lshlrev_b32 v{KB}, 3, v6")
        k(f"v_add_u32 v{KB}, 1024, v{KB}")
        k(f"v_mul_u32_u24 v{VA}, 320, v7")
        k(f"v_lshl_add_u32 v{VA}, v5, 4, v{VA}")
        k(f"v_add_u32 v{VA}, 1280, v{VA}")
    def init_regs():
        lane_addrs()
        k("v_cmp_eq_u32 vcc, 20, v5")
        k("v_mov_b32 v7, 0x3f803f80")
        k("s_mov_b32 s34, 0x000fffff")
        k("s_mov_b32 s35, 0x000fffff")
        k(f"v_cndmask_b32 v{V[0]}, 0, v7, vcc")
        for r in range(1, 16):
            k(f"v_mov_b32 v{V[0]+r}, v{V[0]}")
        for r in range(32):
            k(f"v_mov_b32 v{O[0]+r}, 0")
        for r in range(4, 8):
            k(f"v_mov_b32 v{P+r}, 0")
    def rdK(buf, off):
        return [f"ds_read_b128 v[{K16[buf]}:{K16[buf]+3}], v{KA} offset:{off}",
                f"ds_read_b64 v[{K4[buf]}:{K4[buf]+1}], v{KB} offset:{off}"]
    def rdV(buf, off):
        return ["s_mov_b64 exec, s[34:35]",
                f"ds_read_b128 v[{V[buf]}:{V[buf]+3}], v{VA} offset:{off}",
                f"ds_read_b128 v[{V[buf]+4}:{V[buf]+7}], v{VA} offset:{off+640}",
                "s_mov_b64 exec, -1"]
    def M1(x, kb): return f"v_mfma_f32_32x32x16_bf16 v[{S[x]}:{S[x]+15}], v[{K16[kb]}:{K16[kb]+3}], v[{Q16[x]}:{Q16[x]+3}], 0"
    def M2(x, kb): return f"v_mfma_f32_32x32x8bf16_1k v[{S[x]}:{S[x]+15}], v[{K4[kb]}:{K4[kb]+1}], v[{Q4[x]}:{Q4[x]+1}], v[{S[x]}:{S[x]+15}]"
    def MPV(x, vb, f): return f"v_mfma_f32_32x32x16_bf16 v[{O[x]}:{O[x]+15}], v[{V[vb]+4*f}:{V[vb]+4*f+3}], v[{P+4*f}:{P+4*f+3}], v[{O[x]}:{O[x]+15}]"
    def G(x, g, fill=()):
        s = S[x] + 4 * g
        p = P + 2 * g
        fill = list(fill)
        ex = [f"v_exp_f32 v{s+i}, v{s+i}" for i in range(4)]
        pk = [f"v_cvt_pk_bf16_f32 v{p}, v{s}, v{s+1}", f"v_cvt_pk_bf16_f32 v{p+1}, v{s+2}, v{s+3}"]
        for i in range(4):
            k(ex[i])
            if i < len(fill) and fill[i]:
                for f in (fill[i] if isinstance(fill[i], list) else [fill[i]]):
                    k(f)
        for x_ in pk: k(x_)
    def loop(tag, T, U, bar_after, hook=None):
        NIT = T // U
        assert hook is None or NIT == 1
        for r in rdK(0, 0) + rdK(1, 2560) + rdV(0, 0): k(r)
        k("s_waitcnt lgkmcnt(4)")
        k(M1(0, 0))
        k(f"s_mov_b32 s36, {NIT}")
        if isinstance(bar_after, list):
            assert all(b % U == 0 for b in bar_after)
            k(f"s_mov_b32 s38, {sum(1 << (NIT - b // U) for b in bar_after):#x}")
        k("s_nop 7")
        k("s_nop 1")
        k(M2(0, 0))
        k("s_nop 7")
        k("s_nop 3")
        k.lab(f"loop{tag}")
        if isinstance(bar_after, list):
            k("s_bitcmp1_b32 s38, s36")
            k(f"s_cbranch_scc0 {k.ref('nosync' + tag)}")
            k("s_barrier")
            k.lab("nosync" + tag)
        elif bar_after is not None:
            k(f"s_cmp_eq_u32 s36, {NIT - bar_after // U}")
            k(f"s_cbranch_scc0 {k.ref('nosync' + tag)}")
            k("s_barrier")
            k.lab("nosync" + tag)
        k("s_cmp_eq_u32 s36, 1")
        k(f"s_cselect_b32 s37, 0, {U*2560}")
        for t in range(U):
            c, n = t & 1, (t + 1) & 1
            k("s_waitcnt lgkmcnt(0)")
            if hook: hook(t)
            k(M1(1, c))
            G(0, 0)
            k(MPV(1, n, 1))
            if t == U - 1:
                k(f"v_add_u32 v{VA}, s37, v{VA}")
            rv = rdV(n, ((t + 1) % U) * 2560)
            G(0, 1, fill=[rv])
            k(M2(1, c))
            if t == U - 2:
                k(f"v_add_u32 v{KA}, s37, v{KA}")
                k(f"v_add_u32 v{KB}, s37, v{KB}")
            rk = rdK(c, ((t + 2) % U) * 2560)
            G(0, 2, fill=[rk[0], rk[1]])
            k(MPV(0, c, 0))
            G(0, 3)
            k(M1(0, n))
            G(1, 0)
            k(MPV(0, c, 1))
            G(1, 1)
            k(M2(0, n))
            G(1, 2)
            k(MPV(1, c, 0))
            G(1, 3)
        k("s_sub_u32 s36, s36, 1")
        k("s_cmp_lg_u32 s36, 0")
        k(f"s_cbranch_scc1 {k.ref('loop' + tag)}")
        k("s_nop 0")
        k(MPV(1, 1, 1))
    def finish(role):
        keep, give = role, 1 - role
        tg = "mh"[role]
        T_ = S[0]
        k.stamp(3)
        if fz: fz.mode_issue(12, 250)
        k(f"s_lshl_b32 s40, s33, 1")
        k(f"s_add_u32 s41, s40, {role}")
        k(f"s_add_u32 s40, s40, {1 - role}")
        k(f"s_mul_i32 s41, s41, {SLOT}")
        k(f"s_mul_i32 s40, s40, {SLOT}")
        k("v_lshlrev_b32 v4, 4, v0")
        k("v_and_b32 v5, 31, v0")
        k("v_lshlrev_b32 v5, 2, v5")
        k("v_add_u32 v16, s41, v4")
        k("v_add_u32 v17, s41, v5")
        k("v_add_u32 v18, s40, v4")
        k("v_add_u32 v19, s40, v5")
        for r in range(8, 12):
            k(f"v_mov_b32 v{T_+r}, 0")
        k("s_waitcnt lgkmcnt(0)")
        k("s_nop 7" if role == 0 else "s_nop 0")
        k(f"ds_write_b128 v16, v[{O[give]}:{O[give]+3}]")
        k(f"ds_write_b128 v16, v[{O[give]+4}:{O[give]+7}] offset:1024")
        k("s_mov_b64 exec, 0xffffffff")
        k(f"ds_write_b128 v16, v[{O[give]+8}:{O[give]+11}] offset:2048")
        k("s_not_b64 exec, exec")
        k(f"ds_write_b32 v17, v{O[give]+8} offset:2560")
        k("s_mov_b64 exec, -1")
        k("s_mul_i32 s42, s24, 5")
        k("v_lshrrev_b32 v21, 5, v0")
        k("v_add_u32 v21, s42, v21")
        k("v_lshrrev_b32 v20, 1, v21")
        k("v_lshlrev_b32 v20, 9, v20")
        k("v_and_b32 v21, 1, v21")
        k("v_lshl_add_u32 v20, v21, 3, v20")
        k("v_and_b32 v21, 31, v0")
        k("v_lshl_add_u32 v20, v21, 4, v20")
        k(f"s_add_u32 s51, s25, {keep}")
        k("s_mul_i32 s51, s51, 40960")
        k(f"s_add_u32 s51, s51, {WS_O}")
        k("s_waitcnt lgkmcnt(0)")
        k("s_barrier")
        k(f"ds_read_b128 v[{T_}:{T_+3}], v18")
        k(f"ds_read_b128 v[{T_+4}:{T_+7}], v18 offset:1024")
        k("s_mov_b64 exec, 0xffffffff")
        k(f"ds_read_b128 v[{T_+8}:{T_+11}], v18 offset:2048")
        k("s_not_b64 exec, exec")
        k(f"ds_read_b32 v{T_+8}, v19 offset:2560")
        k("s_mov_b64 exec, -1")
        Ox = O[keep]
        k("s_waitcnt lgkmcnt(2)")
        for r in range(8):
            k(f"v_add_f32 v{Ox+r}, v{Ox+r}, v{T_+r}")
        k("s_waitcnt lgkmcnt(0)")
        for r in range(8, 12):
            k(f"v_add_f32 v{Ox+r}, v{Ox+r}, v{T_+r}")
        k(f"v_mov_b32 v4, v{Ox+8}")
        k(f"v_mov_b32 v5, v{Ox+8}")
        k("v_mov_b32 v16, 0")
        k("s_nop 0")
        k("v_permlane32_swap_b32 v4, v5")
        for r in range(12):
            k(f"v_fma_f32 v16, v{Ox+r}, 0, v16")
        k(f"s_mov_b32 s40, {f2u(2.0**40):#x}")
        k(f"s_mov_b32 s41, {f2u(2.0**-40):#x}")
        k("v_cmp_eq_f32 vcc, 0, v16")
        k("v_cmp_lt_f32 s[42:43], s41, v5")
        k("v_cmp_gt_f32 s[44:45], s40, v5")
        k("s_nop 3")
        k("s_and_b64 vcc, vcc, s[42:43]")
        k("s_and_b64 vcc, vcc, s[44:45]")
        if force_slow:
            k("s_mov_b64 vcc, 0")
        k("s_cmp_eq_u64 vcc, -1")
        k(f"s_cbranch_scc0 {k.ref('slow' + tg)}")
        k.lab("fin" + tg)
        k("v_rcp_f32 v5, v5")
        k("s_nop 0")
        for r in range(0, 12, 2):
            k(f"v_pk_mul_f32 v[{Ox+r}:{Ox+r+1}], v[{Ox+r}:{Ox+r+1}], v[4:5] op_sel:[0,1] op_sel_hi:[1,1]")
        for j in range(6):
            k(f"v_cvt_pk_bf16_f32 v{22+j}, v{Ox+2*j}, v{Ox+2*j+1}")
        k("buffer_store_dwordx2 v[22:23], v20, s[12:15], s51 offen" + NS_)
        k("buffer_store_dwordx2 v[24:25], v20, s[12:15], s51 offen offset:512" + NS_)
        k("s_mov_b64 exec, 0xffffffff")
        k("buffer_store_dwordx2 v[26:27], v20, s[12:15], s51 offen offset:1024" + NS_)
        k("s_waitcnt vmcnt(0)")
        if fz:
            k("s_mov_b64 exec, -1")
            k.stamp(4)
            fz.attn_done(role)
        else:
            k.stamp(4); k.stamp_flush(6, kidx, 5, 26)
            k("s_endpgm")
        k.lab("slow" + tg)
        MX = 88
        x = keep
        lane_addrs()
        k(f"v_mov_b32 v{MX}, {f2u(-3.0e38):#x}")
        for r in range(16):
            k(f"v_mov_b32 v{O[x]+r}, 0")
        k("s_mov_b32 s36, 0")
        k.lab(f"sl{tg}")
        k(f"buffer_load_dwordx4 v[{K16[0]}:{K16[0]+3}], v{KA}, s[12:15], s50 offen")
        k(f"buffer_load_dwordx2 v[{K4[0]}:{K4[0]+1}], v{KB}, s[12:15], s50 offen")
        k("s_mov_b64 exec, s[34:35]")
        k(f"buffer_load_dwordx4 v[{V[0]}:{V[0]+3}], v{VA}, s[12:15], s50 offen")
        k(f"buffer_load_dwordx4 v[{V[0]+4}:{V[0]+7}], v{VA}, s[12:15], s50 offen offset:640")
        k("s_mov_b64 exec, -1")
        k("s_waitcnt vmcnt(0)")
        k(M1(x, 0))
        k("s_nop 7"); k("s_nop 1")
        k(M2(x, 0))
        k("s_nop 7"); k("s_nop 3")
        s = S[x]
        k(f"v_max3_f32 v4, v{s}, v{s+1}, v{s+2}")
        for i in range(3, 15, 2):
            k(f"v_max3_f32 v4, v4, v{s+i}, v{s+i+1}")
        k(f"v_max_f32 v4, v4, v{s+15}")
        k("v_mov_b32 v5, v4")
        k("s_nop 1")
        k("v_permlane32_swap_b32 v4, v5")
        k("s_nop 1")
        k(f"v_max3_f32 v4, v4, v5, v{MX}")
        k(f"v_sub_f32 v5, v{MX}, v4")
        k("v_exp_f32 v5, v5")
        k(f"v_mov_b32 v{MX}, v4")
        for i in range(16):
            k(f"v_sub_f32 v{s+i}, v{s+i}, v4")
        for i in range(16):
            k(f"v_exp_f32 v{s+i}, v{s+i}")
        for r in range(12):
            k(f"v_mul_f32 v{O[x]+r}, v{O[x]+r}, v5")
        for j in range(8):
            k(f"v_cvt_pk_bf16_f32 v{P+j}, v{s+2*j}, v{s+2*j+1}")
        k(f"v_add_u32 v{KA}, 2560, v{KA}")
        k(f"v_add_u32 v{KB}, 2560, v{KB}")
        k(f"v_add_u32 v{VA}, 2560, v{VA}")
        k("s_nop 4")
        k(MPV(x, 0, 0))
        k(MPV(x, 0, 1))
        k("s_nop 7"); k("s_nop 3")
        k("s_add_u32 s36, s36, 1")
        k("s_cmp_lt_u32 s36, 64")
        k(f"s_cbranch_scc1 {k.ref(f'sl{tg}')}")
        k(f"v_mov_b32 v4, v{O[x]+8}")
        k(f"v_mov_b32 v5, v{O[x]+8}")
        k("s_nop 1")
        k("v_permlane32_swap_b32 v4, v5")
        k("s_nop 1")
        k(f"s_branch {k.ref('fin' + tg)}")
    k("s_cmp_lt_u32 s26, 4")
    k(f"s_cbranch_scc1 {k.ref('compute')}")
    if stream:
        assert um == 4
        k("s_lshl_b32 s29, s33, 12")
        k("s_waitcnt lgkmcnt(0)")
        k.srd(12, 6, 0, WS_SIZE)
        k("s_add_u32 s32, s50, s29")
        krot = bool(fz and fz.p > 0 and KROT)
        if krot:
            k("s_mul_i32 s30, s20, 5")
            k("s_add_u32 s30, s30, s33")
        def grp(G_):
            k(f"s_add_u32 m0, s29, {G_*16384}")
            if krot:
                k(f"s_add_u32 s31, s30, {4*G_}")
                k("s_sub_u32 s52, s31, 40")
                k("s_cselect_b32 s31, s31, s52")
                k("s_lshl_b32 s31, s31, 12")
                k("s_add_u32 s31, s31, s50")
            else:
                k(f"s_add_u32 s31, s32, {G_*16384}")
            for i in range(4):
                k(f"buffer_load_dwordx4 v4, s[12:15], s31 offen offset:{i*1024} lds")
        if HPRI: k(f"s_setprio {HPRI}")
        if fz: fz.mode_publish(4)
        if fz and fz.p > 0:
            k("s_cmp_lg_u32 s33, 0")
            k(f"s_cbranch_scc1 {k.ref('nogp')}")
            if krot: fz.poll_group()
            else: fz.poll_all()
            k.lab("nogp")
            k.stamp(0)
            k("s_barrier")
        if krot:
            grp(0)
            k("s_waitcnt vmcnt(0)")
            k("s_barrier")
            fz.poll_all()
            k.stamp(1)
            grp(1); grp(2); grp(3)
        else:
            grp(0); grp(1)
            k.stamp(1)
            k("s_waitcnt vmcnt(4)")
            k("s_barrier")
            grp(2); grp(3)
        if HPRO == 1: init_regs()
        k("s_waitcnt vmcnt(8)")
        k("s_barrier")
        grp(4); grp(5)
        if HPRO == 2: init_regs()
        k("s_waitcnt vmcnt(8)")
        k("s_barrier")
        for G_ in range(6, 10): grp(G_)
        q_loads()
        if not HPRO: init_regs()
    else:
        k("s_mul_i32 s29, s33, 6144")
        k("s_mul_i32 s30, s33, 34816")
        k("s_add_u32 s30, s30, 24576")
        k("s_waitcnt lgkmcnt(0)")
        k.srd(12, 6, 0, WS_SIZE)
        k("s_mov_b32 m0, s29")
        k("s_add_u32 s31, s50, s29")
        for i in range(4):
            k(f"buffer_load_dwordx4 v4, s[12:15], s31 offen offset:{i*1024} lds")
        k("s_add_u32 m0, s29, 4096")
        k("s_add_u32 s31, s31, 4096")
        for i in range(2):
            k(f"buffer_load_dwordx4 v4, s[12:15], s31 offen offset:{i*1024} lds")
        k("s_add_u32 s32, s50, s30")
        def stB(g):
            k(f"s_add_u32 m0, s30, {g*4096}")
            k(f"s_add_u32 s31, s32, {g*4096}")
            for i in range(4 if g < 8 else 2):
                k(f"buffer_load_dwordx4 v4, s[12:15], s31 offen offset:{i*1024} lds")
        stB(0); stB(1)
        k.stamp(1)
        k("s_waitcnt vmcnt(8)")
        k("s_barrier")
        for g in range(2, 9):
            stB(g)
        q_loads()
        init_regs()
    k(f"v_add_u32 v{KA}, {TM*2560}, v{KA}")
    k(f"v_add_u32 v{KB}, {TM*2560}, v{KB}")
    k(f"v_add_u32 v{VA}, {TM*2560}, v{VA}")
    if repack and ERP == 1:
        repack_unit(k, 33, 48, 128, early=True)
        if fz: k("s_mov_b32 s64, s26")
    else:
        k("s_waitcnt vmcnt(0)")
    if HST == 2: k.stamp(0)
    if repack and RPRIO and ERP == 2: k(f"s_setprio {RPRIO}")
    if repack and RLDS:
        assert stream == 20 and 19712 + 4*8192 <= stream*2560 + 1280 and 7*SLOT <= 19712
    if repack and ERP == 2:
        def mid():
            k("s_barrier")
            k.stamp(2)
        repack_unit(k, 33, 48, 128, mid=mid, lds=(19712 if RLDS else 0))
        if fz: k("s_mov_b32 s64, s26")
    else:
        k("s_barrier")
        k.stamp(2)
    if repack and not ERP:
        if RPRIO: k(f"s_setprio {RPRIO}")
        if RLDS:
            assert stream == 20 and 19712 + 4*8192 <= stream*2560 + 1280 and 7*SLOT <= 19712
        repack_unit(k, 33, 48, 128, lds=(19712 if RLDS else 0))
        if fz: k("s_mov_b32 s64, s26")
    if pf:
        k("s_and_b32 s40, s20, 1")
        l2_prefetch(k, PF_ATT[:pf], 40, 21, 33, 42, 128, 129)
    if fz and fz.xl and "o" in PT:
        k("s_mul_i32 s40, s24, 5")
        k("s_lshr_b32 s40, s40, 1")
        k("s_lshl_b32 s40, s40, 9")
        k("s_mul_i32 s41, s25, 40960")
        k("s_add_u32 s40, s40, s41")
        k(f"s_add_u32 s40, s40, {WS_O}")
        k("v_lshlrev_b32 v90, 7, v0")
        k(f"v_add_u32 v91, {40960 - 12*128}, v90")
        k("v_cmp_gt_u32 vcc, 12, v0")
        k("s_nop 1")
        k("v_cndmask_b32 v90, v91, v90, vcc")
        k("s_mov_b64 exec, 0xffffff")
        k("buffer_load_dword v91, v90, s[12:15], s40 offen")
        k("s_mov_b64 exec, -1")
    if fz and fz.xl and "y" in PT:
        k("s_lshr_b32 s41, s25, 1")
        k("s_mul_i32 s40, s41, 81920")
        k("s_mul_i32 s42, s24, 2560")
        k("s_add_u32 s40, s40, s42")
        k(f"s_add_u32 s40, s40, {WS_X1}")
        k("v_lshlrev_b32 v92, 7, v0")
        k("s_mov_b64 exec, 0xfffff")
        k("buffer_load_dword v93, v92, s[12:15], s40 offen")
        k("s_lshr_b32 s40, s24, 1")
        k("s_lshl_b32 s40, s40, 14")
        k("s_lshl_b32 s41, s41, 9")
        k("s_add_u32 s40, s40, s41")
        k("s_and_b32 s41, s24, 1")
        k("s_lshl_b32 s41, s41, 8")
        k("s_add_u32 s40, s40, s41")
        k(f"s_add_u32 s40, s40, {WS_ST1}")
        k("s_mov_b64 exec, 3")
        k("buffer_load_dword v94, v92, s[12:15], s40 offen")
        k("s_mov_b64 exec, -1")
    if fz and fz.xl and "K" in PT and repack and QK1D:
        k("s_lshr_b32 s42, s25, 3")
        k("s_mul_i32 s40, s33, 5120")
        k("s_mul_i32 s41, s42, 20480")
        k("s_add_u32 s40, s40, s41")
        k("s_add_u32 s40, s40, s50")
        k(f"s_add_u32 s40, s40, {QK1D}")
        k("s_mul_i32 s41, s24, 81920")
        k("s_mul_i32 s42, s42, 10240")
        k("s_add_u32 s41, s41, s42")
        k("s_mul_i32 s42, s33, 2560")
        k("s_add_u32 s41, s41, s42")
        k(f"s_add_u32 s41, s41, {WS_Q + QK1D - 40*128}")
        k("v_mov_b32 v89, s41")
        k("v_mov_b32 v95, s40")
        k("v_cmp_gt_u32 vcc, 40, v0")
        k("s_nop 1")
        k("v_cndmask_b32 v89, v89, v95, vcc")
        k("v_lshlrev_b32 v95, 7, v0")
        k("v_add_u32 v89, v89, v95")
        k("s_mov_b32 exec_hi, 0xfffffff")
        k("buffer_load_dword v95, v89, s[12:15], 0 offen")
        k("s_mov_b32 exec_hi, -1")
    if fz and fz.xl and PFA and not repack:
        att_prefetch(k, PFA, 21, 33, 128, 129)
    if (phl != 0 or (repack and RPRIO) or HPRI) and not (fz and repack and HHI): k(f"s_setprio {phl}")
    if HST: k.stamp(1)
    if fz and repack:
        def hook(t):
            if HHI and t == HHI: k(f"s_setprio {phl}")
            if t == WFT[0]:
                fz.wflag_set(33, 128, younger=((("o" in PT) + 2 * ("y" in PT) + (1 if ("K" in PT and QK1D) else 0)) if (WFY and fz.xl) else 0))
                if HST == 1: k.stamp(0)
            if t == WFT[1]: fz.wflag_issue(128)
        loop("h", h, uh, None, hook)
        fz.wflag_wait(128)
    else:
        loop("h", h, uh, None)
    finish(1)
    if fz is None:
        k.lab("end")
        k("s_endpgm")
    k.lab("compute")
    if pm != 0: k(f"s_setprio {pm}")
    k("s_waitcnt lgkmcnt(0)")
    k.srd(12, 6, 0, WS_SIZE)
    if fz and fz.p > 0:
        init_regs()
        k("s_barrier")
        q_loads()
    else:
        q_loads()
        init_regs()
    k.stamp(1)
    k("s_waitcnt vmcnt(0)")
    k("s_barrier")
    k.stamp(2)
    loop("m", TM, um, [4, 8, stream] if stream else b2)
    finish(0)
    return k
```

```python
from dsl import *
import struct
def f2u(x):
    return struct.unpack("<I", struct.pack("<f", x))[0]

KB = 1024
WS_WQ = 0
WS_W1 = 3 * MB
WS_WO = 5 * MB
WS_W2 = 6 * MB
WS_CSQ = 8 * MB
WS_CS1 = 8 * MB + 128 * KB
WS_ST0 = 8 * MB + 256 * KB
WS_ST1 = 8 * MB + 512 * KB
WS_X0 = 9 * MB
WS_X1 = 12 * MB
WS_X2 = 15 * MB
WS_O = 18 * MB
WS_Q = 21 * MB
WS_KV = 24 * MB
WS_H = 30 * MB
X_BYTES = 2048 * 640 * 2
H_BYTES = 2048 * 1536 * 2
ST_BYTES = 16 * 2048 * 8
Q_BYTES = 32 * 64 * 1280
KV_BYTES = 32 * 64 * 2560
WS_SIZE = 40 * MB
QSCALE = (20 ** -0.5) * 1.4426950408889634
KVPAD = 0
LINST = 0
QST = 0
QEXP = 0
QLATE = 3
Q0T = ""; Q0L = 0; HST = 0; HHI = 0; HPRI = 0; HPRO = 0; WFY = 0; RLDS = 0; RPRIO = 0; WFT = (2, 6)
ERP = 0
NCSP = 10

def wave_id(k, sreg, vtmp=1):
    k(f"v_lshrrev_b32 v{vtmp}, 6, v0")
    k("s_nop 0")
    k(f"v_readfirstlane_b32 s{sreg}, v{vtmp}")
    k("v_and_b32 v0, 63, v0")

def gen_prep(dbg=()):
    NWG = 220
    k = Kern("prep_kernel", NWG, 512, 4 * 8192, vgpr=64)
    k(f"s_cmp_ge_u32 s2, {NWG}")
    k(f"s_cbranch_scc1 {k.ref('end')}")
    k.karg(4, 0)
    k.karg(6, 8)
    k.karg(8, 16)
    k.karg(10, 32)
    k.karg(12, 48)
    k.karg(14, 80)
    wave_id(k, 26)
    k("s_waitcnt lgkmcnt(0)")
    k.srd(16, 14, 0, WS_SIZE)
    k("s_cmp_ge_u32 s26, 4")
    k(f"s_cbranch_scc1 {k.ref('stats')}")
    if "now" in dbg: k(f"s_branch {k.ref('end')}")
    k("s_lshl_b32 s3, s2, 2")
    k("s_add_u32 s3, s3, s26")
    def setup(lbl, lo, ncg, ptr, size, pitch, TN, K, dst, cs, csp):
        k.lab(lbl)
        k(f"s_sub_u32 s3, s3, {lo}")
        k.srd(20, ptr, 0, size)
        k(f"s_mov_b32 s27, {pitch}")
        k(f"s_mov_b32 s28, {(65536 + TN - 1)//TN}")
        k(f"s_mov_b32 s29, {TN}")
        k(f"s_mov_b32 s30, {K//8*TN*16}")
        k(f"s_mov_b32 s31, {dst}")
        k(f"s_mul_i32 s32, s3, {(65536 + ncg - 1)//ncg}")
        k("s_lshr_b32 s32, s32, 16")
        k(f"s_mul_i32 s33, s32, {ncg}")
        k("s_sub_u32 s33, s3, s33")
        k(f"s_mov_b32 s34, {cs if cs is not None else 0xffffffff:#x}")
        k(f"s_mov_b32 s35, {csp}")
        k(f"s_branch {k.ref('go')}")
    k("s_cmp_ge_u32 s3, 640"); k(f"s_cbranch_scc1 {k.ref('m_w2')}")
    k("s_cmp_ge_u32 s3, 540"); k(f"s_cbranch_scc1 {k.ref('m_wo')}")
    k("s_cmp_ge_u32 s3, 300"); k(f"s_cbranch_scc1 {k.ref('m_w1')}")
    setup("m_wq", 0, 30, 6, 640 * 3840, 3840, 128, 640, WS_WQ, WS_CSQ, 1920 * 4)
    setup("m_w1", 300, 24, 10, 640 * 3072, 3072, 96, 640, WS_W1, WS_CS1, 1536 * 4)
    setup("m_wo", 540, 10, 8, 640 * 1280, 1280, 80, 640, WS_WO, None, 0)
    setup("m_w2", 640, 10, 12, 1536 * 1280, 1280, 80, 1536, WS_W2, None, 0)
    k.lab("go")
    k("v_lshrrev_b32 v2, 3, v0")
    k("v_mul_lo_u32 v2, v2, s27")
    k("v_and_b32 v3, 7, v0")
    k("v_lshl_add_u32 v2, v3, 4, v2")
    k("s_lshl_b32 s36, s32, 6")
    k("s_mul_i32 s36, s36, s27")
    k("s_lshl_b32 s37, s33, 7")
    k("s_add_u32 s36, s36, s37")
    k("s_lshl_b32 s38, s27, 3")
    k("s_lshl_b32 s39, s26, 13")
    for j in range(8):
        k(f"s_add_u32 m0, s39, {j*1024}")
        k("s_nop 0")
        k("buffer_load_dwordx4 v2, s[20:23], s36 offen lds")
        if j < 7:
            k("s_add_u32 s36, s36, s38")
    k("s_lshl_b32 s40, s33, 6")
    k("v_add_u32 v4, s40, v0")
    k("v_mul_lo_u32 v5, v4, s28")
    k("v_lshrrev_b32 v5, 16, v5")
    k("v_mul_lo_u32 v6, v5, s29")
    k("v_sub_u32 v6, v4, v6")
    k("v_mul_lo_u32 v5, v5, s30")
    k("v_lshl_add_u32 v5, v6, 4, v5")
    k("s_lshl_b32 s41, s29, 4")
    k("s_lshl_b32 s42, s32, 3")
    k("s_mul_i32 s42, s42, s41")
    k("s_add_u32 s42, s42, s31")
    k("v_bfe_u32 v7, v0, 2, 2")
    k("v_lshlrev_b32 v7, 7, v7")
    k("v_lshrrev_b32 v8, 4, v0")
    k("v_lshl_add_u32 v7, v8, 5, v7")
    k("v_and_b32 v8, 3, v0")
    k("v_lshl_add_u32 v7, v8, 3, v7")
    k("v_add_u32 v7, s39, v7")
    k("v_mov_b32 v10, 0")
    for ku in range(8):
        k(f"s_waitcnt vmcnt({7-ku if ku == 0 else 7})") if False else None
    for ku in range(8):
        k("s_waitcnt vmcnt(7)")
        r = 16 + 4 * ku
        k(f"ds_read_b64_tr_b16 v[{r}:{r+1}], v7 offset:{ku*1024}")
        k(f"ds_read_b64_tr_b16 v[{r+2}:{r+3}], v7 offset:{ku*1024+512}")
        k("s_waitcnt lgkmcnt(0)")
        k(f"buffer_store_dwordx4 v[{r}:{r+3}], v5, s[16:19], s42 offen")
        if ku < 7:
            k("s_add_u32 s42, s42, s41")
    k("s_cmp_eq_u32 s34, 0xffffffff")
    k(f"s_cbranch_scc1 {k.ref('fin')}")
    for i in range(32):
        r = 16 + i
        k(f"v_lshlrev_b32 v8, 16, v{r}")
        k(f"v_and_b32 v9, 0xffff0000, v{r}")
        k("v_add_f32 v10, v10, v8")
        k("v_add_f32 v10, v10, v9")
    k("s_mul_i32 s43, s32, s35")
    k("s_add_u32 s43, s43, s34")
    k("v_lshlrev_b32 v4, 2, v4")
    k("buffer_store_dword v10, v4, s[16:19], s43 offen")
    k.lab("fin")
    k("s_waitcnt vmcnt(0)")
    k("s_endpgm")
    k.lab("stats")
    if "nox" in dbg: k(f"s_branch {k.ref('end')}")
    k("s_cmp_ge_u32 s2, 128")
    k(f"s_cbranch_scc1 {k.ref('end')}")
    k.srd(20, 4, 0, X_BYTES)
    k("s_sub_u32 s26, s26, 4")
    k("s_lshl_b32 s3, s2, 4")
    k("s_lshl_b32 s27, s26, 2")
    k("s_add_u32 s3, s3, s27")
    k("v_lshrrev_b32 v1, 4, v0")
    k("v_add_u32 v1, s3, v1")
    k("v_and_b32 v2, 15, v0")
    k("v_mul_u32_u24 v3, 1280, v1")
    k("v_lshl_add_u32 v3, v2, 4, v3")
    for i in range(5):
        k(f"buffer_load_dwordx4 v[{8+4*i}:{11+4*i}], v3, s[20:23], 0 offen offset:{256*i}")
    k("v_lshrrev_b32 v30, 5, v1")
    k("v_mul_u32_u24 v30, 40960, v30")
    k("v_and_b32 v31, 31, v1")
    k("v_lshl_add_u32 v30, v31, 4, v30")
    k("v_lshl_add_u32 v30, v2, 9, v30")
    k("v_mov_b32 v4, 0")
    k("v_mov_b32 v5, 0")
    for i in range(5):
        k(f"s_waitcnt vmcnt(4)")
        k(f"s_mov_b32 s28, {WS_X0 + i*8192}")
        k(f"buffer_store_dwordx4 v[{8+4*i}:{11+4*i}], v30, s[16:19], s28 offen")
        for j in range(4):
            r = 8 + 4 * i + j
            k(f"v_lshlrev_b32 v6, 16, v{r}")
            k(f"v_and_b32 v7, 0xffff0000, v{r}")
            k("v_add_f32 v4, v4, v6")
            k("v_fmac_f32 v5, v6, v6")
            k("v_add_f32 v4, v4, v7")
            k("v_fmac_f32 v5, v7, v7")
    for sh in (8, 4, 2, 1):
        k("s_nop 1")
        k(f"v_add_f32_dpp v4, v4, v4 row_ror:{sh} row_mask:0xf bank_mask:0xf")
        k(f"v_add_f32_dpp v5, v5, v5 row_ror:{sh} row_mask:0xf bank_mask:0xf")
    k("v_lshlrev_b32 v3, 3, v1")
    k("v_cmp_eq_u32 vcc, 0, v2")
    k("s_and_saveexec_b64 s[30:31], vcc")
    k(f"s_mov_b32 s28, {WS_ST0}")
    k("buffer_store_dwordx2 v[4:5], v3, s[16:19], s28 offen")
    k("s_waitcnt vmcnt(0)")
    k.lab("end")
    k("s_endpgm")
    return k

EWL = {"wo": 0, "w1": 0, "w2": 0, "qkv": 0}
EW = 0
LAYS = {
    "wo":  ([32768, 53248, 73728, 94208], [114688, 131072, 0, 16384], None, None),
    "w1":  ([0, 147712, 12288, 53248], [65536, 131072, 81920, 98304], 160000, None),
    "w2":  ([0, 20480, 40960, 61440], [81920, 98304, 114688, 131072], None, None),
    "qkv": ([0, 16384, 32768, 114688], [81920, 98304, 49152, 65536], 131072, 32768),
}
class Lay:
    def __init__(self, kind, fz, WB, SLOT, inner_w, inner_x):
        self.on = bool(EW and fz and fz.attn_first and fz.wait is not None)
        if self.on:
            self.W, self.X, self.stats, self.stg = LAYS[kind]
            self.rot = 0
            self.wb, self.wm = self.clus(self.W, inner_w)
            self.xb, self.xm = self.clus(self.X, inner_x)
        else:
            self.W = [s*SLOT for s in range(4)]; self.X = [WB + s*SLOT for s in range(4)]
            self.rot = fz.rot if fz else 0
            self.wb, self.wm = [0, 2*SLOT], [(0, 0), (0, SLOT), (1, 0), (1, SLOT)]
            self.xb, self.xm = [WB, WB + 2*SLOT], [(0, 0), (0, SLOT), (1, 0), (1, SLOT)]
        self.ew = EW[kind] if self.on else 0
        self.kind = kind
        self.late = []
        if self.on and EWL[kind]:
            exmax = {"wo": 2, "w1": 4, "w2": 3, "qkv": 2}[kind] if EWL[kind] == 2 else 2
            for c in (2, 3):
                if max(2, self.ew) <= c: self.late.append((c, "w"))
                if c < exmax: self.late.append((c, "x"))
    def issue_late(self, dma, nW):
        order = [1] * 4
        for c, p in self.late:
            dma(c, p); order += [c] * (nW if p == "w" else 4)
        done = set(self.late) | {(c, "w") for c in range(self.ew)}
        return len(order) - 4, order, done
    @staticmethod
    def clus(offs, inner):
        srt = sorted(offs); b0 = srt[0]
        a = [o for o in srt if o - b0 + inner <= 65536]
        rest = [o for o in srt if o not in a]
        b1 = rest[0] if rest else srt[-1]
        if not rest: a = srt[:-1]
        assert all(o - b1 + inner <= 65536 for o in srt if o not in a)
        return [b0, b1], [((0, o - b0) if o in a else (1, o - b1)) for o in offs]

def ring_loader(k, NCH, NSLOT, dma, nD, pre_b0=None, post_b0=None, first=2, pre_issue=None, fz=None, tail=None, st=None):
    if pre_issue:
        w = pre_issue()
    else:
        for c_ in range(first):
            dma(c_)
        w = nD*(first-1)
    k(f"s_waitcnt vmcnt({w})")
    if pre_b0: pre_b0()
    k("s_barrier")
    issued = first
    if post_b0: post_b0()
    ring_tail(k, NCH, NSLOT, dma, nD, issued, fz, tail, st)

def ring_tail(k, NCH, NSLOT, dma, nD, issued, fz=None, tail=None, st=None):
    npf = 0
    order, done = (st["order"], st["done"]) if st else ([c for c in range(1, issued) for _ in range(nD)], set())
    for i in range(1, NCH):
        while issued < NCH and issued <= i - 2 + NSLOT - RINGD:
            parts = "".join(p for p in "wx" if (issued, p) not in done)
            if parts == "wx": dma(issued)
            elif parts: dma(issued, parts)
            order = order + [issued] * ((4 if "x" in parts else 0) + (nD - 4 if "w" in parts else 0))
            issued += 1
            if issued == NCH and fz:
                npf = fz.prefetch_w()
                if fz.tail: npf += fz.tail()
            if issued == NCH and tail: npf = tail()
        younger = order[::-1].index(i) if i in order else len(order)
        k(f"s_waitcnt vmcnt({younger + npf})")
        k("s_barrier")


WS_FLAG = 8 * MB + 768 * KB
NFLAGSET = 8
WSET = 12
LDS_CNT = 147456
POLL_MAX = 0x4000
QKD = 0
GSLEEP = 1
KROT = 0
XST = 0
QK1D = 0
class Fuse:
    def __init__(self, name, nph, kidx0, xl=False, modeset=None, force_slow=False, sleep=1, xplain=False, attn_first=False):
        self.attn_first = attn_first
        self.k = Kern(name, 256, 512, 163840 if attn_first else LDS_CNT + 256, vgpr=256)
        self.k.fused = True
        self.nph, self.kidx0, self.p = nph, kidx0, -1
        self.xl, self.modeset, self.force_slow, self.sleep = xl, modeset, force_slow, sleep
        self.xplain = xplain and xl
    def begin(self, wait=None, sig=None, rot=0, pfw=None, glob=False):
        self.p += 1
        self.wait, self.sig, self.rot, self.pfw = wait, sig, rot, pfw
        self.glob = glob
        self.tail = None
        k = self.k
        if self.p == 0:
            k.pfx = ""
            k("s_cmp_ge_u32 s2, 256")
            k(f"s_cbranch_scc1 {k.ref('fin')}")
            k.karg(6, 80)
            wave_id(k, 64)
            if not self.attn_first:
                k(f"v_mov_b32 v1, {LDS_CNT}")
                k("v_mov_b32 v2, 0")
                k("ds_write_b32 v1, v2")
        k.pfx = f"p{self.p}_"
        k.lab("entry")
        k.stamp(0)
        k("s_mov_b32 s26, s64")
    @property
    def last(self): return self.p == self.nph - 1
    def nxt(self): return f"{self.k.name}_p{self.p+1}_entry"
    def leave(self):
        k = self.k
        k.stamp_save(self.p)
        if self.last:
            k.stamp_flush_all(6, self.kidx0, self.nph, 64)
            k("s_endpgm")
        else:
            k(f"s_branch {self.nxt()}")
    def skip_to_end(self):
        if self.last: self.k(f"s_cbranch_scc1 {self.k.name}_skip")
        else: self.k(f"s_cbranch_scc1 {self.nxt()}")
    def close(self):
        k = self.k
        k.pfx = ""
        k.lab("skip")
        k.stamp_flush_all(6, self.kidx0, self.nph, 64)
        k.lab("fin")
        k("s_endpgm")
        return k
    def mode_word(self, d):
        k = self.k
        k(f"s_and_b32 s{d}, s2, 7")
        k(f"s_lshl_b32 s{d}, s{d}, 7")
        k(f"s_add_u32 s{d}, s{d}, {WS_FLAG + self.modeset*4096}")
    def mode_token(self, d, t):
        k = self.k
        k(f"s_getreg_b32 s{t}, hwreg(HW_REG_XCC_ID, 0, 4)")
        k(f"s_mul_i32 s{d}, s{t}, s{t}")
        k(f"s_lshl_b32 s{d}, s{d}, 16")
        k(f"s_lshl_b32 s{t}, s{t}, 6")
        k(f"s_add_u32 s{d}, s{d}, s{t}")
        k(f"s_add_u32 s{d}, s{d}, 1")
    def mode_publish(self, w0=0):
        if not (self.xl and self.p == 0): return
        k = self.k
        k(f"s_cmp_lg_u32 s26, {w0}")
        k(f"s_cbranch_scc1 {k.ref('nopub')}")
        self.mode_token(65, 66)
        self.mode_word(66)
        k("s_mov_b64 exec, 1")
        k("v_mov_b32 v10, s65")
        k("buffer_atomic_add v10, off, s[12:15], s66 sc1")
        k("s_mov_b64 exec, -1")
        k.lab("nopub")
    def mode_issue(self, srd, vd):
        k = self.k
        self.mode_word(62)
        k(f"buffer_load_dword v{vd}, off, s[{srd}:{srd+3}], s62 sc1")
    def mode_resolve(self, srd, vd):
        k = self.k
        l0, l1 = k.newlab("mpoll"), k.newlab("mpolled")
        self.mode_word(62)
        k(f"s_mov_b32 s65, {POLL_MAX}")
        k.lab(l0)
        k(f"v_readfirstlane_b32 s67, v{vd}")
        k("s_and_b32 s66, s67, 63")
        k("s_cmp_eq_u32 s66, 32")
        k(f"s_cbranch_scc1 {k.ref(l1)}")
        k("s_sleep 2")
        k(f"buffer_load_dword v{vd}, off, s[{srd}:{srd+3}], s62 sc1")
        k("s_waitcnt vmcnt(0)")
        k("s_sub_u32 s65, s65, 1")
        k(f"s_cbranch_scc0 {k.ref(l0)}")
        k.lab(l1)
        self.mode_token(65, 66)
        k("s_lshl_b32 s65, s65, 5")
        k("s_cmp_lg_u32 s65, s67")
        k("s_cselect_b32 s63, 1, 0")
        if self.force_slow: k("s_mov_b32 s63, 1")
    def prefetch_w(self):
        if not self.pfw: return 0
        k = self.k
        base, nb = self.pfw
        per_w = nb // 128
        lines = (per_w + 127) // 128
        k("s_lshr_b32 s65, s2, 3")
        k("s_lshl_b32 s65, s65, 2")
        k("s_add_u32 s65, s65, s26")
        k(f"s_mul_i32 s65, s65, {per_w}")
        k(f"s_add_u32 s65, s65, {base}")
        k("v_lshlrev_b32 v12, 7, v0")
        n = 0
        done = 0
        while done < lines:
            n_ = min(64, lines - done)
            if n_ < 64: k(f"s_mov_b64 exec, {(1 << n_) - 1:#x}") if n_ <= 32 else (k(f"s_mov_b32 exec_hi, {((1 << n_) - 1) >> 32:#x}"))
            k(f"buffer_load_dword v{13+n}, v12, s[12:15], s65 offen")
            if n_ < 64: k("s_mov_b64 exec, -1")
            done += n_; n += 1
            if done < lines: k(f"s_add_u32 s65, s65, {64*128}")
        return n
    def poll(self, line, nprod):
        k = self.k
        if self.xl and self.p == 1 and not self.attn_first:
            k(f"s_mov_b32 s61, s{line}")
            self.mode_issue(12, 11)
            k("s_waitcnt vmcnt(0)")
            self.mode_resolve(12, 11)
            line = 61
        k(f"s_lshl_b32 s66, s{line}, 7")
        k(f"s_add_u32 s66, s66, {WS_FLAG + self.wait*4096}")
        k("v_lshlrev_b32 v10, 2, v0")
        k(f"s_mov_b64 exec, {(1 << nprod) - 1:#x}")
        k(f"s_mov_b32 s65, {POLL_MAX}")
        k.lab("poll")
        k("buffer_load_dword v11, v10, s[12:15], s66 offen sc1")
        k("s_waitcnt vmcnt(0)")
        k("v_cmp_ne_u32 vcc, 0, v11")
        k(f"s_cmp_eq_u32 vcc_lo, {(1 << nprod) - 1:#x}")
        k(f"s_cbranch_scc1 {k.ref('polled')}")
        k(f"s_sleep {self.sleep}")
        k("s_sub_u32 s65, s65, 1")
        k(f"s_cbranch_scc0 {k.ref('poll')}")
        k.lab("polled")
        k("s_mov_b64 exec, -1")
        if self.xl:
            k("s_cmp_eq_u32 s63, 0")
            k(f"s_cbranch_scc1 {k.ref('noacq')}")
            k("buffer_inv sc1")
            k("s_waitcnt vmcnt(0)")
            k.lab("noacq")
        k.stamp(3)
    def poll_group(self):
        k = self.k
        k("s_and_b32 s66, s2, 7")
        k("s_lshl_b32 s66, s66, 7")
        k(f"s_add_u32 s66, s66, {WS_FLAG + self.wait*4096}")
        k(f"s_mov_b32 s65, {POLL_MAX}")
        k.lab("lpoll")
        k("buffer_load_dword v11, off, s[12:15], s66 sc1")
        k("s_waitcnt vmcnt(0)")
        k("v_readfirstlane_b32 s67, v11")
        k("s_cmp_ge_u32 s67, 30")
        k(f"s_cbranch_scc1 {k.ref('lpolled')}")
        k(f"s_sleep {GSLEEP}")
        k("s_sub_u32 s65, s65, 1")
        k(f"s_cbranch_scc0 {k.ref('lpoll')}")
        k.lab("lpolled")
        k("s_cmp_eq_u32 s63, 0")
        k(f"s_cbranch_scc1 {k.ref('lnoacq')}")
        k("buffer_inv sc1")
        k("s_waitcnt vmcnt(0)")
        k.lab("lnoacq")
    def poll_all(self):
        k = self.k
        k("s_and_b32 s66, s2, 7")
        k("s_lshl_b32 s66, s66, 7")
        k(f"s_add_u32 s66, s66, {WS_FLAG + self.wait*4096 + 2048}")
        k("v_lshlrev_b32 v10, 2, v0")
        k("s_mov_b64 exec, 0xff")
        k(f"s_mov_b32 s65, {POLL_MAX}")
        k.lab("gpoll")
        k("buffer_load_dword v11, v10, s[12:15], s66 offen sc1")
        k("s_waitcnt vmcnt(0)")
        k("v_cmp_ne_u32 vcc, 0, v11")
        k("s_nop 1")
        k("s_cmp_eq_u32 vcc_lo, 0xff")
        k(f"s_cbranch_scc1 {k.ref('gpolled')}")
        k(f"s_sleep {GSLEEP}")
        k("s_sub_u32 s65, s65, 1")
        k(f"s_cbranch_scc0 {k.ref('gpoll')}")
        k.lab("gpolled")
        k("v_cmp_lt_u32 vcc, 1, v11")
        k("s_nop 1")
        k("s_cmp_eq_u32 vcc_lo, 0")
        k("s_mov_b64 exec, -1")
        k(f"s_cbranch_scc1 {k.ref('gnoacq')}")
        k("buffer_inv sc1")
        k("s_waitcnt vmcnt(0)")
        k.lab("gnoacq")
    def signal(self):
        k = self.k
        l = k.newlab("nosig")
        k("s_mov_b64 exec, 1")
        k(f"v_mov_b32 v1, {LDS_CNT}")
        k("v_mov_b32 v2, 1")
        k("ds_add_rtn_u32 v3, v1, v2")
        k("s_lshl_b32 s37, s24, 7")
        k("s_lshl_b32 s38, s25, 2")
        k("s_add_u32 s37, s37, s38")
        k(f"s_add_u32 s37, s37, {WS_FLAG + self.sig*4096}")
        k("s_waitcnt lgkmcnt(0)")
        k("v_readfirstlane_b32 s38, v3")
        k("s_and_b32 s38, s38, 3")
        k("s_cmp_eq_u32 s38, 3")
        k(f"s_cbranch_scc0 {k.ref(l)}")
        if self.glob:
            assert self.xl
            l2, l3 = k.newlab("fastsig"), k.newlab("arrived")
            k("s_and_b32 s39, s2, 7")
            k("s_lshl_b32 s37, s39, 7")
            k(f"s_add_u32 s37, s37, {WS_FLAG + self.sig*4096}")
            k("s_cmp_eq_u32 s63, 0")
            k(f"s_cbranch_scc1 {k.ref(l2)}")
            k("buffer_wbl2 sc1")
            k("s_waitcnt vmcnt(0)")
            k("buffer_atomic_add v2, off, s[48:51], s37 sc0 sc1")
            k(f"s_branch {k.ref(l3)}")
            k.lab(l2)
            k("buffer_atomic_add v2, off, s[48:51], s37 sc0")
            k.lab(l3)
            k("s_lshl_b32 s37, s39, 2")
            k(f"s_add_u32 s37, s37, {WS_FLAG + self.sig*4096 + 2048}")
            k("s_add_u32 s39, s63, 1")
            k("s_waitcnt vmcnt(0)")
            k("v_readfirstlane_b32 s38, v2")
            k("s_cmp_eq_u32 s38, 29")
            k(f"s_cbranch_scc0 {k.ref(l)}")
            k("s_mov_b64 exec, 0xff")
            k("v_lshlrev_b32 v1, 7, v0")
            k("v_mov_b32 v2, s39")
            k("buffer_store_dword v2, v1, s[48:51], s37 offen sc1")
        elif self.xl:
            l2 = k.newlab("fastsig")
            k("s_cmp_eq_u32 s63, 0")
            k(f"s_cbranch_scc1 {k.ref(l2)}")
            k("buffer_wbl2 sc1")
            k("s_waitcnt vmcnt(0)")
            k("buffer_store_dword v2, off, s[48:51], s37 sc1")
            k(f"s_branch {k.ref(l)}")
            k.lab(l2)
            k("buffer_store_dword v2, off, s[48:51], s37 ; nosc")
        else:
            k("buffer_store_dword v2, off, s[48:51], s37 sc1")
        k.lab(l)
        k("s_mov_b64 exec, -1")

    def attn_done(self, role):
        k = self.k
        self.mode_resolve(12, 250)
        l, l2 = k.newlab("asig"), k.newlab("afast")
        k(f"s_add_u32 s37, s25, {role}")
        k("s_lshl_b32 s37, s37, 7")
        k("s_lshl_b32 s38, s24, 2")
        k("s_add_u32 s37, s37, s38")
        k(f"s_add_u32 s37, s37, {WS_FLAG + self.sig*4096}")
        k("s_mov_b64 exec, 1")
        k("v_mov_b32 v2, 1")
        k("s_cmp_eq_u32 s63, 0")
        k(f"s_cbranch_scc1 {k.ref(l2)}")
        k("buffer_wbl2 sc1")
        k("s_waitcnt vmcnt(0)")
        k("buffer_store_dword v2, off, s[12:15], s37 sc1")
        k(f"s_branch {k.ref(l)}")
        k.lab(l2)
        k("buffer_store_dword v2, off, s[12:15], s37 ; nosc")
        k.lab(l)
        if role == 0:
            k(f"v_mov_b32 v1, {LDS_CNT}")
            k("v_mov_b32 v2, 0")
            k("ds_write_b32 v1, v2")
            k("s_waitcnt lgkmcnt(0)")
        k("s_mov_b64 exec, -1")
        k("s_setprio 0")
        self.leave()
    def wflag_set(self, lw, v, younger=0):
        k = self.k
        k(f"s_waitcnt vmcnt({younger})")
        k("s_lshl_b32 s52, s2, 2")
        k(f"s_add_u32 s52, s52, s{lw}")
        k("s_lshl_b32 s52, s52, 2")
        k(f"s_add_u32 s52, s52, {WS_FLAG + WSET*4096}")
        k("s_mov_b64 exec, 1")
        k(f"v_mov_b32 v{v}, 1")
        k(f"buffer_store_dword v{v}, off, s[12:15], s52 sc1")
        k("s_mov_b64 exec, -1")
    def wflag_issue(self, v):
        k = self.k
        k(f"v_lshlrev_b32 v{v+16}, 4, v0")
        k(f"s_mov_b32 s52, {WS_FLAG + WSET*4096}")
        for i in range(4):
            k(f"buffer_load_dwordx4 v[{v+4*i}:{v+4*i+3}], v{v+16}, s[12:15], s52 offen offset:{i*1024} sc1")
    def wflag_wait(self, v):
        k = self.k
        l0, l1 = k.newlab("wpoll"), k.newlab("wready")
        k(f"s_mov_b32 s53, {POLL_MAX}")
        k.lab(l0)
        k("s_waitcnt vmcnt(0)")
        for i in range(1, 16):
            k(f"v_and_b32 v{v}, v{v}, v{v+i}")
        k(f"v_cmp_ne_u32 vcc, 0, v{v}")
        k("s_nop 1")
        k("s_cmp_eq_u64 vcc, -1")
        k(f"s_cbranch_scc1 {k.ref(l1)}")
        k("s_sleep 4")
        self.wflag_issue(v)
        k("s_sub_u32 s53, s53, 1")
        k(f"s_cbranch_scc0 {k.ref(l0)}")
        k.lab(l1)

def fin_compute(k, fz, kidx):
    k.stamp(4)
    if fz is None:
        k.stamp_flush(6, kidx, 5, 26)
        k("s_endpgm")
    else:
        if fz.xl and fz.p == 0: fz.mode_resolve(48, 250)
        if fz.sig is not None: fz.signal()
        fz.leave()

def fin_loader(k, fz, kidx):
    k.stamp(4)
    if fz is None:
        k("s_add_u32 s26, s26, 4")
        k.stamp_flush(6, kidx, 5, 26)
        k.lab("end")
        k("s_endpgm")
    else:
        fz.leave()


PFS = 128
CW = 0
XSC = ""
PT = ""
OUTP = 0
CWN = 2
class TilePF:
    def __init__(self, k, pfd, first, NCH, va, vs, vd, srd):
        self.k, self.pfd, self.first, self.NCH, self.va, self.vs, self.vd, self.srd = k, pfd, first, NCH, va, vs, vd, srd
        self.next = first
    def one(self):
        k = self.k
        k(f"buffer_load_dword v{self.vd}, v{self.va}, s[{self.srd}:{self.srd+3}], 0 offen")
        self.next += 1
        if self.next < self.NCH:
            k(f"v_add_u32 v{self.va}, v{self.vs}, v{self.va}")
    def start(self):
        self.next = self.first
        while self.next < self.NCH and self.next <= self.pfd:
            self.one()
    def at_barrier(self):
        if self.pfd and self.next < self.NCH:
            self.one()

def gen_gemmA(name, kind, layer, kidx=0, dbg=(), first=2, pfd=0, fz=None):
    if kind == "qkv":
        NWG, NB, TB, TN = 240, 2, 2, 128
        WS_W, XSRC, ST, NPART, CSP, NCOL = WS_WQ, (WS_X0 if layer == 0 else WS_X2), WS_ST0, (1 if layer == 0 else 16), WS_CSQ, 1920
    else:
        NWG, NB, TB, TN = 256, 3, 1, 96
        WS_W, XSRC, ST, NPART, CSP, NCOL = WS_W1, WS_X1, WS_ST1, 16, WS_CS1, 1536
    WB = TN * 128
    SLOT = WB + 16384
    NSLOT = 4
    NCH = 10
    STATS = NSLOT * SLOT
    LDS = STATS + 2048
    lay = Lay(kind, fz, WB, SLOT, WB, TB*4096 + 4096)
    rot = lay.rot
    if lay.on: STATS = lay.stats
    HO = bool(fz and fz.wait is not None)
    XS = " sc1" if (HO and not fz.xplain) else ""
    if fz is None:
        k = Kern(name, NWG, 512, LDS, vgpr=256)
        k(f"s_cmp_ge_u32 s2, {NWG}")
        k(f"s_cbranch_scc1 {k.ref('end')}")
        k.stamp(0)
        k.karg(6, 80)
        if kind == "w1":
            k.karg(8, 40)
        wave_id(k, 26)
    else:
        k = fz.k
        if NWG < 256:
            k(f"s_cmp_ge_u32 s2, {NWG}")
            fz.skip_to_end()
        if kind == "w1":
            k.karg(8, 40)
    k("s_and_b32 s20, s2, 7")
    k("s_lshr_b32 s21, s2, 3")
    if fz and fz.xl:
        k("s_and_b32 s22, s21, 1")
        k("s_lshl_b32 s23, s20, 1")
        k("s_add_u32 s24, s23, s22")
        k("s_lshr_b32 s25, s21, 1")
    else:
        if kind == "qkv":
            k("s_and_b32 s22, s20, 1")
            k("s_mul_i32 s22, s22, 30")
            k("s_add_u32 s22, s22, s21")
            k("s_lshr_b32 s25, s22, 2")
            k("s_and_b32 s22, s22, 3")
        else:
            k("s_and_b32 s22, s20, 1")
            k("s_lshl_b32 s22, s22, 3")
            k("s_lshr_b32 s23, s21, 2")
            k("s_add_u32 s25, s22, s23")
            k("s_and_b32 s22, s21, 3")
        k("s_lshr_b32 s23, s20, 1")
        k("s_lshl_b32 s23, s23, 2")
        k("s_add_u32 s24, s23, s22")
    k("s_cmp_lt_u32 s26, 4")
    k(f"s_cbranch_scc1 {k.ref('compute')}")

    k("s_sub_u32 s26, s26, 4")
    k("v_lshlrev_b32 v1, 4, v0")
    nW = WB // 4096
    k(f"s_mul_i32 s40, s25, {80*TN*16}")
    k(f"s_mul_i32 s41, s26, {nW*1024}")
    k("s_add_u32 s40, s40, s41")
    k(f"s_add_u32 s40, s40, {WS_W}")
    k("s_mov_b32 s42, s41")
    k("s_lshl_b32 s43, s24, 2")
    k("s_add_u32 s43, s43, s26")
    k("s_mul_i32 s43, s43, 40960")
    k(f"s_add_u32 s43, s43, {XSRC}")
    k("s_lshl_b32 s44, s26, 12")
    if not lay.on: k(f"s_add_u32 s44, s44, {WB}")
    k("s_waitcnt lgkmcnt(0)")
    k.srd(12, 6, 0, WS_SIZE)
    def dma(ch, parts="wx"):
        if "nodma" in dbg: return
        slot = (ch + rot) % NSLOT
        if "w" in parts:
            k(f"s_add_u32 m0, s42, {lay.W[slot]}")
            k(f"s_add_u32 s45, s40, {(0 if 'fixw' in dbg else ch)*WB}")
            for i in range(nW):
                k(f"buffer_load_dwordx4 v1, s[12:15], s45 offen offset:{i*1024} lds")
        if "x" in parts:
            k(f"s_add_u32 m0, s44, {lay.X[slot] - (0 if lay.on else WB)}")
            k(f"s_add_u32 s45, s43, {(0 if 'fixx' in dbg else ch)*4096}")
            for i in range(4):
                k(f"buffer_load_dwordx4 v1, s[12:15], s45 offen offset:{i*1024}{XS} lds")
    nD = nW + 4
    rst = None
    k.stamp(1)
    early = HO
    def stats_loads():
        k("s_lshl_b32 s46, s24, 7")
        k("s_lshl_b32 s47, s26, 5")
        k("s_add_u32 s46, s46, s47")
        k("v_add_u32 v4, s46, v2")
        k("v_lshlrev_b32 v4, 3, v4")
        if NPART == 16:
            k("v_lshl_add_u32 v4, v3, 17, v4")
            for p in range(8):
                k(f"s_mov_b32 s47, {ST + p*16384}")
                k(f"buffer_load_dwordx2 v[{16+2*p}:{17+2*p}], v4, s[12:15], s47 offen{XS}")
        else:
            k(f"s_mov_b32 s47, {ST}")
            k(f"buffer_load_dwordx2 v[16:17], v4, s[12:15], s47 offen{XS}")
    def cs_loads():
        k("s_lshl_b32 s47, s26, 5")
        k("v_add_u32 v5, s47, v2")
        k(f"s_mul_i32 s47, s25, {TN}")
        k("v_add_u32 v6, s47, v5")
        k("v_lshlrev_b32 v7, 2, v6")
        k(f"v_mul_u32_u24 v8, {5*NCOL*4}, v3")
        k("v_add_u32 v7, v7, v8")
        for p in range(5):
            k(f"s_mov_b32 s47, {CSP + p*NCOL*4}")
            k(f"buffer_load_dword v{32+p}, v7, s[12:15], s47 offen")
        if kind == "w1":
            k.srd(16, 8, 0, 1536 * 2)
            k("v_lshlrev_b32 v9, 1, v6")
            k("buffer_load_ushort v38, v9, s[16:19], 0 offen")
    if early:
        for c_ in range(max(first, lay.ew)):
            dma(c_, "w")
        k("v_and_b32 v2, 31, v0")
        k("v_lshrrev_b32 v3, 5, v0")
        cs_loads()
        k("s_lshr_b32 s67, s26, 1")
        k("s_lshl_b32 s46, s24, 1")
        k("s_add_u32 s67, s67, s46")
        fz.poll(67, 8)
        dma(0, "x")
        stats_loads()
        for c_ in range(1, first):
            dma(c_, "x")
        nl = 0
        if lay.on:
            nl, order, done = lay.issue_late(dma, nW); rst = {"order": order, "done": done}
        k(f"s_waitcnt vmcnt({4*(first-1) + nl})")
    else:
        dma(0)
        k("v_and_b32 v2, 31, v0")
        k("v_lshrrev_b32 v3, 5, v0")
        stats_loads()
        cs_loads()
        for c_ in range(1, first):
            dma(c_)
        k(f"s_waitcnt vmcnt({nD*(first-1)})")
    k.stamp(2)
    k("s_barrier")
    if NPART == 16:
        for p in range(1, 8):
            k(f"v_add_f32 v16, v16, v{16+2*p}")
            k(f"v_add_f32 v17, v17, v{17+2*p}")
        k("v_mov_b32 v18, v16")
        k("v_mov_b32 v19, v17")
        k("s_nop 1")
        k("v_permlane32_swap_b32 v16, v18")
        k("v_permlane32_swap_b32 v17, v19")
        k("s_nop 1")
        k("v_add_f32 v16, v16, v18")
        k("v_add_f32 v17, v17, v19")
    k(f"v_mul_f32 v16, {f2u(1/640):#x}, v16")
    k(f"v_mul_f32 v17, {f2u(1/640):#x}, v17")
    k("v_fma_f32 v17, -v16, v16, v17")
    k("v_max_f32 v17, 0, v17")
    k(f"v_add_f32 v18, {f2u(1e-5):#x}, v17")
    k("v_rsq_f32 v18, v18")
    if kind == "w1":
        k("s_nop 0")
        k("v_mul_f32 v19, v18, v18")
        k("v_mul_f32 v19, v19, v17")
        k(f"v_add_f32 v19, {f2u(1e-5):#x}, v19")
        k("v_rsq_f32 v19, v19")
        k("s_nop 0")
        k("v_mul_f32 v18, v18, v19")
    else:
        k("s_cmp_lt_u32 s25, 5")
        k(f"s_cselect_b32 s46, {f2u(QSCALE):#x}, 1.0")
        k("v_mul_f32 v18, s46, v18")
    k("s_nop 0")
    k("v_mul_f32 v19, v18, v16")
    for p in range(1, 5):
        k(f"v_add_f32 v32, v32, v{32+p}")
    k("v_mov_b32 v33, v32")
    k("s_nop 1")
    k("v_permlane32_swap_b32 v32, v33")
    k("s_nop 1")
    k("v_add_f32 v32, v32, v33")
    k("v_cmp_eq_u32 vcc, 0, v3")
    k("s_lshl_b32 s47, s26, 7")
    k("v_lshlrev_b32 v2, 2, v2")
    k("v_add_u32 v2, s47, v2")
    k(f"v_add_u32 v2, {STATS}, v2")
    k("v_lshl_add_u32 v2, v3, 9, v2")
    k("v_cndmask_b32 v18, v19, v18, vcc")
    if kind == "w1":
        k("v_lshlrev_b32 v38, 16, v38")
        k("v_cndmask_b32 v32, v38, v32, vcc")
    k("ds_write_b32 v2, v18")
    k("ds_write_b32 v2, v32 offset:1024")
    k("s_waitcnt lgkmcnt(0)")
    issued = first
    if fz and fz.xl and "X" in PT and kind == "w1" and (layer == 0 or OUTP):
        def tail():
            k("v_lshlrev_b32 v12, 7, v0")
            k("s_mul_i32 s46, s24, 163840")
            k("s_lshl_b32 s47, s25, 2")
            k("s_add_u32 s47, s47, s26")
            k("s_mul_i32 s47, s47, 2560")
            k("s_add_u32 s46, s46, s47")
            if layer == 0:
                k(f"s_add_u32 s46, s46, {WS_X2}")
                k("s_mov_b64 exec, 0xfffff")
                k("buffer_load_dword v13, v12, s[12:15], s46 offen")
                k("s_lshl_b32 s46, s25, 14")
                k("s_lshl_b32 s47, s24, 10")
                k("s_add_u32 s46, s46, s47")
                k("s_lshl_b32 s47, s26, 8")
                k("s_add_u32 s46, s46, s47")
                k(f"s_add_u32 s46, s46, {WS_ST0}")
                k("s_mov_b64 exec, 3")
                k("buffer_load_dword v14, v12, s[12:15], s46 offen")
                k("s_mov_b64 exec, -1")
                return 2
            k.karg(56, 64)
            k("s_waitcnt lgkmcnt(0)")
            k.srd(16, 56, 0, X_BYTES)
            k("s_mov_b64 exec, 0xfffff")
            k("buffer_load_dword v13, v12, s[16:19], s46 offen")
            k("s_mov_b64 exec, -1")
            return 1
        fz.tail = tail
    free = [int(d[4:]) for d in dbg if d.startswith("free")]
    if free:
        for c_ in range(first, NCH):
            dma(c_)
            k(f"s_waitcnt vmcnt({free[0]})")
        k("s_waitcnt vmcnt(0)")
        for i in range(1, NCH): k("s_barrier")
    else:
        ring_tail(k, NCH, NSLOT, dma, nD, issued, fz, st=rst)
    if kind == "qkv" and (QST & 2) and fz and not fz.last: k("s_barrier")
    fin_loader(k, fz, kidx)

    k.lab("compute")
    ACC = 64
    FA = [128, 128 + 4 * NB]
    FB = [160, 160 + 4 * TB]
    AW, AX = 1, 3
    HH, TL = 17, 16
    if kind == "qkv":
        k("s_and_b32 s27, s26, 1")
        k("s_lshr_b32 s36, s26, 1")
    else:
        k("s_mov_b32 s27, 0")
        k("s_mov_b32 s36, s26")
    k(f"v_lshrrev_b32 v{HH}, 5, v0")
    k(f"v_and_b32 v{TL}, 31, v0")
    k(f"v_mul_u32_u24 v20, {TN*16}, v{HH}")
    k(f"v_lshl_add_u32 v20, v{TL}, 4, v20")
    k(f"s_mul_i32 s37, s27, {NB*512}")
    if lay.wb[0]: k(f"s_add_u32 s37, s37, {lay.wb[0]}")
    k(f"v_add_u32 v{AW}, s37, v20")
    k(f"v_add_u32 v{AW+1}, {lay.wb[1] - lay.wb[0]}, v{AW}")
    k(f"v_lshlrev_b32 v20, 4, v0")
    k(f"s_mul_i32 s37, s36, {TB*4096}")
    k(f"s_add_u32 s37, s37, {lay.xb[0]}")
    k(f"v_add_u32 v{AX}, s37, v20")
    k(f"v_add_u32 v{AX+1}, {lay.xb[1] - lay.xb[0]}, v{AX}")

    def reads(step):
        ch, ks = divmod(step, 4)
        slot = (ch + rot) % NSLOT
        (hw, ow), (hx, ox) = lay.wm[slot], lay.xm[slot]
        st = step & 1
        out = []
        for nb in range(NB):
            d = FA[st] + nb * 4
            out.append(f"ds_read_b128 v[{d}:{d+3}], v{AW+hw} offset:{ow + ks*2*TN*16 + nb*512}")
        for tb in range(TB):
            d = FB[st] + tb * 4
            out.append(f"ds_read_b128 v[{d}:{d+3}], v{AX+hx} offset:{ox + ks*1024 + tb*4096}")
        return out

    def mainloop(swap, late=()):
        nx0 = PFT.next
        k.stamp(1)
        k("s_barrier")
        k.stamp(2)
        for r in reads(0):
            k(r)
        NS = NCH * 4
        for step in range(NS):
            st = step & 1
            if step == QLATE:
                for f_ in late: f_()
            bar = step % 4 == 3 and step + 1 < NS
            cw = CW and not bar
            if not cw: k("s_waitcnt lgkmcnt(0)")
            if bar:
                k("s_barrier")
            rd = reads(step + 1) if step + 1 < NS else []
            if CW:
                wr, xr = rd[:NB], rd[NB:]
                rd = []
                for j in range(max(NB, TB)):
                    rd += wr[j:j+1] + xr[j:j+1]
            mf = []
            for nb in range(NB):
                for tb in range(TB):
                    d = ACC + (nb * TB + tb) * 16
                    a = FA[st] + nb * 4
                    b = FB[st] + tb * 4
                    c = "0" if step == 0 else f"v[{d}:{d+15}]"
                    if swap:
                        mf.append(f"v_mfma_f32_32x32x16_bf16 v[{d}:{d+15}], v[{b}:{b+3}], v[{a}:{a+3}], {c}")
                    else:
                        mf.append(f"v_mfma_f32_32x32x16_bf16 v[{d}:{d+15}], v[{a}:{a+3}], v[{b}:{b+3}], {c}")
            def pos(nb, tb):
                order = []
                for j in range(max(NB, TB)):
                    if j < NB: order.append(("w", j))
                    if j < TB: order.append(("x", j))
                return max(order.index(("w", nb)), order.index(("x", tb))), len(order)
            ri = 0
            issued_now = 0
            i = 0
            lastw = None
            for nb in range(NB):
                for tb in range(TB):
                    m = mf[i]
                    if cw and step > 0:
                        p, n_ = pos(nb, tb)
                        w_ = (n_ - 1 - p) + issued_now
                        if lastw is None or p > lastw:
                            k(f"s_waitcnt lgkmcnt({w_})")
                            lastw = p
                    elif cw and step == 0 and i == 0:
                        k("s_waitcnt lgkmcnt(0)")
                    if "nomfma" not in dbg: k(m)
                    nper = 2 if not CW else CWN
                    for r in rd[ri:ri + nper]:
                        if "fakerd" in dbg: k("s_nop 0"); k("s_nop 0")
                        elif "nords" not in dbg: k(r)
                        issued_now += 1
                    ri += nper
                    if i == 2 and step % 4 == 3: PFT.at_barrier()
                    i += 1
            assert ri >= len(rd)
        k.stamp(3)
        PFT.next = nx0

    k("s_waitcnt lgkmcnt(0)")
    PFT = TilePF(k, pfd, first, NCH, 8, 9, 10, 56)
    if pfd:
        k.srd(56, 6, 0, WS_SIZE)
        PS = PFS
        sh = {128: 7, 64: 6, 32: 5}[PS]
        nw = WB // 16 // PS
        NWL = 1024 // PS
        nx = 512 // PS
        k("s_and_b32 s37, s24, 3")
        k(f"s_mul_i32 s37, s37, {WB//4}")
        k(f"s_mul_i32 s38, s26, {WB//16}")
        k("s_add_u32 s37, s37, s38")
        k(f"s_mul_i32 s38, s25, {80*TN*16}")
        k("s_add_u32 s37, s37, s38")
        k(f"s_add_u32 s37, s37, {WS_W + first*WB}")
        k("s_and_b32 s38, s20, 1")
        k(f"s_mul_i32 s38, s38, {7 if kind == 'qkv' else 8}")
        k("s_sub_u32 s38, s25, s38")
        k("s_lshr_b32 s39, s38, 1")
        k("s_lshl_b32 s40, s24, 2")
        k("s_add_u32 s39, s39, s40")
        k("s_mul_i32 s39, s39, 40960")
        k("s_and_b32 s38, s38, 1")
        k("s_lshl_b32 s38, s38, 11")
        k("s_add_u32 s39, s39, s38")
        k("s_lshl_b32 s38, s26, 9")
        k("s_add_u32 s39, s39, s38")
        k(f"s_add_u32 s39, s39, {XSRC + first*4096 - NWL*PS}")
        k(f"v_lshlrev_b32 v8, {sh}, v0")
        k("v_mov_b32 v11, s39")
        k("v_mov_b32 v12, s37")
        k(f"v_cmp_gt_u32 vcc, {NWL}, v0")
        k(f"v_mov_b32 v9, 4096")
        k(f"v_mov_b32 v13, {WB}")
        k("v_cndmask_b32 v11, v11, v12, vcc")
        k("v_cndmask_b32 v9, v9, v13, vcc")
        k("v_add_u32 v8, v11, v8")
        k(f"v_cmp_gt_u32 vcc, {NWL+nx}, v0")
        k("v_mov_b32 v12, 0x80000000")
        k("s_nop 0")
        k("v_cndmask_b32 v8, v12, v8, vcc")
        if nw < NWL:
            k(f"v_subrev_u32 v13, {nw}, v0")
            k(f"v_cmp_gt_u32 vcc, {NWL-nw}, v13")
            k("s_nop 1")
            k("v_cndmask_b32 v8, v8, v12, vcc")
        PFT.start()
    if kind == "qkv":
        k("s_cmp_ge_u32 s25, 10")
        k(f"s_cbranch_scc1 {k.ref('vpath')}")
        stg = None
        if QST & 2:
            stg = lay.stg if lay.on else (65536 if (NCH - 1 + rot) % NSLOT < 2 else 0)
        late = [] if QLATE >= 0 else None
        pre_qk(k, HH, TL, stg=stg, late=late)
        mainloop(False, late or ())
        epi_qk(k, ACC, STATS, HH, TL, stg=stg)
        fin_compute(k, fz, kidx)
        k.lab("vpath")
        late = [] if QLATE >= 0 else None
        pre_v(k, HH, TL, stg=stg, late=late)
        mainloop(True, late or ())
        epi_v(k, ACC, STATS, HH, TL, stg=stg)
        fin_compute(k, fz, kidx)
    else:
        if fz and fz.xl and "h" in PT:
            k.srd(48, 6, 0, WS_SIZE)
            k("s_lshl_b32 s39, s24, 2")
            k("s_add_u32 s39, s39, s36")
            k("s_mul_i32 s39, s39, 98304")
            k("s_mul_i32 s40, s25, 6144")
            k("s_add_u32 s39, s39, s40")
            k(f"s_add_u32 s39, s39, {WS_H}")
            k("v_lshlrev_b32 v63, 7, v0")
            k("s_mov_b32 exec_hi, 0xffff")
            k("buffer_load_dword v62, v63, s[48:51], s39 offen")
            k("s_mov_b32 exec_hi, -1")
        mainloop(False)
        epi_w1(k, ACC, STATS, HH, TL, NS_=(" ; nosc" if (fz and fz.xl and "h" not in XSC) else ""))
        fin_compute(k, fz, kidx)
    return k


def gen_qkv_raw(name, kidx=0, dbg=(), first=2, pfd=0, zflags=False):
    NWG, NB, TB, TN = 240, 2, 2, 128
    WB = 16384
    SLOT = 2 * WB
    NSLOT = 4
    NCH = 10
    STATS = NSLOT * SLOT
    LDS = STATS + 2048
    k = Kern(name, NWG, 512, LDS, vgpr=256)
    k(f"s_cmp_ge_u32 s2, {NWG}")
    k(f"s_cbranch_scc1 {k.ref('end')}")
    k.stamp(0)
    k.karg(8, 0)
    k.karg(10, 8)
    k.karg(6, 80)
    wave_id(k, 26)
    k("s_and_b32 s20, s2, 7")
    k("s_lshr_b32 s21, s2, 3")
    k("s_and_b32 s22, s20, 1")
    k("s_mul_i32 s22, s22, 30")
    k("s_add_u32 s22, s22, s21")
    k("s_lshr_b32 s25, s22, 2")
    k("s_and_b32 s22, s22, 3")
    k("s_lshr_b32 s23, s20, 1")
    k("s_lshl_b32 s23, s23, 2")
    k("s_add_u32 s24, s23, s22")
    k("s_cmp_lt_u32 s26, 4")
    k(f"s_cbranch_scc1 {k.ref('compute')}")
    k("s_sub_u32 s26, s26, 4")
    if "w" in Q0T:
        k.karg(60, 16); k.karg(62, 32); k.karg(64, 48)
    VW, VX = 4, 8
    k("v_lshrrev_b32 v1, 4, v0")
    k("v_and_b32 v2, 15, v0")
    k("v_lshlrev_b32 v3, 2, v1")
    k("v_xor_b32 v2, v2, v3")
    k("v_mul_u32_u24 v1, 3840, v1")
    k(f"v_lshl_add_u32 v{VW}, v2, 4, v1")
    for i in range(1, 4):
        k(f"v_add_u32 v{VW+i}, {4*3840-1024}, v{VW+i-1}")
    k("v_lshrrev_b32 v1, 3, v0")
    k("v_and_b32 v2, 7, v0")
    k("v_lshrrev_b32 v3, 1, v1")
    k("v_xor_b32 v2, v2, v3")
    k("v_mul_u32_u24 v1, 1280, v1")
    k(f"v_lshl_add_u32 v{VX}, v2, 4, v1")
    k("v_xor_b32 v2, 4, v2")
    k("v_lshl_add_u32 v2, v2, 4, v1")
    k(f"v_add_u32 v{VX+1}, {8*1280-1024}, v2")
    k(f"v_add_u32 v{VX+2}, {2*(8*1280-1024)}, v{VX}")
    k(f"v_add_u32 v{VX+3}, {3*(8*1280-1024)}, v2")
    k("s_lshl_b32 s40, s25, 8")
    k(f"s_mul_i32 s41, s26, {16*3840}")
    k("s_add_u32 s40, s40, s41")
    k("s_lshl_b32 s42, s26, 12")
    k("s_lshl_b32 s43, s24, 2")
    k("s_add_u32 s43, s43, s26")
    k(f"s_mul_i32 s43, s43, {32*1280}")
    k(f"s_add_u32 s44, s42, {WB}")
    k("s_waitcnt lgkmcnt(0)")
    k.srd(12, 10, 0, 640 * 3840)
    k.srd(16, 8, 0, X_BYTES)
    def dma(ch):
        slot = ch % NSLOT
        k(f"s_add_u32 m0, s42, {slot*SLOT}")
        k(f"s_add_u32 s45, s40, {ch*64*3840}")
        for i in range(4):
            k(f"buffer_load_dwordx4 v{VW+i}, s[12:15], s45 offen offset:{i*1024} lds")
        k(f"s_add_u32 m0, s44, {slot*SLOT}")
        k(f"s_add_u32 s45, s43, {ch*128}")
        for i in range(4):
            k(f"buffer_load_dwordx4 v{VX+i}, s[16:19], s45 offen offset:{i*1024} lds")
    k.stamp(1)
    def pre(): k.stamp(2)
    def q0tail():
        n = 0
        k("s_lshl_b32 s46, s2, 2")
        k("s_add_u32 s46, s46, s26")
        k("v_lshlrev_b32 v12, 7, v0")
        k.srd(48, 6, 0, WS_SIZE)
        def part(srd, base, lines, v, size=None):
            k(f"s_mul_i32 s47, s46, {lines*128}")
            if size is not None and 960*lines*128 > size: k(f"s_min_u32 s47, s47, {size - lines*128}")
            if base: k(f"s_add_u32 s47, s47, {base}")
            if lines < 64: k(f"s_mov_b64 exec, {(1 << lines) - 1:#x}")
            k(f"buffer_load_dword v{v}, v12, s[{srd}:{srd+3}], s47 offen")
            if lines < 64: k("s_mov_b64 exec, -1")
        for ch_ in Q0T:
            if ch_ == "k":
                assert KVPAD == 0
                k("s_cmp_lt_u32 s46, 320")
                k(f"s_mov_b32 s52, {WS_KV - 320*8192}")
                k(f"s_cselect_b32 s52, {WS_Q}, s52")
                k("s_lshl_b32 s47, s46, 13")
                k("s_add_u32 s47, s47, s52")
                k("buffer_load_dword v13, v12, s[48:51], s47 offen"); n += 1
            if ch_ == "w":
                for (ptr, size, lines, v) in ((60, 640*1280, 7, 14), (62, 640*3072, 16, 15), (64, 1536*1280, 16, 16)):
                    k.srd(52, ptr, 0, size)
                    part(52, 0, lines, v, size); n += 1
            if ch_ == "p":
                for (base, lines, v) in ((WS_WO, 7, 17), (WS_W1, 16, 18), (WS_W2, 16, 19), (WS_WQ, 20, 20), (WS_CSQ, 2, 21)):
                    part(48, base, lines, v); n += 1
        return n
    ring_loader(k, NCH, NSLOT, dma, 8, pre_b0=pre, first=first, tail=(q0tail if Q0T and not Q0L else None))
    if Q0T and Q0L:
        q0tail()
        k("s_waitcnt vmcnt(0)")
    if zflags:
        k(f"s_cmp_ge_u32 s2, {NFLAGSET*4}")
        k(f"s_cbranch_scc1 {k.ref('zdone')}")
        k("s_cmp_lg_u32 s26, 0")
        k(f"s_cbranch_scc1 {k.ref('zdone')}")
        k.srd(48, 6, WS_FLAG, NFLAGSET*4096)
        k("s_lshl_b32 s45, s2, 10")
        k("v_lshlrev_b32 v1, 4, v0")
        for r in range(4):
            k(f"v_mov_b32 v{12+r}, 0")
        k("buffer_store_dwordx4 v[12:15], v1, s[48:51], s45 offen")
        k("s_waitcnt vmcnt(0)")
        k.lab("zdone")
    k.stamp(4)
    k("s_add_u32 s26, s26, 4")
    k.stamp_flush(6, kidx, 5, 26)
    k.lab("end")
    k("s_endpgm")

    k.lab("compute")
    ACC = 64
    FA = [128, 128 + 4 * NB]
    FB = [160, 160 + 4 * TB]
    AW, AX = 2, 192
    HH, TL = 17, 16
    S1, S2, TMP, SEL, CS = 48, 50, 52, 60, 32
    k("s_and_b32 s27, s26, 1")
    k("s_lshr_b32 s36, s26, 1")
    k(f"v_lshrrev_b32 v{HH}, 5, v0")
    k(f"v_and_b32 v{TL}, 31, v0")
    k("v_lshrrev_b32 v20, 4, v0")
    k("v_bfe_u32 v21, v0, 2, 2")
    k("v_and_b32 v22, 3, v0")
    k("v_lshrrev_b32 v23, 1, v20")
    k("v_lshl_add_u32 v23, v23, 3, v21")
    k("v_and_b32 v18, 1, v20")
    k("v_lshlrev_b32 v18, 1, v18")
    k("v_lshrrev_b32 v19, 1, v22")
    k("v_add_u32 v18, v18, v19")
    k("s_lshl_b32 s37, s27, 3")
    k("v_add_u32 v18, s37, v18")
    k("v_lshlrev_b32 v19, 2, v21")
    k("v_xor_b32 v18, v18, v19")
    k("v_lshlrev_b32 v18, 4, v18")
    k("v_lshl_add_u32 v18, v23, 8, v18")
    k("v_and_b32 v19, 1, v22")
    k(f"v_lshl_add_u32 v{AW}, v19, 3, v18")
    k(f"v_add_u32 v{AW+1}, {2*SLOT}, v{AW}")
    k(f"v_xor_b32 v{AW+2}, 64, v{AW}")
    k(f"v_add_u32 v{AW+3}, {2*SLOT}, v{AW+2}")
    k(f"v_bfe_u32 v18, v{TL}, 1, 3")
    k(f"v_xor_b32 v18, v18, v{HH}")
    k("v_lshlrev_b32 v18, 4, v18")
    k(f"v_lshl_add_u32 v18, v{TL}, 7, v18")
    k("s_lshl_b32 s37, s36, 13")
    k("s_lshl_b32 s38, s27, 12")
    k("s_add_u32 s37, s37, s38")
    k(f"s_add_u32 s37, s37, {WB}")
    k(f"v_add_u32 v{AX}, s37, v18")
    for sl_ in range(2):
        for ks in range(4):
            d = AX + (sl_ * 4 + ks) * 2
            x = (sl_ << 12) | (ks << 5)
            if x: k(f"v_xor_b32 v{d}, {x}, v{AX}")
            k(f"v_add_u32 v{d+1}, {2*SLOT}, v{d}")
    k("v_and_b32 v18, 15, v0")
    k("v_bfe_u32 v19, v0, 4, 1")
    k("v_cmp_eq_u32 vcc, v18, v19")
    k("v_mov_b32 v19, 0x3f803f80")
    k("s_nop 0")
    k(f"v_cndmask_b32 v{SEL}, 0, v19, vcc")
    for r in range(1, 4):
        k(f"v_mov_b32 v{SEL+r}, v{SEL}")
    for r in range(4):
        k(f"v_mov_b32 v{S1+r}, 0")

    def reads(step):
        ch, ks = divmod(step, 4)
        slot = ch % NSLOT
        half, sl = divmod(slot, 2)
        st = step & 1
        out = []
        for tb in range(TB):
            d = FB[st] + tb * 4
            out.append(f"ds_read_b128 v[{d}:{d+3}], v{AX+(tb*4+ks)*2+half} offset:{sl*SLOT}")
        for nb in range(NB):
            d = FA[st] + nb * 4
            out.append(f"ds_read_b64_tr_b16 v[{d}:{d+1}], v{AW+nb*2+half} offset:{sl*SLOT + ks*4096}")
            out.append(f"ds_read_b64_tr_b16 v[{d+2}:{d+3}], v{AW+nb*2+half} offset:{sl*SLOT + ks*4096 + 1024}")
        return out

    def mainloop(swap, late=()):
        nx0 = PFT.next
        k.stamp(1)
        k("s_barrier")
        k.stamp(2)
        for r in reads(0):
            k(r)
        NS = NCH * 4
        for step in range(NS):
            st = step & 1
            if step == QLATE:
                for f_ in late: f_()
            k("s_waitcnt lgkmcnt(0)")
            if step % 4 == 3 and step + 1 < NS:
                k("s_barrier")
                PFT.at_barrier()
            rd = reads(step + 1) if step + 1 < NS else []
            mf = []
            for nb in range(NB):
                for tb in range(TB):
                    d = ACC + (nb * TB + tb) * 16
                    a = FA[st] + nb * 4
                    b = FB[st] + tb * 4
                    c = "0" if step == 0 else f"v[{d}:{d+15}]"
                    if swap:
                        mf.append(f"v_mfma_f32_32x32x16_bf16 v[{d}:{d+15}], v[{b}:{b+3}], v[{a}:{a+3}], {c}")
                    else:
                        mf.append(f"v_mfma_f32_32x32x16_bf16 v[{d}:{d+15}], v[{a}:{a+3}], v[{b}:{b+3}], {c}")
            for nb in range(NB):
                d = CS + 4 * nb
                a = FA[st] + nb * 4
                c = "0" if step == 0 else f"v[{d}:{d+3}]"
                mf.insert(2 + 3 * nb, f"v_mfma_f32_16x16x32_bf16 v[{d}:{d+3}], v[{SEL}:{SEL+3}], v[{a}:{a+3}], {c}")
            va = []
            for r in range(4):
                x = FB[st] + r
                t = TMP + 2 * (r & 1)
                va += [f"v_and_b32 v{t}, 0xffff0000, v{x}", f"v_lshlrev_b32 v{t+1}, 16, v{x}",
                       f"v_add_f32 v{S1}, v{S1}, v{t}", f"v_fmac_f32 v{S2}, v{t}, v{t}",
                       f"v_add_f32 v{S1+1}, v{S1+1}, v{t+1}", f"v_fmac_f32 v{S2+1}, v{t+1}, v{t+1}"]
            if "nostat" in dbg: va = []
            ri, vi = 0, 0
            for i, m in enumerate(mf):
                k(m)
                nrd = 1
                for r in rd[ri:ri + nrd]: k(r)
                ri += nrd
                for x in va[vi:vi + 4]: k(x)
                vi += 4
            assert ri >= len(rd) and vi >= len(va)
        k.stamp(3)
        k(f"v_add_f32 v40, v{S1}, v{S1+1}")
        k(f"v_add_f32 v41, v{S2}, v{S2+1}")
        k("v_mov_b32 v42, v40")
        k("v_mov_b32 v43, v41")
        k("s_nop 1")
        k("v_permlane32_swap_b32 v40, v42")
        k("v_permlane32_swap_b32 v41, v43")
        k("s_nop 1")
        k("v_add_f32 v40, v40, v42")
        k("v_add_f32 v41, v41, v43")
        k(f"v_mul_f32 v40, {f2u(1/640):#x}, v40")
        k(f"v_mul_f32 v41, {f2u(1/640):#x}, v41")
        k("v_fma_f32 v41, -v40, v40, v41")
        k("v_max_f32 v41, 0, v41")
        k(f"v_add_f32 v42, {f2u(1e-5):#x}, v41")
        k("v_rsq_f32 v42, v42")
        k("s_cmp_lt_u32 s25, 5")
        k(f"s_cselect_b32 s46, {f2u(QSCALE):#x}, 1.0")
        k("v_mul_f32 v42, s46, v42")
        k("v_mul_f32 v43, v42, v40")
        k(f"v_cmp_eq_u32 vcc, 0, v{HH}")
        k("s_lshl_b32 s37, s36, 8")
        k("s_lshl_b32 s38, s27, 7")
        k("s_add_u32 s37, s37, s38")
        k(f"s_add_u32 s37, s37, {STATS}")
        k(f"v_lshlrev_b32 v44, 2, v{TL}")
        k("v_add_u32 v44, s37, v44")
        k(f"v_lshl_add_u32 v44, v{HH}, 9, v44")
        k("v_cndmask_b32 v42, v43, v42, vcc")
        k("ds_write_b32 v44, v42")
        k("s_lshl_b32 s37, s27, 8")
        k(f"s_add_u32 s37, s37, {STATS+1024}")
        k("v_lshlrev_b32 v45, 2, v0")
        k("v_add_u32 v45, s37, v45")
        k("s_mov_b64 exec, 0xffff")
        for nb in range(NB):
            k(f"ds_write_b32 v45, v{CS+4*nb} offset:{nb*128}")
            k(f"ds_write_b32 v45, v{CS+4*nb+1} offset:{nb*128+64}")
        k("s_mov_b64 exec, -1")
        k("s_waitcnt lgkmcnt(0)")
        k("s_barrier")
        PFT.next = nx0

    k("s_waitcnt lgkmcnt(0)")
    PFT = TilePF(k, pfd, first, NCH, 8, 9, 10, 56)
    if pfd:
        k("s_cmp_lt_u32 s26, 2")
        k("s_cselect_b32 s56, s10, s8")
        k("s_cselect_b32 s57, s11, s9")
        k(f"s_mov_b32 s58, {X_BYTES}")
        k(f"s_cselect_b32 s58, {640*3840}, s58")
        k("s_mov_b32 s59, 0x00020000")
        k(f"s_movk_i32 s41, 128")
        k(f"s_cselect_b32 s41, {64*3840}, s41")
        k("s_cselect_b32 s42, 16, 8")
        k("s_and_b32 s37, s24, 3")
        k("s_lshl_b32 s37, s37, 4")
        k("s_lshl_b32 s38, s26, 3")
        k("s_add_u32 s37, s37, s38")
        k(f"s_add_u32 s37, s37, {first*64}")
        k("s_mul_i32 s37, s37, 3840")
        k("s_lshl_b32 s38, s25, 8")
        k("s_add_u32 s37, s37, s38")
        k("s_and_b32 s38, s20, 1")
        k("s_mul_i32 s38, s38, 7")
        k("s_sub_u32 s38, s25, s38")
        k("s_lshl_b32 s38, s38, 4")
        k("s_lshl_b32 s39, s24, 7")
        k("s_add_u32 s38, s38, s39")
        k("s_and_b32 s39, s26, 1")
        k("s_lshl_b32 s39, s39, 3")
        k("s_add_u32 s38, s38, s39")
        k("s_mul_i32 s38, s38, 1280")
        k(f"s_add_u32 s38, s38, {first*128}")
        k("s_cmp_lt_u32 s26, 2")
        k("s_cselect_b32 s37, s37, s38")
        k("v_lshrrev_b32 v11, 1, v0")
        k("v_mul_u32_u24 v11, 3840, v11")
        k("v_and_b32 v12, 1, v0")
        k("v_lshl_add_u32 v11, v12, 7, v11")
        k("v_mul_u32_u24 v12, 1280, v0")
        k("s_cselect_b64 vcc, -1, 0")
        k("v_mov_b32 v9, s41")
        k("v_cndmask_b32 v8, v12, v11, vcc")
        k("v_add_u32 v8, s37, v8")
        k("v_cmp_gt_u32 vcc, s42, v0")
        k("v_mov_b32 v12, 0x80000000")
        k("s_nop 0")
        k("v_cndmask_b32 v8, v12, v8, vcc")
        PFT.start()
    k("s_cmp_ge_u32 s25, 10")
    k(f"s_cbranch_scc1 {k.ref('vpath')}")
    stg = 65536 if QST & 1 else None
    late = [] if QLATE >= 0 else None
    pre_qk(k, HH, TL, perm=True, stg=stg, late=late)
    mainloop(False, late or ())
    epi_qk(k, ACC, STATS, HH, TL, perm=True, stg=stg)
    k.stamp(4); k.stamp_flush(6, kidx, 5, 26)
    k("s_endpgm")
    k.lab("vpath")
    late = [] if QLATE >= 0 else None
    pre_v(k, HH, TL, perm=True, stg=stg, late=late)
    mainloop(True, late or ())
    epi_v(k, ACC, STATS, HH, TL, perm=True, stg=stg)
    k.stamp(4); k.stamp_flush(6, kidx, 5, 26)
    k("s_endpgm")
    return k


STG_GA = 208
STG_T = 16384
STG_VM = [0b001 << 18 | (1 << 18) - 1, 0b011 << 18 | ((1 << 18) - 1) & ~0b001, 0b100 << 21 | ((1 << 21) - 1) & ~0b011,
          0b101 << 18 | ((1 << 18) - 1) & ~0b100, ((1 << 21) - 1) & ~0b101]
STG_PM = {19: 0x32104, 25: 0x32410}
def stage_addr(k, kind, HH, TL, img, ct="s38"):
    GA = STG_GA
    if kind == "qk":
        k(f"s_mov_b32 s44, {STG_VM[0]:#x}")
        for c in range(1, 5):
            k(f"s_cmp_eq_u32 {ct}, {c}")
            k(f"s_cselect_b32 s44, {STG_VM[c]:#x}, s44")
    for i in range(10):
        g = GA + i
        k(f"v_add_u32 v18, {64*i}, v0")
        k("v_mul_u32_u24 v19, 205, v18")
        k("v_lshrrev_b32 v19, 14, v19")
        k("v_mul_u32_u24 v23, 80, v19")
        k("v_sub_u32 v18, v18, v23")
        k(f"v_mul_u32_u24 v{g}, s40, v19")
        k(f"v_lshl_add_u32 v{g}, v18, 4, v{g}")
        if kind == "qk":
            k("v_mul_u32_u24 v19, 3, v19")
            k("v_lshrrev_b32 v18, 5, v18")
            k("v_add_u32 v19, v19, v18")
            k("v_bfe_u32 v19, s44, v19, 1")
            k("v_cmp_ne_u32 vcc, 0, v19")
        else:
            k("v_mul_u32_u24 v23, 205, v18")
            k("v_lshrrev_b32 v23, 12, v23")
            k("v_mul_u32_u24 v23, 20, v23")
            k("v_sub_u32 v18, v18, v23")
            k("v_mul_u32_u24 v19, 20, v19")
            k("v_add_u32 v19, v19, v18")
            k("v_add_u32 v19, s43, v19")
            k("v_cmp_gt_u32 vcc, 128, v19")
        k("v_mov_b32 v23, 0x80000000")
        k("s_nop 0")
        k(f"v_cndmask_b32 v{g}, v23, v{g}, vcc")
    k("s_lshl_b32 s41, s26, 14")
    k(f"s_add_u32 s41, s41, {img}")
    k(f"v_lshlrev_b32 v{GA+10}, 4, v0")
    k(f"v_add_u32 v{GA+10}, s41, v{GA+10}")

def stage_out(k, kind, bar=True):
    GA = STG_GA
    k("s_waitcnt lgkmcnt(0)")
    if bar: k("s_barrier")
    for i in range(10):
        k(f"ds_read_b128 v[{64+4*i}:{64+4*i+3}], v{GA+10} offset:{i*1024}")
    for i in range(10):
        k(f"s_waitcnt lgkmcnt({9-i})")
        k(f"buffer_store_dwordx4 v[{64+4*i}:{64+4*i+3}], v{GA+i}, s[48:51], s54 offen")
    k("s_waitcnt vmcnt(0)")

def pre_qk(k, HH, TL, perm=False, stg=None, late=None):
    k.srd(48, 6, 0, WS_SIZE)
    k("s_cmp_lt_u32 s25, 5")
    k(f"s_mov_b32 s37, {WS_KV + QKD}")
    k(f"s_cselect_b32 s37, {WS_Q + QKD}, s37")
    k("s_cselect_b32 s38, 0, 5")
    k("s_movk_i32 s39, 2560")
    k("s_cselect_b32 s39, 1280, s39")
    if KVPAD:
        k(f"s_mov_b32 s40, {163840 + KVPAD}")
        k("s_cselect_b32 s40, 81920, s40")
    else:
        k("s_lshl_b32 s40, s39, 6")
    k("s_sub_u32 s38, s25, s38")
    if stg is not None:
        k("s_lshl_b32 s41, s38, 5")
        k("s_mul_i32 s42, s41, 205")
        k("s_lshr_b32 s42, s42, 10")
        k("s_mul_i32 s54, s42, s40")
        k("s_add_u32 s54, s54, s37")
        k("s_lshl_b32 s41, s24, 2")
        k("s_add_u32 s41, s41, s26")
        k("s_mul_i32 s41, s41, s39")
        k("s_add_u32 s54, s54, s41")
        k("s_mov_b32 s55, s42")
        k("s_mov_b32 s60, s38")
        def addrs():
            stage_addr(k, "qk", HH, TL, stg, ct="s60")
            k("s_lshl_b32 s52, s36, 15")
            k(f"s_add_u32 s52, s52, {stg}")
            if perm:
                k("s_lshl_b32 s41, s27, 14")
                k("s_add_u32 s52, s52, s41")
            k("s_lshl_b32 s38, s60, 5")
            k("s_lshl_b32 s42, s27, 4")
            k("s_add_u32 s38, s38, s42")
            k(f"v_add_u32 v21, s38, v{HH}")
            k(f"v_lshlrev_b32 v22, 3, v{TL}")
            k(f"s_mov_b32 s42, {STG_PM[19]:#x}")
            k(f"s_mov_b32 s43, {STG_PM[25]:#x}")
            for nb in range(2):
                for q in range(4):
                    d = 24 + nb * 4 + q
                    k(f"v_add_u32 v23, {nb*8+2*q}, v21")
                    k("v_mul_u32_u24 v18, 205, v23")
                    k("v_lshrrev_b32 v18, 10, v18")
                    k("v_mul_u32_u24 v19, 5, v18")
                    k("v_sub_u32 v23, v23, v19")
                    k("v_cmp_eq_u32 vcc, 19, v18")
                    k("v_mov_b32 v19, 0x43210")
                    k("v_mov_b32 v20, s42")
                    k("v_cndmask_b32 v19, v19, v20, vcc")
                    k("v_cmp_eq_u32 vcc, 25, v18")
                    k("v_mov_b32 v20, s43")
                    k("v_lshlrev_b32 v23, 2, v23")
                    k("v_cndmask_b32 v19, v19, v20, vcc")
                    k("v_bfe_u32 v23, v19, v23, 4")
                    k("v_subrev_u32 v18, s55, v18")
                    k("v_mul_u32_u24 v18, 1280, v18")
                    k("v_cmp_gt_u32 vcc, 4, v23")
                    k("v_lshrrev_b32 v19, 1, v23")
                    k("v_lshl_add_u32 v18, v19, 9, v18")
                    k("v_and_b32 v19, 1, v23")
                    k("v_lshl_add_u32 v18, v19, 3, v18")
                    k("v_cndmask_b32 v19, 0, v22, vcc")
                    k("v_add_u32 v18, v18, v22")
                    k("v_add_u32 v18, v18, v19")
                    k(f"v_add_u32 v{d}, s52, v18")
        if late is None: addrs()
        else: late.append(addrs)
        return
    k("s_lshl_b32 s41, s24, 2")
    k("s_lshl_b32 s42, s36, 1")
    k("s_add_u32 s41, s41, s42")
    k("s_mul_i32 s41, s41, s39")
    k("s_add_u32 s52, s37, s41")
    k("s_add_u32 s53, s52, s39")
    if perm:
        k("s_cmp_eq_u32 s27, 1")
        k("s_cselect_b32 s37, s53, s52")
        k("s_cselect_b32 s53, s52, s53")
        k("s_mov_b32 s52, s37")
    k("s_lshl_b32 s38, s38, 5")
    k("s_lshl_b32 s42, s27, 4")
    k("s_add_u32 s38, s38, s42")
    k(f"v_add_u32 v21, s38, v{HH}")
    k(f"v_lshlrev_b32 v22, 3, v{TL}")
    for nb in range(2):
        for q in range(4):
            d = 24 + nb * 4 + q
            k(f"v_add_u32 v23, {nb*8+2*q}, v21")
            k("v_mul_u32_u24 v18, 205, v23")
            k("v_lshrrev_b32 v18, 10, v18")
            k("v_mul_u32_u24 v19, 5, v18")
            k("v_sub_u32 v23, v23, v19")
            k("v_mul_lo_u32 v18, v18, s40")
            k("v_cmp_gt_u32 vcc, 4, v23")
            k("v_lshrrev_b32 v19, 1, v23")
            k("v_lshl_add_u32 v18, v19, 9, v18")
            k("v_and_b32 v19, 1, v23")
            k("v_lshl_add_u32 v18, v19, 3, v18")
            k("v_cndmask_b32 v19, 0, v22, vcc")
            k("v_add_u32 v18, v18, v22")
            k(f"v_add_u32 v{d}, v18, v19")
    if LINST and perm:
        k("s_lshl_b32 s52, s2, 15")
        k("s_lshl_b32 s53, s26, 13")
        k("s_add_u32 s52, s52, s53")
        k(f"s_add_u32 s52, s52, {WS_Q + QKD}")
        k("s_add_u32 s53, s52, 4096")
        for i in range(8):
            k(f"v_lshlrev_b32 v{24+i}, 3, v0")
            k(f"v_add_u32 v{24+i}, {i*512}, v{24+i}")


def epi_qk(k, ACC, STATS, HH, TL, perm=False, stg=None):
    NB, TB = 2, 2
    k(f"s_mul_i32 s37, s36, 256")
    k(f"v_lshlrev_b32 v20, 2, v{TL}")
    k(f"v_add_u32 v20, s37, v20")
    k(f"v_add_u32 v20, {STATS}, v20")
    if perm:
        k("s_lshl_b32 s37, s27, 7")
        k("v_xor_b32 v20, s37, v20")
        k("v_xor_b32 v19, 128, v20")
    for tb in range(TB):
        if perm:
            k(f"ds_read_b32 v{32+2*tb}, v{20-tb}")
            k(f"ds_read_b32 v{33+2*tb}, v{20-tb} offset:512")
        else:
            k(f"ds_read_b32 v{32+2*tb}, v20 offset:{tb*128}")
            k(f"ds_read_b32 v{33+2*tb}, v20 offset:{512+tb*128}")
    k(f"v_lshlrev_b32 v21, 4, v{HH}")
    k("s_lshl_b32 s37, s27, 8")
    k("v_add_u32 v21, s37, v21")
    k(f"v_add_u32 v21, {STATS+1024}, v21")
    CS = 128
    for nb in range(NB):
        for q in range(4):
            k(f"ds_read_b128 v[{CS+(nb*4+q)*4}:{CS+(nb*4+q)*4+3}], v21 offset:{nb*128+q*32}")
    k("s_waitcnt lgkmcnt(0)")
    k("s_nop 7")
    n = 0
    for nb in range(NB):
        for q in range(4):
            cs = CS + (nb * 4 + q) * 4
            for tb in range(TB):
                a = ACC + (nb * TB + tb) * 16 + q * 4
                rs, rm = 32 + 2 * tb, 33 + 2 * tb
                t = 36 + 4 * (n % 2)
                for h in range(2):
                    k(f"v_pk_mul_f32 v[{t+2*h}:{t+2*h+1}], v[{cs+2*h}:{cs+2*h+1}], v[{rs}:{rs+1}] op_sel:[0,1] op_sel_hi:[1,1]")
                for h in range(2):
                    k(f"v_pk_fma_f32 v[{t+2*h}:{t+2*h+1}], v[{a+2*h}:{a+2*h+1}], v[{rs}:{rs+1}], v[{t+2*h}:{t+2*h+1}] op_sel_hi:[1,0,1] neg_lo:[0,0,1] neg_hi:[0,0,1]")
                o = 44 + 2 * (n % 4)
                k(f"v_cvt_pk_bf16_f32 v{o}, v{t}, v{t+1}")
                k(f"v_cvt_pk_bf16_f32 v{o+1}, v{t+2}, v{t+3}")
                if stg is not None:
                    if tb == 1: k(f"v_xor_b32 v{24+nb*4+q}, {STG_T}, v{24+nb*4+q}")
                    k(f"ds_write_b64 v{24+nb*4+q}, v[{o}:{o+1}]")
                else:
                    k(f"buffer_store_dwordx2 v[{o}:{o+1}], v{24+nb*4+q}, s[48:51], s{52+tb} offen")
                n += 1
    if stg is not None: stage_out(k, "qk")
    else: k("s_waitcnt vmcnt(0)")


def pre_v(k, HH, TL, perm=False, stg=None, late=None):
    k.srd(48, 6, 0, WS_SIZE)
    if stg is not None:
        k("s_sub_u32 s37, s25, 10")
        k("s_lshl_b32 s37, s37, 7")
        k("s_mul_i32 s55, s37, 205")
        k("s_lshr_b32 s55, s55, 12")
        k("s_mul_i32 s43, s55, 20")
        k("s_sub_u32 s43, s43, s37")
        k(f"s_mov_b32 s40, {163840 + KVPAD}")
        k("s_mul_i32 s54, s55, s40")
        k("s_lshl_b32 s41, s24, 2")
        k("s_add_u32 s41, s41, s26")
        k("s_mul_i32 s41, s41, 2560")
        k("s_add_u32 s54, s54, s41")
        k(f"s_add_u32 s54, s54, {WS_KV + QKD + 1280}")
        if late is None: stage_addr(k, "v", HH, TL, stg)
        else: late.append(lambda: stage_addr(k, "v", HH, TL, stg))
        k("s_lshl_b32 s52, s36, 15")
        k(f"s_add_u32 s52, s52, {stg}")
        if perm:
            k("s_lshl_b32 s41, s27, 14")
            k("s_add_u32 s52, s52, s41")
        k("s_lshl_b32 s38, s27, 6")
        k("s_add_u32 s37, s37, s38")
        for nb in range(2):
            k(f"v_add_u32 v20, s37, v{TL}")
            if nb: k("v_add_u32 v20, 32, v20")
            k("v_mul_u32_u24 v21, 205, v20")
            k("v_lshrrev_b32 v21, 12, v21")
            k("v_mul_u32_u24 v22, 20, v21")
            k("v_sub_u32 v22, v20, v22")
            k("v_subrev_u32 v21, s55, v21")
            k("v_mul_u32_u24 v21, 1280, v21")
            k("v_lshl_add_u32 v21, v22, 4, v21")
            k(f"v_mul_u32_u24 v22, 320, v{HH}")
            k("v_add_u32 v21, v21, v22")
            k(f"v_add_u32 v{24+nb}, s52, v21")
        return
    k("s_sub_u32 s37, s25, 10")
    k("s_lshl_b32 s37, s37, 7")
    k("s_lshl_b32 s38, s27, 6")
    k("s_add_u32 s37, s37, s38")
    for nb in range(2):
        k(f"v_add_u32 v20, s37, v{TL}")
        if nb: k("v_add_u32 v20, 32, v20")
        k("v_mul_u32_u24 v21, 205, v20")
        k("v_lshrrev_b32 v21, 12, v21")
        k("v_mul_u32_u24 v22, 20, v21")
        k("v_sub_u32 v22, v20, v22")
        k(f"s_mov_b32 s38, {163840 + KVPAD}")
        k("v_mul_lo_u32 v21, v21, s38")
        k("v_lshl_add_u32 v21, v22, 4, v21")
        k(f"v_mul_u32_u24 v22, 320, v{HH}")
        k(f"v_add_u32 v{24+nb}, v21, v22")
    k("s_lshl_b32 s41, s24, 2")
    k("s_lshl_b32 s42, s36, 1")
    k("s_add_u32 s41, s41, s42")
    k("s_mul_i32 s41, s41, 2560")
    k(f"s_add_u32 s52, s41, {WS_KV + QKD + 1280}")
    if perm:
        k("s_add_u32 s53, s52, 2560")
        k("s_cmp_eq_u32 s27, 1")
        k("s_cselect_b32 s37, s53, s52")
        k("s_cselect_b32 s53, s52, s53")
        k("s_mov_b32 s52, s37")
    if LINST and perm:
        k("s_lshl_b32 s52, s2, 15")
        k("s_lshl_b32 s53, s26, 13")
        k("s_add_u32 s52, s52, s53")
        k(f"s_add_u32 s52, s52, {WS_Q + QKD}")
        k("s_add_u32 s53, s52, 4096")
        for i in range(2):
            k(f"v_lshlrev_b32 v{24+i}, 4, v0")
            k(f"v_add_u32 v{24+i}, {i*2048}, v{24+i}")


def epi_v(k, ACC, STATS, HH, TL, perm=False, stg=None):
    NB, TB = 2, 2
    k("s_lshl_b32 s37, s36, 8")
    k(f"v_lshlrev_b32 v20, 4, v{HH}")
    k("v_add_u32 v20, s37, v20")
    k(f"v_add_u32 v20, {STATS}, v20")
    RS, RM = 128, 160
    if perm:
        k("s_lshl_b32 s37, s27, 7")
        k("v_xor_b32 v20, s37, v20")
        k("v_xor_b32 v19, 128, v20")
    def sa(tb, off): return f"v{20-tb} offset:{off}" if perm else f"v20 offset:{off+tb*128}"
    for tb in range(TB):
        for q in range(4):
            k(f"ds_read_b128 v[{RS+(tb*4+q)*4}:{RS+(tb*4+q)*4+3}], {sa(tb, q*32)}")
    k(f"v_lshlrev_b32 v21, 2, v{TL}")
    k("s_lshl_b32 s37, s27, 8")
    k("v_add_u32 v21, s37, v21")
    k(f"v_add_u32 v21, {STATS+1024}, v21")
    k("s_waitcnt lgkmcnt(4)")
    for tb in range(TB):
        for q in range(4):
            k(f"ds_read_b128 v[{RM+(tb*4+q)*4}:{RM+(tb*4+q)*4+3}], {sa(tb, 512+q*32)}")
    k("ds_read_b32 v32, v21")
    k("ds_read_b32 v34, v21 offset:128")
    k("s_waitcnt lgkmcnt(0)")
    k("s_nop 7")
    n = 0
    for nb in range(NB):
        cs = 32 + 2 * nb
        for tb in range(TB):
            for qp in range(2):
                o = 44 + 4 * (n % 2)
                for qq in range(2):
                    q = qp * 2 + qq
                    a = ACC + (nb * TB + tb) * 16 + q * 4
                    t = 36 + 4 * qq
                    rs, rm = RS + (tb * 4 + q) * 4, RM + (tb * 4 + q) * 4
                    for h in range(2):
                        k(f"v_pk_mul_f32 v[{t+2*h}:{t+2*h+1}], v[{rm+2*h}:{rm+2*h+1}], v[{cs}:{cs+1}] op_sel_hi:[1,0]")
                    for h in range(2):
                        k(f"v_pk_fma_f32 v[{t+2*h}:{t+2*h+1}], v[{a+2*h}:{a+2*h+1}], v[{rs+2*h}:{rs+2*h+1}], v[{t+2*h}:{t+2*h+1}] neg_lo:[0,0,1] neg_hi:[0,0,1]")
                    k(f"v_cvt_pk_bf16_f32 v{o+2*qq}, v{t}, v{t+1}")
                    k(f"v_cvt_pk_bf16_f32 v{o+2*qq+1}, v{t+2}, v{t+3}")
                k("s_nop 1")
                k(f"v_permlane32_swap_b32 v{o}, v{o+2}")
                k(f"v_permlane32_swap_b32 v{o+1}, v{o+3}")
                k("s_nop 1")
                if stg is not None:
                    if qp == 0 and (tb == 1 or False): k(f"v_xor_b32 v{24+nb}, {STG_T}, v{24+nb}")
                    k(f"ds_write_b128 v{24+nb}, v[{o}:{o+3}] offset:{qp*640}")
                elif perm:
                    k(f"buffer_store_dwordx4 v[{o}:{o+3}], v{24+nb}, s[48:51], s{52+tb} offen offset:{qp*(1024 if LINST else 640)}")
                else:
                    k(f"buffer_store_dwordx4 v[{o}:{o+3}], v{24+nb}, s[48:51], s52 offen offset:{tb*2560+qp*640}")
                n += 1
    if stg is not None: stage_out(k, "v")
    else: k("s_waitcnt vmcnt(0)")


GK1 = -2.0 * 0.7978845608028654 * 1.4426950408889634
GK2 = GK1 * 0.044715

def epi_w1(k, ACC, STATS, HH, TL, NS_=""):
    NB = 3
    k.srd(48, 6, 0, WS_SIZE)
    k("s_lshl_b32 s37, s36, 7")
    k(f"v_lshlrev_b32 v20, 2, v{TL}")
    k("v_add_u32 v20, s37, v20")
    k(f"v_add_u32 v20, {STATS}, v20")
    k("ds_read_b32 v32, v20")
    k("ds_read_b32 v33, v20 offset:512")
    k(f"v_lshlrev_b32 v21, 4, v{HH}")
    k(f"v_add_u32 v21, {STATS+1024}, v21")
    CS, BI = 128, 176
    for nb in range(NB):
        for q in range(4):
            k(f"ds_read_b128 v[{CS+(nb*4+q)*4}:{CS+(nb*4+q)*4+3}], v21 offset:{nb*128+q*32}")
    k("s_waitcnt lgkmcnt(6)")
    for nb in range(NB):
        for q in range(4):
            k(f"ds_read_b128 v[{BI+(nb*4+q)*4}:{BI+(nb*4+q)*4+3}], v21 offset:{512+nb*128+q*32}")
    k("s_lshl_b32 s39, s24, 2")
    k("s_add_u32 s39, s39, s36")
    k("s_mul_i32 s39, s39, 98304")
    k("s_mul_i32 s40, s25, 6144")
    k("s_add_u32 s39, s39, s40")
    k(f"s_add_u32 s52, s39, {WS_H}")
    k("s_add_u32 s53, s52, 2048")
    k("s_add_u32 s54, s52, 4096")
    k("v_lshlrev_b32 v22, 4, v0")
    k(f"v_mov_b32 v34, {f2u(GK1):#x}")
    k(f"v_mov_b32 v35, {f2u(GK2):#x}")
    k("s_waitcnt lgkmcnt(0)")
    k("s_nop 7")
    n = 0
    for nb in range(NB):
        for qp in range(2):
            o = 56 + 4 * (n % 2)
            for qq in range(2):
                q = qp * 2 + qq
                a = ACC + nb * 16 + q * 4
                cs = CS + (nb * 4 + q) * 4
                b = BI + (nb * 4 + q) * 4
                u, t = 36, 40
                for h in range(2):
                    k(f"v_pk_fma_f32 v[{u+2*h}:{u+2*h+1}], v[{cs+2*h}:{cs+2*h+1}], v[32:33], v[{b+2*h}:{b+2*h+1}] op_sel:[0,1,0] op_sel_hi:[1,1,1] neg_lo:[1,0,0] neg_hi:[1,0,0]")
                for h in range(2):
                    k(f"v_pk_fma_f32 v[{u+2*h}:{u+2*h+1}], v[{a+2*h}:{a+2*h+1}], v[32:33], v[{u+2*h}:{u+2*h+1}] op_sel_hi:[1,0,1]")
                for h in range(2):
                    k(f"v_pk_mul_f32 v[{t+2*h}:{t+2*h+1}], v[{u+2*h}:{u+2*h+1}], v[{u+2*h}:{u+2*h+1}]")
                for h in range(2):
                    k(f"v_pk_fma_f32 v[{t+2*h}:{t+2*h+1}], v[{t+2*h}:{t+2*h+1}], v[34:35], v[34:35] op_sel:[0,1,0] op_sel_hi:[1,1,0]")
                for h in range(2):
                    k(f"v_pk_mul_f32 v[{t+2*h}:{t+2*h+1}], v[{t+2*h}:{t+2*h+1}], v[{u+2*h}:{u+2*h+1}]")
                for i in range(4):
                    k(f"v_exp_f32 v{t+i}, v{t+i}")
                k("s_nop 0")
                for h in range(2):
                    k(f"v_pk_add_f32 v[{t+2*h}:{t+2*h+1}], v[{t+2*h}:{t+2*h+1}], 1.0 op_sel_hi:[1,0]")
                for i in range(4):
                    k(f"v_rcp_f32 v{t+i}, v{t+i}")
                k("s_nop 0")
                for h in range(2):
                    k(f"v_pk_mul_f32 v[{u+2*h}:{u+2*h+1}], v[{u+2*h}:{u+2*h+1}], v[{t+2*h}:{t+2*h+1}]")
                k(f"v_cvt_pk_bf16_f32 v{o+2*qq}, v{u}, v{u+1}")
                k(f"v_cvt_pk_bf16_f32 v{o+2*qq+1}, v{u+2}, v{u+3}")
            k("s_nop 1")
            k(f"v_permlane32_swap_b32 v{o}, v{o+2}")
            k(f"v_permlane32_swap_b32 v{o+1}, v{o+3}")
            k("s_nop 1")
            k(f"buffer_store_dwordx4 v[{o}:{o+3}], v22, s[48:51], s{52+nb} offen offset:{qp*1024}{NS_}")
            n += 1
    k("s_waitcnt vmcnt(0)")


def gen_gemmB(name, kind, layer, kidx=0, dbg=(), first=2, rawres=False, pfd=0, fz=None):
    NWG = 256
    if kind == "wo":
        K, WS_W, XSRC = 640, WS_WO, WS_O
        RES = WS_X0 if layer == 0 else WS_X2
        DST, ST = WS_X1, WS_ST1
    else:
        K, WS_W, XSRC = 1536, WS_W2, WS_H
        RES = WS_X1
        DST, ST = (WS_X2, WS_ST0) if layer == 0 else (None, None)
    NCH = K // 128
    XBLK = K * 64
    WB = 20480
    SLOT = WB + 16384
    NSLOT = 4
    LDS = NSLOT * SLOT
    lay = Lay(kind, fz, WB, SLOT, WB, 16384)
    rot = lay.rot
    HO = bool(fz and fz.wait is not None)
    XS = " sc1" if (HO and not fz.xplain) else ""
    NS_ = " ; nosc" if (fz and fz.xl and "x" not in XSC) else ""
    RSC = " sc1" if (fz and kind == "w2" and not fz.xplain) else ""
    if fz is None:
        k = Kern(name, NWG, 512, LDS, vgpr=128)
        k(f"s_cmp_ge_u32 s2, {NWG}")
        k(f"s_cbranch_scc1 {k.ref('end')}")
        k.stamp(0)
        k.karg(6, 80)
    else:
        k = fz.k
    if kind == "w2":
        k.karg(8, 56)
        if DST is None:
            k.karg(10, 64)
    if rawres:
        assert kind == "wo"
        k.karg(8, 0)
    if fz is None: wave_id(k, 26)
    k("s_and_b32 s20, s2, 7")
    k("s_lshr_b32 s21, s2, 3")
    if fz and fz.xl:
        k("s_and_b32 s22, s21, 3")
        k("s_lshl_b32 s23, s20, 2")
        k("s_add_u32 s24, s23, s22")
        k("s_lshr_b32 s25, s21, 2")
    else:
        k("s_lshr_b32 s22, s20, 1")
        k("s_lshl_b32 s22, s22, 3")
        k("s_and_b32 s23, s21, 7")
        k("s_add_u32 s24, s22, s23")
        k("s_and_b32 s22, s20, 1")
        k("s_lshl_b32 s22, s22, 2")
        k("s_lshr_b32 s23, s21, 3")
        k("s_add_u32 s25, s22, s23")
    k("s_cmp_lt_u32 s26, 4")
    k(f"s_cbranch_scc1 {k.ref('compute')}")
    k("s_sub_u32 s26, s26, 4")
    k("v_lshlrev_b32 v1, 4, v0")
    k(f"s_mul_i32 s40, s25, {K//8*1280}")
    k("s_mul_i32 s41, s26, 5120")
    k("s_add_u32 s40, s40, s41")
    k(f"s_add_u32 s40, s40, {WS_W}")
    k("s_mov_b32 s42, s41")
    k("s_lshl_b32 s43, s24, 1")
    k("s_lshr_b32 s47, s26, 1")
    k("s_add_u32 s43, s43, s47")
    k(f"s_mul_i32 s43, s43, {XBLK}")
    k("s_and_b32 s47, s26, 1")
    k("s_lshl_b32 s47, s47, 12")
    k("s_add_u32 s43, s43, s47")
    k(f"s_add_u32 s43, s43, {XSRC}")
    k("s_lshl_b32 s44, s26, 12")
    if not lay.on: k(f"s_add_u32 s44, s44, {WB}")
    k("s_waitcnt lgkmcnt(0)")
    k.srd(12, 6, 0, WS_SIZE)
    def dma(ch, parts="xw"):
        slot = (ch + rot) % NSLOT
        if "x" in parts:
            k(f"s_add_u32 m0, s44, {lay.X[slot] - (0 if lay.on else WB)}")
            k(f"s_add_u32 s45, s43, {(0 if 'fixx' in dbg else ch)*8192}")
            for i in range(4):
                k(f"buffer_load_dwordx4 v1, s[12:15], s45 offen offset:{i*1024}{XS} lds")
        if "w" in parts:
            k(f"s_add_u32 m0, s42, {lay.W[slot]}")
            k(f"s_add_u32 s45, s40, {(0 if 'fixw' in dbg else ch)*WB}")
            for i in range(4):
                k(f"buffer_load_dwordx4 v1, s[12:15], s45 offen offset:{i*1024} lds")
            k(f"s_add_u32 m0, s42, {lay.W[slot]+4096}")
            k(f"s_add_u32 s45, s40, {(0 if 'fixw' in dbg else ch)*WB+4096}")
            k(f"buffer_load_dwordx4 v1, s[12:15], s45 offen lds")
    k.stamp(1)
    def pre(): k.stamp(2)
    rst = {} if lay.on else None
    def pre_issue():
        for c_ in range(max(first, lay.ew)):
            dma(c_, "w")
        if kind == "wo":
            k("s_lshl_b32 s67, s24, 1")
            k("s_lshr_b32 s47, s26, 1")
            k("s_add_u32 s67, s67, s47")
            fz.poll(67, 32)
        else:
            k("s_lshr_b32 s67, s24, 1")
            fz.poll(67, 16)
        for c_ in range(first):
            dma(c_, "x")
        nl = 0
        if lay.on:
            nl, order, done = lay.issue_late(dma, 5); rst["order"] = order; rst["done"] = done
        return 4 * (first - 1) + nl
    if fz: fz.mode_publish()
    if fz and fz.xl and "H" in PT and kind == "wo":
        def tail():
            k("v_lshlrev_b32 v12, 7, v0")
            k("s_mul_i32 s46, s24, 196608")
            k("s_lshl_b32 s47, s25, 2")
            k("s_add_u32 s47, s47, s26")
            k("s_mul_i32 s47, s47, 6144")
            k("s_add_u32 s46, s46, s47")
            k(f"s_add_u32 s46, s46, {WS_H}")
            k("s_mov_b32 exec_hi, 0xffff")
            k("buffer_load_dword v13, v12, s[12:15], s46 offen")
            k("s_mov_b32 exec_hi, -1")
            return 1
        fz.tail = tail
    ring_loader(k, NCH, NSLOT, dma, 9, pre_b0=pre, first=first, pre_issue=(pre_issue if HO else None), fz=fz, st=rst)
    fin_loader(k, fz, kidx)

    k.lab("compute")
    ACC, FA0, FB0, RS, BI = 32, 64, 88, 104, 116
    AW, AX = 1, 3
    k("s_and_b32 s27, s26, 1")
    k("s_lshr_b32 s36, s26, 1")
    k("v_lshrrev_b32 v17, 4, v0")
    k("v_and_b32 v16, 15, v0")
    k("v_mul_u32_u24 v20, 1280, v17")
    k("v_lshl_add_u32 v20, v16, 4, v20")
    k("s_mul_i32 s37, s27, 768")
    if lay.wb[0]: k(f"s_add_u32 s37, s37, {lay.wb[0]}")
    k(f"v_add_u32 v{AW}, s37, v20")
    k(f"v_add_u32 v{AW+1}, {lay.wb[1] - lay.wb[0]}, v{AW}")
    k("v_lshlrev_b32 v20, 9, v17")
    k("v_lshl_add_u32 v20, v16, 4, v20")
    k("s_lshl_b32 s37, s36, 13")
    k(f"s_add_u32 s37, s37, {lay.xb[0]}")
    k(f"v_add_u32 v{AX}, s37, v20")
    k(f"v_add_u32 v{AX+1}, {lay.xb[1] - lay.xb[0]}, v{AX}")
    k("v_lshrrev_b32 v20, 1, v17")
    k("v_lshlrev_b32 v20, 9, v20")
    k("v_lshl_add_u32 v20, v16, 4, v20")
    k("v_and_b32 v21, 1, v17")
    k("v_lshl_add_u32 v20, v21, 3, v20")
    k("s_lshl_b32 s38, s24, 1")
    k("s_add_u32 s38, s38, s36")
    k("s_mul_i32 s39, s38, 40960")
    k("s_mul_i32 s40, s25, 5120")
    k("s_add_u32 s39, s39, s40")
    k("s_mul_i32 s40, s27, 3072")
    k("s_add_u32 s39, s39, s40")
    if rawres:
        k("v_mul_u32_u24 v20, 1280, v16")
        k("v_lshl_add_u32 v20, v17, 3, v20")
        k(f"v_add_u32 v21, {16*1280}, v20")
        k(f"s_mul_i32 s52, s38, {32*1280}")
        k("s_mul_i32 s40, s25, 160")
        k("s_add_u32 s52, s52, s40")
        k("s_mul_i32 s40, s27, 96")
        k("s_add_u32 s52, s52, s40")
    else:
        k(f"s_add_u32 s52, s39, {RES}")
    k("s_waitcnt lgkmcnt(0)")
    k.srd(48, 6, 0, WS_SIZE)
    if rawres:
        k.srd(56, 8, 0, X_BYTES)
    PFT = TilePF(k, pfd, first, NCH, 5, 6, 7, 48)
    if pfd:
        k("s_and_b32 s41, s25, 3")
        k("s_lshr_b32 s42, s41, 1")
        k("s_lshl_b32 s43, s24, 1")
        k("s_add_u32 s42, s42, s43")
        k(f"s_mul_i32 s42, s42, {XBLK}")
        k("s_and_b32 s41, s41, 1")
        k("s_lshl_b32 s41, s41, 12")
        k("s_add_u32 s42, s42, s41")
        k("s_lshl_b32 s41, s26, 10")
        k("s_add_u32 s42, s42, s41")
        k(f"s_add_u32 s42, s42, {XSRC + first*8192}")
        k("s_and_b32 s41, s24, 7")
        k("s_mul_i32 s41, s41, 2560")
        k("s_mul_i32 s43, s26, 640")
        k("s_add_u32 s41, s41, s43")
        k(f"s_mul_i32 s43, s25, {K//8*1280}")
        k("s_add_u32 s41, s41, s43")
        k(f"s_add_u32 s41, s41, {WS_W + first*WB - 8*128}")
        k("v_lshlrev_b32 v5, 7, v0")
        k("v_mov_b32 v8, s41")
        k("v_mov_b32 v9, s42")
        k("v_cmp_gt_u32 vcc, 8, v0")
        k(f"v_mov_b32 v6, {WB}")
        k("v_mov_b32 v10, 8192")
        k("v_cndmask_b32 v8, v8, v9, vcc")
        k("v_cndmask_b32 v6, v6, v10, vcc")
        k("v_add_u32 v5, v8, v5")
        k("v_cmp_gt_u32 vcc, 13, v0")
        k("v_mov_b32 v9, 0x80000000")
        k("s_nop 0")
        k("v_cndmask_b32 v5, v9, v5, vcc")
        PFT.start()

    def path(NB):
        nx0 = PFT.next
        for nb in range(NB):
            for tb in range(2):
                d = RS + (nb * 2 + tb) * 2
                if rawres:
                    k(f"buffer_load_dwordx2 v[{d}:{d+1}], v{20+tb}, s[56:59], s52 offen offset:{nb*32}")
                else:
                    k(f"buffer_load_dwordx2 v[{d}:{d+1}], v20, s[48:51], s52 offen offset:{nb*1024+tb*256}{RSC}")
        if kind == "w2":
            k.srd(56, 8, 0, 1280)
            k("s_mul_i32 s40, s25, 160")
            k("s_mul_i32 s41, s27, 96")
            k("s_add_u32 s40, s40, s41")
            k("v_lshlrev_b32 v21, 3, v17")
            for nb in range(NB):
                k(f"buffer_load_dwordx2 v[{BI+2*nb}:{BI+2*nb+1}], v21, s[56:59], s40 offen offset:{nb*32}")
        if fz and fz.xl and "x" in PT and DST is not None:
            k("v_lshlrev_b32 v127, 7, v0")
            k(f"s_add_u32 s40, s39, {DST}")
            k(f"s_mov_b64 exec, {(1 << (8*NB)) - 1:#x}")
            k("buffer_load_dword v126, v127, s[48:51], s40 offen")
            k("s_lshl_b32 s40, s25, 1")
            k("s_add_u32 s40, s40, s27")
            k("s_lshl_b32 s40, s40, 14")
            k("s_lshl_b32 s41, s38, 8")
            k("s_add_u32 s40, s40, s41")
            k(f"s_add_u32 s40, s40, {ST}")
            k("s_mov_b64 exec, 3")
            k("buffer_load_dword v125, v127, s[48:51], s40 offen")
            k("s_mov_b64 exec, -1")
        if fz and fz.xl and "G" in PT and kind == "wo":
            k("v_lshlrev_b32 v127, 7, v0")
            k("s_mul_i32 s40, s24, 196608")
            k("s_lshl_b32 s41, s25, 2")
            k("s_add_u32 s41, s41, s26")
            k("s_mul_i32 s41, s41, 6144")
            k("s_add_u32 s40, s40, s41")
            k(f"s_add_u32 s40, s40, {WS_H}")
            k("s_mov_b32 exec_hi, 0xffff")
            k("buffer_load_dword v124, v127, s[48:51], s40 offen")
            k("s_mov_b32 exec_hi, -1")
        if fz and "u" in PT and DST is None:
            k.srd(60, 10, 0, X_BYTES)
            k("v_and_b32 v127, 31, v0")
            k("v_mul_u32_u24 v127, 1280, v127")
            k("v_lshrrev_b32 v126, 5, v0")
            k(f"v_mul_u32_u24 v126, {NB*32 - 4}, v126")
            k("v_add_u32 v127, v127, v126")
            k("s_mul_i32 s40, s38, 40960")
            k("s_mul_i32 s41, s25, 160")
            k("s_add_u32 s40, s40, s41")
            k("s_mul_i32 s41, s27, 96")
            k("s_add_u32 s40, s40, s41")
            k("buffer_load_dword v126, v127, s[60:63], s40 offen")
        def reads(step):
            ch, ks = divmod(step, 4)
            slot = (ch + rot) % NSLOT
            (hw, ow), (hx, ox) = lay.wm[slot], lay.xm[slot]
            st = step & 1
            out = []
            for tb in range(2):
                d = FB0 + st * 8 + tb * 4
                out.append(f"ds_read_b128 v[{d}:{d+3}], v{AX+hx} offset:{ox + ks*2048 + tb*256}")
            for nb in range(NB):
                d = FA0 + st * 12 + nb * 4
                out.append(f"ds_read_b128 v[{d}:{d+3}], v{AW+hw} offset:{ow + ks*5120 + nb*256}")
            return out
        k.stamp(1)
        k("s_barrier")
        k.stamp(2)
        for r in reads(0):
            k(r)
        NS = NCH * 4
        for step in range(NS):
            st = step & 1
            k("s_waitcnt lgkmcnt(0)")
            if step % 4 == 3 and step + 1 < NS:
                k("s_barrier")
                PFT.at_barrier()
            rd = reads(step + 1) if step + 1 < NS else []
            mf = []
            for nb in range(NB):
                for tb in range(2):
                    d = ACC + (nb * 2 + tb) * 4
                    a = FA0 + st * 12 + nb * 4
                    b = FB0 + st * 8 + tb * 4
                    c = "0" if step == 0 else f"v[{d}:{d+3}]"
                    mf.append(f"v_mfma_f32_16x16x32_bf16 v[{d}:{d+3}], v[{a}:{a+3}], v[{b}:{b+3}], {c}")
            ri = 0
            for i, m in enumerate(mf):
                if "nomfma" not in dbg: k(m)
                for r in rd[ri:ri + 2]:
                    if "fakerd" in dbg: k("s_nop 0"); k("s_nop 0")
                    elif "nords" not in dbg: k(r)
                ri += 2
            assert ri >= len(rd)
        k.stamp(3)
        PFT.next = nx0
        if fz and fz.xl and fz.p == 0: fz.mode_issue(48, 250)
        k("s_waitcnt vmcnt(0)")
        want_stats = ST is not None
        if want_stats:
            for r in (8, 9, 10, 11):
                k(f"v_mov_b32 v{r}, 0")
        k("v_lshlrev_b32 v22, 4, v0")
        if DST is None:
            k.srd(60, 10, 0, X_BYTES)
            k("v_and_b32 v23, 31, v0")
            k("v_mul_u32_u24 v23, 1280, v23")
            k("v_lshrrev_b32 v24, 5, v0")
            k("v_lshl_add_u32 v23, v24, 4, v23")
            k("s_mul_i32 s40, s38, 40960")
            k("s_mul_i32 s41, s25, 160")
            k("s_add_u32 s40, s40, s41")
            k("s_mul_i32 s41, s27, 96")
            k("s_add_u32 s53, s40, s41")
        else:
            k(f"s_add_u32 s53, s39, {DST}")
        k("s_nop 4")
        for nb in range(NB):
            o = 24 + 4 * (nb % 2)
            for tb in range(2):
                a = ACC + (nb * 2 + tb) * 4
                d = RS + (nb * 2 + tb) * 2
                t = 12
                k(f"v_lshlrev_b32 v{t}, 16, v{d}")
                k(f"v_and_b32 v{t+1}, 0xffff0000, v{d}")
                k(f"v_lshlrev_b32 v{t+2}, 16, v{d+1}")
                k(f"v_and_b32 v{t+3}, 0xffff0000, v{d+1}")
                k(f"v_pk_add_f32 v[{a}:{a+1}], v[{a}:{a+1}], v[{t}:{t+1}]")
                k(f"v_pk_add_f32 v[{a+2}:{a+3}], v[{a+2}:{a+3}], v[{t+2}:{t+3}]")
                if kind == "w2":
                    b = BI + 2 * nb
                    k(f"v_lshlrev_b32 v{t+4}, 16, v{b}")
                    k(f"v_and_b32 v{t+5}, 0xffff0000, v{b}")
                    k(f"v_lshlrev_b32 v{t+6}, 16, v{b+1}")
                    k(f"v_and_b32 v{t+7}, 0xffff0000, v{b+1}")
                    k(f"v_pk_add_f32 v[{a}:{a+1}], v[{a}:{a+1}], v[{t+4}:{t+5}]")
                    k(f"v_pk_add_f32 v[{a+2}:{a+3}], v[{a+2}:{a+3}], v[{t+6}:{t+7}]")
                if want_stats:
                    for r in range(4):
                        k(f"v_add_f32 v{8+tb}, v{8+tb}, v{a+r}")
                        k(f"v_fmac_f32 v{10+tb}, v{a+r}, v{a+r}")
                k(f"v_cvt_pk_bf16_f32 v{o+2*tb}, v{a}, v{a+1}")
                k(f"v_cvt_pk_bf16_f32 v{o+2*tb+1}, v{a+2}, v{a+3}")
            k("s_nop 1")
            k(f"v_permlane16_swap_b32 v{o}, v{o+2}")
            k(f"v_permlane16_swap_b32 v{o+1}, v{o+3}")
            k("s_nop 1")
            if DST is None:
                k(f"buffer_store_dwordx4 v[{o}:{o+3}], v23, s[60:63], s53 offen offset:{nb*32}" + (" ; nosc" if OUTP else ""))
            else:
                k(f"buffer_store_dwordx4 v[{o}:{o+3}], v22, s[48:51], s53 offen offset:{nb*1024}{NS_}")
        if want_stats:
            k("v_permlane16_swap_b32 v8, v9")
            k("v_permlane16_swap_b32 v10, v11")
            k("s_nop 1")
            k("v_add_f32 v8, v8, v9")
            k("v_add_f32 v10, v10, v11")
            k("s_nop 1")
            k("v_permlane32_swap_b32 v8, v10")
            k("s_nop 1")
            k("v_add_f32 v8, v8, v10")
            k("v_and_b32 v12, 31, v0")
            k("v_lshlrev_b32 v12, 3, v12")
            k("v_lshrrev_b32 v13, 5, v0")
            k("v_lshl_add_u32 v12, v13, 2, v12")
            k("s_lshl_b32 s40, s25, 1")
            k("s_add_u32 s40, s40, s27")
            k("s_lshl_b32 s40, s40, 14")
            k("s_lshl_b32 s41, s38, 8")
            k("s_add_u32 s40, s40, s41")
            k(f"s_add_u32 s40, s40, {ST}")
            k(f"buffer_store_dword v8, v12, s[48:51], s40 offen{NS_}")
        k("s_waitcnt vmcnt(0)")
        fin_compute(k, fz, kidx)
    k("s_cmp_eq_u32 s27, 1")
    k(f"s_cbranch_scc1 {k.ref('p2')}")
    path(3)
    k.lab("p2")
    path(2)
    return k


ATT_PACK = "cvt"
def gen_attn(name, kidx=0, pack=None, force_slow=False):
    pack = pack or ATT_PACK
    NWG = 256
    LDS = 163840
    k = Kern(name, NWG, 512, LDS, vgpr=128)
    KA, KB, VA = 1, 2, 3
    Q16, Q4 = 8, 12
    K16 = [16, 20]; K4 = [24, 26]
    V = [32, 40]
    S = [48, 64]
    P = 80
    O = 96
    k(f"s_cmp_ge_u32 s2, {NWG}")
    k(f"s_cbranch_scc1 {k.ref('end')}")
    k.stamp(0)
    k.karg(6, 80)
    wave_id(k, 26)
    k("s_and_b32 s20, s2, 7")
    k("s_lshr_b32 s21, s2, 3")
    k("s_lshr_b32 s22, s21, 3")
    k("s_lshl_b32 s23, s20, 2")
    k("s_add_u32 s24, s23, s22")
    k("s_and_b32 s25, s21, 7")
    k("s_lshl_b32 s25, s25, 3")
    k("s_add_u32 s25, s25, s26")
    k("v_lshlrev_b32 v4, 4, v0")
    k("s_lshl_b32 s27, s24, 6")
    k("s_add_u32 s27, s27, s25")
    k("s_mul_i32 s27, s27, 1280")
    k(f"s_add_u32 s27, s27, {WS_Q}")
    k("s_mul_i32 s28, s24, 163840")
    k(f"s_add_u32 s28, s28, {WS_KV}")
    k("s_mul_i32 s29, s26, 3072")
    k("s_mul_i32 s30, s26, 17408")
    k("s_add_u32 s30, s30, 24576")
    k("v_and_b32 v5, 31, v0")
    k("v_lshlrev_b32 v6, 3, v5")
    k(f"v_mov_b32 v{Q4}, 0")
    k(f"v_mov_b32 v{Q4+1}, 0")
    k("s_waitcnt lgkmcnt(0)")
    k.srd(12, 6, 0, WS_SIZE)
    k(f"buffer_load_dwordx4 v[{Q16}:{Q16+3}], v4, s[12:15], s27 offen")
    k("s_mov_b64 exec, 0xffffffff")
    k(f"buffer_load_dwordx2 v[{Q4}:{Q4+1}], v6, s[12:15], s27 offen offset:1024")
    k("s_mov_b64 exec, -1")
    k("s_mov_b32 m0, s29")
    k("s_add_u32 s31, s28, s29")
    for i in range(3):
        k(f"buffer_load_dwordx4 v4, s[12:15], s31 offen offset:{i*1024} lds")
    for g in range(5):
        k(f"s_add_u32 m0, s30, {g*4096}")
        k(f"s_add_u32 s31, s28, s30")
        if g: k(f"s_add_u32 s31, s31, {g*4096}")
        for i in range(4 if g < 4 else 1):
            k(f"buffer_load_dwordx4 v4, s[12:15], s31 offen offset:{i*1024} lds")
    k.stamp(1)
    def lane_addrs():
        k("v_and_b32 v5, 31, v0")
        k("v_and_b32 v6, 0x13, v5")
        k("v_and_b32 v7, 4, v5")
        k("v_lshl_or_b32 v6, v7, 1, v6")
        k("v_and_b32 v7, 8, v5")
        k("v_lshrrev_b32 v7, 1, v7")
        k("v_or_b32 v6, v6, v7")
        k("v_lshrrev_b32 v7, 5, v0")
        k(f"v_lshlrev_b32 v{KA}, 9, v7")
        k(f"v_lshl_add_u32 v{KA}, v6, 4, v{KA}")
        k(f"v_lshlrev_b32 v{KB}, 3, v6")
        k(f"v_add_u32 v{KB}, 1024, v{KB}")
        k(f"v_mul_u32_u24 v{VA}, 320, v7")
        k(f"v_lshl_add_u32 v{VA}, v5, 4, v{VA}")
        k(f"v_add_u32 v{VA}, 1280, v{VA}")
    lane_addrs()
    k("v_cmp_eq_u32 vcc, 20, v5")
    k("v_mov_b32 v7, 0x3f803f80")
    k("s_mov_b32 s34, 0x000fffff")
    k("s_mov_b32 s35, 0x000fffff")
    k(f"v_cndmask_b32 v{V[0]}, 0, v7, vcc")
    for r in range(1, 16):
        k(f"v_mov_b32 v{V[0]+r}, v{V[0]}")
    for r in range(16):
        k(f"v_mov_b32 v{O+r}, 0")
    for r in range(4, 8):
        k(f"v_mov_b32 v{P+r}, 0")
    k("s_waitcnt vmcnt(17)")
    k("s_barrier")
    k.stamp(2)
    def rdK(buf, off):
        k(f"ds_read_b128 v[{K16[buf]}:{K16[buf]+3}], v{KA} offset:{off}")
        k(f"ds_read_b64 v[{K4[buf]}:{K4[buf]+1}], v{KB} offset:{off}")
    def rdV(buf, off):
        k("s_mov_b64 exec, s[34:35]")
        k(f"ds_read_b128 v[{V[buf]}:{V[buf]+3}], v{VA} offset:{off}")
        k(f"ds_read_b128 v[{V[buf]+4}:{V[buf]+7}], v{VA} offset:{off+640}")
        k("s_mov_b64 exec, -1")
    def M1(n): k(f"v_mfma_f32_32x32x16_bf16 v[{S[n]}:{S[n]+15}], v[{K16[n]}:{K16[n]+3}], v[{Q16}:{Q16+3}], 0")
    def M2(n): k(f"v_mfma_f32_32x32x8bf16_1k v[{S[n]}:{S[n]+15}], v[{K4[n]}:{K4[n]+1}], v[{Q4}:{Q4+1}], v[{S[n]}:{S[n]+15}]")
    def MPV(vb, f): k(f"v_mfma_f32_32x32x16_bf16 v[{O}:{O+15}], v[{V[vb]+4*f}:{V[vb]+4*f+3}], v[{P+4*f}:{P+4*f+3}], v[{O}:{O+15}]")
    def G(c, g):
        s = S[c] + 4 * g
        p = P + 2 * g
        if pack == "cvt":
            for i in range(4):
                k(f"v_exp_f32 v{s+i}, v{s+i}")
            k(f"v_cvt_pk_bf16_f32 v{p}, v{s}, v{s+1}")
            k(f"v_cvt_pk_bf16_f32 v{p+1}, v{s+2}, v{s+3}")
        else:
            k(f"v_exp_f32 v{p}, v{s+1}")
            k(f"v_exp_f32 v{s}, v{s}")
            k(f"v_exp_f32 v{p+1}, v{s+3}")
            k(f"v_exp_f32 v{s+2}, v{s+2}")
            k(f"v_mov_b32_sdwa v{p}, v{s} dst_sel:WORD_0 dst_unused:UNUSED_PRESERVE src0_sel:WORD_1")
            k(f"v_mov_b32_sdwa v{p+1}, v{s+2} dst_sel:WORD_0 dst_unused:UNUSED_PRESERVE src0_sel:WORD_1")
    rdK(0, 0)
    rdK(1, 2560)
    rdV(0, 0)
    k("s_waitcnt lgkmcnt(4)")
    M1(0)
    k("s_mov_b32 s36, 0")
    k("s_nop 7")
    k("s_nop 1")
    M2(0)
    k("s_nop 7")
    k("s_nop 3")
    k.lab("loop")
    k("s_cmp_eq_u32 s36, 1")
    k(f"s_cbranch_scc0 {k.ref('nosync')}")
    k("s_waitcnt vmcnt(0)")
    k("s_barrier")
    k.lab("nosync")
    k("s_cmp_eq_u32 s36, 7")
    k(f"s_mov_b32 s37, {(-7*20480) & 0xffffffff:#x}")
    k("s_cselect_b32 s37, s37, 20480")
    for t in range(8):
        c, n = t & 1, (t + 1) & 1
        k("s_waitcnt lgkmcnt(0)")
        M1(n)
        G(c, 0)
        MPV(n, 1)
        if t == 6:
            k(f"v_add_u32 v{KA}, s37, v{KA}")
            k(f"v_add_u32 v{KB}, s37, v{KB}")
        if t == 7:
            k(f"v_add_u32 v{VA}, s37, v{VA}")
        rdK(c, ((t + 2) % 8) * 2560)
        rdV(n, ((t + 1) % 8) * 2560)
        G(c, 1)
        M2(n)
        G(c, 2)
        MPV(c, 0)
        G(c, 3)
    k("s_add_u32 s36, s36, 1")
    k("s_cmp_lt_u32 s36, 8")
    k(f"s_cbranch_scc1 {k.ref('loop')}")
    k("s_nop 0")
    MPV(1, 1)
    k.stamp(3)
    k("s_waitcnt lgkmcnt(0)")
    k("s_nop 7")
    k("s_nop 3")
    k(f"v_mov_b32 v4, v{O+8}")
    k(f"v_mov_b32 v5, v{O+8}")
    k("v_mov_b32 v6, 0")
    k("s_nop 0")
    k("v_permlane32_swap_b32 v4, v5")
    for r in range(12):
        k(f"v_fma_f32 v6, v{O+r}, 0, v6")
    k(f"v_cmp_lt_f32 vcc, {f2u(2.0**-40):#x}, v5")
    k(f"v_cmp_gt_f32 s[38:39], {f2u(2.0**40):#x}, v5" if False else f"s_mov_b32 s40, {f2u(2.0**40):#x}")
    k("v_cmp_gt_f32 s[38:39], s40, v5")
    k("v_cmp_eq_f32 s[42:43], 0, v6")
    k("s_nop 3")
    k("s_and_b64 vcc, vcc, s[38:39]")
    k("s_and_b64 vcc, vcc, s[42:43]")
    if force_slow:
        k("s_mov_b64 vcc, 0")
    k("s_cmp_eq_u64 vcc, -1")
    k(f"s_cbranch_scc0 {k.ref('slow')}")
    k.lab("fin")
    k("v_rcp_f32 v5, v5")
    k("s_mul_i32 s40, s24, 5")
    k("v_lshrrev_b32 v7, 5, v0")
    k("v_add_u32 v7, s40, v7")
    k("v_lshrrev_b32 v6, 1, v7")
    k("v_lshlrev_b32 v6, 9, v6")
    k("v_and_b32 v7, 1, v7")
    k("v_lshl_add_u32 v6, v7, 3, v6")
    k("v_and_b32 v7, 31, v0")
    k("v_lshl_add_u32 v6, v7, 4, v6")
    k("s_mul_i32 s41, s25, 40960")
    k(f"s_add_u32 s41, s41, {WS_O}")
    for r in range(0, 12, 2):
        k(f"v_pk_mul_f32 v[{O+r}:{O+r+1}], v[{O+r}:{O+r+1}], v[4:5] op_sel:[0,1] op_sel_hi:[1,1]")
    k("s_nop 0")
    for j in range(6):
        k(f"v_cvt_pk_bf16_f32 v{16+j}, v{O+2*j}, v{O+2*j+1}")
    k("buffer_store_dwordx2 v[16:17], v6, s[12:15], s41 offen")
    k("buffer_store_dwordx2 v[18:19], v6, s[12:15], s41 offen offset:512")
    k("s_mov_b64 exec, 0xffffffff")
    k("buffer_store_dwordx2 v[20:21], v6, s[12:15], s41 offen offset:1024")
    k("s_waitcnt vmcnt(0)")
    k.stamp(4); k.stamp_flush(6, kidx, 5, 26)
    k.lab("end")
    k("s_endpgm")
    k.lab("slow")
    lane_addrs()
    MX = 88
    k(f"v_mov_b32 v{MX}, {f2u(-3.0e38):#x}")
    for r in range(16):
        k(f"v_mov_b32 v{O+r}, 0")
    k("s_mov_b32 s36, 0")
    k.lab("sl")
    rdK(0, 0)
    rdV(0, 0)
    k("s_waitcnt lgkmcnt(0)")
    M1(0)
    k("s_nop 7"); k("s_nop 1")
    M2(0)
    k("s_nop 7"); k("s_nop 3")
    s = S[0]
    k(f"v_max3_f32 v4, v{s}, v{s+1}, v{s+2}")
    for i in range(3, 15, 2):
        k(f"v_max3_f32 v4, v4, v{s+i}, v{s+i+1}")
    k(f"v_max_f32 v4, v4, v{s+15}")
    k("v_mov_b32 v5, v4")
    k("s_nop 1")
    k("v_permlane32_swap_b32 v4, v5")
    k("s_nop 1")
    k(f"v_max3_f32 v4, v4, v5, v{MX}")
    k(f"v_sub_f32 v5, v{MX}, v4")
    k("v_exp_f32 v5, v5")
    k(f"v_mov_b32 v{MX}, v4")
    for i in range(16):
        k(f"v_sub_f32 v{s+i}, v{s+i}, v4")
    for i in range(16):
        k(f"v_exp_f32 v{s+i}, v{s+i}")
    for r in range(12):
        k(f"v_mul_f32 v{O+r}, v{O+r}, v5")
    for j in range(8):
        k(f"v_cvt_pk_bf16_f32 v{P+j}, v{s+2*j}, v{s+2*j+1}")
    k(f"v_add_u32 v{KA}, 2560, v{KA}")
    k(f"v_add_u32 v{KB}, 2560, v{KB}")
    k(f"v_add_u32 v{VA}, 2560, v{VA}")
    k("s_nop 4")
    MPV(0, 0)
    MPV(0, 1)
    k("s_nop 7"); k("s_nop 3")
    k("s_add_u32 s36, s36, 1")
    k("s_cmp_lt_u32 s36, 64")
    k(f"s_cbranch_scc1 {k.ref('sl')}")
    k(f"v_mov_b32 v4, v{O+8}")
    k(f"v_mov_b32 v5, v{O+8}")
    k("s_nop 1")
    k("v_permlane32_swap_b32 v4, v5")
    k("s_nop 1")
    k(f"s_branch {k.ref('fin')}")
    return k


def l2_prefetch(k, items, half, idx, lw, tmp, vaddr, vdst, srd=12):
    k(f"v_lshlrev_b32 v{vaddr}, 7, v0")
    for n, (base, hb) in enumerate(items):
        per_wg = hb // 32
        per_w = per_wg // 4
        lines = (per_w + 127) // 128
        k(f"s_mul_i32 s{tmp}, s{half}, {hb}")
        k(f"s_mul_i32 s{tmp+1}, s{idx}, {per_wg}")
        k(f"s_add_u32 s{tmp}, s{tmp}, s{tmp+1}")
        k(f"s_mul_i32 s{tmp+1}, s{lw}, {per_w}")
        k(f"s_add_u32 s{tmp}, s{tmp}, s{tmp+1}")
        k(f"s_add_u32 s{tmp}, s{tmp}, {base}")
        done = 0
        while done < lines:
            n_ = min(64, lines - done)
            if n_ < 64:
                m = (1 << n_) - 1
                k(f"s_mov_b32 exec_lo, {m & 0xffffffff:#x}")
                k(f"s_mov_b32 exec_hi, {m >> 32:#x}")
            k(f"buffer_load_dword v{vdst}, v{vaddr}, s[{srd}:{srd+3}], s{tmp} offen")
            if n_ < 64:
                k("s_mov_b64 exec, -1")
            done += n_
            if done < lines:
                k(f"s_add_u32 s{tmp}, s{tmp}, {64*128}")
            vdst += 1

PFA = ""
RINGD = 0
def att_prefetch(k, spec, idx, lw, va, vd, srd=12):
    REG = {"o": (WS_WO, 8, 102400), "1": (WS_W1, 16, 122880), "2": (WS_W2, 8, 245760), "q": (WS_WQ, 16, 163840)}
    k(f"v_lshlrev_b32 v{va}, 7, v0")
    k(f"s_lshl_b32 s42, s{idx}, 2")
    k(f"s_add_u32 s42, s42, s{lw}")
    n = 0
    for it in spec.split(","):
        r, _, den = it.partition("/")
        base, nt, stride = REG[r]
        nb = stride // int(den or 1)
        wpt = 128 // nt
        per_w = nb // wpt
        assert per_w % 128 == 0 or den, (it, per_w)
        per_w = per_w // 128 * 128
        lines = per_w // 128
        sh = wpt.bit_length() - 1
        k(f"s_lshr_b32 s40, s42, {sh}")
        k(f"s_mul_i32 s40, s40, {stride}")
        k(f"s_and_b32 s41, s42, {wpt-1}")
        k(f"s_mul_i32 s41, s41, {per_w}")
        k("s_add_u32 s40, s40, s41")
        k(f"s_add_u32 s40, s40, {base}")
        done = 0
        while done < lines:
            n_ = min(64, lines - done)
            if n_ < 64:
                m = (1 << n_) - 1
                k(f"s_mov_b32 exec_lo, {m & 0xffffffff:#x}")
                k(f"s_mov_b32 exec_hi, {m >> 32:#x}")
            k(f"buffer_load_dword v{vd}, v{va}, s[{srd}:{srd+3}], s40 offen")
            if n_ < 64: k("s_mov_b64 exec, -1")
            done += n_; n += 1; vd += 1
            if done < lines: k(f"s_add_u32 s40, s40, {64*128}")
    return n

def repack_unit(k, lw, EV, OD, early=False, mid=None, lds=0):
    k(f"s_lshl_b32 s52, s2, 2")
    k(f"s_add_u32 s52, s52, s{lw}")
    k("s_cmp_ge_u32 s52, 880")
    k(f"s_cbranch_scc1 {k.ref('rp_skip' if (early or mid) else 'rp_done')}")
    k.karg(54, 8)
    k.karg(56, 16)
    k.karg(58, 32)
    k.karg(60, 48)
    def setup(lbl, lo, ncg, ptr, size, pitch, TN, K, dst, cs, csp):
        k.lab(lbl)
        k(f"s_sub_u32 s52, s52, {lo}")
        k.srd(64, ptr, 0, size)
        k(f"s_mov_b32 s53, {pitch}")
        k(f"s_mov_b32 s54, {(65536 + TN - 1)//TN}")
        k(f"s_mov_b32 s55, {TN}")
        k(f"s_mov_b32 s56, {K//8*TN*16}")
        k(f"s_mov_b32 s57, {dst}")
        k(f"s_mul_i32 s58, s52, {(65536 + ncg - 1)//ncg}")
        k("s_lshr_b32 s58, s58, 16")
        k(f"s_mul_i32 s59, s58, {ncg}")
        k("s_sub_u32 s59, s52, s59")
        k(f"s_mov_b32 s60, {cs if cs is not None else 0xffffffff:#x}")
        k(f"s_mov_b32 s61, {csp}")
        k(f"s_branch {k.ref('rp_go')}")
    k("s_waitcnt lgkmcnt(0)")
    k("s_cmp_ge_u32 s52, 640"); k(f"s_cbranch_scc1 {k.ref('rp_w2')}")
    k("s_cmp_ge_u32 s52, 540"); k(f"s_cbranch_scc1 {k.ref('rp_wo')}")
    k("s_cmp_ge_u32 s52, 300"); k(f"s_cbranch_scc1 {k.ref('rp_w1')}")
    setup("rp_wq", 0, 30, 54, 640 * 3840, 3840, 128, 640, WS_WQ, WS_CSQ, 1920 * 4)
    setup("rp_w1", 300, 24, 58, 640 * 3072, 3072, 96, 640, WS_W1, WS_CS1, 1536 * 4)
    setup("rp_wo", 540, 10, 56, 640 * 1280, 1280, 80, 640, WS_WO, None, 0)
    setup("rp_w2", 640, 10, 60, 1536 * 1280, 1280, 80, 1536, WS_W2, None, 0)
    k.lab("rp_go")
    if lds:
        VD = OD + 1
        k("v_lshrrev_b32 v4, 3, v0")
        k("v_and_b32 v5, 7, v0")
        k("v_bfe_u32 v6, v0, 4, 1")
        k("v_lshlrev_b32 v6, 2, v6")
        k("v_xor_b32 v5, v5, v6")
        k("v_mul_lo_u32 v4, v4, s53")
        k(f"v_lshl_add_u32 v{VD}, v5, 4, v4")
        k("s_lshl_b32 s62, s58, 6")
        k("s_mul_i32 s62, s62, s53")
        k("s_lshl_b32 s63, s59, 7")
        k("s_add_u32 s52, s62, s63")
        if mid:
            k(f"v_mul_lo_u32 v{OD+2}, v0, s53")
            k(f"buffer_load_dword v{OD+3}, v{OD+2}, s[64:67], s52 offen")
        k(f"s_mul_i32 s69, s{lw}, 8192")
        k(f"s_sub_u32 s69, {lds + 3*8192}, s69")
        k("v_bfe_u32 v6, v0, 2, 2")
        k("v_lshrrev_b32 v7, 4, v0")
        k("v_lshlrev_b32 v7, 1, v7")
        k("v_bfe_u32 v5, v0, 1, 1")
        k("v_add_u32 v7, v7, v5")
        k("v_lshrrev_b32 v5, 1, v6")
        k("v_lshlrev_b32 v5, 2, v5")
        k("v_xor_b32 v7, v7, v5")
        k("v_lshlrev_b32 v7, 4, v7")
        k("v_lshl_add_u32 v7, v6, 7, v7")
        k("v_and_b32 v5, 1, v0")
        k("v_lshl_add_u32 v7, v5, 3, v7")
        k(f"v_add_u32 v{OD}, s69, v7")
        def dmas():
            k("s_lshl_b32 s53, s53, 3")
            for i in range(8):
                k(f"s_add_u32 m0, s69, {i*1024}")
                k("s_add_u32 s52, s52, s53" if i else "s_nop 0")
                k(f"buffer_load_dwordx4 v{VD}, s[64:67], s52 offen lds")
        if not mid: dmas()
    else:
        k("v_lshlrev_b32 v4, 1, v0")
        k("s_lshl_b32 s62, s58, 6")
        k("s_mul_i32 s62, s62, s53")
        k("s_lshl_b32 s63, s59, 7")
        k("s_add_u32 s62, s62, s63")
        for r in range(64):
            d = (OD if r & 1 else EV) + (r >> 1)
            k(f"buffer_load_ushort v{d}, v4, s[64:67], s62 offen")
            if r < 63:
                k("s_add_u32 s62, s62, s53")
        if mid: mid()
    k("s_lshl_b32 s62, s59, 6")
    k("v_add_u32 v4, s62, v0")
    k("v_mul_lo_u32 v5, v4, s54")
    k("v_lshrrev_b32 v5, 16, v5")
    k("v_mul_lo_u32 v6, v5, s55")
    k("v_sub_u32 v6, v4, v6")
    k("v_mul_lo_u32 v5, v5, s56")
    k("v_lshl_add_u32 v5, v6, 4, v5")
    k("s_lshl_b32 s63, s55, 4")
    k("s_lshl_b32 s62, s58, 3")
    k("s_mul_i32 s62, s62, s63")
    k("s_add_u32 s62, s62, s57")
    k("v_mov_b32 v6, 0")
    k("v_mov_b32 v7, 0")
    if lds:
        if mid:
            mid(); dmas()
        for ku in range(8):
            k(f"s_waitcnt vmcnt({7 - ku})")
            k(f"ds_read_b64_tr_b16 v[{EV+4*ku}:{EV+4*ku+1}], v{OD} offset:{ku*1024}")
            k(f"ds_read_b64_tr_b16 v[{EV+4*ku+2}:{EV+4*ku+3}], v{OD} offset:{ku*1024+512}")
        for ku in range(8):
            k(f"s_waitcnt lgkmcnt({14 - 2*ku})")
            k(f"buffer_store_dwordx4 v[{EV+4*ku}:{EV+4*ku+3}], v5, s[12:15], s62 offen")
            if ku < 7:
                k("s_add_u32 s62, s62, s63")
    else:
      for ku in range(8):
        k(f"s_waitcnt vmcnt({min(63, 56 - 8*ku + ku)})")
        for j in range(4 * ku, 4 * ku + 4):
            k(f"v_lshl_or_b32 v{EV+j}, v{OD+j}, 16, v{EV+j}")
        k(f"buffer_store_dwordx4 v[{EV+4*ku}:{EV+4*ku+3}], v5, s[12:15], s62 offen")
        if ku < 7:
            k("s_add_u32 s62, s62, s63")
    k("s_cmp_eq_u32 s60, 0xffffffff")
    k(f"s_cbranch_scc1 {k.ref('rp_done')}")
    for j in range(32):
        k(f"v_dot2c_f32_bf16 v{6 + (j & 1)}, 0x3f803f80, v{EV+j}")
    k("s_mul_i32 s62, s58, s61")
    k("s_add_u32 s62, s62, s60")
    k("v_lshlrev_b32 v4, 2, v4")
    k("s_nop 3")
    k("v_add_f32 v6, v6, v7")
    k("s_nop 0")
    k("buffer_store_dword v6, v4, s[12:15], s62 offen")
    if mid:
        k(f"s_branch {k.ref('rp_done')}")
        k.lab("rp_skip")
        mid()
    if early:
        k(f"s_branch {k.ref('rp_done')}")
        k.lab("rp_skip")
        k("s_waitcnt vmcnt(0)")
    k.lab("rp_done")


PF_ATT = [(WS_WO, 409600), (WS_W1, 983040), (WS_W2, 983040)]

def gen_attn2(name, kidx=0, pack="cvt", force_slow=False, sched=0, dbg=(), pf=0):
    NWG = 256
    LDS = 163840
    k = Kern(name, NWG, 512, LDS, vgpr=160)
    KA, KB, VA = 1, 2, 3
    Q16 = [8, 28]; Q4 = [12, 14]
    K16 = [16, 20]; K4 = [24, 26]
    V = [32, 40]
    S = [48, 64]
    P = 80
    O = [96, 112]
    k(f"s_cmp_ge_u32 s2, {NWG}")
    k(f"s_cbranch_scc1 {k.ref('end')}")
    k.stamp(0)
    k.karg(6, 80)
    wave_id(k, 26)
    k("s_and_b32 s20, s2, 7")
    k("s_lshr_b32 s21, s2, 3")
    k("s_lshr_b32 s22, s21, 3")
    k("s_lshl_b32 s23, s20, 2")
    k("s_add_u32 s24, s23, s22")
    k("v_lshlrev_b32 v4, 4, v0")
    k("s_cmp_lt_u32 s26, 4")
    k(f"s_cbranch_scc1 {k.ref('compute')}")
    k("s_sub_u32 s26, s26, 4")
    k("s_mul_i32 s28, s24, 163840")
    k(f"s_add_u32 s28, s28, {WS_KV}")
    k("s_mul_i32 s29, s26, 6144")
    k("s_mul_i32 s30, s26, 34816")
    k("s_add_u32 s30, s30, 24576")
    k("s_waitcnt lgkmcnt(0)")
    k.srd(12, 6, 0, WS_SIZE)
    k("s_mov_b32 m0, s29")
    k("s_add_u32 s31, s28, s29")
    for i in range(4):
        k(f"buffer_load_dwordx4 v4, s[12:15], s31 offen offset:{i*1024} lds")
    k("s_add_u32 m0, s29, 4096")
    k("s_add_u32 s31, s31, 4096")
    for i in range(2):
        k(f"buffer_load_dwordx4 v4, s[12:15], s31 offen offset:{i*1024} lds")
    k("s_add_u32 s28, s28, s30")
    def stB(g):
        k(f"s_add_u32 m0, s30, {g*4096}")
        k(f"s_add_u32 s31, s28, {g*4096}")
        for i in range(4 if g < 8 else 2):
            k(f"buffer_load_dwordx4 v4, s[12:15], s31 offen offset:{i*1024} lds")
    stB(0); stB(1)
    k.stamp(1)
    k("s_waitcnt vmcnt(8)")
    k.stamp(2)
    k("s_barrier")
    for g in range(2, 9):
        stB(g)
    k.stamp(3)
    k("s_waitcnt vmcnt(0)")
    k.stamp(4)
    k("s_barrier")
    if pf:
        k("s_and_b32 s40, s20, 1")
        l2_prefetch(k, PF_ATT[:pf], 40, 21, 26, 42, 5, 8)
        k("s_waitcnt vmcnt(0)")
    k("s_add_u32 s26, s26, 4")
    k.stamp_flush(6, kidx, 5, 26)
    k.lab("end")
    k("s_endpgm")
    k.lab("compute")
    k("s_and_b32 s25, s21, 7")
    k("s_lshl_b32 s25, s25, 3")
    k("s_lshl_b32 s23, s26, 1")
    k("s_add_u32 s25, s25, s23")
    k("s_lshl_b32 s27, s24, 6")
    k("s_add_u32 s27, s27, s25")
    k("s_mul_i32 s27, s27, 1280")
    k(f"s_add_u32 s27, s27, {WS_Q}")
    k("s_add_u32 s28, s27, 1280")
    k("v_and_b32 v5, 31, v0")
    k("v_lshlrev_b32 v6, 3, v5")
    for x in range(2):
        k(f"v_mov_b32 v{Q4[x]}, 0")
        k(f"v_mov_b32 v{Q4[x]+1}, 0")
    k("s_waitcnt lgkmcnt(0)")
    k.srd(12, 6, 0, WS_SIZE)
    k(f"buffer_load_dwordx4 v[{Q16[0]}:{Q16[0]+3}], v4, s[12:15], s27 offen")
    k(f"buffer_load_dwordx4 v[{Q16[1]}:{Q16[1]+3}], v4, s[12:15], s28 offen")
    k("s_mov_b64 exec, 0xffffffff")
    k(f"buffer_load_dwordx2 v[{Q4[0]}:{Q4[0]+1}], v6, s[12:15], s27 offen offset:1024")
    k(f"buffer_load_dwordx2 v[{Q4[1]}:{Q4[1]+1}], v6, s[12:15], s28 offen offset:1024")
    k("s_mov_b64 exec, -1")
    def lane_addrs():
        k("v_and_b32 v5, 31, v0")
        k("v_and_b32 v6, 0x13, v5")
        k("v_and_b32 v7, 4, v5")
        k("v_lshl_or_b32 v6, v7, 1, v6")
        k("v_and_b32 v7, 8, v5")
        k("v_lshrrev_b32 v7, 1, v7")
        k("v_or_b32 v6, v6, v7")
        k("v_lshrrev_b32 v7, 5, v0")
        k(f"v_lshlrev_b32 v{KA}, 9, v7")
        k(f"v_lshl_add_u32 v{KA}, v6, 4, v{KA}")
        k(f"v_lshlrev_b32 v{KB}, 3, v6")
        k(f"v_add_u32 v{KB}, 1024, v{KB}")
        k(f"v_mul_u32_u24 v{VA}, 320, v7")
        k(f"v_lshl_add_u32 v{VA}, v5, 4, v{VA}")
        k(f"v_add_u32 v{VA}, 1280, v{VA}")
    lane_addrs()
    k("v_cmp_eq_u32 vcc, 20, v5")
    k("v_mov_b32 v7, 0x3f803f80")
    k("s_mov_b32 s34, 0x000fffff")
    k("s_mov_b32 s35, 0x000fffff")
    k(f"v_cndmask_b32 v{V[0]}, 0, v7, vcc")
    for r in range(1, 16):
        k(f"v_mov_b32 v{V[0]+r}, v{V[0]}")
    for r in range(32):
        k(f"v_mov_b32 v{O[0]+r}, 0")
    for r in range(4, 8):
        k(f"v_mov_b32 v{P+r}, 0")
    k.stamp(1)
    k("s_waitcnt vmcnt(0)")
    k("s_barrier")
    k.stamp(2)
    def rdK(buf, off):
        return [f"ds_read_b128 v[{K16[buf]}:{K16[buf]+3}], v{KA} offset:{off}",
                f"ds_read_b64 v[{K4[buf]}:{K4[buf]+1}], v{KB} offset:{off}"]
    def rdV(buf, off):
        return ["s_mov_b64 exec, s[34:35]",
                f"ds_read_b128 v[{V[buf]}:{V[buf]+3}], v{VA} offset:{off}",
                f"ds_read_b128 v[{V[buf]+4}:{V[buf]+7}], v{VA} offset:{off+640}",
                "s_mov_b64 exec, -1"]
    def M1(x, kb): return f"v_mfma_f32_32x32x16_bf16 v[{S[x]}:{S[x]+15}], v[{K16[kb]}:{K16[kb]+3}], v[{Q16[x]}:{Q16[x]+3}], 0"
    def M2(x, kb): return f"v_mfma_f32_32x32x8bf16_1k v[{S[x]}:{S[x]+15}], v[{K4[kb]}:{K4[kb]+1}], v[{Q4[x]}:{Q4[x]+1}], v[{S[x]}:{S[x]+15}]"
    def MPV(x, vb, f): return f"v_mfma_f32_32x32x16_bf16 v[{O[x]}:{O[x]+15}], v[{V[vb]+4*f}:{V[vb]+4*f+3}], v[{P+4*f}:{P+4*f+3}], v[{O[x]}:{O[x]+15}]"
    def G(x, g, fill=()):
        s = S[x] + 4 * g
        p = P + 2 * g
        fill = list(fill)
        if pack == "cvt":
            ex = [f"v_exp_f32 v{s+i}, v{s+i}" for i in range(4)]
            pk = [f"v_cvt_pk_bf16_f32 v{p}, v{s}, v{s+1}", f"v_cvt_pk_bf16_f32 v{p+1}, v{s+2}, v{s+3}"]
        else:
            ex = [f"v_exp_f32 v{p}, v{s+1}", f"v_exp_f32 v{s}, v{s}", f"v_exp_f32 v{p+1}, v{s+3}", f"v_exp_f32 v{s+2}, v{s+2}"]
            pk = [f"v_mov_b32_sdwa v{p}, v{s} dst_sel:WORD_0 dst_unused:UNUSED_PRESERVE src0_sel:WORD_1",
                  f"v_mov_b32_sdwa v{p+1}, v{s+2} dst_sel:WORD_0 dst_unused:UNUSED_PRESERVE src0_sel:WORD_1"]
        for i in range(4):
            k(ex[i])
            if i < len(fill) and fill[i]:
                for f in (fill[i] if isinstance(fill[i], list) else [fill[i]]):
                    k(f)
        for x_ in pk: k(x_)
    for r in rdK(0, 0) + rdK(1, 2560) + rdV(0, 0): k(r)
    k("s_waitcnt lgkmcnt(4)")
    k(M1(0, 0))
    k("s_mov_b32 s36, 0")
    k("s_nop 7")
    k("s_nop 1")
    k(M2(0, 0))
    k("s_nop 7")
    k("s_nop 3")
    k.lab("loop")
    k("s_cmp_eq_u32 s36, 1")
    k(f"s_cbranch_scc0 {k.ref('nosync')}")
    k("s_barrier")
    k.lab("nosync")
    k("s_cmp_eq_u32 s36, 7")
    k(f"s_mov_b32 s37, {(-7*20480) & 0xffffffff:#x}")
    k("s_cselect_b32 s37, s37, 20480")
    L0 = len(k.L)
    for t in range(8):
        c, n = t & 1, (t + 1) & 1
        k("s_waitcnt lgkmcnt(0)")
        k(M1(1, c))
        G(0, 0)
        k(MPV(1, n, 1))
        if t == 7:
            k(f"v_add_u32 v{VA}, s37, v{VA}")
        rv = rdV(n, ((t + 1) % 8) * 2560)
        G(0, 1, fill=[rv])
        k(M2(1, c))
        if t == 6:
            k(f"v_add_u32 v{KA}, s37, v{KA}")
            k(f"v_add_u32 v{KB}, s37, v{KB}")
        rk = rdK(c, ((t + 2) % 8) * 2560)
        G(0, 2, fill=[rk[0], rk[1]])
        k(MPV(0, c, 0))
        G(0, 3)
        k(M1(0, n))
        G(1, 0)
        k(MPV(0, c, 1))
        G(1, 1)
        k(M2(0, n))
        G(1, 2)
        k(MPV(1, c, 0))
        G(1, 3)
    if dbg:
        body = k.L[L0:]
        def drop(l):
            l = l.strip()
            if "nods" in dbg and (l.startswith("ds_") or "exec" in l or l.startswith("s_waitcnt")): return True
            if "nomfma" in dbg and l.startswith("v_mfma"): return True
            if "nocvt" in dbg and (l.startswith("v_cvt") or l.startswith("v_mov_b32_sdwa")): return True
            if "noexp" in dbg and l.startswith("v_exp"): return True
            if "nom2" in dbg and "32x32x8" in l: return True
            if "nopv" in dbg and l.startswith(f"v_mfma_f32_32x32x16_bf16 v[{O[0]}") : return True
            if "nopv" in dbg and l.startswith(f"v_mfma_f32_32x32x16_bf16 v[{O[1]}") : return True
            return False
        k.L = k.L[:L0] + [l for l in body if not drop(l)]
    k("s_add_u32 s36, s36, 1")
    k("s_cmp_lt_u32 s36, 8")
    k(f"s_cbranch_scc1 {k.ref('loop')}")
    k("s_nop 0")
    k(MPV(1, 1, 1))
    k.stamp(3)
    k("s_waitcnt lgkmcnt(0)")
    k("s_nop 7")
    k("s_nop 3")
    L = [5, 7]
    k("v_mov_b32 v16, 0")
    for x in range(2):
        k(f"v_mov_b32 v{L[x]-1}, v{O[x]+8}")
        k(f"v_mov_b32 v{L[x]}, v{O[x]+8}")
    k("s_nop 1")
    for x in range(2):
        k(f"v_permlane32_swap_b32 v{L[x]-1}, v{L[x]}")
    for x in range(2):
        for r in range(12):
            k(f"v_fma_f32 v16, v{O[x]+r}, 0, v16")
    k(f"s_mov_b32 s40, {f2u(2.0**40):#x}")
    k(f"s_mov_b32 s41, {f2u(2.0**-40):#x}")
    k("v_cmp_eq_f32 vcc, 0, v16")
    k("v_cmp_lt_f32 s[42:43], s41, v5")
    k("v_cmp_gt_f32 s[44:45], s40, v5")
    k("v_cmp_lt_f32 s[46:47], s41, v7")
    k("v_cmp_gt_f32 s[48:49], s40, v7")
    k("s_nop 3")
    k("s_and_b64 vcc, vcc, s[42:43]")
    k("s_and_b64 vcc, vcc, s[44:45]")
    k("s_and_b64 vcc, vcc, s[46:47]")
    k("s_and_b64 vcc, vcc, s[48:49]")
    if force_slow:
        k("s_mov_b64 vcc, 0")
    k("s_cmp_eq_u64 vcc, -1")
    k(f"s_cbranch_scc0 {k.ref('slow')}")
    k.lab("fin")
    k("v_rcp_f32 v5, v5")
    k("v_rcp_f32 v7, v7")
    k("s_mul_i32 s40, s24, 5")
    k("v_lshrrev_b32 v17, 5, v0")
    k("v_add_u32 v17, s40, v17")
    k("v_lshrrev_b32 v16, 1, v17")
    k("v_lshlrev_b32 v16, 9, v16")
    k("v_and_b32 v17, 1, v17")
    k("v_lshl_add_u32 v16, v17, 3, v16")
    k("v_and_b32 v17, 31, v0")
    k("v_lshl_add_u32 v16, v17, 4, v16")
    k("s_mul_i32 s41, s25, 40960")
    k(f"s_add_u32 s41, s41, {WS_O}")
    k("s_add_u32 s42, s41, 40960")
    for x in range(2):
        for r in range(0, 12, 2):
            k(f"v_pk_mul_f32 v[{O[x]+r}:{O[x]+r+1}], v[{O[x]+r}:{O[x]+r+1}], v[{L[x]-1}:{L[x]}] op_sel:[0,1] op_sel_hi:[1,1]")
    for x in range(2):
        for j in range(6):
            k(f"v_cvt_pk_bf16_f32 v{20+6*x+j}, v{O[x]+2*j}, v{O[x]+2*j+1}")
    for x in range(2):
        k(f"buffer_store_dwordx2 v[{20+6*x}:{21+6*x}], v16, s[12:15], s{41+x} offen")
        k(f"buffer_store_dwordx2 v[{22+6*x}:{23+6*x}], v16, s[12:15], s{41+x} offen offset:512")
    k("s_mov_b64 exec, 0xffffffff")
    for x in range(2):
        k(f"buffer_store_dwordx2 v[{24+6*x}:{25+6*x}], v16, s[12:15], s{41+x} offen offset:1024")
    k("s_waitcnt vmcnt(0)")
    k.stamp(4); k.stamp_flush(6, kidx, 5, 26)
    k("s_endpgm")
    k.lab("slow")
    MX = 88
    for x in range(2):
        lane_addrs()
        k(f"v_mov_b32 v{MX}, {f2u(-3.0e38):#x}")
        for r in range(16):
            k(f"v_mov_b32 v{O[x]+r}, 0")
        k("s_mov_b32 s36, 0")
        k.lab(f"sl{x}")
        for r in rdK(0, 0) + rdV(0, 0): k(r)
        k("s_waitcnt lgkmcnt(0)")
        k(M1(x, 0))
        k("s_nop 7"); k("s_nop 1")
        k(M2(x, 0))
        k("s_nop 7"); k("s_nop 3")
        s = S[x]
        k(f"v_max3_f32 v4, v{s}, v{s+1}, v{s+2}")
        for i in range(3, 15, 2):
            k(f"v_max3_f32 v4, v4, v{s+i}, v{s+i+1}")
        k(f"v_max_f32 v4, v4, v{s+15}")
        k("v_mov_b32 v5, v4")
        k("s_nop 1")
        k("v_permlane32_swap_b32 v4, v5")
        k("s_nop 1")
        k(f"v_max3_f32 v4, v4, v5, v{MX}")
        k(f"v_sub_f32 v5, v{MX}, v4")
        k("v_exp_f32 v5, v5")
        k(f"v_mov_b32 v{MX}, v4")
        for i in range(16):
            k(f"v_sub_f32 v{s+i}, v{s+i}, v4")
        for i in range(16):
            k(f"v_exp_f32 v{s+i}, v{s+i}")
        for r in range(12):
            k(f"v_mul_f32 v{O[x]+r}, v{O[x]+r}, v5")
        for j in range(8):
            k(f"v_cvt_pk_bf16_f32 v{P+j}, v{s+2*j}, v{s+2*j+1}")
        k(f"v_add_u32 v{KA}, 2560, v{KA}")
        k(f"v_add_u32 v{KB}, 2560, v{KB}")
        k(f"v_add_u32 v{VA}, 2560, v{VA}")
        k("s_nop 4")
        k(MPV(x, 0, 0))
        k(MPV(x, 0, 1))
        k("s_nop 7"); k("s_nop 3")
        k("s_add_u32 s36, s36, 1")
        k("s_cmp_lt_u32 s36, 64")
        k(f"s_cbranch_scc1 {k.ref(f'sl{x}')}")
    for x in range(2):
        k(f"v_mov_b32 v{L[x]-1}, v{O[x]+8}")
        k(f"v_mov_b32 v{L[x]}, v{O[x]+8}")
    k("s_nop 1")
    for x in range(2):
        k(f"v_permlane32_swap_b32 v{L[x]-1}, v{L[x]}")
    k("s_nop 1")
    k(f"s_branch {k.ref('fin')}")
    return k


def gen_attn3(name, kidx=0, force_slow=False, pf=0, h=8, um=8, uh=8, pm=3, phl=0, b2=8, dbg=(), repack=False, amap=0, stream=0, fz=None):
    NWG = 256
    LDS = 163840
    TM = 64 - h
    assert TM % um == 0 and h % uh == 0 and b2 % um == 0 and um % 2 == 0 and uh % 2 == 0
    SLOT = 2688
    assert 8 * SLOT <= b2 * 2560 + 3840
    k = Kern(name, NWG, 512, LDS, vgpr=160) if fz is None else fz.k
    NS_ = " ; nosc" if (fz and fz.xl and "o" not in XSC) else ""
    KA, KB, VA = 1, 2, 3
    Q16 = [8, 28]; Q4 = [12, 14]
    K16 = [16, 20]; K4 = [24, 26]
    V = [32, 40]
    S = [48, 64]
    P = 80
    O = [96, 112]
    if fz is None:
        k(f"s_cmp_ge_u32 s2, {NWG}")
        k(f"s_cbranch_scc1 {k.ref('end')}")
        k.stamp(0)
        k.karg(6, 80)
        wave_id(k, 26)
    k("s_and_b32 s20, s2, 7")
    k("s_lshr_b32 s21, s2, 3")
    if amap:
        k("s_mov_b32 s24, s21")
    else:
        k("s_lshr_b32 s22, s21, 3")
        k("s_lshl_b32 s23, s20, 2")
        k("s_add_u32 s24, s23, s22")
    k("v_lshlrev_b32 v4, 4, v0")
    k("s_and_b32 s33, s26, 3")
    k(f"s_mul_i32 s50, s24, {163840 + KVPAD}")
    k(f"s_add_u32 s50, s50, {WS_KV + QKD}")
    if amap:
        k("s_lshl_b32 s25, s20, 3")
    else:
        k("s_and_b32 s25, s21, 7")
        k("s_lshl_b32 s25, s25, 3")
    k("s_lshl_b32 s23, s33, 1")
    k("s_add_u32 s25, s25, s23")
    k("s_lshl_b32 s27, s24, 6")
    k("s_add_u32 s27, s27, s25")
    k("s_mul_i32 s27, s27, 1280")
    k(f"s_add_u32 s27, s27, {WS_Q + QKD}")
    k("s_add_u32 s28, s27, 1280")
    def q_loads():
        k("v_and_b32 v5, 31, v0")
        k("v_lshlrev_b32 v6, 3, v5")
        for x in range(2):
            k(f"v_mov_b32 v{Q4[x]}, 0")
            k(f"v_mov_b32 v{Q4[x]+1}, 0")
        k(f"buffer_load_dwordx4 v[{Q16[0]}:{Q16[0]+3}], v4, s[12:15], s27 offen")
        k(f"buffer_load_dwordx4 v[{Q16[1]}:{Q16[1]+3}], v4, s[12:15], s28 offen")
        k("s_mov_b64 exec, 0xffffffff")
        k(f"buffer_load_dwordx2 v[{Q4[0]}:{Q4[0]+1}], v6, s[12:15], s27 offen offset:1024")
        k(f"buffer_load_dwordx2 v[{Q4[1]}:{Q4[1]+1}], v6, s[12:15], s28 offen offset:1024")
        k("s_mov_b64 exec, -1")
    def lane_addrs():
        k("v_and_b32 v5, 31, v0")
        k("v_and_b32 v6, 0x13, v5")
        k("v_and_b32 v7, 4, v5")
        k("v_lshl_or_b32 v6, v7, 1, v6")
        k("v_and_b32 v7, 8, v5")
        k("v_lshrrev_b32 v7, 1, v7")
        k("v_or_b32 v6, v6, v7")
        k("v_lshrrev_b32 v7, 5, v0")
        k(f"v_lshlrev_b32 v{KA}, 9, v7")
        k(f"v_lshl_add_u32 v{KA}, v6, 4, v{KA}")
        k(f"v_lshlrev_b32 v{KB}, 3, v6")
        k(f"v_add_u32 v{KB}, 1024, v{KB}")
        k(f"v_mul_u32_u24 v{VA}, 320, v7")
        k(f"v_lshl_add_u32 v{VA}, v5, 4, v{VA}")
        k(f"v_add_u32 v{VA}, 1280, v{VA}")
    def init_regs():
        lane_addrs()
        k("v_cmp_eq_u32 vcc, 20, v5")
        k("v_mov_b32 v7, 0x3f803f80")
        k("s_mov_b32 s34, 0x000fffff")
        k("s_mov_b32 s35, 0x000fffff")
        k(f"v_cndmask_b32 v{V[0]}, 0, v7, vcc")
        for r in range(1, 16):
            k(f"v_mov_b32 v{V[0]+r}, v{V[0]}")
        for r in range(32):
            k(f"v_mov_b32 v{O[0]+r}, 0")
        for r in range(4, 8):
            k(f"v_mov_b32 v{P+r}, 0")
    def rdK(buf, off):
        return [f"ds_read_b128 v[{K16[buf]}:{K16[buf]+3}], v{KA} offset:{off}",
                f"ds_read_b64 v[{K4[buf]}:{K4[buf]+1}], v{KB} offset:{off}"]
    def rdV(buf, off):
        return ["s_mov_b64 exec, s[34:35]",
                f"ds_read_b128 v[{V[buf]}:{V[buf]+3}], v{VA} offset:{off}",
                f"ds_read_b128 v[{V[buf]+4}:{V[buf]+7}], v{VA} offset:{off+640}",
                "s_mov_b64 exec, -1"]
    def M1(x, kb): return f"v_mfma_f32_32x32x16_bf16 v[{S[x]}:{S[x]+15}], v[{K16[kb]}:{K16[kb]+3}], v[{Q16[x]}:{Q16[x]+3}], 0"
    def M2(x, kb): return f"v_mfma_f32_32x32x8bf16_1k v[{S[x]}:{S[x]+15}], v[{K4[kb]}:{K4[kb]+1}], v[{Q4[x]}:{Q4[x]+1}], v[{S[x]}:{S[x]+15}]"
    def MPV(x, vb, f): return f"v_mfma_f32_32x32x16_bf16 v[{O[x]}:{O[x]+15}], v[{V[vb]+4*f}:{V[vb]+4*f+3}], v[{P+4*f}:{P+4*f+3}], v[{O[x]}:{O[x]+15}]"
    def G(x, g, fill=()):
        s = S[x] + 4 * g
        p = P + 2 * g
        fill = list(fill)
        ex = [f"v_exp_f32 v{s+i}, v{s+i}" for i in range(4)]
        pk = [f"v_cvt_pk_bf16_f32 v{p}, v{s}, v{s+1}", f"v_cvt_pk_bf16_f32 v{p+1}, v{s+2}, v{s+3}"]
        for i in range(4):
            k(ex[i])
            if i < len(fill) and fill[i]:
                for f in (fill[i] if isinstance(fill[i], list) else [fill[i]]):
                    k(f)
        for x_ in pk: k(x_)
    def loop(tag, T, U, bar_after, hook=None):
        NIT = T // U
        assert hook is None or NIT == 1
        for r in rdK(0, 0) + rdK(1, 2560) + rdV(0, 0): k(r)
        k("s_waitcnt lgkmcnt(4)")
        k(M1(0, 0))
        k(f"s_mov_b32 s36, {NIT}")
        if isinstance(bar_after, list):
            assert all(b % U == 0 for b in bar_after)
            k(f"s_mov_b32 s38, {sum(1 << (NIT - b // U) for b in bar_after):#x}")
        k("s_nop 7")
        k("s_nop 1")
        k(M2(0, 0))
        k("s_nop 7")
        k("s_nop 3")
        k.lab(f"loop{tag}")
        if isinstance(bar_after, list):
            k("s_bitcmp1_b32 s38, s36")
            k(f"s_cbranch_scc0 {k.ref('nosync' + tag)}")
            k("s_barrier")
            k.lab("nosync" + tag)
        elif bar_after is not None:
            k(f"s_cmp_eq_u32 s36, {NIT - bar_after // U}")
            k(f"s_cbranch_scc0 {k.ref('nosync' + tag)}")
            k("s_barrier")
            k.lab("nosync" + tag)
        k("s_cmp_eq_u32 s36, 1")
        k(f"s_cselect_b32 s37, 0, {U*2560}")
        for t in range(U):
            c, n = t & 1, (t + 1) & 1
            k("s_waitcnt lgkmcnt(0)")
            if hook: hook(t)
            k(M1(1, c))
            G(0, 0)
            k(MPV(1, n, 1))
            if t == U - 1:
                k(f"v_add_u32 v{VA}, s37, v{VA}")
            rv = rdV(n, ((t + 1) % U) * 2560)
            G(0, 1, fill=[rv])
            k(M2(1, c))
            if t == U - 2:
                k(f"v_add_u32 v{KA}, s37, v{KA}")
                k(f"v_add_u32 v{KB}, s37, v{KB}")
            rk = rdK(c, ((t + 2) % U) * 2560)
            G(0, 2, fill=[rk[0], rk[1]])
            k(MPV(0, c, 0))
            G(0, 3)
            k(M1(0, n))
            G(1, 0)
            k(MPV(0, c, 1))
            G(1, 1)
            k(M2(0, n))
            G(1, 2)
            k(MPV(1, c, 0))
            G(1, 3)
        k("s_sub_u32 s36, s36, 1")
        k("s_cmp_lg_u32 s36, 0")
        k(f"s_cbranch_scc1 {k.ref('loop' + tag)}")
        k("s_nop 0")
        k(MPV(1, 1, 1))
    def finish(role):
        keep, give = role, 1 - role
        tg = "mh"[role]
        T_ = S[0]
        k.stamp(3)
        if fz: fz.mode_issue(12, 250)
        k(f"s_lshl_b32 s40, s33, 1")
        k(f"s_add_u32 s41, s40, {role}")
        k(f"s_add_u32 s40, s40, {1 - role}")
        k(f"s_mul_i32 s41, s41, {SLOT}")
        k(f"s_mul_i32 s40, s40, {SLOT}")
        k("v_lshlrev_b32 v4, 4, v0")
        k("v_and_b32 v5, 31, v0")
        k("v_lshlrev_b32 v5, 2, v5")
        k("v_add_u32 v16, s41, v4")
        k("v_add_u32 v17, s41, v5")
        k("v_add_u32 v18, s40, v4")
        k("v_add_u32 v19, s40, v5")
        for r in range(8, 12):
            k(f"v_mov_b32 v{T_+r}, 0")
        k("s_waitcnt lgkmcnt(0)")
        k("s_nop 7" if role == 0 else "s_nop 0")
        k(f"ds_write_b128 v16, v[{O[give]}:{O[give]+3}]")
        k(f"ds_write_b128 v16, v[{O[give]+4}:{O[give]+7}] offset:1024")
        k("s_mov_b64 exec, 0xffffffff")
        k(f"ds_write_b128 v16, v[{O[give]+8}:{O[give]+11}] offset:2048")
        k("s_not_b64 exec, exec")
        k(f"ds_write_b32 v17, v{O[give]+8} offset:2560")
        k("s_mov_b64 exec, -1")
        k("s_mul_i32 s42, s24, 5")
        k("v_lshrrev_b32 v21, 5, v0")
        k("v_add_u32 v21, s42, v21")
        k("v_lshrrev_b32 v20, 1, v21")
        k("v_lshlrev_b32 v20, 9, v20")
        k("v_and_b32 v21, 1, v21")
        k("v_lshl_add_u32 v20, v21, 3, v20")
        k("v_and_b32 v21, 31, v0")
        k("v_lshl_add_u32 v20, v21, 4, v20")
        k(f"s_add_u32 s51, s25, {keep}")
        k("s_mul_i32 s51, s51, 40960")
        k(f"s_add_u32 s51, s51, {WS_O}")
        k("s_waitcnt lgkmcnt(0)")
        k("s_barrier")
        k(f"ds_read_b128 v[{T_}:{T_+3}], v18")
        k(f"ds_read_b128 v[{T_+4}:{T_+7}], v18 offset:1024")
        k("s_mov_b64 exec, 0xffffffff")
        k(f"ds_read_b128 v[{T_+8}:{T_+11}], v18 offset:2048")
        k("s_not_b64 exec, exec")
        k(f"ds_read_b32 v{T_+8}, v19 offset:2560")
        k("s_mov_b64 exec, -1")
        Ox = O[keep]
        k("s_waitcnt lgkmcnt(2)")
        for r in range(8):
            k(f"v_add_f32 v{Ox+r}, v{Ox+r}, v{T_+r}")
        k("s_waitcnt lgkmcnt(0)")
        for r in range(8, 12):
            k(f"v_add_f32 v{Ox+r}, v{Ox+r}, v{T_+r}")
        k(f"v_mov_b32 v4, v{Ox+8}")
        k(f"v_mov_b32 v5, v{Ox+8}")
        k("v_mov_b32 v16, 0")
        k("s_nop 0")
        k("v_permlane32_swap_b32 v4, v5")
        for r in range(12):
            k(f"v_fma_f32 v16, v{Ox+r}, 0, v16")
        k(f"s_mov_b32 s40, {f2u(2.0**40):#x}")
        k(f"s_mov_b32 s41, {f2u(2.0**-40):#x}")
        k("v_cmp_eq_f32 vcc, 0, v16")
        k("v_cmp_lt_f32 s[42:43], s41, v5")
        k("v_cmp_gt_f32 s[44:45], s40, v5")
        k("s_nop 3")
        k("s_and_b64 vcc, vcc, s[42:43]")
        k("s_and_b64 vcc, vcc, s[44:45]")
        if force_slow:
            k("s_mov_b64 vcc, 0")
        k("s_cmp_eq_u64 vcc, -1")
        k(f"s_cbranch_scc0 {k.ref('slow' + tg)}")
        k.lab("fin" + tg)
        k("v_rcp_f32 v5, v5")
        k("s_nop 0")
        for r in range(0, 12, 2):
            k(f"v_pk_mul_f32 v[{Ox+r}:{Ox+r+1}], v[{Ox+r}:{Ox+r+1}], v[4:5] op_sel:[0,1] op_sel_hi:[1,1]")
        for j in range(6):
            k(f"v_cvt_pk_bf16_f32 v{22+j}, v{Ox+2*j}, v{Ox+2*j+1}")
        k("buffer_store_dwordx2 v[22:23], v20, s[12:15], s51 offen" + NS_)
        k("buffer_store_dwordx2 v[24:25], v20, s[12:15], s51 offen offset:512" + NS_)
        k("s_mov_b64 exec, 0xffffffff")
        k("buffer_store_dwordx2 v[26:27], v20, s[12:15], s51 offen offset:1024" + NS_)
        k("s_waitcnt vmcnt(0)")
        if fz:
            k("s_mov_b64 exec, -1")
            k.stamp(4)
            fz.attn_done(role)
        else:
            k.stamp(4); k.stamp_flush(6, kidx, 5, 26)
            k("s_endpgm")
        k.lab("slow" + tg)
        MX = 88
        x = keep
        lane_addrs()
        k(f"v_mov_b32 v{MX}, {f2u(-3.0e38):#x}")
        for r in range(16):
            k(f"v_mov_b32 v{O[x]+r}, 0")
        k("s_mov_b32 s36, 0")
        k.lab(f"sl{tg}")
        k(f"buffer_load_dwordx4 v[{K16[0]}:{K16[0]+3}], v{KA}, s[12:15], s50 offen")
        k(f"buffer_load_dwordx2 v[{K4[0]}:{K4[0]+1}], v{KB}, s[12:15], s50 offen")
        k("s_mov_b64 exec, s[34:35]")
        k(f"buffer_load_dwordx4 v[{V[0]}:{V[0]+3}], v{VA}, s[12:15], s50 offen")
        k(f"buffer_load_dwordx4 v[{V[0]+4}:{V[0]+7}], v{VA}, s[12:15], s50 offen offset:640")
        k("s_mov_b64 exec, -1")
        k("s_waitcnt vmcnt(0)")
        k(M1(x, 0))
        k("s_nop 7"); k("s_nop 1")
        k(M2(x, 0))
        k("s_nop 7"); k("s_nop 3")
        s = S[x]
        k(f"v_max3_f32 v4, v{s}, v{s+1}, v{s+2}")
        for i in range(3, 15, 2):
            k(f"v_max3_f32 v4, v4, v{s+i}, v{s+i+1}")
        k(f"v_max_f32 v4, v4, v{s+15}")
        k("v_mov_b32 v5, v4")
        k("s_nop 1")
        k("v_permlane32_swap_b32 v4, v5")
        k("s_nop 1")
        k(f"v_max3_f32 v4, v4, v5, v{MX}")
        k(f"v_sub_f32 v5, v{MX}, v4")
        k("v_exp_f32 v5, v5")
        k(f"v_mov_b32 v{MX}, v4")
        for i in range(16):
            k(f"v_sub_f32 v{s+i}, v{s+i}, v4")
        for i in range(16):
            k(f"v_exp_f32 v{s+i}, v{s+i}")
        for r in range(12):
            k(f"v_mul_f32 v{O[x]+r}, v{O[x]+r}, v5")
        for j in range(8):
            k(f"v_cvt_pk_bf16_f32 v{P+j}, v{s+2*j}, v{s+2*j+1}")
        k(f"v_add_u32 v{KA}, 2560, v{KA}")
        k(f"v_add_u32 v{KB}, 2560, v{KB}")
        k(f"v_add_u32 v{VA}, 2560, v{VA}")
        k("s_nop 4")
        k(MPV(x, 0, 0))
        k(MPV(x, 0, 1))
        k("s_nop 7"); k("s_nop 3")
        k("s_add_u32 s36, s36, 1")
        k("s_cmp_lt_u32 s36, 64")
        k(f"s_cbranch_scc1 {k.ref(f'sl{tg}')}")
        k(f"v_mov_b32 v4, v{O[x]+8}")
        k(f"v_mov_b32 v5, v{O[x]+8}")
        k("s_nop 1")
        k("v_permlane32_swap_b32 v4, v5")
        k("s_nop 1")
        k(f"s_branch {k.ref('fin' + tg)}")
    k("s_cmp_lt_u32 s26, 4")
    k(f"s_cbranch_scc1 {k.ref('compute')}")
    if stream:
        assert um == 4
        k("s_lshl_b32 s29, s33, 12")
        k("s_waitcnt lgkmcnt(0)")
        k.srd(12, 6, 0, WS_SIZE)
        k("s_add_u32 s32, s50, s29")
        krot = bool(fz and fz.p > 0 and KROT)
        if krot:
            k("s_mul_i32 s30, s20, 5")
            k("s_add_u32 s30, s30, s33")
        def grp(G_):
            k(f"s_add_u32 m0, s29, {G_*16384}")
            if krot:
                k(f"s_add_u32 s31, s30, {4*G_}")
                k("s_sub_u32 s52, s31, 40")
                k("s_cselect_b32 s31, s31, s52")
                k("s_lshl_b32 s31, s31, 12")
                k("s_add_u32 s31, s31, s50")
            else:
                k(f"s_add_u32 s31, s32, {G_*16384}")
            for i in range(4):
                k(f"buffer_load_dwordx4 v4, s[12:15], s31 offen offset:{i*1024} lds")
        if HPRI: k(f"s_setprio {HPRI}")
        if fz: fz.mode_publish(4)
        if fz and fz.p > 0:
            k("s_cmp_lg_u32 s33, 0")
            k(f"s_cbranch_scc1 {k.ref('nogp')}")
            if krot: fz.poll_group()
            else: fz.poll_all()
            k.lab("nogp")
            k.stamp(0)
            k("s_barrier")
        if krot:
            grp(0)
            k("s_waitcnt vmcnt(0)")
            k("s_barrier")
            fz.poll_all()
            k.stamp(1)
            grp(1); grp(2); grp(3)
        else:
            grp(0); grp(1)
            k.stamp(1)
            k("s_waitcnt vmcnt(4)")
            k("s_barrier")
            grp(2); grp(3)
        if HPRO == 1: init_regs()
        k("s_waitcnt vmcnt(8)")
        k("s_barrier")
        grp(4); grp(5)
        if HPRO == 2: init_regs()
        k("s_waitcnt vmcnt(8)")
        k("s_barrier")
        for G_ in range(6, 10): grp(G_)
        q_loads()
        if not HPRO: init_regs()
    else:
        k("s_mul_i32 s29, s33, 6144")
        k("s_mul_i32 s30, s33, 34816")
        k("s_add_u32 s30, s30, 24576")
        k("s_waitcnt lgkmcnt(0)")
        k.srd(12, 6, 0, WS_SIZE)
        k("s_mov_b32 m0, s29")
        k("s_add_u32 s31, s50, s29")
        for i in range(4):
            k(f"buffer_load_dwordx4 v4, s[12:15], s31 offen offset:{i*1024} lds")
        k("s_add_u32 m0, s29, 4096")
        k("s_add_u32 s31, s31, 4096")
        for i in range(2):
            k(f"buffer_load_dwordx4 v4, s[12:15], s31 offen offset:{i*1024} lds")
        k("s_add_u32 s32, s50, s30")
        def stB(g):
            k(f"s_add_u32 m0, s30, {g*4096}")
            k(f"s_add_u32 s31, s32, {g*4096}")
            for i in range(4 if g < 8 else 2):
                k(f"buffer_load_dwordx4 v4, s[12:15], s31 offen offset:{i*1024} lds")
        stB(0); stB(1)
        k.stamp(1)
        k("s_waitcnt vmcnt(8)")
        k("s_barrier")
        for g in range(2, 9):
            stB(g)
        q_loads()
        init_regs()
    k(f"v_add_u32 v{KA}, {TM*2560}, v{KA}")
    k(f"v_add_u32 v{KB}, {TM*2560}, v{KB}")
    k(f"v_add_u32 v{VA}, {TM*2560}, v{VA}")
    if repack and ERP == 1:
        repack_unit(k, 33, 48, 128, early=True)
        if fz: k("s_mov_b32 s64, s26")
    else:
        k("s_waitcnt vmcnt(0)")
    if HST == 2: k.stamp(0)
    if repack and RPRIO and ERP == 2: k(f"s_setprio {RPRIO}")
    if repack and RLDS:
        assert stream == 20 and 19712 + 4*8192 <= stream*2560 + 1280 and 7*SLOT <= 19712
    if repack and ERP == 2:
        def mid():
            k("s_barrier")
            k.stamp(2)
        repack_unit(k, 33, 48, 128, mid=mid, lds=(19712 if RLDS else 0))
        if fz: k("s_mov_b32 s64, s26")
    else:
        k("s_barrier")
        k.stamp(2)
    if repack and not ERP:
        if RPRIO: k(f"s_setprio {RPRIO}")
        if RLDS:
            assert stream == 20 and 19712 + 4*8192 <= stream*2560 + 1280 and 7*SLOT <= 19712
        repack_unit(k, 33, 48, 128, lds=(19712 if RLDS else 0))
        if fz: k("s_mov_b32 s64, s26")
    if pf:
        k("s_and_b32 s40, s20, 1")
        l2_prefetch(k, PF_ATT[:pf], 40, 21, 33, 42, 128, 129)
    if fz and fz.xl and "o" in PT:
        k("s_mul_i32 s40, s24, 5")
        k("s_lshr_b32 s40, s40, 1")
        k("s_lshl_b32 s40, s40, 9")
        k("s_mul_i32 s41, s25, 40960")
        k("s_add_u32 s40, s40, s41")
        k(f"s_add_u32 s40, s40, {WS_O}")
        k("v_lshlrev_b32 v90, 7, v0")
        k(f"v_add_u32 v91, {40960 - 12*128}, v90")
        k("v_cmp_gt_u32 vcc, 12, v0")
        k("s_nop 1")
        k("v_cndmask_b32 v90, v91, v90, vcc")
        k("s_mov_b64 exec, 0xffffff")
        k("buffer_load_dword v91, v90, s[12:15], s40 offen")
        k("s_mov_b64 exec, -1")
    if fz and fz.xl and "y" in PT:
        k("s_lshr_b32 s41, s25, 1")
        k("s_mul_i32 s40, s41, 81920")
        k("s_mul_i32 s42, s24, 2560")
        k("s_add_u32 s40, s40, s42")
        k(f"s_add_u32 s40, s40, {WS_X1}")
        k("v_lshlrev_b32 v92, 7, v0")
        k("s_mov_b64 exec, 0xfffff")
        k("buffer_load_dword v93, v92, s[12:15], s40 offen")
        k("s_lshr_b32 s40, s24, 1")
        k("s_lshl_b32 s40, s40, 14")
        k("s_lshl_b32 s41, s41, 9")
        k("s_add_u32 s40, s40, s41")
        k("s_and_b32 s41, s24, 1")
        k("s_lshl_b32 s41, s41, 8")
        k("s_add_u32 s40, s40, s41")
        k(f"s_add_u32 s40, s40, {WS_ST1}")
        k("s_mov_b64 exec, 3")
        k("buffer_load_dword v94, v92, s[12:15], s40 offen")
        k("s_mov_b64 exec, -1")
    if fz and fz.xl and "K" in PT and repack and QK1D:
        k("s_lshr_b32 s42, s25, 3")
        k("s_mul_i32 s40, s33, 5120")
        k("s_mul_i32 s41, s42, 20480")
        k("s_add_u32 s40, s40, s41")
        k("s_add_u32 s40, s40, s50")
        k(f"s_add_u32 s40, s40, {QK1D}")
        k("s_mul_i32 s41, s24, 81920")
        k("s_mul_i32 s42, s42, 10240")
        k("s_add_u32 s41, s41, s42")
        k("s_mul_i32 s42, s33, 2560")
        k("s_add_u32 s41, s41, s42")
        k(f"s_add_u32 s41, s41, {WS_Q + QK1D - 40*128}")
        k("v_mov_b32 v89, s41")
        k("v_mov_b32 v95, s40")
        k("v_cmp_gt_u32 vcc, 40, v0")
        k("s_nop 1")
        k("v_cndmask_b32 v89, v89, v95, vcc")
        k("v_lshlrev_b32 v95, 7, v0")
        k("v_add_u32 v89, v89, v95")
        k("s_mov_b32 exec_hi, 0xfffffff")
        k("buffer_load_dword v95, v89, s[12:15], 0 offen")
        k("s_mov_b32 exec_hi, -1")
    if fz and fz.xl and PFA and not repack:
        att_prefetch(k, PFA, 21, 33, 128, 129)
    if (phl != 0 or (repack and RPRIO) or HPRI) and not (fz and repack and HHI): k(f"s_setprio {phl}")
    if HST: k.stamp(1)
    if fz and repack:
        def hook(t):
            if HHI and t == HHI: k(f"s_setprio {phl}")
            if t == WFT[0]:
                fz.wflag_set(33, 128, younger=((("o" in PT) + 2 * ("y" in PT) + (1 if ("K" in PT and QK1D) else 0)) if (WFY and fz.xl) else 0))
                if HST == 1: k.stamp(0)
            if t == WFT[1]: fz.wflag_issue(128)
        loop("h", h, uh, None, hook)
        fz.wflag_wait(128)
    else:
        loop("h", h, uh, None)
    finish(1)
    if fz is None:
        k.lab("end")
        k("s_endpgm")
    k.lab("compute")
    if pm != 0: k(f"s_setprio {pm}")
    k("s_waitcnt lgkmcnt(0)")
    k.srd(12, 6, 0, WS_SIZE)
    if fz and fz.p > 0:
        init_regs()
        if XST: k.stamp(1)
        k("s_barrier")
        q_loads()
    else:
        q_loads()
        init_regs()
    if not (XST and fz and fz.p > 0): k.stamp(1)
    k("s_waitcnt vmcnt(0)")
    k("s_barrier")
    k.stamp(2)
    loop("m", TM, um, [4, 8, stream] if stream else b2)
    finish(0)
    return k
```
